```python
import torch

def _softmax(x, axis=-1):
    return torch.softmax(x, dim=axis)
def _gelu(x):
    return torch.nn.functional.gelu(x, approximate="tanh")
def _silu(x):
    return torch.nn.functional.silu(x)
def _sigmoid(x):
    return torch.sigmoid(x)
def _layernorm(x, axis=-1, eps=1e-5):
    m = x.mean(dim=axis, keepdim=True)
    v = x.var(dim=axis, keepdim=True, unbiased=False)
    return (x - m) / torch.sqrt(v + eps)
def _scatter_add(tgt, idx, src, axis=0):
    return tgt.clone().index_add_(axis, idx, src)
def _segment_sum(src, seg, n):
    out = torch.zeros((n,) + src.shape[1:], dtype=src.dtype)
    return out.index_add_(0, seg, src)
def _pad(x, pw):
    flat = tuple(v for pair in reversed(pw) for v in pair)
    return torch.nn.functional.pad(x, flat)

kernel_name = 'interleave_layers__sliding_block_cached__glu_gated_reglu__decode'

def setup_inputs():

    _w = (lambda a: (lambda t: t.to(torch.bfloat16) if t.is_floating_point() else t)(torch.as_tensor(a)))
    def _A_setup():
        B, Sq, D = 4, 1, 512
        Hq, Hkv, Sk, Dh = 32, 8, 16384, 128
        assert Hq % Hkv == 0, (Hq, Hkv)
        return {
            "x": _w((lambda *s: torch.randn(*s, dtype=torch.bfloat16) * 0.05)(B, Sq, D)),
            "k_cache": _w((lambda *s: torch.randn(*s, dtype=torch.bfloat16) * 0.8)(B, Hkv, Sk, Dh)),
            "v_cache": _w((lambda *s: torch.randn(*s, dtype=torch.bfloat16) * 0.8)(B, Hkv, Sk, Dh)),
            "wq": _w((lambda *s: torch.randn(*s, dtype=torch.bfloat16) * 0.8)(D, Hq * Dh) * (D ** -0.5)),
            "wo": _w((lambda *s: torch.randn(*s, dtype=torch.bfloat16) * 0.8)(Hq * Dh, D) * ((Hq * Dh) ** -0.5)),
        }
    _A_in = _A_setup()

    def _B_setup():
        B, S, D, F = 4, 1, 512, 1792
        return {
            "x": _w((lambda *s: torch.randn(*s, dtype=torch.bfloat16) * 0.05)(B, S, D)),
            "W_gate": _w((lambda *s: torch.randn(*s, dtype=torch.bfloat16) * 0.2)(D, F) * (2.0 / D) ** 0.5),
            "W_up": _w((lambda *s: torch.randn(*s, dtype=torch.bfloat16) * 0.2)(D, F) * (2.0 / D) ** 0.5),
            "W_down": _w((lambda *s: torch.randn(*s, dtype=torch.bfloat16) * 0.2)(F, D) * (1.0 / F) ** 0.5),
        }
    _B_in = _B_setup()

    return {
        "A_x": _A_in["x"],
        "A_k_cache": _A_in["k_cache"],
        "A_v_cache": _A_in["v_cache"],
        "A_wq": _A_in["wq"],
        "A_wo": _A_in["wo"],
        "B_x": _B_in["x"],
        "B_W_gate": _B_in["W_gate"],
        "B_W_up": _B_in["W_up"],
        "B_W_down": _B_in["W_down"],
    }

def reference(A_x, A_k_cache, A_v_cache, A_wq, A_wo, B_x, B_W_gate, B_W_up, B_W_down):
    def _A_ref(x, k_cache, v_cache, wq, wo):
        B, Sq, D = x.shape
        Hq, Dh = 32, 128
        Hkv, Sk = k_cache.shape[1], k_cache.shape[2]
        W = min(4096, max(256, Sk // 4))
        rep = Hq // Hkv
        q = (lambda x, *d: x.permute(*d))((x @ wq).reshape(B, Sq, Hq, Dh), 0, 2, 1, 3)
        k = (lambda x, n, axis: torch.repeat_interleave(x, n, dim=axis))(k_cache[:, :, Sk - W:, :], rep, axis=1)
        v = (lambda x, n, axis: torch.repeat_interleave(x, n, dim=axis))(v_cache[:, :, Sk - W:, :], rep, axis=1)
        scores = torch.einsum("bhqd,bhkd->bhqk", q, k) * (Dh ** -0.5)
        p = _softmax(scores, axis=-1)
        o = torch.einsum("bhqk,bhkd->bhqd", p, v)
        return (lambda x, *d: x.permute(*d))(o, 0, 2, 1, 3).reshape(B, Sq, Hq * Dh) @ wo

    def _B_ref(x, W_gate, W_up, W_down):
        gate = torch.einsum("bsd,df->bsf", x, W_gate)
        up = torch.einsum("bsd,df->bsf", x, W_up)
        gate = gate * (lambda x, dt: x.to(dt))(gate > 0, gate.dtype)
        h = gate * up
        return torch.einsum("bsf,fd->bsd", h, W_down)

    x = A_x
    x = x + _A_ref(_layernorm(x, axis=-1), A_k_cache, A_v_cache, A_wq, A_wo)
    x = x + _B_ref(_layernorm(x, axis=-1), B_W_gate, B_W_up, B_W_down)
    x = x + _A_ref(_layernorm(x, axis=-1), A_k_cache, A_v_cache, A_wq, A_wo)
    x = x + _B_ref(_layernorm(x, axis=-1), B_W_gate, B_W_up, B_W_down)
    return x
```

```python
import re

def regs_of(tok):
    tok = tok.strip()
    tok = tok.lstrip('-').strip('|')
    m = re.fullmatch(r'(?:abs|neg)\((.*)\)', tok)
    if m: tok = m.group(1)
    if tok == 'vcc': return {('s', 106), ('s', 107)}
    if tok == 'vcc_lo': return {('s', 106)}
    if tok == 'vcc_hi': return {('s', 107)}
    if tok == 'exec': return {('s', 126), ('s', 127)}
    if tok in ('exec_lo',): return {('s', 126)}
    if tok in ('exec_hi',): return {('s', 127)}
    if tok == 'm0': return {('s', 124)}
    m = re.fullmatch(r'([vas])(\d+)', tok)
    if m: return {(m.group(1), int(m.group(2)))}
    m = re.fullmatch(r'([vas])\[(\d+):(\d+)\]', tok)
    if m: return {(m.group(1), i) for i in range(int(m.group(2)), int(m.group(3)) + 1)}
    return set()

def split_ops(s):
    ops, depth, cur = [], 0, ''
    for ch in s + ',':
        if ch in '[(': depth += 1
        elif ch in '])': depth -= 1
        if ch == ',' and depth == 0:
            ops.append(cur.strip()); cur = ''
        else: cur += ch
    return [o for o in ops if o]

TRANS = ('v_exp_f32', 'v_log_f32', 'v_rcp_f32', 'v_rsq_f32', 'v_sqrt_f32', 'v_sin_f32', 'v_cos_f32')

class Ins:
    def __init__(self, text):
        self.text = text
        t = text.split(';')[0].strip()
        self.label = t[:-1] if t.endswith(':') else None
        self.directive = t.startswith('.') or t == ''
        self.mn = '' if (self.label or self.directive) else t.split()[0]
        rest = t[len(self.mn):] if self.mn else ''
        raw = split_ops(rest)
        self.ops = [o.split()[0] for o in raw]
        self.mods = ' '.join(' '.join(o.split()[1:]) for o in raw)
        mn = self.mn
        self.is_mfma = mn.startswith('v_mfma') or mn.startswith('v_smfmac')
        self.is_valu = mn.startswith('v_') and not self.is_mfma
        self.is_ds = mn.startswith('ds_')
        self.is_vmem = mn.startswith('buffer_') or mn.startswith('global_')
        self.is_salu = mn.startswith('s_')
        self.is_dpp = '_dpp' in mn or 'quad_perm' in self.mods or 'row_' in self.mods
        self.is_trans = any(mn.startswith(x) for x in TRANS)
        self.is_dot = mn.startswith('v_dot')
        self.is_perml = mn.startswith('v_permlane')
        self.is_rdlane = mn.startswith('v_readlane') or mn.startswith('v_readfirstlane')
        self.is_branch = mn.startswith('s_cbranch') or mn == 's_branch'
        self.lds_dma = self.is_vmem and re.search(r'\blds\b', self.mods) is not None
        R = [regs_of(o) for o in self.ops]
        self.w, self.r = set(), set()
        self.srcC = set(); self.srcAB = set(); self.stdata = set()
        if self.is_mfma:
            self.w = R[0]; self.srcAB = R[1] | R[2]
            self.srcC = R[0] if mn.startswith('v_smfmac') else R[3]
            self.r = self.srcAB | self.srcC | (R[3] if mn.startswith('v_smfmac') else set())
        elif self.is_valu:
            if self.is_perml: self.w = R[0] | R[1]; self.r = R[0] | R[1]
            else:
                self.w = R[0]; self.r = set().union(*R[1:]) if len(R) > 1 else set()
                if mn.startswith(('v_fmac', 'v_dot2c', 'v_pk_fmac')): self.r |= R[0]
                if mn.startswith('v_cndmask') and len(self.ops) == 3: self.r |= regs_of('vcc')
                if mn.startswith('v_cmpx'): self.w |= regs_of('exec')
        elif self.is_ds:
            if mn.startswith(('ds_read', 'ds_bpermute', 'ds_permute', 'ds_swizzle')): self.w = R[0]; self.r = set().union(*R[1:])
            else: self.r = set().union(*R)
        elif self.is_vmem:
            if mn.startswith('buffer_'):
                if self.lds_dma: self.r = set().union(*R) | regs_of('m0')
                elif 'load' in mn: self.w = R[0]; self.r = set().union(*R[1:])
                else:
                    self.r = set().union(*R); self.stdata = R[0]
                    if 'atomic' in mn and 'sc0' in self.mods: self.w = R[0]
            else:
                if 'load' in mn: self.w = R[0]; self.r = set().union(*R[1:])
                else: self.r = set().union(*R); self.stdata = R[1]
        elif self.is_salu and R:
            if mn.startswith(('s_cmp', 's_cbranch', 's_branch', 's_waitcnt', 's_nop', 's_barrier', 's_sleep', 's_setprio', 's_bitcmp', 's_endpgm')):
                self.r = set().union(*R)
            else:
                self.w = R[0]; self.r = set().union(*R[1:]) if len(R) > 1 else set()
                if 'saveexec' in mn: self.w |= regs_of('exec')
    def slots(self):
        if self.label or self.directive: return 0
        if self.mn == 's_nop': return int(self.ops[0], 0) + 1
        return 1

def vg(s): return {x for x in s if x[0] in 'va'}
def sg(s): return {x for x in s if x[0] == 's'}

def need(p, c):
    n = 0
    if p.is_valu:
        wv, ws = vg(p.w), sg(p.w)
        if c.is_mfma and wv & c.r: n = max(n, 2)
        if c.is_valu and c.is_dpp and wv & c.r: n = max(n, 2)
        if c.is_perml and wv & c.r: n = max(n, 2)
        if c.is_rdlane and wv & c.r: n = max(n, 1)
        if p.is_trans and (c.is_valu or c.is_mfma) and not c.is_trans and wv & c.r: n = max(n, 1)
        if p.is_trans and (c.is_ds or c.is_vmem) and wv & c.r: n = max(n, 1)
        if p.is_dot and (wv & (c.r | c.w)):
            same = c.mn == p.mn and not (wv & set().union(*[regs_of(o) for o in c.ops[1:3]]))
            if not same: n = max(n, 3)
        if ws:
            if c.is_valu and ws & c.r: n = max(n, 4 if c.is_rdlane or c.mn.startswith('v_writelane') else 2)
            if c.is_vmem and ws & c.r: n = max(n, 5)
            if c.is_salu and ws & c.r: n = max(n, 1)
            if ws & regs_of('exec'):
                if c.is_dpp: n = max(n, 5)
                if c.is_mfma or c.is_perml or c.is_rdlane: n = max(n, 4)
    if p.is_mfma:
        passes = 8 if '32x32' in p.mn else (8 if ('smfmac' in p.mn and False) else 4)
        full = {4: 8, 8: 12}[passes]; part = {4: 6, 8: 10}[passes]; war = {4: 3, 8: 7}[passes]
        if c.is_mfma:
            if p.w & c.srcAB: n = max(n, full)
            if p.w & c.srcC and not (p.w == c.srcC): n = max(n, part)
            if p.w & c.w and not (p.w & c.srcC): n = max(n, full)
        elif (c.is_valu or c.is_ds or c.is_vmem):
            if p.w & (c.r | c.w): n = max(n, full)
            if c.is_valu and p.srcC & c.w: n = max(n, war)
    if p.is_vmem and p.stdata and len(p.stdata) >= 3:
        if p.stdata & c.w: n = max(n, 2)
    if p.is_salu and regs_of('m0') & p.w and c.lds_dma: n = max(n, 1)
    return n

LOOK = 14
def fix_hazards(lines):
    ins = [Ins(l) for l in lines]
    out = []
    for c in ins:
        hint = re.match(r';;need(\d+) (.*)', c.text)
        if hint:
            cc = Ins(hint.group(2)); dist = int(hint.group(1)); req = 0
            for p in reversed(out):
                if dist >= LOOK: break
                if not (p.label or p.directive):
                    req = max(req, need(p, cc) - dist)
                dist += p.slots()
            if req > 0: out.append(Ins(f's_nop {req-1}'))
            continue
        if not (c.label or c.directive):
            dist = 0; req = 0
            for p in reversed(out):
                if dist >= LOOK: break
                if not (p.label or p.directive):
                    k = need(p, c) - dist
                    if k > req: req = k
                dist += p.slots()
            while req > 0:
                k = min(req, 16); out.append(Ins(f's_nop {k-1}')); req -= k
        out.append(c)
    pos = {x.label: i for i, x in enumerate(out) if x.label}
    probs = []
    for b, x in enumerate(out):
        if x.is_branch and x.ops[0] in pos:
            pre = []; d = 0
            for p in reversed(out[:b + 1]):
                if d >= LOOK: break
                pre.append((p, d)); d += p.slots()
            d2 = 0
            for c in out[pos[x.ops[0]]:]:
                if d2 >= LOOK: break
                if not (c.label or c.directive):
                    for p, dp in pre:
                        if not (p.label or p.directive) and need(p, c) > dp + d2:
                            probs.append(f'branch {x.text.strip()} : {p.text.strip()} -> {c.text.strip()} needs {need(p, c)} has {dp + d2}')
                    if c.mn == 's_branch' or c.mn == 's_endpgm': break
                d2 += c.slots()
    return [x.text for x in out], probs

class Asm:
    def __init__(self):
        self.L = []
        self.vm = []
    def __call__(self, s):
        for line in s.strip('\n').split('\n'):
            self.L.append(line.strip())
    def vmop(self, s, tag=None):
        self(s); self.vm.append(tag)
    def wait_vm(self, tag=None, extra=''):
        if tag is None:
            n = 0
        else:
            idx = max(i for i, t in enumerate(self.vm) if t == tag)
            n = len(self.vm) - 1 - idx
        assert n <= 63
        self(f's_waitcnt vmcnt({n}) {extra}'.strip())
        self.vm = self.vm[len(self.vm) - n:] if n else []
    def text(self):
        out, probs = fix_hazards(self.L)
        return '\n'.join(out) + '\n', probs
```

```python
import sys, math, struct
sys.path.insert(0, 'gen')
from asmlib import Asm

NAME = "interleave_layers__sliding_block_cached__glu_gated_reglu__decode"

QC = 0x000000
LB = 0x020000
oQP, oQS, oOP, oML, oGP, oGS, oXA, oXB, oGC, LS = 0x0, 0x80000, 0x82000, 0x102000, 0x104000, 0x184000, 0x186000, 0x1A6000, 0x1C6000, 0x1E6000
CLEAN0 = LB + oOP
CLEAN_WG = 13056
WS_REC = 0x400000
OOB = 0x7FFF0000
L_RING, L_WQ, L_WO, L_WG, L_WU, L_WD = 0, 65536, 81920, 98304, 106496, 114688
L_QS, L_OS, L_HS, L_XS, L_RG, L_RO, L_RM = 122880, 124160, 125440, 126208, 127168, 131264, 148160
LDS_BYTES = 148480

def f32(x): return '0x%08x' % struct.unpack('<I', struct.pack('<f', x))[0]
QSCALE = 128 ** -0.5 * math.log2(math.e)

sW, sG, sC, sHI, sLO = 's3', 's4', 's5', 's6', 's7'
WS, KK, VV, WQ, WO, WG, WU, WD, XX, OUT, DBG = [f's[{i}:{i+3}]' for i in range(8, 52, 4)]
sKV, sRING, t0, t1, t2, t3 = 's52', 's53', 's54', 's55', 's56', 's57'
sLAY, sTO, sFAST, sCNT, sGOK, sLIDX = 's58', 's59', 's60', 's61', 's62', 's63'
sQg, sOg, sGg, sQSg, sMLg, sGSg, sXg, sQCg, sGCg = ['s%d' % i for i in range(66, 75)]
sOPst, sMLst, sXst, sQSst, sGSst = ['s%d' % i for i in range(75, 80)]
sC10, sC01 = 's88', 's89'
g0, g1, g2, g3 = 's90', 's91', 's92', 's93'
vL, vT4, vSt8, vXg, vQst, vGst, vSSt, vOPst, vXst, vQW, vBR320, vHW, vBR192, vXR, vXW, vT8 = ['v%d' % i for i in range(16)]
vROW, vROR, vRMW, vRMR, vWQr, vGUr, vWOr, vCSQ, vCSG, vX0, vX1, vTS, vC4, vRGR = ['v%d' % i for i in range(16, 30)]
vTMP, vTMP2 = 'v30', 'v31'
vMLst = 'v112'

def build(ts=False, gdelay=10, gdelay_hi=13, pf_code=True):
    A = Asm()
    uid = [0]
    def lab(p):
        uid[0] += 1; return f'L_{p}_{uid[0]}'
    nts = [0]; inloop = [False]
    def stamp():
        if not ts: return
        if inloop[0]:
            A(f's_memrealtime s[94:95]\ns_mul_i32 m0, {sLIDX}, 11\ns_add_u32 m0, m0, {nts[0]}\ns_waitcnt lgkmcnt(0)\nv_writelane_b32 {vTS}, s94, m0')
        else:
            A(f's_memrealtime s[94:95]\ns_waitcnt lgkmcnt(0)\nv_writelane_b32 {vTS}, s94, {nts[0]}')
        nts[0] += 1
    def set_exec(lo, hi=None):
        hi = lo if hi is None else hi
        A(f's_mov_b32 exec_lo, {lo:#x}\ns_mov_b32 exec_hi, {hi:#x}')
    def full_exec(): A('s_mov_b64 exec, -1')
    def lstore(fmt, tag='st', nxt=None):
        a, b = lab('pl'), lab('sd')
        A(';;need2 ' + fmt)
        if nxt: A(';;need4 ' + nxt)
        A(f's_cmp_eq_u32 {sFAST}, 1\ns_cbranch_scc1 {a}')
        A(fmt + ' sc1'); A(f's_branch {b}\n{a}:'); A(fmt); A(f'{b}:')
        A.vm.append(tag)

    A(f'; @launch grid=(256,1,1) block=(512,1,1) lds={LDS_BYTES}')
    A('.amdgcn_target "amdgcn-amd-amdhsa--gfx950"')
    A(f'.text\n.globl {NAME}_kernel\n.p2align 8\n.type {NAME}_kernel,@function\n{NAME}_kernel:')
    A('s_cmp_ge_u32 s2, 256\ns_cbranch_scc1 L_end')
    if ts: A(f'v_mov_b32 {vTS}, 0')
    stamp()
    A('s_load_dwordx16 s[64:79], s[0:1], 0\ns_load_dwordx8 s[80:87], s[0:1], 64')
    A(f'v_lshrrev_b32 {vTMP}, 6, v0\nv_lshlrev_b32 {vT4}, 2, v0\nv_lshlrev_b32 {vT8}, 3, v0')
    A(f'v_readfirstlane_b32 {sW}, {vTMP}')
    A(f'v_and_b32 v126, 127, v0')
    A(f'v_lshrrev_b32 v127, 7, v0')
    A(f'v_and_b32 {vL}, 63, v0')
    A(f's_and_b32 {sG}, s2, 7\ns_lshr_b32 {sC}, s2, 3\ns_lshr_b32 {sHI}, {sC}, 3\ns_and_b32 {sLO}, {sC}, 7')
    A(f'v_and_b32 v120, 15, {vL}\nv_lshrrev_b32 v121, 4, {vL}\nv_and_b32 v122, 3, {vL}\nv_lshrrev_b32 v123, 2, v120')
    A(f's_lshl_b32 {t0}, {sHI}, 3\ns_add_u32 {t0}, {t0}, {sG}\ns_lshl_b32 {sKV}, {t0}, 22\ns_lshl_b32 {t0}, {sLO}, 17\ns_add_u32 {sKV}, {sKV}, {t0}\ns_add_u32 {sKV}, {sKV}, {12288*256}')
    A(f's_add_u32 {t0}, {sG}, {sC}\ns_add_u32 {t0}, {t0}, {sW}\ns_and_b32 {t0}, {t0}, 7\ns_lshl_b32 {t0}, {t0}, 12\ns_add_u32 {sKV}, {sKV}, {t0}')
    A(f's_lshl_b32 {sRING}, {sW}, 13')
    A(f'v_xor_b32 {vTMP}, v120, v121\nv_lshlrev_b32 {vTMP}, 4, {vTMP}\nv_lshl_add_u32 v112, v121, 8, {vTMP}')
    for q in range(1, 4): A(f'v_xor_b32 v{112+q}, {64*q}, v112')
    A(f's_and_b32 {t0}, {sW}, 1\ns_lshl_b32 {t1}, {t0}, 3')
    A(f'v_lshlrev_b32 {vTMP}, 1, v121\nv_or_b32 {vTMP}, {t1}, {vTMP}\nv_xor_b32 {vTMP}, v120, {vTMP}\nv_lshlrev_b32 {vTMP}, 4, {vTMP}\nv_lshl_add_u32 v124, v121, 13, {vTMP}')
    A(f's_lshl_b32 {t0}, {sLO}, 11\ns_lshl_b32 {t1}, {sHI}, 9\ns_add_u32 {t0}, {t0}, {t1}\ns_lshl_b32 {t1}, {sW}, 6\ns_add_u32 {t0}, {t0}, {t1}')
    A(f's_lshl_b32 {t1}, {sG}, 16\ns_add_u32 {t1}, {t1}, {t0}\ns_add_u32 {t1}, {t1}, {LB+oQP}')
    A(f's_lshl_b32 {t2}, {sG}, 14\ns_add_u32 {t2}, {t2}, {t0}\ns_add_u32 {t2}, {t2}, {QC}')
    A(f'v_lshlrev_b32 {vTMP}, 14, v120\nv_add_u32 {vTMP}, {t1}, {vTMP}\nv_mov_b32 {vTMP2}, {t2}')
    A(f'v_cmp_eq_u32 vcc, 4, v120\nv_cndmask_b32 {vTMP}, {vTMP}, {vTMP2}, vcc\nv_mov_b32 {vTMP2}, {OOB}\nv_cmp_lt_u32 vcc, 4, v120\nv_cndmask_b32 {vTMP}, {vTMP}, {vTMP2}, vcc')
    A(f'v_lshl_add_u32 {vQst}, v121, 4, {vTMP}')
    A(f'v_lshlrev_b32 {vTMP}, 6, v122\nv_add_u32 {vTMP2}, 4, {vTMP}\nv_cmp_gt_u32 vcc, 16, {vL}\nv_cndmask_b32 {vTMP}, {vTMP}, {vTMP2}, vcc')
    A(f'v_and_b32 {vTMP2}, {0x1ec*4}, {vT4}\nv_cmp_eq_u32 vcc, 0, {vTMP2}\nv_mov_b32 {vTMP2}, {OOB}\nv_cndmask_b32 {vSSt}, {vTMP2}, {vTMP}, vcc')
    A(f's_lshl_b32 {t0}, {sG}, 2\ns_add_u32 {t0}, {t0}, {sHI}\ns_lshl_b32 {t3}, {t0}, 8\ns_lshl_b32 {t1}, {sLO}, 3\ns_add_u32 {t3}, {t3}, {t1}')
    A(f's_mul_i32 {t1}, s2, {CLEAN_WG}\ns_add_u32 {t1}, {t1}, {CLEAN0}')
    A(f'v_lshlrev_b32 v118, 2, {vT4}\nv_add_u32 v118, {t1}, v118\nv_add_u32 v119, 8192, v118\nv_mov_b32 {vTMP2}, {OOB}\nv_cmp_gt_u32 vcc, {304*4}, {vT4}\nv_cndmask_b32 v119, {vTMP2}, v119, vcc')
    A('v_mov_b32 v64, -1\nv_mov_b32 v65, -1\nv_mov_b32 v66, -1\nv_mov_b32 v67, -1')
    A(f'v_lshrrev_b32 {vTMP}, 5, v126\nv_and_b32 {vTMP2}, 31, v126\nv_lshlrev_b32 v117, 10, {vTMP}\nv_lshl_add_u32 v117, {vTMP2}, 2, v117\ns_lshl_b32 {t1}, {sLO}, 7\nv_add_u32 v117, {t1}, v117')
    A(f'v_mul_u32_u24 {vXW}, 192, {vTMP}\nv_lshl_add_u32 {vXW}, {vTMP2}, 2, {vXW}\nv_add_u32 {vXW}, {L_XS}, {vXW}')
    A('s_waitcnt lgkmcnt(0)')
    def srd(d, lo, n):
        A(f's_mov_b32 s{d}, s{lo}\ns_mov_b32 s{d+1}, s{lo+1}\ns_mov_b32 s{d+2}, {n}\ns_mov_b32 s{d+3}, 0x20000')
    srd(8, 86, WS_REC); srd(12, 66, 0x8000000); srd(16, 68, 0x8000000); srd(20, 70, 4194304); srd(40, 64, 4096)
    A(f's_add_u32 {g0}, {t3}, {LB+oQS}')
    if ts: A('s_mov_b32 s96, s86\ns_mov_b32 s97, s87')
    A.vmop(f'buffer_store_dwordx4 v[64:67], {vQst}, {WS}, 0 offen sc1', 'cl')
    A.vmop(f'buffer_store_dword v64, {vSSt}, {WS}, {g0} offen sc1', 'cl')
    A(f's_lshl_b32 {t1}, {sLO}, 6\ns_lshl_b32 {t2}, {sW}, 3\ns_add_u32 {t1}, {t1}, {t2}\ns_lshl_b32 {t1}, {t1}, 13\ns_lshl_b32 {t2}, {sG}, 10\ns_add_u32 {t1}, {t1}, {t2}\ns_lshl_b32 {t2}, {sHI}, 8\ns_add_u32 {t1}, {t1}, {t2}')
    A(f's_lshl_b32 {t2}, {sW}, 11\ns_add_u32 m0, {t2}, {L_WQ}')
    A.vmop(f'buffer_load_dwordx4 v124, {WQ}, {t1} offen nt lds', 'wq')
    A(f's_add_u32 {t1}, {t1}, 32768\ns_add_u32 m0, m0, 1024')
    A.vmop(f'buffer_load_dwordx4 v124, {WQ}, {t1} offen nt lds', 'wq')
    A.vmop(f'buffer_load_dword v68, v117, {XX}, 0 offen', 'x0')
    A.vmop(f'buffer_store_dwordx4 v[64:67], v118, {WS}, 0 offen sc1', 'cl')
    A.vmop(f'buffer_store_dwordx4 v[64:67], v119, {WS}, 0 offen sc1', 'cl')

    def piece(p):
        t, q = (p % 16) // 4, p % 4
        if q == 0:
            A(f's_add_u32 {g1}, {sKV}, {t*32768}\ns_add_u32 m0, {sRING}, {((p//4)&1)*4096}')
        src = f'v{112+q}' if p < 16 else f'v{116+(q&1)}'
        A.vmop(f'buffer_load_dwordx4 {src}, {KK if p < 16 else VV}, {g1} offen offset:{q*1024} nt lds', f'p{p}')
    for p in range(4): piece(p)

    srd(24, 72, 4194304); srd(44, 82, 4096); srd(48, 84, 256)
    srd(28, 76, 1835008); srd(32, 78, 1835008); srd(36, 80, 1835008)
    A(f's_mul_i32 {t1}, {sG}, 3\ns_add_u32 {t1}, {t1}, 4\ns_lshl_b32 {t2}, {sG}, 2\ns_cmp_ge_u32 {sG}, 4\ns_cselect_b32 {g2}, {t1}, {t2}\ns_add_u32 {g2}, {g2}, {sHI}\ns_min_u32 {g2}, {g2}, 27')
    A(f's_getreg_b32 {t1}, hwreg(HW_REG_XCC_ID)\ns_and_b32 {t1}, {t1}, 7\ns_lshl_b32 {t1}, {t1}, 3\ns_mov_b64 s[64:65], 1\ns_lshl_b64 s[64:65], s[64:65], {t1}')
    A(f's_lshl_b32 {t1}, {t0}, 14')
    A(f's_add_u32 {sQg}, {t1}, {LB+oQP}\ns_add_u32 {sOg}, {t1}, {LB+oOP}\ns_add_u32 {sGg}, {t1}, {LB+oGP}')
    A(f's_lshr_b32 {t2}, {sW}, 1')
    A(f's_lshl_b32 {t1}, {sG}, 2\ns_add_u32 {t1}, {t1}, {t2}\ns_lshl_b32 {t1}, {t1}, 2\ns_add_u32 {t1}, {t1}, {sHI}\ns_lshl_b32 {t1}, {t1}, 6\ns_add_u32 {sQSg}, {t1}, {LB+oQS}')
    A(f's_lshl_b32 {g3}, {sLO}, 3\ns_add_u32 {sMLst}, {t1}, {g3}\ns_add_u32 {sMLst}, {sMLst}, {LB+oML}')
    A(f's_lshl_b32 {t1}, {t0}, 2\ns_add_u32 {t1}, {t1}, {t2}\ns_lshl_b32 {t1}, {t1}, 6\ns_add_u32 {sMLg}, {t1}, {LB+oML}\ns_add_u32 {sGSg}, {t1}, {LB+oGS}')
    A(f's_lshl_b32 {t1}, {sLO}, 14\ns_add_u32 {sXg}, {t1}, {LB+oXA}')
    A(f's_lshl_b32 {g3}, {t0}, 9\ns_add_u32 {sXst}, {sXg}, {g3}')
    A(f's_lshl_b32 {t1}, {sG}, 14\ns_add_u32 {sQCg}, {t1}, {QC}')
    A(f's_lshl_b32 {t1}, {t0}, 12\ns_add_u32 {sGCg}, {t1}, {LB+oGC}')
    A(f's_lshl_b32 {t1}, {sG}, 16\ns_lshl_b32 {g3}, {sLO}, 11\ns_add_u32 {t1}, {t1}, {g3}\ns_lshl_b32 {g3}, {sHI}, 9\ns_add_u32 {t1}, {t1}, {g3}\ns_add_u32 {sOPst}, {t1}, {LB+oOP}')
    A(f's_add_u32 {sQSst}, {t3}, {LB+oQS}\ns_add_u32 {sGSst}, {t3}, {LB+oGS}')
    A(f's_mov_b32 {sLAY}, 0\ns_mov_b32 {sTO}, 400000\ns_mov_b32 {sFAST}, 0\ns_mov_b32 {sCNT}, 0\ns_mov_b32 {sGOK}, 0\ns_mov_b32 {sLIDX}, 0')
    A(f's_mov_b32 {sC10}, 0x00003f80\ns_mov_b32 {sC01}, 0x3f800000')
    A(f'v_and_b32 {vTMP}, 7, {vL}\nv_lshlrev_b32 {vSt8}, 3, {vTMP}')
    A(f'v_lshlrev_b32 {vC4}, 2, v126')
    A(f'v_lshl_add_u32 {vXg}, v127, 12, {vC4}')
    A(f'v_lshl_add_u32 {vOPst}, v127, 14, {vC4}')
    A(f's_lshl_b32 {t1}, {sLO}, 11\ns_add_u32 {t1}, {t1}, {sGg}\ns_lshl_b32 {g3}, {sW}, 6\ns_add_u32 {t1}, {t1}, {g3}')
    A(f's_lshl_b32 {t2}, {sLO}, 9\ns_add_u32 {t2}, {t2}, {sGCg}\ns_add_u32 {t2}, {t2}, {g3}')
    A(f'v_lshlrev_b32 {vTMP}, 9, v120\nv_add_u32 {vTMP}, {t1}, {vTMP}\nv_mov_b32 {vTMP2}, {t2}')
    A(f'v_cmp_eq_u32 vcc, 4, v120\nv_cndmask_b32 {vTMP}, {vTMP}, {vTMP2}, vcc\nv_mov_b32 {vTMP2}, {OOB}\nv_cmp_lt_u32 vcc, 4, v120\nv_cndmask_b32 {vTMP}, {vTMP}, {vTMP2}, vcc')
    A(f'v_lshl_add_u32 {vGst}, v121, 4, {vTMP}')
    A(f's_and_b32 {t1}, {sW}, 3\ns_lshl_b32 {t2}, {t1}, 5')
    A(f'v_lshlrev_b32 {vTMP}, 7, v120\nv_lshl_add_u32 {vTMP}, v121, 3, {vTMP}\nv_add_u32 {vTMP}, {t2}, {vTMP}\nv_mov_b32 {vTMP2}, {OOB}\nv_cmp_gt_u32 vcc, 4, v120\nv_cndmask_b32 {vXst}, {vTMP2}, {vTMP}, vcc')
    A(f'v_mul_u32_u24 {vQW}, 320, v127\nv_lshl_add_u32 {vQW}, v126, 1, {vQW}\nv_add_u32 {vQW}, {L_QS}, {vQW}')
    A(f'v_mul_u32_u24 {vBR320}, 320, v122\nv_lshl_add_u32 {vBR320}, v121, 4, {vBR320}\nv_add_u32 {vBR320}, {L_QS}, {vBR320}')
    A(f'v_mul_u32_u24 {vBR192}, 192, v122\nv_lshl_add_u32 {vBR192}, v121, 4, {vBR192}\nv_add_u32 {vBR192}, {L_HS}, {vBR192}')
    A(f'v_min_u32 {vTMP}, 4, v120\nv_mul_u32_u24 {vXR}, 192, {vTMP}\nv_lshl_add_u32 {vXR}, v121, 4, {vXR}\nv_add_u32 {vXR}, {L_XS}, {vXR}')
    A(f'v_lshrrev_b32 {vTMP}, 3, v126\nv_lshlrev_b32 {vTMP}, 2, {vTMP}\nv_add_u32 {vTMP}, {vTMP}, v122\nv_mul_u32_u24 {vHW}, 192, v127\nv_lshl_add_u32 {vHW}, {vTMP}, 1, {vHW}\nv_add_u32 {vHW}, {L_HS}, {vHW}')
    A(f'v_add_u32 {vT8}, {L_RG}, {vT8}\nv_lshlrev_b32 {vRGR}, 3, v126\nv_add_u32 {vRGR}, {L_RG}, {vRGR}')
    A(f's_mul_i32 {t2}, {sW}, 2112\ns_add_u32 {t2}, {t2}, {L_RO}')
    A(f'v_mul_u32_u24 {vROW}, 528, v122\nv_lshl_add_u32 {vROW}, v123, 6, {vROW}\nv_lshl_add_u32 {vROW}, v121, 4, {vROW}\nv_add_u32 {vROW}, {t2}, {vROW}')
    A(f'v_mul_u32_u24 {vROR}, 528, v127\nv_add_u32 {vROR}, {vROR}, {vC4}\nv_add_u32 {vROR}, {L_RO}, {vROR}')
    A(f's_lshl_b32 {t2}, {sW}, 3\ns_add_u32 {t2}, {t2}, {L_RM}\nv_lshlrev_b32 {vRMW}, 6, v122\nv_add_u32 {vRMW}, {t2}, {vRMW}')
    A(f'v_lshlrev_b32 {vRMR}, 6, v127\nv_add_u32 {vRMR}, {L_RM}, {vRMR}')
    A(f'v_lshl_add_u32 v125, v121, 3, v123')
    A(f'v_and_b32 {vTMP}, 1, v121\nv_lshl_add_u32 {vTMP}, {vTMP}, 2, v123')
    A(f'v_xor_b32 {vTMP}, {sW}, {vTMP}\nv_lshlrev_b32 {vTMP}, 5, {vTMP}\nv_lshl_add_u32 {vTMP}, v122, 3, {vTMP}\nv_lshl_add_u32 {vWQr}, v125, 8, {vTMP}\nv_add_u32 {vWQr}, {L_WQ}, {vWQr}')
    A(f'v_lshrrev_b32 {vTMP}, 1, v123\nv_and_b32 {vTMP2}, 1, v121\nv_lshl_add_u32 v119, {vTMP2}, 1, {vTMP}')
    A(f'v_xor_b32 {vTMP}, {t1}, v119\nv_lshlrev_b32 {vTMP}, 5, {vTMP}\nv_lshl_add_u32 {vTMP}, v122, 3, {vTMP}\nv_lshl_add_u32 {vWOr}, v125, 7, {vTMP}\nv_add_u32 {vWOr}, {L_WO}, {vWOr}')
    A(f's_lshr_b32 {t2}, {sW}, 1\ns_and_b32 {g3}, {sW}, 1\ns_lshl_b32 {g3}, {g3}, 4\ns_add_u32 {g3}, {g3}, {L_WG}')
    A(f'v_xor_b32 {vTMP}, {t2}, v119\nv_lshlrev_b32 {vTMP}, 5, {vTMP}\nv_lshrrev_b32 {vTMP2}, 1, v122\nv_lshl_add_u32 {vTMP}, {vTMP2}, 3, {vTMP}\nv_and_b32 {vTMP2}, 1, v122\nv_lshl_add_u32 {vTMP}, {vTMP2}, 13, {vTMP}')
    A(f'v_lshl_add_u32 {vGUr}, v125, 7, {vTMP}\nv_add_u32 {vGUr}, {g3}, {vGUr}')
    A(f'v_lshlrev_b32 {vTMP}, 1, v121\nv_xor_b32 {vTMP}, v120, {vTMP}\nv_lshlrev_b32 {vTMP}, 4, {vTMP}\nv_lshl_add_u32 v116, v121, 8, {vTMP}\nv_xor_b32 v117, 128, v116')
    A(f'v_and_b32 {vTMP}, 1, v121\nv_lshlrev_b32 {vTMP}, 1, {vTMP}\nv_and_b32 {vTMP2}, 7, {vL}\nv_xor_b32 {vTMP}, {vTMP}, {vTMP2}\nv_lshlrev_b32 {vTMP}, 4, {vTMP}')
    A(f'v_lshrrev_b32 {vTMP2}, 3, {vL}')
    A(f'v_lshl_add_u32 v124, {vTMP2}, 10, {vTMP}\nv_xor_b32 v125, 64, v124')
    A(f's_and_b32 {g3}, {sW}, 1\ns_lshl_b32 {g3}, {g3}, 6\nv_xor_b32 {vTMP}, {g3}, {vTMP}')
    A(f'v_lshl_add_u32 v127, {vTMP2}, 10, {vTMP}\nv_mul_u32_u24 v126, 3584, {vTMP2}\nv_add_u32 v126, v126, {vTMP}')
    A(f's_cmp_ge_u32 {sG}, 4\ns_cselect_b32 {t2}, 3, 4\ns_cmp_lt_u32 {sHI}, {t2}\ns_cselect_b32 {t2}, 0, {OOB}\nv_add_u32 v126, {t2}, v126\nv_add_u32 v127, {t2}, v127')
    A(f'v_lshl_add_u32 {vTMP}, v121, 2, v123\nv_and_b32 {vTMP2}, 7, {vTMP}\nv_lshlrev_b32 {vTMP2}, 5, {vTMP2}\nv_lshl_add_u32 {vTMP2}, v122, 3, {vTMP2}\nv_lshl_add_u32 {vTMP2}, {vTMP}, 8, {vTMP2}\nv_add_u32 v122, {sRING}, {vTMP2}')
    A(f'v_xor_b32 {vTMP}, v120, v121\nv_lshlrev_b32 {vTMP}, 4, {vTMP}\nv_lshl_add_u32 {vTMP}, v120, 8, {vTMP}\nv_add_u32 v118, {sRING}, {vTMP}')
    for j in range(1, 4): A(f'v_xor_b32 v{118+j}, {64*j}, v118')
    for r in range(32, 64): A(f'v_mov_b32 v{r}, 0')
    for r in range(108, 112): A(f'v_mov_b32 v{r}, 0x3f803f80')
    A(f'v_and_b32 {vTMP}, 31, {vL}\nv_lshlrev_b32 {vTMP}, 2, {vTMP}\nv_add_u32 {vTMP}, {L_XS+4*192}, {vTMP}\nds_write_b32 {vTMP}, v108')

    A.wait_vm('cl')
    A(f'ds_write_b32 {vXW}, v68\nv_lshlrev_b32 {vX0}, 16, v68\nv_and_b32 {vX1}, 0xffff0000, v68')
    A('s_waitcnt lgkmcnt(0)\ns_barrier')
    stamp()
    A(f's_lshl_b32 {t1}, {sG}, 5')
    A(f'v_mov_b32 v74, s64\nv_mov_b32 v75, s65\nv_mov_b32 {vTMP2}, {OOB}\nv_cmp_eq_u32 vcc, 0, {vT4}\nv_cndmask_b32 {vTMP}, {vTMP2}, 0, vcc')
    A.vmop(f'buffer_atomic_add_x2 v[74:75], {vTMP}, {DBG}, {t1} offen sc1', 'at')
    A('s_lshl_b64 s[64:65], s[64:65], 5')

    def read_w2(vaddr, off, stride_j, stride_u):
        for j in range(2):
            for u in range(2):
                A(f'ds_read_b64_tr_b16 v[{80+4*j+2*u}:{81+4*j+2*u}], {vaddr} offset:{off+j*stride_j+u*stride_u}')
    def matvec(vst, sst, first):
        A(f'ds_read_b128 v[64:67], {vXR}\nds_read_b128 v[68:71], {vXR} offset:64\ns_waitcnt lgkmcnt(0)')
        A('v_mfma_f32_16x16x32_bf16 v[96:99], v[80:83], v[64:67], 0\nv_mfma_f32_16x16x32_bf16 v[96:99], v[84:87], v[68:71], v[96:99]')
        A('v_mfma_f32_16x16x32_bf16 v[100:103], v[64:67], v[64:67], 0\nv_mfma_f32_16x16x32_bf16 v[100:103], v[68:71], v[68:71], v[100:103]')
        if first is True: pass
        elif first is False: set_exec(0x000f000f)
        else:
            A(f's_cmp_eq_u32 {sLIDX}, 0\ns_cselect_b32 exec_lo, -1, 0x000f000f\ns_cselect_b32 exec_hi, -1, 0x000f000f')
        lstore(f'buffer_store_dwordx4 v[96:99], {vst}, {WS}, {sLAY} offen', nxt='v_mov_b32 v100, v101')
        for k in (1, 2, 3):
            A(f's_mov_b64 exec, {1<<k}\nv_mov_b32 v100, v{100+k}')
        full_exec()
        lstore(f'buffer_store_dword v100, {vSSt}, {WS}, {sst} offen')

    read_w2(vWQr, 0, 8192, 1024)
    matvec(vQst, sQSst, True)
    stamp()

    def issue_g8(dst, voff, sbase, stride, tag):
        if stride == 2048:
            A(f's_add_u32 {t1}, {sbase}, 4096\ns_add_u32 {t2}, {sbase}, 8192\ns_add_u32 {t3}, {sbase}, 12288')
            for i in range(8):
                so = [sbase, t1, t2, t3][i // 2]
                A.vmop(f'buffer_load_dword v{dst+i}, {voff}, {WS}, {so} offen offset:{(i&1)*2048} sc1', tag)
        else:
            for i in range(8):
                A.vmop(f'buffer_load_dword v{dst+i}, {voff}, {WS}, {sbase} offen offset:{i*stride} sc1', tag)
    def check_empty(regs):
        regs = list(regs)
        A(f'v_max3_u32 {vTMP}, v{regs[0]}, v{regs[1]}, v{regs[2]}'); rest = regs[3:]
        while len(rest) >= 2:
            A(f'v_max3_u32 {vTMP}, {vTMP}, v{rest[0]}, v{rest[1]}'); rest = rest[2:]
        if rest: A(f'v_max_u32 {vTMP}, {vTMP}, v{rest[0]}')
        A(f'v_cmp_eq_u32 vcc, -1, {vTMP}')
    def poll(issue, regs):
        r, d = lab('retry'), lab('got')
        A(f'{r}:')
        issue()
        A.wait_vm()
        check_empty(regs)
        A(f's_cbranch_vccz {d}\ns_sub_u32 {sTO}, {sTO}, 1\ns_cbranch_scc0 {r}\ns_mov_b32 {sTO}, 0\n{d}:')
    def issue_cnt():
        A(f'v_lshlrev_b32 {vTMP}, 2, {vSt8}')
        A.vmop(f'buffer_load_dwordx2 v[76:77], {vTMP}, {DBG}, 0 offen sc1', 'cnt')
    def check_cnt():
        d = lab('cn')
        A(f'v_sad_u8 {vTMP}, v76, 0, 0\nv_sad_u8 {vTMP}, v77, 0, {vTMP}\nv_cmp_ne_u32 vcc, 32, {vTMP}\ns_cbranch_vccnz {d}')
        A(f's_mov_b32 {sCNT}, 1\nv_cmp_eq_u64 vcc, s[64:65], v[76:77]\ns_lshr_b32 {t1}, vcc_lo, {sG}\ns_and_b32 {sFAST}, {t1}, 1\n{d}:')
    def issue_q(first):
        issue_g8(64, vT4, sQg, 2048, 'q')
        A.vmop(f'buffer_load_dwordx2 v[72:73], {vSt8}, {WS}, {sQSg} offen sc1', 'q')
        if first: issue_g8(80, vT4, sQCg, 2048, 'q')
    def sum8(dst, src):
        A(f'v_add_f32 v{src}, v{src}, v{src+1}\nv_add_f32 v{src+2}, v{src+2}, v{src+3}\nv_add_f32 v{src+4}, v{src+4}, v{src+5}\nv_add_f32 v{src+6}, v{src+6}, v{src+7}')
        A(f'v_add_f32 v{src}, v{src}, v{src+2}\nv_add_f32 v{src+4}, v{src+4}, v{src+6}\nv_add_f32 {dst}, v{src}, v{src+4}')
    def ln_finish(cs, scale):
        for m in ('quad_perm:[1,0,3,2]', 'quad_perm:[2,3,0,1]', 'row_half_mirror'):
            A(f'v_add_f32_dpp v72, v72, v72 {m} row_mask:0xf bank_mask:0xf\nv_add_f32_dpp v73, v73, v73 {m} row_mask:0xf bank_mask:0xf')
            if m.startswith('quad_perm:[1'): A('v_add_f32 v64, v64, v65\nv_add_f32 v66, v66, v67')
            if m.startswith('quad_perm:[2'): A('v_add_f32 v68, v68, v69\nv_add_f32 v70, v70, v71')
        A(f'v_mul_f32 v72, {f32(1/512)}, v72\nv_add_f32 v64, v64, v66\nv_add_f32 v68, v68, v70')
        A(f'v_mul_f32 v74, v72, v72\nv_mov_b32 v75, {f32(1/512)}\nv_fma_f32 v73, v73, v75, -v74\nv_add_f32 v64, v64, v68')
        A(f'v_max_f32 v73, 0, v73\nv_add_f32 v73, {f32(1e-5)}, v73\nv_rsq_f32 v73, v73\nv_fma_f32 v64, -v72, {cs}, v64')
        if scale != 1.0: A(f'v_mul_f32 v64, {f32(scale)}, v64')
        A('v_mul_f32 v64, v64, v73')
    def q_finish(first):
        if first: sum8(vCSQ, 80)
        ln_finish(vCSQ, QSCALE)
        A(f'v_cvt_pk_bf16_f32 v64, v64, v64\nds_write_b16 {vQW}, v64')

    def read_tile(i):
        so = (i & 1) * 4096
        if i < 4:
            for j in range(4): A(f'ds_read_b128 a[{16*i+4*j}:{16*i+4*j+3}], v{118+j} offset:{so}')
        else:
            t = i - 4; u, hf = t >> 1, t & 1
            for dt in range(8):
                r = 64 + 32 * u + 4 * dt + 2 * hf
                if dt == 0: A(f'ds_read_b64_tr_b16 a[{r}:{r+1}], v122 offset:{so}')
                else: A(f'v_xor_b32 v123, {32*dt}, v122\nds_read_b64_tr_b16 a[{r}:{r+1}], v123 offset:{so}')
        A('s_waitcnt lgkmcnt(0)')
    def step(p):
        A.wait_vm(f'p{p-4}')
        if (p - 4) % 4 == 3: read_tile((p - 4) // 4)
        piece(p)
    for p in range(4, 8): step(p)
    for P in (8, 12, 16, 20, 24):
        skip, join = lab('noq'), lab('jn')
        issue_cnt()
        saved = list(A.vm)
        A(f's_cmp_eq_u32 {sCNT}, 1\ns_cselect_b32 {t0}, 1, 0\ns_cmp_eq_u32 {sGOK}, 0\ns_cselect_b32 {t0}, {t0}, 0\ns_cmp_eq_u32 {t0}, 0\ns_cbranch_scc1 {skip}')
        issue_q(True)
        for p in range(P, P + 4): step(p)
        A.wait_vm('q')
        check_empty(list(range(64, 74)) + list(range(80, 88)))
        nq = lab('nq')
        A(f's_cbranch_vccnz {nq}\ns_mov_b32 {sGOK}, 1')
        q_finish(True)
        A(f'{nq}:\ns_branch {join}\n{skip}:')
        after_q = list(A.vm)
        A.vm = saved
        for p in range(P, P + 4): step(p)
        A.wait_vm('cnt')
        assert A.vm == after_q, (A.vm, after_q)
        A(f'{join}:')
        check_cnt()
    for p in range(28, 32): step(p)
    stamp()
    dn, rc = lab('qdone'), lab('rc')
    A(f's_cmp_eq_u32 {sGOK}, 1\ns_cbranch_scc1 {dn}')
    saved = list(A.vm)
    A(f'{rc}:')
    issue_cnt(); A.wait_vm(); check_cnt()
    cg = lab('cg')
    A(f's_cmp_eq_u32 {sCNT}, 1\ns_cbranch_scc1 {cg}\ns_sub_u32 {sTO}, {sTO}, 1\ns_cbranch_scc0 {rc}\ns_mov_b32 {sTO}, 0\n{cg}:')
    poll(lambda: issue_q(True), list(range(64, 74)) + list(range(80, 88)))
    q_finish(True)
    A(f'{dn}:')
    A.vm = saved

    def scores():
        A('s_waitcnt lgkmcnt(0)\ns_barrier')
        for j in range(4): A(f'ds_read_b128 v[{64+4*j}:{67+4*j}], {vBR320} offset:{64*j}')
        for j in range(4):
            A(f's_waitcnt lgkmcnt({3-j})')
            for t in range(4):
                c = '0' if j == 0 else f'v[{80+4*t}:{83+4*t}]'
                A(f'v_mfma_f32_16x16x32_bf16 v[{80+4*t}:{83+4*t}], a[{16*t+4*j}:{16*t+4*j+3}], v[{64+4*j}:{67+4*j}], {c}')
        for t in range(1, 4):
            for r in range(4):
                A(f'v_mov_b32_dpp v{80+r}, v{80+4*t+r} quad_perm:[0,1,2,3] row_mask:0xf bank_mask:{1<<t:#x}')
        A('v_max3_f32 v84, v80, v81, v82\nv_max_f32 v84, v84, v83')
        A('v_max_f32_dpp v84, v84, v84 row_ror:4 row_mask:0xf bank_mask:0xf')
        A('v_max_f32_dpp v84, v84, v84 row_ror:8 row_mask:0xf bank_mask:0xf')
        A('v_mov_b32 v85, v84\nv_permlane16_swap_b32 v84, v85\nv_max_f32 v84, v84, v85')
        A('v_mov_b32 v85, v84\nv_permlane32_swap_b32 v84, v85\nv_max_f32 v84, v84, v85')
        for r in range(4): A(f'v_sub_f32 v{80+r}, v{80+r}, v84')
        for r in range(4): A(f'v_exp_f32 v{80+r}, v{80+r}')
        A('v_cvt_pk_bf16_f32 v86, v80, v81\nv_cvt_pk_bf16_f32 v87, v82, v83')
        for u in range(2):
            for gam in range(4):
                for hf in range(2):
                    src = 2 * u + hf; sh = (gam - src) % 4
                    m = 'quad_perm:[0,1,2,3]' if sh == 0 else f'row_ror:{4*sh}'
                    for k in range(2):
                        A(f'v_mov_b32_dpp v{32+16*u+4*gam+2*hf+k}, v{86+k} {m} row_mask:0xf bank_mask:{1<<gam:#x}')
    def pv(u):
        for dt in range(8):
            a_ = dt >> 2
            c = '0' if (u == 0 and (dt & 3) == 0) else f'v[{96+4*a_}:{99+4*a_}]'
            b = 32 + 16 * u + 4 * (dt & 3)
            A(f'v_mfma_f32_16x16x32_bf16 v[{96+4*a_}:{99+4*a_}], a[{64+32*u+4*dt}:{67+32*u+4*dt}], v[{b}:{b+3}], {c}')
        c = '0' if u == 0 else 'v[104:107]'
        A(f'v_mfma_f32_16x16x32_bf16 v[104:107], v[108:111], v[{32+16*u}:{35+16*u}], {c}')
    def combine():
        A(f'ds_write_b128 {vROW}, v[96:99]\nds_write_b128 {vROW}, v[100:103] offset:256')
        A(f'v_mov_b32 v85, v104\ns_mov_b64 exec, 15\nds_write_b64 {vRMW}, v[84:85]')
        full_exec()
        A('s_waitcnt lgkmcnt(0)\ns_barrier')
        for k in range(4): A(f'ds_read_b128 v[{80+4*k}:{83+4*k}], {vRMR} offset:{16*k}')
        for k in range(8): A(f'ds_read_b32 v{64+k}, {vROR} offset:{2112*k}')
        A('s_waitcnt lgkmcnt(8)')
        A('v_max3_f32 v72, v80, v82, v84\nv_max3_f32 v73, v86, v88, v90\nv_max3_f32 v72, v72, v92, v94\nv_max_f32 v72, v72, v73')
        for k in range(8): A(f'v_sub_f32 v{80+2*k}, v{80+2*k}, v72')
        for k in range(8): A(f'v_exp_f32 v{80+2*k}, v{80+2*k}')
        A('s_waitcnt lgkmcnt(0)')
        A('v_mul_f32 v64, v64, v80\nv_mul_f32 v65, v65, v82\nv_mul_f32 v73, v81, v80\nv_mul_f32 v74, v83, v82')
        for k in range(2, 8, 2):
            A(f'v_fmac_f32 v64, v{64+k}, v{80+2*k}\nv_fmac_f32 v65, v{65+k}, v{82+2*k}')
        A('v_add_f32 v64, v64, v65')
        lstore(f'buffer_store_dword v64, {vOPst}, {WS}, {sOPst} offen')
        for k in range(2, 8, 2):
            A(f'v_fmac_f32 v73, v{81+2*k}, v{80+2*k}\nv_fmac_f32 v74, v{83+2*k}, v{82+2*k}')
        A('v_add_f32 v73, v73, v74')
        lstore(f'buffer_store_dwordx2 v[72:73], {vMLst}, {WS}, {sMLst} offen')

    A(f'v_mov_b32 {vTMP2}, {OOB}\nv_cmp_eq_u32 vcc, 0, {vC4}\nv_cndmask_b32 {vMLst}, {vTMP2}, 0, vcc')
    scores()
    pv(0)
    stamp()
    A.wait_vm('p31')
    A(f's_lshl_b32 {t1}, {sG}, 9\ns_lshl_b32 {t2}, {sHI}, 7\ns_add_u32 {t1}, {t1}, {t2}\ns_lshl_b32 {t2}, {sW}, 4\ns_add_u32 {t1}, {t1}, {t2}\ns_lshl_b32 {t1}, {t1}, 10\ns_lshl_b32 {t2}, {sLO}, 7\ns_add_u32 {t1}, {t1}, {t2}')
    A(f's_lshl_b32 {t2}, {sW}, 11\ns_add_u32 m0, {t2}, {L_WO}')
    A.vmop(f'buffer_load_dwordx4 v124, {WO}, {t1} offen nt lds', 'wo')
    A(f's_add_u32 {t1}, {t1}, 8192\ns_add_u32 m0, m0, 1024')
    A.vmop(f'buffer_load_dwordx4 v125, {WO}, {t1} offen nt lds', 'wo')
    stamp()
    read_tile(7)
    pv(1)
    combine()
    stamp()

    A('L_layer:'); inloop[0] = True
    def issue_o():
        issue_g8(64, vT4, sOg, 2048, 'o')
        A.vmop(f'buffer_load_dwordx2 v[72:73], {vSt8}, {WS}, {sMLg} offen sc1', 'o')
    poll(issue_o, range(64, 74))
    stamp()
    nw = lab('nw')
    A(f's_cmp_lg_u32 {sLIDX}, 0\ns_cbranch_scc1 {nw}')
    A(f's_lshl_b32 {t1}, {sLO}, 6\ns_lshl_b32 {t2}, {sW}, 3\ns_add_u32 {t1}, {t1}, {t2}\ns_mul_i32 {t1}, {t1}, 3584\ns_lshl_b32 {t2}, {g2}, 7\ns_add_u32 {t1}, {t1}, {t2}')
    A(f's_lshl_b32 {t2}, {sW}, 10\ns_add_u32 m0, {t2}, {L_WG}')
    A(f'buffer_load_dwordx4 v126, {WG}, {t1} offen nt lds')
    A(f's_add_u32 m0, {t2}, {L_WU}')
    A(f'buffer_load_dwordx4 v126, {WU}, {t1} offen nt lds')
    A(f's_lshl_b32 {t1}, {g2}, 6\ns_lshl_b32 {t3}, {sW}, 3\ns_add_u32 {t1}, {t1}, {t3}\ns_lshl_b32 {t1}, {t1}, 10\ns_lshl_b32 {t3}, {sLO}, 7\ns_add_u32 {t1}, {t1}, {t3}\ns_add_u32 m0, {t2}, {L_WD}')
    A(f'buffer_load_dwordx4 v127, {WD}, {t1} offen nt lds')
    A(f'{nw}:')
    A('v_max_f32_dpp v74, v72, v72 quad_perm:[1,0,3,2] row_mask:0xf bank_mask:0xf')
    A('v_max_f32_dpp v74, v74, v74 quad_perm:[2,3,0,1] row_mask:0xf bank_mask:0xf')
    A('v_max_f32_dpp v74, v74, v74 row_half_mirror row_mask:0xf bank_mask:0xf')
    A('v_sub_f32 v72, v72, v74\nv_exp_f32 v72, v72\nv_mul_f32 v73, v73, v72')
    for k in range(8): A(f'v_readlane_b32 s{80+k}, v72, {k}')
    for m in ('quad_perm:[1,0,3,2]', 'quad_perm:[2,3,0,1]', 'row_half_mirror'):
        A(f'v_add_f32_dpp v73, v73, v73 {m} row_mask:0xf bank_mask:0xf')
        if m.startswith('quad_perm:[1'): A('v_mul_f32 v64, s80, v64\nv_mul_f32 v65, s81, v65')
        if m.startswith('quad_perm:[2'): A('v_fmac_f32 v64, s82, v66\nv_fmac_f32 v65, s83, v67')
    A('v_rcp_f32 v73, v73\nv_fmac_f32 v64, s84, v68\nv_fmac_f32 v65, s85, v69\nv_fmac_f32 v64, s86, v70\nv_fmac_f32 v65, s87, v71')
    A(f'v_add_f32 v64, v64, v65\nv_mul_f32 v64, v64, v73\nv_cvt_pk_bf16_f32 v64, v64, v64\nds_write_b16 {vQW}, v64 offset:{L_OS-L_QS}')
    A('s_waitcnt lgkmcnt(0)\ns_barrier')
    def proj_out(nk, vb, boff, woff, xoff):
        sk, dl = lab('sk'), lab('dl')
        A(f's_cmp_ge_u32 {sW}, 4\ns_cbranch_scc1 {sk}')
        for j in range(nk):
            A(f'ds_read_b128 v[{64+4*j}:{67+4*j}], {vb} offset:{boff+64*j}')
            for u in range(2):
                A(f'ds_read_b64_tr_b16 v[{80+4*j+2*u}:{81+4*j+2*u}], {vWOr} offset:{woff+4096*j+512*u}')
        for j in range(nk):
            A(f's_waitcnt lgkmcnt({3*(nk-1-j)})')
            c = '0' if j == 0 else 'v[96:99]'
            A(f'v_mfma_f32_16x16x32_bf16 v[96:99], v[{80+4*j}:{83+4*j}], v[{64+4*j}:{67+4*j}], {c}')
        A(f's_add_u32 {t1}, {sXst}, {xoff}')
        A('v_cvt_pk_bf16_f32 v96, v96, v97\nv_cvt_pk_bf16_f32 v97, v98, v99')
        A(f'buffer_store_dwordx2 v[96:97], {vXst}, {WS}, {t1} offen sc1')
        if gdelay: A(f's_sleep {gdelay}')
        A(f's_branch {dl}\n{sk}:')
        if gdelay_hi: A(f's_sleep {gdelay_hi}')
        A(f'{dl}:')
    def reduce_x(xoff, prefetch, final):
        A(f's_add_u32 {t0}, {sXg}, {xoff}')
        poll(lambda: issue_g8(64, vXg, t0, 512, 'x'), range(64, 72))
        stamp()
        A(f'v_dot2_f32_bf16 v72, v64, {sC10}, 0\nv_dot2_f32_bf16 v73, v64, {sC01}, 0')
        for k in range(1, 8):
            A(f'v_dot2_f32_bf16 v72, v{64+k}, {sC10}, v72\nv_dot2_f32_bf16 v73, v{64+k}, {sC01}, v73')
        A(f'ds_write_b64 {vT8}, v[72:73]\ns_waitcnt lgkmcnt(0)\ns_barrier')
        sk = lab('sk')
        A(f's_cmp_ge_u32 {sW}, 2\ns_cbranch_scc1 {sk}')
        for k in range(4): A(f'ds_read_b64 v[{64+2*k}:{65+2*k}], {vRGR} offset:{1024*k}')
        A('s_waitcnt lgkmcnt(0)')
        A('v_add_f32 v64, v64, v66\nv_add_f32 v65, v65, v67\nv_add_f32 v68, v68, v70\nv_add_f32 v69, v69, v71\nv_add_f32 v64, v64, v68\nv_add_f32 v65, v65, v69')
        A('v_cvt_pk_bf16_f32 v64, v64, v65\nv_and_b32 v65, 0xffff0000, v64\nv_lshlrev_b32 v64, 16, v64')
        A(f'v_add_f32 v64, v64, {vX0}\nv_add_f32 v65, v65, {vX1}\nv_cvt_pk_bf16_f32 v64, v64, v65')
        A(f'ds_write_b32 {vXW}, v64\nv_lshlrev_b32 {vX0}, 16, v64\nv_and_b32 {vX1}, 0xffff0000, v64')
        if final:
            nf = lab('nf')
            A(f's_cmp_eq_u32 {sLIDX}, 0\ns_cbranch_scc1 {nf}')
            A(f'v_lshrrev_b32 v66, 7, {vC4}\nv_and_b32 v67, 127, {vC4}\nv_lshl_add_u32 v66, v66, 10, v67\ns_lshl_b32 {t1}, {sLO}, 7')
            A(f'buffer_store_dword v64, v66, {OUT}, {t1} offen')
            A(f'{nf}:')
        A(f'{sk}:')
        if final: A(f's_cmp_eq_u32 {sLIDX}, 1\ns_cbranch_scc1 L_fin')
        prefetch()
        A('s_waitcnt lgkmcnt(0)\ns_barrier')
    proj_out(4, vBR320, L_OS - L_QS, 0, 0)
    stamp()
    reduce_x(0, lambda: read_w2(vGUr, 0, 4096, 512), False)
    matvec(vGst, sGSst, None)
    stamp()
    def issue_gp(first):
        issue_g8(64, vT4, sGg, 2048, 'g')
        A.vmop(f'buffer_load_dwordx2 v[72:73], {vSt8}, {WS}, {sGSg} offen sc1', 'g')
        if first: issue_g8(80, vC4, sGCg, 512, 'g')
    l1, l2 = lab('g1'), lab('g2')
    A(f's_cmp_lg_u32 {sLIDX}, 0\ns_cbranch_scc1 {l1}')
    poll(lambda: issue_gp(True), list(range(64, 74)) + list(range(80, 88)))
    sum8(vCSG, 80)
    A(f's_branch {l2}\n{l1}:')
    poll(lambda: issue_gp(False), range(64, 74))
    A(f'{l2}:')
    stamp()
    ln_finish(vCSG, 1.0)
    A('v_cvt_pk_bf16_f32 v64, v64, v64\nv_and_b32 v64, 0xffff0000, v64')
    A('v_mov_b32_dpp v65, v64 row_shl:4 row_mask:0xf bank_mask:0xf\nv_max_f32 v64, 0, v64\nv_mul_f32 v64, v64, v65\nv_cvt_pk_bf16_f32 v64, v64, v64')
    set_exec(0x0f0f0f0f)
    A(f'ds_write_b16 {vHW}, v64')
    full_exec()
    A('s_waitcnt lgkmcnt(0)\ns_barrier')
    proj_out(2, vBR192, 0, L_WD - L_WO, oXB - oXA)
    stamp()
    no = lab('no')
    A(f's_cmp_eq_u32 {sLIDX}, 0\ns_cbranch_scc1 {no}\ns_cmp_lg_u32 {sHI}, 0\ns_cbranch_scc1 L_fin\ns_cmp_lg_u32 {sG}, {sLO}\ns_cbranch_scc1 L_fin\n{no}:')
    reduce_x(oXB - oXA, lambda: read_w2(vWQr, 0, 8192, 1024), True)
    A(f's_mov_b32 {sLIDX}, 1\ns_mov_b32 {sLAY}, {LS}')
    for s in (sQg, sOg, sGg, sQSg, sMLg, sGSg, sXg, sOPst, sMLst, sXst, sQSst, sGSst):
        A(f's_add_u32 {s}, {s}, {LS}')
    matvec(vQst, sQSst, False)
    keep = nts[0]; nts[0] -= 11
    stamp()
    poll(lambda: issue_q(False), range(64, 74))
    stamp()
    q_finish(False)
    scores()
    pv(0); pv(1)
    stamp()
    combine()
    stamp()
    A('s_branch L_layer'); nts[0] = keep
    A('L_fin:')
    if ts:
        stamp()
        A(f's_cmp_lg_u32 {sW}, 0\ns_cbranch_scc1 L_end')
        A(f's_add_u32 s96, s96, 0x10000000\ns_addc_u32 s97, s97, 0\ns_lshl_b32 {t1}, s2, 8\nv_lshlrev_b32 v64, 2, {vL}\nv_add_u32 v64, {t1}, v64\nglobal_store_dword v64, {vTS}, s[96:97]')
    A('L_end:\ns_endpgm')
    A(f'.section .rodata,"a"\n.p2align 6\n.amdhsa_kernel {NAME}_kernel')
    A('.amdhsa_next_free_vgpr 256\n.amdhsa_next_free_sgpr 102\n.amdhsa_accum_offset 128\n.amdhsa_group_segment_fixed_size 0\n.amdhsa_kernarg_size 96\n.amdhsa_user_sgpr_count 2\n.amdhsa_user_sgpr_kernarg_segment_ptr 1\n.amdhsa_system_sgpr_workgroup_id_x 1\n.end_amdhsa_kernel')
    txt, probs = A.text()
    for p in probs: print('HAZARD', p, file=sys.stderr)
    return txt, nts[0]

if __name__ == '__main__':
    out = sys.argv[1]
    kw = {}
    for a in sys.argv[2:]:
        k, v = a.split('='); kw[k] = int(v)
    txt, n = build(**kw)
    open(out, 'w').write(txt)
    print('stamps', n, 'lines', txt.count('\n'))
```

```python
import sys, math, struct
sys.path.insert(0, 'gen')
from asmlib import Asm

NAME = "interleave_layers__sliding_block_cached__glu_gated_reglu__decode"

QC = 0x000000
LB = 0x020000
oQP, oQS, oOP, oML, oGP, oGS, oXA, oXB, oGC, LS = 0x0, 0x80000, 0x82000, 0x102000, 0x104000, 0x184000, 0x186000, 0x1A6000, 0x1C6000, 0x1E6000
CLEAN0 = LB + oOP
CLEAN_WG = 13056
WS_REC = 0x400000
OOB = 0x7FFF0000
L_RING, L_WQ, L_WO, L_WG, L_WU, L_WD = 0, 65536, 81920, 98304, 106496, 114688
L_QS, L_OS, L_HS, L_XS, L_RG, L_RO, L_RM = 122880, 124160, 125440, 126208, 127168, 131264, 148160
LDS_BYTES = 148480

def f32(x): return '0x%08x' % struct.unpack('<I', struct.pack('<f', x))[0]
QSCALE = 128 ** -0.5 * math.log2(math.e)

sW, sG, sC, sHI, sLO = 's3', 's4', 's5', 's6', 's7'
WS, KK, VV, WQ, WO, WG, WU, WD, XX, OUT, DBG = [f's[{i}:{i+3}]' for i in range(8, 52, 4)]
sKV, sRING, t0, t1, t2, t3 = 's52', 's53', 's54', 's55', 's56', 's57'
sLAY, sTO, sFAST, sCNT, sGOK, sLIDX = 's58', 's59', 's60', 's61', 's62', 's63'
sQg, sOg, sGg, sQSg, sMLg, sGSg, sXg, sQCg, sGCg = ['s%d' % i for i in range(66, 75)]
sOPst, sMLst, sXst, sQSst, sGSst = ['s%d' % i for i in range(75, 80)]
sC10, sC01 = 's88', 's89'
g0, g1, g2, g3 = 's90', 's91', 's92', 's93'
vL, vT4, vSt8, vXg, vQst, vGst, vSSt, vOPst, vXst, vQW, vBR320, vHW, vBR192, vXR, vXW, vT8 = ['v%d' % i for i in range(16)]
vROW, vROR, vRMW, vRMR, vWQr, vGUr, vWOr, vCSQ, vCSG, vX0, vX1, vTS, vC4, vRGR = ['v%d' % i for i in range(16, 30)]
vTMP, vTMP2 = 'v30', 'v31'
vMLst = 'v112'

def build(ts=False, gdelay=10, gdelay_hi=13, pf_code=True, noclean=0, norides=0, rides=(8, 12, 16, 20, 24), clpol='sc1'):
    A = Asm()
    uid = [0]
    def lab(p):
        uid[0] += 1; return f'L_{p}_{uid[0]}'
    nts = [0]; inloop = [False]
    def stamp(key=False):
        if not ts: return
        if ts == 2 and not key:
            nts[0] += 1; return
        if inloop[0]:
            A(f's_memrealtime s[94:95]\ns_mul_i32 m0, {sLIDX}, 11\ns_add_u32 m0, m0, {nts[0]}\ns_waitcnt lgkmcnt(0)\nv_writelane_b32 {vTS}, s94, m0')
        else:
            A(f's_memrealtime s[94:95]\ns_waitcnt lgkmcnt(0)\nv_writelane_b32 {vTS}, s94, {nts[0]}')
        nts[0] += 1
    def set_exec(lo, hi=None):
        hi = lo if hi is None else hi
        A(f's_mov_b32 exec_lo, {lo:#x}\ns_mov_b32 exec_hi, {hi:#x}')
    def full_exec(): A('s_mov_b64 exec, -1')
    def lstore(fmt, tag='st', nxt=None):
        a, b = lab('pl'), lab('sd')
        A(';;need2 ' + fmt)
        if nxt: A(';;need4 ' + nxt)
        A(f's_cmp_eq_u32 {sFAST}, 1\ns_cbranch_scc1 {a}')
        A(fmt + ' sc1'); A(f's_branch {b}\n{a}:'); A(fmt); A(f'{b}:')
        A.vm.append(tag)

    A(f'; @launch grid=(256,1,1) block=(512,1,1) lds={LDS_BYTES}')
    A('.amdgcn_target "amdgcn-amd-amdhsa--gfx950"')
    A(f'.text\n.globl {NAME}_kernel\n.p2align 8\n.type {NAME}_kernel,@function\n{NAME}_kernel:')
    A('s_cmp_ge_u32 s2, 256\ns_cbranch_scc1 L_end')
    if ts: A(f'v_mov_b32 {vTS}, 0')
    stamp(True)
    A('s_load_dwordx16 s[64:79], s[0:1], 0\ns_load_dwordx8 s[80:87], s[0:1], 64')
    A(f'v_lshrrev_b32 {vTMP}, 6, v0\nv_lshlrev_b32 {vT4}, 2, v0\nv_lshlrev_b32 {vT8}, 3, v0')
    A(f'v_readfirstlane_b32 {sW}, {vTMP}')
    A(f'v_and_b32 v126, 127, v0')
    A(f'v_lshrrev_b32 v127, 7, v0')
    A(f'v_and_b32 {vL}, 63, v0')
    A(f's_and_b32 {sG}, s2, 7\ns_lshr_b32 {sC}, s2, 3\ns_lshr_b32 {sHI}, {sC}, 3\ns_and_b32 {sLO}, {sC}, 7')
    A(f'v_and_b32 v120, 15, {vL}\nv_lshrrev_b32 v121, 4, {vL}\nv_and_b32 v122, 3, {vL}\nv_lshrrev_b32 v123, 2, v120')
    A(f's_lshl_b32 {t0}, {sHI}, 3\ns_add_u32 {t0}, {t0}, {sG}\ns_lshl_b32 {sKV}, {t0}, 22\ns_lshl_b32 {t0}, {sLO}, 17\ns_add_u32 {sKV}, {sKV}, {t0}\ns_add_u32 {sKV}, {sKV}, {12288*256}')
    A(f's_add_u32 {t0}, {sG}, {sC}\ns_add_u32 {t0}, {t0}, {sW}\ns_and_b32 {t0}, {t0}, 7\ns_lshl_b32 {t0}, {t0}, 12\ns_add_u32 {sKV}, {sKV}, {t0}')
    A(f's_lshl_b32 {sRING}, {sW}, 13')
    A(f'v_xor_b32 {vTMP}, v120, v121\nv_lshlrev_b32 {vTMP}, 4, {vTMP}\nv_lshl_add_u32 v112, v121, 8, {vTMP}')
    for q in range(1, 4): A(f'v_xor_b32 v{112+q}, {64*q}, v112')
    A(f's_and_b32 {t0}, {sW}, 1\ns_lshl_b32 {t1}, {t0}, 3')
    A(f'v_lshlrev_b32 {vTMP}, 1, v121\nv_or_b32 {vTMP}, {t1}, {vTMP}\nv_xor_b32 {vTMP}, v120, {vTMP}\nv_lshlrev_b32 {vTMP}, 4, {vTMP}\nv_lshl_add_u32 v124, v121, 13, {vTMP}')
    A(f's_lshl_b32 {t0}, {sLO}, 11\ns_lshl_b32 {t1}, {sHI}, 9\ns_add_u32 {t0}, {t0}, {t1}\ns_lshl_b32 {t1}, {sW}, 6\ns_add_u32 {t0}, {t0}, {t1}')
    A(f's_lshl_b32 {t1}, {sG}, 16\ns_add_u32 {t1}, {t1}, {t0}\ns_add_u32 {t1}, {t1}, {LB+oQP}')
    A(f's_lshl_b32 {t2}, {sG}, 14\ns_add_u32 {t2}, {t2}, {t0}\ns_add_u32 {t2}, {t2}, {QC}')
    A(f'v_lshlrev_b32 {vTMP}, 14, v120\nv_add_u32 {vTMP}, {t1}, {vTMP}\nv_mov_b32 {vTMP2}, {t2}')
    A(f'v_cmp_eq_u32 vcc, 4, v120\nv_cndmask_b32 {vTMP}, {vTMP}, {vTMP2}, vcc\nv_mov_b32 {vTMP2}, {OOB}\nv_cmp_lt_u32 vcc, 4, v120\nv_cndmask_b32 {vTMP}, {vTMP}, {vTMP2}, vcc')
    A(f'v_lshl_add_u32 {vQst}, v121, 4, {vTMP}')
    A(f'v_lshlrev_b32 {vTMP}, 6, v122\nv_add_u32 {vTMP2}, 4, {vTMP}\nv_cmp_gt_u32 vcc, 16, {vL}\nv_cndmask_b32 {vTMP}, {vTMP}, {vTMP2}, vcc')
    A(f'v_and_b32 {vTMP2}, {0x1ec*4}, {vT4}\nv_cmp_eq_u32 vcc, 0, {vTMP2}\nv_mov_b32 {vTMP2}, {OOB}\nv_cndmask_b32 {vSSt}, {vTMP2}, {vTMP}, vcc')
    A(f's_lshl_b32 {t0}, {sG}, 2\ns_add_u32 {t0}, {t0}, {sHI}\ns_lshl_b32 {t3}, {t0}, 8\ns_lshl_b32 {t1}, {sLO}, 3\ns_add_u32 {t3}, {t3}, {t1}')
    A(f's_mul_i32 {t1}, s2, {CLEAN_WG}\ns_add_u32 {t1}, {t1}, {CLEAN0}')
    A(f'v_lshlrev_b32 v118, 2, {vT4}\nv_add_u32 v118, {t1}, v118\nv_add_u32 v119, 8192, v118\nv_mov_b32 {vTMP2}, {OOB}\nv_cmp_gt_u32 vcc, {304*4}, {vT4}\nv_cndmask_b32 v119, {vTMP2}, v119, vcc')
    A('v_mov_b32 v64, -1\nv_mov_b32 v65, -1\nv_mov_b32 v66, -1\nv_mov_b32 v67, -1')
    A(f'v_lshrrev_b32 {vTMP}, 5, v126\nv_and_b32 {vTMP2}, 31, v126\nv_lshlrev_b32 v117, 10, {vTMP}\nv_lshl_add_u32 v117, {vTMP2}, 2, v117\ns_lshl_b32 {t1}, {sLO}, 7\nv_add_u32 v117, {t1}, v117')
    A(f'v_mul_u32_u24 {vXW}, 192, {vTMP}\nv_lshl_add_u32 {vXW}, {vTMP2}, 2, {vXW}\nv_add_u32 {vXW}, {L_XS}, {vXW}')
    A('s_waitcnt lgkmcnt(0)')
    def srd(d, lo, n):
        A(f's_mov_b32 s{d}, s{lo}\ns_mov_b32 s{d+1}, s{lo+1}\ns_mov_b32 s{d+2}, {n}\ns_mov_b32 s{d+3}, 0x20000')
    srd(8, 86, WS_REC); srd(12, 66, 0x8000000); srd(16, 68, 0x8000000); srd(20, 70, 4194304); srd(40, 64, 4096)
    A(f's_add_u32 {g0}, {t3}, {LB+oQS}')
    if ts: A('s_mov_b32 s96, s86\ns_mov_b32 s97, s87')
    A.vmop(f'buffer_store_dwordx4 v[64:67], {vQst}, {WS}, 0 offen sc1', 'cl')
    A.vmop(f'buffer_store_dword v64, {vSSt}, {WS}, {g0} offen sc1', 'cl')
    A(f's_lshl_b32 {t1}, {sLO}, 6\ns_lshl_b32 {t2}, {sW}, 3\ns_add_u32 {t1}, {t1}, {t2}\ns_lshl_b32 {t1}, {t1}, 13\ns_lshl_b32 {t2}, {sG}, 10\ns_add_u32 {t1}, {t1}, {t2}\ns_lshl_b32 {t2}, {sHI}, 8\ns_add_u32 {t1}, {t1}, {t2}')
    A(f's_lshl_b32 {t2}, {sW}, 11\ns_add_u32 m0, {t2}, {L_WQ}')
    A.vmop(f'buffer_load_dwordx4 v124, {WQ}, {t1} offen nt lds', 'wq')
    A(f's_add_u32 {t1}, {t1}, 32768\ns_add_u32 m0, m0, 1024')
    A.vmop(f'buffer_load_dwordx4 v124, {WQ}, {t1} offen nt lds', 'wq')
    A.vmop(f'buffer_load_dword v68, v117, {XX}, 0 offen', 'x0')
    if not noclean:
        A.vmop(f'buffer_store_dwordx4 v[64:67], v118, {WS}, 0 offen {clpol}', 'cl')
        A.vmop(f'buffer_store_dwordx4 v[64:67], v119, {WS}, 0 offen {clpol}', 'cl')
    else: A.vm[-1] = 'cl'

    def piece(p):
        t, q = (p % 16) // 4, p % 4
        if q == 0:
            A(f's_add_u32 {g1}, {sKV}, {t*32768}\ns_add_u32 m0, {sRING}, {((p//4)&1)*4096}')
        src = f'v{112+q}' if p < 16 else f'v{116+(q&1)}'
        A.vmop(f'buffer_load_dwordx4 {src}, {KK if p < 16 else VV}, {g1} offen offset:{q*1024} nt lds', f'p{p}')
    for p in range(4): piece(p)

    srd(24, 72, 4194304); srd(44, 82, 4096); srd(48, 84, 256)
    srd(28, 76, 1835008); srd(32, 78, 1835008); srd(36, 80, 1835008)
    A(f's_mul_i32 {t1}, {sG}, 3\ns_add_u32 {t1}, {t1}, 4\ns_lshl_b32 {t2}, {sG}, 2\ns_cmp_ge_u32 {sG}, 4\ns_cselect_b32 {g2}, {t1}, {t2}\ns_add_u32 {g2}, {g2}, {sHI}\ns_min_u32 {g2}, {g2}, 27')
    A(f's_getreg_b32 {t1}, hwreg(HW_REG_XCC_ID)\ns_and_b32 {t1}, {t1}, 7\ns_lshl_b32 {t1}, {t1}, 3\ns_mov_b64 s[64:65], 1\ns_lshl_b64 s[64:65], s[64:65], {t1}')
    A(f's_lshl_b32 {t1}, {t0}, 14')
    A(f's_add_u32 {sQg}, {t1}, {LB+oQP}\ns_add_u32 {sOg}, {t1}, {LB+oOP}\ns_add_u32 {sGg}, {t1}, {LB+oGP}')
    A(f's_lshr_b32 {t2}, {sW}, 1')
    A(f's_lshl_b32 {t1}, {sG}, 2\ns_add_u32 {t1}, {t1}, {t2}\ns_lshl_b32 {t1}, {t1}, 2\ns_add_u32 {t1}, {t1}, {sHI}\ns_lshl_b32 {t1}, {t1}, 6\ns_add_u32 {sQSg}, {t1}, {LB+oQS}')
    A(f's_lshl_b32 {g3}, {sLO}, 3\ns_add_u32 {sMLst}, {t1}, {g3}\ns_add_u32 {sMLst}, {sMLst}, {LB+oML}')
    A(f's_lshl_b32 {t1}, {t0}, 2\ns_add_u32 {t1}, {t1}, {t2}\ns_lshl_b32 {t1}, {t1}, 6\ns_add_u32 {sMLg}, {t1}, {LB+oML}\ns_add_u32 {sGSg}, {t1}, {LB+oGS}')
    A(f's_lshl_b32 {t1}, {sLO}, 14\ns_add_u32 {sXg}, {t1}, {LB+oXA}')
    A(f's_lshl_b32 {g3}, {t0}, 9\ns_add_u32 {sXst}, {sXg}, {g3}')
    A(f's_lshl_b32 {t1}, {sG}, 14\ns_add_u32 {sQCg}, {t1}, {QC}')
    A(f's_lshl_b32 {t1}, {t0}, 12\ns_add_u32 {sGCg}, {t1}, {LB+oGC}')
    A(f's_lshl_b32 {t1}, {sG}, 16\ns_lshl_b32 {g3}, {sLO}, 11\ns_add_u32 {t1}, {t1}, {g3}\ns_lshl_b32 {g3}, {sHI}, 9\ns_add_u32 {t1}, {t1}, {g3}\ns_add_u32 {sOPst}, {t1}, {LB+oOP}')
    A(f's_add_u32 {sQSst}, {t3}, {LB+oQS}\ns_add_u32 {sGSst}, {t3}, {LB+oGS}')
    A(f's_mov_b32 {sLAY}, 0\ns_mov_b32 {sTO}, 400000\ns_mov_b32 {sFAST}, 0\ns_mov_b32 {sCNT}, 0\ns_mov_b32 {sGOK}, 0\ns_mov_b32 {sLIDX}, 0')
    A(f's_mov_b32 {sC10}, 0x00003f80\ns_mov_b32 {sC01}, 0x3f800000')
    A(f'v_and_b32 {vTMP}, 7, {vL}\nv_lshlrev_b32 {vSt8}, 3, {vTMP}')
    A(f'v_lshlrev_b32 {vC4}, 2, v126')
    A(f'v_lshl_add_u32 {vXg}, v127, 12, {vC4}')
    A(f'v_lshl_add_u32 {vOPst}, v127, 14, {vC4}')
    A(f's_lshl_b32 {t1}, {sLO}, 11\ns_add_u32 {t1}, {t1}, {sGg}\ns_lshl_b32 {g3}, {sW}, 6\ns_add_u32 {t1}, {t1}, {g3}')
    A(f's_lshl_b32 {t2}, {sLO}, 9\ns_add_u32 {t2}, {t2}, {sGCg}\ns_add_u32 {t2}, {t2}, {g3}')
    A(f'v_lshlrev_b32 {vTMP}, 9, v120\nv_add_u32 {vTMP}, {t1}, {vTMP}\nv_mov_b32 {vTMP2}, {t2}')
    A(f'v_cmp_eq_u32 vcc, 4, v120\nv_cndmask_b32 {vTMP}, {vTMP}, {vTMP2}, vcc\nv_mov_b32 {vTMP2}, {OOB}\nv_cmp_lt_u32 vcc, 4, v120\nv_cndmask_b32 {vTMP}, {vTMP}, {vTMP2}, vcc')
    A(f'v_lshl_add_u32 {vGst}, v121, 4, {vTMP}')
    A(f's_and_b32 {t1}, {sW}, 3\ns_lshl_b32 {t2}, {t1}, 5')
    A(f'v_lshlrev_b32 {vTMP}, 7, v120\nv_lshl_add_u32 {vTMP}, v121, 3, {vTMP}\nv_add_u32 {vTMP}, {t2}, {vTMP}\nv_mov_b32 {vTMP2}, {OOB}\nv_cmp_gt_u32 vcc, 4, v120\nv_cndmask_b32 {vXst}, {vTMP2}, {vTMP}, vcc')
    A(f'v_mul_u32_u24 {vQW}, 320, v127\nv_lshl_add_u32 {vQW}, v126, 1, {vQW}\nv_add_u32 {vQW}, {L_QS}, {vQW}')
    A(f'v_mul_u32_u24 {vBR320}, 320, v122\nv_lshl_add_u32 {vBR320}, v121, 4, {vBR320}\nv_add_u32 {vBR320}, {L_QS}, {vBR320}')
    A(f'v_mul_u32_u24 {vBR192}, 192, v122\nv_lshl_add_u32 {vBR192}, v121, 4, {vBR192}\nv_add_u32 {vBR192}, {L_HS}, {vBR192}')
    A(f'v_min_u32 {vTMP}, 4, v120\nv_mul_u32_u24 {vXR}, 192, {vTMP}\nv_lshl_add_u32 {vXR}, v121, 4, {vXR}\nv_add_u32 {vXR}, {L_XS}, {vXR}')
    A(f'v_lshrrev_b32 {vTMP}, 3, v126\nv_lshlrev_b32 {vTMP}, 2, {vTMP}\nv_add_u32 {vTMP}, {vTMP}, v122\nv_mul_u32_u24 {vHW}, 192, v127\nv_lshl_add_u32 {vHW}, {vTMP}, 1, {vHW}\nv_add_u32 {vHW}, {L_HS}, {vHW}')
    A(f'v_add_u32 {vT8}, {L_RG}, {vT8}\nv_lshlrev_b32 {vRGR}, 3, v126\nv_add_u32 {vRGR}, {L_RG}, {vRGR}')
    A(f's_mul_i32 {t2}, {sW}, 2112\ns_add_u32 {t2}, {t2}, {L_RO}')
    A(f'v_mul_u32_u24 {vROW}, 528, v122\nv_lshl_add_u32 {vROW}, v123, 6, {vROW}\nv_lshl_add_u32 {vROW}, v121, 4, {vROW}\nv_add_u32 {vROW}, {t2}, {vROW}')
    A(f'v_mul_u32_u24 {vROR}, 528, v127\nv_add_u32 {vROR}, {vROR}, {vC4}\nv_add_u32 {vROR}, {L_RO}, {vROR}')
    A(f's_lshl_b32 {t2}, {sW}, 3\ns_add_u32 {t2}, {t2}, {L_RM}\nv_lshlrev_b32 {vRMW}, 6, v122\nv_add_u32 {vRMW}, {t2}, {vRMW}')
    A(f'v_lshlrev_b32 {vRMR}, 6, v127\nv_add_u32 {vRMR}, {L_RM}, {vRMR}')
    A(f'v_lshl_add_u32 v125, v121, 3, v123')
    A(f'v_and_b32 {vTMP}, 1, v121\nv_lshl_add_u32 {vTMP}, {vTMP}, 2, v123')
    A(f'v_xor_b32 {vTMP}, {sW}, {vTMP}\nv_lshlrev_b32 {vTMP}, 5, {vTMP}\nv_lshl_add_u32 {vTMP}, v122, 3, {vTMP}\nv_lshl_add_u32 {vWQr}, v125, 8, {vTMP}\nv_add_u32 {vWQr}, {L_WQ}, {vWQr}')
    A(f'v_lshrrev_b32 {vTMP}, 1, v123\nv_and_b32 {vTMP2}, 1, v121\nv_lshl_add_u32 v119, {vTMP2}, 1, {vTMP}')
    A(f'v_xor_b32 {vTMP}, {t1}, v119\nv_lshlrev_b32 {vTMP}, 5, {vTMP}\nv_lshl_add_u32 {vTMP}, v122, 3, {vTMP}\nv_lshl_add_u32 {vWOr}, v125, 7, {vTMP}\nv_add_u32 {vWOr}, {L_WO}, {vWOr}')
    A(f's_lshr_b32 {t2}, {sW}, 1\ns_and_b32 {g3}, {sW}, 1\ns_lshl_b32 {g3}, {g3}, 4\ns_add_u32 {g3}, {g3}, {L_WG}')
    A(f'v_xor_b32 {vTMP}, {t2}, v119\nv_lshlrev_b32 {vTMP}, 5, {vTMP}\nv_lshrrev_b32 {vTMP2}, 1, v122\nv_lshl_add_u32 {vTMP}, {vTMP2}, 3, {vTMP}\nv_and_b32 {vTMP2}, 1, v122\nv_lshl_add_u32 {vTMP}, {vTMP2}, 13, {vTMP}')
    A(f'v_lshl_add_u32 {vGUr}, v125, 7, {vTMP}\nv_add_u32 {vGUr}, {g3}, {vGUr}')
    A(f'v_lshlrev_b32 {vTMP}, 1, v121\nv_xor_b32 {vTMP}, v120, {vTMP}\nv_lshlrev_b32 {vTMP}, 4, {vTMP}\nv_lshl_add_u32 v116, v121, 8, {vTMP}\nv_xor_b32 v117, 128, v116')
    A(f'v_and_b32 {vTMP}, 1, v121\nv_lshlrev_b32 {vTMP}, 1, {vTMP}\nv_and_b32 {vTMP2}, 7, {vL}\nv_xor_b32 {vTMP}, {vTMP}, {vTMP2}\nv_lshlrev_b32 {vTMP}, 4, {vTMP}')
    A(f'v_lshrrev_b32 {vTMP2}, 3, {vL}')
    A(f'v_lshl_add_u32 v124, {vTMP2}, 10, {vTMP}\nv_xor_b32 v125, 64, v124')
    A(f's_and_b32 {g3}, {sW}, 1\ns_lshl_b32 {g3}, {g3}, 6\nv_xor_b32 {vTMP}, {g3}, {vTMP}')
    A(f'v_lshl_add_u32 v127, {vTMP2}, 10, {vTMP}\nv_mul_u32_u24 v126, 3584, {vTMP2}\nv_add_u32 v126, v126, {vTMP}')
    A(f's_cmp_ge_u32 {sG}, 4\ns_cselect_b32 {t2}, 3, 4\ns_cmp_lt_u32 {sHI}, {t2}\ns_cselect_b32 {t2}, 0, {OOB}\nv_add_u32 v126, {t2}, v126\nv_add_u32 v127, {t2}, v127')
    A(f'v_lshl_add_u32 {vTMP}, v121, 2, v123\nv_and_b32 {vTMP2}, 7, {vTMP}\nv_lshlrev_b32 {vTMP2}, 5, {vTMP2}\nv_lshl_add_u32 {vTMP2}, v122, 3, {vTMP2}\nv_lshl_add_u32 {vTMP2}, {vTMP}, 8, {vTMP2}\nv_add_u32 v122, {sRING}, {vTMP2}')
    A(f'v_xor_b32 {vTMP}, v120, v121\nv_lshlrev_b32 {vTMP}, 4, {vTMP}\nv_lshl_add_u32 {vTMP}, v120, 8, {vTMP}\nv_add_u32 v118, {sRING}, {vTMP}')
    for j in range(1, 4): A(f'v_xor_b32 v{118+j}, {64*j}, v118')
    for r in range(32, 64): A(f'v_mov_b32 v{r}, 0')
    for r in range(108, 112): A(f'v_mov_b32 v{r}, 0x3f803f80')
    A(f'v_and_b32 {vTMP}, 31, {vL}\nv_lshlrev_b32 {vTMP}, 2, {vTMP}\nv_add_u32 {vTMP}, {L_XS+4*192}, {vTMP}\nds_write_b32 {vTMP}, v108')

    A.wait_vm('cl')
    A(f'ds_write_b32 {vXW}, v68\nv_lshlrev_b32 {vX0}, 16, v68\nv_and_b32 {vX1}, 0xffff0000, v68')
    A('s_waitcnt lgkmcnt(0)\ns_barrier')
    stamp()
    A(f's_lshl_b32 {t1}, {sG}, 5')
    A(f'v_mov_b32 v74, s64\nv_mov_b32 v75, s65\nv_mov_b32 {vTMP2}, {OOB}\nv_cmp_eq_u32 vcc, 0, {vT4}\nv_cndmask_b32 {vTMP}, {vTMP2}, 0, vcc')
    A.vmop(f'buffer_atomic_add_x2 v[74:75], {vTMP}, {DBG}, {t1} offen sc1', 'at')
    A('s_lshl_b64 s[64:65], s[64:65], 5')

    def read_w2(vaddr, off, stride_j, stride_u):
        for j in range(2):
            for u in range(2):
                A(f'ds_read_b64_tr_b16 v[{80+4*j+2*u}:{81+4*j+2*u}], {vaddr} offset:{off+j*stride_j+u*stride_u}')
    def matvec(vst, sst, first):
        A(f'ds_read_b128 v[64:67], {vXR}\nds_read_b128 v[68:71], {vXR} offset:64\ns_waitcnt lgkmcnt(0)')
        A('v_mfma_f32_16x16x32_bf16 v[96:99], v[80:83], v[64:67], 0\nv_mfma_f32_16x16x32_bf16 v[96:99], v[84:87], v[68:71], v[96:99]')
        A('v_mfma_f32_16x16x32_bf16 v[100:103], v[64:67], v[64:67], 0\nv_mfma_f32_16x16x32_bf16 v[100:103], v[68:71], v[68:71], v[100:103]')
        if first is True: pass
        elif first is False: set_exec(0x000f000f)
        else:
            A(f's_cmp_eq_u32 {sLIDX}, 0\ns_cselect_b32 exec_lo, -1, 0x000f000f\ns_cselect_b32 exec_hi, -1, 0x000f000f')
        lstore(f'buffer_store_dwordx4 v[96:99], {vst}, {WS}, {sLAY} offen', nxt='v_mov_b32 v100, v101')
        for k in (1, 2, 3):
            A(f's_mov_b64 exec, {1<<k}\nv_mov_b32 v100, v{100+k}')
        full_exec()
        lstore(f'buffer_store_dword v100, {vSSt}, {WS}, {sst} offen')

    read_w2(vWQr, 0, 8192, 1024)
    matvec(vQst, sQSst, True)
    stamp()

    def issue_g8(dst, voff, sbase, stride, tag):
        if stride == 2048:
            A(f's_add_u32 {t1}, {sbase}, 4096\ns_add_u32 {t2}, {sbase}, 8192\ns_add_u32 {t3}, {sbase}, 12288')
            for i in range(8):
                so = [sbase, t1, t2, t3][i // 2]
                A.vmop(f'buffer_load_dword v{dst+i}, {voff}, {WS}, {so} offen offset:{(i&1)*2048} sc1', tag)
        else:
            for i in range(8):
                A.vmop(f'buffer_load_dword v{dst+i}, {voff}, {WS}, {sbase} offen offset:{i*stride} sc1', tag)
    def check_empty(regs):
        regs = list(regs)
        A(f'v_max3_u32 {vTMP}, v{regs[0]}, v{regs[1]}, v{regs[2]}'); rest = regs[3:]
        while len(rest) >= 2:
            A(f'v_max3_u32 {vTMP}, {vTMP}, v{rest[0]}, v{rest[1]}'); rest = rest[2:]
        if rest: A(f'v_max_u32 {vTMP}, {vTMP}, v{rest[0]}')
        A(f'v_cmp_eq_u32 vcc, -1, {vTMP}')
    def poll(issue, regs):
        r, d = lab('retry'), lab('got')
        A(f'{r}:')
        issue()
        A.wait_vm()
        check_empty(regs)
        A(f's_cbranch_vccz {d}\ns_sub_u32 {sTO}, {sTO}, 1\ns_cbranch_scc0 {r}\ns_mov_b32 {sTO}, 0\n{d}:')
    def issue_cnt():
        A(f'v_lshlrev_b32 {vTMP}, 2, {vSt8}')
        A.vmop(f'buffer_load_dwordx2 v[76:77], {vTMP}, {DBG}, 0 offen sc1', 'cnt')
    def check_cnt():
        d = lab('cn')
        A(f'v_sad_u8 {vTMP}, v76, 0, 0\nv_sad_u8 {vTMP}, v77, 0, {vTMP}\nv_cmp_ne_u32 vcc, 32, {vTMP}\ns_cbranch_vccnz {d}')
        A(f's_mov_b32 {sCNT}, 1\nv_cmp_eq_u64 vcc, s[64:65], v[76:77]\ns_lshr_b32 {t1}, vcc_lo, {sG}\ns_and_b32 {sFAST}, {t1}, 1\n{d}:')
    def issue_q(first):
        issue_g8(64, vT4, sQg, 2048, 'q')
        A.vmop(f'buffer_load_dwordx2 v[72:73], {vSt8}, {WS}, {sQSg} offen sc1', 'q')
        if first: issue_g8(80, vT4, sQCg, 2048, 'q')
    def sum8(dst, src):
        A(f'v_add_f32 v{src}, v{src}, v{src+1}\nv_add_f32 v{src+2}, v{src+2}, v{src+3}\nv_add_f32 v{src+4}, v{src+4}, v{src+5}\nv_add_f32 v{src+6}, v{src+6}, v{src+7}')
        A(f'v_add_f32 v{src}, v{src}, v{src+2}\nv_add_f32 v{src+4}, v{src+4}, v{src+6}\nv_add_f32 {dst}, v{src}, v{src+4}')
    def ln_finish(cs, scale):
        for m in ('quad_perm:[1,0,3,2]', 'quad_perm:[2,3,0,1]', 'row_half_mirror'):
            A(f'v_add_f32_dpp v72, v72, v72 {m} row_mask:0xf bank_mask:0xf\nv_add_f32_dpp v73, v73, v73 {m} row_mask:0xf bank_mask:0xf')
            if m.startswith('quad_perm:[1'): A('v_add_f32 v64, v64, v65\nv_add_f32 v66, v66, v67')
            if m.startswith('quad_perm:[2'): A('v_add_f32 v68, v68, v69\nv_add_f32 v70, v70, v71')
        A(f'v_mul_f32 v72, {f32(1/512)}, v72\nv_add_f32 v64, v64, v66\nv_add_f32 v68, v68, v70')
        A(f'v_mul_f32 v74, v72, v72\nv_mov_b32 v75, {f32(1/512)}\nv_fma_f32 v73, v73, v75, -v74\nv_add_f32 v64, v64, v68')
        A(f'v_max_f32 v73, 0, v73\nv_add_f32 v73, {f32(1e-5)}, v73\nv_rsq_f32 v73, v73\nv_fma_f32 v64, -v72, {cs}, v64')
        if scale != 1.0: A(f'v_mul_f32 v64, {f32(scale)}, v64')
        A('v_mul_f32 v64, v64, v73')
    def q_finish(first):
        if first: sum8(vCSQ, 80)
        ln_finish(vCSQ, QSCALE)
        A(f'v_cvt_pk_bf16_f32 v64, v64, v64\nds_write_b16 {vQW}, v64')

    def read_tile(i):
        so = (i & 1) * 4096
        if i < 4:
            for j in range(4): A(f'ds_read_b128 a[{16*i+4*j}:{16*i+4*j+3}], v{118+j} offset:{so}')
        else:
            t = i - 4; u, hf = t >> 1, t & 1
            for dt in range(8):
                r = 64 + 32 * u + 4 * dt + 2 * hf
                if dt == 0: A(f'ds_read_b64_tr_b16 a[{r}:{r+1}], v122 offset:{so}')
                else: A(f'v_xor_b32 v123, {32*dt}, v122\nds_read_b64_tr_b16 a[{r}:{r+1}], v123 offset:{so}')
        A('s_waitcnt lgkmcnt(0)')
    def step(p):
        A.wait_vm(f'p{p-4}')
        if (p - 4) % 4 == 3: read_tile((p - 4) // 4)
        piece(p)
    for p in range(4, 8): step(p)
    for P in (8, 12, 16, 20, 24):
        if norides or P not in rides:
            for p in range(P, P + 4): step(p)
            continue
        skip, join = lab('noq'), lab('jn')
        issue_cnt()
        saved = list(A.vm)
        A(f's_cmp_eq_u32 {sCNT}, 1\ns_cselect_b32 {t0}, 1, 0\ns_cmp_eq_u32 {sGOK}, 0\ns_cselect_b32 {t0}, {t0}, 0\ns_cmp_eq_u32 {t0}, 0\ns_cbranch_scc1 {skip}')
        issue_q(True)
        for p in range(P, P + 4): step(p)
        A.wait_vm('q')
        check_empty(list(range(64, 74)) + list(range(80, 88)))
        nq = lab('nq')
        A(f's_cbranch_vccnz {nq}\ns_mov_b32 {sGOK}, 1')
        q_finish(True)
        A(f'{nq}:\ns_branch {join}\n{skip}:')
        after_q = list(A.vm)
        A.vm = saved
        for p in range(P, P + 4): step(p)
        A.wait_vm('cnt')
        assert A.vm == after_q, (A.vm, after_q)
        A(f'{join}:')
        check_cnt()
    for p in range(28, 32): step(p)
    stamp()
    dn, rc = lab('qdone'), lab('rc')
    A(f's_cmp_eq_u32 {sGOK}, 1\ns_cbranch_scc1 {dn}')
    saved = list(A.vm)
    A(f'{rc}:')
    issue_cnt(); A.wait_vm(); check_cnt()
    cg = lab('cg')
    A(f's_cmp_eq_u32 {sCNT}, 1\ns_cbranch_scc1 {cg}\ns_sub_u32 {sTO}, {sTO}, 1\ns_cbranch_scc0 {rc}\ns_mov_b32 {sTO}, 0\n{cg}:')
    poll(lambda: issue_q(True), list(range(64, 74)) + list(range(80, 88)))
    q_finish(True)
    A(f'{dn}:')
    A.vm = saved

    def scores():
        A('s_waitcnt lgkmcnt(0)\ns_barrier')
        for j in range(4): A(f'ds_read_b128 v[{64+4*j}:{67+4*j}], {vBR320} offset:{64*j}')
        for j in range(4):
            A(f's_waitcnt lgkmcnt({3-j})')
            for t in range(4):
                c = '0' if j == 0 else f'v[{80+4*t}:{83+4*t}]'
                A(f'v_mfma_f32_16x16x32_bf16 v[{80+4*t}:{83+4*t}], a[{16*t+4*j}:{16*t+4*j+3}], v[{64+4*j}:{67+4*j}], {c}')
        for t in range(1, 4):
            for r in range(4):
                A(f'v_mov_b32_dpp v{80+r}, v{80+4*t+r} quad_perm:[0,1,2,3] row_mask:0xf bank_mask:{1<<t:#x}')
        A('v_max3_f32 v84, v80, v81, v82\nv_max_f32 v84, v84, v83')
        A('v_max_f32_dpp v84, v84, v84 row_ror:4 row_mask:0xf bank_mask:0xf')
        A('v_max_f32_dpp v84, v84, v84 row_ror:8 row_mask:0xf bank_mask:0xf')
        A('v_mov_b32 v85, v84\nv_permlane16_swap_b32 v84, v85\nv_max_f32 v84, v84, v85')
        A('v_mov_b32 v85, v84\nv_permlane32_swap_b32 v84, v85\nv_max_f32 v84, v84, v85')
        for r in range(4): A(f'v_sub_f32 v{80+r}, v{80+r}, v84')
        for r in range(4): A(f'v_exp_f32 v{80+r}, v{80+r}')
        A('v_cvt_pk_bf16_f32 v86, v80, v81\nv_cvt_pk_bf16_f32 v87, v82, v83')
        for u in range(2):
            for gam in range(4):
                for hf in range(2):
                    src = 2 * u + hf; sh = (gam - src) % 4
                    m = 'quad_perm:[0,1,2,3]' if sh == 0 else f'row_ror:{4*sh}'
                    for k in range(2):
                        A(f'v_mov_b32_dpp v{32+16*u+4*gam+2*hf+k}, v{86+k} {m} row_mask:0xf bank_mask:{1<<gam:#x}')
    def pv(u):
        for dt in range(8):
            a_ = dt >> 2
            c = '0' if (u == 0 and (dt & 3) == 0) else f'v[{96+4*a_}:{99+4*a_}]'
            b = 32 + 16 * u + 4 * (dt & 3)
            A(f'v_mfma_f32_16x16x32_bf16 v[{96+4*a_}:{99+4*a_}], a[{64+32*u+4*dt}:{67+32*u+4*dt}], v[{b}:{b+3}], {c}')
        c = '0' if u == 0 else 'v[104:107]'
        A(f'v_mfma_f32_16x16x32_bf16 v[104:107], v[108:111], v[{32+16*u}:{35+16*u}], {c}')
    def combine():
        A(f'ds_write_b128 {vROW}, v[96:99]\nds_write_b128 {vROW}, v[100:103] offset:256')
        A(f'v_mov_b32 v85, v104\ns_mov_b64 exec, 15\nds_write_b64 {vRMW}, v[84:85]')
        full_exec()
        A('s_waitcnt lgkmcnt(0)\ns_barrier')
        for k in range(4): A(f'ds_read_b128 v[{80+4*k}:{83+4*k}], {vRMR} offset:{16*k}')
        for k in range(8): A(f'ds_read_b32 v{64+k}, {vROR} offset:{2112*k}')
        A('s_waitcnt lgkmcnt(8)')
        A('v_max3_f32 v72, v80, v82, v84\nv_max3_f32 v73, v86, v88, v90\nv_max3_f32 v72, v72, v92, v94\nv_max_f32 v72, v72, v73')
        for k in range(8): A(f'v_sub_f32 v{80+2*k}, v{80+2*k}, v72')
        for k in range(8): A(f'v_exp_f32 v{80+2*k}, v{80+2*k}')
        A('s_waitcnt lgkmcnt(0)')
        A('v_mul_f32 v64, v64, v80\nv_mul_f32 v65, v65, v82\nv_mul_f32 v73, v81, v80\nv_mul_f32 v74, v83, v82')
        for k in range(2, 8, 2):
            A(f'v_fmac_f32 v64, v{64+k}, v{80+2*k}\nv_fmac_f32 v65, v{65+k}, v{82+2*k}')
        A('v_add_f32 v64, v64, v65')
        lstore(f'buffer_store_dword v64, {vOPst}, {WS}, {sOPst} offen')
        for k in range(2, 8, 2):
            A(f'v_fmac_f32 v73, v{81+2*k}, v{80+2*k}\nv_fmac_f32 v74, v{83+2*k}, v{82+2*k}')
        A('v_add_f32 v73, v73, v74')
        lstore(f'buffer_store_dwordx2 v[72:73], {vMLst}, {WS}, {sMLst} offen')

    A(f'v_mov_b32 {vTMP2}, {OOB}\nv_cmp_eq_u32 vcc, 0, {vC4}\nv_cndmask_b32 {vMLst}, {vTMP2}, 0, vcc')
    scores()
    pv(0)
    stamp()
    A.wait_vm('p31')
    A(f's_lshl_b32 {t1}, {sG}, 9\ns_lshl_b32 {t2}, {sHI}, 7\ns_add_u32 {t1}, {t1}, {t2}\ns_lshl_b32 {t2}, {sW}, 4\ns_add_u32 {t1}, {t1}, {t2}\ns_lshl_b32 {t1}, {t1}, 10\ns_lshl_b32 {t2}, {sLO}, 7\ns_add_u32 {t1}, {t1}, {t2}')
    A(f's_lshl_b32 {t2}, {sW}, 11\ns_add_u32 m0, {t2}, {L_WO}')
    A.vmop(f'buffer_load_dwordx4 v124, {WO}, {t1} offen nt lds', 'wo')
    A(f's_add_u32 {t1}, {t1}, 8192\ns_add_u32 m0, m0, 1024')
    A.vmop(f'buffer_load_dwordx4 v125, {WO}, {t1} offen nt lds', 'wo')
    stamp()
    read_tile(7)
    pv(1)
    combine()
    stamp(True)

    A('L_layer:'); inloop[0] = True
    def issue_o():
        issue_g8(64, vT4, sOg, 2048, 'o')
        A.vmop(f'buffer_load_dwordx2 v[72:73], {vSt8}, {WS}, {sMLg} offen sc1', 'o')
    poll(issue_o, range(64, 74))
    stamp()
    nw = lab('nw')
    A(f's_cmp_lg_u32 {sLIDX}, 0\ns_cbranch_scc1 {nw}')
    A(f's_lshl_b32 {t1}, {sLO}, 6\ns_lshl_b32 {t2}, {sW}, 3\ns_add_u32 {t1}, {t1}, {t2}\ns_mul_i32 {t1}, {t1}, 3584\ns_lshl_b32 {t2}, {g2}, 7\ns_add_u32 {t1}, {t1}, {t2}')
    A(f's_lshl_b32 {t2}, {sW}, 10\ns_add_u32 m0, {t2}, {L_WG}')
    A(f'buffer_load_dwordx4 v126, {WG}, {t1} offen nt lds')
    A(f's_add_u32 m0, {t2}, {L_WU}')
    A(f'buffer_load_dwordx4 v126, {WU}, {t1} offen nt lds')
    A(f's_lshl_b32 {t1}, {g2}, 6\ns_lshl_b32 {t3}, {sW}, 3\ns_add_u32 {t1}, {t1}, {t3}\ns_lshl_b32 {t1}, {t1}, 10\ns_lshl_b32 {t3}, {sLO}, 7\ns_add_u32 {t1}, {t1}, {t3}\ns_add_u32 m0, {t2}, {L_WD}')
    A(f'buffer_load_dwordx4 v127, {WD}, {t1} offen nt lds')
    A(f'{nw}:')
    A('v_max_f32_dpp v74, v72, v72 quad_perm:[1,0,3,2] row_mask:0xf bank_mask:0xf')
    A('v_max_f32_dpp v74, v74, v74 quad_perm:[2,3,0,1] row_mask:0xf bank_mask:0xf')
    A('v_max_f32_dpp v74, v74, v74 row_half_mirror row_mask:0xf bank_mask:0xf')
    A('v_sub_f32 v72, v72, v74\nv_exp_f32 v72, v72\nv_mul_f32 v73, v73, v72')
    for k in range(8): A(f'v_readlane_b32 s{80+k}, v72, {k}')
    for m in ('quad_perm:[1,0,3,2]', 'quad_perm:[2,3,0,1]', 'row_half_mirror'):
        A(f'v_add_f32_dpp v73, v73, v73 {m} row_mask:0xf bank_mask:0xf')
        if m.startswith('quad_perm:[1'): A('v_mul_f32 v64, s80, v64\nv_mul_f32 v65, s81, v65')
        if m.startswith('quad_perm:[2'): A('v_fmac_f32 v64, s82, v66\nv_fmac_f32 v65, s83, v67')
    A('v_rcp_f32 v73, v73\nv_fmac_f32 v64, s84, v68\nv_fmac_f32 v65, s85, v69\nv_fmac_f32 v64, s86, v70\nv_fmac_f32 v65, s87, v71')
    A(f'v_add_f32 v64, v64, v65\nv_mul_f32 v64, v64, v73\nv_cvt_pk_bf16_f32 v64, v64, v64\nds_write_b16 {vQW}, v64 offset:{L_OS-L_QS}')
    A('s_waitcnt lgkmcnt(0)\ns_barrier')
    def proj_out(nk, vb, boff, woff, xoff):
        sk, dl = lab('sk'), lab('dl')
        A(f's_cmp_ge_u32 {sW}, 4\ns_cbranch_scc1 {sk}')
        for j in range(nk):
            A(f'ds_read_b128 v[{64+4*j}:{67+4*j}], {vb} offset:{boff+64*j}')
            for u in range(2):
                A(f'ds_read_b64_tr_b16 v[{80+4*j+2*u}:{81+4*j+2*u}], {vWOr} offset:{woff+4096*j+512*u}')
        for j in range(nk):
            A(f's_waitcnt lgkmcnt({3*(nk-1-j)})')
            c = '0' if j == 0 else 'v[96:99]'
            A(f'v_mfma_f32_16x16x32_bf16 v[96:99], v[{80+4*j}:{83+4*j}], v[{64+4*j}:{67+4*j}], {c}')
        A(f's_add_u32 {t1}, {sXst}, {xoff}')
        A('v_cvt_pk_bf16_f32 v96, v96, v97\nv_cvt_pk_bf16_f32 v97, v98, v99')
        A(f'buffer_store_dwordx2 v[96:97], {vXst}, {WS}, {t1} offen sc1')
        if gdelay: A(f's_sleep {gdelay}')
        A(f's_branch {dl}\n{sk}:')
        if gdelay_hi: A(f's_sleep {gdelay_hi}')
        A(f'{dl}:')
    def reduce_x(xoff, prefetch, final):
        A(f's_add_u32 {t0}, {sXg}, {xoff}')
        poll(lambda: issue_g8(64, vXg, t0, 512, 'x'), range(64, 72))
        stamp()
        A(f'v_dot2_f32_bf16 v72, v64, {sC10}, 0\nv_dot2_f32_bf16 v73, v64, {sC01}, 0')
        for k in range(1, 8):
            A(f'v_dot2_f32_bf16 v72, v{64+k}, {sC10}, v72\nv_dot2_f32_bf16 v73, v{64+k}, {sC01}, v73')
        A(f'ds_write_b64 {vT8}, v[72:73]\ns_waitcnt lgkmcnt(0)\ns_barrier')
        sk = lab('sk')
        A(f's_cmp_ge_u32 {sW}, 2\ns_cbranch_scc1 {sk}')
        for k in range(4): A(f'ds_read_b64 v[{64+2*k}:{65+2*k}], {vRGR} offset:{1024*k}')
        A('s_waitcnt lgkmcnt(0)')
        A('v_add_f32 v64, v64, v66\nv_add_f32 v65, v65, v67\nv_add_f32 v68, v68, v70\nv_add_f32 v69, v69, v71\nv_add_f32 v64, v64, v68\nv_add_f32 v65, v65, v69')
        A('v_cvt_pk_bf16_f32 v64, v64, v65\nv_and_b32 v65, 0xffff0000, v64\nv_lshlrev_b32 v64, 16, v64')
        A(f'v_add_f32 v64, v64, {vX0}\nv_add_f32 v65, v65, {vX1}\nv_cvt_pk_bf16_f32 v64, v64, v65')
        A(f'ds_write_b32 {vXW}, v64\nv_lshlrev_b32 {vX0}, 16, v64\nv_and_b32 {vX1}, 0xffff0000, v64')
        if final:
            nf = lab('nf')
            A(f's_cmp_eq_u32 {sLIDX}, 0\ns_cbranch_scc1 {nf}')
            A(f'v_lshrrev_b32 v66, 7, {vC4}\nv_and_b32 v67, 127, {vC4}\nv_lshl_add_u32 v66, v66, 10, v67\ns_lshl_b32 {t1}, {sLO}, 7')
            A(f'buffer_store_dword v64, v66, {OUT}, {t1} offen')
            A(f'{nf}:')
        A(f'{sk}:')
        if final: A(f's_cmp_eq_u32 {sLIDX}, 1\ns_cbranch_scc1 L_fin')
        prefetch()
        A('s_waitcnt lgkmcnt(0)\ns_barrier')
    proj_out(4, vBR320, L_OS - L_QS, 0, 0)
    stamp()
    reduce_x(0, lambda: read_w2(vGUr, 0, 4096, 512), False)
    matvec(vGst, sGSst, None)
    stamp()
    def issue_gp(first):
        issue_g8(64, vT4, sGg, 2048, 'g')
        A.vmop(f'buffer_load_dwordx2 v[72:73], {vSt8}, {WS}, {sGSg} offen sc1', 'g')
        if first: issue_g8(80, vC4, sGCg, 512, 'g')
    l1, l2 = lab('g1'), lab('g2')
    A(f's_cmp_lg_u32 {sLIDX}, 0\ns_cbranch_scc1 {l1}')
    poll(lambda: issue_gp(True), list(range(64, 74)) + list(range(80, 88)))
    sum8(vCSG, 80)
    A(f's_branch {l2}\n{l1}:')
    poll(lambda: issue_gp(False), range(64, 74))
    A(f'{l2}:')
    stamp()
    ln_finish(vCSG, 1.0)
    A('v_cvt_pk_bf16_f32 v64, v64, v64\nv_and_b32 v64, 0xffff0000, v64')
    A('v_mov_b32_dpp v65, v64 row_shl:4 row_mask:0xf bank_mask:0xf\nv_max_f32 v64, 0, v64\nv_mul_f32 v64, v64, v65\nv_cvt_pk_bf16_f32 v64, v64, v64')
    set_exec(0x0f0f0f0f)
    A(f'ds_write_b16 {vHW}, v64')
    full_exec()
    A('s_waitcnt lgkmcnt(0)\ns_barrier')
    proj_out(2, vBR192, 0, L_WD - L_WO, oXB - oXA)
    stamp()
    no = lab('no')
    A(f's_cmp_eq_u32 {sLIDX}, 0\ns_cbranch_scc1 {no}\ns_cmp_lg_u32 {sHI}, 0\ns_cbranch_scc1 L_fin\ns_cmp_lg_u32 {sG}, {sLO}\ns_cbranch_scc1 L_fin\n{no}:')
    reduce_x(oXB - oXA, lambda: read_w2(vWQr, 0, 8192, 1024), True)
    A(f's_mov_b32 {sLIDX}, 1\ns_mov_b32 {sLAY}, {LS}')
    for s in (sQg, sOg, sGg, sQSg, sMLg, sGSg, sXg, sOPst, sMLst, sXst, sQSst, sGSst):
        A(f's_add_u32 {s}, {s}, {LS}')
    matvec(vQst, sQSst, False)
    keep = nts[0]; nts[0] -= 11
    stamp()
    poll(lambda: issue_q(False), range(64, 74))
    stamp()
    q_finish(False)
    scores()
    pv(0); pv(1)
    stamp()
    combine()
    stamp()
    A('s_branch L_layer'); nts[0] = keep
    A('L_fin:')
    if ts:
        stamp(True)
        A(f's_add_u32 s96, s96, 0x10000000\ns_addc_u32 s97, s97, 0\ns_lshl_b32 {t1}, s2, 11\nv_add_u32 v64, {t1}, {vT4}\nglobal_store_dword v64, {vTS}, s[96:97]')
    A('L_end:\ns_endpgm')
    A(f'.section .rodata,"a"\n.p2align 6\n.amdhsa_kernel {NAME}_kernel')
    A('.amdhsa_next_free_vgpr 256\n.amdhsa_next_free_sgpr 102\n.amdhsa_accum_offset 128\n.amdhsa_group_segment_fixed_size 0\n.amdhsa_kernarg_size 96\n.amdhsa_user_sgpr_count 2\n.amdhsa_user_sgpr_kernarg_segment_ptr 1\n.amdhsa_system_sgpr_workgroup_id_x 1\n.end_amdhsa_kernel')
    txt, probs = A.text()
    for p in probs: print('HAZARD', p, file=sys.stderr)
    return txt, nts[0]

if __name__ == '__main__':
    out = sys.argv[1]
    kw = {}
    for a in sys.argv[2:]:
        k, v = a.split('='); kw[k] = eval(v)
    txt, n = build(**kw)
    open(out, 'w').write(txt)
    print('stamps', n, 'lines', txt.count('\n'))
```

```python
import re

def regs_of(tok):
    tok = tok.strip()
    tok = tok.lstrip('-').strip('|')
    m = re.fullmatch(r'(?:abs|neg)\((.*)\)', tok)
    if m: tok = m.group(1)
    if tok == 'vcc': return {('s', 106), ('s', 107)}
    if tok == 'vcc_lo': return {('s', 106)}
    if tok == 'vcc_hi': return {('s', 107)}
    if tok == 'exec': return {('s', 126), ('s', 127)}
    if tok in ('exec_lo',): return {('s', 126)}
    if tok in ('exec_hi',): return {('s', 127)}
    if tok == 'm0': return {('s', 124)}
    m = re.fullmatch(r'([vas])(\d+)', tok)
    if m: return {(m.group(1), int(m.group(2)))}
    m = re.fullmatch(r'([vas])\[(\d+):(\d+)\]', tok)
    if m: return {(m.group(1), i) for i in range(int(m.group(2)), int(m.group(3)) + 1)}
    return set()

def split_ops(s):
    ops, depth, cur = [], 0, ''
    for ch in s + ',':
        if ch in '[(': depth += 1
        elif ch in '])': depth -= 1
        if ch == ',' and depth == 0:
            ops.append(cur.strip()); cur = ''
        else: cur += ch
    return [o for o in ops if o]

TRANS = ('v_exp_f32', 'v_log_f32', 'v_rcp_f32', 'v_rsq_f32', 'v_sqrt_f32', 'v_sin_f32', 'v_cos_f32')

class Ins:
    def __init__(self, text):
        self.text = text
        t = text.split(';')[0].strip()
        self.label = t[:-1] if t.endswith(':') else None
        self.directive = t.startswith('.') or t == ''
        self.mn = '' if (self.label or self.directive) else t.split()[0]
        rest = t[len(self.mn):] if self.mn else ''
        raw = split_ops(rest)
        self.ops = [o.split()[0] for o in raw]
        self.mods = ' '.join(' '.join(o.split()[1:]) for o in raw)
        mn = self.mn
        self.is_mfma = mn.startswith('v_mfma') or mn.startswith('v_smfmac')
        self.is_valu = mn.startswith('v_') and not self.is_mfma
        self.is_ds = mn.startswith('ds_')
        self.is_vmem = mn.startswith('buffer_') or mn.startswith('global_')
        self.is_salu = mn.startswith('s_')
        self.is_dpp = '_dpp' in mn or 'quad_perm' in self.mods or 'row_' in self.mods
        self.is_trans = any(mn.startswith(x) for x in TRANS)
        self.is_dot = mn.startswith('v_dot')
        self.is_perml = mn.startswith('v_permlane')
        self.is_rdlane = mn.startswith('v_readlane') or mn.startswith('v_readfirstlane')
        self.is_branch = mn.startswith('s_cbranch') or mn == 's_branch'
        self.lds_dma = self.is_vmem and re.search(r'\blds\b', self.mods) is not None
        R = [regs_of(o) for o in self.ops]
        self.w, self.r = set(), set()
        self.srcC = set(); self.srcAB = set(); self.stdata = set()
        if self.is_mfma:
            self.w = R[0]; self.srcAB = R[1] | R[2]
            self.srcC = R[0] if mn.startswith('v_smfmac') else R[3]
            self.r = self.srcAB | self.srcC | (R[3] if mn.startswith('v_smfmac') else set())
        elif self.is_valu:
            if self.is_perml: self.w = R[0] | R[1]; self.r = R[0] | R[1]
            else:
                self.w = R[0]; self.r = set().union(*R[1:]) if len(R) > 1 else set()
                if mn.startswith(('v_fmac', 'v_dot2c', 'v_pk_fmac')): self.r |= R[0]
                if mn.startswith('v_cndmask') and len(self.ops) == 3: self.r |= regs_of('vcc')
                if mn.startswith('v_cmpx'): self.w |= regs_of('exec')
        elif self.is_ds:
            if mn.startswith(('ds_read', 'ds_bpermute', 'ds_permute', 'ds_swizzle')): self.w = R[0]; self.r = set().union(*R[1:])
            else: self.r = set().union(*R)
        elif self.is_vmem:
            if mn.startswith('buffer_'):
                if self.lds_dma: self.r = set().union(*R) | regs_of('m0')
                elif 'load' in mn: self.w = R[0]; self.r = set().union(*R[1:])
                else:
                    self.r = set().union(*R); self.stdata = R[0]
                    if 'atomic' in mn and 'sc0' in self.mods: self.w = R[0]
            else:
                if 'load' in mn: self.w = R[0]; self.r = set().union(*R[1:])
                else: self.r = set().union(*R); self.stdata = R[1]
        elif self.is_salu and R:
            if mn.startswith(('s_cmp', 's_cbranch', 's_branch', 's_waitcnt', 's_nop', 's_barrier', 's_sleep', 's_setprio', 's_bitcmp', 's_endpgm')):
                self.r = set().union(*R)
            else:
                self.w = R[0]; self.r = set().union(*R[1:]) if len(R) > 1 else set()
                if 'saveexec' in mn: self.w |= regs_of('exec')
    def slots(self):
        if self.label or self.directive: return 0
        if self.mn == 's_nop': return int(self.ops[0], 0) + 1
        return 1

def vg(s): return {x for x in s if x[0] in 'va'}
def sg(s): return {x for x in s if x[0] == 's'}

def need(p, c):
    n = 0
    if p.is_valu:
        wv, ws = vg(p.w), sg(p.w)
        if c.is_mfma and wv & c.r: n = max(n, 2)
        if c.is_valu and c.is_dpp and wv & c.r: n = max(n, 2)
        if c.is_perml and wv & c.r: n = max(n, 2)
        if c.is_rdlane and wv & c.r: n = max(n, 1)
        if p.is_trans and (c.is_valu or c.is_mfma) and not c.is_trans and wv & c.r: n = max(n, 1)
        if p.is_trans and (c.is_ds or c.is_vmem) and wv & c.r: n = max(n, 1)
        if p.is_dot and (wv & (c.r | c.w)):
            same = c.mn == p.mn and not (wv & set().union(*[regs_of(o) for o in c.ops[1:3]]))
            if not same: n = max(n, 3)
        if ws:
            if c.is_valu and ws & c.r: n = max(n, 4 if c.is_rdlane or c.mn.startswith('v_writelane') else 2)
            if c.is_vmem and ws & c.r: n = max(n, 5)
            if c.is_salu and ws & c.r: n = max(n, 1)
            if ws & regs_of('exec'):
                if c.is_dpp: n = max(n, 5)
                if c.is_mfma or c.is_perml or c.is_rdlane: n = max(n, 4)
    if p.is_mfma:
        passes = 8 if '32x32' in p.mn else (2 if '4x4x4' in p.mn else 4)
        full = {2: 5, 4: 8, 8: 12}[passes]; part = {2: 4, 4: 6, 8: 10}[passes]; war = {2: 1, 4: 3, 8: 7}[passes]
        if c.is_mfma:
            if p.w & c.srcAB: n = max(n, full)
            if p.w & c.srcC and not (p.w == c.srcC and p.mn == c.mn): n = max(n, part)
            if p.w & c.srcC and passes == 2: n = max(n, 2)
            if p.w & c.w and not (p.w & c.srcC): n = max(n, full)
        elif (c.is_valu or c.is_ds or c.is_vmem):
            if p.w & (c.r | c.w): n = max(n, full)
            if c.is_valu and p.srcC & c.w: n = max(n, war)
    if p.is_vmem and p.stdata and len(p.stdata) >= 3:
        if p.stdata & c.w: n = max(n, 2)
    if p.is_salu and regs_of('m0') & p.w and c.lds_dma: n = max(n, 1)
    return n

LOOK = 14
def fix_hazards(lines):
    ins = [Ins(l) for l in lines]
    out = []
    for c in ins:
        hint = re.match(r';;need(\d+) (.*)', c.text)
        if hint:
            cc = Ins(hint.group(2)); dist = int(hint.group(1)); req = 0
            for p in reversed(out):
                if dist >= LOOK: break
                if not (p.label or p.directive):
                    req = max(req, need(p, cc) - dist)
                dist += p.slots()
            if req > 0: out.append(Ins(f's_nop {req-1}'))
            continue
        if not (c.label or c.directive):
            dist = 0; req = 0
            for p in reversed(out):
                if dist >= LOOK: break
                if not (p.label or p.directive):
                    k = need(p, c) - dist
                    if k > req: req = k
                dist += p.slots()
            while req > 0:
                k = min(req, 16); out.append(Ins(f's_nop {k-1}')); req -= k
        out.append(c)
    pos = {x.label: i for i, x in enumerate(out) if x.label}
    probs = []
    for b, x in enumerate(out):
        if x.is_branch and x.mn != 's_cbranch_execz' and x.ops[0] in pos:
            pre = []; d = 0
            for p in reversed(out[:b + 1]):
                if d >= LOOK: break
                pre.append((p, d)); d += p.slots()
            d2 = 0
            for c in out[pos[x.ops[0]]:]:
                if d2 >= LOOK: break
                if not (c.label or c.directive):
                    for p, dp in pre:
                        if not (p.label or p.directive) and need(p, c) > dp + d2:
                            probs.append(f'branch {x.text.strip()} : {p.text.strip()} -> {c.text.strip()} needs {need(p, c)} has {dp + d2}')
                    if c.mn == 's_branch' or c.mn == 's_endpgm': break
                d2 += c.slots()
    return [x.text for x in out], probs

class Asm:
    def __init__(self):
        self.L = []
        self.vm = []
    def __call__(self, s):
        for line in s.strip('\n').split('\n'):
            self.L.append(line.strip())
    def vmop(self, s, tag=None):
        self(s); self.vm.append(tag)
    def wait_vm(self, tag=None, extra=''):
        if tag is None:
            n = 0
        else:
            if tag not in self.vm: return
            idx = max(i for i, t in enumerate(self.vm) if t == tag)
            n = len(self.vm) - 1 - idx
        assert n <= 63
        self(f's_waitcnt vmcnt({n}) {extra}'.strip())
        self.vm = self.vm[len(self.vm) - n:] if n else []
    def text(self):
        out, probs = fix_hazards(self.L)
        return '\n'.join(out) + '\n', probs
```

```python
import sys, math, struct
sys.path.insert(0, 'gen')
from asmlib import Asm

NAME = "interleave_layers__sliding_block_cached__glu_gated_reglu__decode"

QC = 0x0
LB = 0x10000
oQP, oQS, oOP, oML, oGP, oGS, oXA, oXB, oGC, LS = 0x0, 0x40000, 0x42000, 0x82000, 0x84000, 0xC4000, 0xC6000, 0xE6000, 0x106000, 0x116000
CLEAN0 = LB + oOP
CLEAN_WG = 7680
TQP, TQC, TQS, EPOCH = 0x240000, 0x2C0000, 0x2E0000, 0x2E4000
WS_REC = 0x2E4100
OOB = 0x7FFF0000
L_RING, L_WQ, L_WO, L_WG, L_WU, L_WD = 0, 65536, 81920, 98304, 106496, 114688
L_QS, L_OS, L_HS, L_XS, L_RM = 122880, 124160, 125440, 126208, 127168
LDS_BYTES = 127488

def f32(x): return '0x%08x' % struct.unpack('<I', struct.pack('<f', x))[0]
QSCALE = 128 ** -0.5 * math.log2(math.e)

sW, sG, sC, sHI, sLO = 's3', 's4', 's5', 's6', 's7'
WS, KK, VV, WQ, WO, WG, WU, WD, XX, OUT, DBG = [f's[{i}:{i+3}]' for i in range(8, 52, 4)]
sKV, sRING, t0, t1, t2, t3 = 's52', 's53', 's54', 's55', 's56', 's57'
sLAY, sTO, sFAST, sCNT, sGOK, sLIDX = 's58', 's59', 's60', 's61', 's62', 's63'
sQg, sOg, sGg, sQSg, sMLg, sGSg, sXg, sQCg, sGCg = ['s%d' % i for i in range(66, 75)]
sOPst, sMLst, sXst, sQSst, sGSst = ['s%d' % i for i in range(75, 80)]
g0, g1, g2, g3 = 's90', 's91', 's92', 's93'
vL, vT4, vSt8, vXg, vQst, vGst, vSSt, vG1, vXst, vQW, vBR320, vHW, vBR192, vXR, vXW, vL4 = ['v%d' % i for i in range(16)]
vROW, vROR, vRMW, vRMR, vWQr, vWr, vWOr, vXO = ['v%d' % i for i in range(16, 24)]
CSQ, CSG = 'v[24:25]', 'v[26:27]'
vTS, vML2, vTMP, vTMP2 = 'v28', 'v29', 'v30', 'v31'
SELA, MASK, SELG, ONES = 'v[32:35]', 36, 'v[40:43]', 'v[44:45]'
vMLst = 'v46'
XRES = 'v[112:113]'
sM4 = 's[88:89]'
sTAG = 's100'
DPP = 'row_mask:0xf bank_mask:0xf'
M16 = 'v_mfma_f32_16x16x32_bf16'

def build(ts=False, gdelay=12, gdelay_hi=18, pf_code=True, rides=(13, 18, 23), wo_early=False, ldelay=0, bar_after_k0=False, fride=26, ffn_hi=True):
    A = Asm()
    uid = [0]
    def lab(p):
        uid[0] += 1; return f'L_{p}_{uid[0]}'
    nts = [0]; inloop = [False]
    def stamp(key=False):
        if not ts: return
        if ts == 2 and not key:
            nts[0] += 1; return
        if inloop[0]:
            A(f's_memrealtime s[94:95]\ns_mul_i32 m0, {sLIDX}, 11\ns_add_u32 m0, m0, {nts[0]}\ns_waitcnt lgkmcnt(0)\nv_writelane_b32 {vTS}, s94, m0')
        else:
            A(f's_memrealtime s[94:95]\ns_waitcnt lgkmcnt(0)\nv_writelane_b32 {vTS}, s94, {nts[0]}')
        nts[0] += 1
    def set_exec(lo, hi=None):
        hi = lo if hi is None else hi
        A(f's_mov_b32 exec_lo, {lo:#x}\ns_mov_b32 exec_hi, {hi:#x}')
    def full_exec(): A('s_mov_b64 exec, -1')
    def lstore(fmt, tag='st', nxt=None):
        a, b = lab('pl'), lab('sd')
        A(';;need2 ' + fmt)
        if nxt: A(';;need4 ' + nxt)
        A(f's_cmp_eq_u32 {sFAST}, 1\ns_cbranch_scc1 {a}')
        A(fmt + ' sc1'); A(f's_branch {b}\n{a}:'); A(fmt); A(f'{b}:')
        A.vm.append(tag)
    class lowwaves:
        def __enter__(s):
            s.l = lab('hi'); A(f's_cmp_ge_u32 {sW}, 4\ns_cbranch_scc1 {s.l}')
        def __exit__(s, *a): A(f'{s.l}:')
    def sel(dst, a, b):
        A(f'v_cndmask_b32 {dst}, {a}, {b}, vcc')

    A(f'; @launch grid=(256,1,1) block=(512,1,1) lds={LDS_BYTES}')
    A('.amdgcn_target "amdgcn-amd-amdhsa--gfx950"')
    A(f'.text\n.globl {NAME}_kernel\n.p2align 8\n.type {NAME}_kernel,@function\n{NAME}_kernel:')
    A('s_cmp_ge_u32 s2, 256\ns_cbranch_scc1 L_end')
    A('s_load_dwordx16 s[64:79], s[0:1], 0\ns_load_dwordx8 s[80:87], s[0:1], 64')
    A(f'v_lshlrev_b32 {vT4}, 2, v0')
    if pf_code:
        A(f's_getpc_b64 s[94:95]\nL_pc:\ns_lshr_b32 {t0}, s2, 3\ns_and_b32 {t0}, {t0}, 1\ns_lshl_b32 {t0}, {t0}, 13\nv_lshlrev_b32 {vTMP}, 2, {vT4}\nv_add_u32 {vTMP}, {t0}, {vTMP}')
        A(f'v_min_u32 {vTMP}, L_end-L_pc-16, {vTMP}')
        A.vmop(f'global_load_dwordx4 v[96:99], {vTMP}, s[94:95]', 'pf')
    A(f'v_lshrrev_b32 {vTMP}, 6, v0')
    A(f'v_and_b32 {vL}, 63, v0')
    A(f'v_readfirstlane_b32 {sW}, {vTMP}')
    A(f's_and_b32 {sG}, s2, 7\ns_lshr_b32 {sC}, s2, 3\ns_lshr_b32 {sHI}, {sC}, 3\ns_and_b32 {sLO}, {sC}, 7')
    A(f'v_and_b32 v120, 15, {vL}\nv_lshrrev_b32 v121, 4, {vL}')
    A(f'v_lshlrev_b32 {vTMP}, 2, v121\nv_xor_b32 {vTMP}, v120, {vTMP}\nv_lshlrev_b32 {vTMP}, 4, {vTMP}\nv_lshl_add_u32 v116, v121, 8, {vTMP}\nv_lshl_add_u32 v124, v121, 13, {vTMP}')
    A(f'v_xor_b32 {vTMP}, v120, v121\nv_lshlrev_b32 {vTMP}, 4, {vTMP}\nv_lshl_add_u32 v112, v121, 8, {vTMP}')
    for q in range(1, 4): A(f'v_xor_b32 v{112+q}, {64*q}, v112')
    A(f'v_and_b32 v122, 3, {vL}\nv_lshrrev_b32 v123, 2, v120')
    A(f's_lshr_b32 {t0}, {sW}, 1\ns_lshl_b32 {t0}, {t0}, 10\ns_and_b32 {t1}, {sW}, 1\ns_lshl_b32 {t1}, {t1}, 6\ns_add_u32 {t0}, {t0}, {t1}\ns_lshl_b32 {t1}, {sLO}, 7\ns_add_u32 {t0}, {t0}, {t1}')
    A(f'v_lshlrev_b32 v117, 4, v122\nv_lshl_add_u32 v117, v121, 2, v117\nv_add_u32 {vXO}, {t0}, v117')
    A(f's_lshl_b32 {t0}, {sHI}, 3\ns_add_u32 {t0}, {t0}, {sG}\ns_lshl_b32 {sKV}, {t0}, 22\ns_lshl_b32 {t0}, {sLO}, 17\ns_add_u32 {sKV}, {sKV}, {t0}\ns_add_u32 {sKV}, {sKV}, {12288*256}')
    A(f's_add_u32 {t0}, {sG}, {sC}\ns_add_u32 {t0}, {t0}, {sW}\ns_and_b32 {t0}, {t0}, 7\ns_lshl_b32 {t0}, {t0}, 12\ns_add_u32 {sKV}, {sKV}, {t0}')
    A(f's_lshl_b32 {sRING}, {sW}, 13')
    A(f's_and_b32 {g3}, {sW}, 3')
    A(f's_lshl_b32 {t0}, {sG}, 2\ns_add_u32 {t0}, {t0}, {sHI}')
    A(f's_lshl_b32 {t1}, {sLO}, 10\ns_lshl_b32 {t2}, {sHI}, 8\ns_add_u32 {t1}, {t1}, {t2}\ns_lshl_b32 {t2}, {g3}, 6\ns_add_u32 {t3}, {t1}, {t2}')
    A(f's_lshl_b32 {t1}, {sG}, 15\ns_add_u32 {t1}, {t1}, {t3}\ns_add_u32 {t1}, {t1}, {LB+oQP}')
    A(f's_lshl_b32 {t2}, {sG}, 13\ns_add_u32 {t2}, {t2}, {t3}\ns_add_u32 {t2}, {t2}, {QC}')
    A(f's_cmp_ge_u32 {sW}, 4\ns_cselect_b32 {g0}, 0, 5')
    A(f'v_mov_b32 v118, {OOB}')
    def st_off(dst, shift, rsh=4):
        A(f'v_lshlrev_b32 {vTMP}, {shift}, v120\nv_add_u32 {vTMP}, {t1}, {vTMP}\nv_mov_b32 {vTMP2}, {t2}\nv_cmp_eq_u32 vcc, 4, v120'); sel(vTMP, vTMP, vTMP2)
        A(f'v_lshl_add_u32 {vTMP}, v121, {rsh}, {vTMP}\nv_cmp_gt_u32 vcc, {g0}, v120'); sel(dst, 'v118', vTMP)
    st_off(vQst, 13)
    A(f's_lshl_b32 {t3}, {t3}, 1\ns_lshl_b32 {t1}, {sG}, 16\ns_add_u32 {t1}, {t1}, {t3}\ns_add_u32 {t1}, {t1}, {TQP}\ns_lshl_b32 {t2}, {sG}, 14\ns_add_u32 {t2}, {t2}, {t3}\ns_add_u32 {t2}, {t2}, {TQC}')
    st_off('v109', 14, 5)
    A(f'v_lshlrev_b32 {vTMP}, 6, v122\nv_add_u32 {vTMP2}, 4, {vTMP}\nv_cmp_gt_u32 vcc, 16, {vL}'); sel(vTMP, vTMP, vTMP2)
    A(f'v_and_b32 {vTMP2}, {0x1ec*4}, {vT4}\nv_cmp_eq_u32 vcc, {256*4}, {vTMP2}'); sel(vSSt, 'v118', vTMP)
    A(f's_lshl_b32 {t3}, {t0}, 8\ns_lshl_b32 {t1}, {sLO}, 3\ns_add_u32 {t3}, {t3}, {t1}')
    A(f's_mul_i32 {t1}, s2, {CLEAN_WG}\ns_add_u32 {t1}, {t1}, {CLEAN0}')
    A(f'v_lshlrev_b32 {vTMP}, 2, {vT4}\nv_add_u32 {vTMP}, {t1}, {vTMP}\nv_cmp_gt_u32 vcc, {CLEAN_WG//4}, {vT4}'); sel('v119', 'v118', vTMP)
    A('v_mov_b32 v64, -1\nv_mov_b32 v65, -1\nv_mov_b32 v66, -1\nv_mov_b32 v67, -1')
    A(f's_lshl_b32 {t1}, {sLO}, 6\ns_lshl_b32 {t2}, {sW}, 3\ns_add_u32 {t1}, {t1}, {t2}\ns_lshl_b32 {t1}, {t1}, 13\ns_lshl_b32 {t2}, {sG}, 10\ns_add_u32 {t1}, {t1}, {t2}\ns_lshl_b32 {t2}, {sHI}, 8\ns_add_u32 {t1}, {t1}, {t2}')
    A(f's_lshl_b32 {t2}, {sW}, 11\ns_add_u32 m0, {t2}, {L_WQ}')
    if ts:
        A(f'v_mov_b32 {vTS}, 0'); stamp(True)
        A(f's_memtime s[98:99]')
    A('s_waitcnt lgkmcnt(0)')
    def srd(d, lo, n):
        A(f's_mov_b32 s{d}, s{lo}\ns_mov_b32 s{d+1}, s{lo+1}\ns_mov_b32 s{d+2}, {n}\ns_mov_b32 s{d+3}, 0x20000')
    srd(20, 70, 4194304)
    A.vmop(f'buffer_load_dwordx4 v124, {WQ}, {t1} offen nt lds', 'wq')
    A(f's_add_u32 {t1}, {t1}, 32768\ns_add_u32 m0, m0, 1024')
    srd(40, 64, 4096)
    A.vmop(f'buffer_load_dwordx4 v124, {WQ}, {t1} offen nt lds', 'wq')
    srd(8, 86, WS_REC)
    A.vmop(f'buffer_load_dword v68, {vXO}, {XX}, 0 offen', 'x0')
    A(f's_mov_b32 {t2}, {EPOCH}')
    A.vmop(f'buffer_load_dword v69, off, {WS}, {t2} sc1', 'ep')
    A.vmop(f'buffer_store_dwordx4 v[64:67], v119, {WS}, 0 offen sc1', 'cl')
    srd(12, 66, 0x8000000)
    def piece(p):
        t, q = (p % 16) // 4, p % 4
        if q == 0:
            A(f's_add_u32 {g1}, {sKV}, {t*32768}\ns_add_u32 m0, {sRING}, {((p//4)&1)*4096}')
        src = f'v{112+q}' if p < 16 else 'v116'
        A.vmop(f'buffer_load_dwordx4 {src}, {KK if p < 16 else VV}, {g1} offen offset:{q*1024} nt lds', f'p{p}')
    for p in range(8): piece(p)
    srd(16, 68, 0x8000000)
    if ts: A('s_mov_b32 s96, s86\ns_mov_b32 s97, s87')

    srd(24, 72, 4194304); srd(44, 82, 4096); srd(48, 84, 256)
    srd(28, 76, 1835008); srd(32, 78, 1835008); srd(36, 80, 1835008)
    A(f's_mul_i32 {t1}, {sG}, 3\ns_add_u32 {t1}, {t1}, 4\ns_lshl_b32 {t2}, {sG}, 2\ns_cmp_ge_u32 {sG}, 4\ns_cselect_b32 {g2}, {t1}, {t2}\ns_add_u32 {g2}, {g2}, {sHI}\ns_min_u32 {g2}, {g2}, 27')
    A(f's_getreg_b32 {t1}, hwreg(HW_REG_XCC_ID)\ns_and_b32 {t1}, {t1}, 15\ns_or_b32 {t1}, {t1}, 0x80\ns_mul_i32 s64, {t1}, 0x01010101\ns_lshl_b32 s65, {sG}, 3')
    A(f's_mov_b32 s88, 0x000f000f\ns_mov_b32 s89, 0x000f000f')
    A(f's_lshl_b32 {t1}, {t0}, 13')
    A(f's_add_u32 {sQg}, {t1}, {LB+oQP}\ns_add_u32 {sOg}, {t1}, {LB+oOP}\ns_add_u32 {sGg}, {t1}, {LB+oGP}')
    A(f's_lshl_b32 {t1}, {sG}, 2\ns_add_u32 {t1}, {t1}, {g3}\ns_lshl_b32 {t2}, {t1}, 13\ns_lshl_b32 {t1}, {t1}, 2\ns_add_u32 {t1}, {t1}, {sHI}\ns_lshl_b32 {t1}, {t1}, 6\ns_add_u32 {sQSg}, {t1}, {LB+oQS}')
    A(f's_lshl_b32 {sMLst}, {sLO}, 3\ns_add_u32 {sMLst}, {sMLst}, {t1}\ns_add_u32 {sMLst}, {sMLst}, {LB+oML}')
    A(f's_lshl_b32 {t1}, {sLO}, 10\ns_add_u32 {t2}, {t2}, {t1}\ns_lshl_b32 {t1}, {sHI}, 8\ns_add_u32 {t2}, {t2}, {t1}\ns_add_u32 {sOPst}, {t2}, {LB+oOP}')
    A(f's_lshl_b32 {t1}, {t0}, 2\ns_add_u32 {t1}, {t1}, {g3}\ns_lshl_b32 {t1}, {t1}, 6\ns_add_u32 {sMLg}, {t1}, {LB+oML}\ns_add_u32 {sGSg}, {t1}, {LB+oGS}')
    A(f's_lshl_b32 {t1}, {sLO}, 14\ns_add_u32 {sXg}, {t1}, {LB+oXA}')
    A(f's_lshl_b32 {t1}, {t0}, 9\ns_add_u32 {sXst}, {sXg}, {t1}')
    A(f's_lshl_b32 {t1}, {sG}, 13\ns_add_u32 {sQCg}, {t1}, {QC}')
    A(f's_lshl_b32 {t1}, {t0}, 11\ns_add_u32 {sGCg}, {t1}, {LB+oGC}')
    A(f's_add_u32 {sQSst}, {t3}, {LB+oQS}\ns_add_u32 {sGSst}, {t3}, {LB+oGS}')
    A(f's_mov_b32 {sLAY}, 0\ns_mov_b32 {sTO}, 400000\ns_mov_b32 {sFAST}, 0\ns_mov_b32 {sCNT}, 0\ns_mov_b32 {sGOK}, 0\ns_mov_b32 {sLIDX}, 0')
    A(f's_lshl_b32 {t3}, {g3}, 6\ns_lshl_b32 {t1}, {sLO}, 10\ns_add_u32 {t1}, {t1}, {sGg}\ns_add_u32 {t1}, {t1}, {t3}\ns_lshl_b32 {t2}, {sLO}, 8\ns_add_u32 {t2}, {t2}, {sGCg}\ns_add_u32 {t2}, {t2}, {t3}')
    st_off(vGst, 8)
    A(f'v_and_b32 {vTMP}, 7, {vL}\nv_lshlrev_b32 {vSt8}, 3, {vTMP}\nv_lshlrev_b32 {vL4}, 2, {vL}\nv_lshlrev_b32 {vML2}, 3, v121')
    A(f'v_cmp_eq_u32 vcc, 0, {vL}'); sel(vMLst, 'v118', '0')
    A(f's_lshl_b32 {t1}, {g3}, 8\nv_lshlrev_b32 {vTMP}, 4, v120\nv_lshl_add_u32 {vG1}, v121, 10, {vTMP}\nv_add_u32 {vG1}, {t1}, {vG1}')
    A(f's_lshl_b32 {t1}, {sW}, 6\nv_lshlrev_b32 {vXg}, 11, v123\nv_lshl_add_u32 {vXg}, v121, 9, {vXg}\nv_lshl_add_u32 {vXg}, v122, 4, {vXg}\nv_add_u32 {vXg}, {t1}, {vXg}')
    A(f's_lshr_b32 {t1}, {sW}, 1\ns_mul_i32 {t1}, {t1}, 192\ns_and_b32 {t2}, {sW}, 1\ns_lshl_b32 {t2}, {t2}, 6\ns_add_u32 {t1}, {t1}, {t2}\ns_add_u32 {t1}, {t1}, {L_XS}\nv_add_u32 {vXW}, {t1}, v117')
    A(f's_mul_i32 {t1}, {g3}, 320\ns_add_u32 {t1}, {t1}, {L_QS}\nv_lshl_add_u32 {vQW}, v121, 2, {vTMP}\nv_add_u32 {vQW}, {t1}, {vQW}')
    A(f's_mul_i32 {t1}, {g3}, 192\ns_add_u32 {t1}, {t1}, {L_HS}\nv_lshlrev_b32 {vHW}, 3, v120\nv_lshl_add_u32 {vHW}, v121, 1, {vHW}\nv_add_u32 {vHW}, {t1}, {vHW}')
    A(f'v_mul_u32_u24 {vBR320}, 320, v122\nv_lshl_add_u32 {vBR320}, v121, 4, {vBR320}\nv_add_u32 {vBR320}, {L_QS}, {vBR320}')
    A(f'v_mul_u32_u24 {vBR192}, 192, v122\nv_lshl_add_u32 {vBR192}, v121, 4, {vBR192}\nv_add_u32 {vBR192}, {L_HS}, {vBR192}')
    A(f'v_min_u32 {vTMP2}, 4, v120\nv_mul_u32_u24 {vXR}, 192, {vTMP2}\nv_lshl_add_u32 {vXR}, v121, 4, {vXR}\nv_add_u32 {vXR}, {L_XS}, {vXR}')
    A(f's_lshl_b32 {t1}, {g3}, 5\nv_lshlrev_b32 {vTMP2}, 7, v120\nv_lshl_add_u32 {vTMP2}, v121, 3, {vTMP2}\nv_add_u32 {vTMP2}, {t1}, {vTMP2}\nv_cmp_gt_u32 vcc, 4, v120'); sel(vXst, 'v118', vTMP2)
    A(f'v_lshlrev_b32 {vTMP2}, 4, {vL}\nv_add_u32 {vROW}, {sRING}, {vTMP2}')
    A(f's_lshr_b32 {t1}, {g3}, 1\ns_lshl_b32 {t1}, {t1}, 10\ns_and_b32 {t2}, {g3}, 1\ns_lshl_b32 {t2}, {t2}, 3\ns_add_u32 {t1}, {t1}, {t2}\nv_add_u32 {vROR}, {t1}, {vTMP2}')
    A(f's_lshl_b32 {t1}, {sW}, 3\ns_add_u32 {t1}, {t1}, {L_RM}\nv_lshlrev_b32 {vRMW}, 6, v122\nv_add_u32 {vRMW}, {t1}, {vRMW}')
    A(f's_lshl_b32 {t1}, {g3}, 6\ns_add_u32 {t1}, {t1}, {L_RM}\nv_add_u32 {vRMR}, {t1}, {vSt8}')
    A(f'v_lshl_add_u32 v125, v121, 3, v123')
    A(f'v_xor_b32 {vTMP}, {g3}, v123\nv_lshlrev_b32 {vTMP}, 6, {vTMP}\nv_lshl_add_u32 {vTMP}, v122, 4, {vTMP}\nv_lshl_add_u32 {vWQr}, v125, 8, {vTMP}\nv_add_u32 {vWQr}, {L_WQ}, {vWQr}')
    A(f'v_lshrrev_b32 v119, 1, v123\nv_and_b32 v127, 1, v121\nv_lshl_add_u32 {vTMP}, v127, 1, v119')
    A(f'v_xor_b32 {vTMP}, {g3}, {vTMP}\nv_lshlrev_b32 {vTMP}, 5, {vTMP}\nv_lshl_add_u32 {vTMP}, v122, 3, {vTMP}\nv_lshl_add_u32 {vWr}, v125, 7, {vTMP}\nv_add_u32 {vWr}, {L_WG}, {vWr}')
    A(f'v_and_b32 v126, 1, v123\nv_lshl_add_u32 {vTMP}, v126, 1, v127\nv_xor_b32 {vTMP}, {g3}, {vTMP}\nv_lshlrev_b32 {vTMP}, 5, {vTMP}\nv_lshl_add_u32 {vTMP}, v122, 3, {vTMP}')
    A(f'v_lshl_add_u32 {vTMP2}, v121, 2, v119\nv_lshl_add_u32 {vTMP2}, v126, 6, {vTMP2}\nv_lshl_add_u32 {vWOr}, {vTMP2}, 7, {vTMP}\nv_add_u32 {vWOr}, {L_WO}, {vWOr}')
    A(f'v_and_b32 v125, 1, v120\nv_mov_b32 {vTMP}, 0xffff\nv_mov_b32 {vTMP2}, 0xffff0000\nv_cmp_eq_u32 vcc, 1, v125'); sel('v119', vTMP, vTMP2)
    A(f'v_cmp_gt_u32 vcc, 2, v122'); sel('v119', '0', 'v119')
    for i in range(4):
        A(f'v_cmp_eq_u32 vcc, {i}, v123'); sel(f'v{MASK+i}', '0', 'v119'); A(f'v_and_b32 v{32+i}, 0x3f803f80, v{MASK+i}')
    A(f'v_mov_b32 {vTMP}, 0x3f80\nv_mov_b32 {vTMP2}, 0x3f800000\nv_cmp_eq_u32 vcc, 1, v126'); sel('v119', vTMP, vTMP2)
    A(f'v_cmp_gt_u32 vcc, 2, v122'); sel('v119', '0', 'v119')
    A(f'v_lshrrev_b32 {vTMP}, 1, v123\nv_lshl_add_u32 {vTMP}, v125, 1, {vTMP}')
    for i in range(4):
        A(f'v_cmp_eq_u32 vcc, {i}, {vTMP}'); sel(f'v{40+i}', '0', 'v119')
    A('v_mov_b32 v44, 0x3f803f80\nv_mov_b32 v45, 0x3f803f80')
    A(f'v_and_b32 {vTMP2}, 7, {vL}\nv_lshrrev_b32 v119, 3, {vL}')
    A(f's_lshr_b32 {t1}, {sW}, 2\ns_lshl_b32 {t1}, {t1}, 2\nv_lshrrev_b32 {vTMP}, 5, {vL}\nv_lshlrev_b32 {vTMP}, 1, {vTMP}\nv_or_b32 {vTMP}, {t1}, {vTMP}\nv_xor_b32 {vTMP}, {vTMP}, {vTMP2}\nv_lshlrev_b32 {vTMP}, 4, {vTMP}\nv_lshl_add_u32 v124, v119, 10, {vTMP}')
    A(f's_and_b32 {t1}, {sW}, 1\ns_lshl_b32 {t1}, {t1}, 2\nv_lshlrev_b32 {vTMP}, 1, v127\nv_or_b32 {vTMP}, {t1}, {vTMP}\nv_xor_b32 {vTMP}, {vTMP}, {vTMP2}\nv_lshlrev_b32 {vTMP}, 4, {vTMP}')
    A(f'v_lshl_add_u32 v127, v119, 10, {vTMP}\nv_mul_u32_u24 v126, 3584, v119\nv_add_u32 v126, v126, {vTMP}')
    A(f's_cmp_ge_u32 {sG}, 4\ns_cselect_b32 {t2}, 3, 4\ns_cmp_lt_u32 {sHI}, {t2}\ns_cselect_b32 {t2}, 0, {OOB}\nv_add_u32 v126, {t2}, v126\nv_add_u32 v127, {t2}, v127')
    A(f'v_lshlrev_b32 {vTMP}, 1, v123\nv_xor_b32 {vTMP}, v121, {vTMP}\nv_lshlrev_b32 {vTMP}, 5, {vTMP}\nv_lshl_add_u32 {vTMP}, v122, 3, {vTMP}\nv_lshl_add_u32 {vTMP}, v123, 8, {vTMP}\nv_add_u32 v122, {sRING}, {vTMP}\nv_xor_b32 v123, 128, v122')
    A(f'v_xor_b32 {vTMP}, v120, v121\nv_lshlrev_b32 {vTMP}, 4, {vTMP}\nv_lshl_add_u32 {vTMP}, v120, 8, {vTMP}\nv_add_u32 v118, {sRING}, {vTMP}')
    for j in range(1, 4): A(f'v_xor_b32 v{118+j}, {64*j}, v118')
    A(f'v_and_b32 {vTMP}, 124, {vL4}\nv_add_u32 {vTMP}, {L_XS+4*192}, {vTMP}\nds_write_b32 {vTMP}, v44')

    def read_k(i):
        for j in range(4): A(f'ds_read_b128 a[{16*i+4*j}:{16*i+4*j+3}], v{118+j} offset:{(i&1)*4096}')
    def read_v(p):
        i = p - 16
        for hf in range(2):
            r = 64 + 4 * i + 2 * hf
            A(f'ds_read_b64_tr_b16 a[{r}:{r+1}], v{122+hf} offset:{((p//4)&1)*4096 + (p%4)*1024}')
    A.wait_vm('cl')
    A(f'ds_write_b32 {vXW}, v68\nv_and_b32 v111, 0xffff0000, v68\nv_lshlrev_b32 v110, 16, v68')
    A(f'v_readfirstlane_b32 {sTAG}, v69\ns_add_u32 {sTAG}, {sTAG}, 1')
    if bar_after_k0:
        A.wait_vm('p3')
        read_k(0)
        A('s_waitcnt lgkmcnt(0)')
        for p in range(8, 12): piece(p)
    A('s_waitcnt lgkmcnt(0)\ns_barrier')
    stamp()
    A(f's_lshl_b32 {t1}, {sG}, 5\ns_add_u32 {t1}, {t1}, {sC}\nv_mov_b32 v74, s64\nv_mov_b32 {vTMP2}, {OOB}\nv_cmp_eq_u32 vcc, 0, {vT4}'); sel(vTMP, vTMP2, '0')
    A.vmop(f'buffer_store_byte v74, {vTMP}, {DBG}, {t1} offen sc1', 'at')

    def read_wq():
        for tl in range(2):
            for j in range(2):
                for u in range(2):
                    r = 48 + 8 * tl + 4 * j + 2 * u
                    A(f'ds_read_b64_tr_b16 v[{r}:{r+1}], {vWQr} offset:{8*tl+8192*j+1024*u}')
    def read_gu():
        for tl in range(2):
            for j in range(2):
                for u in range(2):
                    r = 48 + 8 * tl + 4 * j + 2 * u
                    A(f'ds_read_b64_tr_b16 v[{r}:{r+1}], {vWr} offset:{8192*tl+4096*j+512*u}')
    def read_wd():
        for j in range(2):
            for u in range(2):
                A(f'ds_read_b64_tr_b16 v[{48+4*j+2*u}:{49+4*j+2*u}], {vWr} offset:{16384+4096*j+512*u}')
    def read_wo():
        for j in range(4):
            for u in range(2):
                A(f'ds_read_b64_tr_b16 v[{48+4*j+2*u}:{49+4*j+2*u}], {vWOr} offset:{2048*j+256*u}')
    def matvec(vst, first, late_w=None):
        A(f'ds_read_b128 v[80:83], {vXR}\nds_read_b128 v[84:87], {vXR} offset:64')
        if late_w: late_w()
        if first is None:
            A(f's_cmp_eq_u32 {sLIDX}, 0\ns_cselect_b64 s[56:57], -1, {sM4}')
        A('s_waitcnt lgkmcnt(0)' if late_w else 's_waitcnt lgkmcnt(1)')
        A(f'{M16} v[96:99], v[48:51], v[80:83], 0\n{M16} v[100:103], v[56:59], v[80:83], 0')
        if not late_w: A('s_waitcnt lgkmcnt(0)')
        A(f'{M16} v[96:99], v[52:55], v[84:87], v[96:99]\n{M16} v[100:103], v[60:63], v[84:87], v[100:103]')
        if first is None: A('s_mov_b64 exec, s[56:57]')
        if first is False: A(f's_mov_b64 exec, {sM4}')
        if first is True:
            A(f'v_cvt_pk_bf16_f32 v96, v96, v97\nv_cvt_pk_bf16_f32 v97, v98, v99\nv_cvt_pk_bf16_f32 v100, v100, v101\nv_cvt_pk_bf16_f32 v101, v102, v103')
            A(f'v_mov_b32 v98, {sTAG}\nv_mov_b32 v99, {sTAG}\nv_mov_b32 v102, {sTAG}\nv_mov_b32 v103, {sTAG}')
            A.vmop(f'buffer_store_dwordx4 v[96:99], {vst}, {WS}, 0 offen sc1', 'st')
            A.vmop(f'buffer_store_dwordx4 v[100:103], {vst}, {WS}, 0 offen offset:16 sc1', 'st')
            return
        A('v_cvt_pk_bf16_f32 v96, v96, v97\nv_cvt_pk_bf16_f32 v97, v98, v99\nv_cvt_pk_bf16_f32 v98, v100, v101\nv_cvt_pk_bf16_f32 v99, v102, v103')
        lstore(f'buffer_store_dwordx4 v[96:99], {vst}, {WS}, {sLAY} offen')
        full_exec()
    def slice_stats(sst, tagged=False):
        l = lab('st')
        A(f's_cmp_lg_u32 {sW}, 4\ns_cbranch_scc1 {l}')
        A(f'ds_read_b128 v[80:83], {vXR}\nds_read_b128 v[84:87], {vXR} offset:64\ns_waitcnt lgkmcnt(1)')
        A(f'{M16} v[104:107], v[80:83], v[80:83], 0\ns_waitcnt lgkmcnt(0)\n{M16} v[104:107], v[84:87], v[84:87], v[104:107]')
        for k in (1, 2, 3):
            A(f's_mov_b64 exec, {1<<k}\nv_mov_b32 v104, v{104+k}')
        full_exec()
        if tagged:
            A(f's_sub_u32 {t1}, {sst}, {LB+oQS}\ns_lshl_b32 {t1}, {t1}, 1\ns_add_u32 {t1}, {t1}, {TQS}\nv_mov_b32 v105, {sTAG}')
            A(f'v_lshlrev_b32 {vTMP}, 1, {vSSt}\nv_min_u32 {vTMP}, {OOB}, {vTMP}')
            A(f'buffer_store_dwordx2 v[104:105], {vTMP}, {WS}, {t1} offen sc1')
        else:
            lstore(f'buffer_store_dword v104, {vSSt}, {WS}, {sst} offen')
            A.vm.pop()
        A(f'{l}:')

    def issue_g1(dst, voff, sbase, tag, step=4096):
        A.vmop(f'buffer_load_dwordx4 v[{dst}:{dst+3}], {voff}, {WS}, {sbase} offen sc1', tag)
        if step >= 4096:
            A(f's_add_u32 {t1}, {sbase}, {step}')
            A.vmop(f'buffer_load_dwordx4 v[{dst+4}:{dst+7}], {voff}, {WS}, {t1} offen sc1', tag)
        else:
            A.vmop(f'buffer_load_dwordx4 v[{dst+4}:{dst+7}], {voff}, {WS}, {sbase} offen offset:{step} sc1', tag)
    def check_empty(regs):
        regs = list(regs)
        A(f'v_max3_u32 {vTMP}, v{regs[0]}, v{regs[1]}, v{regs[2]}'); rest = regs[3:]
        if len(rest) >= 5:
            A(f'v_max3_u32 {vTMP2}, v{rest[0]}, v{rest[1]}, v{rest[2]}'); rest = rest[3:]
            tg = 0
            while len(rest) >= 2:
                d = (vTMP, vTMP2)[tg]; A(f'v_max3_u32 {d}, {d}, v{rest[0]}, v{rest[1]}'); rest = rest[2:]; tg ^= 1
            if rest: A(f'v_max3_u32 {vTMP}, {vTMP}, {vTMP2}, v{rest[0]}')
            else: A(f'v_max_u32 {vTMP}, {vTMP}, {vTMP2}')
        else:
            while len(rest) >= 2:
                A(f'v_max3_u32 {vTMP}, {vTMP}, v{rest[0]}, v{rest[1]}'); rest = rest[2:]
            if rest: A(f'v_max_u32 {vTMP}, {vTMP}, v{rest[0]}')
        A(f'v_cmp_eq_u32 vcc, -1, {vTMP}')
    def poll(issue, regs, spec=None):
        r, d = lab('retry'), lab('got')
        A(f'{r}:')
        issue()
        A.wait_vm()
        if spec: spec()
        check_empty(regs)
        A(f's_cbranch_vccz {d}\ns_sub_u32 {sTO}, {sTO}, 1\ns_cbranch_scc0 {r}\ns_mov_b32 {sTO}, 0\n{d}:')
    def issue_cnt():
        A.vmop(f'buffer_load_dword v76, {vL4}, {DBG}, 0 offen sc1', 'cnt')
    def check_cnt():
        d = lab('cn')
        A(f'v_and_b32 {vTMP}, 0x80808080, v76\nv_cmp_ne_u32 vcc, 0x80808080, {vTMP}\ns_cbranch_vccnz {d}')
        A(f's_mov_b32 {sCNT}, 1\nv_cmp_eq_u32 vcc, s64, v76\ns_lshr_b64 s[56:57], vcc, s65\ns_and_b32 {t2}, {t2}, 0xff\ns_cmp_eq_u32 {t2}, 0xff\ns_cselect_b32 {sFAST}, 1, 0\n{d}:')
    def issue_q(first):
        if not first:
            issue_g1(64, vG1, sQg, 'q')
            A.vmop(f'buffer_load_dwordx2 v[72:73], {vSt8}, {WS}, {sQSg} offen sc1', 'q')
            return
        A(f'v_lshlrev_b32 {vTMP}, 1, {vG1}\nv_lshlrev_b32 {vTMP2}, 1, {vSt8}')
        A(f's_sub_u32 {t1}, {sQg}, {LB+oQP}\ns_lshl_b32 {t1}, {t1}, 1\ns_add_u32 {t1}, {t1}, {TQP}\ns_add_u32 {t2}, {t1}, 8192')
        for k in range(2):
            for hh in range(2):
                r = 48 + 8 * k + 4 * hh
                A.vmop(f'buffer_load_dwordx4 v[{r}:{r+3}], {vTMP}, {WS}, {(t1, t2)[k]} offen offset:{16*hh} sc1', 'q')
        A(f's_lshl_b32 {t1}, {sG}, 14\ns_add_u32 {t1}, {t1}, {TQC}\ns_add_u32 {t2}, {t1}, 8192')
        for k in range(2):
            for hh in range(2):
                r = 80 + 8 * k + 4 * hh
                A.vmop(f'buffer_load_dwordx4 v[{r}:{r+3}], {vTMP}, {WS}, {(t1, t2)[k]} offen offset:{16*hh} sc1', 'q')
        A(f's_sub_u32 {t1}, {sQSg}, {LB+oQS}\ns_lshl_b32 {t1}, {t1}, 1\ns_add_u32 {t1}, {t1}, {TQS}')
        A.vmop(f'buffer_load_dwordx4 v[72:75], {vTMP2}, {WS}, {t1} offen sc1', 'q')
    def check_tags():
        tw = [50, 54, 58, 62, 82, 86, 90, 94, 73, 75]
        A(f'v_max3_u32 {vTMP}, v{tw[0]}, v{tw[1]}, v{tw[2]}\nv_min3_u32 {vTMP2}, v{tw[0]}, v{tw[1]}, v{tw[2]}')
        for i in range(3, 9, 2):
            A(f'v_max3_u32 {vTMP}, {vTMP}, v{tw[i]}, v{tw[i+1]}\nv_min3_u32 {vTMP2}, {vTMP2}, v{tw[i]}, v{tw[i+1]}')
        A(f'v_max_u32 {vTMP}, {vTMP}, v{tw[9]}\nv_min_u32 {vTMP2}, {vTMP2}, v{tw[9]}')
        A(f'v_xor_b32 {vTMP}, {sTAG}, {vTMP}\nv_xor_b32 {vTMP2}, {sTAG}, {vTMP2}\nv_or_b32 {vTMP}, {vTMP}, {vTMP2}\nv_cmp_ne_u32 vcc, 0, {vTMP}')
    def q0_sum():
        M = 'v_mfma_f32_16x16x16_bf16'
        for base, acc in ((48, 96), (80, 100)):
            for n_, (k, hh) in enumerate(((0, 0), (0, 1), (1, 0), (1, 1))):
                r = base + 8 * k + 4 * hh
                c = '0' if n_ == 0 else f'v[{acc}:{acc+3}]'
                A(f'{M} v[{acc}:{acc+3}], v[{32+2*hh}:{33+2*hh}], v[{r}:{r+1}], {c}')
        A(f'v_add_f32_dpp v78, v72, v72 quad_perm:[1,0,3,2] {DPP}\nv_add_f32_dpp v79, v74, v74 quad_perm:[1,0,3,2] {DPP}')
    QREGS = list(range(64, 74)); QREGS1 = QREGS + list(range(80, 88))
    def ln_spec(selop, first):
        def f():
            A(f'{M16} v[96:99], {selop}, v[64:67], 0\n{M16} v[96:99], {selop}, v[68:71], v[96:99]')
            if first:
                A(f'{M16} v[100:103], {selop}, v[80:83], 0\n{M16} v[100:103], {selop}, v[84:87], v[100:103]')
            A(f'v_add_f32_dpp v78, v72, v72 quad_perm:[1,0,3,2] {DPP}\nv_add_f32_dpp v79, v73, v73 quad_perm:[1,0,3,2] {DPP}')
        return f
    def ln_finish(cs, scale, first):
        for m in ('quad_perm:[2,3,0,1]', 'row_half_mirror'):
            A(f'v_add_f32_dpp v78, v78, v78 {m} {DPP}\nv_add_f32_dpp v79, v79, v79 {m} {DPP}')
            if m.startswith('quad'): A(f'v_mov_b32 v75, {f32(1e-5/(scale*scale))}')
        c2 = scale * scale
        A(f'v_mul_f32 v74, v78, v78\nv_fmac_f32 v75, {f32(1/(512*c2))}, v79')
        if first:
            A(f's_mov_b32 {t2}, {f32(1/512)}\nv_pk_mul_f32 {cs}, v[100:101], s[56:57] op_sel_hi:[1,0]')
        A(f'v_fmac_f32 v75, {f32(-1/(512*512*c2))}, v74\nv_max_f32 v75, {f32(1e-5/c2)}, v75\nv_rsq_f32 v74, v75')
        A(f'v_pk_fma_f32 v[96:97], v[78:79], {cs}, v[96:97] op_sel_hi:[0,1,1] neg_lo:[1,0,0] neg_hi:[1,0,0]')
        A(f'v_pk_mul_f32 v[96:97], v[96:97], v[74:75] op_sel_hi:[1,0]')
    def q_finish(first):
        ln_finish(CSQ, QSCALE, first)
        A(f'v_cvt_pk_bf16_f32 v96, v96, v97\nds_write_b32 {vQW}, v96')

    save = list(A.vm)
    with lowwaves():
        read_wq()
        A('s_waitcnt lgkmcnt(0)')
        matvec('v109', True)
    slice_stats(sQSst, True)
    stamp()

    def step(p):
        d = p - 5
        A.wait_vm(f'p{d}')
        if d < 16:
            if d % 4 == 3: read_k(d // 4); A('s_waitcnt lgkmcnt(0)')
        else:
            A('s_waitcnt lgkmcnt(0)')
            read_v(d)
        piece(p)
    hi_l, join_all, flag_l = lab('shi'), lab('sj'), lab('fl')
    def lead_in():
        if not bar_after_k0:
            A.wait_vm('p3'); read_k(0); A('s_waitcnt lgkmcnt(0)')
            for pp in range(8, 12): piece(pp)
    def steps(lo_, hi_):
        for pp in range(lo_, hi_):
            if pp == fride: issue_cnt()
            step(pp)
            if pp == min(fride + 4, 31): A.wait_vm('cnt'); check_cnt()
    A(f's_cmp_ge_u32 {sW}, 4\ns_cbranch_scc1 {hi_l}')
    lead_in()
    p = 12
    while p < 32:
        if p in rides:
            skip, join = lab('noq'), lab('jn')
            saved = list(A.vm)
            A(f's_cmp_eq_u32 {sGOK}, 1\ns_cbranch_scc1 {skip}')
            issue_q(True)
            steps(p, p + 5)
            if 'q' in A.vm: A.wait_vm('q')
            check_tags()
            nq = lab('nq')
            A(f's_cbranch_vccnz {nq}\ns_mov_b32 {sGOK}, 1')
            q0_sum()
            q_finish(True)
            A(f'{nq}:\ns_branch {join}\n{skip}:')
            after_q = list(A.vm)
            A.vm = saved
            steps(p, p + 5)
            extra = len(A.vm) - len(after_q)
            assert A.vm[extra:] == after_q, (A.vm, after_q)
            A.vm = after_q if extra <= 0 else A.vm
            A(f'{join}:')
            p += 5
        else:
            steps(p, p + 1); p += 1
    dn, rq = lab('qdone'), lab('rq')
    saved = list(A.vm)
    A(f's_cmp_eq_u32 {sGOK}, 1\ns_cbranch_scc1 {dn}\n{rq}:')
    issue_q(True); A.wait_vm(); check_tags()
    gq = lab('gq')
    A(f's_cbranch_vccz {gq}\ns_sub_u32 {sTO}, {sTO}, 1\ns_cbranch_scc0 {rq}\ns_mov_b32 {sTO}, 0\n{gq}:')
    q0_sum()
    q_finish(True)
    A(f'{dn}:\ns_branch {flag_l}\n{hi_l}:')
    A.vm = save
    lead_in()
    steps(12, 32)
    assert A.vm == saved, (A.vm, saved)
    rc2 = lab('rc')
    A(f'{flag_l}:\ns_cmp_eq_u32 {sCNT}, 1\ns_cbranch_scc1 {join_all}\n{rc2}:')
    issue_cnt(); A.wait_vm(); check_cnt()
    A(f's_cmp_eq_u32 {sCNT}, 1\ns_cbranch_scc1 {join_all}\ns_sub_u32 {sTO}, {sTO}, 1\ns_cbranch_scc0 {rc2}\ns_mov_b32 {sTO}, 0')
    A.vm = saved
    A(f'{join_all}:')
    A('v_mov_b32 v112, v110\nv_mov_b32 v113, v111')
    stamp()
    def issue_wo():
        A(f's_lshl_b32 {t1}, {sG}, 9\ns_lshl_b32 {t2}, {sHI}, 7\ns_add_u32 {t1}, {t1}, {t2}\ns_lshl_b32 {t2}, {sW}, 4\ns_add_u32 {t1}, {t1}, {t2}\ns_lshl_b32 {t1}, {t1}, 10\ns_lshl_b32 {t2}, {sLO}, 7\ns_add_u32 {t1}, {t1}, {t2}')
        A(f's_lshl_b32 {t2}, {sW}, 11\ns_add_u32 m0, {t2}, {L_WO}')
        A.vmop(f'buffer_load_dwordx4 v124, {WO}, {t1} offen nt lds', 'wo')
        A(f's_add_u32 {t1}, {t1}, 8192\ns_add_u32 m0, m0, 1024')
        A.vmop(f'buffer_load_dwordx4 v124, {WO}, {t1} offen nt lds', 'wo')
    if wo_early: issue_wo()

    def issue_ffn(dw=0):
        A(f's_add_u32 {t0}, {sW}, {dw}')
        A(f's_lshl_b32 {t1}, {sLO}, 6\ns_lshl_b32 {t2}, {t0}, 3\ns_add_u32 {t1}, {t1}, {t2}\ns_mul_i32 {t1}, {t1}, 3584\ns_lshl_b32 {t2}, {g2}, 7\ns_add_u32 {t1}, {t1}, {t2}')
        A(f's_lshl_b32 {t2}, {t0}, 10\ns_add_u32 m0, {t2}, {L_WG}')
        A(f'buffer_load_dwordx4 v126, {WG}, {t1} offen nt lds')
        A(f's_add_u32 m0, {t2}, {L_WU}')
        A(f'buffer_load_dwordx4 v126, {WU}, {t1} offen nt lds')
        A(f's_lshl_b32 {t1}, {g2}, 6\ns_lshl_b32 {t3}, {t0}, 3\ns_add_u32 {t1}, {t1}, {t3}\ns_lshl_b32 {t1}, {t1}, 10\ns_lshl_b32 {t3}, {sLO}, 7\ns_add_u32 {t1}, {t1}, {t3}\ns_add_u32 m0, {t2}, {L_WD}')
        A(f'buffer_load_dwordx4 v127, {WD}, {t1} offen nt lds')
    def scores():
        A('s_waitcnt lgkmcnt(0)\ns_barrier')
        for j in range(4): A(f'ds_read_b128 v[{64+4*j}:{67+4*j}], {vBR320} offset:{64*j}')
        for j in range(4):
            A(f's_waitcnt lgkmcnt({3-j})')
            for t in range(4):
                c = '0' if j == 0 else f'v[{80+4*t}:{83+4*t}]'
                A(f'{M16} v[{80+4*t}:{83+4*t}], a[{16*t+4*j}:{16*t+4*j+3}], v[{64+4*j}:{67+4*j}], {c}')
        for t in range(1, 4):
            for r in range(4):
                A(f'v_mov_b32_dpp v{80+r}, v{80+4*t+r} quad_perm:[0,1,2,3] row_mask:0xf bank_mask:{1<<t:#x}')
        A('v_max3_f32 v84, v80, v81, v82\nv_max_f32 v84, v84, v83')
        A(f'v_max_f32_dpp v84, v84, v84 row_ror:4 {DPP}')
        A(f'v_max_f32_dpp v84, v84, v84 row_ror:8 {DPP}')
        A('v_mov_b32 v85, v84\nv_permlane16_swap_b32 v84, v85\nv_max_f32 v84, v84, v85')
        A('v_mov_b32 v85, v84\nv_permlane32_swap_b32 v84, v85\nv_max_f32 v84, v84, v85')
        A('v_pk_add_f32 v[80:81], v[80:81], v[84:85] op_sel_hi:[1,0] neg_lo:[0,1] neg_hi:[0,1]')
        A('v_pk_add_f32 v[82:83], v[82:83], v[84:85] op_sel_hi:[1,0] neg_lo:[0,1] neg_hi:[0,1]')
        for r in range(4): A(f'v_exp_f32 v{80+r}, v{80+r}')
        A('v_cvt_pk_bf16_f32 v86, v80, v81\nv_cvt_pk_bf16_f32 v87, v82, v83')
        A(f'v_mfma_f32_16x16x16_bf16 v[88:91], {ONES}, v[86:87], 0')
    def pv(i):
        for hf in range(2):
            acc = 96 + 8 * (i & 1) + 4 * hf
            c = '0' if i < 2 else f'v[{acc}:{acc+3}]'
            A(f'v_mfma_f32_4x4x4_16b_bf16 v[{acc}:{acc+3}], v[86:87], a[{64+4*i+2*hf}:{65+4*i+2*hf}], {c} cbsz:4 abid:{4*(i&3)+(i>>2)}')
    def lsum():
        A(f'v_add_f32_dpp v85, v88, v88 row_ror:4 {DPP}')
        A(f'v_add_f32_dpp v85, v85, v85 row_ror:8 {DPP}')
        A(f's_mov_b64 exec, 15\nds_write_b64 {vRMW}, v[84:85]')
        full_exec()
    def combine():
        for h in range(4):
            A(f'v_add_f32 v{64+2*h}, v{96+h}, v{104+h}\nv_add_f32 v{65+2*h}, v{100+h}, v{108+h}')
            if h & 1: A(f'ds_write_b128 {vROW}, v[{62+2*h}:{65+2*h}] offset:{512*(h-1)}')
        A('s_waitcnt lgkmcnt(0)\ns_barrier')
        with lowwaves():
            A(f'ds_read_b64 v[72:73], {vRMR}')
            for k in range(8): A(f'ds_read_b64 v[{80+2*k}:{81+2*k}], {vROR} offset:{8192*k}')
            A('s_waitcnt lgkmcnt(8)')
            A(f'v_max_f32_dpp v74, v72, v72 quad_perm:[1,0,3,2] {DPP}')
            A(f'v_max_f32_dpp v74, v74, v74 quad_perm:[2,3,0,1] {DPP}')
            A(f'v_max_f32_dpp v74, v74, v74 row_half_mirror {DPP}')
            A('v_sub_f32 v72, v72, v74\nv_exp_f32 v72, v72')
            for k in range(8): A(f'v_readlane_b32 s{80+k}, v72, {k}')
            A('v_mul_f32 v75, v73, v72\ns_waitcnt lgkmcnt(0)')
            for k in range(8):
                sp = f's[{80+(k&~1)}:{81+(k&~1)}]'
                o = 'op_sel_hi:[1,0' if (k & 1) == 0 else 'op_sel:[0,1'
                d = 64 + 2 * (k & 1)
                if k < 2: A(f'v_pk_mul_f32 v[{d}:{d+1}], v[{80+2*k}:{81+2*k}], {sp} {o}]')
                else: A(f'v_pk_fma_f32 v[{d}:{d+1}], v[{80+2*k}:{81+2*k}], {sp}, v[{d}:{d+1}] {o},{1 if (k&1)==0 else 0}]')
            A('v_pk_add_f32 v[64:65], v[64:65], v[66:67]\nv_cvt_pk_bf16_f32 v64, v64, v65')
            lstore(f'buffer_store_dword v64, {vL4}, {WS}, {sOPst} offen')
            for m in ('quad_perm:[1,0,3,2]', 'quad_perm:[2,3,0,1]', 'row_half_mirror'):
                A(f'v_add_f32_dpp v75, v75, v75 {m} {DPP}')
            lstore(f'buffer_store_dwordx2 v[74:75], {vMLst}, {WS}, {sMLst} offen')

    scores()
    for i in range(11): pv(i)
    lsum()
    stamp()
    for p in range(27, 32):
        A.wait_vm(f'p{p}')
        read_v(p)
        if p == 31 and not wo_early:
            issue_wo()
            if ffn_hi:
                l_ = lab('ff'); A(f's_cmp_lt_u32 {sW}, 4\ns_cbranch_scc1 {l_}'); issue_ffn(-4); issue_ffn(0); A(f'{l_}:')
        A('s_waitcnt lgkmcnt(0)')
        pv(p - 16)
    stamp()
    combine()
    stamp(True)

    A('L_layer:'); inloop[0] = True
    def proj_out(nk, vb, boff, xoff, late_w=None):
        sk, dl = lab('sk'), lab('dl')
        A(f's_cmp_ge_u32 {sW}, 4\ns_cbranch_scc1 {sk}')
        for j in range(nk): A(f'ds_read_b128 v[{64+4*j}:{67+4*j}], {vb} offset:{boff+64*j}')
        if late_w: late_w()
        for j in range(nk):
            if not late_w: A(f's_waitcnt lgkmcnt({nk-1-j})')
            elif j == 0: A('s_waitcnt lgkmcnt(0)')
            c = '0' if j == 0 else 'v[96:99]'
            A(f'{M16} v[96:99], v[{48+4*j}:{51+4*j}], v[{64+4*j}:{67+4*j}], {c}')
        A(f's_add_u32 {t1}, {sXst}, {xoff}')
        A('v_cvt_pk_bf16_f32 v96, v96, v97\nv_cvt_pk_bf16_f32 v97, v98, v99')
        A(f'buffer_store_dwordx2 v[96:97], {vXst}, {WS}, {t1} offen sc1')
        return sk, dl
    def first_only(f):
        def g():
            l = lab('fo'); A(f's_cmp_lg_u32 {sLIDX}, 0\ns_cbranch_scc1 {l}'); f(); A(f'{l}:')
        return g
    def later_only(f):
        l = lab('lo'); A(f's_cmp_eq_u32 {sLIDX}, 0\ns_cbranch_scc1 {l}'); f(); A(f'{l}:')
    def g_wait(sk, dl, pre):
        pre()
        if gdelay: A(f's_sleep {gdelay}')
        A(f's_branch {dl}\n{sk}:')
        if gdelay_hi: A(f's_sleep {gdelay_hi}')
        A(f'{dl}:')
    def reduce_x(xoff, final):
        A(f's_add_u32 {t0}, {sXg}, {xoff}')
        poll(lambda: issue_g1(64, vXg, t0, 'x', 8192), range(64, 72),
             lambda: A(f'{M16} v[96:99], {SELA}, v[64:67], 0\n{M16} v[96:99], {SELA}, v[68:71], v[96:99]'))
        stamp()
        A(f'v_add_f32_dpp v96, v96, v96 row_ror:4 {DPP}\nv_add_f32_dpp v97, v97, v97 row_ror:4 {DPP}')
        A(f'v_add_f32_dpp v96, v96, v96 row_ror:8 {DPP}\nv_add_f32_dpp v97, v97, v97 row_ror:8 {DPP}')
        A(f's_mov_b64 exec, {sM4}')
        A(f'v_pk_add_f32 {XRES}, {XRES}, v[96:97]\nv_cvt_pk_bf16_f32 v96, v112, v113')
        if final: A(f's_cmp_eq_u32 {sLIDX}, 1\ns_cbranch_scc1 L_out')
        A(f'ds_write_b32 {vXW}, v96')
        full_exec()
        A('s_waitcnt lgkmcnt(0)\ns_barrier')
    def issue_o():
        issue_g1(64, vG1, sOg, 'o')
        A.vmop(f'buffer_load_dwordx2 v[72:73], {vML2}, {WS}, {sMLg} offen sc1', 'o')
        A.vmop(f'buffer_load_dwordx2 v[74:75], {vML2}, {WS}, {sMLg} offen offset:32 sc1', 'o')
    with lowwaves():
        later_only(read_wo)
        if ldelay: A(f's_sleep {ldelay}')
        poll(issue_o, range(64, 76))
        stamp()
        A('v_max_f32 v76, v72, v74\nv_mov_b32 v77, v76\nv_permlane16_swap_b32 v76, v77\nv_max_f32 v76, v76, v77')
        A('v_mov_b32 v77, v76\nv_permlane32_swap_b32 v76, v77\nv_max_f32 v76, v76, v77')
        A('v_sub_f32 v72, v72, v76\nv_sub_f32 v74, v74, v76\nv_exp_f32 v72, v72\nv_exp_f32 v74, v74')
        A('v_cvt_pk_bf16_f32 v72, v72, v72\nv_cvt_pk_bf16_f32 v74, v74, v74')
        for i in range(4): A(f'v_and_b32 v{80+i}, v{MASK+i}, v72')
        for i in range(4): A(f'v_and_b32 v{84+i}, v{MASK+i}, v74')
        A(f'{M16} v[96:99], v[80:83], v[64:67], 0\n{M16} v[96:99], v[84:87], v[68:71], v[96:99]')
        A('v_and_b32 v72, 0xffff0000, v72\nv_and_b32 v74, 0xffff0000, v74\nv_mul_f32 v73, v73, v72\nv_fmac_f32 v73, v75, v74')
        A('v_mov_b32 v77, v73\nv_permlane16_swap_b32 v73, v77\nv_add_f32 v73, v73, v77')
        A('v_mov_b32 v77, v73\nv_permlane32_swap_b32 v73, v77\nv_add_f32 v73, v73, v77\nv_rcp_f32 v72, v73')
        A('v_pk_mul_f32 v[96:97], v[96:97], v[72:73] op_sel_hi:[1,0]\nv_cvt_pk_bf16_f32 v96, v96, v97')
        A(f'ds_write_b32 {vQW}, v96 offset:{L_OS-L_QS}')
    A(f's_waitcnt vmcnt({6 if ffn_hi else 0}) lgkmcnt(0)\ns_barrier')
    if not ffn_hi: first_only(issue_ffn)()
    sk, dl = proj_out(4, vBR320, L_OS - L_QS, 0, first_only(read_wo))
    g_wait(sk, dl, lambda: later_only(read_gu))
    stamp()
    reduce_x(0, False)
    slice_stats(sGSst)
    def issue_gp(first):
        issue_g1(64, vG1, sGg, 'g')
        A.vmop(f'buffer_load_dwordx2 v[72:73], {vSt8}, {WS}, {sGSg} offen sc1', 'g')
        if first:
            A(f'v_and_b32 {vTMP}, 0xf0, {vG1}\nv_and_b32 {vTMP2}, 0xc00, {vG1}\nv_lshrrev_b32 {vTMP2}, 2, {vTMP2}\nv_or_b32 {vTMP}, {vTMP}, {vTMP2}')
            issue_g1(80, vTMP, sGCg, 'g', 1024)
    with lowwaves():
        matvec(vGst, None, first_only(read_gu))
        stamp()
        read_wd()
        if ldelay: A(f's_sleep {ldelay}')
        l1, l2 = lab('g1'), lab('g2')
        A(f's_cmp_lg_u32 {sLIDX}, 0\ns_cbranch_scc1 {l1}')
        poll(lambda: issue_gp(True), QREGS1, ln_spec(SELG, True))
        ln_finish(CSG, 1.0, True)
        A(f's_branch {l2}\n{l1}:')
        poll(lambda: issue_gp(False), QREGS, ln_spec(SELG, False))
        ln_finish(CSG, 1.0, False)
        A(f'{l2}:')
        stamp()
        A('v_cvt_pk_bf16_f32 v96, v96, v97\nv_and_b32 v97, 0xffff0000, v96\nv_lshlrev_b32 v96, 16, v96\nv_max_f32 v96, 0, v96\nv_mul_f32 v96, v96, v97\nv_cvt_pk_bf16_f32 v96, v96, v96')
        A(f'ds_write_b16 {vHW}, v96')
    A('s_waitcnt lgkmcnt(0)\ns_barrier')
    sk, dl = proj_out(2, vBR192, 0, oXB - oXA)
    g_wait(sk, dl, read_wq)
    stamp()
    no = lab('no')
    A(f's_cmp_eq_u32 {sLIDX}, 0\ns_cbranch_scc1 {no}\ns_cmp_lg_u32 {sHI}, 0\ns_cbranch_scc1 L_fin\ns_cmp_lg_u32 {sG}, {sLO}\ns_cbranch_scc1 L_fin\n{no}:')
    A(f's_add_u32 {sQSst}, {sQSst}, {LS}')
    reduce_x(oXB - oXA, True)
    slice_stats(sQSst)
    A(f's_mov_b32 {sLIDX}, 1\ns_mov_b32 {sLAY}, {LS}')
    keep = nts[0]; nts[0] -= 11
    with lowwaves():
        matvec(vQst, False)
        stamp()
        A(f's_add_u32 {sQg}, {sQg}, {LS}\ns_add_u32 {sQSg}, {sQSg}, {LS}')
        if ldelay: A(f's_sleep {ldelay}')
        poll(lambda: issue_q(False), QREGS, ln_spec(SELA, False))
        stamp()
        q_finish(False)
    for s in (sOg, sGg, sMLg, sGSg, sXg, sOPst, sMLst, sXst, sGSst):
        A(f's_add_u32 {s}, {s}, {LS}')
    scores()
    for i in range(16):
        pv(i)
        if i == 5: lsum()
    stamp()
    combine()
    stamp()
    A('s_branch L_layer'); nts[0] = keep
    A('L_out:')
    A(f'buffer_store_dword v96, {vXO}, {OUT}, 0 offen')
    A(f's_or_b32 {t1}, s2, {sW}\ns_cmp_lg_u32 {t1}, 0\ns_cbranch_scc1 L_fin0')
    A(f's_mov_b64 exec, 1\nv_mov_b32 v97, {sTAG}\ns_mov_b32 {t2}, {EPOCH}\nbuffer_store_dword v97, off, {WS}, {t2} sc1')
    A('L_fin0:')
    full_exec()
    A('L_fin:')
    if ts:
        stamp(True)
        A(f's_memtime s[94:95]\ns_waitcnt lgkmcnt(0)\ns_sub_u32 s94, s94, s98\nv_writelane_b32 {vTS}, s94, 63')
        A(f's_add_u32 s96, s96, 0x10000000\ns_addc_u32 s97, s97, 0\ns_lshl_b32 {t1}, s2, 11\nv_add_u32 v64, {t1}, {vT4}\nglobal_store_dword v64, {vTS}, s[96:97]')
    A('L_end:\ns_endpgm')
    A(f'.section .rodata,"a"\n.p2align 6\n.amdhsa_kernel {NAME}_kernel')
    A('.amdhsa_next_free_vgpr 256\n.amdhsa_next_free_sgpr 102\n.amdhsa_accum_offset 128\n.amdhsa_group_segment_fixed_size 0\n.amdhsa_kernarg_size 96\n.amdhsa_user_sgpr_count 2\n.amdhsa_user_sgpr_kernarg_segment_ptr 1\n.amdhsa_system_sgpr_workgroup_id_x 1\n.end_amdhsa_kernel')
    txt, probs = A.text()
    for p in probs: print('HAZARD', p, file=sys.stderr)
    return txt, nts[0]

if __name__ == '__main__':
    out = sys.argv[1]
    kw = {}
    for a in sys.argv[2:]:
        k, v = a.split('='); kw[k] = eval(v)
    txt, n = build(**kw)
    open(out, 'w').write(txt)
    print('stamps', n, 'lines', txt.count('\n'))
```

```python
import sys, math, struct
sys.path.insert(0, 'gen')
from asmlib import Asm

NAME = "interleave_layers__sliding_block_cached__glu_gated_reglu__decode"

bQP, bQS, bOP, bML, bGP, bGS, bGC, GB = 0x0, 0x8000, 0x8400, 0x10400, 0x10800, 0x18800, 0x18C00, 0x1AC00
oXA, oXB, LS = 8 * GB, 8 * GB + 0x20000, 8 * GB + 0x40000
TQP, TQC, EPOCH = 0x240000, 0x2C0000, 0x2E0000
WS_REC = 0x2E0100
OOB = 0x7FFF0000
L_RING, L_WQ, L_WO, L_WG, L_WU, L_WD = 0, 65536, 81920, 98304, 106496, 114688
L_QS, L_OS, L_HS, L_XS, L_RM = 122880, 124160, 125440, 126208, 127168
LDS_BYTES = 127488

def f32(x): return '0x%08x' % struct.unpack('<I', struct.pack('<f', x))[0]
QSCALE = 128 ** -0.5 * math.log2(math.e)

sW, sG, sC, sHI, sLO = 's3', 's4', 's5', 's6', 's7'
WS, KK, VV, WQ, WO, WG, WU, WD, XX, OUT, DBG = [f's[{i}:{i+3}]' for i in range(8, 52, 4)]
sKV, sRING, t0, t1, t2, t3 = 's52', 's53', 's54', 's55', 's56', 's57'
sLAY, sTO, sFAST, sCNT, sGOK, sLIDX = 's58', 's59', 's60', 's61', 's62', 's63'
sQg, sOg, sGg, sQSg, sMLg, sGSg, sXg, sGBASE, sGCg = ['s%d' % i for i in range(66, 75)]
sOPst, sMLst, sXst, sQSst, sGSst = ['s%d' % i for i in range(75, 80)]
g0, g1, g2, g3 = 's90', 's91', 's92', 's93'
vL, vT4, vSt8, vXg, vQst, vGst, vSSt, vG1, vXst, vQW, vBR320, vHW, vBR192, vXR, vXW, vL4 = ['v%d' % i for i in range(16)]
vROW, vROR, vRMW, vRMR, vWQr, vWr, vWOr, vXO = ['v%d' % i for i in range(16, 24)]
CSQ, CSG = 'v[24:25]', 'v[26:27]'
vTS, vML2, vTMP, vTMP2 = 'v28', 'v29', 'v30', 'v31'
SELA, MASK, SELG, ONES = 'v[32:35]', 36, 'v[40:43]', 'v[44:45]'
vMLst = 'v46'
XRES = 'v[112:113]'
sM4 = 's[88:89]'
sTAG = 's100'
DPP = 'row_mask:0xf bank_mask:0xf'
M16 = 'v_mfma_f32_16x16x32_bf16'

def build(ts=False, gdelay=12, gdelay_hi=18, pf_code=True, rides=(17, 22, 27), w_at='land31', ldelay=0, bar_after_k0=False, fride=26, ffn_hi=True, deep_from=24, depth=5, deep=7, diag=0, noclean=0, burst=4, late47=0, abl='', backoff=0, cl_sc1=1):
    A = Asm()
    uid = [0]
    def lab(p):
        uid[0] += 1; return f'L_{p}_{uid[0]}'
    nts = [0]; inloop = [False]
    def stamp(key=False):
        if not ts: return
        if ts == 2 and not key:
            nts[0] += 1; return
        if inloop[0]:
            A(f's_memrealtime s[94:95]\ns_mul_i32 m0, {sLIDX}, 11\ns_add_u32 m0, m0, {nts[0]}\ns_waitcnt lgkmcnt(0)\nv_writelane_b32 {vTS}, s94, m0')
        else:
            A(f's_memrealtime s[94:95]\ns_waitcnt lgkmcnt(0)\nv_writelane_b32 {vTS}, s94, {nts[0]}')
        nts[0] += 1
    def xstamp(i):
        A(f's_memrealtime s[94:95]\ns_waitcnt lgkmcnt(0)\nv_writelane_b32 {vTS}, s94, {i}')
    def set_exec(lo, hi=None):
        hi = lo if hi is None else hi
        A(f's_mov_b32 exec_lo, {lo:#x}\ns_mov_b32 exec_hi, {hi:#x}')
    def full_exec(): A('s_mov_b64 exec, -1')
    tails = []
    def lstore(fmt, tag='st', nxt=None):
        a, b = lab('wt'), lab('sd')
        A(';;need2 ' + fmt)
        A(f's_cmp_eq_u32 {sFAST}, 1\ns_cbranch_scc0 {a}')
        A(fmt); A(f'{b}:')
        tails.append(f'{a}:\n{fmt} sc1\ns_branch {b}')
        A.vm.append(tag)
    class lowwaves:
        def __enter__(s):
            s.l = lab('hi'); A(f's_cmp_ge_u32 {sW}, 4\ns_cbranch_scc1 {s.l}')
        def __exit__(s, *a): A(f'{s.l}:')
    def sel(dst, a, b):
        A(f'v_cndmask_b32 {dst}, {a}, {b}, vcc')

    A(f'; @launch grid=(256,1,1) block=(512,1,1) lds={LDS_BYTES}')
    A('.amdgcn_target "amdgcn-amd-amdhsa--gfx950"')
    A(f'.text\n.globl {NAME}_kernel\n.p2align 8\n.type {NAME}_kernel,@function\n{NAME}_kernel:')
    A('s_cmp_ge_u32 s2, 256\ns_cbranch_scc1 L_end')
    A('s_load_dwordx16 s[64:79], s[0:1], 0\ns_load_dwordx8 s[80:87], s[0:1], 64')
    A(f'v_lshlrev_b32 {vT4}, 2, v0')
    if pf_code:
        A(f's_getpc_b64 s[94:95]\nL_pc:\ns_lshr_b32 {t0}, s2, 3\ns_and_b32 {t0}, {t0}, 1\ns_lshl_b32 {t0}, {t0}, 13\nv_lshlrev_b32 {vTMP}, 2, {vT4}\nv_add_u32 {vTMP}, {t0}, {vTMP}')
        A(f'v_min_u32 {vTMP}, L_end-L_pc-16, {vTMP}')
        A.vmop(f'global_load_dwordx4 v[96:99], {vTMP}, s[94:95]', 'pf')
    A(f'v_lshrrev_b32 {vTMP}, 6, v0')
    A(f'v_and_b32 {vL}, 63, v0')
    A(f'v_readfirstlane_b32 {sW}, {vTMP}')
    A(f's_and_b32 {sG}, s2, 7\ns_lshr_b32 {sC}, s2, 3\ns_lshr_b32 {sHI}, {sC}, 3\ns_and_b32 {sLO}, {sC}, 7')
    A(f'v_and_b32 v120, 15, {vL}\nv_lshrrev_b32 v121, 4, {vL}')
    A(f'v_lshlrev_b32 {vTMP}, 2, v121\nv_xor_b32 {vTMP}, v120, {vTMP}\nv_lshlrev_b32 {vTMP}, 4, {vTMP}\nv_lshl_add_u32 v116, v121, 8, {vTMP}\nv_lshl_add_u32 v124, v121, 13, {vTMP}')
    A(f'v_and_b32 v122, 3, {vL}\nv_lshrrev_b32 v123, 2, v120')
    A(f's_lshr_b32 {t0}, {sW}, 1\ns_lshl_b32 {t0}, {t0}, 10\ns_and_b32 {t1}, {sW}, 1\ns_lshl_b32 {t1}, {t1}, 6\ns_add_u32 {t0}, {t0}, {t1}\ns_lshl_b32 {t1}, {sLO}, 7\ns_add_u32 {t0}, {t0}, {t1}')
    A(f'v_lshlrev_b32 v117, 4, v122\nv_lshl_add_u32 v117, v121, 2, v117\nv_add_u32 {vXO}, {t0}, v117')
    A(f's_lshl_b32 {t0}, {sHI}, 3\ns_add_u32 {t0}, {t0}, {sG}\ns_lshl_b32 {sKV}, {t0}, 22\ns_lshl_b32 {t0}, {sLO}, 17\ns_add_u32 {sKV}, {sKV}, {t0}\ns_add_u32 {sKV}, {sKV}, {12288*256}')
    A(f's_add_u32 {t0}, {sG}, {sC}\ns_add_u32 {t0}, {t0}, {sW}\ns_and_b32 {t0}, {t0}, 7\ns_lshl_b32 {t0}, {t0}, 12\ns_add_u32 {sKV}, {sKV}, {t0}')
    A(f's_lshl_b32 {sRING}, {sW}, 13')
    A(f's_and_b32 {g3}, {sW}, 3')
    A(f's_lshl_b32 {t0}, {sG}, 2\ns_add_u32 {t0}, {t0}, {sHI}')
    A(f'v_mov_b32 v118, {OOB}')
    A(f's_mul_i32 s101, {sG}, {GB}')
    A(f's_mul_i32 {t1}, {sC}, 1056\ns_add_u32 {t1}, {t1}, s101\ns_add_u32 {t1}, {t1}, {bOP}')
    A(f's_lshl_b32 {t2}, {sLO}, 14\ns_lshl_b32 {t3}, {t0}, 9\ns_add_u32 {t2}, {t2}, {t3}\ns_add_u32 {t2}, {t2}, {oXA - 2048}')
    A(f'v_lshlrev_b32 v115, 2, {vT4}\nv_add_u32 {vTMP}, {t1}, v115\nv_cmp_gt_u32 vcc, 1056, v115'); sel('v119', 'v118', vTMP)
    A(f'v_add_u32 {vTMP}, {t2}, v115\nv_and_b32 {vTMP2}, 0x1e00, v115\nv_cmp_eq_u32 vcc, 2048, {vTMP2}'); sel('v119', 'v119', vTMP)
    A('v_mov_b32 v64, -1\nv_mov_b32 v65, -1\nv_mov_b32 v66, -1\nv_mov_b32 v67, -1')
    A(f's_lshl_b32 {t1}, {sLO}, 6\ns_lshl_b32 {t2}, {sW}, 3\ns_add_u32 {t1}, {t1}, {t2}\ns_lshl_b32 {t1}, {t1}, 13\ns_lshl_b32 {t2}, {sG}, 10\ns_add_u32 {t1}, {t1}, {t2}\ns_lshl_b32 {t2}, {sHI}, 8\ns_add_u32 {t1}, {t1}, {t2}')
    A(f's_lshl_b32 {t2}, {sW}, 11\ns_add_u32 m0, {t2}, {L_WQ}')
    if ts:
        A(f'v_mov_b32 {vTS}, 0'); stamp(True)
        A(f's_memtime s[98:99]')
    A('s_waitcnt lgkmcnt(0)')
    def srd(d, lo, n):
        A(f's_mov_b32 s{d}, s{lo}\ns_mov_b32 s{d+1}, s{lo+1}\ns_mov_b32 s{d+2}, {n}\ns_mov_b32 s{d+3}, 0x20000')
    srd(20, 70, 4194304)
    A.vmop(f'buffer_load_dwordx4 v124, {WQ}, {t1} offen nt lds', 'wq')
    A(f's_add_u32 {t1}, {t1}, 32768\ns_add_u32 m0, m0, 1024')
    srd(40, 64, 4096)
    A.vmop(f'buffer_load_dwordx4 v124, {WQ}, {t1} offen nt lds', 'wq')
    srd(8, 86, WS_REC)
    A.vmop(f'buffer_load_dword v68, {vXO}, {XX}, 0 offen', 'x0')
    A(f's_lshr_b32 {t2}, {sW}, 1\ns_lshl_b32 {t2}, {t2}, 10\nv_lshlrev_b32 {vTMP}, 4, {vL}')
    A.vmop(f'buffer_load_dwordx4 v[72:75], {vTMP}, {XX}, {t2} offen', 'x0')
    A(f's_mov_b32 {t2}, {EPOCH}')
    A.vmop(f'buffer_load_dword v69, off, {WS}, {t2} sc1', 'ep')
    if not noclean: A.vmop(f'buffer_store_dwordx4 v[64:67], v119, {WS}, 0 offen sc1', 'cl')
    srd(12, 66, 0x8000000)
    def piece(p):
        t, q = (p % 16) // 4, p % 4
        if q == 0:
            A(f's_add_u32 {g1}, {sKV}, {t*32768}\ns_add_u32 m0, {sRING}, {((p//4)&1)*4096}')
        src = 'v116'
        A.vmop(f'buffer_load_dwordx4 {src}, {KK if p < 16 else VV}, {g1} offen offset:{q*1024} nt lds', f'p{p}')
    for p in range(burst): piece(p)
    srd(16, 68, 0x8000000)
    if ts: A('s_mov_b32 s96, s86\ns_mov_b32 s97, s87')

    srd(24, 72, 4194304); srd(44, 82, 4096); srd(48, 84, 256)
    srd(28, 76, 1835008); srd(32, 78, 1835008); srd(36, 80, 1835008)
    A(f's_mul_i32 {t1}, {sG}, 3\ns_add_u32 {t1}, {t1}, 4\ns_lshl_b32 {t2}, {sG}, 2\ns_cmp_ge_u32 {sG}, 4\ns_cselect_b32 {g2}, {t1}, {t2}\ns_add_u32 {g2}, {g2}, {sHI}\ns_min_u32 {g2}, {g2}, 27')
    A(f's_getreg_b32 {t1}, hwreg(HW_REG_XCC_ID)\ns_and_b32 {t1}, {t1}, 15\ns_or_b32 {t1}, {t1}, 0x80\ns_mul_i32 s64, {t1}, 0x01010101\ns_lshl_b32 s65, {sG}, 3')
    A(f's_mov_b32 s88, 0x000f000f\ns_mov_b32 s89, 0x000f000f')
    A(f's_mov_b32 {sGBASE}, s101')
    A(f's_lshl_b32 {t1}, {sHI}, 13\ns_add_u32 {t1}, {t1}, {sGBASE}')
    A(f's_add_u32 {sQg}, {t1}, {bQP}\ns_add_u32 {sOg}, {t1}, {bOP}\ns_add_u32 {sGg}, {t1}, {bGP}')
    A(f's_lshl_b32 {t1}, {g3}, 2\ns_add_u32 {t1}, {t1}, {sHI}\ns_lshl_b32 {t1}, {t1}, 6\ns_add_u32 {t1}, {t1}, {sGBASE}\ns_add_u32 {sQSg}, {t1}, {bQS}')
    A(f's_lshl_b32 {sMLst}, {sLO}, 3\ns_add_u32 {sMLst}, {sMLst}, {t1}\ns_add_u32 {sMLst}, {sMLst}, {bML}')
    A(f's_lshl_b32 {t2}, {g3}, 13\ns_lshl_b32 {t1}, {sLO}, 10\ns_add_u32 {t2}, {t2}, {t1}\ns_lshl_b32 {t1}, {sHI}, 8\ns_add_u32 {t2}, {t2}, {t1}\ns_add_u32 {t2}, {t2}, {sGBASE}\ns_add_u32 {sOPst}, {t2}, {bOP}')
    A(f's_lshl_b32 {t1}, {sHI}, 2\ns_add_u32 {t1}, {t1}, {g3}\ns_lshl_b32 {t1}, {t1}, 6\ns_add_u32 {t1}, {t1}, {sGBASE}\ns_add_u32 {sMLg}, {t1}, {bML}\ns_add_u32 {sGSg}, {t1}, {bGS}')
    A(f's_lshl_b32 {t1}, {sLO}, 14\ns_add_u32 {sXg}, {t1}, {oXA}')
    A(f's_lshl_b32 {t1}, {t0}, 9\ns_add_u32 {sXst}, {sXg}, {t1}')
    A(f's_lshl_b32 {t1}, {sHI}, 11\ns_add_u32 {t1}, {t1}, {sGBASE}\ns_add_u32 {sGCg}, {t1}, {bGC}')
    A(f's_lshl_b32 {t3}, {sHI}, 8\ns_lshl_b32 {t1}, {sLO}, 3\ns_add_u32 {t3}, {t3}, {t1}\ns_add_u32 {t3}, {t3}, {sGBASE}\ns_add_u32 {sQSst}, {t3}, {bQS}\ns_add_u32 {sGSst}, {t3}, {bGS}')
    A(f's_lshl_b32 s101, {t0}, 14\ns_add_u32 s101, s101, {TQP}')
    A(f's_lshl_b32 {t1}, {sLO}, 10\ns_lshl_b32 {t2}, {sHI}, 8\ns_add_u32 {t1}, {t1}, {t2}\ns_lshl_b32 {t2}, {g3}, 6\ns_add_u32 {t3}, {t1}, {t2}')
    A(f's_add_u32 {t1}, {sGBASE}, {t3}\ns_mov_b32 {t2}, {OOB}')
    A(f's_cmp_ge_u32 {sW}, 4\ns_cselect_b32 {g0}, 0, 5')
    def st_off(dst, shift):
        A(f'v_lshlrev_b32 {vTMP}, {shift}, v120\nv_add_u32 {vTMP}, {t1}, {vTMP}\nv_mov_b32 {vTMP2}, {t2}\nv_cmp_eq_u32 vcc, 4, v120'); sel(vTMP, vTMP, vTMP2)
        A(f'v_lshl_add_u32 {vTMP}, v121, 4, {vTMP}\nv_cmp_gt_u32 vcc, {g0}, v120'); sel(dst, 'v118', vTMP)
    st_off(vQst, 13)
    A(f's_lshl_b32 {t3}, {t3}, 1\ns_lshl_b32 {t1}, {g3}, 6\ns_sub_u32 {t3}, {t3}, {t1}\ns_lshl_b32 {t1}, {sG}, 16\ns_add_u32 {t1}, {t1}, {t3}\ns_add_u32 {t1}, {t1}, {TQP}\ns_lshl_b32 {t2}, {sG}, 14\ns_add_u32 {t2}, {t2}, {t3}\ns_add_u32 {t2}, {t2}, {TQC}')
    st_off('v109', 14)
    A(f'v_lshlrev_b32 {vTMP}, 6, v122\nv_add_u32 {vTMP2}, 4, {vTMP}\nv_cmp_gt_u32 vcc, 16, {vL}'); sel(vTMP, vTMP, vTMP2)
    A(f'v_and_b32 {vTMP2}, {0x1ec*4}, {vT4}\nv_cmp_eq_u32 vcc, {256*4}, {vTMP2}'); sel(vSSt, 'v118', vTMP)
    A(f's_mul_i32 {t1}, {sC}, 1312\ns_add_u32 {t1}, {t1}, {sGBASE}\ns_add_u32 {t1}, {t1}, {bGP}\nv_add_u32 {vTMP}, {t1}, v115\nv_cmp_gt_u32 vcc, 1312, v115'); sel('v114', 'v118', vTMP)
    A(f's_add_u32 {t1}, {sXst}, {oXB - oXA - 2048}\nv_add_u32 {vTMP}, {t1}, v115\nv_and_b32 {vTMP2}, 0x1e00, v115\nv_cmp_eq_u32 vcc, 2048, {vTMP2}'); sel('v108', 'v118', vTMP)
    A(f's_mov_b32 {sLAY}, 0\ns_mov_b32 {sTO}, 400000\ns_mov_b32 {sFAST}, 0\ns_mov_b32 {sCNT}, 0\ns_mov_b32 {sGOK}, 0\ns_mov_b32 {sLIDX}, 0')
    A(f's_lshl_b32 {t3}, {g3}, 6\ns_lshl_b32 {t1}, {sLO}, 10\ns_add_u32 {t1}, {t1}, {sGg}\ns_add_u32 {t1}, {t1}, {t3}\ns_lshl_b32 {t2}, {sLO}, 8\ns_add_u32 {t2}, {t2}, {sGCg}\ns_add_u32 {t2}, {t2}, {t3}')
    st_off(vGst, 8)
    A(f'v_and_b32 {vTMP}, 7, {vL}\nv_lshlrev_b32 {vSt8}, 3, {vTMP}\nv_lshlrev_b32 {vL4}, 2, {vL}\nv_lshlrev_b32 {vML2}, 3, v121')
    A(f'v_cmp_eq_u32 vcc, 0, {vL}'); sel(vMLst, 'v118', '0')
    A(f's_lshl_b32 {t1}, {g3}, 8\nv_lshlrev_b32 {vTMP}, 4, v120\nv_lshl_add_u32 {vG1}, v121, 10, {vTMP}\nv_add_u32 {vG1}, {t1}, {vG1}')
    A(f's_lshl_b32 {t1}, {sW}, 6\nv_lshlrev_b32 {vXg}, 11, v123\nv_lshl_add_u32 {vXg}, v121, 9, {vXg}\nv_lshl_add_u32 {vXg}, v122, 4, {vXg}\nv_add_u32 {vXg}, {t1}, {vXg}')
    A(f's_lshr_b32 {t1}, {sW}, 1\ns_mul_i32 {t1}, {t1}, 192\ns_and_b32 {t2}, {sW}, 1\ns_lshl_b32 {t2}, {t2}, 6\ns_add_u32 {t1}, {t1}, {t2}\ns_add_u32 {t1}, {t1}, {L_XS}\nv_add_u32 {vXW}, {t1}, v117')
    A(f's_mul_i32 {t1}, {g3}, 320\ns_add_u32 {t1}, {t1}, {L_QS}\nv_lshl_add_u32 {vQW}, v121, 2, {vTMP}\nv_add_u32 {vQW}, {t1}, {vQW}')
    A(f's_mul_i32 {t1}, {g3}, 192\ns_add_u32 {t1}, {t1}, {L_HS}\nv_lshlrev_b32 {vHW}, 3, v120\nv_lshl_add_u32 {vHW}, v121, 1, {vHW}\nv_add_u32 {vHW}, {t1}, {vHW}')
    A(f'v_mul_u32_u24 {vBR320}, 320, v122\nv_lshl_add_u32 {vBR320}, v121, 4, {vBR320}\nv_add_u32 {vBR320}, {L_QS}, {vBR320}')
    A(f'v_mul_u32_u24 {vBR192}, 192, v122\nv_lshl_add_u32 {vBR192}, v121, 4, {vBR192}\nv_add_u32 {vBR192}, {L_HS}, {vBR192}')
    A(f'v_min_u32 {vTMP2}, 4, v120\nv_mul_u32_u24 {vXR}, 192, {vTMP2}\nv_lshl_add_u32 {vXR}, v121, 4, {vXR}\nv_add_u32 {vXR}, {L_XS}, {vXR}')
    A(f's_lshl_b32 {t1}, {g3}, 5\nv_lshlrev_b32 {vTMP2}, 7, v120\nv_lshl_add_u32 {vTMP2}, v121, 3, {vTMP2}\nv_add_u32 {vTMP2}, {t1}, {vTMP2}\nv_cmp_gt_u32 vcc, 4, v120'); sel(vXst, 'v118', vTMP2)
    A(f'v_lshlrev_b32 {vTMP2}, 4, {vL}\nv_add_u32 {vROW}, {sRING}, {vTMP2}')
    A(f's_lshr_b32 {t1}, {g3}, 1\ns_lshl_b32 {t1}, {t1}, 10\ns_and_b32 {t2}, {g3}, 1\ns_lshl_b32 {t2}, {t2}, 3\ns_add_u32 {t1}, {t1}, {t2}\nv_add_u32 {vROR}, {t1}, {vTMP2}')
    A(f's_lshl_b32 {t1}, {sW}, 3\ns_add_u32 {t1}, {t1}, {L_RM}\nv_lshlrev_b32 {vRMW}, 6, v122\nv_add_u32 {vRMW}, {t1}, {vRMW}')
    A(f's_lshl_b32 {t1}, {g3}, 6\ns_add_u32 {t1}, {t1}, {L_RM}\nv_add_u32 {vRMR}, {t1}, {vSt8}')
    A(f'v_lshl_add_u32 v125, v121, 3, v123')
    A(f'v_xor_b32 {vTMP}, {g3}, v123\nv_lshlrev_b32 {vTMP}, 6, {vTMP}\nv_lshl_add_u32 {vTMP}, v122, 4, {vTMP}\nv_lshl_add_u32 {vWQr}, v125, 8, {vTMP}\nv_add_u32 {vWQr}, {L_WQ}, {vWQr}')
    A(f'v_lshrrev_b32 v119, 1, v123\nv_and_b32 v127, 1, v121\nv_lshlrev_b32 {vTMP}, 1, v127')
    A(f'v_xor_b32 {vTMP}, {g3}, {vTMP}\nv_lshlrev_b32 {vTMP}, 5, {vTMP}\nv_lshl_add_u32 {vTMP}, v122, 3, {vTMP}\nv_lshl_add_u32 {vWr}, v125, 7, {vTMP}\nv_add_u32 {vWr}, {L_WG}, {vWr}')
    A(f'v_and_b32 v126, 1, v123\nv_lshlrev_b32 {vTMP}, 1, v126\nv_xor_b32 {vTMP}, {g3}, {vTMP}\nv_lshlrev_b32 {vTMP}, 5, {vTMP}\nv_lshl_add_u32 {vTMP}, v122, 3, {vTMP}')
    A(f'v_lshl_add_u32 {vTMP2}, v121, 2, v119\nv_lshl_add_u32 {vTMP2}, v126, 6, {vTMP2}\nv_lshl_add_u32 {vWOr}, {vTMP2}, 7, {vTMP}\nv_add_u32 {vWOr}, {L_WO}, {vWOr}')
    A(f'v_and_b32 v125, 1, v120\nv_mov_b32 {vTMP}, 0xffff\nv_mov_b32 {vTMP2}, 0xffff0000\nv_cmp_eq_u32 vcc, 1, v125'); sel('v119', vTMP, vTMP2)
    A(f'v_cmp_gt_u32 vcc, 2, v122'); sel('v119', '0', 'v119')
    for i in range(4):
        A(f'v_cmp_eq_u32 vcc, {i}, v123'); sel(f'v{MASK+i}', '0', 'v119'); A(f'v_and_b32 v{32+i}, 0x3f803f80, v{MASK+i}')
    A(f'v_mov_b32 {vTMP}, 0x3f80\nv_mov_b32 {vTMP2}, 0x3f800000\nv_cmp_eq_u32 vcc, 1, v126'); sel('v119', vTMP, vTMP2)
    A(f'v_cmp_gt_u32 vcc, 2, v122'); sel('v119', '0', 'v119')
    A(f'v_lshrrev_b32 {vTMP}, 1, v123\nv_lshl_add_u32 {vTMP}, v125, 1, {vTMP}')
    for i in range(4):
        A(f'v_cmp_eq_u32 vcc, {i}, {vTMP}'); sel(f'v{40+i}', '0', 'v119')
    A('v_mov_b32 v44, 0x3f803f80\nv_mov_b32 v45, 0x3f803f80')
    A(f'v_and_b32 {vTMP2}, 7, {vL}\nv_lshrrev_b32 v119, 3, {vL}')
    A(f's_lshr_b32 {t1}, {sW}, 2\ns_lshl_b32 {t1}, {t1}, 2\nv_xor_b32 {vTMP}, {t1}, {vTMP2}\nv_lshlrev_b32 {vTMP}, 4, {vTMP}\nv_lshl_add_u32 v124, v119, 10, {vTMP}')
    A(f's_and_b32 {t1}, {sW}, 1\ns_lshl_b32 {t1}, {t1}, 2\nv_xor_b32 {vTMP}, {t1}, {vTMP2}\nv_lshlrev_b32 {vTMP}, 4, {vTMP}')
    A(f'v_lshl_add_u32 v127, v119, 10, {vTMP}\nv_mul_u32_u24 v126, 3584, v119\nv_add_u32 v126, v126, {vTMP}')
    A(f's_cmp_ge_u32 {sG}, 4\ns_cselect_b32 {t2}, 3, 4\ns_cmp_lt_u32 {sHI}, {t2}\ns_cselect_b32 {t2}, 0, {OOB}\nv_add_u32 v126, {t2}, v126\nv_add_u32 v127, {t2}, v127')
    A(f'v_lshlrev_b32 {vTMP}, 1, v123\nv_xor_b32 {vTMP}, v121, {vTMP}\nv_lshlrev_b32 {vTMP}, 5, {vTMP}\nv_lshl_add_u32 {vTMP}, v122, 3, {vTMP}\nv_lshl_add_u32 {vTMP}, v123, 8, {vTMP}\nv_add_u32 v122, {sRING}, {vTMP}\nv_xor_b32 v123, 128, v122')
    A(f'v_and_b32 {vTMP}, 3, v120\nv_lshlrev_b32 {vTMP}, 6, {vTMP}\nv_lshl_add_u32 {vTMP}, v121, 4, {vTMP}\nv_lshl_add_u32 {vTMP}, v120, 8, {vTMP}\nv_add_u32 v118, {sRING}, {vTMP}')
    for j in range(1, 4): A(f'v_xor_b32 v{118+j}, {64*j}, v118')
    A(f'v_and_b32 {vTMP}, 124, {vL4}\nv_add_u32 {vTMP}, {L_XS+4*192}, {vTMP}\nds_write_b32 {vTMP}, v44')

    def read_k(i):
        for j in range(4): A(f'ds_read_b128 a[{16*i+4*j}:{16*i+4*j+3}], v{118+j} offset:{(i&1)*4096}')
    def read_v(p):
        i = p - 16
        for hf in range(2):
            r = 64 + 4 * i + 2 * hf
            A(f'ds_read_b64_tr_b16 a[{r}:{r+1}], v{122+hf} offset:{((p//4)&1)*4096 + (p%4)*1024}')
    if not late47:
        for p in range(burst, 8): piece(p)
    if diag: xstamp(40)
    A.wait_vm('ep')
    if diag: xstamp(41)
    A(f'v_and_b32 v113, 0xffff0000, v68\nv_lshlrev_b32 v112, 16, v68')
    A(f'v_readfirstlane_b32 {sTAG}, v69\ns_add_u32 {sTAG}, {sTAG}, 1')
    A('v_dot2_f32_bf16 v78, v72, v44, 0\nv_dot2_f32_bf16 v79, v72, v72, 0')
    for k in range(73, 76): A(f'v_dot2_f32_bf16 v78, v{k}, v44, v78\nv_dot2_f32_bf16 v79, v{k}, v{k}, v79')
    for m in ('quad_perm:[1,0,3,2]', 'quad_perm:[2,3,0,1]', 'row_half_mirror', 'row_mirror'):
        A(f'v_add_f32_dpp v78, v78, v78 {m} {DPP}\nv_add_f32_dpp v79, v79, v79 {m} {DPP}')
    for sw in ('v_permlane16_swap_b32', 'v_permlane32_swap_b32'):
        A(f'v_mov_b32 v76, v78\nv_mov_b32 v77, v79\n{sw} v78, v76\n{sw} v79, v77\nv_add_f32 v78, v78, v76\nv_add_f32 v79, v79, v77')
    c2 = QSCALE * QSCALE
    A(f'v_mov_b32 v75, {f32(1e-5/c2)}\nv_mul_f32 v74, v78, v78\nv_fmac_f32 v75, {f32(1/(512*c2))}, v79\nv_fmac_f32 v75, {f32(-1/(512*512*c2))}, v74\nv_max_f32 v75, {f32(1e-5/c2)}, v75\nv_rsq_f32 v74, v75')
    A(f'v_mul_f32 v78, {f32(-1/512)}, v78\nv_add_f32 v72, v112, v78\nv_add_f32 v73, v113, v78\nv_mul_f32 v72, v72, v74\nv_mul_f32 v73, v73, v74\nv_cvt_pk_bf16_f32 v72, v72, v73\nds_write_b32 {vXW}, v72')
    if late47:
        for p in range(burst, 8): piece(p)
    if diag: xstamp(42)
    A.wait_vm('cl')
    if diag: xstamp(43)
    if bar_after_k0:
        A.wait_vm('p3')
        read_k(0)
        A('s_waitcnt lgkmcnt(0)')
        for p in range(8, 12): piece(p)
    A('s_waitcnt lgkmcnt(0)')
    if 'B' not in abl: A('s_barrier')
    stamp()
    A(f's_lshl_b32 {t1}, {sG}, 5\ns_add_u32 {t1}, {t1}, {sC}\nv_mov_b32 v74, s64\nv_mov_b32 {vTMP2}, {OOB}\nv_cmp_eq_u32 vcc, 0, {vT4}'); sel(vTMP, vTMP2, '0')
    if 'F' not in abl: A.vmop(f'buffer_store_byte v74, {vTMP}, {DBG}, {t1} offen sc1', 'at')

    def read_wq():
        for tl in range(2):
            for j in range(2):
                for u in range(2):
                    r = 48 + 8 * tl + 4 * j + 2 * u
                    A(f'ds_read_b64_tr_b16 v[{r}:{r+1}], {vWQr} offset:{8*tl+8192*j+1024*u}')
    def read_gu():
        for tl in range(2):
            for j in range(2):
                for u in range(2):
                    r = 48 + 8 * tl + 4 * j + 2 * u
                    A(f'ds_read_b64_tr_b16 v[{r}:{r+1}], {vWr} offset:{8192*tl+4096*j+512*u}')
    def read_wd():
        for j in range(2):
            for u in range(2):
                A(f'ds_read_b64_tr_b16 v[{48+4*j+2*u}:{49+4*j+2*u}], {vWr} offset:{16384+4096*j+512*u}')
    def read_wo():
        for j in range(4):
            for u in range(2):
                A(f'ds_read_b64_tr_b16 v[{48+4*j+2*u}:{49+4*j+2*u}], {vWOr} offset:{2048*j+256*u}')
    def matvec(vst, first, late_w=None):
        A(f'ds_read_b128 v[80:83], {vXR}\nds_read_b128 v[84:87], {vXR} offset:64')
        if late_w: late_w()
        if first is None:
            A(f's_cmp_eq_u32 {sLIDX}, 0\ns_cselect_b64 s[56:57], -1, {sM4}')
        A('s_waitcnt lgkmcnt(0)' if late_w else 's_waitcnt lgkmcnt(1)')
        A(f'{M16} v[96:99], v[48:51], v[80:83], 0\n{M16} v[100:103], v[56:59], v[80:83], 0')
        if not late_w: A('s_waitcnt lgkmcnt(0)')
        A(f'{M16} v[96:99], v[52:55], v[84:87], v[96:99]\n{M16} v[100:103], v[60:63], v[84:87], v[100:103]')
        if first is None: A('s_mov_b64 exec, s[56:57]')
        if first is False: A(f's_mov_b64 exec, {sM4}')
        if first is True:
            A(f'v_cvt_pk_bf16_f32 v96, v96, v97\nv_cvt_pk_bf16_f32 v97, v98, v99\nv_cvt_pk_bf16_f32 v100, v100, v101\nv_cvt_pk_bf16_f32 v101, v102, v103')
            A(f'v_mov_b32 v98, {sTAG}\nv_mov_b32 v99, {sTAG}\nv_mov_b32 v102, {sTAG}\nv_mov_b32 v103, {sTAG}')
            A.vmop(f'buffer_store_dwordx4 v[96:99], {vst}, {WS}, 0 offen sc1', 'st')
            A.vmop(f'buffer_store_dwordx4 v[100:103], {vst}, {WS}, 0 offen offset:256 sc1', 'st')
            return
        A('v_cvt_pk_bf16_f32 v96, v96, v97\nv_cvt_pk_bf16_f32 v97, v98, v99\nv_cvt_pk_bf16_f32 v98, v100, v101\nv_cvt_pk_bf16_f32 v99, v102, v103')
        lstore(f'buffer_store_dwordx4 v[96:99], {vst}, {WS}, {sLAY} offen')
        full_exec()
    def slice_stats(sst):
        l = lab('st')
        A(f's_cmp_lg_u32 {sW}, 4\ns_cbranch_scc1 {l}')
        A(f'ds_read_b128 v[80:83], {vXR}\nds_read_b128 v[84:87], {vXR} offset:64\ns_waitcnt lgkmcnt(1)')
        A(f'{M16} v[104:107], v[80:83], v[80:83], 0\ns_waitcnt lgkmcnt(0)\n{M16} v[104:107], v[84:87], v[84:87], v[104:107]')
        for k in (1, 2, 3):
            A(f's_mov_b64 exec, {1<<k}\nv_mov_b32 v104, v{104+k}')
        full_exec()
        lstore(f'buffer_store_dword v104, {vSSt}, {WS}, {sst} offen')
        A.vm.pop()
        A(f'{l}:')

    def issue_g1(dst, voff, sbase, tag, step=4096):
        A.vmop(f'buffer_load_dwordx4 v[{dst}:{dst+3}], {voff}, {WS}, {sbase} offen sc1', tag)
        if step >= 4096:
            A(f's_add_u32 {t1}, {sbase}, {step}')
            A.vmop(f'buffer_load_dwordx4 v[{dst+4}:{dst+7}], {voff}, {WS}, {t1} offen sc1', tag)
        else:
            A.vmop(f'buffer_load_dwordx4 v[{dst+4}:{dst+7}], {voff}, {WS}, {sbase} offen offset:{step} sc1', tag)
    def check_empty(regs):
        regs = list(regs)
        A(f'v_max3_u32 {vTMP}, v{regs[0]}, v{regs[1]}, v{regs[2]}'); rest = regs[3:]
        if len(rest) >= 5:
            A(f'v_max3_u32 {vTMP2}, v{rest[0]}, v{rest[1]}, v{rest[2]}'); rest = rest[3:]
            tg = 0
            while len(rest) >= 2:
                d = (vTMP, vTMP2)[tg]; A(f'v_max3_u32 {d}, {d}, v{rest[0]}, v{rest[1]}'); rest = rest[2:]; tg ^= 1
            if rest: A(f'v_max3_u32 {vTMP}, {vTMP}, {vTMP2}, v{rest[0]}')
            else: A(f'v_max_u32 {vTMP}, {vTMP}, {vTMP2}')
        else:
            while len(rest) >= 2:
                A(f'v_max3_u32 {vTMP}, {vTMP}, v{rest[0]}, v{rest[1]}'); rest = rest[2:]
            if rest: A(f'v_max_u32 {vTMP}, {vTMP}, v{rest[0]}')
        A(f'v_cmp_eq_u32 vcc, -1, {vTMP}')
    def poll(issue, regs, spec=None):
        r, d = lab('retry'), lab('got')
        A(f'{r}:')
        issue()
        A.wait_vm()
        if spec: spec()
        check_empty(regs)
        tl = lab('again')
        A(f's_cbranch_vccnz {tl}\n{d}:')
        tails.append(f'{tl}:\n' + (f's_sleep {backoff}\n' if backoff else '') + f's_sub_u32 {sTO}, {sTO}, 1\ns_cbranch_scc0 {r}\ns_mov_b32 {sTO}, 0\ns_branch {d}')
    def issue_cnt():
        A.vmop(f'buffer_load_dword v76, {vL4}, {DBG}, 0 offen sc1', 'cnt')
    def check_cnt():
        d = lab('cn')
        A(f'v_and_b32 {vTMP}, 0x80808080, v76\nv_cmp_ne_u32 vcc, 0x80808080, {vTMP}\ns_cbranch_vccnz {d}')
        A(f's_mov_b32 {sCNT}, 1\nv_cmp_eq_u32 vcc, s64, v76\ns_lshr_b64 s[56:57], vcc, s65\ns_and_b32 {t2}, {t2}, 0xff\ns_cmp_eq_u32 {t2}, 0xff\ns_cselect_b32 {sFAST}, 1, 0\n{d}:')
    def issue_q(first):
        if not first:
            issue_g1(64, vG1, sQg, 'q')
            A.vmop(f'buffer_load_dwordx2 v[72:73], {vSt8}, {WS}, {sQSg} offen sc1', 'q')
            return
        issue_tagged(f's_mov_b32 {t1}, s101')
    def issue_tagged(base):
        A(f'v_and_b32 {vTMP2}, 0xf0, {vG1}\nv_lshlrev_b32 {vTMP}, 1, {vG1}\nv_sub_u32 {vTMP}, {vTMP}, {vTMP2}')
        A(base + f'\ns_add_u32 {t2}, {t1}, 8192')
        for k in range(2):
            for hh in range(2):
                r = 80 + 8 * k + 4 * hh
                A.vmop(f'buffer_load_dwordx4 v[{r}:{r+3}], {vTMP}, {WS}, {(t1, t2)[k]} offen offset:{256*hh} sc1', 'q')
    def check_tags():
        A(f'v_xor_b32 {vTMP}, {sTAG}, v82\nv_xor_b32 {vTMP2}, {sTAG}, v86\nv_xor_b32 v83, {sTAG}, v90\nv_xor_b32 v87, {sTAG}, v94')
        A(f'v_or3_b32 {vTMP}, {vTMP}, {vTMP2}, v83\nv_or_b32 {vTMP}, {vTMP}, v87\nv_cmp_ne_u32 vcc, 0, {vTMP}')
    def tagged_sum():
        for n_, (k, hh) in enumerate(((0, 0), (0, 1), (1, 0), (1, 1))):
            r = 80 + 8 * k + 4 * hh
            c = '0' if n_ == 0 else 'v[96:99]'
            A(f'v_mfma_f32_16x16x16_bf16 v[96:99], v[{32+2*hh}:{33+2*hh}], v[{r}:{r+1}], {c}')
    def q0_finish():
        tagged_sum()
        A(f'v_cvt_pk_bf16_f32 v96, v96, v97\nds_write_b32 {vQW}, v96')
    def tagged_poll(issue):
        rq, gq = lab('rq'), lab('gq')
        A(f'{rq}:')
        issue(); A.wait_vm(); check_tags()
        A(f's_cbranch_vccz {gq}\ns_sub_u32 {sTO}, {sTO}, 1\ns_cbranch_scc0 {rq}\ns_mov_b32 {sTO}, 0\n{gq}:')
    def fetch_csq():
        tagged_poll(lambda: issue_tagged(f's_lshl_b32 {t1}, {sG}, 14\ns_add_u32 {t1}, {t1}, {TQC}'))
        tagged_sum()
        A(f's_mov_b32 {t2}, {f32(1/512)}\nv_pk_mul_f32 {CSQ}, v[96:97], s[56:57] op_sel_hi:[1,0]')
    QREGS = list(range(64, 74)); QREGS1 = QREGS + list(range(80, 88))
    def ln_spec(selop, first):
        def f():
            A(f'{M16} v[96:99], {selop}, v[64:67], 0\n{M16} v[96:99], {selop}, v[68:71], v[96:99]')
            if first:
                A(f'{M16} v[100:103], {selop}, v[80:83], 0\n{M16} v[100:103], {selop}, v[84:87], v[100:103]')
            A(f'v_add_f32_dpp v78, v72, v72 quad_perm:[1,0,3,2] {DPP}\nv_add_f32_dpp v79, v73, v73 quad_perm:[1,0,3,2] {DPP}')
        return f
    def ln_finish(cs, scale, first):
        for m in ('quad_perm:[2,3,0,1]', 'row_half_mirror'):
            A(f'v_add_f32_dpp v78, v78, v78 {m} {DPP}\nv_add_f32_dpp v79, v79, v79 {m} {DPP}')
            if m.startswith('quad'): A(f'v_mov_b32 v75, {f32(1e-5/(scale*scale))}')
        c2 = scale * scale
        A(f'v_mul_f32 v74, v78, v78\nv_fmac_f32 v75, {f32(1/(512*c2))}, v79')
        if first:
            A(f's_mov_b32 {t2}, {f32(1/512)}\nv_pk_mul_f32 {cs}, v[100:101], s[56:57] op_sel_hi:[1,0]')
        A(f'v_fmac_f32 v75, {f32(-1/(512*512*c2))}, v74\nv_max_f32 v75, {f32(1e-5/c2)}, v75\nv_rsq_f32 v74, v75')
        A(f'v_pk_fma_f32 v[96:97], v[78:79], {cs}, v[96:97] op_sel_hi:[0,1,1] neg_lo:[1,0,0] neg_hi:[1,0,0]')
        A(f'v_pk_mul_f32 v[96:97], v[96:97], v[74:75] op_sel_hi:[1,0]')
    def q_finish(first):
        ln_finish(CSQ, QSCALE, first)
        A(f'v_cvt_pk_bf16_f32 v96, v96, v97\nds_write_b32 {vQW}, v96')

    save = list(A.vm)
    with lowwaves():
        read_wq()
        A('s_waitcnt lgkmcnt(0)')
        if 'Q' not in abl: matvec('v109', True)
    stamp()

    wait_of = {}
    d = 6
    for p_ in range(12, 32):
        tgt = depth if p_ < deep_from else deep
        need_d = p_ - tgt
        if p_ in (12, 16, 20): need_d = max(need_d, p_ - 5)
        if need_d > d: wait_of[p_] = list(range(d + 1, need_d + 1)); d = need_d
        else: wait_of[p_] = []
    last_read = d
    def step(p):
        for d_ in wait_of[p]:
            A.wait_vm(f'p{d_}')
            if d_ < 16:
                if d_ % 4 == 3: read_k(d_ // 4); A('s_waitcnt lgkmcnt(0)')
            else:
                A('s_waitcnt lgkmcnt(0)')
                read_v(d_)
            if diag and d_ in (7, 11, 15, 19, 23): xstamp(45 + (d_ - 7) // 4)
        piece(p)
    hi_l, join_all, flag_l = lab('shi'), lab('sj'), lab('fl')
    def lead_in():
        if not bar_after_k0:
            A.wait_vm('p3')
            if diag: xstamp(44)
            read_k(0); A('s_waitcnt lgkmcnt(0)')
            for pp in range(8, 12): piece(pp)
    def steps(lo_, hi_):
        for pp in range(lo_, hi_):
            if pp == fride: issue_cnt()
            step(pp)
            if pp == min(fride + 4, 31): A.wait_vm('cnt'); check_cnt()
    A(f's_cmp_ge_u32 {sW}, 4\ns_cbranch_scc1 {hi_l}')
    lead_in()
    p = 12
    while p < 32:
        if p in rides:
            skip, join = lab('noq'), lab('jn')
            saved = list(A.vm)
            A(f's_cmp_eq_u32 {sGOK}, 1\ns_cbranch_scc1 {skip}')
            issue_q(True)
            steps(p, p + 5)
            if 'q' in A.vm: A.wait_vm('q')
            check_tags()
            nq = lab('nq')
            A(f's_cbranch_vccnz {nq}\ns_mov_b32 {sGOK}, 1')
            q0_finish()
            A(f'{nq}:\ns_branch {join}\n{skip}:')
            after_q = list(A.vm)
            A.vm = saved
            steps(p, p + 5)
            extra = len(A.vm) - len(after_q)
            assert A.vm[extra:] == after_q, (A.vm, after_q)
            A.vm = after_q if extra <= 0 else A.vm
            A(f'{join}:')
            p += 5
        else:
            steps(p, p + 1); p += 1
    dn = lab('qdone')
    saved = list(A.vm)
    if abl: A(f's_branch {dn}')
    A(f's_cmp_eq_u32 {sGOK}, 1\ns_cbranch_scc1 {dn}')
    tagged_poll(lambda: issue_q(True))
    q0_finish()
    A(f'{dn}:\ns_branch {flag_l}\n{hi_l}:')
    A.vm = save
    lead_in()
    steps(12, 32)
    assert A.vm == saved, (A.vm, saved)
    rc2 = lab('rc')
    A(f'{flag_l}:')
    if abl: A(f's_branch {join_all}')
    A(f's_cmp_eq_u32 {sCNT}, 1\ns_cbranch_scc1 {join_all}\n{rc2}:')
    issue_cnt(); A.wait_vm(); check_cnt()
    A(f's_cmp_eq_u32 {sCNT}, 1\ns_cbranch_scc1 {join_all}\ns_sub_u32 {sTO}, {sTO}, 1\ns_cbranch_scc0 {rc2}\ns_mov_b32 {sTO}, 0')
    A.vm = saved
    A(f'{join_all}:')
    stamp()
    A('v_mov_b32 v104, -1\nv_mov_b32 v105, -1\nv_mov_b32 v106, -1\nv_mov_b32 v107, -1')
    if '2' in abl: pass
    elif cl_sc1: A.vmop(f'buffer_store_dwordx4 v[104:107], v114, {WS}, 0 offen sc1', 'cl2')
    else: lstore(f'buffer_store_dwordx4 v[104:107], v114, {WS}, 0 offen', 'cl2')
    if '2' not in abl: A.vmop(f'buffer_store_dwordx4 v[104:107], v108, {WS}, 0 offen sc1', 'cl2')
    def issue_wo():
        A(f's_lshl_b32 {t1}, {sG}, 9\ns_lshl_b32 {t2}, {sHI}, 7\ns_add_u32 {t1}, {t1}, {t2}\ns_lshl_b32 {t2}, {sW}, 4\ns_add_u32 {t1}, {t1}, {t2}\ns_lshl_b32 {t1}, {t1}, 10\ns_lshl_b32 {t2}, {sLO}, 7\ns_add_u32 {t1}, {t1}, {t2}')
        A(f's_lshl_b32 {t2}, {sW}, 11\ns_add_u32 m0, {t2}, {L_WO}')
        A.vmop(f'buffer_load_dwordx4 v124, {WO}, {t1} offen nt lds', 'wo')
        A(f's_add_u32 {t1}, {t1}, 8192\ns_add_u32 m0, m0, 1024')
        A.vmop(f'buffer_load_dwordx4 v124, {WO}, {t1} offen nt lds', 'wo')

    def issue_ffn(dw=0):
        A(f's_add_u32 {t0}, {sW}, {dw}')
        A(f's_lshl_b32 {t1}, {sLO}, 6\ns_lshl_b32 {t2}, {t0}, 3\ns_add_u32 {t1}, {t1}, {t2}\ns_mul_i32 {t1}, {t1}, 3584\ns_lshl_b32 {t2}, {g2}, 7\ns_add_u32 {t1}, {t1}, {t2}')
        A(f's_lshl_b32 {t2}, {t0}, 10\ns_add_u32 m0, {t2}, {L_WG}')
        A(f'buffer_load_dwordx4 v126, {WG}, {t1} offen nt lds')
        A(f's_add_u32 m0, {t2}, {L_WU}')
        A(f'buffer_load_dwordx4 v126, {WU}, {t1} offen nt lds')
        A(f's_lshl_b32 {t1}, {g2}, 6\ns_lshl_b32 {t3}, {t0}, 3\ns_add_u32 {t1}, {t1}, {t3}\ns_lshl_b32 {t1}, {t1}, 10\ns_lshl_b32 {t3}, {sLO}, 7\ns_add_u32 {t1}, {t1}, {t3}\ns_add_u32 m0, {t2}, {L_WD}')
        A(f'buffer_load_dwordx4 v127, {WD}, {t1} offen nt lds')
    def scores():
        A('s_waitcnt lgkmcnt(0)\ns_barrier')
        for j in range(4): A(f'ds_read_b128 v[{64+4*j}:{67+4*j}], {vBR320} offset:{64*j}')
        for j in range(4):
            A(f's_waitcnt lgkmcnt({3-j})')
            for t in range(4):
                c = '0' if j == 0 else f'v[{80+4*t}:{83+4*t}]'
                A(f'{M16} v[{80+4*t}:{83+4*t}], a[{16*t+4*j}:{16*t+4*j+3}], v[{64+4*j}:{67+4*j}], {c}')
        for t in range(1, 4):
            for r in range(4):
                A(f'v_mov_b32_dpp v{80+r}, v{80+4*t+r} quad_perm:[0,1,2,3] row_mask:0xf bank_mask:{1<<t:#x}')
        A('v_max3_f32 v84, v80, v81, v82\nv_max_f32 v84, v84, v83')
        A(f'v_max_f32_dpp v84, v84, v84 row_ror:4 {DPP}')
        A(f'v_max_f32_dpp v84, v84, v84 row_ror:8 {DPP}')
        A('v_mov_b32 v85, v84\nv_permlane16_swap_b32 v84, v85\nv_max_f32 v84, v84, v85')
        A('v_mov_b32 v85, v84\nv_permlane32_swap_b32 v84, v85\nv_max_f32 v84, v84, v85')
        A('v_pk_add_f32 v[80:81], v[80:81], v[84:85] op_sel_hi:[1,0] neg_lo:[0,1] neg_hi:[0,1]')
        A('v_pk_add_f32 v[82:83], v[82:83], v[84:85] op_sel_hi:[1,0] neg_lo:[0,1] neg_hi:[0,1]')
        for r in range(4): A(f'v_exp_f32 v{80+r}, v{80+r}')
        A('v_cvt_pk_bf16_f32 v86, v80, v81\nv_cvt_pk_bf16_f32 v87, v82, v83')
        A(f'v_mfma_f32_16x16x16_bf16 v[88:91], {ONES}, v[86:87], 0')
    def pv(i):
        for hf in range(2):
            acc = 96 + 8 * (i & 1) + 4 * hf
            c = '0' if i < 2 else f'v[{acc}:{acc+3}]'
            A(f'v_mfma_f32_4x4x4_16b_bf16 v[{acc}:{acc+3}], v[86:87], a[{64+4*i+2*hf}:{65+4*i+2*hf}], {c} cbsz:4 abid:{4*(i&3)+(i>>2)}')
    def lsum():
        A(f'v_add_f32_dpp v85, v88, v88 row_ror:4 {DPP}')
        A(f'v_add_f32_dpp v85, v85, v85 row_ror:8 {DPP}')
        A(f's_mov_b64 exec, 15\nds_write_b64 {vRMW}, v[84:85]')
        full_exec()
    def combine():
        for h in range(4):
            A(f'v_add_f32 v{64+2*h}, v{96+h}, v{104+h}\nv_add_f32 v{65+2*h}, v{100+h}, v{108+h}')
            if h & 1: A(f'ds_write_b128 {vROW}, v[{62+2*h}:{65+2*h}] offset:{512*(h-1)}')
        A('s_waitcnt lgkmcnt(0)\ns_barrier')
        with lowwaves():
            A(f'ds_read_b64 v[72:73], {vRMR}')
            for k in range(8): A(f'ds_read_b64 v[{80+2*k}:{81+2*k}], {vROR} offset:{8192*k}')
            A('s_waitcnt lgkmcnt(8)')
            A(f'v_max_f32_dpp v74, v72, v72 quad_perm:[1,0,3,2] {DPP}')
            A(f'v_max_f32_dpp v74, v74, v74 quad_perm:[2,3,0,1] {DPP}')
            A(f'v_max_f32_dpp v74, v74, v74 row_half_mirror {DPP}')
            A('v_sub_f32 v72, v72, v74\nv_exp_f32 v72, v72')
            for k in range(8): A(f'v_readlane_b32 s{80+k}, v72, {k}')
            A('v_mul_f32 v75, v73, v72\ns_waitcnt lgkmcnt(0)')
            for k in range(8):
                sp = f's[{80+(k&~1)}:{81+(k&~1)}]'
                o = 'op_sel_hi:[1,0' if (k & 1) == 0 else 'op_sel:[0,1'
                d = 64 + 2 * (k & 1)
                if k < 2: A(f'v_pk_mul_f32 v[{d}:{d+1}], v[{80+2*k}:{81+2*k}], {sp} {o}]')
                else: A(f'v_pk_fma_f32 v[{d}:{d+1}], v[{80+2*k}:{81+2*k}], {sp}, v[{d}:{d+1}] {o},{1 if (k&1)==0 else 0}]')
            A('v_pk_add_f32 v[64:65], v[64:65], v[66:67]\nv_cvt_pk_bf16_f32 v64, v64, v65')
            lstore(f'buffer_store_dword v64, {vL4}, {WS}, {sOPst} offen')
            for m in ('quad_perm:[1,0,3,2]', 'quad_perm:[2,3,0,1]', 'row_half_mirror'):
                A(f'v_add_f32_dpp v75, v75, v75 {m} {DPP}')
            lstore(f'buffer_store_dwordx2 v[74:75], {vMLst}, {WS}, {sMLst} offen')

    def wait_piece(tag):
        if tag not in A.vm: return
        if hi_extra[0] and ffn_hi:
            n_ = len(A.vm) - 1 - max(i for i, t_ in enumerate(A.vm) if t_ == tag)
            a_, b_ = lab('wl'), lab('wj')
            A(f's_cmp_lt_u32 {sW}, 4\ns_cbranch_scc1 {a_}\ns_waitcnt vmcnt({n_ + hi_extra[0]})\ns_branch {b_}\n{a_}:')
            A.wait_vm(tag); A(f'{b_}:')
        else: A.wait_vm(tag)
    def issue_weights():
        issue_wo()
        if ffn_hi:
            l_ = lab('ff'); A(f's_cmp_lt_u32 {sW}, 4\ns_cbranch_scc1 {l_}'); issue_ffn(-4); issue_ffn(0); A(f'{l_}:')
    hi_extra = [0]
    if w_at == 'issue31' and not abl: issue_weights(); hi_extra[0] = 6
    scores()
    for i in range(last_read - 15): pv(i)
    lsum()
    stamp()
    for p in range(last_read + 1, 32):
        wait_piece(f'p{p}')
        read_v(p)
        if p == 31: wait_piece('cl2')
        if w_at == f'land{p}' and not abl: issue_weights(); hi_extra[0] = 6
        A('s_waitcnt lgkmcnt(0)')
        pv(p - 16)
    stamp()
    if abl: A('s_branch L_fin')
    combine()
    stamp(True)

    A('L_layer:'); inloop[0] = True
    def proj_out(nk, vb, boff, xoff, late_w=None):
        sk, dl = lab('sk'), lab('dl')
        A(f's_cmp_ge_u32 {sW}, 4\ns_cbranch_scc1 {sk}')
        for j in range(nk): A(f'ds_read_b128 v[{64+4*j}:{67+4*j}], {vb} offset:{boff+64*j}')
        if late_w: late_w()
        for j in range(nk):
            if not late_w: A(f's_waitcnt lgkmcnt({nk-1-j})')
            elif j == 0: A('s_waitcnt lgkmcnt(0)')
            c = '0' if j == 0 else 'v[96:99]'
            A(f'{M16} v[96:99], v[{48+4*j}:{51+4*j}], v[{64+4*j}:{67+4*j}], {c}')
        A(f's_add_u32 {t1}, {sXst}, {xoff}')
        A('v_cvt_pk_bf16_f32 v96, v96, v97\nv_cvt_pk_bf16_f32 v97, v98, v99')
        A(f'buffer_store_dwordx2 v[96:97], {vXst}, {WS}, {t1} offen sc1')
        return sk, dl
    def first_only(f):
        def g():
            l, bk = lab('fo'), lab('bk')
            A(f's_cmp_eq_u32 {sLIDX}, 0\ns_cbranch_scc1 {l}\n{bk}:')
            keepL, A.L = A.L, []
            A(f'{l}:'); f(); A(f's_branch {bk}')
            tails.append('\n'.join(A.L)); A.L = keepL
        return g
    def later_only(f):
        l = lab('lo'); A(f's_cmp_eq_u32 {sLIDX}, 0\ns_cbranch_scc1 {l}'); f(); A(f'{l}:')
    def g_wait(sk, dl, pre, busy_first=False, hi_pre=None):
        pre()
        if gdelay and busy_first: later_only(lambda: A(f's_sleep {gdelay}'))
        elif gdelay: A(f's_sleep {gdelay}')
        A(f's_branch {dl}\n{sk}:')
        if hi_pre: hi_pre()
        if gdelay_hi: A(f's_sleep {gdelay_hi}')
        A(f'{dl}:')
    def reduce_x(xoff, final):
        A(f's_add_u32 {t0}, {sXg}, {xoff}')
        poll(lambda: issue_g1(64, vXg, t0, 'x', 8192), range(64, 72),
             lambda: A(f'{M16} v[96:99], {SELA}, v[64:67], 0\n{M16} v[96:99], {SELA}, v[68:71], v[96:99]'))
        stamp()
        A(f'v_add_f32_dpp v96, v96, v96 row_ror:4 {DPP}\nv_add_f32_dpp v97, v97, v97 row_ror:4 {DPP}')
        A(f'v_add_f32_dpp v96, v96, v96 row_ror:8 {DPP}\nv_add_f32_dpp v97, v97, v97 row_ror:8 {DPP}')
        A(f's_mov_b64 exec, {sM4}')
        A(f'v_pk_add_f32 {XRES}, {XRES}, v[96:97]\nv_cvt_pk_bf16_f32 v96, v112, v113')
        if final: A(f's_cmp_eq_u32 {sLIDX}, 1\ns_cbranch_scc1 L_out')
        A(f'ds_write_b32 {vXW}, v96')
        full_exec()
        A('s_waitcnt lgkmcnt(0)\ns_barrier')
    def issue_o():
        issue_g1(64, vG1, sOg, 'o')
        A.vmop(f'buffer_load_dwordx2 v[72:73], {vML2}, {WS}, {sMLg} offen sc1', 'o')
        A.vmop(f'buffer_load_dwordx2 v[74:75], {vML2}, {WS}, {sMLg} offen offset:32 sc1', 'o')
    with lowwaves():
        later_only(read_wo)
        if ldelay: A(f's_sleep {ldelay}')
        poll(issue_o, range(64, 76))
        stamp()
        A('v_max_f32 v76, v72, v74\nv_mov_b32 v77, v76\nv_permlane16_swap_b32 v76, v77\nv_max_f32 v76, v76, v77')
        A('v_mov_b32 v77, v76\nv_permlane32_swap_b32 v76, v77\nv_max_f32 v76, v76, v77')
        A('v_sub_f32 v72, v72, v76\nv_sub_f32 v74, v74, v76\nv_exp_f32 v72, v72\nv_exp_f32 v74, v74')
        A('v_cvt_pk_bf16_f32 v72, v72, v72\nv_cvt_pk_bf16_f32 v74, v74, v74')
        for i in range(4): A(f'v_and_b32 v{80+i}, v{MASK+i}, v72')
        for i in range(4): A(f'v_and_b32 v{84+i}, v{MASK+i}, v74')
        A(f'{M16} v[96:99], v[80:83], v[64:67], 0\n{M16} v[96:99], v[84:87], v[68:71], v[96:99]')
        A('v_and_b32 v72, 0xffff0000, v72\nv_and_b32 v74, 0xffff0000, v74\nv_mul_f32 v73, v73, v72\nv_fmac_f32 v73, v75, v74')
        A('v_mov_b32 v77, v73\nv_permlane16_swap_b32 v73, v77\nv_add_f32 v73, v73, v77')
        A('v_mov_b32 v77, v73\nv_permlane32_swap_b32 v73, v77\nv_add_f32 v73, v73, v77\nv_rcp_f32 v72, v73')
        A('v_pk_mul_f32 v[96:97], v[96:97], v[72:73] op_sel_hi:[1,0]\nv_cvt_pk_bf16_f32 v96, v96, v97')
        A(f'ds_write_b32 {vQW}, v96 offset:{L_OS-L_QS}')
    A(f's_waitcnt vmcnt({6 if ffn_hi else 0}) lgkmcnt(0)\ns_barrier')
    if not ffn_hi: first_only(issue_ffn)()
    sk, dl = proj_out(4, vBR320, L_OS - L_QS, 0, first_only(read_wo))
    def clean3():
        A(f's_mul_i32 {t1}, {sC}, 3168\ns_add_u32 {t1}, {t1}, {sGBASE}\ns_add_u32 {t1}, {t1}, {LS - 4096}\nv_mov_b32 v68, {OOB}')
        A(f'v_add_u32 {vTMP}, {t1}, v115\nv_cmp_gt_u32 vcc, {4096 + 3168}, v115'); sel('v69', 'v68', vTMP)
        A('v_mov_b32 v64, -1\nv_mov_b32 v65, -1\nv_mov_b32 v66, -1\nv_mov_b32 v67, -1')
        if cl_sc1: A(f'buffer_store_dwordx4 v[64:67], v69, {WS}, 0 offen sc1')
        else: lstore(f'buffer_store_dwordx4 v[64:67], v69, {WS}, 0 offen'); A.vm.pop()
        A(f's_add_u32 {t1}, {sXst}, {LS - 7168}\nv_add_u32 {vTMP}, {t1}, v115\nv_add_u32 {vTMP2}, {oXB - oXA - 512}, {vTMP}\nv_cmp_lt_u32 vcc, {7680 - 1}, v115'); sel(vTMP, vTMP, vTMP2)
        A(f'v_cmp_lt_u32 vcc, {7168 - 1}, v115'); sel('v69', 'v68', vTMP)
        A(f'buffer_store_dwordx4 v[64:67], v69, {WS}, 0 offen sc1')
    g_wait(sk, dl, lambda: later_only(read_gu), False, first_only(clean3))
    stamp()
    reduce_x(0, False)
    slice_stats(sGSst)
    def issue_gp(first):
        issue_g1(64, vG1, sGg, 'g')
        A.vmop(f'buffer_load_dwordx2 v[72:73], {vSt8}, {WS}, {sGSg} offen sc1', 'g')
        if first:
            A(f'v_and_b32 {vTMP}, 0xf0, {vG1}\nv_and_b32 {vTMP2}, 0xc00, {vG1}\nv_lshrrev_b32 {vTMP2}, 2, {vTMP2}\nv_or_b32 {vTMP}, {vTMP}, {vTMP2}')
            issue_g1(80, vTMP, sGCg, 'g', 1024)
    with lowwaves():
        matvec(vGst, None, first_only(read_gu))
        stamp()
        read_wd()
        if ldelay: A(f's_sleep {ldelay}')
        l1, l2 = lab('g1'), lab('g2')
        A(f's_cmp_lg_u32 {sLIDX}, 0\ns_cbranch_scc1 {l1}')
        poll(lambda: issue_gp(True), QREGS1, ln_spec(SELG, True))
        ln_finish(CSG, 1.0, True)
        A(f's_branch {l2}\n{l1}:')
        poll(lambda: issue_gp(False), QREGS, ln_spec(SELG, False))
        ln_finish(CSG, 1.0, False)
        A(f'{l2}:')
        stamp()
        A('v_cvt_pk_bf16_f32 v96, v96, v97\nv_and_b32 v97, 0xffff0000, v96\nv_lshlrev_b32 v96, 16, v96\nv_max_f32 v96, 0, v96\nv_mul_f32 v96, v96, v97\nv_cvt_pk_bf16_f32 v96, v96, v96')
        A(f'ds_write_b16 {vHW}, v96')
    A('s_waitcnt lgkmcnt(0)\ns_barrier')
    sk, dl = proj_out(2, vBR192, 0, oXB - oXA)
    def pre_q():
        read_wq()
        first_only(fetch_csq)()
    g_wait(sk, dl, pre_q, True)
    stamp()
    no = lab('no')
    A(f's_cmp_eq_u32 {sLIDX}, 0\ns_cbranch_scc1 {no}\ns_cmp_lg_u32 {sHI}, 0\ns_cbranch_scc1 L_fin\ns_cmp_lg_u32 {sG}, {sLO}\ns_cbranch_scc1 L_fin\n{no}:')
    A(f's_add_u32 {sQSst}, {sQSst}, {LS}')
    reduce_x(oXB - oXA, True)
    slice_stats(sQSst)
    A(f's_mov_b32 {sLIDX}, 1\ns_mov_b32 {sLAY}, {LS}')
    keep = nts[0]; nts[0] -= 11
    with lowwaves():
        matvec(vQst, False)
        stamp()
        A(f's_add_u32 {sQg}, {sQg}, {LS}\ns_add_u32 {sQSg}, {sQSg}, {LS}')
        if ldelay: A(f's_sleep {ldelay}')
        poll(lambda: issue_q(False), QREGS, ln_spec(SELA, False))
        stamp()
        q_finish(False)
    for s in (sOg, sGg, sMLg, sGSg, sXg, sOPst, sMLst, sXst, sGSst):
        A(f's_add_u32 {s}, {s}, {LS}')
    scores()
    for i in range(16):
        pv(i)
        if i == 5: lsum()
    stamp()
    combine()
    stamp()
    A('s_branch L_layer'); nts[0] = keep
    A('L_out:')
    A(f'buffer_store_dword v96, {vXO}, {OUT}, 0 offen')
    A(f's_or_b32 {t1}, s2, {sW}\ns_cmp_lg_u32 {t1}, 0\ns_cbranch_scc1 L_fin0')
    A(f's_mov_b64 exec, 1\nv_mov_b32 v97, {sTAG}\ns_mov_b32 {t2}, {EPOCH}\nbuffer_store_dword v97, off, {WS}, {t2} sc1')
    A('L_fin0:')
    full_exec()
    A('L_fin:')
    if ts:
        stamp(True)
        A(f's_memtime s[94:95]\ns_waitcnt lgkmcnt(0)\ns_sub_u32 s94, s94, s98\nv_writelane_b32 {vTS}, s94, 63')
        A(f's_add_u32 s96, s96, 0x10000000\ns_addc_u32 s97, s97, 0\ns_lshl_b32 {t1}, s2, 11\nv_add_u32 v64, {t1}, {vT4}\nglobal_store_dword v64, {vTS}, s[96:97]')
    A('s_endpgm')
    for t_ in tails: A(t_)
    A('L_end:\ns_endpgm')
    A(f'.section .rodata,"a"\n.p2align 6\n.amdhsa_kernel {NAME}_kernel')
    A('.amdhsa_next_free_vgpr 256\n.amdhsa_next_free_sgpr 102\n.amdhsa_accum_offset 128\n.amdhsa_group_segment_fixed_size 0\n.amdhsa_kernarg_size 96\n.amdhsa_user_sgpr_count 2\n.amdhsa_user_sgpr_kernarg_segment_ptr 1\n.amdhsa_system_sgpr_workgroup_id_x 1\n.end_amdhsa_kernel')
    txt, probs = A.text()
    for p in probs: print('HAZARD', p, file=sys.stderr)
    return txt, nts[0]

if __name__ == '__main__':
    out = sys.argv[1]
    kw = {}
    for a in sys.argv[2:]:
        k, v = a.split('='); kw[k] = eval(v)
    txt, n = build(**kw)
    open(out, 'w').write(txt)
    print('stamps', n, 'lines', txt.count('\n'))
```

```python
import sys, math, struct
sys.path.insert(0, 'gen')
from asmlib import Asm

NAME = "interleave_layers__sliding_block_cached__glu_gated_reglu__decode"

bQP, bQS, bOP, bML, bGP, bGS, bGC, GB = 0x0, 0x8000, 0x8400, 0x10400, 0x10800, 0x18800, 0x18C00, 0x1AC00
oXA, oXB, LS = 8 * GB, 8 * GB + 0x20000, 8 * GB + 0x40000
TQP, TQC, EPOCH = 0x240000, 0x2C0000, 0x2E0000
WS_REC = 0x2E0100
OOB = 0x7FFF0000
L_RING, L_WQ, L_WO, L_WG, L_WU, L_WD = 0, 65536, 81920, 98304, 106496, 114688
L_QS, L_OS, L_HS, L_XS, L_RM = 122880, 124160, 125440, 126208, 127168
LDS_BYTES = 127488

def f32(x): return '0x%08x' % struct.unpack('<I', struct.pack('<f', x))[0]
QSCALE = 128 ** -0.5 * math.log2(math.e)

sW, sG, sC, sHI, sLO = 's3', 's4', 's5', 's6', 's7'
WS, KK, VV, WQ, WO, WG, WU, WD, XX, OUT, DBG = [f's[{i}:{i+3}]' for i in range(8, 52, 4)]
sKV, sRING, t0, t1, t2, t3 = 's52', 's53', 's54', 's55', 's56', 's57'
sLAY, sTO, sFAST, sCNT, sGOK, sLIDX = 's58', 's59', 's60', 's61', 's62', 's63'
sQg, sOg, sGg, sQSg, sMLg, sGSg, sXg, sGBASE, sGCg = ['s%d' % i for i in range(66, 75)]
sOPst, sMLst, sXst, sQSst, sGSst = ['s%d' % i for i in range(75, 80)]
g0, g1, g2, g3 = 's90', 's91', 's92', 's93'
vL, vT4, vSt8, vXg, vQst, vGst, vSSt, vG1, vXst, vQW, vBR320, vHW, vBR192, vXR, vXW, vL4 = ['v%d' % i for i in range(16)]
vROW, vROR, vRMW, vRMR, vWQr, vWr, vWOr, vXO = ['v%d' % i for i in range(16, 24)]
CSQ, CSG = 'v[24:25]', 'v[26:27]'
vTS, vML2, vTMP, vTMP2 = 'v28', 'v29', 'v30', 'v31'
SELA, MASK, SELG, ONES = 'v[32:35]', 36, 'v[40:43]', 'v[44:45]'
vMLst = 'v46'
XRES = 'v[112:113]'
sM4 = 's[88:89]'
sTAG = 's100'
DPP = 'row_mask:0xf bank_mask:0xf'
M16 = 'v_mfma_f32_16x16x32_bf16'

def build(ts=False, gdelay=12, gdelay_hi=18, pf_code=True, rides=(17, 22, 27), w_at='land31', ldelay=0, bar_after_k0=False, fride=26, ffn_hi=True, deep_from=24, depth=5, deep=7, diag=0, noclean=0, burst=4, late47=0, abl='', backoff=0, cl_sc1=1, dbgts=0, wsoff=0):
    A = Asm()
    uid = [0]
    def lab(p):
        uid[0] += 1; return f'L_{p}_{uid[0]}'
    nts = [0]; inloop = [False]
    def stamp(key=False):
        if not ts: return
        if ts == 2 and not key:
            nts[0] += 1; return
        if inloop[0]:
            A(f's_memrealtime s[94:95]\ns_mul_i32 m0, {sLIDX}, 11\ns_add_u32 m0, m0, {nts[0]}\ns_waitcnt lgkmcnt(0)\nv_writelane_b32 {vTS}, s94, m0')
        else:
            A(f's_memrealtime s[94:95]\ns_waitcnt lgkmcnt(0)\nv_writelane_b32 {vTS}, s94, {nts[0]}')
        nts[0] += 1
    def xstamp(i):
        A(f's_memrealtime s[94:95]\ns_waitcnt lgkmcnt(0)\nv_writelane_b32 {vTS}, s94, {i}')
    def set_exec(lo, hi=None):
        hi = lo if hi is None else hi
        A(f's_mov_b32 exec_lo, {lo:#x}\ns_mov_b32 exec_hi, {hi:#x}')
    def full_exec(): A('s_mov_b64 exec, -1')
    tails = []
    def lstore(fmt, tag='st', nxt=None):
        a, b = lab('wt'), lab('sd')
        A(';;need2 ' + fmt)
        A(f's_cmp_eq_u32 {sFAST}, 1\ns_cbranch_scc0 {a}')
        A(fmt); A(f'{b}:')
        tails.append(f'{a}:\n{fmt} sc1\ns_branch {b}')
        A.vm.append(tag)
    class lowwaves:
        def __enter__(s):
            s.l = lab('hi'); A(f's_cmp_ge_u32 {sW}, 4\ns_cbranch_scc1 {s.l}')
        def __exit__(s, *a): A(f'{s.l}:')
    def sel(dst, a, b):
        A(f'v_cndmask_b32 {dst}, {a}, {b}, vcc')

    A(f'; @launch grid=(256,1,1) block=(512,1,1) lds={LDS_BYTES}')
    A('.amdgcn_target "amdgcn-amd-amdhsa--gfx950"')
    A(f'.text\n.globl {NAME}_kernel\n.p2align 8\n.type {NAME}_kernel,@function\n{NAME}_kernel:')
    A('s_cmp_ge_u32 s2, 256\ns_cbranch_scc1 L_end')
    A('s_load_dwordx16 s[64:79], s[0:1], 0\ns_load_dwordx8 s[80:87], s[0:1], 64')
    A(f'v_lshlrev_b32 {vT4}, 2, v0')
    if pf_code:
        A(f's_getpc_b64 s[94:95]\nL_pc:\ns_lshr_b32 {t0}, s2, 3\ns_and_b32 {t0}, {t0}, 1\ns_lshl_b32 {t0}, {t0}, 13\nv_lshlrev_b32 {vTMP}, 2, {vT4}\nv_add_u32 {vTMP}, {t0}, {vTMP}')
        A(f'v_min_u32 {vTMP}, L_end-L_pc-16, {vTMP}')
        A.vmop(f'global_load_dwordx4 v[96:99], {vTMP}, s[94:95]', 'pf')
    A(f'v_lshrrev_b32 {vTMP}, 6, v0')
    A(f'v_and_b32 {vL}, 63, v0')
    A(f'v_readfirstlane_b32 {sW}, {vTMP}')
    A(f's_and_b32 {sG}, s2, 7\ns_lshr_b32 {sC}, s2, 3\ns_lshr_b32 {sHI}, {sC}, 3\ns_and_b32 {sLO}, {sC}, 7')
    A(f'v_and_b32 v120, 15, {vL}\nv_lshrrev_b32 v121, 4, {vL}')
    A(f'v_lshlrev_b32 {vTMP}, 2, v121\nv_xor_b32 {vTMP}, v120, {vTMP}\nv_lshlrev_b32 {vTMP}, 4, {vTMP}\nv_lshl_add_u32 v116, v121, 8, {vTMP}\nv_lshl_add_u32 v124, v121, 13, {vTMP}')
    A(f'v_and_b32 v122, 3, {vL}\nv_lshrrev_b32 v123, 2, v120')
    A(f's_lshr_b32 {t0}, {sW}, 1\ns_lshl_b32 {t0}, {t0}, 10\ns_and_b32 {t1}, {sW}, 1\ns_lshl_b32 {t1}, {t1}, 6\ns_add_u32 {t0}, {t0}, {t1}\ns_lshl_b32 {t1}, {sLO}, 7\ns_add_u32 {t0}, {t0}, {t1}')
    A(f'v_lshlrev_b32 v117, 4, v122\nv_lshl_add_u32 v117, v121, 2, v117\nv_add_u32 {vXO}, {t0}, v117')
    A(f's_lshl_b32 {t0}, {sHI}, 3\ns_add_u32 {t0}, {t0}, {sG}\ns_lshl_b32 {sKV}, {t0}, 22\ns_lshl_b32 {t0}, {sLO}, 17\ns_add_u32 {sKV}, {sKV}, {t0}\ns_add_u32 {sKV}, {sKV}, {12288*256}')
    A(f's_add_u32 {t0}, {sG}, {sC}\ns_add_u32 {t0}, {t0}, {sW}\ns_and_b32 {t0}, {t0}, 7\ns_lshl_b32 {t0}, {t0}, 12\ns_add_u32 {sKV}, {sKV}, {t0}')
    A(f's_lshl_b32 {sRING}, {sW}, 13')
    A(f's_and_b32 {g3}, {sW}, 3')
    A(f's_lshl_b32 {t0}, {sG}, 2\ns_add_u32 {t0}, {t0}, {sHI}')
    A(f'v_mov_b32 v118, {OOB}')
    A(f's_mul_i32 s101, {sG}, {GB}')
    A(f's_mul_i32 {t1}, {sC}, 1056\ns_add_u32 {t1}, {t1}, s101\ns_add_u32 {t1}, {t1}, {bOP}')
    A(f's_lshl_b32 {t2}, {sLO}, 14\ns_lshl_b32 {t3}, {t0}, 9\ns_add_u32 {t2}, {t2}, {t3}\ns_add_u32 {t2}, {t2}, {oXA - 2048}')
    A(f'v_lshlrev_b32 v115, 2, {vT4}\nv_add_u32 {vTMP}, {t1}, v115\nv_cmp_gt_u32 vcc, 1056, v115'); sel('v119', 'v118', vTMP)
    A(f'v_add_u32 {vTMP}, {t2}, v115\nv_and_b32 {vTMP2}, 0x1e00, v115\nv_cmp_eq_u32 vcc, 2048, {vTMP2}'); sel('v119', 'v119', vTMP)
    A('v_mov_b32 v64, -1\nv_mov_b32 v65, -1\nv_mov_b32 v66, -1\nv_mov_b32 v67, -1')
    A(f's_lshl_b32 {t1}, {sLO}, 6\ns_lshl_b32 {t2}, {sW}, 3\ns_add_u32 {t1}, {t1}, {t2}\ns_lshl_b32 {t1}, {t1}, 13\ns_lshl_b32 {t2}, {sG}, 10\ns_add_u32 {t1}, {t1}, {t2}\ns_lshl_b32 {t2}, {sHI}, 8\ns_add_u32 {t1}, {t1}, {t2}')
    A(f's_lshl_b32 {t2}, {sW}, 11\ns_add_u32 m0, {t2}, {L_WQ}')
    if ts:
        A(f'v_mov_b32 {vTS}, 0'); stamp(True)
        A(f's_memtime s[98:99]')
    A('s_waitcnt lgkmcnt(0)')
    def srd(d, lo, n):
        A(f's_mov_b32 s{d}, s{lo}\ns_mov_b32 s{d+1}, s{lo+1}\ns_mov_b32 s{d+2}, {n}\ns_mov_b32 s{d+3}, 0x20000')
    srd(20, 70, 4194304)
    A.vmop(f'buffer_load_dwordx4 v124, {WQ}, {t1} offen nt lds', 'wq')
    A(f's_add_u32 {t1}, {t1}, 32768\ns_add_u32 m0, m0, 1024')
    srd(40, 64, 4096)
    A.vmop(f'buffer_load_dwordx4 v124, {WQ}, {t1} offen nt lds', 'wq')
    srd(8, 86, WS_REC)
    if wsoff: A(f's_add_u32 s8, s8, {wsoff}\ns_addc_u32 s9, s9, 0')
    A.vmop(f'buffer_load_dword v68, {vXO}, {XX}, 0 offen', 'x0')
    A(f's_lshr_b32 {t2}, {sW}, 1\ns_lshl_b32 {t2}, {t2}, 10\nv_lshlrev_b32 {vTMP}, 4, {vL}')
    A.vmop(f'buffer_load_dwordx4 v[72:75], {vTMP}, {XX}, {t2} offen', 'x0')
    A(f's_mov_b32 {t2}, {EPOCH}')
    A.vmop(f'buffer_load_dword v69, off, {WS}, {t2} sc1', 'ep')
    if not noclean: A.vmop(f'buffer_store_dwordx4 v[64:67], v119, {WS}, 0 offen sc1', 'cl')
    srd(12, 66, 0x8000000)
    def piece(p):
        t, q = (p % 16) // 4, p % 4
        if q == 0:
            A(f's_add_u32 {g1}, {sKV}, {t*32768}\ns_add_u32 m0, {sRING}, {((p//4)&1)*4096}')
        src = 'v116'
        A.vmop(f'buffer_load_dwordx4 {src}, {KK if p < 16 else VV}, {g1} offen offset:{q*1024} nt lds', f'p{p}')
    for p in range(burst): piece(p)
    srd(16, 68, 0x8000000)
    if ts: A('s_mov_b32 s96, s86\ns_mov_b32 s97, s87')

    srd(24, 72, 4194304); srd(44, 82, 4096); srd(48, 84, 256)
    srd(28, 76, 1835008); srd(32, 78, 1835008); srd(36, 80, 1835008)
    A(f's_mul_i32 {t1}, {sG}, 3\ns_add_u32 {t1}, {t1}, 4\ns_lshl_b32 {t2}, {sG}, 2\ns_cmp_ge_u32 {sG}, 4\ns_cselect_b32 {g2}, {t1}, {t2}\ns_add_u32 {g2}, {g2}, {sHI}\ns_min_u32 {g2}, {g2}, 27')
    A(f's_getreg_b32 {t1}, hwreg(HW_REG_XCC_ID)\ns_and_b32 {t1}, {t1}, 15\ns_or_b32 {t1}, {t1}, 0x80\ns_mul_i32 s64, {t1}, 0x01010101\ns_lshl_b32 s65, {sG}, 3')
    A(f's_mov_b32 s88, 0x000f000f\ns_mov_b32 s89, 0x000f000f')
    A(f's_mov_b32 {sGBASE}, s101')
    A(f's_lshl_b32 {t1}, {sHI}, 13\ns_add_u32 {t1}, {t1}, {sGBASE}')
    A(f's_add_u32 {sQg}, {t1}, {bQP}\ns_add_u32 {sOg}, {t1}, {bOP}\ns_add_u32 {sGg}, {t1}, {bGP}')
    A(f's_lshl_b32 {t1}, {g3}, 2\ns_add_u32 {t1}, {t1}, {sHI}\ns_lshl_b32 {t1}, {t1}, 6\ns_add_u32 {t1}, {t1}, {sGBASE}\ns_add_u32 {sQSg}, {t1}, {bQS}')
    A(f's_lshl_b32 {sMLst}, {sLO}, 3\ns_add_u32 {sMLst}, {sMLst}, {t1}\ns_add_u32 {sMLst}, {sMLst}, {bML}')
    A(f's_lshl_b32 {t2}, {g3}, 13\ns_lshl_b32 {t1}, {sLO}, 10\ns_add_u32 {t2}, {t2}, {t1}\ns_lshl_b32 {t1}, {sHI}, 8\ns_add_u32 {t2}, {t2}, {t1}\ns_add_u32 {t2}, {t2}, {sGBASE}\ns_add_u32 {sOPst}, {t2}, {bOP}')
    A(f's_lshl_b32 {t1}, {sHI}, 2\ns_add_u32 {t1}, {t1}, {g3}\ns_lshl_b32 {t1}, {t1}, 6\ns_add_u32 {t1}, {t1}, {sGBASE}\ns_add_u32 {sMLg}, {t1}, {bML}\ns_add_u32 {sGSg}, {t1}, {bGS}')
    A(f's_lshl_b32 {t1}, {sLO}, 14\ns_add_u32 {sXg}, {t1}, {oXA}')
    A(f's_lshl_b32 {t1}, {t0}, 9\ns_add_u32 {sXst}, {sXg}, {t1}')
    A(f's_lshl_b32 {t1}, {sHI}, 11\ns_add_u32 {t1}, {t1}, {sGBASE}\ns_add_u32 {sGCg}, {t1}, {bGC}')
    A(f's_lshl_b32 {t3}, {sHI}, 8\ns_lshl_b32 {t1}, {sLO}, 3\ns_add_u32 {t3}, {t3}, {t1}\ns_add_u32 {t3}, {t3}, {sGBASE}\ns_add_u32 {sQSst}, {t3}, {bQS}\ns_add_u32 {sGSst}, {t3}, {bGS}')
    A(f's_lshl_b32 s101, {t0}, 14\ns_add_u32 s101, s101, {TQP}')
    A(f's_lshl_b32 {t1}, {sLO}, 10\ns_lshl_b32 {t2}, {sHI}, 8\ns_add_u32 {t1}, {t1}, {t2}\ns_lshl_b32 {t2}, {g3}, 6\ns_add_u32 {t3}, {t1}, {t2}')
    A(f's_add_u32 {t1}, {sGBASE}, {t3}\ns_mov_b32 {t2}, {OOB}')
    A(f's_cmp_ge_u32 {sW}, 4\ns_cselect_b32 {g0}, 0, 5')
    def st_off(dst, shift):
        A(f'v_lshlrev_b32 {vTMP}, {shift}, v120\nv_add_u32 {vTMP}, {t1}, {vTMP}\nv_mov_b32 {vTMP2}, {t2}\nv_cmp_eq_u32 vcc, 4, v120'); sel(vTMP, vTMP, vTMP2)
        A(f'v_lshl_add_u32 {vTMP}, v121, 4, {vTMP}\nv_cmp_gt_u32 vcc, {g0}, v120'); sel(dst, 'v118', vTMP)
    st_off(vQst, 13)
    A(f's_lshl_b32 {t3}, {t3}, 1\ns_lshl_b32 {t1}, {g3}, 6\ns_sub_u32 {t3}, {t3}, {t1}\ns_lshl_b32 {t1}, {sG}, 16\ns_add_u32 {t1}, {t1}, {t3}\ns_add_u32 {t1}, {t1}, {TQP}\ns_lshl_b32 {t2}, {sG}, 14\ns_add_u32 {t2}, {t2}, {t3}\ns_add_u32 {t2}, {t2}, {TQC}')
    st_off('v109', 14)
    A(f'v_lshlrev_b32 {vTMP}, 6, v122\nv_add_u32 {vTMP2}, 4, {vTMP}\nv_cmp_gt_u32 vcc, 16, {vL}'); sel(vTMP, vTMP, vTMP2)
    A(f'v_and_b32 {vTMP2}, {0x1ec*4}, {vT4}\nv_cmp_eq_u32 vcc, {256*4}, {vTMP2}'); sel(vSSt, 'v118', vTMP)
    A(f's_mul_i32 {t1}, {sC}, 1312\ns_add_u32 {t1}, {t1}, {sGBASE}\ns_add_u32 {t1}, {t1}, {bGP}\nv_add_u32 {vTMP}, {t1}, v115\nv_cmp_gt_u32 vcc, 1312, v115'); sel('v114', 'v118', vTMP)
    A(f's_add_u32 {t1}, {sXst}, {oXB - oXA - 2048}\nv_add_u32 {vTMP}, {t1}, v115\nv_and_b32 {vTMP2}, 0x1e00, v115\nv_cmp_eq_u32 vcc, 2048, {vTMP2}'); sel('v108', 'v118', vTMP)
    A(f's_mov_b32 {sLAY}, 0\ns_mov_b32 {sTO}, 400000\ns_mov_b32 {sFAST}, 0\ns_mov_b32 {sCNT}, 0\ns_mov_b32 {sGOK}, 0\ns_mov_b32 {sLIDX}, 0')
    A(f's_lshl_b32 {t3}, {g3}, 6\ns_lshl_b32 {t1}, {sLO}, 10\ns_add_u32 {t1}, {t1}, {sGg}\ns_add_u32 {t1}, {t1}, {t3}\ns_lshl_b32 {t2}, {sLO}, 8\ns_add_u32 {t2}, {t2}, {sGCg}\ns_add_u32 {t2}, {t2}, {t3}')
    st_off(vGst, 8)
    A(f'v_and_b32 {vTMP}, 7, {vL}\nv_lshlrev_b32 {vSt8}, 3, {vTMP}\nv_lshlrev_b32 {vL4}, 2, {vL}\nv_lshlrev_b32 {vML2}, 3, v121')
    A(f'v_cmp_eq_u32 vcc, 0, {vL}'); sel(vMLst, 'v118', '0')
    A(f's_lshl_b32 {t1}, {g3}, 8\nv_lshlrev_b32 {vTMP}, 4, v120\nv_lshl_add_u32 {vG1}, v121, 10, {vTMP}\nv_add_u32 {vG1}, {t1}, {vG1}')
    A(f's_lshl_b32 {t1}, {sW}, 6\nv_lshlrev_b32 {vXg}, 11, v123\nv_lshl_add_u32 {vXg}, v121, 9, {vXg}\nv_lshl_add_u32 {vXg}, v122, 4, {vXg}\nv_add_u32 {vXg}, {t1}, {vXg}')
    A(f's_lshr_b32 {t1}, {sW}, 1\ns_mul_i32 {t1}, {t1}, 192\ns_and_b32 {t2}, {sW}, 1\ns_lshl_b32 {t2}, {t2}, 6\ns_add_u32 {t1}, {t1}, {t2}\ns_add_u32 {t1}, {t1}, {L_XS}\nv_add_u32 {vXW}, {t1}, v117')
    A(f's_mul_i32 {t1}, {g3}, 320\ns_add_u32 {t1}, {t1}, {L_QS}\nv_lshl_add_u32 {vQW}, v121, 2, {vTMP}\nv_add_u32 {vQW}, {t1}, {vQW}')
    A(f's_mul_i32 {t1}, {g3}, 192\ns_add_u32 {t1}, {t1}, {L_HS}\nv_lshlrev_b32 {vHW}, 3, v120\nv_lshl_add_u32 {vHW}, v121, 1, {vHW}\nv_add_u32 {vHW}, {t1}, {vHW}')
    A(f'v_mul_u32_u24 {vBR320}, 320, v122\nv_lshl_add_u32 {vBR320}, v121, 4, {vBR320}\nv_add_u32 {vBR320}, {L_QS}, {vBR320}')
    A(f'v_mul_u32_u24 {vBR192}, 192, v122\nv_lshl_add_u32 {vBR192}, v121, 4, {vBR192}\nv_add_u32 {vBR192}, {L_HS}, {vBR192}')
    A(f'v_min_u32 {vTMP2}, 4, v120\nv_mul_u32_u24 {vXR}, 192, {vTMP2}\nv_lshl_add_u32 {vXR}, v121, 4, {vXR}\nv_add_u32 {vXR}, {L_XS}, {vXR}')
    A(f's_lshl_b32 {t1}, {g3}, 5\nv_lshlrev_b32 {vTMP2}, 7, v120\nv_lshl_add_u32 {vTMP2}, v121, 3, {vTMP2}\nv_add_u32 {vTMP2}, {t1}, {vTMP2}\nv_cmp_gt_u32 vcc, 4, v120'); sel(vXst, 'v118', vTMP2)
    A(f'v_lshlrev_b32 {vTMP2}, 4, {vL}\nv_add_u32 {vROW}, {sRING}, {vTMP2}')
    A(f's_lshr_b32 {t1}, {g3}, 1\ns_lshl_b32 {t1}, {t1}, 10\ns_and_b32 {t2}, {g3}, 1\ns_lshl_b32 {t2}, {t2}, 3\ns_add_u32 {t1}, {t1}, {t2}\nv_add_u32 {vROR}, {t1}, {vTMP2}')
    A(f's_lshl_b32 {t1}, {sW}, 3\ns_add_u32 {t1}, {t1}, {L_RM}\nv_lshlrev_b32 {vRMW}, 6, v122\nv_add_u32 {vRMW}, {t1}, {vRMW}')
    A(f's_lshl_b32 {t1}, {g3}, 6\ns_add_u32 {t1}, {t1}, {L_RM}\nv_add_u32 {vRMR}, {t1}, {vSt8}')
    A(f'v_lshl_add_u32 v125, v121, 3, v123')
    A(f'v_xor_b32 {vTMP}, {g3}, v123\nv_lshlrev_b32 {vTMP}, 6, {vTMP}\nv_lshl_add_u32 {vTMP}, v122, 4, {vTMP}\nv_lshl_add_u32 {vWQr}, v125, 8, {vTMP}\nv_add_u32 {vWQr}, {L_WQ}, {vWQr}')
    A(f'v_lshrrev_b32 v119, 1, v123\nv_and_b32 v127, 1, v121\nv_lshlrev_b32 {vTMP}, 1, v127')
    A(f'v_xor_b32 {vTMP}, {g3}, {vTMP}\nv_lshlrev_b32 {vTMP}, 5, {vTMP}\nv_lshl_add_u32 {vTMP}, v122, 3, {vTMP}\nv_lshl_add_u32 {vWr}, v125, 7, {vTMP}\nv_add_u32 {vWr}, {L_WG}, {vWr}')
    A(f'v_and_b32 v126, 1, v123\nv_lshlrev_b32 {vTMP}, 1, v126\nv_xor_b32 {vTMP}, {g3}, {vTMP}\nv_lshlrev_b32 {vTMP}, 5, {vTMP}\nv_lshl_add_u32 {vTMP}, v122, 3, {vTMP}')
    A(f'v_lshl_add_u32 {vTMP2}, v121, 2, v119\nv_lshl_add_u32 {vTMP2}, v126, 6, {vTMP2}\nv_lshl_add_u32 {vWOr}, {vTMP2}, 7, {vTMP}\nv_add_u32 {vWOr}, {L_WO}, {vWOr}')
    A(f'v_and_b32 v125, 1, v120\nv_mov_b32 {vTMP}, 0xffff\nv_mov_b32 {vTMP2}, 0xffff0000\nv_cmp_eq_u32 vcc, 1, v125'); sel('v119', vTMP, vTMP2)
    A(f'v_cmp_gt_u32 vcc, 2, v122'); sel('v119', '0', 'v119')
    for i in range(4):
        A(f'v_cmp_eq_u32 vcc, {i}, v123'); sel(f'v{MASK+i}', '0', 'v119'); A(f'v_and_b32 v{32+i}, 0x3f803f80, v{MASK+i}')
    A(f'v_mov_b32 {vTMP}, 0x3f80\nv_mov_b32 {vTMP2}, 0x3f800000\nv_cmp_eq_u32 vcc, 1, v126'); sel('v119', vTMP, vTMP2)
    A(f'v_cmp_gt_u32 vcc, 2, v122'); sel('v119', '0', 'v119')
    A(f'v_lshrrev_b32 {vTMP}, 1, v123\nv_lshl_add_u32 {vTMP}, v125, 1, {vTMP}')
    for i in range(4):
        A(f'v_cmp_eq_u32 vcc, {i}, {vTMP}'); sel(f'v{40+i}', '0', 'v119')
    A('v_mov_b32 v44, 0x3f803f80\nv_mov_b32 v45, 0x3f803f80')
    A(f'v_and_b32 {vTMP2}, 7, {vL}\nv_lshrrev_b32 v119, 3, {vL}')
    A(f's_lshr_b32 {t1}, {sW}, 2\ns_lshl_b32 {t1}, {t1}, 2\nv_xor_b32 {vTMP}, {t1}, {vTMP2}\nv_lshlrev_b32 {vTMP}, 4, {vTMP}\nv_lshl_add_u32 v124, v119, 10, {vTMP}')
    A(f's_and_b32 {t1}, {sW}, 1\ns_lshl_b32 {t1}, {t1}, 2\nv_xor_b32 {vTMP}, {t1}, {vTMP2}\nv_lshlrev_b32 {vTMP}, 4, {vTMP}')
    A(f'v_lshl_add_u32 v127, v119, 10, {vTMP}\nv_mul_u32_u24 v126, 3584, v119\nv_add_u32 v126, v126, {vTMP}')
    A(f's_cmp_ge_u32 {sG}, 4\ns_cselect_b32 {t2}, 3, 4\ns_cmp_lt_u32 {sHI}, {t2}\ns_cselect_b32 {t2}, 0, {OOB}\nv_add_u32 v126, {t2}, v126\nv_add_u32 v127, {t2}, v127')
    A(f'v_lshlrev_b32 {vTMP}, 1, v123\nv_xor_b32 {vTMP}, v121, {vTMP}\nv_lshlrev_b32 {vTMP}, 5, {vTMP}\nv_lshl_add_u32 {vTMP}, v122, 3, {vTMP}\nv_lshl_add_u32 {vTMP}, v123, 8, {vTMP}\nv_add_u32 v122, {sRING}, {vTMP}\nv_xor_b32 v123, 128, v122')
    A(f'v_and_b32 {vTMP}, 3, v120\nv_lshlrev_b32 {vTMP}, 6, {vTMP}\nv_lshl_add_u32 {vTMP}, v121, 4, {vTMP}\nv_lshl_add_u32 {vTMP}, v120, 8, {vTMP}\nv_add_u32 v118, {sRING}, {vTMP}')
    for j in range(1, 4): A(f'v_xor_b32 v{118+j}, {64*j}, v118')
    A(f'v_and_b32 {vTMP}, 124, {vL4}\nv_add_u32 {vTMP}, {L_XS+4*192}, {vTMP}\nds_write_b32 {vTMP}, v44')

    def read_k(i):
        for j in range(4): A(f'ds_read_b128 a[{16*i+4*j}:{16*i+4*j+3}], v{118+j} offset:{(i&1)*4096}')
    def read_v(p):
        i = p - 16
        for hf in range(2):
            r = 64 + 4 * i + 2 * hf
            A(f'ds_read_b64_tr_b16 a[{r}:{r+1}], v{122+hf} offset:{((p//4)&1)*4096 + (p%4)*1024}')
    if not late47:
        for p in range(burst, 8): piece(p)
    if diag: xstamp(40)
    A.wait_vm('ep')
    if diag: xstamp(41)
    A(f'v_and_b32 v113, 0xffff0000, v68\nv_lshlrev_b32 v112, 16, v68')
    A(f'v_readfirstlane_b32 {sTAG}, v69\ns_add_u32 {sTAG}, {sTAG}, 1')
    A('v_dot2_f32_bf16 v78, v72, v44, 0\nv_dot2_f32_bf16 v79, v72, v72, 0')
    for k in range(73, 76): A(f'v_dot2_f32_bf16 v78, v{k}, v44, v78\nv_dot2_f32_bf16 v79, v{k}, v{k}, v79')
    for m in ('quad_perm:[1,0,3,2]', 'quad_perm:[2,3,0,1]', 'row_half_mirror', 'row_mirror'):
        A(f'v_add_f32_dpp v78, v78, v78 {m} {DPP}\nv_add_f32_dpp v79, v79, v79 {m} {DPP}')
    for sw in ('v_permlane16_swap_b32', 'v_permlane32_swap_b32'):
        A(f'v_mov_b32 v76, v78\nv_mov_b32 v77, v79\n{sw} v78, v76\n{sw} v79, v77\nv_add_f32 v78, v78, v76\nv_add_f32 v79, v79, v77')
    c2 = QSCALE * QSCALE
    A(f'v_mov_b32 v75, {f32(1e-5/c2)}\nv_mul_f32 v74, v78, v78\nv_fmac_f32 v75, {f32(1/(512*c2))}, v79\nv_fmac_f32 v75, {f32(-1/(512*512*c2))}, v74\nv_max_f32 v75, {f32(1e-5/c2)}, v75\nv_rsq_f32 v74, v75')
    A(f'v_mul_f32 v78, {f32(-1/512)}, v78\nv_add_f32 v72, v112, v78\nv_add_f32 v73, v113, v78\nv_mul_f32 v72, v72, v74\nv_mul_f32 v73, v73, v74\nv_cvt_pk_bf16_f32 v72, v72, v73\nds_write_b32 {vXW}, v72')
    if late47:
        for p in range(burst, 8): piece(p)
    if diag: xstamp(42)
    A.wait_vm('cl')
    if diag: xstamp(43)
    if bar_after_k0:
        A.wait_vm('p3')
        read_k(0)
        A('s_waitcnt lgkmcnt(0)')
        for p in range(8, 12): piece(p)
    A('s_waitcnt lgkmcnt(0)')
    if 'B' not in abl: A('s_barrier')
    stamp()
    A(f's_lshl_b32 {t1}, {sG}, 5\ns_add_u32 {t1}, {t1}, {sC}\nv_mov_b32 v74, s64\nv_mov_b32 {vTMP2}, {OOB}\nv_cmp_eq_u32 vcc, 0, {vT4}'); sel(vTMP, vTMP2, '0')
    if 'F' not in abl: A.vmop(f'buffer_store_byte v74, {vTMP}, {DBG}, {t1} offen sc1', 'at')

    def read_wq():
        for tl in range(2):
            for j in range(2):
                for u in range(2):
                    r = 48 + 8 * tl + 4 * j + 2 * u
                    A(f'ds_read_b64_tr_b16 v[{r}:{r+1}], {vWQr} offset:{8*tl+8192*j+1024*u}')
    def read_gu():
        for tl in range(2):
            for j in range(2):
                for u in range(2):
                    r = 48 + 8 * tl + 4 * j + 2 * u
                    A(f'ds_read_b64_tr_b16 v[{r}:{r+1}], {vWr} offset:{8192*tl+4096*j+512*u}')
    def read_wd():
        for j in range(2):
            for u in range(2):
                A(f'ds_read_b64_tr_b16 v[{48+4*j+2*u}:{49+4*j+2*u}], {vWr} offset:{16384+4096*j+512*u}')
    def read_wo():
        for j in range(4):
            for u in range(2):
                A(f'ds_read_b64_tr_b16 v[{48+4*j+2*u}:{49+4*j+2*u}], {vWOr} offset:{2048*j+256*u}')
    def matvec(vst, first, late_w=None):
        A(f'ds_read_b128 v[80:83], {vXR}\nds_read_b128 v[84:87], {vXR} offset:64')
        if late_w: late_w()
        if first is None:
            A(f's_cmp_eq_u32 {sLIDX}, 0\ns_cselect_b64 s[56:57], -1, {sM4}')
        A('s_waitcnt lgkmcnt(0)' if late_w else 's_waitcnt lgkmcnt(1)')
        A(f'{M16} v[96:99], v[48:51], v[80:83], 0\n{M16} v[100:103], v[56:59], v[80:83], 0')
        if not late_w: A('s_waitcnt lgkmcnt(0)')
        A(f'{M16} v[96:99], v[52:55], v[84:87], v[96:99]\n{M16} v[100:103], v[60:63], v[84:87], v[100:103]')
        if first is None: A('s_mov_b64 exec, s[56:57]')
        if first is False: A(f's_mov_b64 exec, {sM4}')
        if first is True:
            A(f'v_cvt_pk_bf16_f32 v96, v96, v97\nv_cvt_pk_bf16_f32 v97, v98, v99\nv_cvt_pk_bf16_f32 v100, v100, v101\nv_cvt_pk_bf16_f32 v101, v102, v103')
            A(f'v_mov_b32 v98, {sTAG}\nv_mov_b32 v99, {sTAG}\nv_mov_b32 v102, {sTAG}\nv_mov_b32 v103, {sTAG}')
            A.vmop(f'buffer_store_dwordx4 v[96:99], {vst}, {WS}, 0 offen sc1', 'st')
            A.vmop(f'buffer_store_dwordx4 v[100:103], {vst}, {WS}, 0 offen offset:256 sc1', 'st')
            return
        A('v_cvt_pk_bf16_f32 v96, v96, v97\nv_cvt_pk_bf16_f32 v97, v98, v99\nv_cvt_pk_bf16_f32 v98, v100, v101\nv_cvt_pk_bf16_f32 v99, v102, v103')
        lstore(f'buffer_store_dwordx4 v[96:99], {vst}, {WS}, {sLAY} offen')
        full_exec()
    def slice_stats(sst):
        l = lab('st')
        A(f's_cmp_lg_u32 {sW}, 4\ns_cbranch_scc1 {l}')
        A(f'ds_read_b128 v[80:83], {vXR}\nds_read_b128 v[84:87], {vXR} offset:64\ns_waitcnt lgkmcnt(1)')
        A(f'{M16} v[104:107], v[80:83], v[80:83], 0\ns_waitcnt lgkmcnt(0)\n{M16} v[104:107], v[84:87], v[84:87], v[104:107]')
        for k in (1, 2, 3):
            A(f's_mov_b64 exec, {1<<k}\nv_mov_b32 v104, v{104+k}')
        full_exec()
        lstore(f'buffer_store_dword v104, {vSSt}, {WS}, {sst} offen')
        A.vm.pop()
        A(f'{l}:')

    def issue_g1(dst, voff, sbase, tag, step=4096):
        A.vmop(f'buffer_load_dwordx4 v[{dst}:{dst+3}], {voff}, {WS}, {sbase} offen sc1', tag)
        if step >= 4096:
            A(f's_add_u32 {t1}, {sbase}, {step}')
            A.vmop(f'buffer_load_dwordx4 v[{dst+4}:{dst+7}], {voff}, {WS}, {t1} offen sc1', tag)
        else:
            A.vmop(f'buffer_load_dwordx4 v[{dst+4}:{dst+7}], {voff}, {WS}, {sbase} offen offset:{step} sc1', tag)
    def check_empty(regs):
        regs = list(regs)
        A(f'v_max3_u32 {vTMP}, v{regs[0]}, v{regs[1]}, v{regs[2]}'); rest = regs[3:]
        if len(rest) >= 5:
            A(f'v_max3_u32 {vTMP2}, v{rest[0]}, v{rest[1]}, v{rest[2]}'); rest = rest[3:]
            tg = 0
            while len(rest) >= 2:
                d = (vTMP, vTMP2)[tg]; A(f'v_max3_u32 {d}, {d}, v{rest[0]}, v{rest[1]}'); rest = rest[2:]; tg ^= 1
            if rest: A(f'v_max3_u32 {vTMP}, {vTMP}, {vTMP2}, v{rest[0]}')
            else: A(f'v_max_u32 {vTMP}, {vTMP}, {vTMP2}')
        else:
            while len(rest) >= 2:
                A(f'v_max3_u32 {vTMP}, {vTMP}, v{rest[0]}, v{rest[1]}'); rest = rest[2:]
            if rest: A(f'v_max_u32 {vTMP}, {vTMP}, v{rest[0]}')
        A(f'v_cmp_eq_u32 vcc, -1, {vTMP}')
    def poll(issue, regs, spec=None):
        r, d = lab('retry'), lab('got')
        A(f'{r}:')
        issue()
        A.wait_vm()
        if spec: spec()
        check_empty(regs)
        tl = lab('again')
        A(f's_cbranch_vccnz {tl}\n{d}:')
        tails.append(f'{tl}:\n' + (f's_sleep {backoff}\n' if backoff else '') + f's_sub_u32 {sTO}, {sTO}, 1\ns_cbranch_scc0 {r}\ns_mov_b32 {sTO}, 0\ns_branch {d}')
    def issue_cnt():
        A.vmop(f'buffer_load_dword v76, {vL4}, {DBG}, 0 offen sc1', 'cnt')
    def check_cnt():
        d = lab('cn')
        A(f'v_and_b32 {vTMP}, 0x80808080, v76\nv_cmp_ne_u32 vcc, 0x80808080, {vTMP}\ns_cbranch_vccnz {d}')
        A(f's_mov_b32 {sCNT}, 1\nv_cmp_eq_u32 vcc, s64, v76\ns_lshr_b64 s[56:57], vcc, s65\ns_and_b32 {t2}, {t2}, 0xff\ns_cmp_eq_u32 {t2}, 0xff\ns_cselect_b32 {sFAST}, 1, 0\n{d}:')
    def issue_q(first):
        if not first:
            issue_g1(64, vG1, sQg, 'q')
            A.vmop(f'buffer_load_dwordx2 v[72:73], {vSt8}, {WS}, {sQSg} offen sc1', 'q')
            return
        issue_tagged(f's_mov_b32 {t1}, s101')
    def issue_tagged(base):
        A(f'v_and_b32 {vTMP2}, 0xf0, {vG1}\nv_lshlrev_b32 {vTMP}, 1, {vG1}\nv_sub_u32 {vTMP}, {vTMP}, {vTMP2}')
        A(base + f'\ns_add_u32 {t2}, {t1}, 8192')
        for k in range(2):
            for hh in range(2):
                r = 80 + 8 * k + 4 * hh
                A.vmop(f'buffer_load_dwordx4 v[{r}:{r+3}], {vTMP}, {WS}, {(t1, t2)[k]} offen offset:{256*hh} sc1', 'q')
    def check_tags():
        A(f'v_xor_b32 {vTMP}, {sTAG}, v82\nv_xor_b32 {vTMP2}, {sTAG}, v86\nv_xor_b32 v83, {sTAG}, v90\nv_xor_b32 v87, {sTAG}, v94')
        A(f'v_or3_b32 {vTMP}, {vTMP}, {vTMP2}, v83\nv_or_b32 {vTMP}, {vTMP}, v87\nv_cmp_ne_u32 vcc, 0, {vTMP}')
    def tagged_sum():
        for n_, (k, hh) in enumerate(((0, 0), (0, 1), (1, 0), (1, 1))):
            r = 80 + 8 * k + 4 * hh
            c = '0' if n_ == 0 else 'v[96:99]'
            A(f'v_mfma_f32_16x16x16_bf16 v[96:99], v[{32+2*hh}:{33+2*hh}], v[{r}:{r+1}], {c}')
    def q0_finish():
        tagged_sum()
        A(f'v_cvt_pk_bf16_f32 v96, v96, v97\nds_write_b32 {vQW}, v96')
    def tagged_poll(issue):
        rq, gq = lab('rq'), lab('gq')
        A(f'{rq}:')
        issue(); A.wait_vm(); check_tags()
        A(f's_cbranch_vccz {gq}\ns_sub_u32 {sTO}, {sTO}, 1\ns_cbranch_scc0 {rq}\ns_mov_b32 {sTO}, 0\n{gq}:')
    def fetch_csq():
        tagged_poll(lambda: issue_tagged(f's_lshl_b32 {t1}, {sG}, 14\ns_add_u32 {t1}, {t1}, {TQC}'))
        tagged_sum()
        A(f's_mov_b32 {t2}, {f32(1/512)}\nv_pk_mul_f32 {CSQ}, v[96:97], s[56:57] op_sel_hi:[1,0]')
    QREGS = list(range(64, 74)); QREGS1 = QREGS + list(range(80, 88))
    def ln_spec(selop, first):
        def f():
            A(f'{M16} v[96:99], {selop}, v[64:67], 0\n{M16} v[96:99], {selop}, v[68:71], v[96:99]')
            if first:
                A(f'{M16} v[100:103], {selop}, v[80:83], 0\n{M16} v[100:103], {selop}, v[84:87], v[100:103]')
            A(f'v_add_f32_dpp v78, v72, v72 quad_perm:[1,0,3,2] {DPP}\nv_add_f32_dpp v79, v73, v73 quad_perm:[1,0,3,2] {DPP}')
        return f
    def ln_finish(cs, scale, first):
        for m in ('quad_perm:[2,3,0,1]', 'row_half_mirror'):
            A(f'v_add_f32_dpp v78, v78, v78 {m} {DPP}\nv_add_f32_dpp v79, v79, v79 {m} {DPP}')
            if m.startswith('quad'): A(f'v_mov_b32 v75, {f32(1e-5/(scale*scale))}')
        c2 = scale * scale
        A(f'v_mul_f32 v74, v78, v78\nv_fmac_f32 v75, {f32(1/(512*c2))}, v79')
        if first:
            A(f's_mov_b32 {t2}, {f32(1/512)}\nv_pk_mul_f32 {cs}, v[100:101], s[56:57] op_sel_hi:[1,0]')
        A(f'v_fmac_f32 v75, {f32(-1/(512*512*c2))}, v74\nv_max_f32 v75, {f32(1e-5/c2)}, v75\nv_rsq_f32 v74, v75')
        A(f'v_pk_fma_f32 v[96:97], v[78:79], {cs}, v[96:97] op_sel_hi:[0,1,1] neg_lo:[1,0,0] neg_hi:[1,0,0]')
        A(f'v_pk_mul_f32 v[96:97], v[96:97], v[74:75] op_sel_hi:[1,0]')
    def q_finish(first):
        ln_finish(CSQ, QSCALE, first)
        A(f'v_cvt_pk_bf16_f32 v96, v96, v97\nds_write_b32 {vQW}, v96')

    save = list(A.vm)
    with lowwaves():
        read_wq()
        A('s_waitcnt lgkmcnt(0)')
        if 'Q' not in abl: matvec('v109', True)
    stamp()

    wait_of = {}
    d = 6
    for p_ in range(12, 32):
        tgt = depth if p_ < deep_from else deep
        need_d = p_ - tgt
        if p_ in (12, 16, 20): need_d = max(need_d, p_ - 5)
        if need_d > d: wait_of[p_] = list(range(d + 1, need_d + 1)); d = need_d
        else: wait_of[p_] = []
    last_read = d
    def step(p):
        for d_ in wait_of[p]:
            A.wait_vm(f'p{d_}')
            if d_ < 16:
                if d_ % 4 == 3: read_k(d_ // 4); A('s_waitcnt lgkmcnt(0)')
            else:
                A('s_waitcnt lgkmcnt(0)')
                read_v(d_)
            if diag and d_ in (7, 11, 15, 19, 23): xstamp(45 + (d_ - 7) // 4)
        piece(p)
    hi_l, join_all, flag_l = lab('shi'), lab('sj'), lab('fl')
    def lead_in():
        if not bar_after_k0:
            A.wait_vm('p3')
            if diag: xstamp(44)
            read_k(0); A('s_waitcnt lgkmcnt(0)')
            for pp in range(8, 12): piece(pp)
    def steps(lo_, hi_):
        for pp in range(lo_, hi_):
            if pp == fride: issue_cnt()
            step(pp)
            if pp == min(fride + 4, 31): A.wait_vm('cnt'); check_cnt()
    A(f's_cmp_ge_u32 {sW}, 4\ns_cbranch_scc1 {hi_l}')
    lead_in()
    p = 12
    while p < 32:
        if p in rides:
            skip, join = lab('noq'), lab('jn')
            saved = list(A.vm)
            A(f's_cmp_eq_u32 {sGOK}, 1\ns_cbranch_scc1 {skip}')
            issue_q(True)
            steps(p, p + 5)
            if 'q' in A.vm: A.wait_vm('q')
            check_tags()
            nq = lab('nq')
            A(f's_cbranch_vccnz {nq}\ns_mov_b32 {sGOK}, 1')
            q0_finish()
            A(f'{nq}:\ns_branch {join}\n{skip}:')
            after_q = list(A.vm)
            A.vm = saved
            steps(p, p + 5)
            extra = len(A.vm) - len(after_q)
            assert A.vm[extra:] == after_q, (A.vm, after_q)
            A.vm = after_q if extra <= 0 else A.vm
            A(f'{join}:')
            p += 5
        else:
            steps(p, p + 1); p += 1
    dn = lab('qdone')
    saved = list(A.vm)
    if abl: A(f's_branch {dn}')
    A(f's_cmp_eq_u32 {sGOK}, 1\ns_cbranch_scc1 {dn}')
    tagged_poll(lambda: issue_q(True))
    q0_finish()
    A(f'{dn}:\ns_branch {flag_l}\n{hi_l}:')
    A.vm = save
    lead_in()
    steps(12, 32)
    assert A.vm == saved, (A.vm, saved)
    rc2 = lab('rc')
    A(f'{flag_l}:')
    if abl: A(f's_branch {join_all}')
    A(f's_cmp_eq_u32 {sCNT}, 1\ns_cbranch_scc1 {join_all}\n{rc2}:')
    issue_cnt(); A.wait_vm(); check_cnt()
    A(f's_cmp_eq_u32 {sCNT}, 1\ns_cbranch_scc1 {join_all}\ns_sub_u32 {sTO}, {sTO}, 1\ns_cbranch_scc0 {rc2}\ns_mov_b32 {sTO}, 0')
    A.vm = saved
    A(f'{join_all}:')
    stamp()
    A('v_mov_b32 v104, -1\nv_mov_b32 v105, -1\nv_mov_b32 v106, -1\nv_mov_b32 v107, -1')
    if '2' in abl: pass
    elif cl_sc1: A.vmop(f'buffer_store_dwordx4 v[104:107], v114, {WS}, 0 offen sc1', 'cl2')
    else: lstore(f'buffer_store_dwordx4 v[104:107], v114, {WS}, 0 offen', 'cl2')
    if '2' not in abl: A.vmop(f'buffer_store_dwordx4 v[104:107], v108, {WS}, 0 offen sc1', 'cl2')
    def issue_wo():
        A(f's_lshl_b32 {t1}, {sG}, 9\ns_lshl_b32 {t2}, {sHI}, 7\ns_add_u32 {t1}, {t1}, {t2}\ns_lshl_b32 {t2}, {sW}, 4\ns_add_u32 {t1}, {t1}, {t2}\ns_lshl_b32 {t1}, {t1}, 10\ns_lshl_b32 {t2}, {sLO}, 7\ns_add_u32 {t1}, {t1}, {t2}')
        A(f's_lshl_b32 {t2}, {sW}, 11\ns_add_u32 m0, {t2}, {L_WO}')
        A.vmop(f'buffer_load_dwordx4 v124, {WO}, {t1} offen nt lds', 'wo')
        A(f's_add_u32 {t1}, {t1}, 8192\ns_add_u32 m0, m0, 1024')
        A.vmop(f'buffer_load_dwordx4 v124, {WO}, {t1} offen nt lds', 'wo')

    def issue_ffn(dw=0):
        A(f's_add_u32 {t0}, {sW}, {dw}')
        A(f's_lshl_b32 {t1}, {sLO}, 6\ns_lshl_b32 {t2}, {t0}, 3\ns_add_u32 {t1}, {t1}, {t2}\ns_mul_i32 {t1}, {t1}, 3584\ns_lshl_b32 {t2}, {g2}, 7\ns_add_u32 {t1}, {t1}, {t2}')
        A(f's_lshl_b32 {t2}, {t0}, 10\ns_add_u32 m0, {t2}, {L_WG}')
        A(f'buffer_load_dwordx4 v126, {WG}, {t1} offen nt lds')
        A(f's_add_u32 m0, {t2}, {L_WU}')
        A(f'buffer_load_dwordx4 v126, {WU}, {t1} offen nt lds')
        A(f's_lshl_b32 {t1}, {g2}, 6\ns_lshl_b32 {t3}, {t0}, 3\ns_add_u32 {t1}, {t1}, {t3}\ns_lshl_b32 {t1}, {t1}, 10\ns_lshl_b32 {t3}, {sLO}, 7\ns_add_u32 {t1}, {t1}, {t3}\ns_add_u32 m0, {t2}, {L_WD}')
        A(f'buffer_load_dwordx4 v127, {WD}, {t1} offen nt lds')
    def scores():
        A('s_waitcnt lgkmcnt(0)\ns_barrier')
        for j in range(4): A(f'ds_read_b128 v[{64+4*j}:{67+4*j}], {vBR320} offset:{64*j}')
        for j in range(4):
            A(f's_waitcnt lgkmcnt({3-j})')
            for t in range(4):
                c = '0' if j == 0 else f'v[{80+4*t}:{83+4*t}]'
                A(f'{M16} v[{80+4*t}:{83+4*t}], a[{16*t+4*j}:{16*t+4*j+3}], v[{64+4*j}:{67+4*j}], {c}')
        for t in range(1, 4):
            for r in range(4):
                A(f'v_mov_b32_dpp v{80+r}, v{80+4*t+r} quad_perm:[0,1,2,3] row_mask:0xf bank_mask:{1<<t:#x}')
        A('v_max3_f32 v84, v80, v81, v82\nv_max_f32 v84, v84, v83')
        A(f'v_max_f32_dpp v84, v84, v84 row_ror:4 {DPP}')
        A(f'v_max_f32_dpp v84, v84, v84 row_ror:8 {DPP}')
        A('v_mov_b32 v85, v84\nv_permlane16_swap_b32 v84, v85\nv_max_f32 v84, v84, v85')
        A('v_mov_b32 v85, v84\nv_permlane32_swap_b32 v84, v85\nv_max_f32 v84, v84, v85')
        A('v_pk_add_f32 v[80:81], v[80:81], v[84:85] op_sel_hi:[1,0] neg_lo:[0,1] neg_hi:[0,1]')
        A('v_pk_add_f32 v[82:83], v[82:83], v[84:85] op_sel_hi:[1,0] neg_lo:[0,1] neg_hi:[0,1]')
        for r in range(4): A(f'v_exp_f32 v{80+r}, v{80+r}')
        A('v_cvt_pk_bf16_f32 v86, v80, v81\nv_cvt_pk_bf16_f32 v87, v82, v83')
        A(f'v_mfma_f32_16x16x16_bf16 v[88:91], {ONES}, v[86:87], 0')
    def pv(i):
        for hf in range(2):
            acc = 96 + 8 * (i & 1) + 4 * hf
            c = '0' if i < 2 else f'v[{acc}:{acc+3}]'
            A(f'v_mfma_f32_4x4x4_16b_bf16 v[{acc}:{acc+3}], v[86:87], a[{64+4*i+2*hf}:{65+4*i+2*hf}], {c} cbsz:4 abid:{4*(i&3)+(i>>2)}')
    def lsum():
        A(f'v_add_f32_dpp v85, v88, v88 row_ror:4 {DPP}')
        A(f'v_add_f32_dpp v85, v85, v85 row_ror:8 {DPP}')
        A(f's_mov_b64 exec, 15\nds_write_b64 {vRMW}, v[84:85]')
        full_exec()
    def combine():
        for h in range(4):
            A(f'v_add_f32 v{64+2*h}, v{96+h}, v{104+h}\nv_add_f32 v{65+2*h}, v{100+h}, v{108+h}')
            if h & 1: A(f'ds_write_b128 {vROW}, v[{62+2*h}:{65+2*h}] offset:{512*(h-1)}')
        A('s_waitcnt lgkmcnt(0)\ns_barrier')
        with lowwaves():
            A(f'ds_read_b64 v[72:73], {vRMR}')
            for k in range(8): A(f'ds_read_b64 v[{80+2*k}:{81+2*k}], {vROR} offset:{8192*k}')
            A('s_waitcnt lgkmcnt(8)')
            A(f'v_max_f32_dpp v74, v72, v72 quad_perm:[1,0,3,2] {DPP}')
            A(f'v_max_f32_dpp v74, v74, v74 quad_perm:[2,3,0,1] {DPP}')
            A(f'v_max_f32_dpp v74, v74, v74 row_half_mirror {DPP}')
            A('v_sub_f32 v72, v72, v74\nv_exp_f32 v72, v72')
            for k in range(8): A(f'v_readlane_b32 s{80+k}, v72, {k}')
            A('v_mul_f32 v75, v73, v72\ns_waitcnt lgkmcnt(0)')
            for k in range(8):
                sp = f's[{80+(k&~1)}:{81+(k&~1)}]'
                o = 'op_sel_hi:[1,0' if (k & 1) == 0 else 'op_sel:[0,1'
                d = 64 + 2 * (k & 1)
                if k < 2: A(f'v_pk_mul_f32 v[{d}:{d+1}], v[{80+2*k}:{81+2*k}], {sp} {o}]')
                else: A(f'v_pk_fma_f32 v[{d}:{d+1}], v[{80+2*k}:{81+2*k}], {sp}, v[{d}:{d+1}] {o},{1 if (k&1)==0 else 0}]')
            A('v_pk_add_f32 v[64:65], v[64:65], v[66:67]\nv_cvt_pk_bf16_f32 v64, v64, v65')
            lstore(f'buffer_store_dword v64, {vL4}, {WS}, {sOPst} offen')
            for m in ('quad_perm:[1,0,3,2]', 'quad_perm:[2,3,0,1]', 'row_half_mirror'):
                A(f'v_add_f32_dpp v75, v75, v75 {m} {DPP}')
            lstore(f'buffer_store_dwordx2 v[74:75], {vMLst}, {WS}, {sMLst} offen')

    def wait_piece(tag):
        if tag not in A.vm: return
        if hi_extra[0] and ffn_hi:
            n_ = len(A.vm) - 1 - max(i for i, t_ in enumerate(A.vm) if t_ == tag)
            a_, b_ = lab('wl'), lab('wj')
            A(f's_cmp_lt_u32 {sW}, 4\ns_cbranch_scc1 {a_}\ns_waitcnt vmcnt({n_ + hi_extra[0]})\ns_branch {b_}\n{a_}:')
            A.wait_vm(tag); A(f'{b_}:')
        else: A.wait_vm(tag)
    def issue_weights():
        issue_wo()
        if ffn_hi:
            l_ = lab('ff'); A(f's_cmp_lt_u32 {sW}, 4\ns_cbranch_scc1 {l_}'); issue_ffn(-4); issue_ffn(0); A(f'{l_}:')
    hi_extra = [0]
    if w_at == 'issue31' and not abl: issue_weights(); hi_extra[0] = 6
    scores()
    for i in range(last_read - 15): pv(i)
    lsum()
    stamp()
    for p in range(last_read + 1, 32):
        wait_piece(f'p{p}')
        read_v(p)
        if p == 31: wait_piece('cl2')
        if w_at == f'land{p}' and not abl: issue_weights(); hi_extra[0] = 6
        A('s_waitcnt lgkmcnt(0)')
        pv(p - 16)
    stamp()
    if abl: A('s_branch L_fin')
    combine()
    stamp(True)

    A('L_layer:'); inloop[0] = True
    def proj_out(nk, vb, boff, xoff, late_w=None):
        sk, dl = lab('sk'), lab('dl')
        A(f's_cmp_ge_u32 {sW}, 4\ns_cbranch_scc1 {sk}')
        for j in range(nk): A(f'ds_read_b128 v[{64+4*j}:{67+4*j}], {vb} offset:{boff+64*j}')
        if late_w: late_w()
        for j in range(nk):
            if not late_w: A(f's_waitcnt lgkmcnt({nk-1-j})')
            elif j == 0: A('s_waitcnt lgkmcnt(0)')
            c = '0' if j == 0 else 'v[96:99]'
            A(f'{M16} v[96:99], v[{48+4*j}:{51+4*j}], v[{64+4*j}:{67+4*j}], {c}')
        A(f's_add_u32 {t1}, {sXst}, {xoff}')
        A('v_cvt_pk_bf16_f32 v96, v96, v97\nv_cvt_pk_bf16_f32 v97, v98, v99')
        A(f'buffer_store_dwordx2 v[96:97], {vXst}, {WS}, {t1} offen sc1')
        return sk, dl
    def first_only(f):
        def g():
            l, bk = lab('fo'), lab('bk')
            A(f's_cmp_eq_u32 {sLIDX}, 0\ns_cbranch_scc1 {l}\n{bk}:')
            keepL, A.L = A.L, []
            A(f'{l}:'); f(); A(f's_branch {bk}')
            tails.append('\n'.join(A.L)); A.L = keepL
        return g
    def later_only(f):
        l = lab('lo'); A(f's_cmp_eq_u32 {sLIDX}, 0\ns_cbranch_scc1 {l}'); f(); A(f'{l}:')
    def g_wait(sk, dl, pre, busy_first=False, hi_pre=None):
        pre()
        if gdelay and busy_first: later_only(lambda: A(f's_sleep {gdelay}'))
        elif gdelay: A(f's_sleep {gdelay}')
        A(f's_branch {dl}\n{sk}:')
        if hi_pre: hi_pre()
        if gdelay_hi: A(f's_sleep {gdelay_hi}')
        A(f'{dl}:')
    def reduce_x(xoff, final):
        A(f's_add_u32 {t0}, {sXg}, {xoff}')
        poll(lambda: issue_g1(64, vXg, t0, 'x', 8192), range(64, 72),
             lambda: A(f'{M16} v[96:99], {SELA}, v[64:67], 0\n{M16} v[96:99], {SELA}, v[68:71], v[96:99]'))
        stamp()
        A(f'v_add_f32_dpp v96, v96, v96 row_ror:4 {DPP}\nv_add_f32_dpp v97, v97, v97 row_ror:4 {DPP}')
        A(f'v_add_f32_dpp v96, v96, v96 row_ror:8 {DPP}\nv_add_f32_dpp v97, v97, v97 row_ror:8 {DPP}')
        A(f's_mov_b64 exec, {sM4}')
        A(f'v_pk_add_f32 {XRES}, {XRES}, v[96:97]\nv_cvt_pk_bf16_f32 v96, v112, v113')
        if final: A(f's_cmp_eq_u32 {sLIDX}, 1\ns_cbranch_scc1 L_out')
        A(f'ds_write_b32 {vXW}, v96')
        full_exec()
        A('s_waitcnt lgkmcnt(0)\ns_barrier')
    def issue_o():
        issue_g1(64, vG1, sOg, 'o')
        A.vmop(f'buffer_load_dwordx2 v[72:73], {vML2}, {WS}, {sMLg} offen sc1', 'o')
        A.vmop(f'buffer_load_dwordx2 v[74:75], {vML2}, {WS}, {sMLg} offen offset:32 sc1', 'o')
    with lowwaves():
        later_only(read_wo)
        if ldelay: A(f's_sleep {ldelay}')
        poll(issue_o, range(64, 76))
        stamp()
        A('v_max_f32 v76, v72, v74\nv_mov_b32 v77, v76\nv_permlane16_swap_b32 v76, v77\nv_max_f32 v76, v76, v77')
        A('v_mov_b32 v77, v76\nv_permlane32_swap_b32 v76, v77\nv_max_f32 v76, v76, v77')
        A('v_sub_f32 v72, v72, v76\nv_sub_f32 v74, v74, v76\nv_exp_f32 v72, v72\nv_exp_f32 v74, v74')
        A('v_cvt_pk_bf16_f32 v72, v72, v72\nv_cvt_pk_bf16_f32 v74, v74, v74')
        for i in range(4): A(f'v_and_b32 v{80+i}, v{MASK+i}, v72')
        for i in range(4): A(f'v_and_b32 v{84+i}, v{MASK+i}, v74')
        A(f'{M16} v[96:99], v[80:83], v[64:67], 0\n{M16} v[96:99], v[84:87], v[68:71], v[96:99]')
        A('v_and_b32 v72, 0xffff0000, v72\nv_and_b32 v74, 0xffff0000, v74\nv_mul_f32 v73, v73, v72\nv_fmac_f32 v73, v75, v74')
        A('v_mov_b32 v77, v73\nv_permlane16_swap_b32 v73, v77\nv_add_f32 v73, v73, v77')
        A('v_mov_b32 v77, v73\nv_permlane32_swap_b32 v73, v77\nv_add_f32 v73, v73, v77\nv_rcp_f32 v72, v73')
        A('v_pk_mul_f32 v[96:97], v[96:97], v[72:73] op_sel_hi:[1,0]\nv_cvt_pk_bf16_f32 v96, v96, v97')
        A(f'ds_write_b32 {vQW}, v96 offset:{L_OS-L_QS}')
    A(f's_waitcnt vmcnt({6 if ffn_hi else 0}) lgkmcnt(0)\ns_barrier')
    if not ffn_hi: first_only(issue_ffn)()
    sk, dl = proj_out(4, vBR320, L_OS - L_QS, 0, first_only(read_wo))
    def clean3():
        A(f's_mul_i32 {t1}, {sC}, 3168\ns_add_u32 {t1}, {t1}, {sGBASE}\ns_add_u32 {t1}, {t1}, {LS - 4096}\nv_mov_b32 v68, {OOB}')
        A(f'v_add_u32 {vTMP}, {t1}, v115\nv_cmp_gt_u32 vcc, {4096 + 3168}, v115'); sel('v69', 'v68', vTMP)
        A('v_mov_b32 v64, -1\nv_mov_b32 v65, -1\nv_mov_b32 v66, -1\nv_mov_b32 v67, -1')
        if cl_sc1: A(f'buffer_store_dwordx4 v[64:67], v69, {WS}, 0 offen sc1')
        else: lstore(f'buffer_store_dwordx4 v[64:67], v69, {WS}, 0 offen'); A.vm.pop()
        A(f's_add_u32 {t1}, {sXst}, {LS - 7168}\nv_add_u32 {vTMP}, {t1}, v115\nv_add_u32 {vTMP2}, {oXB - oXA - 512}, {vTMP}\nv_cmp_lt_u32 vcc, {7680 - 1}, v115'); sel(vTMP, vTMP, vTMP2)
        A(f'v_cmp_lt_u32 vcc, {7168 - 1}, v115'); sel('v69', 'v68', vTMP)
        A(f'buffer_store_dwordx4 v[64:67], v69, {WS}, 0 offen sc1')
    g_wait(sk, dl, lambda: later_only(read_gu), False, first_only(clean3))
    stamp()
    reduce_x(0, False)
    slice_stats(sGSst)
    def issue_gp(first):
        issue_g1(64, vG1, sGg, 'g')
        A.vmop(f'buffer_load_dwordx2 v[72:73], {vSt8}, {WS}, {sGSg} offen sc1', 'g')
        if first:
            A(f'v_and_b32 {vTMP}, 0xf0, {vG1}\nv_and_b32 {vTMP2}, 0xc00, {vG1}\nv_lshrrev_b32 {vTMP2}, 2, {vTMP2}\nv_or_b32 {vTMP}, {vTMP}, {vTMP2}')
            issue_g1(80, vTMP, sGCg, 'g', 1024)
    with lowwaves():
        matvec(vGst, None, first_only(read_gu))
        stamp()
        read_wd()
        if ldelay: A(f's_sleep {ldelay}')
        l1, l2 = lab('g1'), lab('g2')
        A(f's_cmp_lg_u32 {sLIDX}, 0\ns_cbranch_scc1 {l1}')
        poll(lambda: issue_gp(True), QREGS1, ln_spec(SELG, True))
        ln_finish(CSG, 1.0, True)
        A(f's_branch {l2}\n{l1}:')
        poll(lambda: issue_gp(False), QREGS, ln_spec(SELG, False))
        ln_finish(CSG, 1.0, False)
        A(f'{l2}:')
        stamp()
        A('v_cvt_pk_bf16_f32 v96, v96, v97\nv_and_b32 v97, 0xffff0000, v96\nv_lshlrev_b32 v96, 16, v96\nv_max_f32 v96, 0, v96\nv_mul_f32 v96, v96, v97\nv_cvt_pk_bf16_f32 v96, v96, v96')
        A(f'ds_write_b16 {vHW}, v96')
    A('s_waitcnt lgkmcnt(0)\ns_barrier')
    sk, dl = proj_out(2, vBR192, 0, oXB - oXA)
    def pre_q():
        read_wq()
        first_only(fetch_csq)()
    g_wait(sk, dl, pre_q, True)
    stamp()
    no = lab('no')
    A(f's_cmp_eq_u32 {sLIDX}, 0\ns_cbranch_scc1 {no}\ns_cmp_lg_u32 {sHI}, 0\ns_cbranch_scc1 L_fin\ns_cmp_lg_u32 {sG}, {sLO}\ns_cbranch_scc1 L_fin\n{no}:')
    A(f's_add_u32 {sQSst}, {sQSst}, {LS}')
    reduce_x(oXB - oXA, True)
    slice_stats(sQSst)
    A(f's_mov_b32 {sLIDX}, 1\ns_mov_b32 {sLAY}, {LS}')
    keep = nts[0]; nts[0] -= 11
    with lowwaves():
        matvec(vQst, False)
        stamp()
        A(f's_add_u32 {sQg}, {sQg}, {LS}\ns_add_u32 {sQSg}, {sQSg}, {LS}')
        if ldelay: A(f's_sleep {ldelay}')
        poll(lambda: issue_q(False), QREGS, ln_spec(SELA, False))
        stamp()
        q_finish(False)
    for s in (sOg, sGg, sMLg, sGSg, sXg, sOPst, sMLst, sXst, sGSst):
        A(f's_add_u32 {s}, {s}, {LS}')
    scores()
    for i in range(16):
        pv(i)
        if i == 5: lsum()
    stamp()
    combine()
    stamp()
    A('s_branch L_layer'); nts[0] = keep
    A('L_out:')
    A(f'buffer_store_dword v96, {vXO}, {OUT}, 0 offen')
    A(f's_or_b32 {t1}, s2, {sW}\ns_cmp_lg_u32 {t1}, 0\ns_cbranch_scc1 L_fin0')
    A(f's_mov_b64 exec, 1\nv_mov_b32 v97, {sTAG}\ns_mov_b32 {t2}, {EPOCH}\nbuffer_store_dword v97, off, {WS}, {t2} sc1')
    A('L_fin0:')
    full_exec()
    A('L_fin:')
    if ts:
        stamp(True)
        A(f's_memtime s[94:95]\ns_waitcnt lgkmcnt(0)\ns_sub_u32 s94, s94, s98\nv_writelane_b32 {vTS}, s94, 63')
        A(f's_add_u32 s96, s96, 0x10000000\ns_addc_u32 s97, s97, 0\ns_lshl_b32 {t1}, s2, 11\nv_add_u32 v64, {t1}, {vT4}\nglobal_store_dword v64, {vTS}, s[96:97]')
        if dbgts:
            A(f's_or_b32 {t1}, s2, {sW}\ns_cmp_lg_u32 {t1}, 0\ns_cbranch_scc1 L_end')
            A(f'v_readlane_b32 {t1}, {vTS}, 0\nv_subrev_u32 v64, {t1}, {vTS}\nv_and_b32 v64, 0xffff, v64')
            A(f'v_mov_b32_dpp v65, v64 quad_perm:[1,1,3,3] {DPP}\nv_lshl_or_b32 v64, v65, 16, v64\nv_lshlrev_b32 v65, 1, {vL}')
            A(f's_mov_b32 exec_lo, 0x55555555\ns_mov_b32 exec_hi, 0\nbuffer_store_dword v64, v65, {DBG}, 0 offen sc1')
    A('s_endpgm')
    for t_ in tails: A(t_)
    A('L_end:\ns_endpgm')
    A(f'.section .rodata,"a"\n.p2align 6\n.amdhsa_kernel {NAME}_kernel')
    A('.amdhsa_next_free_vgpr 256\n.amdhsa_next_free_sgpr 102\n.amdhsa_accum_offset 128\n.amdhsa_group_segment_fixed_size 0\n.amdhsa_kernarg_size 96\n.amdhsa_user_sgpr_count 2\n.amdhsa_user_sgpr_kernarg_segment_ptr 1\n.amdhsa_system_sgpr_workgroup_id_x 1\n.end_amdhsa_kernel')
    txt, probs = A.text()
    for p in probs: print('HAZARD', p, file=sys.stderr)
    return txt, nts[0]

if __name__ == '__main__':
    out = sys.argv[1]
    kw = {}
    for a in sys.argv[2:]:
        k, v = a.split('='); kw[k] = eval(v)
    txt, n = build(**kw)
    open(out, 'w').write(txt)
    print('stamps', n, 'lines', txt.count('\n'))
```

```python
import sys, math, struct
sys.path.insert(0, 'gen')
from asmlib import Asm

NAME = "interleave_layers__sliding_block_cached__glu_gated_reglu__decode"

bQP, bQS, bOP, bML, bGP, bGS, bGC, GB = 0x0, 0x8000, 0x8400, 0x10400, 0x10800, 0x18800, 0x18C00, 0x1AC00
oXA, oXB, LS = 8 * GB, 8 * GB + 0x20000, 8 * GB + 0x40000
TQP, TQC, TOP, TML, TXA, TGP, TGC, TGS, EPOCH = 0x240000, 0x2C0000, 0x2E0000, 0x360000, 0x364000, 0x3A4000, 0x424000, 0x444000, 0x448000
WS_REC = 0x448100
OOB = 0x7FFF0000
L_RING, L_WQ, L_WO, L_WG, L_WU, L_WD = 0, 65536, 81920, 98304, 106496, 114688
L_QS, L_OS, L_HS, L_XS, L_RM, L_ST = 122880, 124160, 125440, 126208, 127168, 127424
LDS_BYTES = 127488

def f32(x): return '0x%08x' % struct.unpack('<I', struct.pack('<f', x))[0]
QSCALE = 128 ** -0.5 * math.log2(math.e)

sW, sG, sC, sHI, sLO = 's3', 's4', 's5', 's6', 's7'
WS, KK, VV, WQ, WO, WG, WU, WD, XX, OUT, DBG = [f's[{i}:{i+3}]' for i in range(8, 52, 4)]
sKV, sRING, t0, t1, t2, t3 = 's52', 's53', 's54', 's55', 's56', 's57'
sLAY, sTO, sFAST, sCNT, sGOK, sLIDX = 's58', 's59', 's60', 's61', 's62', 's63'
sQg, sOg, sGg, sQSg, sMLg, sGSg, sXg, sGBASE, sGCg = ['s%d' % i for i in range(66, 75)]
sOPst, sMLst, sXst, sQSst, sGSst = ['s%d' % i for i in range(75, 80)]
g0, g1, g2, g3 = 's90', 's91', 's92', 's93'
vL, vT4, vSt8, vXg, vQst, vGst, vSSt, vG1, vXst, vQW, vBR320, vHW, vBR192, vXR, vXW, vL4 = ['v%d' % i for i in range(16)]
vROW, vROR, vRMW, vRMR, vWQr, vWr, vWOr, vXO = ['v%d' % i for i in range(16, 24)]
CSQ, CSG = 'v[24:25]', 'v[26:27]'
vTS, vML2, vTMP, vTMP2 = 'v28', 'v29', 'v30', 'v31'
SELA, MASK, SELG, ONES = 'v[32:35]', 36, 'v[40:43]', 'v[44:45]'
vMLst = 'v46'
XRES = 'v[112:113]'
sM4 = 's[88:89]'
sTAG = 's100'
DPP = 'row_mask:0xf bank_mask:0xf'
M16 = 'v_mfma_f32_16x16x32_bf16'

def build(ts=False, gdelay=12, gdelay_hi=18, pf_code=True, rides=(17, 22, 27), w_at='land31', ldelay=0, bar_after_k0=False, fride=26, ffn_hi=False, touch_o=0, touch_g=1, ffn_sleep=0, clean3_xa=1, tlb=0, diag2=0, ffn_at=0, wo_at=0, csq_o=0, touch1=0, deep_from=24, depth=5, deep=7, diag=0, noclean=0, burst=4, late47=0, abl='', backoff=0, cl_sc1=1, dbgts=0, wsoff=0):
    A = Asm()
    uid = [0]
    def lab(p):
        uid[0] += 1; return f'L_{p}_{uid[0]}'
    nts = [0]; inloop = [False]
    def stamp(key=False):
        if not ts: return
        if ts == 2 and not key:
            nts[0] += 1; return
        if inloop[0]:
            A(f's_memrealtime s[94:95]\ns_mul_i32 m0, {sLIDX}, 11\ns_add_u32 m0, m0, {nts[0]}\ns_waitcnt lgkmcnt(0)\nv_writelane_b32 {vTS}, s94, m0')
        else:
            A(f's_memrealtime s[94:95]\ns_waitcnt lgkmcnt(0)\nv_writelane_b32 {vTS}, s94, {nts[0]}')
        nts[0] += 1
    def xstamp(i):
        A(f's_memrealtime s[94:95]\ns_waitcnt lgkmcnt(0)\nv_writelane_b32 {vTS}, s94, {i}')
    def set_exec(lo, hi=None):
        hi = lo if hi is None else hi
        A(f's_mov_b32 exec_lo, {lo:#x}\ns_mov_b32 exec_hi, {hi:#x}')
    def full_exec(): A('s_mov_b64 exec, -1')
    tails = []
    def lstore(fmt, tag='st', nxt=None):
        a, b = lab('wt'), lab('sd')
        for f_ in fmt.split('\n'): A(';;need2 ' + f_)
        A(f's_cmp_eq_u32 {sFAST}, 1\ns_cbranch_scc0 {a}')
        A(fmt); A(f'{b}:')
        tails.append(f'{a}:\n' + '\n'.join(f_ + ' sc1' for f_ in fmt.split('\n')) + f'\ns_branch {b}')
        A.vm.append(tag)
    class lowwaves:
        def __enter__(s):
            s.l = lab('hi'); A(f's_cmp_ge_u32 {sW}, 4\ns_cbranch_scc1 {s.l}')
        def __exit__(s, *a): A(f'{s.l}:')
    def sel(dst, a, b):
        A(f'v_cndmask_b32 {dst}, {a}, {b}, vcc')

    A(f'; @launch grid=(256,1,1) block=(512,1,1) lds={LDS_BYTES}')
    A('.amdgcn_target "amdgcn-amd-amdhsa--gfx950"')
    A(f'.text\n.globl {NAME}_kernel\n.p2align 8\n.type {NAME}_kernel,@function\n{NAME}_kernel:')
    A('s_cmp_ge_u32 s2, 256\ns_cbranch_scc1 L_end')
    A('s_load_dwordx16 s[64:79], s[0:1], 0\ns_load_dwordx8 s[80:87], s[0:1], 64')
    A(f'v_lshlrev_b32 {vT4}, 2, v0')
    if pf_code:
        A(f's_getpc_b64 s[94:95]\nL_pc:\ns_lshr_b32 {t0}, s2, 3\ns_and_b32 {t0}, {t0}, 1\ns_lshl_b32 {t0}, {t0}, 13\nv_lshlrev_b32 {vTMP}, 2, {vT4}\nv_add_u32 {vTMP}, {t0}, {vTMP}')
        A(f'v_min_u32 {vTMP}, L_end-L_pc-16, {vTMP}')
        A.vmop(f'global_load_dwordx4 v[96:99], {vTMP}, s[94:95]', 'pf')
    A(f'v_lshrrev_b32 {vTMP}, 6, v0')
    A(f'v_and_b32 {vL}, 63, v0')
    A(f'v_readfirstlane_b32 {sW}, {vTMP}')
    A(f's_and_b32 {sG}, s2, 7\ns_lshr_b32 {sC}, s2, 3\ns_lshr_b32 {sHI}, {sC}, 3\ns_and_b32 {sLO}, {sC}, 7')
    A(f'v_and_b32 v120, 15, {vL}\nv_lshrrev_b32 v121, 4, {vL}')
    A(f'v_lshlrev_b32 {vTMP}, 2, v121\nv_xor_b32 {vTMP}, v120, {vTMP}\nv_lshlrev_b32 {vTMP}, 4, {vTMP}\nv_lshl_add_u32 v116, v121, 8, {vTMP}\nv_lshl_add_u32 v124, v121, 13, {vTMP}')
    A(f'v_and_b32 v122, 3, {vL}\nv_lshrrev_b32 v123, 2, v120')
    A(f's_lshr_b32 {t0}, {sW}, 1\ns_lshl_b32 {t0}, {t0}, 10\ns_and_b32 {t1}, {sW}, 1\ns_lshl_b32 {t1}, {t1}, 6\ns_add_u32 {t0}, {t0}, {t1}\ns_lshl_b32 {t1}, {sLO}, 7\ns_add_u32 {t0}, {t0}, {t1}')
    A(f'v_lshlrev_b32 v117, 4, v122\nv_lshl_add_u32 v117, v121, 2, v117\nv_add_u32 {vXO}, {t0}, v117')
    A(f's_lshl_b32 {t0}, {sHI}, 3\ns_add_u32 {t0}, {t0}, {sG}\ns_lshl_b32 {sKV}, {t0}, 22\ns_lshl_b32 {t0}, {sLO}, 17\ns_add_u32 {sKV}, {sKV}, {t0}\ns_add_u32 {sKV}, {sKV}, {12288*256}')
    A(f's_add_u32 {t0}, {sG}, {sC}\ns_add_u32 {t0}, {t0}, {sW}\ns_and_b32 {t0}, {t0}, 7\ns_lshl_b32 {t0}, {t0}, 12\ns_add_u32 {sKV}, {sKV}, {t0}')
    A(f's_lshl_b32 {sRING}, {sW}, 13')
    A(f's_and_b32 {g3}, {sW}, 3')
    A(f's_lshl_b32 {t0}, {sG}, 2\ns_add_u32 {t0}, {t0}, {sHI}')
    A(f'v_mov_b32 v118, {OOB}')
    A(f's_mul_i32 s101, {sG}, {GB}')
    A(f's_lshl_b32 {t1}, {sLO}, 6\ns_lshl_b32 {t2}, {sW}, 3\ns_add_u32 {t1}, {t1}, {t2}\ns_lshl_b32 {t1}, {t1}, 13\ns_lshl_b32 {t2}, {sG}, 10\ns_add_u32 {t1}, {t1}, {t2}\ns_lshl_b32 {t2}, {sHI}, 8\ns_add_u32 {t1}, {t1}, {t2}')
    A(f's_lshl_b32 {t2}, {sW}, 11\ns_add_u32 m0, {t2}, {L_WQ}')
    if ts:
        A(f'v_mov_b32 {vTS}, 0'); stamp(True)
        A(f's_memtime s[98:99]')
    A('s_waitcnt lgkmcnt(0)')
    def srd(d, lo, n):
        A(f's_mov_b32 s{d}, s{lo}\ns_mov_b32 s{d+1}, s{lo+1}\ns_mov_b32 s{d+2}, {n}\ns_mov_b32 s{d+3}, 0x20000')
    srd(20, 70, 4194304)
    A.vmop(f'buffer_load_dwordx4 v124, {WQ}, {t1} offen nt lds', 'wq')
    A(f's_add_u32 {t1}, {t1}, 32768\ns_add_u32 m0, m0, 1024')
    srd(40, 64, 4096)
    A.vmop(f'buffer_load_dwordx4 v124, {WQ}, {t1} offen nt lds', 'wq')
    srd(8, 86, WS_REC)
    if wsoff: A(f's_add_u32 s8, s8, {wsoff}\ns_addc_u32 s9, s9, 0')
    A.vmop(f'buffer_load_dword v68, {vXO}, {XX}, 0 offen', 'x0')
    A(f's_lshr_b32 {t2}, {sW}, 1\ns_lshl_b32 {t2}, {t2}, 10\nv_lshlrev_b32 {vTMP}, 4, {vL}')
    A.vmop(f'buffer_load_dwordx4 v[72:75], {vTMP}, {XX}, {t2} offen', 'x0')
    A(f's_mov_b32 {t2}, {EPOCH}')
    A.vmop(f'buffer_load_dword v69, off, {WS}, {t2} sc1', 'ep')
    srd(12, 66, 0x8000000)
    def piece(p):
        t, q = (p % 16) // 4, p % 4
        if q == 0:
            A(f's_add_u32 {g1}, {sKV}, {t*32768}\ns_add_u32 m0, {sRING}, {((p//4)&1)*4096}')
        src = 'v116'
        A.vmop(f'buffer_load_dwordx4 {src}, {KK if p < 16 else VV}, {g1} offen offset:{q*1024} nt lds', f'p{p}')
    for p in range(burst): piece(p)
    srd(16, 68, 0x8000000)
    if ts: A('s_mov_b32 s96, s86\ns_mov_b32 s97, s87')

    srd(24, 72, 4194304); srd(44, 82, 4096); srd(48, 84, 256)
    srd(28, 76, 1835008); srd(32, 78, 1835008); srd(36, 80, 1835008)
    A(f's_mul_i32 {t1}, {sG}, 3\ns_add_u32 {t1}, {t1}, 4\ns_lshl_b32 {t2}, {sG}, 2\ns_cmp_ge_u32 {sG}, 4\ns_cselect_b32 {g2}, {t1}, {t2}\ns_add_u32 {g2}, {g2}, {sHI}\ns_min_u32 {g2}, {g2}, 27')
    if tlb:
        A(f's_lshl_b32 {t1}, {t0}, 17')
        A.vmop(f'buffer_load_dword v96, off, {WO}, {t1} nt', 'tlb')
        A(f's_mul_i32 {t1}, {sLO}, {64*3584}')
        A.vmop(f'buffer_load_dword v96, off, {WG}, {t1} nt', 'tlb')
        A.vmop(f'buffer_load_dword v96, off, {WU}, {t1} nt', 'tlb')
        A(f's_lshl_b32 {t1}, {g2}, 16')
        A.vmop(f'buffer_load_dword v96, off, {WD}, {t1} nt', 'tlb')
        A(f'v_lshlrev_b32 {vTMP}, 19, v120')
        A.vmop(f'buffer_load_dword v96, {vTMP}, {WS}, 0 offen nt', 'tlb')
        A.vmop(f'buffer_load_dword v96, off, {VV}, {sKV} nt', 'tlb')
    A(f's_getreg_b32 {t1}, hwreg(HW_REG_XCC_ID)\ns_and_b32 s64, {t1}, 15')
    A(f's_mov_b32 s88, 0x000f000f\ns_mov_b32 s89, 0x000f000f')
    A(f's_mov_b32 {sGBASE}, s101')
    A(f's_lshl_b32 {t1}, {sHI}, 13\ns_add_u32 {t1}, {t1}, {sGBASE}')
    A(f's_add_u32 {sQg}, {t1}, {bQP}\ns_add_u32 {sOg}, {t1}, {bOP}\ns_add_u32 {sGg}, {t1}, {bGP}')
    A(f's_lshl_b32 {t1}, {g3}, 2\ns_add_u32 {t1}, {t1}, {sHI}\ns_lshl_b32 {t1}, {t1}, 6\ns_add_u32 {t1}, {t1}, {sGBASE}\ns_add_u32 {sQSg}, {t1}, {bQS}')
    A(f's_lshl_b32 {sMLst}, {sLO}, 3\ns_add_u32 {sMLst}, {sMLst}, {t1}\ns_add_u32 {sMLst}, {sMLst}, {bML}')
    A(f's_lshl_b32 {t2}, {g3}, 13\ns_lshl_b32 {t1}, {sLO}, 10\ns_add_u32 {t2}, {t2}, {t1}\ns_lshl_b32 {t1}, {sHI}, 8\ns_add_u32 {t2}, {t2}, {t1}\ns_add_u32 {t2}, {t2}, {sGBASE}\ns_add_u32 {sOPst}, {t2}, {bOP}')
    A(f's_lshl_b32 {t1}, {sHI}, 2\ns_add_u32 {t1}, {t1}, {g3}\ns_lshl_b32 {t1}, {t1}, 6\ns_add_u32 {t1}, {t1}, {sGBASE}\ns_add_u32 {sMLg}, {t1}, {bML}\ns_add_u32 {sGSg}, {t1}, {bGS}')
    A(f's_lshl_b32 {t1}, {sLO}, 14\ns_add_u32 {sXg}, {t1}, {oXA}')
    A(f's_lshl_b32 {t1}, {t0}, 9\ns_add_u32 {sXst}, {sXg}, {t1}')
    A(f's_lshl_b32 {t1}, {sHI}, 11\ns_add_u32 {t1}, {t1}, {sGBASE}\ns_add_u32 {sGCg}, {t1}, {bGC}')
    A(f's_lshl_b32 {t3}, {sHI}, 8\ns_lshl_b32 {t1}, {sLO}, 3\ns_add_u32 {t3}, {t3}, {t1}\ns_add_u32 {t3}, {t3}, {sGBASE}\ns_add_u32 {sQSst}, {t3}, {bQS}\ns_add_u32 {sGSst}, {t3}, {bGS}')
    A(f's_lshl_b32 s101, {t0}, 14\ns_add_u32 s101, s101, {TQP}')
    A(f's_lshl_b32 {t1}, {sLO}, 10\ns_lshl_b32 {t2}, {sHI}, 8\ns_add_u32 {t1}, {t1}, {t2}\ns_lshl_b32 {t2}, {g3}, 6\ns_add_u32 {t3}, {t1}, {t2}')
    A(f's_add_u32 {t1}, {sGBASE}, {t3}\ns_mov_b32 {t2}, {OOB}')
    A(f's_cmp_ge_u32 {sW}, 4\ns_cselect_b32 {g0}, 0, 5')
    def st_off(dst, shift):
        A(f'v_lshlrev_b32 {vTMP}, {shift}, v120\nv_add_u32 {vTMP}, {t1}, {vTMP}\nv_mov_b32 {vTMP2}, {t2}\nv_cmp_eq_u32 vcc, 4, v120'); sel(vTMP, vTMP, vTMP2)
        A(f'v_lshl_add_u32 {vTMP}, v121, 4, {vTMP}\nv_cmp_gt_u32 vcc, {g0}, v120'); sel(dst, 'v118', vTMP)
    st_off(vQst, 13)
    A(f's_lshl_b32 {t3}, {t3}, 1\ns_lshl_b32 {t1}, {g3}, 6\ns_sub_u32 {t3}, {t3}, {t1}\ns_lshl_b32 {t1}, {sG}, 16\ns_add_u32 {t1}, {t1}, {t3}\ns_add_u32 {t1}, {t1}, {TQP}\ns_lshl_b32 {t2}, {sG}, 14\ns_add_u32 {t2}, {t2}, {t3}\ns_add_u32 {t2}, {t2}, {TQC}')
    st_off('v109', 14)
    A(f'v_lshlrev_b32 {vTMP}, 6, v122\nv_add_u32 {vTMP2}, 4, {vTMP}\nv_cmp_gt_u32 vcc, 16, {vL}'); sel(vTMP, vTMP, vTMP2)
    A(f'v_and_b32 {vTMP2}, {0x1ec*4}, {vT4}\nv_cmp_eq_u32 vcc, {256*4}, {vTMP2}'); sel(vSSt, 'v118', vTMP)
    A(f'v_lshlrev_b32 v115, 2, {vT4}')
    A(f's_add_u32 {t1}, {sXst}, {oXB - oXA - 4096}\nv_add_u32 {vTMP}, {t1}, v115\nv_and_b32 {vTMP2}, 0x1e00, v115\nv_cmp_eq_u32 vcc, 4096, {vTMP2}'); sel('v108', 'v118', vTMP)
    A(f's_mul_i32 {t1}, {sC}, 2112\ns_add_u32 {t1}, {t1}, {sGBASE}\ns_add_u32 {t1}, {t1}, {LS - 5120}\nv_add_u32 {vTMP}, {t1}, v115\nv_subrev_u32 {vTMP2}, 5120, v115\nv_cmp_gt_u32 vcc, 2112, {vTMP2}'); sel('v108', 'v108', vTMP)
    A(f's_lshl_b32 {t3}, {g3}, 6\ns_lshl_b32 {t1}, {t0}, 14\ns_lshl_b32 {t2}, {sLO}, 11\ns_add_u32 {t1}, {t1}, {t2}\ns_add_u32 {t1}, {t1}, {t3}\ns_add_u32 {t1}, {t1}, {TGP}')
    A(f's_lshl_b32 {t2}, {t0}, 3\ns_add_u32 {t2}, {t2}, {sLO}\ns_lshl_b32 {t2}, {t2}, 9\ns_add_u32 {t2}, {t2}, {t3}\ns_add_u32 {t2}, {t2}, {TGC}')
    st_off('v114', 9)
    A(f's_lshl_b32 {t1}, {sG}, 2\ns_add_u32 {t1}, {t1}, {g3}\ns_lshl_b32 {t1}, {t1}, 14\ns_lshl_b32 {t2}, {sLO}, 11\ns_add_u32 {t1}, {t1}, {t2}\ns_lshl_b32 {t2}, {sHI}, 9\ns_add_u32 {t1}, {t1}, {t2}\ns_add_u32 {t1}, {t1}, {TOP}')
    A(f'v_and_b32 {vTMP}, 2, {vL}\nv_lshlrev_b32 {vTMP}, 7, {vTMP}\nv_lshrrev_b32 {vTMP2}, 2, {vL}\nv_lshl_add_u32 {vTMP}, {vTMP2}, 4, {vTMP}\nv_add_u32 {vTMP}, {t1}, {vTMP}\nv_and_b32 {vTMP2}, 1, {vL}\nv_cmp_eq_u32 vcc, 0, {vTMP2}'); sel('v110', 'v118', vTMP)
    A(f's_lshl_b32 {t1}, {sLO}, 15\ns_lshl_b32 {t2}, {t0}, 10\ns_add_u32 {t1}, {t1}, {t2}\ns_lshr_b32 {t2}, {g3}, 1\ns_lshl_b32 {t2}, {t2}, 7\ns_add_u32 {t1}, {t1}, {t2}\ns_and_b32 {t2}, {g3}, 1\ns_lshl_b32 {t2}, {t2}, 5\ns_add_u32 {t1}, {t1}, {t2}\ns_add_u32 {t1}, {t1}, {TXA}')
    A(f'v_and_b32 {vTMP}, 1, v121\nv_lshlrev_b32 {vTMP}, 6, {vTMP}\nv_lshrrev_b32 {vTMP2}, 1, v121\nv_lshl_add_u32 {vTMP}, {vTMP2}, 4, {vTMP}\nv_lshl_add_u32 {vTMP}, v120, 8, {vTMP}\nv_add_u32 {vTMP}, {t1}, {vTMP}\nv_cmp_gt_u32 vcc, 4, v120'); sel('v47', 'v118', vTMP)
    A(f's_mov_b32 {sLAY}, 0\ns_mov_b32 {sTO}, 400000\ns_mov_b32 {sFAST}, 0\ns_mov_b32 {sCNT}, 0\ns_mov_b32 {sGOK}, 0\ns_mov_b32 {sLIDX}, 0')
    A(f's_lshl_b32 {t3}, {g3}, 6\ns_lshl_b32 {t1}, {sLO}, 10\ns_add_u32 {t1}, {t1}, {sGg}\ns_add_u32 {t1}, {t1}, {t3}\ns_mov_b32 {t2}, {OOB}')
    st_off(vGst, 8)
    A(f'v_and_b32 {vTMP}, 7, {vL}\nv_lshlrev_b32 {vSt8}, 3, {vTMP}\nv_lshlrev_b32 {vL4}, 2, {vL}\nv_lshlrev_b32 {vML2}, 3, v121')
    A(f'v_cmp_eq_u32 vcc, 0, {vL}'); sel(vMLst, 'v118', '0')
    A(f's_lshl_b32 {t1}, {g3}, 8\nv_lshlrev_b32 {vTMP}, 4, v120\nv_lshl_add_u32 {vG1}, v121, 10, {vTMP}\nv_add_u32 {vG1}, {t1}, {vG1}')
    A(f's_lshl_b32 {t1}, {sW}, 6\nv_lshlrev_b32 {vXg}, 11, v123\nv_lshl_add_u32 {vXg}, v121, 9, {vXg}\nv_lshl_add_u32 {vXg}, v122, 4, {vXg}\nv_add_u32 {vXg}, {t1}, {vXg}')
    A(f's_lshr_b32 {t1}, {sW}, 1\ns_mul_i32 {t1}, {t1}, 192\ns_and_b32 {t2}, {sW}, 1\ns_lshl_b32 {t2}, {t2}, 6\ns_add_u32 {t1}, {t1}, {t2}\ns_add_u32 {t1}, {t1}, {L_XS}\nv_add_u32 {vXW}, {t1}, v117')
    A(f's_mul_i32 {t1}, {g3}, 320\ns_add_u32 {t1}, {t1}, {L_QS}\nv_lshl_add_u32 {vQW}, v121, 2, {vTMP}\nv_add_u32 {vQW}, {t1}, {vQW}')
    A(f's_mul_i32 {t1}, {g3}, 192\ns_add_u32 {t1}, {t1}, {L_HS}\nv_lshlrev_b32 {vHW}, 3, v120\nv_lshl_add_u32 {vHW}, v121, 1, {vHW}\nv_add_u32 {vHW}, {t1}, {vHW}')
    A(f'v_mul_u32_u24 {vBR320}, 320, v122\nv_lshl_add_u32 {vBR320}, v121, 4, {vBR320}\nv_add_u32 {vBR320}, {L_QS}, {vBR320}')
    A(f'v_mul_u32_u24 {vBR192}, 192, v122\nv_lshl_add_u32 {vBR192}, v121, 4, {vBR192}\nv_add_u32 {vBR192}, {L_HS}, {vBR192}')
    A(f'v_min_u32 {vTMP2}, 4, v120\nv_mul_u32_u24 {vXR}, 192, {vTMP2}\nv_lshl_add_u32 {vXR}, v121, 4, {vXR}\nv_add_u32 {vXR}, {L_XS}, {vXR}')
    A(f's_lshl_b32 {t1}, {g3}, 5\nv_lshlrev_b32 {vTMP2}, 7, v120\nv_lshl_add_u32 {vTMP2}, v121, 3, {vTMP2}\nv_add_u32 {vTMP2}, {t1}, {vTMP2}\nv_cmp_gt_u32 vcc, 4, v120'); sel(vXst, 'v118', vTMP2)
    A(f'v_lshlrev_b32 {vTMP2}, 4, {vL}\nv_add_u32 {vROW}, {sRING}, {vTMP2}')
    A(f's_lshr_b32 {t1}, {g3}, 1\ns_lshl_b32 {t1}, {t1}, 10\ns_and_b32 {t2}, {g3}, 1\ns_lshl_b32 {t2}, {t2}, 3\ns_add_u32 {t1}, {t1}, {t2}\nv_add_u32 {vROR}, {t1}, {vTMP2}')
    A(f's_lshl_b32 {t1}, {sW}, 3\ns_add_u32 {t1}, {t1}, {L_RM}\nv_lshlrev_b32 {vRMW}, 6, v122\nv_add_u32 {vRMW}, {t1}, {vRMW}')
    A(f's_lshl_b32 {t1}, {g3}, 6\ns_add_u32 {t1}, {t1}, {L_RM}\nv_add_u32 {vRMR}, {t1}, {vSt8}')
    A(f'v_lshl_add_u32 v125, v121, 3, v123')
    A(f'v_xor_b32 {vTMP}, {g3}, v123\nv_lshlrev_b32 {vTMP}, 6, {vTMP}\nv_lshl_add_u32 {vTMP}, v122, 4, {vTMP}\nv_lshl_add_u32 {vWQr}, v125, 8, {vTMP}\nv_add_u32 {vWQr}, {L_WQ}, {vWQr}')
    A(f'v_lshrrev_b32 v119, 1, v123\nv_and_b32 v127, 1, v121\nv_lshlrev_b32 {vTMP}, 1, v127')
    A(f'v_xor_b32 {vTMP}, {g3}, {vTMP}\nv_lshlrev_b32 {vTMP}, 5, {vTMP}\nv_lshl_add_u32 {vTMP}, v122, 3, {vTMP}\nv_lshl_add_u32 {vWr}, v125, 7, {vTMP}\nv_add_u32 {vWr}, {L_WG}, {vWr}')
    A(f'v_and_b32 v126, 1, v123\nv_lshlrev_b32 {vTMP}, 1, v126\nv_xor_b32 {vTMP}, {g3}, {vTMP}\nv_lshlrev_b32 {vTMP}, 5, {vTMP}\nv_lshl_add_u32 {vTMP}, v122, 3, {vTMP}')
    A(f'v_lshl_add_u32 {vTMP2}, v121, 2, v119\nv_lshl_add_u32 {vTMP2}, v126, 6, {vTMP2}\nv_lshl_add_u32 {vWOr}, {vTMP2}, 7, {vTMP}\nv_add_u32 {vWOr}, {L_WO}, {vWOr}')
    A(f'v_and_b32 v125, 1, v120\nv_mov_b32 {vTMP}, 0xffff\nv_mov_b32 {vTMP2}, 0xffff0000\nv_cmp_eq_u32 vcc, 1, v125'); sel('v119', vTMP, vTMP2)
    A(f'v_cmp_gt_u32 vcc, 2, v122'); sel('v119', '0', 'v119')
    for i in range(4):
        A(f'v_cmp_eq_u32 vcc, {i}, v123'); sel(f'v{MASK+i}', '0', 'v119'); A(f'v_and_b32 v{32+i}, 0x3f803f80, v{MASK+i}')
    A(f'v_mov_b32 {vTMP}, 0x3f80\nv_mov_b32 {vTMP2}, 0x3f800000\nv_cmp_eq_u32 vcc, 1, v126'); sel('v119', vTMP, vTMP2)
    A(f'v_cmp_gt_u32 vcc, 2, v122'); sel('v119', '0', 'v119')
    A(f'v_lshrrev_b32 {vTMP}, 1, v123\nv_lshl_add_u32 {vTMP}, v125, 1, {vTMP}')
    for i in range(4):
        A(f'v_cmp_eq_u32 vcc, {i}, {vTMP}'); sel(f'v{40+i}', '0', 'v119')
    A('v_mov_b32 v44, 0x3f803f80\nv_mov_b32 v45, 0x3f803f80')
    A(f'v_and_b32 {vTMP2}, 7, {vL}\nv_lshrrev_b32 v119, 3, {vL}')
    A(f's_lshr_b32 {t1}, {sW}, 2\ns_lshl_b32 {t1}, {t1}, 2\nv_xor_b32 {vTMP}, {t1}, {vTMP2}\nv_lshlrev_b32 {vTMP}, 4, {vTMP}\nv_lshl_add_u32 v124, v119, 10, {vTMP}')
    A(f's_and_b32 {t1}, {sW}, 1\ns_lshl_b32 {t1}, {t1}, 2\nv_xor_b32 {vTMP}, {t1}, {vTMP2}\nv_lshlrev_b32 {vTMP}, 4, {vTMP}')
    A(f'v_lshl_add_u32 v127, v119, 10, {vTMP}\nv_mul_u32_u24 v126, 3584, v119\nv_add_u32 v126, v126, {vTMP}')
    A(f's_cmp_ge_u32 {sG}, 4\ns_cselect_b32 {t2}, 3, 4\ns_cmp_lt_u32 {sHI}, {t2}\ns_cselect_b32 {t2}, 0, {OOB}\nv_add_u32 v126, {t2}, v126\nv_add_u32 v127, {t2}, v127')
    A(f'v_lshlrev_b32 {vTMP}, 1, v123\nv_xor_b32 {vTMP}, v121, {vTMP}\nv_lshlrev_b32 {vTMP}, 5, {vTMP}\nv_lshl_add_u32 {vTMP}, v122, 3, {vTMP}\nv_lshl_add_u32 {vTMP}, v123, 8, {vTMP}\nv_add_u32 v122, {sRING}, {vTMP}\nv_xor_b32 v123, 128, v122')
    A(f'v_and_b32 {vTMP}, 3, v120\nv_lshlrev_b32 {vTMP}, 6, {vTMP}\nv_lshl_add_u32 {vTMP}, v121, 4, {vTMP}\nv_lshl_add_u32 {vTMP}, v120, 8, {vTMP}\nv_add_u32 v118, {sRING}, {vTMP}')
    for j in range(1, 4): A(f'v_xor_b32 v{118+j}, {64*j}, v118')
    A(f'v_and_b32 {vTMP}, 124, {vL4}\nv_add_u32 {vTMP}, {L_XS+4*192}, {vTMP}\nds_write_b32 {vTMP}, v44')

    def read_k(i):
        for j in range(4): A(f'ds_read_b128 a[{16*i+4*j}:{16*i+4*j+3}], v{118+j} offset:{(i&1)*4096}')
    def read_v(p):
        i = p - 16
        for hf in range(2):
            r = 64 + 4 * i + 2 * hf
            A(f'ds_read_b64_tr_b16 a[{r}:{r+1}], v{122+hf} offset:{((p//4)&1)*4096 + (p%4)*1024}')
    if not late47:
        for p in range(burst, 8): piece(p)
    if diag: xstamp(40)
    A.wait_vm('ep')
    if diag: xstamp(41)
    A(f'v_and_b32 v113, 0xffff0000, v68\nv_lshlrev_b32 v112, 16, v68')
    A(f'v_readfirstlane_b32 {sTAG}, v69\ns_add_u32 {sTAG}, {sTAG}, 1')
    A('v_dot2_f32_bf16 v78, v72, v44, 0\nv_dot2_f32_bf16 v79, v72, v72, 0')
    for k in range(73, 76): A(f'v_dot2_f32_bf16 v78, v{k}, v44, v78\nv_dot2_f32_bf16 v79, v{k}, v{k}, v79')
    for m in ('quad_perm:[1,0,3,2]', 'quad_perm:[2,3,0,1]', 'row_half_mirror', 'row_mirror'):
        A(f'v_add_f32_dpp v78, v78, v78 {m} {DPP}\nv_add_f32_dpp v79, v79, v79 {m} {DPP}')
    for sw in ('v_permlane16_swap_b32', 'v_permlane32_swap_b32'):
        A(f'v_mov_b32 v76, v78\nv_mov_b32 v77, v79\n{sw} v78, v76\n{sw} v79, v77\nv_add_f32 v78, v78, v76\nv_add_f32 v79, v79, v77')
    c2 = QSCALE * QSCALE
    A(f'v_mov_b32 v75, {f32(1e-5/c2)}\nv_mul_f32 v74, v78, v78\nv_fmac_f32 v75, {f32(1/(512*c2))}, v79\nv_fmac_f32 v75, {f32(-1/(512*512*c2))}, v74\nv_max_f32 v75, {f32(1e-5/c2)}, v75\nv_rsq_f32 v74, v75')
    A(f'v_mul_f32 v78, {f32(-1/512)}, v78\nv_add_f32 v72, v112, v78\nv_add_f32 v73, v113, v78\nv_mul_f32 v72, v72, v74\nv_mul_f32 v73, v73, v74\nv_cvt_pk_bf16_f32 v72, v72, v73\nds_write_b32 {vXW}, v72')
    if late47:
        for p in range(burst, 8): piece(p)
    if diag: xstamp(42)
    A.wait_vm('wq')
    if diag: xstamp(43)
    if bar_after_k0:
        A.wait_vm('p3')
        read_k(0)
        A('s_waitcnt lgkmcnt(0)')
        for p in range(8, 12): piece(p)
    A('s_waitcnt lgkmcnt(0)')
    if 'B' not in abl: A('s_barrier')
    stamp()

    def read_wq():
        for tl in range(2):
            for j in range(2):
                for u in range(2):
                    r = 48 + 8 * tl + 4 * j + 2 * u
                    A(f'ds_read_b64_tr_b16 v[{r}:{r+1}], {vWQr} offset:{8*tl+8192*j+1024*u}')
    def read_gu():
        for tl in range(2):
            for j in range(2):
                for u in range(2):
                    r = 48 + 8 * tl + 4 * j + 2 * u
                    A(f'ds_read_b64_tr_b16 v[{r}:{r+1}], {vWr} offset:{8192*tl+4096*j+512*u}')
    def read_wd():
        for j in range(2):
            for u in range(2):
                A(f'ds_read_b64_tr_b16 v[{48+4*j+2*u}:{49+4*j+2*u}], {vWr} offset:{16384+4096*j+512*u}')
    def read_wo():
        for j in range(4):
            for u in range(2):
                A(f'ds_read_b64_tr_b16 v[{48+4*j+2*u}:{49+4*j+2*u}], {vWOr} offset:{2048*j+256*u}')
    def matvec(vst, mode, late_w=None):
        A(f'ds_read_b128 v[80:83], {vXR}\nds_read_b128 v[84:87], {vXR} offset:64')
        if late_w: late_w()
        A('s_waitcnt lgkmcnt(0)' if late_w else 's_waitcnt lgkmcnt(1)')
        A(f'{M16} v[96:99], v[48:51], v[80:83], 0\n{M16} v[104:107], v[56:59], v[80:83], 0')
        if not late_w: A('s_waitcnt lgkmcnt(0)')
        A(f'{M16} v[96:99], v[52:55], v[84:87], v[96:99]\n{M16} v[104:107], v[60:63], v[84:87], v[104:107]')
        if mode == 'plain':
            A('v_cvt_pk_bf16_f32 v96, v96, v97\nv_cvt_pk_bf16_f32 v97, v98, v99\nv_cvt_pk_bf16_f32 v98, v104, v105\nv_cvt_pk_bf16_f32 v99, v106, v107')
            lstore(f'buffer_store_dwordx4 v[96:99], {vst}, {WS}, {sLAY} offen')
            return
        A(f'v_mov_b32 v102, {sTAG}\nv_mov_b32 v103, s64')
        A(f'v_cvt_pk_bf16_f32 v100, v96, v97\nv_cvt_pk_bf16_f32 v101, v98, v99\nv_cvt_pk_bf16_f32 v104, v104, v105\nv_cvt_pk_bf16_f32 v105, v106, v107')
        A(f'v_mov_b32 v106, {sTAG}\nv_mov_b32 v107, s64')
        if mode == 'q0':
            A.vmop(f'buffer_store_dwordx4 v[100:103], {vst}, {WS}, 0 offen', 'st')
            A.vmop(f'buffer_store_dwordx4 v[104:107], {vst}, {WS}, 0 offen offset:256', 'st')
        else:
            lstore(f'buffer_store_dwordx4 v[100:103], {vst}, {WS}, 0 offen\nbuffer_store_dwordx4 v[104:107], {vst}, {WS}, 0 offen offset:256')
    def slice_stats(sst, maybe_tagged=False):
        l = lab('st')
        A(f's_cmp_lg_u32 {sW}, 4\ns_cbranch_scc1 {l}')
        A(f'ds_read_b128 v[80:83], {vXR}\nds_read_b128 v[84:87], {vXR} offset:64\ns_waitcnt lgkmcnt(1)')
        A(f'{M16} v[104:107], v[80:83], v[80:83], 0\ns_waitcnt lgkmcnt(0)\n{M16} v[104:107], v[84:87], v[84:87], v[104:107]')
        for k in (1, 2, 3):
            A(f's_mov_b64 exec, {1<<k}\nv_mov_b32 v104, v{104+k}')
        full_exec()
        if maybe_tagged:
            tg_ = lab('tg')
            A(f's_cmp_eq_u32 {sLIDX}, 0\ns_cbranch_scc1 {tg_}')
            keepL, A.L = A.L, []
            A(f'{tg_}:\ns_lshl_b32 {t1}, {sG}, 2\ns_add_u32 {t1}, {t1}, {sHI}\ns_lshl_b32 {t1}, {t1}, 5\ns_add_u32 {t1}, {t1}, {sLO}\ns_lshl_b32 {t1}, {t1}, 4\ns_add_u32 {t1}, {t1}, {TGS}')
            A(f'v_mov_b32 v105, {sTAG}\nv_lshlrev_b32 {vTMP}, 1, {vSSt}\nv_min_u32 {vTMP}, {OOB}, {vTMP}')
            lstore(f'buffer_store_dwordx2 v[104:105], {vTMP}, {WS}, {t1} offen'); A.vm.pop()
            A(f's_branch {l}')
            tails.append('\n'.join(A.L)); A.L = keepL
        lstore(f'buffer_store_dword v104, {vSSt}, {WS}, {sst} offen')
        A.vm.pop()
        A(f'{l}:')

    def issue_g1(dst, voff, sbase, tag, step=4096):
        A.vmop(f'buffer_load_dwordx4 v[{dst}:{dst+3}], {voff}, {WS}, {sbase} offen sc1', tag)
        if step >= 4096:
            A(f's_add_u32 {t1}, {sbase}, {step}')
            A.vmop(f'buffer_load_dwordx4 v[{dst+4}:{dst+7}], {voff}, {WS}, {t1} offen sc1', tag)
        else:
            A.vmop(f'buffer_load_dwordx4 v[{dst+4}:{dst+7}], {voff}, {WS}, {sbase} offen offset:{step} sc1', tag)
    def check_empty(regs):
        regs = list(regs)
        A(f'v_max3_u32 {vTMP}, v{regs[0]}, v{regs[1]}, v{regs[2]}'); rest = regs[3:]
        if len(rest) >= 5:
            A(f'v_max3_u32 {vTMP2}, v{rest[0]}, v{rest[1]}, v{rest[2]}'); rest = rest[3:]
            tg = 0
            while len(rest) >= 2:
                d = (vTMP, vTMP2)[tg]; A(f'v_max3_u32 {d}, {d}, v{rest[0]}, v{rest[1]}'); rest = rest[2:]; tg ^= 1
            if rest: A(f'v_max3_u32 {vTMP}, {vTMP}, {vTMP2}, v{rest[0]}')
            else: A(f'v_max_u32 {vTMP}, {vTMP}, {vTMP2}')
        else:
            while len(rest) >= 2:
                A(f'v_max3_u32 {vTMP}, {vTMP}, v{rest[0]}, v{rest[1]}'); rest = rest[2:]
            if rest: A(f'v_max_u32 {vTMP}, {vTMP}, v{rest[0]}')
        A(f'v_cmp_eq_u32 vcc, -1, {vTMP}')
    def poll(issue, regs, spec=None):
        r, d = lab('retry'), lab('got')
        A(f'{r}:')
        issue()
        A.wait_vm()
        if spec: spec()
        check_empty(regs)
        tl = lab('again')
        A(f's_cbranch_vccnz {tl}\n{d}:')
        tails.append(f'{tl}:\n' + (f's_sleep {backoff}\n' if backoff else '') + f's_sub_u32 {sTO}, {sTO}, 1\ns_cbranch_scc0 {r}\ns_mov_b32 {sTO}, 0\ns_branch {d}')
    def issue_q(first):
        if not first:
            issue_g1(64, vG1, sQg, 'q')
            A.vmop(f'buffer_load_dwordx2 v[72:73], {vSt8}, {WS}, {sQSg} offen sc1', 'q')
            return
        issue_tagged(f's_mov_b32 {t1}, s101')
    def issue_tagged(base, dst=80, voff=None, kstep=8192, hstep=256):
        if voff is None:
            A(f'v_and_b32 {vTMP2}, 0xf0, {vG1}\nv_lshlrev_b32 {vTMP}, 1, {vG1}\nv_sub_u32 {vTMP}, {vTMP}, {vTMP2}')
        else: A(voff)
        A(base + f'\ns_add_u32 {t2}, {t1}, {kstep}')
        for k in range(2):
            for hh in range(2):
                r = dst + 8 * k + 4 * hh
                A.vmop(f'buffer_load_dwordx4 v[{r}:{r+3}], {vTMP}, {WS}, {(t1, t2)[k]} offen offset:{hstep*hh} sc1', 'q')
    def issue_o0():
        issue_tagged(f's_lshl_b32 {t1}, {sG}, 2\ns_add_u32 {t1}, {t1}, {sHI}\ns_lshl_b32 {t0}, {t1}, 2\ns_lshl_b32 {t1}, {t1}, 14\ns_add_u32 {t1}, {t1}, {TOP}', o0dst[0])
        A(f's_add_u32 {t0}, {t0}, {sW}\ns_lshl_b32 {t0}, {t0}, 7\ns_add_u32 {t0}, {t0}, {TML}\nv_lshlrev_b32 {vTMP2}, 1, {vML2}')
        m_ = 64 if o0dst[0] == 80 else 48
        A.vmop(f'buffer_load_dwordx4 v[{m_}:{m_+3}], {vTMP2}, {WS}, {t0} offen sc1', 'q')
        A.vmop(f'buffer_load_dwordx4 v[{m_+4}:{m_+7}], {vTMP2}, {WS}, {t0} offen offset:64 sc1', 'q')
    o0dst = [80]
    def check_words(words, sval):
        w = list(words)
        A(f'v_xor_b32 {vTMP}, {sval}, v{w[0]}')
        for x in w[1:]: A(f'v_xor_b32 {vTMP2}, {sval}, v{x}\nv_or_b32 {vTMP}, {vTMP}, {vTMP2}')
        A(f'v_cmp_ne_u32 vcc, 0, {vTMP}')
    def check_tags(words=(82, 86, 90, 94)): check_words(words, sTAG)
    def tagged_sum(selbase=32, src=80, acc=96, selk=0):
        for n_, (k, hh) in enumerate(((0, 0), (0, 1), (1, 0), (1, 1))):
            r = src + 8 * k + 4 * hh; sb = selbase + selk * k + 2 * hh
            c = '0' if n_ == 0 else f'v[{acc}:{acc+3}]'
            A(f'v_mfma_f32_16x16x16_bf16 v[{acc}:{acc+3}], v[{sb}:{sb+1}], v[{r}:{r+1}], {c}')
    def q0_finish():
        tagged_sum()
        check_words((83, 87, 91, 95), 's64')
        A(f's_cmp_eq_u64 vcc, 0\ns_cselect_b32 {sGOK}, 1, 2')
        A(f'v_cvt_pk_bf16_f32 v96, v96, v97\nds_write_b32 {vQW}, v96')
    def tagged_poll(issue, words=(82, 86, 90, 94), spec=None):
        rq, gq = lab('rq'), lab('gq')
        A(f'{rq}:')
        issue(); A.wait_vm()
        if spec: spec()
        check_tags(words)
        A(f's_cbranch_vccz {gq}\ns_sub_u32 {sTO}, {sTO}, 1\ns_cbranch_scc0 {rq}\ns_mov_b32 {sTO}, 0\n{gq}:')
    def fetch_csq():
        tagged_poll(lambda: issue_tagged(f's_lshl_b32 {t1}, {sG}, 14\ns_add_u32 {t1}, {t1}, {TQC}'))
        tagged_sum()
        A(f's_mov_b32 {t2}, {f32(1/512)}\nv_pk_mul_f32 {CSQ}, v[96:97], s[56:57] op_sel_hi:[1,0]')
    QREGS = list(range(64, 74)); QREGS1 = QREGS + list(range(80, 88))
    def ln_spec(selop, first):
        def f():
            A(f'{M16} v[96:99], {selop}, v[64:67], 0\n{M16} v[96:99], {selop}, v[68:71], v[96:99]')
            if first:
                A(f'{M16} v[100:103], {selop}, v[80:83], 0\n{M16} v[100:103], {selop}, v[84:87], v[100:103]')
            A(f'v_add_f32_dpp v78, v72, v72 quad_perm:[1,0,3,2] {DPP}\nv_add_f32_dpp v79, v73, v73 quad_perm:[1,0,3,2] {DPP}')
        return f
    def ln_finish(cs, scale, first):
        for m in ('quad_perm:[2,3,0,1]', 'row_half_mirror'):
            A(f'v_add_f32_dpp v78, v78, v78 {m} {DPP}\nv_add_f32_dpp v79, v79, v79 {m} {DPP}')
            if m.startswith('quad'): A(f'v_mov_b32 v75, {f32(1e-5/(scale*scale))}')
        c2 = scale * scale
        A(f'v_mul_f32 v74, v78, v78\nv_fmac_f32 v75, {f32(1/(512*c2))}, v79')
        if first:
            A(f's_mov_b32 {t2}, {f32(1/512)}\nv_pk_mul_f32 {cs}, v[100:101], s[56:57] op_sel_hi:[1,0]')
        A(f'v_fmac_f32 v75, {f32(-1/(512*512*c2))}, v74\nv_max_f32 v75, {f32(1e-5/c2)}, v75\nv_rsq_f32 v74, v75')
        A(f'v_pk_fma_f32 v[96:97], v[78:79], {cs}, v[96:97] op_sel_hi:[0,1,1] neg_lo:[1,0,0] neg_hi:[1,0,0]')
        A(f'v_pk_mul_f32 v[96:97], v[96:97], v[74:75] op_sel_hi:[1,0]')
    def q_finish(first):
        ln_finish(CSQ, QSCALE, first)
        A(f'v_cvt_pk_bf16_f32 v96, v96, v97\nds_write_b32 {vQW}, v96')

    save = list(A.vm)
    with lowwaves():
        read_wq()
        A('s_waitcnt lgkmcnt(0)')
        if 'Q' not in abl: matvec('v109', 'q0')
    stamp()

    def issue_wo():
        A(f's_lshl_b32 {t1}, {sG}, 9\ns_lshl_b32 {t2}, {sHI}, 7\ns_add_u32 {t1}, {t1}, {t2}\ns_lshl_b32 {t2}, {sW}, 4\ns_add_u32 {t1}, {t1}, {t2}\ns_lshl_b32 {t1}, {t1}, 10\ns_lshl_b32 {t2}, {sLO}, 7\ns_add_u32 {t1}, {t1}, {t2}')
        A(f's_lshl_b32 {t2}, {sW}, 11\ns_add_u32 m0, {t2}, {L_WO}')
        A.vmop(f'buffer_load_dwordx4 v124, {WO}, {t1} offen nt lds', 'wo')
        A(f's_add_u32 {t1}, {t1}, 8192\ns_add_u32 m0, m0, 1024')
        A.vmop(f'buffer_load_dwordx4 v124, {WO}, {t1} offen nt lds', 'wo')

    def issue_ffn(dw=0, track=False):
        vm_ = (lambda x: A.vmop(x, 'ffn')) if track else A
        A(f's_add_u32 {t0}, {sW}, {dw}')
        A(f's_lshl_b32 {t1}, {sLO}, 6\ns_lshl_b32 {t2}, {t0}, 3\ns_add_u32 {t1}, {t1}, {t2}\ns_mul_i32 {t1}, {t1}, 3584\ns_lshl_b32 {t2}, {g2}, 7\ns_add_u32 {t1}, {t1}, {t2}')
        A(f's_lshl_b32 {t2}, {t0}, 10\ns_add_u32 m0, {t2}, {L_WG}')
        vm_(f'buffer_load_dwordx4 v126, {WG}, {t1} offen nt lds')
        A(f's_add_u32 m0, {t2}, {L_WU}')
        vm_(f'buffer_load_dwordx4 v126, {WU}, {t1} offen nt lds')
        A(f's_lshl_b32 {t1}, {g2}, 6\ns_lshl_b32 {t3}, {t0}, 3\ns_add_u32 {t1}, {t1}, {t3}\ns_lshl_b32 {t1}, {t1}, 10\ns_lshl_b32 {t3}, {sLO}, 7\ns_add_u32 {t1}, {t1}, {t3}\ns_add_u32 m0, {t2}, {L_WD}')
        vm_(f'buffer_load_dwordx4 v127, {WD}, {t1} offen nt lds')
    wait_of = {}
    d = 6
    for p_ in range(12, 32):
        tgt = depth if p_ < deep_from else deep
        need_d = p_ - tgt
        if p_ in (12, 16, 20): need_d = max(need_d, p_ - 5)
        if need_d > d: wait_of[p_] = list(range(d + 1, need_d + 1)); d = need_d
        else: wait_of[p_] = []
    last_read = d
    def step(p):
        for d_ in wait_of[p]:
            A.wait_vm(f'p{d_}')
            if d_ < 16:
                if d_ % 4 == 3: read_k(d_ // 4); A('s_waitcnt lgkmcnt(0)')
            else:
                A('s_waitcnt lgkmcnt(0)')
                read_v(d_)
            if diag and d_ in (7, 11, 15, 19, 23): xstamp(45 + (d_ - 7) // 4)
        if p == ffn_at: issue_ffn(0, True)
        if p == wo_at: issue_wo()
        piece(p)
    hi_l, join_all, flag_l = lab('shi'), lab('sj'), lab('fl')
    def lead_in():
        if not bar_after_k0:
            A.wait_vm('p3')
            if diag: xstamp(44)
            read_k(0); A('s_waitcnt lgkmcnt(0)')
            for pp in range(8, 12): piece(pp)
    lowcode = [True]
    def steps(lo_, hi_):
        for pp in range(lo_, hi_):
            if pp == touch_o and lowcode[0]:
                n_ = len(A.vm); o0dst[0] = 48; issue_o0(); o0dst[0] = 80
                A.vm[n_:] = ['touch'] * (len(A.vm) - n_)
            step(pp)
    A(f's_cmp_ge_u32 {sW}, 4\ns_cbranch_scc1 {hi_l}')
    lead_in()
    p = 12
    while p < 32:
        if p in rides:
            skip, join = lab('noq'), lab('jn')
            saved = list(A.vm)
            A(f's_cmp_lg_u32 {sGOK}, 0\ns_cbranch_scc1 {skip}')
            issue_q(True)
            steps(p, p + 5)
            if 'q' in A.vm: A.wait_vm('q')
            check_tags()
            nq = lab('nq')
            A(f's_cbranch_vccnz {nq}')
            q0_finish()
            A(f'{nq}:\ns_branch {join}\n{skip}:')
            after_q = list(A.vm)
            A.vm = saved
            steps(p, p + 5)
            extra = len(A.vm) - len(after_q)
            assert A.vm[extra:] == after_q, (A.vm, after_q)
            A.vm = after_q if extra <= 0 else A.vm
            A(f'{join}:')
            p += 5
        else:
            steps(p, p + 1); p += 1
    saved = list(A.vm)
    def put_status():
        A(f's_lshl_b32 {t1}, {sW}, 2\ns_add_u32 {t1}, {t1}, {L_ST}\nv_mov_b32 {vTMP}, {t1}\nv_mov_b32 {vTMP2}, {sGOK}\nds_write_b32 {vTMP}, {vTMP2}')
    def get_status():
        A(f'v_mov_b32 {vTMP}, {L_ST}\nds_read_b128 v[72:75], {vTMP}\ns_waitcnt lgkmcnt(0)')
        check_words((72, 73, 74, 75), '1')
        A('s_cmp_eq_u64 vcc, 0')
    put_status()
    A(f's_branch {join_all}\n{hi_l}:')
    A.vm = save; lowcode[0] = False
    lead_in()
    steps(12, 32)
    saved = list(A.vm)
    A(f'{join_all}:')
    stamp()
    A('s_waitcnt lgkmcnt(0)\ns_barrier')
    get_status()
    okq = lab('okq')
    A(f's_cbranch_scc1 {okq}')
    if not abl:
        with lowwaves():
            A(f'buffer_store_dwordx4 v[100:103], v109, {WS}, 0 offen sc1\nbuffer_store_dwordx4 v[104:107], v109, {WS}, 0 offen offset:256 sc1')
            dn = lab('qdone')
            A(f's_cmp_lg_u32 {sGOK}, 0\ns_cbranch_scc1 {dn}')
            tagged_poll(lambda: issue_q(True))
            q0_finish()
            A(f'{dn}:')
        A('s_barrier')
        with lowwaves(): put_status()
        A('s_waitcnt lgkmcnt(0)\ns_barrier')
        get_status()
    A(f'{okq}:\ns_cselect_b32 {sFAST}, 1, 0')
    A.vm = saved
    def scores(bar=True):
        if bar: A('s_waitcnt lgkmcnt(0)\ns_barrier')
        for j in range(4): A(f'ds_read_b128 v[{64+4*j}:{67+4*j}], {vBR320} offset:{64*j}')
        for j in range(4):
            A(f's_waitcnt lgkmcnt({3-j})')
            for t in range(4):
                c = '0' if j == 0 else f'v[{80+4*t}:{83+4*t}]'
                A(f'{M16} v[{80+4*t}:{83+4*t}], a[{16*t+4*j}:{16*t+4*j+3}], v[{64+4*j}:{67+4*j}], {c}')
        for t in range(1, 4):
            for r in range(4):
                A(f'v_mov_b32_dpp v{80+r}, v{80+4*t+r} quad_perm:[0,1,2,3] row_mask:0xf bank_mask:{1<<t:#x}')
        A('v_max3_f32 v84, v80, v81, v82\nv_max_f32 v84, v84, v83')
        A(f'v_max_f32_dpp v84, v84, v84 row_ror:4 {DPP}')
        A(f'v_max_f32_dpp v84, v84, v84 row_ror:8 {DPP}')
        A('v_mov_b32 v85, v84\nv_permlane16_swap_b32 v84, v85\nv_max_f32 v84, v84, v85')
        A('v_mov_b32 v85, v84\nv_permlane32_swap_b32 v84, v85\nv_max_f32 v84, v84, v85')
        A('v_pk_add_f32 v[80:81], v[80:81], v[84:85] op_sel_hi:[1,0] neg_lo:[0,1] neg_hi:[0,1]')
        A('v_pk_add_f32 v[82:83], v[82:83], v[84:85] op_sel_hi:[1,0] neg_lo:[0,1] neg_hi:[0,1]')
        for r in range(4): A(f'v_exp_f32 v{80+r}, v{80+r}')
        A('v_cvt_pk_bf16_f32 v86, v80, v81\nv_cvt_pk_bf16_f32 v87, v82, v83')
        A(f'v_mfma_f32_16x16x16_bf16 v[88:91], {ONES}, v[86:87], 0')
    def pv(i):
        for hf in range(2):
            acc = 96 + 8 * (i & 1) + 4 * hf
            c = '0' if i < 2 else f'v[{acc}:{acc+3}]'
            A(f'v_mfma_f32_4x4x4_16b_bf16 v[{acc}:{acc+3}], v[86:87], a[{64+4*i+2*hf}:{65+4*i+2*hf}], {c} cbsz:4 abid:{4*(i&3)+(i>>2)}')
    def lsum():
        A(f'v_add_f32_dpp v85, v88, v88 row_ror:4 {DPP}')
        A(f'v_add_f32_dpp v85, v85, v85 row_ror:8 {DPP}')
        A(f's_mov_b64 exec, 15\nds_write_b64 {vRMW}, v[84:85]')
        full_exec()
    def combine(tagged=False):
        for h in range(4):
            A(f'v_add_f32 v{64+2*h}, v{96+h}, v{104+h}\nv_add_f32 v{65+2*h}, v{100+h}, v{108+h}')
            if h & 1: A(f'ds_write_b128 {vROW}, v[{62+2*h}:{65+2*h}] offset:{512*(h-1)}')
        A('s_waitcnt lgkmcnt(0)\ns_barrier')
        with lowwaves():
            A(f'ds_read_b64 v[72:73], {vRMR}')
            for k in range(8): A(f'ds_read_b64 v[{80+2*k}:{81+2*k}], {vROR} offset:{8192*k}')
            A('s_waitcnt lgkmcnt(8)')
            A(f'v_max_f32_dpp v74, v72, v72 quad_perm:[1,0,3,2] {DPP}')
            A(f'v_max_f32_dpp v74, v74, v74 quad_perm:[2,3,0,1] {DPP}')
            A(f'v_max_f32_dpp v74, v74, v74 row_half_mirror {DPP}')
            A('v_sub_f32 v72, v72, v74\nv_exp_f32 v72, v72')
            for k in range(8): A(f'v_readlane_b32 s{80+k}, v72, {k}')
            A('v_mul_f32 v75, v73, v72\ns_waitcnt lgkmcnt(0)')
            for k in range(8):
                sp = f's[{80+(k&~1)}:{81+(k&~1)}]'
                o = 'op_sel_hi:[1,0' if (k & 1) == 0 else 'op_sel:[0,1'
                d = 64 + 2 * (k & 1)
                if k < 2: A(f'v_pk_mul_f32 v[{d}:{d+1}], v[{80+2*k}:{81+2*k}], {sp} {o}]')
                else: A(f'v_pk_fma_f32 v[{d}:{d+1}], v[{80+2*k}:{81+2*k}], {sp}, v[{d}:{d+1}] {o},{1 if (k&1)==0 else 0}]')
            A('v_pk_add_f32 v[64:65], v[64:65], v[66:67]\nv_cvt_pk_bf16_f32 v64, v64, v65')
            if tagged:
                A(f'v_mov_b32 v66, {sTAG}\nv_mov_b32 v67, {sTAG}\nv_mov_b32_dpp v65, v64 quad_perm:[1,1,3,3] {DPP}')
                lstore(f'buffer_store_dwordx4 v[64:67], v118, {WS}, 0 offen')
                A(f'v_mov_b32 v76, {sTAG}\nv_mov_b32 v77, {sTAG}')
                A(f's_lshl_b32 {t1}, {sG}, 2\ns_add_u32 {t1}, {t1}, {sW}\ns_lshl_b32 {t1}, {t1}, 2\ns_add_u32 {t1}, {t1}, {sHI}\ns_lshl_b32 {t1}, {t1}, 3\ns_add_u32 {t1}, {t1}, {sLO}\ns_lshl_b32 {t1}, {t1}, 4\ns_add_u32 {t1}, {t1}, {TML}')
            else:
                lstore(f'buffer_store_dword v64, {vL4}, {WS}, {sOPst} offen')
            for m in ('quad_perm:[1,0,3,2]', 'quad_perm:[2,3,0,1]', 'row_half_mirror'):
                A(f'v_add_f32_dpp v75, v75, v75 {m} {DPP}')
            if tagged: lstore(f'buffer_store_dwordx4 v[74:77], {vMLst}, {WS}, {t1} offen')
            else: lstore(f'buffer_store_dwordx2 v[74:75], {vMLst}, {WS}, {sMLst} offen')

    def wait_piece(tag):
        if tag not in A.vm: return
        if hi_extra[0] and ffn_hi:
            n_ = len(A.vm) - 1 - max(i for i, t_ in enumerate(A.vm) if t_ == tag)
            a_, b_ = lab('wl'), lab('wj')
            A(f's_cmp_lt_u32 {sW}, 4\ns_cbranch_scc1 {a_}\ns_waitcnt vmcnt({n_ + hi_extra[0]})\ns_branch {b_}\n{a_}:')
            A.wait_vm(tag); A(f'{b_}:')
        else: A.wait_vm(tag)
    def issue_weights():
        if not wo_at: issue_wo()
        A('v_mov_b32 v68, -1\nv_mov_b32 v69, -1\nv_mov_b32 v70, -1\nv_mov_b32 v71, -1')
        A.vmop(f'buffer_store_dwordx4 v[68:71], v117, {WS}, 0 offen sc1', 'cl2')
        if ffn_hi:
            l_ = lab('ff'); A(f's_cmp_lt_u32 {sW}, 4\ns_cbranch_scc1 {l_}'); issue_ffn(-4); issue_ffn(0); A(f'{l_}:')
    hi_extra = [0]
    if w_at == 'issue31' and not abl: issue_weights(); hi_extra[0] = 6
    A('v_mov_b32 v117, v108\nv_mov_b32 v118, v110')
    scores(False)
    for i in range(last_read - 15): pv(i)
    lsum()
    stamp()
    for p in range(last_read + 1, 32):
        wait_piece(f'p{p}')
        read_v(p)
        if w_at == f'land{p}' and not abl: issue_weights(); hi_extra[0] = 6
        A('s_waitcnt lgkmcnt(0)')
        pv(p - 16)
    stamp()
    if abl: A('s_branch L_fin')
    combine(True)
    if ffn_sleep:
        l_ = lab('ff'); A(f's_cmp_lt_u32 {sW}, 4\ns_cbranch_scc1 {l_}\ns_sleep {ffn_sleep}'); issue_ffn(-4); issue_ffn(0); A(f'{l_}:')
    stamp(True)

    A('L_layer:'); inloop[0] = True
    def proj_body(nk, vb, boff, xoff, late_w=None, tagged=False):
        for j in range(nk): A(f'ds_read_b128 v[{64+4*j}:{67+4*j}], {vb} offset:{boff+64*j}')
        if late_w: late_w()
        for j in range(nk):
            if not late_w: A(f's_waitcnt lgkmcnt({nk-1-j})')
            elif j == 0: A('s_waitcnt lgkmcnt(0)')
            c = '0' if j == 0 else 'v[96:99]'
            A(f'{M16} v[96:99], v[{48+4*j}:{51+4*j}], v[{64+4*j}:{67+4*j}], {c}')
        if tagged:
            A(f'v_mov_b32 v102, {sTAG}\nv_mov_b32 v103, {sTAG}\nv_cvt_pk_bf16_f32 v100, v96, v97\nv_cvt_pk_bf16_f32 v101, v98, v99')
            A(f'buffer_store_dwordx4 v[100:103], v47, {WS}, 0 offen sc1')
            if diag2: xstamp(52)
        else:
            A(f's_add_u32 {t1}, {sXst}, {xoff}')
            A('v_cvt_pk_bf16_f32 v96, v96, v97\nv_cvt_pk_bf16_f32 v97, v98, v99')
            A(f'buffer_store_dwordx2 v[96:97], {vXst}, {WS}, {t1} offen sc1')
    def proj_out(nk, vb, boff, xoff, first=None):
        sk, dl = lab('sk'), lab('dl')
        A(f's_cmp_ge_u32 {sW}, 4\ns_cbranch_scc1 {sk}')
        if first: variant(first, lambda: proj_body(nk, vb, boff, xoff))
        else: proj_body(nk, vb, boff, xoff)
        return sk, dl
    def first_only(f):
        def g():
            l, bk = lab('fo'), lab('bk')
            A(f's_cmp_eq_u32 {sLIDX}, 0\ns_cbranch_scc1 {l}\n{bk}:')
            keepL, A.L = A.L, []
            A(f'{l}:'); f(); A(f's_branch {bk}')
            tails.append('\n'.join(A.L)); A.L = keepL
        return g
    def variant(first, later):
        l, bk = lab('v0'), lab('vj')
        A(f's_cmp_eq_u32 {sLIDX}, 0\ns_cbranch_scc1 {l}')
        n0 = nts[0]
        later()
        A(f'{bk}:')
        n1, nts[0] = nts[0], n0
        keepL, A.L = A.L, []
        A(f'{l}:'); first(); A(f's_branch {bk}')
        tails.append('\n'.join(A.L)); A.L = keepL
        assert nts[0] == n1
    def later_only(f):
        l = lab('lo'); A(f's_cmp_eq_u32 {sLIDX}, 0\ns_cbranch_scc1 {l}'); f(); A(f'{l}:')
    def g_wait(sk, dl, pre, busy_first=False, hi_pre=None):
        pre()
        if gdelay and busy_first: later_only(lambda: A(f's_sleep {gdelay}'))
        elif gdelay: A(f's_sleep {gdelay}')
        A(f's_branch {dl}\n{sk}:')
        if hi_pre: hi_pre()
        if gdelay_hi: A(f's_sleep {gdelay_hi}')
        A(f'{dl}:')
    def reduce_x(xoff, final, first=None):
        def normal():
            A(f's_add_u32 {t0}, {sXg}, {xoff}')
            poll(lambda: issue_g1(64, vXg, t0, 'x', 8192), range(64, 72),
                 lambda: A(f'{M16} v[96:99], {SELA}, v[64:67], 0\n{M16} v[96:99], {SELA}, v[68:71], v[96:99]'))
        if first: variant(first, normal)
        else: normal()
        stamp()
        A(f'v_add_f32_dpp v96, v96, v96 row_ror:4 {DPP}\nv_add_f32_dpp v97, v97, v97 row_ror:4 {DPP}')
        A(f'v_add_f32_dpp v96, v96, v96 row_ror:8 {DPP}\nv_add_f32_dpp v97, v97, v97 row_ror:8 {DPP}')
        A(f's_mov_b64 exec, {sM4}')
        A(f'v_pk_add_f32 {XRES}, {XRES}, v[96:97]\nv_cvt_pk_bf16_f32 v96, v112, v113')
        if final: A(f's_cmp_eq_u32 {sLIDX}, 1\ns_cbranch_scc1 L_out')
        A(f'ds_write_b32 {vXW}, v96')
        full_exec()
        A('s_waitcnt lgkmcnt(0)\ns_barrier')
    def issue_o():
        issue_g1(64, vG1, sOg, 'o')
        A.vmop(f'buffer_load_dwordx2 v[72:73], {vML2}, {WS}, {sMLg} offen sc1', 'o')
        A.vmop(f'buffer_load_dwordx2 v[74:75], {vML2}, {WS}, {sMLg} offen offset:32 sc1', 'o')
    def wo_weights(ma, la, mb, lb, selreg, mm):
        A(f'v_max_f32 v76, v{ma}, v{mb}\nv_mov_b32 v77, v76\nv_permlane16_swap_b32 v76, v77\nv_max_f32 v76, v76, v77')
        A('v_mov_b32 v77, v76\nv_permlane32_swap_b32 v76, v77\nv_max_f32 v76, v76, v77')
        A(f'v_sub_f32 v{ma}, v{ma}, v76\nv_sub_f32 v{mb}, v{mb}, v76\nv_exp_f32 v{ma}, v{ma}\nv_exp_f32 v{mb}, v{mb}')
        A(f'v_cvt_pk_bf16_f32 v{ma}, v{ma}, v{ma}\nv_cvt_pk_bf16_f32 v{mb}, v{mb}, v{mb}')
        for i in range(4): A(f'v_and_b32 v{selreg+i}, v{MASK+i}, v{ma}')
        for i in range(4): A(f'v_and_b32 v{selreg+4+i}, v{MASK+i}, v{mb}')
        mm()
        A(f'v_and_b32 v{ma}, 0xffff0000, v{ma}\nv_and_b32 v{mb}, 0xffff0000, v{mb}\nv_mul_f32 v73, v{la}, v{ma}\nv_fmac_f32 v73, v{lb}, v{mb}')
        A('v_mov_b32 v77, v73\nv_permlane16_swap_b32 v73, v77\nv_add_f32 v73, v73, v77')
        A('v_mov_b32 v77, v73\nv_permlane32_swap_b32 v73, v77\nv_add_f32 v73, v73, v77\nv_rcp_f32 v72, v73')
    def wo_later():
        read_wo()
        if ldelay: A(f's_sleep {ldelay}')
        poll(issue_o, range(64, 76))
        stamp()
        wo_weights(72, 73, 74, 75, 80, lambda: A(f'{M16} v[96:99], v[80:83], v[64:67], 0\n{M16} v[96:99], v[84:87], v[68:71], v[96:99]'))
    def wo_first():
        if diag2: A(f's_mov_b32 s65, {sTO}')
        def issue():
            issue_o0()
            if csq_o: issue_tagged(f's_lshl_b32 {t1}, {sG}, 14\ns_add_u32 {t1}, {t1}, {TQC}', 48)
        if wo_at: read_wo()
        if csq_o: tagged_poll(issue, (82, 86, 90, 94, 66, 70, 50, 54, 58, 62), lambda: tagged_sum(32, 48, 108))
        else: tagged_poll(issue, (82, 86, 90, 94, 66, 70))
        stamp()
        if diag2: A(f's_sub_u32 s65, s65, {sTO}\nv_readlane_b32 s94, {vTS}, 0\ns_mul_i32 s65, s65, 100\ns_add_u32 s65, s65, s94\nv_writelane_b32 {vTS}, s65, 55')
        wo_weights(64, 65, 68, 69, 100, lambda: tagged_sum(100, 80, 96, 4))
        if csq_o: A(f's_mov_b32 {t2}, {f32(1/512)}\nv_pk_mul_f32 {CSQ}, v[108:109], s[56:57] op_sel_hi:[1,0]')
    with lowwaves():
        variant(wo_first, wo_later)
        A('v_pk_mul_f32 v[96:97], v[96:97], v[72:73] op_sel_hi:[1,0]\nv_cvt_pk_bf16_f32 v96, v96, v97')
        A(f'ds_write_b32 {vQW}, v96 offset:{L_OS-L_QS}')
    A(f's_waitcnt vmcnt({6 if (ffn_hi or ffn_sleep) else 0}) lgkmcnt(0)\ns_barrier')
    def ffn_diag():
        xstamp(50); issue_ffn()
        l_ = lab('dg'); A(f's_cmp_lt_u32 {sW}, 4\ns_cbranch_scc1 {l_}\ns_waitcnt vmcnt(0)'); xstamp(51); A(f'{l_}:')
    if not (ffn_hi or ffn_sleep or ffn_at): first_only(ffn_diag if diag2 else issue_ffn)()
    sk, dl = proj_out(4, vBR320, L_OS - L_QS, 0, lambda: proj_body(4, vBR320, L_OS - L_QS, 0, None if wo_at else read_wo, True))
    def clean3():
        A(f's_mul_i32 {t1}, {sC}, 1056\ns_add_u32 {t1}, {t1}, {sGBASE}\ns_add_u32 {t1}, {t1}, {LS + bGP - 4096}\nv_mov_b32 v68, {OOB}')
        A(f'v_add_u32 {vTMP}, {t1}, v115\nv_cmp_gt_u32 vcc, {4096 + 1056}, v115'); sel('v69', 'v68', vTMP)
        A('v_mov_b32 v64, -1\nv_mov_b32 v65, -1\nv_mov_b32 v66, -1\nv_mov_b32 v67, -1')
        A(f's_add_u32 {t1}, {sXst}, {LS - 7168}\nv_add_u32 {vTMP}, {t1}, v115\nv_add_u32 {vTMP2}, {oXB - oXA - 512}, {vTMP}\nv_cmp_lt_u32 vcc, {7680 - 1}, v115'); sel(vTMP, vTMP, vTMP2)
        A(f'v_cmp_lt_u32 vcc, {7168 - 1}, v115'); sel('v69', 'v69', vTMP)
        A(f'buffer_store_dwordx4 v[64:67], v69, {WS}, 0 offen sc1')
    def issue_g0():
        issue_tagged(f's_lshl_b32 {t0}, {sG}, 2\ns_add_u32 {t0}, {t0}, {sHI}\ns_lshl_b32 {t1}, {t0}, 14\ns_add_u32 {t1}, {t1}, {TGP}')
        issue_tagged(f's_lshl_b32 {t1}, {t0}, 12\ns_add_u32 {t1}, {t1}, {TGC}', 64,
                     f'v_and_b32 {vTMP}, 0xf0, {vG1}\nv_and_b32 {vTMP2}, 0xc00, {vG1}\nv_lshrrev_b32 {vTMP2}, 1, {vTMP2}\nv_or_b32 {vTMP}, {vTMP}, {vTMP2}', 2048, 256)
        A(f's_lshl_b32 {t0}, {t0}, 2\ns_add_u32 {t0}, {t0}, {sW}\ns_lshl_b32 {t0}, {t0}, 7\ns_add_u32 {t0}, {t0}, {TGS}\nv_lshlrev_b32 {vTMP2}, 1, {vSt8}')
        A.vmop(f'buffer_load_dwordx4 v[104:107], {vTMP2}, {WS}, {t0} offen sc1', 'q')
    def touch_lines(bases):
        for sb, off in bases:
            A(f's_add_u32 {t0}, {sb}, {off}\ns_add_u32 {t1}, {t0}, 4096')
            A(f'buffer_load_dwordx4 v[80:83], {vG1}, {WS}, {t0} offen sc1\nbuffer_load_dwordx4 v[84:87], {vG1}, {WS}, {t1} offen sc1')
    def touch_small(bases):
        for sb, off in bases:
            A(f's_add_u32 {t0}, {sb}, {off}\nbuffer_load_dwordx2 v[88:89], {vSt8}, {WS}, {t0} offen sc1')
    def hi_xa():
        if clean3_xa: first_only(clean3)()
        if touch1 & 2: later_only(lambda: (touch_lines([(sGg, 0)]), touch_small([(sGSg, 0)])))
    def hi_xb():
        if not clean3_xa: first_only(clean3)()
        if touch1 & 1: first_only(lambda: (touch_lines([(sQg, LS), (sOg, LS)]), touch_small([(sQSg, LS), (sMLg, LS)])))()
    def pre_xa():
        if ffn_at:
            read_gu()
            if touch_g: first_only(issue_g0)()
        elif touch_g: variant(issue_g0, read_gu)
        else: later_only(read_gu)
    g_wait(sk, dl, pre_xa, False, hi_xa)
    stamp()
    def xa_first():
        if diag2: A(f's_mov_b32 s65, {sTO}'); xstamp(53)
        tagged_poll(lambda: issue_tagged(f's_lshl_b32 {t1}, {sLO}, 15\ns_add_u32 {t1}, {t1}, {TXA}', 80,
                                         f'v_and_b32 {vTMP2}, 0x30, {vXg}\nv_lshlrev_b32 {vTMP}, 1, {vXg}\nv_sub_u32 {vTMP}, {vTMP}, {vTMP2}', 16384, 64), spec=tagged_sum)
        A('s_nop 1')
        if diag2: A(f's_sub_u32 s65, s65, {sTO}\nv_readlane_b32 s94, {vTS}, 0\ns_mul_i32 s65, s65, 100\ns_add_u32 s65, s65, s94\nv_writelane_b32 {vTS}, s65, 54')
    reduce_x(0, False, xa_first)
    slice_stats(sGSst, True)
    def issue_gp():
        issue_g1(64, vG1, sGg, 'g')
        A.vmop(f'buffer_load_dwordx2 v[72:73], {vSt8}, {WS}, {sGSg} offen sc1', 'g')
    def ffn_later():
        matvec(vGst, 'plain')
        stamp()
        read_wd()
        if ldelay: A(f's_sleep {ldelay}')
        poll(issue_gp, QREGS, ln_spec(SELG, False))
        ln_finish(CSG, 1.0, False)
    def ffn_first():
        matvec('v114', 'tag', None if ffn_at else read_gu)
        stamp()
        read_wd()
        tagged_poll(issue_g0, (82, 86, 90, 94, 66, 70, 74, 78, 105, 107))
        tagged_sum(40, 80, 96); tagged_sum(40, 64, 100)
        A(f'v_add_f32_dpp v78, v104, v104 quad_perm:[1,0,3,2] {DPP}\nv_add_f32_dpp v79, v106, v106 quad_perm:[1,0,3,2] {DPP}')
        ln_finish(CSG, 1.0, True)
    with lowwaves():
        variant(ffn_first, ffn_later)
        stamp()
        A('v_cvt_pk_bf16_f32 v96, v96, v97\nv_and_b32 v97, 0xffff0000, v96\nv_lshlrev_b32 v96, 16, v96\nv_max_f32 v96, 0, v96\nv_mul_f32 v96, v96, v97\nv_cvt_pk_bf16_f32 v96, v96, v96')
        A(f'ds_write_b16 {vHW}, v96')
    A('s_waitcnt lgkmcnt(0)\ns_barrier')
    sk, dl = proj_out(2, vBR192, 0, oXB - oXA)
    def pre_q():
        read_wq()
        if not csq_o: first_only(fetch_csq)()
    g_wait(sk, dl, pre_q, not csq_o, hi_xb)
    stamp()
    no = lab('no')
    A(f's_cmp_eq_u32 {sLIDX}, 0\ns_cbranch_scc1 {no}\ns_cmp_lg_u32 {sHI}, 0\ns_cbranch_scc1 L_fin\ns_cmp_lg_u32 {sG}, {sLO}\ns_cbranch_scc1 L_fin\n{no}:')
    A(f's_add_u32 {sQSst}, {sQSst}, {LS}')
    reduce_x(oXB - oXA, True)
    slice_stats(sQSst)
    A(f's_mov_b32 {sLIDX}, 1\ns_mov_b32 {sLAY}, {LS}')
    keep = nts[0]; nts[0] -= 11
    with lowwaves():
        matvec(vQst, 'plain')
        stamp()
        A(f's_add_u32 {sQg}, {sQg}, {LS}\ns_add_u32 {sQSg}, {sQSg}, {LS}')
        if ldelay: A(f's_sleep {ldelay}')
        poll(lambda: issue_q(False), QREGS, ln_spec(SELA, False))
        stamp()
        q_finish(False)
    for s in (sOg, sGg, sMLg, sGSg, sXg, sOPst, sMLst, sXst, sGSst):
        A(f's_add_u32 {s}, {s}, {LS}')
    scores()
    for i in range(16):
        pv(i)
        if i == 5: lsum()
    stamp()
    combine()
    stamp()
    A('s_branch L_layer'); nts[0] = keep
    A('L_out:')
    A(f'buffer_store_dword v96, {vXO}, {OUT}, 0 offen')
    A(f's_or_b32 {t1}, s2, {sW}\ns_cmp_lg_u32 {t1}, 0\ns_cbranch_scc1 L_fin0')
    A(f's_mov_b64 exec, 1\nv_mov_b32 v97, {sTAG}\ns_mov_b32 {t2}, {EPOCH}\nbuffer_store_dword v97, off, {WS}, {t2} sc1')
    A('L_fin0:')
    full_exec()
    A('L_fin:')
    if ts:
        stamp(True)
        A(f's_memtime s[94:95]\ns_waitcnt lgkmcnt(0)\ns_sub_u32 s94, s94, s98\nv_writelane_b32 {vTS}, s94, 63')
        A(f's_add_u32 s96, s96, 0x10000000\ns_addc_u32 s97, s97, 0\ns_lshl_b32 {t1}, s2, 11\nv_add_u32 v64, {t1}, {vT4}\nglobal_store_dword v64, {vTS}, s[96:97]')
        if dbgts:
            A(f's_or_b32 {t1}, s2, {sW}\ns_cmp_lg_u32 {t1}, 0\ns_cbranch_scc1 L_end')
            A(f'v_readlane_b32 {t1}, {vTS}, 0\nv_subrev_u32 v64, {t1}, {vTS}\nv_and_b32 v64, 0xffff, v64')
            A(f'v_mov_b32_dpp v65, v64 quad_perm:[1,1,3,3] {DPP}\nv_lshl_or_b32 v64, v65, 16, v64\nv_lshlrev_b32 v65, 1, {vL}')
            A(f's_mov_b32 exec_lo, 0x55555555\ns_mov_b32 exec_hi, 0\nbuffer_store_dword v64, v65, {DBG}, 0 offen sc1')
    A('s_endpgm')
    for t_ in tails: A(t_)
    A('L_end:\ns_endpgm')
    A(f'.section .rodata,"a"\n.p2align 6\n.amdhsa_kernel {NAME}_kernel')
    A('.amdhsa_next_free_vgpr 256\n.amdhsa_next_free_sgpr 102\n.amdhsa_accum_offset 128\n.amdhsa_group_segment_fixed_size 0\n.amdhsa_kernarg_size 96\n.amdhsa_user_sgpr_count 2\n.amdhsa_user_sgpr_kernarg_segment_ptr 1\n.amdhsa_system_sgpr_workgroup_id_x 1\n.end_amdhsa_kernel')
    txt, probs = A.text()
    for p in probs: print('HAZARD', p, file=sys.stderr)
    return txt, nts[0]

if __name__ == '__main__':
    out = sys.argv[1]
    kw = {}
    for a in sys.argv[2:]:
        k, v = a.split('='); kw[k] = eval(v)
    txt, n = build(**kw)
    open(out, 'w').write(txt)
    print('stamps', n, 'lines', txt.count('\n'))
```

```python
import sys, math, struct
sys.path.insert(0, 'gen')
from asmlib import Asm

NAME = "interleave_layers__sliding_block_cached__glu_gated_reglu__decode"

bQP, bQS, bOP, bML, bGP, bGS, bGC, GB = 0x0, 0x8000, 0x8400, 0x10400, 0x10800, 0x18800, 0x18C00, 0x1AC00
oXA, oXB, LS = 8 * GB, 8 * GB + 0x20000, 8 * GB + 0x40000
TQP, TQC, TOP, TML, TXA, TGP, TGC, TGS, EPOCH = 0x240000, 0x2C0000, 0x2E0000, 0x360000, 0x364000, 0x3A4000, 0x424000, 0x444000, 0x448000
WS_REC = 0x448100
OOB = 0x7FFF0000
L_RING, L_WQ, L_WO, L_WG, L_WU, L_WD = 0, 65536, 81920, 98304, 106496, 114688
L_QS, L_OS, L_HS, L_XS, L_RM, L_ST = 122880, 124160, 125440, 126208, 127168, 127424
LDS_BYTES = 127488

def f32(x): return '0x%08x' % struct.unpack('<I', struct.pack('<f', x))[0]
QSCALE = 128 ** -0.5 * math.log2(math.e)

sW, sG, sC, sHI, sLO = 's3', 's4', 's5', 's6', 's7'
WS, KK, VV, WQ, WO, WG, WU, WD, XX, OUT, DBG = [f's[{i}:{i+3}]' for i in range(8, 52, 4)]
sKV, sRING, t0, t1, t2, t3 = 's52', 's53', 's54', 's55', 's56', 's57'
sLAY, sTO, sFAST, sCNT, sGOK, sLIDX = 's58', 's59', 's60', 's61', 's62', 's63'
sQg, sOg, sGg, sQSg, sMLg, sGSg, sXg, sGBASE, sGCg = ['s%d' % i for i in range(66, 75)]
sOPst, sMLst, sXst, sQSst, sGSst = ['s%d' % i for i in range(75, 80)]
g0, g1, g2, g3 = 's90', 's91', 's92', 's93'
vL, vT4, vSt8, vXg, vQst, vGst, vSSt, vG1, vXst, vQW, vBR320, vHW, vBR192, vXR, vXW, vL4 = ['v%d' % i for i in range(16)]
vROW, vROR, vRMW, vRMR, vWQr, vWr, vWOr, vXO = ['v%d' % i for i in range(16, 24)]
CSQ, CSG = 'v[24:25]', 'v[26:27]'
vTS, vML2, vTMP, vTMP2 = 'v28', 'v29', 'v30', 'v31'
SELA, MASK, SELG, ONES = 'v[32:35]', 36, 'v[40:43]', 'v[44:45]'
vMLst = 'v46'
XRES = 'v[112:113]'
sM4 = 's[88:89]'
sTAG = 's100'
DPP = 'row_mask:0xf bank_mask:0xf'
M16 = 'v_mfma_f32_16x16x32_bf16'

def build(ts=False, gdelay=12, gdelay_hi=18, pf_code=True, rides=(17, 22, 27), w_at='land31', ldelay=0, bar_after_k0=False, fride=26, ffn_hi=False, touch_o=0, touch_g=1, ffn_sleep=0, clean3_xa=0, tlb=0, diag2=0, ffn_at=0, wo_at=0, csq_o=0, touch1=8, csq_at=26, xa0=0, xb0=10, gd_b=11, gdh_b=15, ffn_by_hi=1, tmajor=1, prio=0, wd_late=0, xback=0, deep_from=24, depth=5, deep=7, diag=0, noclean=0, burst=4, late47=0, abl='', backoff=0, cl_sc1=1, dbgts=0, wsoff=0):
    A = Asm()
    uid = [0]
    def lab(p):
        uid[0] += 1; return f'L_{p}_{uid[0]}'
    nts = [0]; inloop = [False]
    def stamp(key=False):
        if not ts: return
        if ts == 2 and not key:
            nts[0] += 1; return
        if inloop[0]:
            A(f's_memrealtime s[94:95]\ns_mul_i32 m0, {sLIDX}, 11\ns_add_u32 m0, m0, {nts[0]}\ns_waitcnt lgkmcnt(0)\nv_writelane_b32 {vTS}, s94, m0')
        else:
            A(f's_memrealtime s[94:95]\ns_waitcnt lgkmcnt(0)\nv_writelane_b32 {vTS}, s94, {nts[0]}')
        nts[0] += 1
    def xstamp(i):
        A(f's_memrealtime s[94:95]\ns_waitcnt lgkmcnt(0)\nv_writelane_b32 {vTS}, s94, {i}')
    def set_exec(lo, hi=None):
        hi = lo if hi is None else hi
        A(f's_mov_b32 exec_lo, {lo:#x}\ns_mov_b32 exec_hi, {hi:#x}')
    def full_exec(): A('s_mov_b64 exec, -1')
    tails = []
    def lstore(fmt, tag='st', nxt=None, cmp=True):
        a, b = lab('wt'), lab('sd')
        for f_ in fmt.split('\n'): A((';;need2 ' if cmp else ';;need1 ') + f_)
        if cmp: A(f's_cmp_eq_u32 {sFAST}, 1')
        A(f's_cbranch_scc0 {a}')
        A(fmt); A(f'{b}:')
        tails.append(f'{a}:\n' + '\n'.join(f_ + ' sc1' for f_ in fmt.split('\n')) + f'\ns_branch {b}')
        A.vm.append(tag)
    class lowwaves:
        def __init__(s, other=None): s.other = other
        def __enter__(s):
            s.l = lab('hi'); s.o = lab('up') if s.other else s.l
            A(f's_cmp_ge_u32 {sW}, 4\ns_cbranch_scc1 {s.o}')
        def __exit__(s, *a):
            A(f'{s.l}:')
            if s.other:
                keepL, A.L = A.L, []
                A(f'{s.o}:'); s.other(); A(f's_branch {s.l}')
                tails.append('\n'.join(A.L)); A.L = keepL
    def sel(dst, a, b):
        A(f'v_cndmask_b32 {dst}, {a}, {b}, vcc')

    A(f'; @launch grid=(256,1,1) block=(512,1,1) lds={LDS_BYTES}')
    A('.amdgcn_target "amdgcn-amd-amdhsa--gfx950"')
    A(f'.text\n.globl {NAME}_kernel\n.p2align 8\n.type {NAME}_kernel,@function\n{NAME}_kernel:')
    A('s_cmp_ge_u32 s2, 256\ns_cbranch_scc1 L_end')
    A('s_load_dwordx16 s[64:79], s[0:1], 0\ns_load_dwordx8 s[80:87], s[0:1], 64')
    A(f'v_lshlrev_b32 {vT4}, 2, v0')
    if pf_code:
        A(f's_getpc_b64 s[94:95]\nL_pc:\ns_lshr_b32 {t0}, s2, 3\ns_and_b32 {t0}, {t0}, 1\ns_lshl_b32 {t0}, {t0}, 13\nv_lshlrev_b32 {vTMP}, 2, {vT4}\nv_add_u32 {vTMP}, {t0}, {vTMP}')
        A(f'v_min_u32 {vTMP}, L_end-L_pc-16, {vTMP}')
        A.vmop(f'global_load_dwordx4 v[96:99], {vTMP}, s[94:95]', 'pf')
    A(f'v_lshrrev_b32 {vTMP}, 6, v0')
    A(f'v_and_b32 {vL}, 63, v0')
    A(f'v_readfirstlane_b32 {sW}, {vTMP}')
    A(f's_and_b32 {sG}, s2, 7\ns_lshr_b32 {sC}, s2, 3\ns_lshr_b32 {sHI}, {sC}, 3\ns_and_b32 {sLO}, {sC}, 7')
    A(f'v_and_b32 v120, 15, {vL}\nv_lshrrev_b32 v121, 4, {vL}')
    A(f'v_lshlrev_b32 {vTMP}, 2, v121\nv_xor_b32 {vTMP}, v120, {vTMP}\nv_lshlrev_b32 {vTMP}, 4, {vTMP}\nv_lshl_add_u32 v116, v121, 8, {vTMP}\nv_lshl_add_u32 v124, v121, 13, {vTMP}')
    A(f'v_and_b32 v122, 3, {vL}\nv_lshrrev_b32 v123, 2, v120')
    A(f's_lshr_b32 {t0}, {sW}, 1\ns_lshl_b32 {t0}, {t0}, 10\ns_and_b32 {t1}, {sW}, 1\ns_lshl_b32 {t1}, {t1}, 6\ns_add_u32 {t0}, {t0}, {t1}\ns_lshl_b32 {t1}, {sLO}, 7\ns_add_u32 {t0}, {t0}, {t1}')
    A(f'v_lshlrev_b32 v117, 4, v122\nv_lshl_add_u32 v117, v121, 2, v117\nv_add_u32 {vXO}, {t0}, v117')
    A(f's_lshl_b32 {t0}, {sHI}, 3\ns_add_u32 {t0}, {t0}, {sG}\ns_lshl_b32 {sKV}, {t0}, 22\ns_lshl_b32 {t0}, {sLO}, 17\ns_add_u32 {sKV}, {sKV}, {t0}\ns_add_u32 {sKV}, {sKV}, {12288*256}')
    A(f's_add_u32 {t0}, {sG}, {sC}\ns_add_u32 {t0}, {t0}, {sW}\ns_and_b32 {t0}, {t0}, 7\ns_lshl_b32 {t0}, {t0}, 12\ns_add_u32 {sKV}, {sKV}, {t0}')
    A(f's_lshl_b32 {sRING}, {sW}, 13')
    A(f's_and_b32 {g3}, {sW}, 3')
    A(f's_lshl_b32 {t0}, {sG}, 2\ns_add_u32 {t0}, {t0}, {sHI}')
    A(f'v_mov_b32 v118, {OOB}')
    A(f's_mul_i32 s101, {sG}, {GB}')
    A(f's_lshl_b32 {t1}, {sLO}, 6\ns_lshl_b32 {t2}, {sW}, 3\ns_add_u32 {t1}, {t1}, {t2}\ns_lshl_b32 {t1}, {t1}, 13\ns_lshl_b32 {t2}, {sG}, 10\ns_add_u32 {t1}, {t1}, {t2}\ns_lshl_b32 {t2}, {sHI}, 8\ns_add_u32 {t1}, {t1}, {t2}')
    A(f's_lshl_b32 {t2}, {sW}, 11\ns_add_u32 m0, {t2}, {L_WQ}')
    if ts:
        A(f'v_mov_b32 {vTS}, 0'); stamp(True)
        A(f's_memtime s[98:99]')
    A('s_waitcnt lgkmcnt(0)')
    def srd(d, lo, n):
        A(f's_mov_b32 s{d}, s{lo}\ns_mov_b32 s{d+1}, s{lo+1}\ns_mov_b32 s{d+2}, {n}\ns_mov_b32 s{d+3}, 0x20000')
    srd(20, 70, 4194304)
    A.vmop(f'buffer_load_dwordx4 v124, {WQ}, {t1} offen nt lds', 'wq')
    A(f's_add_u32 {t1}, {t1}, 32768\ns_add_u32 m0, m0, 1024')
    srd(40, 64, 4096)
    A.vmop(f'buffer_load_dwordx4 v124, {WQ}, {t1} offen nt lds', 'wq')
    srd(8, 86, WS_REC)
    if wsoff: A(f's_add_u32 s8, s8, {wsoff}\ns_addc_u32 s9, s9, 0')
    A.vmop(f'buffer_load_dword v68, {vXO}, {XX}, 0 offen', 'x0')
    A(f's_lshr_b32 {t2}, {sW}, 1\ns_lshl_b32 {t2}, {t2}, 10\nv_lshlrev_b32 {vTMP}, 4, {vL}')
    A.vmop(f'buffer_load_dwordx4 v[72:75], {vTMP}, {XX}, {t2} offen', 'x0')
    A(f's_mov_b32 {t2}, {EPOCH}')
    A.vmop(f'buffer_load_dword v69, off, {WS}, {t2} sc1', 'ep')
    srd(12, 66, 0x8000000)
    def piece(p):
        t, q = (p % 16) // 4, p % 4
        if q == 0:
            A(f's_add_u32 {g1}, {sKV}, {t*32768}\ns_add_u32 m0, {sRING}, {((p//4)&1)*4096}')
        src = 'v116'
        A.vmop(f'buffer_load_dwordx4 {src}, {KK if p < 16 else VV}, {g1} offen offset:{q*1024} nt lds', f'p{p}')
    for p in range(burst): piece(p)
    srd(16, 68, 0x8000000)
    if ts: A('s_mov_b32 s96, s86\ns_mov_b32 s97, s87')

    srd(24, 72, 4194304); srd(44, 82, 4096); srd(48, 84, 256)
    srd(28, 76, 1835008); srd(32, 78, 1835008); srd(36, 80, 1835008)
    A(f's_mul_i32 {t1}, {sG}, 3\ns_add_u32 {t1}, {t1}, 4\ns_lshl_b32 {t2}, {sG}, 2\ns_cmp_ge_u32 {sG}, 4\ns_cselect_b32 {g2}, {t1}, {t2}\ns_add_u32 {g2}, {g2}, {sHI}\ns_min_u32 {g2}, {g2}, 27')
    if tlb:
        A(f's_lshl_b32 {t1}, {t0}, 17')
        A.vmop(f'buffer_load_dword v96, off, {WO}, {t1} nt', 'tlb')
        A(f's_mul_i32 {t1}, {sLO}, {64*3584}')
        A.vmop(f'buffer_load_dword v96, off, {WG}, {t1} nt', 'tlb')
        A.vmop(f'buffer_load_dword v96, off, {WU}, {t1} nt', 'tlb')
        A(f's_lshl_b32 {t1}, {g2}, 16')
        A.vmop(f'buffer_load_dword v96, off, {WD}, {t1} nt', 'tlb')
        A(f'v_lshlrev_b32 {vTMP}, 19, v120')
        A.vmop(f'buffer_load_dword v96, {vTMP}, {WS}, 0 offen nt', 'tlb')
        A.vmop(f'buffer_load_dword v96, off, {VV}, {sKV} nt', 'tlb')
    A(f's_getreg_b32 {t1}, hwreg(HW_REG_XCC_ID)\ns_and_b32 s64, {t1}, 15')
    A(f's_mov_b32 s88, 0x000f000f\ns_mov_b32 s89, 0x000f000f')
    A(f's_mov_b32 {sGBASE}, s101')
    A(f's_lshl_b32 {t1}, {sHI}, 13\ns_add_u32 {t1}, {t1}, {sGBASE}')
    A(f's_add_u32 {sQg}, {t1}, {bQP + LS}\ns_add_u32 {sOg}, {t1}, {bOP}\ns_add_u32 {sGg}, {t1}, {bGP}')
    A(f's_lshl_b32 {t1}, {g3}, 2\ns_add_u32 {t1}, {t1}, {sHI}\ns_lshl_b32 {t1}, {t1}, 6\ns_add_u32 {t1}, {t1}, {sGBASE}\ns_add_u32 {sQSg}, {t1}, {bQS + LS}')
    A(f's_lshl_b32 {sMLst}, {sLO}, 3\ns_add_u32 {sMLst}, {sMLst}, {t1}\ns_add_u32 {sMLst}, {sMLst}, {bML}')
    A(f's_lshl_b32 {t2}, {g3}, 13\ns_lshl_b32 {t1}, {sLO}, 10\ns_add_u32 {t2}, {t2}, {t1}\ns_lshl_b32 {t1}, {sHI}, 8\ns_add_u32 {t2}, {t2}, {t1}\ns_add_u32 {t2}, {t2}, {sGBASE}\ns_add_u32 {sOPst}, {t2}, {bOP}')
    A(f's_lshl_b32 {t1}, {sHI}, 2\ns_add_u32 {t1}, {t1}, {g3}\ns_lshl_b32 {t1}, {t1}, 6\ns_add_u32 {t1}, {t1}, {sGBASE}\ns_add_u32 {sMLg}, {t1}, {bML}\ns_add_u32 {sGSg}, {t1}, {bGS}')
    A(f's_lshl_b32 {t1}, {sLO}, 14\ns_add_u32 {sXg}, {t1}, {oXA}')
    A(f's_lshl_b32 {t1}, {t0}, 9\ns_add_u32 {sXst}, {sXg}, {t1}')
    A(f's_lshl_b32 {t1}, {sHI}, 11\ns_add_u32 {t1}, {t1}, {sGBASE}\ns_add_u32 {sGCg}, {t1}, {bGC}')
    A(f's_lshl_b32 {t3}, {sHI}, 8\ns_lshl_b32 {t1}, {sLO}, 3\ns_add_u32 {t3}, {t3}, {t1}\ns_add_u32 {t3}, {t3}, {sGBASE}\ns_add_u32 {sQSst}, {t3}, {bQS + LS}\ns_add_u32 {sGSst}, {t3}, {bGS}')
    A(f's_lshl_b32 s101, {t0}, 14\ns_add_u32 s101, s101, {TQP}')
    A(f's_lshl_b32 {t1}, {sLO}, 10\ns_lshl_b32 {t2}, {sHI}, 8\ns_add_u32 {t1}, {t1}, {t2}\ns_lshl_b32 {t2}, {g3}, 6\ns_add_u32 {t3}, {t1}, {t2}')
    A(f's_add_u32 {t1}, {sGBASE}, {t3}\ns_add_u32 {t1}, {t1}, {LS}\ns_mov_b32 {t2}, {OOB}')
    A(f's_cmp_ge_u32 {sW}, 4\ns_cselect_b32 {g0}, 0, 5')
    def st_off(dst, shift):
        A(f'v_lshlrev_b32 {vTMP}, {shift}, v120\nv_add_u32 {vTMP}, {t1}, {vTMP}\nv_mov_b32 {vTMP2}, {t2}\nv_cmp_eq_u32 vcc, 4, v120'); sel(vTMP, vTMP, vTMP2)
        A(f'v_lshl_add_u32 {vTMP}, v121, 4, {vTMP}\nv_cmp_gt_u32 vcc, {g0}, v120'); sel(dst, 'v118', vTMP)
    st_off(vQst, 13)
    A(f's_lshl_b32 {t3}, {t3}, 1\ns_lshl_b32 {t1}, {g3}, 6\ns_sub_u32 {t3}, {t3}, {t1}\ns_lshl_b32 {t1}, {sG}, 16\ns_add_u32 {t1}, {t1}, {t3}\ns_add_u32 {t1}, {t1}, {TQP}\ns_lshl_b32 {t2}, {sG}, 14\ns_add_u32 {t2}, {t2}, {t3}\ns_add_u32 {t2}, {t2}, {TQC}')
    st_off('v109', 14)
    A(f'v_lshlrev_b32 {vTMP}, 6, v122\nv_add_u32 {vTMP2}, 4, {vTMP}\nv_cmp_gt_u32 vcc, 16, {vL}'); sel(vTMP, vTMP, vTMP2)
    A(f'v_and_b32 {vTMP2}, {0x1ec*4}, {vT4}\nv_cmp_eq_u32 vcc, {256*4}, {vTMP2}'); sel(vSSt, 'v118', vTMP)
    A(f'v_lshlrev_b32 v115, 2, {vT4}')
    A(f's_add_u32 {t1}, {sXst}, {oXB - oXA - 4096}\nv_add_u32 {vTMP}, {t1}, v115\nv_and_b32 {vTMP2}, 0x1e00, v115\nv_cmp_eq_u32 vcc, 4096, {vTMP2}'); sel('v108', 'v118', vTMP)
    A(f's_mul_i32 {t1}, {sC}, 2112\ns_add_u32 {t1}, {t1}, {sGBASE}\ns_add_u32 {t1}, {t1}, {LS - 5120}\nv_add_u32 {vTMP}, {t1}, v115\nv_subrev_u32 {vTMP2}, 5120, v115\nv_cmp_gt_u32 vcc, 2112, {vTMP2}'); sel('v108', 'v108', vTMP)
    A(f's_lshl_b32 {t3}, {g3}, 6\ns_lshl_b32 {t1}, {t0}, 14\ns_lshl_b32 {t2}, {sLO}, 11\ns_add_u32 {t1}, {t1}, {t2}\ns_add_u32 {t1}, {t1}, {t3}\ns_add_u32 {t1}, {t1}, {TGP}')
    A(f's_lshl_b32 {t2}, {t0}, 3\ns_add_u32 {t2}, {t2}, {sLO}\ns_lshl_b32 {t2}, {t2}, 9\ns_add_u32 {t2}, {t2}, {t3}\ns_add_u32 {t2}, {t2}, {TGC}')
    st_off('v114', 9)
    A(f's_lshl_b32 {t1}, {sG}, 2\ns_add_u32 {t1}, {t1}, {g3}\ns_lshl_b32 {t1}, {t1}, 14\ns_lshl_b32 {t2}, {sLO}, 11\ns_add_u32 {t1}, {t1}, {t2}\ns_lshl_b32 {t2}, {sHI}, 9\ns_add_u32 {t1}, {t1}, {t2}\ns_add_u32 {t1}, {t1}, {TOP}')
    A(f'v_and_b32 {vTMP}, 2, {vL}\nv_lshlrev_b32 {vTMP}, 7, {vTMP}\nv_lshrrev_b32 {vTMP2}, 2, {vL}\nv_lshl_add_u32 {vTMP}, {vTMP2}, 4, {vTMP}\nv_add_u32 {vTMP}, {t1}, {vTMP}\nv_and_b32 {vTMP2}, 1, {vL}\nv_cmp_eq_u32 vcc, 0, {vTMP2}'); sel('v110', 'v118', vTMP)
    A(f's_lshl_b32 {t1}, {sLO}, 15\ns_lshl_b32 {t2}, {t0}, 10\ns_add_u32 {t1}, {t1}, {t2}\ns_lshr_b32 {t2}, {g3}, 1\ns_lshl_b32 {t2}, {t2}, 7\ns_add_u32 {t1}, {t1}, {t2}\ns_and_b32 {t2}, {g3}, 1\ns_lshl_b32 {t2}, {t2}, 5\ns_add_u32 {t1}, {t1}, {t2}\ns_add_u32 {t1}, {t1}, {TXA}')
    A(f'v_and_b32 {vTMP}, 1, v121\nv_lshlrev_b32 {vTMP}, 6, {vTMP}\nv_lshrrev_b32 {vTMP2}, 1, v121\nv_lshl_add_u32 {vTMP}, {vTMP2}, 4, {vTMP}\nv_lshl_add_u32 {vTMP}, v120, 8, {vTMP}\nv_add_u32 {vTMP}, {t1}, {vTMP}\nv_cmp_gt_u32 vcc, 4, v120'); sel('v47', 'v118', vTMP)
    A(f's_mov_b32 {sLAY}, 0\ns_mov_b32 {sTO}, 400000\ns_mov_b32 {sFAST}, 0\ns_mov_b32 {sCNT}, 0\ns_mov_b32 {sGOK}, 0\ns_mov_b32 {sLIDX}, 0')
    A(f's_lshl_b32 {t3}, {g3}, 6\ns_lshl_b32 {t1}, {sLO}, 10\ns_add_u32 {t1}, {t1}, {sGg}\ns_add_u32 {t1}, {t1}, {t3}\ns_add_u32 {t1}, {t1}, {LS}\ns_mov_b32 {t2}, {OOB}')
    st_off(vGst, 8)
    A(f'v_and_b32 {vTMP}, 7, {vL}\nv_lshlrev_b32 {vSt8}, 3, {vTMP}\nv_lshlrev_b32 {vL4}, 2, {vL}\nv_lshlrev_b32 {vML2}, 3, v121')
    A(f'v_cmp_eq_u32 vcc, 0, {vL}'); sel(vMLst, 'v118', '0')
    A(f's_lshl_b32 {t1}, {g3}, 8\nv_lshlrev_b32 {vTMP}, 4, v120\nv_lshl_add_u32 {vG1}, v121, 10, {vTMP}\nv_add_u32 {vG1}, {t1}, {vG1}')
    A(f's_lshl_b32 {t1}, {sW}, 6\nv_lshlrev_b32 {vXg}, 11, v123\nv_lshl_add_u32 {vXg}, v121, 9, {vXg}\nv_lshl_add_u32 {vXg}, v122, 4, {vXg}\nv_add_u32 {vXg}, {t1}, {vXg}')
    A(f's_lshr_b32 {t1}, {sW}, 1\ns_mul_i32 {t1}, {t1}, 192\ns_and_b32 {t2}, {sW}, 1\ns_lshl_b32 {t2}, {t2}, 6\ns_add_u32 {t1}, {t1}, {t2}\ns_add_u32 {t1}, {t1}, {L_XS}\nv_add_u32 {vXW}, {t1}, v117')
    A(f's_mul_i32 {t1}, {g3}, 320\ns_add_u32 {t1}, {t1}, {L_QS}\nv_lshl_add_u32 {vQW}, v121, 2, {vTMP}\nv_add_u32 {vQW}, {t1}, {vQW}')
    A(f's_mul_i32 {t1}, {g3}, 192\ns_add_u32 {t1}, {t1}, {L_HS}\nv_lshlrev_b32 {vHW}, 3, v120\nv_lshl_add_u32 {vHW}, v121, 1, {vHW}\nv_add_u32 {vHW}, {t1}, {vHW}')
    A(f'v_mul_u32_u24 {vBR320}, 320, v122\nv_lshl_add_u32 {vBR320}, v121, 4, {vBR320}\nv_add_u32 {vBR320}, {L_QS}, {vBR320}')
    A(f'v_mul_u32_u24 {vBR192}, 192, v122\nv_lshl_add_u32 {vBR192}, v121, 4, {vBR192}\nv_add_u32 {vBR192}, {L_HS}, {vBR192}')
    A(f'v_min_u32 {vTMP2}, 4, v120\nv_mul_u32_u24 {vXR}, 192, {vTMP2}\nv_lshl_add_u32 {vXR}, v121, 4, {vXR}\nv_add_u32 {vXR}, {L_XS}, {vXR}')
    A(f's_lshl_b32 {t1}, {g3}, 5\nv_lshlrev_b32 {vTMP2}, 7, v120\nv_lshl_add_u32 {vTMP2}, v121, 3, {vTMP2}\nv_add_u32 {vTMP2}, {t1}, {vTMP2}\nv_cmp_gt_u32 vcc, 4, v120'); sel(vXst, 'v118', vTMP2)
    A(f'v_lshlrev_b32 {vTMP2}, 4, {vL}\nv_add_u32 {vROW}, {sRING}, {vTMP2}')
    A(f's_lshr_b32 {t1}, {g3}, 1\ns_lshl_b32 {t1}, {t1}, 10\ns_and_b32 {t2}, {g3}, 1\ns_lshl_b32 {t2}, {t2}, 3\ns_add_u32 {t1}, {t1}, {t2}\nv_add_u32 {vROR}, {t1}, {vTMP2}')
    A(f's_lshl_b32 {t1}, {sW}, 3\ns_add_u32 {t1}, {t1}, {L_RM}\nv_lshlrev_b32 {vRMW}, 6, v122\nv_add_u32 {vRMW}, {t1}, {vRMW}')
    A(f's_lshl_b32 {t1}, {g3}, 6\ns_add_u32 {t1}, {t1}, {L_RM}\nv_add_u32 {vRMR}, {t1}, {vSt8}')
    A(f'v_lshl_add_u32 v125, v121, 3, v123')
    A(f'v_xor_b32 {vTMP}, {g3}, v123\nv_lshlrev_b32 {vTMP}, 6, {vTMP}\nv_lshl_add_u32 {vTMP}, v122, 4, {vTMP}\nv_lshl_add_u32 {vWQr}, v125, 8, {vTMP}\nv_add_u32 {vWQr}, {L_WQ}, {vWQr}')
    A(f'v_lshrrev_b32 v119, 1, v123\nv_and_b32 v127, 1, v121\nv_lshlrev_b32 {vTMP}, 1, v127')
    A(f'v_xor_b32 {vTMP}, {g3}, {vTMP}\nv_lshlrev_b32 {vTMP}, 5, {vTMP}\nv_lshl_add_u32 {vTMP}, v122, 3, {vTMP}\nv_lshl_add_u32 {vWr}, v125, 7, {vTMP}\nv_add_u32 {vWr}, {L_WG}, {vWr}')
    A(f'v_and_b32 v126, 1, v123\nv_lshlrev_b32 {vTMP}, 1, v126\nv_xor_b32 {vTMP}, {g3}, {vTMP}\nv_lshlrev_b32 {vTMP}, 5, {vTMP}\nv_lshl_add_u32 {vTMP}, v122, 3, {vTMP}')
    A(f'v_lshl_add_u32 {vTMP2}, v121, 2, v119\nv_lshl_add_u32 {vTMP2}, v126, 6, {vTMP2}\nv_lshl_add_u32 {vWOr}, {vTMP2}, 7, {vTMP}\nv_add_u32 {vWOr}, {L_WO}, {vWOr}')
    A(f'v_and_b32 v125, 1, v120\nv_mov_b32 {vTMP}, 0xffff\nv_mov_b32 {vTMP2}, 0xffff0000\nv_cmp_eq_u32 vcc, 1, v125'); sel('v119', vTMP, vTMP2)
    A(f'v_cmp_gt_u32 vcc, 2, v122'); sel('v119', '0', 'v119')
    for i in range(4):
        A(f'v_cmp_eq_u32 vcc, {i}, v123'); sel(f'v{MASK+i}', '0', 'v119'); A(f'v_and_b32 v{32+i}, 0x3f803f80, v{MASK+i}')
    A(f'v_mov_b32 {vTMP}, 0x3f80\nv_mov_b32 {vTMP2}, 0x3f800000\nv_cmp_eq_u32 vcc, 1, v126'); sel('v119', vTMP, vTMP2)
    A(f'v_cmp_gt_u32 vcc, 2, v122'); sel('v119', '0', 'v119')
    A(f'v_lshrrev_b32 {vTMP}, 1, v123\nv_lshl_add_u32 {vTMP}, v125, 1, {vTMP}')
    for i in range(4):
        A(f'v_cmp_eq_u32 vcc, {i}, {vTMP}'); sel(f'v{40+i}', '0', 'v119')
    A('v_mov_b32 v44, 0x3f803f80\nv_mov_b32 v45, 0x3f803f80')
    A(f'v_and_b32 {vTMP2}, 7, {vL}\nv_lshrrev_b32 v119, 3, {vL}')
    A(f's_lshr_b32 {t1}, {sW}, 2\ns_lshl_b32 {t1}, {t1}, 2\nv_xor_b32 {vTMP}, {t1}, {vTMP2}\nv_lshlrev_b32 {vTMP}, 4, {vTMP}\nv_lshl_add_u32 v124, v119, 10, {vTMP}')
    A(f's_and_b32 {t1}, {sW}, 1\ns_lshl_b32 {t1}, {t1}, 2\nv_xor_b32 {vTMP}, {t1}, {vTMP2}\nv_lshlrev_b32 {vTMP}, 4, {vTMP}')
    A(f'v_lshl_add_u32 v127, v119, 10, {vTMP}\nv_mul_u32_u24 v126, 3584, v119\nv_add_u32 v126, v126, {vTMP}')
    A(f's_cmp_ge_u32 {sG}, 4\ns_cselect_b32 {t2}, 3, 4\ns_cmp_lt_u32 {sHI}, {t2}\ns_cselect_b32 {t2}, 0, {OOB}\nv_add_u32 v126, {t2}, v126\nv_add_u32 v127, {t2}, v127')
    A(f'v_lshlrev_b32 {vTMP}, 1, v123\nv_xor_b32 {vTMP}, v121, {vTMP}\nv_lshlrev_b32 {vTMP}, 5, {vTMP}\nv_lshl_add_u32 {vTMP}, v122, 3, {vTMP}\nv_lshl_add_u32 {vTMP}, v123, 8, {vTMP}\nv_add_u32 v122, {sRING}, {vTMP}\nv_xor_b32 v123, 128, v122')
    A(f'v_and_b32 {vTMP}, 3, v120\nv_lshlrev_b32 {vTMP}, 6, {vTMP}\nv_lshl_add_u32 {vTMP}, v121, 4, {vTMP}\nv_lshl_add_u32 {vTMP}, v120, 8, {vTMP}\nv_add_u32 v118, {sRING}, {vTMP}')
    for j in range(1, 4): A(f'v_xor_b32 v{118+j}, {64*j}, v118')
    A(f'v_and_b32 {vTMP}, 124, {vL4}\nv_add_u32 {vTMP}, {L_XS+4*192}, {vTMP}\nds_write_b32 {vTMP}, v44')

    def read_k(i):
        for j in range(4): A(f'ds_read_b128 a[{16*i+4*j}:{16*i+4*j+3}], v{118+j} offset:{(i&1)*4096}')
    def read_v(p):
        i = p - 16
        for hf in range(2):
            r = 64 + 4 * i + 2 * hf
            A(f'ds_read_b64_tr_b16 a[{r}:{r+1}], v{122+hf} offset:{((p//4)&1)*4096 + (p%4)*1024}')
    if not late47:
        for p in range(burst, 8): piece(p)
    if diag: xstamp(40)
    A.wait_vm('ep')
    if diag: xstamp(41)
    A(f'v_and_b32 v113, 0xffff0000, v68\nv_lshlrev_b32 v112, 16, v68')
    A(f'v_readfirstlane_b32 {sTAG}, v69\ns_add_u32 {sTAG}, {sTAG}, 1')
    A('v_dot2_f32_bf16 v78, v72, v44, 0\nv_dot2_f32_bf16 v79, v72, v72, 0')
    for k in range(73, 76): A(f'v_dot2_f32_bf16 v78, v{k}, v44, v78\nv_dot2_f32_bf16 v79, v{k}, v{k}, v79')
    for m in ('quad_perm:[1,0,3,2]', 'quad_perm:[2,3,0,1]', 'row_half_mirror', 'row_mirror'):
        A(f'v_add_f32_dpp v78, v78, v78 {m} {DPP}\nv_add_f32_dpp v79, v79, v79 {m} {DPP}')
    for sw in ('v_permlane16_swap_b32', 'v_permlane32_swap_b32'):
        A(f'v_mov_b32 v76, v78\nv_mov_b32 v77, v79\n{sw} v78, v76\n{sw} v79, v77\nv_add_f32 v78, v78, v76\nv_add_f32 v79, v79, v77')
    c2 = QSCALE * QSCALE
    A(f'v_mov_b32 v75, {f32(1e-5/c2)}\nv_mul_f32 v74, v78, v78\nv_fmac_f32 v75, {f32(1/(512*c2))}, v79\nv_fmac_f32 v75, {f32(-1/(512*512*c2))}, v74\nv_max_f32 v75, {f32(1e-5/c2)}, v75\nv_rsq_f32 v74, v75')
    A(f'v_mul_f32 v78, {f32(-1/512)}, v78\nv_add_f32 v72, v112, v78\nv_add_f32 v73, v113, v78\nv_mul_f32 v72, v72, v74\nv_mul_f32 v73, v73, v74\nv_cvt_pk_bf16_f32 v72, v72, v73\nds_write_b32 {vXW}, v72')
    if late47:
        for p in range(burst, 8): piece(p)
    if diag: xstamp(42)
    A.wait_vm('wq')
    if diag: xstamp(43)
    if bar_after_k0:
        A.wait_vm('p3')
        read_k(0)
        A('s_waitcnt lgkmcnt(0)')
        for p in range(8, 12): piece(p)
    A('s_waitcnt lgkmcnt(0)')
    if 'B' not in abl: A('s_barrier')
    stamp()

    def read_wq():
        for tl in range(2):
            for j in range(2):
                for u in range(2):
                    r = 48 + 8 * tl + 4 * j + 2 * u
                    A(f'ds_read_b64_tr_b16 v[{r}:{r+1}], {vWQr} offset:{8*tl+8192*j+1024*u}')
    def read_gu():
        for tl in range(2):
            for j in range(2):
                for u in range(2):
                    r = 48 + 8 * tl + 4 * j + 2 * u
                    A(f'ds_read_b64_tr_b16 v[{r}:{r+1}], {vWr} offset:{8192*tl+4096*j+512*u}')
    def read_wd():
        for j in range(2):
            for u in range(2):
                A(f'ds_read_b64_tr_b16 v[{48+4*j+2*u}:{49+4*j+2*u}], {vWr} offset:{16384+4096*j+512*u}')
    def read_wo():
        for j in range(4):
            for u in range(2):
                A(f'ds_read_b64_tr_b16 v[{48+4*j+2*u}:{49+4*j+2*u}], {vWOr} offset:{2048*j+256*u}')
    def matvec(vst, mode, late_w=None, _=None):
        A(f'ds_read_b128 v[80:83], {vXR}\nds_read_b128 v[84:87], {vXR} offset:64')
        if late_w: late_w()
        A('s_waitcnt lgkmcnt(0)' if late_w else 's_waitcnt lgkmcnt(1)')
        A(f'{M16} v[96:99], v[48:51], v[80:83], 0\n{M16} v[104:107], v[56:59], v[80:83], 0')
        if not late_w: A('s_waitcnt lgkmcnt(0)')
        A(f'{M16} v[96:99], v[52:55], v[84:87], v[96:99]\n{M16} v[104:107], v[60:63], v[84:87], v[104:107]')
        if mode == 'plain':
            A(f's_cmp_eq_u32 {sFAST}, 1')
            A('v_cvt_pk_bf16_f32 v96, v96, v97\nv_cvt_pk_bf16_f32 v97, v98, v99\nv_cvt_pk_bf16_f32 v98, v104, v105\nv_cvt_pk_bf16_f32 v99, v106, v107')
            lstore(f'buffer_store_dwordx4 v[96:99], {vst}, {WS}, 0 offen', cmp=False)
            return
        A(f'v_mov_b32 v102, {sTAG}\nv_mov_b32 v103, s64')
        A(f'v_cvt_pk_bf16_f32 v100, v96, v97\nv_cvt_pk_bf16_f32 v101, v98, v99\nv_cvt_pk_bf16_f32 v104, v104, v105\nv_cvt_pk_bf16_f32 v105, v106, v107')
        A(f'v_mov_b32 v106, {sTAG}\nv_mov_b32 v107, s64')
        if mode == 'q0':
            A.vmop(f'buffer_store_dwordx4 v[100:103], {vst}, {WS}, 0 offen', 'st')
            A.vmop(f'buffer_store_dwordx4 v[104:107], {vst}, {WS}, 0 offen offset:256', 'st')
        else:
            lstore(f'buffer_store_dwordx4 v[100:103], {vst}, {WS}, 0 offen\nbuffer_store_dwordx4 v[104:107], {vst}, {WS}, 0 offen offset:256')
    def slice_stats(sst, maybe_tagged=False):
        l = lab('st')
        A(f's_cmp_lg_u32 {sW}, 4\ns_cbranch_scc1 {l}')
        A(f'ds_read_b128 v[80:83], {vXR}\nds_read_b128 v[84:87], {vXR} offset:64\ns_waitcnt lgkmcnt(1)')
        A(f'{M16} v[104:107], v[80:83], v[80:83], 0\ns_waitcnt lgkmcnt(0)\n{M16} v[104:107], v[84:87], v[84:87], v[104:107]')
        def pick():
            A('v_cndmask_b32 v104, v104, v105, s[80:81]\nv_cndmask_b32 v106, v106, v107, s[80:81]\nv_cndmask_b32 v104, v104, v106, s[82:83]')
        A('s_mov_b64 s[80:81], 10\ns_mov_b64 s[82:83], 12')
        if maybe_tagged:
            tg_ = lab('tg')
            A(f's_cmp_eq_u32 {sLIDX}, 0\ns_cbranch_scc1 {tg_}')
            keepL, A.L = A.L, []
            A(f'{tg_}:\ns_lshl_b32 {t1}, {sG}, 2\ns_add_u32 {t1}, {t1}, {sHI}\ns_lshl_b32 {t1}, {t1}, 5\ns_add_u32 {t1}, {t1}, {sLO}\ns_lshl_b32 {t1}, {t1}, 4\ns_add_u32 {t1}, {t1}, {TGS}')
            A(f'v_lshlrev_b32 {vTMP}, 1, {vSSt}\nv_min_u32 {vTMP}, {OOB}, {vTMP}')
            pick()
            A(f'v_mov_b32 v105, {sTAG}')
            lstore(f'buffer_store_dwordx2 v[104:105], {vTMP}, {WS}, {t1} offen'); A.vm.pop()
            A(f's_branch {l}')
            tails.append('\n'.join(A.L)); A.L = keepL
        A(f's_cmp_eq_u32 {sFAST}, 1')
        pick()
        lstore(f'buffer_store_dword v104, {vSSt}, {WS}, {sst} offen', cmp=False)
        A.vm.pop()
        A(f'{l}:')

    def issue_g1(dst, voff, sbase, tag, step=4096):
        A.vmop(f'buffer_load_dwordx4 v[{dst}:{dst+3}], {voff}, {WS}, {sbase} offen sc1', tag)
        if step >= 4096:
            A(f's_add_u32 {t1}, {sbase}, {step}')
            A.vmop(f'buffer_load_dwordx4 v[{dst+4}:{dst+7}], {voff}, {WS}, {t1} offen sc1', tag)
        else:
            A.vmop(f'buffer_load_dwordx4 v[{dst+4}:{dst+7}], {voff}, {WS}, {sbase} offen offset:{step} sc1', tag)
    def check_empty(regs):
        regs = list(regs)
        A(f'v_max3_u32 {vTMP}, v{regs[0]}, v{regs[1]}, v{regs[2]}'); rest = regs[3:]
        if len(rest) >= 5:
            A(f'v_max3_u32 {vTMP2}, v{rest[0]}, v{rest[1]}, v{rest[2]}'); rest = rest[3:]
            tg = 0
            while len(rest) >= 2:
                d = (vTMP, vTMP2)[tg]; A(f'v_max3_u32 {d}, {d}, v{rest[0]}, v{rest[1]}'); rest = rest[2:]; tg ^= 1
            if rest: A(f'v_max3_u32 {vTMP}, {vTMP}, {vTMP2}, v{rest[0]}')
            else: A(f'v_max_u32 {vTMP}, {vTMP}, {vTMP2}')
        else:
            while len(rest) >= 2:
                A(f'v_max3_u32 {vTMP}, {vTMP}, v{rest[0]}, v{rest[1]}'); rest = rest[2:]
            if rest: A(f'v_max_u32 {vTMP}, {vTMP}, v{rest[0]}')
        A(f'v_cmp_eq_u32 vcc, -1, {vTMP}')
    def poll(issue, regs, spec=None):
        r, d = lab('retry'), lab('got')
        A(f'{r}:')
        issue()
        A.wait_vm()
        if spec: spec()
        check_empty(regs)
        tl = lab('again')
        A(f's_cbranch_vccnz {tl}\n{d}:')
        tails.append(f'{tl}:\n' + (f's_sleep {backoff}\n' if backoff else '') + f's_sub_u32 {sTO}, {sTO}, 1\ns_cbranch_scc0 {r}\ns_mov_b32 {sTO}, 0\ns_branch {d}')
    def issue_q(first):
        if not first:
            issue_g1(64, vG1, sQg, 'q')
            A.vmop(f'buffer_load_dwordx2 v[72:73], {vSt8}, {WS}, {sQSg} offen sc1', 'q')
            return
        issue_tagged(f's_mov_b32 {t1}, s101')
    def issue_tagged(base, dst=80, voff=None, kstep=8192, hstep=256):
        if voff is None:
            A(f'v_and_b32 {vTMP2}, 0xf0, {vG1}\nv_lshlrev_b32 {vTMP}, 1, {vG1}\nv_sub_u32 {vTMP}, {vTMP}, {vTMP2}')
        else: A(voff)
        A(base + f'\ns_add_u32 {t2}, {t1}, {kstep}')
        for k in range(2):
            for hh in range(2):
                r = dst[2 * k + hh] if isinstance(dst, tuple) else dst + 8 * k + 4 * hh
                A.vmop(f'buffer_load_dwordx4 v[{r}:{r+3}], {vTMP}, {WS}, {(t1, t2)[k]} offen offset:{hstep*hh} sc1', 'q')
    def issue_o0():
        issue_tagged(f's_lshl_b32 {t1}, {sG}, 2\ns_add_u32 {t1}, {t1}, {sHI}\ns_lshl_b32 {t0}, {t1}, 2\ns_lshl_b32 {t1}, {t1}, 14\ns_add_u32 {t1}, {t1}, {TOP}', o0dst[0])
        A(f's_add_u32 {t0}, {t0}, {sW}\ns_lshl_b32 {t0}, {t0}, 7\ns_add_u32 {t0}, {t0}, {TML}\nv_lshlrev_b32 {vTMP2}, 1, {vML2}')
        m_ = 64 if o0dst[0] == 80 else 48
        A.vmop(f'buffer_load_dwordx4 v[{m_}:{m_+3}], {vTMP2}, {WS}, {t0} offen sc1', 'q')
        A.vmop(f'buffer_load_dwordx4 v[{m_+4}:{m_+7}], {vTMP2}, {WS}, {t0} offen offset:64 sc1', 'q')
    o0dst = [80]
    def check_words(words, sval):
        w = list(words)
        A(f'v_xor_b32 {vTMP}, {sval}, v{w[0]}')
        for x in w[1:]: A(f'v_xor_b32 {vTMP2}, {sval}, v{x}\nv_or_b32 {vTMP}, {vTMP}, {vTMP2}')
        A(f'v_cmp_ne_u32 vcc, 0, {vTMP}')
    def check_tags(words=(82, 86, 90, 94)): check_words(words, sTAG)
    def tagged_sum(selbase=32, src=80, acc=96, selk=0):
        for n_, (k, hh) in enumerate(((0, 0), (0, 1), (1, 0), (1, 1))):
            r = src[2 * k + hh] if isinstance(src, tuple) else src + 8 * k + 4 * hh
            sb = selbase + selk * k + 2 * hh
            c = '0' if n_ == 0 else f'v[{acc}:{acc+3}]'
            A(f'v_mfma_f32_16x16x16_bf16 v[{acc}:{acc+3}], v[{sb}:{sb+1}], v[{r}:{r+1}], {c}')
    def q0_finish():
        tagged_sum()
        check_words((83, 87, 91, 95), 's64')
        A(f's_cmp_eq_u64 vcc, 0\ns_cselect_b32 {sGOK}, 1, 2')
        A(f'v_cvt_pk_bf16_f32 v96, v96, v97\nds_write_b32 {vQW}, v96')
    def tagged_poll(issue, words=(82, 86, 90, 94), spec=None, back=0):
        rq, gq = lab('rq'), lab('gq')
        A(f'{rq}:')
        issue(); A.wait_vm()
        if spec: spec()
        check_tags(words)
        A(f's_cbranch_vccz {gq}')
        if back: A(f's_sleep {back}')
        A(f's_sub_u32 {sTO}, {sTO}, 1\ns_cbranch_scc0 {rq}\ns_mov_b32 {sTO}, 0\n{gq}:')
    CQ = (48, 52, 56, 60)
    def issue_csq(): issue_tagged(f's_lshl_b32 {t1}, {sG}, 14\ns_add_u32 {t1}, {t1}, {TQC}', CQ)
    def finish_csq():
        ok_ = lab('cq')
        check_tags(tuple(r + 2 for r in CQ))
        A(f's_cbranch_vccz {ok_}')
        tagged_poll(issue_csq, tuple(r + 2 for r in CQ))
        A(f'{ok_}:')
        tagged_sum(32, CQ, 64)
        A(f's_mov_b32 {t2}, {f32(1/512)}\nv_pk_mul_f32 {CSQ}, v[64:65], s[56:57] op_sel_hi:[1,0]')
    QREGS = list(range(64, 74)); QREGS1 = QREGS + list(range(80, 88))
    def ln_spec(selop, first):
        def f():
            A(f'{M16} v[96:99], {selop}, v[64:67], 0\n{M16} v[96:99], {selop}, v[68:71], v[96:99]')
            if first:
                A(f'{M16} v[100:103], {selop}, v[80:83], 0\n{M16} v[100:103], {selop}, v[84:87], v[100:103]')
            A(f'v_add_f32_dpp v78, v72, v72 quad_perm:[1,0,3,2] {DPP}\nv_add_f32_dpp v79, v73, v73 quad_perm:[1,0,3,2] {DPP}')
        return f
    def ln_finish(cs, scale, first):
        for m in ('quad_perm:[2,3,0,1]', 'row_half_mirror'):
            A(f'v_add_f32_dpp v78, v78, v78 {m} {DPP}\nv_add_f32_dpp v79, v79, v79 {m} {DPP}')
            if m.startswith('quad'): A(f'v_mov_b32 v75, {f32(1e-5/(scale*scale))}')
        c2 = scale * scale
        A(f'v_mul_f32 v74, v78, v78\nv_fmac_f32 v75, {f32(1/(512*c2))}, v79')
        if first:
            A(f's_mov_b32 {t2}, {f32(1/512)}\nv_pk_mul_f32 {cs}, v[100:101], s[56:57] op_sel_hi:[1,0]')
        A(f'v_fmac_f32 v75, {f32(-1/(512*512*c2))}, v74\nv_max_f32 v75, {f32(1e-5/c2)}, v75\nv_rsq_f32 v74, v75')
        A(f'v_pk_fma_f32 v[96:97], v[78:79], {cs}, v[96:97] op_sel_hi:[0,1,1] neg_lo:[1,0,0] neg_hi:[1,0,0]')
        A(f'v_pk_mul_f32 v[96:97], v[96:97], v[74:75] op_sel_hi:[1,0]')
    def q_finish(first):
        ln_finish(CSQ, QSCALE, first)
        A(f'v_cvt_pk_bf16_f32 v96, v96, v97\nds_write_b32 {vQW}, v96')

    save = list(A.vm)
    with lowwaves():
        read_wq()
        A('s_waitcnt lgkmcnt(0)')
        if 'Q' not in abl: matvec('v109', 'q0')
    stamp()

    def issue_wo():
        A(f's_lshl_b32 {t1}, {sG}, 9\ns_lshl_b32 {t2}, {sHI}, 7\ns_add_u32 {t1}, {t1}, {t2}\ns_lshl_b32 {t2}, {sW}, 4\ns_add_u32 {t1}, {t1}, {t2}\ns_lshl_b32 {t1}, {t1}, 10\ns_lshl_b32 {t2}, {sLO}, 7\ns_add_u32 {t1}, {t1}, {t2}')
        A(f's_lshl_b32 {t2}, {sW}, 11\ns_add_u32 m0, {t2}, {L_WO}')
        A.vmop(f'buffer_load_dwordx4 v124, {WO}, {t1} offen nt lds', 'wo')
        A(f's_add_u32 {t1}, {t1}, 8192\ns_add_u32 m0, m0, 1024')
        A.vmop(f'buffer_load_dwordx4 v124, {WO}, {t1} offen nt lds', 'wo')

    def issue_ffn(dw=0, track=False, parts='gud'):
        vm_ = (lambda x: A.vmop(x, 'ffn')) if track else A
        A(f's_add_u32 {t0}, {sW}, {dw}')
        if 'g' in parts:
            A(f's_lshl_b32 {t1}, {sLO}, 6\ns_lshl_b32 {t2}, {t0}, 3\ns_add_u32 {t1}, {t1}, {t2}\ns_mul_i32 {t1}, {t1}, 3584\ns_lshl_b32 {t2}, {g2}, 7\ns_add_u32 {t1}, {t1}, {t2}')
        A(f's_lshl_b32 {t2}, {t0}, 10\ns_add_u32 m0, {t2}, {L_WG}')
        if 'g' in parts:
            vm_(f'buffer_load_dwordx4 v126, {WG}, {t1} offen nt lds')
            A(f's_add_u32 m0, {t2}, {L_WU}')
            vm_(f'buffer_load_dwordx4 v126, {WU}, {t1} offen nt lds')
        if 'd' not in parts: return
        A(f's_lshl_b32 {t1}, {g2}, 6\ns_lshl_b32 {t3}, {t0}, 3\ns_add_u32 {t1}, {t1}, {t3}\ns_lshl_b32 {t1}, {t1}, 10\ns_lshl_b32 {t3}, {sLO}, 7\ns_add_u32 {t1}, {t1}, {t3}\ns_add_u32 m0, {t2}, {L_WD}')
        vm_(f'buffer_load_dwordx4 v127, {WD}, {t1} offen nt lds')
    wait_of = {}
    d = 6
    for p_ in range(12, 32):
        tgt = depth if p_ < deep_from else deep
        need_d = p_ - tgt
        if p_ in (12, 16, 20): need_d = max(need_d, p_ - 5)
        if need_d > d: wait_of[p_] = list(range(d + 1, need_d + 1)); d = need_d
        else: wait_of[p_] = []
    last_read = d
    def step(p):
        for d_ in wait_of[p]:
            A.wait_vm(f'p{d_}')
            if d_ < 16:
                if d_ % 4 == 3: read_k(d_ // 4); A('s_waitcnt lgkmcnt(0)')
            else:
                A('s_waitcnt lgkmcnt(0)')
                read_v(d_)
            if diag and d_ in (7, 11, 15, 19, 23): xstamp(45 + (d_ - 7) // 4)
        if p == ffn_at: issue_ffn(0, True)
        if p == wo_at: issue_wo()
        piece(p)
    hi_l, join_all, flag_l = lab('shi'), lab('sj'), lab('fl')
    def lead_in():
        if not bar_after_k0:
            A.wait_vm('p3')
            if diag: xstamp(44)
            read_k(0); A('s_waitcnt lgkmcnt(0)')
            for pp in range(8, 12): piece(pp)
    lowcode = [True]
    def steps(lo_, hi_):
        for pp in range(lo_, hi_):
            if pp == touch_o and lowcode[0]:
                n_ = len(A.vm); o0dst[0] = 48; issue_o0(); o0dst[0] = 80
                A.vm[n_:] = ['touch'] * (len(A.vm) - n_)
            if pp == csq_at and lowcode[0]:
                n_ = len(A.vm); issue_csq(); A.vm[n_:] = ['csq'] * (len(A.vm) - n_)
            step(pp)
    A(f's_cmp_ge_u32 {sW}, 4\ns_cbranch_scc1 {hi_l}')
    lead_in()
    p = 12
    while p < 32:
        if p in rides:
            skip, join = lab('noq'), lab('jn')
            saved = list(A.vm)
            A(f's_cmp_lg_u32 {sGOK}, 0\ns_cbranch_scc1 {skip}')
            issue_q(True)
            steps(p, p + 5)
            if 'q' in A.vm: A.wait_vm('q')
            check_tags()
            nq = lab('nq')
            A(f's_cbranch_vccnz {nq}')
            q0_finish()
            A(f'{nq}:\ns_branch {join}\n{skip}:')
            after_q = list(A.vm)
            A.vm = saved
            steps(p, p + 5)
            extra = len(A.vm) - len(after_q)
            assert A.vm[extra:] == after_q, (A.vm, after_q)
            A.vm = after_q if extra <= 0 else A.vm
            A(f'{join}:')
            p += 5
        else:
            steps(p, p + 1); p += 1
    saved = list(A.vm)
    def put_status():
        A(f's_lshl_b32 {t1}, {sW}, 2\ns_add_u32 {t1}, {t1}, {L_ST}\nv_mov_b32 {vTMP}, {t1}\nv_mov_b32 {vTMP2}, {sGOK}\nds_write_b32 {vTMP}, {vTMP2}')
    def get_status():
        A(f'v_mov_b32 {vTMP}, {L_ST}\nds_read_b128 v[72:75], {vTMP}\ns_waitcnt lgkmcnt(0)')
        check_words((72, 73, 74, 75), '1')
        A('s_cmp_eq_u64 vcc, 0')
    put_status()
    A(f's_branch {join_all}\n{hi_l}:')
    A.vm = save; lowcode[0] = False
    lead_in()
    steps(12, 32)
    saved = list(A.vm)
    A(f'{join_all}:')
    stamp()
    A('s_waitcnt lgkmcnt(0)\ns_barrier')
    get_status()
    okq = lab('okq')
    A(f's_cbranch_scc1 {okq}')
    if not abl:
        with lowwaves():
            A(f'buffer_store_dwordx4 v[100:103], v109, {WS}, 0 offen sc1\nbuffer_store_dwordx4 v[104:107], v109, {WS}, 0 offen offset:256 sc1')
            dn = lab('qdone')
            A(f's_cmp_lg_u32 {sGOK}, 0\ns_cbranch_scc1 {dn}')
            tagged_poll(lambda: issue_q(True))
            q0_finish()
            A(f'{dn}:')
        A('s_barrier')
        with lowwaves(): put_status()
        A('s_waitcnt lgkmcnt(0)\ns_barrier')
        get_status()
    A(f'{okq}:\ns_cselect_b32 {sFAST}, 1, 0')
    A.vm = saved
    def scores(bar=True):
        if bar: A('s_waitcnt lgkmcnt(0)\ns_barrier')
        for j in range(4): A(f'ds_read_b128 v[{64+4*j}:{67+4*j}], {vBR320} offset:{64*j}')
        def sel_t(t, rs):
            for r in rs: A(f'v_mov_b32_dpp v{80+r}, v{80+4*t+r} quad_perm:[0,1,2,3] row_mask:0xf bank_mask:{1<<t:#x}')
        if tmajor:
            for t in range(4):
                for j in range(4):
                    if t == 0: A(f's_waitcnt lgkmcnt({3-j})')
                    c = '0' if j == 0 else f'v[{80+4*t}:{83+4*t}]'
                    A(f'{M16} v[{80+4*t}:{83+4*t}], a[{16*t+4*j}:{16*t+4*j+3}], v[{64+4*j}:{67+4*j}], {c}')
            sel_t(1, range(4)); sel_t(2, range(4)); sel_t(3, range(4))
        else:
            for j in range(4):
                A(f's_waitcnt lgkmcnt({3-j})')
                for t in range(4):
                    c = '0' if j == 0 else f'v[{80+4*t}:{83+4*t}]'
                    A(f'{M16} v[{80+4*t}:{83+4*t}], a[{16*t+4*j}:{16*t+4*j+3}], v[{64+4*j}:{67+4*j}], {c}')
            for t in range(1, 4): sel_t(t, range(4))
        A('v_max3_f32 v84, v80, v81, v82\nv_max_f32 v84, v84, v83')
        A(f'v_max_f32_dpp v84, v84, v84 row_ror:4 {DPP}')
        A(f'v_max_f32_dpp v84, v84, v84 row_ror:8 {DPP}')
        A('v_mov_b32 v85, v84\nv_permlane16_swap_b32 v84, v85\nv_max_f32 v84, v84, v85')
        A('v_mov_b32 v85, v84\nv_permlane32_swap_b32 v84, v85\nv_max_f32 v84, v84, v85')
        A('v_pk_add_f32 v[80:81], v[80:81], v[84:85] op_sel_hi:[1,0] neg_lo:[0,1] neg_hi:[0,1]')
        A('v_pk_add_f32 v[82:83], v[82:83], v[84:85] op_sel_hi:[1,0] neg_lo:[0,1] neg_hi:[0,1]')
        for r in range(4): A(f'v_exp_f32 v{80+r}, v{80+r}')
        A('v_cvt_pk_bf16_f32 v86, v80, v81\nv_cvt_pk_bf16_f32 v87, v82, v83')
        A(f'v_mfma_f32_16x16x16_bf16 v[88:91], {ONES}, v[86:87], 0')
    def pv(i):
        for hf in range(2):
            acc = 96 + 8 * (i & 1) + 4 * hf
            c = '0' if i < 2 else f'v[{acc}:{acc+3}]'
            A(f'v_mfma_f32_4x4x4_16b_bf16 v[{acc}:{acc+3}], v[86:87], a[{64+4*i+2*hf}:{65+4*i+2*hf}], {c} cbsz:4 abid:{4*(i&3)+(i>>2)}')
    def lsum():
        A(f'v_add_f32_dpp v85, v88, v88 row_ror:4 {DPP}')
        A(f'v_add_f32_dpp v85, v85, v85 row_ror:8 {DPP}')
        A(f's_mov_b64 exec, 15\nds_write_b64 {vRMW}, v[84:85]')
        full_exec()
    def combine(tagged=False):
        for h in range(4):
            A(f'v_add_f32 v{64+2*h}, v{96+h}, v{104+h}\nv_add_f32 v{65+2*h}, v{100+h}, v{108+h}')
            if h & 1: A(f'ds_write_b128 {vROW}, v[{62+2*h}:{65+2*h}] offset:{512*(h-1)}')
        A('s_waitcnt lgkmcnt(0)\ns_barrier')
        with lowwaves():
            A(f'ds_read_b64 v[72:73], {vRMR}')
            for k in range(8): A(f'ds_read_b64 v[{80+2*k}:{81+2*k}], {vROR} offset:{8192*k}')
            A('s_waitcnt lgkmcnt(8)')
            A(f'v_max_f32_dpp v74, v72, v72 quad_perm:[1,0,3,2] {DPP}')
            A(f'v_max_f32_dpp v74, v74, v74 quad_perm:[2,3,0,1] {DPP}')
            A(f'v_max_f32_dpp v74, v74, v74 row_half_mirror {DPP}')
            A('v_sub_f32 v72, v72, v74\nv_exp_f32 v72, v72')
            for k in range(8): A(f'v_readlane_b32 s{80+k}, v72, {k}')
            A('v_mul_f32 v75, v73, v72\ns_waitcnt lgkmcnt(0)')
            for k in range(8):
                sp = f's[{80+(k&~1)}:{81+(k&~1)}]'
                o = 'op_sel_hi:[1,0' if (k & 1) == 0 else 'op_sel:[0,1'
                d = 64 + 2 * (k & 1)
                if k < 2: A(f'v_pk_mul_f32 v[{d}:{d+1}], v[{80+2*k}:{81+2*k}], {sp} {o}]')
                else: A(f'v_pk_fma_f32 v[{d}:{d+1}], v[{80+2*k}:{81+2*k}], {sp}, v[{d}:{d+1}] {o},{1 if (k&1)==0 else 0}]')
            A('v_pk_add_f32 v[64:65], v[64:65], v[66:67]\nv_cvt_pk_bf16_f32 v64, v64, v65')
            if tagged:
                A(f'v_mov_b32 v66, {sTAG}\nv_mov_b32 v67, {sTAG}\nv_mov_b32_dpp v65, v64 quad_perm:[1,1,3,3] {DPP}')
                lstore(f'buffer_store_dwordx4 v[64:67], v118, {WS}, 0 offen')
                A(f'v_mov_b32 v76, {sTAG}\nv_mov_b32 v77, {sTAG}')
                A(f's_lshl_b32 {t1}, {sG}, 2\ns_add_u32 {t1}, {t1}, {sW}\ns_lshl_b32 {t1}, {t1}, 2\ns_add_u32 {t1}, {t1}, {sHI}\ns_lshl_b32 {t1}, {t1}, 3\ns_add_u32 {t1}, {t1}, {sLO}\ns_lshl_b32 {t1}, {t1}, 4\ns_add_u32 {t1}, {t1}, {TML}')
            else:
                lstore(f'buffer_store_dword v64, {vL4}, {WS}, {sOPst} offen')
            for m in ('quad_perm:[1,0,3,2]', 'quad_perm:[2,3,0,1]', 'row_half_mirror'):
                A(f'v_add_f32_dpp v75, v75, v75 {m} {DPP}')
            if tagged: lstore(f'buffer_store_dwordx4 v[74:77], {vMLst}, {WS}, {t1} offen')
            else: lstore(f'buffer_store_dwordx2 v[74:75], {vMLst}, {WS}, {sMLst} offen')

    def wait_piece(tag):
        if tag not in A.vm: return
        if hi_extra[0] and ffn_hi:
            n_ = len(A.vm) - 1 - max(i for i, t_ in enumerate(A.vm) if t_ == tag)
            a_, b_ = lab('wl'), lab('wj')
            A(f's_cmp_lt_u32 {sW}, 4\ns_cbranch_scc1 {a_}\ns_waitcnt vmcnt({n_ + hi_extra[0]})\ns_branch {b_}\n{a_}:')
            A.wait_vm(tag); A(f'{b_}:')
        else: A.wait_vm(tag)
    def issue_weights():
        if not wo_at: issue_wo()
        A('v_mov_b32 v68, -1\nv_mov_b32 v69, -1\nv_mov_b32 v70, -1\nv_mov_b32 v71, -1')
        A.vmop(f'buffer_store_dwordx4 v[68:71], v117, {WS}, 0 offen sc1', 'cl2')
        if ffn_hi:
            l_ = lab('ff'); A(f's_cmp_lt_u32 {sW}, 4\ns_cbranch_scc1 {l_}'); issue_ffn(-4); issue_ffn(0); A(f'{l_}:')
    hi_extra = [0]
    if w_at == 'issue31' and not abl: issue_weights(); hi_extra[0] = 6
    A('v_mov_b32 v117, v108\nv_mov_b32 v118, v110')
    scores(False)
    for i in range(last_read - 15): pv(i)
    lsum()
    stamp()
    for p in range(last_read + 1, 32):
        wait_piece(f'p{p}')
        read_v(p)
        if w_at == f'land{p}' and not abl: issue_weights(); hi_extra[0] = 6
        A('s_waitcnt lgkmcnt(0)')
        pv(p - 16)
        if p == max(csq_at, last_read + 1) and not abl:
            keep_vm = list(A.vm)
            with lowwaves(): finish_csq()
            A.vm = keep_vm
    stamp()
    if abl: A('s_branch L_fin')
    combine(True)
    if ffn_sleep:
        l_ = lab('ff'); A(f's_cmp_lt_u32 {sW}, 4\ns_cbranch_scc1 {l_}\ns_sleep {ffn_sleep}'); issue_ffn(-4); issue_ffn(0); A(f'{l_}:')
    stamp(True)

    if prio:
        l_ = lab('pr'); A(f's_cmp_ge_u32 {sW}, 4\ns_cbranch_scc1 {l_}\ns_setprio 1\n{l_}:')
    A('L_layer:'); inloop[0] = True
    def proj_body(nk, vb, boff, xoff, late_w=None, tagged=False):
        for j in range(nk): A(f'ds_read_b128 v[{64+4*j}:{67+4*j}], {vb} offset:{boff+64*j}')
        if late_w: late_w()
        for j in range(nk):
            if not late_w: A(f's_waitcnt lgkmcnt({nk-1-j})')
            elif j == 0: A('s_waitcnt lgkmcnt(0)')
            c = '0' if j == 0 else 'v[96:99]'
            A(f'{M16} v[96:99], v[{48+4*j}:{51+4*j}], v[{64+4*j}:{67+4*j}], {c}')
        if tagged:
            A(f'v_mov_b32 v102, {sTAG}\nv_mov_b32 v103, {sTAG}\nv_cvt_pk_bf16_f32 v100, v96, v97\nv_cvt_pk_bf16_f32 v101, v98, v99')
            A(f'buffer_store_dwordx4 v[100:103], v47, {WS}, 0 offen sc1')
            if diag2: xstamp(52)
        else:
            A(f's_add_u32 {t1}, {sXst}, {xoff}')
            A('v_cvt_pk_bf16_f32 v96, v96, v97\nv_cvt_pk_bf16_f32 v97, v98, v99')
            A(f'buffer_store_dwordx2 v[96:97], {vXst}, {WS}, {t1} offen sc1')
    def proj_out(nk, vb, boff, xoff, first=None):
        sk, dl = lab('sk'), lab('dl')
        A(f's_cmp_ge_u32 {sW}, 4\ns_cbranch_scc1 {sk}')
        if first: variant(first, lambda: proj_body(nk, vb, boff, xoff))
        else: proj_body(nk, vb, boff, xoff)
        return sk, dl
    def first_only(f):
        def g():
            l, bk = lab('fo'), lab('bk')
            A(f's_cmp_eq_u32 {sLIDX}, 0\ns_cbranch_scc1 {l}\n{bk}:')
            keepL, A.L = A.L, []
            A(f'{l}:'); f(); A(f's_branch {bk}')
            tails.append('\n'.join(A.L)); A.L = keepL
        return g
    def variant(first, later):
        l, bk = lab('v0'), lab('vj')
        A(f's_cmp_eq_u32 {sLIDX}, 0\ns_cbranch_scc1 {l}')
        n0 = nts[0]
        later()
        A(f'{bk}:')
        n1, nts[0] = nts[0], n0
        keepL, A.L = A.L, []
        A(f'{l}:'); first(); A(f's_branch {bk}')
        tails.append('\n'.join(A.L)); A.L = keepL
        assert nts[0] == n1
    def later_only(f):
        l = lab('lo'); A(f's_cmp_eq_u32 {sLIDX}, 0\ns_cbranch_scc1 {l}'); f(); A(f'{l}:')
    def g_wait(sk, dl, pre, busy_first=False, hi_pre=None, lo_d=None, hi_d=None, extra0=0):
        pre()
        A(f's_sleep {lo_d or gdelay}')
        A(f's_branch {dl}\n{sk}:')
        if hi_pre: hi_pre()
        A(f's_sleep {hi_d or gdelay_hi}')
        A(f'{dl}:')
        if extra0: first_only(lambda: A(f's_sleep {extra0}'))()
    def reduce_x(xoff, final, first=None):
        def normal():
            A(f's_add_u32 {t0}, {sXg}, {xoff}')
            poll(lambda: issue_g1(64, vXg, t0, 'x', 8192), range(64, 72),
                 lambda: A(f'{M16} v[96:99], {SELA}, v[64:67], 0\n{M16} v[96:99], {SELA}, v[68:71], v[96:99]'))
        if first: variant(first, normal)
        else: normal()
        stamp()
        A(f'v_add_f32_dpp v96, v96, v96 row_ror:4 {DPP}\nv_add_f32_dpp v97, v97, v97 row_ror:4 {DPP}')
        if final: A(f's_cmp_eq_u32 {sLIDX}, 1')
        A(f'v_add_f32_dpp v96, v96, v96 row_ror:8 {DPP}\nv_add_f32_dpp v97, v97, v97 row_ror:8 {DPP}')
        A(f'v_pk_add_f32 {XRES}, {XRES}, v[96:97]\ns_mov_b64 exec, {sM4}\nv_cvt_pk_bf16_f32 v96, v112, v113')
        if final: A(f's_cbranch_scc1 L_out')
        A(f'ds_write_b32 {vXW}, v96')
        full_exec()
        A('s_waitcnt lgkmcnt(0)\ns_barrier')
    def issue_o():
        issue_g1(64, vG1, sOg, 'o')
        A.vmop(f'buffer_load_dwordx2 v[72:73], {vML2}, {WS}, {sMLg} offen sc1', 'o')
        A.vmop(f'buffer_load_dwordx2 v[74:75], {vML2}, {WS}, {sMLg} offen offset:32 sc1', 'o')
    def wo_weights(ma, la, mb, lb, selreg, mm):
        A(f'v_max_f32 v76, v{ma}, v{mb}\nv_mov_b32 v77, v76\nv_permlane16_swap_b32 v76, v77\nv_max_f32 v76, v76, v77')
        A('v_mov_b32 v77, v76\nv_permlane32_swap_b32 v76, v77\nv_max_f32 v76, v76, v77')
        A(f'v_sub_f32 v{ma}, v{ma}, v76\nv_sub_f32 v{mb}, v{mb}, v76\nv_exp_f32 v{ma}, v{ma}\nv_exp_f32 v{mb}, v{mb}')
        A(f'v_cvt_pk_bf16_f32 v{ma}, v{ma}, v{ma}\nv_cvt_pk_bf16_f32 v{mb}, v{mb}, v{mb}')
        for i in range(4): A(f'v_and_b32 v{selreg+i}, v{MASK+i}, v{ma}')
        for i in range(4): A(f'v_and_b32 v{selreg+4+i}, v{MASK+i}, v{mb}')
        mm()
        A(f'v_and_b32 v{ma}, 0xffff0000, v{ma}\nv_and_b32 v{mb}, 0xffff0000, v{mb}\nv_mul_f32 v73, v{la}, v{ma}\nv_fmac_f32 v73, v{lb}, v{mb}')
        A('v_mov_b32 v77, v73\nv_permlane16_swap_b32 v73, v77\nv_add_f32 v73, v73, v77')
        A('v_mov_b32 v77, v73\nv_permlane32_swap_b32 v73, v77\nv_add_f32 v73, v73, v77\nv_rcp_f32 v72, v73')
    def wo_later():
        read_wo()
        if ldelay: A(f's_sleep {ldelay}')
        poll(issue_o, range(64, 76))
        stamp()
        wo_weights(72, 73, 74, 75, 80, lambda: A(f'{M16} v[96:99], v[80:83], v[64:67], 0\n{M16} v[96:99], v[84:87], v[68:71], v[96:99]'))
    def wo_first():
        if diag2: A(f's_mov_b32 s65, {sTO}')
        def issue():
            issue_o0()
            if csq_o: issue_tagged(f's_lshl_b32 {t1}, {sG}, 14\ns_add_u32 {t1}, {t1}, {TQC}', 48)
        if wo_at: read_wo()
        if csq_o: tagged_poll(issue, (82, 86, 90, 94, 66, 70, 50, 54, 58, 62), lambda: tagged_sum(32, 48, 108))
        else: tagged_poll(issue, (82, 86, 90, 94, 66, 70))
        stamp()
        if diag2: A(f's_sub_u32 s65, s65, {sTO}\nv_readlane_b32 s94, {vTS}, 0\ns_mul_i32 s65, s65, 100\ns_add_u32 s65, s65, s94\nv_writelane_b32 {vTS}, s65, 55')
        wo_weights(64, 65, 68, 69, 100, lambda: tagged_sum(100, 80, 96, 4))
        if csq_o: A(f's_mov_b32 {t2}, {f32(1/512)}\nv_pk_mul_f32 {CSQ}, v[108:109], s[56:57] op_sel_hi:[1,0]')
    with lowwaves():
        variant(wo_first, wo_later)
        A('v_pk_mul_f32 v[96:97], v[96:97], v[72:73] op_sel_hi:[1,0]\nv_cvt_pk_bf16_f32 v96, v96, v97')
        A(f'ds_write_b32 {vQW}, v96 offset:{L_OS-L_QS}')
    A(f's_waitcnt vmcnt({6 if (ffn_hi or ffn_sleep) else 0}) lgkmcnt(0)\ns_barrier')
    def ffn_diag():
        xstamp(50); issue_ffn()
        l_ = lab('dg'); A(f's_cmp_lt_u32 {sW}, 4\ns_cbranch_scc1 {l_}\ns_waitcnt vmcnt(0)'); xstamp(51); A(f'{l_}:')
    if not (ffn_hi or ffn_sleep or ffn_at or ffn_by_hi): first_only(ffn_diag if diag2 else issue_ffn)()
    sk, dl = proj_out(4, vBR320, L_OS - L_QS, 0, lambda: proj_body(4, vBR320, L_OS - L_QS, 0, None if wo_at else read_wo, True))
    def clean3():
        A(f's_mul_i32 {t1}, {sC}, 1056\ns_add_u32 {t1}, {t1}, {sGBASE}\ns_add_u32 {t1}, {t1}, {LS + bGP - 4096}\nv_mov_b32 v68, {OOB}')
        A(f'v_add_u32 {vTMP}, {t1}, v115\nv_cmp_gt_u32 vcc, {4096 + 1056}, v115'); sel('v69', 'v68', vTMP)
        A('v_mov_b32 v64, -1\nv_mov_b32 v65, -1\nv_mov_b32 v66, -1\nv_mov_b32 v67, -1')
        A(f's_add_u32 {t1}, {sXst}, {LS - 7168}\nv_add_u32 {vTMP}, {t1}, v115\nv_add_u32 {vTMP2}, {oXB - oXA - 512}, {vTMP}\nv_cmp_lt_u32 vcc, {7680 - 1}, v115'); sel(vTMP, vTMP, vTMP2)
        A(f'v_cmp_lt_u32 vcc, {7168 - 1}, v115'); sel('v69', 'v69', vTMP)
        A(f'buffer_store_dwordx4 v[64:67], v69, {WS}, 0 offen sc1')
    def issue_g0():
        issue_tagged(f's_lshl_b32 {t0}, {sG}, 2\ns_add_u32 {t0}, {t0}, {sHI}\ns_lshl_b32 {t1}, {t0}, 14\ns_add_u32 {t1}, {t1}, {TGP}')
        issue_tagged(f's_lshl_b32 {t1}, {t0}, 12\ns_add_u32 {t1}, {t1}, {TGC}', 64,
                     f'v_and_b32 {vTMP}, 0xf0, {vG1}\nv_and_b32 {vTMP2}, 0xc00, {vG1}\nv_lshrrev_b32 {vTMP2}, 1, {vTMP2}\nv_or_b32 {vTMP}, {vTMP}, {vTMP2}', 2048, 256)
        A(f's_lshl_b32 {t0}, {t0}, 2\ns_add_u32 {t0}, {t0}, {sW}\ns_lshl_b32 {t0}, {t0}, 7\ns_add_u32 {t0}, {t0}, {TGS}\nv_lshlrev_b32 {vTMP2}, 1, {vSt8}')
        A.vmop(f'buffer_load_dwordx4 v[104:107], {vTMP2}, {WS}, {t0} offen sc1', 'q')
    leave_ = [None]
    def touch_lines(bases):
        for sb, off in bases:
            A(f's_add_u32 {t0}, {sb}, {off}\ns_add_u32 {t1}, {t0}, 4096')
            A(f'buffer_load_dwordx4 v[80:83], {vG1}, {WS}, {t0} offen sc1\nbuffer_load_dwordx4 v[84:87], {vG1}, {WS}, {t1} offen sc1')
    def touch_small(bases):
        for sb, off in bases:
            A(f's_add_u32 {t0}, {sb}, {off}\nbuffer_load_dwordx2 v[88:89], {vSt8}, {WS}, {t0} offen sc1')
    def hi_xa():
        if ffn_by_hi:
            pt = 'gu' if wd_late else 'gud'
            first_only(lambda: (issue_ffn(-4, False, pt), issue_ffn(0, False, pt)))()
        if clean3_xa: first_only(clean3)()
        if touch1 & 1: first_only(lambda: (touch_lines([(sQg, 0), (sOg, LS)]), touch_small([(sQSg, 0), (sMLg, LS)])))()
        if touch1 & 2: later_only(lambda: (touch_lines([(sGg, 0)]), touch_small([(sGSg, 0)])))
    def hi_xb():
        leave_[0]()
        if not clean3_xa: first_only(clean3)()
        if touch1 & 4: first_only(lambda: (touch_lines([(sGg, LS)]), touch_small([(sGSg, LS)])))()
        if touch1 & 8: first_only(lambda: (touch_lines([(sQg, 0), (sOg, LS)]), touch_small([(sQSg, 0), (sMLg, LS)])))()
    def pre_xa():
        if ffn_at:
            read_gu()
            if touch_g: first_only(issue_g0)()
        elif touch_g: variant(issue_g0, read_gu)
        else: later_only(read_gu)
    g_wait(sk, dl, pre_xa, False, hi_xa, extra0=xa0)
    stamp()
    def xa_first():
        if diag2: A(f's_mov_b32 s65, {sTO}'); xstamp(53)
        tagged_poll(lambda: issue_tagged(f's_lshl_b32 {t1}, {sLO}, 15\ns_add_u32 {t1}, {t1}, {TXA}', 80,
                                         f'v_and_b32 {vTMP2}, 0x30, {vXg}\nv_lshlrev_b32 {vTMP}, 1, {vXg}\nv_sub_u32 {vTMP}, {vTMP}, {vTMP2}', 16384, 64), spec=tagged_sum, back=xback)
        A('s_nop 1')
        if diag2: A(f's_sub_u32 s65, s65, {sTO}\nv_readlane_b32 s94, {vTS}, 0\ns_mul_i32 s65, s65, 100\ns_add_u32 s65, s65, s94\nv_writelane_b32 {vTS}, s65, 54')
    reduce_x(0, False, xa_first)
    if wd_late:
        def wdl():
            l_ = lab('wd'); A(f's_cmp_lt_u32 {sW}, 4\ns_cbranch_scc1 {l_}'); issue_ffn(-4, False, 'd'); issue_ffn(0, False, 'd'); A(f's_waitcnt vmcnt(0)\n{l_}:')
        first_only(wdl)()
    def issue_gp():
        issue_g1(64, vG1, sGg, 'g')
        A.vmop(f'buffer_load_dwordx2 v[72:73], {vSt8}, {WS}, {sGSg} offen sc1', 'g')
    def ffn_later():
        matvec(vGst, 'plain')
        stamp()
        read_wd()
        if ldelay: A(f's_sleep {ldelay}')
        poll(issue_gp, QREGS, ln_spec(SELG, False))
        ln_finish(CSG, 1.0, False)
    def ffn_first():
        matvec('v114', 'tag', None if ffn_at else read_gu)
        stamp()
        if not wd_late: read_wd()
        tagged_poll(issue_g0, (82, 86, 90, 94, 66, 70, 74, 78, 105, 107))
        tagged_sum(40, 80, 96); tagged_sum(40, 64, 100)
        A(f'v_add_f32_dpp v78, v104, v104 quad_perm:[1,0,3,2] {DPP}\nv_add_f32_dpp v79, v106, v106 quad_perm:[1,0,3,2] {DPP}')
        ln_finish(CSG, 1.0, True)
    with lowwaves(lambda: slice_stats(sGSst, True)):
        variant(ffn_first, ffn_later)
        stamp()
        A('v_cvt_pk_bf16_f32 v96, v96, v97\nv_and_b32 v97, 0xffff0000, v96\nv_lshlrev_b32 v96, 16, v96\nv_max_f32 v96, 0, v96\nv_mul_f32 v96, v96, v97\nv_cvt_pk_bf16_f32 v96, v96, v96')
        A(f'ds_write_b16 {vHW}, v96')
    A('s_waitcnt lgkmcnt(0)\ns_barrier')
    sk, dl = proj_out(2, vBR192, 0, oXB - oXA, (lambda: proj_body(2, vBR192, 0, oXB - oXA, read_wd)) if wd_late else None)
    def leave():
        no = lab('no')
        A(f's_cmp_eq_u32 {sLIDX}, 0\ns_cbranch_scc1 {no}\ns_cmp_lg_u32 {sHI}, 0\ns_cbranch_scc1 L_fin\ns_cmp_lg_u32 {sG}, {sLO}\ns_cbranch_scc1 L_fin\n{no}:')
    def pre_q():
        leave()
        read_wq()
    leave_[0] = leave
    g_wait(sk, dl, pre_q, False, hi_xb, gd_b, gdh_b, xb0)
    stamp()
    reduce_x(oXB - oXA, True)
    keep = nts[0]; nts[0] -= 11
    def advance():
        A(f's_mov_b32 {sLIDX}, 1')
        for s in (sOg, sGg, sMLg, sGSg, sXg, sOPst, sMLst, sXst, sGSst):
            A(f's_add_u32 {s}, {s}, {LS}')
    with lowwaves(lambda: (slice_stats(sQSst), advance())):
        matvec(vQst, 'plain', None, 'LS')
        advance()
        stamp()
        if ldelay: A(f's_sleep {ldelay}')
        poll(lambda: issue_q(False), QREGS, ln_spec(SELA, False))
        stamp()
        q_finish(False)
    scores()
    for i in range(16):
        pv(i)
        if i == 5: lsum()
    stamp()
    combine()
    stamp()
    A('s_branch L_layer'); nts[0] = keep
    A('L_out:')
    A(f'buffer_store_dword v96, {vXO}, {OUT}, 0 offen')
    A(f's_or_b32 {t1}, s2, {sW}\ns_cmp_lg_u32 {t1}, 0\ns_cbranch_scc1 L_fin0')
    A(f's_mov_b64 exec, 1\nv_mov_b32 v97, {sTAG}\ns_mov_b32 {t2}, {EPOCH}\nbuffer_store_dword v97, off, {WS}, {t2} sc1')
    A('L_fin0:')
    full_exec()
    A('L_fin:')
    if ts:
        stamp(True)
        A(f's_memtime s[94:95]\ns_waitcnt lgkmcnt(0)\ns_sub_u32 s94, s94, s98\nv_writelane_b32 {vTS}, s94, 63')
        A(f's_add_u32 s96, s96, 0x10000000\ns_addc_u32 s97, s97, 0\ns_lshl_b32 {t1}, s2, 11\nv_add_u32 v64, {t1}, {vT4}\nglobal_store_dword v64, {vTS}, s[96:97]')
        if dbgts:
            A(f's_or_b32 {t1}, s2, {sW}\ns_cmp_lg_u32 {t1}, 0\ns_cbranch_scc1 L_end')
            A(f'v_readlane_b32 {t1}, {vTS}, 0\nv_subrev_u32 v64, {t1}, {vTS}\nv_and_b32 v64, 0xffff, v64')
            A(f'v_mov_b32_dpp v65, v64 quad_perm:[1,1,3,3] {DPP}\nv_lshl_or_b32 v64, v65, 16, v64\nv_lshlrev_b32 v65, 1, {vL}')
            A(f's_mov_b32 exec_lo, 0x55555555\ns_mov_b32 exec_hi, 0\nbuffer_store_dword v64, v65, {DBG}, 0 offen sc1')
    A('s_endpgm')
    for t_ in tails: A(t_)
    A('L_end:\ns_endpgm')
    A(f'.section .rodata,"a"\n.p2align 6\n.amdhsa_kernel {NAME}_kernel')
    A('.amdhsa_next_free_vgpr 256\n.amdhsa_next_free_sgpr 102\n.amdhsa_accum_offset 128\n.amdhsa_group_segment_fixed_size 0\n.amdhsa_kernarg_size 96\n.amdhsa_user_sgpr_count 2\n.amdhsa_user_sgpr_kernarg_segment_ptr 1\n.amdhsa_system_sgpr_workgroup_id_x 1\n.end_amdhsa_kernel')
    txt, probs = A.text()
    for p in probs: print('HAZARD', p, file=sys.stderr)
    return txt, nts[0]

if __name__ == '__main__':
    out = sys.argv[1]
    kw = {}
    for a in sys.argv[2:]:
        k, v = a.split('='); kw[k] = eval(v)
    txt, n = build(**kw)
    open(out, 'w').write(txt)
    print('stamps', n, 'lines', txt.count('\n'))
```

```python
import sys, math, struct
sys.path.insert(0, 'gen')
from asmlib import Asm

NAME = "interleave_layers__sliding_block_cached__glu_gated_reglu__decode"

bQP, bQS, bOP, bML, bGP, bGS, bGC, GB = 0x0, 0x8000, 0x8400, 0x10400, 0x10800, 0x18800, 0x18C00, 0x1AC00
oXA, oXB, LS = 8 * GB, 8 * GB + 0x20000, 8 * GB + 0x40000
TQP, TQC, TOP, TML, TF, EPOCH = 0x240000, 0x2C0000, 0x2E0000, 0x360000, 0x364000, 0x365000
WS_REC = 0x365100
OOB = 0x7FFF0000
L_RING, L_WQ, L_WO, L_WG, L_WU, L_WD = 0, 65536, 81920, 98304, 106496, 114688
L_QS, L_OS, L_HS, L_XS, L_RM, L_ST = 122880, 124160, 125440, 126208, 127168, 127424
L_FL = L_ST + 16
LDS_BYTES = 127488

def f32(x): return '0x%08x' % struct.unpack('<I', struct.pack('<f', x))[0]
QSCALE = 128 ** -0.5 * math.log2(math.e)

sW, sG, sC, sHI, sLO = 's3', 's4', 's5', 's6', 's7'
WS, KK, VV, WQ, WO, WG, WU, WD, XX, OUT, DBG = [f's[{i}:{i+3}]' for i in range(8, 52, 4)]
sKV, sRING, t0, t1, t2, t3 = 's52', 's53', 's54', 's55', 's56', 's57'
sLAY, sTO, sFAST, sCNT, sGOK, sLIDX = 's58', 's59', 's60', 's61', 's62', 's63'
sQg, sOg, sGg, sQSg, sMLg, sGSg, sXg, sGBASE, sGCg = ['s%d' % i for i in range(66, 75)]
sOPst, sMLst, sXst, sQSst, sGSst = ['s%d' % i for i in range(75, 80)]
g0, g1, g2, g3 = 's90', 's91', 's92', 's93'
vL, vT4, vSt8, vXg, vQst, vGst, vSSt, vG1, vXst, vQW, vBR320, vHW, vBR192, vXR, vXW, vL4 = ['v%d' % i for i in range(16)]
vROW, vROR, vRMW, vRMR, vWQr, vWr, vWOr, vXO = ['v%d' % i for i in range(16, 24)]
CSQ, CSG = 'v[24:25]', 'v[26:27]'
vTS, vML2, vTMP, vTMP2 = 'v28', 'v29', 'v30', 'v31'
SELA, MASK, SELG, ONES = 'v[32:35]', 36, 'v[40:43]', 'v[44:45]'
vMLst = 'v46'
XRES = 'v[112:113]'
sM4 = 's[88:89]'
sTAG = 's100'
DPP = 'row_mask:0xf bank_mask:0xf'
M16 = 'v_mfma_f32_16x16x32_bf16'

def build(ts=False, gdelay=12, gdelay_hi=18, pf_code=True, rides=(17, 22, 27), w_at='land31', ldelay=0, bar_after_k0=False, fride=26, ffn_hi=False, touch_o=0, touch_g=0, ffn_sleep=0, clean3_xa=0, tlb=0, diag2=0, ffn_at=28, fdelay=4, fback=4, wo_at=0, csq_o=0, touch1=8, csq_at=26, xa0=0, xb0=4, cl_at=29, tail_parts='gud', flate=20, gd_b=11, gdh_b=15, ffn_by_hi=0, tmajor=1, prio=0, padto=0, warm_x=1, warm_at=0, wd_late=0, xback=0, deep_from=24, depth=5, deep=7, diag=0, noclean=0, burst=4, late47=0, abl='', backoff=0, cl_sc1=1, dbgts=0, wsoff=0):
    A = Asm()
    uid = [0]
    def lab(p):
        uid[0] += 1; return f'L_{p}_{uid[0]}'
    nts = [0]; inloop = [False]
    def stamp(key=False):
        if not ts: return
        if ts == 2 and not key:
            nts[0] += 1; return
        if inloop[0]:
            A(f's_memrealtime s[94:95]\ns_mul_i32 m0, {sLIDX}, 11\ns_add_u32 m0, m0, {nts[0]}\ns_waitcnt lgkmcnt(0)\nv_writelane_b32 {vTS}, s94, m0')
        else:
            A(f's_memrealtime s[94:95]\ns_waitcnt lgkmcnt(0)\nv_writelane_b32 {vTS}, s94, {nts[0]}')
        nts[0] += 1
    def xstamp(i):
        A(f's_memrealtime s[94:95]\ns_waitcnt lgkmcnt(0)\nv_writelane_b32 {vTS}, s94, {i}')
    def set_exec(lo, hi=None):
        hi = lo if hi is None else hi
        A(f's_mov_b32 exec_lo, {lo:#x}\ns_mov_b32 exec_hi, {hi:#x}')
    def full_exec(): A('s_mov_b64 exec, -1')
    tails = []
    def lstore(fmt, tag='st', nxt=None, cmp=True):
        a, b = lab('wt'), lab('sd')
        for f_ in fmt.split('\n'): A((';;need2 ' if cmp else ';;need1 ') + f_)
        if cmp: A(f's_cmp_eq_u32 {sFAST}, 1')
        A(f's_cbranch_scc0 {a}')
        A(fmt); A(f'{b}:')
        tails.append(f'{a}:\n' + '\n'.join(f_ + ' sc1' for f_ in fmt.split('\n')) + f'\ns_branch {b}')
        A.vm.append(tag)
    class lowwaves:
        def __init__(s, other=None): s.other = other
        def __enter__(s):
            s.l = lab('hi'); s.o = lab('up') if s.other else s.l
            A(f's_cmp_ge_u32 {sW}, 4\ns_cbranch_scc1 {s.o}')
        def __exit__(s, *a):
            A(f'{s.l}:')
            if s.other:
                keepL, A.L = A.L, []
                A(f'{s.o}:'); s.other(); A(f's_branch {s.l}')
                tails.append('\n'.join(A.L)); A.L = keepL
    def sel(dst, a, b):
        A(f'v_cndmask_b32 {dst}, {a}, {b}, vcc')

    A(f'; @launch grid=(256,1,1) block=(512,1,1) lds={LDS_BYTES}')
    A('.amdgcn_target "amdgcn-amd-amdhsa--gfx950"')
    A(f'.text\n.globl {NAME}_kernel\n.p2align 8\n.type {NAME}_kernel,@function\n{NAME}_kernel:')
    A('s_cmp_ge_u32 s2, 256\ns_cbranch_scc1 L_end')
    A('s_load_dwordx16 s[64:79], s[0:1], 0\ns_load_dwordx8 s[80:87], s[0:1], 64')
    if padto: A('s_memrealtime s[98:99]')
    A(f'v_lshlrev_b32 {vT4}, 2, v0')
    if pf_code:
        A(f's_getpc_b64 s[94:95]\nL_pc:\ns_lshr_b32 {t0}, s2, 3\ns_and_b32 {t0}, {t0}, 1\ns_lshl_b32 {t0}, {t0}, 13\nv_lshlrev_b32 {vTMP}, 2, {vT4}\nv_add_u32 {vTMP}, {t0}, {vTMP}')
        A(f'v_min_u32 {vTMP}, L_end-L_pc-16, {vTMP}')
        A.vmop(f'global_load_dwordx4 v[96:99], {vTMP}, s[94:95]', 'pf')
    A(f'v_lshrrev_b32 {vTMP}, 6, v0')
    A(f'v_and_b32 {vL}, 63, v0')
    A(f'v_readfirstlane_b32 {sW}, {vTMP}')
    A(f's_and_b32 {sG}, s2, 7\ns_lshr_b32 {sC}, s2, 3\ns_lshr_b32 {sHI}, {sC}, 3\ns_and_b32 {sLO}, {sC}, 7')
    A(f'v_and_b32 v120, 15, {vL}\nv_lshrrev_b32 v121, 4, {vL}')
    A(f'v_lshlrev_b32 {vTMP}, 2, v121\nv_xor_b32 {vTMP}, v120, {vTMP}\nv_lshlrev_b32 {vTMP}, 4, {vTMP}\nv_lshl_add_u32 v116, v121, 8, {vTMP}\nv_lshl_add_u32 v124, v121, 13, {vTMP}')
    A(f'v_and_b32 v122, 3, {vL}\nv_lshrrev_b32 v123, 2, v120')
    A(f's_lshr_b32 {t0}, {sW}, 1\ns_lshl_b32 {t0}, {t0}, 10\ns_and_b32 {t1}, {sW}, 1\ns_lshl_b32 {t1}, {t1}, 6\ns_add_u32 {t0}, {t0}, {t1}\ns_lshl_b32 {t1}, {sLO}, 7\ns_add_u32 {t0}, {t0}, {t1}')
    A(f'v_lshlrev_b32 v117, 4, v122\nv_lshl_add_u32 v117, v121, 2, v117\nv_add_u32 {vXO}, {t0}, v117')
    A(f's_lshl_b32 {t0}, {sHI}, 3\ns_add_u32 {t0}, {t0}, {sG}\ns_lshl_b32 {sKV}, {t0}, 22\ns_lshl_b32 {t0}, {sLO}, 17\ns_add_u32 {sKV}, {sKV}, {t0}\ns_add_u32 {sKV}, {sKV}, {12288*256}')
    A(f's_add_u32 {t0}, {sG}, {sC}\ns_add_u32 {t0}, {t0}, {sW}\ns_and_b32 {t0}, {t0}, 7\ns_lshl_b32 {t0}, {t0}, 12\ns_add_u32 {sKV}, {sKV}, {t0}')
    A(f's_lshl_b32 {sRING}, {sW}, 13')
    A(f's_and_b32 {g3}, {sW}, 3')
    A(f's_lshl_b32 {t0}, {sG}, 2\ns_add_u32 {t0}, {t0}, {sHI}')
    A(f'v_mov_b32 v118, {OOB}')
    A(f's_mul_i32 s101, {sG}, {GB}')
    A(f's_lshl_b32 {t1}, {sLO}, 6\ns_lshl_b32 {t2}, {sW}, 3\ns_add_u32 {t1}, {t1}, {t2}\ns_lshl_b32 {t1}, {t1}, 13\ns_lshl_b32 {t2}, {sG}, 10\ns_add_u32 {t1}, {t1}, {t2}\ns_lshl_b32 {t2}, {sHI}, 8\ns_add_u32 {t1}, {t1}, {t2}')
    A(f's_lshl_b32 {t2}, {sW}, 11\ns_add_u32 m0, {t2}, {L_WQ}')
    if ts:
        A(f'v_mov_b32 {vTS}, 0'); stamp(True)
        A(f's_memtime s[98:99]')
    A('s_waitcnt lgkmcnt(0)')
    def srd(d, lo, n):
        A(f's_mov_b32 s{d}, s{lo}\ns_mov_b32 s{d+1}, s{lo+1}\ns_mov_b32 s{d+2}, {n}\ns_mov_b32 s{d+3}, 0x20000')
    srd(20, 70, 4194304)
    A.vmop(f'buffer_load_dwordx4 v124, {WQ}, {t1} offen nt lds', 'wq')
    A(f's_add_u32 {t1}, {t1}, 32768\ns_add_u32 m0, m0, 1024')
    srd(40, 64, 4096)
    A.vmop(f'buffer_load_dwordx4 v124, {WQ}, {t1} offen nt lds', 'wq')
    srd(8, 86, WS_REC)
    if wsoff: A(f's_add_u32 s8, s8, {wsoff}\ns_addc_u32 s9, s9, 0')
    A.vmop(f'buffer_load_dword v68, {vXO}, {XX}, 0 offen', 'x0')
    A(f's_lshr_b32 {t2}, {sW}, 1\ns_lshl_b32 {t2}, {t2}, 10\nv_lshlrev_b32 {vTMP}, 4, {vL}')
    A.vmop(f'buffer_load_dwordx4 v[72:75], {vTMP}, {XX}, {t2} offen', 'x0')
    A(f's_mov_b32 {t2}, {EPOCH}')
    A.vmop(f'buffer_load_dword v69, off, {WS}, {t2} sc1', 'ep')
    srd(12, 66, 0x8000000)
    def piece(p):
        t, q = (p % 16) // 4, p % 4
        if q == 0:
            A(f's_add_u32 {g1}, {sKV}, {t*32768}\ns_add_u32 m0, {sRING}, {((p//4)&1)*4096}')
        src = 'v116'
        A.vmop(f'buffer_load_dwordx4 {src}, {KK if p < 16 else VV}, {g1} offen offset:{q*1024} nt lds', f'p{p}')
    for p in range(burst): piece(p)
    srd(16, 68, 0x8000000)
    if ts: A('s_mov_b32 s96, s86\ns_mov_b32 s97, s87')

    srd(24, 72, 4194304); srd(44, 82, 4096); srd(48, 84, 256)
    srd(28, 76, 1835008); srd(32, 78, 1835008); srd(36, 80, 1835008)
    A(f's_mul_i32 {t1}, {sG}, 3\ns_add_u32 {t1}, {t1}, 4\ns_lshl_b32 {t2}, {sG}, 2\ns_cmp_ge_u32 {sG}, 4\ns_cselect_b32 {g2}, {t1}, {t2}\ns_add_u32 {g2}, {g2}, {sHI}\ns_min_u32 {g2}, {g2}, 27')
    if tlb:
        A(f's_lshl_b32 {t1}, {t0}, 17')
        A.vmop(f'buffer_load_dword v96, off, {WO}, {t1} nt', 'tlb')
        A(f's_mul_i32 {t1}, {sLO}, {64*3584}')
        A.vmop(f'buffer_load_dword v96, off, {WG}, {t1} nt', 'tlb')
        A.vmop(f'buffer_load_dword v96, off, {WU}, {t1} nt', 'tlb')
        A(f's_lshl_b32 {t1}, {g2}, 16')
        A.vmop(f'buffer_load_dword v96, off, {WD}, {t1} nt', 'tlb')
        A(f'v_lshlrev_b32 {vTMP}, 19, v120')
        A.vmop(f'buffer_load_dword v96, {vTMP}, {WS}, 0 offen nt', 'tlb')
        A.vmop(f'buffer_load_dword v96, off, {VV}, {sKV} nt', 'tlb')
    A(f's_getreg_b32 {t1}, hwreg(HW_REG_XCC_ID)\ns_and_b32 s64, {t1}, 15')
    A(f's_mov_b32 s88, 0x000f000f\ns_mov_b32 s89, 0x000f000f')
    A(f's_mov_b32 {sGBASE}, s101')
    A(f's_lshl_b32 {t1}, {sHI}, 13\ns_add_u32 {t1}, {t1}, {sGBASE}')
    A(f's_add_u32 {sQg}, {t1}, {bQP + LS}\ns_add_u32 {sOg}, {t1}, {bOP}\ns_add_u32 {sGg}, {t1}, {bGP}')
    A(f's_lshl_b32 {t1}, {g3}, 2\ns_add_u32 {t1}, {t1}, {sHI}\ns_lshl_b32 {t1}, {t1}, 6\ns_add_u32 {t1}, {t1}, {sGBASE}\ns_add_u32 {sQSg}, {t1}, {bQS + LS}')
    A(f's_lshl_b32 {sMLst}, {sLO}, 3\ns_add_u32 {sMLst}, {sMLst}, {t1}\ns_add_u32 {sMLst}, {sMLst}, {bML}')
    A(f's_lshl_b32 {t2}, {g3}, 13\ns_lshl_b32 {t1}, {sLO}, 10\ns_add_u32 {t2}, {t2}, {t1}\ns_lshl_b32 {t1}, {sHI}, 8\ns_add_u32 {t2}, {t2}, {t1}\ns_add_u32 {t2}, {t2}, {sGBASE}\ns_add_u32 {sOPst}, {t2}, {bOP}')
    A(f's_lshl_b32 {t1}, {sHI}, 2\ns_add_u32 {t1}, {t1}, {g3}\ns_lshl_b32 {t1}, {t1}, 6\ns_add_u32 {t1}, {t1}, {sGBASE}\ns_add_u32 {sMLg}, {t1}, {bML}\ns_add_u32 {sGSg}, {t1}, {bGS}')
    A(f's_lshl_b32 {t1}, {sLO}, 14\ns_add_u32 {sXg}, {t1}, {oXA}')
    A(f's_lshl_b32 {t1}, {t0}, 9\ns_add_u32 {sXst}, {sXg}, {t1}')
    A(f's_lshl_b32 {t1}, {sHI}, 11\ns_add_u32 {t1}, {t1}, {sGBASE}\ns_add_u32 {sGCg}, {t1}, {bGC}')
    A(f's_lshl_b32 {t3}, {sHI}, 8\ns_lshl_b32 {t1}, {sLO}, 3\ns_add_u32 {t3}, {t3}, {t1}\ns_add_u32 {t3}, {t3}, {sGBASE}\ns_add_u32 {sQSst}, {t3}, {bQS + LS}\ns_add_u32 {sGSst}, {t3}, {bGS}')
    A(f's_lshl_b32 s101, {t0}, 14\ns_add_u32 s101, s101, {TQP}')
    A(f's_lshl_b32 {t1}, {sLO}, 10\ns_lshl_b32 {t2}, {sHI}, 8\ns_add_u32 {t1}, {t1}, {t2}\ns_lshl_b32 {t2}, {g3}, 6\ns_add_u32 {t3}, {t1}, {t2}')
    A(f's_add_u32 {t1}, {sGBASE}, {t3}\ns_add_u32 {t1}, {t1}, {LS}\ns_mov_b32 {t2}, {OOB}')
    A(f's_cmp_ge_u32 {sW}, 4\ns_cselect_b32 {g0}, 0, 5')
    def st_off(dst, shift):
        A(f'v_lshlrev_b32 {vTMP}, {shift}, v120\nv_add_u32 {vTMP}, {t1}, {vTMP}\nv_mov_b32 {vTMP2}, {t2}\nv_cmp_eq_u32 vcc, 4, v120'); sel(vTMP, vTMP, vTMP2)
        A(f'v_lshl_add_u32 {vTMP}, v121, 4, {vTMP}\nv_cmp_gt_u32 vcc, {g0}, v120'); sel(dst, 'v118', vTMP)
    st_off(vQst, 13)
    A(f's_lshl_b32 {t3}, {t3}, 1\ns_lshl_b32 {t1}, {g3}, 6\ns_sub_u32 {t3}, {t3}, {t1}\ns_lshl_b32 {t1}, {sG}, 16\ns_add_u32 {t1}, {t1}, {t3}\ns_add_u32 {t1}, {t1}, {TQP}\ns_lshl_b32 {t2}, {sG}, 14\ns_add_u32 {t2}, {t2}, {t3}\ns_add_u32 {t2}, {t2}, {TQC}')
    st_off('v109', 14)
    A(f'v_lshlrev_b32 {vTMP}, 6, v122\nv_add_u32 {vTMP2}, 4, {vTMP}\nv_cmp_gt_u32 vcc, 16, {vL}'); sel(vTMP, vTMP, vTMP2)
    A(f'v_and_b32 {vTMP2}, {0x1ec*4}, {vT4}\nv_cmp_eq_u32 vcc, {256*4}, {vTMP2}'); sel(vSSt, 'v118', vTMP)
    A(f'v_lshlrev_b32 v115, 2, {vT4}')
    A(f's_lshl_b32 {t1}, {sG}, 2\ns_add_u32 {t1}, {t1}, {g3}\ns_lshl_b32 {t1}, {t1}, 14\ns_lshl_b32 {t2}, {sLO}, 11\ns_add_u32 {t1}, {t1}, {t2}\ns_lshl_b32 {t2}, {sHI}, 9\ns_add_u32 {t1}, {t1}, {t2}\ns_add_u32 {t1}, {t1}, {TOP}')
    A(f'v_and_b32 {vTMP}, 2, {vL}\nv_lshlrev_b32 {vTMP}, 7, {vTMP}\nv_lshrrev_b32 {vTMP2}, 2, {vL}\nv_lshl_add_u32 {vTMP}, {vTMP2}, 4, {vTMP}\nv_add_u32 {vTMP}, {t1}, {vTMP}\nv_and_b32 {vTMP2}, 1, {vL}\nv_cmp_eq_u32 vcc, 0, {vTMP2}'); sel('v110', 'v118', vTMP)
    A(f's_mov_b32 {sLAY}, 0\ns_mov_b32 {sTO}, 400000\ns_mov_b32 {sFAST}, 0\ns_mov_b32 {sCNT}, 0\ns_mov_b32 {sGOK}, 0\ns_mov_b32 {sLIDX}, 0')
    A(f's_lshl_b32 {t3}, {g3}, 6\ns_lshl_b32 {t1}, {sLO}, 10\ns_add_u32 {t1}, {t1}, {sGg}\ns_add_u32 {t1}, {t1}, {t3}\ns_lshl_b32 {t2}, {sLO}, 8\ns_add_u32 {t2}, {t2}, {sGCg}\ns_add_u32 {t2}, {t2}, {t3}')
    st_off(vGst, 8)
    A(f'v_and_b32 {vTMP}, 7, {vL}\nv_lshlrev_b32 {vSt8}, 3, {vTMP}\nv_lshlrev_b32 {vL4}, 2, {vL}\nv_lshlrev_b32 {vML2}, 3, v121')
    A(f'v_cmp_eq_u32 vcc, 0, {vL}'); sel(vMLst, 'v118', '0')
    A(f's_lshl_b32 {t1}, {g3}, 8\nv_lshlrev_b32 {vTMP}, 4, v120\nv_lshl_add_u32 {vG1}, v121, 10, {vTMP}\nv_add_u32 {vG1}, {t1}, {vG1}')
    A(f's_lshl_b32 {t1}, {sW}, 6\nv_lshlrev_b32 {vXg}, 11, v123\nv_lshl_add_u32 {vXg}, v121, 9, {vXg}\nv_lshl_add_u32 {vXg}, v122, 4, {vXg}\nv_add_u32 {vXg}, {t1}, {vXg}')
    A(f's_lshr_b32 {t1}, {sW}, 1\ns_mul_i32 {t1}, {t1}, 192\ns_and_b32 {t2}, {sW}, 1\ns_lshl_b32 {t2}, {t2}, 6\ns_add_u32 {t1}, {t1}, {t2}\ns_add_u32 {t1}, {t1}, {L_XS}\nv_add_u32 {vXW}, {t1}, v117')
    A(f's_mul_i32 {t1}, {g3}, 320\ns_add_u32 {t1}, {t1}, {L_QS}\nv_lshl_add_u32 {vQW}, v121, 2, {vTMP}\nv_add_u32 {vQW}, {t1}, {vQW}')
    A(f's_mul_i32 {t1}, {g3}, 192\ns_add_u32 {t1}, {t1}, {L_HS}\nv_lshlrev_b32 {vHW}, 3, v120\nv_lshl_add_u32 {vHW}, v121, 1, {vHW}\nv_add_u32 {vHW}, {t1}, {vHW}')
    A(f'v_mul_u32_u24 {vBR320}, 320, v122\nv_lshl_add_u32 {vBR320}, v121, 4, {vBR320}\nv_add_u32 {vBR320}, {L_QS}, {vBR320}')
    A(f'v_mul_u32_u24 {vBR192}, 192, v122\nv_lshl_add_u32 {vBR192}, v121, 4, {vBR192}\nv_add_u32 {vBR192}, {L_HS}, {vBR192}')
    A(f'v_min_u32 {vTMP2}, 4, v120\nv_mul_u32_u24 {vXR}, 192, {vTMP2}\nv_lshl_add_u32 {vXR}, v121, 4, {vXR}\nv_add_u32 {vXR}, {L_XS}, {vXR}')
    A(f's_lshl_b32 {t1}, {g3}, 5\nv_lshlrev_b32 {vTMP2}, 7, v120\nv_lshl_add_u32 {vTMP2}, v121, 3, {vTMP2}\nv_add_u32 {vTMP2}, {t1}, {vTMP2}\nv_cmp_gt_u32 vcc, 4, v120'); sel(vXst, 'v118', vTMP2)
    A(f'v_lshlrev_b32 {vTMP2}, 4, {vL}\nv_add_u32 {vROW}, {sRING}, {vTMP2}')
    A(f's_lshr_b32 {t1}, {g3}, 1\ns_lshl_b32 {t1}, {t1}, 10\ns_and_b32 {t2}, {g3}, 1\ns_lshl_b32 {t2}, {t2}, 3\ns_add_u32 {t1}, {t1}, {t2}\nv_add_u32 {vROR}, {t1}, {vTMP2}')
    A(f's_lshl_b32 {t1}, {sW}, 3\ns_add_u32 {t1}, {t1}, {L_RM}\nv_lshlrev_b32 {vRMW}, 6, v122\nv_add_u32 {vRMW}, {t1}, {vRMW}')
    A(f's_lshl_b32 {t1}, {g3}, 6\ns_add_u32 {t1}, {t1}, {L_RM}\nv_add_u32 {vRMR}, {t1}, {vSt8}')
    A(f'v_lshl_add_u32 v125, v121, 3, v123')
    A(f'v_xor_b32 {vTMP}, {g3}, v123\nv_lshlrev_b32 {vTMP}, 6, {vTMP}\nv_lshl_add_u32 {vTMP}, v122, 4, {vTMP}\nv_lshl_add_u32 {vWQr}, v125, 8, {vTMP}\nv_add_u32 {vWQr}, {L_WQ}, {vWQr}')
    A(f'v_lshrrev_b32 v119, 1, v123\nv_and_b32 v127, 1, v121\nv_lshlrev_b32 {vTMP}, 1, v127')
    A(f'v_xor_b32 {vTMP}, {g3}, {vTMP}\nv_lshlrev_b32 {vTMP}, 5, {vTMP}\nv_lshl_add_u32 {vTMP}, v122, 3, {vTMP}\nv_lshl_add_u32 {vWr}, v125, 7, {vTMP}\nv_add_u32 {vWr}, {L_WG}, {vWr}')
    A(f'v_and_b32 v126, 1, v123\nv_lshlrev_b32 {vTMP}, 1, v126\nv_xor_b32 {vTMP}, {g3}, {vTMP}\nv_lshlrev_b32 {vTMP}, 5, {vTMP}\nv_lshl_add_u32 {vTMP}, v122, 3, {vTMP}')
    A(f'v_lshl_add_u32 {vTMP2}, v121, 2, v119\nv_lshl_add_u32 {vTMP2}, v126, 6, {vTMP2}\nv_lshl_add_u32 {vWOr}, {vTMP2}, 7, {vTMP}\nv_add_u32 {vWOr}, {L_WO}, {vWOr}')
    A(f'v_and_b32 v125, 1, v120\nv_mov_b32 {vTMP}, 0xffff\nv_mov_b32 {vTMP2}, 0xffff0000\nv_cmp_eq_u32 vcc, 1, v125'); sel('v119', vTMP, vTMP2)
    A(f'v_cmp_gt_u32 vcc, 2, v122'); sel('v119', '0', 'v119')
    for i in range(4):
        A(f'v_cmp_eq_u32 vcc, {i}, v123'); sel(f'v{MASK+i}', '0', 'v119'); A(f'v_and_b32 v{32+i}, 0x3f803f80, v{MASK+i}')
    A(f'v_mov_b32 {vTMP}, 0x3f80\nv_mov_b32 {vTMP2}, 0x3f800000\nv_cmp_eq_u32 vcc, 1, v126'); sel('v119', vTMP, vTMP2)
    A(f'v_cmp_gt_u32 vcc, 2, v122'); sel('v119', '0', 'v119')
    A(f'v_lshrrev_b32 {vTMP}, 1, v123\nv_lshl_add_u32 {vTMP}, v125, 1, {vTMP}')
    for i in range(4):
        A(f'v_cmp_eq_u32 vcc, {i}, {vTMP}'); sel(f'v{40+i}', '0', 'v119')
    A('v_mov_b32 v44, 0x3f803f80\nv_mov_b32 v45, 0x3f803f80')
    A(f'v_and_b32 {vTMP2}, 7, {vL}\nv_lshrrev_b32 v119, 3, {vL}')
    A(f's_lshr_b32 {t1}, {sW}, 2\ns_lshl_b32 {t1}, {t1}, 2\nv_xor_b32 {vTMP}, {t1}, {vTMP2}\nv_lshlrev_b32 {vTMP}, 4, {vTMP}\nv_lshl_add_u32 v124, v119, 10, {vTMP}')
    A(f's_and_b32 {t1}, {sW}, 1\ns_lshl_b32 {t1}, {t1}, 2\nv_xor_b32 {vTMP}, {t1}, {vTMP2}\nv_lshlrev_b32 {vTMP}, 4, {vTMP}')
    A(f'v_lshl_add_u32 v127, v119, 10, {vTMP}\nv_mul_u32_u24 v126, 3584, v119\nv_add_u32 v126, v126, {vTMP}')
    A(f's_cmp_ge_u32 {sG}, 4\ns_cselect_b32 {t2}, 3, 4\ns_cmp_lt_u32 {sHI}, {t2}\ns_cselect_b32 {t2}, 0, {OOB}\nv_add_u32 v126, {t2}, v126\nv_add_u32 v127, {t2}, v127')
    A(f'v_lshlrev_b32 {vTMP}, 1, v123\nv_xor_b32 {vTMP}, v121, {vTMP}\nv_lshlrev_b32 {vTMP}, 5, {vTMP}\nv_lshl_add_u32 {vTMP}, v122, 3, {vTMP}\nv_lshl_add_u32 {vTMP}, v123, 8, {vTMP}\nv_add_u32 v122, {sRING}, {vTMP}\nv_xor_b32 v123, 128, v122')
    A(f'v_and_b32 {vTMP}, 3, v120\nv_lshlrev_b32 {vTMP}, 6, {vTMP}\nv_lshl_add_u32 {vTMP}, v121, 4, {vTMP}\nv_lshl_add_u32 {vTMP}, v120, 8, {vTMP}\nv_add_u32 v118, {sRING}, {vTMP}')
    for j in range(1, 4): A(f'v_xor_b32 v{118+j}, {64*j}, v118')
    A(f'v_and_b32 {vTMP}, 124, {vL4}\nv_add_u32 {vTMP}, {L_XS+4*192}, {vTMP}\nds_write_b32 {vTMP}, v44')
    A(f'v_mov_b32 {vTMP}, {L_FL}\nv_mov_b32 {vTMP2}, 0\nds_write_b32 {vTMP}, {vTMP2}')

    def read_k(i):
        for j in range(4): A(f'ds_read_b128 a[{16*i+4*j}:{16*i+4*j+3}], v{118+j} offset:{(i&1)*4096}')
    def read_v(p):
        i = p - 16
        for hf in range(2):
            r = 64 + 4 * i + 2 * hf
            A(f'ds_read_b64_tr_b16 a[{r}:{r+1}], v{122+hf} offset:{((p//4)&1)*4096 + (p%4)*1024}')
    if not late47:
        for p in range(burst, 8): piece(p)
    if diag: xstamp(40)
    A.wait_vm('ep')
    if diag: xstamp(41)
    A(f'v_and_b32 v113, 0xffff0000, v68\nv_lshlrev_b32 v112, 16, v68')
    A(f'v_readfirstlane_b32 {sTAG}, v69\ns_add_u32 {sTAG}, {sTAG}, 1')
    A('v_dot2_f32_bf16 v78, v72, v44, 0\nv_dot2_f32_bf16 v79, v72, v72, 0')
    for k in range(73, 76): A(f'v_dot2_f32_bf16 v78, v{k}, v44, v78\nv_dot2_f32_bf16 v79, v{k}, v{k}, v79')
    for m in ('quad_perm:[1,0,3,2]', 'quad_perm:[2,3,0,1]', 'row_half_mirror', 'row_mirror'):
        A(f'v_add_f32_dpp v78, v78, v78 {m} {DPP}\nv_add_f32_dpp v79, v79, v79 {m} {DPP}')
    for sw in ('v_permlane16_swap_b32', 'v_permlane32_swap_b32'):
        A(f'v_mov_b32 v76, v78\nv_mov_b32 v77, v79\n{sw} v78, v76\n{sw} v79, v77\nv_add_f32 v78, v78, v76\nv_add_f32 v79, v79, v77')
    c2 = QSCALE * QSCALE
    A(f'v_mov_b32 v75, {f32(1e-5/c2)}\nv_mul_f32 v74, v78, v78\nv_fmac_f32 v75, {f32(1/(512*c2))}, v79\nv_fmac_f32 v75, {f32(-1/(512*512*c2))}, v74\nv_max_f32 v75, {f32(1e-5/c2)}, v75\nv_rsq_f32 v74, v75')
    A(f'v_mul_f32 v78, {f32(-1/512)}, v78\nv_add_f32 v72, v112, v78\nv_add_f32 v73, v113, v78\nv_mul_f32 v72, v72, v74\nv_mul_f32 v73, v73, v74\nv_cvt_pk_bf16_f32 v72, v72, v73\nds_write_b32 {vXW}, v72')
    if late47:
        for p in range(burst, 8): piece(p)
    if diag: xstamp(42)
    A.wait_vm('wq')
    if diag: xstamp(43)
    if bar_after_k0:
        A.wait_vm('p3')
        read_k(0)
        A('s_waitcnt lgkmcnt(0)')
        for p in range(8, 12): piece(p)
    A('s_waitcnt lgkmcnt(0)')
    if 'B' not in abl: A('s_barrier')
    stamp()

    def read_wq():
        for tl in range(2):
            for j in range(2):
                for u in range(2):
                    r = 48 + 8 * tl + 4 * j + 2 * u
                    A(f'ds_read_b64_tr_b16 v[{r}:{r+1}], {vWQr} offset:{8*tl+8192*j+1024*u}')
    def read_gu():
        for tl in range(2):
            for j in range(2):
                for u in range(2):
                    r = 48 + 8 * tl + 4 * j + 2 * u
                    A(f'ds_read_b64_tr_b16 v[{r}:{r+1}], {vWr} offset:{8192*tl+4096*j+512*u}')
    def read_wd():
        for j in range(2):
            for u in range(2):
                A(f'ds_read_b64_tr_b16 v[{48+4*j+2*u}:{49+4*j+2*u}], {vWr} offset:{16384+4096*j+512*u}')
    def read_wo():
        for j in range(4):
            for u in range(2):
                A(f'ds_read_b64_tr_b16 v[{48+4*j+2*u}:{49+4*j+2*u}], {vWOr} offset:{2048*j+256*u}')
    def matvec(vst, mode, late_w=None, soff='0'):
        A(f'ds_read_b128 v[80:83], {vXR}\nds_read_b128 v[84:87], {vXR} offset:64')
        if late_w: late_w()
        A('s_waitcnt lgkmcnt(0)' if late_w else 's_waitcnt lgkmcnt(1)')
        A(f'{M16} v[96:99], v[48:51], v[80:83], 0\n{M16} v[104:107], v[56:59], v[80:83], 0')
        if not late_w: A('s_waitcnt lgkmcnt(0)')
        A(f'{M16} v[96:99], v[52:55], v[84:87], v[96:99]\n{M16} v[104:107], v[60:63], v[84:87], v[104:107]')
        if mode == 'plain':
            A(f's_cmp_eq_u32 {sFAST}, 1')
            A('v_cvt_pk_bf16_f32 v96, v96, v97\nv_cvt_pk_bf16_f32 v97, v98, v99\nv_cvt_pk_bf16_f32 v98, v104, v105\nv_cvt_pk_bf16_f32 v99, v106, v107')
            lstore(f'buffer_store_dwordx4 v[96:99], {vst}, {WS}, {soff} offen', cmp=False)
            return
        A(f'v_mov_b32 v102, {sTAG}\nv_mov_b32 v103, s64')
        A(f'v_cvt_pk_bf16_f32 v100, v96, v97\nv_cvt_pk_bf16_f32 v101, v98, v99\nv_cvt_pk_bf16_f32 v104, v104, v105\nv_cvt_pk_bf16_f32 v105, v106, v107')
        A(f'v_mov_b32 v106, {sTAG}\nv_mov_b32 v107, s64')
        if mode == 'q0':
            A.vmop(f'buffer_store_dwordx4 v[100:103], {vst}, {WS}, 0 offen', 'st')
            A.vmop(f'buffer_store_dwordx4 v[104:107], {vst}, {WS}, 0 offen offset:256', 'st')
        else:
            lstore(f'buffer_store_dwordx4 v[100:103], {vst}, {WS}, 0 offen\nbuffer_store_dwordx4 v[104:107], {vst}, {WS}, 0 offen offset:256')
    def slice_stats(sst):
        l = lab('st')
        A(f's_cmp_lg_u32 {sW}, 4\ns_cbranch_scc1 {l}')
        A(f'ds_read_b128 v[80:83], {vXR}\nds_read_b128 v[84:87], {vXR} offset:64\ns_waitcnt lgkmcnt(1)')
        A(f'{M16} v[104:107], v[80:83], v[80:83], 0\ns_waitcnt lgkmcnt(0)\n{M16} v[104:107], v[84:87], v[84:87], v[104:107]')
        def pick():
            A('v_cndmask_b32 v104, v104, v105, s[80:81]\nv_cndmask_b32 v106, v106, v107, s[80:81]\nv_cndmask_b32 v104, v104, v106, s[82:83]')
        A('s_mov_b64 s[80:81], 10\ns_mov_b64 s[82:83], 12')
        A(f's_cmp_eq_u32 {sFAST}, 1')
        pick()
        lstore(f'buffer_store_dword v104, {vSSt}, {WS}, {sst} offen', cmp=False)
        A.vm.pop()
        A(f'{l}:')

    def issue_g1(dst, voff, sbase, tag, step=4096):
        A.vmop(f'buffer_load_dwordx4 v[{dst}:{dst+3}], {voff}, {WS}, {sbase} offen sc1', tag)
        if step >= 4096:
            A(f's_add_u32 {t1}, {sbase}, {step}')
            A.vmop(f'buffer_load_dwordx4 v[{dst+4}:{dst+7}], {voff}, {WS}, {t1} offen sc1', tag)
        else:
            A.vmop(f'buffer_load_dwordx4 v[{dst+4}:{dst+7}], {voff}, {WS}, {sbase} offen offset:{step} sc1', tag)
    def check_empty(regs):
        regs = list(regs)
        A(f'v_max3_u32 {vTMP}, v{regs[0]}, v{regs[1]}, v{regs[2]}'); rest = regs[3:]
        if len(rest) >= 5:
            A(f'v_max3_u32 {vTMP2}, v{rest[0]}, v{rest[1]}, v{rest[2]}'); rest = rest[3:]
            tg = 0
            while len(rest) >= 2:
                d = (vTMP, vTMP2)[tg]; A(f'v_max3_u32 {d}, {d}, v{rest[0]}, v{rest[1]}'); rest = rest[2:]; tg ^= 1
            if rest: A(f'v_max3_u32 {vTMP}, {vTMP}, {vTMP2}, v{rest[0]}')
            else: A(f'v_max_u32 {vTMP}, {vTMP}, {vTMP2}')
        else:
            while len(rest) >= 2:
                A(f'v_max3_u32 {vTMP}, {vTMP}, v{rest[0]}, v{rest[1]}'); rest = rest[2:]
            if rest: A(f'v_max_u32 {vTMP}, {vTMP}, v{rest[0]}')
        A(f'v_cmp_eq_u32 vcc, -1, {vTMP}')
    def poll(issue, regs, spec=None):
        r, d = lab('retry'), lab('got')
        A(f'{r}:')
        issue()
        A.wait_vm()
        if spec: spec()
        check_empty(regs)
        tl = lab('again')
        A(f's_cbranch_vccnz {tl}\n{d}:')
        tails.append(f'{tl}:\n' + (f's_sleep {backoff}\n' if backoff else '') + f's_sub_u32 {sTO}, {sTO}, 1\ns_cbranch_scc0 {r}\ns_mov_b32 {sTO}, 0\ns_branch {d}')
    def issue_q(first):
        if not first:
            issue_g1(64, vG1, sQg, 'q')
            A.vmop(f'buffer_load_dwordx2 v[72:73], {vSt8}, {WS}, {sQSg} offen sc1', 'q')
            return
        issue_tagged(f's_mov_b32 {t1}, s101')
    def issue_tagged(base, dst=80, voff=None, kstep=8192, hstep=256):
        if voff is None:
            A(f'v_and_b32 {vTMP2}, 0xf0, {vG1}\nv_lshlrev_b32 {vTMP}, 1, {vG1}\nv_sub_u32 {vTMP}, {vTMP}, {vTMP2}')
        else: A(voff)
        A(base + f'\ns_add_u32 {t2}, {t1}, {kstep}')
        for k in range(2):
            for hh in range(2):
                r = dst[2 * k + hh] if isinstance(dst, tuple) else dst + 8 * k + 4 * hh
                A.vmop(f'buffer_load_dwordx4 v[{r}:{r+3}], {vTMP}, {WS}, {(t1, t2)[k]} offen offset:{hstep*hh} sc1', 'q')
    def issue_o0():
        issue_tagged(f's_lshl_b32 {t1}, {sG}, 2\ns_add_u32 {t1}, {t1}, {sHI}\ns_lshl_b32 {t0}, {t1}, 2\ns_lshl_b32 {t1}, {t1}, 14\ns_add_u32 {t1}, {t1}, {TOP}', o0dst[0])
        A(f's_add_u32 {t0}, {t0}, {sW}\ns_lshl_b32 {t0}, {t0}, 7\ns_add_u32 {t0}, {t0}, {TML}\nv_lshlrev_b32 {vTMP2}, 1, {vML2}')
        m_ = 64 if o0dst[0] == 80 else 48
        A.vmop(f'buffer_load_dwordx4 v[{m_}:{m_+3}], {vTMP2}, {WS}, {t0} offen sc1', 'q')
        A.vmop(f'buffer_load_dwordx4 v[{m_+4}:{m_+7}], {vTMP2}, {WS}, {t0} offen offset:64 sc1', 'q')
    o0dst = [80]
    def check_words(words, sval):
        w = list(words)
        A(f'v_xor_b32 {vTMP}, {sval}, v{w[0]}')
        for x in w[1:]: A(f'v_xor_b32 {vTMP2}, {sval}, v{x}\nv_or_b32 {vTMP}, {vTMP}, {vTMP2}')
        A(f'v_cmp_ne_u32 vcc, 0, {vTMP}')
    def check_tags(words=(82, 86, 90, 94)): check_words(words, sTAG)
    def tagged_sum(selbase=32, src=80, acc=96, selk=0):
        for n_, (k, hh) in enumerate(((0, 0), (0, 1), (1, 0), (1, 1))):
            r = src[2 * k + hh] if isinstance(src, tuple) else src + 8 * k + 4 * hh
            sb = selbase + selk * k + 2 * hh
            c = '0' if n_ == 0 else f'v[{acc}:{acc+3}]'
            A(f'v_mfma_f32_16x16x16_bf16 v[{acc}:{acc+3}], v[{sb}:{sb+1}], v[{r}:{r+1}], {c}')
    def q0_finish():
        tagged_sum()
        check_words((83, 87, 91, 95), 's64')
        A(f's_cmp_eq_u64 vcc, 0\ns_cselect_b32 {sGOK}, 1, 2')
        A(f'v_cvt_pk_bf16_f32 v96, v96, v97\nds_write_b32 {vQW}, v96')
    def tagged_poll(issue, words=(82, 86, 90, 94), spec=None, back=0):
        rq, gq = lab('rq'), lab('gq')
        A(f'{rq}:')
        issue(); A.wait_vm()
        if spec: spec()
        check_tags(words)
        A(f's_cbranch_vccz {gq}')
        if back: A(f's_sleep {back}')
        A(f's_sub_u32 {sTO}, {sTO}, 1\ns_cbranch_scc0 {rq}\ns_mov_b32 {sTO}, 0\n{gq}:')
    CQ = (48, 52, 56, 60)
    def issue_csq(): issue_tagged(f's_lshl_b32 {t1}, {sG}, 14\ns_add_u32 {t1}, {t1}, {TQC}', CQ)
    def finish_csq():
        ok_ = lab('cq')
        check_tags(tuple(r + 2 for r in CQ))
        A(f's_cbranch_vccz {ok_}')
        tagged_poll(issue_csq, tuple(r + 2 for r in CQ))
        A(f'{ok_}:')
        tagged_sum(32, CQ, 64)
        A(f's_mov_b32 {t2}, {f32(1/512)}\nv_pk_mul_f32 {CSQ}, v[64:65], s[56:57] op_sel_hi:[1,0]')
    QREGS = list(range(64, 74)); QREGS1 = QREGS + list(range(80, 88))
    def ln_spec(selop, first):
        def f():
            A(f'{M16} v[96:99], {selop}, v[64:67], 0\n{M16} v[96:99], {selop}, v[68:71], v[96:99]')
            if first:
                A(f'{M16} v[100:103], {selop}, v[80:83], 0\n{M16} v[100:103], {selop}, v[84:87], v[100:103]')
            A(f'v_add_f32_dpp v78, v72, v72 quad_perm:[1,0,3,2] {DPP}\nv_add_f32_dpp v79, v73, v73 quad_perm:[1,0,3,2] {DPP}')
        return f
    def ln_finish(cs, scale, first):
        for m in ('quad_perm:[2,3,0,1]', 'row_half_mirror'):
            A(f'v_add_f32_dpp v78, v78, v78 {m} {DPP}\nv_add_f32_dpp v79, v79, v79 {m} {DPP}')
            if m.startswith('quad'): A(f'v_mov_b32 v75, {f32(1e-5/(scale*scale))}')
        c2 = scale * scale
        A(f'v_mul_f32 v74, v78, v78\nv_fmac_f32 v75, {f32(1/(512*c2))}, v79')
        if first:
            A(f's_mov_b32 {t2}, {f32(1/512)}\nv_pk_mul_f32 {cs}, v[100:101], s[56:57] op_sel_hi:[1,0]')
        A(f'v_fmac_f32 v75, {f32(-1/(512*512*c2))}, v74\nv_max_f32 v75, {f32(1e-5/c2)}, v75\nv_rsq_f32 v74, v75')
        A(f'v_pk_fma_f32 v[96:97], v[78:79], {cs}, v[96:97] op_sel_hi:[0,1,1] neg_lo:[1,0,0] neg_hi:[1,0,0]')
        A(f'v_pk_mul_f32 v[96:97], v[96:97], v[74:75] op_sel_hi:[1,0]')
    def q_finish(first):
        ln_finish(CSQ, QSCALE, first)
        A(f'v_cvt_pk_bf16_f32 v96, v96, v97\nds_write_b32 {vQW}, v96')

    save = list(A.vm)
    with lowwaves():
        read_wq()
        A('s_waitcnt lgkmcnt(0)')
        if 'Q' not in abl: matvec('v109', 'q0')
    stamp()

    def issue_wo():
        A(f's_lshl_b32 {t1}, {sG}, 9\ns_lshl_b32 {t2}, {sHI}, 7\ns_add_u32 {t1}, {t1}, {t2}\ns_lshl_b32 {t2}, {sW}, 4\ns_add_u32 {t1}, {t1}, {t2}\ns_lshl_b32 {t1}, {t1}, 10\ns_lshl_b32 {t2}, {sLO}, 7\ns_add_u32 {t1}, {t1}, {t2}')
        A(f's_lshl_b32 {t2}, {sW}, 11\ns_add_u32 m0, {t2}, {L_WO}')
        A.vmop(f'buffer_load_dwordx4 v124, {WO}, {t1} offen nt lds', 'wo')
        A(f's_add_u32 {t1}, {t1}, 8192\ns_add_u32 m0, m0, 1024')
        A.vmop(f'buffer_load_dwordx4 v124, {WO}, {t1} offen nt lds', 'wo')

    def issue_ffn(dw=0, track=False, parts='gud'):
        vm_ = (lambda x: A.vmop(x, 'ffn')) if track else A
        A(f's_add_u32 {t0}, {sW}, {dw}')
        if 'g' in parts:
            A(f's_lshl_b32 {t1}, {sLO}, 6\ns_lshl_b32 {t2}, {t0}, 3\ns_add_u32 {t1}, {t1}, {t2}\ns_mul_i32 {t1}, {t1}, 3584\ns_lshl_b32 {t2}, {g2}, 7\ns_add_u32 {t1}, {t1}, {t2}')
        A(f's_lshl_b32 {t2}, {t0}, 10\ns_add_u32 m0, {t2}, {L_WG}')
        if 'g' in parts:
            vm_(f'buffer_load_dwordx4 v126, {WG}, {t1} offen nt lds')
            A(f's_add_u32 m0, {t2}, {L_WU}')
            vm_(f'buffer_load_dwordx4 v126, {WU}, {t1} offen nt lds')
        if 'd' not in parts: return
        A(f's_lshl_b32 {t1}, {g2}, 6\ns_lshl_b32 {t3}, {t0}, 3\ns_add_u32 {t1}, {t1}, {t3}\ns_lshl_b32 {t1}, {t1}, 10\ns_lshl_b32 {t3}, {sLO}, 7\ns_add_u32 {t1}, {t1}, {t3}\ns_add_u32 m0, {t2}, {L_WD}')
        vm_(f'buffer_load_dwordx4 v127, {WD}, {t1} offen nt lds')
    wait_of = {}
    d = 6
    for p_ in range(12, 32):
        tgt = depth if p_ < deep_from else deep
        need_d = p_ - tgt
        if p_ in (12, 16, 20): need_d = max(need_d, p_ - 5)
        if need_d > d: wait_of[p_] = list(range(d + 1, need_d + 1)); d = need_d
        else: wait_of[p_] = []
    last_read = d
    def step(p):
        for d_ in wait_of[p]:
            A.wait_vm(f'p{d_}')
            if d_ < 16:
                if d_ % 4 == 3: read_k(d_ // 4); A('s_waitcnt lgkmcnt(0)')
            else:
                A('s_waitcnt lgkmcnt(0)')
                read_v(d_)
            if diag and d_ in (7, 11, 15, 19, 23): xstamp(45 + (d_ - 7) // 4)
        if p == ffn_at and len(tail_parts) < 3: issue_ffn(0, True, ''.join(c_ for c_ in 'gud' if c_ not in tail_parts))
        if p == wo_at: issue_wo()
        piece(p)
    hi_l, join_all, flag_l = lab('shi'), lab('sj'), lab('fl')
    def lead_in():
        if not bar_after_k0:
            A.wait_vm('p3')
            if diag: xstamp(44)
            read_k(0); A('s_waitcnt lgkmcnt(0)')
            for pp in range(8, 12): piece(pp)
    lowcode = [True]
    def steps(lo_, hi_):
        for pp in range(lo_, hi_):
            if pp == touch_o and lowcode[0]:
                n_ = len(A.vm); o0dst[0] = 48; issue_o0(); o0dst[0] = 80
                A.vm[n_:] = ['touch'] * (len(A.vm) - n_)
            if pp == csq_at and lowcode[0]:
                n_ = len(A.vm); issue_csq(); A.vm[n_:] = ['csq'] * (len(A.vm) - n_)
            step(pp)
    A(f's_cmp_ge_u32 {sW}, 4\ns_cbranch_scc1 {hi_l}')
    lead_in()
    p = 12
    while p < 32:
        if p in rides:
            skip, join = lab('noq'), lab('jn')
            saved = list(A.vm)
            A(f's_cmp_lg_u32 {sGOK}, 0\ns_cbranch_scc1 {skip}')
            issue_q(True)
            steps(p, p + 5)
            if 'q' in A.vm: A.wait_vm('q')
            check_tags()
            nq = lab('nq')
            A(f's_cbranch_vccnz {nq}')
            q0_finish()
            A(f'{nq}:\ns_branch {join}\n{skip}:')
            after_q = list(A.vm)
            A.vm = saved
            steps(p, p + 5)
            extra = len(A.vm) - len(after_q)
            assert A.vm[extra:] == after_q, (A.vm, after_q)
            A.vm = after_q if extra <= 0 else A.vm
            A(f'{join}:')
            p += 5
        else:
            steps(p, p + 1); p += 1
    saved = list(A.vm)
    def put_status():
        A(f's_lshl_b32 {t1}, {sW}, 2\ns_add_u32 {t1}, {t1}, {L_ST}\nv_mov_b32 {vTMP}, {t1}\nv_mov_b32 {vTMP2}, {sGOK}\nds_write_b32 {vTMP}, {vTMP2}')
    def get_status():
        A(f'v_mov_b32 {vTMP}, {L_ST}\nds_read_b128 v[72:75], {vTMP}\ns_waitcnt lgkmcnt(0)')
        check_words((72, 73, 74, 75), '1')
        A('s_cmp_eq_u64 vcc, 0')
    put_status()
    A(f's_branch {join_all}\n{hi_l}:')
    A.vm = save; lowcode[0] = False
    lead_in()
    steps(12, 32)
    saved = list(A.vm)
    A(f'{join_all}:')
    stamp()
    A('s_waitcnt lgkmcnt(0)\ns_barrier')
    get_status()
    okq = lab('okq')
    A(f's_cbranch_scc1 {okq}')
    if not abl:
        with lowwaves():
            A(f'buffer_store_dwordx4 v[100:103], v109, {WS}, 0 offen sc1\nbuffer_store_dwordx4 v[104:107], v109, {WS}, 0 offen offset:256 sc1')
            dn = lab('qdone')
            A(f's_cmp_lg_u32 {sGOK}, 0\ns_cbranch_scc1 {dn}')
            tagged_poll(lambda: issue_q(True))
            q0_finish()
            A(f'{dn}:')
        A('s_barrier')
        with lowwaves(): put_status()
        A('s_waitcnt lgkmcnt(0)\ns_barrier')
        get_status()
    A(f'{okq}:\ns_cselect_b32 {sFAST}, 1, 0')
    A.vm = saved
    def scores(bar=True):
        if bar: A('s_waitcnt lgkmcnt(0)\ns_barrier')
        for j in range(4): A(f'ds_read_b128 v[{64+4*j}:{67+4*j}], {vBR320} offset:{64*j}')
        def sel_t(t, rs):
            for r in rs: A(f'v_mov_b32_dpp v{80+r}, v{80+4*t+r} quad_perm:[0,1,2,3] row_mask:0xf bank_mask:{1<<t:#x}')
        if tmajor:
            for t in range(4):
                for j in range(4):
                    if t == 0: A(f's_waitcnt lgkmcnt({3-j})')
                    c = '0' if j == 0 else f'v[{80+4*t}:{83+4*t}]'
                    A(f'{M16} v[{80+4*t}:{83+4*t}], a[{16*t+4*j}:{16*t+4*j+3}], v[{64+4*j}:{67+4*j}], {c}')
            sel_t(1, range(4)); sel_t(2, range(4)); sel_t(3, range(4))
        else:
            for j in range(4):
                A(f's_waitcnt lgkmcnt({3-j})')
                for t in range(4):
                    c = '0' if j == 0 else f'v[{80+4*t}:{83+4*t}]'
                    A(f'{M16} v[{80+4*t}:{83+4*t}], a[{16*t+4*j}:{16*t+4*j+3}], v[{64+4*j}:{67+4*j}], {c}')
            for t in range(1, 4): sel_t(t, range(4))
        A('v_max3_f32 v84, v80, v81, v82\nv_max_f32 v84, v84, v83')
        A(f'v_max_f32_dpp v84, v84, v84 row_ror:4 {DPP}')
        A(f'v_max_f32_dpp v84, v84, v84 row_ror:8 {DPP}')
        A('v_mov_b32 v85, v84\nv_permlane16_swap_b32 v84, v85\nv_max_f32 v84, v84, v85')
        A('v_mov_b32 v85, v84\nv_permlane32_swap_b32 v84, v85\nv_max_f32 v84, v84, v85')
        A('v_pk_add_f32 v[80:81], v[80:81], v[84:85] op_sel_hi:[1,0] neg_lo:[0,1] neg_hi:[0,1]')
        A('v_pk_add_f32 v[82:83], v[82:83], v[84:85] op_sel_hi:[1,0] neg_lo:[0,1] neg_hi:[0,1]')
        for r in range(4): A(f'v_exp_f32 v{80+r}, v{80+r}')
        A('v_cvt_pk_bf16_f32 v86, v80, v81\nv_cvt_pk_bf16_f32 v87, v82, v83')
        A(f'v_mfma_f32_16x16x16_bf16 v[88:91], {ONES}, v[86:87], 0')
    def pv(i):
        for hf in range(2):
            acc = 96 + 8 * (i & 1) + 4 * hf
            c = '0' if i < 2 else f'v[{acc}:{acc+3}]'
            A(f'v_mfma_f32_4x4x4_16b_bf16 v[{acc}:{acc+3}], v[86:87], a[{64+4*i+2*hf}:{65+4*i+2*hf}], {c} cbsz:4 abid:{4*(i&3)+(i>>2)}')
    def lsum():
        A(f'v_add_f32_dpp v85, v88, v88 row_ror:4 {DPP}')
        A(f'v_add_f32_dpp v85, v85, v85 row_ror:8 {DPP}')
        A(f's_mov_b64 exec, 15\nds_write_b64 {vRMW}, v[84:85]')
        full_exec()
    def combine(tagged=False, other=None):
        for h in range(4):
            A(f'v_add_f32 v{64+2*h}, v{96+h}, v{104+h}\nv_add_f32 v{65+2*h}, v{100+h}, v{108+h}')
            if h & 1: A(f'ds_write_b128 {vROW}, v[{62+2*h}:{65+2*h}] offset:{512*(h-1)}')
        A('s_waitcnt lgkmcnt(0)\ns_barrier')
        with lowwaves(other):
            A(f'ds_read_b64 v[72:73], {vRMR}')
            for k in range(8): A(f'ds_read_b64 v[{80+2*k}:{81+2*k}], {vROR} offset:{8192*k}')
            A('s_waitcnt lgkmcnt(8)')
            A(f'v_max_f32_dpp v74, v72, v72 quad_perm:[1,0,3,2] {DPP}')
            A(f'v_max_f32_dpp v74, v74, v74 quad_perm:[2,3,0,1] {DPP}')
            A(f'v_max_f32_dpp v74, v74, v74 row_half_mirror {DPP}')
            A('v_sub_f32 v72, v72, v74\nv_exp_f32 v72, v72')
            for k in range(8): A(f'v_readlane_b32 s{80+k}, v72, {k}')
            A('v_mul_f32 v75, v73, v72\ns_waitcnt lgkmcnt(0)')
            for k in range(8):
                sp = f's[{80+(k&~1)}:{81+(k&~1)}]'
                o = 'op_sel_hi:[1,0' if (k & 1) == 0 else 'op_sel:[0,1'
                d = 64 + 2 * (k & 1)
                if k < 2: A(f'v_pk_mul_f32 v[{d}:{d+1}], v[{80+2*k}:{81+2*k}], {sp} {o}]')
                else: A(f'v_pk_fma_f32 v[{d}:{d+1}], v[{80+2*k}:{81+2*k}], {sp}, v[{d}:{d+1}] {o},{1 if (k&1)==0 else 0}]')
            A('v_pk_add_f32 v[64:65], v[64:65], v[66:67]\nv_cvt_pk_bf16_f32 v64, v64, v65')
            if tagged:
                A(f'v_mov_b32 v66, {sTAG}\nv_mov_b32 v67, {sTAG}\nv_mov_b32_dpp v65, v64 quad_perm:[1,1,3,3] {DPP}')
                lstore(f'buffer_store_dwordx4 v[64:67], v118, {WS}, 0 offen')
                A(f'v_mov_b32 v76, {sTAG}\nv_mov_b32 v77, {sTAG}')
                A(f's_lshl_b32 {t1}, {sG}, 2\ns_add_u32 {t1}, {t1}, {sW}\ns_lshl_b32 {t1}, {t1}, 2\ns_add_u32 {t1}, {t1}, {sHI}\ns_lshl_b32 {t1}, {t1}, 3\ns_add_u32 {t1}, {t1}, {sLO}\ns_lshl_b32 {t1}, {t1}, 4\ns_add_u32 {t1}, {t1}, {TML}')
            else:
                lstore(f'buffer_store_dword v64, {vL4}, {WS}, {sOPst} offen')
            for m in ('quad_perm:[1,0,3,2]', 'quad_perm:[2,3,0,1]', 'row_half_mirror'):
                A(f'v_add_f32_dpp v75, v75, v75 {m} {DPP}')
            if tagged: lstore(f'buffer_store_dwordx4 v[74:77], {vMLst}, {WS}, {t1} offen')
            else: lstore(f'buffer_store_dwordx2 v[74:75], {vMLst}, {WS}, {sMLst} offen')

    A('v_mov_b32 v118, v110')
    A(f's_mul_i32 {t1}, {sC}, 1312\ns_add_u32 {t1}, {t1}, {sGBASE}\ns_add_u32 {t1}, {t1}, {bGP - 7168}\ns_sub_u32 {t2}, {sXst}, 7168')
    A(f'v_add_u32 v119, {t1}, v115\nv_add_u32 v120, {t2}, v115\nv_add_u32 {vTMP}, 512, v119\nv_cmp_lt_u32 vcc, 31, {vL}'); sel('v120', 'v120', vTMP)
    A(f'v_mov_b32 {vTMP}, {OOB}\nv_cmp_lt_u32 vcc, 49, {vL}'); sel('v120', 'v120', vTMP)
    A(f'v_cmp_gt_u32 vcc, 7168, v115'); sel('v119', 'v119', vTMP); sel('v120', 'v120', vTMP)
    A('v_mov_b32 v56, -1\nv_mov_b32 v57, -1\nv_mov_b32 v58, -1\nv_mov_b32 v59, -1' if False else '')
    def clean_urgent():
        A('v_mov_b32 v92, -1\nv_mov_b32 v93, -1\nv_mov_b32 v94, -1\nv_mov_b32 v95, -1')
        A.vmop(f'buffer_store_dwordx4 v[92:95], v119, {WS}, 0 offen sc1', 'cu')
        A.vmop(f'buffer_store_dwordx4 v[92:95], v120, {WS}, 0 offen sc1', 'cu')
    scores(False)
    for i in range(last_read - 15): pv(i)
    lsum()
    stamp()
    for p in range(last_read + 1, 32):
        A.wait_vm(f'p{p}')
        read_v(p)
        if p == cl_at: clean_urgent()
        if p == 31:
            issue_wo()
            if tail_parts: issue_ffn(0, True, tail_parts)
        A('s_waitcnt lgkmcnt(0)')
        pv(p - 16)
        if p == max(csq_at, last_read + 1) and not abl:
            keep_vm = list(A.vm)
            with lowwaves(): finish_csq()
            A.vm = keep_vm
    stamp()
    if abl: A('s_branch L_fin')
    def clean_first():
        l_ = lab('c7')
        A(f's_cmp_lg_u32 {sW}, 7\ns_cbranch_scc1 {l_}')
        A(f's_lshl_b32 {t1}, {sLO}, 5\ns_lshl_b32 {t2}, {sG}, 2\ns_add_u32 {t1}, {t1}, {t2}\ns_add_u32 {t1}, {t1}, {sHI}\ns_lshl_b32 {t1}, {t1}, 2')
        A(f's_lshl_b32 {t2}, {sG}, 5\ns_add_u32 {t2}, {t2}, {sC}\ns_lshl_b32 {t2}, {t2}, 2\ns_add_u32 {t2}, {t2}, 1024')
        A(f'v_mov_b32 v68, {t1}\nv_writelane_b32 v68, {t2}, 1\nv_mov_b32 v69, {sTAG}\ns_mov_b32 {t1}, {TF}\ns_mov_b64 exec, 3')
        A(f's_waitcnt vmcnt({2 + len(tail_parts)})\nbuffer_store_dword v69, v68, {WS}, {t1} offen sc1')
        full_exec()
        A(f'v_mov_b32 v64, -1\nv_mov_b32 v65, -1\nv_mov_b32 v66, -1\nv_mov_b32 v67, -1\nv_lshlrev_b32 v68, 2, {vL4}')
        A(f's_mul_i32 {t2}, {sC}, 2112\ns_add_u32 {t2}, {t2}, {sGBASE}\ns_add_u32 {t2}, {t2}, {LS}')
        A(f'buffer_store_dwordx4 v[64:67], v68, {WS}, {t2} offen sc1\nbuffer_store_dwordx4 v[64:67], v68, {WS}, {t2} offen offset:1024 sc1')
        A(f's_add_u32 {t1}, {sXst}, {oXB - oXA}\ns_add_u32 {t2}, {t2}, {2048 - 512}\nv_add_u32 v69, {t1}, v68\nv_add_u32 v70, {t2}, v68\nv_cmp_lt_u32 vcc, 31, {vL}'); sel('v69', 'v69', 'v70')
        A(f'v_mov_b32 v70, {OOB}\nv_cmp_lt_u32 vcc, 35, {vL}'); sel('v69', 'v69', 'v70')
        A(f'buffer_store_dwordx4 v[64:67], v69, {WS}, 0 offen sc1')
        A(f'{l_}:')
    combine(True, clean_first)
    stamp(True)

    if prio:
        l_ = lab('pr'); A(f's_cmp_ge_u32 {sW}, 4\ns_cbranch_scc1 {l_}\ns_setprio 1\n{l_}:')
    A('L_layer:'); inloop[0] = True
    def proj_body(nk, vb, boff, xoff, late_w=None, tagged=False):
        for j in range(nk): A(f'ds_read_b128 v[{64+4*j}:{67+4*j}], {vb} offset:{boff+64*j}')
        if late_w: late_w()
        for j in range(nk):
            if not late_w: A(f's_waitcnt lgkmcnt({nk-1-j})')
            elif j == 0: A('s_waitcnt lgkmcnt(0)')
            c = '0' if j == 0 else 'v[96:99]'
            A(f'{M16} v[96:99], v[{48+4*j}:{51+4*j}], v[{64+4*j}:{67+4*j}], {c}')
        if tagged:
            A(f'v_mov_b32 v102, {sTAG}\nv_mov_b32 v103, {sTAG}\nv_cvt_pk_bf16_f32 v100, v96, v97\nv_cvt_pk_bf16_f32 v101, v98, v99')
            A(f'buffer_store_dwordx4 v[100:103], v47, {WS}, 0 offen sc1')
            if diag2: xstamp(52)
        else:
            A(f's_add_u32 {t1}, {sXst}, {xoff}')
            A('v_cvt_pk_bf16_f32 v96, v96, v97\nv_cvt_pk_bf16_f32 v97, v98, v99')
            A(f'buffer_store_dwordx2 v[96:97], {vXst}, {WS}, {t1} offen sc1')
    def proj_out(nk, vb, boff, xoff, first=None):
        sk, dl = lab('sk'), lab('dl')
        A(f's_cmp_ge_u32 {sW}, 4\ns_cbranch_scc1 {sk}')
        if first: variant(first, lambda: proj_body(nk, vb, boff, xoff))
        else: proj_body(nk, vb, boff, xoff)
        return sk, dl
    def first_only(f):
        def g():
            l, bk = lab('fo'), lab('bk')
            A(f's_cmp_eq_u32 {sLIDX}, 0\ns_cbranch_scc1 {l}\n{bk}:')
            keepL, A.L = A.L, []
            A(f'{l}:'); f(); A(f's_branch {bk}')
            tails.append('\n'.join(A.L)); A.L = keepL
        return g
    def variant(first, later):
        l, bk = lab('v0'), lab('vj')
        A(f's_cmp_eq_u32 {sLIDX}, 0\ns_cbranch_scc1 {l}')
        n0 = nts[0]
        later()
        A(f'{bk}:')
        n1, nts[0] = nts[0], n0
        keepL, A.L = A.L, []
        A(f'{l}:'); first(); A(f's_branch {bk}')
        tails.append('\n'.join(A.L)); A.L = keepL
        assert nts[0] == n1
    def later_only(f):
        l = lab('lo'); A(f's_cmp_eq_u32 {sLIDX}, 0\ns_cbranch_scc1 {l}'); f(); A(f'{l}:')
    def g_wait(sk, dl, pre, busy_first=False, hi_pre=None, lo_d=None, hi_d=None, extra0=0):
        pre()
        A(f's_sleep {lo_d or gdelay}')
        A(f's_branch {dl}\n{sk}:')
        if hi_pre: hi_pre()
        A(f's_sleep {hi_d or gdelay_hi}')
        A(f'{dl}:')
        if extra0: first_only(lambda: A(f's_sleep {extra0}'))()
    def reduce_x(xoff, final, first=None):
        def normal():
            A(f's_add_u32 {t0}, {sXg}, {xoff}')
            poll(lambda: issue_g1(64, vXg, t0, 'x', 8192), range(64, 72),
                 lambda: A(f'{M16} v[96:99], {SELA}, v[64:67], 0\n{M16} v[96:99], {SELA}, v[68:71], v[96:99]'))
        if first: variant(first, normal)
        else: normal()
        stamp()
        A(f'v_add_f32_dpp v96, v96, v96 row_ror:4 {DPP}\nv_add_f32_dpp v97, v97, v97 row_ror:4 {DPP}')
        if final: A(f's_cmp_eq_u32 {sLIDX}, 1')
        A(f'v_add_f32_dpp v96, v96, v96 row_ror:8 {DPP}\nv_add_f32_dpp v97, v97, v97 row_ror:8 {DPP}')
        A(f'v_pk_add_f32 {XRES}, {XRES}, v[96:97]\ns_mov_b64 exec, {sM4}\nv_cvt_pk_bf16_f32 v96, v112, v113')
        if final: A(f's_cbranch_scc1 L_out')
        A(f'ds_write_b32 {vXW}, v96')
        full_exec()
        A('s_waitcnt lgkmcnt(0)\ns_barrier')
    def issue_o():
        issue_g1(64, vG1, sOg, 'o')
        A.vmop(f'buffer_load_dwordx2 v[72:73], {vML2}, {WS}, {sMLg} offen sc1', 'o')
        A.vmop(f'buffer_load_dwordx2 v[74:75], {vML2}, {WS}, {sMLg} offen offset:32 sc1', 'o')
    def wo_weights(ma, la, mb, lb, selreg, mm):
        A(f'v_max_f32 v76, v{ma}, v{mb}\nv_mov_b32 v77, v76\nv_permlane16_swap_b32 v76, v77\nv_max_f32 v76, v76, v77')
        A('v_mov_b32 v77, v76\nv_permlane32_swap_b32 v76, v77\nv_max_f32 v76, v76, v77')
        A(f'v_sub_f32 v{ma}, v{ma}, v76\nv_sub_f32 v{mb}, v{mb}, v76\nv_exp_f32 v{ma}, v{ma}\nv_exp_f32 v{mb}, v{mb}')
        A(f'v_cvt_pk_bf16_f32 v{ma}, v{ma}, v{ma}\nv_cvt_pk_bf16_f32 v{mb}, v{mb}, v{mb}')
        for i in range(4): A(f'v_and_b32 v{selreg+i}, v{MASK+i}, v{ma}')
        for i in range(4): A(f'v_and_b32 v{selreg+4+i}, v{MASK+i}, v{mb}')
        mm()
        A(f'v_and_b32 v{ma}, 0xffff0000, v{ma}\nv_and_b32 v{mb}, 0xffff0000, v{mb}\nv_mul_f32 v73, v{la}, v{ma}\nv_fmac_f32 v73, v{lb}, v{mb}')
        A('v_mov_b32 v77, v73\nv_permlane16_swap_b32 v73, v77\nv_add_f32 v73, v73, v77')
        A('v_mov_b32 v77, v73\nv_permlane32_swap_b32 v73, v77\nv_add_f32 v73, v73, v77\nv_rcp_f32 v72, v73')
    def wo_later():
        read_wo()
        if ldelay: A(f's_sleep {ldelay}')
        poll(issue_o, range(64, 76))
        stamp()
        wo_weights(72, 73, 74, 75, 80, lambda: A(f'{M16} v[96:99], v[80:83], v[64:67], 0\n{M16} v[96:99], v[84:87], v[68:71], v[96:99]'))
    def wo_first():
        if diag2: A(f's_mov_b32 s65, {sTO}')
        def issue():
            issue_o0()
            if csq_o: issue_tagged(f's_lshl_b32 {t1}, {sG}, 14\ns_add_u32 {t1}, {t1}, {TQC}', 48)
        if wo_at: read_wo()
        if csq_o: tagged_poll(issue, (82, 86, 90, 94, 66, 70, 50, 54, 58, 62), lambda: tagged_sum(32, 48, 108))
        else: tagged_poll(issue, (82, 86, 90, 94, 66, 70))
        stamp()
        if diag2: A(f's_sub_u32 s65, s65, {sTO}\nv_readlane_b32 s94, {vTS}, 0\ns_mul_i32 s65, s65, 100\ns_add_u32 s65, s65, s94\nv_writelane_b32 {vTS}, s65, 55')
        wo_weights(64, 65, 68, 69, 100, lambda: tagged_sum(100, 80, 96, 4))
        if csq_o: A(f's_mov_b32 {t2}, {f32(1/512)}\nv_pk_mul_f32 {CSQ}, v[108:109], s[56:57] op_sel_hi:[1,0]')
    with lowwaves():
        variant(wo_first, wo_later)
        A('v_pk_mul_f32 v[96:97], v[96:97], v[72:73] op_sel_hi:[1,0]\nv_cvt_pk_bf16_f32 v96, v96, v97')
        A(f'ds_write_b32 {vQW}, v96 offset:{L_OS-L_QS}')
    A(f's_waitcnt vmcnt(0) lgkmcnt(0)\ns_barrier')
    sk, dl = proj_out(4, vBR320, L_OS - L_QS, 0, lambda: proj_body(4, vBR320, L_OS - L_QS, 0, read_wo))
    def clean3():
        A(f's_mul_i32 {t1}, {sC}, 1056\ns_add_u32 {t1}, {t1}, {sGBASE}\ns_add_u32 {t1}, {t1}, {LS + bGP - 4096}\nv_mov_b32 v68, {OOB}')
        A(f'v_add_u32 {vTMP}, {t1}, v115\nv_cmp_gt_u32 vcc, {4096 + 1056}, v115'); sel('v69', 'v68', vTMP)
        A('v_mov_b32 v64, -1\nv_mov_b32 v65, -1\nv_mov_b32 v66, -1\nv_mov_b32 v67, -1')
        A(f's_add_u32 {t1}, {sXst}, {LS - 7168}\nv_add_u32 {vTMP}, {t1}, v115\nv_add_u32 {vTMP2}, {oXB - oXA - 512}, {vTMP}\nv_cmp_lt_u32 vcc, {7680 - 1}, v115'); sel(vTMP, vTMP, vTMP2)
        A(f'v_cmp_lt_u32 vcc, {7168 - 1}, v115'); sel('v69', 'v69', vTMP)
        A(f'buffer_store_dwordx4 v[64:67], v69, {WS}, 0 offen sc1')
    leave_ = [None]
    def touch_lines(bases):
        for sb, off in bases:
            A(f's_add_u32 {t0}, {sb}, {off}\ns_add_u32 {t1}, {t0}, 4096')
            A(f'buffer_load_dwordx4 v[80:83], {vG1}, {WS}, {t0} offen sc1\nbuffer_load_dwordx4 v[84:87], {vG1}, {WS}, {t1} offen sc1')
    def touch_small(bases):
        for sb, off in bases:
            A(f's_add_u32 {t0}, {sb}, {off}\nbuffer_load_dwordx2 v[88:89], {vSt8}, {WS}, {t0} offen sc1')
    def watch_flags():
        l_, r_, d_ = lab('w4'), lab('fr'), lab('fd')
        A(f's_cmp_lg_u32 {sW}, 4\ns_cbranch_scc1 {l_}')
        A(f's_lshl_b32 {t1}, {sLO}, 7\ns_lshl_b32 {t2}, {sG}, 7\ns_add_u32 {t2}, {t2}, {1024 - 128}\nv_add_u32 v68, {t1}, {vL4}\nv_add_u32 v69, {t2}, {vL4}\nv_cmp_lt_u32 vcc, 31, {vL}'); sel('v68', 'v68', 'v69')
        A(f's_mov_b32 {t1}, {TF}')
        if fdelay: A(f's_sleep {fdelay}')
        e_ = lab('fe')
        A(f'buffer_load_dword v69, v68, {WS}, {t1} offen sc1\ns_waitcnt vmcnt(0)\nv_cmp_ne_u32 vcc, {sTAG}, v69\ns_cbranch_vccz {d_}')
        A(f'{r_}:\ns_sleep {fback}\nbuffer_load_dword v69, v68, {WS}, {t1} offen sc1\ns_waitcnt vmcnt(0)\nv_cmp_ne_u32 vcc, {sTAG}, v69\ns_cbranch_vccz {e_}')
        A(f's_sub_u32 {sTO}, {sTO}, 1\ns_cbranch_scc0 {r_}\ns_mov_b32 {sTO}, 0\n{e_}:')
        if flate: A(f's_sleep {flate}')
        A(f'{d_}:')
        A(f'v_mov_b32 v68, {L_FL}\nv_mov_b32 v69, 1\nds_write_b32 v68, v69')
        A(f's_branch {after_sleep[0]}\n{l_}:')
    def await_flags():
        r_, d_ = lab('ar'), lab('ad')
        A(f'v_mov_b32 v68, {L_FL}\n{r_}:\nds_read_b32 v69, v68\ns_waitcnt lgkmcnt(0)\nv_cmp_eq_u32 vcc, 1, v69\ns_cbranch_vccnz {d_}')
        A(f's_sleep 1\ns_sub_u32 {sTO}, {sTO}, 1\ns_cbranch_scc0 {r_}\ns_mov_b32 {sTO}, 0\n{d_}:')
        if touch_g:
            with lowwaves(): touch_lines([(sGg, 0)])
    after_sleep = [None]
    def hi_xa():
        first_only(watch_flags)()
        if ffn_by_hi:
            pt = 'gu' if wd_late else 'gud'
            first_only(lambda: (issue_ffn(-4, False, pt), issue_ffn(0, False, pt)))()
        if clean3_xa: first_only(clean3)()
        if touch1 & 1: first_only(lambda: (touch_lines([(sQg, 0), (sOg, LS)]), touch_small([(sQSg, 0), (sMLg, LS)])))()
        if touch1 & 2: later_only(lambda: (touch_lines([(sGg, 0)]), touch_small([(sGSg, 0)])))
    def hi_xb():
        leave_[0]()
        if not clean3_xa: first_only(clean3)()
        if touch1 & 4: first_only(lambda: (touch_lines([(sGg, LS)]), touch_small([(sGSg, LS)])))()
        if touch1 & 8: first_only(lambda: (touch_lines([(sQg, 0), (sOg, LS)]), touch_small([(sQSg, 0), (sMLg, LS)])))()
    after_sleep[0] = dl
    g_wait(sk, dl, read_gu, False, hi_xa, extra0=xa0)
    first_only(await_flags)()
    stamp()
    reduce_x(0, False)
    def issue_gp(first):
        issue_g1(64, vG1, sGg, 'g')
        A.vmop(f'buffer_load_dwordx2 v[72:73], {vSt8}, {WS}, {sGSg} offen sc1', 'g')
        if first:
            A(f'v_and_b32 {vTMP}, 0xf0, {vG1}\nv_and_b32 {vTMP2}, 0xc00, {vG1}\nv_lshrrev_b32 {vTMP2}, 2, {vTMP2}\nv_or_b32 {vTMP}, {vTMP}, {vTMP2}')
            issue_g1(80, vTMP, sGCg, 'g', 1024)
    def ffn_gather(first):
        def f():
            if ldelay and not first: A(f's_sleep {ldelay}')
            poll(lambda: issue_gp(first), QREGS1 if first else QREGS, ln_spec(SELG, first))
            ln_finish(CSG, 1.0, first)
        return f
    with lowwaves(lambda: slice_stats(sGSst)):
        matvec(vGst, 'plain', None, sLAY)
        stamp()
        read_wd()
        variant(ffn_gather(True), ffn_gather(False))
        stamp()
        A('v_cvt_pk_bf16_f32 v96, v96, v97\nv_and_b32 v97, 0xffff0000, v96\nv_lshlrev_b32 v96, 16, v96\nv_max_f32 v96, 0, v96\nv_mul_f32 v96, v96, v97\nv_cvt_pk_bf16_f32 v96, v96, v96')
        A(f'ds_write_b16 {vHW}, v96')
    A('s_waitcnt lgkmcnt(0)\ns_barrier')
    sk, dl = proj_out(2, vBR192, 0, oXB - oXA)
    def leave():
        no = lab('no')
        A(f's_cmp_eq_u32 {sLIDX}, 0\ns_cbranch_scc1 {no}\ns_cmp_lg_u32 {sHI}, 0\ns_cbranch_scc1 L_fin\ns_cmp_lg_u32 {sG}, {sLO}\ns_cbranch_scc1 L_fin\n{no}:')
    def pre_q():
        leave()
        read_wq()
    leave_[0] = leave
    g_wait(sk, dl, pre_q, False, hi_xb, gd_b, gdh_b, xb0)
    stamp()
    reduce_x(oXB - oXA, True)
    keep = nts[0]; nts[0] -= 11
    def advance():
        A(f's_mov_b32 {sLIDX}, 1\ns_mov_b32 {sLAY}, {LS}')
        for s in (sOg, sGg, sMLg, sGSg, sXg, sOPst, sMLst, sXst, sGSst):
            A(f's_add_u32 {s}, {s}, {LS}')
    with lowwaves(lambda: (slice_stats(sQSst), advance())):
        matvec(vQst, 'plain')
        advance()
        stamp()
        if ldelay: A(f's_sleep {ldelay}')
        poll(lambda: issue_q(False), QREGS, ln_spec(SELA, False))
        stamp()
        q_finish(False)
    scores()
    for i in range(16):
        pv(i)
        if i == 5: lsum()
    stamp()
    combine()
    stamp()
    A('s_branch L_layer'); nts[0] = keep
    A('L_out:')
    A(f'buffer_store_dword v96, {vXO}, {OUT}, 0 offen')
    A(f's_or_b32 {t1}, s2, {sW}\ns_cmp_lg_u32 {t1}, 0\ns_cbranch_scc1 L_fin0')
    A(f's_mov_b64 exec, 1\nv_mov_b32 v97, {sTAG}\ns_mov_b32 {t2}, {EPOCH}\nbuffer_store_dword v97, off, {WS}, {t2} sc1')
    A('L_fin0:')
    full_exec()
    A('L_fin:')
    if padto:
        A(f'L_pad:\ns_memrealtime s[94:95]\ns_waitcnt lgkmcnt(0)\ns_sub_u32 s94, s94, s98\ns_cmp_lt_u32 s94, {padto}\ns_cbranch_scc1 L_pad')
    if ts:
        stamp(True)
        A(f's_memtime s[94:95]\ns_waitcnt lgkmcnt(0)\ns_sub_u32 s94, s94, s98\nv_writelane_b32 {vTS}, s94, 63')
        A(f's_add_u32 s96, s96, 0x10000000\ns_addc_u32 s97, s97, 0\ns_lshl_b32 {t1}, s2, 11\nv_add_u32 v64, {t1}, {vT4}\nglobal_store_dword v64, {vTS}, s[96:97]')
        if dbgts:
            A(f's_or_b32 {t1}, s2, {sW}\ns_cmp_lg_u32 {t1}, 0\ns_cbranch_scc1 L_end')
            A(f'v_readlane_b32 {t1}, {vTS}, 0\nv_subrev_u32 v64, {t1}, {vTS}\nv_and_b32 v64, 0xffff, v64')
            A(f'v_mov_b32_dpp v65, v64 quad_perm:[1,1,3,3] {DPP}\nv_lshl_or_b32 v64, v65, 16, v64\nv_lshlrev_b32 v65, 1, {vL}')
            A(f's_mov_b32 exec_lo, 0x55555555\ns_mov_b32 exec_hi, 0\nbuffer_store_dword v64, v65, {DBG}, 0 offen sc1')
    A('s_endpgm')
    for t_ in tails: A(t_)
    A('L_end:\ns_endpgm')
    A(f'.section .rodata,"a"\n.p2align 6\n.amdhsa_kernel {NAME}_kernel')
    A('.amdhsa_next_free_vgpr 256\n.amdhsa_next_free_sgpr 102\n.amdhsa_accum_offset 128\n.amdhsa_group_segment_fixed_size 0\n.amdhsa_kernarg_size 96\n.amdhsa_user_sgpr_count 2\n.amdhsa_user_sgpr_kernarg_segment_ptr 1\n.amdhsa_system_sgpr_workgroup_id_x 1\n.end_amdhsa_kernel')
    txt, probs = A.text()
    for p in probs: print('HAZARD', p, file=sys.stderr)
    return txt, nts[0]

if __name__ == '__main__':
    out = sys.argv[1]
    kw = {}
    for a in sys.argv[2:]:
        k, v = a.split('='); kw[k] = eval(v)
    txt, n = build(**kw)
    open(out, 'w').write(txt)
    print('stamps', n, 'lines', txt.count('\n'))
```

```python
import sys, math, struct
sys.path.insert(0, 'gen')
from asmlib import Asm

NAME = "interleave_layers__sliding_block_cached__glu_gated_reglu__decode"

bQP, bQS, bOP, bML, bGP, bGS, bGC, GB = 0x0, 0x8000, 0x8400, 0x10400, 0x10800, 0x18800, 0x18C00, 0x1AC00
oXA, oXB, LS = 8 * GB, 8 * GB + 0x20000, 8 * GB + 0x40000
TQP, TQC, TOP, TML, TF, EPOCH = 0x240000, 0x2C0000, 0x2E0000, 0x360000, 0x364000, 0x365000
WS_REC = 0x365100
OOB = 0x7FFF0000
L_RING, L_WQ, L_WO, L_WG, L_WU, L_WD = 0, 65536, 81920, 98304, 106496, 114688
L_QS, L_OS, L_HS, L_XS, L_RM, L_ST = 122880, 124160, 125440, 126208, 127168, 127424
L_FL = L_ST + 16
LDS_BYTES = 127488

def f32(x): return '0x%08x' % struct.unpack('<I', struct.pack('<f', x))[0]
QSCALE = 128 ** -0.5 * math.log2(math.e)

sW, sG, sC, sHI, sLO = 's3', 's4', 's5', 's6', 's7'
WS, KK, VV, WQ, WO, WG, WU, WD, XX, OUT, DBG = [f's[{i}:{i+3}]' for i in range(8, 52, 4)]
sKV, sRING, t0, t1, t2, t3 = 's52', 's53', 's54', 's55', 's56', 's57'
sLAY, sTO, sFAST, sCNT, sGOK, sLIDX = 's58', 's59', 's60', 's61', 's62', 's63'
sQg, sOg, sGg, sQSg, sMLg, sGSg, sXg, sGBASE, sGCg = ['s%d' % i for i in range(66, 75)]
sOPst, sMLst, sXst, sQSst, sGSst = ['s%d' % i for i in range(75, 80)]
g0, g1, g2, g3 = 's90', 's91', 's92', 's93'
vL, vT4, vSt8, vXg, vQst, vGst, vSSt, vG1, vXst, vQW, vBR320, vHW, vBR192, vXR, vXW, vL4 = ['v%d' % i for i in range(16)]
vROW, vROR, vRMW, vRMR, vWQr, vWr, vWOr, vXO = ['v%d' % i for i in range(16, 24)]
CSQ, CSG = 'v[24:25]', 'v[26:27]'
vTS, vML2, vTMP, vTMP2 = 'v28', 'v29', 'v30', 'v31'
SELA, MASK, SELG, ONES = 'v[32:35]', 36, 'v[40:43]', 'v[44:45]'
vMLst = 'v46'
XRES = 'v[112:113]'
sM4 = 's[88:89]'
sTAG = 's100'
DPP = 'row_mask:0xf bank_mask:0xf'
M16 = 'v_mfma_f32_16x16x32_bf16'

def build(ts=False, gdelay=12, gdelay_hi=18, pf_code=True, rides=(17, 22, 27), w_at='land31', ldelay=0, bar_after_k0=False, fride=26, ffn_hi=False, touch_o=0, touch_g=0, ffn_sleep=0, clean3_xa=0, tlb=0, diag2=0, ffn_at=28, fdelay=4, fback=4, wo_at=0, csq_o=0, touch1=8, csq_at=26, xa0=0, xb0=4, cl_at=29, tail_parts='gud', flate=14, share=1, gd_b=11, gdh_b=15, ffn_by_hi=0, tmajor=1, prio=0, padto=0, warm_x=1, warm_at=0, wd_late=0, xback=0, deep_from=24, depth=5, deep=7, diag=0, noclean=0, burst=4, late47=0, abl='', backoff=0, cl_sc1=1, dbgts=0, wsoff=0):
    A = Asm()
    uid = [0]
    def lab(p):
        uid[0] += 1; return f'L_{p}_{uid[0]}'
    nts = [0]; inloop = [False]
    def stamp(key=False):
        if not ts: return
        if ts == 2 and not key:
            nts[0] += 1; return
        if inloop[0]:
            A(f's_memrealtime s[94:95]\ns_mul_i32 m0, {sLIDX}, 11\ns_add_u32 m0, m0, {nts[0]}\ns_waitcnt lgkmcnt(0)\nv_writelane_b32 {vTS}, s94, m0')
        else:
            A(f's_memrealtime s[94:95]\ns_waitcnt lgkmcnt(0)\nv_writelane_b32 {vTS}, s94, {nts[0]}')
        nts[0] += 1
    def xstamp(i):
        A(f's_memrealtime s[94:95]\ns_waitcnt lgkmcnt(0)\nv_writelane_b32 {vTS}, s94, {i}')
    def set_exec(lo, hi=None):
        hi = lo if hi is None else hi
        A(f's_mov_b32 exec_lo, {lo:#x}\ns_mov_b32 exec_hi, {hi:#x}')
    def full_exec(): A('s_mov_b64 exec, -1')
    tails = []
    def lstore(fmt, tag='st', nxt=None, cmp=True):
        a, b = lab('wt'), lab('sd')
        for f_ in fmt.split('\n'): A((';;need2 ' if cmp else ';;need1 ') + f_)
        if cmp: A(f's_cmp_eq_u32 {sFAST}, 1')
        A(f's_cbranch_scc0 {a}')
        A(fmt); A(f'{b}:')
        tails.append(f'{a}:\n' + '\n'.join(f_ + ' sc1' for f_ in fmt.split('\n')) + f'\ns_branch {b}')
        A.vm.append(tag)
    class lowwaves:
        def __init__(s, other=None): s.other = other
        def __enter__(s):
            s.l = lab('hi'); s.o = lab('up') if s.other else s.l
            A(f's_cmp_ge_u32 {sW}, 4\ns_cbranch_scc1 {s.o}')
        def __exit__(s, *a):
            A(f'{s.l}:')
            if s.other:
                keepL, A.L = A.L, []
                A(f'{s.o}:'); s.other(); A(f's_branch {s.l}')
                tails.append('\n'.join(A.L)); A.L = keepL
    def sel(dst, a, b):
        A(f'v_cndmask_b32 {dst}, {a}, {b}, vcc')

    A(f'; @launch grid=(256,1,1) block=(512,1,1) lds={LDS_BYTES}')
    A('.amdgcn_target "amdgcn-amd-amdhsa--gfx950"')
    A(f'.text\n.globl {NAME}_kernel\n.p2align 8\n.type {NAME}_kernel,@function\n{NAME}_kernel:')
    A('s_cmp_ge_u32 s2, 256\ns_cbranch_scc1 L_end')
    A('s_load_dwordx16 s[64:79], s[0:1], 0\ns_load_dwordx8 s[80:87], s[0:1], 64')
    if padto: A('s_memrealtime s[98:99]')
    A(f'v_lshlrev_b32 {vT4}, 2, v0')
    if pf_code:
        A(f's_getpc_b64 s[94:95]\nL_pc:\ns_lshr_b32 {t0}, s2, 3\ns_and_b32 {t0}, {t0}, 1\ns_lshl_b32 {t0}, {t0}, 13\nv_lshlrev_b32 {vTMP}, 2, {vT4}\nv_add_u32 {vTMP}, {t0}, {vTMP}')
        A(f'v_min_u32 {vTMP}, L_end-L_pc-16, {vTMP}')
        A.vmop(f'global_load_dwordx4 v[96:99], {vTMP}, s[94:95]', 'pf')
    A(f'v_lshrrev_b32 {vTMP}, 6, v0')
    A(f'v_and_b32 {vL}, 63, v0')
    A(f'v_readfirstlane_b32 {sW}, {vTMP}')
    A(f's_and_b32 {sG}, s2, 7\ns_lshr_b32 {sC}, s2, 3\ns_lshr_b32 {sHI}, {sC}, 3\ns_and_b32 {sLO}, {sC}, 7')
    A(f'v_and_b32 v120, 15, {vL}\nv_lshrrev_b32 v121, 4, {vL}')
    A(f'v_lshlrev_b32 {vTMP}, 2, v121\nv_xor_b32 {vTMP}, v120, {vTMP}\nv_lshlrev_b32 {vTMP}, 4, {vTMP}\nv_lshl_add_u32 v116, v121, 8, {vTMP}\nv_lshl_add_u32 v124, v121, 13, {vTMP}')
    A(f'v_and_b32 v122, 3, {vL}\nv_lshrrev_b32 v123, 2, v120')
    A(f's_lshr_b32 {t0}, {sW}, 1\ns_lshl_b32 {t0}, {t0}, 10\ns_and_b32 {t1}, {sW}, 1\ns_lshl_b32 {t1}, {t1}, 6\ns_add_u32 {t0}, {t0}, {t1}\ns_lshl_b32 {t1}, {sLO}, 7\ns_add_u32 {t0}, {t0}, {t1}')
    A(f'v_lshlrev_b32 v117, 4, v122\nv_lshl_add_u32 v117, v121, 2, v117\nv_add_u32 {vXO}, {t0}, v117')
    A(f's_lshl_b32 {t0}, {sHI}, 3\ns_add_u32 {t0}, {t0}, {sG}\ns_lshl_b32 {sKV}, {t0}, 22\ns_lshl_b32 {t0}, {sLO}, 17\ns_add_u32 {sKV}, {sKV}, {t0}\ns_add_u32 {sKV}, {sKV}, {12288*256}')
    A(f's_add_u32 {t0}, {sG}, {sC}\ns_add_u32 {t0}, {t0}, {sW}\ns_and_b32 {t0}, {t0}, 7\ns_lshl_b32 {t0}, {t0}, 12\ns_add_u32 {sKV}, {sKV}, {t0}')
    A(f's_lshl_b32 {sRING}, {sW}, 13')
    A(f's_and_b32 {g3}, {sW}, 3')
    A(f's_lshl_b32 {t0}, {sG}, 2\ns_add_u32 {t0}, {t0}, {sHI}')
    A(f'v_mov_b32 v118, {OOB}')
    A(f's_mul_i32 s101, {sG}, {GB}')
    A(f's_lshl_b32 {t1}, {sLO}, 6\ns_lshl_b32 {t2}, {sW}, 3\ns_add_u32 {t1}, {t1}, {t2}\ns_lshl_b32 {t1}, {t1}, 13\ns_lshl_b32 {t2}, {sG}, 10\ns_add_u32 {t1}, {t1}, {t2}\ns_lshl_b32 {t2}, {sHI}, 8\ns_add_u32 {t1}, {t1}, {t2}')
    A(f's_lshl_b32 {t2}, {sW}, 11\ns_add_u32 m0, {t2}, {L_WQ}')
    if ts:
        A(f'v_mov_b32 {vTS}, 0'); stamp(True)
        A(f's_memtime s[98:99]')
    A('s_waitcnt lgkmcnt(0)')
    def srd(d, lo, n):
        A(f's_mov_b32 s{d}, s{lo}\ns_mov_b32 s{d+1}, s{lo+1}\ns_mov_b32 s{d+2}, {n}\ns_mov_b32 s{d+3}, 0x20000')
    srd(20, 70, 4194304)
    A.vmop(f'buffer_load_dwordx4 v124, {WQ}, {t1} offen nt lds', 'wq')
    A(f's_add_u32 {t1}, {t1}, 32768\ns_add_u32 m0, m0, 1024')
    srd(40, 64, 4096)
    A.vmop(f'buffer_load_dwordx4 v124, {WQ}, {t1} offen nt lds', 'wq')
    srd(8, 86, WS_REC)
    if wsoff: A(f's_add_u32 s8, s8, {wsoff}\ns_addc_u32 s9, s9, 0')
    A.vmop(f'buffer_load_dword v68, {vXO}, {XX}, 0 offen', 'x0')
    A(f's_lshr_b32 {t2}, {sW}, 1\ns_lshl_b32 {t2}, {t2}, 10\nv_lshlrev_b32 {vTMP}, 4, {vL}')
    A.vmop(f'buffer_load_dwordx4 v[72:75], {vTMP}, {XX}, {t2} offen', 'x0')
    A(f's_mov_b32 {t2}, {EPOCH}')
    A.vmop(f'buffer_load_dword v69, off, {WS}, {t2} sc1', 'ep')
    srd(12, 66, 0x8000000)
    def piece(p):
        t, q = (p % 16) // 4, p % 4
        if q == 0:
            A(f's_add_u32 {g1}, {sKV}, {t*32768}\ns_add_u32 m0, {sRING}, {((p//4)&1)*4096}')
        src = 'v116'
        A.vmop(f'buffer_load_dwordx4 {src}, {KK if p < 16 else VV}, {g1} offen offset:{q*1024} nt lds', f'p{p}')
    for p in range(burst): piece(p)
    srd(16, 68, 0x8000000)
    if ts: A('s_mov_b32 s96, s86\ns_mov_b32 s97, s87')

    srd(24, 72, 4194304); srd(44, 82, 4096); srd(48, 84, 256)
    srd(28, 76, 1835008); srd(32, 78, 1835008); srd(36, 80, 1835008)
    A(f's_mul_i32 {t1}, {sG}, 3\ns_add_u32 {t1}, {t1}, 4\ns_lshl_b32 {t2}, {sG}, 2\ns_cmp_ge_u32 {sG}, 4\ns_cselect_b32 {g2}, {t1}, {t2}\ns_add_u32 {g2}, {g2}, {sHI}\ns_min_u32 {g2}, {g2}, 27')
    if tlb:
        A(f's_lshl_b32 {t1}, {t0}, 17')
        A.vmop(f'buffer_load_dword v96, off, {WO}, {t1} nt', 'tlb')
        A(f's_mul_i32 {t1}, {sLO}, {64*3584}')
        A.vmop(f'buffer_load_dword v96, off, {WG}, {t1} nt', 'tlb')
        A.vmop(f'buffer_load_dword v96, off, {WU}, {t1} nt', 'tlb')
        A(f's_lshl_b32 {t1}, {g2}, 16')
        A.vmop(f'buffer_load_dword v96, off, {WD}, {t1} nt', 'tlb')
        A(f'v_lshlrev_b32 {vTMP}, 19, v120')
        A.vmop(f'buffer_load_dword v96, {vTMP}, {WS}, 0 offen nt', 'tlb')
        A.vmop(f'buffer_load_dword v96, off, {VV}, {sKV} nt', 'tlb')
    A(f's_getreg_b32 {t1}, hwreg(HW_REG_XCC_ID)\ns_and_b32 s64, {t1}, 15')
    A(f's_mov_b32 s88, 0x000f000f\ns_mov_b32 s89, 0x000f000f')
    A(f's_mov_b32 {sGBASE}, s101')
    A(f's_lshl_b32 {t1}, {sHI}, 13\ns_add_u32 {t1}, {t1}, {sGBASE}')
    A(f's_add_u32 {sQg}, {t1}, {bQP + LS}\ns_add_u32 {sOg}, {t1}, {bOP}\ns_add_u32 {sGg}, {t1}, {bGP}')
    A(f's_lshl_b32 {t1}, {g3}, 2\ns_add_u32 {t1}, {t1}, {sHI}\ns_lshl_b32 {t1}, {t1}, 6\ns_add_u32 {t1}, {t1}, {sGBASE}\ns_add_u32 {sQSg}, {t1}, {bQS + LS}')
    A(f's_lshl_b32 {sMLst}, {sLO}, 3\ns_add_u32 {sMLst}, {sMLst}, {t1}\ns_add_u32 {sMLst}, {sMLst}, {bML}')
    A(f's_lshl_b32 {t2}, {g3}, 13\ns_lshl_b32 {t1}, {sLO}, 10\ns_add_u32 {t2}, {t2}, {t1}\ns_lshl_b32 {t1}, {sHI}, 8\ns_add_u32 {t2}, {t2}, {t1}\ns_add_u32 {t2}, {t2}, {sGBASE}\ns_add_u32 {sOPst}, {t2}, {bOP}')
    A(f's_lshl_b32 {t1}, {sHI}, 2\ns_add_u32 {t1}, {t1}, {g3}\ns_lshl_b32 {t1}, {t1}, 6\ns_add_u32 {t1}, {t1}, {sGBASE}\ns_add_u32 {sMLg}, {t1}, {bML}\ns_add_u32 {sGSg}, {t1}, {bGS}')
    A(f's_lshl_b32 {t1}, {sLO}, 14\ns_add_u32 {sXg}, {t1}, {oXA}')
    A(f's_lshl_b32 {t1}, {t0}, 9\ns_add_u32 {sXst}, {sXg}, {t1}')
    A(f's_lshl_b32 {t1}, {sHI}, 11\ns_add_u32 {t1}, {t1}, {sGBASE}\ns_add_u32 {sGCg}, {t1}, {bGC}')
    A(f's_lshl_b32 {t3}, {sHI}, 8\ns_lshl_b32 {t1}, {sLO}, 3\ns_add_u32 {t3}, {t3}, {t1}\ns_add_u32 {t3}, {t3}, {sGBASE}\ns_add_u32 {sQSst}, {t3}, {bQS + LS}\ns_add_u32 {sGSst}, {t3}, {bGS}')
    A(f's_lshl_b32 s101, {t0}, 14\ns_add_u32 s101, s101, {TQP}')
    A(f's_lshl_b32 {t1}, {sLO}, 10\ns_lshl_b32 {t2}, {sHI}, 8\ns_add_u32 {t1}, {t1}, {t2}\ns_lshl_b32 {t2}, {g3}, 6\ns_add_u32 {t3}, {t1}, {t2}')
    A(f's_add_u32 {t1}, {sGBASE}, {t3}\ns_add_u32 {t1}, {t1}, {LS}\ns_mov_b32 {t2}, {OOB}')
    A(f's_cmp_ge_u32 {sW}, 4\ns_cselect_b32 {g0}, 0, 5')
    def st_off(dst, shift):
        A(f'v_lshlrev_b32 {vTMP}, {shift}, v120\nv_add_u32 {vTMP}, {t1}, {vTMP}\nv_mov_b32 {vTMP2}, {t2}\nv_cmp_eq_u32 vcc, 4, v120'); sel(vTMP, vTMP, vTMP2)
        A(f'v_lshl_add_u32 {vTMP}, v121, 4, {vTMP}\nv_cmp_gt_u32 vcc, {g0}, v120'); sel(dst, 'v118', vTMP)
    st_off(vQst, 13)
    A(f's_lshl_b32 {t3}, {t3}, 1\ns_lshl_b32 {t1}, {g3}, 6\ns_sub_u32 {t3}, {t3}, {t1}\ns_lshl_b32 {t1}, {sG}, 16\ns_add_u32 {t1}, {t1}, {t3}\ns_add_u32 {t1}, {t1}, {TQP}\ns_lshl_b32 {t2}, {sG}, 14\ns_add_u32 {t2}, {t2}, {t3}\ns_add_u32 {t2}, {t2}, {TQC}')
    st_off('v109', 14)
    A(f'v_lshlrev_b32 {vTMP}, 6, v122\nv_add_u32 {vTMP2}, 4, {vTMP}\nv_cmp_gt_u32 vcc, 16, {vL}'); sel(vTMP, vTMP, vTMP2)
    A(f'v_and_b32 {vTMP2}, {0x1ec*4}, {vT4}\nv_cmp_eq_u32 vcc, {256*4}, {vTMP2}'); sel(vSSt, 'v118', vTMP)
    A(f'v_lshlrev_b32 v115, 2, {vT4}')
    A(f's_lshl_b32 {t1}, {sG}, 2\ns_add_u32 {t1}, {t1}, {g3}\ns_lshl_b32 {t1}, {t1}, 14\ns_lshl_b32 {t2}, {sLO}, 11\ns_add_u32 {t1}, {t1}, {t2}\ns_lshl_b32 {t2}, {sHI}, 9\ns_add_u32 {t1}, {t1}, {t2}\ns_add_u32 {t1}, {t1}, {TOP}')
    A(f'v_and_b32 {vTMP}, 2, {vL}\nv_lshlrev_b32 {vTMP}, 7, {vTMP}\nv_lshrrev_b32 {vTMP2}, 2, {vL}\nv_lshl_add_u32 {vTMP}, {vTMP2}, 4, {vTMP}\nv_add_u32 {vTMP}, {t1}, {vTMP}\nv_and_b32 {vTMP2}, 1, {vL}\nv_cmp_eq_u32 vcc, 0, {vTMP2}'); sel('v110', 'v118', vTMP)
    A(f's_mov_b32 {sLAY}, 0\ns_mov_b32 {sTO}, 400000\ns_mov_b32 {sFAST}, 0\ns_mov_b32 {sCNT}, 0\ns_mov_b32 {sGOK}, 0\ns_mov_b32 {sLIDX}, 0')
    A(f's_lshl_b32 {t3}, {g3}, 6\ns_lshl_b32 {t1}, {sLO}, 10\ns_add_u32 {t1}, {t1}, {sGg}\ns_add_u32 {t1}, {t1}, {t3}\ns_lshl_b32 {t2}, {sLO}, 8\ns_add_u32 {t2}, {t2}, {sGCg}\ns_add_u32 {t2}, {t2}, {t3}')
    st_off(vGst, 8)
    A(f'v_and_b32 {vTMP}, 7, {vL}\nv_lshlrev_b32 {vSt8}, 3, {vTMP}\nv_lshlrev_b32 {vL4}, 2, {vL}\nv_lshlrev_b32 {vML2}, 3, v121')
    A(f'v_cmp_eq_u32 vcc, 0, {vL}'); sel(vMLst, 'v118', '0')
    A(f's_lshl_b32 {t1}, {g3}, 8\nv_lshlrev_b32 {vTMP}, 4, v120\nv_lshl_add_u32 {vG1}, v121, 10, {vTMP}\nv_add_u32 {vG1}, {t1}, {vG1}')
    A(f's_lshl_b32 {t1}, {sW}, 6\nv_lshlrev_b32 {vXg}, 11, v123\nv_lshl_add_u32 {vXg}, v121, 9, {vXg}\nv_lshl_add_u32 {vXg}, v122, 4, {vXg}\nv_add_u32 {vXg}, {t1}, {vXg}')
    A(f's_lshr_b32 {t1}, {sW}, 1\ns_mul_i32 {t1}, {t1}, 192\ns_and_b32 {t2}, {sW}, 1\ns_lshl_b32 {t2}, {t2}, 6\ns_add_u32 {t1}, {t1}, {t2}\ns_add_u32 {t1}, {t1}, {L_XS}\nv_add_u32 {vXW}, {t1}, v117')
    A(f's_mul_i32 {t1}, {g3}, 320\ns_add_u32 {t1}, {t1}, {L_QS}\nv_lshl_add_u32 {vQW}, v121, 2, {vTMP}\nv_add_u32 {vQW}, {t1}, {vQW}')
    A(f's_mul_i32 {t1}, {g3}, 192\ns_add_u32 {t1}, {t1}, {L_HS}\nv_lshlrev_b32 {vHW}, 3, v120\nv_lshl_add_u32 {vHW}, v121, 1, {vHW}\nv_add_u32 {vHW}, {t1}, {vHW}')
    A(f'v_mul_u32_u24 {vBR320}, 320, v122\nv_lshl_add_u32 {vBR320}, v121, 4, {vBR320}\nv_add_u32 {vBR320}, {L_QS}, {vBR320}')
    A(f'v_mul_u32_u24 {vBR192}, 192, v122\nv_lshl_add_u32 {vBR192}, v121, 4, {vBR192}\nv_add_u32 {vBR192}, {L_HS}, {vBR192}')
    A(f'v_min_u32 {vTMP2}, 4, v120\nv_mul_u32_u24 {vXR}, 192, {vTMP2}\nv_lshl_add_u32 {vXR}, v121, 4, {vXR}\nv_add_u32 {vXR}, {L_XS}, {vXR}')
    A(f's_lshl_b32 {t1}, {g3}, 5\nv_lshlrev_b32 {vTMP2}, 7, v120\nv_lshl_add_u32 {vTMP2}, v121, 3, {vTMP2}\nv_add_u32 {vTMP2}, {t1}, {vTMP2}\nv_cmp_gt_u32 vcc, 4, v120'); sel(vXst, 'v118', vTMP2)
    A(f'v_lshlrev_b32 {vTMP2}, 4, {vL}\nv_add_u32 {vROW}, {sRING}, {vTMP2}')
    A(f's_lshr_b32 {t1}, {g3}, 1\ns_lshl_b32 {t1}, {t1}, 10\ns_and_b32 {t2}, {g3}, 1\ns_lshl_b32 {t2}, {t2}, 3\ns_add_u32 {t1}, {t1}, {t2}\nv_add_u32 {vROR}, {t1}, {vTMP2}')
    A(f's_lshl_b32 {t1}, {sW}, 3\ns_add_u32 {t1}, {t1}, {L_RM}\nv_lshlrev_b32 {vRMW}, 6, v122\nv_add_u32 {vRMW}, {t1}, {vRMW}')
    A(f's_lshl_b32 {t1}, {g3}, 6\ns_add_u32 {t1}, {t1}, {L_RM}\nv_add_u32 {vRMR}, {t1}, {vSt8}')
    A(f'v_lshl_add_u32 v125, v121, 3, v123')
    A(f'v_xor_b32 {vTMP}, {g3}, v123\nv_lshlrev_b32 {vTMP}, 6, {vTMP}\nv_lshl_add_u32 {vTMP}, v122, 4, {vTMP}\nv_lshl_add_u32 {vWQr}, v125, 8, {vTMP}\nv_add_u32 {vWQr}, {L_WQ}, {vWQr}')
    A(f'v_lshrrev_b32 v119, 1, v123\nv_and_b32 v127, 1, v121\nv_lshlrev_b32 {vTMP}, 1, v127')
    A(f'v_xor_b32 {vTMP}, {g3}, {vTMP}\nv_lshlrev_b32 {vTMP}, 5, {vTMP}\nv_lshl_add_u32 {vTMP}, v122, 3, {vTMP}\nv_lshl_add_u32 {vWr}, v125, 7, {vTMP}\nv_add_u32 {vWr}, {L_WG}, {vWr}')
    A(f'v_and_b32 v126, 1, v123\nv_lshlrev_b32 {vTMP}, 1, v126\nv_xor_b32 {vTMP}, {g3}, {vTMP}\nv_lshlrev_b32 {vTMP}, 5, {vTMP}\nv_lshl_add_u32 {vTMP}, v122, 3, {vTMP}')
    A(f'v_lshl_add_u32 {vTMP2}, v121, 2, v119\nv_lshl_add_u32 {vTMP2}, v126, 6, {vTMP2}\nv_lshl_add_u32 {vWOr}, {vTMP2}, 7, {vTMP}\nv_add_u32 {vWOr}, {L_WO}, {vWOr}')
    A(f'v_and_b32 v125, 1, v120\nv_mov_b32 {vTMP}, 0xffff\nv_mov_b32 {vTMP2}, 0xffff0000\nv_cmp_eq_u32 vcc, 1, v125'); sel('v119', vTMP, vTMP2)
    A(f'v_cmp_gt_u32 vcc, 2, v122'); sel('v119', '0', 'v119')
    for i in range(4):
        A(f'v_cmp_eq_u32 vcc, {i}, v123'); sel(f'v{MASK+i}', '0', 'v119'); A(f'v_and_b32 v{32+i}, 0x3f803f80, v{MASK+i}')
    A(f'v_mov_b32 {vTMP}, 0x3f80\nv_mov_b32 {vTMP2}, 0x3f800000\nv_cmp_eq_u32 vcc, 1, v126'); sel('v119', vTMP, vTMP2)
    A(f'v_cmp_gt_u32 vcc, 2, v122'); sel('v119', '0', 'v119')
    A(f'v_lshrrev_b32 {vTMP}, 1, v123\nv_lshl_add_u32 {vTMP}, v125, 1, {vTMP}')
    for i in range(4):
        A(f'v_cmp_eq_u32 vcc, {i}, {vTMP}'); sel(f'v{40+i}', '0', 'v119')
    A('v_mov_b32 v44, 0x3f803f80\nv_mov_b32 v45, 0x3f803f80')
    A(f'v_and_b32 {vTMP2}, 7, {vL}\nv_lshrrev_b32 v119, 3, {vL}')
    A(f's_lshr_b32 {t1}, {sW}, 2\ns_lshl_b32 {t1}, {t1}, 2\nv_xor_b32 {vTMP}, {t1}, {vTMP2}\nv_lshlrev_b32 {vTMP}, 4, {vTMP}\nv_lshl_add_u32 v124, v119, 10, {vTMP}')
    A(f's_and_b32 {t1}, {sW}, 1\ns_lshl_b32 {t1}, {t1}, 2\nv_xor_b32 {vTMP}, {t1}, {vTMP2}\nv_lshlrev_b32 {vTMP}, 4, {vTMP}')
    A(f'v_lshl_add_u32 v127, v119, 10, {vTMP}\nv_mul_u32_u24 v126, 3584, v119\nv_add_u32 v126, v126, {vTMP}')
    A(f's_cmp_ge_u32 {sG}, 4\ns_cselect_b32 {t2}, 3, 4\ns_cmp_lt_u32 {sHI}, {t2}\ns_cselect_b32 {t2}, 0, {OOB}\nv_add_u32 v126, {t2}, v126\nv_add_u32 v127, {t2}, v127')
    A(f'v_lshlrev_b32 {vTMP}, 1, v123\nv_xor_b32 {vTMP}, v121, {vTMP}\nv_lshlrev_b32 {vTMP}, 5, {vTMP}\nv_lshl_add_u32 {vTMP}, v122, 3, {vTMP}\nv_lshl_add_u32 {vTMP}, v123, 8, {vTMP}\nv_add_u32 v122, {sRING}, {vTMP}\nv_xor_b32 v123, 128, v122')
    A(f'v_and_b32 {vTMP}, 3, v120\nv_lshlrev_b32 {vTMP}, 6, {vTMP}\nv_lshl_add_u32 {vTMP}, v121, 4, {vTMP}\nv_lshl_add_u32 {vTMP}, v120, 8, {vTMP}\nv_add_u32 v118, {sRING}, {vTMP}')
    for j in range(1, 4): A(f'v_xor_b32 v{118+j}, {64*j}, v118')
    A(f'v_and_b32 {vTMP}, 124, {vL4}\nv_add_u32 {vTMP}, {L_XS+4*192}, {vTMP}\nds_write_b32 {vTMP}, v44')
    A(f'v_mov_b32 {vTMP}, {L_FL}\nv_mov_b32 {vTMP2}, 0\nds_write_b32 {vTMP}, {vTMP2}')

    def read_k(i):
        for j in range(4): A(f'ds_read_b128 a[{16*i+4*j}:{16*i+4*j+3}], v{118+j} offset:{(i&1)*4096}')
    def read_v(p):
        i = p - 16
        for hf in range(2):
            r = 64 + 4 * i + 2 * hf
            A(f'ds_read_b64_tr_b16 a[{r}:{r+1}], v{122+hf} offset:{((p//4)&1)*4096 + (p%4)*1024}')
    if not late47:
        for p in range(burst, 8): piece(p)
    if diag: xstamp(40)
    A.wait_vm('ep')
    if diag: xstamp(41)
    A(f'v_and_b32 v113, 0xffff0000, v68\nv_lshlrev_b32 v112, 16, v68')
    A(f'v_readfirstlane_b32 {sTAG}, v69\ns_add_u32 {sTAG}, {sTAG}, 1')
    A('v_dot2_f32_bf16 v78, v72, v44, 0\nv_dot2_f32_bf16 v79, v72, v72, 0')
    for k in range(73, 76): A(f'v_dot2_f32_bf16 v78, v{k}, v44, v78\nv_dot2_f32_bf16 v79, v{k}, v{k}, v79')
    for m in ('quad_perm:[1,0,3,2]', 'quad_perm:[2,3,0,1]', 'row_half_mirror', 'row_mirror'):
        A(f'v_add_f32_dpp v78, v78, v78 {m} {DPP}\nv_add_f32_dpp v79, v79, v79 {m} {DPP}')
    for sw in ('v_permlane16_swap_b32', 'v_permlane32_swap_b32'):
        A(f'v_mov_b32 v76, v78\nv_mov_b32 v77, v79\n{sw} v78, v76\n{sw} v79, v77\nv_add_f32 v78, v78, v76\nv_add_f32 v79, v79, v77')
    c2 = QSCALE * QSCALE
    A(f'v_mov_b32 v75, {f32(1e-5/c2)}\nv_mul_f32 v74, v78, v78\nv_fmac_f32 v75, {f32(1/(512*c2))}, v79\nv_fmac_f32 v75, {f32(-1/(512*512*c2))}, v74\nv_max_f32 v75, {f32(1e-5/c2)}, v75\nv_rsq_f32 v74, v75')
    A(f'v_mul_f32 v78, {f32(-1/512)}, v78\nv_add_f32 v72, v112, v78\nv_add_f32 v73, v113, v78\nv_mul_f32 v72, v72, v74\nv_mul_f32 v73, v73, v74\nv_cvt_pk_bf16_f32 v72, v72, v73\nds_write_b32 {vXW}, v72')
    if late47:
        for p in range(burst, 8): piece(p)
    if diag: xstamp(42)
    A.wait_vm('wq')
    if diag: xstamp(43)
    if bar_after_k0:
        A.wait_vm('p3')
        read_k(0)
        A('s_waitcnt lgkmcnt(0)')
        for p in range(8, 12): piece(p)
    A('s_waitcnt lgkmcnt(0)')
    if 'B' not in abl: A('s_barrier')
    stamp()

    def read_wq():
        for tl in range(2):
            for j in range(2):
                for u in range(2):
                    r = 48 + 8 * tl + 4 * j + 2 * u
                    A(f'ds_read_b64_tr_b16 v[{r}:{r+1}], {vWQr} offset:{8*tl+8192*j+1024*u}')
    def read_gu():
        for tl in range(2):
            for j in range(2):
                for u in range(2):
                    r = 48 + 8 * tl + 4 * j + 2 * u
                    A(f'ds_read_b64_tr_b16 v[{r}:{r+1}], {vWr} offset:{8192*tl+4096*j+512*u}')
    def read_wd():
        for j in range(2):
            for u in range(2):
                A(f'ds_read_b64_tr_b16 v[{48+4*j+2*u}:{49+4*j+2*u}], {vWr} offset:{16384+4096*j+512*u}')
    def read_wo():
        for j in range(4):
            for u in range(2):
                A(f'ds_read_b64_tr_b16 v[{48+4*j+2*u}:{49+4*j+2*u}], {vWOr} offset:{2048*j+256*u}')
    def matvec(vst, mode, late_w=None, soff='0'):
        A(f'ds_read_b128 v[80:83], {vXR}\nds_read_b128 v[84:87], {vXR} offset:64')
        if late_w: late_w()
        A('s_waitcnt lgkmcnt(0)' if late_w else 's_waitcnt lgkmcnt(1)')
        A(f'{M16} v[96:99], v[48:51], v[80:83], 0\n{M16} v[104:107], v[56:59], v[80:83], 0')
        if not late_w: A('s_waitcnt lgkmcnt(0)')
        A(f'{M16} v[96:99], v[52:55], v[84:87], v[96:99]\n{M16} v[104:107], v[60:63], v[84:87], v[104:107]')
        if mode == 'plain':
            A(f's_cmp_eq_u32 {sFAST}, 1')
            A('v_cvt_pk_bf16_f32 v96, v96, v97\nv_cvt_pk_bf16_f32 v97, v98, v99\nv_cvt_pk_bf16_f32 v98, v104, v105\nv_cvt_pk_bf16_f32 v99, v106, v107')
            lstore(f'buffer_store_dwordx4 v[96:99], {vst}, {WS}, {soff} offen', cmp=False)
            return
        A(f'v_mov_b32 v102, {sTAG}\nv_mov_b32 v103, s64')
        A(f'v_cvt_pk_bf16_f32 v100, v96, v97\nv_cvt_pk_bf16_f32 v101, v98, v99\nv_cvt_pk_bf16_f32 v104, v104, v105\nv_cvt_pk_bf16_f32 v105, v106, v107')
        A(f'v_mov_b32 v106, {sTAG}\nv_mov_b32 v107, s64')
        if mode == 'q0':
            A.vmop(f'buffer_store_dwordx4 v[100:103], {vst}, {WS}, 0 offen', 'st')
            A.vmop(f'buffer_store_dwordx4 v[104:107], {vst}, {WS}, 0 offen offset:256', 'st')
        else:
            lstore(f'buffer_store_dwordx4 v[100:103], {vst}, {WS}, 0 offen\nbuffer_store_dwordx4 v[104:107], {vst}, {WS}, 0 offen offset:256')
    def slice_stats(sst):
        l = lab('st')
        A(f's_cmp_lg_u32 {sW}, 4\ns_cbranch_scc1 {l}')
        A(f'ds_read_b128 v[80:83], {vXR}\nds_read_b128 v[84:87], {vXR} offset:64\ns_waitcnt lgkmcnt(1)')
        A(f'{M16} v[104:107], v[80:83], v[80:83], 0\ns_waitcnt lgkmcnt(0)\n{M16} v[104:107], v[84:87], v[84:87], v[104:107]')
        def pick():
            A('v_cndmask_b32 v104, v104, v105, s[80:81]\nv_cndmask_b32 v106, v106, v107, s[80:81]\nv_cndmask_b32 v104, v104, v106, s[82:83]')
        A('s_mov_b64 s[80:81], 10\ns_mov_b64 s[82:83], 12')
        A(f's_cmp_eq_u32 {sFAST}, 1')
        pick()
        lstore(f'buffer_store_dword v104, {vSSt}, {WS}, {sst} offen', cmp=False)
        A.vm.pop()
        A(f'{l}:')

    def issue_g1(dst, voff, sbase, tag, step=4096):
        A.vmop(f'buffer_load_dwordx4 v[{dst}:{dst+3}], {voff}, {WS}, {sbase} offen sc1', tag)
        if step >= 4096:
            A(f's_add_u32 {t1}, {sbase}, {step}')
            A.vmop(f'buffer_load_dwordx4 v[{dst+4}:{dst+7}], {voff}, {WS}, {t1} offen sc1', tag)
        else:
            A.vmop(f'buffer_load_dwordx4 v[{dst+4}:{dst+7}], {voff}, {WS}, {sbase} offen offset:{step} sc1', tag)
    def check_empty(regs):
        regs = list(regs)
        A(f'v_max3_u32 {vTMP}, v{regs[0]}, v{regs[1]}, v{regs[2]}'); rest = regs[3:]
        if len(rest) >= 5:
            A(f'v_max3_u32 {vTMP2}, v{rest[0]}, v{rest[1]}, v{rest[2]}'); rest = rest[3:]
            tg = 0
            while len(rest) >= 2:
                d = (vTMP, vTMP2)[tg]; A(f'v_max3_u32 {d}, {d}, v{rest[0]}, v{rest[1]}'); rest = rest[2:]; tg ^= 1
            if rest: A(f'v_max3_u32 {vTMP}, {vTMP}, {vTMP2}, v{rest[0]}')
            else: A(f'v_max_u32 {vTMP}, {vTMP}, {vTMP2}')
        else:
            while len(rest) >= 2:
                A(f'v_max3_u32 {vTMP}, {vTMP}, v{rest[0]}, v{rest[1]}'); rest = rest[2:]
            if rest: A(f'v_max_u32 {vTMP}, {vTMP}, v{rest[0]}')
        A(f'v_cmp_eq_u32 vcc, -1, {vTMP}')
    def poll(issue, regs, spec=None):
        r, d = lab('retry'), lab('got')
        A(f'{r}:')
        issue()
        A.wait_vm()
        if spec: spec()
        check_empty(regs)
        tl = lab('again')
        A(f's_cbranch_vccnz {tl}\n{d}:')
        tails.append(f'{tl}:\n' + (f's_sleep {backoff}\n' if backoff else '') + f's_sub_u32 {sTO}, {sTO}, 1\ns_cbranch_scc0 {r}\ns_mov_b32 {sTO}, 0\ns_branch {d}')
    def issue_q(first):
        if not first:
            issue_g1(64, vG1, sQg, 'q')
            A.vmop(f'buffer_load_dwordx2 v[72:73], {vSt8}, {WS}, {sQSg} offen sc1', 'q')
            return
        issue_tagged(f's_mov_b32 {t1}, s101')
    def issue_tagged(base, dst=80, voff=None, kstep=8192, hstep=256):
        if voff is None:
            A(f'v_and_b32 {vTMP2}, 0xf0, {vG1}\nv_lshlrev_b32 {vTMP}, 1, {vG1}\nv_sub_u32 {vTMP}, {vTMP}, {vTMP2}')
        else: A(voff)
        A(base + f'\ns_add_u32 {t2}, {t1}, {kstep}')
        for k in range(2):
            for hh in range(2):
                r = dst[2 * k + hh] if isinstance(dst, tuple) else dst + 8 * k + 4 * hh
                A.vmop(f'buffer_load_dwordx4 v[{r}:{r+3}], {vTMP}, {WS}, {(t1, t2)[k]} offen offset:{hstep*hh} sc1', 'q')
    def issue_o0():
        issue_tagged(f's_lshl_b32 {t1}, {sG}, 2\ns_add_u32 {t1}, {t1}, {sHI}\ns_lshl_b32 {t0}, {t1}, 2\ns_lshl_b32 {t1}, {t1}, 14\ns_add_u32 {t1}, {t1}, {TOP}', o0dst[0])
        A(f's_add_u32 {t0}, {t0}, {sW}\ns_lshl_b32 {t0}, {t0}, 7\ns_add_u32 {t0}, {t0}, {TML}\nv_lshlrev_b32 {vTMP2}, 1, {vML2}')
        m_ = 64 if o0dst[0] == 80 else 48
        A.vmop(f'buffer_load_dwordx4 v[{m_}:{m_+3}], {vTMP2}, {WS}, {t0} offen sc1', 'q')
        A.vmop(f'buffer_load_dwordx4 v[{m_+4}:{m_+7}], {vTMP2}, {WS}, {t0} offen offset:64 sc1', 'q')
    o0dst = [80]
    def check_words(words, sval):
        w = list(words)
        A(f'v_xor_b32 {vTMP}, {sval}, v{w[0]}')
        for x in w[1:]: A(f'v_xor_b32 {vTMP2}, {sval}, v{x}\nv_or_b32 {vTMP}, {vTMP}, {vTMP2}')
        A(f'v_cmp_ne_u32 vcc, 0, {vTMP}')
    def check_tags(words=(82, 86, 90, 94)): check_words(words, sTAG)
    def tagged_sum(selbase=32, src=80, acc=96, selk=0):
        for n_, (k, hh) in enumerate(((0, 0), (0, 1), (1, 0), (1, 1))):
            r = src[2 * k + hh] if isinstance(src, tuple) else src + 8 * k + 4 * hh
            sb = selbase + selk * k + 2 * hh
            c = '0' if n_ == 0 else f'v[{acc}:{acc+3}]'
            A(f'v_mfma_f32_16x16x16_bf16 v[{acc}:{acc+3}], v[{sb}:{sb+1}], v[{r}:{r+1}], {c}')
    def q0_finish():
        tagged_sum()
        check_words((83, 87, 91, 95), 's64')
        A(f's_cmp_eq_u64 vcc, 0\ns_cselect_b32 {sGOK}, 1, 2')
        A(f'v_cvt_pk_bf16_f32 v96, v96, v97\nds_write_b32 {vQW}, v96')
    def tagged_poll(issue, words=(82, 86, 90, 94), spec=None, back=0):
        rq, gq = lab('rq'), lab('gq')
        A(f'{rq}:')
        issue(); A.wait_vm()
        if spec: spec()
        check_tags(words)
        A(f's_cbranch_vccz {gq}')
        if back: A(f's_sleep {back}')
        A(f's_sub_u32 {sTO}, {sTO}, 1\ns_cbranch_scc0 {rq}\ns_mov_b32 {sTO}, 0\n{gq}:')
    CQ = (48, 52, 56, 60)
    def issue_csq(): issue_tagged(f's_lshl_b32 {t1}, {sG}, 14\ns_add_u32 {t1}, {t1}, {TQC}', CQ)
    def finish_csq():
        ok_ = lab('cq')
        check_tags(tuple(r + 2 for r in CQ))
        A(f's_cbranch_vccz {ok_}')
        tagged_poll(issue_csq, tuple(r + 2 for r in CQ))
        A(f'{ok_}:')
        tagged_sum(32, CQ, 64)
        A(f's_mov_b32 {t2}, {f32(1/512)}\nv_pk_mul_f32 {CSQ}, v[64:65], s[56:57] op_sel_hi:[1,0]')
    QREGS = list(range(64, 74)); QREGS1 = QREGS + list(range(80, 88))
    def ln_spec(selop, first):
        def f():
            A(f'{M16} v[96:99], {selop}, v[64:67], 0\n{M16} v[96:99], {selop}, v[68:71], v[96:99]')
            if first:
                A(f'{M16} v[100:103], {selop}, v[80:83], 0\n{M16} v[100:103], {selop}, v[84:87], v[100:103]')
            A(f'v_add_f32_dpp v78, v72, v72 quad_perm:[1,0,3,2] {DPP}\nv_add_f32_dpp v79, v73, v73 quad_perm:[1,0,3,2] {DPP}')
        return f
    def ln_finish(cs, scale, first):
        for m in ('quad_perm:[2,3,0,1]', 'row_half_mirror'):
            A(f'v_add_f32_dpp v78, v78, v78 {m} {DPP}\nv_add_f32_dpp v79, v79, v79 {m} {DPP}')
            if m.startswith('quad'): A(f'v_mov_b32 v75, {f32(1e-5/(scale*scale))}')
        c2 = scale * scale
        A(f'v_mul_f32 v74, v78, v78\nv_fmac_f32 v75, {f32(1/(512*c2))}, v79')
        if first:
            A(f's_mov_b32 {t2}, {f32(1/512)}\nv_pk_mul_f32 {cs}, v[100:101], s[56:57] op_sel_hi:[1,0]')
        A(f'v_fmac_f32 v75, {f32(-1/(512*512*c2))}, v74\nv_max_f32 v75, {f32(1e-5/c2)}, v75\nv_rsq_f32 v74, v75')
        A(f'v_pk_fma_f32 v[96:97], v[78:79], {cs}, v[96:97] op_sel_hi:[0,1,1] neg_lo:[1,0,0] neg_hi:[1,0,0]')
        A(f'v_pk_mul_f32 v[96:97], v[96:97], v[74:75] op_sel_hi:[1,0]')
    def q_finish(first):
        ln_finish(CSQ, QSCALE, first)
        A(f'v_cvt_pk_bf16_f32 v96, v96, v97\nds_write_b32 {vQW}, v96')

    save = list(A.vm)
    with lowwaves():
        read_wq()
        A('s_waitcnt lgkmcnt(0)')
        if 'Q' not in abl: matvec('v109', 'q0')
    stamp()

    def issue_wo():
        A(f's_lshl_b32 {t1}, {sG}, 9\ns_lshl_b32 {t2}, {sHI}, 7\ns_add_u32 {t1}, {t1}, {t2}\ns_lshl_b32 {t2}, {sW}, 4\ns_add_u32 {t1}, {t1}, {t2}\ns_lshl_b32 {t1}, {t1}, 10\ns_lshl_b32 {t2}, {sLO}, 7\ns_add_u32 {t1}, {t1}, {t2}')
        A(f's_lshl_b32 {t2}, {sW}, 11\ns_add_u32 m0, {t2}, {L_WO}')
        A.vmop(f'buffer_load_dwordx4 v124, {WO}, {t1} offen nt lds', 'wo')
        A(f's_add_u32 {t1}, {t1}, 8192\ns_add_u32 m0, m0, 1024')
        A.vmop(f'buffer_load_dwordx4 v124, {WO}, {t1} offen nt lds', 'wo')

    def issue_ffn(dw=0, track=False, parts='gud'):
        vm_ = (lambda x: A.vmop(x, 'ffn')) if track else A
        A(f's_add_u32 {t0}, {sW}, {dw}')
        if 'g' in parts:
            A(f's_lshl_b32 {t1}, {sLO}, 6\ns_lshl_b32 {t2}, {t0}, 3\ns_add_u32 {t1}, {t1}, {t2}\ns_mul_i32 {t1}, {t1}, 3584\ns_lshl_b32 {t2}, {g2}, 7\ns_add_u32 {t1}, {t1}, {t2}')
        A(f's_lshl_b32 {t2}, {t0}, 10\ns_add_u32 m0, {t2}, {L_WG}')
        if 'g' in parts:
            vm_(f'buffer_load_dwordx4 v126, {WG}, {t1} offen nt lds')
            A(f's_add_u32 m0, {t2}, {L_WU}')
            vm_(f'buffer_load_dwordx4 v126, {WU}, {t1} offen nt lds')
        if 'd' not in parts: return
        A(f's_lshl_b32 {t1}, {g2}, 6\ns_lshl_b32 {t3}, {t0}, 3\ns_add_u32 {t1}, {t1}, {t3}\ns_lshl_b32 {t1}, {t1}, 10\ns_lshl_b32 {t3}, {sLO}, 7\ns_add_u32 {t1}, {t1}, {t3}\ns_add_u32 m0, {t2}, {L_WD}')
        vm_(f'buffer_load_dwordx4 v127, {WD}, {t1} offen nt lds')
    wait_of = {}
    d = 6
    for p_ in range(12, 32):
        tgt = depth if p_ < deep_from else deep
        need_d = p_ - tgt
        if p_ in (12, 16, 20): need_d = max(need_d, p_ - 5)
        if need_d > d: wait_of[p_] = list(range(d + 1, need_d + 1)); d = need_d
        else: wait_of[p_] = []
    last_read = d
    def step(p):
        for d_ in wait_of[p]:
            A.wait_vm(f'p{d_}')
            if d_ < 16:
                if d_ % 4 == 3: read_k(d_ // 4); A('s_waitcnt lgkmcnt(0)')
            else:
                A('s_waitcnt lgkmcnt(0)')
                read_v(d_)
            if diag and d_ in (7, 11, 15, 19, 23): xstamp(45 + (d_ - 7) // 4)
        if p == ffn_at and len(tail_parts) < 3: issue_ffn(0, True, ''.join(c_ for c_ in 'gud' if c_ not in tail_parts))
        if p == wo_at: issue_wo()
        piece(p)
    hi_l, join_all, flag_l = lab('shi'), lab('sj'), lab('fl')
    def lead_in():
        if not bar_after_k0:
            A.wait_vm('p3')
            if diag: xstamp(44)
            read_k(0); A('s_waitcnt lgkmcnt(0)')
            for pp in range(8, 12): piece(pp)
    lowcode = [True]
    def steps(lo_, hi_):
        for pp in range(lo_, hi_):
            if pp == touch_o and lowcode[0]:
                n_ = len(A.vm); o0dst[0] = 48; issue_o0(); o0dst[0] = 80
                A.vm[n_:] = ['touch'] * (len(A.vm) - n_)
            if pp == csq_at and lowcode[0]:
                n_ = len(A.vm); issue_csq(); A.vm[n_:] = ['csq'] * (len(A.vm) - n_)
            step(pp)
    A(f's_cmp_ge_u32 {sW}, 4\ns_cbranch_scc1 {hi_l}')
    lead_in()
    p = 12
    while p < 32:
        if p in rides:
            skip, join = lab('noq'), lab('jn')
            saved = list(A.vm)
            A(f's_cmp_lg_u32 {sGOK}, 0\ns_cbranch_scc1 {skip}')
            issue_q(True)
            steps(p, p + 5)
            if 'q' in A.vm: A.wait_vm('q')
            check_tags()
            nq = lab('nq')
            A(f's_cbranch_vccnz {nq}')
            q0_finish()
            A(f'{nq}:\ns_branch {join}\n{skip}:')
            after_q = list(A.vm)
            A.vm = saved
            steps(p, p + 5)
            extra = len(A.vm) - len(after_q)
            assert A.vm[extra:] == after_q, (A.vm, after_q)
            A.vm = after_q if extra <= 0 else A.vm
            A(f'{join}:')
            p += 5
        else:
            steps(p, p + 1); p += 1
    saved = list(A.vm)
    def put_status():
        A(f's_lshl_b32 {t1}, {sW}, 2\ns_add_u32 {t1}, {t1}, {L_ST}\nv_mov_b32 {vTMP}, {t1}\nv_mov_b32 {vTMP2}, {sGOK}\nds_write_b32 {vTMP}, {vTMP2}')
    def get_status():
        A(f'v_mov_b32 {vTMP}, {L_ST}\nds_read_b128 v[72:75], {vTMP}\ns_waitcnt lgkmcnt(0)')
        check_words((72, 73, 74, 75), '1')
        A('s_cmp_eq_u64 vcc, 0')
    put_status()
    A(f's_branch {join_all}\n{hi_l}:')
    A.vm = save; lowcode[0] = False
    lead_in()
    steps(12, 32)
    saved = list(A.vm)
    A(f'{join_all}:')
    stamp()
    A('s_waitcnt lgkmcnt(0)\ns_barrier')
    get_status()
    okq = lab('okq')
    A(f's_cbranch_scc1 {okq}')
    if not abl:
        with lowwaves():
            A(f'buffer_store_dwordx4 v[100:103], v109, {WS}, 0 offen sc1\nbuffer_store_dwordx4 v[104:107], v109, {WS}, 0 offen offset:256 sc1')
            dn = lab('qdone')
            A(f's_cmp_lg_u32 {sGOK}, 0\ns_cbranch_scc1 {dn}')
            tagged_poll(lambda: issue_q(True))
            q0_finish()
            A(f'{dn}:')
        A('s_barrier')
        with lowwaves(): put_status()
        A('s_waitcnt lgkmcnt(0)\ns_barrier')
        get_status()
    A(f'{okq}:\ns_cselect_b32 {sFAST}, 1, 0')
    A.vm = saved
    def first_only(f):
        def g():
            l, bk = lab('fo'), lab('bk')
            A(f's_cmp_eq_u32 {sLIDX}, 0\ns_cbranch_scc1 {l}\n{bk}:')
            keepL, A.L = A.L, []
            A(f'{l}:'); f(); A(f's_branch {bk}')
            tails.append('\n'.join(A.L)); A.L = keepL
        return g
    def variant(first, later):
        l, bk = lab('v0'), lab('vj')
        A(f's_cmp_eq_u32 {sLIDX}, 0\ns_cbranch_scc1 {l}')
        n0 = nts[0]
        later()
        A(f'{bk}:')
        n1, nts[0] = nts[0], n0
        keepL, A.L = A.L, []
        A(f'{l}:'); first(); A(f's_branch {bk}')
        tails.append('\n'.join(A.L)); A.L = keepL
        assert nts[0] == n1
    def later_only(f):
        l = lab('lo'); A(f's_cmp_eq_u32 {sLIDX}, 0\ns_cbranch_scc1 {l}'); f(); A(f'{l}:')
    def scores(bar=True):
        if bar: A('s_waitcnt lgkmcnt(0)\ns_barrier')
        for j in range(4): A(f'ds_read_b128 v[{64+4*j}:{67+4*j}], {vBR320} offset:{64*j}')
        def sel_t(t, rs):
            for r in rs: A(f'v_mov_b32_dpp v{80+r}, v{80+4*t+r} quad_perm:[0,1,2,3] row_mask:0xf bank_mask:{1<<t:#x}')
        if tmajor:
            for t in range(4):
                for j in range(4):
                    if t == 0: A(f's_waitcnt lgkmcnt({3-j})')
                    c = '0' if j == 0 else f'v[{80+4*t}:{83+4*t}]'
                    A(f'{M16} v[{80+4*t}:{83+4*t}], a[{16*t+4*j}:{16*t+4*j+3}], v[{64+4*j}:{67+4*j}], {c}')
            sel_t(1, range(4)); sel_t(2, range(4)); sel_t(3, range(4))
        else:
            for j in range(4):
                A(f's_waitcnt lgkmcnt({3-j})')
                for t in range(4):
                    c = '0' if j == 0 else f'v[{80+4*t}:{83+4*t}]'
                    A(f'{M16} v[{80+4*t}:{83+4*t}], a[{16*t+4*j}:{16*t+4*j+3}], v[{64+4*j}:{67+4*j}], {c}')
            for t in range(1, 4): sel_t(t, range(4))
        A('v_max3_f32 v84, v80, v81, v82\nv_max_f32 v84, v84, v83')
        A(f'v_max_f32_dpp v84, v84, v84 row_ror:4 {DPP}')
        A(f'v_max_f32_dpp v84, v84, v84 row_ror:8 {DPP}')
        A('v_mov_b32 v85, v84\nv_permlane16_swap_b32 v84, v85\nv_max_f32 v84, v84, v85')
        A('v_mov_b32 v85, v84\nv_permlane32_swap_b32 v84, v85\nv_max_f32 v84, v84, v85')
        A('v_pk_add_f32 v[80:81], v[80:81], v[84:85] op_sel_hi:[1,0] neg_lo:[0,1] neg_hi:[0,1]')
        A('v_pk_add_f32 v[82:83], v[82:83], v[84:85] op_sel_hi:[1,0] neg_lo:[0,1] neg_hi:[0,1]')
        for r in range(4): A(f'v_exp_f32 v{80+r}, v{80+r}')
        A('v_cvt_pk_bf16_f32 v86, v80, v81\nv_cvt_pk_bf16_f32 v87, v82, v83')
        A(f'v_mfma_f32_16x16x16_bf16 v[88:91], {ONES}, v[86:87], 0')
    def pv(i):
        for hf in range(2):
            acc = 96 + 8 * (i & 1) + 4 * hf
            c = '0' if i < 2 else f'v[{acc}:{acc+3}]'
            A(f'v_mfma_f32_4x4x4_16b_bf16 v[{acc}:{acc+3}], v[86:87], a[{64+4*i+2*hf}:{65+4*i+2*hf}], {c} cbsz:4 abid:{4*(i&3)+(i>>2)}')
    def lsum():
        A(f'v_add_f32_dpp v85, v88, v88 row_ror:4 {DPP}')
        A(f'v_add_f32_dpp v85, v85, v85 row_ror:8 {DPP}')
        A(f's_mov_b64 exec, 15\nds_write_b64 {vRMW}, v[84:85]')
        full_exec()
    def combine(tagged=False, other=None):
        for h in range(4):
            A(f'v_add_f32 v{64+2*h}, v{96+h}, v{104+h}\nv_add_f32 v{65+2*h}, v{100+h}, v{108+h}')
            if h & 1: A(f'ds_write_b128 {vROW}, v[{62+2*h}:{65+2*h}] offset:{512*(h-1)}')
        A('s_waitcnt lgkmcnt(0)\ns_barrier')
        with lowwaves(other):
            A(f'ds_read_b64 v[72:73], {vRMR}')
            for k in range(8): A(f'ds_read_b64 v[{80+2*k}:{81+2*k}], {vROR} offset:{8192*k}')
            A('s_waitcnt lgkmcnt(8)')
            A(f'v_max_f32_dpp v74, v72, v72 quad_perm:[1,0,3,2] {DPP}')
            A(f'v_max_f32_dpp v74, v74, v74 quad_perm:[2,3,0,1] {DPP}')
            A(f'v_max_f32_dpp v74, v74, v74 row_half_mirror {DPP}')
            A('v_sub_f32 v72, v72, v74\nv_exp_f32 v72, v72')
            for k in range(8): A(f'v_readlane_b32 s{80+k}, v72, {k}')
            A('v_mul_f32 v75, v73, v72\ns_waitcnt lgkmcnt(0)')
            for k in range(8):
                sp = f's[{80+(k&~1)}:{81+(k&~1)}]'
                o = 'op_sel_hi:[1,0' if (k & 1) == 0 else 'op_sel:[0,1'
                d = 64 + 2 * (k & 1)
                if k < 2: A(f'v_pk_mul_f32 v[{d}:{d+1}], v[{80+2*k}:{81+2*k}], {sp} {o}]')
                else: A(f'v_pk_fma_f32 v[{d}:{d+1}], v[{80+2*k}:{81+2*k}], {sp}, v[{d}:{d+1}] {o},{1 if (k&1)==0 else 0}]')
            A('v_pk_add_f32 v[64:65], v[64:65], v[66:67]\nv_cvt_pk_bf16_f32 v64, v64, v65')
            def lsum8():
                for m in ('quad_perm:[1,0,3,2]', 'quad_perm:[2,3,0,1]', 'row_half_mirror'):
                    A(f'v_add_f32_dpp v75, v75, v75 {m} {DPP}')
            def pub_tagged():
                A(f'v_mov_b32 v66, {sTAG}\nv_mov_b32 v67, {sTAG}\nv_mov_b32_dpp v65, v64 quad_perm:[1,1,3,3] {DPP}')
                lstore(f'buffer_store_dwordx4 v[64:67], v118, {WS}, 0 offen')
                A(f'v_mov_b32 v76, {sTAG}\nv_mov_b32 v77, {sTAG}')
                A(f's_lshl_b32 {t1}, {sG}, 2\ns_add_u32 {t1}, {t1}, {sW}\ns_lshl_b32 {t1}, {t1}, 2\ns_add_u32 {t1}, {t1}, {sHI}\ns_lshl_b32 {t1}, {t1}, 3\ns_add_u32 {t1}, {t1}, {sLO}\ns_lshl_b32 {t1}, {t1}, 4\ns_add_u32 {t1}, {t1}, {TML}')
                lsum8()
                lstore(f'buffer_store_dwordx4 v[74:77], {vMLst}, {WS}, {t1} offen')
            def pub_plain():
                lstore(f'buffer_store_dword v64, {vL4}, {WS}, {sOPst} offen')
                lsum8()
                lstore(f'buffer_store_dwordx2 v[74:75], {vMLst}, {WS}, {sMLst} offen')
            if tagged is None: variant(pub_tagged, pub_plain)
            elif tagged: pub_tagged()
            else: pub_plain()

    A('v_mov_b32 v118, v110')
    A(f's_mul_i32 {t1}, {sC}, 1312\ns_add_u32 {t1}, {t1}, {sGBASE}\ns_add_u32 {t1}, {t1}, {bGP - 7168}\ns_sub_u32 {t2}, {sXst}, 7168')
    A(f'v_add_u32 v119, {t1}, v115\nv_add_u32 v120, {t2}, v115\nv_add_u32 {vTMP}, 512, v119\nv_cmp_lt_u32 vcc, 31, {vL}'); sel('v120', 'v120', vTMP)
    A(f'v_mov_b32 {vTMP}, {OOB}\nv_cmp_lt_u32 vcc, 49, {vL}'); sel('v120', 'v120', vTMP)
    A(f'v_cmp_gt_u32 vcc, 7168, v115'); sel('v119', 'v119', vTMP); sel('v120', 'v120', vTMP)
    A('v_mov_b32 v56, -1\nv_mov_b32 v57, -1\nv_mov_b32 v58, -1\nv_mov_b32 v59, -1' if False else '')
    def clean_urgent():
        A('v_mov_b32 v92, -1\nv_mov_b32 v93, -1\nv_mov_b32 v94, -1\nv_mov_b32 v95, -1')
        A.vmop(f'buffer_store_dwordx4 v[92:95], v119, {WS}, 0 offen sc1', 'cu')
        A.vmop(f'buffer_store_dwordx4 v[92:95], v120, {WS}, 0 offen sc1', 'cu')
    if share: A('s_branch L_scores\nL_scored:')
    else: scores(False)
    for i in range(last_read - 15): pv(i)
    lsum()
    stamp()
    for p in range(last_read + 1, 32):
        A.wait_vm(f'p{p}')
        read_v(p)
        if p == cl_at: clean_urgent()
        if p == 31:
            issue_wo()
            if tail_parts: issue_ffn(0, True, tail_parts)
        A('s_waitcnt lgkmcnt(0)')
        pv(p - 16)
        if p == max(csq_at, last_read + 1) and not abl:
            keep_vm = list(A.vm)
            with lowwaves(): finish_csq()
            A.vm = keep_vm
    stamp()
    if abl: A('s_branch L_fin')
    def clean_first():
        l_ = lab('c7')
        A(f's_cmp_lg_u32 {sW}, 7\ns_cbranch_scc1 {l_}')
        A(f's_lshl_b32 {t1}, {sLO}, 5\ns_lshl_b32 {t2}, {sG}, 2\ns_add_u32 {t1}, {t1}, {t2}\ns_add_u32 {t1}, {t1}, {sHI}\ns_lshl_b32 {t1}, {t1}, 2')
        A(f's_lshl_b32 {t2}, {sG}, 5\ns_add_u32 {t2}, {t2}, {sC}\ns_lshl_b32 {t2}, {t2}, 2\ns_add_u32 {t2}, {t2}, 1024')
        A(f'v_mov_b32 v68, {t1}\nv_writelane_b32 v68, {t2}, 1\nv_mov_b32 v69, {sTAG}\ns_mov_b32 {t1}, {TF}\ns_mov_b64 exec, 3')
        A(f's_waitcnt vmcnt({2 + len(tail_parts)})\nbuffer_store_dword v69, v68, {WS}, {t1} offen sc1')
        full_exec()
        A(f'v_mov_b32 v64, -1\nv_mov_b32 v65, -1\nv_mov_b32 v66, -1\nv_mov_b32 v67, -1\nv_lshlrev_b32 v68, 2, {vL4}')
        A(f's_mul_i32 {t2}, {sC}, 2112\ns_add_u32 {t2}, {t2}, {sGBASE}\ns_add_u32 {t2}, {t2}, {LS}')
        A(f'buffer_store_dwordx4 v[64:67], v68, {WS}, {t2} offen sc1\nbuffer_store_dwordx4 v[64:67], v68, {WS}, {t2} offen offset:1024 sc1')
        A(f's_add_u32 {t1}, {sXst}, {oXB - oXA}\ns_add_u32 {t2}, {t2}, {2048 - 512}\nv_add_u32 v69, {t1}, v68\nv_add_u32 v70, {t2}, v68\nv_cmp_lt_u32 vcc, 31, {vL}'); sel('v69', 'v69', 'v70')
        A(f'v_mov_b32 v70, {OOB}\nv_cmp_lt_u32 vcc, 35, {vL}'); sel('v69', 'v69', 'v70')
        A(f'buffer_store_dwordx4 v[64:67], v69, {WS}, 0 offen sc1')
        A(f'{l_}:')
    if share:
        inloop[0] = True
        A('L_merge:')
        combine(None, first_only(clean_first))
    else: combine(True, clean_first)
    stamp(True)

    if prio:
        l_ = lab('pr'); A(f's_cmp_ge_u32 {sW}, 4\ns_cbranch_scc1 {l_}\ns_setprio 1\n{l_}:')
    A('L_layer:'); inloop[0] = True
    def proj_body(nk, vb, boff, xoff, late_w=None, tagged=False):
        for j in range(nk): A(f'ds_read_b128 v[{64+4*j}:{67+4*j}], {vb} offset:{boff+64*j}')
        if late_w: late_w()
        for j in range(nk):
            if not late_w: A(f's_waitcnt lgkmcnt({nk-1-j})')
            elif j == 0: A('s_waitcnt lgkmcnt(0)')
            c = '0' if j == 0 else 'v[96:99]'
            A(f'{M16} v[96:99], v[{48+4*j}:{51+4*j}], v[{64+4*j}:{67+4*j}], {c}')
        if tagged:
            A(f'v_mov_b32 v102, {sTAG}\nv_mov_b32 v103, {sTAG}\nv_cvt_pk_bf16_f32 v100, v96, v97\nv_cvt_pk_bf16_f32 v101, v98, v99')
            A(f'buffer_store_dwordx4 v[100:103], v47, {WS}, 0 offen sc1')
            if diag2: xstamp(52)
        else:
            A(f's_add_u32 {t1}, {sXst}, {xoff}')
            A('v_cvt_pk_bf16_f32 v96, v96, v97\nv_cvt_pk_bf16_f32 v97, v98, v99')
            A(f'buffer_store_dwordx2 v[96:97], {vXst}, {WS}, {t1} offen sc1')
    def proj_out(nk, vb, boff, xoff, first=None):
        sk, dl = lab('sk'), lab('dl')
        A(f's_cmp_ge_u32 {sW}, 4\ns_cbranch_scc1 {sk}')
        if first: variant(first, lambda: proj_body(nk, vb, boff, xoff))
        else: proj_body(nk, vb, boff, xoff)
        return sk, dl
    def g_wait(sk, dl, pre, busy_first=False, hi_pre=None, lo_d=None, hi_d=None, extra0=0):
        pre()
        A(f's_sleep {lo_d or gdelay}')
        A(f's_branch {dl}\n{sk}:')
        if hi_pre: hi_pre()
        A(f's_sleep {hi_d or gdelay_hi}')
        A(f'{dl}:')
        if extra0: first_only(lambda: A(f's_sleep {extra0}'))()
    def reduce_x(xoff, final, first=None):
        def normal():
            A(f's_add_u32 {t0}, {sXg}, {xoff}')
            poll(lambda: issue_g1(64, vXg, t0, 'x', 8192), range(64, 72),
                 lambda: A(f'{M16} v[96:99], {SELA}, v[64:67], 0\n{M16} v[96:99], {SELA}, v[68:71], v[96:99]'))
        if first: variant(first, normal)
        else: normal()
        stamp()
        A(f'v_add_f32_dpp v96, v96, v96 row_ror:4 {DPP}\nv_add_f32_dpp v97, v97, v97 row_ror:4 {DPP}')
        if final: A(f's_cmp_eq_u32 {sLIDX}, 1')
        A(f'v_add_f32_dpp v96, v96, v96 row_ror:8 {DPP}\nv_add_f32_dpp v97, v97, v97 row_ror:8 {DPP}')
        A(f'v_pk_add_f32 {XRES}, {XRES}, v[96:97]\ns_mov_b64 exec, {sM4}\nv_cvt_pk_bf16_f32 v96, v112, v113')
        if final: A(f's_cbranch_scc1 L_out')
        A(f'ds_write_b32 {vXW}, v96')
        full_exec()
        A('s_waitcnt lgkmcnt(0)\ns_barrier')
    def issue_o():
        issue_g1(64, vG1, sOg, 'o')
        A.vmop(f'buffer_load_dwordx2 v[72:73], {vML2}, {WS}, {sMLg} offen sc1', 'o')
        A.vmop(f'buffer_load_dwordx2 v[74:75], {vML2}, {WS}, {sMLg} offen offset:32 sc1', 'o')
    def wo_weights(ma, la, mb, lb, selreg, mm):
        A(f'v_max_f32 v76, v{ma}, v{mb}\nv_mov_b32 v77, v76\nv_permlane16_swap_b32 v76, v77\nv_max_f32 v76, v76, v77')
        A('v_mov_b32 v77, v76\nv_permlane32_swap_b32 v76, v77\nv_max_f32 v76, v76, v77')
        A(f'v_sub_f32 v{ma}, v{ma}, v76\nv_sub_f32 v{mb}, v{mb}, v76\nv_exp_f32 v{ma}, v{ma}\nv_exp_f32 v{mb}, v{mb}')
        A(f'v_cvt_pk_bf16_f32 v{ma}, v{ma}, v{ma}\nv_cvt_pk_bf16_f32 v{mb}, v{mb}, v{mb}')
        for i in range(4): A(f'v_and_b32 v{selreg+i}, v{MASK+i}, v{ma}')
        for i in range(4): A(f'v_and_b32 v{selreg+4+i}, v{MASK+i}, v{mb}')
        mm()
        A(f'v_and_b32 v{ma}, 0xffff0000, v{ma}\nv_and_b32 v{mb}, 0xffff0000, v{mb}\nv_mul_f32 v73, v{la}, v{ma}\nv_fmac_f32 v73, v{lb}, v{mb}')
        A('v_mov_b32 v77, v73\nv_permlane16_swap_b32 v73, v77\nv_add_f32 v73, v73, v77')
        A('v_mov_b32 v77, v73\nv_permlane32_swap_b32 v73, v77\nv_add_f32 v73, v73, v77\nv_rcp_f32 v72, v73')
    def wo_later():
        read_wo()
        if ldelay: A(f's_sleep {ldelay}')
        poll(issue_o, range(64, 76))
        stamp()
        wo_weights(72, 73, 74, 75, 80, lambda: A(f'{M16} v[96:99], v[80:83], v[64:67], 0\n{M16} v[96:99], v[84:87], v[68:71], v[96:99]'))
    def wo_first():
        if diag2: A(f's_mov_b32 s65, {sTO}')
        def issue():
            issue_o0()
            if csq_o: issue_tagged(f's_lshl_b32 {t1}, {sG}, 14\ns_add_u32 {t1}, {t1}, {TQC}', 48)
        if wo_at: read_wo()
        if csq_o: tagged_poll(issue, (82, 86, 90, 94, 66, 70, 50, 54, 58, 62), lambda: tagged_sum(32, 48, 108))
        else: tagged_poll(issue, (82, 86, 90, 94, 66, 70))
        stamp()
        if diag2: A(f's_sub_u32 s65, s65, {sTO}\nv_readlane_b32 s94, {vTS}, 0\ns_mul_i32 s65, s65, 100\ns_add_u32 s65, s65, s94\nv_writelane_b32 {vTS}, s65, 55')
        wo_weights(64, 65, 68, 69, 100, lambda: tagged_sum(100, 80, 96, 4))
        if csq_o: A(f's_mov_b32 {t2}, {f32(1/512)}\nv_pk_mul_f32 {CSQ}, v[108:109], s[56:57] op_sel_hi:[1,0]')
    with lowwaves():
        variant(wo_first, wo_later)
        A('v_pk_mul_f32 v[96:97], v[96:97], v[72:73] op_sel_hi:[1,0]\nv_cvt_pk_bf16_f32 v96, v96, v97')
        A(f'ds_write_b32 {vQW}, v96 offset:{L_OS-L_QS}')
    A(f's_waitcnt vmcnt(0) lgkmcnt(0)\ns_barrier')
    sk, dl = proj_out(4, vBR320, L_OS - L_QS, 0, lambda: proj_body(4, vBR320, L_OS - L_QS, 0, read_wo))
    def clean3():
        A(f's_mul_i32 {t1}, {sC}, 1056\ns_add_u32 {t1}, {t1}, {sGBASE}\ns_add_u32 {t1}, {t1}, {LS + bGP - 4096}\nv_mov_b32 v68, {OOB}')
        A(f'v_add_u32 {vTMP}, {t1}, v115\nv_cmp_gt_u32 vcc, {4096 + 1056}, v115'); sel('v69', 'v68', vTMP)
        A('v_mov_b32 v64, -1\nv_mov_b32 v65, -1\nv_mov_b32 v66, -1\nv_mov_b32 v67, -1')
        A(f's_add_u32 {t1}, {sXst}, {LS - 7168}\nv_add_u32 {vTMP}, {t1}, v115\nv_add_u32 {vTMP2}, {oXB - oXA - 512}, {vTMP}\nv_cmp_lt_u32 vcc, {7680 - 1}, v115'); sel(vTMP, vTMP, vTMP2)
        A(f'v_cmp_lt_u32 vcc, {7168 - 1}, v115'); sel('v69', 'v69', vTMP)
        A(f'buffer_store_dwordx4 v[64:67], v69, {WS}, 0 offen sc1')
    leave_ = [None]
    def touch_lines(bases):
        for sb, off in bases:
            A(f's_add_u32 {t0}, {sb}, {off}\ns_add_u32 {t1}, {t0}, 4096')
            A(f'buffer_load_dwordx4 v[80:83], {vG1}, {WS}, {t0} offen sc1\nbuffer_load_dwordx4 v[84:87], {vG1}, {WS}, {t1} offen sc1')
    def touch_small(bases):
        for sb, off in bases:
            A(f's_add_u32 {t0}, {sb}, {off}\nbuffer_load_dwordx2 v[88:89], {vSt8}, {WS}, {t0} offen sc1')
    def watch_flags():
        l_, r_, d_ = lab('w4'), lab('fr'), lab('fd')
        A(f's_cmp_lg_u32 {sW}, 4\ns_cbranch_scc1 {l_}')
        A(f's_lshl_b32 {t1}, {sLO}, 7\ns_lshl_b32 {t2}, {sG}, 7\ns_add_u32 {t2}, {t2}, {1024 - 128}\nv_add_u32 v68, {t1}, {vL4}\nv_add_u32 v69, {t2}, {vL4}\nv_cmp_lt_u32 vcc, 31, {vL}'); sel('v68', 'v68', 'v69')
        A(f's_mov_b32 {t1}, {TF}')
        if fdelay: A(f's_sleep {fdelay}')
        e_ = lab('fe')
        A(f'buffer_load_dword v69, v68, {WS}, {t1} offen sc1\ns_waitcnt vmcnt(0)\nv_cmp_ne_u32 vcc, {sTAG}, v69\ns_cbranch_vccz {d_}')
        A(f'{r_}:\ns_sleep {fback}\nbuffer_load_dword v69, v68, {WS}, {t1} offen sc1\ns_waitcnt vmcnt(0)\nv_cmp_ne_u32 vcc, {sTAG}, v69\ns_cbranch_vccz {e_}')
        A(f's_sub_u32 {sTO}, {sTO}, 1\ns_cbranch_scc0 {r_}\ns_mov_b32 {sTO}, 0\n{e_}:')
        if flate: A(f's_sleep {flate}')
        A(f'{d_}:')
        A(f'v_mov_b32 v68, {L_FL}\nv_mov_b32 v69, 1\nds_write_b32 v68, v69')
        A(f's_branch {after_sleep[0]}\n{l_}:')
    def await_flags():
        r_, d_ = lab('ar'), lab('ad')
        A(f'v_mov_b32 v68, {L_FL}\n{r_}:\nds_read_b32 v69, v68\ns_waitcnt lgkmcnt(0)\nv_cmp_eq_u32 vcc, 1, v69\ns_cbranch_vccnz {d_}')
        A(f's_sleep 1\ns_sub_u32 {sTO}, {sTO}, 1\ns_cbranch_scc0 {r_}\ns_mov_b32 {sTO}, 0\n{d_}:')
        if touch_g:
            with lowwaves(): touch_lines([(sGg, 0)])
    after_sleep = [None]
    def hi_xa():
        first_only(watch_flags)()
        if ffn_by_hi:
            pt = 'gu' if wd_late else 'gud'
            first_only(lambda: (issue_ffn(-4, False, pt), issue_ffn(0, False, pt)))()
        if clean3_xa: first_only(clean3)()
        if touch1 & 1: first_only(lambda: (touch_lines([(sQg, 0), (sOg, LS)]), touch_small([(sQSg, 0), (sMLg, LS)])))()
        if touch1 & 2: later_only(lambda: (touch_lines([(sGg, 0)]), touch_small([(sGSg, 0)])))
    def hi_xb():
        leave_[0]()
        if not clean3_xa: first_only(clean3)()
        if touch1 & 4: first_only(lambda: (touch_lines([(sGg, LS)]), touch_small([(sGSg, LS)])))()
        if touch1 & 8: first_only(lambda: (touch_lines([(sQg, 0), (sOg, LS)]), touch_small([(sQSg, 0), (sMLg, LS)])))()
    after_sleep[0] = dl
    g_wait(sk, dl, read_gu, False, hi_xa, extra0=xa0)
    first_only(await_flags)()
    stamp()
    reduce_x(0, False)
    def issue_gp(first):
        issue_g1(64, vG1, sGg, 'g')
        A.vmop(f'buffer_load_dwordx2 v[72:73], {vSt8}, {WS}, {sGSg} offen sc1', 'g')
        if first:
            A(f'v_and_b32 {vTMP}, 0xf0, {vG1}\nv_and_b32 {vTMP2}, 0xc00, {vG1}\nv_lshrrev_b32 {vTMP2}, 2, {vTMP2}\nv_or_b32 {vTMP}, {vTMP}, {vTMP2}')
            issue_g1(80, vTMP, sGCg, 'g', 1024)
    def ffn_gather(first):
        def f():
            if ldelay and not first: A(f's_sleep {ldelay}')
            poll(lambda: issue_gp(first), QREGS1 if first else QREGS, ln_spec(SELG, first))
            ln_finish(CSG, 1.0, first)
        return f
    with lowwaves(lambda: slice_stats(sGSst)):
        matvec(vGst, 'plain', None, sLAY)
        stamp()
        read_wd()
        variant(ffn_gather(True), ffn_gather(False))
        stamp()
        A('v_cvt_pk_bf16_f32 v96, v96, v97\nv_and_b32 v97, 0xffff0000, v96\nv_lshlrev_b32 v96, 16, v96\nv_max_f32 v96, 0, v96\nv_mul_f32 v96, v96, v97\nv_cvt_pk_bf16_f32 v96, v96, v96')
        A(f'ds_write_b16 {vHW}, v96')
    A('s_waitcnt lgkmcnt(0)\ns_barrier')
    sk, dl = proj_out(2, vBR192, 0, oXB - oXA)
    def leave():
        no = lab('no')
        A(f's_cmp_eq_u32 {sLIDX}, 0\ns_cbranch_scc1 {no}\ns_cmp_lg_u32 {sHI}, 0\ns_cbranch_scc1 L_fin\ns_cmp_lg_u32 {sG}, {sLO}\ns_cbranch_scc1 L_fin\n{no}:')
    def pre_q():
        leave()
        read_wq()
    leave_[0] = leave
    g_wait(sk, dl, pre_q, False, hi_xb, gd_b, gdh_b, xb0)
    stamp()
    reduce_x(oXB - oXA, True)
    keep = nts[0]; nts[0] -= 11
    def advance():
        A(f's_mov_b32 {sLIDX}, 1\ns_mov_b32 {sLAY}, {LS}')
        for s in (sOg, sGg, sMLg, sGSg, sXg, sOPst, sMLst, sXst, sGSst):
            A(f's_add_u32 {s}, {s}, {LS}')
    with lowwaves(lambda: (slice_stats(sQSst), advance())):
        matvec(vQst, 'plain')
        advance()
        stamp()
        if ldelay: A(f's_sleep {ldelay}')
        poll(lambda: issue_q(False), QREGS, ln_spec(SELA, False))
        stamp()
        q_finish(False)
    if share:
        A('s_waitcnt vmcnt(0) lgkmcnt(0)\ns_barrier\nL_scores:')
        scores(False)
        A(f's_cmp_eq_u32 {sLIDX}, 0\ns_cbranch_scc1 L_scored')
    else: scores()
    for i in range(16):
        pv(i)
        if i == 5: lsum()
    stamp()
    if share: A('s_branch L_merge')
    else:
        combine()
        stamp()
        A('s_branch L_layer')
    nts[0] = keep
    A('L_out:')
    A(f'buffer_store_dword v96, {vXO}, {OUT}, 0 offen')
    A(f's_or_b32 {t1}, s2, {sW}\ns_cmp_lg_u32 {t1}, 0\ns_cbranch_scc1 L_fin0')
    A(f's_mov_b64 exec, 1\nv_mov_b32 v97, {sTAG}\ns_mov_b32 {t2}, {EPOCH}\nbuffer_store_dword v97, off, {WS}, {t2} sc1')
    A('L_fin0:')
    full_exec()
    A('L_fin:')
    if padto:
        A(f'L_pad:\ns_memrealtime s[94:95]\ns_waitcnt lgkmcnt(0)\ns_sub_u32 s94, s94, s98\ns_cmp_lt_u32 s94, {padto}\ns_cbranch_scc1 L_pad')
    if ts:
        stamp(True)
        A(f's_memtime s[94:95]\ns_waitcnt lgkmcnt(0)\ns_sub_u32 s94, s94, s98\nv_writelane_b32 {vTS}, s94, 63')
        A(f's_add_u32 s96, s96, 0x10000000\ns_addc_u32 s97, s97, 0\ns_lshl_b32 {t1}, s2, 11\nv_add_u32 v64, {t1}, {vT4}\nglobal_store_dword v64, {vTS}, s[96:97]')
        if dbgts:
            A(f's_or_b32 {t1}, s2, {sW}\ns_cmp_lg_u32 {t1}, 0\ns_cbranch_scc1 L_end')
            A(f'v_readlane_b32 {t1}, {vTS}, 0\nv_subrev_u32 v64, {t1}, {vTS}\nv_and_b32 v64, 0xffff, v64')
            A(f'v_mov_b32_dpp v65, v64 quad_perm:[1,1,3,3] {DPP}\nv_lshl_or_b32 v64, v65, 16, v64\nv_lshlrev_b32 v65, 1, {vL}')
            A(f's_mov_b32 exec_lo, 0x55555555\ns_mov_b32 exec_hi, 0\nbuffer_store_dword v64, v65, {DBG}, 0 offen sc1')
    A('s_endpgm')
    for t_ in tails: A(t_)
    A('L_end:\ns_endpgm')
    A(f'.section .rodata,"a"\n.p2align 6\n.amdhsa_kernel {NAME}_kernel')
    A('.amdhsa_next_free_vgpr 256\n.amdhsa_next_free_sgpr 102\n.amdhsa_accum_offset 128\n.amdhsa_group_segment_fixed_size 0\n.amdhsa_kernarg_size 96\n.amdhsa_user_sgpr_count 2\n.amdhsa_user_sgpr_kernarg_segment_ptr 1\n.amdhsa_system_sgpr_workgroup_id_x 1\n.end_amdhsa_kernel')
    txt, probs = A.text()
    for p in probs: print('HAZARD', p, file=sys.stderr)
    return txt, nts[0]

if __name__ == '__main__':
    out = sys.argv[1]
    kw = {}
    for a in sys.argv[2:]:
        k, v = a.split('='); kw[k] = eval(v)
    txt, n = build(**kw)
    open(out, 'w').write(txt)
    print('stamps', n, 'lines', txt.count('\n'))
```

```python
import sys, math, struct
sys.path.insert(0, 'gen')
from asmlib import Asm

NAME = "interleave_layers__sliding_block_cached__glu_gated_reglu__decode"

bQP, bQS, bOP, bML, bGP, bGS, bGC, GB = 0x0, 0x8000, 0x8400, 0x10400, 0x10800, 0x18800, 0x18C00, 0x1AC00
oXA, oXB, LS = 8 * GB, 8 * GB + 0x20000, 8 * GB + 0x40000
TQP, TQC, TOP, TML, TF, EPOCH = 0x240000, 0x2C0000, 0x2E0000, 0x360000, 0x364000, 0x36C000
WS_REC = 0x36C100
OOB = 0x7FFF0000
L_RING, L_WQ, L_WO, L_WG, L_WU, L_WD = 0, 65536, 81920, 98304, 106496, 114688
L_QS, L_OS, L_HS, L_XS, L_RM, L_ST = 122880, 124160, 125440, 126208, 127168, 127424
L_FL = L_ST + 16
LDS_BYTES = 127488

def f32(x): return '0x%08x' % struct.unpack('<I', struct.pack('<f', x))[0]
QSCALE = 128 ** -0.5 * math.log2(math.e)

sW, sG, sC, sHI, sLO = 's3', 's4', 's5', 's6', 's7'
WS, KK, VV, WQ, WO, WG, WU, WD, XX, OUT, DBG = [f's[{i}:{i+3}]' for i in range(8, 52, 4)]
sKV, sRING, t0, t1, t2, t3 = 's52', 's53', 's54', 's55', 's56', 's57'
sLAY, sTO, sFAST, sCNT, sGOK, sLIDX = 's58', 's59', 's60', 's61', 's62', 's63'
sQg, sOg, sGg, sQSg, sMLg, sGSg, sXg, sGBASE, sGCg = ['s%d' % i for i in range(66, 75)]
sOPst, sMLst, sXst, sQSst, sGSst = ['s%d' % i for i in range(75, 80)]
g0, g1, g2, g3 = 's90', 's91', 's92', 's93'
vL, vT4, vSt8, vXg, vQst, vGst, vSSt, vG1, vXst, vQW, vBR320, vHW, vBR192, vXR, vXW, vL4 = ['v%d' % i for i in range(16)]
vROW, vROR, vRMW, vRMR, vWQr, vWr, vWOr, vXO = ['v%d' % i for i in range(16, 24)]
CSQ, CSG = 'v[24:25]', 'v[26:27]'
vTS, vML2, vTMP, vTMP2 = 'v28', 'v29', 'v30', 'v31'
SELA, MASK, SELG, ONES = 'v[32:35]', 36, 'v[40:43]', 'v[44:45]'
vMLst = 'v46'
XRES = 'v[112:113]'
sM4 = 's[88:89]'
sTAG = 's100'
DPP = 'row_mask:0xf bank_mask:0xf'
M16 = 'v_mfma_f32_16x16x32_bf16'

def build(ts=False, gdelay=12, gdelay_hi=18, pf_code=True, rides=(17, 22, 27), w_at='land31', ldelay=0, bar_after_k0=False, fride=26, ffn_hi=False, touch_o=0, touch_g=0, ffn_sleep=0, clean3_xa=0, tlb=0, diag2=0, ffn_at=0, fdelay=4, fback=4, wo_at=0, csq_o=0, touch1=8, wt_at=31, csq_at=26, xa0=0, xb0=3, cl_at=29, tail_parts='gud', fearly=10, use_early=0, fullflag=1, flag_first=0, flate=6, share=1, gd_b=11, gdh_b=15, ffn_by_hi=0, tmajor=1, prio=0, padto=0, warm_x=1, warm_at=0, wd_late=0, xback=0, deep_from=24, depth=5, deep=7, diag=0, noclean=0, burst=4, late47=0, abl='', backoff=0, cl_sc1=1, dbgts=0, wsoff=0):
    A = Asm()
    uid = [0]
    def lab(p):
        uid[0] += 1; return f'L_{p}_{uid[0]}'
    nts = [0]; inloop = [False]
    def stamp(key=False):
        if not ts: return
        if ts == 2 and not key:
            nts[0] += 1; return
        if inloop[0]:
            A(f's_memrealtime s[94:95]\ns_mul_i32 m0, {sLIDX}, 11\ns_add_u32 m0, m0, {nts[0]}\ns_waitcnt lgkmcnt(0)\nv_writelane_b32 {vTS}, s94, m0')
        else:
            A(f's_memrealtime s[94:95]\ns_waitcnt lgkmcnt(0)\nv_writelane_b32 {vTS}, s94, {nts[0]}')
        nts[0] += 1
    def xstamp(i):
        A(f's_memrealtime s[94:95]\ns_waitcnt lgkmcnt(0)\nv_writelane_b32 {vTS}, s94, {i}')
    def set_exec(lo, hi=None):
        hi = lo if hi is None else hi
        A(f's_mov_b32 exec_lo, {lo:#x}\ns_mov_b32 exec_hi, {hi:#x}')
    def full_exec(): A('s_mov_b64 exec, -1')
    tails = []
    def lstore(fmt, tag='st', nxt=None, cmp=True):
        a, b = lab('wt'), lab('sd')
        for f_ in fmt.split('\n'): A((';;need2 ' if cmp else ';;need1 ') + f_)
        if cmp: A(f's_cmp_eq_u32 {sFAST}, 1')
        A(f's_cbranch_scc0 {a}')
        A(fmt); A(f'{b}:')
        tails.append(f'{a}:\n' + '\n'.join(f_ + ' sc1' for f_ in fmt.split('\n')) + f'\ns_branch {b}')
        A.vm.append(tag)
    class lowwaves:
        def __init__(s, other=None): s.other = other
        def __enter__(s):
            s.l = lab('hi'); s.o = lab('up') if s.other else s.l
            A(f's_cmp_ge_u32 {sW}, 4\ns_cbranch_scc1 {s.o}')
        def __exit__(s, *a):
            A(f'{s.l}:')
            if s.other:
                keepL, A.L = A.L, []
                A(f'{s.o}:'); s.other(); A(f's_branch {s.l}')
                tails.append('\n'.join(A.L)); A.L = keepL
    def sel(dst, a, b):
        A(f'v_cndmask_b32 {dst}, {a}, {b}, vcc')

    A(f'; @launch grid=(256,1,1) block=(512,1,1) lds={LDS_BYTES}')
    A('.amdgcn_target "amdgcn-amd-amdhsa--gfx950"')
    A(f'.text\n.globl {NAME}_kernel\n.p2align 8\n.type {NAME}_kernel,@function\n{NAME}_kernel:')
    A('s_cmp_ge_u32 s2, 256\ns_cbranch_scc1 L_end')
    A('s_load_dwordx16 s[64:79], s[0:1], 0\ns_load_dwordx8 s[80:87], s[0:1], 64')
    if padto: A('s_memrealtime s[98:99]')
    A(f'v_lshlrev_b32 {vT4}, 2, v0')
    if pf_code:
        A(f's_getpc_b64 s[94:95]\nL_pc:\ns_lshr_b32 {t0}, s2, 3\ns_and_b32 {t0}, {t0}, 1\ns_lshl_b32 {t0}, {t0}, 13\nv_lshlrev_b32 {vTMP}, 2, {vT4}\nv_add_u32 {vTMP}, {t0}, {vTMP}')
        A(f'v_min_u32 {vTMP}, L_end-L_pc-16, {vTMP}')
        A.vmop(f'global_load_dwordx4 v[96:99], {vTMP}, s[94:95]', 'pf')
    A(f'v_lshrrev_b32 {vTMP}, 6, v0')
    A(f'v_and_b32 {vL}, 63, v0')
    A(f'v_readfirstlane_b32 {sW}, {vTMP}')
    A(f's_and_b32 {sG}, s2, 7\ns_lshr_b32 {sC}, s2, 3\ns_lshr_b32 {sHI}, {sC}, 3\ns_and_b32 {sLO}, {sC}, 7')
    A(f'v_and_b32 v120, 15, {vL}\nv_lshrrev_b32 v121, 4, {vL}')
    A(f'v_lshlrev_b32 {vTMP}, 2, v121\nv_xor_b32 {vTMP}, v120, {vTMP}\nv_lshlrev_b32 {vTMP}, 4, {vTMP}\nv_lshl_add_u32 v116, v121, 8, {vTMP}\nv_lshl_add_u32 v124, v121, 13, {vTMP}')
    A(f'v_and_b32 v122, 3, {vL}\nv_lshrrev_b32 v123, 2, v120')
    A(f's_lshr_b32 {t0}, {sW}, 1\ns_lshl_b32 {t0}, {t0}, 10\ns_and_b32 {t1}, {sW}, 1\ns_lshl_b32 {t1}, {t1}, 6\ns_add_u32 {t0}, {t0}, {t1}\ns_lshl_b32 {t1}, {sLO}, 7\ns_add_u32 {t0}, {t0}, {t1}')
    A(f'v_lshlrev_b32 v117, 4, v122\nv_lshl_add_u32 v117, v121, 2, v117\nv_add_u32 {vXO}, {t0}, v117')
    A(f's_lshl_b32 {t0}, {sHI}, 3\ns_add_u32 {t0}, {t0}, {sG}\ns_lshl_b32 {sKV}, {t0}, 22\ns_lshl_b32 {t0}, {sLO}, 17\ns_add_u32 {sKV}, {sKV}, {t0}\ns_add_u32 {sKV}, {sKV}, {12288*256}')
    A(f's_add_u32 {t0}, {sG}, {sC}\ns_add_u32 {t0}, {t0}, {sW}\ns_and_b32 {t0}, {t0}, 7\ns_lshl_b32 {t0}, {t0}, 12\ns_add_u32 {sKV}, {sKV}, {t0}')
    A(f's_lshl_b32 {sRING}, {sW}, 13')
    A(f's_and_b32 {g3}, {sW}, 3')
    A(f's_lshl_b32 {t0}, {sG}, 2\ns_add_u32 {t0}, {t0}, {sHI}')
    A(f'v_mov_b32 v118, {OOB}')
    A(f's_mul_i32 s101, {sG}, {GB}')
    A(f's_lshl_b32 {t1}, {sLO}, 6\ns_lshl_b32 {t2}, {sW}, 3\ns_add_u32 {t1}, {t1}, {t2}\ns_lshl_b32 {t1}, {t1}, 13\ns_lshl_b32 {t2}, {sG}, 10\ns_add_u32 {t1}, {t1}, {t2}\ns_lshl_b32 {t2}, {sHI}, 8\ns_add_u32 {t1}, {t1}, {t2}')
    A(f's_lshl_b32 {t2}, {sW}, 11\ns_add_u32 m0, {t2}, {L_WQ}')
    if ts:
        A(f'v_mov_b32 {vTS}, 0'); stamp(True)
        A(f's_memtime s[98:99]')
    A('s_waitcnt lgkmcnt(0)')
    def srd(d, lo, n):
        A(f's_mov_b32 s{d}, s{lo}\ns_mov_b32 s{d+1}, s{lo+1}\ns_mov_b32 s{d+2}, {n}\ns_mov_b32 s{d+3}, 0x20000')
    srd(20, 70, 4194304)
    A.vmop(f'buffer_load_dwordx4 v124, {WQ}, {t1} offen nt lds', 'wq')
    A(f's_add_u32 {t1}, {t1}, 32768\ns_add_u32 m0, m0, 1024')
    srd(40, 64, 4096)
    A.vmop(f'buffer_load_dwordx4 v124, {WQ}, {t1} offen nt lds', 'wq')
    srd(8, 86, WS_REC)
    if wsoff: A(f's_add_u32 s8, s8, {wsoff}\ns_addc_u32 s9, s9, 0')
    A.vmop(f'buffer_load_dword v68, {vXO}, {XX}, 0 offen', 'x0')
    A(f's_lshr_b32 {t2}, {sW}, 1\ns_lshl_b32 {t2}, {t2}, 10\nv_lshlrev_b32 {vTMP}, 4, {vL}')
    A.vmop(f'buffer_load_dwordx4 v[72:75], {vTMP}, {XX}, {t2} offen', 'x0')
    A(f's_mov_b32 {t2}, {EPOCH}')
    A.vmop(f'buffer_load_dword v69, off, {WS}, {t2} sc1', 'ep')
    srd(12, 66, 0x8000000)
    def piece(p):
        t, q = (p % 16) // 4, p % 4
        if q == 0:
            A(f's_add_u32 {g1}, {sKV}, {t*32768}\ns_add_u32 m0, {sRING}, {((p//4)&1)*4096}')
        src = 'v116'
        A.vmop(f'buffer_load_dwordx4 {src}, {KK if p < 16 else VV}, {g1} offen offset:{q*1024} nt lds', f'p{p}')
    for p in range(burst): piece(p)
    srd(16, 68, 0x8000000)
    if ts: A('s_mov_b32 s96, s86\ns_mov_b32 s97, s87')

    srd(24, 72, 4194304); srd(44, 82, 4096); srd(48, 84, 256)
    srd(28, 76, 1835008); srd(32, 78, 1835008); srd(36, 80, 1835008)
    A(f's_mul_i32 {t1}, {sG}, 3\ns_add_u32 {t1}, {t1}, 4\ns_lshl_b32 {t2}, {sG}, 2\ns_cmp_ge_u32 {sG}, 4\ns_cselect_b32 {g2}, {t1}, {t2}\ns_add_u32 {g2}, {g2}, {sHI}\ns_min_u32 {g2}, {g2}, 27')
    if tlb:
        A(f's_lshl_b32 {t1}, {t0}, 17')
        A.vmop(f'buffer_load_dword v96, off, {WO}, {t1} nt', 'tlb')
        A(f's_mul_i32 {t1}, {sLO}, {64*3584}')
        A.vmop(f'buffer_load_dword v96, off, {WG}, {t1} nt', 'tlb')
        A.vmop(f'buffer_load_dword v96, off, {WU}, {t1} nt', 'tlb')
        A(f's_lshl_b32 {t1}, {g2}, 16')
        A.vmop(f'buffer_load_dword v96, off, {WD}, {t1} nt', 'tlb')
        A(f'v_lshlrev_b32 {vTMP}, 19, v120')
        A.vmop(f'buffer_load_dword v96, {vTMP}, {WS}, 0 offen nt', 'tlb')
        A.vmop(f'buffer_load_dword v96, off, {VV}, {sKV} nt', 'tlb')
    A(f's_getreg_b32 {t1}, hwreg(HW_REG_XCC_ID)\ns_and_b32 s64, {t1}, 15')
    A(f's_mov_b32 s88, 0x000f000f\ns_mov_b32 s89, 0x000f000f')
    A(f's_mov_b32 {sGBASE}, s101')
    A(f's_lshl_b32 {t1}, {sHI}, 13\ns_add_u32 {t1}, {t1}, {sGBASE}')
    A(f's_add_u32 {sQg}, {t1}, {bQP + LS}\ns_add_u32 {sOg}, {t1}, {bOP}\ns_add_u32 {sGg}, {t1}, {bGP}')
    A(f's_lshl_b32 {t1}, {g3}, 2\ns_add_u32 {t1}, {t1}, {sHI}\ns_lshl_b32 {t1}, {t1}, 6\ns_add_u32 {t1}, {t1}, {sGBASE}\ns_add_u32 {sQSg}, {t1}, {bQS + LS}')
    A(f's_lshl_b32 {sMLst}, {sLO}, 3\ns_add_u32 {sMLst}, {sMLst}, {t1}\ns_add_u32 {sMLst}, {sMLst}, {bML}')
    A(f's_lshl_b32 {t2}, {g3}, 13\ns_lshl_b32 {t1}, {sLO}, 10\ns_add_u32 {t2}, {t2}, {t1}\ns_lshl_b32 {t1}, {sHI}, 8\ns_add_u32 {t2}, {t2}, {t1}\ns_add_u32 {t2}, {t2}, {sGBASE}\ns_add_u32 {sOPst}, {t2}, {bOP}')
    A(f's_lshl_b32 {t1}, {sHI}, 2\ns_add_u32 {t1}, {t1}, {g3}\ns_lshl_b32 {t1}, {t1}, 6\ns_add_u32 {t1}, {t1}, {sGBASE}\ns_add_u32 {sMLg}, {t1}, {bML}\ns_add_u32 {sGSg}, {t1}, {bGS}')
    A(f's_lshl_b32 {t1}, {sLO}, 14\ns_add_u32 {sXg}, {t1}, {oXA}')
    A(f's_lshl_b32 {t1}, {t0}, 9\ns_add_u32 {sXst}, {sXg}, {t1}')
    A(f's_lshl_b32 {t1}, {sHI}, 11\ns_add_u32 {t1}, {t1}, {sGBASE}\ns_add_u32 {sGCg}, {t1}, {bGC}')
    A(f's_lshl_b32 {t3}, {sHI}, 8\ns_lshl_b32 {t1}, {sLO}, 3\ns_add_u32 {t3}, {t3}, {t1}\ns_add_u32 {t3}, {t3}, {sGBASE}\ns_add_u32 {sQSst}, {t3}, {bQS + LS}\ns_add_u32 {sGSst}, {t3}, {bGS}')
    A(f's_lshl_b32 s101, {t0}, 14\ns_add_u32 s101, s101, {TQP}')
    A(f's_lshl_b32 {t1}, {sLO}, 10\ns_lshl_b32 {t2}, {sHI}, 8\ns_add_u32 {t1}, {t1}, {t2}\ns_lshl_b32 {t2}, {g3}, 6\ns_add_u32 {t3}, {t1}, {t2}')
    A(f's_add_u32 {t1}, {sGBASE}, {t3}\ns_add_u32 {t1}, {t1}, {LS}\ns_mov_b32 {t2}, {OOB}')
    A(f's_cmp_ge_u32 {sW}, 4\ns_cselect_b32 {g0}, 0, 5')
    def st_off(dst, shift):
        A(f'v_lshlrev_b32 {vTMP}, {shift}, v120\nv_add_u32 {vTMP}, {t1}, {vTMP}\nv_mov_b32 {vTMP2}, {t2}\nv_cmp_eq_u32 vcc, 4, v120'); sel(vTMP, vTMP, vTMP2)
        A(f'v_lshl_add_u32 {vTMP}, v121, 4, {vTMP}\nv_cmp_gt_u32 vcc, {g0}, v120'); sel(dst, 'v118', vTMP)
    st_off(vQst, 13)
    A(f's_lshl_b32 {t3}, {t3}, 1\ns_lshl_b32 {t1}, {g3}, 6\ns_sub_u32 {t3}, {t3}, {t1}\ns_lshl_b32 {t1}, {sG}, 16\ns_add_u32 {t1}, {t1}, {t3}\ns_add_u32 {t1}, {t1}, {TQP}\ns_lshl_b32 {t2}, {sG}, 14\ns_add_u32 {t2}, {t2}, {t3}\ns_add_u32 {t2}, {t2}, {TQC}')
    st_off('v109', 14)
    A(f'v_lshlrev_b32 {vTMP}, 6, v122\nv_add_u32 {vTMP2}, 4, {vTMP}\nv_cmp_gt_u32 vcc, 16, {vL}'); sel(vTMP, vTMP, vTMP2)
    A(f'v_and_b32 {vTMP2}, {0x1ec*4}, {vT4}\nv_cmp_eq_u32 vcc, {256*4}, {vTMP2}'); sel(vSSt, 'v118', vTMP)
    A(f'v_lshlrev_b32 v115, 2, {vT4}')
    A(f's_lshl_b32 {t1}, {sG}, 2\ns_add_u32 {t1}, {t1}, {g3}\ns_lshl_b32 {t1}, {t1}, 14\ns_lshl_b32 {t2}, {sLO}, 11\ns_add_u32 {t1}, {t1}, {t2}\ns_lshl_b32 {t2}, {sHI}, 9\ns_add_u32 {t1}, {t1}, {t2}\ns_add_u32 {t1}, {t1}, {TOP}')
    A(f'v_and_b32 {vTMP}, 2, {vL}\nv_lshlrev_b32 {vTMP}, 7, {vTMP}\nv_lshrrev_b32 {vTMP2}, 2, {vL}\nv_lshl_add_u32 {vTMP}, {vTMP2}, 4, {vTMP}\nv_add_u32 {vTMP}, {t1}, {vTMP}\nv_and_b32 {vTMP2}, 1, {vL}\nv_cmp_eq_u32 vcc, 0, {vTMP2}'); sel('v110', 'v118', vTMP)
    A(f's_mov_b32 {sLAY}, 0\ns_mov_b32 {sTO}, 400000\ns_mov_b32 {sFAST}, 0\ns_mov_b32 {sCNT}, 0\ns_mov_b32 {sGOK}, 0\ns_mov_b32 {sLIDX}, 0')
    A(f's_lshl_b32 {t3}, {g3}, 6\ns_lshl_b32 {t1}, {sLO}, 10\ns_add_u32 {t1}, {t1}, {sGg}\ns_add_u32 {t1}, {t1}, {t3}\ns_lshl_b32 {t2}, {sLO}, 8\ns_add_u32 {t2}, {t2}, {sGCg}\ns_add_u32 {t2}, {t2}, {t3}')
    st_off(vGst, 8)
    A(f'v_and_b32 {vTMP}, 7, {vL}\nv_lshlrev_b32 {vSt8}, 3, {vTMP}\nv_lshlrev_b32 {vL4}, 2, {vL}\nv_lshlrev_b32 {vML2}, 3, v121')
    A(f'v_cmp_eq_u32 vcc, 0, {vL}'); sel(vMLst, 'v118', '0')
    A(f's_lshl_b32 {t1}, {g3}, 8\nv_lshlrev_b32 {vTMP}, 4, v120\nv_lshl_add_u32 {vG1}, v121, 10, {vTMP}\nv_add_u32 {vG1}, {t1}, {vG1}')
    A(f's_lshl_b32 {t1}, {sW}, 6\nv_lshlrev_b32 {vXg}, 11, v123\nv_lshl_add_u32 {vXg}, v121, 9, {vXg}\nv_lshl_add_u32 {vXg}, v122, 4, {vXg}\nv_add_u32 {vXg}, {t1}, {vXg}')
    A(f's_lshr_b32 {t1}, {sW}, 1\ns_mul_i32 {t1}, {t1}, 192\ns_and_b32 {t2}, {sW}, 1\ns_lshl_b32 {t2}, {t2}, 6\ns_add_u32 {t1}, {t1}, {t2}\ns_add_u32 {t1}, {t1}, {L_XS}\nv_add_u32 {vXW}, {t1}, v117')
    A(f's_mul_i32 {t1}, {g3}, 320\ns_add_u32 {t1}, {t1}, {L_QS}\nv_lshl_add_u32 {vQW}, v121, 2, {vTMP}\nv_add_u32 {vQW}, {t1}, {vQW}')
    A(f's_mul_i32 {t1}, {g3}, 192\ns_add_u32 {t1}, {t1}, {L_HS}\nv_lshlrev_b32 {vHW}, 3, v120\nv_lshl_add_u32 {vHW}, v121, 1, {vHW}\nv_add_u32 {vHW}, {t1}, {vHW}')
    A(f'v_mul_u32_u24 {vBR320}, 320, v122\nv_lshl_add_u32 {vBR320}, v121, 4, {vBR320}\nv_add_u32 {vBR320}, {L_QS}, {vBR320}')
    A(f'v_mul_u32_u24 {vBR192}, 192, v122\nv_lshl_add_u32 {vBR192}, v121, 4, {vBR192}\nv_add_u32 {vBR192}, {L_HS}, {vBR192}')
    A(f'v_min_u32 {vTMP2}, 4, v120\nv_mul_u32_u24 {vXR}, 192, {vTMP2}\nv_lshl_add_u32 {vXR}, v121, 4, {vXR}\nv_add_u32 {vXR}, {L_XS}, {vXR}')
    A(f's_lshl_b32 {t1}, {g3}, 5\nv_lshlrev_b32 {vTMP2}, 7, v120\nv_lshl_add_u32 {vTMP2}, v121, 3, {vTMP2}\nv_add_u32 {vTMP2}, {t1}, {vTMP2}\nv_cmp_gt_u32 vcc, 4, v120'); sel(vXst, 'v118', vTMP2)
    A(f'v_lshlrev_b32 {vTMP2}, 4, {vL}\nv_add_u32 {vROW}, {sRING}, {vTMP2}')
    A(f's_lshr_b32 {t1}, {g3}, 1\ns_lshl_b32 {t1}, {t1}, 10\ns_and_b32 {t2}, {g3}, 1\ns_lshl_b32 {t2}, {t2}, 3\ns_add_u32 {t1}, {t1}, {t2}\nv_add_u32 {vROR}, {t1}, {vTMP2}')
    A(f's_lshl_b32 {t1}, {sW}, 3\ns_add_u32 {t1}, {t1}, {L_RM}\nv_lshlrev_b32 {vRMW}, 6, v122\nv_add_u32 {vRMW}, {t1}, {vRMW}')
    A(f's_lshl_b32 {t1}, {g3}, 6\ns_add_u32 {t1}, {t1}, {L_RM}\nv_add_u32 {vRMR}, {t1}, {vSt8}')
    A(f'v_lshl_add_u32 v125, v121, 3, v123')
    A(f'v_xor_b32 {vTMP}, {g3}, v123\nv_lshlrev_b32 {vTMP}, 6, {vTMP}\nv_lshl_add_u32 {vTMP}, v122, 4, {vTMP}\nv_lshl_add_u32 {vWQr}, v125, 8, {vTMP}\nv_add_u32 {vWQr}, {L_WQ}, {vWQr}')
    A(f'v_lshrrev_b32 v119, 1, v123\nv_and_b32 v127, 1, v121\nv_lshlrev_b32 {vTMP}, 1, v127')
    A(f'v_xor_b32 {vTMP}, {g3}, {vTMP}\nv_lshlrev_b32 {vTMP}, 5, {vTMP}\nv_lshl_add_u32 {vTMP}, v122, 3, {vTMP}\nv_lshl_add_u32 {vWr}, v125, 7, {vTMP}\nv_add_u32 {vWr}, {L_WG}, {vWr}')
    A(f'v_and_b32 v126, 1, v123\nv_lshlrev_b32 {vTMP}, 1, v126\nv_xor_b32 {vTMP}, {g3}, {vTMP}\nv_lshlrev_b32 {vTMP}, 5, {vTMP}\nv_lshl_add_u32 {vTMP}, v122, 3, {vTMP}')
    A(f'v_lshl_add_u32 {vTMP2}, v121, 2, v119\nv_lshl_add_u32 {vTMP2}, v126, 6, {vTMP2}\nv_lshl_add_u32 {vWOr}, {vTMP2}, 7, {vTMP}\nv_add_u32 {vWOr}, {L_WO}, {vWOr}')
    A(f'v_and_b32 v125, 1, v120\nv_mov_b32 {vTMP}, 0xffff\nv_mov_b32 {vTMP2}, 0xffff0000\nv_cmp_eq_u32 vcc, 1, v125'); sel('v119', vTMP, vTMP2)
    A(f'v_cmp_gt_u32 vcc, 2, v122'); sel('v119', '0', 'v119')
    for i in range(4):
        A(f'v_cmp_eq_u32 vcc, {i}, v123'); sel(f'v{MASK+i}', '0', 'v119'); A(f'v_and_b32 v{32+i}, 0x3f803f80, v{MASK+i}')
    A(f'v_mov_b32 {vTMP}, 0x3f80\nv_mov_b32 {vTMP2}, 0x3f800000\nv_cmp_eq_u32 vcc, 1, v126'); sel('v119', vTMP, vTMP2)
    A(f'v_cmp_gt_u32 vcc, 2, v122'); sel('v119', '0', 'v119')
    A(f'v_lshrrev_b32 {vTMP}, 1, v123\nv_lshl_add_u32 {vTMP}, v125, 1, {vTMP}')
    for i in range(4):
        A(f'v_cmp_eq_u32 vcc, {i}, {vTMP}'); sel(f'v{40+i}', '0', 'v119')
    A('v_mov_b32 v44, 0x3f803f80\nv_mov_b32 v45, 0x3f803f80')
    A(f'v_and_b32 {vTMP2}, 7, {vL}\nv_lshrrev_b32 v119, 3, {vL}')
    A(f's_lshr_b32 {t1}, {sW}, 2\ns_lshl_b32 {t1}, {t1}, 2\nv_xor_b32 {vTMP}, {t1}, {vTMP2}\nv_lshlrev_b32 {vTMP}, 4, {vTMP}\nv_lshl_add_u32 v124, v119, 10, {vTMP}')
    A(f's_and_b32 {t1}, {sW}, 1\ns_lshl_b32 {t1}, {t1}, 2\nv_xor_b32 {vTMP}, {t1}, {vTMP2}\nv_lshlrev_b32 {vTMP}, 4, {vTMP}')
    A(f'v_lshl_add_u32 v127, v119, 10, {vTMP}\nv_mul_u32_u24 v126, 3584, v119\nv_add_u32 v126, v126, {vTMP}')
    A(f's_cmp_ge_u32 {sG}, 4\ns_cselect_b32 {t2}, 3, 4\ns_cmp_lt_u32 {sHI}, {t2}\ns_cselect_b32 {t2}, 0, {OOB}\nv_add_u32 v126, {t2}, v126\nv_add_u32 v127, {t2}, v127')
    A(f'v_lshlrev_b32 {vTMP}, 1, v123\nv_xor_b32 {vTMP}, v121, {vTMP}\nv_lshlrev_b32 {vTMP}, 5, {vTMP}\nv_lshl_add_u32 {vTMP}, v122, 3, {vTMP}\nv_lshl_add_u32 {vTMP}, v123, 8, {vTMP}\nv_add_u32 v122, {sRING}, {vTMP}\nv_xor_b32 v123, 128, v122')
    A(f'v_and_b32 {vTMP}, 3, v120\nv_lshlrev_b32 {vTMP}, 6, {vTMP}\nv_lshl_add_u32 {vTMP}, v121, 4, {vTMP}\nv_lshl_add_u32 {vTMP}, v120, 8, {vTMP}\nv_add_u32 v118, {sRING}, {vTMP}')
    for j in range(1, 4): A(f'v_xor_b32 v{118+j}, {64*j}, v118')
    A(f'v_and_b32 {vTMP}, 124, {vL4}\nv_add_u32 {vTMP}, {L_XS+4*192}, {vTMP}\nds_write_b32 {vTMP}, v44')
    A(f'v_mov_b32 {vTMP}, {L_FL}\nv_mov_b32 {vTMP2}, 0\nds_write_b32 {vTMP}, {vTMP2}')

    def read_k(i):
        for j in range(4): A(f'ds_read_b128 a[{16*i+4*j}:{16*i+4*j+3}], v{118+j} offset:{(i&1)*4096}')
    def read_v(p):
        i = p - 16
        for hf in range(2):
            r = 64 + 4 * i + 2 * hf
            A(f'ds_read_b64_tr_b16 a[{r}:{r+1}], v{122+hf} offset:{((p//4)&1)*4096 + (p%4)*1024}')
    if not late47:
        for p in range(burst, 8): piece(p)
    if diag: xstamp(40)
    A.wait_vm('ep')
    if diag: xstamp(41)
    A(f'v_and_b32 v113, 0xffff0000, v68\nv_lshlrev_b32 v112, 16, v68')
    A(f'v_readfirstlane_b32 {sTAG}, v69\ns_add_u32 {sTAG}, {sTAG}, 1')
    A('v_dot2_f32_bf16 v78, v72, v44, 0\nv_dot2_f32_bf16 v79, v72, v72, 0')
    for k in range(73, 76): A(f'v_dot2_f32_bf16 v78, v{k}, v44, v78\nv_dot2_f32_bf16 v79, v{k}, v{k}, v79')
    for m in ('quad_perm:[1,0,3,2]', 'quad_perm:[2,3,0,1]', 'row_half_mirror', 'row_mirror'):
        A(f'v_add_f32_dpp v78, v78, v78 {m} {DPP}\nv_add_f32_dpp v79, v79, v79 {m} {DPP}')
    for sw in ('v_permlane16_swap_b32', 'v_permlane32_swap_b32'):
        A(f'v_mov_b32 v76, v78\nv_mov_b32 v77, v79\n{sw} v78, v76\n{sw} v79, v77\nv_add_f32 v78, v78, v76\nv_add_f32 v79, v79, v77')
    c2 = QSCALE * QSCALE
    A(f'v_mov_b32 v75, {f32(1e-5/c2)}\nv_mul_f32 v74, v78, v78\nv_fmac_f32 v75, {f32(1/(512*c2))}, v79\nv_fmac_f32 v75, {f32(-1/(512*512*c2))}, v74\nv_max_f32 v75, {f32(1e-5/c2)}, v75\nv_rsq_f32 v74, v75')
    A(f'v_mul_f32 v78, {f32(-1/512)}, v78\nv_add_f32 v72, v112, v78\nv_add_f32 v73, v113, v78\nv_mul_f32 v72, v72, v74\nv_mul_f32 v73, v73, v74\nv_cvt_pk_bf16_f32 v72, v72, v73\nds_write_b32 {vXW}, v72')
    if late47:
        for p in range(burst, 8): piece(p)
    if diag: xstamp(42)
    A.wait_vm('wq')
    if diag: xstamp(43)
    if bar_after_k0:
        A.wait_vm('p3')
        read_k(0)
        A('s_waitcnt lgkmcnt(0)')
        for p in range(8, 12): piece(p)
    A('s_waitcnt lgkmcnt(0)')
    if 'B' not in abl: A('s_barrier')
    stamp()

    def read_wq():
        for tl in range(2):
            for j in range(2):
                for u in range(2):
                    r = 48 + 8 * tl + 4 * j + 2 * u
                    A(f'ds_read_b64_tr_b16 v[{r}:{r+1}], {vWQr} offset:{8*tl+8192*j+1024*u}')
    def read_gu():
        for tl in range(2):
            for j in range(2):
                for u in range(2):
                    r = 48 + 8 * tl + 4 * j + 2 * u
                    A(f'ds_read_b64_tr_b16 v[{r}:{r+1}], {vWr} offset:{8192*tl+4096*j+512*u}')
    def read_wd():
        for j in range(2):
            for u in range(2):
                A(f'ds_read_b64_tr_b16 v[{48+4*j+2*u}:{49+4*j+2*u}], {vWr} offset:{16384+4096*j+512*u}')
    def read_wo():
        for j in range(4):
            for u in range(2):
                A(f'ds_read_b64_tr_b16 v[{48+4*j+2*u}:{49+4*j+2*u}], {vWOr} offset:{2048*j+256*u}')
    def matvec(vst, mode, late_w=None, soff='0'):
        A(f'ds_read_b128 v[80:83], {vXR}\nds_read_b128 v[84:87], {vXR} offset:64')
        if late_w: late_w()
        A('s_waitcnt lgkmcnt(0)' if late_w else 's_waitcnt lgkmcnt(1)')
        A(f'{M16} v[96:99], v[48:51], v[80:83], 0\n{M16} v[104:107], v[56:59], v[80:83], 0')
        if not late_w: A('s_waitcnt lgkmcnt(0)')
        A(f'{M16} v[96:99], v[52:55], v[84:87], v[96:99]\n{M16} v[104:107], v[60:63], v[84:87], v[104:107]')
        if mode == 'plain':
            A(f's_cmp_eq_u32 {sFAST}, 1')
            A('v_cvt_pk_bf16_f32 v96, v96, v97\nv_cvt_pk_bf16_f32 v97, v98, v99\nv_cvt_pk_bf16_f32 v98, v104, v105\nv_cvt_pk_bf16_f32 v99, v106, v107')
            lstore(f'buffer_store_dwordx4 v[96:99], {vst}, {WS}, {soff} offen', cmp=False)
            return
        A(f'v_mov_b32 v102, {sTAG}\nv_mov_b32 v103, s64')
        A(f'v_cvt_pk_bf16_f32 v100, v96, v97\nv_cvt_pk_bf16_f32 v101, v98, v99\nv_cvt_pk_bf16_f32 v104, v104, v105\nv_cvt_pk_bf16_f32 v105, v106, v107')
        A(f'v_mov_b32 v106, {sTAG}\nv_mov_b32 v107, s64')
        if mode == 'q0':
            A.vmop(f'buffer_store_dwordx4 v[100:103], {vst}, {WS}, 0 offen', 'st')
            A.vmop(f'buffer_store_dwordx4 v[104:107], {vst}, {WS}, 0 offen offset:256', 'st')
        else:
            lstore(f'buffer_store_dwordx4 v[100:103], {vst}, {WS}, 0 offen\nbuffer_store_dwordx4 v[104:107], {vst}, {WS}, 0 offen offset:256')
    def slice_stats(sst):
        l = lab('st')
        A(f's_cmp_lg_u32 {sW}, 4\ns_cbranch_scc1 {l}')
        A(f'ds_read_b128 v[80:83], {vXR}\nds_read_b128 v[84:87], {vXR} offset:64\ns_waitcnt lgkmcnt(1)')
        A(f'{M16} v[104:107], v[80:83], v[80:83], 0\ns_waitcnt lgkmcnt(0)\n{M16} v[104:107], v[84:87], v[84:87], v[104:107]')
        def pick():
            A('v_cndmask_b32 v104, v104, v105, s[80:81]\nv_cndmask_b32 v106, v106, v107, s[80:81]\nv_cndmask_b32 v104, v104, v106, s[82:83]')
        A('s_mov_b64 s[80:81], 10\ns_mov_b64 s[82:83], 12')
        A(f's_cmp_eq_u32 {sFAST}, 1')
        pick()
        lstore(f'buffer_store_dword v104, {vSSt}, {WS}, {sst} offen', cmp=False)
        A.vm.pop()
        A(f'{l}:')

    def issue_g1(dst, voff, sbase, tag, step=4096):
        A.vmop(f'buffer_load_dwordx4 v[{dst}:{dst+3}], {voff}, {WS}, {sbase} offen sc1', tag)
        if step >= 4096:
            A(f's_add_u32 {t1}, {sbase}, {step}')
            A.vmop(f'buffer_load_dwordx4 v[{dst+4}:{dst+7}], {voff}, {WS}, {t1} offen sc1', tag)
        else:
            A.vmop(f'buffer_load_dwordx4 v[{dst+4}:{dst+7}], {voff}, {WS}, {sbase} offen offset:{step} sc1', tag)
    def check_empty(regs):
        regs = list(regs)
        A(f'v_max3_u32 {vTMP}, v{regs[0]}, v{regs[1]}, v{regs[2]}'); rest = regs[3:]
        if len(rest) >= 5:
            A(f'v_max3_u32 {vTMP2}, v{rest[0]}, v{rest[1]}, v{rest[2]}'); rest = rest[3:]
            tg = 0
            while len(rest) >= 2:
                d = (vTMP, vTMP2)[tg]; A(f'v_max3_u32 {d}, {d}, v{rest[0]}, v{rest[1]}'); rest = rest[2:]; tg ^= 1
            if rest: A(f'v_max3_u32 {vTMP}, {vTMP}, {vTMP2}, v{rest[0]}')
            else: A(f'v_max_u32 {vTMP}, {vTMP}, {vTMP2}')
        else:
            while len(rest) >= 2:
                A(f'v_max3_u32 {vTMP}, {vTMP}, v{rest[0]}, v{rest[1]}'); rest = rest[2:]
            if rest: A(f'v_max_u32 {vTMP}, {vTMP}, v{rest[0]}')
        A(f'v_cmp_eq_u32 vcc, -1, {vTMP}')
    def poll(issue, regs, spec=None):
        r, d = lab('retry'), lab('got')
        A(f'{r}:')
        issue()
        A.wait_vm()
        if spec: spec()
        check_empty(regs)
        tl = lab('again')
        A(f's_cbranch_vccnz {tl}\n{d}:')
        tails.append(f'{tl}:\n' + (f's_sleep {backoff}\n' if backoff else '') + f's_sub_u32 {sTO}, {sTO}, 1\ns_cbranch_scc0 {r}\ns_mov_b32 {sTO}, 0\ns_branch {d}')
    def issue_q(first):
        if not first:
            issue_g1(64, vG1, sQg, 'q')
            A.vmop(f'buffer_load_dwordx2 v[72:73], {vSt8}, {WS}, {sQSg} offen sc1', 'q')
            return
        issue_tagged(f's_mov_b32 {t1}, s101')
    def issue_tagged(base, dst=80, voff=None, kstep=8192, hstep=256):
        if voff is None:
            A(f'v_and_b32 {vTMP2}, 0xf0, {vG1}\nv_lshlrev_b32 {vTMP}, 1, {vG1}\nv_sub_u32 {vTMP}, {vTMP}, {vTMP2}')
        else: A(voff)
        A(base + f'\ns_add_u32 {t2}, {t1}, {kstep}')
        for k in range(2):
            for hh in range(2):
                r = dst[2 * k + hh] if isinstance(dst, tuple) else dst + 8 * k + 4 * hh
                A.vmop(f'buffer_load_dwordx4 v[{r}:{r+3}], {vTMP}, {WS}, {(t1, t2)[k]} offen offset:{hstep*hh} sc1', 'q')
    def issue_o0():
        issue_tagged(f's_lshl_b32 {t1}, {sG}, 2\ns_add_u32 {t1}, {t1}, {sHI}\ns_lshl_b32 {t0}, {t1}, 2\ns_lshl_b32 {t1}, {t1}, 14\ns_add_u32 {t1}, {t1}, {TOP}', o0dst[0])
        A(f's_add_u32 {t0}, {t0}, {sW}\ns_lshl_b32 {t0}, {t0}, 7\ns_add_u32 {t0}, {t0}, {TML}\nv_lshlrev_b32 {vTMP2}, 1, {vML2}')
        m_ = 64 if o0dst[0] == 80 else 48
        A.vmop(f'buffer_load_dwordx4 v[{m_}:{m_+3}], {vTMP2}, {WS}, {t0} offen sc1', 'q')
        A.vmop(f'buffer_load_dwordx4 v[{m_+4}:{m_+7}], {vTMP2}, {WS}, {t0} offen offset:64 sc1', 'q')
    o0dst = [80]
    def check_words(words, sval):
        w = list(words)
        A(f'v_xor_b32 {vTMP}, {sval}, v{w[0]}')
        for x in w[1:]: A(f'v_xor_b32 {vTMP2}, {sval}, v{x}\nv_or_b32 {vTMP}, {vTMP}, {vTMP2}')
        A(f'v_cmp_ne_u32 vcc, 0, {vTMP}')
    def check_tags(words=(82, 86, 90, 94)): check_words(words, sTAG)
    def tagged_sum(selbase=32, src=80, acc=96, selk=0):
        for n_, (k, hh) in enumerate(((0, 0), (0, 1), (1, 0), (1, 1))):
            r = src[2 * k + hh] if isinstance(src, tuple) else src + 8 * k + 4 * hh
            sb = selbase + selk * k + 2 * hh
            c = '0' if n_ == 0 else f'v[{acc}:{acc+3}]'
            A(f'v_mfma_f32_16x16x16_bf16 v[{acc}:{acc+3}], v[{sb}:{sb+1}], v[{r}:{r+1}], {c}')
    def q0_finish():
        tagged_sum()
        check_words((83, 87, 91, 95), 's64')
        A(f's_cmp_eq_u64 vcc, 0\ns_cselect_b32 {sGOK}, 1, 2')
        A(f'v_cvt_pk_bf16_f32 v96, v96, v97\nds_write_b32 {vQW}, v96')
    def tagged_poll(issue, words=(82, 86, 90, 94), spec=None, back=0):
        rq, gq = lab('rq'), lab('gq')
        A(f'{rq}:')
        issue(); A.wait_vm()
        if spec: spec()
        check_tags(words)
        A(f's_cbranch_vccz {gq}')
        if back: A(f's_sleep {back}')
        A(f's_sub_u32 {sTO}, {sTO}, 1\ns_cbranch_scc0 {rq}\ns_mov_b32 {sTO}, 0\n{gq}:')
    CQ = (48, 52, 56, 60)
    def issue_csq(): issue_tagged(f's_lshl_b32 {t1}, {sG}, 14\ns_add_u32 {t1}, {t1}, {TQC}', CQ)
    def finish_csq():
        ok_ = lab('cq')
        check_tags(tuple(r + 2 for r in CQ))
        A(f's_cbranch_vccz {ok_}')
        tagged_poll(issue_csq, tuple(r + 2 for r in CQ))
        A(f'{ok_}:')
        tagged_sum(32, CQ, 64)
        A(f's_mov_b32 {t2}, {f32(1/512)}\nv_pk_mul_f32 {CSQ}, v[64:65], s[56:57] op_sel_hi:[1,0]')
    QREGS = list(range(64, 74)); QREGS1 = QREGS + list(range(80, 88))
    def ln_spec(selop, first):
        def f():
            A(f'{M16} v[96:99], {selop}, v[64:67], 0\n{M16} v[96:99], {selop}, v[68:71], v[96:99]')
            if first:
                A(f'{M16} v[100:103], {selop}, v[80:83], 0\n{M16} v[100:103], {selop}, v[84:87], v[100:103]')
            A(f'v_add_f32_dpp v78, v72, v72 quad_perm:[1,0,3,2] {DPP}\nv_add_f32_dpp v79, v73, v73 quad_perm:[1,0,3,2] {DPP}')
        return f
    def ln_finish(cs, scale, first):
        for m in ('quad_perm:[2,3,0,1]', 'row_half_mirror'):
            A(f'v_add_f32_dpp v78, v78, v78 {m} {DPP}\nv_add_f32_dpp v79, v79, v79 {m} {DPP}')
            if m.startswith('quad'): A(f'v_mov_b32 v75, {f32(1e-5/(scale*scale))}')
        c2 = scale * scale
        A(f'v_mul_f32 v74, v78, v78\nv_fmac_f32 v75, {f32(1/(512*c2))}, v79')
        if first:
            A(f's_mov_b32 {t2}, {f32(1/512)}\nv_pk_mul_f32 {cs}, v[100:101], s[56:57] op_sel_hi:[1,0]')
        A(f'v_fmac_f32 v75, {f32(-1/(512*512*c2))}, v74\nv_max_f32 v75, {f32(1e-5/c2)}, v75\nv_rsq_f32 v74, v75')
        A(f'v_pk_fma_f32 v[96:97], v[78:79], {cs}, v[96:97] op_sel_hi:[0,1,1] neg_lo:[1,0,0] neg_hi:[1,0,0]')
        A(f'v_pk_mul_f32 v[96:97], v[96:97], v[74:75] op_sel_hi:[1,0]')
    def q_finish(first):
        ln_finish(CSQ, QSCALE, first)
        A(f'v_cvt_pk_bf16_f32 v96, v96, v97\nds_write_b32 {vQW}, v96')

    save = list(A.vm)
    with lowwaves():
        read_wq()
        A('s_waitcnt lgkmcnt(0)')
        if 'Q' not in abl: matvec('v109', 'q0')
    stamp()

    def issue_wo():
        A(f's_lshl_b32 {t1}, {sG}, 9\ns_lshl_b32 {t2}, {sHI}, 7\ns_add_u32 {t1}, {t1}, {t2}\ns_lshl_b32 {t2}, {sW}, 4\ns_add_u32 {t1}, {t1}, {t2}\ns_lshl_b32 {t1}, {t1}, 10\ns_lshl_b32 {t2}, {sLO}, 7\ns_add_u32 {t1}, {t1}, {t2}')
        A(f's_lshl_b32 {t2}, {sW}, 11\ns_add_u32 m0, {t2}, {L_WO}')
        A.vmop(f'buffer_load_dwordx4 v124, {WO}, {t1} offen nt lds', 'wo')
        A(f's_add_u32 {t1}, {t1}, 8192\ns_add_u32 m0, m0, 1024')
        A.vmop(f'buffer_load_dwordx4 v124, {WO}, {t1} offen nt lds', 'wo')

    def issue_ffn(dw=0, track=False, parts='gud'):
        vm_ = (lambda x: A.vmop(x, 'ffn')) if track else A
        A(f's_add_u32 {t0}, {sW}, {dw}')
        if 'g' in parts:
            A(f's_lshl_b32 {t1}, {sLO}, 6\ns_lshl_b32 {t2}, {t0}, 3\ns_add_u32 {t1}, {t1}, {t2}\ns_mul_i32 {t1}, {t1}, 3584\ns_lshl_b32 {t2}, {g2}, 7\ns_add_u32 {t1}, {t1}, {t2}')
        A(f's_lshl_b32 {t2}, {t0}, 10\ns_add_u32 m0, {t2}, {L_WG}')
        if 'g' in parts:
            vm_(f'buffer_load_dwordx4 v126, {WG}, {t1} offen nt lds')
            A(f's_add_u32 m0, {t2}, {L_WU}')
            vm_(f'buffer_load_dwordx4 v126, {WU}, {t1} offen nt lds')
        if 'd' not in parts: return
        A(f's_lshl_b32 {t1}, {g2}, 6\ns_lshl_b32 {t3}, {t0}, 3\ns_add_u32 {t1}, {t1}, {t3}\ns_lshl_b32 {t1}, {t1}, 10\ns_lshl_b32 {t3}, {sLO}, 7\ns_add_u32 {t1}, {t1}, {t3}\ns_add_u32 m0, {t2}, {L_WD}')
        vm_(f'buffer_load_dwordx4 v127, {WD}, {t1} offen nt lds')
    wait_of = {}
    d = 6
    for p_ in range(12, 32):
        tgt = depth if p_ < deep_from else deep
        need_d = p_ - tgt
        if p_ in (12, 16, 20): need_d = max(need_d, p_ - 5)
        if need_d > d: wait_of[p_] = list(range(d + 1, need_d + 1)); d = need_d
        else: wait_of[p_] = []
    last_read = d
    def step(p):
        for d_ in wait_of[p]:
            A.wait_vm(f'p{d_}')
            if d_ < 16:
                if d_ % 4 == 3: read_k(d_ // 4); A('s_waitcnt lgkmcnt(0)')
            else:
                A('s_waitcnt lgkmcnt(0)')
                read_v(d_)
            if diag and d_ in (7, 11, 15, 19, 23): xstamp(45 + (d_ - 7) // 4)
        if ffn_at and p == ffn_at and len(tail_parts) < 3: issue_ffn(0, True, ''.join(c_ for c_ in 'gud' if c_ not in tail_parts))
        if p == wo_at: issue_wo()
        piece(p)
    hi_l, join_all, flag_l = lab('shi'), lab('sj'), lab('fl')
    def lead_in():
        if not bar_after_k0:
            A.wait_vm('p3')
            if diag: xstamp(44)
            read_k(0); A('s_waitcnt lgkmcnt(0)')
            for pp in range(8, 12): piece(pp)
    lowcode = [True]
    def steps(lo_, hi_):
        for pp in range(lo_, hi_):
            if pp == touch_o and lowcode[0]:
                n_ = len(A.vm); o0dst[0] = 48; issue_o0(); o0dst[0] = 80
                A.vm[n_:] = ['touch'] * (len(A.vm) - n_)
            if pp == csq_at and lowcode[0]:
                n_ = len(A.vm); issue_csq(); A.vm[n_:] = ['csq'] * (len(A.vm) - n_)
            step(pp)
    A(f's_cmp_ge_u32 {sW}, 4\ns_cbranch_scc1 {hi_l}')
    lead_in()
    p = 12
    while p < 32:
        if p in rides:
            skip, join = lab('noq'), lab('jn')
            saved = list(A.vm)
            A(f's_cmp_lg_u32 {sGOK}, 0\ns_cbranch_scc1 {skip}')
            issue_q(True)
            steps(p, p + 5)
            if 'q' in A.vm: A.wait_vm('q')
            check_tags()
            nq = lab('nq')
            A(f's_cbranch_vccnz {nq}')
            q0_finish()
            A(f'{nq}:\ns_branch {join}\n{skip}:')
            after_q = list(A.vm)
            A.vm = saved
            steps(p, p + 5)
            extra = len(A.vm) - len(after_q)
            assert A.vm[extra:] == after_q, (A.vm, after_q)
            A.vm = after_q if extra <= 0 else A.vm
            A(f'{join}:')
            p += 5
        else:
            steps(p, p + 1); p += 1
    saved = list(A.vm)
    def put_status():
        A(f's_lshl_b32 {t1}, {sW}, 2\ns_add_u32 {t1}, {t1}, {L_ST}\nv_mov_b32 {vTMP}, {t1}\nv_mov_b32 {vTMP2}, {sGOK}\nds_write_b32 {vTMP}, {vTMP2}')
    def get_status():
        A(f'v_mov_b32 {vTMP}, {L_ST}\nds_read_b128 v[72:75], {vTMP}\ns_waitcnt lgkmcnt(0)')
        check_words((72, 73, 74, 75), '1')
        A('s_cmp_eq_u64 vcc, 0')
    put_status()
    A(f's_branch {join_all}\n{hi_l}:')
    A.vm = save; lowcode[0] = False
    lead_in()
    steps(12, 32)
    saved = list(A.vm)
    A(f'{join_all}:')
    stamp()
    A('s_waitcnt lgkmcnt(0)\ns_barrier')
    get_status()
    okq = lab('okq')
    A(f's_cbranch_scc1 {okq}')
    if not abl:
        with lowwaves():
            A(f'buffer_store_dwordx4 v[100:103], v109, {WS}, 0 offen sc1\nbuffer_store_dwordx4 v[104:107], v109, {WS}, 0 offen offset:256 sc1')
            dn = lab('qdone')
            A(f's_cmp_lg_u32 {sGOK}, 0\ns_cbranch_scc1 {dn}')
            tagged_poll(lambda: issue_q(True))
            q0_finish()
            A(f'{dn}:')
        A('s_barrier')
        with lowwaves(): put_status()
        A('s_waitcnt lgkmcnt(0)\ns_barrier')
        get_status()
    A(f'{okq}:\ns_cselect_b32 {sFAST}, 1, 0')
    A.vm = saved
    def issue_ffn_any(dw):
        if dw & 1: A('v_xor_b32 v126, 64, v126\nv_xor_b32 v127, 64, v127')
        issue_ffn(dw, False, ''.join(c_ for c_ in 'gud' if c_ not in tail_parts))
        if dw & 1: A('v_xor_b32 v126, 64, v126\nv_xor_b32 v127, 64, v127')
    def first_only(f):
        def g():
            l, bk = lab('fo'), lab('bk')
            A(f's_cmp_eq_u32 {sLIDX}, 0\ns_cbranch_scc1 {l}\n{bk}:')
            keepL, A.L = A.L, []
            A(f'{l}:'); f(); A(f's_branch {bk}')
            tails.append('\n'.join(A.L)); A.L = keepL
        return g
    def variant(first, later):
        l, bk = lab('v0'), lab('vj')
        A(f's_cmp_eq_u32 {sLIDX}, 0\ns_cbranch_scc1 {l}')
        n0 = nts[0]
        later()
        A(f'{bk}:')
        n1, nts[0] = nts[0], n0
        keepL, A.L = A.L, []
        A(f'{l}:'); first(); A(f's_branch {bk}')
        tails.append('\n'.join(A.L)); A.L = keepL
        assert nts[0] == n1
    def later_only(f):
        l = lab('lo'); A(f's_cmp_eq_u32 {sLIDX}, 0\ns_cbranch_scc1 {l}'); f(); A(f'{l}:')
    def scores(bar=True):
        if bar: A('s_waitcnt lgkmcnt(0)\ns_barrier')
        for j in range(4): A(f'ds_read_b128 v[{64+4*j}:{67+4*j}], {vBR320} offset:{64*j}')
        def sel_t(t, rs):
            for r in rs: A(f'v_mov_b32_dpp v{80+r}, v{80+4*t+r} quad_perm:[0,1,2,3] row_mask:0xf bank_mask:{1<<t:#x}')
        if tmajor:
            for t in range(4):
                for j in range(4):
                    if t == 0: A(f's_waitcnt lgkmcnt({3-j})')
                    c = '0' if j == 0 else f'v[{80+4*t}:{83+4*t}]'
                    A(f'{M16} v[{80+4*t}:{83+4*t}], a[{16*t+4*j}:{16*t+4*j+3}], v[{64+4*j}:{67+4*j}], {c}')
            sel_t(1, range(4)); sel_t(2, range(4)); sel_t(3, range(4))
        else:
            for j in range(4):
                A(f's_waitcnt lgkmcnt({3-j})')
                for t in range(4):
                    c = '0' if j == 0 else f'v[{80+4*t}:{83+4*t}]'
                    A(f'{M16} v[{80+4*t}:{83+4*t}], a[{16*t+4*j}:{16*t+4*j+3}], v[{64+4*j}:{67+4*j}], {c}')
            for t in range(1, 4): sel_t(t, range(4))
        A('v_max3_f32 v84, v80, v81, v82\nv_max_f32 v84, v84, v83')
        A(f'v_max_f32_dpp v84, v84, v84 row_ror:4 {DPP}')
        A(f'v_max_f32_dpp v84, v84, v84 row_ror:8 {DPP}')
        A('v_mov_b32 v85, v84\nv_permlane16_swap_b32 v84, v85\nv_max_f32 v84, v84, v85')
        A('v_mov_b32 v85, v84\nv_permlane32_swap_b32 v84, v85\nv_max_f32 v84, v84, v85')
        A('v_pk_add_f32 v[80:81], v[80:81], v[84:85] op_sel_hi:[1,0] neg_lo:[0,1] neg_hi:[0,1]')
        A('v_pk_add_f32 v[82:83], v[82:83], v[84:85] op_sel_hi:[1,0] neg_lo:[0,1] neg_hi:[0,1]')
        for r in range(4): A(f'v_exp_f32 v{80+r}, v{80+r}')
        A('v_cvt_pk_bf16_f32 v86, v80, v81\nv_cvt_pk_bf16_f32 v87, v82, v83')
        A(f'v_mfma_f32_16x16x16_bf16 v[88:91], {ONES}, v[86:87], 0')
    def pv(i):
        for hf in range(2):
            acc = 96 + 8 * (i & 1) + 4 * hf
            c = '0' if i < 2 else f'v[{acc}:{acc+3}]'
            A(f'v_mfma_f32_4x4x4_16b_bf16 v[{acc}:{acc+3}], v[86:87], a[{64+4*i+2*hf}:{65+4*i+2*hf}], {c} cbsz:4 abid:{4*(i&3)+(i>>2)}')
    def lsum():
        A(f'v_add_f32_dpp v85, v88, v88 row_ror:4 {DPP}')
        A(f'v_add_f32_dpp v85, v85, v85 row_ror:8 {DPP}')
        A(f's_mov_b64 exec, 15\nds_write_b64 {vRMW}, v[84:85]')
        full_exec()
    def combine(tagged=False, other=None):
        for h in range(4):
            A(f'v_add_f32 v{64+2*h}, v{96+h}, v{104+h}\nv_add_f32 v{65+2*h}, v{100+h}, v{108+h}')
            if h & 1: A(f'ds_write_b128 {vROW}, v[{62+2*h}:{65+2*h}] offset:{512*(h-1)}')
        A('s_waitcnt lgkmcnt(0)\ns_barrier')
        with lowwaves(other):
            A(f'ds_read_b64 v[72:73], {vRMR}')
            for k in range(8): A(f'ds_read_b64 v[{80+2*k}:{81+2*k}], {vROR} offset:{8192*k}')
            A('s_waitcnt lgkmcnt(8)')
            A(f'v_max_f32_dpp v74, v72, v72 quad_perm:[1,0,3,2] {DPP}')
            A(f'v_max_f32_dpp v74, v74, v74 quad_perm:[2,3,0,1] {DPP}')
            A(f'v_max_f32_dpp v74, v74, v74 row_half_mirror {DPP}')
            A('v_sub_f32 v72, v72, v74\nv_exp_f32 v72, v72')
            for k in range(8): A(f'v_readlane_b32 s{80+k}, v72, {k}')
            A('v_mul_f32 v75, v73, v72\ns_waitcnt lgkmcnt(0)')
            for k in range(8):
                sp = f's[{80+(k&~1)}:{81+(k&~1)}]'
                o = 'op_sel_hi:[1,0' if (k & 1) == 0 else 'op_sel:[0,1'
                d = 64 + 2 * (k & 1)
                if k < 2: A(f'v_pk_mul_f32 v[{d}:{d+1}], v[{80+2*k}:{81+2*k}], {sp} {o}]')
                else: A(f'v_pk_fma_f32 v[{d}:{d+1}], v[{80+2*k}:{81+2*k}], {sp}, v[{d}:{d+1}] {o},{1 if (k&1)==0 else 0}]')
            A('v_pk_add_f32 v[64:65], v[64:65], v[66:67]\nv_cvt_pk_bf16_f32 v64, v64, v65')
            def lsum8():
                for m in ('quad_perm:[1,0,3,2]', 'quad_perm:[2,3,0,1]', 'row_half_mirror'):
                    A(f'v_add_f32_dpp v75, v75, v75 {m} {DPP}')
            def pub_tagged():
                A(f'v_mov_b32 v66, {sTAG}\nv_mov_b32 v67, {sTAG}\nv_mov_b32_dpp v65, v64 quad_perm:[1,1,3,3] {DPP}')
                lstore(f'buffer_store_dwordx4 v[64:67], v118, {WS}, 0 offen')
                A(f'v_mov_b32 v76, {sTAG}\nv_mov_b32 v77, {sTAG}')
                A(f's_lshl_b32 {t1}, {sG}, 2\ns_add_u32 {t1}, {t1}, {sW}\ns_lshl_b32 {t1}, {t1}, 2\ns_add_u32 {t1}, {t1}, {sHI}\ns_lshl_b32 {t1}, {t1}, 3\ns_add_u32 {t1}, {t1}, {sLO}\ns_lshl_b32 {t1}, {t1}, 4\ns_add_u32 {t1}, {t1}, {TML}')
                lsum8()
                lstore(f'buffer_store_dwordx4 v[74:77], {vMLst}, {WS}, {t1} offen')
            def pub_plain():
                lstore(f'buffer_store_dword v64, {vL4}, {WS}, {sOPst} offen')
                lsum8()
                lstore(f'buffer_store_dwordx2 v[74:75], {vMLst}, {WS}, {sMLst} offen')
            if tagged is None: variant(pub_tagged, pub_plain)
            elif tagged: pub_tagged()
            else: pub_plain()

    A('v_mov_b32 v118, v110')
    A(f's_mul_i32 {t1}, {sC}, 1312\ns_add_u32 {t1}, {t1}, {sGBASE}\ns_add_u32 {t1}, {t1}, {bGP - 7168}\ns_sub_u32 {t2}, {sXst}, 7168')
    A(f'v_add_u32 v119, {t1}, v115\nv_add_u32 v120, {t2}, v115\nv_add_u32 {vTMP}, {oXB - oXA - 512}, v120\nv_cmp_lt_u32 vcc, 31, {vL}'); sel('v120', 'v120', vTMP)
    A(f'v_add_u32 v121, 1024, v119\nv_mov_b32 {vTMP}, {OOB}\nv_cmp_lt_u32 vcc, 17, {vL}'); sel('v121', 'v121', vTMP)
    A(f'v_cmp_gt_u32 vcc, 7168, v115'); sel('v119', 'v119', vTMP); sel('v120', 'v120', vTMP); sel('v121', 'v121', vTMP)
    def clean_urgent():
        A('v_mov_b32 v92, -1\nv_mov_b32 v93, -1\nv_mov_b32 v94, -1\nv_mov_b32 v95, -1')
        A.vmop(f'buffer_store_dwordx4 v[92:95], v119, {WS}, 0 offen sc1', 'cu')
        A.vmop(f'buffer_store_dwordx4 v[92:95], v120, {WS}, 0 offen sc1', 'cu')
        A.vmop(f'buffer_store_dwordx4 v[92:95], v121, {WS}, 0 offen sc1', 'cu')
    if share: A('s_branch L_scores\nL_scored:')
    else: scores(False)
    for i in range(last_read - 15): pv(i)
    lsum()
    stamp()
    for p in range(last_read + 1, 32):
        A.wait_vm(f'p{p}')
        read_v(p)
        if p == cl_at: clean_urgent()
        if p == wt_at:
            assert cl_at <= wt_at
            issue_wo()
            if tail_parts: issue_ffn(0, True, tail_parts)
        A('s_waitcnt lgkmcnt(0)')
        pv(p - 16)
        if p == max(csq_at, last_read + 1) and not abl:
            keep_vm = list(A.vm)
            with lowwaves(): finish_csq()
            A.vm = keep_vm
    stamp()
    if abl: A('s_branch L_fin')
    def flag_addr():
        A(f's_lshl_b32 {t1}, {sLO}, 10\ns_lshl_b32 {t2}, {sG}, 7\nv_and_b32 v68, 7, {vL}\nv_and_b32 v69, 24, {vL}\nv_lshlrev_b32 v68, 7, v68\nv_lshl_add_u32 v68, v69, 10, v68\nv_add_u32 v68, {t1}, v68')
        A(f'v_and_b32 v69, 31, {vL}\nv_lshlrev_b32 v69, 10, v69\nv_add_u32 v69, {t2}, v69\nv_cmp_lt_u32 vcc, 31, {vL}'); sel('v68', 'v68', 'v69')
        A(f's_mov_b32 {t1}, {TF}')
    def clean_rest():
        l_ = lab('cr')
        A(f's_cmp_lg_u32 {sW}, 7\ns_cbranch_scc1 {l_}')
        A(f'v_mov_b32 v64, -1\nv_mov_b32 v65, -1\nv_mov_b32 v66, -1\nv_mov_b32 v67, -1\nv_lshlrev_b32 v68, 2, {vL4}')
        A(f's_add_u32 {t1}, {sXst}, {LS}\nv_add_u32 v69, {oXB - oXA - 512}, v68\nv_cmp_lt_u32 vcc, 31, {vL}'); sel('v69', 'v68', 'v69')
        A(f'buffer_store_dwordx4 v[64:67], v69, {WS}, {t1} offen sc1')
        A(f's_mul_i32 {t2}, {sC}, 3168\ns_add_u32 {t2}, {t2}, {sGBASE}\ns_add_u32 {t2}, {t2}, {LS}')
        for k_ in range(3): A(f'buffer_store_dwordx4 v[64:67], v68, {WS}, {t2} offen offset:{1024*k_} sc1')
        A(f's_mov_b64 exec, 63\nbuffer_store_dwordx4 v[64:67], v68, {WS}, {t2} offen offset:3072 sc1\ns_mov_b64 exec, -1\n{l_}:')
    def clean_first():
        l_ = lab('c7')
        A(f's_cmp_lg_u32 {sW}, 7\ns_cbranch_scc1 {l_}')
        A(f's_lshl_b32 {t1}, s2, 7\ns_add_u32 {t1}, {t1}, {TF}\nv_mov_b32 v69, {sTAG}')
        if fullflag:
            A(f's_mov_b32 exec_hi, 0\ns_waitcnt vmcnt({2 + len(tail_parts)})\nbuffer_store_dword v69, {vL4}, {WS}, {t1} offen sc1')
        else:
            A(f's_mov_b64 exec, 1\ns_waitcnt vmcnt({2 + len(tail_parts)})\nbuffer_store_dword v69, off, {WS}, {t1} sc1')
        full_exec()
        n4 = lab('n4')
        if not use_early:
            A(f'{l_}:'); return
        A(f'{l_}:\ns_cmp_lg_u32 {sW}, 4\ns_cbranch_scc1 {n4}')
        flag_addr()
        A(f's_sleep {fearly}\nbuffer_load_dword v69, v68, {WS}, {t1} offen sc1\ns_waitcnt vmcnt(0)\nv_cmp_ne_u32 vcc, {sTAG}, v69\ns_cbranch_vccnz {n4}')
        A(f's_mov_b32 {sCNT}, 1\nv_mov_b32 v68, {L_FL}\nv_mov_b32 v69, 1\nds_write_b32 v68, v69\n{n4}:')
    if share:
        inloop[0] = True
        A('L_merge:')
        combine(None, first_only(clean_first))
    else: combine(True, clean_first)
    stamp(True)

    if prio:
        l_ = lab('pr'); A(f's_cmp_ge_u32 {sW}, 4\ns_cbranch_scc1 {l_}\ns_setprio 1\n{l_}:')
    A('L_layer:'); inloop[0] = True
    def proj_body(nk, vb, boff, xoff, late_w=None, tagged=False):
        for j in range(nk): A(f'ds_read_b128 v[{64+4*j}:{67+4*j}], {vb} offset:{boff+64*j}')
        if late_w: late_w()
        for j in range(nk):
            if not late_w: A(f's_waitcnt lgkmcnt({nk-1-j})')
            elif j == 0: A('s_waitcnt lgkmcnt(0)')
            c = '0' if j == 0 else 'v[96:99]'
            A(f'{M16} v[96:99], v[{48+4*j}:{51+4*j}], v[{64+4*j}:{67+4*j}], {c}')
        if tagged:
            A(f'v_mov_b32 v102, {sTAG}\nv_mov_b32 v103, {sTAG}\nv_cvt_pk_bf16_f32 v100, v96, v97\nv_cvt_pk_bf16_f32 v101, v98, v99')
            A(f'buffer_store_dwordx4 v[100:103], v47, {WS}, 0 offen sc1')
            if diag2: xstamp(52)
        else:
            A(f's_add_u32 {t1}, {sXst}, {xoff}')
            A('v_cvt_pk_bf16_f32 v96, v96, v97\nv_cvt_pk_bf16_f32 v97, v98, v99')
            A(f'buffer_store_dwordx2 v[96:97], {vXst}, {WS}, {t1} offen sc1')
    def proj_out(nk, vb, boff, xoff, first=None):
        sk, dl = lab('sk'), lab('dl')
        A(f's_cmp_ge_u32 {sW}, 4\ns_cbranch_scc1 {sk}')
        if first: variant(first, lambda: proj_body(nk, vb, boff, xoff))
        else: proj_body(nk, vb, boff, xoff)
        return sk, dl
    def g_wait(sk, dl, pre, busy_first=False, hi_pre=None, lo_d=None, hi_d=None, extra0=0):
        pre()
        A(f's_sleep {lo_d or gdelay}')
        A(f's_branch {dl}\n{sk}:')
        if hi_pre: hi_pre()
        A(f's_sleep {hi_d or gdelay_hi}')
        A(f'{dl}:')
        if extra0: first_only(lambda: A(f's_sleep {extra0}'))()
    def reduce_x(xoff, final, first=None):
        def normal():
            A(f's_add_u32 {t0}, {sXg}, {xoff}')
            poll(lambda: issue_g1(64, vXg, t0, 'x', 8192), range(64, 72),
                 lambda: A(f'{M16} v[96:99], {SELA}, v[64:67], 0\n{M16} v[96:99], {SELA}, v[68:71], v[96:99]'))
        if first: variant(first, normal)
        else: normal()
        stamp()
        A(f'v_add_f32_dpp v96, v96, v96 row_ror:4 {DPP}\nv_add_f32_dpp v97, v97, v97 row_ror:4 {DPP}')
        if final: A(f's_cmp_eq_u32 {sLIDX}, 1')
        A(f'v_add_f32_dpp v96, v96, v96 row_ror:8 {DPP}\nv_add_f32_dpp v97, v97, v97 row_ror:8 {DPP}')
        A(f'v_pk_add_f32 {XRES}, {XRES}, v[96:97]\ns_mov_b64 exec, {sM4}\nv_cvt_pk_bf16_f32 v96, v112, v113')
        if final: A(f's_cbranch_scc1 L_out')
        A(f'ds_write_b32 {vXW}, v96')
        full_exec()
        A('s_waitcnt lgkmcnt(0)\ns_barrier')
    def issue_o():
        issue_g1(64, vG1, sOg, 'o')
        A.vmop(f'buffer_load_dwordx2 v[72:73], {vML2}, {WS}, {sMLg} offen sc1', 'o')
        A.vmop(f'buffer_load_dwordx2 v[74:75], {vML2}, {WS}, {sMLg} offen offset:32 sc1', 'o')
    def wo_weights(ma, la, mb, lb, selreg, mm):
        A(f'v_max_f32 v76, v{ma}, v{mb}\nv_mov_b32 v77, v76\nv_permlane16_swap_b32 v76, v77\nv_max_f32 v76, v76, v77')
        A('v_mov_b32 v77, v76\nv_permlane32_swap_b32 v76, v77\nv_max_f32 v76, v76, v77')
        A(f'v_sub_f32 v{ma}, v{ma}, v76\nv_sub_f32 v{mb}, v{mb}, v76\nv_exp_f32 v{ma}, v{ma}\nv_exp_f32 v{mb}, v{mb}')
        A(f'v_cvt_pk_bf16_f32 v{ma}, v{ma}, v{ma}\nv_cvt_pk_bf16_f32 v{mb}, v{mb}, v{mb}')
        for i in range(4): A(f'v_and_b32 v{selreg+i}, v{MASK+i}, v{ma}')
        for i in range(4): A(f'v_and_b32 v{selreg+4+i}, v{MASK+i}, v{mb}')
        mm()
        A(f'v_and_b32 v{ma}, 0xffff0000, v{ma}\nv_and_b32 v{mb}, 0xffff0000, v{mb}\nv_mul_f32 v73, v{la}, v{ma}\nv_fmac_f32 v73, v{lb}, v{mb}')
        A('v_mov_b32 v77, v73\nv_permlane16_swap_b32 v73, v77\nv_add_f32 v73, v73, v77')
        A('v_mov_b32 v77, v73\nv_permlane32_swap_b32 v73, v77\nv_add_f32 v73, v73, v77\nv_rcp_f32 v72, v73')
    def wo_later():
        read_wo()
        if ldelay: A(f's_sleep {ldelay}')
        poll(issue_o, range(64, 76))
        stamp()
        wo_weights(72, 73, 74, 75, 80, lambda: A(f'{M16} v[96:99], v[80:83], v[64:67], 0\n{M16} v[96:99], v[84:87], v[68:71], v[96:99]'))
    def wo_first():
        if diag2: A(f's_mov_b32 s65, {sTO}')
        def issue():
            issue_o0()
            if csq_o: issue_tagged(f's_lshl_b32 {t1}, {sG}, 14\ns_add_u32 {t1}, {t1}, {TQC}', 48)
        if wo_at: read_wo()
        if csq_o: tagged_poll(issue, (82, 86, 90, 94, 66, 70, 50, 54, 58, 62), lambda: tagged_sum(32, 48, 108))
        else: tagged_poll(issue, (82, 86, 90, 94, 66, 70))
        stamp()
        if diag2: A(f's_sub_u32 s65, s65, {sTO}\nv_readlane_b32 s94, {vTS}, 0\ns_mul_i32 s65, s65, 100\ns_add_u32 s65, s65, s94\nv_writelane_b32 {vTS}, s65, 55')
        wo_weights(64, 65, 68, 69, 100, lambda: tagged_sum(100, 80, 96, 4))
        if csq_o: A(f's_mov_b32 {t2}, {f32(1/512)}\nv_pk_mul_f32 {CSQ}, v[108:109], s[56:57] op_sel_hi:[1,0]')
    with lowwaves():
        variant(wo_first, wo_later)
        A('v_pk_mul_f32 v[96:97], v[96:97], v[72:73] op_sel_hi:[1,0]\nv_cvt_pk_bf16_f32 v96, v96, v97')
        A(f'ds_write_b32 {vQW}, v96 offset:{L_OS-L_QS}')
    A(f's_waitcnt vmcnt(0) lgkmcnt(0)\ns_barrier')
    sk, dl = proj_out(4, vBR320, L_OS - L_QS, 0, lambda: proj_body(4, vBR320, L_OS - L_QS, 0, read_wo))
    leave_ = [None]
    def touch_lines(bases):
        for sb, off in bases:
            A(f's_add_u32 {t0}, {sb}, {off}\ns_add_u32 {t1}, {t0}, 4096')
            A(f'buffer_load_dwordx4 v[80:83], {vG1}, {WS}, {t0} offen sc1\nbuffer_load_dwordx4 v[84:87], {vG1}, {WS}, {t1} offen sc1')
    def touch_small(bases):
        for sb, off in bases:
            A(f's_add_u32 {t0}, {sb}, {off}\nbuffer_load_dwordx2 v[88:89], {vSt8}, {WS}, {t0} offen sc1')
    def watch_flags():
        l_, r_, d_ = lab('w4'), lab('fr'), lab('fd')
        A(f's_cmp_lg_u32 {sW}, 4\ns_cbranch_scc1 {l_}\ns_cmp_eq_u32 {sCNT}, 1\ns_cbranch_scc1 {l_}')
        flag_addr()
        if fdelay: A(f's_sleep {fdelay}')
        e_ = lab('fe')
        A(f'buffer_load_dword v69, v68, {WS}, {t1} offen sc1\ns_waitcnt vmcnt(0)\nv_cmp_ne_u32 vcc, {sTAG}, v69\ns_cbranch_vccz {d_}')
        A(f'{r_}:\ns_sleep {fback}\nbuffer_load_dword v69, v68, {WS}, {t1} offen sc1\ns_waitcnt vmcnt(0)\nv_cmp_ne_u32 vcc, {sTAG}, v69\ns_cbranch_vccz {e_}')
        A(f's_sub_u32 {sTO}, {sTO}, 1\ns_cbranch_scc0 {r_}\ns_mov_b32 {sTO}, 0\n{e_}:')
        if flate: A(f's_sleep {flate}')
        A(f'{d_}:')
        A(f'v_mov_b32 v68, {L_FL}\nv_mov_b32 v69, 1\nds_write_b32 v68, v69')
        A(f's_branch {after_sleep[0]}\n{l_}:')
    def await_flags():
        r_, d_ = lab('ar'), lab('ad')
        A(f'v_mov_b32 v68, {L_FL}\n{r_}:\nds_read_b32 v69, v68\ns_waitcnt lgkmcnt(0)\nv_cmp_eq_u32 vcc, 1, v69\ns_cbranch_vccnz {d_}')
        A(f's_sleep 1\ns_sub_u32 {sTO}, {sTO}, 1\ns_cbranch_scc0 {r_}\ns_mov_b32 {sTO}, 0\n{d_}:')
        if touch_g:
            with lowwaves(): touch_lines([(sGg, 0)])
    after_sleep = [None]
    def hi_xa():
        def w567():
            l_ = lab('f5'); A(f's_cmp_eq_u32 {sW}, 4\ns_cbranch_scc1 {l_}\ns_sleep {fdelay + 2}')
            for dw in (-5, -2, 1):
                k_ = lab('fs')
                if dw == 1: A(f's_cmp_eq_u32 {sW}, 7\ns_cbranch_scc1 {k_}')
                issue_ffn_any(dw)
                A(f'{k_}:')
            A(f'{l_}:')
        if ffn_by_hi and flag_first: first_only(lambda: (w567(), clean_rest(), watch_flags()))()
        elif ffn_by_hi: first_only(lambda: (issue_ffn(-4), issue_ffn(0), clean_rest(), watch_flags()))()
        else: first_only(lambda: (clean_rest(), watch_flags()))()
        if touch1 & 1: first_only(lambda: (touch_lines([(sQg, 0), (sOg, LS)]), touch_small([(sQSg, 0), (sMLg, LS)])))()
        if touch1 & 2: later_only(lambda: (touch_lines([(sGg, 0)]), touch_small([(sGSg, 0)])))
    def hi_xb():
        leave_[0]()
        if touch1 & 4: first_only(lambda: (touch_lines([(sGg, LS)]), touch_small([(sGSg, LS)])))()
        if touch1 & 8: first_only(lambda: (touch_lines([(sQg, 0), (sOg, LS)]), touch_small([(sQSg, 0), (sMLg, LS)])))()
    after_sleep[0] = dl
    g_wait(sk, dl, (lambda: later_only(read_gu)) if ffn_by_hi else read_gu, False, hi_xa, extra0=xa0)
    first_only(await_flags)()
    stamp()
    reduce_x(0, False)
    def issue_gp(first):
        issue_g1(64, vG1, sGg, 'g')
        A.vmop(f'buffer_load_dwordx2 v[72:73], {vSt8}, {WS}, {sGSg} offen sc1', 'g')
        if first:
            A(f'v_and_b32 {vTMP}, 0xf0, {vG1}\nv_and_b32 {vTMP2}, 0xc00, {vG1}\nv_lshrrev_b32 {vTMP2}, 2, {vTMP2}\nv_or_b32 {vTMP}, {vTMP}, {vTMP2}')
            issue_g1(80, vTMP, sGCg, 'g', 1024)
    def ffn_gather(first):
        def f():
            if ldelay and not first: A(f's_sleep {ldelay}')
            poll(lambda: issue_gp(first), QREGS1 if first else QREGS, ln_spec(SELG, first))
            ln_finish(CSG, 1.0, first)
        return f
    with lowwaves(lambda: slice_stats(sGSst)):
        matvec(vGst, 'plain', first_only(read_gu) if ffn_by_hi else None, sLAY)
        stamp()
        read_wd()
        variant(ffn_gather(True), ffn_gather(False))
        stamp()
        A('v_cvt_pk_bf16_f32 v96, v96, v97\nv_and_b32 v97, 0xffff0000, v96\nv_lshlrev_b32 v96, 16, v96\nv_max_f32 v96, 0, v96\nv_mul_f32 v96, v96, v97\nv_cvt_pk_bf16_f32 v96, v96, v96')
        A(f'ds_write_b16 {vHW}, v96')
    A('s_waitcnt lgkmcnt(0)\ns_barrier')
    sk, dl = proj_out(2, vBR192, 0, oXB - oXA)
    def leave():
        no = lab('no')
        A(f's_cmp_eq_u32 {sLIDX}, 0\ns_cbranch_scc1 {no}\ns_cmp_lg_u32 {sHI}, 0\ns_cbranch_scc1 L_fin\ns_cmp_lg_u32 {sG}, {sLO}\ns_cbranch_scc1 L_fin\n{no}:')
    def pre_q():
        leave()
        read_wq()
    leave_[0] = leave
    g_wait(sk, dl, pre_q, False, hi_xb, gd_b, gdh_b, xb0)
    stamp()
    reduce_x(oXB - oXA, True)
    keep = nts[0]; nts[0] -= 11
    def advance():
        A(f's_mov_b32 {sLIDX}, 1\ns_mov_b32 {sLAY}, {LS}')
        for s in (sOg, sGg, sMLg, sGSg, sXg, sOPst, sMLst, sXst, sGSst):
            A(f's_add_u32 {s}, {s}, {LS}')
    with lowwaves(lambda: (slice_stats(sQSst), advance())):
        matvec(vQst, 'plain')
        advance()
        stamp()
        if ldelay: A(f's_sleep {ldelay}')
        poll(lambda: issue_q(False), QREGS, ln_spec(SELA, False))
        stamp()
        q_finish(False)
    if share:
        A('s_waitcnt vmcnt(0) lgkmcnt(0)\ns_barrier\nL_scores:')
        scores(False)
        A(f's_cmp_eq_u32 {sLIDX}, 0\ns_cbranch_scc1 L_scored')
    else: scores()
    for i in range(16):
        pv(i)
        if i == 5: lsum()
    stamp()
    if share: A('s_branch L_merge')
    else:
        combine()
        stamp()
        A('s_branch L_layer')
    nts[0] = keep
    A('L_out:')
    A(f'buffer_store_dword v96, {vXO}, {OUT}, 0 offen')
    A(f's_or_b32 {t1}, s2, {sW}\ns_cmp_lg_u32 {t1}, 0\ns_cbranch_scc1 L_fin0')
    A(f's_mov_b64 exec, 1\nv_mov_b32 v97, {sTAG}\ns_mov_b32 {t2}, {EPOCH}\nbuffer_store_dword v97, off, {WS}, {t2} sc1')
    A('L_fin0:')
    full_exec()
    A('L_fin:')
    if padto:
        A(f'L_pad:\ns_memrealtime s[94:95]\ns_waitcnt lgkmcnt(0)\ns_sub_u32 s94, s94, s98\ns_cmp_lt_u32 s94, {padto}\ns_cbranch_scc1 L_pad')
    if ts:
        stamp(True)
        A(f's_memtime s[94:95]\ns_waitcnt lgkmcnt(0)\ns_sub_u32 s94, s94, s98\nv_writelane_b32 {vTS}, s94, 63')
        A(f's_add_u32 s96, s96, 0x10000000\ns_addc_u32 s97, s97, 0\ns_lshl_b32 {t1}, s2, 11\nv_add_u32 v64, {t1}, {vT4}\nglobal_store_dword v64, {vTS}, s[96:97]')
        if dbgts:
            A(f's_or_b32 {t1}, s2, {sW}\ns_cmp_lg_u32 {t1}, 0\ns_cbranch_scc1 L_end')
            A(f'v_readlane_b32 {t1}, {vTS}, 0\nv_subrev_u32 v64, {t1}, {vTS}\nv_and_b32 v64, 0xffff, v64')
            A(f'v_mov_b32_dpp v65, v64 quad_perm:[1,1,3,3] {DPP}\nv_lshl_or_b32 v64, v65, 16, v64\nv_lshlrev_b32 v65, 1, {vL}')
            A(f's_mov_b32 exec_lo, 0x55555555\ns_mov_b32 exec_hi, 0\nbuffer_store_dword v64, v65, {DBG}, 0 offen sc1')
    A('s_endpgm')
    for t_ in tails: A(t_)
    A('L_end:\ns_endpgm')
    A(f'.section .rodata,"a"\n.p2align 6\n.amdhsa_kernel {NAME}_kernel')
    A('.amdhsa_next_free_vgpr 256\n.amdhsa_next_free_sgpr 102\n.amdhsa_accum_offset 128\n.amdhsa_group_segment_fixed_size 0\n.amdhsa_kernarg_size 96\n.amdhsa_user_sgpr_count 2\n.amdhsa_user_sgpr_kernarg_segment_ptr 1\n.amdhsa_system_sgpr_workgroup_id_x 1\n.end_amdhsa_kernel')
    txt, probs = A.text()
    for p in probs: print('HAZARD', p, file=sys.stderr)
    return txt, nts[0]

if __name__ == '__main__':
    out = sys.argv[1]
    kw = {}
    for a in sys.argv[2:]:
        k, v = a.split('='); kw[k] = eval(v)
    txt, n = build(**kw)
    open(out, 'w').write(txt)
    print('stamps', n, 'lines', txt.count('\n'))
```

```python
import sys, math, struct
sys.path.insert(0, 'gen')
from asmlib import Asm

NAME = "interleave_layers__sliding_block_cached__glu_gated_reglu__decode"

bQP, bQS, bOP, bML, bGP, bGS, bGC, GB = 0x0, 0x8000, 0x8400, 0x10400, 0x10800, 0x18800, 0x18C00, 0x1AC00
oXA, oXB, LS = 8 * GB, 8 * GB + 0x20000, 8 * GB + 0x40000
TQP, TQC, TOP, TML, TF, EPOCH = 0x240000, 0x2C0000, 0x2E0000, 0x360000, 0x364000, 0x36C000
WS_REC = 0x36C100
OOB = 0x7FFF0000
L_RING, L_WQ, L_WO, L_WG, L_WU, L_WD = 0, 65536, 81920, 98304, 106496, 114688
L_QS, L_OS, L_HS, L_XS, L_RM, L_ST = 122880, 124160, 125440, 126208, 127168, 127424
L_FL = L_ST + 16
LDS_BYTES = 127488

def f32(x): return '0x%08x' % struct.unpack('<I', struct.pack('<f', x))[0]
QSCALE = 128 ** -0.5 * math.log2(math.e)

sW, sG, sC, sHI, sLO = 's3', 's4', 's5', 's6', 's7'
WS, KK, VV, WQ, WO, WG, WU, WD, XX, OUT, DBG = [f's[{i}:{i+3}]' for i in range(8, 52, 4)]
sKV, sRING, t0, t1, t2, t3 = 's52', 's53', 's54', 's55', 's56', 's57'
sLAY, sTO, sFAST, sCNT, sGOK, sLIDX = 's58', 's59', 's60', 's61', 's62', 's63'
sQg, sOg, sGg, sQSg, sMLg, sGSg, sXg, sGBASE, sGCg = ['s%d' % i for i in range(66, 75)]
sOPst, sMLst, sXst, sQSst, sGSst = ['s%d' % i for i in range(75, 80)]
g0, g1, g2, g3 = 's90', 's91', 's92', 's93'
vL, vT4, vSt8, vXg, vQst, vGst, vSSt, vG1, vXst, vQW, vBR320, vHW, vBR192, vXR, vXW, vL4 = ['v%d' % i for i in range(16)]
vROW, vROR, vRMW, vRMR, vWQr, vWr, vWOr, vXO = ['v%d' % i for i in range(16, 24)]
CSQ, CSG = 'v[24:25]', 'v[26:27]'
vTS, vML2, vTMP, vTMP2 = 'v28', 'v29', 'v30', 'v31'
SELA, MASK, SELG, ONES = 'v[32:35]', 36, 'v[40:43]', 'v[44:45]'
vMLst = 'v46'
XRES = 'v[112:113]'
sM4 = 's[88:89]'
sTAG = 's100'
DPP = 'row_mask:0xf bank_mask:0xf'
M16 = 'v_mfma_f32_16x16x32_bf16'

def build(ts=False, gdelay=12, gdelay_hi=18, pf_code=True, rides=(17, 22, 27), w_at='land31', ldelay=0, bar_after_k0=False, fride=26, ffn_hi=False, touch_o=0, touch_g=0, ffn_sleep=0, clean3_xa=0, tlb=0, diag2=0, ffn_at=0, fdelay=4, fback=4, wo_at=0, csq_o=0, touch1=12, wt_at=29, csq_at=26, xa0=0, xb0=3, cl_at=29, tail_parts='gud', fearly=10, use_early=0, fullflag=1, flag_first=0, jitter=0, dual=15, dstep=3, pf_few=0, pf_late=0, flate=6, share=1, gd_b=11, gdh_b=15, ffn_by_hi=0, tmajor=1, prio=0, padto=0, warm_x=1, warm_at=0, wd_late=0, xback=0, deep_from=24, depth=5, deep=7, diag=0, noclean=0, burst=4, late47=0, abl='', backoff=0, cl_sc1=1, dbgts=0, wsoff=0):
    A = Asm()
    uid = [0]
    def lab(p):
        uid[0] += 1; return f'L_{p}_{uid[0]}'
    nts = [0]; inloop = [False]
    def stamp(key=False):
        if jitter:
            l_ = lab('jt')
            A(f's_memtime s[94:95]\ns_waitcnt lgkmcnt(0)\ns_mul_i32 s94, s94, 0x9e3779b1\ns_xor_b32 s94, s94, s2\ns_mul_i32 s94, s94, 0x85ebca6b\ns_lshr_b32 s94, s94, {32 - jitter}')
            A(f's_cmp_lg_u32 s94, 0\ns_cbranch_scc1 {l_}\ns_sleep 100\n{l_}:')
        if not ts: return
        if ts == 2 and not key:
            nts[0] += 1; return
        if inloop[0]:
            A(f's_memrealtime s[94:95]\ns_mul_i32 m0, {sLIDX}, 11\ns_add_u32 m0, m0, {nts[0]}\ns_waitcnt lgkmcnt(0)\nv_writelane_b32 {vTS}, s94, m0')
        else:
            A(f's_memrealtime s[94:95]\ns_waitcnt lgkmcnt(0)\nv_writelane_b32 {vTS}, s94, {nts[0]}')
        nts[0] += 1
    def xstamp(i):
        A(f's_memrealtime s[94:95]\ns_waitcnt lgkmcnt(0)\nv_writelane_b32 {vTS}, s94, {i}')
    def set_exec(lo, hi=None):
        hi = lo if hi is None else hi
        A(f's_mov_b32 exec_lo, {lo:#x}\ns_mov_b32 exec_hi, {hi:#x}')
    def full_exec(): A('s_mov_b64 exec, -1')
    tails = []
    def lstore(fmt, tag='st', nxt=None, cmp=True):
        a, b = lab('wt'), lab('sd')
        for f_ in fmt.split('\n'): A((';;need2 ' if cmp else ';;need1 ') + f_)
        if cmp: A(f's_cmp_eq_u32 {sFAST}, 1')
        A(f's_cbranch_scc0 {a}')
        A(fmt); A(f'{b}:')
        tails.append(f'{a}:\n' + '\n'.join(f_ + ' sc1' for f_ in fmt.split('\n')) + f'\ns_branch {b}')
        A.vm.append(tag)
    class lowwaves:
        def __init__(s, other=None): s.other = other
        def __enter__(s):
            s.l = lab('hi'); s.o = lab('up') if s.other else s.l
            A(f's_cmp_ge_u32 {sW}, 4\ns_cbranch_scc1 {s.o}')
        def __exit__(s, *a):
            A(f'{s.l}:')
            if s.other:
                keepL, A.L = A.L, []
                A(f'{s.o}:'); s.other(); A(f's_branch {s.l}')
                tails.append('\n'.join(A.L)); A.L = keepL
    def sel(dst, a, b):
        A(f'v_cndmask_b32 {dst}, {a}, {b}, vcc')

    A(f'; @launch grid=(256,1,1) block=(512,1,1) lds={LDS_BYTES}')
    A('.amdgcn_target "amdgcn-amd-amdhsa--gfx950"')
    A(f'.text\n.globl {NAME}_kernel\n.p2align 8\n.type {NAME}_kernel,@function\n{NAME}_kernel:')
    A('s_cmp_ge_u32 s2, 256\ns_cbranch_scc1 L_end')
    A('s_load_dwordx16 s[64:79], s[0:1], 0\ns_load_dwordx8 s[80:87], s[0:1], 64')
    if padto: A('s_memrealtime s[98:99]')
    A(f'v_lshlrev_b32 {vT4}, 2, v0')
    def prefetch_code():
        if pf_few: A(f's_cmp_ge_u32 s2, {8 * pf_few}\ns_cbranch_scc1 L_nopf')
        A(f's_getpc_b64 s[94:95]\nL_pc:\ns_sub_u32 s94, s94, L_pc-{NAME}_kernel\ns_subb_u32 s95, s95, 0\ns_lshr_b32 s93, s2, 3\ns_and_b32 s93, s93, 1\ns_lshl_b32 s93, s93, 13\nv_lshlrev_b32 {vTMP}, 2, {vT4}\nv_add_u32 {vTMP}, s93, {vTMP}')
        A(f'v_min_u32 {vTMP}, L_end-{NAME}_kernel-16, {vTMP}')
        A(f'global_load_dwordx4 v[96:99], {vTMP}, s[94:95]')
        if pf_few: A('L_nopf:')
        else: A.vm.append('pf')
    if pf_code and not pf_late: prefetch_code()
    A(f'v_lshrrev_b32 {vTMP}, 6, v0')
    A(f'v_and_b32 {vL}, 63, v0')
    A(f'v_readfirstlane_b32 {sW}, {vTMP}')
    A(f's_and_b32 {sG}, s2, 7\ns_lshr_b32 {sC}, s2, 3\ns_lshr_b32 {sHI}, {sC}, 3\ns_and_b32 {sLO}, {sC}, 7')
    A(f'v_and_b32 v120, 15, {vL}\nv_lshrrev_b32 v121, 4, {vL}')
    A(f'v_lshlrev_b32 {vTMP}, 2, v121\nv_xor_b32 {vTMP}, v120, {vTMP}\nv_lshlrev_b32 {vTMP}, 4, {vTMP}\nv_lshl_add_u32 v116, v121, 8, {vTMP}\nv_lshl_add_u32 v124, v121, 13, {vTMP}')
    A(f'v_and_b32 v122, 3, {vL}\nv_lshrrev_b32 v123, 2, v120')
    A(f's_lshr_b32 {t0}, {sW}, 1\ns_lshl_b32 {t0}, {t0}, 10\ns_and_b32 {t1}, {sW}, 1\ns_lshl_b32 {t1}, {t1}, 6\ns_add_u32 {t0}, {t0}, {t1}\ns_lshl_b32 {t1}, {sLO}, 7\ns_add_u32 {t0}, {t0}, {t1}')
    A(f'v_lshlrev_b32 v117, 4, v122\nv_lshl_add_u32 v117, v121, 2, v117\nv_add_u32 {vXO}, {t0}, v117')
    A(f's_lshl_b32 {t0}, {sHI}, 3\ns_add_u32 {t0}, {t0}, {sG}\ns_lshl_b32 {sKV}, {t0}, 22\ns_lshl_b32 {t0}, {sLO}, 17\ns_add_u32 {sKV}, {sKV}, {t0}\ns_add_u32 {sKV}, {sKV}, {12288*256}')
    A(f's_add_u32 {t0}, {sG}, {sC}\ns_add_u32 {t0}, {t0}, {sW}\ns_and_b32 {t0}, {t0}, 7\ns_lshl_b32 {t0}, {t0}, 12\ns_add_u32 {sKV}, {sKV}, {t0}')
    A(f's_lshl_b32 {sRING}, {sW}, 13')
    A(f's_and_b32 {g3}, {sW}, 3')
    A(f's_lshl_b32 {t0}, {sG}, 2\ns_add_u32 {t0}, {t0}, {sHI}')
    A(f'v_mov_b32 v118, {OOB}')
    A(f's_mul_i32 s101, {sG}, {GB}')
    A(f's_lshl_b32 {t1}, {sLO}, 6\ns_lshl_b32 {t2}, {sW}, 3\ns_add_u32 {t1}, {t1}, {t2}\ns_lshl_b32 {t1}, {t1}, 13\ns_lshl_b32 {t2}, {sG}, 10\ns_add_u32 {t1}, {t1}, {t2}\ns_lshl_b32 {t2}, {sHI}, 8\ns_add_u32 {t1}, {t1}, {t2}')
    A(f's_lshl_b32 {t2}, {sW}, 11\ns_add_u32 m0, {t2}, {L_WQ}')
    if ts:
        A(f'v_mov_b32 {vTS}, 0'); stamp(True)
        A(f's_memtime s[98:99]')
    A('s_waitcnt lgkmcnt(0)')
    def srd(d, lo, n):
        A(f's_mov_b32 s{d}, s{lo}\ns_mov_b32 s{d+1}, s{lo+1}\ns_mov_b32 s{d+2}, {n}\ns_mov_b32 s{d+3}, 0x20000')
    srd(20, 70, 4194304)
    A.vmop(f'buffer_load_dwordx4 v124, {WQ}, {t1} offen nt lds', 'wq')
    A(f's_add_u32 {t1}, {t1}, 32768\ns_add_u32 m0, m0, 1024')
    srd(40, 64, 4096)
    A.vmop(f'buffer_load_dwordx4 v124, {WQ}, {t1} offen nt lds', 'wq')
    srd(8, 86, WS_REC)
    if wsoff: A(f's_add_u32 s8, s8, {wsoff}\ns_addc_u32 s9, s9, 0')
    A.vmop(f'buffer_load_dword v68, {vXO}, {XX}, 0 offen', 'x0')
    A(f's_lshr_b32 {t2}, {sW}, 1\ns_lshl_b32 {t2}, {t2}, 10\nv_lshlrev_b32 {vTMP}, 4, {vL}')
    A.vmop(f'buffer_load_dwordx4 v[72:75], {vTMP}, {XX}, {t2} offen', 'x0')
    A(f's_mov_b32 {t2}, {EPOCH}')
    A.vmop(f'buffer_load_dword v69, off, {WS}, {t2} sc1', 'ep')
    srd(12, 66, 0x8000000)
    def piece(p):
        t, q = (p % 16) // 4, p % 4
        if q == 0:
            A(f's_add_u32 {g1}, {sKV}, {t*32768}\ns_add_u32 m0, {sRING}, {((p//4)&1)*4096}')
        src = 'v116'
        A.vmop(f'buffer_load_dwordx4 {src}, {KK if p < 16 else VV}, {g1} offen offset:{q*1024} nt lds', f'p{p}')
    for p in range(burst): piece(p)
    if pf_code and pf_late:
        assert not pf_few
        A('s_mov_b32 s92, s93'); prefetch_code(); A('s_mov_b32 s93, s92')
    srd(16, 68, 0x8000000)
    if ts: A('s_mov_b32 s96, s86\ns_mov_b32 s97, s87')

    srd(24, 72, 4194304); srd(44, 82, 4096); srd(48, 84, 256)
    srd(28, 76, 1835008); srd(32, 78, 1835008); srd(36, 80, 1835008)
    A(f's_mul_i32 {t1}, {sG}, 3\ns_add_u32 {t1}, {t1}, 4\ns_lshl_b32 {t2}, {sG}, 2\ns_cmp_ge_u32 {sG}, 4\ns_cselect_b32 {g2}, {t1}, {t2}\ns_add_u32 {g2}, {g2}, {sHI}\ns_min_u32 {g2}, {g2}, 27')
    if tlb:
        A(f's_lshl_b32 {t1}, {t0}, 17')
        A.vmop(f'buffer_load_dword v96, off, {WO}, {t1} nt', 'tlb')
        A(f's_mul_i32 {t1}, {sLO}, {64*3584}')
        A.vmop(f'buffer_load_dword v96, off, {WG}, {t1} nt', 'tlb')
        A.vmop(f'buffer_load_dword v96, off, {WU}, {t1} nt', 'tlb')
        A(f's_lshl_b32 {t1}, {g2}, 16')
        A.vmop(f'buffer_load_dword v96, off, {WD}, {t1} nt', 'tlb')
        A(f'v_lshlrev_b32 {vTMP}, 19, v120')
        A.vmop(f'buffer_load_dword v96, {vTMP}, {WS}, 0 offen nt', 'tlb')
        A.vmop(f'buffer_load_dword v96, off, {VV}, {sKV} nt', 'tlb')
    A(f's_getreg_b32 {t1}, hwreg(HW_REG_XCC_ID)\ns_and_b32 s64, {t1}, 15')
    A(f's_mov_b32 s88, 0x000f000f\ns_mov_b32 s89, 0x000f000f')
    A(f's_mov_b32 {sGBASE}, s101')
    A(f's_lshl_b32 {t1}, {sHI}, 13\ns_add_u32 {t1}, {t1}, {sGBASE}')
    A(f's_add_u32 {sQg}, {t1}, {bQP + LS}\ns_add_u32 {sOg}, {t1}, {bOP}\ns_add_u32 {sGg}, {t1}, {bGP}')
    A(f's_lshl_b32 {t1}, {g3}, 2\ns_add_u32 {t1}, {t1}, {sHI}\ns_lshl_b32 {t1}, {t1}, 6\ns_add_u32 {t1}, {t1}, {sGBASE}\ns_add_u32 {sQSg}, {t1}, {bQS + LS}')
    A(f's_lshl_b32 {sMLst}, {sLO}, 3\ns_add_u32 {sMLst}, {sMLst}, {t1}\ns_add_u32 {sMLst}, {sMLst}, {bML}')
    A(f's_lshl_b32 {t2}, {g3}, 13\ns_lshl_b32 {t1}, {sLO}, 10\ns_add_u32 {t2}, {t2}, {t1}\ns_lshl_b32 {t1}, {sHI}, 8\ns_add_u32 {t2}, {t2}, {t1}\ns_add_u32 {t2}, {t2}, {sGBASE}\ns_add_u32 {sOPst}, {t2}, {bOP}')
    A(f's_lshl_b32 {t1}, {sHI}, 2\ns_add_u32 {t1}, {t1}, {g3}\ns_lshl_b32 {t1}, {t1}, 6\ns_add_u32 {t1}, {t1}, {sGBASE}\ns_add_u32 {sMLg}, {t1}, {bML}\ns_add_u32 {sGSg}, {t1}, {bGS}')
    A(f's_lshl_b32 {t1}, {sLO}, 14\ns_add_u32 {sXg}, {t1}, {oXA}')
    A(f's_lshl_b32 {t1}, {t0}, 9\ns_add_u32 {sXst}, {sXg}, {t1}')
    A(f's_lshl_b32 {t1}, {sHI}, 11\ns_add_u32 {t1}, {t1}, {sGBASE}\ns_add_u32 {sGCg}, {t1}, {bGC}')
    A(f's_lshl_b32 {t3}, {sHI}, 8\ns_lshl_b32 {t1}, {sLO}, 3\ns_add_u32 {t3}, {t3}, {t1}\ns_add_u32 {t3}, {t3}, {sGBASE}\ns_add_u32 {sQSst}, {t3}, {bQS + LS}\ns_add_u32 {sGSst}, {t3}, {bGS}')
    A(f's_lshl_b32 s101, {t0}, 14\ns_add_u32 s101, s101, {TQP}')
    A(f's_lshl_b32 {t1}, {sLO}, 10\ns_lshl_b32 {t2}, {sHI}, 8\ns_add_u32 {t1}, {t1}, {t2}\ns_lshl_b32 {t2}, {g3}, 6\ns_add_u32 {t3}, {t1}, {t2}')
    A(f's_add_u32 {t1}, {sGBASE}, {t3}\ns_add_u32 {t1}, {t1}, {LS}\ns_mov_b32 {t2}, {OOB}')
    A(f's_cmp_ge_u32 {sW}, 4\ns_cselect_b32 {g0}, 0, 5')
    def st_off(dst, shift):
        A(f'v_lshlrev_b32 {vTMP}, {shift}, v120\nv_add_u32 {vTMP}, {t1}, {vTMP}\nv_mov_b32 {vTMP2}, {t2}\nv_cmp_eq_u32 vcc, 4, v120'); sel(vTMP, vTMP, vTMP2)
        A(f'v_lshl_add_u32 {vTMP}, v121, 4, {vTMP}\nv_cmp_gt_u32 vcc, {g0}, v120'); sel(dst, 'v118', vTMP)
    st_off(vQst, 13)
    A(f's_lshl_b32 {t3}, {t3}, 1\ns_lshl_b32 {t1}, {g3}, 6\ns_sub_u32 {t3}, {t3}, {t1}\ns_lshl_b32 {t1}, {sG}, 16\ns_add_u32 {t1}, {t1}, {t3}\ns_add_u32 {t1}, {t1}, {TQP}\ns_lshl_b32 {t2}, {sG}, 14\ns_add_u32 {t2}, {t2}, {t3}\ns_add_u32 {t2}, {t2}, {TQC}')
    st_off('v109', 14)
    A(f'v_lshlrev_b32 {vTMP}, 6, v122\nv_add_u32 {vTMP2}, 4, {vTMP}\nv_cmp_gt_u32 vcc, 16, {vL}'); sel(vTMP, vTMP, vTMP2)
    A(f'v_and_b32 {vTMP2}, {0x1ec*4}, {vT4}\nv_cmp_eq_u32 vcc, {256*4}, {vTMP2}'); sel(vSSt, 'v118', vTMP)
    A(f'v_lshlrev_b32 v115, 2, {vT4}')
    A(f's_lshl_b32 {t1}, {sG}, 2\ns_add_u32 {t1}, {t1}, {g3}\ns_lshl_b32 {t1}, {t1}, 14\ns_lshl_b32 {t2}, {sLO}, 11\ns_add_u32 {t1}, {t1}, {t2}\ns_lshl_b32 {t2}, {sHI}, 9\ns_add_u32 {t1}, {t1}, {t2}\ns_add_u32 {t1}, {t1}, {TOP}')
    A(f'v_and_b32 {vTMP}, 2, {vL}\nv_lshlrev_b32 {vTMP}, 7, {vTMP}\nv_lshrrev_b32 {vTMP2}, 2, {vL}\nv_lshl_add_u32 {vTMP}, {vTMP2}, 4, {vTMP}\nv_add_u32 {vTMP}, {t1}, {vTMP}\nv_and_b32 {vTMP2}, 1, {vL}\nv_cmp_eq_u32 vcc, 0, {vTMP2}'); sel('v110', 'v118', vTMP)
    A(f's_mov_b32 {sLAY}, 0\ns_mov_b32 {sTO}, 400000\ns_mov_b32 {sFAST}, 0\ns_mov_b32 {sCNT}, 0\ns_mov_b32 {sGOK}, 0\ns_mov_b32 {sLIDX}, 0')
    A(f's_lshl_b32 {t3}, {g3}, 6\ns_lshl_b32 {t1}, {sLO}, 10\ns_add_u32 {t1}, {t1}, {sGg}\ns_add_u32 {t1}, {t1}, {t3}\ns_lshl_b32 {t2}, {sLO}, 8\ns_add_u32 {t2}, {t2}, {sGCg}\ns_add_u32 {t2}, {t2}, {t3}')
    st_off(vGst, 8)
    A(f'v_and_b32 {vTMP}, 7, {vL}\nv_lshlrev_b32 {vSt8}, 3, {vTMP}\nv_lshlrev_b32 {vL4}, 2, {vL}\nv_lshlrev_b32 {vML2}, 3, v121')
    A(f'v_cmp_eq_u32 vcc, 0, {vL}'); sel(vMLst, 'v118', '0')
    A(f's_lshl_b32 {t1}, {g3}, 8\nv_lshlrev_b32 {vTMP}, 4, v120\nv_lshl_add_u32 {vG1}, v121, 10, {vTMP}\nv_add_u32 {vG1}, {t1}, {vG1}')
    A(f's_lshl_b32 {t1}, {sW}, 6\nv_lshlrev_b32 {vXg}, 11, v123\nv_lshl_add_u32 {vXg}, v121, 9, {vXg}\nv_lshl_add_u32 {vXg}, v122, 4, {vXg}\nv_add_u32 {vXg}, {t1}, {vXg}')
    A(f's_lshr_b32 {t1}, {sW}, 1\ns_mul_i32 {t1}, {t1}, 192\ns_and_b32 {t2}, {sW}, 1\ns_lshl_b32 {t2}, {t2}, 6\ns_add_u32 {t1}, {t1}, {t2}\ns_add_u32 {t1}, {t1}, {L_XS}\nv_add_u32 {vXW}, {t1}, v117')
    A(f's_mul_i32 {t1}, {g3}, 320\ns_add_u32 {t1}, {t1}, {L_QS}\nv_lshl_add_u32 {vQW}, v121, 2, {vTMP}\nv_add_u32 {vQW}, {t1}, {vQW}')
    A(f's_mul_i32 {t1}, {g3}, 192\ns_add_u32 {t1}, {t1}, {L_HS}\nv_lshlrev_b32 {vHW}, 3, v120\nv_lshl_add_u32 {vHW}, v121, 1, {vHW}\nv_add_u32 {vHW}, {t1}, {vHW}')
    A(f'v_mul_u32_u24 {vBR320}, 320, v122\nv_lshl_add_u32 {vBR320}, v121, 4, {vBR320}\nv_add_u32 {vBR320}, {L_QS}, {vBR320}')
    A(f'v_mul_u32_u24 {vBR192}, 192, v122\nv_lshl_add_u32 {vBR192}, v121, 4, {vBR192}\nv_add_u32 {vBR192}, {L_HS}, {vBR192}')
    A(f'v_min_u32 {vTMP2}, 4, v120\nv_mul_u32_u24 {vXR}, 192, {vTMP2}\nv_lshl_add_u32 {vXR}, v121, 4, {vXR}\nv_add_u32 {vXR}, {L_XS}, {vXR}')
    A(f's_lshl_b32 {t1}, {g3}, 5\nv_lshlrev_b32 {vTMP2}, 7, v120\nv_lshl_add_u32 {vTMP2}, v121, 3, {vTMP2}\nv_add_u32 {vTMP2}, {t1}, {vTMP2}\nv_cmp_gt_u32 vcc, 4, v120'); sel(vXst, 'v118', vTMP2)
    A(f'v_lshlrev_b32 {vTMP2}, 4, {vL}\nv_add_u32 {vROW}, {sRING}, {vTMP2}')
    A(f's_lshr_b32 {t1}, {g3}, 1\ns_lshl_b32 {t1}, {t1}, 10\ns_and_b32 {t2}, {g3}, 1\ns_lshl_b32 {t2}, {t2}, 3\ns_add_u32 {t1}, {t1}, {t2}\nv_add_u32 {vROR}, {t1}, {vTMP2}')
    A(f's_lshl_b32 {t1}, {sW}, 3\ns_add_u32 {t1}, {t1}, {L_RM}\nv_lshlrev_b32 {vRMW}, 6, v122\nv_add_u32 {vRMW}, {t1}, {vRMW}')
    A(f's_lshl_b32 {t1}, {g3}, 6\ns_add_u32 {t1}, {t1}, {L_RM}\nv_add_u32 {vRMR}, {t1}, {vSt8}')
    A(f'v_lshl_add_u32 v125, v121, 3, v123')
    A(f'v_xor_b32 {vTMP}, {g3}, v123\nv_lshlrev_b32 {vTMP}, 6, {vTMP}\nv_lshl_add_u32 {vTMP}, v122, 4, {vTMP}\nv_lshl_add_u32 {vWQr}, v125, 8, {vTMP}\nv_add_u32 {vWQr}, {L_WQ}, {vWQr}')
    A(f'v_lshrrev_b32 v119, 1, v123\nv_and_b32 v127, 1, v121\nv_lshlrev_b32 {vTMP}, 1, v127')
    A(f'v_xor_b32 {vTMP}, {g3}, {vTMP}\nv_lshlrev_b32 {vTMP}, 5, {vTMP}\nv_lshl_add_u32 {vTMP}, v122, 3, {vTMP}\nv_lshl_add_u32 {vWr}, v125, 7, {vTMP}\nv_add_u32 {vWr}, {L_WG}, {vWr}')
    A(f'v_and_b32 v126, 1, v123\nv_lshlrev_b32 {vTMP}, 1, v126\nv_xor_b32 {vTMP}, {g3}, {vTMP}\nv_lshlrev_b32 {vTMP}, 5, {vTMP}\nv_lshl_add_u32 {vTMP}, v122, 3, {vTMP}')
    A(f'v_lshl_add_u32 {vTMP2}, v121, 2, v119\nv_lshl_add_u32 {vTMP2}, v126, 6, {vTMP2}\nv_lshl_add_u32 {vWOr}, {vTMP2}, 7, {vTMP}\nv_add_u32 {vWOr}, {L_WO}, {vWOr}')
    A(f'v_and_b32 v125, 1, v120\nv_mov_b32 {vTMP}, 0xffff\nv_mov_b32 {vTMP2}, 0xffff0000\nv_cmp_eq_u32 vcc, 1, v125'); sel('v119', vTMP, vTMP2)
    A(f'v_cmp_gt_u32 vcc, 2, v122'); sel('v119', '0', 'v119')
    for i in range(4):
        A(f'v_cmp_eq_u32 vcc, {i}, v123'); sel(f'v{MASK+i}', '0', 'v119'); A(f'v_and_b32 v{32+i}, 0x3f803f80, v{MASK+i}')
    A(f'v_mov_b32 {vTMP}, 0x3f80\nv_mov_b32 {vTMP2}, 0x3f800000\nv_cmp_eq_u32 vcc, 1, v126'); sel('v119', vTMP, vTMP2)
    A(f'v_cmp_gt_u32 vcc, 2, v122'); sel('v119', '0', 'v119')
    A(f'v_lshrrev_b32 {vTMP}, 1, v123\nv_lshl_add_u32 {vTMP}, v125, 1, {vTMP}')
    for i in range(4):
        A(f'v_cmp_eq_u32 vcc, {i}, {vTMP}'); sel(f'v{40+i}', '0', 'v119')
    A('v_mov_b32 v44, 0x3f803f80\nv_mov_b32 v45, 0x3f803f80')
    A(f'v_and_b32 {vTMP2}, 7, {vL}\nv_lshrrev_b32 v119, 3, {vL}')
    A(f's_lshr_b32 {t1}, {sW}, 2\ns_lshl_b32 {t1}, {t1}, 2\nv_xor_b32 {vTMP}, {t1}, {vTMP2}\nv_lshlrev_b32 {vTMP}, 4, {vTMP}\nv_lshl_add_u32 v124, v119, 10, {vTMP}')
    A(f's_and_b32 {t1}, {sW}, 1\ns_lshl_b32 {t1}, {t1}, 2\nv_xor_b32 {vTMP}, {t1}, {vTMP2}\nv_lshlrev_b32 {vTMP}, 4, {vTMP}')
    A(f'v_lshl_add_u32 v127, v119, 10, {vTMP}\nv_mul_u32_u24 v126, 3584, v119\nv_add_u32 v126, v126, {vTMP}')
    A(f's_cmp_ge_u32 {sG}, 4\ns_cselect_b32 {t2}, 3, 4\ns_cmp_lt_u32 {sHI}, {t2}\ns_cselect_b32 {t2}, 0, {OOB}\nv_add_u32 v126, {t2}, v126\nv_add_u32 v127, {t2}, v127')
    A(f'v_lshlrev_b32 {vTMP}, 1, v123\nv_xor_b32 {vTMP}, v121, {vTMP}\nv_lshlrev_b32 {vTMP}, 5, {vTMP}\nv_lshl_add_u32 {vTMP}, v122, 3, {vTMP}\nv_lshl_add_u32 {vTMP}, v123, 8, {vTMP}\nv_add_u32 v122, {sRING}, {vTMP}\nv_xor_b32 v123, 128, v122')
    A(f'v_and_b32 {vTMP}, 3, v120\nv_lshlrev_b32 {vTMP}, 6, {vTMP}\nv_lshl_add_u32 {vTMP}, v121, 4, {vTMP}\nv_lshl_add_u32 {vTMP}, v120, 8, {vTMP}\nv_add_u32 v118, {sRING}, {vTMP}')
    for j in range(1, 4): A(f'v_xor_b32 v{118+j}, {64*j}, v118')
    A(f'v_and_b32 {vTMP}, 124, {vL4}\nv_add_u32 {vTMP}, {L_XS+4*192}, {vTMP}\nds_write_b32 {vTMP}, v44')
    A(f'v_mov_b32 {vTMP}, {L_FL}\nv_mov_b32 {vTMP2}, 0\nds_write_b32 {vTMP}, {vTMP2}')

    def read_k(i):
        for j in range(4): A(f'ds_read_b128 a[{16*i+4*j}:{16*i+4*j+3}], v{118+j} offset:{(i&1)*4096}')
    def read_v(p):
        i = p - 16
        for hf in range(2):
            r = 64 + 4 * i + 2 * hf
            A(f'ds_read_b64_tr_b16 a[{r}:{r+1}], v{122+hf} offset:{((p//4)&1)*4096 + (p%4)*1024}')
    if not late47:
        for p in range(burst, 8): piece(p)
    if diag: xstamp(40)
    A.wait_vm('ep')
    if diag: xstamp(41)
    A(f'v_and_b32 v113, 0xffff0000, v68\nv_lshlrev_b32 v112, 16, v68')
    A(f'v_readfirstlane_b32 {sTAG}, v69\ns_add_u32 {sTAG}, {sTAG}, 1')
    A('v_dot2_f32_bf16 v78, v72, v44, 0\nv_dot2_f32_bf16 v79, v72, v72, 0')
    for k in range(73, 76): A(f'v_dot2_f32_bf16 v78, v{k}, v44, v78\nv_dot2_f32_bf16 v79, v{k}, v{k}, v79')
    for m in ('quad_perm:[1,0,3,2]', 'quad_perm:[2,3,0,1]', 'row_half_mirror', 'row_mirror'):
        A(f'v_add_f32_dpp v78, v78, v78 {m} {DPP}\nv_add_f32_dpp v79, v79, v79 {m} {DPP}')
    for sw in ('v_permlane16_swap_b32', 'v_permlane32_swap_b32'):
        A(f'v_mov_b32 v76, v78\nv_mov_b32 v77, v79\n{sw} v78, v76\n{sw} v79, v77\nv_add_f32 v78, v78, v76\nv_add_f32 v79, v79, v77')
    c2 = QSCALE * QSCALE
    A(f'v_mov_b32 v75, {f32(1e-5/c2)}\nv_mul_f32 v74, v78, v78\nv_fmac_f32 v75, {f32(1/(512*c2))}, v79\nv_fmac_f32 v75, {f32(-1/(512*512*c2))}, v74\nv_max_f32 v75, {f32(1e-5/c2)}, v75\nv_rsq_f32 v74, v75')
    A(f'v_mul_f32 v78, {f32(-1/512)}, v78\nv_add_f32 v72, v112, v78\nv_add_f32 v73, v113, v78\nv_mul_f32 v72, v72, v74\nv_mul_f32 v73, v73, v74\nv_cvt_pk_bf16_f32 v72, v72, v73\nds_write_b32 {vXW}, v72')
    if late47:
        for p in range(burst, 8): piece(p)
    if diag: xstamp(42)
    A.wait_vm('wq')
    if diag: xstamp(43)
    if bar_after_k0:
        A.wait_vm('p3')
        read_k(0)
        A('s_waitcnt lgkmcnt(0)')
        for p in range(8, 12): piece(p)
    A('s_waitcnt lgkmcnt(0)')
    if 'B' not in abl: A('s_barrier')
    stamp()

    def read_wq():
        for tl in range(2):
            for j in range(2):
                for u in range(2):
                    r = 48 + 8 * tl + 4 * j + 2 * u
                    A(f'ds_read_b64_tr_b16 v[{r}:{r+1}], {vWQr} offset:{8*tl+8192*j+1024*u}')
    def read_gu():
        for tl in range(2):
            for j in range(2):
                for u in range(2):
                    r = 48 + 8 * tl + 4 * j + 2 * u
                    A(f'ds_read_b64_tr_b16 v[{r}:{r+1}], {vWr} offset:{8192*tl+4096*j+512*u}')
    def read_wd():
        for j in range(2):
            for u in range(2):
                A(f'ds_read_b64_tr_b16 v[{48+4*j+2*u}:{49+4*j+2*u}], {vWr} offset:{16384+4096*j+512*u}')
    def read_wo():
        for j in range(4):
            for u in range(2):
                A(f'ds_read_b64_tr_b16 v[{48+4*j+2*u}:{49+4*j+2*u}], {vWOr} offset:{2048*j+256*u}')
    def matvec(vst, mode, late_w=None, soff='0'):
        A(f'ds_read_b128 v[80:83], {vXR}\nds_read_b128 v[84:87], {vXR} offset:64')
        if late_w: late_w()
        A('s_waitcnt lgkmcnt(0)' if late_w else 's_waitcnt lgkmcnt(1)')
        A(f'{M16} v[96:99], v[48:51], v[80:83], 0\n{M16} v[104:107], v[56:59], v[80:83], 0')
        if not late_w: A('s_waitcnt lgkmcnt(0)')
        A(f'{M16} v[96:99], v[52:55], v[84:87], v[96:99]\n{M16} v[104:107], v[60:63], v[84:87], v[104:107]')
        if mode == 'plain':
            A(f's_cmp_eq_u32 {sFAST}, 1')
            A('v_cvt_pk_bf16_f32 v96, v96, v97\nv_cvt_pk_bf16_f32 v97, v98, v99\nv_cvt_pk_bf16_f32 v98, v104, v105\nv_cvt_pk_bf16_f32 v99, v106, v107')
            lstore(f'buffer_store_dwordx4 v[96:99], {vst}, {WS}, {soff} offen', cmp=False)
            return
        A(f'v_mov_b32 v102, {sTAG}\nv_mov_b32 v103, s64')
        A(f'v_cvt_pk_bf16_f32 v100, v96, v97\nv_cvt_pk_bf16_f32 v101, v98, v99\nv_cvt_pk_bf16_f32 v104, v104, v105\nv_cvt_pk_bf16_f32 v105, v106, v107')
        A(f'v_mov_b32 v106, {sTAG}\nv_mov_b32 v107, s64')
        if mode == 'q0':
            A.vmop(f'buffer_store_dwordx4 v[100:103], {vst}, {WS}, 0 offen', 'st')
            A.vmop(f'buffer_store_dwordx4 v[104:107], {vst}, {WS}, 0 offen offset:256', 'st')
        else:
            lstore(f'buffer_store_dwordx4 v[100:103], {vst}, {WS}, 0 offen\nbuffer_store_dwordx4 v[104:107], {vst}, {WS}, 0 offen offset:256')
    def slice_stats(sst):
        l = lab('st')
        A(f's_cmp_lg_u32 {sW}, 4\ns_cbranch_scc1 {l}')
        A(f'ds_read_b128 v[80:83], {vXR}\nds_read_b128 v[84:87], {vXR} offset:64\ns_waitcnt lgkmcnt(1)')
        A(f'{M16} v[104:107], v[80:83], v[80:83], 0\ns_waitcnt lgkmcnt(0)\n{M16} v[104:107], v[84:87], v[84:87], v[104:107]')
        def pick():
            A('v_cndmask_b32 v104, v104, v105, s[80:81]\nv_cndmask_b32 v106, v106, v107, s[80:81]\nv_cndmask_b32 v104, v104, v106, s[82:83]')
        A('s_mov_b64 s[80:81], 10\ns_mov_b64 s[82:83], 12')
        A(f's_cmp_eq_u32 {sFAST}, 1')
        pick()
        lstore(f'buffer_store_dword v104, {vSSt}, {WS}, {sst} offen', cmp=False)
        A.vm.pop()
        A(f'{l}:')

    def issue_g1(dst, voff, sbase, tag, step=4096):
        A.vmop(f'buffer_load_dwordx4 v[{dst}:{dst+3}], {voff}, {WS}, {sbase} offen sc1', tag)
        if step >= 4096:
            A(f's_add_u32 {t1}, {sbase}, {step}')
            A.vmop(f'buffer_load_dwordx4 v[{dst+4}:{dst+7}], {voff}, {WS}, {t1} offen sc1', tag)
        else:
            A.vmop(f'buffer_load_dwordx4 v[{dst+4}:{dst+7}], {voff}, {WS}, {sbase} offen offset:{step} sc1', tag)
    def check_empty(regs):
        regs = list(regs)
        A(f'v_max3_u32 {vTMP}, v{regs[0]}, v{regs[1]}, v{regs[2]}'); rest = regs[3:]
        if len(rest) >= 5:
            A(f'v_max3_u32 {vTMP2}, v{rest[0]}, v{rest[1]}, v{rest[2]}'); rest = rest[3:]
            tg = 0
            while len(rest) >= 2:
                d = (vTMP, vTMP2)[tg]; A(f'v_max3_u32 {d}, {d}, v{rest[0]}, v{rest[1]}'); rest = rest[2:]; tg ^= 1
            if rest: A(f'v_max3_u32 {vTMP}, {vTMP}, {vTMP2}, v{rest[0]}')
            else: A(f'v_max_u32 {vTMP}, {vTMP}, {vTMP2}')
        else:
            while len(rest) >= 2:
                A(f'v_max3_u32 {vTMP}, {vTMP}, v{rest[0]}, v{rest[1]}'); rest = rest[2:]
            if rest: A(f'v_max_u32 {vTMP}, {vTMP}, v{rest[0]}')
        A(f'v_cmp_eq_u32 vcc, -1, {vTMP}')
    def poll(issue, regs, spec=None):
        r, d = lab('retry'), lab('got')
        A(f'{r}:')
        issue()
        A.wait_vm()
        if spec: spec()
        check_empty(regs)
        tl = lab('again')
        A(f's_cbranch_vccnz {tl}\n{d}:')
        tails.append(f'{tl}:\n' + (f's_sleep {backoff}\n' if backoff else '') + f's_sub_u32 {sTO}, {sTO}, 1\ns_cbranch_scc0 {r}\ns_mov_b32 {sTO}, 0\ns_branch {d}')
    def poll2(issue, nld, regs, spec):
        d, sb, sa = lab('got'), lab('setb'), lab('seta')
        issue(0)
        if dstep: A(f's_sleep {dstep}')
        issue(1)
        A(f'{sa}:\ns_waitcnt vmcnt({nld})')
        spec(0); check_empty(regs(0))
        A(f's_cbranch_vccnz {sb}\n{d}:')
        keepL, A.L = A.L, []
        A(f'{sb}:'); issue(0)
        A(f's_waitcnt vmcnt({nld})\ns_nop 1')
        spec(1); check_empty(regs(1))
        A(f's_nop 1\ns_cbranch_vccz {d}')
        issue(1)
        A(f's_sub_u32 {sTO}, {sTO}, 1\ns_cbranch_scc0 {sa}\ns_mov_b32 {sTO}, 0\ns_branch {d}')
        tails.append('\n'.join(A.L)); A.L = keepL
        A.vm = []
    def ln_poll2(sdata, sstat, selop):
        def iss(k):
            issue_g1(64 + 16 * k, vG1, sdata, 'x')
            A.vmop(f'buffer_load_dwordx2 v[{72+16*k}:{73+16*k}], {vSt8}, {WS}, {sstat} offen sc1', 'x')
        def spec(k):
            b = 64 + 16 * k
            A(f'{M16} v[96:99], {selop}, v[{b}:{b+3}], 0\n{M16} v[96:99], {selop}, v[{b+4}:{b+7}], v[96:99]')
            A(f'v_add_f32_dpp v78, v{b+8}, v{b+8} quad_perm:[1,0,3,2] {DPP}\nv_add_f32_dpp v79, v{b+9}, v{b+9} quad_perm:[1,0,3,2] {DPP}')
        poll2(iss, 3, lambda k: range(64 + 16 * k, 74 + 16 * k), spec)
    def issue_q(first):
        if not first:
            issue_g1(64, vG1, sQg, 'q')
            A.vmop(f'buffer_load_dwordx2 v[72:73], {vSt8}, {WS}, {sQSg} offen sc1', 'q')
            return
        issue_tagged(f's_mov_b32 {t1}, s101')
    def issue_tagged(base, dst=80, voff=None, kstep=8192, hstep=256):
        if voff is None:
            A(f'v_and_b32 {vTMP2}, 0xf0, {vG1}\nv_lshlrev_b32 {vTMP}, 1, {vG1}\nv_sub_u32 {vTMP}, {vTMP}, {vTMP2}')
        else: A(voff)
        A(base + f'\ns_add_u32 {t2}, {t1}, {kstep}')
        for k in range(2):
            for hh in range(2):
                r = dst[2 * k + hh] if isinstance(dst, tuple) else dst + 8 * k + 4 * hh
                A.vmop(f'buffer_load_dwordx4 v[{r}:{r+3}], {vTMP}, {WS}, {(t1, t2)[k]} offen offset:{hstep*hh} sc1', 'q')
    def issue_o0():
        issue_tagged(f's_lshl_b32 {t1}, {sG}, 2\ns_add_u32 {t1}, {t1}, {sHI}\ns_lshl_b32 {t0}, {t1}, 2\ns_lshl_b32 {t1}, {t1}, 14\ns_add_u32 {t1}, {t1}, {TOP}', o0dst[0])
        A(f's_add_u32 {t0}, {t0}, {sW}\ns_lshl_b32 {t0}, {t0}, 7\ns_add_u32 {t0}, {t0}, {TML}\nv_lshlrev_b32 {vTMP2}, 1, {vML2}')
        m_ = o0ml[0]
        A.vmop(f'buffer_load_dwordx4 v[{m_}:{m_+3}], {vTMP2}, {WS}, {t0} offen sc1', 'q')
        A.vmop(f'buffer_load_dwordx4 v[{m_+4}:{m_+7}], {vTMP2}, {WS}, {t0} offen offset:64 sc1', 'q')
    o0dst = [80]; o0ml = [64]
    def check_words(words, sval):
        w = list(words)
        A(f'v_xor_b32 {vTMP}, {sval}, v{w[0]}')
        for x in w[1:]: A(f'v_xor_b32 {vTMP2}, {sval}, v{x}\nv_or_b32 {vTMP}, {vTMP}, {vTMP2}')
        A(f'v_cmp_ne_u32 vcc, 0, {vTMP}')
    def check_tags(words=(82, 86, 90, 94)): check_words(words, sTAG)
    def tagged_sum(selbase=32, src=80, acc=96, selk=0):
        for n_, (k, hh) in enumerate(((0, 0), (0, 1), (1, 0), (1, 1))):
            r = src[2 * k + hh] if isinstance(src, tuple) else src + 8 * k + 4 * hh
            sb = selbase + selk * k + 2 * hh
            c = '0' if n_ == 0 else f'v[{acc}:{acc+3}]'
            A(f'v_mfma_f32_16x16x16_bf16 v[{acc}:{acc+3}], v[{sb}:{sb+1}], v[{r}:{r+1}], {c}')
    def q0_finish():
        tagged_sum()
        check_words((83, 87, 91, 95), 's64')
        A(f's_cmp_eq_u64 vcc, 0\ns_cselect_b32 {sGOK}, 1, 2')
        A(f'v_cvt_pk_bf16_f32 v96, v96, v97\nds_write_b32 {vQW}, v96')
    def tagged_poll(issue, words=(82, 86, 90, 94), spec=None, back=0):
        rq, gq = lab('rq'), lab('gq')
        A(f'{rq}:')
        issue(); A.wait_vm()
        if spec: spec()
        check_tags(words)
        A(f's_cbranch_vccz {gq}')
        if back: A(f's_sleep {back}')
        A(f's_sub_u32 {sTO}, {sTO}, 1\ns_cbranch_scc0 {rq}\ns_mov_b32 {sTO}, 0\n{gq}:')
    CQ = (48, 52, 56, 60)
    def issue_csq(): issue_tagged(f's_lshl_b32 {t1}, {sG}, 14\ns_add_u32 {t1}, {t1}, {TQC}', CQ)
    def finish_csq():
        ok_ = lab('cq')
        check_tags(tuple(r + 2 for r in CQ))
        A(f's_cbranch_vccz {ok_}')
        tagged_poll(issue_csq, tuple(r + 2 for r in CQ))
        A(f'{ok_}:')
        tagged_sum(32, CQ, 64)
        A(f's_mov_b32 {t2}, {f32(1/512)}\nv_pk_mul_f32 {CSQ}, v[64:65], s[56:57] op_sel_hi:[1,0]')
    QREGS = list(range(64, 74)); QREGS1 = QREGS + list(range(80, 88))
    def ln_spec(selop, first):
        def f():
            A(f'{M16} v[96:99], {selop}, v[64:67], 0\n{M16} v[96:99], {selop}, v[68:71], v[96:99]')
            if first:
                A(f'{M16} v[100:103], {selop}, v[80:83], 0\n{M16} v[100:103], {selop}, v[84:87], v[100:103]')
            A(f'v_add_f32_dpp v78, v72, v72 quad_perm:[1,0,3,2] {DPP}\nv_add_f32_dpp v79, v73, v73 quad_perm:[1,0,3,2] {DPP}')
        return f
    def ln_finish(cs, scale, first, csrc=100):
        for m in ('quad_perm:[2,3,0,1]', 'row_half_mirror'):
            A(f'v_add_f32_dpp v78, v78, v78 {m} {DPP}\nv_add_f32_dpp v79, v79, v79 {m} {DPP}')
            if m.startswith('quad'): A(f'v_mov_b32 v75, {f32(1e-5/(scale*scale))}')
        c2 = scale * scale
        A(f'v_mul_f32 v74, v78, v78\nv_fmac_f32 v75, {f32(1/(512*c2))}, v79')
        if first:
            A(f's_mov_b32 {t2}, {f32(1/512)}\nv_pk_mul_f32 {cs}, v[{csrc}:{csrc+1}], s[56:57] op_sel_hi:[1,0]')
        A(f'v_fmac_f32 v75, {f32(-1/(512*512*c2))}, v74\nv_max_f32 v75, {f32(1e-5/c2)}, v75\nv_rsq_f32 v74, v75')
        A(f'v_pk_fma_f32 v[96:97], v[78:79], {cs}, v[96:97] op_sel_hi:[0,1,1] neg_lo:[1,0,0] neg_hi:[1,0,0]')
        A(f'v_pk_mul_f32 v[96:97], v[96:97], v[74:75] op_sel_hi:[1,0]')
    def q_finish(first):
        ln_finish(CSQ, QSCALE, first)
        A(f'v_cvt_pk_bf16_f32 v96, v96, v97\nds_write_b32 {vQW}, v96')

    save = list(A.vm)
    with lowwaves():
        read_wq()
        A('s_waitcnt lgkmcnt(0)')
        if 'Q' not in abl: matvec('v109', 'q0')
    stamp()

    def issue_wo():
        A(f's_lshl_b32 {t1}, {sG}, 9\ns_lshl_b32 {t2}, {sHI}, 7\ns_add_u32 {t1}, {t1}, {t2}\ns_lshl_b32 {t2}, {sW}, 4\ns_add_u32 {t1}, {t1}, {t2}\ns_lshl_b32 {t1}, {t1}, 10\ns_lshl_b32 {t2}, {sLO}, 7\ns_add_u32 {t1}, {t1}, {t2}')
        A(f's_lshl_b32 {t2}, {sW}, 11\ns_add_u32 m0, {t2}, {L_WO}')
        A.vmop(f'buffer_load_dwordx4 v124, {WO}, {t1} offen nt lds', 'wo')
        A(f's_add_u32 {t1}, {t1}, 8192\ns_add_u32 m0, m0, 1024')
        A.vmop(f'buffer_load_dwordx4 v124, {WO}, {t1} offen nt lds', 'wo')

    def issue_ffn(dw=0, track=False, parts='gud'):
        vm_ = (lambda x: A.vmop(x, 'ffn')) if track else A
        A(f's_add_u32 {t0}, {sW}, {dw}')
        if 'g' in parts:
            A(f's_lshl_b32 {t1}, {sLO}, 6\ns_lshl_b32 {t2}, {t0}, 3\ns_add_u32 {t1}, {t1}, {t2}\ns_mul_i32 {t1}, {t1}, 3584\ns_lshl_b32 {t2}, {g2}, 7\ns_add_u32 {t1}, {t1}, {t2}')
        A(f's_lshl_b32 {t2}, {t0}, 10\ns_add_u32 m0, {t2}, {L_WG}')
        if 'g' in parts:
            vm_(f'buffer_load_dwordx4 v126, {WG}, {t1} offen nt lds')
            A(f's_add_u32 m0, {t2}, {L_WU}')
            vm_(f'buffer_load_dwordx4 v126, {WU}, {t1} offen nt lds')
        if 'd' not in parts: return
        A(f's_lshl_b32 {t1}, {g2}, 6\ns_lshl_b32 {t3}, {t0}, 3\ns_add_u32 {t1}, {t1}, {t3}\ns_lshl_b32 {t1}, {t1}, 10\ns_lshl_b32 {t3}, {sLO}, 7\ns_add_u32 {t1}, {t1}, {t3}\ns_add_u32 m0, {t2}, {L_WD}')
        vm_(f'buffer_load_dwordx4 v127, {WD}, {t1} offen nt lds')
    wait_of = {}
    d = 6
    for p_ in range(12, 32):
        tgt = depth if p_ < deep_from else deep
        need_d = p_ - tgt
        if p_ in (12, 16, 20): need_d = max(need_d, p_ - 5)
        if need_d > d: wait_of[p_] = list(range(d + 1, need_d + 1)); d = need_d
        else: wait_of[p_] = []
    last_read = d
    def step(p):
        for d_ in wait_of[p]:
            A.wait_vm(f'p{d_}')
            if d_ < 16:
                if d_ % 4 == 3: read_k(d_ // 4); A('s_waitcnt lgkmcnt(0)')
            else:
                A('s_waitcnt lgkmcnt(0)')
                read_v(d_)
            if diag and d_ in (7, 11, 15, 19, 23): xstamp(45 + (d_ - 7) // 4)
        if ffn_at and p == ffn_at and len(tail_parts) < 3: issue_ffn(0, True, ''.join(c_ for c_ in 'gud' if c_ not in tail_parts))
        if p == wo_at: issue_wo()
        piece(p)
    hi_l, join_all, flag_l = lab('shi'), lab('sj'), lab('fl')
    def lead_in():
        if not bar_after_k0:
            A.wait_vm('p3')
            if diag: xstamp(44)
            read_k(0); A('s_waitcnt lgkmcnt(0)')
            for pp in range(8, 12): piece(pp)
    lowcode = [True]
    def steps(lo_, hi_):
        for pp in range(lo_, hi_):
            if pp == touch_o and lowcode[0]:
                n_ = len(A.vm); o0dst[0] = 48; issue_o0(); o0dst[0] = 80
                A.vm[n_:] = ['touch'] * (len(A.vm) - n_)
            if pp == csq_at and lowcode[0]:
                n_ = len(A.vm); issue_csq(); A.vm[n_:] = ['csq'] * (len(A.vm) - n_)
            step(pp)
    A(f's_cmp_ge_u32 {sW}, 4\ns_cbranch_scc1 {hi_l}')
    lead_in()
    p = 12
    while p < 32:
        if p in rides:
            skip, join = lab('noq'), lab('jn')
            saved = list(A.vm)
            A(f's_cmp_lg_u32 {sGOK}, 0\ns_cbranch_scc1 {skip}')
            issue_q(True)
            steps(p, p + 5)
            if 'q' in A.vm: A.wait_vm('q')
            check_tags()
            nq = lab('nq')
            A(f's_cbranch_vccnz {nq}')
            q0_finish()
            A(f'{nq}:\ns_branch {join}\n{skip}:')
            after_q = list(A.vm)
            A.vm = saved
            steps(p, p + 5)
            extra = len(A.vm) - len(after_q)
            assert A.vm[extra:] == after_q, (A.vm, after_q)
            A.vm = after_q if extra <= 0 else A.vm
            A(f'{join}:')
            p += 5
        else:
            steps(p, p + 1); p += 1
    saved = list(A.vm)
    def put_status():
        A(f's_lshl_b32 {t1}, {sW}, 2\ns_add_u32 {t1}, {t1}, {L_ST}\nv_mov_b32 {vTMP}, {t1}\nv_mov_b32 {vTMP2}, {sGOK}\nds_write_b32 {vTMP}, {vTMP2}')
    def get_status():
        A(f'v_mov_b32 {vTMP}, {L_ST}\nds_read_b128 v[72:75], {vTMP}\ns_waitcnt lgkmcnt(0)')
        check_words((72, 73, 74, 75), '1')
        A('s_cmp_eq_u64 vcc, 0')
    put_status()
    A(f's_branch {join_all}\n{hi_l}:')
    A.vm = save; lowcode[0] = False
    lead_in()
    steps(12, 32)
    saved = list(A.vm)
    A(f'{join_all}:')
    stamp()
    A('s_waitcnt lgkmcnt(0)\ns_barrier')
    get_status()
    okq = lab('okq')
    A(f's_cbranch_scc1 {okq}')
    if not abl:
        with lowwaves():
            A(f'buffer_store_dwordx4 v[100:103], v109, {WS}, 0 offen sc1\nbuffer_store_dwordx4 v[104:107], v109, {WS}, 0 offen offset:256 sc1')
            dn = lab('qdone')
            A(f's_cmp_lg_u32 {sGOK}, 0\ns_cbranch_scc1 {dn}')
            tagged_poll(lambda: issue_q(True))
            q0_finish()
            A(f'{dn}:')
        A('s_barrier')
        with lowwaves(): put_status()
        A('s_waitcnt lgkmcnt(0)\ns_barrier')
        get_status()
    A(f'{okq}:\ns_cselect_b32 {sFAST}, 1, 0')
    A.vm = saved
    def issue_ffn_any(dw):
        if dw & 1: A('v_xor_b32 v126, 64, v126\nv_xor_b32 v127, 64, v127')
        issue_ffn(dw, False, ''.join(c_ for c_ in 'gud' if c_ not in tail_parts))
        if dw & 1: A('v_xor_b32 v126, 64, v126\nv_xor_b32 v127, 64, v127')
    def first_only(f):
        def g():
            l, bk = lab('fo'), lab('bk')
            A(f's_cmp_eq_u32 {sLIDX}, 0\ns_cbranch_scc1 {l}\n{bk}:')
            keepL, A.L = A.L, []
            A(f'{l}:'); f(); A(f's_branch {bk}')
            tails.append('\n'.join(A.L)); A.L = keepL
        return g
    def variant(first, later):
        l, bk = lab('v0'), lab('vj')
        A(f's_cmp_eq_u32 {sLIDX}, 0\ns_cbranch_scc1 {l}')
        n0 = nts[0]
        later()
        A(f'{bk}:')
        n1, nts[0] = nts[0], n0
        keepL, A.L = A.L, []
        A(f'{l}:'); first(); A(f's_branch {bk}')
        tails.append('\n'.join(A.L)); A.L = keepL
        assert nts[0] == n1
    def later_only(f):
        l = lab('lo'); A(f's_cmp_eq_u32 {sLIDX}, 0\ns_cbranch_scc1 {l}'); f(); A(f'{l}:')
    def scores(bar=True):
        if bar: A('s_waitcnt lgkmcnt(0)\ns_barrier')
        for j in range(4): A(f'ds_read_b128 v[{64+4*j}:{67+4*j}], {vBR320} offset:{64*j}')
        def sel_t(t, rs):
            for r in rs: A(f'v_mov_b32_dpp v{80+r}, v{80+4*t+r} quad_perm:[0,1,2,3] row_mask:0xf bank_mask:{1<<t:#x}')
        if tmajor:
            for t in range(4):
                for j in range(4):
                    if t == 0: A(f's_waitcnt lgkmcnt({3-j})')
                    c = '0' if j == 0 else f'v[{80+4*t}:{83+4*t}]'
                    A(f'{M16} v[{80+4*t}:{83+4*t}], a[{16*t+4*j}:{16*t+4*j+3}], v[{64+4*j}:{67+4*j}], {c}')
            sel_t(1, range(4)); sel_t(2, range(4)); sel_t(3, range(4))
        else:
            for j in range(4):
                A(f's_waitcnt lgkmcnt({3-j})')
                for t in range(4):
                    c = '0' if j == 0 else f'v[{80+4*t}:{83+4*t}]'
                    A(f'{M16} v[{80+4*t}:{83+4*t}], a[{16*t+4*j}:{16*t+4*j+3}], v[{64+4*j}:{67+4*j}], {c}')
            for t in range(1, 4): sel_t(t, range(4))
        A('v_max3_f32 v84, v80, v81, v82\nv_max_f32 v84, v84, v83')
        A(f'v_max_f32_dpp v84, v84, v84 row_ror:4 {DPP}')
        A(f'v_max_f32_dpp v84, v84, v84 row_ror:8 {DPP}')
        A('v_mov_b32 v85, v84\nv_permlane16_swap_b32 v84, v85\nv_max_f32 v84, v84, v85')
        A('v_mov_b32 v85, v84\nv_permlane32_swap_b32 v84, v85\nv_max_f32 v84, v84, v85')
        A('v_pk_add_f32 v[80:81], v[80:81], v[84:85] op_sel_hi:[1,0] neg_lo:[0,1] neg_hi:[0,1]')
        A('v_pk_add_f32 v[82:83], v[82:83], v[84:85] op_sel_hi:[1,0] neg_lo:[0,1] neg_hi:[0,1]')
        for r in range(4): A(f'v_exp_f32 v{80+r}, v{80+r}')
        A('v_cvt_pk_bf16_f32 v86, v80, v81\nv_cvt_pk_bf16_f32 v87, v82, v83')
        A(f'v_mfma_f32_16x16x16_bf16 v[88:91], {ONES}, v[86:87], 0')
    def pv(i):
        for hf in range(2):
            acc = 96 + 8 * (i & 1) + 4 * hf
            c = '0' if i < 2 else f'v[{acc}:{acc+3}]'
            A(f'v_mfma_f32_4x4x4_16b_bf16 v[{acc}:{acc+3}], v[86:87], a[{64+4*i+2*hf}:{65+4*i+2*hf}], {c} cbsz:4 abid:{4*(i&3)+(i>>2)}')
    def lsum():
        A(f'v_add_f32_dpp v85, v88, v88 row_ror:4 {DPP}')
        A(f'v_add_f32_dpp v85, v85, v85 row_ror:8 {DPP}')
        A(f's_mov_b64 exec, 15\nds_write_b64 {vRMW}, v[84:85]')
        full_exec()
    def combine(tagged=False, other=None):
        for h in range(4):
            A(f'v_add_f32 v{64+2*h}, v{96+h}, v{104+h}\nv_add_f32 v{65+2*h}, v{100+h}, v{108+h}')
            if h & 1: A(f'ds_write_b128 {vROW}, v[{62+2*h}:{65+2*h}] offset:{512*(h-1)}')
        A('s_waitcnt lgkmcnt(0)\ns_barrier')
        with lowwaves(other):
            A(f'ds_read_b64 v[72:73], {vRMR}')
            for k in range(8): A(f'ds_read_b64 v[{80+2*k}:{81+2*k}], {vROR} offset:{8192*k}')
            A('s_waitcnt lgkmcnt(8)')
            A(f'v_max_f32_dpp v74, v72, v72 quad_perm:[1,0,3,2] {DPP}')
            A(f'v_max_f32_dpp v74, v74, v74 quad_perm:[2,3,0,1] {DPP}')
            A(f'v_max_f32_dpp v74, v74, v74 row_half_mirror {DPP}')
            A('v_sub_f32 v72, v72, v74\nv_exp_f32 v72, v72')
            for k in range(8): A(f'v_readlane_b32 s{80+k}, v72, {k}')
            A('v_mul_f32 v75, v73, v72\ns_waitcnt lgkmcnt(0)')
            for k in range(8):
                sp = f's[{80+(k&~1)}:{81+(k&~1)}]'
                o = 'op_sel_hi:[1,0' if (k & 1) == 0 else 'op_sel:[0,1'
                d = 64 + 2 * (k & 1)
                if k < 2: A(f'v_pk_mul_f32 v[{d}:{d+1}], v[{80+2*k}:{81+2*k}], {sp} {o}]')
                else: A(f'v_pk_fma_f32 v[{d}:{d+1}], v[{80+2*k}:{81+2*k}], {sp}, v[{d}:{d+1}] {o},{1 if (k&1)==0 else 0}]')
            A('v_pk_add_f32 v[64:65], v[64:65], v[66:67]\nv_cvt_pk_bf16_f32 v64, v64, v65')
            def lsum8():
                for m in ('quad_perm:[1,0,3,2]', 'quad_perm:[2,3,0,1]', 'row_half_mirror'):
                    A(f'v_add_f32_dpp v75, v75, v75 {m} {DPP}')
            def pub_tagged():
                A(f'v_mov_b32 v66, {sTAG}\nv_mov_b32 v67, {sTAG}\nv_mov_b32_dpp v65, v64 quad_perm:[1,1,3,3] {DPP}')
                lstore(f'buffer_store_dwordx4 v[64:67], v118, {WS}, 0 offen')
                A(f'v_mov_b32 v76, {sTAG}\nv_mov_b32 v77, {sTAG}')
                A(f's_lshl_b32 {t1}, {sG}, 2\ns_add_u32 {t1}, {t1}, {sW}\ns_lshl_b32 {t1}, {t1}, 2\ns_add_u32 {t1}, {t1}, {sHI}\ns_lshl_b32 {t1}, {t1}, 3\ns_add_u32 {t1}, {t1}, {sLO}\ns_lshl_b32 {t1}, {t1}, 4\ns_add_u32 {t1}, {t1}, {TML}')
                lsum8()
                lstore(f'buffer_store_dwordx4 v[74:77], {vMLst}, {WS}, {t1} offen')
            def pub_plain():
                lstore(f'buffer_store_dword v64, {vL4}, {WS}, {sOPst} offen')
                lsum8()
                lstore(f'buffer_store_dwordx2 v[74:75], {vMLst}, {WS}, {sMLst} offen')
            if tagged is None: variant(pub_tagged, pub_plain)
            elif tagged: pub_tagged()
            else: pub_plain()

    A('v_mov_b32 v118, v110')
    A(f's_mul_i32 {t1}, {sC}, 1312\ns_add_u32 {t1}, {t1}, {sGBASE}\ns_add_u32 {t1}, {t1}, {bGP - 7168}\ns_sub_u32 {t2}, {sXst}, 7168')
    A(f'v_add_u32 v119, {t1}, v115\nv_add_u32 v120, {t2}, v115\nv_add_u32 {vTMP}, {oXB - oXA - 512}, v120\nv_cmp_lt_u32 vcc, 31, {vL}'); sel('v120', 'v120', vTMP)
    A(f'v_add_u32 v121, 1024, v119\nv_mov_b32 {vTMP}, {OOB}\nv_cmp_lt_u32 vcc, 17, {vL}'); sel('v121', 'v121', vTMP)
    A(f'v_cmp_gt_u32 vcc, 7168, v115'); sel('v119', 'v119', vTMP); sel('v120', 'v120', vTMP); sel('v121', 'v121', vTMP)
    def clean_urgent():
        A('v_mov_b32 v92, -1\nv_mov_b32 v93, -1\nv_mov_b32 v94, -1\nv_mov_b32 v95, -1')
        A.vmop(f'buffer_store_dwordx4 v[92:95], v119, {WS}, 0 offen sc1', 'cu')
        A.vmop(f'buffer_store_dwordx4 v[92:95], v120, {WS}, 0 offen sc1', 'cu')
        A.vmop(f'buffer_store_dwordx4 v[92:95], v121, {WS}, 0 offen sc1', 'cu')
    if share: A('s_branch L_scores\nL_scored:')
    else: scores(False)
    for i in range(last_read - 15): pv(i)
    lsum()
    stamp()
    for p in range(last_read + 1, 32):
        A.wait_vm(f'p{p}')
        read_v(p)
        if p == cl_at: clean_urgent()
        if p == wt_at:
            assert cl_at <= wt_at
            issue_wo()
            if tail_parts: issue_ffn(0, True, tail_parts)
        A('s_waitcnt lgkmcnt(0)')
        pv(p - 16)
        if p == max(csq_at, last_read + 1) and not abl:
            keep_vm = list(A.vm)
            with lowwaves(): finish_csq()
            A.vm = keep_vm
    stamp()
    if abl: A('s_branch L_fin')
    def flag_addr():
        A(f's_lshl_b32 {t1}, {sLO}, 10\ns_lshl_b32 {t2}, {sG}, 7\nv_and_b32 v68, 7, {vL}\nv_and_b32 v69, 24, {vL}\nv_lshlrev_b32 v68, 7, v68\nv_lshl_add_u32 v68, v69, 10, v68\nv_add_u32 v68, {t1}, v68')
        A(f'v_and_b32 v69, 31, {vL}\nv_lshlrev_b32 v69, 10, v69\nv_add_u32 v69, {t2}, v69\nv_cmp_lt_u32 vcc, 31, {vL}'); sel('v68', 'v68', 'v69')
        A(f's_mov_b32 {t1}, {TF}')
    def clean_rest():
        l_ = lab('cr')
        A(f's_cmp_lg_u32 {sW}, 7\ns_cbranch_scc1 {l_}')
        A(f'v_mov_b32 v64, -1\nv_mov_b32 v65, -1\nv_mov_b32 v66, -1\nv_mov_b32 v67, -1\nv_lshlrev_b32 v68, 2, {vL4}')
        A(f's_add_u32 {t1}, {sXst}, {LS}\nv_add_u32 v69, {oXB - oXA - 512}, v68\nv_cmp_lt_u32 vcc, 31, {vL}'); sel('v69', 'v68', 'v69')
        A(f'buffer_store_dwordx4 v[64:67], v69, {WS}, {t1} offen sc1')
        A(f's_mul_i32 {t2}, {sC}, 3168\ns_add_u32 {t2}, {t2}, {sGBASE}\ns_add_u32 {t2}, {t2}, {LS}')
        for k_ in range(3): A(f'buffer_store_dwordx4 v[64:67], v68, {WS}, {t2} offen offset:{1024*k_} sc1')
        A(f's_mov_b64 exec, 63\nbuffer_store_dwordx4 v[64:67], v68, {WS}, {t2} offen offset:3072 sc1\ns_mov_b64 exec, -1\n{l_}:')
    def clean_first():
        l_ = lab('c7')
        A(f's_cmp_lg_u32 {sW}, 7\ns_cbranch_scc1 {l_}')
        A(f's_lshl_b32 {t1}, s2, 7\ns_add_u32 {t1}, {t1}, {TF}\nv_mov_b32 v69, {sTAG}')
        if fullflag:
            A(f's_mov_b32 exec_hi, 0\ns_waitcnt vmcnt({2 + len(tail_parts)})\nbuffer_store_dword v69, {vL4}, {WS}, {t1} offen sc1')
        else:
            A(f's_mov_b64 exec, 1\ns_waitcnt vmcnt({2 + len(tail_parts)})\nbuffer_store_dword v69, off, {WS}, {t1} sc1')
        full_exec()
        n4 = lab('n4')
        if not use_early:
            A(f'{l_}:'); return
        A(f'{l_}:\ns_cmp_lg_u32 {sW}, 4\ns_cbranch_scc1 {n4}')
        flag_addr()
        A(f's_sleep {fearly}\nbuffer_load_dword v69, v68, {WS}, {t1} offen sc1\ns_waitcnt vmcnt(0)\nv_cmp_ne_u32 vcc, {sTAG}, v69\ns_cbranch_vccnz {n4}')
        A(f's_mov_b32 {sCNT}, 1\nv_mov_b32 v68, {L_FL}\nv_mov_b32 v69, 1\nds_write_b32 v68, v69\n{n4}:')
    if share:
        inloop[0] = True
        A('L_merge:')
        combine(None, first_only(clean_first))
    else: combine(True, clean_first)
    stamp(True)

    if prio:
        l_ = lab('pr'); A(f's_cmp_ge_u32 {sW}, 4\ns_cbranch_scc1 {l_}\ns_setprio 1\n{l_}:')
    A('L_layer:'); inloop[0] = True
    def proj_body(nk, vb, boff, xoff, late_w=None, tagged=False):
        for j in range(nk): A(f'ds_read_b128 v[{64+4*j}:{67+4*j}], {vb} offset:{boff+64*j}')
        if late_w: late_w()
        for j in range(nk):
            if not late_w: A(f's_waitcnt lgkmcnt({nk-1-j})')
            elif j == 0: A('s_waitcnt lgkmcnt(0)')
            c = '0' if j == 0 else 'v[96:99]'
            A(f'{M16} v[96:99], v[{48+4*j}:{51+4*j}], v[{64+4*j}:{67+4*j}], {c}')
        if tagged:
            A(f'v_mov_b32 v102, {sTAG}\nv_mov_b32 v103, {sTAG}\nv_cvt_pk_bf16_f32 v100, v96, v97\nv_cvt_pk_bf16_f32 v101, v98, v99')
            A(f'buffer_store_dwordx4 v[100:103], v47, {WS}, 0 offen sc1')
            if diag2: xstamp(52)
        else:
            A(f's_add_u32 {t1}, {sXst}, {xoff}')
            A('v_cvt_pk_bf16_f32 v96, v96, v97\nv_cvt_pk_bf16_f32 v97, v98, v99')
            A(f'buffer_store_dwordx2 v[96:97], {vXst}, {WS}, {t1} offen sc1')
    def proj_out(nk, vb, boff, xoff, first=None):
        sk, dl = lab('sk'), lab('dl')
        A(f's_cmp_ge_u32 {sW}, 4\ns_cbranch_scc1 {sk}')
        if first: variant(first, lambda: proj_body(nk, vb, boff, xoff))
        else: proj_body(nk, vb, boff, xoff)
        return sk, dl
    def g_wait(sk, dl, pre, busy_first=False, hi_pre=None, lo_d=None, hi_d=None, extra0=0):
        pre()
        A(f's_sleep {lo_d or gdelay}')
        A(f's_branch {dl}\n{sk}:')
        if hi_pre: hi_pre()
        A(f's_sleep {hi_d or gdelay_hi}')
        A(f'{dl}:')
        if extra0: first_only(lambda: A(f's_sleep {extra0}'))()
    def reduce_x(xoff, final, first=None):
        def normal():
            A(f's_add_u32 {t0}, {sXg}, {xoff}')
            sp = lambda b: A(f'{M16} v[96:99], {SELA}, v[{b}:{b+3}], 0\n{M16} v[96:99], {SELA}, v[{b+4}:{b+7}], v[96:99]')
            if not dual & 16:
                poll(lambda: issue_g1(64, vXg, t0, 'x', 8192), range(64, 72), lambda: sp(64))
                return
            d, tl, lp = lab('got'), lab('again'), lab('lp')
            issue_g1(64, vXg, t0, 'x', 8192); A.wait_vm()
            sp(64); check_empty(range(64, 72))
            A(f's_cbranch_vccnz {tl}\n{d}:')
            keepL, A.L = A.L, []
            A(f'{tl}:'); issue_g1(64, vXg, t0, 'x', 8192)
            A(f's_sleep {dstep}\n{lp}:'); issue_g1(72, vXg, t0, 'x', 8192)
            A('s_waitcnt vmcnt(2)'); sp(64); check_empty(range(64, 72))
            A(f's_nop 1\ns_cbranch_vccz {d}'); issue_g1(64, vXg, t0, 'x', 8192)
            A('s_waitcnt vmcnt(2)'); sp(72); check_empty(range(72, 80))
            A(f's_nop 1\ns_cbranch_vccz {d}\ns_sub_u32 {sTO}, {sTO}, 1\ns_cbranch_scc0 {lp}\ns_mov_b32 {sTO}, 0\ns_branch {d}')
            tails.append('\n'.join(A.L)); A.L = keepL
            A.vm = []
        if first: variant(first, normal)
        else: normal()
        stamp()
        A(f'v_add_f32_dpp v96, v96, v96 row_ror:4 {DPP}\nv_add_f32_dpp v97, v97, v97 row_ror:4 {DPP}')
        if final: A(f's_cmp_eq_u32 {sLIDX}, 1')
        A(f'v_add_f32_dpp v96, v96, v96 row_ror:8 {DPP}\nv_add_f32_dpp v97, v97, v97 row_ror:8 {DPP}')
        A(f'v_pk_add_f32 {XRES}, {XRES}, v[96:97]\ns_mov_b64 exec, {sM4}\nv_cvt_pk_bf16_f32 v96, v112, v113')
        if final: A(f's_cbranch_scc1 L_out')
        A(f'ds_write_b32 {vXW}, v96')
        full_exec()
        A('s_waitcnt lgkmcnt(0)\ns_barrier')
    def issue_o():
        issue_g1(64, vG1, sOg, 'o')
        A.vmop(f'buffer_load_dwordx2 v[72:73], {vML2}, {WS}, {sMLg} offen sc1', 'o')
        A.vmop(f'buffer_load_dwordx2 v[74:75], {vML2}, {WS}, {sMLg} offen offset:32 sc1', 'o')
    def wo_weights(ma, la, mb, lb, selreg, mm, _=None):
        A(f'v_max_f32 v76, v{ma}, v{mb}\nv_mov_b32 v77, v76\nv_permlane16_swap_b32 v76, v77\nv_max_f32 v76, v76, v77')
        A('v_mov_b32 v77, v76\nv_permlane32_swap_b32 v76, v77\nv_max_f32 v76, v76, v77')
        A(f'v_sub_f32 v{ma}, v{ma}, v76\nv_sub_f32 v{mb}, v{mb}, v76\nv_exp_f32 v{ma}, v{ma}\nv_exp_f32 v{mb}, v{mb}')
        A(f'v_cvt_pk_bf16_f32 v{ma}, v{ma}, v{ma}\nv_cvt_pk_bf16_f32 v{mb}, v{mb}, v{mb}')
        for i in range(4): A(f'v_and_b32 v{selreg+i}, v{MASK+i}, v{ma}')
        for i in range(4): A(f'v_and_b32 v{selreg+4+i}, v{MASK+i}, v{mb}')
        mm()
        A(f'v_and_b32 v{ma}, 0xffff0000, v{ma}\nv_and_b32 v{mb}, 0xffff0000, v{mb}\nv_mul_f32 v79, v{la}, v{ma}\nv_fmac_f32 v79, v{lb}, v{mb}')
        A('v_mov_b32 v77, v79\nv_permlane16_swap_b32 v79, v77\nv_add_f32 v79, v79, v77')
        A('v_mov_b32 v77, v79\nv_permlane32_swap_b32 v79, v77\nv_add_f32 v79, v79, v77\nv_rcp_f32 v78, v79')
    def wo_later():
        read_wo()
        if ldelay: A(f's_sleep {ldelay}')
        if dual & 4:
            def iss(k):
                b = (64, 100)[k]
                issue_g1(b, vG1, sOg, 'o')
                A.vmop(f'buffer_load_dwordx2 v[{b+8}:{b+9}], {vML2}, {WS}, {sMLg} offen sc1', 'o')
                A.vmop(f'buffer_load_dwordx2 v[{b+10}:{b+11}], {vML2}, {WS}, {sMLg} offen offset:32 sc1', 'o')
            d, sb, sa, j2 = lab('got'), lab('setb'), lab('seta'), lab('j2')
            iss(0)
            if dstep: A(f's_sleep {dstep}')
            iss(1)
            A(f'{sa}:\ns_waitcnt vmcnt(4)')
            check_empty(range(64, 76))
            A(f's_cbranch_vccnz {sb}\n{d}:')
            stamp()
            wo_weights(72, 73, 74, 75, 80, lambda: A(f'{M16} v[96:99], v[80:83], v[64:67], 0\n{M16} v[96:99], v[84:87], v[68:71], v[96:99]'), 76)
            A(f'{j2}:')
            keepL, A.L = A.L, []
            A(f'{sb}:'); iss(0)
            A('s_waitcnt vmcnt(4)')
            check_empty(range(100, 112))
            g2_ = lab('g2')
            A(f's_cbranch_vccz {g2_}')
            iss(1)
            A(f's_sub_u32 {sTO}, {sTO}, 1\ns_cbranch_scc0 {sa}\ns_mov_b32 {sTO}, 0\ns_branch {d}\n{g2_}:')
            nts[0] -= 1 if ts else 0; stamp()
            wo_weights(108, 109, 110, 111, 80, lambda: A(f'{M16} v[96:99], v[80:83], v[100:103], 0\n{M16} v[96:99], v[84:87], v[104:107], v[96:99]'), 76)
            A(f's_branch {j2}')
            tails.append('\n'.join(A.L)); A.L = keepL
            A.vm = []
            return
        poll(issue_o, range(64, 76))
        stamp()
        wo_weights(72, 73, 74, 75, 80, lambda: A(f'{M16} v[96:99], v[80:83], v[64:67], 0\n{M16} v[96:99], v[84:87], v[68:71], v[96:99]'))
    def wo_first():
        if not dual & 8:
            tagged_poll(issue_o0, (82, 86, 90, 94, 66, 70))
            stamp()
            wo_weights(64, 65, 68, 69, 100, lambda: tagged_sum(100, 80, 96, 4))
            return
        sets = ((80, 64), (48, 100))
        def iss(k):
            o0dst[0], o0ml[0] = sets[k]; issue_o0()
        def chk(k):
            a_, m_ = sets[k]; check_tags((a_ + 2, a_ + 6, a_ + 10, a_ + 14, m_ + 2, m_ + 6))
        def fin(k):
            a_, m_ = sets[k]; wo_weights(m_, m_ + 1, m_ + 4, m_ + 5, 116, lambda: tagged_sum(116, a_, 96, 4))
        lp, ga, gb, en = lab('lp'), lab('ga'), lab('gb'), lab('en')
        iss(0); A(f's_sleep {dstep}\n{lp}:'); iss(1)
        A('s_waitcnt vmcnt(6)'); chk(0); A(f's_cbranch_vccz {ga}')
        iss(0); A('s_waitcnt vmcnt(6)'); chk(1); A(f's_cbranch_vccz {gb}')
        A(f's_sub_u32 {sTO}, {sTO}, 1\ns_cbranch_scc0 {lp}\ns_mov_b32 {sTO}, 0\n{gb}:')
        stamp(); fin(1); A(f's_branch {en}\n{ga}:')
        nts[0] -= 1 if ts else 0; stamp(); fin(0); A(f'{en}:')
        A.vm = []
    with lowwaves():
        variant(wo_first, wo_later)
        A('v_pk_mul_f32 v[96:97], v[96:97], v[78:79] op_sel_hi:[1,0]\nv_cvt_pk_bf16_f32 v96, v96, v97')
        A(f'ds_write_b32 {vQW}, v96 offset:{L_OS-L_QS}')
    A(f's_waitcnt vmcnt(0) lgkmcnt(0)\ns_barrier')
    sk, dl = proj_out(4, vBR320, L_OS - L_QS, 0, lambda: proj_body(4, vBR320, L_OS - L_QS, 0, read_wo))
    leave_ = [None]
    def touch_lines(bases):
        for sb, off in bases:
            A(f's_add_u32 {t0}, {sb}, {off}\ns_add_u32 {t1}, {t0}, 4096')
            A(f'buffer_load_dwordx4 v[80:83], {vG1}, {WS}, {t0} offen sc1\nbuffer_load_dwordx4 v[84:87], {vG1}, {WS}, {t1} offen sc1')
    def touch_small(bases):
        for sb, off in bases:
            A(f's_add_u32 {t0}, {sb}, {off}\nbuffer_load_dwordx2 v[88:89], {vSt8}, {WS}, {t0} offen sc1')
    def watch_flags():
        l_, r_, d_ = lab('w4'), lab('fr'), lab('fd')
        A(f's_cmp_lg_u32 {sW}, 4\ns_cbranch_scc1 {l_}\ns_cmp_eq_u32 {sCNT}, 1\ns_cbranch_scc1 {l_}')
        flag_addr()
        if fdelay: A(f's_sleep {fdelay}')
        e_ = lab('fe')
        A(f'buffer_load_dword v69, v68, {WS}, {t1} offen sc1\ns_waitcnt vmcnt(0)\nv_cmp_ne_u32 vcc, {sTAG}, v69\ns_cbranch_vccz {d_}')
        A(f'{r_}:\ns_sleep {fback}\nbuffer_load_dword v69, v68, {WS}, {t1} offen sc1\ns_waitcnt vmcnt(0)\nv_cmp_ne_u32 vcc, {sTAG}, v69\ns_cbranch_vccz {e_}')
        A(f's_sub_u32 {sTO}, {sTO}, 1\ns_cbranch_scc0 {r_}\ns_mov_b32 {sTO}, 0\n{e_}:')
        if flate: A(f's_sleep {flate}')
        A(f'{d_}:')
        A(f'v_mov_b32 v68, {L_FL}\nv_mov_b32 v69, 1\nds_write_b32 v68, v69')
        A(f's_branch {after_sleep[0]}\n{l_}:')
    def await_flags():
        r_, d_ = lab('ar'), lab('ad')
        A(f'v_mov_b32 v68, {L_FL}\n{r_}:\nds_read_b32 v69, v68\ns_waitcnt lgkmcnt(0)\nv_cmp_eq_u32 vcc, 1, v69\ns_cbranch_vccnz {d_}')
        A(f's_sleep 1\ns_sub_u32 {sTO}, {sTO}, 1\ns_cbranch_scc0 {r_}\ns_mov_b32 {sTO}, 0\n{d_}:')
        if touch_g:
            with lowwaves(): touch_lines([(sGg, 0)])
    after_sleep = [None]
    def hi_xa():
        def w567():
            l_ = lab('f5'); A(f's_cmp_eq_u32 {sW}, 4\ns_cbranch_scc1 {l_}\ns_sleep {fdelay + 2}')
            for dw in (-5, -2, 1):
                k_ = lab('fs')
                if dw == 1: A(f's_cmp_eq_u32 {sW}, 7\ns_cbranch_scc1 {k_}')
                issue_ffn_any(dw)
                A(f'{k_}:')
            A(f'{l_}:')
        if ffn_by_hi and flag_first: first_only(lambda: (w567(), clean_rest(), watch_flags()))()
        elif ffn_by_hi: first_only(lambda: (issue_ffn(-4), issue_ffn(0), clean_rest(), watch_flags()))()
        else: first_only(lambda: (clean_rest(), watch_flags()))()
        if touch1 & 1: first_only(lambda: (touch_lines([(sQg, 0), (sOg, LS)]), touch_small([(sQSg, 0), (sMLg, LS)])))()
        if touch1 & 2: later_only(lambda: (touch_lines([(sGg, 0)]), touch_small([(sGSg, 0)])))
    def hi_xb():
        leave_[0]()
        if touch1 & 4: first_only(lambda: (touch_lines([(sGg, LS)]), touch_small([(sGSg, LS)])))()
        if touch1 & 8: first_only(lambda: (touch_lines([(sQg, 0), (sOg, LS)]), touch_small([(sQSg, 0), (sMLg, LS)])))()
    after_sleep[0] = dl
    g_wait(sk, dl, (lambda: later_only(read_gu)) if ffn_by_hi else read_gu, False, hi_xa, extra0=xa0)
    first_only(await_flags)()
    stamp()
    reduce_x(0, False)
    def issue_gp(first):
        issue_g1(64, vG1, sGg, 'g')
        A.vmop(f'buffer_load_dwordx2 v[72:73], {vSt8}, {WS}, {sGSg} offen sc1', 'g')
        if first:
            A(f'v_and_b32 {vTMP}, 0xf0, {vG1}\nv_and_b32 {vTMP2}, 0xc00, {vG1}\nv_lshrrev_b32 {vTMP2}, 2, {vTMP2}\nv_or_b32 {vTMP}, {vTMP}, {vTMP2}')
            issue_g1(80, vTMP, sGCg, 'g', 1024)
    def ffn_gather(first):
        def f():
            if ldelay and not first: A(f's_sleep {ldelay}')
            if dual & 32 and first:
                sets = ((64, 80), (102, 116))
                A(f'v_and_b32 v114, 0xf0, {vG1}\nv_and_b32 {vTMP2}, 0xc00, {vG1}\nv_lshrrev_b32 {vTMP2}, 2, {vTMP2}\nv_or_b32 v114, v114, {vTMP2}')
                def iss(k):
                    a_, c_ = sets[k]
                    issue_g1(a_, vG1, sGg, 'x')
                    A.vmop(f'buffer_load_dwordx2 v[{a_+8}:{a_+9}], {vSt8}, {WS}, {sGSg} offen sc1', 'x')
                    issue_g1(c_, 'v114', sGCg, 'x', 1024)
                def spec(k):
                    a_, c_ = sets[k]
                    A(f'{M16} v[96:99], {SELG}, v[{a_}:{a_+3}], 0\n{M16} v[96:99], {SELG}, v[{a_+4}:{a_+7}], v[96:99]')
                    A(f'{M16} v[88:91], {SELG}, v[{c_}:{c_+3}], 0\n{M16} v[88:91], {SELG}, v[{c_+4}:{c_+7}], v[88:91]')
                    A(f'v_add_f32_dpp v78, v{a_+8}, v{a_+8} quad_perm:[1,0,3,2] {DPP}\nv_add_f32_dpp v79, v{a_+9}, v{a_+9} quad_perm:[1,0,3,2] {DPP}')
                poll2(iss, 5, lambda k: list(range(sets[k][0], sets[k][0] + 10)) + list(range(sets[k][1], sets[k][1] + 8)), spec)
                ln_finish(CSG, 1.0, True, 88)
                return
            if dual & 2 and not first: ln_poll2(sGg, sGSg, SELG)
            else: poll(lambda: issue_gp(first), QREGS1 if first else QREGS, ln_spec(SELG, first))
            ln_finish(CSG, 1.0, first)
        return f
    with lowwaves(lambda: slice_stats(sGSst)):
        matvec(vGst, 'plain', first_only(read_gu) if ffn_by_hi else None, sLAY)
        stamp()
        read_wd()
        variant(ffn_gather(True), ffn_gather(False))
        stamp()
        A('v_cvt_pk_bf16_f32 v96, v96, v97\nv_and_b32 v97, 0xffff0000, v96\nv_lshlrev_b32 v96, 16, v96\nv_max_f32 v96, 0, v96\nv_mul_f32 v96, v96, v97\nv_cvt_pk_bf16_f32 v96, v96, v96')
        A(f'ds_write_b16 {vHW}, v96')
    A('s_waitcnt vmcnt(0) lgkmcnt(0)\ns_barrier')
    sk, dl = proj_out(2, vBR192, 0, oXB - oXA)
    def leave():
        no = lab('no')
        A(f's_cmp_eq_u32 {sLIDX}, 0\ns_cbranch_scc1 {no}\ns_cmp_lg_u32 {sHI}, 0\ns_cbranch_scc1 L_fin\ns_cmp_lg_u32 {sG}, {sLO}\ns_cbranch_scc1 L_fin\n{no}:')
    def pre_q():
        leave()
        read_wq()
    leave_[0] = leave
    g_wait(sk, dl, pre_q, False, hi_xb, gd_b, gdh_b, xb0)
    stamp()
    reduce_x(oXB - oXA, True)
    keep = nts[0]; nts[0] -= 11
    def advance():
        A(f's_mov_b32 {sLIDX}, 1\ns_mov_b32 {sLAY}, {LS}')
        for s in (sOg, sGg, sMLg, sGSg, sXg, sOPst, sMLst, sXst, sGSst):
            A(f's_add_u32 {s}, {s}, {LS}')
    with lowwaves(lambda: (slice_stats(sQSst), advance())):
        matvec(vQst, 'plain')
        advance()
        stamp()
        if ldelay: A(f's_sleep {ldelay}')
        if dual & 1: ln_poll2(sQg, sQSg, SELA)
        else: poll(lambda: issue_q(False), QREGS, ln_spec(SELA, False))
        stamp()
        q_finish(False)
    if share:
        A('s_waitcnt vmcnt(0) lgkmcnt(0)\ns_barrier\nL_scores:')
        scores(False)
        A(f's_cmp_eq_u32 {sLIDX}, 0\ns_cbranch_scc1 L_scored')
    else: scores()
    for i in range(16):
        pv(i)
        if i == 5: lsum()
    stamp()
    if share: A('s_branch L_merge')
    else:
        combine()
        stamp()
        A('s_branch L_layer')
    nts[0] = keep
    A('L_out:')
    A(f'buffer_store_dword v96, {vXO}, {OUT}, 0 offen')
    A(f's_or_b32 {t1}, s2, {sW}\ns_cmp_lg_u32 {t1}, 0\ns_cbranch_scc1 L_fin0')
    A(f's_mov_b64 exec, 1\nv_mov_b32 v97, {sTAG}\ns_mov_b32 {t2}, {EPOCH}\nbuffer_store_dword v97, off, {WS}, {t2} sc1')
    A('L_fin0:')
    full_exec()
    A('L_fin:')
    if padto:
        A(f'L_pad:\ns_memrealtime s[94:95]\ns_waitcnt lgkmcnt(0)\ns_sub_u32 s94, s94, s98\ns_cmp_lt_u32 s94, {padto}\ns_cbranch_scc1 L_pad')
    if ts:
        stamp(True)
        A(f's_memtime s[94:95]\ns_waitcnt lgkmcnt(0)\ns_sub_u32 s94, s94, s98\nv_writelane_b32 {vTS}, s94, 63')
        A(f's_add_u32 s96, s96, 0x10000000\ns_addc_u32 s97, s97, 0\ns_lshl_b32 {t1}, s2, 11\nv_add_u32 v64, {t1}, {vT4}\nglobal_store_dword v64, {vTS}, s[96:97]')
        if dbgts:
            A(f's_or_b32 {t1}, s2, {sW}\ns_cmp_lg_u32 {t1}, 0\ns_cbranch_scc1 L_end')
            A(f'v_readlane_b32 {t1}, {vTS}, 0\nv_subrev_u32 v64, {t1}, {vTS}\nv_and_b32 v64, 0xffff, v64')
            A(f'v_mov_b32_dpp v65, v64 quad_perm:[1,1,3,3] {DPP}\nv_lshl_or_b32 v64, v65, 16, v64\nv_lshlrev_b32 v65, 1, {vL}')
            A(f's_mov_b32 exec_lo, 0x55555555\ns_mov_b32 exec_hi, 0\nbuffer_store_dword v64, v65, {DBG}, 0 offen sc1')
    A('s_endpgm')
    for t_ in tails: A(t_)
    A('L_end:\ns_endpgm')
    A(f'.section .rodata,"a"\n.p2align 6\n.amdhsa_kernel {NAME}_kernel')
    A('.amdhsa_next_free_vgpr 256\n.amdhsa_next_free_sgpr 102\n.amdhsa_accum_offset 128\n.amdhsa_group_segment_fixed_size 0\n.amdhsa_kernarg_size 96\n.amdhsa_user_sgpr_count 2\n.amdhsa_user_sgpr_kernarg_segment_ptr 1\n.amdhsa_system_sgpr_workgroup_id_x 1\n.end_amdhsa_kernel')
    txt, probs = A.text()
    for p in probs: print('HAZARD', p, file=sys.stderr)
    return txt, nts[0]

if __name__ == '__main__':
    out = sys.argv[1]
    kw = {}
    for a in sys.argv[2:]:
        k, v = a.split('='); kw[k] = eval(v)
    txt, n = build(**kw)
    open(out, 'w').write(txt)
    print('stamps', n, 'lines', txt.count('\n'))
```

```python
import sys, math, struct
sys.path.insert(0, 'gen')
from asmlib import Asm

NAME = "interleave_layers__sliding_block_cached__glu_gated_reglu__decode"

bQP, bQS, bOP, bML, bGP, bGS, bGC, GB = 0x0, 0x8000, 0x8400, 0x10400, 0x10800, 0x18800, 0x18C00, 0x1AC00
oXA, oXB, LS = 8 * GB, 8 * GB + 0x20000, 8 * GB + 0x40000
TQP, TQC, TOP, TML, TF, EPOCH = 0x240000, 0x2C0000, 0x2E0000, 0x360000, 0x364000, 0x36C000
WS_REC = 0x36C100
OOB = 0x7FFF0000
L_RING, L_WQ, L_WO, L_WG, L_WU, L_WD = 0, 65536, 81920, 98304, 106496, 114688
L_QS, L_OS, L_HS, L_XS, L_RM, L_ST = 122880, 124160, 125440, 126208, 127168, 127424
L_FL = L_ST + 16
LDS_BYTES = 127488

def f32(x): return '0x%08x' % struct.unpack('<I', struct.pack('<f', x))[0]
QSCALE = 128 ** -0.5 * math.log2(math.e)

sW, sG, sC, sHI, sLO = 's3', 's4', 's5', 's6', 's7'
WS, KK, VV, WQ, WO, WG, WU, WD, XX, OUT, DBG = [f's[{i}:{i+3}]' for i in range(8, 52, 4)]
sKV, sRING, t0, t1, t2, t3 = 's52', 's53', 's54', 's55', 's56', 's57'
sLAY, sTO, sFAST, sCNT, sGOK, sLIDX = 's58', 's59', 's60', 's61', 's62', 's63'
sQg, sOg, sGg, sQSg, sMLg, sGSg, sXg, sGBASE, sGCg = ['s%d' % i for i in range(66, 75)]
sOPst, sMLst, sXst, sQSst, sGSst = ['s%d' % i for i in range(75, 80)]
g0, g1, g2, g3 = 's90', 's91', 's92', 's93'
vL, vT4, vSt8, vXg, vQst, vGst, vSSt, vG1, vXst, vQW, vBR320, vHW, vBR192, vXR, vXW, vL4 = ['v%d' % i for i in range(16)]
vROW, vROR, vRMW, vRMR, vWQr, vWr, vWOr, vXO = ['v%d' % i for i in range(16, 24)]
CSQ, CSG = 'v[24:25]', 'v[26:27]'
vTS, vML2, vTMP, vTMP2 = 'v28', 'v29', 'v30', 'v31'
SELA, MASK, SELG, ONES = 'v[32:35]', 36, 'v[40:43]', 'v[44:45]'
vMLst = 'v46'
XRES = 'v[112:113]'
sM4 = 's[88:89]'
sTAG = 's100'
DPP = 'row_mask:0xf bank_mask:0xf'
M16 = 'v_mfma_f32_16x16x32_bf16'

HEADER = r'''
;
;
;   - first q and first attention exchange: 16-byte granules {4 x bf16, tag, ..}; tag = (word found at ws+EPOCH) + 1,
;   Stores that are only read inside the group are plain when every member reported the same XCC id, write-through
'''

def build(ts=False, gdelay=12, gdelay_hi=18, pf_code=True, rides=(17, 22, 27), w_at='land31', ldelay=0, bar_after_k0=False, fride=26, ffn_hi=False, touch_o=0, touch_g=0, ffn_sleep=0, clean3_xa=0, tlb=0, diag2=0, ffn_at=0, fdelay=4, fback=4, wo_at=0, csq_o=0, touch1=12, wt_at=29, csq_at=26, xa0=0, xb0=3, cl_at=29, tail_parts='gud', fearly=10, use_early=0, fullflag=1, flag_first=0, jitter=0, mid_parts='', mid_sleep=8, dual=15, dstep=3, pf_few=0, pf_late=0, flate=6, share=1, gd_b=11, gdh_b=15, ffn_by_hi=0, tmajor=1, prio=0, padto=0, warm_x=1, warm_at=0, wd_late=0, xback=0, deep_from=24, depth=5, deep=7, diag=0, noclean=0, burst=4, late47=0, abl='', backoff=0, cl_sc1=1, dbgts=0, wsoff=0):
    A = Asm()
    uid = [0]
    def lab(p):
        uid[0] += 1; return f'L_{p}_{uid[0]}'
    nts = [0]; inloop = [False]
    def stamp(key=False):
        if jitter:
            l_ = lab('jt')
            A(f's_memtime s[94:95]\ns_waitcnt lgkmcnt(0)\ns_mul_i32 s94, s94, 0x9e3779b1\ns_xor_b32 s94, s94, s2\ns_mul_i32 s94, s94, 0x85ebca6b\ns_lshr_b32 s94, s94, {32 - jitter}')
            A(f's_cmp_lg_u32 s94, 0\ns_cbranch_scc1 {l_}\ns_sleep 100\n{l_}:')
        if not ts: return
        if ts == 2 and not key:
            nts[0] += 1; return
        if inloop[0]:
            A(f's_memrealtime s[94:95]\ns_mul_i32 m0, {sLIDX}, 11\ns_add_u32 m0, m0, {nts[0]}\ns_waitcnt lgkmcnt(0)\nv_writelane_b32 {vTS}, s94, m0')
        else:
            A(f's_memrealtime s[94:95]\ns_waitcnt lgkmcnt(0)\nv_writelane_b32 {vTS}, s94, {nts[0]}')
        nts[0] += 1
    def xstamp(i):
        A(f's_memrealtime s[94:95]\ns_waitcnt lgkmcnt(0)\nv_writelane_b32 {vTS}, s94, {i}')
    def set_exec(lo, hi=None):
        hi = lo if hi is None else hi
        A(f's_mov_b32 exec_lo, {lo:#x}\ns_mov_b32 exec_hi, {hi:#x}')
    def full_exec(): A('s_mov_b64 exec, -1')
    tails = []
    def lstore(fmt, tag='st', nxt=None, cmp=True):
        a, b = lab('wt'), lab('sd')
        for f_ in fmt.split('\n'): A((';;need2 ' if cmp else ';;need1 ') + f_)
        if cmp: A(f's_cmp_eq_u32 {sFAST}, 1')
        A(f's_cbranch_scc0 {a}')
        A(fmt); A(f'{b}:')
        tails.append(f'{a}:\n' + '\n'.join(f_ + ' sc1' for f_ in fmt.split('\n')) + f'\ns_branch {b}')
        A.vm.append(tag)
    class lowwaves:
        def __init__(s, other=None): s.other = other
        def __enter__(s):
            s.l = lab('hi'); s.o = lab('up') if s.other else s.l
            A(f's_cmp_ge_u32 {sW}, 4\ns_cbranch_scc1 {s.o}')
        def __exit__(s, *a):
            A(f'{s.l}:')
            if s.other:
                keepL, A.L = A.L, []
                A(f'{s.o}:'); s.other(); A(f's_branch {s.l}')
                tails.append('\n'.join(A.L)); A.L = keepL
    def sel(dst, a, b):
        A(f'v_cndmask_b32 {dst}, {a}, {b}, vcc')

    A(f'; @launch grid=(256,1,1) block=(512,1,1) lds={LDS_BYTES}')
    for l_ in HEADER.strip('\n').split('\n'): A.L.append(l_)
    A('.amdgcn_target "amdgcn-amd-amdhsa--gfx950"')
    A(f'.text\n.globl {NAME}_kernel\n.p2align 8\n.type {NAME}_kernel,@function\n{NAME}_kernel:')
    A('s_cmp_ge_u32 s2, 256\ns_cbranch_scc1 L_end')
    A('s_load_dwordx16 s[64:79], s[0:1], 0\ns_load_dwordx8 s[80:87], s[0:1], 64')
    if padto: A('s_memrealtime s[98:99]')
    A(f'v_lshlrev_b32 {vT4}, 2, v0')
    def prefetch_code():
        if pf_few: A(f's_cmp_ge_u32 s2, {8 * pf_few}\ns_cbranch_scc1 L_nopf')
        A(f's_getpc_b64 s[94:95]\nL_pc:\ns_sub_u32 s94, s94, L_pc-{NAME}_kernel\ns_subb_u32 s95, s95, 0\ns_lshr_b32 s93, s2, 3\ns_and_b32 s93, s93, 1\ns_lshl_b32 s93, s93, 13\nv_lshlrev_b32 {vTMP}, 2, {vT4}\nv_add_u32 {vTMP}, s93, {vTMP}')
        A(f'v_min_u32 {vTMP}, L_end-{NAME}_kernel-16, {vTMP}')
        A(f'global_load_dwordx4 v[96:99], {vTMP}, s[94:95]')
        if pf_few: A('L_nopf:')
        else: A.vm.append('pf')
    if pf_code and not pf_late: prefetch_code()
    A(f'v_lshrrev_b32 {vTMP}, 6, v0')
    A(f'v_and_b32 {vL}, 63, v0')
    A(f'v_readfirstlane_b32 {sW}, {vTMP}')
    A(f's_and_b32 {sG}, s2, 7\ns_lshr_b32 {sC}, s2, 3\ns_lshr_b32 {sHI}, {sC}, 3\ns_and_b32 {sLO}, {sC}, 7')
    A(f'v_and_b32 v120, 15, {vL}\nv_lshrrev_b32 v121, 4, {vL}')
    A(f'v_lshlrev_b32 {vTMP}, 2, v121\nv_xor_b32 {vTMP}, v120, {vTMP}\nv_lshlrev_b32 {vTMP}, 4, {vTMP}\nv_lshl_add_u32 v116, v121, 8, {vTMP}\nv_lshl_add_u32 v124, v121, 13, {vTMP}')
    A(f'v_and_b32 v122, 3, {vL}\nv_lshrrev_b32 v123, 2, v120')
    A(f's_lshr_b32 {t0}, {sW}, 1\ns_lshl_b32 {t0}, {t0}, 10\ns_and_b32 {t1}, {sW}, 1\ns_lshl_b32 {t1}, {t1}, 6\ns_add_u32 {t0}, {t0}, {t1}\ns_lshl_b32 {t1}, {sLO}, 7\ns_add_u32 {t0}, {t0}, {t1}')
    A(f'v_lshlrev_b32 v117, 4, v122\nv_lshl_add_u32 v117, v121, 2, v117\nv_add_u32 {vXO}, {t0}, v117')
    A(f's_lshl_b32 {t0}, {sHI}, 3\ns_add_u32 {t0}, {t0}, {sG}\ns_lshl_b32 {sKV}, {t0}, 22\ns_lshl_b32 {t0}, {sLO}, 17\ns_add_u32 {sKV}, {sKV}, {t0}\ns_add_u32 {sKV}, {sKV}, {12288*256}')
    A(f's_add_u32 {t0}, {sG}, {sC}\ns_add_u32 {t0}, {t0}, {sW}\ns_and_b32 {t0}, {t0}, 7\ns_lshl_b32 {t0}, {t0}, 12\ns_add_u32 {sKV}, {sKV}, {t0}')
    A(f's_lshl_b32 {sRING}, {sW}, 13')
    A(f's_and_b32 {g3}, {sW}, 3')
    A(f's_lshl_b32 {t0}, {sG}, 2\ns_add_u32 {t0}, {t0}, {sHI}')
    A(f'v_mov_b32 v118, {OOB}')
    A(f's_mul_i32 s101, {sG}, {GB}')
    A(f's_lshl_b32 {t1}, {sLO}, 6\ns_lshl_b32 {t2}, {sW}, 3\ns_add_u32 {t1}, {t1}, {t2}\ns_lshl_b32 {t1}, {t1}, 13\ns_lshl_b32 {t2}, {sG}, 10\ns_add_u32 {t1}, {t1}, {t2}\ns_lshl_b32 {t2}, {sHI}, 8\ns_add_u32 {t1}, {t1}, {t2}')
    A(f's_lshl_b32 {t2}, {sW}, 11\ns_add_u32 m0, {t2}, {L_WQ}')
    if ts:
        A(f'v_mov_b32 {vTS}, 0'); stamp(True)
        A(f's_memtime s[98:99]')
    A('s_waitcnt lgkmcnt(0)')
    def srd(d, lo, n):
        A(f's_mov_b32 s{d}, s{lo}\ns_mov_b32 s{d+1}, s{lo+1}\ns_mov_b32 s{d+2}, {n}\ns_mov_b32 s{d+3}, 0x20000')
    srd(20, 70, 4194304)
    A.vmop(f'buffer_load_dwordx4 v124, {WQ}, {t1} offen nt lds', 'wq')
    A(f's_add_u32 {t1}, {t1}, 32768\ns_add_u32 m0, m0, 1024')
    srd(40, 64, 4096)
    A.vmop(f'buffer_load_dwordx4 v124, {WQ}, {t1} offen nt lds', 'wq')
    srd(8, 86, WS_REC)
    if wsoff: A(f's_add_u32 s8, s8, {wsoff}\ns_addc_u32 s9, s9, 0')
    A.vmop(f'buffer_load_dword v68, {vXO}, {XX}, 0 offen', 'x0')
    A(f's_lshr_b32 {t2}, {sW}, 1\ns_lshl_b32 {t2}, {t2}, 10\nv_lshlrev_b32 {vTMP}, 4, {vL}')
    A.vmop(f'buffer_load_dwordx4 v[72:75], {vTMP}, {XX}, {t2} offen', 'x0')
    A(f's_mov_b32 {t2}, {EPOCH}')
    A.vmop(f'buffer_load_dword v69, off, {WS}, {t2} sc1', 'ep')
    srd(12, 66, 0x8000000)
    def piece(p):
        t, q = (p % 16) // 4, p % 4
        if q == 0:
            A(f's_add_u32 {g1}, {sKV}, {t*32768}\ns_add_u32 m0, {sRING}, {((p//4)&1)*4096}')
        src = 'v116'
        A.vmop(f'buffer_load_dwordx4 {src}, {KK if p < 16 else VV}, {g1} offen offset:{q*1024} nt lds', f'p{p}')
    for p in range(burst): piece(p)
    if pf_code and pf_late:
        assert not pf_few
        A('s_mov_b32 s92, s93'); prefetch_code(); A('s_mov_b32 s93, s92')
    srd(16, 68, 0x8000000)
    if ts: A('s_mov_b32 s96, s86\ns_mov_b32 s97, s87')

    srd(24, 72, 4194304); srd(44, 82, 4096); srd(48, 84, 256)
    srd(28, 76, 1835008); srd(32, 78, 1835008); srd(36, 80, 1835008)
    A(f's_mul_i32 {t1}, {sG}, 3\ns_add_u32 {t1}, {t1}, 4\ns_lshl_b32 {t2}, {sG}, 2\ns_cmp_ge_u32 {sG}, 4\ns_cselect_b32 {g2}, {t1}, {t2}\ns_add_u32 {g2}, {g2}, {sHI}\ns_min_u32 {g2}, {g2}, 27')
    if tlb:
        A(f's_lshl_b32 {t1}, {t0}, 17')
        A.vmop(f'buffer_load_dword v96, off, {WO}, {t1} nt', 'tlb')
        A(f's_mul_i32 {t1}, {sLO}, {64*3584}')
        A.vmop(f'buffer_load_dword v96, off, {WG}, {t1} nt', 'tlb')
        A.vmop(f'buffer_load_dword v96, off, {WU}, {t1} nt', 'tlb')
        A(f's_lshl_b32 {t1}, {g2}, 16')
        A.vmop(f'buffer_load_dword v96, off, {WD}, {t1} nt', 'tlb')
        A(f'v_lshlrev_b32 {vTMP}, 19, v120')
        A.vmop(f'buffer_load_dword v96, {vTMP}, {WS}, 0 offen nt', 'tlb')
        A.vmop(f'buffer_load_dword v96, off, {VV}, {sKV} nt', 'tlb')
    A(f's_getreg_b32 {t1}, hwreg(HW_REG_XCC_ID)\ns_and_b32 s64, {t1}, 15')
    A(f's_mov_b32 s88, 0x000f000f\ns_mov_b32 s89, 0x000f000f')
    A(f's_mov_b32 {sGBASE}, s101')
    A(f's_lshl_b32 {t1}, {sHI}, 13\ns_add_u32 {t1}, {t1}, {sGBASE}')
    A(f's_add_u32 {sQg}, {t1}, {bQP + LS}\ns_add_u32 {sOg}, {t1}, {bOP}\ns_add_u32 {sGg}, {t1}, {bGP}')
    A(f's_lshl_b32 {t1}, {g3}, 2\ns_add_u32 {t1}, {t1}, {sHI}\ns_lshl_b32 {t1}, {t1}, 6\ns_add_u32 {t1}, {t1}, {sGBASE}\ns_add_u32 {sQSg}, {t1}, {bQS + LS}')
    A(f's_lshl_b32 {sMLst}, {sLO}, 3\ns_add_u32 {sMLst}, {sMLst}, {t1}\ns_add_u32 {sMLst}, {sMLst}, {bML}')
    A(f's_lshl_b32 {t2}, {g3}, 13\ns_lshl_b32 {t1}, {sLO}, 10\ns_add_u32 {t2}, {t2}, {t1}\ns_lshl_b32 {t1}, {sHI}, 8\ns_add_u32 {t2}, {t2}, {t1}\ns_add_u32 {t2}, {t2}, {sGBASE}\ns_add_u32 {sOPst}, {t2}, {bOP}')
    A(f's_lshl_b32 {t1}, {sHI}, 2\ns_add_u32 {t1}, {t1}, {g3}\ns_lshl_b32 {t1}, {t1}, 6\ns_add_u32 {t1}, {t1}, {sGBASE}\ns_add_u32 {sMLg}, {t1}, {bML}\ns_add_u32 {sGSg}, {t1}, {bGS}')
    A(f's_lshl_b32 {t1}, {sLO}, 14\ns_add_u32 {sXg}, {t1}, {oXA}')
    A(f's_lshl_b32 {t1}, {t0}, 9\ns_add_u32 {sXst}, {sXg}, {t1}')
    A(f's_lshl_b32 {t1}, {sHI}, 11\ns_add_u32 {t1}, {t1}, {sGBASE}\ns_add_u32 {sGCg}, {t1}, {bGC}')
    A(f's_lshl_b32 {t3}, {sHI}, 8\ns_lshl_b32 {t1}, {sLO}, 3\ns_add_u32 {t3}, {t3}, {t1}\ns_add_u32 {t3}, {t3}, {sGBASE}\ns_add_u32 {sQSst}, {t3}, {bQS + LS}\ns_add_u32 {sGSst}, {t3}, {bGS}')
    A(f's_lshl_b32 s101, {t0}, 14\ns_add_u32 s101, s101, {TQP}')
    A(f's_lshl_b32 {t1}, {sLO}, 10\ns_lshl_b32 {t2}, {sHI}, 8\ns_add_u32 {t1}, {t1}, {t2}\ns_lshl_b32 {t2}, {g3}, 6\ns_add_u32 {t3}, {t1}, {t2}')
    A(f's_add_u32 {t1}, {sGBASE}, {t3}\ns_add_u32 {t1}, {t1}, {LS}\ns_mov_b32 {t2}, {OOB}')
    A(f's_cmp_ge_u32 {sW}, 4\ns_cselect_b32 {g0}, 0, 5')
    def st_off(dst, shift):
        A(f'v_lshlrev_b32 {vTMP}, {shift}, v120\nv_add_u32 {vTMP}, {t1}, {vTMP}\nv_mov_b32 {vTMP2}, {t2}\nv_cmp_eq_u32 vcc, 4, v120'); sel(vTMP, vTMP, vTMP2)
        A(f'v_lshl_add_u32 {vTMP}, v121, 4, {vTMP}\nv_cmp_gt_u32 vcc, {g0}, v120'); sel(dst, 'v118', vTMP)
    st_off(vQst, 13)
    A(f's_lshl_b32 {t3}, {t3}, 1\ns_lshl_b32 {t1}, {g3}, 6\ns_sub_u32 {t3}, {t3}, {t1}\ns_lshl_b32 {t1}, {sG}, 16\ns_add_u32 {t1}, {t1}, {t3}\ns_add_u32 {t1}, {t1}, {TQP}\ns_lshl_b32 {t2}, {sG}, 14\ns_add_u32 {t2}, {t2}, {t3}\ns_add_u32 {t2}, {t2}, {TQC}')
    st_off('v109', 14)
    A(f'v_lshlrev_b32 {vTMP}, 6, v122\nv_add_u32 {vTMP2}, 4, {vTMP}\nv_cmp_gt_u32 vcc, 16, {vL}'); sel(vTMP, vTMP, vTMP2)
    A(f'v_and_b32 {vTMP2}, {0x1ec*4}, {vT4}\nv_cmp_eq_u32 vcc, {256*4}, {vTMP2}'); sel(vSSt, 'v118', vTMP)
    A(f'v_lshlrev_b32 v115, 2, {vT4}')
    A(f's_lshl_b32 {t1}, {sG}, 2\ns_add_u32 {t1}, {t1}, {g3}\ns_lshl_b32 {t1}, {t1}, 14\ns_lshl_b32 {t2}, {sLO}, 11\ns_add_u32 {t1}, {t1}, {t2}\ns_lshl_b32 {t2}, {sHI}, 9\ns_add_u32 {t1}, {t1}, {t2}\ns_add_u32 {t1}, {t1}, {TOP}')
    A(f'v_and_b32 {vTMP}, 2, {vL}\nv_lshlrev_b32 {vTMP}, 7, {vTMP}\nv_lshrrev_b32 {vTMP2}, 2, {vL}\nv_lshl_add_u32 {vTMP}, {vTMP2}, 4, {vTMP}\nv_add_u32 {vTMP}, {t1}, {vTMP}\nv_and_b32 {vTMP2}, 1, {vL}\nv_cmp_eq_u32 vcc, 0, {vTMP2}'); sel('v110', 'v118', vTMP)
    A(f's_mov_b32 {sLAY}, 0\ns_mov_b32 {sTO}, 400000\ns_mov_b32 {sFAST}, 0\ns_mov_b32 {sCNT}, 0\ns_mov_b32 {sGOK}, 0\ns_mov_b32 {sLIDX}, 0')
    A(f's_lshl_b32 {t3}, {g3}, 6\ns_lshl_b32 {t1}, {sLO}, 10\ns_add_u32 {t1}, {t1}, {sGg}\ns_add_u32 {t1}, {t1}, {t3}\ns_lshl_b32 {t2}, {sLO}, 8\ns_add_u32 {t2}, {t2}, {sGCg}\ns_add_u32 {t2}, {t2}, {t3}')
    st_off(vGst, 8)
    A(f'v_and_b32 {vTMP}, 7, {vL}\nv_lshlrev_b32 {vSt8}, 3, {vTMP}\nv_lshlrev_b32 {vL4}, 2, {vL}\nv_lshlrev_b32 {vML2}, 3, v121')
    A(f'v_cmp_eq_u32 vcc, 0, {vL}'); sel(vMLst, 'v118', '0')
    A(f's_lshl_b32 {t1}, {g3}, 8\nv_lshlrev_b32 {vTMP}, 4, v120\nv_lshl_add_u32 {vG1}, v121, 10, {vTMP}\nv_add_u32 {vG1}, {t1}, {vG1}')
    A(f's_lshl_b32 {t1}, {sW}, 6\nv_lshlrev_b32 {vXg}, 11, v123\nv_lshl_add_u32 {vXg}, v121, 9, {vXg}\nv_lshl_add_u32 {vXg}, v122, 4, {vXg}\nv_add_u32 {vXg}, {t1}, {vXg}')
    A(f's_lshr_b32 {t1}, {sW}, 1\ns_mul_i32 {t1}, {t1}, 192\ns_and_b32 {t2}, {sW}, 1\ns_lshl_b32 {t2}, {t2}, 6\ns_add_u32 {t1}, {t1}, {t2}\ns_add_u32 {t1}, {t1}, {L_XS}\nv_add_u32 {vXW}, {t1}, v117')
    A(f's_mul_i32 {t1}, {g3}, 320\ns_add_u32 {t1}, {t1}, {L_QS}\nv_lshl_add_u32 {vQW}, v121, 2, {vTMP}\nv_add_u32 {vQW}, {t1}, {vQW}')
    A(f's_mul_i32 {t1}, {g3}, 192\ns_add_u32 {t1}, {t1}, {L_HS}\nv_lshlrev_b32 {vHW}, 3, v120\nv_lshl_add_u32 {vHW}, v121, 1, {vHW}\nv_add_u32 {vHW}, {t1}, {vHW}')
    A(f'v_mul_u32_u24 {vBR320}, 320, v122\nv_lshl_add_u32 {vBR320}, v121, 4, {vBR320}\nv_add_u32 {vBR320}, {L_QS}, {vBR320}')
    A(f'v_mul_u32_u24 {vBR192}, 192, v122\nv_lshl_add_u32 {vBR192}, v121, 4, {vBR192}\nv_add_u32 {vBR192}, {L_HS}, {vBR192}')
    A(f'v_min_u32 {vTMP2}, 4, v120\nv_mul_u32_u24 {vXR}, 192, {vTMP2}\nv_lshl_add_u32 {vXR}, v121, 4, {vXR}\nv_add_u32 {vXR}, {L_XS}, {vXR}')
    A(f's_lshl_b32 {t1}, {g3}, 5\nv_lshlrev_b32 {vTMP2}, 7, v120\nv_lshl_add_u32 {vTMP2}, v121, 3, {vTMP2}\nv_add_u32 {vTMP2}, {t1}, {vTMP2}\nv_cmp_gt_u32 vcc, 4, v120'); sel(vXst, 'v118', vTMP2)
    A(f'v_lshlrev_b32 {vTMP2}, 4, {vL}\nv_add_u32 {vROW}, {sRING}, {vTMP2}')
    A(f's_lshr_b32 {t1}, {g3}, 1\ns_lshl_b32 {t1}, {t1}, 10\ns_and_b32 {t2}, {g3}, 1\ns_lshl_b32 {t2}, {t2}, 3\ns_add_u32 {t1}, {t1}, {t2}\nv_add_u32 {vROR}, {t1}, {vTMP2}')
    A(f's_lshl_b32 {t1}, {sW}, 3\ns_add_u32 {t1}, {t1}, {L_RM}\nv_lshlrev_b32 {vRMW}, 6, v122\nv_add_u32 {vRMW}, {t1}, {vRMW}')
    A(f's_lshl_b32 {t1}, {g3}, 6\ns_add_u32 {t1}, {t1}, {L_RM}\nv_add_u32 {vRMR}, {t1}, {vSt8}')
    A(f'v_lshl_add_u32 v125, v121, 3, v123')
    A(f'v_xor_b32 {vTMP}, {g3}, v123\nv_lshlrev_b32 {vTMP}, 6, {vTMP}\nv_lshl_add_u32 {vTMP}, v122, 4, {vTMP}\nv_lshl_add_u32 {vWQr}, v125, 8, {vTMP}\nv_add_u32 {vWQr}, {L_WQ}, {vWQr}')
    A(f'v_lshrrev_b32 v119, 1, v123\nv_and_b32 v127, 1, v121\nv_lshlrev_b32 {vTMP}, 1, v127')
    A(f'v_xor_b32 {vTMP}, {g3}, {vTMP}\nv_lshlrev_b32 {vTMP}, 5, {vTMP}\nv_lshl_add_u32 {vTMP}, v122, 3, {vTMP}\nv_lshl_add_u32 {vWr}, v125, 7, {vTMP}\nv_add_u32 {vWr}, {L_WG}, {vWr}')
    A(f'v_and_b32 v126, 1, v123\nv_lshlrev_b32 {vTMP}, 1, v126\nv_xor_b32 {vTMP}, {g3}, {vTMP}\nv_lshlrev_b32 {vTMP}, 5, {vTMP}\nv_lshl_add_u32 {vTMP}, v122, 3, {vTMP}')
    A(f'v_lshl_add_u32 {vTMP2}, v121, 2, v119\nv_lshl_add_u32 {vTMP2}, v126, 6, {vTMP2}\nv_lshl_add_u32 {vWOr}, {vTMP2}, 7, {vTMP}\nv_add_u32 {vWOr}, {L_WO}, {vWOr}')
    A(f'v_and_b32 v125, 1, v120\nv_mov_b32 {vTMP}, 0xffff\nv_mov_b32 {vTMP2}, 0xffff0000\nv_cmp_eq_u32 vcc, 1, v125'); sel('v119', vTMP, vTMP2)
    A(f'v_cmp_gt_u32 vcc, 2, v122'); sel('v119', '0', 'v119')
    for i in range(4):
        A(f'v_cmp_eq_u32 vcc, {i}, v123'); sel(f'v{MASK+i}', '0', 'v119'); A(f'v_and_b32 v{32+i}, 0x3f803f80, v{MASK+i}')
    A(f'v_mov_b32 {vTMP}, 0x3f80\nv_mov_b32 {vTMP2}, 0x3f800000\nv_cmp_eq_u32 vcc, 1, v126'); sel('v119', vTMP, vTMP2)
    A(f'v_cmp_gt_u32 vcc, 2, v122'); sel('v119', '0', 'v119')
    A(f'v_lshrrev_b32 {vTMP}, 1, v123\nv_lshl_add_u32 {vTMP}, v125, 1, {vTMP}')
    for i in range(4):
        A(f'v_cmp_eq_u32 vcc, {i}, {vTMP}'); sel(f'v{40+i}', '0', 'v119')
    A('v_mov_b32 v44, 0x3f803f80\nv_mov_b32 v45, 0x3f803f80')
    A(f'v_and_b32 {vTMP2}, 7, {vL}\nv_lshrrev_b32 v119, 3, {vL}')
    A(f's_lshr_b32 {t1}, {sW}, 2\ns_lshl_b32 {t1}, {t1}, 2\nv_xor_b32 {vTMP}, {t1}, {vTMP2}\nv_lshlrev_b32 {vTMP}, 4, {vTMP}\nv_lshl_add_u32 v124, v119, 10, {vTMP}')
    A(f's_and_b32 {t1}, {sW}, 1\ns_lshl_b32 {t1}, {t1}, 2\nv_xor_b32 {vTMP}, {t1}, {vTMP2}\nv_lshlrev_b32 {vTMP}, 4, {vTMP}')
    A(f'v_lshl_add_u32 v127, v119, 10, {vTMP}\nv_mul_u32_u24 v126, 3584, v119\nv_add_u32 v126, v126, {vTMP}')
    A(f's_cmp_ge_u32 {sG}, 4\ns_cselect_b32 {t2}, 3, 4\ns_cmp_lt_u32 {sHI}, {t2}\ns_cselect_b32 {t2}, 0, {OOB}\nv_add_u32 v126, {t2}, v126\nv_add_u32 v127, {t2}, v127')
    A(f'v_lshlrev_b32 {vTMP}, 1, v123\nv_xor_b32 {vTMP}, v121, {vTMP}\nv_lshlrev_b32 {vTMP}, 5, {vTMP}\nv_lshl_add_u32 {vTMP}, v122, 3, {vTMP}\nv_lshl_add_u32 {vTMP}, v123, 8, {vTMP}\nv_add_u32 v122, {sRING}, {vTMP}\nv_xor_b32 v123, 128, v122')
    A(f'v_and_b32 {vTMP}, 3, v120\nv_lshlrev_b32 {vTMP}, 6, {vTMP}\nv_lshl_add_u32 {vTMP}, v121, 4, {vTMP}\nv_lshl_add_u32 {vTMP}, v120, 8, {vTMP}\nv_add_u32 v118, {sRING}, {vTMP}')
    for j in range(1, 4): A(f'v_xor_b32 v{118+j}, {64*j}, v118')
    A(f'v_and_b32 {vTMP}, 124, {vL4}\nv_add_u32 {vTMP}, {L_XS+4*192}, {vTMP}\nds_write_b32 {vTMP}, v44')
    A(f'v_mov_b32 {vTMP}, {L_FL}\nv_mov_b32 {vTMP2}, 0\nds_write_b32 {vTMP}, {vTMP2}')

    def read_k(i):
        for j in range(4): A(f'ds_read_b128 a[{16*i+4*j}:{16*i+4*j+3}], v{118+j} offset:{(i&1)*4096}')
    def read_v(p):
        i = p - 16
        for hf in range(2):
            r = 64 + 4 * i + 2 * hf
            A(f'ds_read_b64_tr_b16 a[{r}:{r+1}], v{122+hf} offset:{((p//4)&1)*4096 + (p%4)*1024}')
    if not late47:
        for p in range(burst, 8): piece(p)
    if diag: xstamp(40)
    A.wait_vm('ep')
    if diag: xstamp(41)
    A(f'v_and_b32 v113, 0xffff0000, v68\nv_lshlrev_b32 v112, 16, v68')
    A(f'v_readfirstlane_b32 {sTAG}, v69\ns_add_u32 {sTAG}, {sTAG}, 1')
    A('v_dot2_f32_bf16 v78, v72, v44, 0\nv_dot2_f32_bf16 v79, v72, v72, 0')
    for k in range(73, 76): A(f'v_dot2_f32_bf16 v78, v{k}, v44, v78\nv_dot2_f32_bf16 v79, v{k}, v{k}, v79')
    for m in ('quad_perm:[1,0,3,2]', 'quad_perm:[2,3,0,1]', 'row_half_mirror', 'row_mirror'):
        A(f'v_add_f32_dpp v78, v78, v78 {m} {DPP}\nv_add_f32_dpp v79, v79, v79 {m} {DPP}')
    for sw in ('v_permlane16_swap_b32', 'v_permlane32_swap_b32'):
        A(f'v_mov_b32 v76, v78\nv_mov_b32 v77, v79\n{sw} v78, v76\n{sw} v79, v77\nv_add_f32 v78, v78, v76\nv_add_f32 v79, v79, v77')
    c2 = QSCALE * QSCALE
    A(f'v_mov_b32 v75, {f32(1e-5/c2)}\nv_mul_f32 v74, v78, v78\nv_fmac_f32 v75, {f32(1/(512*c2))}, v79\nv_fmac_f32 v75, {f32(-1/(512*512*c2))}, v74\nv_max_f32 v75, {f32(1e-5/c2)}, v75\nv_rsq_f32 v74, v75')
    A(f'v_mul_f32 v78, {f32(-1/512)}, v78\nv_add_f32 v72, v112, v78\nv_add_f32 v73, v113, v78\nv_mul_f32 v72, v72, v74\nv_mul_f32 v73, v73, v74\nv_cvt_pk_bf16_f32 v72, v72, v73\nds_write_b32 {vXW}, v72')
    if late47:
        for p in range(burst, 8): piece(p)
    if diag: xstamp(42)
    A.wait_vm('wq')
    if diag: xstamp(43)
    if bar_after_k0:
        A.wait_vm('p3')
        read_k(0)
        A('s_waitcnt lgkmcnt(0)')
        for p in range(8, 12): piece(p)
    A('s_waitcnt lgkmcnt(0)')
    if 'B' not in abl: A('s_barrier')
    stamp()

    def read_wq():
        for tl in range(2):
            for j in range(2):
                for u in range(2):
                    r = 48 + 8 * tl + 4 * j + 2 * u
                    A(f'ds_read_b64_tr_b16 v[{r}:{r+1}], {vWQr} offset:{8*tl+8192*j+1024*u}')
    def read_gu():
        for tl in range(2):
            for j in range(2):
                for u in range(2):
                    r = 48 + 8 * tl + 4 * j + 2 * u
                    A(f'ds_read_b64_tr_b16 v[{r}:{r+1}], {vWr} offset:{8192*tl+4096*j+512*u}')
    def read_wd():
        for j in range(2):
            for u in range(2):
                A(f'ds_read_b64_tr_b16 v[{48+4*j+2*u}:{49+4*j+2*u}], {vWr} offset:{16384+4096*j+512*u}')
    def read_wo():
        for j in range(4):
            for u in range(2):
                A(f'ds_read_b64_tr_b16 v[{48+4*j+2*u}:{49+4*j+2*u}], {vWOr} offset:{2048*j+256*u}')
    def matvec(vst, mode, late_w=None, soff='0'):
        A(f'ds_read_b128 v[80:83], {vXR}\nds_read_b128 v[84:87], {vXR} offset:64')
        if late_w: late_w()
        A('s_waitcnt lgkmcnt(0)' if late_w else 's_waitcnt lgkmcnt(1)')
        A(f'{M16} v[96:99], v[48:51], v[80:83], 0\n{M16} v[104:107], v[56:59], v[80:83], 0')
        if not late_w: A('s_waitcnt lgkmcnt(0)')
        A(f'{M16} v[96:99], v[52:55], v[84:87], v[96:99]\n{M16} v[104:107], v[60:63], v[84:87], v[104:107]')
        if mode == 'plain':
            A(f's_cmp_eq_u32 {sFAST}, 1')
            A('v_cvt_pk_bf16_f32 v96, v96, v97\nv_cvt_pk_bf16_f32 v97, v98, v99\nv_cvt_pk_bf16_f32 v98, v104, v105\nv_cvt_pk_bf16_f32 v99, v106, v107')
            lstore(f'buffer_store_dwordx4 v[96:99], {vst}, {WS}, {soff} offen', cmp=False)
            return
        A(f'v_mov_b32 v102, {sTAG}\nv_mov_b32 v103, s64')
        A(f'v_cvt_pk_bf16_f32 v100, v96, v97\nv_cvt_pk_bf16_f32 v101, v98, v99\nv_cvt_pk_bf16_f32 v104, v104, v105\nv_cvt_pk_bf16_f32 v105, v106, v107')
        A(f'v_mov_b32 v106, {sTAG}\nv_mov_b32 v107, s64')
        if mode == 'q0':
            A.vmop(f'buffer_store_dwordx4 v[100:103], {vst}, {WS}, 0 offen', 'st')
            A.vmop(f'buffer_store_dwordx4 v[104:107], {vst}, {WS}, 0 offen offset:256', 'st')
        else:
            lstore(f'buffer_store_dwordx4 v[100:103], {vst}, {WS}, 0 offen\nbuffer_store_dwordx4 v[104:107], {vst}, {WS}, 0 offen offset:256')
    def slice_stats(sst):
        l = lab('st')
        A(f's_cmp_lg_u32 {sW}, 4\ns_cbranch_scc1 {l}')
        A(f'ds_read_b128 v[80:83], {vXR}\nds_read_b128 v[84:87], {vXR} offset:64\ns_waitcnt lgkmcnt(1)')
        A(f'{M16} v[104:107], v[80:83], v[80:83], 0\ns_waitcnt lgkmcnt(0)\n{M16} v[104:107], v[84:87], v[84:87], v[104:107]')
        def pick():
            A('v_cndmask_b32 v104, v104, v105, s[80:81]\nv_cndmask_b32 v106, v106, v107, s[80:81]\nv_cndmask_b32 v104, v104, v106, s[82:83]')
        A('s_mov_b64 s[80:81], 10\ns_mov_b64 s[82:83], 12')
        A(f's_cmp_eq_u32 {sFAST}, 1')
        pick()
        lstore(f'buffer_store_dword v104, {vSSt}, {WS}, {sst} offen', cmp=False)
        A.vm.pop()
        A(f'{l}:')

    def issue_g1(dst, voff, sbase, tag, step=4096):
        A.vmop(f'buffer_load_dwordx4 v[{dst}:{dst+3}], {voff}, {WS}, {sbase} offen sc1', tag)
        if step >= 4096:
            A(f's_add_u32 {t1}, {sbase}, {step}')
            A.vmop(f'buffer_load_dwordx4 v[{dst+4}:{dst+7}], {voff}, {WS}, {t1} offen sc1', tag)
        else:
            A.vmop(f'buffer_load_dwordx4 v[{dst+4}:{dst+7}], {voff}, {WS}, {sbase} offen offset:{step} sc1', tag)
    def check_empty(regs):
        regs = list(regs)
        A(f'v_max3_u32 {vTMP}, v{regs[0]}, v{regs[1]}, v{regs[2]}'); rest = regs[3:]
        if len(rest) >= 5:
            A(f'v_max3_u32 {vTMP2}, v{rest[0]}, v{rest[1]}, v{rest[2]}'); rest = rest[3:]
            tg = 0
            while len(rest) >= 2:
                d = (vTMP, vTMP2)[tg]; A(f'v_max3_u32 {d}, {d}, v{rest[0]}, v{rest[1]}'); rest = rest[2:]; tg ^= 1
            if rest: A(f'v_max3_u32 {vTMP}, {vTMP}, {vTMP2}, v{rest[0]}')
            else: A(f'v_max_u32 {vTMP}, {vTMP}, {vTMP2}')
        else:
            while len(rest) >= 2:
                A(f'v_max3_u32 {vTMP}, {vTMP}, v{rest[0]}, v{rest[1]}'); rest = rest[2:]
            if rest: A(f'v_max_u32 {vTMP}, {vTMP}, v{rest[0]}')
        A(f'v_cmp_eq_u32 vcc, -1, {vTMP}')
    def poll(issue, regs, spec=None):
        r, d = lab('retry'), lab('got')
        A(f'{r}:')
        issue()
        A.wait_vm()
        if spec: spec()
        check_empty(regs)
        tl = lab('again')
        A(f's_cbranch_vccnz {tl}\n{d}:')
        tails.append(f'{tl}:\n' + (f's_sleep {backoff}\n' if backoff else '') + f's_sub_u32 {sTO}, {sTO}, 1\ns_cbranch_scc0 {r}\ns_mov_b32 {sTO}, 0\ns_branch {d}')
    def poll2(issue, nld, regs, spec):
        d, sb, sa = lab('got'), lab('setb'), lab('seta')
        issue(0)
        if dstep: A(f's_sleep {dstep}')
        issue(1)
        A(f'{sa}:\ns_waitcnt vmcnt({nld})')
        spec(0); check_empty(regs(0))
        A(f's_cbranch_vccnz {sb}\n{d}:')
        keepL, A.L = A.L, []
        A(f'{sb}:'); issue(0)
        A(f's_waitcnt vmcnt({nld})\ns_nop 1')
        spec(1); check_empty(regs(1))
        A(f's_nop 1\ns_cbranch_vccz {d}')
        issue(1)
        A(f's_sub_u32 {sTO}, {sTO}, 1\ns_cbranch_scc0 {sa}\ns_mov_b32 {sTO}, 0\ns_branch {d}')
        tails.append('\n'.join(A.L)); A.L = keepL
        A.vm = []
    def ln_poll2(sdata, sstat, selop):
        def iss(k):
            issue_g1(64 + 16 * k, vG1, sdata, 'x')
            A.vmop(f'buffer_load_dwordx2 v[{72+16*k}:{73+16*k}], {vSt8}, {WS}, {sstat} offen sc1', 'x')
        def spec(k):
            b = 64 + 16 * k
            A(f'{M16} v[96:99], {selop}, v[{b}:{b+3}], 0\n{M16} v[96:99], {selop}, v[{b+4}:{b+7}], v[96:99]')
            A(f'v_add_f32_dpp v78, v{b+8}, v{b+8} quad_perm:[1,0,3,2] {DPP}\nv_add_f32_dpp v79, v{b+9}, v{b+9} quad_perm:[1,0,3,2] {DPP}')
        poll2(iss, 3, lambda k: range(64 + 16 * k, 74 + 16 * k), spec)
    def issue_q(first):
        if not first:
            issue_g1(64, vG1, sQg, 'q')
            A.vmop(f'buffer_load_dwordx2 v[72:73], {vSt8}, {WS}, {sQSg} offen sc1', 'q')
            return
        issue_tagged(f's_mov_b32 {t1}, s101')
    def issue_tagged(base, dst=80, voff=None, kstep=8192, hstep=256):
        if voff is None:
            A(f'v_and_b32 {vTMP2}, 0xf0, {vG1}\nv_lshlrev_b32 {vTMP}, 1, {vG1}\nv_sub_u32 {vTMP}, {vTMP}, {vTMP2}')
        else: A(voff)
        A(base + f'\ns_add_u32 {t2}, {t1}, {kstep}')
        for k in range(2):
            for hh in range(2):
                r = dst[2 * k + hh] if isinstance(dst, tuple) else dst + 8 * k + 4 * hh
                A.vmop(f'buffer_load_dwordx4 v[{r}:{r+3}], {vTMP}, {WS}, {(t1, t2)[k]} offen offset:{hstep*hh} sc1', 'q')
    def issue_o0():
        issue_tagged(f's_lshl_b32 {t1}, {sG}, 2\ns_add_u32 {t1}, {t1}, {sHI}\ns_lshl_b32 {t0}, {t1}, 2\ns_lshl_b32 {t1}, {t1}, 14\ns_add_u32 {t1}, {t1}, {TOP}', o0dst[0])
        A(f's_add_u32 {t0}, {t0}, {sW}\ns_lshl_b32 {t0}, {t0}, 7\ns_add_u32 {t0}, {t0}, {TML}\nv_lshlrev_b32 {vTMP2}, 1, {vML2}')
        m_ = o0ml[0]
        A.vmop(f'buffer_load_dwordx4 v[{m_}:{m_+3}], {vTMP2}, {WS}, {t0} offen sc1', 'q')
        A.vmop(f'buffer_load_dwordx4 v[{m_+4}:{m_+7}], {vTMP2}, {WS}, {t0} offen offset:64 sc1', 'q')
    o0dst = [80]; o0ml = [64]
    def check_words(words, sval):
        w = list(words)
        A(f'v_xor_b32 {vTMP}, {sval}, v{w[0]}')
        for x in w[1:]: A(f'v_xor_b32 {vTMP2}, {sval}, v{x}\nv_or_b32 {vTMP}, {vTMP}, {vTMP2}')
        A(f'v_cmp_ne_u32 vcc, 0, {vTMP}')
    def check_tags(words=(82, 86, 90, 94)): check_words(words, sTAG)
    def tagged_sum(selbase=32, src=80, acc=96, selk=0):
        for n_, (k, hh) in enumerate(((0, 0), (0, 1), (1, 0), (1, 1))):
            r = src[2 * k + hh] if isinstance(src, tuple) else src + 8 * k + 4 * hh
            sb = selbase + selk * k + 2 * hh
            c = '0' if n_ == 0 else f'v[{acc}:{acc+3}]'
            A(f'v_mfma_f32_16x16x16_bf16 v[{acc}:{acc+3}], v[{sb}:{sb+1}], v[{r}:{r+1}], {c}')
    def q0_finish():
        tagged_sum()
        check_words((83, 87, 91, 95), 's64')
        A(f's_cmp_eq_u64 vcc, 0\ns_cselect_b32 {sGOK}, 1, 2')
        A(f'v_cvt_pk_bf16_f32 v96, v96, v97\nds_write_b32 {vQW}, v96')
    def tagged_poll(issue, words=(82, 86, 90, 94), spec=None, back=0):
        rq, gq = lab('rq'), lab('gq')
        A(f'{rq}:')
        issue(); A.wait_vm()
        if spec: spec()
        check_tags(words)
        A(f's_cbranch_vccz {gq}')
        if back: A(f's_sleep {back}')
        A(f's_sub_u32 {sTO}, {sTO}, 1\ns_cbranch_scc0 {rq}\ns_mov_b32 {sTO}, 0\n{gq}:')
    CQ = (48, 52, 56, 60)
    def issue_csq(): issue_tagged(f's_lshl_b32 {t1}, {sG}, 14\ns_add_u32 {t1}, {t1}, {TQC}', CQ)
    def finish_csq():
        ok_ = lab('cq')
        check_tags(tuple(r + 2 for r in CQ))
        A(f's_cbranch_vccz {ok_}')
        tagged_poll(issue_csq, tuple(r + 2 for r in CQ))
        A(f'{ok_}:')
        tagged_sum(32, CQ, 64)
        A(f's_mov_b32 {t2}, {f32(1/512)}\nv_pk_mul_f32 {CSQ}, v[64:65], s[56:57] op_sel_hi:[1,0]')
    QREGS = list(range(64, 74)); QREGS1 = QREGS + list(range(80, 88))
    def ln_spec(selop, first):
        def f():
            A(f'{M16} v[96:99], {selop}, v[64:67], 0\n{M16} v[96:99], {selop}, v[68:71], v[96:99]')
            if first:
                A(f'{M16} v[100:103], {selop}, v[80:83], 0\n{M16} v[100:103], {selop}, v[84:87], v[100:103]')
            A(f'v_add_f32_dpp v78, v72, v72 quad_perm:[1,0,3,2] {DPP}\nv_add_f32_dpp v79, v73, v73 quad_perm:[1,0,3,2] {DPP}')
        return f
    def ln_finish(cs, scale, first, csrc=100):
        for m in ('quad_perm:[2,3,0,1]', 'row_half_mirror'):
            A(f'v_add_f32_dpp v78, v78, v78 {m} {DPP}\nv_add_f32_dpp v79, v79, v79 {m} {DPP}')
            if m.startswith('quad'): A(f'v_mov_b32 v75, {f32(1e-5/(scale*scale))}')
        c2 = scale * scale
        A(f'v_mul_f32 v74, v78, v78\nv_fmac_f32 v75, {f32(1/(512*c2))}, v79')
        if first:
            A(f's_mov_b32 {t2}, {f32(1/512)}\nv_pk_mul_f32 {cs}, v[{csrc}:{csrc+1}], s[56:57] op_sel_hi:[1,0]')
        A(f'v_fmac_f32 v75, {f32(-1/(512*512*c2))}, v74\nv_max_f32 v75, {f32(1e-5/c2)}, v75\nv_rsq_f32 v74, v75')
        A(f'v_pk_fma_f32 v[96:97], v[78:79], {cs}, v[96:97] op_sel_hi:[0,1,1] neg_lo:[1,0,0] neg_hi:[1,0,0]')
        A(f'v_pk_mul_f32 v[96:97], v[96:97], v[74:75] op_sel_hi:[1,0]')
    def q_finish(first):
        ln_finish(CSQ, QSCALE, first)
        A(f'v_cvt_pk_bf16_f32 v96, v96, v97\nds_write_b32 {vQW}, v96')

    A('; ---- first q projection, published with plain stores and this CU\'s XCC id')
    save = list(A.vm)
    with lowwaves():
        read_wq()
        A('s_waitcnt lgkmcnt(0)')
        if 'Q' not in abl: matvec('v109', 'q0')
    stamp()

    def issue_wo():
        A(f's_lshl_b32 {t1}, {sG}, 9\ns_lshl_b32 {t2}, {sHI}, 7\ns_add_u32 {t1}, {t1}, {t2}\ns_lshl_b32 {t2}, {sW}, 4\ns_add_u32 {t1}, {t1}, {t2}\ns_lshl_b32 {t1}, {t1}, 10\ns_lshl_b32 {t2}, {sLO}, 7\ns_add_u32 {t1}, {t1}, {t2}')
        A(f's_lshl_b32 {t2}, {sW}, 11\ns_add_u32 m0, {t2}, {L_WO}')
        A.vmop(f'buffer_load_dwordx4 v124, {WO}, {t1} offen nt lds', 'wo')
        A(f's_add_u32 {t1}, {t1}, 8192\ns_add_u32 m0, m0, 1024')
        A.vmop(f'buffer_load_dwordx4 v124, {WO}, {t1} offen nt lds', 'wo')

    def issue_ffn(dw=0, track=False, parts='gud'):
        vm_ = (lambda x: A.vmop(x, 'ffn')) if track else A
        A(f's_add_u32 {t0}, {sW}, {dw}')
        if 'g' in parts:
            A(f's_lshl_b32 {t1}, {sLO}, 6\ns_lshl_b32 {t2}, {t0}, 3\ns_add_u32 {t1}, {t1}, {t2}\ns_mul_i32 {t1}, {t1}, 3584\ns_lshl_b32 {t2}, {g2}, 7\ns_add_u32 {t1}, {t1}, {t2}')
        A(f's_lshl_b32 {t2}, {t0}, 10\ns_add_u32 m0, {t2}, {L_WG}')
        if 'g' in parts:
            vm_(f'buffer_load_dwordx4 v126, {WG}, {t1} offen nt lds')
            A(f's_add_u32 m0, {t2}, {L_WU}')
            vm_(f'buffer_load_dwordx4 v126, {WU}, {t1} offen nt lds')
        if 'd' not in parts: return
        A(f's_lshl_b32 {t1}, {g2}, 6\ns_lshl_b32 {t3}, {t0}, 3\ns_add_u32 {t1}, {t1}, {t3}\ns_lshl_b32 {t1}, {t1}, 10\ns_lshl_b32 {t3}, {sLO}, 7\ns_add_u32 {t1}, {t1}, {t3}\ns_add_u32 m0, {t2}, {L_WD}')
        vm_(f'buffer_load_dwordx4 v127, {WD}, {t1} offen nt lds')
    wait_of = {}
    d = 6
    for p_ in range(12, 32):
        tgt = depth if p_ < deep_from else deep
        need_d = p_ - tgt
        if p_ in (12, 16, 20): need_d = max(need_d, p_ - 5)
        if need_d > d: wait_of[p_] = list(range(d + 1, need_d + 1)); d = need_d
        else: wait_of[p_] = []
    last_read = d
    def step(p):
        for d_ in wait_of[p]:
            A.wait_vm(f'p{d_}')
            if d_ < 16:
                if d_ % 4 == 3: read_k(d_ // 4); A('s_waitcnt lgkmcnt(0)')
            else:
                A('s_waitcnt lgkmcnt(0)')
                read_v(d_)
            if diag and d_ in (7, 11, 15, 19, 23): xstamp(45 + (d_ - 7) // 4)
        if ffn_at and p == ffn_at and len(tail_parts) < 3: issue_ffn(0, True, ''.join(c_ for c_ in 'gud' if c_ not in tail_parts))
        if p == wo_at: issue_wo()
        piece(p)
    hi_l, join_all, flag_l = lab('shi'), lab('sj'), lab('fl')
    def lead_in():
        if not bar_after_k0:
            A.wait_vm('p3')
            if diag: xstamp(44)
            read_k(0); A('s_waitcnt lgkmcnt(0)')
            for pp in range(8, 12): piece(pp)
    lowcode = [True]
    def steps(lo_, hi_):
        for pp in range(lo_, hi_):
            if pp == touch_o and lowcode[0]:
                n_ = len(A.vm); o0dst[0] = 48; issue_o0(); o0dst[0] = 80
                A.vm[n_:] = ['touch'] * (len(A.vm) - n_)
            if pp == csq_at and lowcode[0]:
                n_ = len(A.vm); issue_csq(); A.vm[n_:] = ['csq'] * (len(A.vm) - n_)
            step(pp)
    A(f's_cmp_ge_u32 {sW}, 4\ns_cbranch_scc1 {hi_l}')
    lead_in()
    p = 12
    while p < 32:
        if p in rides:
            skip, join = lab('noq'), lab('jn')
            saved = list(A.vm)
            A(f's_cmp_lg_u32 {sGOK}, 0\ns_cbranch_scc1 {skip}')
            issue_q(True)
            steps(p, p + 5)
            if 'q' in A.vm: A.wait_vm('q')
            check_tags()
            nq = lab('nq')
            A(f's_cbranch_vccnz {nq}')
            q0_finish()
            A(f'{nq}:\ns_branch {join}\n{skip}:')
            after_q = list(A.vm)
            A.vm = saved
            steps(p, p + 5)
            extra = len(A.vm) - len(after_q)
            assert A.vm[extra:] == after_q, (A.vm, after_q)
            A.vm = after_q if extra <= 0 else A.vm
            A(f'{join}:')
            p += 5
        else:
            steps(p, p + 1); p += 1
    saved = list(A.vm)
    def put_status():
        A(f's_lshl_b32 {t1}, {sW}, 2\ns_add_u32 {t1}, {t1}, {L_ST}\nv_mov_b32 {vTMP}, {t1}\nv_mov_b32 {vTMP2}, {sGOK}\nds_write_b32 {vTMP}, {vTMP2}')
    def get_status():
        A(f'v_mov_b32 {vTMP}, {L_ST}\nds_read_b128 v[72:75], {vTMP}\ns_waitcnt lgkmcnt(0)')
        check_words((72, 73, 74, 75), '1')
        A('s_cmp_eq_u64 vcc, 0')
    put_status()
    A(f's_branch {join_all}\n{hi_l}:')
    A.vm = save; lowcode[0] = False
    lead_in()
    steps(12, 32)
    saved = list(A.vm)
    A(f'{join_all}:')
    stamp()
    A('s_waitcnt lgkmcnt(0)\ns_barrier')
    get_status()
    okq = lab('okq')
    A(f's_cbranch_scc1 {okq}')
    if not abl:
        with lowwaves():
            A(f'buffer_store_dwordx4 v[100:103], v109, {WS}, 0 offen sc1\nbuffer_store_dwordx4 v[104:107], v109, {WS}, 0 offen offset:256 sc1')
            dn = lab('qdone')
            A(f's_cmp_lg_u32 {sGOK}, 0\ns_cbranch_scc1 {dn}')
            tagged_poll(lambda: issue_q(True))
            q0_finish()
            A(f'{dn}:')
        A('s_barrier')
        with lowwaves(): put_status()
        A('s_waitcnt lgkmcnt(0)\ns_barrier')
        get_status()
    A(f'{okq}:\ns_cselect_b32 {sFAST}, 1, 0')
    A.vm = saved
    def issue_ffn_any(dw):
        if dw & 1: A('v_xor_b32 v126, 64, v126\nv_xor_b32 v127, 64, v127')
        issue_ffn(dw, False, ''.join(c_ for c_ in 'gud' if c_ not in tail_parts + mid_parts))
        if dw & 1: A('v_xor_b32 v126, 64, v126\nv_xor_b32 v127, 64, v127')
    def first_only(f):
        def g():
            l, bk = lab('fo'), lab('bk')
            A(f's_cmp_eq_u32 {sLIDX}, 0\ns_cbranch_scc1 {l}\n{bk}:')
            keepL, A.L = A.L, []
            A(f'{l}:'); f(); A(f's_branch {bk}')
            tails.append('\n'.join(A.L)); A.L = keepL
        return g
    def variant(first, later):
        l, bk = lab('v0'), lab('vj')
        A(f's_cmp_eq_u32 {sLIDX}, 0\ns_cbranch_scc1 {l}')
        n0 = nts[0]
        later()
        A(f'{bk}:')
        n1, nts[0] = nts[0], n0
        keepL, A.L = A.L, []
        A(f'{l}:'); first(); A(f's_branch {bk}')
        tails.append('\n'.join(A.L)); A.L = keepL
        assert nts[0] == n1
    def later_only(f):
        l = lab('lo'); A(f's_cmp_eq_u32 {sLIDX}, 0\ns_cbranch_scc1 {l}'); f(); A(f'{l}:')
    def scores(bar=True):
        if bar: A('s_waitcnt lgkmcnt(0)\ns_barrier')
        for j in range(4): A(f'ds_read_b128 v[{64+4*j}:{67+4*j}], {vBR320} offset:{64*j}')
        def sel_t(t, rs):
            for r in rs: A(f'v_mov_b32_dpp v{80+r}, v{80+4*t+r} quad_perm:[0,1,2,3] row_mask:0xf bank_mask:{1<<t:#x}')
        if tmajor:
            for t in range(4):
                for j in range(4):
                    if t == 0: A(f's_waitcnt lgkmcnt({3-j})')
                    c = '0' if j == 0 else f'v[{80+4*t}:{83+4*t}]'
                    A(f'{M16} v[{80+4*t}:{83+4*t}], a[{16*t+4*j}:{16*t+4*j+3}], v[{64+4*j}:{67+4*j}], {c}')
            sel_t(1, range(4)); sel_t(2, range(4)); sel_t(3, range(4))
        else:
            for j in range(4):
                A(f's_waitcnt lgkmcnt({3-j})')
                for t in range(4):
                    c = '0' if j == 0 else f'v[{80+4*t}:{83+4*t}]'
                    A(f'{M16} v[{80+4*t}:{83+4*t}], a[{16*t+4*j}:{16*t+4*j+3}], v[{64+4*j}:{67+4*j}], {c}')
            for t in range(1, 4): sel_t(t, range(4))
        A('v_max3_f32 v84, v80, v81, v82\nv_max_f32 v84, v84, v83')
        A(f'v_max_f32_dpp v84, v84, v84 row_ror:4 {DPP}')
        A(f'v_max_f32_dpp v84, v84, v84 row_ror:8 {DPP}')
        A('v_mov_b32 v85, v84\nv_permlane16_swap_b32 v84, v85\nv_max_f32 v84, v84, v85')
        A('v_mov_b32 v85, v84\nv_permlane32_swap_b32 v84, v85\nv_max_f32 v84, v84, v85')
        A('v_pk_add_f32 v[80:81], v[80:81], v[84:85] op_sel_hi:[1,0] neg_lo:[0,1] neg_hi:[0,1]')
        A('v_pk_add_f32 v[82:83], v[82:83], v[84:85] op_sel_hi:[1,0] neg_lo:[0,1] neg_hi:[0,1]')
        for r in range(4): A(f'v_exp_f32 v{80+r}, v{80+r}')
        A('v_cvt_pk_bf16_f32 v86, v80, v81\nv_cvt_pk_bf16_f32 v87, v82, v83')
        A(f'v_mfma_f32_16x16x16_bf16 v[88:91], {ONES}, v[86:87], 0')
    def pv(i):
        for hf in range(2):
            acc = 96 + 8 * (i & 1) + 4 * hf
            c = '0' if i < 2 else f'v[{acc}:{acc+3}]'
            A(f'v_mfma_f32_4x4x4_16b_bf16 v[{acc}:{acc+3}], v[86:87], a[{64+4*i+2*hf}:{65+4*i+2*hf}], {c} cbsz:4 abid:{4*(i&3)+(i>>2)}')
    def lsum():
        A(f'v_add_f32_dpp v85, v88, v88 row_ror:4 {DPP}')
        A(f'v_add_f32_dpp v85, v85, v85 row_ror:8 {DPP}')
        A(f's_mov_b64 exec, 15\nds_write_b64 {vRMW}, v[84:85]')
        full_exec()
    def combine(tagged=False, other=None):
        for h in range(4):
            A(f'v_add_f32 v{64+2*h}, v{96+h}, v{104+h}\nv_add_f32 v{65+2*h}, v{100+h}, v{108+h}')
            if h & 1: A(f'ds_write_b128 {vROW}, v[{62+2*h}:{65+2*h}] offset:{512*(h-1)}')
        A('s_waitcnt lgkmcnt(0)\ns_barrier')
        with lowwaves(other):
            A(f'ds_read_b64 v[72:73], {vRMR}')
            for k in range(8): A(f'ds_read_b64 v[{80+2*k}:{81+2*k}], {vROR} offset:{8192*k}')
            A('s_waitcnt lgkmcnt(8)')
            A(f'v_max_f32_dpp v74, v72, v72 quad_perm:[1,0,3,2] {DPP}')
            A(f'v_max_f32_dpp v74, v74, v74 quad_perm:[2,3,0,1] {DPP}')
            A(f'v_max_f32_dpp v74, v74, v74 row_half_mirror {DPP}')
            A('v_sub_f32 v72, v72, v74\nv_exp_f32 v72, v72')
            for k in range(8): A(f'v_readlane_b32 s{80+k}, v72, {k}')
            A('v_mul_f32 v75, v73, v72\ns_waitcnt lgkmcnt(0)')
            for k in range(8):
                sp = f's[{80+(k&~1)}:{81+(k&~1)}]'
                o = 'op_sel_hi:[1,0' if (k & 1) == 0 else 'op_sel:[0,1'
                d = 64 + 2 * (k & 1)
                if k < 2: A(f'v_pk_mul_f32 v[{d}:{d+1}], v[{80+2*k}:{81+2*k}], {sp} {o}]')
                else: A(f'v_pk_fma_f32 v[{d}:{d+1}], v[{80+2*k}:{81+2*k}], {sp}, v[{d}:{d+1}] {o},{1 if (k&1)==0 else 0}]')
            A('v_pk_add_f32 v[64:65], v[64:65], v[66:67]\nv_cvt_pk_bf16_f32 v64, v64, v65')
            def lsum8():
                for m in ('quad_perm:[1,0,3,2]', 'quad_perm:[2,3,0,1]', 'row_half_mirror'):
                    A(f'v_add_f32_dpp v75, v75, v75 {m} {DPP}')
            def pub_tagged():
                A(f'v_mov_b32 v66, {sTAG}\nv_mov_b32 v67, {sTAG}\nv_mov_b32_dpp v65, v64 quad_perm:[1,1,3,3] {DPP}')
                lstore(f'buffer_store_dwordx4 v[64:67], v118, {WS}, 0 offen')
                A(f'v_mov_b32 v76, {sTAG}\nv_mov_b32 v77, {sTAG}')
                A(f's_lshl_b32 {t1}, {sG}, 2\ns_add_u32 {t1}, {t1}, {sW}\ns_lshl_b32 {t1}, {t1}, 2\ns_add_u32 {t1}, {t1}, {sHI}\ns_lshl_b32 {t1}, {t1}, 3\ns_add_u32 {t1}, {t1}, {sLO}\ns_lshl_b32 {t1}, {t1}, 4\ns_add_u32 {t1}, {t1}, {TML}')
                lsum8()
                lstore(f'buffer_store_dwordx4 v[74:77], {vMLst}, {WS}, {t1} offen')
            def pub_plain():
                lstore(f'buffer_store_dword v64, {vL4}, {WS}, {sOPst} offen')
                lsum8()
                lstore(f'buffer_store_dwordx2 v[74:75], {vMLst}, {WS}, {sMLst} offen')
            if tagged is None: variant(pub_tagged, pub_plain)
            elif tagged: pub_tagged()
            else: pub_plain()

    A('v_mov_b32 v118, v110')
    A(f's_mul_i32 {t1}, {sC}, 1312\ns_add_u32 {t1}, {t1}, {sGBASE}\ns_add_u32 {t1}, {t1}, {bGP - 7168}\ns_sub_u32 {t2}, {sXst}, 7168')
    A(f'v_add_u32 v119, {t1}, v115\nv_add_u32 v120, {t2}, v115\nv_add_u32 {vTMP}, {oXB - oXA - 512}, v120\nv_cmp_lt_u32 vcc, 31, {vL}'); sel('v120', 'v120', vTMP)
    A(f'v_add_u32 v121, 1024, v119\nv_mov_b32 {vTMP}, {OOB}\nv_cmp_lt_u32 vcc, 17, {vL}'); sel('v121', 'v121', vTMP)
    A(f'v_cmp_gt_u32 vcc, 7168, v115'); sel('v119', 'v119', vTMP); sel('v120', 'v120', vTMP); sel('v121', 'v121', vTMP)
    def clean_urgent():
        A('v_mov_b32 v92, -1\nv_mov_b32 v93, -1\nv_mov_b32 v94, -1\nv_mov_b32 v95, -1')
        A.vmop(f'buffer_store_dwordx4 v[92:95], v119, {WS}, 0 offen sc1', 'cu')
        A.vmop(f'buffer_store_dwordx4 v[92:95], v120, {WS}, 0 offen sc1', 'cu')
        A.vmop(f'buffer_store_dwordx4 v[92:95], v121, {WS}, 0 offen sc1', 'cu')
    if share: A('s_branch L_scores\nL_scored:')
    else: scores(False)
    for i in range(last_read - 15): pv(i)
    lsum()
    stamp()
    for p in range(last_read + 1, 32):
        A.wait_vm(f'p{p}')
        read_v(p)
        if p == cl_at: clean_urgent()
        if p == wt_at:
            assert cl_at <= wt_at
            issue_wo()
            if tail_parts: issue_ffn(0, True, tail_parts)
        A('s_waitcnt lgkmcnt(0)')
        pv(p - 16)
        if p == max(csq_at, last_read + 1) and not abl:
            keep_vm = list(A.vm)
            with lowwaves(): finish_csq()
            A.vm = keep_vm
    stamp()
    if abl: A('s_branch L_fin')
    def flag_addr():
        A(f's_lshl_b32 {t1}, {sLO}, 10\ns_lshl_b32 {t2}, {sG}, 7\nv_and_b32 v68, 7, {vL}\nv_and_b32 v69, 24, {vL}\nv_lshlrev_b32 v68, 7, v68\nv_lshl_add_u32 v68, v69, 10, v68\nv_add_u32 v68, {t1}, v68')
        A(f'v_and_b32 v69, 31, {vL}\nv_lshlrev_b32 v69, 10, v69\nv_add_u32 v69, {t2}, v69\nv_cmp_lt_u32 vcc, 31, {vL}'); sel('v68', 'v68', 'v69')
        A(f's_mov_b32 {t1}, {TF}')
    def clean_rest():
        l_ = lab('cr')
        A(f's_cmp_lg_u32 {sW}, 7\ns_cbranch_scc1 {l_}')
        A(f'v_mov_b32 v64, -1\nv_mov_b32 v65, -1\nv_mov_b32 v66, -1\nv_mov_b32 v67, -1\nv_lshlrev_b32 v68, 2, {vL4}')
        A(f's_add_u32 {t1}, {sXst}, {LS}\nv_add_u32 v69, {oXB - oXA - 512}, v68\nv_cmp_lt_u32 vcc, 31, {vL}'); sel('v69', 'v68', 'v69')
        A(f'buffer_store_dwordx4 v[64:67], v69, {WS}, {t1} offen sc1')
        A(f's_mul_i32 {t2}, {sC}, 3168\ns_add_u32 {t2}, {t2}, {sGBASE}\ns_add_u32 {t2}, {t2}, {LS}')
        for k_ in range(3): A(f'buffer_store_dwordx4 v[64:67], v68, {WS}, {t2} offen offset:{1024*k_} sc1')
        A(f's_mov_b64 exec, 63\nbuffer_store_dwordx4 v[64:67], v68, {WS}, {t2} offen offset:3072 sc1\ns_mov_b64 exec, -1\n{l_}:')
    def clean_first():
        l_ = lab('c7')
        A(f's_cmp_lg_u32 {sW}, 7\ns_cbranch_scc1 {l_}')
        A(f's_lshl_b32 {t1}, s2, 7\ns_add_u32 {t1}, {t1}, {TF}\nv_mov_b32 v69, {sTAG}')
        if fullflag:
            A(f's_mov_b32 exec_hi, 0\ns_waitcnt vmcnt({2 + len(tail_parts)})\nbuffer_store_dword v69, {vL4}, {WS}, {t1} offen sc1')
        else:
            A(f's_mov_b64 exec, 1\ns_waitcnt vmcnt({2 + len(tail_parts)})\nbuffer_store_dword v69, off, {WS}, {t1} sc1')
        full_exec()
        n4 = lab('n4')
        if not use_early:
            A(f'{l_}:')
            if mid_parts:
                A(f's_sleep {mid_sleep}')
                issue_ffn(-4, False, mid_parts); issue_ffn(0, False, mid_parts)
            A(f's_waitcnt vmcnt({2 * len(mid_parts)})')
            return
        A(f'{l_}:\ns_cmp_lg_u32 {sW}, 4\ns_cbranch_scc1 {n4}')
        flag_addr()
        A(f's_sleep {fearly}\nbuffer_load_dword v69, v68, {WS}, {t1} offen sc1\ns_waitcnt vmcnt(0)\nv_cmp_ne_u32 vcc, {sTAG}, v69\ns_cbranch_vccnz {n4}')
        A(f's_mov_b32 {sCNT}, 1\nv_mov_b32 v68, {L_FL}\nv_mov_b32 v69, 1\nds_write_b32 v68, v69\n{n4}:')
    if share:
        inloop[0] = True
        A('L_merge:')
        combine(None, first_only(clean_first))
    else: combine(True, clean_first)
    stamp(True)

    if prio:
        l_ = lab('pr'); A(f's_cmp_ge_u32 {sW}, 4\ns_cbranch_scc1 {l_}\ns_setprio 1\n{l_}:')
    A('L_layer:'); inloop[0] = True
    def proj_body(nk, vb, boff, xoff, late_w=None, tagged=False):
        for j in range(nk): A(f'ds_read_b128 v[{64+4*j}:{67+4*j}], {vb} offset:{boff+64*j}')
        if late_w: late_w()
        for j in range(nk):
            if not late_w: A(f's_waitcnt lgkmcnt({nk-1-j})')
            elif j == 0: A('s_waitcnt lgkmcnt(0)')
            c = '0' if j == 0 else 'v[96:99]'
            A(f'{M16} v[96:99], v[{48+4*j}:{51+4*j}], v[{64+4*j}:{67+4*j}], {c}')
        if tagged:
            A(f'v_mov_b32 v102, {sTAG}\nv_mov_b32 v103, {sTAG}\nv_cvt_pk_bf16_f32 v100, v96, v97\nv_cvt_pk_bf16_f32 v101, v98, v99')
            A(f'buffer_store_dwordx4 v[100:103], v47, {WS}, 0 offen sc1')
            if diag2: xstamp(52)
        else:
            A(f's_add_u32 {t1}, {sXst}, {xoff}')
            A('v_cvt_pk_bf16_f32 v96, v96, v97\nv_cvt_pk_bf16_f32 v97, v98, v99')
            A(f'buffer_store_dwordx2 v[96:97], {vXst}, {WS}, {t1} offen sc1')
    def proj_out(nk, vb, boff, xoff, first=None):
        sk, dl = lab('sk'), lab('dl')
        A(f's_cmp_ge_u32 {sW}, 4\ns_cbranch_scc1 {sk}')
        if first: variant(first, lambda: proj_body(nk, vb, boff, xoff))
        else: proj_body(nk, vb, boff, xoff)
        return sk, dl
    def g_wait(sk, dl, pre, busy_first=False, hi_pre=None, lo_d=None, hi_d=None, extra0=0):
        pre()
        A(f's_sleep {lo_d or gdelay}')
        A(f's_branch {dl}\n{sk}:')
        if hi_pre: hi_pre()
        A(f's_sleep {hi_d or gdelay_hi}')
        A(f'{dl}:')
        if extra0: first_only(lambda: A(f's_sleep {extra0}'))()
    def reduce_x(xoff, final, first=None):
        def normal():
            A(f's_add_u32 {t0}, {sXg}, {xoff}')
            sp = lambda b: A(f'{M16} v[96:99], {SELA}, v[{b}:{b+3}], 0\n{M16} v[96:99], {SELA}, v[{b+4}:{b+7}], v[96:99]')
            if not dual & 16:
                poll(lambda: issue_g1(64, vXg, t0, 'x', 8192), range(64, 72), lambda: sp(64))
                return
            d, tl, lp = lab('got'), lab('again'), lab('lp')
            issue_g1(64, vXg, t0, 'x', 8192); A.wait_vm()
            sp(64); check_empty(range(64, 72))
            A(f's_cbranch_vccnz {tl}\n{d}:')
            keepL, A.L = A.L, []
            A(f'{tl}:'); issue_g1(64, vXg, t0, 'x', 8192)
            A(f's_sleep {dstep}\n{lp}:'); issue_g1(72, vXg, t0, 'x', 8192)
            A('s_waitcnt vmcnt(2)'); sp(64); check_empty(range(64, 72))
            A(f's_nop 1\ns_cbranch_vccz {d}'); issue_g1(64, vXg, t0, 'x', 8192)
            A('s_waitcnt vmcnt(2)'); sp(72); check_empty(range(72, 80))
            A(f's_nop 1\ns_cbranch_vccz {d}\ns_sub_u32 {sTO}, {sTO}, 1\ns_cbranch_scc0 {lp}\ns_mov_b32 {sTO}, 0\ns_branch {d}')
            tails.append('\n'.join(A.L)); A.L = keepL
            A.vm = []
        if first: variant(first, normal)
        else: normal()
        stamp()
        A(f'v_add_f32_dpp v96, v96, v96 row_ror:4 {DPP}\nv_add_f32_dpp v97, v97, v97 row_ror:4 {DPP}')
        if final: A(f's_cmp_eq_u32 {sLIDX}, 1')
        A(f'v_add_f32_dpp v96, v96, v96 row_ror:8 {DPP}\nv_add_f32_dpp v97, v97, v97 row_ror:8 {DPP}')
        A(f'v_pk_add_f32 {XRES}, {XRES}, v[96:97]\ns_mov_b64 exec, {sM4}\nv_cvt_pk_bf16_f32 v96, v112, v113')
        if final: A(f's_cbranch_scc1 L_out')
        A(f'ds_write_b32 {vXW}, v96')
        full_exec()
        A('s_waitcnt lgkmcnt(0)\ns_barrier')
    def issue_o():
        issue_g1(64, vG1, sOg, 'o')
        A.vmop(f'buffer_load_dwordx2 v[72:73], {vML2}, {WS}, {sMLg} offen sc1', 'o')
        A.vmop(f'buffer_load_dwordx2 v[74:75], {vML2}, {WS}, {sMLg} offen offset:32 sc1', 'o')
    def wo_weights(ma, la, mb, lb, selreg, mm, _=None):
        A(f'v_max_f32 v76, v{ma}, v{mb}\nv_mov_b32 v77, v76\nv_permlane16_swap_b32 v76, v77\nv_max_f32 v76, v76, v77')
        A('v_mov_b32 v77, v76\nv_permlane32_swap_b32 v76, v77\nv_max_f32 v76, v76, v77')
        A(f'v_sub_f32 v{ma}, v{ma}, v76\nv_sub_f32 v{mb}, v{mb}, v76\nv_exp_f32 v{ma}, v{ma}\nv_exp_f32 v{mb}, v{mb}')
        A(f'v_cvt_pk_bf16_f32 v{ma}, v{ma}, v{ma}\nv_cvt_pk_bf16_f32 v{mb}, v{mb}, v{mb}')
        for i in range(4): A(f'v_and_b32 v{selreg+i}, v{MASK+i}, v{ma}')
        for i in range(4): A(f'v_and_b32 v{selreg+4+i}, v{MASK+i}, v{mb}')
        mm()
        A(f'v_and_b32 v{ma}, 0xffff0000, v{ma}\nv_and_b32 v{mb}, 0xffff0000, v{mb}\nv_mul_f32 v79, v{la}, v{ma}\nv_fmac_f32 v79, v{lb}, v{mb}')
        A('v_mov_b32 v77, v79\nv_permlane16_swap_b32 v79, v77\nv_add_f32 v79, v79, v77')
        A('v_mov_b32 v77, v79\nv_permlane32_swap_b32 v79, v77\nv_add_f32 v79, v79, v77\nv_rcp_f32 v78, v79')
    def wo_later():
        read_wo()
        if ldelay: A(f's_sleep {ldelay}')
        if dual & 4:
            def iss(k):
                b = (64, 100)[k]
                issue_g1(b, vG1, sOg, 'o')
                A.vmop(f'buffer_load_dwordx2 v[{b+8}:{b+9}], {vML2}, {WS}, {sMLg} offen sc1', 'o')
                A.vmop(f'buffer_load_dwordx2 v[{b+10}:{b+11}], {vML2}, {WS}, {sMLg} offen offset:32 sc1', 'o')
            d, sb, sa, j2 = lab('got'), lab('setb'), lab('seta'), lab('j2')
            iss(0)
            if dstep: A(f's_sleep {dstep}')
            iss(1)
            A(f'{sa}:\ns_waitcnt vmcnt(4)')
            check_empty(range(64, 76))
            A(f's_cbranch_vccnz {sb}\n{d}:')
            stamp()
            wo_weights(72, 73, 74, 75, 80, lambda: A(f'{M16} v[96:99], v[80:83], v[64:67], 0\n{M16} v[96:99], v[84:87], v[68:71], v[96:99]'), 76)
            A(f'{j2}:')
            keepL, A.L = A.L, []
            A(f'{sb}:'); iss(0)
            A('s_waitcnt vmcnt(4)')
            check_empty(range(100, 112))
            g2_ = lab('g2')
            A(f's_cbranch_vccz {g2_}')
            iss(1)
            A(f's_sub_u32 {sTO}, {sTO}, 1\ns_cbranch_scc0 {sa}\ns_mov_b32 {sTO}, 0\ns_branch {d}\n{g2_}:')
            nts[0] -= 1 if ts else 0; stamp()
            wo_weights(108, 109, 110, 111, 80, lambda: A(f'{M16} v[96:99], v[80:83], v[100:103], 0\n{M16} v[96:99], v[84:87], v[104:107], v[96:99]'), 76)
            A(f's_branch {j2}')
            tails.append('\n'.join(A.L)); A.L = keepL
            A.vm = []
            return
        poll(issue_o, range(64, 76))
        stamp()
        wo_weights(72, 73, 74, 75, 80, lambda: A(f'{M16} v[96:99], v[80:83], v[64:67], 0\n{M16} v[96:99], v[84:87], v[68:71], v[96:99]'))
    def wo_first():
        if not dual & 8:
            tagged_poll(issue_o0, (82, 86, 90, 94, 66, 70))
            stamp()
            wo_weights(64, 65, 68, 69, 100, lambda: tagged_sum(100, 80, 96, 4))
            return
        sets = ((80, 64), (48, 100))
        def iss(k):
            o0dst[0], o0ml[0] = sets[k]; issue_o0()
        def chk(k):
            a_, m_ = sets[k]; check_tags((a_ + 2, a_ + 6, a_ + 10, a_ + 14, m_ + 2, m_ + 6))
        def fin(k):
            a_, m_ = sets[k]; wo_weights(m_, m_ + 1, m_ + 4, m_ + 5, 116, lambda: tagged_sum(116, a_, 96, 4))
        lp, ga, gb, en = lab('lp'), lab('ga'), lab('gb'), lab('en')
        iss(0); A(f's_sleep {dstep}\n{lp}:'); iss(1)
        A('s_waitcnt vmcnt(6)'); chk(0); A(f's_cbranch_vccz {ga}')
        iss(0); A('s_waitcnt vmcnt(6)'); chk(1); A(f's_cbranch_vccz {gb}')
        A(f's_sub_u32 {sTO}, {sTO}, 1\ns_cbranch_scc0 {lp}\ns_mov_b32 {sTO}, 0\n{gb}:')
        stamp(); fin(1); A(f's_branch {en}\n{ga}:')
        nts[0] -= 1 if ts else 0; stamp(); fin(0); A(f'{en}:')
        A.vm = []
    with lowwaves():
        variant(wo_first, wo_later)
        A('v_pk_mul_f32 v[96:97], v[96:97], v[78:79] op_sel_hi:[1,0]\nv_cvt_pk_bf16_f32 v96, v96, v97')
        A(f'ds_write_b32 {vQW}, v96 offset:{L_OS-L_QS}\ns_waitcnt vmcnt(0)')
    A(f's_waitcnt lgkmcnt(0)\ns_barrier')
    sk, dl = proj_out(4, vBR320, L_OS - L_QS, 0, lambda: proj_body(4, vBR320, L_OS - L_QS, 0, read_wo))
    leave_ = [None]
    def touch_lines(bases):
        for sb, off in bases:
            A(f's_add_u32 {t0}, {sb}, {off}\ns_add_u32 {t1}, {t0}, 4096')
            A(f'buffer_load_dwordx4 v[80:83], {vG1}, {WS}, {t0} offen sc1\nbuffer_load_dwordx4 v[84:87], {vG1}, {WS}, {t1} offen sc1')
    def touch_small(bases):
        for sb, off in bases:
            A(f's_add_u32 {t0}, {sb}, {off}\nbuffer_load_dwordx2 v[88:89], {vSt8}, {WS}, {t0} offen sc1')
    def watch_flags():
        l_, r_, d_ = lab('w4'), lab('fr'), lab('fd')
        A(f's_cmp_lg_u32 {sW}, 4\ns_cbranch_scc1 {l_}\ns_cmp_eq_u32 {sCNT}, 1\ns_cbranch_scc1 {l_}')
        flag_addr()
        if fdelay: A(f's_sleep {fdelay}')
        e_ = lab('fe')
        A(f'buffer_load_dword v69, v68, {WS}, {t1} offen sc1\ns_waitcnt vmcnt(0)\nv_cmp_ne_u32 vcc, {sTAG}, v69\ns_cbranch_vccz {d_}')
        A(f'{r_}:\ns_sleep {fback}\nbuffer_load_dword v69, v68, {WS}, {t1} offen sc1\ns_waitcnt vmcnt(0)\nv_cmp_ne_u32 vcc, {sTAG}, v69\ns_cbranch_vccz {e_}')
        A(f's_sub_u32 {sTO}, {sTO}, 1\ns_cbranch_scc0 {r_}\ns_mov_b32 {sTO}, 0\n{e_}:')
        if flate: A(f's_sleep {flate}')
        A(f'{d_}:')
        A(f'v_mov_b32 v68, {L_FL}\nv_mov_b32 v69, 1\nds_write_b32 v68, v69')
        A(f's_branch {after_sleep[0]}\n{l_}:')
    def await_flags():
        r_, d_ = lab('ar'), lab('ad')
        A(f'v_mov_b32 v68, {L_FL}\n{r_}:\nds_read_b32 v69, v68\ns_waitcnt lgkmcnt(0)\nv_cmp_eq_u32 vcc, 1, v69\ns_cbranch_vccnz {d_}')
        A(f's_sleep 1\ns_sub_u32 {sTO}, {sTO}, 1\ns_cbranch_scc0 {r_}\ns_mov_b32 {sTO}, 0\n{d_}:')
        if touch_g:
            with lowwaves(): touch_lines([(sGg, 0)])
    after_sleep = [None]
    def hi_xa():
        def w567():
            l_ = lab('f5'); A(f's_cmp_eq_u32 {sW}, 4\ns_cbranch_scc1 {l_}\ns_sleep {fdelay + 2}')
            for dw in (-5, -2, 1):
                k_ = lab('fs')
                if dw == 1: A(f's_cmp_eq_u32 {sW}, 7\ns_cbranch_scc1 {k_}')
                issue_ffn_any(dw)
                A(f'{k_}:')
            A(f'{l_}:')
        if ffn_by_hi and flag_first: first_only(lambda: (w567(), clean_rest(), watch_flags()))()
        elif ffn_by_hi: first_only(lambda: (issue_ffn(-4), issue_ffn(0), clean_rest(), watch_flags()))()
        else: first_only(lambda: (clean_rest(), watch_flags()))()
        if touch1 & 1: first_only(lambda: (touch_lines([(sQg, 0), (sOg, LS)]), touch_small([(sQSg, 0), (sMLg, LS)])))()
        if touch1 & 2: later_only(lambda: (touch_lines([(sGg, 0)]), touch_small([(sGSg, 0)])))
    def hi_xb():
        leave_[0]()
        if touch1 & 4: first_only(lambda: (touch_lines([(sGg, LS)]), touch_small([(sGSg, LS)])))()
        if touch1 & 8: first_only(lambda: (touch_lines([(sQg, 0), (sOg, LS)]), touch_small([(sQSg, 0), (sMLg, LS)])))()
    after_sleep[0] = dl
    late_gu = 'g' not in tail_parts
    g_wait(sk, dl, (lambda: later_only(read_gu)) if late_gu else read_gu, False, hi_xa, extra0=xa0)
    first_only(await_flags)()
    stamp()
    reduce_x(0, False)
    def issue_gp(first):
        issue_g1(64, vG1, sGg, 'g')
        A.vmop(f'buffer_load_dwordx2 v[72:73], {vSt8}, {WS}, {sGSg} offen sc1', 'g')
        if first:
            A(f'v_and_b32 {vTMP}, 0xf0, {vG1}\nv_and_b32 {vTMP2}, 0xc00, {vG1}\nv_lshrrev_b32 {vTMP2}, 2, {vTMP2}\nv_or_b32 {vTMP}, {vTMP}, {vTMP2}')
            issue_g1(80, vTMP, sGCg, 'g', 1024)
    def ffn_gather(first):
        def f():
            if ldelay and not first: A(f's_sleep {ldelay}')
            if dual & 32 and first:
                sets = ((64, 80), (102, 116))
                A(f'v_and_b32 v114, 0xf0, {vG1}\nv_and_b32 {vTMP2}, 0xc00, {vG1}\nv_lshrrev_b32 {vTMP2}, 2, {vTMP2}\nv_or_b32 v114, v114, {vTMP2}')
                def iss(k):
                    a_, c_ = sets[k]
                    issue_g1(a_, vG1, sGg, 'x')
                    A.vmop(f'buffer_load_dwordx2 v[{a_+8}:{a_+9}], {vSt8}, {WS}, {sGSg} offen sc1', 'x')
                    issue_g1(c_, 'v114', sGCg, 'x', 1024)
                def spec(k):
                    a_, c_ = sets[k]
                    A(f'{M16} v[96:99], {SELG}, v[{a_}:{a_+3}], 0\n{M16} v[96:99], {SELG}, v[{a_+4}:{a_+7}], v[96:99]')
                    A(f'{M16} v[88:91], {SELG}, v[{c_}:{c_+3}], 0\n{M16} v[88:91], {SELG}, v[{c_+4}:{c_+7}], v[88:91]')
                    A(f'v_add_f32_dpp v78, v{a_+8}, v{a_+8} quad_perm:[1,0,3,2] {DPP}\nv_add_f32_dpp v79, v{a_+9}, v{a_+9} quad_perm:[1,0,3,2] {DPP}')
                poll2(iss, 5, lambda k: list(range(sets[k][0], sets[k][0] + 10)) + list(range(sets[k][1], sets[k][1] + 8)), spec)
                ln_finish(CSG, 1.0, True, 88)
                return
            if dual & 2 and not first: ln_poll2(sGg, sGSg, SELG)
            else: poll(lambda: issue_gp(first), QREGS1 if first else QREGS, ln_spec(SELG, first))
            ln_finish(CSG, 1.0, first)
        return f
    with lowwaves(lambda: slice_stats(sGSst)):
        matvec(vGst, 'plain', first_only(read_gu) if late_gu else None, sLAY)
        stamp()
        read_wd()
        variant(ffn_gather(True), ffn_gather(False))
        stamp()
        A('v_cvt_pk_bf16_f32 v96, v96, v97\nv_and_b32 v97, 0xffff0000, v96\nv_lshlrev_b32 v96, 16, v96\nv_max_f32 v96, 0, v96\nv_mul_f32 v96, v96, v97\nv_cvt_pk_bf16_f32 v96, v96, v96')
        A(f'ds_write_b16 {vHW}, v96')
    A('s_waitcnt vmcnt(0) lgkmcnt(0)\ns_barrier')
    sk, dl = proj_out(2, vBR192, 0, oXB - oXA)
    def leave():
        no = lab('no')
        A(f's_cmp_eq_u32 {sLIDX}, 0\ns_cbranch_scc1 {no}\ns_cmp_lg_u32 {sHI}, 0\ns_cbranch_scc1 L_fin\ns_cmp_lg_u32 {sG}, {sLO}\ns_cbranch_scc1 L_fin\n{no}:')
    def pre_q():
        leave()
        read_wq()
    leave_[0] = leave
    g_wait(sk, dl, pre_q, False, hi_xb, gd_b, gdh_b, xb0)
    stamp()
    reduce_x(oXB - oXA, True)
    keep = nts[0]; nts[0] -= 11
    def advance():
        A(f's_mov_b32 {sLIDX}, 1\ns_mov_b32 {sLAY}, {LS}')
        for s in (sOg, sGg, sMLg, sGSg, sXg, sOPst, sMLst, sXst, sGSst):
            A(f's_add_u32 {s}, {s}, {LS}')
    with lowwaves(lambda: (slice_stats(sQSst), advance())):
        matvec(vQst, 'plain')
        advance()
        stamp()
        if ldelay: A(f's_sleep {ldelay}')
        if dual & 1: ln_poll2(sQg, sQSg, SELA)
        else: poll(lambda: issue_q(False), QREGS, ln_spec(SELA, False))
        stamp()
        q_finish(False)
    if share:
        A('; ---- scores, row maximum, exp2, row sum (shared by both layers), P V')
        A('s_waitcnt vmcnt(0) lgkmcnt(0)\ns_barrier\nL_scores:')
        scores(False)
        A(f's_cmp_eq_u32 {sLIDX}, 0\ns_cbranch_scc1 L_scored')
    else: scores()
    for i in range(16):
        pv(i)
        if i == 5: lsum()
    stamp()
    if share: A('s_branch L_merge')
    else:
        combine()
        stamp()
        A('s_branch L_layer')
    nts[0] = keep
    A('L_out:')
    A(f'buffer_store_dword v96, {vXO}, {OUT}, 0 offen')
    A(f's_or_b32 {t1}, s2, {sW}\ns_cmp_lg_u32 {t1}, 0\ns_cbranch_scc1 L_fin0')
    A(f's_mov_b64 exec, 1\nv_mov_b32 v97, {sTAG}\ns_mov_b32 {t2}, {EPOCH}\nbuffer_store_dword v97, off, {WS}, {t2} sc1')
    A('L_fin0:')
    full_exec()
    A('L_fin:')
    if padto:
        A(f'L_pad:\ns_memrealtime s[94:95]\ns_waitcnt lgkmcnt(0)\ns_sub_u32 s94, s94, s98\ns_cmp_lt_u32 s94, {padto}\ns_cbranch_scc1 L_pad')
    if ts:
        stamp(True)
        A(f's_memtime s[94:95]\ns_waitcnt lgkmcnt(0)\ns_sub_u32 s94, s94, s98\nv_writelane_b32 {vTS}, s94, 63')
        A(f's_add_u32 s96, s96, 0x10000000\ns_addc_u32 s97, s97, 0\ns_lshl_b32 {t1}, s2, 11\nv_add_u32 v64, {t1}, {vT4}\nglobal_store_dword v64, {vTS}, s[96:97]')
        if dbgts:
            A(f's_or_b32 {t1}, s2, {sW}\ns_cmp_lg_u32 {t1}, 0\ns_cbranch_scc1 L_end')
            A(f'v_readlane_b32 {t1}, {vTS}, 0\nv_subrev_u32 v64, {t1}, {vTS}\nv_and_b32 v64, 0xffff, v64')
            A(f'v_mov_b32_dpp v65, v64 quad_perm:[1,1,3,3] {DPP}\nv_lshl_or_b32 v64, v65, 16, v64\nv_lshlrev_b32 v65, 1, {vL}')
            A(f's_mov_b32 exec_lo, 0x55555555\ns_mov_b32 exec_hi, 0\nbuffer_store_dword v64, v65, {DBG}, 0 offen sc1')
    A('s_endpgm')
    for t_ in tails: A(t_)
    A('L_end:\ns_endpgm')
    A(f'.section .rodata,"a"\n.p2align 6\n.amdhsa_kernel {NAME}_kernel')
    A('.amdhsa_next_free_vgpr 256\n.amdhsa_next_free_sgpr 102\n.amdhsa_accum_offset 128\n.amdhsa_group_segment_fixed_size 0\n.amdhsa_kernarg_size 96\n.amdhsa_user_sgpr_count 2\n.amdhsa_user_sgpr_kernarg_segment_ptr 1\n.amdhsa_system_sgpr_workgroup_id_x 1\n.end_amdhsa_kernel')
    txt, probs = A.text()
    for p in probs: print('HAZARD', p, file=sys.stderr)
    return txt, nts[0]

if __name__ == '__main__':
    out = sys.argv[1]
    kw = {}
    for a in sys.argv[2:]:
        k, v = a.split('='); kw[k] = eval(v)
    txt, n = build(**kw)
    open(out, 'w').write(txt)
    print('stamps', n, 'lines', txt.count('\n'))
```

```python
import sys, math, struct
sys.path.insert(0, 'gen')
from asmlib import Asm

NAME = "interleave_layers__sliding_block_cached__glu_gated_reglu__decode"

bQP, bQS, bOP, bML, bGP, bGS, bGC, GB = 0x0, 0x8000, 0x8400, 0x10400, 0x10800, 0x18800, 0x18C00, 0x1AC00
oXA, oXB, LS = 8 * GB, 8 * GB + 0x20000, 8 * GB + 0x40000
TQP, TQC, TOP, TML, TF, EPOCH = 0x240000, 0x2C0000, 0x2E0000, 0x360000, 0x364000, 0x36C000
WS_REC = 0x36C100
OOB = 0x7FFF0000
L_RING, L_WQ, L_WO, L_WG, L_WU, L_WD = 0, 65536, 81920, 98304, 106496, 114688
L_QS, L_OS, L_HS, L_XS, L_RM, L_ST = 122880, 124160, 125440, 126208, 127168, 127424
L_FL = L_ST + 16
LDS_BYTES = 127488

def f32(x): return '0x%08x' % struct.unpack('<I', struct.pack('<f', x))[0]
QSCALE = 128 ** -0.5 * math.log2(math.e)

sW, sG, sC, sHI, sLO = 's3', 's4', 's5', 's6', 's7'
WS, KK, VV, WQ, WO, WG, WU, WD, XX, OUT, DBG = [f's[{i}:{i+3}]' for i in range(8, 52, 4)]
sKV, sRING, t0, t1, t2, t3 = 's52', 's53', 's54', 's55', 's56', 's57'
sLAY, sTO, sFAST, sCNT, sGOK, sLIDX = 's58', 's59', 's60', 's61', 's62', 's63'
sQg, sOg, sGg, sQSg, sMLg, sGSg, sXg, sGBASE, sGCg = ['s%d' % i for i in range(66, 75)]
sOPst, sMLst, sXst, sQSst, sGSst = ['s%d' % i for i in range(75, 80)]
g0, g1, g2, g3 = 's90', 's91', 's92', 's93'
vL, vT4, vSt8, vXg, vQst, vGst, vSSt, vG1, vXst, vQW, vBR320, vHW, vBR192, vXR, vXW, vL4 = ['v%d' % i for i in range(16)]
vROW, vROR, vRMW, vRMR, vWQr, vWr, vWOr, vXO = ['v%d' % i for i in range(16, 24)]
CSQ, CSG = 'v[24:25]', 'v[26:27]'
vTS, vML2, vTMP, vTMP2 = 'v28', 'v29', 'v30', 'v31'
SELA, MASK, SELG, ONES = 'v[32:35]', 36, 'v[40:43]', 'v[44:45]'
vMLst = 'v46'
XRES = 'v[112:113]'
sM4 = 's[88:89]'
sTAG = 's100'
DPP = 'row_mask:0xf bank_mask:0xf'
M16 = 'v_mfma_f32_16x16x32_bf16'

HEADER = r'''
;
;
;   - first q and first attention exchange: 16-byte granules {4 x bf16, tag, ..}; tag = (word found at ws+EPOCH) + 1,
;   Stores that are only read inside the group are plain when every member reported the same XCC id, write-through
'''

def build(ts=False, gdelay=12, gdelay_hi=18, pf_code=True, rides=(17, 22, 27), w_at='land31', ldelay=0, bar_after_k0=False, fride=26, ffn_hi=False, touch_o=0, touch_g=0, ffn_sleep=0, clean3_xa=0, tlb=0, diag2=0, ffn_at=0, fdelay=4, fback=4, wo_at=0, csq_o=0, touch1=12, wt_at=29, csq_at=26, xa0=0, xb0=3, cl_at=29, tail_parts='gud', fearly=10, use_early=0, fullflag=1, flag_first=0, jitter=0, mid_parts='', mid_sleep=8, touch_att=1, kpol='nt', vpol='nt', wb=0, out_sc1=0, dual=15, dstep=3, pf_few=0, pf_late=0, flate=6, share=1, gd_b=11, gdh_b=15, ffn_by_hi=0, tmajor=1, prio=0, padto=0, warm_x=1, warm_at=0, wd_late=0, xback=0, deep_from=24, depth=5, deep=7, diag=0, noclean=0, burst=4, late47=0, abl='', backoff=0, cl_sc1=1, dbgts=0, wsoff=0):
    A = Asm()
    uid = [0]
    def lab(p):
        uid[0] += 1; return f'L_{p}_{uid[0]}'
    nts = [0]; inloop = [False]
    def stamp(key=False):
        if jitter:
            l_ = lab('jt')
            A(f's_memtime s[94:95]\ns_waitcnt lgkmcnt(0)\ns_mul_i32 s94, s94, 0x9e3779b1\ns_xor_b32 s94, s94, s2\ns_mul_i32 s94, s94, 0x85ebca6b\ns_lshr_b32 s94, s94, {32 - jitter}')
            A(f's_cmp_lg_u32 s94, 0\ns_cbranch_scc1 {l_}\ns_sleep 100\n{l_}:')
        if not ts: return
        if ts == 2 and not key:
            nts[0] += 1; return
        if inloop[0]:
            A(f's_memrealtime s[94:95]\ns_mul_i32 m0, {sLIDX}, 11\ns_add_u32 m0, m0, {nts[0]}\ns_waitcnt lgkmcnt(0)\nv_writelane_b32 {vTS}, s94, m0')
        else:
            A(f's_memrealtime s[94:95]\ns_waitcnt lgkmcnt(0)\nv_writelane_b32 {vTS}, s94, {nts[0]}')
        nts[0] += 1
    def xstamp(i):
        A(f's_memrealtime s[94:95]\ns_waitcnt lgkmcnt(0)\nv_writelane_b32 {vTS}, s94, {i}')
    def set_exec(lo, hi=None):
        hi = lo if hi is None else hi
        A(f's_mov_b32 exec_lo, {lo:#x}\ns_mov_b32 exec_hi, {hi:#x}')
    def full_exec(): A('s_mov_b64 exec, -1')
    tails = []
    def lstore(fmt, tag='st', nxt=None, cmp=True):
        a, b = lab('wt'), lab('sd')
        for f_ in fmt.split('\n'): A((';;need2 ' if cmp else ';;need1 ') + f_)
        if cmp: A(f's_cmp_eq_u32 {sFAST}, 1')
        A(f's_cbranch_scc0 {a}')
        A(fmt); A(f'{b}:')
        tails.append(f'{a}:\n' + '\n'.join(f_ + ' sc1' for f_ in fmt.split('\n')) + f'\ns_branch {b}')
        A.vm.append(tag)
    class lowwaves:
        def __init__(s, other=None): s.other = other
        def __enter__(s):
            s.l = lab('hi'); s.o = lab('up') if s.other else s.l
            A(f's_cmp_ge_u32 {sW}, 4\ns_cbranch_scc1 {s.o}')
        def __exit__(s, *a):
            A(f'{s.l}:')
            if s.other:
                keepL, A.L = A.L, []
                A(f'{s.o}:'); s.other(); A(f's_branch {s.l}')
                tails.append('\n'.join(A.L)); A.L = keepL
    def sel(dst, a, b):
        A(f'v_cndmask_b32 {dst}, {a}, {b}, vcc')

    A(f'; @launch grid=(256,1,1) block=(512,1,1) lds={LDS_BYTES}')
    for l_ in HEADER.strip('\n').split('\n'): A.L.append(l_)
    A('.amdgcn_target "amdgcn-amd-amdhsa--gfx950"')
    A(f'.text\n.globl {NAME}_kernel\n.p2align 8\n.type {NAME}_kernel,@function\n{NAME}_kernel:')
    A('s_cmp_ge_u32 s2, 256\ns_cbranch_scc1 L_end')
    A('s_load_dwordx16 s[64:79], s[0:1], 0\ns_load_dwordx8 s[80:87], s[0:1], 64')
    if padto: A('s_memrealtime s[98:99]')
    if diag: A('s_memrealtime s[96:97]')
    A(f'v_lshlrev_b32 {vT4}, 2, v0')
    def prefetch_code():
        if pf_few: A(f's_cmp_ge_u32 s2, {8 * pf_few}\ns_cbranch_scc1 L_nopf')
        A(f's_getpc_b64 s[94:95]\nL_pc:\ns_sub_u32 s94, s94, L_pc-{NAME}_kernel\ns_subb_u32 s95, s95, 0\ns_lshr_b32 s93, s2, 3\ns_and_b32 s93, s93, 1\ns_lshl_b32 s93, s93, 13\nv_lshlrev_b32 {vTMP}, 2, {vT4}\nv_add_u32 {vTMP}, s93, {vTMP}')
        A(f'v_min_u32 {vTMP}, L_end-{NAME}_kernel-16, {vTMP}')
        A(f'global_load_dwordx4 v[96:99], {vTMP}, s[94:95]')
        if pf_few: A('L_nopf:')
        else: A.vm.append('pf')
    if pf_code and not pf_late: prefetch_code()
    A(f'v_lshrrev_b32 {vTMP}, 6, v0')
    A(f'v_and_b32 {vL}, 63, v0')
    A(f'v_readfirstlane_b32 {sW}, {vTMP}')
    A(f's_and_b32 {sG}, s2, 7\ns_lshr_b32 {sC}, s2, 3\ns_lshr_b32 {sHI}, {sC}, 3\ns_and_b32 {sLO}, {sC}, 7')
    A(f'v_and_b32 v120, 15, {vL}\nv_lshrrev_b32 v121, 4, {vL}')
    A(f'v_lshlrev_b32 {vTMP}, 2, v121\nv_xor_b32 {vTMP}, v120, {vTMP}\nv_lshlrev_b32 {vTMP}, 4, {vTMP}\nv_lshl_add_u32 v116, v121, 8, {vTMP}\nv_lshl_add_u32 v124, v121, 13, {vTMP}')
    A(f'v_and_b32 v122, 3, {vL}\nv_lshrrev_b32 v123, 2, v120')
    A(f's_lshr_b32 {t0}, {sW}, 1\ns_lshl_b32 {t0}, {t0}, 10\ns_and_b32 {t1}, {sW}, 1\ns_lshl_b32 {t1}, {t1}, 6\ns_add_u32 {t0}, {t0}, {t1}\ns_lshl_b32 {t1}, {sLO}, 7\ns_add_u32 {t0}, {t0}, {t1}')
    A(f'v_lshlrev_b32 v117, 4, v122\nv_lshl_add_u32 v117, v121, 2, v117\nv_add_u32 {vXO}, {t0}, v117')
    A(f's_lshl_b32 {t0}, {sHI}, 3\ns_add_u32 {t0}, {t0}, {sG}\ns_lshl_b32 {sKV}, {t0}, 22\ns_lshl_b32 {t0}, {sLO}, 17\ns_add_u32 {sKV}, {sKV}, {t0}\ns_add_u32 {sKV}, {sKV}, {12288*256}')
    A(f's_add_u32 {t0}, {sG}, {sC}\ns_add_u32 {t0}, {t0}, {sW}\ns_and_b32 {t0}, {t0}, 7\ns_lshl_b32 {t0}, {t0}, 12\ns_add_u32 {sKV}, {sKV}, {t0}')
    A(f's_lshl_b32 {sRING}, {sW}, 13')
    A(f's_and_b32 {g3}, {sW}, 3')
    A(f's_lshl_b32 {t0}, {sG}, 2\ns_add_u32 {t0}, {t0}, {sHI}')
    A(f'v_mov_b32 v118, {OOB}')
    A(f's_mul_i32 s101, {sG}, {GB}')
    A(f's_lshl_b32 {t1}, {sLO}, 6\ns_lshl_b32 {t2}, {sW}, 3\ns_add_u32 {t1}, {t1}, {t2}\ns_lshl_b32 {t1}, {t1}, 13\ns_lshl_b32 {t2}, {sG}, 10\ns_add_u32 {t1}, {t1}, {t2}\ns_lshl_b32 {t2}, {sHI}, 8\ns_add_u32 {t1}, {t1}, {t2}')
    A(f's_lshl_b32 {t2}, {sW}, 11\ns_add_u32 m0, {t2}, {L_WQ}')
    if ts:
        A(f'v_mov_b32 {vTS}, 0')
        if diag: A(f's_mov_b32 s92, s96');
        stamp(True)
        if diag: A(f'v_writelane_b32 {vTS}, s96, 38')
        A(f's_memtime s[98:99]')
    A('s_waitcnt lgkmcnt(0)')
    if diag: xstamp(39)
    def srd(d, lo, n):
        A(f's_mov_b32 s{d}, s{lo}\ns_mov_b32 s{d+1}, s{lo+1}\ns_mov_b32 s{d+2}, {n}\ns_mov_b32 s{d+3}, 0x20000')
    srd(20, 70, 4194304)
    A.vmop(f'buffer_load_dwordx4 v124, {WQ}, {t1} offen nt lds', 'wq')
    A(f's_add_u32 {t1}, {t1}, 32768\ns_add_u32 m0, m0, 1024')
    srd(40, 64, 4096)
    A.vmop(f'buffer_load_dwordx4 v124, {WQ}, {t1} offen nt lds', 'wq')
    srd(8, 86, WS_REC)
    if wsoff: A(f's_add_u32 s8, s8, {wsoff}\ns_addc_u32 s9, s9, 0')
    A.vmop(f'buffer_load_dword v68, {vXO}, {XX}, 0 offen', 'x0')
    A(f's_lshr_b32 {t2}, {sW}, 1\ns_lshl_b32 {t2}, {t2}, 10\nv_lshlrev_b32 {vTMP}, 4, {vL}')
    A.vmop(f'buffer_load_dwordx4 v[72:75], {vTMP}, {XX}, {t2} offen', 'x0')
    A(f's_mov_b32 {t2}, {EPOCH}')
    A.vmop(f'buffer_load_dword v69, off, {WS}, {t2} sc1', 'ep')
    srd(12, 66, 0x8000000)
    def piece(p):
        t, q = (p % 16) // 4, p % 4
        if q == 0:
            A(f's_add_u32 {g1}, {sKV}, {t*32768}\ns_add_u32 m0, {sRING}, {((p//4)&1)*4096}')
        src = 'v116'
        A.vmop(f'buffer_load_dwordx4 {src}, {KK if p < 16 else VV}, {g1} offen offset:{q*1024} {kpol if p < 16 else vpol} lds', f'p{p}')
    for p in range(burst): piece(p)
    if pf_code and pf_late:
        assert not pf_few
        A('s_mov_b32 s92, s93'); prefetch_code(); A('s_mov_b32 s93, s92')
    srd(16, 68, 0x8000000)
    if ts: A('s_mov_b32 s96, s86\ns_mov_b32 s97, s87')

    srd(24, 72, 4194304); srd(44, 82, 4096); srd(48, 84, 256)
    srd(28, 76, 1835008); srd(32, 78, 1835008); srd(36, 80, 1835008)
    A(f's_mul_i32 {t1}, {sG}, 3\ns_add_u32 {t1}, {t1}, 4\ns_lshl_b32 {t2}, {sG}, 2\ns_cmp_ge_u32 {sG}, 4\ns_cselect_b32 {g2}, {t1}, {t2}\ns_add_u32 {g2}, {g2}, {sHI}\ns_min_u32 {g2}, {g2}, 27')
    if tlb:
        A(f's_lshl_b32 {t1}, {t0}, 17')
        A.vmop(f'buffer_load_dword v96, off, {WO}, {t1} nt', 'tlb')
        A(f's_mul_i32 {t1}, {sLO}, {64*3584}')
        A.vmop(f'buffer_load_dword v96, off, {WG}, {t1} nt', 'tlb')
        A.vmop(f'buffer_load_dword v96, off, {WU}, {t1} nt', 'tlb')
        A(f's_lshl_b32 {t1}, {g2}, 16')
        A.vmop(f'buffer_load_dword v96, off, {WD}, {t1} nt', 'tlb')
        A(f'v_lshlrev_b32 {vTMP}, 19, v120')
        A.vmop(f'buffer_load_dword v96, {vTMP}, {WS}, 0 offen nt', 'tlb')
        A.vmop(f'buffer_load_dword v96, off, {VV}, {sKV} nt', 'tlb')
    A(f's_getreg_b32 {t1}, hwreg(HW_REG_XCC_ID)\ns_and_b32 s64, {t1}, 15')
    A(f's_mov_b32 s88, 0x000f000f\ns_mov_b32 s89, 0x000f000f')
    A(f's_mov_b32 {sGBASE}, s101')
    A(f's_lshl_b32 {t1}, {sHI}, 13\ns_add_u32 {t1}, {t1}, {sGBASE}')
    A(f's_add_u32 {sQg}, {t1}, {bQP + LS}\ns_add_u32 {sOg}, {t1}, {bOP}\ns_add_u32 {sGg}, {t1}, {bGP}')
    A(f's_lshl_b32 {t1}, {g3}, 2\ns_add_u32 {t1}, {t1}, {sHI}\ns_lshl_b32 {t1}, {t1}, 6\ns_add_u32 {t1}, {t1}, {sGBASE}\ns_add_u32 {sQSg}, {t1}, {bQS + LS}')
    A(f's_lshl_b32 {sMLst}, {sLO}, 3\ns_add_u32 {sMLst}, {sMLst}, {t1}\ns_add_u32 {sMLst}, {sMLst}, {bML}')
    A(f's_lshl_b32 {t2}, {g3}, 13\ns_lshl_b32 {t1}, {sLO}, 10\ns_add_u32 {t2}, {t2}, {t1}\ns_lshl_b32 {t1}, {sHI}, 8\ns_add_u32 {t2}, {t2}, {t1}\ns_add_u32 {t2}, {t2}, {sGBASE}\ns_add_u32 {sOPst}, {t2}, {bOP}')
    A(f's_lshl_b32 {t1}, {sHI}, 2\ns_add_u32 {t1}, {t1}, {g3}\ns_lshl_b32 {t1}, {t1}, 6\ns_add_u32 {t1}, {t1}, {sGBASE}\ns_add_u32 {sMLg}, {t1}, {bML}\ns_add_u32 {sGSg}, {t1}, {bGS}')
    A(f's_lshl_b32 {t1}, {sLO}, 14\ns_add_u32 {sXg}, {t1}, {oXA}')
    A(f's_lshl_b32 {t1}, {t0}, 9\ns_add_u32 {sXst}, {sXg}, {t1}')
    A(f's_lshl_b32 {t1}, {sHI}, 11\ns_add_u32 {t1}, {t1}, {sGBASE}\ns_add_u32 {sGCg}, {t1}, {bGC}')
    A(f's_lshl_b32 {t3}, {sHI}, 8\ns_lshl_b32 {t1}, {sLO}, 3\ns_add_u32 {t3}, {t3}, {t1}\ns_add_u32 {t3}, {t3}, {sGBASE}\ns_add_u32 {sQSst}, {t3}, {bQS + LS}\ns_add_u32 {sGSst}, {t3}, {bGS}')
    A(f's_lshl_b32 s101, {t0}, 14\ns_add_u32 s101, s101, {TQP}')
    A(f's_lshl_b32 {t1}, {sLO}, 10\ns_lshl_b32 {t2}, {sHI}, 8\ns_add_u32 {t1}, {t1}, {t2}\ns_lshl_b32 {t2}, {g3}, 6\ns_add_u32 {t3}, {t1}, {t2}')
    A(f's_add_u32 {t1}, {sGBASE}, {t3}\ns_add_u32 {t1}, {t1}, {LS}\ns_mov_b32 {t2}, {OOB}')
    A(f's_cmp_ge_u32 {sW}, 4\ns_cselect_b32 {g0}, 0, 5')
    def st_off(dst, shift):
        A(f'v_lshlrev_b32 {vTMP}, {shift}, v120\nv_add_u32 {vTMP}, {t1}, {vTMP}\nv_mov_b32 {vTMP2}, {t2}\nv_cmp_eq_u32 vcc, 4, v120'); sel(vTMP, vTMP, vTMP2)
        A(f'v_lshl_add_u32 {vTMP}, v121, 4, {vTMP}\nv_cmp_gt_u32 vcc, {g0}, v120'); sel(dst, 'v118', vTMP)
    st_off(vQst, 13)
    A(f's_lshl_b32 {t3}, {t3}, 1\ns_lshl_b32 {t1}, {g3}, 6\ns_sub_u32 {t3}, {t3}, {t1}\ns_lshl_b32 {t1}, {sG}, 16\ns_add_u32 {t1}, {t1}, {t3}\ns_add_u32 {t1}, {t1}, {TQP}\ns_lshl_b32 {t2}, {sG}, 14\ns_add_u32 {t2}, {t2}, {t3}\ns_add_u32 {t2}, {t2}, {TQC}')
    st_off('v109', 14)
    A(f'v_lshlrev_b32 {vTMP}, 6, v122\nv_add_u32 {vTMP2}, 4, {vTMP}\nv_cmp_gt_u32 vcc, 16, {vL}'); sel(vTMP, vTMP, vTMP2)
    A(f'v_and_b32 {vTMP2}, {0x1ec*4}, {vT4}\nv_cmp_eq_u32 vcc, {256*4}, {vTMP2}'); sel(vSSt, 'v118', vTMP)
    A(f'v_lshlrev_b32 v115, 2, {vT4}')
    A(f's_lshl_b32 {t1}, {sG}, 2\ns_add_u32 {t1}, {t1}, {g3}\ns_lshl_b32 {t1}, {t1}, 14\ns_lshl_b32 {t2}, {sLO}, 11\ns_add_u32 {t1}, {t1}, {t2}\ns_lshl_b32 {t2}, {sHI}, 9\ns_add_u32 {t1}, {t1}, {t2}\ns_add_u32 {t1}, {t1}, {TOP}')
    A(f'v_and_b32 {vTMP}, 2, {vL}\nv_lshlrev_b32 {vTMP}, 7, {vTMP}\nv_lshrrev_b32 {vTMP2}, 2, {vL}\nv_lshl_add_u32 {vTMP}, {vTMP2}, 4, {vTMP}\nv_add_u32 {vTMP}, {t1}, {vTMP}\nv_and_b32 {vTMP2}, 1, {vL}\nv_cmp_eq_u32 vcc, 0, {vTMP2}'); sel('v110', 'v118', vTMP)
    A(f's_mov_b32 {sLAY}, 0\ns_mov_b32 {sTO}, 400000\ns_mov_b32 {sFAST}, 0\ns_mov_b32 {sCNT}, 0\ns_mov_b32 {sGOK}, 0\ns_mov_b32 {sLIDX}, 0')
    A(f's_lshl_b32 {t3}, {g3}, 6\ns_lshl_b32 {t1}, {sLO}, 10\ns_add_u32 {t1}, {t1}, {sGg}\ns_add_u32 {t1}, {t1}, {t3}\ns_lshl_b32 {t2}, {sLO}, 8\ns_add_u32 {t2}, {t2}, {sGCg}\ns_add_u32 {t2}, {t2}, {t3}')
    st_off(vGst, 8)
    A(f'v_and_b32 {vTMP}, 7, {vL}\nv_lshlrev_b32 {vSt8}, 3, {vTMP}\nv_lshlrev_b32 {vL4}, 2, {vL}\nv_lshlrev_b32 {vML2}, 3, v121')
    A(f'v_cmp_eq_u32 vcc, 0, {vL}'); sel(vMLst, 'v118', '0')
    A(f's_lshl_b32 {t1}, {g3}, 8\nv_lshlrev_b32 {vTMP}, 4, v120\nv_lshl_add_u32 {vG1}, v121, 10, {vTMP}\nv_add_u32 {vG1}, {t1}, {vG1}')
    A(f's_lshl_b32 {t1}, {sW}, 6\nv_lshlrev_b32 {vXg}, 11, v123\nv_lshl_add_u32 {vXg}, v121, 9, {vXg}\nv_lshl_add_u32 {vXg}, v122, 4, {vXg}\nv_add_u32 {vXg}, {t1}, {vXg}')
    A(f's_lshr_b32 {t1}, {sW}, 1\ns_mul_i32 {t1}, {t1}, 192\ns_and_b32 {t2}, {sW}, 1\ns_lshl_b32 {t2}, {t2}, 6\ns_add_u32 {t1}, {t1}, {t2}\ns_add_u32 {t1}, {t1}, {L_XS}\nv_add_u32 {vXW}, {t1}, v117')
    A(f's_mul_i32 {t1}, {g3}, 320\ns_add_u32 {t1}, {t1}, {L_QS}\nv_lshl_add_u32 {vQW}, v121, 2, {vTMP}\nv_add_u32 {vQW}, {t1}, {vQW}')
    A(f's_mul_i32 {t1}, {g3}, 192\ns_add_u32 {t1}, {t1}, {L_HS}\nv_lshlrev_b32 {vHW}, 3, v120\nv_lshl_add_u32 {vHW}, v121, 1, {vHW}\nv_add_u32 {vHW}, {t1}, {vHW}')
    A(f'v_mul_u32_u24 {vBR320}, 320, v122\nv_lshl_add_u32 {vBR320}, v121, 4, {vBR320}\nv_add_u32 {vBR320}, {L_QS}, {vBR320}')
    A(f'v_mul_u32_u24 {vBR192}, 192, v122\nv_lshl_add_u32 {vBR192}, v121, 4, {vBR192}\nv_add_u32 {vBR192}, {L_HS}, {vBR192}')
    A(f'v_min_u32 {vTMP2}, 4, v120\nv_mul_u32_u24 {vXR}, 192, {vTMP2}\nv_lshl_add_u32 {vXR}, v121, 4, {vXR}\nv_add_u32 {vXR}, {L_XS}, {vXR}')
    A(f's_lshl_b32 {t1}, {g3}, 5\nv_lshlrev_b32 {vTMP2}, 7, v120\nv_lshl_add_u32 {vTMP2}, v121, 3, {vTMP2}\nv_add_u32 {vTMP2}, {t1}, {vTMP2}\nv_cmp_gt_u32 vcc, 4, v120'); sel(vXst, 'v118', vTMP2)
    A(f'v_lshlrev_b32 {vTMP2}, 4, {vL}\nv_add_u32 {vROW}, {sRING}, {vTMP2}')
    A(f's_lshr_b32 {t1}, {g3}, 1\ns_lshl_b32 {t1}, {t1}, 10\ns_and_b32 {t2}, {g3}, 1\ns_lshl_b32 {t2}, {t2}, 3\ns_add_u32 {t1}, {t1}, {t2}\nv_add_u32 {vROR}, {t1}, {vTMP2}')
    A(f's_lshl_b32 {t1}, {sW}, 3\ns_add_u32 {t1}, {t1}, {L_RM}\nv_lshlrev_b32 {vRMW}, 6, v122\nv_add_u32 {vRMW}, {t1}, {vRMW}')
    A(f's_lshl_b32 {t1}, {g3}, 6\ns_add_u32 {t1}, {t1}, {L_RM}\nv_add_u32 {vRMR}, {t1}, {vSt8}')
    A(f'v_lshl_add_u32 v125, v121, 3, v123')
    A(f'v_xor_b32 {vTMP}, {g3}, v123\nv_lshlrev_b32 {vTMP}, 6, {vTMP}\nv_lshl_add_u32 {vTMP}, v122, 4, {vTMP}\nv_lshl_add_u32 {vWQr}, v125, 8, {vTMP}\nv_add_u32 {vWQr}, {L_WQ}, {vWQr}')
    A(f'v_lshrrev_b32 v119, 1, v123\nv_and_b32 v127, 1, v121\nv_lshlrev_b32 {vTMP}, 1, v127')
    A(f'v_xor_b32 {vTMP}, {g3}, {vTMP}\nv_lshlrev_b32 {vTMP}, 5, {vTMP}\nv_lshl_add_u32 {vTMP}, v122, 3, {vTMP}\nv_lshl_add_u32 {vWr}, v125, 7, {vTMP}\nv_add_u32 {vWr}, {L_WG}, {vWr}')
    A(f'v_and_b32 v126, 1, v123\nv_lshlrev_b32 {vTMP}, 1, v126\nv_xor_b32 {vTMP}, {g3}, {vTMP}\nv_lshlrev_b32 {vTMP}, 5, {vTMP}\nv_lshl_add_u32 {vTMP}, v122, 3, {vTMP}')
    A(f'v_lshl_add_u32 {vTMP2}, v121, 2, v119\nv_lshl_add_u32 {vTMP2}, v126, 6, {vTMP2}\nv_lshl_add_u32 {vWOr}, {vTMP2}, 7, {vTMP}\nv_add_u32 {vWOr}, {L_WO}, {vWOr}')
    A(f'v_and_b32 v125, 1, v120\nv_mov_b32 {vTMP}, 0xffff\nv_mov_b32 {vTMP2}, 0xffff0000\nv_cmp_eq_u32 vcc, 1, v125'); sel('v119', vTMP, vTMP2)
    A(f'v_cmp_gt_u32 vcc, 2, v122'); sel('v119', '0', 'v119')
    for i in range(4):
        A(f'v_cmp_eq_u32 vcc, {i}, v123'); sel(f'v{MASK+i}', '0', 'v119'); A(f'v_and_b32 v{32+i}, 0x3f803f80, v{MASK+i}')
    A(f'v_mov_b32 {vTMP}, 0x3f80\nv_mov_b32 {vTMP2}, 0x3f800000\nv_cmp_eq_u32 vcc, 1, v126'); sel('v119', vTMP, vTMP2)
    A(f'v_cmp_gt_u32 vcc, 2, v122'); sel('v119', '0', 'v119')
    A(f'v_lshrrev_b32 {vTMP}, 1, v123\nv_lshl_add_u32 {vTMP}, v125, 1, {vTMP}')
    for i in range(4):
        A(f'v_cmp_eq_u32 vcc, {i}, {vTMP}'); sel(f'v{40+i}', '0', 'v119')
    A('v_mov_b32 v44, 0x3f803f80\nv_mov_b32 v45, 0x3f803f80')
    A(f'v_and_b32 {vTMP2}, 7, {vL}\nv_lshrrev_b32 v119, 3, {vL}')
    A(f's_lshr_b32 {t1}, {sW}, 2\ns_lshl_b32 {t1}, {t1}, 2\nv_xor_b32 {vTMP}, {t1}, {vTMP2}\nv_lshlrev_b32 {vTMP}, 4, {vTMP}\nv_lshl_add_u32 v124, v119, 10, {vTMP}')
    A(f's_and_b32 {t1}, {sW}, 1\ns_lshl_b32 {t1}, {t1}, 2\nv_xor_b32 {vTMP}, {t1}, {vTMP2}\nv_lshlrev_b32 {vTMP}, 4, {vTMP}')
    A(f'v_lshl_add_u32 v127, v119, 10, {vTMP}\nv_mul_u32_u24 v126, 3584, v119\nv_add_u32 v126, v126, {vTMP}')
    A(f's_cmp_ge_u32 {sG}, 4\ns_cselect_b32 {t2}, 3, 4\ns_cmp_lt_u32 {sHI}, {t2}\ns_cselect_b32 {t2}, 0, {OOB}\nv_add_u32 v126, {t2}, v126\nv_add_u32 v127, {t2}, v127')
    A(f'v_lshlrev_b32 {vTMP}, 1, v123\nv_xor_b32 {vTMP}, v121, {vTMP}\nv_lshlrev_b32 {vTMP}, 5, {vTMP}\nv_lshl_add_u32 {vTMP}, v122, 3, {vTMP}\nv_lshl_add_u32 {vTMP}, v123, 8, {vTMP}\nv_add_u32 v122, {sRING}, {vTMP}\nv_xor_b32 v123, 128, v122')
    A(f'v_and_b32 {vTMP}, 3, v120\nv_lshlrev_b32 {vTMP}, 6, {vTMP}\nv_lshl_add_u32 {vTMP}, v121, 4, {vTMP}\nv_lshl_add_u32 {vTMP}, v120, 8, {vTMP}\nv_add_u32 v118, {sRING}, {vTMP}')
    for j in range(1, 4): A(f'v_xor_b32 v{118+j}, {64*j}, v118')
    A(f'v_and_b32 {vTMP}, 124, {vL4}\nv_add_u32 {vTMP}, {L_XS+4*192}, {vTMP}\nds_write_b32 {vTMP}, v44')
    A(f'v_mov_b32 {vTMP}, {L_FL}\nv_mov_b32 {vTMP2}, 0\nds_write_b32 {vTMP}, {vTMP2}')

    def read_k(i):
        for j in range(4): A(f'ds_read_b128 a[{16*i+4*j}:{16*i+4*j+3}], v{118+j} offset:{(i&1)*4096}')
    def read_v(p):
        i = p - 16
        for hf in range(2):
            r = 64 + 4 * i + 2 * hf
            A(f'ds_read_b64_tr_b16 a[{r}:{r+1}], v{122+hf} offset:{((p//4)&1)*4096 + (p%4)*1024}')
    if not late47:
        for p in range(burst, 8): piece(p)
    if diag: xstamp(40)
    A.wait_vm('ep')
    if diag: xstamp(41)
    A(f'v_and_b32 v113, 0xffff0000, v68\nv_lshlrev_b32 v112, 16, v68')
    A(f'v_readfirstlane_b32 {sTAG}, v69\ns_add_u32 {sTAG}, {sTAG}, 1')
    A('v_dot2_f32_bf16 v78, v72, v44, 0\nv_dot2_f32_bf16 v79, v72, v72, 0')
    for k in range(73, 76): A(f'v_dot2_f32_bf16 v78, v{k}, v44, v78\nv_dot2_f32_bf16 v79, v{k}, v{k}, v79')
    for m in ('quad_perm:[1,0,3,2]', 'quad_perm:[2,3,0,1]', 'row_half_mirror', 'row_mirror'):
        A(f'v_add_f32_dpp v78, v78, v78 {m} {DPP}\nv_add_f32_dpp v79, v79, v79 {m} {DPP}')
    for sw in ('v_permlane16_swap_b32', 'v_permlane32_swap_b32'):
        A(f'v_mov_b32 v76, v78\nv_mov_b32 v77, v79\n{sw} v78, v76\n{sw} v79, v77\nv_add_f32 v78, v78, v76\nv_add_f32 v79, v79, v77')
    c2 = QSCALE * QSCALE
    A(f'v_mov_b32 v75, {f32(1e-5/c2)}\nv_mul_f32 v74, v78, v78\nv_fmac_f32 v75, {f32(1/(512*c2))}, v79\nv_fmac_f32 v75, {f32(-1/(512*512*c2))}, v74\nv_max_f32 v75, {f32(1e-5/c2)}, v75\nv_rsq_f32 v74, v75')
    A(f'v_mul_f32 v78, {f32(-1/512)}, v78\nv_add_f32 v72, v112, v78\nv_add_f32 v73, v113, v78\nv_mul_f32 v72, v72, v74\nv_mul_f32 v73, v73, v74\nv_cvt_pk_bf16_f32 v72, v72, v73\nds_write_b32 {vXW}, v72')
    if late47:
        for p in range(burst, 8): piece(p)
    if diag: xstamp(42)
    A.wait_vm('wq')
    if diag: xstamp(43)
    if bar_after_k0:
        A.wait_vm('p3')
        read_k(0)
        A('s_waitcnt lgkmcnt(0)')
        for p in range(8, 12): piece(p)
    A('s_waitcnt lgkmcnt(0)')
    if 'B' not in abl: A('s_barrier')
    stamp()

    def read_wq():
        for tl in range(2):
            for j in range(2):
                for u in range(2):
                    r = 48 + 8 * tl + 4 * j + 2 * u
                    A(f'ds_read_b64_tr_b16 v[{r}:{r+1}], {vWQr} offset:{8*tl+8192*j+1024*u}')
    def read_gu():
        for tl in range(2):
            for j in range(2):
                for u in range(2):
                    r = 48 + 8 * tl + 4 * j + 2 * u
                    A(f'ds_read_b64_tr_b16 v[{r}:{r+1}], {vWr} offset:{8192*tl+4096*j+512*u}')
    def read_wd():
        for j in range(2):
            for u in range(2):
                A(f'ds_read_b64_tr_b16 v[{48+4*j+2*u}:{49+4*j+2*u}], {vWr} offset:{16384+4096*j+512*u}')
    def read_wo():
        for j in range(4):
            for u in range(2):
                A(f'ds_read_b64_tr_b16 v[{48+4*j+2*u}:{49+4*j+2*u}], {vWOr} offset:{2048*j+256*u}')
    def matvec(vst, mode, late_w=None, soff='0'):
        A(f'ds_read_b128 v[80:83], {vXR}\nds_read_b128 v[84:87], {vXR} offset:64')
        if late_w: late_w()
        A('s_waitcnt lgkmcnt(0)' if late_w else 's_waitcnt lgkmcnt(1)')
        A(f'{M16} v[96:99], v[48:51], v[80:83], 0\n{M16} v[104:107], v[56:59], v[80:83], 0')
        if not late_w: A('s_waitcnt lgkmcnt(0)')
        A(f'{M16} v[96:99], v[52:55], v[84:87], v[96:99]\n{M16} v[104:107], v[60:63], v[84:87], v[104:107]')
        if mode == 'plain':
            A(f's_cmp_eq_u32 {sFAST}, 1')
            A('v_cvt_pk_bf16_f32 v96, v96, v97\nv_cvt_pk_bf16_f32 v97, v98, v99\nv_cvt_pk_bf16_f32 v98, v104, v105\nv_cvt_pk_bf16_f32 v99, v106, v107')
            lstore(f'buffer_store_dwordx4 v[96:99], {vst}, {WS}, {soff} offen', cmp=False)
            return
        A(f'v_mov_b32 v102, {sTAG}\nv_mov_b32 v103, s64')
        A(f'v_cvt_pk_bf16_f32 v100, v96, v97\nv_cvt_pk_bf16_f32 v101, v98, v99\nv_cvt_pk_bf16_f32 v104, v104, v105\nv_cvt_pk_bf16_f32 v105, v106, v107')
        A(f'v_mov_b32 v106, {sTAG}\nv_mov_b32 v107, s64')
        if mode == 'q0':
            A.vmop(f'buffer_store_dwordx4 v[100:103], {vst}, {WS}, 0 offen', 'st')
            A.vmop(f'buffer_store_dwordx4 v[104:107], {vst}, {WS}, 0 offen offset:256', 'st')
        else:
            lstore(f'buffer_store_dwordx4 v[100:103], {vst}, {WS}, 0 offen\nbuffer_store_dwordx4 v[104:107], {vst}, {WS}, 0 offen offset:256')
    def slice_stats(sst):
        l = lab('st')
        A(f's_cmp_lg_u32 {sW}, 4\ns_cbranch_scc1 {l}')
        A(f'ds_read_b128 v[80:83], {vXR}\nds_read_b128 v[84:87], {vXR} offset:64\ns_waitcnt lgkmcnt(1)')
        A(f'{M16} v[104:107], v[80:83], v[80:83], 0\ns_waitcnt lgkmcnt(0)\n{M16} v[104:107], v[84:87], v[84:87], v[104:107]')
        def pick():
            A('v_cndmask_b32 v104, v104, v105, s[80:81]\nv_cndmask_b32 v106, v106, v107, s[80:81]\nv_cndmask_b32 v104, v104, v106, s[82:83]')
        A('s_mov_b64 s[80:81], 10\ns_mov_b64 s[82:83], 12')
        A(f's_cmp_eq_u32 {sFAST}, 1')
        pick()
        lstore(f'buffer_store_dword v104, {vSSt}, {WS}, {sst} offen', cmp=False)
        A.vm.pop()
        A(f'{l}:')

    def issue_g1(dst, voff, sbase, tag, step=4096):
        A.vmop(f'buffer_load_dwordx4 v[{dst}:{dst+3}], {voff}, {WS}, {sbase} offen sc1', tag)
        if step >= 4096:
            A(f's_add_u32 {t1}, {sbase}, {step}')
            A.vmop(f'buffer_load_dwordx4 v[{dst+4}:{dst+7}], {voff}, {WS}, {t1} offen sc1', tag)
        else:
            A.vmop(f'buffer_load_dwordx4 v[{dst+4}:{dst+7}], {voff}, {WS}, {sbase} offen offset:{step} sc1', tag)
    def check_empty(regs):
        regs = list(regs)
        A(f'v_max3_u32 {vTMP}, v{regs[0]}, v{regs[1]}, v{regs[2]}'); rest = regs[3:]
        if len(rest) >= 5:
            A(f'v_max3_u32 {vTMP2}, v{rest[0]}, v{rest[1]}, v{rest[2]}'); rest = rest[3:]
            tg = 0
            while len(rest) >= 2:
                d = (vTMP, vTMP2)[tg]; A(f'v_max3_u32 {d}, {d}, v{rest[0]}, v{rest[1]}'); rest = rest[2:]; tg ^= 1
            if rest: A(f'v_max3_u32 {vTMP}, {vTMP}, {vTMP2}, v{rest[0]}')
            else: A(f'v_max_u32 {vTMP}, {vTMP}, {vTMP2}')
        else:
            while len(rest) >= 2:
                A(f'v_max3_u32 {vTMP}, {vTMP}, v{rest[0]}, v{rest[1]}'); rest = rest[2:]
            if rest: A(f'v_max_u32 {vTMP}, {vTMP}, v{rest[0]}')
        A(f'v_cmp_eq_u32 vcc, -1, {vTMP}')
    def poll(issue, regs, spec=None):
        r, d = lab('retry'), lab('got')
        A(f'{r}:')
        issue()
        A.wait_vm()
        if spec: spec()
        check_empty(regs)
        tl = lab('again')
        A(f's_cbranch_vccnz {tl}\n{d}:')
        tails.append(f'{tl}:\n' + (f's_sleep {backoff}\n' if backoff else '') + f's_sub_u32 {sTO}, {sTO}, 1\ns_cbranch_scc0 {r}\ns_mov_b32 {sTO}, 0\ns_branch {d}')
    def poll2(issue, nld, regs, spec):
        d, sb, sa = lab('got'), lab('setb'), lab('seta')
        issue(0)
        if dstep: A(f's_sleep {dstep}')
        issue(1)
        A(f'{sa}:\ns_waitcnt vmcnt({nld})')
        spec(0); check_empty(regs(0))
        A(f's_cbranch_vccnz {sb}\n{d}:')
        keepL, A.L = A.L, []
        A(f'{sb}:'); issue(0)
        A(f's_waitcnt vmcnt({nld})\ns_nop 1')
        spec(1); check_empty(regs(1))
        A(f's_nop 1\ns_cbranch_vccz {d}')
        issue(1)
        A(f's_sub_u32 {sTO}, {sTO}, 1\ns_cbranch_scc0 {sa}\ns_mov_b32 {sTO}, 0\ns_branch {d}')
        tails.append('\n'.join(A.L)); A.L = keepL
        A.vm = []
    def ln_poll2(sdata, sstat, selop):
        def iss(k):
            issue_g1(64 + 16 * k, vG1, sdata, 'x')
            A.vmop(f'buffer_load_dwordx2 v[{72+16*k}:{73+16*k}], {vSt8}, {WS}, {sstat} offen sc1', 'x')
        def spec(k):
            b = 64 + 16 * k
            A(f'{M16} v[96:99], {selop}, v[{b}:{b+3}], 0\n{M16} v[96:99], {selop}, v[{b+4}:{b+7}], v[96:99]')
            A(f'v_add_f32_dpp v78, v{b+8}, v{b+8} quad_perm:[1,0,3,2] {DPP}\nv_add_f32_dpp v79, v{b+9}, v{b+9} quad_perm:[1,0,3,2] {DPP}')
        poll2(iss, 3, lambda k: range(64 + 16 * k, 74 + 16 * k), spec)
    def issue_q(first):
        if not first:
            issue_g1(64, vG1, sQg, 'q')
            A.vmop(f'buffer_load_dwordx2 v[72:73], {vSt8}, {WS}, {sQSg} offen sc1', 'q')
            return
        issue_tagged(f's_mov_b32 {t1}, s101')
    def issue_tagged(base, dst=80, voff=None, kstep=8192, hstep=256):
        if voff is None:
            A(f'v_and_b32 {vTMP2}, 0xf0, {vG1}\nv_lshlrev_b32 {vTMP}, 1, {vG1}\nv_sub_u32 {vTMP}, {vTMP}, {vTMP2}')
        else: A(voff)
        A(base + f'\ns_add_u32 {t2}, {t1}, {kstep}')
        for k in range(2):
            for hh in range(2):
                r = dst[2 * k + hh] if isinstance(dst, tuple) else dst + 8 * k + 4 * hh
                A.vmop(f'buffer_load_dwordx4 v[{r}:{r+3}], {vTMP}, {WS}, {(t1, t2)[k]} offen offset:{hstep*hh} sc1', 'q')
    def issue_o0():
        issue_tagged(f's_lshl_b32 {t1}, {sG}, 2\ns_add_u32 {t1}, {t1}, {sHI}\ns_lshl_b32 {t0}, {t1}, 2\ns_lshl_b32 {t1}, {t1}, 14\ns_add_u32 {t1}, {t1}, {TOP}', o0dst[0])
        A(f's_add_u32 {t0}, {t0}, {sW}\ns_lshl_b32 {t0}, {t0}, 7\ns_add_u32 {t0}, {t0}, {TML}\nv_lshlrev_b32 {vTMP2}, 1, {vML2}')
        m_ = o0ml[0]
        A.vmop(f'buffer_load_dwordx4 v[{m_}:{m_+3}], {vTMP2}, {WS}, {t0} offen sc1', 'q')
        A.vmop(f'buffer_load_dwordx4 v[{m_+4}:{m_+7}], {vTMP2}, {WS}, {t0} offen offset:64 sc1', 'q')
    o0dst = [80]; o0ml = [64]
    def check_words(words, sval):
        w = list(words)
        A(f'v_xor_b32 {vTMP}, {sval}, v{w[0]}')
        for x in w[1:]: A(f'v_xor_b32 {vTMP2}, {sval}, v{x}\nv_or_b32 {vTMP}, {vTMP}, {vTMP2}')
        A(f'v_cmp_ne_u32 vcc, 0, {vTMP}')
    def check_tags(words=(82, 86, 90, 94)): check_words(words, sTAG)
    def tagged_sum(selbase=32, src=80, acc=96, selk=0):
        for n_, (k, hh) in enumerate(((0, 0), (0, 1), (1, 0), (1, 1))):
            r = src[2 * k + hh] if isinstance(src, tuple) else src + 8 * k + 4 * hh
            sb = selbase + selk * k + 2 * hh
            c = '0' if n_ == 0 else f'v[{acc}:{acc+3}]'
            A(f'v_mfma_f32_16x16x16_bf16 v[{acc}:{acc+3}], v[{sb}:{sb+1}], v[{r}:{r+1}], {c}')
    def q0_finish():
        tagged_sum()
        check_words((83, 87, 91, 95), 's64')
        A(f's_cmp_eq_u64 vcc, 0\ns_cselect_b32 {sGOK}, 1, 2')
        A(f'v_cvt_pk_bf16_f32 v96, v96, v97\nds_write_b32 {vQW}, v96')
    def tagged_poll(issue, words=(82, 86, 90, 94), spec=None, back=0):
        rq, gq = lab('rq'), lab('gq')
        A(f'{rq}:')
        issue(); A.wait_vm()
        if spec: spec()
        check_tags(words)
        A(f's_cbranch_vccz {gq}')
        if back: A(f's_sleep {back}')
        A(f's_sub_u32 {sTO}, {sTO}, 1\ns_cbranch_scc0 {rq}\ns_mov_b32 {sTO}, 0\n{gq}:')
    CQ = (48, 52, 56, 60)
    def issue_csq(): issue_tagged(f's_lshl_b32 {t1}, {sG}, 14\ns_add_u32 {t1}, {t1}, {TQC}', CQ)
    def finish_csq():
        ok_ = lab('cq')
        check_tags(tuple(r + 2 for r in CQ))
        A(f's_cbranch_vccz {ok_}')
        tagged_poll(issue_csq, tuple(r + 2 for r in CQ))
        A(f'{ok_}:')
        tagged_sum(32, CQ, 64)
        A(f's_mov_b32 {t2}, {f32(1/512)}\nv_pk_mul_f32 {CSQ}, v[64:65], s[56:57] op_sel_hi:[1,0]')
    QREGS = list(range(64, 74)); QREGS1 = QREGS + list(range(80, 88))
    def ln_spec(selop, first):
        def f():
            A(f'{M16} v[96:99], {selop}, v[64:67], 0\n{M16} v[96:99], {selop}, v[68:71], v[96:99]')
            if first:
                A(f'{M16} v[100:103], {selop}, v[80:83], 0\n{M16} v[100:103], {selop}, v[84:87], v[100:103]')
            A(f'v_add_f32_dpp v78, v72, v72 quad_perm:[1,0,3,2] {DPP}\nv_add_f32_dpp v79, v73, v73 quad_perm:[1,0,3,2] {DPP}')
        return f
    def ln_finish(cs, scale, first, csrc=100):
        for m in ('quad_perm:[2,3,0,1]', 'row_half_mirror'):
            A(f'v_add_f32_dpp v78, v78, v78 {m} {DPP}\nv_add_f32_dpp v79, v79, v79 {m} {DPP}')
            if m.startswith('quad'): A(f'v_mov_b32 v75, {f32(1e-5/(scale*scale))}')
        c2 = scale * scale
        A(f'v_mul_f32 v74, v78, v78\nv_fmac_f32 v75, {f32(1/(512*c2))}, v79')
        if first:
            A(f's_mov_b32 {t2}, {f32(1/512)}\nv_pk_mul_f32 {cs}, v[{csrc}:{csrc+1}], s[56:57] op_sel_hi:[1,0]')
        A(f'v_fmac_f32 v75, {f32(-1/(512*512*c2))}, v74\nv_max_f32 v75, {f32(1e-5/c2)}, v75\nv_rsq_f32 v74, v75')
        A(f'v_pk_fma_f32 v[96:97], v[78:79], {cs}, v[96:97] op_sel_hi:[0,1,1] neg_lo:[1,0,0] neg_hi:[1,0,0]')
        A(f'v_pk_mul_f32 v[96:97], v[96:97], v[74:75] op_sel_hi:[1,0]')
    def q_finish(first):
        ln_finish(CSQ, QSCALE, first)
        A(f'v_cvt_pk_bf16_f32 v96, v96, v97\nds_write_b32 {vQW}, v96')

    A('; ---- first q projection, published with plain stores and this CU\'s XCC id')
    save = list(A.vm)
    with lowwaves():
        read_wq()
        A('s_waitcnt lgkmcnt(0)')
        if 'Q' not in abl: matvec('v109', 'q0')
    stamp()

    def issue_wo():
        A(f's_lshl_b32 {t1}, {sG}, 9\ns_lshl_b32 {t2}, {sHI}, 7\ns_add_u32 {t1}, {t1}, {t2}\ns_lshl_b32 {t2}, {sW}, 4\ns_add_u32 {t1}, {t1}, {t2}\ns_lshl_b32 {t1}, {t1}, 10\ns_lshl_b32 {t2}, {sLO}, 7\ns_add_u32 {t1}, {t1}, {t2}')
        A(f's_lshl_b32 {t2}, {sW}, 11\ns_add_u32 m0, {t2}, {L_WO}')
        A.vmop(f'buffer_load_dwordx4 v124, {WO}, {t1} offen nt lds', 'wo')
        A(f's_add_u32 {t1}, {t1}, 8192\ns_add_u32 m0, m0, 1024')
        A.vmop(f'buffer_load_dwordx4 v124, {WO}, {t1} offen nt lds', 'wo')

    def issue_ffn(dw=0, track=False, parts='gud'):
        vm_ = (lambda x: A.vmop(x, 'ffn')) if track else A
        A(f's_add_u32 {t0}, {sW}, {dw}')
        if 'g' in parts:
            A(f's_lshl_b32 {t1}, {sLO}, 6\ns_lshl_b32 {t2}, {t0}, 3\ns_add_u32 {t1}, {t1}, {t2}\ns_mul_i32 {t1}, {t1}, 3584\ns_lshl_b32 {t2}, {g2}, 7\ns_add_u32 {t1}, {t1}, {t2}')
        A(f's_lshl_b32 {t2}, {t0}, 10\ns_add_u32 m0, {t2}, {L_WG}')
        if 'g' in parts:
            vm_(f'buffer_load_dwordx4 v126, {WG}, {t1} offen nt lds')
            A(f's_add_u32 m0, {t2}, {L_WU}')
            vm_(f'buffer_load_dwordx4 v126, {WU}, {t1} offen nt lds')
        if 'd' not in parts: return
        A(f's_lshl_b32 {t1}, {g2}, 6\ns_lshl_b32 {t3}, {t0}, 3\ns_add_u32 {t1}, {t1}, {t3}\ns_lshl_b32 {t1}, {t1}, 10\ns_lshl_b32 {t3}, {sLO}, 7\ns_add_u32 {t1}, {t1}, {t3}\ns_add_u32 m0, {t2}, {L_WD}')
        vm_(f'buffer_load_dwordx4 v127, {WD}, {t1} offen nt lds')
    wait_of = {}
    d = 6
    for p_ in range(12, 32):
        tgt = depth if p_ < deep_from else deep
        need_d = p_ - tgt
        if p_ in (12, 16, 20): need_d = max(need_d, p_ - 5)
        if need_d > d: wait_of[p_] = list(range(d + 1, need_d + 1)); d = need_d
        else: wait_of[p_] = []
    last_read = d
    def step(p):
        for d_ in wait_of[p]:
            A.wait_vm(f'p{d_}')
            if d_ < 16:
                if d_ % 4 == 3: read_k(d_ // 4); A('s_waitcnt lgkmcnt(0)')
            else:
                A('s_waitcnt lgkmcnt(0)')
                read_v(d_)
            if diag and d_ in (7, 11, 15, 19, 23): xstamp(45 + (d_ - 7) // 4)
        if ffn_at and p == ffn_at and len(tail_parts) < 3: issue_ffn(0, True, ''.join(c_ for c_ in 'gud' if c_ not in tail_parts))
        if p == wo_at: issue_wo()
        piece(p)
    hi_l, join_all, flag_l = lab('shi'), lab('sj'), lab('fl')
    def lead_in():
        if not bar_after_k0:
            A.wait_vm('p3')
            if diag: xstamp(44)
            read_k(0); A('s_waitcnt lgkmcnt(0)')
            for pp in range(8, 12): piece(pp)
    lowcode = [True]
    def steps(lo_, hi_):
        for pp in range(lo_, hi_):
            if pp == touch_o and lowcode[0]:
                n_ = len(A.vm); o0dst[0] = 48; issue_o0(); o0dst[0] = 80
                A.vm[n_:] = ['touch'] * (len(A.vm) - n_)
            if pp == csq_at and lowcode[0]:
                n_ = len(A.vm); issue_csq(); A.vm[n_:] = ['csq'] * (len(A.vm) - n_)
            step(pp)
    A(f's_cmp_ge_u32 {sW}, 4\ns_cbranch_scc1 {hi_l}')
    lead_in()
    p = 12
    while p < 32:
        if p in rides:
            skip, join = lab('noq'), lab('jn')
            saved = list(A.vm)
            A(f's_cmp_lg_u32 {sGOK}, 0\ns_cbranch_scc1 {skip}')
            issue_q(True)
            steps(p, p + 5)
            if 'q' in A.vm: A.wait_vm('q')
            check_tags()
            nq = lab('nq')
            A(f's_cbranch_vccnz {nq}')
            q0_finish()
            A(f'{nq}:\ns_branch {join}\n{skip}:')
            after_q = list(A.vm)
            A.vm = saved
            steps(p, p + 5)
            extra = len(A.vm) - len(after_q)
            assert A.vm[extra:] == after_q, (A.vm, after_q)
            A.vm = after_q if extra <= 0 else A.vm
            A(f'{join}:')
            p += 5
        else:
            steps(p, p + 1); p += 1
    saved = list(A.vm)
    def put_status():
        A(f's_lshl_b32 {t1}, {sW}, 2\ns_add_u32 {t1}, {t1}, {L_ST}\nv_mov_b32 {vTMP}, {t1}\nv_mov_b32 {vTMP2}, {sGOK}\nds_write_b32 {vTMP}, {vTMP2}')
    def get_status():
        A(f'v_mov_b32 {vTMP}, {L_ST}\nds_read_b128 v[72:75], {vTMP}\ns_waitcnt lgkmcnt(0)')
        check_words((72, 73, 74, 75), '1')
        A('s_cmp_eq_u64 vcc, 0')
    put_status()
    A(f's_branch {join_all}\n{hi_l}:')
    A.vm = save; lowcode[0] = False
    lead_in()
    steps(12, 32)
    saved = list(A.vm)
    A(f'{join_all}:')
    stamp()
    A('s_waitcnt lgkmcnt(0)\ns_barrier')
    get_status()
    okq = lab('okq')
    A(f's_cbranch_scc1 {okq}')
    if not abl:
        with lowwaves():
            A(f'buffer_store_dwordx4 v[100:103], v109, {WS}, 0 offen sc1\nbuffer_store_dwordx4 v[104:107], v109, {WS}, 0 offen offset:256 sc1')
            dn = lab('qdone')
            A(f's_cmp_lg_u32 {sGOK}, 0\ns_cbranch_scc1 {dn}')
            tagged_poll(lambda: issue_q(True))
            q0_finish()
            A(f'{dn}:')
        A('s_barrier')
        with lowwaves(): put_status()
        A('s_waitcnt lgkmcnt(0)\ns_barrier')
        get_status()
    A(f'{okq}:\ns_cselect_b32 {sFAST}, 1, 0')
    A.vm = saved
    def issue_ffn_any(dw):
        if dw & 1: A('v_xor_b32 v126, 64, v126\nv_xor_b32 v127, 64, v127')
        issue_ffn(dw, False, ''.join(c_ for c_ in 'gud' if c_ not in tail_parts + mid_parts))
        if dw & 1: A('v_xor_b32 v126, 64, v126\nv_xor_b32 v127, 64, v127')
    def first_only(f):
        def g():
            l, bk = lab('fo'), lab('bk')
            A(f's_cmp_eq_u32 {sLIDX}, 0\ns_cbranch_scc1 {l}\n{bk}:')
            keepL, A.L = A.L, []
            A(f'{l}:'); f(); A(f's_branch {bk}')
            tails.append('\n'.join(A.L)); A.L = keepL
        return g
    def variant(first, later):
        l, bk = lab('v0'), lab('vj')
        A(f's_cmp_eq_u32 {sLIDX}, 0\ns_cbranch_scc1 {l}')
        n0 = nts[0]
        later()
        A(f'{bk}:')
        n1, nts[0] = nts[0], n0
        keepL, A.L = A.L, []
        A(f'{l}:'); first(); A(f's_branch {bk}')
        tails.append('\n'.join(A.L)); A.L = keepL
        assert nts[0] == n1
    def later_only(f):
        l = lab('lo'); A(f's_cmp_eq_u32 {sLIDX}, 0\ns_cbranch_scc1 {l}'); f(); A(f'{l}:')
    def scores(bar=True):
        if bar: A('s_waitcnt lgkmcnt(0)\ns_barrier')
        for j in range(4): A(f'ds_read_b128 v[{64+4*j}:{67+4*j}], {vBR320} offset:{64*j}')
        def sel_t(t, rs):
            for r in rs: A(f'v_mov_b32_dpp v{80+r}, v{80+4*t+r} quad_perm:[0,1,2,3] row_mask:0xf bank_mask:{1<<t:#x}')
        if tmajor:
            for t in range(4):
                for j in range(4):
                    if t == 0: A(f's_waitcnt lgkmcnt({3-j})')
                    c = '0' if j == 0 else f'v[{80+4*t}:{83+4*t}]'
                    A(f'{M16} v[{80+4*t}:{83+4*t}], a[{16*t+4*j}:{16*t+4*j+3}], v[{64+4*j}:{67+4*j}], {c}')
            sel_t(1, range(4)); sel_t(2, range(4)); sel_t(3, range(4))
        else:
            for j in range(4):
                A(f's_waitcnt lgkmcnt({3-j})')
                for t in range(4):
                    c = '0' if j == 0 else f'v[{80+4*t}:{83+4*t}]'
                    A(f'{M16} v[{80+4*t}:{83+4*t}], a[{16*t+4*j}:{16*t+4*j+3}], v[{64+4*j}:{67+4*j}], {c}')
            for t in range(1, 4): sel_t(t, range(4))
        A('v_max3_f32 v84, v80, v81, v82\nv_max_f32 v84, v84, v83')
        A(f'v_max_f32_dpp v84, v84, v84 row_ror:4 {DPP}')
        A(f'v_max_f32_dpp v84, v84, v84 row_ror:8 {DPP}')
        A('v_mov_b32 v85, v84\nv_permlane16_swap_b32 v84, v85\nv_max_f32 v84, v84, v85')
        A('v_mov_b32 v85, v84\nv_permlane32_swap_b32 v84, v85\nv_max_f32 v84, v84, v85')
        A('v_pk_add_f32 v[80:81], v[80:81], v[84:85] op_sel_hi:[1,0] neg_lo:[0,1] neg_hi:[0,1]')
        A('v_pk_add_f32 v[82:83], v[82:83], v[84:85] op_sel_hi:[1,0] neg_lo:[0,1] neg_hi:[0,1]')
        for r in range(4): A(f'v_exp_f32 v{80+r}, v{80+r}')
        A('v_cvt_pk_bf16_f32 v86, v80, v81\nv_cvt_pk_bf16_f32 v87, v82, v83')
        A(f'v_mfma_f32_16x16x16_bf16 v[88:91], {ONES}, v[86:87], 0')
    def pv(i):
        for hf in range(2):
            acc = 96 + 8 * (i & 1) + 4 * hf
            c = '0' if i < 2 else f'v[{acc}:{acc+3}]'
            A(f'v_mfma_f32_4x4x4_16b_bf16 v[{acc}:{acc+3}], v[86:87], a[{64+4*i+2*hf}:{65+4*i+2*hf}], {c} cbsz:4 abid:{4*(i&3)+(i>>2)}')
    def lsum():
        A(f'v_add_f32_dpp v85, v88, v88 row_ror:4 {DPP}')
        A(f'v_add_f32_dpp v85, v85, v85 row_ror:8 {DPP}')
        A(f's_mov_b64 exec, 15\nds_write_b64 {vRMW}, v[84:85]')
        full_exec()
    def combine(tagged=False, other=None):
        for h in range(4):
            A(f'v_add_f32 v{64+2*h}, v{96+h}, v{104+h}\nv_add_f32 v{65+2*h}, v{100+h}, v{108+h}')
            if h & 1: A(f'ds_write_b128 {vROW}, v[{62+2*h}:{65+2*h}] offset:{512*(h-1)}')
        A('s_waitcnt lgkmcnt(0)\ns_barrier')
        with lowwaves(other):
            A(f'ds_read_b64 v[72:73], {vRMR}')
            for k in range(8): A(f'ds_read_b64 v[{80+2*k}:{81+2*k}], {vROR} offset:{8192*k}')
            A('s_waitcnt lgkmcnt(8)')
            A(f'v_max_f32_dpp v74, v72, v72 quad_perm:[1,0,3,2] {DPP}')
            A(f'v_max_f32_dpp v74, v74, v74 quad_perm:[2,3,0,1] {DPP}')
            A(f'v_max_f32_dpp v74, v74, v74 row_half_mirror {DPP}')
            A('v_sub_f32 v72, v72, v74\nv_exp_f32 v72, v72')
            for k in range(8): A(f'v_readlane_b32 s{80+k}, v72, {k}')
            A('v_mul_f32 v75, v73, v72\ns_waitcnt lgkmcnt(0)')
            for k in range(8):
                sp = f's[{80+(k&~1)}:{81+(k&~1)}]'
                o = 'op_sel_hi:[1,0' if (k & 1) == 0 else 'op_sel:[0,1'
                d = 64 + 2 * (k & 1)
                if k < 2: A(f'v_pk_mul_f32 v[{d}:{d+1}], v[{80+2*k}:{81+2*k}], {sp} {o}]')
                else: A(f'v_pk_fma_f32 v[{d}:{d+1}], v[{80+2*k}:{81+2*k}], {sp}, v[{d}:{d+1}] {o},{1 if (k&1)==0 else 0}]')
            A('v_pk_add_f32 v[64:65], v[64:65], v[66:67]\nv_cvt_pk_bf16_f32 v64, v64, v65')
            def lsum8():
                for m in ('quad_perm:[1,0,3,2]', 'quad_perm:[2,3,0,1]', 'row_half_mirror'):
                    A(f'v_add_f32_dpp v75, v75, v75 {m} {DPP}')
            def pub_tagged():
                A(f'v_mov_b32 v66, {sTAG}\nv_mov_b32 v67, {sTAG}\nv_mov_b32_dpp v65, v64 quad_perm:[1,1,3,3] {DPP}')
                lstore(f'buffer_store_dwordx4 v[64:67], v118, {WS}, 0 offen')
                A(f'v_mov_b32 v76, {sTAG}\nv_mov_b32 v77, {sTAG}')
                A(f's_lshl_b32 {t1}, {sG}, 2\ns_add_u32 {t1}, {t1}, {sW}\ns_lshl_b32 {t1}, {t1}, 2\ns_add_u32 {t1}, {t1}, {sHI}\ns_lshl_b32 {t1}, {t1}, 3\ns_add_u32 {t1}, {t1}, {sLO}\ns_lshl_b32 {t1}, {t1}, 4\ns_add_u32 {t1}, {t1}, {TML}')
                lsum8()
                lstore(f'buffer_store_dwordx4 v[74:77], {vMLst}, {WS}, {t1} offen')
            def pub_plain():
                lstore(f'buffer_store_dword v64, {vL4}, {WS}, {sOPst} offen')
                lsum8()
                lstore(f'buffer_store_dwordx2 v[74:75], {vMLst}, {WS}, {sMLst} offen')
            if tagged is None: variant(pub_tagged, pub_plain)
            elif tagged: pub_tagged()
            else: pub_plain()

    A('v_mov_b32 v118, v110')
    A(f's_mul_i32 {t1}, {sC}, 1312\ns_add_u32 {t1}, {t1}, {sGBASE}\ns_add_u32 {t1}, {t1}, {bGP - 7168}\ns_sub_u32 {t2}, {sXst}, 7168')
    A(f'v_add_u32 v119, {t1}, v115\nv_add_u32 v120, {t2}, v115\nv_add_u32 {vTMP}, {oXB - oXA - 512}, v120\nv_cmp_lt_u32 vcc, 31, {vL}'); sel('v120', 'v120', vTMP)
    A(f'v_add_u32 v121, 1024, v119\nv_mov_b32 {vTMP}, {OOB}\nv_cmp_lt_u32 vcc, 17, {vL}'); sel('v121', 'v121', vTMP)
    A(f'v_cmp_gt_u32 vcc, 7168, v115'); sel('v119', 'v119', vTMP); sel('v120', 'v120', vTMP); sel('v121', 'v121', vTMP)
    def clean_urgent():
        A('v_mov_b32 v92, -1\nv_mov_b32 v93, -1\nv_mov_b32 v94, -1\nv_mov_b32 v95, -1')
        A.vmop(f'buffer_store_dwordx4 v[92:95], v119, {WS}, 0 offen sc1', 'cu')
        A.vmop(f'buffer_store_dwordx4 v[92:95], v120, {WS}, 0 offen sc1', 'cu')
        A.vmop(f'buffer_store_dwordx4 v[92:95], v121, {WS}, 0 offen sc1', 'cu')
    if share: A('s_branch L_scores\nL_scored:')
    else: scores(False)
    for i in range(last_read - 15): pv(i)
    lsum()
    stamp()
    for p in range(last_read + 1, 32):
        A.wait_vm(f'p{p}')
        read_v(p)
        if p == cl_at: clean_urgent()
        if p == wt_at:
            assert cl_at <= wt_at
            issue_wo()
            if tail_parts: issue_ffn(0, True, tail_parts)
        A('s_waitcnt lgkmcnt(0)')
        pv(p - 16)
        if p == max(csq_at, last_read + 1) and not abl:
            keep_vm = list(A.vm)
            with lowwaves(): finish_csq()
            A.vm = keep_vm
    stamp()
    if abl: A('s_branch L_fin')
    def flag_addr():
        A(f's_lshl_b32 {t1}, {sLO}, 10\ns_lshl_b32 {t2}, {sG}, 7\nv_and_b32 v68, 7, {vL}\nv_and_b32 v69, 24, {vL}\nv_lshlrev_b32 v68, 7, v68\nv_lshl_add_u32 v68, v69, 10, v68\nv_add_u32 v68, {t1}, v68')
        A(f'v_and_b32 v69, 31, {vL}\nv_lshlrev_b32 v69, 10, v69\nv_add_u32 v69, {t2}, v69\nv_cmp_lt_u32 vcc, 31, {vL}'); sel('v68', 'v68', 'v69')
        A(f's_mov_b32 {t1}, {TF}')
    def clean_rest():
        l_ = lab('cr')
        A(f's_cmp_lg_u32 {sW}, 7\ns_cbranch_scc1 {l_}')
        A(f'v_mov_b32 v64, -1\nv_mov_b32 v65, -1\nv_mov_b32 v66, -1\nv_mov_b32 v67, -1\nv_lshlrev_b32 v68, 2, {vL4}')
        A(f's_add_u32 {t1}, {sXst}, {LS}\nv_add_u32 v69, {oXB - oXA - 512}, v68\nv_cmp_lt_u32 vcc, 31, {vL}'); sel('v69', 'v68', 'v69')
        A(f'buffer_store_dwordx4 v[64:67], v69, {WS}, {t1} offen sc1')
        A(f's_mul_i32 {t2}, {sC}, 3168\ns_add_u32 {t2}, {t2}, {sGBASE}\ns_add_u32 {t2}, {t2}, {LS}')
        for k_ in range(3): A(f'buffer_store_dwordx4 v[64:67], v68, {WS}, {t2} offen offset:{1024*k_} sc1')
        A(f's_mov_b64 exec, 63\nbuffer_store_dwordx4 v[64:67], v68, {WS}, {t2} offen offset:3072 sc1\ns_mov_b64 exec, -1\n{l_}:')
    def clean_first():
        l_ = lab('c7')
        A(f's_cmp_lg_u32 {sW}, 7\ns_cbranch_scc1 {l_}')
        A(f's_lshl_b32 {t1}, s2, 7\ns_add_u32 {t1}, {t1}, {TF}\nv_mov_b32 v69, {sTAG}')
        if fullflag:
            A(f's_mov_b32 exec_hi, 0\ns_waitcnt vmcnt({2 + len(tail_parts)})\nbuffer_store_dword v69, {vL4}, {WS}, {t1} offen sc1')
        else:
            A(f's_mov_b64 exec, 1\ns_waitcnt vmcnt({2 + len(tail_parts)})\nbuffer_store_dword v69, off, {WS}, {t1} sc1')
        full_exec()
        n4 = lab('n4')
        if not use_early:
            A(f'{l_}:')
            if mid_parts:
                A(f's_sleep {mid_sleep}')
                issue_ffn(-4, False, mid_parts); issue_ffn(0, False, mid_parts)
            A(f's_waitcnt vmcnt({2 * len(mid_parts)})')
            return
        A(f'{l_}:\ns_cmp_lg_u32 {sW}, 4\ns_cbranch_scc1 {n4}')
        flag_addr()
        A(f's_sleep {fearly}\nbuffer_load_dword v69, v68, {WS}, {t1} offen sc1\ns_waitcnt vmcnt(0)\nv_cmp_ne_u32 vcc, {sTAG}, v69\ns_cbranch_vccnz {n4}')
        A(f's_mov_b32 {sCNT}, 1\nv_mov_b32 v68, {L_FL}\nv_mov_b32 v69, 1\nds_write_b32 v68, v69\n{n4}:')
    if share:
        inloop[0] = True
        A('L_merge:')
        combine(None, first_only(clean_first))
    else: combine(True, clean_first)
    stamp(True)

    if prio:
        l_ = lab('pr'); A(f's_cmp_ge_u32 {sW}, 4\ns_cbranch_scc1 {l_}\ns_setprio 1\n{l_}:')
    A('L_layer:'); inloop[0] = True
    def proj_body(nk, vb, boff, xoff, late_w=None, tagged=False):
        for j in range(nk): A(f'ds_read_b128 v[{64+4*j}:{67+4*j}], {vb} offset:{boff+64*j}')
        if late_w: late_w()
        for j in range(nk):
            if not late_w: A(f's_waitcnt lgkmcnt({nk-1-j})')
            elif j == 0: A('s_waitcnt lgkmcnt(0)')
            c = '0' if j == 0 else 'v[96:99]'
            A(f'{M16} v[96:99], v[{48+4*j}:{51+4*j}], v[{64+4*j}:{67+4*j}], {c}')
        if tagged:
            A(f'v_mov_b32 v102, {sTAG}\nv_mov_b32 v103, {sTAG}\nv_cvt_pk_bf16_f32 v100, v96, v97\nv_cvt_pk_bf16_f32 v101, v98, v99')
            A(f'buffer_store_dwordx4 v[100:103], v47, {WS}, 0 offen sc1')
            if diag2: xstamp(52)
        else:
            A(f's_add_u32 {t1}, {sXst}, {xoff}')
            A('v_cvt_pk_bf16_f32 v96, v96, v97\nv_cvt_pk_bf16_f32 v97, v98, v99')
            A(f'buffer_store_dwordx2 v[96:97], {vXst}, {WS}, {t1} offen sc1')
    def proj_out(nk, vb, boff, xoff, first=None):
        sk, dl = lab('sk'), lab('dl')
        A(f's_cmp_ge_u32 {sW}, 4\ns_cbranch_scc1 {sk}')
        if first: variant(first, lambda: proj_body(nk, vb, boff, xoff))
        else: proj_body(nk, vb, boff, xoff)
        return sk, dl
    def g_wait(sk, dl, pre, busy_first=False, hi_pre=None, lo_d=None, hi_d=None, extra0=0):
        pre()
        A(f's_sleep {lo_d or gdelay}')
        A(f's_branch {dl}\n{sk}:')
        if hi_pre: hi_pre()
        A(f's_sleep {hi_d or gdelay_hi}')
        A(f'{dl}:')
        if extra0: first_only(lambda: A(f's_sleep {extra0}'))()
    def reduce_x(xoff, final, first=None):
        def normal():
            A(f's_add_u32 {t0}, {sXg}, {xoff}')
            sp = lambda b: A(f'{M16} v[96:99], {SELA}, v[{b}:{b+3}], 0\n{M16} v[96:99], {SELA}, v[{b+4}:{b+7}], v[96:99]')
            if not dual & 16:
                poll(lambda: issue_g1(64, vXg, t0, 'x', 8192), range(64, 72), lambda: sp(64))
                return
            d, tl, lp = lab('got'), lab('again'), lab('lp')
            issue_g1(64, vXg, t0, 'x', 8192); A.wait_vm()
            sp(64); check_empty(range(64, 72))
            A(f's_cbranch_vccnz {tl}\n{d}:')
            keepL, A.L = A.L, []
            A(f'{tl}:'); issue_g1(64, vXg, t0, 'x', 8192)
            A(f's_sleep {dstep}\n{lp}:'); issue_g1(72, vXg, t0, 'x', 8192)
            A('s_waitcnt vmcnt(2)'); sp(64); check_empty(range(64, 72))
            A(f's_nop 1\ns_cbranch_vccz {d}'); issue_g1(64, vXg, t0, 'x', 8192)
            A('s_waitcnt vmcnt(2)'); sp(72); check_empty(range(72, 80))
            A(f's_nop 1\ns_cbranch_vccz {d}\ns_sub_u32 {sTO}, {sTO}, 1\ns_cbranch_scc0 {lp}\ns_mov_b32 {sTO}, 0\ns_branch {d}')
            tails.append('\n'.join(A.L)); A.L = keepL
            A.vm = []
        if first: variant(first, normal)
        else: normal()
        stamp()
        A(f'v_add_f32_dpp v96, v96, v96 row_ror:4 {DPP}\nv_add_f32_dpp v97, v97, v97 row_ror:4 {DPP}')
        if final: A(f's_cmp_eq_u32 {sLIDX}, 1')
        A(f'v_add_f32_dpp v96, v96, v96 row_ror:8 {DPP}\nv_add_f32_dpp v97, v97, v97 row_ror:8 {DPP}')
        A(f'v_pk_add_f32 {XRES}, {XRES}, v[96:97]\ns_mov_b64 exec, {sM4}\nv_cvt_pk_bf16_f32 v96, v112, v113')
        if final: A(f's_cbranch_scc1 L_out')
        A(f'ds_write_b32 {vXW}, v96')
        full_exec()
        A('s_waitcnt lgkmcnt(0)\ns_barrier')
    def issue_o():
        issue_g1(64, vG1, sOg, 'o')
        A.vmop(f'buffer_load_dwordx2 v[72:73], {vML2}, {WS}, {sMLg} offen sc1', 'o')
        A.vmop(f'buffer_load_dwordx2 v[74:75], {vML2}, {WS}, {sMLg} offen offset:32 sc1', 'o')
    def wo_weights(ma, la, mb, lb, selreg, mm, _=None):
        A(f'v_max_f32 v76, v{ma}, v{mb}\nv_mov_b32 v77, v76\nv_permlane16_swap_b32 v76, v77\nv_max_f32 v76, v76, v77')
        A('v_mov_b32 v77, v76\nv_permlane32_swap_b32 v76, v77\nv_max_f32 v76, v76, v77')
        A(f'v_sub_f32 v{ma}, v{ma}, v76\nv_sub_f32 v{mb}, v{mb}, v76\nv_exp_f32 v{ma}, v{ma}\nv_exp_f32 v{mb}, v{mb}')
        A(f'v_cvt_pk_bf16_f32 v{ma}, v{ma}, v{ma}\nv_cvt_pk_bf16_f32 v{mb}, v{mb}, v{mb}')
        for i in range(4): A(f'v_and_b32 v{selreg+i}, v{MASK+i}, v{ma}')
        for i in range(4): A(f'v_and_b32 v{selreg+4+i}, v{MASK+i}, v{mb}')
        mm()
        A(f'v_and_b32 v{ma}, 0xffff0000, v{ma}\nv_and_b32 v{mb}, 0xffff0000, v{mb}\nv_mul_f32 v79, v{la}, v{ma}\nv_fmac_f32 v79, v{lb}, v{mb}')
        A('v_mov_b32 v77, v79\nv_permlane16_swap_b32 v79, v77\nv_add_f32 v79, v79, v77')
        A('v_mov_b32 v77, v79\nv_permlane32_swap_b32 v79, v77\nv_add_f32 v79, v79, v77\nv_rcp_f32 v78, v79')
    def wo_later():
        read_wo()
        if ldelay: A(f's_sleep {ldelay}')
        if dual & 4:
            def iss(k):
                b = (64, 100)[k]
                issue_g1(b, vG1, sOg, 'o')
                A.vmop(f'buffer_load_dwordx2 v[{b+8}:{b+9}], {vML2}, {WS}, {sMLg} offen sc1', 'o')
                A.vmop(f'buffer_load_dwordx2 v[{b+10}:{b+11}], {vML2}, {WS}, {sMLg} offen offset:32 sc1', 'o')
            d, sb, sa, j2 = lab('got'), lab('setb'), lab('seta'), lab('j2')
            iss(0)
            if dstep: A(f's_sleep {dstep}')
            iss(1)
            A(f'{sa}:\ns_waitcnt vmcnt(4)')
            check_empty(range(64, 76))
            A(f's_cbranch_vccnz {sb}\n{d}:')
            stamp()
            wo_weights(72, 73, 74, 75, 80, lambda: A(f'{M16} v[96:99], v[80:83], v[64:67], 0\n{M16} v[96:99], v[84:87], v[68:71], v[96:99]'), 76)
            A(f'{j2}:')
            keepL, A.L = A.L, []
            A(f'{sb}:'); iss(0)
            A('s_waitcnt vmcnt(4)')
            check_empty(range(100, 112))
            g2_ = lab('g2')
            A(f's_cbranch_vccz {g2_}')
            iss(1)
            A(f's_sub_u32 {sTO}, {sTO}, 1\ns_cbranch_scc0 {sa}\ns_mov_b32 {sTO}, 0\ns_branch {d}\n{g2_}:')
            nts[0] -= 1 if ts else 0; stamp()
            wo_weights(108, 109, 110, 111, 80, lambda: A(f'{M16} v[96:99], v[80:83], v[100:103], 0\n{M16} v[96:99], v[84:87], v[104:107], v[96:99]'), 76)
            A(f's_branch {j2}')
            tails.append('\n'.join(A.L)); A.L = keepL
            A.vm = []
            return
        poll(issue_o, range(64, 76))
        stamp()
        wo_weights(72, 73, 74, 75, 80, lambda: A(f'{M16} v[96:99], v[80:83], v[64:67], 0\n{M16} v[96:99], v[84:87], v[68:71], v[96:99]'))
    def wo_first():
        if not dual & 8:
            tagged_poll(issue_o0, (82, 86, 90, 94, 66, 70))
            stamp()
            wo_weights(64, 65, 68, 69, 100, lambda: tagged_sum(100, 80, 96, 4))
            return
        sets = ((80, 64), (48, 100))
        def iss(k):
            o0dst[0], o0ml[0] = sets[k]; issue_o0()
        def chk(k):
            a_, m_ = sets[k]; check_tags((a_ + 2, a_ + 6, a_ + 10, a_ + 14, m_ + 2, m_ + 6))
        def fin(k):
            a_, m_ = sets[k]; wo_weights(m_, m_ + 1, m_ + 4, m_ + 5, 116, lambda: tagged_sum(116, a_, 96, 4))
        lp, ga, gb, en = lab('lp'), lab('ga'), lab('gb'), lab('en')
        iss(0); A(f's_sleep {dstep}\n{lp}:'); iss(1)
        A('s_waitcnt vmcnt(6)'); chk(0); A(f's_cbranch_vccz {ga}')
        iss(0); A('s_waitcnt vmcnt(6)'); chk(1); A(f's_cbranch_vccz {gb}')
        A(f's_sub_u32 {sTO}, {sTO}, 1\ns_cbranch_scc0 {lp}\ns_mov_b32 {sTO}, 0\n{gb}:')
        stamp(); fin(1); A(f's_branch {en}\n{ga}:')
        nts[0] -= 1 if ts else 0; stamp(); fin(0); A(f'{en}:')
        A.vm = []
    with lowwaves():
        variant(wo_first, wo_later)
        A('v_pk_mul_f32 v[96:97], v[96:97], v[78:79] op_sel_hi:[1,0]\nv_cvt_pk_bf16_f32 v96, v96, v97')
        A(f'ds_write_b32 {vQW}, v96 offset:{L_OS-L_QS}\ns_waitcnt vmcnt(0)')
    A(f's_waitcnt lgkmcnt(0)\ns_barrier')
    sk, dl = proj_out(4, vBR320, L_OS - L_QS, 0, lambda: proj_body(4, vBR320, L_OS - L_QS, 0, read_wo))
    leave_ = [None]
    def touch_lines(bases, r=80):
        for sb, off in bases:
            A(f's_add_u32 {t0}, {sb}, {off}\ns_add_u32 {t1}, {t0}, 4096')
            A(f'buffer_load_dwordx4 v[{r}:{r+3}], {vG1}, {WS}, {t0} offen sc1\nbuffer_load_dwordx4 v[{r+4}:{r+7}], {vG1}, {WS}, {t1} offen sc1')
    def touch_small(bases, r=88):
        for sb, off in bases:
            A(f's_add_u32 {t0}, {sb}, {off}\nbuffer_load_dwordx2 v[{r}:{r+1}], {vSt8}, {WS}, {t0} offen sc1')
    def watch_flags():
        l_, r_, d_ = lab('w4'), lab('fr'), lab('fd')
        A(f's_cmp_lg_u32 {sW}, 4\ns_cbranch_scc1 {l_}\ns_cmp_eq_u32 {sCNT}, 1\ns_cbranch_scc1 {l_}')
        flag_addr()
        if fdelay: A(f's_sleep {fdelay}')
        e_ = lab('fe')
        A(f'buffer_load_dword v69, v68, {WS}, {t1} offen sc1\ns_waitcnt vmcnt(0)\nv_cmp_ne_u32 vcc, {sTAG}, v69\ns_cbranch_vccz {d_}')
        A(f'{r_}:\ns_sleep {fback}\nbuffer_load_dword v69, v68, {WS}, {t1} offen sc1\ns_waitcnt vmcnt(0)\nv_cmp_ne_u32 vcc, {sTAG}, v69\ns_cbranch_vccz {e_}')
        A(f's_sub_u32 {sTO}, {sTO}, 1\ns_cbranch_scc0 {r_}\ns_mov_b32 {sTO}, 0\n{e_}:')
        if flate: A(f's_sleep {flate}')
        A(f'{d_}:')
        A(f'v_mov_b32 v68, {L_FL}\nv_mov_b32 v69, 1\nds_write_b32 v68, v69')
        A(f's_branch {after_sleep[0]}\n{l_}:')
    def await_flags():
        r_, d_ = lab('ar'), lab('ad')
        A(f'v_mov_b32 v68, {L_FL}\n{r_}:\nds_read_b32 v69, v68\ns_waitcnt lgkmcnt(0)\nv_cmp_eq_u32 vcc, 1, v69\ns_cbranch_vccnz {d_}')
        A(f's_sleep 1\ns_sub_u32 {sTO}, {sTO}, 1\ns_cbranch_scc0 {r_}\ns_mov_b32 {sTO}, 0\n{d_}:')
        if touch_g:
            with lowwaves(): touch_lines([(sGg, 0)])
    after_sleep = [None]
    def hi_xa():
        def w567():
            l_ = lab('f5'); A(f's_cmp_eq_u32 {sW}, 4\ns_cbranch_scc1 {l_}\ns_sleep {fdelay + 2}')
            for dw in (-5, -2, 1):
                k_ = lab('fs')
                if dw == 1: A(f's_cmp_eq_u32 {sW}, 7\ns_cbranch_scc1 {k_}')
                issue_ffn_any(dw)
                A(f'{k_}:')
            A(f'{l_}:')
        if ffn_by_hi and flag_first: first_only(lambda: (w567(), clean_rest(), watch_flags()))()
        elif ffn_by_hi: first_only(lambda: (issue_ffn(-4), issue_ffn(0), clean_rest(), watch_flags()))()
        else: first_only(lambda: (clean_rest(), watch_flags()))()
        if touch1 & 1: first_only(lambda: (touch_lines([(sQg, 0), (sOg, LS)]), touch_small([(sQSg, 0), (sMLg, LS)])))()
        if touch1 & 2: later_only(lambda: (touch_lines([(sGg, 0)]), touch_small([(sGSg, 0)])))
    def hi_xb():
        leave_[0]()
        if touch_att:
            first_only(lambda: (touch_lines([(sQg, 0)]), touch_small([(sQSg, 0)])))()
            return
        if touch1 & 4: first_only(lambda: (touch_lines([(sGg, LS)]), touch_small([(sGSg, LS)])))()
        if touch1 & 8: first_only(lambda: (touch_lines([(sQg, 0), (sOg, LS)]), touch_small([(sQSg, 0), (sMLg, LS)])))()
    after_sleep[0] = dl
    late_gu = 'g' not in tail_parts
    g_wait(sk, dl, (lambda: later_only(read_gu)) if late_gu else read_gu, False, hi_xa, extra0=xa0)
    first_only(await_flags)()
    stamp()
    reduce_x(0, False)
    def issue_gp(first):
        issue_g1(64, vG1, sGg, 'g')
        A.vmop(f'buffer_load_dwordx2 v[72:73], {vSt8}, {WS}, {sGSg} offen sc1', 'g')
        if first:
            A(f'v_and_b32 {vTMP}, 0xf0, {vG1}\nv_and_b32 {vTMP2}, 0xc00, {vG1}\nv_lshrrev_b32 {vTMP2}, 2, {vTMP2}\nv_or_b32 {vTMP}, {vTMP}, {vTMP2}')
            issue_g1(80, vTMP, sGCg, 'g', 1024)
    def ffn_gather(first):
        def f():
            if ldelay and not first: A(f's_sleep {ldelay}')
            if dual & 32 and first:
                sets = ((64, 80), (102, 116))
                A(f'v_and_b32 v114, 0xf0, {vG1}\nv_and_b32 {vTMP2}, 0xc00, {vG1}\nv_lshrrev_b32 {vTMP2}, 2, {vTMP2}\nv_or_b32 v114, v114, {vTMP2}')
                def iss(k):
                    a_, c_ = sets[k]
                    issue_g1(a_, vG1, sGg, 'x')
                    A.vmop(f'buffer_load_dwordx2 v[{a_+8}:{a_+9}], {vSt8}, {WS}, {sGSg} offen sc1', 'x')
                    issue_g1(c_, 'v114', sGCg, 'x', 1024)
                def spec(k):
                    a_, c_ = sets[k]
                    A(f'{M16} v[96:99], {SELG}, v[{a_}:{a_+3}], 0\n{M16} v[96:99], {SELG}, v[{a_+4}:{a_+7}], v[96:99]')
                    A(f'{M16} v[88:91], {SELG}, v[{c_}:{c_+3}], 0\n{M16} v[88:91], {SELG}, v[{c_+4}:{c_+7}], v[88:91]')
                    A(f'v_add_f32_dpp v78, v{a_+8}, v{a_+8} quad_perm:[1,0,3,2] {DPP}\nv_add_f32_dpp v79, v{a_+9}, v{a_+9} quad_perm:[1,0,3,2] {DPP}')
                poll2(iss, 5, lambda k: list(range(sets[k][0], sets[k][0] + 10)) + list(range(sets[k][1], sets[k][1] + 8)), spec)
                ln_finish(CSG, 1.0, True, 88)
                return
            if dual & 2 and not first: ln_poll2(sGg, sGSg, SELG)
            else: poll(lambda: issue_gp(first), QREGS1 if first else QREGS, ln_spec(SELG, first))
            ln_finish(CSG, 1.0, first)
        return f
    with lowwaves(lambda: slice_stats(sGSst)):
        matvec(vGst, 'plain', first_only(read_gu) if late_gu else None, sLAY)
        stamp()
        read_wd()
        variant(ffn_gather(True), ffn_gather(False))
        stamp()
        A('v_cvt_pk_bf16_f32 v96, v96, v97\nv_and_b32 v97, 0xffff0000, v96\nv_lshlrev_b32 v96, 16, v96\nv_max_f32 v96, 0, v96\nv_mul_f32 v96, v96, v97\nv_cvt_pk_bf16_f32 v96, v96, v96')
        A(f'ds_write_b16 {vHW}, v96')
    A('s_waitcnt vmcnt(0) lgkmcnt(0)\ns_barrier')
    sk, dl = proj_out(2, vBR192, 0, oXB - oXA)
    def leave():
        no = lab('no')
        A(f's_cmp_eq_u32 {sLIDX}, 0\ns_cbranch_scc1 {no}\ns_cmp_lg_u32 {sHI}, 0\ns_cbranch_scc1 L_fin\ns_cmp_lg_u32 {sG}, {sLO}\ns_cbranch_scc1 L_fin\n{no}:')
    def pre_q():
        leave()
        read_wq()
    leave_[0] = leave
    g_wait(sk, dl, pre_q, False, hi_xb, gd_b, gdh_b, xb0)
    stamp()
    reduce_x(oXB - oXA, True)
    keep = nts[0]; nts[0] -= 11
    def advance():
        A(f's_mov_b32 {sLIDX}, 1\ns_mov_b32 {sLAY}, {LS}')
        for s in (sOg, sGg, sMLg, sGSg, sXg, sOPst, sMLst, sXst, sGSst):
            A(f's_add_u32 {s}, {s}, {LS}')
    with lowwaves(lambda: (slice_stats(sQSst), advance())):
        matvec(vQst, 'plain')
        advance()
        stamp()
        if ldelay: A(f's_sleep {ldelay}')
        if dual & 1: ln_poll2(sQg, sQSg, SELA)
        else: poll(lambda: issue_q(False), QREGS, ln_spec(SELA, False))
        stamp()
        q_finish(False)
    if share:
        A('; ---- scores, row maximum, exp2, row sum (shared by both layers), P V')
        A('s_waitcnt vmcnt(0) lgkmcnt(0)\ns_barrier')
        if touch_att:
            with lowwaves(lambda: (touch_lines([(sOg, 0), (sGg, 0)], 48), touch_small([(sMLg, 0), (sGSg, 0)], 56))): pass
        A('L_scores:')
        scores(False)
        A(f's_cmp_eq_u32 {sLIDX}, 0\ns_cbranch_scc1 L_scored')
    else: scores()
    for i in range(16):
        pv(i)
        if i == 5: lsum()
    stamp()
    if share: A('s_branch L_merge')
    else:
        combine()
        stamp()
        A('s_branch L_layer')
    nts[0] = keep
    A('L_out:')
    A(f'buffer_store_dword v96, {vXO}, {OUT}, 0 offen' + (' sc1' if out_sc1 else ''))
    A(f's_or_b32 {t1}, s2, {sW}\ns_cmp_lg_u32 {t1}, 0\ns_cbranch_scc1 L_fin0')
    A(f's_mov_b64 exec, 1\nv_mov_b32 v97, {sTAG}\ns_mov_b32 {t2}, {EPOCH}\nbuffer_store_dword v97, off, {WS}, {t2} sc1')
    A('L_fin0:')
    full_exec()
    A('L_fin:')
    if wb:
        A(f's_cmp_lg_u32 {sC}, 31\ns_cbranch_scc1 L_nowb\ns_cmp_lg_u32 {sW}, 7\ns_cbranch_scc1 L_nowb\nbuffer_wbl2 sc1' + ('\ns_waitcnt vmcnt(0)' if wb == 1 else '') + '\nL_nowb:')
    if padto:
        A(f'L_pad:\ns_memrealtime s[94:95]\ns_waitcnt lgkmcnt(0)\ns_sub_u32 s94, s94, s98\ns_cmp_lt_u32 s94, {padto}\ns_cbranch_scc1 L_pad')
    if ts:
        stamp(True)
        A(f's_memtime s[94:95]\ns_waitcnt lgkmcnt(0)\ns_sub_u32 s94, s94, s98\nv_writelane_b32 {vTS}, s94, 63')
        A(f's_add_u32 s96, s96, 0x10000000\ns_addc_u32 s97, s97, 0\ns_lshl_b32 {t1}, s2, 11\nv_add_u32 v64, {t1}, {vT4}\nglobal_store_dword v64, {vTS}, s[96:97]')
        if dbgts:
            A(f's_or_b32 {t1}, s2, {sW}\ns_cmp_lg_u32 {t1}, 0\ns_cbranch_scc1 L_end')
            A(f'v_readlane_b32 {t1}, {vTS}, 0\nv_subrev_u32 v64, {t1}, {vTS}\nv_and_b32 v64, 0xffff, v64')
            A(f'v_mov_b32_dpp v65, v64 quad_perm:[1,1,3,3] {DPP}\nv_lshl_or_b32 v64, v65, 16, v64\nv_lshlrev_b32 v65, 1, {vL}')
            A(f's_mov_b32 exec_lo, 0x55555555\ns_mov_b32 exec_hi, 0\nbuffer_store_dword v64, v65, {DBG}, 0 offen sc1')
    A('s_endpgm')
    for t_ in tails: A(t_)
    A('L_end:\ns_endpgm')
    A(f'.section .rodata,"a"\n.p2align 6\n.amdhsa_kernel {NAME}_kernel')
    A('.amdhsa_next_free_vgpr 256\n.amdhsa_next_free_sgpr 102\n.amdhsa_accum_offset 128\n.amdhsa_group_segment_fixed_size 0\n.amdhsa_kernarg_size 96\n.amdhsa_user_sgpr_count 2\n.amdhsa_user_sgpr_kernarg_segment_ptr 1\n.amdhsa_system_sgpr_workgroup_id_x 1\n.end_amdhsa_kernel')
    txt, probs = A.text()
    for p in probs: print('HAZARD', p, file=sys.stderr)
    return txt, nts[0]

if __name__ == '__main__':
    out = sys.argv[1]
    kw = {}
    for a in sys.argv[2:]:
        k, v = a.split('='); kw[k] = eval(v)
    txt, n = build(**kw)
    open(out, 'w').write(txt)
    print('stamps', n, 'lines', txt.count('\n'))
```

```python
import sys, math, struct
sys.path.insert(0, 'gen')
from asmlib import Asm

NAME = "interleave_layers__sliding_block_cached__glu_gated_reglu__decode"

bQP, bQS, bOP, bML, bGP, bGS, bGC, GB = 0x0, 0x8000, 0x8400, 0x10400, 0x10800, 0x18800, 0x18C00, 0x1AC00
oXA, oXB, LS = 8 * GB, 8 * GB + 0x20000, 8 * GB + 0x40000
TQP, TQC, TOP, TML, TF, EPOCH = 0x240000, 0x2C0000, 0x2E0000, 0x360000, 0x364000, 0x36C000
WS_REC = 0x36C100
OOB = 0x7FFF0000
L_RING, L_WQ, L_WO, L_WG, L_WU, L_WD = 0, 65536, 81920, 98304, 106496, 114688
L_QS, L_OS, L_HS, L_XS, L_RM, L_ST = 122880, 124160, 125440, 126208, 127168, 127424
L_FL = L_ST + 16
LDS_BYTES = 127488

def f32(x): return '0x%08x' % struct.unpack('<I', struct.pack('<f', x))[0]
QSCALE = 128 ** -0.5 * math.log2(math.e)

sW, sG, sC, sHI, sLO = 's3', 's4', 's5', 's6', 's7'
WS, KK, VV, WQ, WO, WG, WU, WD, XX, OUT, DBG = [f's[{i}:{i+3}]' for i in range(8, 52, 4)]
sKV, sRING, t0, t1, t2, t3 = 's52', 's53', 's54', 's55', 's56', 's57'
sLAY, sTO, sFAST, sCNT, sGOK, sLIDX = 's58', 's59', 's60', 's61', 's62', 's63'
sQg, sOg, sGg, sQSg, sMLg, sGSg, sXg, sGBASE, sGCg = ['s%d' % i for i in range(66, 75)]
sOPst, sMLst, sXst, sQSst, sGSst = ['s%d' % i for i in range(75, 80)]
g0, g1, g2, g3 = 's90', 's91', 's92', 's93'
vL, vT4, vSt8, vXg, vQst, vGst, vSSt, vG1, vXst, vQW, vBR320, vHW, vBR192, vXR, vXW, vL4 = ['v%d' % i for i in range(16)]
vROW, vROR, vRMW, vRMR, vWQr, vWr, vWOr, vXO = ['v%d' % i for i in range(16, 24)]
CSQ, CSG = 'v[24:25]', 'v[26:27]'
vTS, vML2, vTMP, vTMP2 = 'v28', 'v29', 'v30', 'v31'
SELA, MASK, SELG, ONES = 'v[32:35]', 36, 'v[40:43]', 'v[44:45]'
vMLst = 'v46'
XRES = 'v[112:113]'
sM4 = 's[88:89]'
sTAG = 's100'
DPP = 'row_mask:0xf bank_mask:0xf'
M16 = 'v_mfma_f32_16x16x32_bf16'

HEADER = r'''
;
;
;   - first q and first attention exchange: 16-byte granules {4 x bf16, tag, ..}; tag = (word found at ws+EPOCH) + 1,
;   Stores that are only read inside the group are plain when every member reported the same XCC id, write-through
'''

def build(ts=False, gdelay=12, gdelay_hi=18, pf_code=True, rides=(17, 22, 27), w_at='land31', ldelay=0, bar_after_k0=False, fride=26, ffn_hi=False, touch_o=0, touch_g=0, ffn_sleep=0, clean3_xa=0, tlb=0, diag2=0, ffn_at=0, fdelay=4, fback=4, wo_at=0, csq_o=0, touch1=12, wt_at=29, csq_at=26, xa0=0, xb0=3, cl_at=29, tail_parts='gud', fearly=10, use_early=0, fullflag=1, flag_first=0, jitter=0, mid_parts='', mid_sleep=8, touch_att=1, dual=15, dstep=3, pf_few=0, pf_late=0, flate=6, share=1, gd_b=11, gdh_b=15, ffn_by_hi=0, tmajor=1, prio=0, padto=0, warm_x=1, warm_at=0, wd_late=0, xback=0, deep_from=24, depth=5, deep=7, diag=0, noclean=0, burst=4, late47=0, abl='', backoff=0, cl_sc1=1, dbgts=0, wsoff=0):
    A = Asm()
    uid = [0]
    def lab(p):
        uid[0] += 1; return f'L_{p}_{uid[0]}'
    nts = [0]; inloop = [False]
    def stamp(key=False):
        if jitter:
            l_ = lab('jt')
            A(f's_memtime s[94:95]\ns_waitcnt lgkmcnt(0)\ns_mul_i32 s94, s94, 0x9e3779b1\ns_xor_b32 s94, s94, s2\ns_mul_i32 s94, s94, 0x85ebca6b\ns_lshr_b32 s94, s94, {32 - jitter}')
            A(f's_cmp_lg_u32 s94, 0\ns_cbranch_scc1 {l_}\ns_sleep 100\n{l_}:')
        if not ts: return
        if ts == 2 and not key:
            nts[0] += 1; return
        if inloop[0]:
            A(f's_memrealtime s[94:95]\ns_mul_i32 m0, {sLIDX}, 11\ns_add_u32 m0, m0, {nts[0]}\ns_waitcnt lgkmcnt(0)\nv_writelane_b32 {vTS}, s94, m0')
        else:
            A(f's_memrealtime s[94:95]\ns_waitcnt lgkmcnt(0)\nv_writelane_b32 {vTS}, s94, {nts[0]}')
        nts[0] += 1
    def xstamp(i):
        A(f's_memrealtime s[94:95]\ns_waitcnt lgkmcnt(0)\nv_writelane_b32 {vTS}, s94, {i}')
    def set_exec(lo, hi=None):
        hi = lo if hi is None else hi
        A(f's_mov_b32 exec_lo, {lo:#x}\ns_mov_b32 exec_hi, {hi:#x}')
    def full_exec(): A('s_mov_b64 exec, -1')
    tails = []
    def lstore(fmt, tag='st', nxt=None, cmp=True):
        a, b = lab('wt'), lab('sd')
        for f_ in fmt.split('\n'): A((';;need2 ' if cmp else ';;need1 ') + f_)
        if cmp: A(f's_cmp_eq_u32 {sFAST}, 1')
        A(f's_cbranch_scc0 {a}')
        A(fmt); A(f'{b}:')
        tails.append(f'{a}:\n' + '\n'.join(f_ + ' sc1' for f_ in fmt.split('\n')) + f'\ns_branch {b}')
        A.vm.append(tag)
    class lowwaves:
        def __init__(s, other=None): s.other = other
        def __enter__(s):
            s.l = lab('hi'); s.o = lab('up') if s.other else s.l
            A(f's_cmp_ge_u32 {sW}, 4\ns_cbranch_scc1 {s.o}')
        def __exit__(s, *a):
            A(f'{s.l}:')
            if s.other:
                keepL, A.L = A.L, []
                A(f'{s.o}:'); s.other(); A(f's_branch {s.l}')
                tails.append('\n'.join(A.L)); A.L = keepL
    def sel(dst, a, b):
        A(f'v_cndmask_b32 {dst}, {a}, {b}, vcc')

    A(f'; @launch grid=(256,1,1) block=(512,1,1) lds={LDS_BYTES}')
    for l_ in HEADER.strip('\n').split('\n'): A.L.append(l_)
    A('.amdgcn_target "amdgcn-amd-amdhsa--gfx950"')
    A(f'.text\n.globl {NAME}_kernel\n.p2align 8\n.type {NAME}_kernel,@function\n{NAME}_kernel:')
    A('s_cmp_ge_u32 s2, 256\ns_cbranch_scc1 L_end')
    A('s_load_dwordx16 s[64:79], s[0:1], 0\ns_load_dwordx8 s[80:87], s[0:1], 64')
    if padto: A('s_memrealtime s[98:99]')
    if diag: A('s_memrealtime s[96:97]')
    A(f'v_lshlrev_b32 {vT4}, 2, v0')
    def prefetch_code():
        if pf_few: A(f's_cmp_ge_u32 s2, {8 * pf_few}\ns_cbranch_scc1 L_nopf')
        A(f's_getpc_b64 s[94:95]\nL_pc:\ns_sub_u32 s94, s94, L_pc-{NAME}_kernel\ns_subb_u32 s95, s95, 0\ns_lshr_b32 s93, s2, 3\ns_and_b32 s93, s93, 1\ns_lshl_b32 s93, s93, 13\nv_lshlrev_b32 {vTMP}, 2, {vT4}\nv_add_u32 {vTMP}, s93, {vTMP}')
        A(f'v_min_u32 {vTMP}, L_end-{NAME}_kernel-16, {vTMP}')
        A(f'global_load_dwordx4 v[96:99], {vTMP}, s[94:95]')
        if pf_few: A('L_nopf:')
        else: A.vm.append('pf')
    if pf_code and not pf_late: prefetch_code()
    A(f'v_lshrrev_b32 {vTMP}, 6, v0')
    A(f'v_and_b32 {vL}, 63, v0')
    A(f'v_readfirstlane_b32 {sW}, {vTMP}')
    A(f's_and_b32 {sG}, s2, 7\ns_lshr_b32 {sC}, s2, 3\ns_lshr_b32 {sHI}, {sC}, 3\ns_and_b32 {sLO}, {sC}, 7')
    A(f'v_and_b32 v120, 15, {vL}\nv_lshrrev_b32 v121, 4, {vL}')
    A(f'v_lshlrev_b32 {vTMP}, 2, v121\nv_xor_b32 {vTMP}, v120, {vTMP}\nv_lshlrev_b32 {vTMP}, 4, {vTMP}\nv_lshl_add_u32 v116, v121, 8, {vTMP}\nv_lshl_add_u32 v124, v121, 13, {vTMP}')
    A(f'v_and_b32 v122, 3, {vL}\nv_lshrrev_b32 v123, 2, v120')
    A(f's_lshr_b32 {t0}, {sW}, 1\ns_lshl_b32 {t0}, {t0}, 10\ns_and_b32 {t1}, {sW}, 1\ns_lshl_b32 {t1}, {t1}, 6\ns_add_u32 {t0}, {t0}, {t1}\ns_lshl_b32 {t1}, {sLO}, 7\ns_add_u32 {t0}, {t0}, {t1}')
    A(f'v_lshlrev_b32 v117, 4, v122\nv_lshl_add_u32 v117, v121, 2, v117\nv_add_u32 {vXO}, {t0}, v117')
    A(f's_lshl_b32 {t0}, {sHI}, 3\ns_add_u32 {t0}, {t0}, {sG}\ns_lshl_b32 {sKV}, {t0}, 22\ns_lshl_b32 {t0}, {sLO}, 17\ns_add_u32 {sKV}, {sKV}, {t0}\ns_add_u32 {sKV}, {sKV}, {12288*256}')
    A(f's_add_u32 {t0}, {sG}, {sC}\ns_add_u32 {t0}, {t0}, {sW}\ns_and_b32 {t0}, {t0}, 7\ns_lshl_b32 {t0}, {t0}, 12\ns_add_u32 {sKV}, {sKV}, {t0}')
    A(f's_lshl_b32 {sRING}, {sW}, 13')
    A(f's_and_b32 {g3}, {sW}, 3')
    A(f's_lshl_b32 {t0}, {sG}, 2\ns_add_u32 {t0}, {t0}, {sHI}')
    A(f'v_mov_b32 v118, {OOB}')
    A(f's_mul_i32 s101, {sG}, {GB}')
    A(f's_lshl_b32 {t1}, {sLO}, 6\ns_lshl_b32 {t2}, {sW}, 3\ns_add_u32 {t1}, {t1}, {t2}\ns_lshl_b32 {t1}, {t1}, 13\ns_lshl_b32 {t2}, {sG}, 10\ns_add_u32 {t1}, {t1}, {t2}\ns_lshl_b32 {t2}, {sHI}, 8\ns_add_u32 {t1}, {t1}, {t2}')
    A(f's_lshl_b32 {t2}, {sW}, 11\ns_add_u32 m0, {t2}, {L_WQ}')
    if ts:
        A(f'v_mov_b32 {vTS}, 0')
        if diag: A(f's_mov_b32 s92, s96');
        stamp(True)
        if diag: A(f'v_writelane_b32 {vTS}, s96, 38')
        A(f's_memtime s[98:99]')
    A('s_waitcnt lgkmcnt(0)')
    if diag: xstamp(39)
    def srd(d, lo, n):
        A(f's_mov_b32 s{d}, s{lo}\ns_mov_b32 s{d+1}, s{lo+1}\ns_mov_b32 s{d+2}, {n}\ns_mov_b32 s{d+3}, 0x20000')
    srd(20, 70, 4194304)
    A.vmop(f'buffer_load_dwordx4 v124, {WQ}, {t1} offen nt lds', 'wq')
    A(f's_add_u32 {t1}, {t1}, 32768\ns_add_u32 m0, m0, 1024')
    srd(40, 64, 4096)
    A.vmop(f'buffer_load_dwordx4 v124, {WQ}, {t1} offen nt lds', 'wq')
    srd(8, 86, WS_REC)
    if wsoff: A(f's_add_u32 s8, s8, {wsoff}\ns_addc_u32 s9, s9, 0')
    A.vmop(f'buffer_load_dword v68, {vXO}, {XX}, 0 offen', 'x0')
    A(f's_lshr_b32 {t2}, {sW}, 1\ns_lshl_b32 {t2}, {t2}, 10\nv_lshlrev_b32 {vTMP}, 4, {vL}')
    A.vmop(f'buffer_load_dwordx4 v[72:75], {vTMP}, {XX}, {t2} offen', 'x0')
    A(f's_mov_b32 {t2}, {EPOCH}')
    A.vmop(f'buffer_load_dword v69, off, {WS}, {t2} sc1', 'ep')
    srd(12, 66, 0x8000000)
    def piece(p):
        t, q = (p % 16) // 4, p % 4
        if q == 0:
            A(f's_add_u32 {g1}, {sKV}, {t*32768}\ns_add_u32 m0, {sRING}, {((p//4)&1)*4096}')
        src = 'v116'
        A.vmop(f'buffer_load_dwordx4 {src}, {KK if p < 16 else VV}, {g1} offen offset:{q*1024} nt lds', f'p{p}')
    for p in range(burst): piece(p)
    if pf_code and pf_late:
        assert not pf_few
        A('s_mov_b32 s92, s93'); prefetch_code(); A('s_mov_b32 s93, s92')
    srd(16, 68, 0x8000000)
    if ts: A('s_mov_b32 s96, s86\ns_mov_b32 s97, s87')

    srd(24, 72, 4194304); srd(44, 82, 4096); srd(48, 84, 256)
    srd(28, 76, 1835008); srd(32, 78, 1835008); srd(36, 80, 1835008)
    A(f's_mul_i32 {t1}, {sG}, 3\ns_add_u32 {t1}, {t1}, 4\ns_lshl_b32 {t2}, {sG}, 2\ns_cmp_ge_u32 {sG}, 4\ns_cselect_b32 {g2}, {t1}, {t2}\ns_add_u32 {g2}, {g2}, {sHI}\ns_min_u32 {g2}, {g2}, 27')
    if tlb:
        A(f's_lshl_b32 {t1}, {t0}, 17')
        A.vmop(f'buffer_load_dword v96, off, {WO}, {t1} nt', 'tlb')
        A(f's_mul_i32 {t1}, {sLO}, {64*3584}')
        A.vmop(f'buffer_load_dword v96, off, {WG}, {t1} nt', 'tlb')
        A.vmop(f'buffer_load_dword v96, off, {WU}, {t1} nt', 'tlb')
        A(f's_lshl_b32 {t1}, {g2}, 16')
        A.vmop(f'buffer_load_dword v96, off, {WD}, {t1} nt', 'tlb')
        A(f'v_lshlrev_b32 {vTMP}, 19, v120')
        A.vmop(f'buffer_load_dword v96, {vTMP}, {WS}, 0 offen nt', 'tlb')
        A.vmop(f'buffer_load_dword v96, off, {VV}, {sKV} nt', 'tlb')
    A(f's_getreg_b32 {t1}, hwreg(HW_REG_XCC_ID)\ns_and_b32 s64, {t1}, 15')
    A(f's_mov_b32 s88, 0x000f000f\ns_mov_b32 s89, 0x000f000f')
    A(f's_mov_b32 {sGBASE}, s101')
    A(f's_lshl_b32 {t1}, {sHI}, 13\ns_add_u32 {t1}, {t1}, {sGBASE}')
    A(f's_add_u32 {sQg}, {t1}, {bQP + LS}\ns_add_u32 {sOg}, {t1}, {bOP}\ns_add_u32 {sGg}, {t1}, {bGP}')
    A(f's_lshl_b32 {t1}, {g3}, 2\ns_add_u32 {t1}, {t1}, {sHI}\ns_lshl_b32 {t1}, {t1}, 6\ns_add_u32 {t1}, {t1}, {sGBASE}\ns_add_u32 {sQSg}, {t1}, {bQS + LS}')
    A(f's_lshl_b32 {sMLst}, {sLO}, 3\ns_add_u32 {sMLst}, {sMLst}, {t1}\ns_add_u32 {sMLst}, {sMLst}, {bML}')
    A(f's_lshl_b32 {t2}, {g3}, 13\ns_lshl_b32 {t1}, {sLO}, 10\ns_add_u32 {t2}, {t2}, {t1}\ns_lshl_b32 {t1}, {sHI}, 8\ns_add_u32 {t2}, {t2}, {t1}\ns_add_u32 {t2}, {t2}, {sGBASE}\ns_add_u32 {sOPst}, {t2}, {bOP}')
    A(f's_lshl_b32 {t1}, {sHI}, 2\ns_add_u32 {t1}, {t1}, {g3}\ns_lshl_b32 {t1}, {t1}, 6\ns_add_u32 {t1}, {t1}, {sGBASE}\ns_add_u32 {sMLg}, {t1}, {bML}\ns_add_u32 {sGSg}, {t1}, {bGS}')
    A(f's_lshl_b32 {t1}, {sLO}, 14\ns_add_u32 {sXg}, {t1}, {oXA}')
    A(f's_lshl_b32 {t1}, {t0}, 9\ns_add_u32 {sXst}, {sXg}, {t1}')
    A(f's_lshl_b32 {t1}, {sHI}, 11\ns_add_u32 {t1}, {t1}, {sGBASE}\ns_add_u32 {sGCg}, {t1}, {bGC}')
    A(f's_lshl_b32 {t3}, {sHI}, 8\ns_lshl_b32 {t1}, {sLO}, 3\ns_add_u32 {t3}, {t3}, {t1}\ns_add_u32 {t3}, {t3}, {sGBASE}\ns_add_u32 {sQSst}, {t3}, {bQS + LS}\ns_add_u32 {sGSst}, {t3}, {bGS}')
    A(f's_lshl_b32 s101, {t0}, 14\ns_add_u32 s101, s101, {TQP}')
    A(f's_lshl_b32 {t1}, {sLO}, 10\ns_lshl_b32 {t2}, {sHI}, 8\ns_add_u32 {t1}, {t1}, {t2}\ns_lshl_b32 {t2}, {g3}, 6\ns_add_u32 {t3}, {t1}, {t2}')
    A(f's_add_u32 {t1}, {sGBASE}, {t3}\ns_add_u32 {t1}, {t1}, {LS}\ns_mov_b32 {t2}, {OOB}')
    A(f's_cmp_ge_u32 {sW}, 4\ns_cselect_b32 {g0}, 0, 5')
    def st_off(dst, shift):
        A(f'v_lshlrev_b32 {vTMP}, {shift}, v120\nv_add_u32 {vTMP}, {t1}, {vTMP}\nv_mov_b32 {vTMP2}, {t2}\nv_cmp_eq_u32 vcc, 4, v120'); sel(vTMP, vTMP, vTMP2)
        A(f'v_lshl_add_u32 {vTMP}, v121, 4, {vTMP}\nv_cmp_gt_u32 vcc, {g0}, v120'); sel(dst, 'v118', vTMP)
    st_off(vQst, 13)
    A(f's_lshl_b32 {t3}, {t3}, 1\ns_lshl_b32 {t1}, {g3}, 6\ns_sub_u32 {t3}, {t3}, {t1}\ns_lshl_b32 {t1}, {sG}, 16\ns_add_u32 {t1}, {t1}, {t3}\ns_add_u32 {t1}, {t1}, {TQP}\ns_lshl_b32 {t2}, {sG}, 14\ns_add_u32 {t2}, {t2}, {t3}\ns_add_u32 {t2}, {t2}, {TQC}')
    st_off('v109', 14)
    A(f'v_lshlrev_b32 {vTMP}, 6, v122\nv_add_u32 {vTMP2}, 4, {vTMP}\nv_cmp_gt_u32 vcc, 16, {vL}'); sel(vTMP, vTMP, vTMP2)
    A(f'v_and_b32 {vTMP2}, {0x1ec*4}, {vT4}\nv_cmp_eq_u32 vcc, {256*4}, {vTMP2}'); sel(vSSt, 'v118', vTMP)
    A(f'v_lshlrev_b32 v115, 2, {vT4}')
    A(f's_lshl_b32 {t1}, {sG}, 2\ns_add_u32 {t1}, {t1}, {g3}\ns_lshl_b32 {t1}, {t1}, 14\ns_lshl_b32 {t2}, {sLO}, 11\ns_add_u32 {t1}, {t1}, {t2}\ns_lshl_b32 {t2}, {sHI}, 9\ns_add_u32 {t1}, {t1}, {t2}\ns_add_u32 {t1}, {t1}, {TOP}')
    A(f'v_and_b32 {vTMP}, 2, {vL}\nv_lshlrev_b32 {vTMP}, 7, {vTMP}\nv_lshrrev_b32 {vTMP2}, 2, {vL}\nv_lshl_add_u32 {vTMP}, {vTMP2}, 4, {vTMP}\nv_add_u32 {vTMP}, {t1}, {vTMP}\nv_and_b32 {vTMP2}, 1, {vL}\nv_cmp_eq_u32 vcc, 0, {vTMP2}'); sel('v110', 'v118', vTMP)
    A(f's_mov_b32 {sLAY}, 0\ns_mov_b32 {sTO}, 400000\ns_mov_b32 {sFAST}, 0\ns_mov_b32 {sCNT}, 0\ns_mov_b32 {sGOK}, 0\ns_mov_b32 {sLIDX}, 0')
    A(f's_lshl_b32 {t3}, {g3}, 6\ns_lshl_b32 {t1}, {sLO}, 10\ns_add_u32 {t1}, {t1}, {sGg}\ns_add_u32 {t1}, {t1}, {t3}\ns_lshl_b32 {t2}, {sLO}, 8\ns_add_u32 {t2}, {t2}, {sGCg}\ns_add_u32 {t2}, {t2}, {t3}')
    st_off(vGst, 8)
    A(f'v_and_b32 {vTMP}, 7, {vL}\nv_lshlrev_b32 {vSt8}, 3, {vTMP}\nv_lshlrev_b32 {vL4}, 2, {vL}\nv_lshlrev_b32 {vML2}, 3, v121')
    A(f'v_cmp_eq_u32 vcc, 0, {vL}'); sel(vMLst, 'v118', '0')
    A(f's_lshl_b32 {t1}, {g3}, 8\nv_lshlrev_b32 {vTMP}, 4, v120\nv_lshl_add_u32 {vG1}, v121, 10, {vTMP}\nv_add_u32 {vG1}, {t1}, {vG1}')
    A(f's_lshl_b32 {t1}, {sW}, 6\nv_lshlrev_b32 {vXg}, 11, v123\nv_lshl_add_u32 {vXg}, v121, 9, {vXg}\nv_lshl_add_u32 {vXg}, v122, 4, {vXg}\nv_add_u32 {vXg}, {t1}, {vXg}')
    A(f's_lshr_b32 {t1}, {sW}, 1\ns_mul_i32 {t1}, {t1}, 192\ns_and_b32 {t2}, {sW}, 1\ns_lshl_b32 {t2}, {t2}, 6\ns_add_u32 {t1}, {t1}, {t2}\ns_add_u32 {t1}, {t1}, {L_XS}\nv_add_u32 {vXW}, {t1}, v117')
    A(f's_mul_i32 {t1}, {g3}, 320\ns_add_u32 {t1}, {t1}, {L_QS}\nv_lshl_add_u32 {vQW}, v121, 2, {vTMP}\nv_add_u32 {vQW}, {t1}, {vQW}')
    A(f's_mul_i32 {t1}, {g3}, 192\ns_add_u32 {t1}, {t1}, {L_HS}\nv_lshlrev_b32 {vHW}, 3, v120\nv_lshl_add_u32 {vHW}, v121, 1, {vHW}\nv_add_u32 {vHW}, {t1}, {vHW}')
    A(f'v_mul_u32_u24 {vBR320}, 320, v122\nv_lshl_add_u32 {vBR320}, v121, 4, {vBR320}\nv_add_u32 {vBR320}, {L_QS}, {vBR320}')
    A(f'v_mul_u32_u24 {vBR192}, 192, v122\nv_lshl_add_u32 {vBR192}, v121, 4, {vBR192}\nv_add_u32 {vBR192}, {L_HS}, {vBR192}')
    A(f'v_min_u32 {vTMP2}, 4, v120\nv_mul_u32_u24 {vXR}, 192, {vTMP2}\nv_lshl_add_u32 {vXR}, v121, 4, {vXR}\nv_add_u32 {vXR}, {L_XS}, {vXR}')
    A(f's_lshl_b32 {t1}, {g3}, 5\nv_lshlrev_b32 {vTMP2}, 7, v120\nv_lshl_add_u32 {vTMP2}, v121, 3, {vTMP2}\nv_add_u32 {vTMP2}, {t1}, {vTMP2}\nv_cmp_gt_u32 vcc, 4, v120'); sel(vXst, 'v118', vTMP2)
    A(f'v_lshlrev_b32 {vTMP2}, 4, {vL}\nv_add_u32 {vROW}, {sRING}, {vTMP2}')
    A(f's_lshr_b32 {t1}, {g3}, 1\ns_lshl_b32 {t1}, {t1}, 10\ns_and_b32 {t2}, {g3}, 1\ns_lshl_b32 {t2}, {t2}, 3\ns_add_u32 {t1}, {t1}, {t2}\nv_add_u32 {vROR}, {t1}, {vTMP2}')
    A(f's_lshl_b32 {t1}, {sW}, 3\ns_add_u32 {t1}, {t1}, {L_RM}\nv_lshlrev_b32 {vRMW}, 6, v122\nv_add_u32 {vRMW}, {t1}, {vRMW}')
    A(f's_lshl_b32 {t1}, {g3}, 6\ns_add_u32 {t1}, {t1}, {L_RM}\nv_add_u32 {vRMR}, {t1}, {vSt8}')
    A(f'v_lshl_add_u32 v125, v121, 3, v123')
    A(f'v_xor_b32 {vTMP}, {g3}, v123\nv_lshlrev_b32 {vTMP}, 6, {vTMP}\nv_lshl_add_u32 {vTMP}, v122, 4, {vTMP}\nv_lshl_add_u32 {vWQr}, v125, 8, {vTMP}\nv_add_u32 {vWQr}, {L_WQ}, {vWQr}')
    A(f'v_lshrrev_b32 v119, 1, v123\nv_and_b32 v127, 1, v121\nv_lshlrev_b32 {vTMP}, 1, v127')
    A(f'v_xor_b32 {vTMP}, {g3}, {vTMP}\nv_lshlrev_b32 {vTMP}, 5, {vTMP}\nv_lshl_add_u32 {vTMP}, v122, 3, {vTMP}\nv_lshl_add_u32 {vWr}, v125, 7, {vTMP}\nv_add_u32 {vWr}, {L_WG}, {vWr}')
    A(f'v_and_b32 v126, 1, v123\nv_lshlrev_b32 {vTMP}, 1, v126\nv_xor_b32 {vTMP}, {g3}, {vTMP}\nv_lshlrev_b32 {vTMP}, 5, {vTMP}\nv_lshl_add_u32 {vTMP}, v122, 3, {vTMP}')
    A(f'v_lshl_add_u32 {vTMP2}, v121, 2, v119\nv_lshl_add_u32 {vTMP2}, v126, 6, {vTMP2}\nv_lshl_add_u32 {vWOr}, {vTMP2}, 7, {vTMP}\nv_add_u32 {vWOr}, {L_WO}, {vWOr}')
    A(f'v_and_b32 v125, 1, v120\nv_mov_b32 {vTMP}, 0xffff\nv_mov_b32 {vTMP2}, 0xffff0000\nv_cmp_eq_u32 vcc, 1, v125'); sel('v119', vTMP, vTMP2)
    A(f'v_cmp_gt_u32 vcc, 2, v122'); sel('v119', '0', 'v119')
    for i in range(4):
        A(f'v_cmp_eq_u32 vcc, {i}, v123'); sel(f'v{MASK+i}', '0', 'v119'); A(f'v_and_b32 v{32+i}, 0x3f803f80, v{MASK+i}')
    A(f'v_mov_b32 {vTMP}, 0x3f80\nv_mov_b32 {vTMP2}, 0x3f800000\nv_cmp_eq_u32 vcc, 1, v126'); sel('v119', vTMP, vTMP2)
    A(f'v_cmp_gt_u32 vcc, 2, v122'); sel('v119', '0', 'v119')
    A(f'v_lshrrev_b32 {vTMP}, 1, v123\nv_lshl_add_u32 {vTMP}, v125, 1, {vTMP}')
    for i in range(4):
        A(f'v_cmp_eq_u32 vcc, {i}, {vTMP}'); sel(f'v{40+i}', '0', 'v119')
    A('v_mov_b32 v44, 0x3f803f80\nv_mov_b32 v45, 0x3f803f80')
    A(f'v_and_b32 {vTMP2}, 7, {vL}\nv_lshrrev_b32 v119, 3, {vL}')
    A(f's_lshr_b32 {t1}, {sW}, 2\ns_lshl_b32 {t1}, {t1}, 2\nv_xor_b32 {vTMP}, {t1}, {vTMP2}\nv_lshlrev_b32 {vTMP}, 4, {vTMP}\nv_lshl_add_u32 v124, v119, 10, {vTMP}')
    A(f's_and_b32 {t1}, {sW}, 1\ns_lshl_b32 {t1}, {t1}, 2\nv_xor_b32 {vTMP}, {t1}, {vTMP2}\nv_lshlrev_b32 {vTMP}, 4, {vTMP}')
    A(f'v_lshl_add_u32 v127, v119, 10, {vTMP}\nv_mul_u32_u24 v126, 3584, v119\nv_add_u32 v126, v126, {vTMP}')
    A(f's_cmp_ge_u32 {sG}, 4\ns_cselect_b32 {t2}, 3, 4\ns_cmp_lt_u32 {sHI}, {t2}\ns_cselect_b32 {t2}, 0, {OOB}\nv_add_u32 v126, {t2}, v126\nv_add_u32 v127, {t2}, v127')
    A(f'v_lshlrev_b32 {vTMP}, 1, v123\nv_xor_b32 {vTMP}, v121, {vTMP}\nv_lshlrev_b32 {vTMP}, 5, {vTMP}\nv_lshl_add_u32 {vTMP}, v122, 3, {vTMP}\nv_lshl_add_u32 {vTMP}, v123, 8, {vTMP}\nv_add_u32 v122, {sRING}, {vTMP}\nv_xor_b32 v123, 128, v122')
    A(f'v_and_b32 {vTMP}, 3, v120\nv_lshlrev_b32 {vTMP}, 6, {vTMP}\nv_lshl_add_u32 {vTMP}, v121, 4, {vTMP}\nv_lshl_add_u32 {vTMP}, v120, 8, {vTMP}\nv_add_u32 v118, {sRING}, {vTMP}')
    for j in range(1, 4): A(f'v_xor_b32 v{118+j}, {64*j}, v118')
    A(f'v_and_b32 {vTMP}, 124, {vL4}\nv_add_u32 {vTMP}, {L_XS+4*192}, {vTMP}\nds_write_b32 {vTMP}, v44')
    A(f'v_mov_b32 {vTMP}, {L_FL}\nv_mov_b32 {vTMP2}, 0\nds_write_b32 {vTMP}, {vTMP2}')

    def read_k(i):
        for j in range(4): A(f'ds_read_b128 a[{16*i+4*j}:{16*i+4*j+3}], v{118+j} offset:{(i&1)*4096}')
    def read_v(p):
        i = p - 16
        for hf in range(2):
            r = 64 + 4 * i + 2 * hf
            A(f'ds_read_b64_tr_b16 a[{r}:{r+1}], v{122+hf} offset:{((p//4)&1)*4096 + (p%4)*1024}')
    if not late47:
        for p in range(burst, 8): piece(p)
    if diag: xstamp(40)
    A.wait_vm('ep')
    if diag: xstamp(41)
    A(f'v_and_b32 v113, 0xffff0000, v68\nv_lshlrev_b32 v112, 16, v68')
    A(f'v_readfirstlane_b32 {sTAG}, v69\ns_add_u32 {sTAG}, {sTAG}, 1')
    A('v_dot2_f32_bf16 v78, v72, v44, 0\nv_dot2_f32_bf16 v79, v72, v72, 0')
    for k in range(73, 76): A(f'v_dot2_f32_bf16 v78, v{k}, v44, v78\nv_dot2_f32_bf16 v79, v{k}, v{k}, v79')
    for m in ('quad_perm:[1,0,3,2]', 'quad_perm:[2,3,0,1]', 'row_half_mirror', 'row_mirror'):
        A(f'v_add_f32_dpp v78, v78, v78 {m} {DPP}\nv_add_f32_dpp v79, v79, v79 {m} {DPP}')
    for sw in ('v_permlane16_swap_b32', 'v_permlane32_swap_b32'):
        A(f'v_mov_b32 v76, v78\nv_mov_b32 v77, v79\n{sw} v78, v76\n{sw} v79, v77\nv_add_f32 v78, v78, v76\nv_add_f32 v79, v79, v77')
    c2 = QSCALE * QSCALE
    A(f'v_mov_b32 v75, {f32(1e-5/c2)}\nv_mul_f32 v74, v78, v78\nv_fmac_f32 v75, {f32(1/(512*c2))}, v79\nv_fmac_f32 v75, {f32(-1/(512*512*c2))}, v74\nv_max_f32 v75, {f32(1e-5/c2)}, v75\nv_rsq_f32 v74, v75')
    A(f'v_mul_f32 v78, {f32(-1/512)}, v78\nv_add_f32 v72, v112, v78\nv_add_f32 v73, v113, v78\nv_mul_f32 v72, v72, v74\nv_mul_f32 v73, v73, v74\nv_cvt_pk_bf16_f32 v72, v72, v73\nds_write_b32 {vXW}, v72')
    if late47:
        for p in range(burst, 8): piece(p)
    if diag: xstamp(42)
    A.wait_vm('wq')
    if diag: xstamp(43)
    if bar_after_k0:
        A.wait_vm('p3')
        read_k(0)
        A('s_waitcnt lgkmcnt(0)')
        for p in range(8, 12): piece(p)
    A('s_waitcnt lgkmcnt(0)')
    if 'B' not in abl: A('s_barrier')
    stamp()

    def read_wq():
        for tl in range(2):
            for j in range(2):
                for u in range(2):
                    r = 48 + 8 * tl + 4 * j + 2 * u
                    A(f'ds_read_b64_tr_b16 v[{r}:{r+1}], {vWQr} offset:{8*tl+8192*j+1024*u}')
    def read_gu():
        for tl in range(2):
            for j in range(2):
                for u in range(2):
                    r = 48 + 8 * tl + 4 * j + 2 * u
                    A(f'ds_read_b64_tr_b16 v[{r}:{r+1}], {vWr} offset:{8192*tl+4096*j+512*u}')
    def read_wd():
        for j in range(2):
            for u in range(2):
                A(f'ds_read_b64_tr_b16 v[{48+4*j+2*u}:{49+4*j+2*u}], {vWr} offset:{16384+4096*j+512*u}')
    def read_wo():
        for j in range(4):
            for u in range(2):
                A(f'ds_read_b64_tr_b16 v[{48+4*j+2*u}:{49+4*j+2*u}], {vWOr} offset:{2048*j+256*u}')
    def matvec(vst, mode, late_w=None, soff='0'):
        A(f'ds_read_b128 v[80:83], {vXR}\nds_read_b128 v[84:87], {vXR} offset:64')
        if late_w: late_w()
        A('s_waitcnt lgkmcnt(0)' if late_w else 's_waitcnt lgkmcnt(1)')
        A(f'{M16} v[96:99], v[48:51], v[80:83], 0\n{M16} v[104:107], v[56:59], v[80:83], 0')
        if not late_w: A('s_waitcnt lgkmcnt(0)')
        A(f'{M16} v[96:99], v[52:55], v[84:87], v[96:99]\n{M16} v[104:107], v[60:63], v[84:87], v[104:107]')
        if mode == 'plain':
            A(f's_cmp_eq_u32 {sFAST}, 1')
            A('v_cvt_pk_bf16_f32 v96, v96, v97\nv_cvt_pk_bf16_f32 v97, v98, v99\nv_cvt_pk_bf16_f32 v98, v104, v105\nv_cvt_pk_bf16_f32 v99, v106, v107')
            lstore(f'buffer_store_dwordx4 v[96:99], {vst}, {WS}, {soff} offen', cmp=False)
            return
        A(f'v_mov_b32 v102, {sTAG}\nv_mov_b32 v103, s64')
        A(f'v_cvt_pk_bf16_f32 v100, v96, v97\nv_cvt_pk_bf16_f32 v101, v98, v99\nv_cvt_pk_bf16_f32 v104, v104, v105\nv_cvt_pk_bf16_f32 v105, v106, v107')
        A(f'v_mov_b32 v106, {sTAG}\nv_mov_b32 v107, s64')
        if mode == 'q0':
            A.vmop(f'buffer_store_dwordx4 v[100:103], {vst}, {WS}, 0 offen', 'st')
            A.vmop(f'buffer_store_dwordx4 v[104:107], {vst}, {WS}, 0 offen offset:256', 'st')
        else:
            lstore(f'buffer_store_dwordx4 v[100:103], {vst}, {WS}, 0 offen\nbuffer_store_dwordx4 v[104:107], {vst}, {WS}, 0 offen offset:256')
    def slice_stats(sst):
        l = lab('st')
        A(f's_cmp_lg_u32 {sW}, 4\ns_cbranch_scc1 {l}')
        A(f'ds_read_b128 v[80:83], {vXR}\nds_read_b128 v[84:87], {vXR} offset:64\ns_waitcnt lgkmcnt(1)')
        A(f'{M16} v[104:107], v[80:83], v[80:83], 0\ns_waitcnt lgkmcnt(0)\n{M16} v[104:107], v[84:87], v[84:87], v[104:107]')
        def pick():
            A('v_cndmask_b32 v104, v104, v105, s[80:81]\nv_cndmask_b32 v106, v106, v107, s[80:81]\nv_cndmask_b32 v104, v104, v106, s[82:83]')
        A('s_mov_b64 s[80:81], 10\ns_mov_b64 s[82:83], 12')
        A(f's_cmp_eq_u32 {sFAST}, 1')
        pick()
        lstore(f'buffer_store_dword v104, {vSSt}, {WS}, {sst} offen', cmp=False)
        A.vm.pop()
        A(f'{l}:')

    def issue_g1(dst, voff, sbase, tag, step=4096):
        A.vmop(f'buffer_load_dwordx4 v[{dst}:{dst+3}], {voff}, {WS}, {sbase} offen sc1', tag)
        if step >= 4096:
            A(f's_add_u32 {t1}, {sbase}, {step}')
            A.vmop(f'buffer_load_dwordx4 v[{dst+4}:{dst+7}], {voff}, {WS}, {t1} offen sc1', tag)
        else:
            A.vmop(f'buffer_load_dwordx4 v[{dst+4}:{dst+7}], {voff}, {WS}, {sbase} offen offset:{step} sc1', tag)
    def check_empty(regs):
        regs = list(regs)
        A(f'v_max3_u32 {vTMP}, v{regs[0]}, v{regs[1]}, v{regs[2]}'); rest = regs[3:]
        if len(rest) >= 5:
            A(f'v_max3_u32 {vTMP2}, v{rest[0]}, v{rest[1]}, v{rest[2]}'); rest = rest[3:]
            tg = 0
            while len(rest) >= 2:
                d = (vTMP, vTMP2)[tg]; A(f'v_max3_u32 {d}, {d}, v{rest[0]}, v{rest[1]}'); rest = rest[2:]; tg ^= 1
            if rest: A(f'v_max3_u32 {vTMP}, {vTMP}, {vTMP2}, v{rest[0]}')
            else: A(f'v_max_u32 {vTMP}, {vTMP}, {vTMP2}')
        else:
            while len(rest) >= 2:
                A(f'v_max3_u32 {vTMP}, {vTMP}, v{rest[0]}, v{rest[1]}'); rest = rest[2:]
            if rest: A(f'v_max_u32 {vTMP}, {vTMP}, v{rest[0]}')
        A(f'v_cmp_eq_u32 vcc, -1, {vTMP}')
    def poll(issue, regs, spec=None):
        r, d = lab('retry'), lab('got')
        A(f'{r}:')
        issue()
        A.wait_vm()
        if spec: spec()
        check_empty(regs)
        tl = lab('again')
        A(f's_cbranch_vccnz {tl}\n{d}:')
        tails.append(f'{tl}:\n' + (f's_sleep {backoff}\n' if backoff else '') + f's_sub_u32 {sTO}, {sTO}, 1\ns_cbranch_scc0 {r}\ns_mov_b32 {sTO}, 0\ns_branch {d}')
    def poll2(issue, nld, regs, spec):
        d, sb, sa = lab('got'), lab('setb'), lab('seta')
        issue(0)
        if dstep: A(f's_sleep {dstep}')
        issue(1)
        A(f'{sa}:\ns_waitcnt vmcnt({nld})')
        spec(0); check_empty(regs(0))
        A(f's_cbranch_vccnz {sb}\n{d}:')
        keepL, A.L = A.L, []
        A(f'{sb}:'); issue(0)
        A(f's_waitcnt vmcnt({nld})\ns_nop 1')
        spec(1); check_empty(regs(1))
        A(f's_nop 1\ns_cbranch_vccz {d}')
        issue(1)
        A(f's_sub_u32 {sTO}, {sTO}, 1\ns_cbranch_scc0 {sa}\ns_mov_b32 {sTO}, 0\ns_branch {d}')
        tails.append('\n'.join(A.L)); A.L = keepL
        A.vm = []
    def ln_poll2(sdata, sstat, selop):
        def iss(k):
            issue_g1(64 + 16 * k, vG1, sdata, 'x')
            A.vmop(f'buffer_load_dwordx2 v[{72+16*k}:{73+16*k}], {vSt8}, {WS}, {sstat} offen sc1', 'x')
        def spec(k):
            b = 64 + 16 * k
            A(f'{M16} v[96:99], {selop}, v[{b}:{b+3}], 0\n{M16} v[96:99], {selop}, v[{b+4}:{b+7}], v[96:99]')
            A(f'v_add_f32_dpp v78, v{b+8}, v{b+8} quad_perm:[1,0,3,2] {DPP}\nv_add_f32_dpp v79, v{b+9}, v{b+9} quad_perm:[1,0,3,2] {DPP}')
        poll2(iss, 3, lambda k: range(64 + 16 * k, 74 + 16 * k), spec)
    def issue_q(first):
        if not first:
            issue_g1(64, vG1, sQg, 'q')
            A.vmop(f'buffer_load_dwordx2 v[72:73], {vSt8}, {WS}, {sQSg} offen sc1', 'q')
            return
        issue_tagged(f's_mov_b32 {t1}, s101')
    def issue_tagged(base, dst=80, voff=None, kstep=8192, hstep=256):
        if voff is None:
            A(f'v_and_b32 {vTMP2}, 0xf0, {vG1}\nv_lshlrev_b32 {vTMP}, 1, {vG1}\nv_sub_u32 {vTMP}, {vTMP}, {vTMP2}')
        else: A(voff)
        A(base + f'\ns_add_u32 {t2}, {t1}, {kstep}')
        for k in range(2):
            for hh in range(2):
                r = dst[2 * k + hh] if isinstance(dst, tuple) else dst + 8 * k + 4 * hh
                A.vmop(f'buffer_load_dwordx4 v[{r}:{r+3}], {vTMP}, {WS}, {(t1, t2)[k]} offen offset:{hstep*hh} sc1', 'q')
    def issue_o0():
        issue_tagged(f's_lshl_b32 {t1}, {sG}, 2\ns_add_u32 {t1}, {t1}, {sHI}\ns_lshl_b32 {t0}, {t1}, 2\ns_lshl_b32 {t1}, {t1}, 14\ns_add_u32 {t1}, {t1}, {TOP}', o0dst[0])
        A(f's_add_u32 {t0}, {t0}, {sW}\ns_lshl_b32 {t0}, {t0}, 7\ns_add_u32 {t0}, {t0}, {TML}\nv_lshlrev_b32 {vTMP2}, 1, {vML2}')
        m_ = o0ml[0]
        A.vmop(f'buffer_load_dwordx4 v[{m_}:{m_+3}], {vTMP2}, {WS}, {t0} offen sc1', 'q')
        A.vmop(f'buffer_load_dwordx4 v[{m_+4}:{m_+7}], {vTMP2}, {WS}, {t0} offen offset:64 sc1', 'q')
    o0dst = [80]; o0ml = [64]
    def check_words(words, sval):
        w = list(words)
        A(f'v_xor_b32 {vTMP}, {sval}, v{w[0]}')
        for x in w[1:]: A(f'v_xor_b32 {vTMP2}, {sval}, v{x}\nv_or_b32 {vTMP}, {vTMP}, {vTMP2}')
        A(f'v_cmp_ne_u32 vcc, 0, {vTMP}')
    def check_tags(words=(82, 86, 90, 94)): check_words(words, sTAG)
    def tagged_sum(selbase=32, src=80, acc=96, selk=0):
        for n_, (k, hh) in enumerate(((0, 0), (0, 1), (1, 0), (1, 1))):
            r = src[2 * k + hh] if isinstance(src, tuple) else src + 8 * k + 4 * hh
            sb = selbase + selk * k + 2 * hh
            c = '0' if n_ == 0 else f'v[{acc}:{acc+3}]'
            A(f'v_mfma_f32_16x16x16_bf16 v[{acc}:{acc+3}], v[{sb}:{sb+1}], v[{r}:{r+1}], {c}')
    def q0_finish():
        tagged_sum()
        check_words((83, 87, 91, 95), 's64')
        A(f's_cmp_eq_u64 vcc, 0\ns_cselect_b32 {sGOK}, 1, 2')
        A(f'v_cvt_pk_bf16_f32 v96, v96, v97\nds_write_b32 {vQW}, v96')
    def tagged_poll(issue, words=(82, 86, 90, 94), spec=None, back=0):
        rq, gq = lab('rq'), lab('gq')
        A(f'{rq}:')
        issue(); A.wait_vm()
        if spec: spec()
        check_tags(words)
        A(f's_cbranch_vccz {gq}')
        if back: A(f's_sleep {back}')
        A(f's_sub_u32 {sTO}, {sTO}, 1\ns_cbranch_scc0 {rq}\ns_mov_b32 {sTO}, 0\n{gq}:')
    CQ = (48, 52, 56, 60)
    def issue_csq(): issue_tagged(f's_lshl_b32 {t1}, {sG}, 14\ns_add_u32 {t1}, {t1}, {TQC}', CQ)
    def finish_csq():
        ok_ = lab('cq')
        check_tags(tuple(r + 2 for r in CQ))
        A(f's_cbranch_vccz {ok_}')
        tagged_poll(issue_csq, tuple(r + 2 for r in CQ))
        A(f'{ok_}:')
        tagged_sum(32, CQ, 64)
        A(f's_mov_b32 {t2}, {f32(1/512)}\nv_pk_mul_f32 {CSQ}, v[64:65], s[56:57] op_sel_hi:[1,0]')
    QREGS = list(range(64, 74)); QREGS1 = QREGS + list(range(80, 88))
    def ln_spec(selop, first):
        def f():
            A(f'{M16} v[96:99], {selop}, v[64:67], 0\n{M16} v[96:99], {selop}, v[68:71], v[96:99]')
            if first:
                A(f'{M16} v[100:103], {selop}, v[80:83], 0\n{M16} v[100:103], {selop}, v[84:87], v[100:103]')
            A(f'v_add_f32_dpp v78, v72, v72 quad_perm:[1,0,3,2] {DPP}\nv_add_f32_dpp v79, v73, v73 quad_perm:[1,0,3,2] {DPP}')
        return f
    def ln_finish(cs, scale, first, csrc=100):
        for m in ('quad_perm:[2,3,0,1]', 'row_half_mirror'):
            A(f'v_add_f32_dpp v78, v78, v78 {m} {DPP}\nv_add_f32_dpp v79, v79, v79 {m} {DPP}')
            if m.startswith('quad'): A(f'v_mov_b32 v75, {f32(1e-5/(scale*scale))}')
        c2 = scale * scale
        A(f'v_mul_f32 v74, v78, v78\nv_fmac_f32 v75, {f32(1/(512*c2))}, v79')
        if first:
            A(f's_mov_b32 {t2}, {f32(1/512)}\nv_pk_mul_f32 {cs}, v[{csrc}:{csrc+1}], s[56:57] op_sel_hi:[1,0]')
        A(f'v_fmac_f32 v75, {f32(-1/(512*512*c2))}, v74\nv_max_f32 v75, {f32(1e-5/c2)}, v75\nv_rsq_f32 v74, v75')
        A(f'v_pk_fma_f32 v[96:97], v[78:79], {cs}, v[96:97] op_sel_hi:[0,1,1] neg_lo:[1,0,0] neg_hi:[1,0,0]')
        A(f'v_pk_mul_f32 v[96:97], v[96:97], v[74:75] op_sel_hi:[1,0]')
    def q_finish(first):
        ln_finish(CSQ, QSCALE, first)
        A(f'v_cvt_pk_bf16_f32 v96, v96, v97\nds_write_b32 {vQW}, v96')

    A('; ---- first q projection, published with plain stores and this CU\'s XCC id')
    save = list(A.vm)
    with lowwaves():
        read_wq()
        A('s_waitcnt lgkmcnt(0)')
        if 'Q' not in abl: matvec('v109', 'q0')
    stamp()

    def issue_wo():
        A(f's_lshl_b32 {t1}, {sG}, 9\ns_lshl_b32 {t2}, {sHI}, 7\ns_add_u32 {t1}, {t1}, {t2}\ns_lshl_b32 {t2}, {sW}, 4\ns_add_u32 {t1}, {t1}, {t2}\ns_lshl_b32 {t1}, {t1}, 10\ns_lshl_b32 {t2}, {sLO}, 7\ns_add_u32 {t1}, {t1}, {t2}')
        A(f's_lshl_b32 {t2}, {sW}, 11\ns_add_u32 m0, {t2}, {L_WO}')
        A.vmop(f'buffer_load_dwordx4 v124, {WO}, {t1} offen nt lds', 'wo')
        A(f's_add_u32 {t1}, {t1}, 8192\ns_add_u32 m0, m0, 1024')
        A.vmop(f'buffer_load_dwordx4 v124, {WO}, {t1} offen nt lds', 'wo')

    def issue_ffn(dw=0, track=False, parts='gud'):
        vm_ = (lambda x: A.vmop(x, 'ffn')) if track else A
        A(f's_add_u32 {t0}, {sW}, {dw}')
        if 'g' in parts:
            A(f's_lshl_b32 {t1}, {sLO}, 6\ns_lshl_b32 {t2}, {t0}, 3\ns_add_u32 {t1}, {t1}, {t2}\ns_mul_i32 {t1}, {t1}, 3584\ns_lshl_b32 {t2}, {g2}, 7\ns_add_u32 {t1}, {t1}, {t2}')
        A(f's_lshl_b32 {t2}, {t0}, 10\ns_add_u32 m0, {t2}, {L_WG}')
        if 'g' in parts:
            vm_(f'buffer_load_dwordx4 v126, {WG}, {t1} offen nt lds')
            A(f's_add_u32 m0, {t2}, {L_WU}')
            vm_(f'buffer_load_dwordx4 v126, {WU}, {t1} offen nt lds')
        if 'd' not in parts: return
        A(f's_lshl_b32 {t1}, {g2}, 6\ns_lshl_b32 {t3}, {t0}, 3\ns_add_u32 {t1}, {t1}, {t3}\ns_lshl_b32 {t1}, {t1}, 10\ns_lshl_b32 {t3}, {sLO}, 7\ns_add_u32 {t1}, {t1}, {t3}\ns_add_u32 m0, {t2}, {L_WD}')
        vm_(f'buffer_load_dwordx4 v127, {WD}, {t1} offen nt lds')
    wait_of = {}
    d = 6
    for p_ in range(12, 32):
        tgt = depth if p_ < deep_from else deep
        need_d = p_ - tgt
        if p_ in (12, 16, 20): need_d = max(need_d, p_ - 5)
        if need_d > d: wait_of[p_] = list(range(d + 1, need_d + 1)); d = need_d
        else: wait_of[p_] = []
    last_read = d
    def step(p):
        for d_ in wait_of[p]:
            A.wait_vm(f'p{d_}')
            if d_ < 16:
                if d_ % 4 == 3: read_k(d_ // 4); A('s_waitcnt lgkmcnt(0)')
            else:
                A('s_waitcnt lgkmcnt(0)')
                read_v(d_)
            if diag and d_ in (7, 11, 15, 19, 23): xstamp(45 + (d_ - 7) // 4)
        if ffn_at and p == ffn_at and len(tail_parts) < 3: issue_ffn(0, True, ''.join(c_ for c_ in 'gud' if c_ not in tail_parts))
        if p == wo_at: issue_wo()
        piece(p)
    hi_l, join_all, flag_l = lab('shi'), lab('sj'), lab('fl')
    def lead_in():
        if not bar_after_k0:
            A.wait_vm('p3')
            if diag: xstamp(44)
            read_k(0); A('s_waitcnt lgkmcnt(0)')
            for pp in range(8, 12): piece(pp)
    lowcode = [True]
    def steps(lo_, hi_):
        for pp in range(lo_, hi_):
            if pp == touch_o and lowcode[0]:
                n_ = len(A.vm); o0dst[0] = 48; issue_o0(); o0dst[0] = 80
                A.vm[n_:] = ['touch'] * (len(A.vm) - n_)
            if pp == csq_at and lowcode[0]:
                n_ = len(A.vm); issue_csq(); A.vm[n_:] = ['csq'] * (len(A.vm) - n_)
            step(pp)
    A(f's_cmp_ge_u32 {sW}, 4\ns_cbranch_scc1 {hi_l}')
    lead_in()
    p = 12
    while p < 32:
        if p in rides:
            skip, join = lab('noq'), lab('jn')
            saved = list(A.vm)
            A(f's_cmp_lg_u32 {sGOK}, 0\ns_cbranch_scc1 {skip}')
            issue_q(True)
            steps(p, p + 5)
            if 'q' in A.vm: A.wait_vm('q')
            check_tags()
            nq = lab('nq')
            A(f's_cbranch_vccnz {nq}')
            q0_finish()
            A(f'{nq}:\ns_branch {join}\n{skip}:')
            after_q = list(A.vm)
            A.vm = saved
            steps(p, p + 5)
            extra = len(A.vm) - len(after_q)
            assert A.vm[extra:] == after_q, (A.vm, after_q)
            A.vm = after_q if extra <= 0 else A.vm
            A(f'{join}:')
            p += 5
        else:
            steps(p, p + 1); p += 1
    saved = list(A.vm)
    def put_status():
        A(f's_lshl_b32 {t1}, {sW}, 2\ns_add_u32 {t1}, {t1}, {L_ST}\nv_mov_b32 {vTMP}, {t1}\nv_mov_b32 {vTMP2}, {sGOK}\nds_write_b32 {vTMP}, {vTMP2}')
    def get_status():
        A(f'v_mov_b32 {vTMP}, {L_ST}\nds_read_b128 v[72:75], {vTMP}\ns_waitcnt lgkmcnt(0)')
        check_words((72, 73, 74, 75), '1')
        A('s_cmp_eq_u64 vcc, 0')
    put_status()
    A(f's_branch {join_all}\n{hi_l}:')
    A.vm = save; lowcode[0] = False
    lead_in()
    steps(12, 32)
    saved = list(A.vm)
    A(f'{join_all}:')
    stamp()
    A('s_waitcnt lgkmcnt(0)\ns_barrier')
    get_status()
    okq = lab('okq')
    A(f's_cbranch_scc1 {okq}')
    if not abl:
        with lowwaves():
            A(f'buffer_store_dwordx4 v[100:103], v109, {WS}, 0 offen sc1\nbuffer_store_dwordx4 v[104:107], v109, {WS}, 0 offen offset:256 sc1')
            dn = lab('qdone')
            A(f's_cmp_lg_u32 {sGOK}, 0\ns_cbranch_scc1 {dn}')
            tagged_poll(lambda: issue_q(True))
            q0_finish()
            A(f'{dn}:')
        A('s_barrier')
        with lowwaves(): put_status()
        A('s_waitcnt lgkmcnt(0)\ns_barrier')
        get_status()
    A(f'{okq}:\ns_cselect_b32 {sFAST}, 1, 0')
    A.vm = saved
    def issue_ffn_any(dw):
        if dw & 1: A('v_xor_b32 v126, 64, v126\nv_xor_b32 v127, 64, v127')
        issue_ffn(dw, False, ''.join(c_ for c_ in 'gud' if c_ not in tail_parts + mid_parts))
        if dw & 1: A('v_xor_b32 v126, 64, v126\nv_xor_b32 v127, 64, v127')
    def first_only(f):
        def g():
            l, bk = lab('fo'), lab('bk')
            A(f's_cmp_eq_u32 {sLIDX}, 0\ns_cbranch_scc1 {l}\n{bk}:')
            keepL, A.L = A.L, []
            A(f'{l}:'); f(); A(f's_branch {bk}')
            tails.append('\n'.join(A.L)); A.L = keepL
        return g
    def variant(first, later):
        l, bk = lab('v0'), lab('vj')
        A(f's_cmp_eq_u32 {sLIDX}, 0\ns_cbranch_scc1 {l}')
        n0 = nts[0]
        later()
        A(f'{bk}:')
        n1, nts[0] = nts[0], n0
        keepL, A.L = A.L, []
        A(f'{l}:'); first(); A(f's_branch {bk}')
        tails.append('\n'.join(A.L)); A.L = keepL
        assert nts[0] == n1
    def later_only(f):
        l = lab('lo'); A(f's_cmp_eq_u32 {sLIDX}, 0\ns_cbranch_scc1 {l}'); f(); A(f'{l}:')
    def scores(bar=True):
        if bar: A('s_waitcnt lgkmcnt(0)\ns_barrier')
        for j in range(4): A(f'ds_read_b128 v[{64+4*j}:{67+4*j}], {vBR320} offset:{64*j}')
        def sel_t(t, rs):
            for r in rs: A(f'v_mov_b32_dpp v{80+r}, v{80+4*t+r} quad_perm:[0,1,2,3] row_mask:0xf bank_mask:{1<<t:#x}')
        if tmajor:
            for t in range(4):
                for j in range(4):
                    if t == 0: A(f's_waitcnt lgkmcnt({3-j})')
                    c = '0' if j == 0 else f'v[{80+4*t}:{83+4*t}]'
                    A(f'{M16} v[{80+4*t}:{83+4*t}], a[{16*t+4*j}:{16*t+4*j+3}], v[{64+4*j}:{67+4*j}], {c}')
            sel_t(1, range(4)); sel_t(2, range(4)); sel_t(3, range(4))
        else:
            for j in range(4):
                A(f's_waitcnt lgkmcnt({3-j})')
                for t in range(4):
                    c = '0' if j == 0 else f'v[{80+4*t}:{83+4*t}]'
                    A(f'{M16} v[{80+4*t}:{83+4*t}], a[{16*t+4*j}:{16*t+4*j+3}], v[{64+4*j}:{67+4*j}], {c}')
            for t in range(1, 4): sel_t(t, range(4))
        A('v_max3_f32 v84, v80, v81, v82\nv_max_f32 v84, v84, v83')
        A(f'v_max_f32_dpp v84, v84, v84 row_ror:4 {DPP}')
        A(f'v_max_f32_dpp v84, v84, v84 row_ror:8 {DPP}')
        A('v_mov_b32 v85, v84\nv_permlane16_swap_b32 v84, v85\nv_max_f32 v84, v84, v85')
        A('v_mov_b32 v85, v84\nv_permlane32_swap_b32 v84, v85\nv_max_f32 v84, v84, v85')
        A('v_pk_add_f32 v[80:81], v[80:81], v[84:85] op_sel_hi:[1,0] neg_lo:[0,1] neg_hi:[0,1]')
        A('v_pk_add_f32 v[82:83], v[82:83], v[84:85] op_sel_hi:[1,0] neg_lo:[0,1] neg_hi:[0,1]')
        for r in range(4): A(f'v_exp_f32 v{80+r}, v{80+r}')
        A('v_cvt_pk_bf16_f32 v86, v80, v81\nv_cvt_pk_bf16_f32 v87, v82, v83')
        A(f'v_mfma_f32_16x16x16_bf16 v[88:91], {ONES}, v[86:87], 0')
    def pv(i):
        for hf in range(2):
            acc = 96 + 8 * (i & 1) + 4 * hf
            c = '0' if i < 2 else f'v[{acc}:{acc+3}]'
            A(f'v_mfma_f32_4x4x4_16b_bf16 v[{acc}:{acc+3}], v[86:87], a[{64+4*i+2*hf}:{65+4*i+2*hf}], {c} cbsz:4 abid:{4*(i&3)+(i>>2)}')
    def lsum():
        A(f'v_add_f32_dpp v85, v88, v88 row_ror:4 {DPP}')
        A(f'v_add_f32_dpp v85, v85, v85 row_ror:8 {DPP}')
        A(f's_mov_b64 exec, 15\nds_write_b64 {vRMW}, v[84:85]')
        full_exec()
    def combine(tagged=False, other=None):
        for h in range(4):
            A(f'v_add_f32 v{64+2*h}, v{96+h}, v{104+h}\nv_add_f32 v{65+2*h}, v{100+h}, v{108+h}')
            if h & 1: A(f'ds_write_b128 {vROW}, v[{62+2*h}:{65+2*h}] offset:{512*(h-1)}')
        A('s_waitcnt lgkmcnt(0)\ns_barrier')
        with lowwaves(other):
            A(f'ds_read_b64 v[72:73], {vRMR}')
            for k in range(8): A(f'ds_read_b64 v[{80+2*k}:{81+2*k}], {vROR} offset:{8192*k}')
            A('s_waitcnt lgkmcnt(8)')
            A(f'v_max_f32_dpp v74, v72, v72 quad_perm:[1,0,3,2] {DPP}')
            A(f'v_max_f32_dpp v74, v74, v74 quad_perm:[2,3,0,1] {DPP}')
            A(f'v_max_f32_dpp v74, v74, v74 row_half_mirror {DPP}')
            A('v_sub_f32 v72, v72, v74\nv_exp_f32 v72, v72')
            for k in range(8): A(f'v_readlane_b32 s{80+k}, v72, {k}')
            A('v_mul_f32 v75, v73, v72\ns_waitcnt lgkmcnt(0)')
            for k in range(8):
                sp = f's[{80+(k&~1)}:{81+(k&~1)}]'
                o = 'op_sel_hi:[1,0' if (k & 1) == 0 else 'op_sel:[0,1'
                d = 64 + 2 * (k & 1)
                if k < 2: A(f'v_pk_mul_f32 v[{d}:{d+1}], v[{80+2*k}:{81+2*k}], {sp} {o}]')
                else: A(f'v_pk_fma_f32 v[{d}:{d+1}], v[{80+2*k}:{81+2*k}], {sp}, v[{d}:{d+1}] {o},{1 if (k&1)==0 else 0}]')
            A('v_pk_add_f32 v[64:65], v[64:65], v[66:67]\nv_cvt_pk_bf16_f32 v64, v64, v65')
            def lsum8():
                for m in ('quad_perm:[1,0,3,2]', 'quad_perm:[2,3,0,1]', 'row_half_mirror'):
                    A(f'v_add_f32_dpp v75, v75, v75 {m} {DPP}')
            def pub_tagged():
                A(f'v_mov_b32 v66, {sTAG}\nv_mov_b32 v67, {sTAG}\nv_mov_b32_dpp v65, v64 quad_perm:[1,1,3,3] {DPP}')
                lstore(f'buffer_store_dwordx4 v[64:67], v118, {WS}, 0 offen')
                A(f'v_mov_b32 v76, {sTAG}\nv_mov_b32 v77, {sTAG}')
                A(f's_lshl_b32 {t1}, {sG}, 2\ns_add_u32 {t1}, {t1}, {sW}\ns_lshl_b32 {t1}, {t1}, 2\ns_add_u32 {t1}, {t1}, {sHI}\ns_lshl_b32 {t1}, {t1}, 3\ns_add_u32 {t1}, {t1}, {sLO}\ns_lshl_b32 {t1}, {t1}, 4\ns_add_u32 {t1}, {t1}, {TML}')
                lsum8()
                lstore(f'buffer_store_dwordx4 v[74:77], {vMLst}, {WS}, {t1} offen')
            def pub_plain():
                lstore(f'buffer_store_dword v64, {vL4}, {WS}, {sOPst} offen')
                lsum8()
                lstore(f'buffer_store_dwordx2 v[74:75], {vMLst}, {WS}, {sMLst} offen')
            if tagged is None: variant(pub_tagged, pub_plain)
            elif tagged: pub_tagged()
            else: pub_plain()

    A('v_mov_b32 v118, v110')
    A(f's_mul_i32 {t1}, {sC}, 1312\ns_add_u32 {t1}, {t1}, {sGBASE}\ns_add_u32 {t1}, {t1}, {bGP - 7168}\ns_sub_u32 {t2}, {sXst}, 7168')
    A(f'v_add_u32 v119, {t1}, v115\nv_add_u32 v120, {t2}, v115\nv_add_u32 {vTMP}, {oXB - oXA - 512}, v120\nv_cmp_lt_u32 vcc, 31, {vL}'); sel('v120', 'v120', vTMP)
    A(f'v_add_u32 v121, 1024, v119\nv_mov_b32 {vTMP}, {OOB}\nv_cmp_lt_u32 vcc, 17, {vL}'); sel('v121', 'v121', vTMP)
    A(f'v_cmp_gt_u32 vcc, 7168, v115'); sel('v119', 'v119', vTMP); sel('v120', 'v120', vTMP); sel('v121', 'v121', vTMP)
    def clean_urgent():
        A('v_mov_b32 v92, -1\nv_mov_b32 v93, -1\nv_mov_b32 v94, -1\nv_mov_b32 v95, -1')
        A.vmop(f'buffer_store_dwordx4 v[92:95], v119, {WS}, 0 offen sc1', 'cu')
        A.vmop(f'buffer_store_dwordx4 v[92:95], v120, {WS}, 0 offen sc1', 'cu')
        A.vmop(f'buffer_store_dwordx4 v[92:95], v121, {WS}, 0 offen sc1', 'cu')
    if share: A('s_branch L_scores\nL_scored:')
    else: scores(False)
    for i in range(last_read - 15): pv(i)
    lsum()
    stamp()
    for p in range(last_read + 1, 32):
        A.wait_vm(f'p{p}')
        read_v(p)
        if p == cl_at: clean_urgent()
        if p == wt_at:
            assert cl_at <= wt_at
            issue_wo()
            if tail_parts: issue_ffn(0, True, tail_parts)
        A('s_waitcnt lgkmcnt(0)')
        pv(p - 16)
        if p == max(csq_at, last_read + 1) and not abl:
            keep_vm = list(A.vm)
            with lowwaves(): finish_csq()
            A.vm = keep_vm
    stamp()
    if abl: A('s_branch L_fin')
    def flag_addr():
        A(f's_lshl_b32 {t1}, {sLO}, 10\ns_lshl_b32 {t2}, {sG}, 7\nv_and_b32 v68, 7, {vL}\nv_and_b32 v69, 24, {vL}\nv_lshlrev_b32 v68, 7, v68\nv_lshl_add_u32 v68, v69, 10, v68\nv_add_u32 v68, {t1}, v68')
        A(f'v_and_b32 v69, 31, {vL}\nv_lshlrev_b32 v69, 10, v69\nv_add_u32 v69, {t2}, v69\nv_cmp_lt_u32 vcc, 31, {vL}'); sel('v68', 'v68', 'v69')
        A(f's_mov_b32 {t1}, {TF}')
    def clean_rest():
        l_ = lab('cr')
        A(f's_cmp_lg_u32 {sW}, 7\ns_cbranch_scc1 {l_}')
        A(f'v_mov_b32 v64, -1\nv_mov_b32 v65, -1\nv_mov_b32 v66, -1\nv_mov_b32 v67, -1\nv_lshlrev_b32 v68, 2, {vL4}')
        A(f's_add_u32 {t1}, {sXst}, {LS}\nv_add_u32 v69, {oXB - oXA - 512}, v68\nv_cmp_lt_u32 vcc, 31, {vL}'); sel('v69', 'v68', 'v69')
        A(f'buffer_store_dwordx4 v[64:67], v69, {WS}, {t1} offen sc1')
        A(f's_mul_i32 {t2}, {sC}, 3168\ns_add_u32 {t2}, {t2}, {sGBASE}\ns_add_u32 {t2}, {t2}, {LS}')
        for k_ in range(3): A(f'buffer_store_dwordx4 v[64:67], v68, {WS}, {t2} offen offset:{1024*k_} sc1')
        A(f's_mov_b64 exec, 63\nbuffer_store_dwordx4 v[64:67], v68, {WS}, {t2} offen offset:3072 sc1\ns_mov_b64 exec, -1\n{l_}:')
    def clean_first():
        l_ = lab('c7')
        A(f's_cmp_lg_u32 {sW}, 7\ns_cbranch_scc1 {l_}')
        A(f's_lshl_b32 {t1}, s2, 7\ns_add_u32 {t1}, {t1}, {TF}\nv_mov_b32 v69, {sTAG}')
        if fullflag:
            A(f's_mov_b32 exec_hi, 0\ns_waitcnt vmcnt({2 + len(tail_parts)})\nbuffer_store_dword v69, {vL4}, {WS}, {t1} offen sc1')
        else:
            A(f's_mov_b64 exec, 1\ns_waitcnt vmcnt({2 + len(tail_parts)})\nbuffer_store_dword v69, off, {WS}, {t1} sc1')
        full_exec()
        n4 = lab('n4')
        if not use_early:
            A(f'{l_}:')
            if mid_parts:
                A(f's_sleep {mid_sleep}')
                issue_ffn(-4, False, mid_parts); issue_ffn(0, False, mid_parts)
            A(f's_waitcnt vmcnt({2 * len(mid_parts)})')
            return
        A(f'{l_}:\ns_cmp_lg_u32 {sW}, 4\ns_cbranch_scc1 {n4}')
        flag_addr()
        A(f's_sleep {fearly}\nbuffer_load_dword v69, v68, {WS}, {t1} offen sc1\ns_waitcnt vmcnt(0)\nv_cmp_ne_u32 vcc, {sTAG}, v69\ns_cbranch_vccnz {n4}')
        A(f's_mov_b32 {sCNT}, 1\nv_mov_b32 v68, {L_FL}\nv_mov_b32 v69, 1\nds_write_b32 v68, v69\n{n4}:')
    if share:
        inloop[0] = True
        A('L_merge:')
        combine(None, first_only(clean_first))
    else: combine(True, clean_first)
    stamp(True)

    if prio:
        l_ = lab('pr'); A(f's_cmp_ge_u32 {sW}, 4\ns_cbranch_scc1 {l_}\ns_setprio 1\n{l_}:')
    A('L_layer:'); inloop[0] = True
    def proj_body(nk, vb, boff, xoff, late_w=None, tagged=False):
        for j in range(nk): A(f'ds_read_b128 v[{64+4*j}:{67+4*j}], {vb} offset:{boff+64*j}')
        if late_w: late_w()
        for j in range(nk):
            if not late_w: A(f's_waitcnt lgkmcnt({nk-1-j})')
            elif j == 0: A('s_waitcnt lgkmcnt(0)')
            c = '0' if j == 0 else 'v[96:99]'
            A(f'{M16} v[96:99], v[{48+4*j}:{51+4*j}], v[{64+4*j}:{67+4*j}], {c}')
        if tagged:
            A(f'v_mov_b32 v102, {sTAG}\nv_mov_b32 v103, {sTAG}\nv_cvt_pk_bf16_f32 v100, v96, v97\nv_cvt_pk_bf16_f32 v101, v98, v99')
            A(f'buffer_store_dwordx4 v[100:103], v47, {WS}, 0 offen sc1')
            if diag2: xstamp(52)
        else:
            A(f's_add_u32 {t1}, {sXst}, {xoff}')
            A('v_cvt_pk_bf16_f32 v96, v96, v97\nv_cvt_pk_bf16_f32 v97, v98, v99')
            A(f'buffer_store_dwordx2 v[96:97], {vXst}, {WS}, {t1} offen sc1')
    def proj_out(nk, vb, boff, xoff, first=None):
        sk, dl = lab('sk'), lab('dl')
        A(f's_cmp_ge_u32 {sW}, 4\ns_cbranch_scc1 {sk}')
        if first: variant(first, lambda: proj_body(nk, vb, boff, xoff))
        else: proj_body(nk, vb, boff, xoff)
        return sk, dl
    def g_wait(sk, dl, pre, busy_first=False, hi_pre=None, lo_d=None, hi_d=None, extra0=0):
        pre()
        A(f's_sleep {lo_d or gdelay}')
        A(f's_branch {dl}\n{sk}:')
        if hi_pre: hi_pre()
        A(f's_sleep {hi_d or gdelay_hi}')
        A(f'{dl}:')
        if extra0: first_only(lambda: A(f's_sleep {extra0}'))()
    def reduce_x(xoff, final, first=None):
        def normal():
            A(f's_add_u32 {t0}, {sXg}, {xoff}')
            sp = lambda b: A(f'{M16} v[96:99], {SELA}, v[{b}:{b+3}], 0\n{M16} v[96:99], {SELA}, v[{b+4}:{b+7}], v[96:99]')
            if not dual & 16:
                poll(lambda: issue_g1(64, vXg, t0, 'x', 8192), range(64, 72), lambda: sp(64))
                return
            d, tl, lp = lab('got'), lab('again'), lab('lp')
            issue_g1(64, vXg, t0, 'x', 8192); A.wait_vm()
            sp(64); check_empty(range(64, 72))
            A(f's_cbranch_vccnz {tl}\n{d}:')
            keepL, A.L = A.L, []
            A(f'{tl}:'); issue_g1(64, vXg, t0, 'x', 8192)
            A(f's_sleep {dstep}\n{lp}:'); issue_g1(72, vXg, t0, 'x', 8192)
            A('s_waitcnt vmcnt(2)'); sp(64); check_empty(range(64, 72))
            A(f's_nop 1\ns_cbranch_vccz {d}'); issue_g1(64, vXg, t0, 'x', 8192)
            A('s_waitcnt vmcnt(2)'); sp(72); check_empty(range(72, 80))
            A(f's_nop 1\ns_cbranch_vccz {d}\ns_sub_u32 {sTO}, {sTO}, 1\ns_cbranch_scc0 {lp}\ns_mov_b32 {sTO}, 0\ns_branch {d}')
            tails.append('\n'.join(A.L)); A.L = keepL
            A.vm = []
        if first: variant(first, normal)
        else: normal()
        stamp()
        A(f'v_add_f32_dpp v96, v96, v96 row_ror:4 {DPP}\nv_add_f32_dpp v97, v97, v97 row_ror:4 {DPP}')
        if final: A(f's_cmp_eq_u32 {sLIDX}, 1')
        A(f'v_add_f32_dpp v96, v96, v96 row_ror:8 {DPP}\nv_add_f32_dpp v97, v97, v97 row_ror:8 {DPP}')
        A(f'v_pk_add_f32 {XRES}, {XRES}, v[96:97]\ns_mov_b64 exec, {sM4}\nv_cvt_pk_bf16_f32 v96, v112, v113')
        if final: A(f's_cbranch_scc1 L_out')
        A(f'ds_write_b32 {vXW}, v96')
        full_exec()
        A('s_waitcnt lgkmcnt(0)\ns_barrier')
    def issue_o():
        issue_g1(64, vG1, sOg, 'o')
        A.vmop(f'buffer_load_dwordx2 v[72:73], {vML2}, {WS}, {sMLg} offen sc1', 'o')
        A.vmop(f'buffer_load_dwordx2 v[74:75], {vML2}, {WS}, {sMLg} offen offset:32 sc1', 'o')
    def wo_weights(ma, la, mb, lb, selreg, mm, _=None):
        A(f'v_max_f32 v76, v{ma}, v{mb}\nv_mov_b32 v77, v76\nv_permlane16_swap_b32 v76, v77\nv_max_f32 v76, v76, v77')
        A('v_mov_b32 v77, v76\nv_permlane32_swap_b32 v76, v77\nv_max_f32 v76, v76, v77')
        A(f'v_sub_f32 v{ma}, v{ma}, v76\nv_sub_f32 v{mb}, v{mb}, v76\nv_exp_f32 v{ma}, v{ma}\nv_exp_f32 v{mb}, v{mb}')
        A(f'v_cvt_pk_bf16_f32 v{ma}, v{ma}, v{ma}\nv_cvt_pk_bf16_f32 v{mb}, v{mb}, v{mb}')
        for i in range(4): A(f'v_and_b32 v{selreg+i}, v{MASK+i}, v{ma}')
        for i in range(4): A(f'v_and_b32 v{selreg+4+i}, v{MASK+i}, v{mb}')
        mm()
        A(f'v_and_b32 v{ma}, 0xffff0000, v{ma}\nv_and_b32 v{mb}, 0xffff0000, v{mb}\nv_mul_f32 v79, v{la}, v{ma}\nv_fmac_f32 v79, v{lb}, v{mb}')
        A('v_mov_b32 v77, v79\nv_permlane16_swap_b32 v79, v77\nv_add_f32 v79, v79, v77')
        A('v_mov_b32 v77, v79\nv_permlane32_swap_b32 v79, v77\nv_add_f32 v79, v79, v77\nv_rcp_f32 v78, v79')
    def wo_later():
        read_wo()
        if ldelay: A(f's_sleep {ldelay}')
        if dual & 4:
            def iss(k):
                b = (64, 100)[k]
                issue_g1(b, vG1, sOg, 'o')
                A.vmop(f'buffer_load_dwordx2 v[{b+8}:{b+9}], {vML2}, {WS}, {sMLg} offen sc1', 'o')
                A.vmop(f'buffer_load_dwordx2 v[{b+10}:{b+11}], {vML2}, {WS}, {sMLg} offen offset:32 sc1', 'o')
            d, sb, sa, j2 = lab('got'), lab('setb'), lab('seta'), lab('j2')
            iss(0)
            if dstep: A(f's_sleep {dstep}')
            iss(1)
            A(f'{sa}:\ns_waitcnt vmcnt(4)')
            check_empty(range(64, 76))
            A(f's_cbranch_vccnz {sb}\n{d}:')
            stamp()
            wo_weights(72, 73, 74, 75, 80, lambda: A(f'{M16} v[96:99], v[80:83], v[64:67], 0\n{M16} v[96:99], v[84:87], v[68:71], v[96:99]'), 76)
            A(f'{j2}:')
            keepL, A.L = A.L, []
            A(f'{sb}:'); iss(0)
            A('s_waitcnt vmcnt(4)')
            check_empty(range(100, 112))
            g2_ = lab('g2')
            A(f's_cbranch_vccz {g2_}')
            iss(1)
            A(f's_sub_u32 {sTO}, {sTO}, 1\ns_cbranch_scc0 {sa}\ns_mov_b32 {sTO}, 0\ns_branch {d}\n{g2_}:')
            nts[0] -= 1 if ts else 0; stamp()
            wo_weights(108, 109, 110, 111, 80, lambda: A(f'{M16} v[96:99], v[80:83], v[100:103], 0\n{M16} v[96:99], v[84:87], v[104:107], v[96:99]'), 76)
            A(f's_branch {j2}')
            tails.append('\n'.join(A.L)); A.L = keepL
            A.vm = []
            return
        poll(issue_o, range(64, 76))
        stamp()
        wo_weights(72, 73, 74, 75, 80, lambda: A(f'{M16} v[96:99], v[80:83], v[64:67], 0\n{M16} v[96:99], v[84:87], v[68:71], v[96:99]'))
    def wo_first():
        if not dual & 8:
            tagged_poll(issue_o0, (82, 86, 90, 94, 66, 70))
            stamp()
            wo_weights(64, 65, 68, 69, 100, lambda: tagged_sum(100, 80, 96, 4))
            return
        sets = ((80, 64), (48, 100))
        def iss(k):
            o0dst[0], o0ml[0] = sets[k]; issue_o0()
        def chk(k):
            a_, m_ = sets[k]; check_tags((a_ + 2, a_ + 6, a_ + 10, a_ + 14, m_ + 2, m_ + 6))
        def fin(k):
            a_, m_ = sets[k]; wo_weights(m_, m_ + 1, m_ + 4, m_ + 5, 116, lambda: tagged_sum(116, a_, 96, 4))
        lp, ga, gb, en = lab('lp'), lab('ga'), lab('gb'), lab('en')
        iss(0); A(f's_sleep {dstep}\n{lp}:'); iss(1)
        A('s_waitcnt vmcnt(6)'); chk(0); A(f's_cbranch_vccz {ga}')
        iss(0); A('s_waitcnt vmcnt(6)'); chk(1); A(f's_cbranch_vccz {gb}')
        A(f's_sub_u32 {sTO}, {sTO}, 1\ns_cbranch_scc0 {lp}\ns_mov_b32 {sTO}, 0\n{gb}:')
        stamp(); fin(1); A(f's_branch {en}\n{ga}:')
        nts[0] -= 1 if ts else 0; stamp(); fin(0); A(f'{en}:')
        A.vm = []
    with lowwaves():
        variant(wo_first, wo_later)
        A('v_pk_mul_f32 v[96:97], v[96:97], v[78:79] op_sel_hi:[1,0]\nv_cvt_pk_bf16_f32 v96, v96, v97')
        A(f'ds_write_b32 {vQW}, v96 offset:{L_OS-L_QS}\ns_waitcnt vmcnt(0)')
    A(f's_waitcnt lgkmcnt(0)\ns_barrier')
    sk, dl = proj_out(4, vBR320, L_OS - L_QS, 0, lambda: proj_body(4, vBR320, L_OS - L_QS, 0, read_wo))
    leave_ = [None]
    def touch_lines(bases, r=80):
        for sb, off in bases:
            A(f's_add_u32 {t0}, {sb}, {off}\ns_add_u32 {t1}, {t0}, 4096')
            A(f'buffer_load_dwordx4 v[{r}:{r+3}], {vG1}, {WS}, {t0} offen sc1\nbuffer_load_dwordx4 v[{r+4}:{r+7}], {vG1}, {WS}, {t1} offen sc1')
    def touch_small(bases, r=88):
        for sb, off in bases:
            A(f's_add_u32 {t0}, {sb}, {off}\nbuffer_load_dwordx2 v[{r}:{r+1}], {vSt8}, {WS}, {t0} offen sc1')
    def watch_flags():
        l_, r_, d_ = lab('w4'), lab('fr'), lab('fd')
        A(f's_cmp_lg_u32 {sW}, 4\ns_cbranch_scc1 {l_}\ns_cmp_eq_u32 {sCNT}, 1\ns_cbranch_scc1 {l_}')
        flag_addr()
        if fdelay: A(f's_sleep {fdelay}')
        e_ = lab('fe')
        A(f'buffer_load_dword v69, v68, {WS}, {t1} offen sc1\ns_waitcnt vmcnt(0)\nv_cmp_ne_u32 vcc, {sTAG}, v69\ns_cbranch_vccz {d_}')
        A(f'{r_}:\ns_sleep {fback}\nbuffer_load_dword v69, v68, {WS}, {t1} offen sc1\ns_waitcnt vmcnt(0)\nv_cmp_ne_u32 vcc, {sTAG}, v69\ns_cbranch_vccz {e_}')
        A(f's_sub_u32 {sTO}, {sTO}, 1\ns_cbranch_scc0 {r_}\ns_mov_b32 {sTO}, 0\n{e_}:')
        if flate: A(f's_sleep {flate}')
        A(f'{d_}:')
        A(f'v_mov_b32 v68, {L_FL}\nv_mov_b32 v69, 1\nds_write_b32 v68, v69')
        A(f's_branch {after_sleep[0]}\n{l_}:')
    def await_flags():
        r_, d_ = lab('ar'), lab('ad')
        A(f'v_mov_b32 v68, {L_FL}\n{r_}:\nds_read_b32 v69, v68\ns_waitcnt lgkmcnt(0)\nv_cmp_eq_u32 vcc, 1, v69\ns_cbranch_vccnz {d_}')
        A(f's_sleep 1\ns_sub_u32 {sTO}, {sTO}, 1\ns_cbranch_scc0 {r_}\ns_mov_b32 {sTO}, 0\n{d_}:')
        if touch_g:
            with lowwaves(): touch_lines([(sGg, 0)])
    after_sleep = [None]
    def hi_xa():
        def w567():
            l_ = lab('f5'); A(f's_cmp_eq_u32 {sW}, 4\ns_cbranch_scc1 {l_}\ns_sleep {fdelay + 2}')
            for dw in (-5, -2, 1):
                k_ = lab('fs')
                if dw == 1: A(f's_cmp_eq_u32 {sW}, 7\ns_cbranch_scc1 {k_}')
                issue_ffn_any(dw)
                A(f'{k_}:')
            A(f'{l_}:')
        if ffn_by_hi and flag_first: first_only(lambda: (w567(), clean_rest(), watch_flags()))()
        elif ffn_by_hi: first_only(lambda: (issue_ffn(-4), issue_ffn(0), clean_rest(), watch_flags()))()
        else: first_only(lambda: (clean_rest(), watch_flags()))()
        if touch1 & 1: first_only(lambda: (touch_lines([(sQg, 0), (sOg, LS)]), touch_small([(sQSg, 0), (sMLg, LS)])))()
        if touch1 & 2: later_only(lambda: (touch_lines([(sGg, 0)]), touch_small([(sGSg, 0)])))
    def hi_xb():
        leave_[0]()
        if touch_att:
            first_only(lambda: (touch_lines([(sQg, 0)]), touch_small([(sQSg, 0)])))()
            return
        if touch1 & 4: first_only(lambda: (touch_lines([(sGg, LS)]), touch_small([(sGSg, LS)])))()
        if touch1 & 8: first_only(lambda: (touch_lines([(sQg, 0), (sOg, LS)]), touch_small([(sQSg, 0), (sMLg, LS)])))()
    after_sleep[0] = dl
    late_gu = 'g' not in tail_parts
    g_wait(sk, dl, (lambda: later_only(read_gu)) if late_gu else read_gu, False, hi_xa, extra0=xa0)
    first_only(await_flags)()
    stamp()
    reduce_x(0, False)
    def issue_gp(first):
        issue_g1(64, vG1, sGg, 'g')
        A.vmop(f'buffer_load_dwordx2 v[72:73], {vSt8}, {WS}, {sGSg} offen sc1', 'g')
        if first:
            A(f'v_and_b32 {vTMP}, 0xf0, {vG1}\nv_and_b32 {vTMP2}, 0xc00, {vG1}\nv_lshrrev_b32 {vTMP2}, 2, {vTMP2}\nv_or_b32 {vTMP}, {vTMP}, {vTMP2}')
            issue_g1(80, vTMP, sGCg, 'g', 1024)
    def ffn_gather(first):
        def f():
            if ldelay and not first: A(f's_sleep {ldelay}')
            if dual & 32 and first:
                sets = ((64, 80), (102, 116))
                A(f'v_and_b32 v114, 0xf0, {vG1}\nv_and_b32 {vTMP2}, 0xc00, {vG1}\nv_lshrrev_b32 {vTMP2}, 2, {vTMP2}\nv_or_b32 v114, v114, {vTMP2}')
                def iss(k):
                    a_, c_ = sets[k]
                    issue_g1(a_, vG1, sGg, 'x')
                    A.vmop(f'buffer_load_dwordx2 v[{a_+8}:{a_+9}], {vSt8}, {WS}, {sGSg} offen sc1', 'x')
                    issue_g1(c_, 'v114', sGCg, 'x', 1024)
                def spec(k):
                    a_, c_ = sets[k]
                    A(f'{M16} v[96:99], {SELG}, v[{a_}:{a_+3}], 0\n{M16} v[96:99], {SELG}, v[{a_+4}:{a_+7}], v[96:99]')
                    A(f'{M16} v[88:91], {SELG}, v[{c_}:{c_+3}], 0\n{M16} v[88:91], {SELG}, v[{c_+4}:{c_+7}], v[88:91]')
                    A(f'v_add_f32_dpp v78, v{a_+8}, v{a_+8} quad_perm:[1,0,3,2] {DPP}\nv_add_f32_dpp v79, v{a_+9}, v{a_+9} quad_perm:[1,0,3,2] {DPP}')
                poll2(iss, 5, lambda k: list(range(sets[k][0], sets[k][0] + 10)) + list(range(sets[k][1], sets[k][1] + 8)), spec)
                ln_finish(CSG, 1.0, True, 88)
                return
            if dual & 2 and not first: ln_poll2(sGg, sGSg, SELG)
            else: poll(lambda: issue_gp(first), QREGS1 if first else QREGS, ln_spec(SELG, first))
            ln_finish(CSG, 1.0, first)
        return f
    with lowwaves(lambda: slice_stats(sGSst)):
        matvec(vGst, 'plain', first_only(read_gu) if late_gu else None, sLAY)
        stamp()
        read_wd()
        variant(ffn_gather(True), ffn_gather(False))
        stamp()
        A('v_cvt_pk_bf16_f32 v96, v96, v97\nv_and_b32 v97, 0xffff0000, v96\nv_lshlrev_b32 v96, 16, v96\nv_max_f32 v96, 0, v96\nv_mul_f32 v96, v96, v97\nv_cvt_pk_bf16_f32 v96, v96, v96')
        A(f'ds_write_b16 {vHW}, v96')
    A('s_waitcnt vmcnt(0) lgkmcnt(0)\ns_barrier')
    sk, dl = proj_out(2, vBR192, 0, oXB - oXA)
    def leave():
        no = lab('no')
        A(f's_cmp_eq_u32 {sLIDX}, 0\ns_cbranch_scc1 {no}\ns_cmp_lg_u32 {sHI}, 0\ns_cbranch_scc1 L_fin\ns_cmp_lg_u32 {sG}, {sLO}\ns_cbranch_scc1 L_fin\n{no}:')
    def pre_q():
        leave()
        read_wq()
    leave_[0] = leave
    g_wait(sk, dl, pre_q, False, hi_xb, gd_b, gdh_b, xb0)
    stamp()
    reduce_x(oXB - oXA, True)
    keep = nts[0]; nts[0] -= 11
    def advance():
        A(f's_mov_b32 {sLIDX}, 1\ns_mov_b32 {sLAY}, {LS}')
        for s in (sOg, sGg, sMLg, sGSg, sXg, sOPst, sMLst, sXst, sGSst):
            A(f's_add_u32 {s}, {s}, {LS}')
    with lowwaves(lambda: (slice_stats(sQSst), advance())):
        matvec(vQst, 'plain')
        advance()
        stamp()
        if ldelay: A(f's_sleep {ldelay}')
        if dual & 1: ln_poll2(sQg, sQSg, SELA)
        else: poll(lambda: issue_q(False), QREGS, ln_spec(SELA, False))
        stamp()
        q_finish(False)
    if share:
        A('; ---- scores, row maximum, exp2, row sum (shared by both layers), P V')
        A('s_waitcnt vmcnt(0) lgkmcnt(0)\ns_barrier')
        if touch_att:
            with lowwaves(lambda: (touch_lines([(sOg, 0), (sGg, 0)], 48), touch_small([(sMLg, 0), (sGSg, 0)], 56))): pass
        A('L_scores:')
        scores(False)
        A(f's_cmp_eq_u32 {sLIDX}, 0\ns_cbranch_scc1 L_scored')
    else: scores()
    for i in range(16):
        pv(i)
        if i == 5: lsum()
    stamp()
    if share: A('s_branch L_merge')
    else:
        combine()
        stamp()
        A('s_branch L_layer')
    nts[0] = keep
    A('L_out:')
    A(f'buffer_store_dword v96, {vXO}, {OUT}, 0 offen')
    A(f's_or_b32 {t1}, s2, {sW}\ns_cmp_lg_u32 {t1}, 0\ns_cbranch_scc1 L_fin0')
    A(f's_mov_b64 exec, 1\nv_mov_b32 v97, {sTAG}\ns_mov_b32 {t2}, {EPOCH}\nbuffer_store_dword v97, off, {WS}, {t2} sc1')
    A('L_fin0:')
    full_exec()
    A('L_fin:')
    if padto:
        A(f'L_pad:\ns_memrealtime s[94:95]\ns_waitcnt lgkmcnt(0)\ns_sub_u32 s94, s94, s98\ns_cmp_lt_u32 s94, {padto}\ns_cbranch_scc1 L_pad')
    if ts:
        stamp(True)
        A(f's_memtime s[94:95]\ns_waitcnt lgkmcnt(0)\ns_sub_u32 s94, s94, s98\nv_writelane_b32 {vTS}, s94, 63')
        A(f's_add_u32 s96, s96, 0x10000000\ns_addc_u32 s97, s97, 0\ns_lshl_b32 {t1}, s2, 11\nv_add_u32 v64, {t1}, {vT4}\nglobal_store_dword v64, {vTS}, s[96:97]')
        if dbgts:
            A(f's_or_b32 {t1}, s2, {sW}\ns_cmp_lg_u32 {t1}, 0\ns_cbranch_scc1 L_end')
            A(f'v_readlane_b32 {t1}, {vTS}, 0\nv_subrev_u32 v64, {t1}, {vTS}\nv_and_b32 v64, 0xffff, v64')
            A(f'v_mov_b32_dpp v65, v64 quad_perm:[1,1,3,3] {DPP}\nv_lshl_or_b32 v64, v65, 16, v64\nv_lshlrev_b32 v65, 1, {vL}')
            A(f's_mov_b32 exec_lo, 0x55555555\ns_mov_b32 exec_hi, 0\nbuffer_store_dword v64, v65, {DBG}, 0 offen sc1')
    A('s_endpgm')
    for t_ in tails: A(t_)
    A('L_end:\ns_endpgm')
    A(f'.section .rodata,"a"\n.p2align 6\n.amdhsa_kernel {NAME}_kernel')
    A('.amdhsa_next_free_vgpr 256\n.amdhsa_next_free_sgpr 102\n.amdhsa_accum_offset 128\n.amdhsa_group_segment_fixed_size 0\n.amdhsa_kernarg_size 96\n.amdhsa_user_sgpr_count 2\n.amdhsa_user_sgpr_kernarg_segment_ptr 1\n.amdhsa_system_sgpr_workgroup_id_x 1\n.end_amdhsa_kernel')
    txt, probs = A.text()
    for p in probs: print('HAZARD', p, file=sys.stderr)
    return txt, nts[0]

if __name__ == '__main__':
    out = sys.argv[1]
    kw = {}
    for a in sys.argv[2:]:
        k, v = a.split('='); kw[k] = eval(v)
    txt, n = build(**kw)
    open(out, 'w').write(txt)
    print('stamps', n, 'lines', txt.count('\n'))
```

```python
import sys, math, struct
sys.path.insert(0, 'gen')
from asmlib import Asm

NAME = "interleave_layers__sliding_block_cached__glu_gated_reglu__decode"

bQP, bQS, bOP, bML, bGP, bGS, bGC, GB = 0x0, 0x8000, 0x8400, 0x10400, 0x10800, 0x18800, 0x18C00, 0x1AC00
oXA, oXB, LS = 8 * GB, 8 * GB + 0x20000, 8 * GB + 0x40000
TQP, TQC, TOP, TML, TF, EPOCH = 0x240000, 0x2C0000, 0x2E0000, 0x360000, 0x364000, 0x36C000
WS_REC = 0x36C100
OOB = 0x7FFF0000
L_RING, L_WQ, L_WO, L_WG, L_WU, L_WD = 0, 65536, 81920, 98304, 106496, 114688
L_QS, L_OS, L_HS, L_XS, L_RM, L_ST = 122880, 124160, 125440, 126208, 127168, 127424
L_FL = L_ST + 16
LDS_BYTES = 127488

def f32(x): return '0x%08x' % struct.unpack('<I', struct.pack('<f', x))[0]
QSCALE = 128 ** -0.5 * math.log2(math.e)

sW, sG, sC, sHI, sLO = 's3', 's4', 's5', 's6', 's7'
WS, KK, VV, WQ, WO, WG, WU, WD, XX, OUT, DBG = [f's[{i}:{i+3}]' for i in range(8, 52, 4)]
sKV, sRING, t0, t1, t2, t3 = 's52', 's53', 's54', 's55', 's56', 's57'
sLAY, sTO, sFAST, sCNT, sGOK, sLIDX = 's58', 's59', 's60', 's61', 's62', 's63'
sQg, sOg, sGg, sQSg, sMLg, sGSg, sXg, sGBASE, sGCg = ['s%d' % i for i in range(66, 75)]
sOPst, sMLst, sXst, sQSst, sGSst = ['s%d' % i for i in range(75, 80)]
g0, g1, g2, g3 = 's90', 's91', 's92', 's93'
vL, vT4, vSt8, vXg, vQst, vGst, vSSt, vG1, vXst, vQW, vBR320, vHW, vBR192, vXR, vXW, vL4 = ['v%d' % i for i in range(16)]
vROW, vROR, vRMW, vRMR, vWQr, vWr, vWOr, vXO = ['v%d' % i for i in range(16, 24)]
CSQ, CSG = 'v[24:25]', 'v[26:27]'
vTS, vML2, vTMP, vTMP2 = 'v28', 'v29', 'v30', 'v31'
SELA, MASK, SELG, ONES = 'v[32:35]', 36, 'v[40:43]', 'v[44:45]'
vMLst = 'v46'
XRES = 'v[112:113]'
sM4 = 's[88:89]'
sTAG = 's100'
DPP = 'row_mask:0xf bank_mask:0xf'
M16 = 'v_mfma_f32_16x16x32_bf16'

HEADER = r'''
;
;
;   - first q and first attention exchange: 16-byte granules {4 x bf16, tag, ..}; tag = (word found at ws+EPOCH) + 1,
;   Stores that are only read inside the group are plain when every member reported the same XCC id, write-through
'''

def build(ts=False, gdelay=12, gdelay_hi=18, pf_code=True, rides=(16, 21), w_at='land31', ldelay=0, bar_after_k0=False, fride=26, ffn_hi=False, touch_o=0, touch_g=0, ffn_sleep=0, clean3_xa=0, tlb=0, diag2=0, ffn_at=0, fdelay=1, fback=4, wo_at=0, csq_o=0, touch1=12, wt_at=29, csq_at=25, xa0=0, xb0=4, cl_at=29, tail_parts='d', lo0=12, hi0=15, hi4=4, wd_after=0, wd_behind=0, rest_at='xa', fearly=10, use_early=0, fullflag=1, flag_first=0, jitter=0, mid_parts='', mid_sleep=8, touch_att=1, p_sc=26, kpol='nt', vpol='nt', wb=0, out_sc1=0, dual=15, dstep=3, pf_few=0, pf_late=0, flate=0, share=1, gd_b=11, gdh_b=15, ffn_by_hi=1, tmajor=1, prio=0, padto=0, warm_x=1, warm_at=0, wd_late=0, xback=0, deep_from=24, depth=5, deep=7, diag=0, noclean=0, burst=4, late47=0, abl='', backoff=0, cl_sc1=1, dbgts=0, wsoff=0):
    A = Asm()
    uid = [0]
    def lab(p):
        uid[0] += 1; return f'L_{p}_{uid[0]}'
    nts = [0]; inloop = [False]
    def stamp(key=False):
        if jitter:
            l_ = lab('jt')
            A(f's_memtime s[94:95]\ns_waitcnt lgkmcnt(0)\ns_mul_i32 s94, s94, 0x9e3779b1\ns_xor_b32 s94, s94, s2\ns_mul_i32 s94, s94, 0x85ebca6b\ns_lshr_b32 s94, s94, {32 - jitter}')
            A(f's_cmp_lg_u32 s94, 0\ns_cbranch_scc1 {l_}\ns_sleep 100\n{l_}:')
        if not ts: return
        if ts == 2 and not key:
            nts[0] += 1; return
        if inloop[0]:
            A(f's_memrealtime s[94:95]\ns_mul_i32 m0, {sLIDX}, 11\ns_add_u32 m0, m0, {nts[0]}\ns_waitcnt lgkmcnt(0)\nv_writelane_b32 {vTS}, s94, m0')
        else:
            A(f's_memrealtime s[94:95]\ns_waitcnt lgkmcnt(0)\nv_writelane_b32 {vTS}, s94, {nts[0]}')
        nts[0] += 1
    def xstamp(i):
        A(f's_memrealtime s[94:95]\ns_waitcnt lgkmcnt(0)\nv_writelane_b32 {vTS}, s94, {i}')
    def set_exec(lo, hi=None):
        hi = lo if hi is None else hi
        A(f's_mov_b32 exec_lo, {lo:#x}\ns_mov_b32 exec_hi, {hi:#x}')
    def full_exec(): A('s_mov_b64 exec, -1')
    tails = []
    def lstore(fmt, tag='st', nxt=None, cmp=True):
        a, b = lab('wt'), lab('sd')
        for f_ in fmt.split('\n'): A((';;need2 ' if cmp else ';;need1 ') + f_)
        if cmp: A(f's_cmp_eq_u32 {sFAST}, 1')
        A(f's_cbranch_scc0 {a}')
        A(fmt); A(f'{b}:')
        tails.append(f'{a}:\n' + '\n'.join(f_ + ' sc1' for f_ in fmt.split('\n')) + f'\ns_branch {b}')
        A.vm.append(tag)
    class lowwaves:
        def __init__(s, other=None): s.other = other
        def __enter__(s):
            s.l = lab('hi'); s.o = lab('up') if s.other else s.l
            A(f's_cmp_ge_u32 {sW}, 4\ns_cbranch_scc1 {s.o}')
        def __exit__(s, *a):
            A(f'{s.l}:')
            if s.other:
                keepL, A.L = A.L, []
                A(f'{s.o}:'); s.other(); A(f's_branch {s.l}')
                tails.append('\n'.join(A.L)); A.L = keepL
    def sel(dst, a, b):
        A(f'v_cndmask_b32 {dst}, {a}, {b}, vcc')

    A(f'; @launch grid=(256,1,1) block=(512,1,1) lds={LDS_BYTES}')
    for l_ in HEADER.strip('\n').split('\n'): A.L.append(l_)
    A('.amdgcn_target "amdgcn-amd-amdhsa--gfx950"')
    A(f'.text\n.globl {NAME}_kernel\n.p2align 8\n.type {NAME}_kernel,@function\n{NAME}_kernel:')
    A('s_cmp_ge_u32 s2, 256\ns_cbranch_scc1 L_end')
    A('s_load_dwordx16 s[64:79], s[0:1], 0\ns_load_dwordx8 s[80:87], s[0:1], 64')
    if padto: A('s_memrealtime s[98:99]')
    if diag: A('s_memrealtime s[96:97]')
    A(f'v_lshlrev_b32 {vT4}, 2, v0')
    def prefetch_code():
        if pf_few: A(f's_cmp_ge_u32 s2, {8 * pf_few}\ns_cbranch_scc1 L_nopf')
        A(f's_getpc_b64 s[94:95]\nL_pc:\ns_sub_u32 s94, s94, L_pc-{NAME}_kernel\ns_subb_u32 s95, s95, 0\ns_lshr_b32 s93, s2, 3\ns_and_b32 s93, s93, 1\ns_lshl_b32 s93, s93, 13\nv_lshlrev_b32 {vTMP}, 2, {vT4}\nv_add_u32 {vTMP}, s93, {vTMP}')
        A(f'v_min_u32 {vTMP}, L_end-{NAME}_kernel-16, {vTMP}')
        A(f'global_load_dwordx4 v[96:99], {vTMP}, s[94:95]')
        if pf_few: A('L_nopf:')
        else: A.vm.append('pf')
    if pf_code and not pf_late: prefetch_code()
    A(f'v_lshrrev_b32 {vTMP}, 6, v0')
    A(f'v_and_b32 {vL}, 63, v0')
    A(f'v_readfirstlane_b32 {sW}, {vTMP}')
    A(f's_and_b32 {sG}, s2, 7\ns_lshr_b32 {sC}, s2, 3\ns_lshr_b32 {sHI}, {sC}, 3\ns_and_b32 {sLO}, {sC}, 7')
    A(f'v_and_b32 v120, 15, {vL}\nv_lshrrev_b32 v121, 4, {vL}')
    A(f'v_lshlrev_b32 {vTMP}, 2, v121\nv_xor_b32 {vTMP}, v120, {vTMP}\nv_lshlrev_b32 {vTMP}, 4, {vTMP}\nv_lshl_add_u32 v116, v121, 8, {vTMP}\nv_lshl_add_u32 v124, v121, 13, {vTMP}')
    A(f'v_and_b32 v122, 3, {vL}\nv_lshrrev_b32 v123, 2, v120')
    A(f's_lshr_b32 {t0}, {sW}, 1\ns_lshl_b32 {t0}, {t0}, 10\ns_and_b32 {t1}, {sW}, 1\ns_lshl_b32 {t1}, {t1}, 6\ns_add_u32 {t0}, {t0}, {t1}\ns_lshl_b32 {t1}, {sLO}, 7\ns_add_u32 {t0}, {t0}, {t1}')
    A(f'v_lshlrev_b32 v117, 4, v122\nv_lshl_add_u32 v117, v121, 2, v117\nv_add_u32 {vXO}, {t0}, v117')
    A(f's_lshl_b32 {t0}, {sHI}, 3\ns_add_u32 {t0}, {t0}, {sG}\ns_lshl_b32 {sKV}, {t0}, 22\ns_lshl_b32 {t0}, {sLO}, 17\ns_add_u32 {sKV}, {sKV}, {t0}\ns_add_u32 {sKV}, {sKV}, {12288*256}')
    A(f's_add_u32 {t0}, {sG}, {sC}\ns_add_u32 {t0}, {t0}, {sW}\ns_and_b32 {t0}, {t0}, 7\ns_lshl_b32 {t0}, {t0}, 12\ns_add_u32 {sKV}, {sKV}, {t0}')
    A(f's_lshl_b32 {sRING}, {sW}, 13')
    A(f's_and_b32 {g3}, {sW}, 3')
    A(f's_lshl_b32 {t0}, {sG}, 2\ns_add_u32 {t0}, {t0}, {sHI}')
    A(f'v_mov_b32 v118, {OOB}')
    A(f's_mul_i32 s101, {sG}, {GB}')
    A(f's_lshl_b32 {t1}, {sLO}, 6\ns_lshl_b32 {t2}, {sW}, 3\ns_add_u32 {t1}, {t1}, {t2}\ns_lshl_b32 {t1}, {t1}, 13\ns_lshl_b32 {t2}, {sG}, 10\ns_add_u32 {t1}, {t1}, {t2}\ns_lshl_b32 {t2}, {sHI}, 8\ns_add_u32 {t1}, {t1}, {t2}')
    A(f's_lshl_b32 {t2}, {sW}, 11\ns_add_u32 m0, {t2}, {L_WQ}')
    if ts:
        A(f'v_mov_b32 {vTS}, 0')
        if diag: A(f's_mov_b32 s92, s96');
        stamp(True)
        if diag: A(f'v_writelane_b32 {vTS}, s96, 38')
        A(f's_memtime s[98:99]')
    A('s_waitcnt lgkmcnt(0)')
    if diag: xstamp(39)
    def srd(d, lo, n):
        A(f's_mov_b32 s{d}, s{lo}\ns_mov_b32 s{d+1}, s{lo+1}\ns_mov_b32 s{d+2}, {n}\ns_mov_b32 s{d+3}, 0x20000')
    srd(20, 70, 4194304)
    A.vmop(f'buffer_load_dwordx4 v124, {WQ}, {t1} offen nt lds', 'wq')
    A(f's_add_u32 {t1}, {t1}, 32768\ns_add_u32 m0, m0, 1024')
    srd(40, 64, 4096)
    A.vmop(f'buffer_load_dwordx4 v124, {WQ}, {t1} offen nt lds', 'wq')
    srd(8, 86, WS_REC)
    if wsoff: A(f's_add_u32 s8, s8, {wsoff}\ns_addc_u32 s9, s9, 0')
    A.vmop(f'buffer_load_dword v68, {vXO}, {XX}, 0 offen', 'x0')
    A(f's_lshr_b32 {t2}, {sW}, 1\ns_lshl_b32 {t2}, {t2}, 10\nv_lshlrev_b32 {vTMP}, 4, {vL}')
    A.vmop(f'buffer_load_dwordx4 v[72:75], {vTMP}, {XX}, {t2} offen', 'x0')
    A(f's_mov_b32 {t2}, {EPOCH}')
    A.vmop(f'buffer_load_dword v69, off, {WS}, {t2} sc1', 'ep')
    srd(12, 66, 0x8000000)
    def piece(p, setm0=False):
        t, q = (p % 16) // 4, p % 4
        if q == 0 or setm0:
            A(f's_add_u32 {g1}, {sKV}, {t*32768}\ns_add_u32 m0, {sRING}, {((p//4)&1)*4096}')
        src = 'v116'
        A.vmop(f'buffer_load_dwordx4 {src}, {KK if p < 16 else VV}, {g1} offen offset:{q*1024} {kpol if p < 16 else vpol} lds', f'p{p}')
    for p in range(burst): piece(p)
    if pf_code and pf_late:
        assert not pf_few
        A('s_mov_b32 s92, s93'); prefetch_code(); A('s_mov_b32 s93, s92')
    srd(16, 68, 0x8000000)
    if ts: A('s_mov_b32 s96, s86\ns_mov_b32 s97, s87')

    srd(24, 72, 4194304); srd(44, 82, 4096); srd(48, 84, 256)
    srd(28, 76, 1835008); srd(32, 78, 1835008); srd(36, 80, 1835008)
    A(f's_mul_i32 {t1}, {sG}, 3\ns_add_u32 {t1}, {t1}, 4\ns_lshl_b32 {t2}, {sG}, 2\ns_cmp_ge_u32 {sG}, 4\ns_cselect_b32 {g2}, {t1}, {t2}\ns_add_u32 {g2}, {g2}, {sHI}\ns_min_u32 {g2}, {g2}, 27')
    if tlb:
        A(f's_lshl_b32 {t1}, {t0}, 17')
        A.vmop(f'buffer_load_dword v96, off, {WO}, {t1} nt', 'tlb')
        A(f's_mul_i32 {t1}, {sLO}, {64*3584}')
        A.vmop(f'buffer_load_dword v96, off, {WG}, {t1} nt', 'tlb')
        A.vmop(f'buffer_load_dword v96, off, {WU}, {t1} nt', 'tlb')
        A(f's_lshl_b32 {t1}, {g2}, 16')
        A.vmop(f'buffer_load_dword v96, off, {WD}, {t1} nt', 'tlb')
        A(f'v_lshlrev_b32 {vTMP}, 19, v120')
        A.vmop(f'buffer_load_dword v96, {vTMP}, {WS}, 0 offen nt', 'tlb')
        A.vmop(f'buffer_load_dword v96, off, {VV}, {sKV} nt', 'tlb')
    A(f's_getreg_b32 {t1}, hwreg(HW_REG_XCC_ID)\ns_and_b32 s64, {t1}, 15')
    A(f's_mov_b32 s88, 0x000f000f\ns_mov_b32 s89, 0x000f000f')
    A(f's_mov_b32 {sGBASE}, s101')
    A(f's_lshl_b32 {t1}, {sHI}, 13\ns_add_u32 {t1}, {t1}, {sGBASE}')
    A(f's_add_u32 {sQg}, {t1}, {bQP + LS}\ns_add_u32 {sOg}, {t1}, {bOP}\ns_add_u32 {sGg}, {t1}, {bGP}')
    A(f's_lshl_b32 {t1}, {g3}, 2\ns_add_u32 {t1}, {t1}, {sHI}\ns_lshl_b32 {t1}, {t1}, 6\ns_add_u32 {t1}, {t1}, {sGBASE}\ns_add_u32 {sQSg}, {t1}, {bQS + LS}')
    A(f's_lshl_b32 {sMLst}, {sLO}, 3\ns_add_u32 {sMLst}, {sMLst}, {t1}\ns_add_u32 {sMLst}, {sMLst}, {bML}')
    A(f's_lshl_b32 {t2}, {g3}, 13\ns_lshl_b32 {t1}, {sLO}, 10\ns_add_u32 {t2}, {t2}, {t1}\ns_lshl_b32 {t1}, {sHI}, 8\ns_add_u32 {t2}, {t2}, {t1}\ns_add_u32 {t2}, {t2}, {sGBASE}\ns_add_u32 {sOPst}, {t2}, {bOP}')
    A(f's_lshl_b32 {t1}, {sHI}, 2\ns_add_u32 {t1}, {t1}, {g3}\ns_lshl_b32 {t1}, {t1}, 6\ns_add_u32 {t1}, {t1}, {sGBASE}\ns_add_u32 {sMLg}, {t1}, {bML}\ns_add_u32 {sGSg}, {t1}, {bGS}')
    A(f's_lshl_b32 {t1}, {sLO}, 14\ns_add_u32 {sXg}, {t1}, {oXA}')
    A(f's_lshl_b32 {t1}, {t0}, 9\ns_add_u32 {sXst}, {sXg}, {t1}')
    A(f's_lshl_b32 {t1}, {sHI}, 11\ns_add_u32 {t1}, {t1}, {sGBASE}\ns_add_u32 {sGCg}, {t1}, {bGC}')
    A(f's_lshl_b32 {t3}, {sHI}, 8\ns_lshl_b32 {t1}, {sLO}, 3\ns_add_u32 {t3}, {t3}, {t1}\ns_add_u32 {t3}, {t3}, {sGBASE}\ns_add_u32 {sQSst}, {t3}, {bQS + LS}\ns_add_u32 {sGSst}, {t3}, {bGS}')
    A(f's_lshl_b32 s101, {t0}, 14\ns_add_u32 s101, s101, {TQP}')
    A(f's_lshl_b32 {t1}, {sLO}, 10\ns_lshl_b32 {t2}, {sHI}, 8\ns_add_u32 {t1}, {t1}, {t2}\ns_lshl_b32 {t2}, {g3}, 6\ns_add_u32 {t3}, {t1}, {t2}')
    A(f's_add_u32 {t1}, {sGBASE}, {t3}\ns_add_u32 {t1}, {t1}, {LS}\ns_mov_b32 {t2}, {OOB}')
    A(f's_cmp_ge_u32 {sW}, 4\ns_cselect_b32 {g0}, 0, 5')
    def st_off(dst, shift):
        A(f'v_lshlrev_b32 {vTMP}, {shift}, v120\nv_add_u32 {vTMP}, {t1}, {vTMP}\nv_mov_b32 {vTMP2}, {t2}\nv_cmp_eq_u32 vcc, 4, v120'); sel(vTMP, vTMP, vTMP2)
        A(f'v_lshl_add_u32 {vTMP}, v121, 4, {vTMP}\nv_cmp_gt_u32 vcc, {g0}, v120'); sel(dst, 'v118', vTMP)
    st_off(vQst, 13)
    A(f's_lshl_b32 {t3}, {t3}, 1\ns_lshl_b32 {t1}, {g3}, 6\ns_sub_u32 {t3}, {t3}, {t1}\ns_lshl_b32 {t1}, {sG}, 16\ns_add_u32 {t1}, {t1}, {t3}\ns_add_u32 {t1}, {t1}, {TQP}\ns_lshl_b32 {t2}, {sG}, 14\ns_add_u32 {t2}, {t2}, {t3}\ns_add_u32 {t2}, {t2}, {TQC}')
    st_off('v109', 14)
    A(f'v_lshlrev_b32 {vTMP}, 6, v122\nv_add_u32 {vTMP2}, 4, {vTMP}\nv_cmp_gt_u32 vcc, 16, {vL}'); sel(vTMP, vTMP, vTMP2)
    A(f'v_and_b32 {vTMP2}, {0x1ec*4}, {vT4}\nv_cmp_eq_u32 vcc, {256*4}, {vTMP2}'); sel(vSSt, 'v118', vTMP)
    A(f'v_lshlrev_b32 v115, 2, {vT4}')
    A(f's_lshl_b32 {t1}, {sG}, 2\ns_add_u32 {t1}, {t1}, {g3}\ns_lshl_b32 {t1}, {t1}, 14\ns_lshl_b32 {t2}, {sLO}, 11\ns_add_u32 {t1}, {t1}, {t2}\ns_lshl_b32 {t2}, {sHI}, 9\ns_add_u32 {t1}, {t1}, {t2}\ns_add_u32 {t1}, {t1}, {TOP}')
    A(f'v_and_b32 {vTMP}, 2, {vL}\nv_lshlrev_b32 {vTMP}, 7, {vTMP}\nv_lshrrev_b32 {vTMP2}, 2, {vL}\nv_lshl_add_u32 {vTMP}, {vTMP2}, 4, {vTMP}\nv_add_u32 {vTMP}, {t1}, {vTMP}\nv_and_b32 {vTMP2}, 1, {vL}\nv_cmp_eq_u32 vcc, 0, {vTMP2}'); sel('v110', 'v118', vTMP)
    A(f's_mov_b32 {sLAY}, 0\ns_mov_b32 {sTO}, 400000\ns_mov_b32 {sFAST}, 0\ns_mov_b32 {sCNT}, 0\ns_mov_b32 {sGOK}, 0\ns_mov_b32 {sLIDX}, 0')
    A(f's_lshl_b32 {t3}, {g3}, 6\ns_lshl_b32 {t1}, {sLO}, 10\ns_add_u32 {t1}, {t1}, {sGg}\ns_add_u32 {t1}, {t1}, {t3}\ns_lshl_b32 {t2}, {sLO}, 8\ns_add_u32 {t2}, {t2}, {sGCg}\ns_add_u32 {t2}, {t2}, {t3}')
    st_off(vGst, 8)
    A(f'v_and_b32 {vTMP}, 7, {vL}\nv_lshlrev_b32 {vSt8}, 3, {vTMP}\nv_lshlrev_b32 {vL4}, 2, {vL}\nv_lshlrev_b32 {vML2}, 3, v121')
    A(f'v_cmp_eq_u32 vcc, 0, {vL}'); sel(vMLst, 'v118', '0')
    A(f's_lshl_b32 {t1}, {g3}, 8\nv_lshlrev_b32 {vTMP}, 4, v120\nv_lshl_add_u32 {vG1}, v121, 10, {vTMP}\nv_add_u32 {vG1}, {t1}, {vG1}')
    A(f's_lshl_b32 {t1}, {sW}, 6\nv_lshlrev_b32 {vXg}, 11, v123\nv_lshl_add_u32 {vXg}, v121, 9, {vXg}\nv_lshl_add_u32 {vXg}, v122, 4, {vXg}\nv_add_u32 {vXg}, {t1}, {vXg}')
    A(f's_lshr_b32 {t1}, {sW}, 1\ns_mul_i32 {t1}, {t1}, 192\ns_and_b32 {t2}, {sW}, 1\ns_lshl_b32 {t2}, {t2}, 6\ns_add_u32 {t1}, {t1}, {t2}\ns_add_u32 {t1}, {t1}, {L_XS}\nv_add_u32 {vXW}, {t1}, v117')
    A(f's_mul_i32 {t1}, {g3}, 320\ns_add_u32 {t1}, {t1}, {L_QS}\nv_lshl_add_u32 {vQW}, v121, 2, {vTMP}\nv_add_u32 {vQW}, {t1}, {vQW}')
    A(f's_mul_i32 {t1}, {g3}, 192\ns_add_u32 {t1}, {t1}, {L_HS}\nv_lshlrev_b32 {vHW}, 3, v120\nv_lshl_add_u32 {vHW}, v121, 1, {vHW}\nv_add_u32 {vHW}, {t1}, {vHW}')
    A(f'v_mul_u32_u24 {vBR320}, 320, v122\nv_lshl_add_u32 {vBR320}, v121, 4, {vBR320}\nv_add_u32 {vBR320}, {L_QS}, {vBR320}')
    A(f'v_mul_u32_u24 {vBR192}, 192, v122\nv_lshl_add_u32 {vBR192}, v121, 4, {vBR192}\nv_add_u32 {vBR192}, {L_HS}, {vBR192}')
    A(f'v_min_u32 {vTMP2}, 4, v120\nv_mul_u32_u24 {vXR}, 192, {vTMP2}\nv_lshl_add_u32 {vXR}, v121, 4, {vXR}\nv_add_u32 {vXR}, {L_XS}, {vXR}')
    A(f's_lshl_b32 {t1}, {g3}, 5\nv_lshlrev_b32 {vTMP2}, 7, v120\nv_lshl_add_u32 {vTMP2}, v121, 3, {vTMP2}\nv_add_u32 {vTMP2}, {t1}, {vTMP2}\nv_cmp_gt_u32 vcc, 4, v120'); sel(vXst, 'v118', vTMP2)
    A(f'v_lshlrev_b32 {vTMP2}, 4, {vL}\nv_add_u32 {vROW}, {sRING}, {vTMP2}')
    A(f's_lshr_b32 {t1}, {g3}, 1\ns_lshl_b32 {t1}, {t1}, 10\ns_and_b32 {t2}, {g3}, 1\ns_lshl_b32 {t2}, {t2}, 3\ns_add_u32 {t1}, {t1}, {t2}\nv_add_u32 {vROR}, {t1}, {vTMP2}')
    A(f's_lshl_b32 {t1}, {sW}, 3\ns_add_u32 {t1}, {t1}, {L_RM}\nv_lshlrev_b32 {vRMW}, 6, v122\nv_add_u32 {vRMW}, {t1}, {vRMW}')
    A(f's_lshl_b32 {t1}, {g3}, 6\ns_add_u32 {t1}, {t1}, {L_RM}\nv_add_u32 {vRMR}, {t1}, {vSt8}')
    A(f'v_lshl_add_u32 v125, v121, 3, v123')
    A(f'v_xor_b32 {vTMP}, {g3}, v123\nv_lshlrev_b32 {vTMP}, 6, {vTMP}\nv_lshl_add_u32 {vTMP}, v122, 4, {vTMP}\nv_lshl_add_u32 {vWQr}, v125, 8, {vTMP}\nv_add_u32 {vWQr}, {L_WQ}, {vWQr}')
    A(f'v_lshrrev_b32 v119, 1, v123\nv_and_b32 v127, 1, v121\nv_lshlrev_b32 {vTMP}, 1, v127')
    A(f'v_xor_b32 {vTMP}, {g3}, {vTMP}\nv_lshlrev_b32 {vTMP}, 5, {vTMP}\nv_lshl_add_u32 {vTMP}, v122, 3, {vTMP}\nv_lshl_add_u32 {vWr}, v125, 7, {vTMP}\nv_add_u32 {vWr}, {L_WG}, {vWr}')
    A(f'v_and_b32 v126, 1, v123\nv_lshlrev_b32 {vTMP}, 1, v126\nv_xor_b32 {vTMP}, {g3}, {vTMP}\nv_lshlrev_b32 {vTMP}, 5, {vTMP}\nv_lshl_add_u32 {vTMP}, v122, 3, {vTMP}')
    A(f'v_lshl_add_u32 {vTMP2}, v121, 2, v119\nv_lshl_add_u32 {vTMP2}, v126, 6, {vTMP2}\nv_lshl_add_u32 {vWOr}, {vTMP2}, 7, {vTMP}\nv_add_u32 {vWOr}, {L_WO}, {vWOr}')
    A(f'v_and_b32 v125, 1, v120\nv_mov_b32 {vTMP}, 0xffff\nv_mov_b32 {vTMP2}, 0xffff0000\nv_cmp_eq_u32 vcc, 1, v125'); sel('v119', vTMP, vTMP2)
    A(f'v_cmp_gt_u32 vcc, 2, v122'); sel('v119', '0', 'v119')
    for i in range(4):
        A(f'v_cmp_eq_u32 vcc, {i}, v123'); sel(f'v{MASK+i}', '0', 'v119'); A(f'v_and_b32 v{32+i}, 0x3f803f80, v{MASK+i}')
    A(f'v_mov_b32 {vTMP}, 0x3f80\nv_mov_b32 {vTMP2}, 0x3f800000\nv_cmp_eq_u32 vcc, 1, v126'); sel('v119', vTMP, vTMP2)
    A(f'v_cmp_gt_u32 vcc, 2, v122'); sel('v119', '0', 'v119')
    A(f'v_lshrrev_b32 {vTMP}, 1, v123\nv_lshl_add_u32 {vTMP}, v125, 1, {vTMP}')
    for i in range(4):
        A(f'v_cmp_eq_u32 vcc, {i}, {vTMP}'); sel(f'v{40+i}', '0', 'v119')
    A('v_mov_b32 v44, 0x3f803f80\nv_mov_b32 v45, 0x3f803f80')
    A(f'v_and_b32 {vTMP2}, 7, {vL}\nv_lshrrev_b32 v119, 3, {vL}')
    A(f's_lshr_b32 {t1}, {sW}, 2\ns_lshl_b32 {t1}, {t1}, 2\nv_xor_b32 {vTMP}, {t1}, {vTMP2}\nv_lshlrev_b32 {vTMP}, 4, {vTMP}\nv_lshl_add_u32 v124, v119, 10, {vTMP}')
    A(f's_and_b32 {t1}, {sW}, 1\ns_lshl_b32 {t1}, {t1}, 2\nv_xor_b32 {vTMP}, {t1}, {vTMP2}\nv_lshlrev_b32 {vTMP}, 4, {vTMP}')
    A(f'v_lshl_add_u32 v127, v119, 10, {vTMP}\nv_mul_u32_u24 v126, 3584, v119\nv_add_u32 v126, v126, {vTMP}')
    A(f's_cmp_ge_u32 {sG}, 4\ns_cselect_b32 {t2}, 3, 4\ns_cmp_lt_u32 {sHI}, {t2}\ns_cselect_b32 {t2}, 0, {OOB}\nv_add_u32 v126, {t2}, v126\nv_add_u32 v127, {t2}, v127')
    A(f'v_lshlrev_b32 {vTMP}, 1, v123\nv_xor_b32 {vTMP}, v121, {vTMP}\nv_lshlrev_b32 {vTMP}, 5, {vTMP}\nv_lshl_add_u32 {vTMP}, v122, 3, {vTMP}\nv_lshl_add_u32 {vTMP}, v123, 8, {vTMP}\nv_add_u32 v122, {sRING}, {vTMP}\nv_xor_b32 v123, 128, v122')
    A(f'v_and_b32 {vTMP}, 3, v120\nv_lshlrev_b32 {vTMP}, 6, {vTMP}\nv_lshl_add_u32 {vTMP}, v121, 4, {vTMP}\nv_lshl_add_u32 {vTMP}, v120, 8, {vTMP}\nv_add_u32 v118, {sRING}, {vTMP}')
    for j in range(1, 4): A(f'v_xor_b32 v{118+j}, {64*j}, v118')
    A(f'v_and_b32 {vTMP}, 124, {vL4}\nv_add_u32 {vTMP}, {L_XS+4*192}, {vTMP}\nds_write_b32 {vTMP}, v44')
    A(f'v_mov_b32 {vTMP}, {L_FL}\nv_mov_b32 {vTMP2}, 0\nds_write_b32 {vTMP}, {vTMP2}')

    def read_k(i):
        for j in range(4): A(f'ds_read_b128 a[{16*i+4*j}:{16*i+4*j+3}], v{118+j} offset:{(i&1)*4096}')
    def read_v(p):
        i = p - 16
        for hf in range(2):
            r = 64 + 4 * i + 2 * hf
            A(f'ds_read_b64_tr_b16 a[{r}:{r+1}], v{122+hf} offset:{((p//4)&1)*4096 + (p%4)*1024}')
    if not late47:
        for p in range(burst, 8): piece(p)
    if diag: xstamp(40)
    A.wait_vm('ep')
    if diag: xstamp(41)
    A(f'v_and_b32 v113, 0xffff0000, v68\nv_lshlrev_b32 v112, 16, v68')
    A(f'v_readfirstlane_b32 {sTAG}, v69\ns_add_u32 {sTAG}, {sTAG}, 1')
    A('v_dot2_f32_bf16 v78, v72, v44, 0\nv_dot2_f32_bf16 v79, v72, v72, 0')
    for k in range(73, 76): A(f'v_dot2_f32_bf16 v78, v{k}, v44, v78\nv_dot2_f32_bf16 v79, v{k}, v{k}, v79')
    for m in ('quad_perm:[1,0,3,2]', 'quad_perm:[2,3,0,1]', 'row_half_mirror', 'row_mirror'):
        A(f'v_add_f32_dpp v78, v78, v78 {m} {DPP}\nv_add_f32_dpp v79, v79, v79 {m} {DPP}')
    for sw in ('v_permlane16_swap_b32', 'v_permlane32_swap_b32'):
        A(f'v_mov_b32 v76, v78\nv_mov_b32 v77, v79\n{sw} v78, v76\n{sw} v79, v77\nv_add_f32 v78, v78, v76\nv_add_f32 v79, v79, v77')
    c2 = QSCALE * QSCALE
    A(f'v_mov_b32 v75, {f32(1e-5/c2)}\nv_mul_f32 v74, v78, v78\nv_fmac_f32 v75, {f32(1/(512*c2))}, v79\nv_fmac_f32 v75, {f32(-1/(512*512*c2))}, v74\nv_max_f32 v75, {f32(1e-5/c2)}, v75\nv_rsq_f32 v74, v75')
    A(f'v_mul_f32 v78, {f32(-1/512)}, v78\nv_add_f32 v72, v112, v78\nv_add_f32 v73, v113, v78\nv_mul_f32 v72, v72, v74\nv_mul_f32 v73, v73, v74\nv_cvt_pk_bf16_f32 v72, v72, v73\nds_write_b32 {vXW}, v72')
    if late47:
        for p in range(burst, 8): piece(p)
    if diag: xstamp(42)
    A.wait_vm('wq')
    if diag: xstamp(43)
    if bar_after_k0:
        A.wait_vm('p3')
        read_k(0)
        A('s_waitcnt lgkmcnt(0)')
        for p in range(8, 12): piece(p)
    A('s_waitcnt lgkmcnt(0)')
    if 'B' not in abl: A('s_barrier')
    stamp()

    def read_wq():
        for tl in range(2):
            for j in range(2):
                for u in range(2):
                    r = 48 + 8 * tl + 4 * j + 2 * u
                    A(f'ds_read_b64_tr_b16 v[{r}:{r+1}], {vWQr} offset:{8*tl+8192*j+1024*u}')
    def read_gu():
        for tl in range(2):
            for j in range(2):
                for u in range(2):
                    r = 48 + 8 * tl + 4 * j + 2 * u
                    A(f'ds_read_b64_tr_b16 v[{r}:{r+1}], {vWr} offset:{8192*tl+4096*j+512*u}')
    def read_wd():
        for j in range(2):
            for u in range(2):
                A(f'ds_read_b64_tr_b16 v[{48+4*j+2*u}:{49+4*j+2*u}], {vWr} offset:{16384+4096*j+512*u}')
    def read_wo():
        for j in range(4):
            for u in range(2):
                A(f'ds_read_b64_tr_b16 v[{48+4*j+2*u}:{49+4*j+2*u}], {vWOr} offset:{2048*j+256*u}')
    def matvec(vst, mode, late_w=None, soff='0'):
        A(f'ds_read_b128 v[80:83], {vXR}\nds_read_b128 v[84:87], {vXR} offset:64')
        if late_w: late_w()
        A('s_waitcnt lgkmcnt(0)' if late_w else 's_waitcnt lgkmcnt(1)')
        A(f'{M16} v[96:99], v[48:51], v[80:83], 0\n{M16} v[104:107], v[56:59], v[80:83], 0')
        if not late_w: A('s_waitcnt lgkmcnt(0)')
        A(f'{M16} v[96:99], v[52:55], v[84:87], v[96:99]\n{M16} v[104:107], v[60:63], v[84:87], v[104:107]')
        if mode == 'plain':
            A(f's_cmp_eq_u32 {sFAST}, 1')
            A('v_cvt_pk_bf16_f32 v96, v96, v97\nv_cvt_pk_bf16_f32 v97, v98, v99\nv_cvt_pk_bf16_f32 v98, v104, v105\nv_cvt_pk_bf16_f32 v99, v106, v107')
            lstore(f'buffer_store_dwordx4 v[96:99], {vst}, {WS}, {soff} offen', cmp=False)
            return
        A(f'v_mov_b32 v102, {sTAG}\nv_mov_b32 v103, s64')
        A(f'v_cvt_pk_bf16_f32 v100, v96, v97\nv_cvt_pk_bf16_f32 v101, v98, v99\nv_cvt_pk_bf16_f32 v104, v104, v105\nv_cvt_pk_bf16_f32 v105, v106, v107')
        A(f'v_mov_b32 v106, {sTAG}\nv_mov_b32 v107, s64')
        if mode == 'q0':
            A.vmop(f'buffer_store_dwordx4 v[100:103], {vst}, {WS}, 0 offen', 'st')
            A.vmop(f'buffer_store_dwordx4 v[104:107], {vst}, {WS}, 0 offen offset:256', 'st')
        else:
            lstore(f'buffer_store_dwordx4 v[100:103], {vst}, {WS}, 0 offen\nbuffer_store_dwordx4 v[104:107], {vst}, {WS}, 0 offen offset:256')
    def slice_stats(sst):
        l = lab('st')
        A(f's_cmp_lg_u32 {sW}, 4\ns_cbranch_scc1 {l}')
        A(f'ds_read_b128 v[80:83], {vXR}\nds_read_b128 v[84:87], {vXR} offset:64\ns_waitcnt lgkmcnt(1)')
        A(f'{M16} v[104:107], v[80:83], v[80:83], 0\ns_waitcnt lgkmcnt(0)\n{M16} v[104:107], v[84:87], v[84:87], v[104:107]')
        def pick():
            A('v_cndmask_b32 v104, v104, v105, s[80:81]\nv_cndmask_b32 v106, v106, v107, s[80:81]\nv_cndmask_b32 v104, v104, v106, s[82:83]')
        A('s_mov_b64 s[80:81], 10\ns_mov_b64 s[82:83], 12')
        A(f's_cmp_eq_u32 {sFAST}, 1')
        pick()
        lstore(f'buffer_store_dword v104, {vSSt}, {WS}, {sst} offen', cmp=False)
        A.vm.pop()
        A(f'{l}:')

    def issue_g1(dst, voff, sbase, tag, step=4096):
        A.vmop(f'buffer_load_dwordx4 v[{dst}:{dst+3}], {voff}, {WS}, {sbase} offen sc1', tag)
        if step >= 4096:
            A(f's_add_u32 {t1}, {sbase}, {step}')
            A.vmop(f'buffer_load_dwordx4 v[{dst+4}:{dst+7}], {voff}, {WS}, {t1} offen sc1', tag)
        else:
            A.vmop(f'buffer_load_dwordx4 v[{dst+4}:{dst+7}], {voff}, {WS}, {sbase} offen offset:{step} sc1', tag)
    def check_empty(regs):
        regs = list(regs)
        A(f'v_max3_u32 {vTMP}, v{regs[0]}, v{regs[1]}, v{regs[2]}'); rest = regs[3:]
        if len(rest) >= 5:
            A(f'v_max3_u32 {vTMP2}, v{rest[0]}, v{rest[1]}, v{rest[2]}'); rest = rest[3:]
            tg = 0
            while len(rest) >= 2:
                d = (vTMP, vTMP2)[tg]; A(f'v_max3_u32 {d}, {d}, v{rest[0]}, v{rest[1]}'); rest = rest[2:]; tg ^= 1
            if rest: A(f'v_max3_u32 {vTMP}, {vTMP}, {vTMP2}, v{rest[0]}')
            else: A(f'v_max_u32 {vTMP}, {vTMP}, {vTMP2}')
        else:
            while len(rest) >= 2:
                A(f'v_max3_u32 {vTMP}, {vTMP}, v{rest[0]}, v{rest[1]}'); rest = rest[2:]
            if rest: A(f'v_max_u32 {vTMP}, {vTMP}, v{rest[0]}')
        A(f'v_cmp_eq_u32 vcc, -1, {vTMP}')
    def poll(issue, regs, spec=None, mark=None):
        r, d = lab('retry'), lab('got')
        A(f'{r}:')
        issue()
        A.wait_vm()
        if mark: A(f'{mark}:')
        if spec: spec()
        check_empty(regs)
        tl = lab('again')
        A(f's_cbranch_vccnz {tl}\n{d}:')
        tails.append(f'{tl}:\n' + (f's_sleep {backoff}\n' if backoff else '') + f's_sub_u32 {sTO}, {sTO}, 1\ns_cbranch_scc0 {r}\ns_mov_b32 {sTO}, 0\ns_branch {d}')
    def poll2(issue, nld, regs, spec):
        d, sb, sa = lab('got'), lab('setb'), lab('seta')
        issue(0)
        if dstep: A(f's_sleep {dstep}')
        issue(1)
        A(f'{sa}:\ns_waitcnt vmcnt({nld})')
        spec(0); check_empty(regs(0))
        A(f's_cbranch_vccnz {sb}\n{d}:')
        keepL, A.L = A.L, []
        A(f'{sb}:'); issue(0)
        A(f's_waitcnt vmcnt({nld})\ns_nop 1')
        spec(1); check_empty(regs(1))
        A(f's_nop 1\ns_cbranch_vccz {d}')
        issue(1)
        A(f's_sub_u32 {sTO}, {sTO}, 1\ns_cbranch_scc0 {sa}\ns_mov_b32 {sTO}, 0\ns_branch {d}')
        tails.append('\n'.join(A.L)); A.L = keepL
        A.vm = []
    def ln_poll2(sdata, sstat, selop):
        def iss(k):
            issue_g1(64 + 16 * k, vG1, sdata, 'x')
            A.vmop(f'buffer_load_dwordx2 v[{72+16*k}:{73+16*k}], {vSt8}, {WS}, {sstat} offen sc1', 'x')
        def spec(k):
            b = 64 + 16 * k
            A(f'{M16} v[96:99], {selop}, v[{b}:{b+3}], 0\n{M16} v[96:99], {selop}, v[{b+4}:{b+7}], v[96:99]')
            A(f'v_add_f32_dpp v78, v{b+8}, v{b+8} quad_perm:[1,0,3,2] {DPP}\nv_add_f32_dpp v79, v{b+9}, v{b+9} quad_perm:[1,0,3,2] {DPP}')
        poll2(iss, 3, lambda k: range(64 + 16 * k, 74 + 16 * k), spec)
    def issue_q(first):
        if not first:
            issue_g1(64, vG1, sQg, 'q')
            A.vmop(f'buffer_load_dwordx2 v[72:73], {vSt8}, {WS}, {sQSg} offen sc1', 'q')
            return
        issue_tagged(f's_mov_b32 {t1}, s101')
    def issue_tagged(base, dst=80, voff=None, kstep=8192, hstep=256):
        if voff is None:
            A(f'v_and_b32 {vTMP2}, 0xf0, {vG1}\nv_lshlrev_b32 {vTMP}, 1, {vG1}\nv_sub_u32 {vTMP}, {vTMP}, {vTMP2}')
        else: A(voff)
        A(base + f'\ns_add_u32 {t2}, {t1}, {kstep}')
        for k in range(2):
            for hh in range(2):
                r = dst[2 * k + hh] if isinstance(dst, tuple) else dst + 8 * k + 4 * hh
                A.vmop(f'buffer_load_dwordx4 v[{r}:{r+3}], {vTMP}, {WS}, {(t1, t2)[k]} offen offset:{hstep*hh} sc1', 'q')
    def issue_o0():
        issue_tagged(f's_lshl_b32 {t1}, {sG}, 2\ns_add_u32 {t1}, {t1}, {sHI}\ns_lshl_b32 {t0}, {t1}, 2\ns_lshl_b32 {t1}, {t1}, 14\ns_add_u32 {t1}, {t1}, {TOP}', o0dst[0])
        A(f's_add_u32 {t0}, {t0}, {sW}\ns_lshl_b32 {t0}, {t0}, 7\ns_add_u32 {t0}, {t0}, {TML}\nv_lshlrev_b32 {vTMP2}, 1, {vML2}')
        m_ = o0ml[0]
        A.vmop(f'buffer_load_dwordx4 v[{m_}:{m_+3}], {vTMP2}, {WS}, {t0} offen sc1', 'q')
        A.vmop(f'buffer_load_dwordx4 v[{m_+4}:{m_+7}], {vTMP2}, {WS}, {t0} offen offset:64 sc1', 'q')
    o0dst = [80]; o0ml = [64]
    def check_words(words, sval):
        w = list(words)
        A(f'v_xor_b32 {vTMP}, {sval}, v{w[0]}')
        for x in w[1:]: A(f'v_xor_b32 {vTMP2}, {sval}, v{x}\nv_or_b32 {vTMP}, {vTMP}, {vTMP2}')
        A(f'v_cmp_ne_u32 vcc, 0, {vTMP}')
    def check_tags(words=(82, 86, 90, 94)): check_words(words, sTAG)
    def tagged_sum(selbase=32, src=80, acc=96, selk=0):
        for n_, (k, hh) in enumerate(((0, 0), (0, 1), (1, 0), (1, 1))):
            r = src[2 * k + hh] if isinstance(src, tuple) else src + 8 * k + 4 * hh
            sb = selbase + selk * k + 2 * hh
            c = '0' if n_ == 0 else f'v[{acc}:{acc+3}]'
            A(f'v_mfma_f32_16x16x16_bf16 v[{acc}:{acc+3}], v[{sb}:{sb+1}], v[{r}:{r+1}], {c}')
    def q0_finish():
        tagged_sum()
        check_words((83, 87, 91, 95), 's64')
        A(f's_cmp_eq_u64 vcc, 0\ns_cselect_b32 {sGOK}, 1, 2')
        A(f'v_cvt_pk_bf16_f32 v96, v96, v97\nds_write_b32 {vQW}, v96')
    def tagged_poll(issue, words=(82, 86, 90, 94), spec=None, back=0):
        rq, gq = lab('rq'), lab('gq')
        A(f'{rq}:')
        issue(); A.wait_vm()
        if spec: spec()
        check_tags(words)
        A(f's_cbranch_vccz {gq}')
        if back: A(f's_sleep {back}')
        A(f's_sub_u32 {sTO}, {sTO}, 1\ns_cbranch_scc0 {rq}\ns_mov_b32 {sTO}, 0\n{gq}:')
    CQ = (48, 52, 56, 60)
    def issue_csq(): issue_tagged(f's_lshl_b32 {t1}, {sG}, 14\ns_add_u32 {t1}, {t1}, {TQC}', CQ)
    def finish_csq():
        ok_ = lab('cq')
        check_tags(tuple(r + 2 for r in CQ))
        A(f's_cbranch_vccz {ok_}')
        tagged_poll(issue_csq, tuple(r + 2 for r in CQ))
        A(f'{ok_}:')
        tagged_sum(32, CQ, 64)
        A(f's_mov_b32 {t2}, {f32(1/512)}\nv_pk_mul_f32 {CSQ}, v[64:65], s[56:57] op_sel_hi:[1,0]')
    QREGS = list(range(64, 74)); QREGS1 = QREGS + list(range(80, 88))
    def ln_spec(selop, first):
        def f():
            A(f'{M16} v[96:99], {selop}, v[64:67], 0\n{M16} v[96:99], {selop}, v[68:71], v[96:99]')
            if first:
                A(f'{M16} v[100:103], {selop}, v[80:83], 0\n{M16} v[100:103], {selop}, v[84:87], v[100:103]')
            A(f'v_add_f32_dpp v78, v72, v72 quad_perm:[1,0,3,2] {DPP}\nv_add_f32_dpp v79, v73, v73 quad_perm:[1,0,3,2] {DPP}')
        return f
    def ln_finish(cs, scale, first, csrc=100):
        for m in ('quad_perm:[2,3,0,1]', 'row_half_mirror'):
            A(f'v_add_f32_dpp v78, v78, v78 {m} {DPP}\nv_add_f32_dpp v79, v79, v79 {m} {DPP}')
            if m.startswith('quad'): A(f'v_mov_b32 v75, {f32(1e-5/(scale*scale))}')
        c2 = scale * scale
        A(f'v_mul_f32 v74, v78, v78\nv_fmac_f32 v75, {f32(1/(512*c2))}, v79')
        if first:
            A(f's_mov_b32 {t2}, {f32(1/512)}\nv_pk_mul_f32 {cs}, v[{csrc}:{csrc+1}], s[56:57] op_sel_hi:[1,0]')
        A(f'v_fmac_f32 v75, {f32(-1/(512*512*c2))}, v74\nv_max_f32 v75, {f32(1e-5/c2)}, v75\nv_rsq_f32 v74, v75')
        A(f'v_pk_fma_f32 v[96:97], v[78:79], {cs}, v[96:97] op_sel_hi:[0,1,1] neg_lo:[1,0,0] neg_hi:[1,0,0]')
        A(f'v_pk_mul_f32 v[96:97], v[96:97], v[74:75] op_sel_hi:[1,0]')
    def q_finish(first):
        ln_finish(CSQ, QSCALE, first)
        A(f'v_cvt_pk_bf16_f32 v96, v96, v97\nds_write_b32 {vQW}, v96')

    A('; ---- first q projection, published with plain stores and this CU\'s XCC id')
    save = list(A.vm)
    with lowwaves():
        read_wq()
        A('s_waitcnt lgkmcnt(0)')
        if 'Q' not in abl: matvec('v109', 'q0')
    stamp()

    def issue_wo():
        A(f's_lshl_b32 {t1}, {sG}, 9\ns_lshl_b32 {t2}, {sHI}, 7\ns_add_u32 {t1}, {t1}, {t2}\ns_lshl_b32 {t2}, {sW}, 4\ns_add_u32 {t1}, {t1}, {t2}\ns_lshl_b32 {t1}, {t1}, 10\ns_lshl_b32 {t2}, {sLO}, 7\ns_add_u32 {t1}, {t1}, {t2}')
        A(f's_lshl_b32 {t2}, {sW}, 11\ns_add_u32 m0, {t2}, {L_WO}')
        A.vmop(f'buffer_load_dwordx4 v124, {WO}, {t1} offen nt lds', 'wo')
        A(f's_add_u32 {t1}, {t1}, 8192\ns_add_u32 m0, m0, 1024')
        A.vmop(f'buffer_load_dwordx4 v124, {WO}, {t1} offen nt lds', 'wo')

    def issue_ffn(dw=0, track=False, parts='gud'):
        vm_ = (lambda x: A.vmop(x, 'ffn')) if track else A
        A(f's_add_u32 {t0}, {sW}, {dw}')
        if 'g' in parts:
            A(f's_lshl_b32 {t1}, {sLO}, 6\ns_lshl_b32 {t2}, {t0}, 3\ns_add_u32 {t1}, {t1}, {t2}\ns_mul_i32 {t1}, {t1}, 3584\ns_lshl_b32 {t2}, {g2}, 7\ns_add_u32 {t1}, {t1}, {t2}')
        A(f's_lshl_b32 {t2}, {t0}, 10\ns_add_u32 m0, {t2}, {L_WG}')
        if 'g' in parts:
            vm_(f'buffer_load_dwordx4 v126, {WG}, {t1} offen nt lds')
            A(f's_add_u32 m0, {t2}, {L_WU}')
            vm_(f'buffer_load_dwordx4 v126, {WU}, {t1} offen nt lds')
        if 'd' not in parts: return
        A(f's_lshl_b32 {t1}, {g2}, 6\ns_lshl_b32 {t3}, {t0}, 3\ns_add_u32 {t1}, {t1}, {t3}\ns_lshl_b32 {t1}, {t1}, 10\ns_lshl_b32 {t3}, {sLO}, 7\ns_add_u32 {t1}, {t1}, {t3}\ns_add_u32 m0, {t2}, {L_WD}')
        vm_(f'buffer_load_dwordx4 v127, {WD}, {t1} offen nt lds')
    wait_of = {}
    d = 6
    for p_ in range(12, 32):
        tgt = depth if p_ < deep_from else deep
        need_d = p_ - tgt
        if p_ in (12, 16, 20): need_d = max(need_d, p_ - 5)
        if need_d > d: wait_of[p_] = list(range(d + 1, need_d + 1)); d = need_d
        else: wait_of[p_] = []
    last_read = d
    def step(p):
        for d_ in wait_of[p]:
            A.wait_vm(f'p{d_}')
            if d_ < 16:
                if d_ % 4 == 3: read_k(d_ // 4); A('s_waitcnt lgkmcnt(0)')
            else:
                A('s_waitcnt lgkmcnt(0)')
                read_v(d_)
            if diag and d_ in (7, 11, 15, 19, 23): xstamp(45 + (d_ - 7) // 4)
        if ffn_at and p == ffn_at and len(tail_parts) < 3: issue_ffn(0, True, ''.join(c_ for c_ in 'gud' if c_ not in tail_parts))
        if p == wo_at: issue_wo()
        piece(p)
    hi_l, join_all, flag_l = lab('shi'), lab('sj'), lab('fl')
    def lead_in():
        if not bar_after_k0:
            A.wait_vm('p3')
            if diag: xstamp(44)
            read_k(0); A('s_waitcnt lgkmcnt(0)')
            for pp in range(8, 12): piece(pp)
    lowcode = [True]
    def steps(lo_, hi_):
        for pp in range(lo_, hi_):
            if pp == touch_o and lowcode[0]:
                n_ = len(A.vm); o0dst[0] = 48; issue_o0(); o0dst[0] = 80
                A.vm[n_:] = ['touch'] * (len(A.vm) - n_)
            if pp == csq_at and lowcode[0] and 'S' not in abl:
                n_ = len(A.vm); issue_csq(); A.vm[n_:] = ['csq'] * (len(A.vm) - n_)
            step(pp)
    A(f's_cmp_ge_u32 {sW}, 4\ns_cbranch_scc1 {hi_l}')
    lead_in()
    p = 12
    while p < p_sc:
        if p in rides:
            assert p + 5 <= p_sc
            skip, join = lab('noq'), lab('jn')
            saved = list(A.vm)
            A(f's_cmp_lg_u32 {sGOK}, 0\ns_cbranch_scc1 {skip}')
            issue_q(True)
            steps(p, p + 5)
            if 'q' in A.vm: A.wait_vm('q')
            check_tags()
            nq = lab('nq')
            A(f's_cbranch_vccnz {nq}')
            q0_finish()
            A(f'{nq}:\ns_branch {join}\n{skip}:')
            after_q = list(A.vm)
            A.vm = saved
            steps(p, p + 5)
            extra = len(A.vm) - len(after_q)
            assert A.vm[extra:] == after_q, (A.vm, after_q)
            A.vm = after_q if extra <= 0 else A.vm
            A(f'{join}:')
            p += 5
        else:
            steps(p, p + 1); p += 1
    saved = list(A.vm)
    def put_status():
        A(f's_lshl_b32 {t1}, {sW}, 2\ns_add_u32 {t1}, {t1}, {L_ST}\nv_mov_b32 {vTMP}, {t1}\nv_mov_b32 {vTMP2}, {sGOK}\nds_write_b32 {vTMP}, {vTMP2}')
    def get_status():
        A(f'v_mov_b32 {vTMP}, {L_ST}\nds_read_b128 v[72:75], {vTMP}\ns_waitcnt lgkmcnt(0)')
        check_words((72, 73, 74, 75), '1')
        A('s_cmp_eq_u64 vcc, 0')
    put_status()
    A(f's_branch {join_all}\n{hi_l}:')
    A.vm = save; lowcode[0] = False
    lead_in()
    steps(12, p_sc)
    saved = list(A.vm)
    A(f'{join_all}:')
    stamp()
    A('s_waitcnt lgkmcnt(0)\ns_barrier')
    get_status()
    okq = lab('okq')
    A(f's_cbranch_scc1 {okq}')
    if not abl:
        with lowwaves():
            A(f'buffer_store_dwordx4 v[100:103], v109, {WS}, 0 offen sc1\nbuffer_store_dwordx4 v[104:107], v109, {WS}, 0 offen offset:256 sc1')
            dn = lab('qdone')
            A(f's_cmp_lg_u32 {sGOK}, 0\ns_cbranch_scc1 {dn}')
            tagged_poll(lambda: issue_q(True))
            q0_finish()
            A(f'{dn}:')
        A('s_barrier')
        with lowwaves(): put_status()
        A('s_waitcnt lgkmcnt(0)\ns_barrier')
        get_status()
    A(f'{okq}:\ns_cselect_b32 {sFAST}, 1, 0')
    A.vm = saved
    def issue_ffn_any(dw, parts=None):
        if dw & 1: A('v_xor_b32 v126, 64, v126\nv_xor_b32 v127, 64, v127')
        issue_ffn(dw, False, parts or ''.join(c_ for c_ in ('gu' if wd_after else 'gud') if c_ not in tail_parts + mid_parts))
        if dw & 1: A('v_xor_b32 v126, 64, v126\nv_xor_b32 v127, 64, v127')
    def first_only(f):
        def g():
            l, bk = lab('fo'), lab('bk')
            A(f's_cmp_eq_u32 {sLIDX}, 0\ns_cbranch_scc1 {l}\n{bk}:')
            keepL, A.L = A.L, []
            A(f'{l}:'); f(); A(f's_branch {bk}')
            tails.append('\n'.join(A.L)); A.L = keepL
        return g
    def variant(first, later):
        l, bk = lab('v0'), lab('vj')
        A(f's_cmp_eq_u32 {sLIDX}, 0\ns_cbranch_scc1 {l}')
        n0 = nts[0]
        later()
        A(f'{bk}:')
        n1, nts[0] = nts[0], n0
        keepL, A.L = A.L, []
        A(f'{l}:'); first(); A(f's_branch {bk}')
        tails.append('\n'.join(A.L)); A.L = keepL
        assert nts[0] == n1
    def later_only(f):
        l = lab('lo'); A(f's_cmp_eq_u32 {sLIDX}, 0\ns_cbranch_scc1 {l}'); f(); A(f'{l}:')
    def scores(bar=True):
        if bar: A('s_waitcnt lgkmcnt(0)\ns_barrier')
        for j in range(4): A(f'ds_read_b128 v[{64+4*j}:{67+4*j}], {vBR320} offset:{64*j}')
        def sel_t(t, rs):
            for r in rs: A(f'v_mov_b32_dpp v{80+r}, v{80+4*t+r} quad_perm:[0,1,2,3] row_mask:0xf bank_mask:{1<<t:#x}')
        if tmajor:
            for t in range(4):
                for j in range(4):
                    if t == 0: A(f's_waitcnt lgkmcnt({3-j})')
                    c = '0' if j == 0 else f'v[{80+4*t}:{83+4*t}]'
                    A(f'{M16} v[{80+4*t}:{83+4*t}], a[{16*t+4*j}:{16*t+4*j+3}], v[{64+4*j}:{67+4*j}], {c}')
            sel_t(1, range(4)); sel_t(2, range(4)); sel_t(3, range(4))
        else:
            for j in range(4):
                A(f's_waitcnt lgkmcnt({3-j})')
                for t in range(4):
                    c = '0' if j == 0 else f'v[{80+4*t}:{83+4*t}]'
                    A(f'{M16} v[{80+4*t}:{83+4*t}], a[{16*t+4*j}:{16*t+4*j+3}], v[{64+4*j}:{67+4*j}], {c}')
            for t in range(1, 4): sel_t(t, range(4))
        A('v_max3_f32 v84, v80, v81, v82\nv_max_f32 v84, v84, v83')
        A(f'v_max_f32_dpp v84, v84, v84 row_ror:4 {DPP}')
        A(f'v_max_f32_dpp v84, v84, v84 row_ror:8 {DPP}')
        A('v_mov_b32 v85, v84\nv_permlane16_swap_b32 v84, v85\nv_max_f32 v84, v84, v85')
        A('v_mov_b32 v85, v84\nv_permlane32_swap_b32 v84, v85\nv_max_f32 v84, v84, v85')
        A('v_pk_add_f32 v[80:81], v[80:81], v[84:85] op_sel_hi:[1,0] neg_lo:[0,1] neg_hi:[0,1]')
        A('v_pk_add_f32 v[82:83], v[82:83], v[84:85] op_sel_hi:[1,0] neg_lo:[0,1] neg_hi:[0,1]')
        for r in range(4): A(f'v_exp_f32 v{80+r}, v{80+r}')
        A('v_cvt_pk_bf16_f32 v86, v80, v81\nv_cvt_pk_bf16_f32 v87, v82, v83')
        A(f'v_mfma_f32_16x16x16_bf16 v[88:91], {ONES}, v[86:87], 0')
    def pv(i):
        for hf in range(2):
            acc = 96 + 8 * (i & 1) + 4 * hf
            c = '0' if i < 2 else f'v[{acc}:{acc+3}]'
            A(f'v_mfma_f32_4x4x4_16b_bf16 v[{acc}:{acc+3}], v[86:87], a[{64+4*i+2*hf}:{65+4*i+2*hf}], {c} cbsz:4 abid:{4*(i&3)+(i>>2)}')
    def lsum():
        A(f'v_add_f32_dpp v85, v88, v88 row_ror:4 {DPP}')
        A(f'v_add_f32_dpp v85, v85, v85 row_ror:8 {DPP}')
        A(f's_mov_b64 exec, 15\nds_write_b64 {vRMW}, v[84:85]')
        full_exec()
    def combine(tagged=False, other=None):
        for h in range(4):
            A(f'v_add_f32 v{64+2*h}, v{96+h}, v{104+h}\nv_add_f32 v{65+2*h}, v{100+h}, v{108+h}')
            if h & 1: A(f'ds_write_b128 {vROW}, v[{62+2*h}:{65+2*h}] offset:{512*(h-1)}')
        A('s_waitcnt lgkmcnt(0)\ns_barrier')
        with lowwaves(other):
            A(f'ds_read_b64 v[72:73], {vRMR}')
            for k in range(8): A(f'ds_read_b64 v[{80+2*k}:{81+2*k}], {vROR} offset:{8192*k}')
            A('s_waitcnt lgkmcnt(8)')
            A(f'v_max_f32_dpp v74, v72, v72 quad_perm:[1,0,3,2] {DPP}')
            A(f'v_max_f32_dpp v74, v74, v74 quad_perm:[2,3,0,1] {DPP}')
            A(f'v_max_f32_dpp v74, v74, v74 row_half_mirror {DPP}')
            A('v_sub_f32 v72, v72, v74\nv_exp_f32 v72, v72')
            for k in range(8): A(f'v_readlane_b32 s{80+k}, v72, {k}')
            A('v_mul_f32 v75, v73, v72\ns_waitcnt lgkmcnt(0)')
            for k in range(8):
                sp = f's[{80+(k&~1)}:{81+(k&~1)}]'
                o = 'op_sel_hi:[1,0' if (k & 1) == 0 else 'op_sel:[0,1'
                d = 64 + 2 * (k & 1)
                if k < 2: A(f'v_pk_mul_f32 v[{d}:{d+1}], v[{80+2*k}:{81+2*k}], {sp} {o}]')
                else: A(f'v_pk_fma_f32 v[{d}:{d+1}], v[{80+2*k}:{81+2*k}], {sp}, v[{d}:{d+1}] {o},{1 if (k&1)==0 else 0}]')
            A('v_pk_add_f32 v[64:65], v[64:65], v[66:67]\nv_cvt_pk_bf16_f32 v64, v64, v65')
            def lsum8():
                for m in ('quad_perm:[1,0,3,2]', 'quad_perm:[2,3,0,1]', 'row_half_mirror'):
                    A(f'v_add_f32_dpp v75, v75, v75 {m} {DPP}')
            def pub_tagged():
                A(f'v_mov_b32 v66, {sTAG}\nv_mov_b32 v67, {sTAG}\nv_mov_b32_dpp v65, v64 quad_perm:[1,1,3,3] {DPP}')
                lstore(f'buffer_store_dwordx4 v[64:67], v118, {WS}, 0 offen')
                A(f'v_mov_b32 v76, {sTAG}\nv_mov_b32 v77, {sTAG}')
                A(f's_lshl_b32 {t1}, {sG}, 2\ns_add_u32 {t1}, {t1}, {sW}\ns_lshl_b32 {t1}, {t1}, 2\ns_add_u32 {t1}, {t1}, {sHI}\ns_lshl_b32 {t1}, {t1}, 3\ns_add_u32 {t1}, {t1}, {sLO}\ns_lshl_b32 {t1}, {t1}, 4\ns_add_u32 {t1}, {t1}, {TML}')
                lsum8()
                lstore(f'buffer_store_dwordx4 v[74:77], {vMLst}, {WS}, {t1} offen')
            def pub_plain():
                lstore(f'buffer_store_dword v64, {vL4}, {WS}, {sOPst} offen')
                lsum8()
                lstore(f'buffer_store_dwordx2 v[74:75], {vMLst}, {WS}, {sMLst} offen')
            if tagged is None: variant(pub_tagged, pub_plain)
            elif tagged: pub_tagged()
            else: pub_plain()

    A('v_mov_b32 v118, v110\nv_mov_b32 v114, 0\ns_mov_b32 s80, 0\ns_mov_b32 s81, 0\ns_mov_b32 s82, 0\ns_mov_b32 s83, 0\ns_mov_b32 s84, 0\ns_mov_b32 s85, 0')
    A(f's_mul_i32 {t1}, {sC}, 1312\ns_add_u32 {t1}, {t1}, {sGBASE}\ns_add_u32 {t1}, {t1}, {bGP - 7168}\ns_sub_u32 {t2}, {sXst}, 7168')
    A(f'v_add_u32 v119, {t1}, v115\nv_add_u32 v120, {t2}, v115\nv_add_u32 {vTMP}, {oXB - oXA - 512}, v120\nv_cmp_lt_u32 vcc, 31, {vL}'); sel('v120', 'v120', vTMP)
    A(f'v_add_u32 v121, 1024, v119\nv_mov_b32 {vTMP}, {OOB}\nv_cmp_lt_u32 vcc, 17, {vL}'); sel('v121', 'v121', vTMP)
    A(f'v_cmp_gt_u32 vcc, 7168, v115'); sel('v119', 'v119', vTMP); sel('v120', 'v120', vTMP); sel('v121', 'v121', vTMP)
    def clean_urgent():
        A('v_mov_b32 v92, -1\nv_mov_b32 v93, -1\nv_mov_b32 v94, -1\nv_mov_b32 v95, -1')
        A.vmop(f'buffer_store_dwordx4 v[92:95], v119, {WS}, 0 offen sc1', 'cu')
        A.vmop(f'buffer_store_dwordx4 v[92:95], v120, {WS}, 0 offen sc1', 'cu')
        A.vmop(f'buffer_store_dwordx4 v[92:95], v121, {WS}, 0 offen sc1', 'cu')
    if share: A('s_branch L_scores\nL_scored:')
    else: scores(False)
    d0 = max([6] + [d_ for p_ in range(12, p_sc) for d_ in wait_of[p_]])
    assert d0 >= 17
    for i in range(d0 - 15): pv(i)
    lsum()
    stamp()
    pend = [None]; csq_done = [False]
    def landed(d_):
        A.wait_vm(f'p{d_}')
        if pend[0] is not None: A('s_waitcnt lgkmcnt(0)')
        read_v(d_)
        if pend[0] is not None: pv(pend[0])
        pend[0] = d_ - 16
        if d_ >= csq_at and not csq_done[0] and not abl:
            csq_done[0] = True
            keep_vm = list(A.vm)
            with lowwaves(): finish_csq()
            A.vm = keep_vm
    for p in range(p_sc, 32):
        for d_ in wait_of[p]: landed(d_)
        piece(p, p == p_sc)
    for p in range(last_read + 1, 32):
        landed(p)
        if p == cl_at and 'C' not in abl: clean_urgent()
        if p == wt_at and 'W' not in abl:
            assert cl_at <= wt_at
            issue_wo()
            if tail_parts: issue_ffn(0, True, tail_parts)
    A('s_waitcnt lgkmcnt(0)')
    pv(pend[0])
    stamp()
    if abl: A('s_branch L_fin')
    def flag_addr():
        A(f's_lshl_b32 {t1}, {sLO}, 10\ns_lshl_b32 {t2}, {sG}, 7\nv_and_b32 v68, 7, {vL}\nv_and_b32 v69, 24, {vL}\nv_lshlrev_b32 v68, 7, v68\nv_lshl_add_u32 v68, v69, 10, v68\nv_add_u32 v68, {t1}, v68')
        A(f'v_and_b32 v69, 31, {vL}\nv_lshlrev_b32 v69, 10, v69\nv_add_u32 v69, {t2}, v69\nv_cmp_lt_u32 vcc, 31, {vL}'); sel('v68', 'v68', 'v69')
        A(f's_mov_b32 {t1}, {TF}')
    def clean_rest():
        l_ = lab('cr')
        A(f's_cmp_lg_u32 {sW}, 7\ns_cbranch_scc1 {l_}')
        A(f'v_mov_b32 v64, -1\nv_mov_b32 v65, -1\nv_mov_b32 v66, -1\nv_mov_b32 v67, -1\nv_lshlrev_b32 v68, 2, {vL4}')
        A(f's_add_u32 {t1}, {sXst}, {LS}\nv_add_u32 v69, {oXB - oXA - 512}, v68\nv_cmp_lt_u32 vcc, 31, {vL}'); sel('v69', 'v68', 'v69')
        A(f'buffer_store_dwordx4 v[64:67], v69, {WS}, {t1} offen sc1')
        A(f's_mul_i32 {t2}, {sC}, 3168\ns_add_u32 {t2}, {t2}, {sGBASE}\ns_add_u32 {t2}, {t2}, {LS}')
        for k_ in range(3): A(f'buffer_store_dwordx4 v[64:67], v68, {WS}, {t2} offen offset:{1024*k_} sc1')
        A(f's_mov_b64 exec, 63\nbuffer_store_dwordx4 v[64:67], v68, {WS}, {t2} offen offset:3072 sc1\ns_mov_b64 exec, -1\n{l_}:')
    def clean_first():
        l_ = lab('c7')
        A(f's_cmp_lg_u32 {sW}, 7\ns_cbranch_scc1 {l_}')
        A(f's_lshl_b32 {t1}, s2, 7\ns_add_u32 {t1}, {t1}, {TF}\nv_mov_b32 v69, {sTAG}')
        if fullflag:
            A(f's_mov_b32 exec_hi, 0\ns_waitcnt vmcnt({2 + len(tail_parts)})\nbuffer_store_dword v69, {vL4}, {WS}, {t1} offen sc1')
        else:
            A(f's_mov_b64 exec, 1\ns_waitcnt vmcnt({2 + len(tail_parts)})\nbuffer_store_dword v69, off, {WS}, {t1} sc1')
        full_exec()
        n4 = lab('n4')
        if not use_early:
            A(f'{l_}:')
            if mid_parts:
                A(f's_sleep {mid_sleep}')
                issue_ffn(-4, False, mid_parts); issue_ffn(0, False, mid_parts)
            A(f's_lshl_b32 {t1}, {sLO}, 3\ns_add_u32 {t1}, {t1}, {sW}\ns_mul_i32 {t1}, {t1}, {8*3584}\ns_lshl_b32 {t2}, {g2}, 7\ns_add_u32 s81, {t1}, {t2}\ns_sub_u32 s80, s81, {32*3584}')
            A(f's_lshl_b32 {t1}, {g2}, 3\ns_add_u32 {t1}, {t1}, {sW}\ns_lshl_b32 {t1}, {t1}, 6\ns_add_u32 {t1}, {t1}, {sLO}\ns_lshl_b32 s83, {t1}, 7\ns_sub_u32 s82, s83, 32768')
            A(f's_lshl_b32 s84, {sW}, 10\ns_sub_u32 s84, s84, 4096')
            flag_addr()
            A(f'v_mov_b32 v114, v68\ns_mov_b32 s85, {TF}\ns_waitcnt vmcnt({2 * len(mid_parts)})')
            return
        A(f'{l_}:\ns_cmp_lg_u32 {sW}, 4\ns_cbranch_scc1 {n4}')
        flag_addr()
        A(f's_sleep {fearly}\nbuffer_load_dword v69, v68, {WS}, {t1} offen sc1\ns_waitcnt vmcnt(0)\nv_cmp_ne_u32 vcc, {sTAG}, v69\ns_cbranch_vccnz {n4}')
        A(f's_mov_b32 {sCNT}, 1\nv_mov_b32 v68, {L_FL}\nv_mov_b32 v69, 1\nds_write_b32 v68, v69\n{n4}:')
    if share:
        inloop[0] = True
        A('L_merge:')
        combine(None, first_only(clean_first))
    else: combine(True, clean_first)
    stamp(True)

    if prio:
        l_ = lab('pr'); A(f's_cmp_ge_u32 {sW}, 4\ns_cbranch_scc1 {l_}\ns_setprio 1\n{l_}:')
    A('L_layer:'); inloop[0] = True
    def proj_body(nk, vb, boff, xoff, late_w=None, tagged=False):
        for j in range(nk): A(f'ds_read_b128 v[{64+4*j}:{67+4*j}], {vb} offset:{boff+64*j}')
        if late_w: late_w()
        for j in range(nk):
            if not late_w: A(f's_waitcnt lgkmcnt({nk-1-j})')
            elif j == 0: A('s_waitcnt lgkmcnt(0)')
            c = '0' if j == 0 else 'v[96:99]'
            A(f'{M16} v[96:99], v[{48+4*j}:{51+4*j}], v[{64+4*j}:{67+4*j}], {c}')
        if tagged:
            A(f'v_mov_b32 v102, {sTAG}\nv_mov_b32 v103, {sTAG}\nv_cvt_pk_bf16_f32 v100, v96, v97\nv_cvt_pk_bf16_f32 v101, v98, v99')
            A(f'buffer_store_dwordx4 v[100:103], v47, {WS}, 0 offen sc1')
            if diag2: xstamp(52)
        else:
            A(f's_add_u32 {t1}, {sXst}, {xoff}')
            A('v_cvt_pk_bf16_f32 v96, v96, v97\nv_cvt_pk_bf16_f32 v97, v98, v99')
            A(f'buffer_store_dwordx2 v[96:97], {vXst}, {WS}, {t1} offen sc1')
    def proj_out(nk, vb, boff, xoff, first=None):
        sk, dl = lab('sk'), lab('dl')
        A(f's_cmp_ge_u32 {sW}, 4\ns_cbranch_scc1 {sk}')
        if first: variant(first, lambda: proj_body(nk, vb, boff, xoff))
        else: proj_body(nk, vb, boff, xoff)
        return sk, dl
    def g_wait(sk, dl, pre, busy_first=False, hi_pre=None, lo_d=None, hi_d=None, extra0=0):
        pre()
        A(f's_sleep {lo_d or gdelay}')
        A(f's_branch {dl}\n{sk}:')
        if hi_pre: hi_pre()
        A(f's_sleep {hi_d or gdelay_hi}')
        A(f'{dl}:')
        if extra0: first_only(lambda: A(f's_sleep {extra0}'))()
    def reduce_x(xoff, final, first=None):
        def normal():
            A(f's_add_u32 {t0}, {sXg}, {xoff}')
            sp = lambda b: A(f'{M16} v[96:99], {SELA}, v[{b}:{b+3}], 0\n{M16} v[96:99], {SELA}, v[{b+4}:{b+7}], v[96:99]')
            if not dual & 16:
                poll(lambda: issue_g1(64, vXg, t0, 'x', 8192), range(64, 72), lambda: sp(64), None if final else 'L_xa_landed')
                return
            d, tl, lp = lab('got'), lab('again'), lab('lp')
            issue_g1(64, vXg, t0, 'x', 8192); A.wait_vm()
            sp(64); check_empty(range(64, 72))
            A(f's_cbranch_vccnz {tl}\n{d}:')
            keepL, A.L = A.L, []
            A(f'{tl}:'); issue_g1(64, vXg, t0, 'x', 8192)
            A(f's_sleep {dstep}\n{lp}:'); issue_g1(72, vXg, t0, 'x', 8192)
            A('s_waitcnt vmcnt(2)'); sp(64); check_empty(range(64, 72))
            A(f's_nop 1\ns_cbranch_vccz {d}'); issue_g1(64, vXg, t0, 'x', 8192)
            A('s_waitcnt vmcnt(2)'); sp(72); check_empty(range(72, 80))
            A(f's_nop 1\ns_cbranch_vccz {d}\ns_sub_u32 {sTO}, {sTO}, 1\ns_cbranch_scc0 {lp}\ns_mov_b32 {sTO}, 0\ns_branch {d}')
            tails.append('\n'.join(A.L)); A.L = keepL
            A.vm = []
        if first: variant(first, normal)
        else: normal()
        stamp()
        A(f'v_add_f32_dpp v96, v96, v96 row_ror:4 {DPP}\nv_add_f32_dpp v97, v97, v97 row_ror:4 {DPP}')
        if final: A(f's_cmp_eq_u32 {sLIDX}, 1')
        A(f'v_add_f32_dpp v96, v96, v96 row_ror:8 {DPP}\nv_add_f32_dpp v97, v97, v97 row_ror:8 {DPP}')
        A(f'v_pk_add_f32 {XRES}, {XRES}, v[96:97]\ns_mov_b64 exec, {sM4}\nv_cvt_pk_bf16_f32 v96, v112, v113')
        if final: A(f's_cbranch_scc1 L_out')
        A(f'ds_write_b32 {vXW}, v96')
        full_exec()
        A('s_waitcnt lgkmcnt(0)\ns_barrier')
    def issue_o():
        issue_g1(64, vG1, sOg, 'o')
        A.vmop(f'buffer_load_dwordx2 v[72:73], {vML2}, {WS}, {sMLg} offen sc1', 'o')
        A.vmop(f'buffer_load_dwordx2 v[74:75], {vML2}, {WS}, {sMLg} offen offset:32 sc1', 'o')
    def wo_weights(ma, la, mb, lb, selreg, mm, _=None):
        A(f'v_max_f32 v76, v{ma}, v{mb}\nv_mov_b32 v77, v76\nv_permlane16_swap_b32 v76, v77\nv_max_f32 v76, v76, v77')
        A('v_mov_b32 v77, v76\nv_permlane32_swap_b32 v76, v77\nv_max_f32 v76, v76, v77')
        A(f'v_sub_f32 v{ma}, v{ma}, v76\nv_sub_f32 v{mb}, v{mb}, v76\nv_exp_f32 v{ma}, v{ma}\nv_exp_f32 v{mb}, v{mb}')
        A(f'v_cvt_pk_bf16_f32 v{ma}, v{ma}, v{ma}\nv_cvt_pk_bf16_f32 v{mb}, v{mb}, v{mb}')
        for i in range(4): A(f'v_and_b32 v{selreg+i}, v{MASK+i}, v{ma}')
        for i in range(4): A(f'v_and_b32 v{selreg+4+i}, v{MASK+i}, v{mb}')
        mm()
        A(f'v_and_b32 v{ma}, 0xffff0000, v{ma}\nv_and_b32 v{mb}, 0xffff0000, v{mb}\nv_mul_f32 v79, v{la}, v{ma}\nv_fmac_f32 v79, v{lb}, v{mb}')
        A('v_mov_b32 v77, v79\nv_permlane16_swap_b32 v79, v77\nv_add_f32 v79, v79, v77')
        A('v_mov_b32 v77, v79\nv_permlane32_swap_b32 v79, v77\nv_add_f32 v79, v79, v77\nv_rcp_f32 v78, v79')
    def wo_later():
        read_wo()
        if ldelay: A(f's_sleep {ldelay}')
        if dual & 4:
            def iss(k):
                b = (64, 100)[k]
                issue_g1(b, vG1, sOg, 'o')
                A.vmop(f'buffer_load_dwordx2 v[{b+8}:{b+9}], {vML2}, {WS}, {sMLg} offen sc1', 'o')
                A.vmop(f'buffer_load_dwordx2 v[{b+10}:{b+11}], {vML2}, {WS}, {sMLg} offen offset:32 sc1', 'o')
            d, sb, sa, j2 = lab('got'), lab('setb'), lab('seta'), lab('j2')
            iss(0)
            if dstep: A(f's_sleep {dstep}')
            iss(1)
            A(f'{sa}:\ns_waitcnt vmcnt(4)')
            check_empty(range(64, 76))
            A(f's_cbranch_vccnz {sb}\n{d}:')
            stamp()
            wo_weights(72, 73, 74, 75, 80, lambda: A(f'{M16} v[96:99], v[80:83], v[64:67], 0\n{M16} v[96:99], v[84:87], v[68:71], v[96:99]'), 76)
            A(f'{j2}:')
            keepL, A.L = A.L, []
            A(f'{sb}:'); iss(0)
            A('s_waitcnt vmcnt(4)')
            check_empty(range(100, 112))
            g2_ = lab('g2')
            A(f's_cbranch_vccz {g2_}')
            iss(1)
            A(f's_sub_u32 {sTO}, {sTO}, 1\ns_cbranch_scc0 {sa}\ns_mov_b32 {sTO}, 0\ns_branch {d}\n{g2_}:')
            nts[0] -= 1 if ts else 0; stamp()
            wo_weights(108, 109, 110, 111, 80, lambda: A(f'{M16} v[96:99], v[80:83], v[100:103], 0\n{M16} v[96:99], v[84:87], v[104:107], v[96:99]'), 76)
            A(f's_branch {j2}')
            tails.append('\n'.join(A.L)); A.L = keepL
            A.vm = []
            return
        poll(issue_o, range(64, 76))
        stamp()
        wo_weights(72, 73, 74, 75, 80, lambda: A(f'{M16} v[96:99], v[80:83], v[64:67], 0\n{M16} v[96:99], v[84:87], v[68:71], v[96:99]'))
    def wo_first():
        if not dual & 8:
            tagged_poll(issue_o0, (82, 86, 90, 94, 66, 70))
            stamp()
            wo_weights(64, 65, 68, 69, 100, lambda: tagged_sum(100, 80, 96, 4))
            return
        sets = ((80, 64), (48, 100))
        def iss(k):
            o0dst[0], o0ml[0] = sets[k]; issue_o0()
        def chk(k):
            a_, m_ = sets[k]; check_tags((a_ + 2, a_ + 6, a_ + 10, a_ + 14, m_ + 2, m_ + 6))
        def fin(k):
            a_, m_ = sets[k]; wo_weights(m_, m_ + 1, m_ + 4, m_ + 5, 116, lambda: tagged_sum(116, a_, 96, 4))
        lp, ga, gb, en = lab('lp'), lab('ga'), lab('gb'), lab('en')
        iss(0); A(f's_sleep {dstep}\n{lp}:'); iss(1)
        A('s_waitcnt vmcnt(6)'); chk(0); A(f's_cbranch_vccz {ga}')
        iss(0); A('s_waitcnt vmcnt(6)'); chk(1); A(f's_cbranch_vccz {gb}')
        A(f's_sub_u32 {sTO}, {sTO}, 1\ns_cbranch_scc0 {lp}\ns_mov_b32 {sTO}, 0\n{gb}:')
        stamp(); fin(1); A(f's_branch {en}\n{ga}:')
        nts[0] -= 1 if ts else 0; stamp(); fin(0); A(f'{en}:')
        A.vm = []
    with lowwaves():
        variant(wo_first, wo_later)
        A('v_pk_mul_f32 v[96:97], v[96:97], v[78:79] op_sel_hi:[1,0]\nv_cvt_pk_bf16_f32 v96, v96, v97')
        A(f'ds_write_b32 {vQW}, v96 offset:{L_OS-L_QS}\ns_waitcnt vmcnt(0)')
    A(f's_waitcnt lgkmcnt(0)\ns_barrier')
    if diag2: first_only(lambda: xstamp(50))()
    sk, dl = proj_out(4, vBR320, L_OS - L_QS, 0, lambda: (proj_body(4, vBR320, L_OS - L_QS, 0, read_wo), xstamp(52) if diag2 else None))
    leave_ = [None]
    def touch_lines(bases, r=80):
        for sb, off in bases:
            A(f's_add_u32 {t0}, {sb}, {off}\ns_add_u32 {t1}, {t0}, 4096')
            A(f'buffer_load_dwordx4 v[{r}:{r+3}], {vG1}, {WS}, {t0} offen sc1\nbuffer_load_dwordx4 v[{r+4}:{r+7}], {vG1}, {WS}, {t1} offen sc1')
    def touch_small(bases, r=88):
        for sb, off in bases:
            A(f's_add_u32 {t0}, {sb}, {off}\nbuffer_load_dwordx2 v[{r}:{r+1}], {vSt8}, {WS}, {t0} offen sc1')
    def watch_flags():
        l_, r_, d_ = lab('w4'), lab('fr'), lab('fd')
        A(f's_cmp_lg_u32 {sW}, 4\ns_cbranch_scc1 {l_}\ns_cmp_eq_u32 {sCNT}, 1\ns_cbranch_scc1 {l_}')
        flag_addr()
        if fdelay: A(f's_sleep {fdelay}')
        e_ = lab('fe')
        A(f'buffer_load_dword v69, v68, {WS}, {t1} offen sc1\ns_waitcnt vmcnt(0)\nv_cmp_ne_u32 vcc, {sTAG}, v69\ns_cbranch_vccz {d_}')
        A(f'{r_}:\ns_sleep {fback}\nbuffer_load_dword v69, v68, {WS}, {t1} offen sc1\ns_waitcnt vmcnt(0)\nv_cmp_ne_u32 vcc, {sTAG}, v69\ns_cbranch_vccz {e_}')
        A(f's_sub_u32 {sTO}, {sTO}, 1\ns_cbranch_scc0 {r_}\ns_mov_b32 {sTO}, 0\n{e_}:')
        if flate: A(f's_sleep {flate}')
        A(f'{d_}:')
        A(f'v_mov_b32 v68, {L_FL}\nv_mov_b32 v69, 1\nds_write_b32 v68, v69')
        if diag2: xstamp(51)
        A(f's_branch {after_sleep[0]}\n{l_}:')
    def await_flags():
        r_, d_ = lab('ar'), lab('ad')
        A(f'v_mov_b32 v68, {L_FL}\n{r_}:\nds_read_b32 v69, v68\ns_waitcnt lgkmcnt(0)\nv_cmp_eq_u32 vcc, 1, v69\ns_cbranch_vccnz {d_}')
        A(f's_sleep 1\ns_sub_u32 {sTO}, {sTO}, 1\ns_cbranch_scc0 {r_}\ns_mov_b32 {sTO}, 0\n{d_}:')
        if touch_g:
            with lowwaves(): touch_lines([(sGg, 0)])
    after_sleep = [None]
    def w567(parts=None, pause=0):
        l_ = lab('f5'); A(f's_cmp_eq_u32 {sW}, 4\ns_cbranch_scc1 {l_}')
        if pause: A(f's_sleep {pause}')
        for dw in (-5, -2, 1):
            k_ = lab('fs')
            if dw == 1: A(f's_cmp_eq_u32 {sW}, 7\ns_cbranch_scc1 {k_}')
            issue_ffn_any(dw, parts)
            A(f'{k_}:')
        A(f'{l_}:')
    def quick_gu():
        for k_ in range(2):
            A(f's_add_u32 m0, s84, {L_WG + 4096 * k_}\ns_nop 0\nbuffer_load_dwordx4 v126, {WG}, s{80+k_} offen nt lds')
            A(f's_add_u32 m0, s84, {L_WU + 4096 * k_}\ns_nop 0\nbuffer_load_dwordx4 v126, {WU}, s{80+k_} offen nt lds')
    def quick_d():
        for k_ in range(2):
            A(f's_add_u32 m0, s84, {L_WD + 4096 * k_}\ns_nop 0\nbuffer_load_dwordx4 v127, {WD}, s{82+k_} offen nt lds')
    def hi_first():
        o_, r_, e_, d_ = lab('fo'), lab('fr'), lab('fe'), lab('fd')
        nod = wd_behind or 'd' in tail_parts
        nw = 4 if nod else 6
        A(f's_cmp_lg_u32 {sW}, 4\ns_cbranch_scc1 {o_}')
        A(f'buffer_load_dword v69, v114, {WS}, s85 offen sc1')
        quick_gu()
        if not nod: quick_d()
        A(f's_waitcnt vmcnt({nw})\nv_cmp_ne_u32 vcc, {sTAG}, v69\ns_cbranch_vccz {d_}')
        A(f'{r_}:\ns_sleep {fback}\nbuffer_load_dword v69, v114, {WS}, s85 offen sc1\ns_waitcnt vmcnt(0)\nv_cmp_ne_u32 vcc, {sTAG}, v69\ns_cbranch_vccz {e_}')
        A(f's_sub_u32 {sTO}, {sTO}, 1\ns_cbranch_scc0 {r_}\ns_mov_b32 {sTO}, 0\n{e_}:')
        if flate: A(f's_sleep {flate}')
        A(f'{d_}:\nv_mov_b32 v68, {L_FL}\nv_mov_b32 v69, 1\nds_write_b32 v68, v69')
        if diag2: xstamp(51)
        A(f's_sleep {hi4}\ns_branch {after_sleep[0]}\n{o_}:\ns_sleep 1')
        quick_gu()
        if not nod: quick_d()
        if diag2:
            l_ = lab('d5'); A(f's_cmp_lg_u32 {sW}, 5\ns_cbranch_scc1 {l_}'); xstamp(53); A('s_waitcnt vmcnt(0)'); xstamp(55); A(f's_branch {after_sleep[0]}\n{l_}:')
        clean_rest()
    def hi_xb():
        leave_[0]()
        if touch_att:
            first_only(lambda: (touch_lines([(sQg, 0)]), touch_small([(sQSg, 0)])))()
            return
        if touch1 & 4: first_only(lambda: (touch_lines([(sGg, LS)]), touch_small([(sGSg, LS)])))()
        if touch1 & 8: first_only(lambda: (touch_lines([(sQg, 0), (sOg, LS)]), touch_small([(sQSg, 0), (sMLg, LS)])))()
    late_gu = 'g' not in tail_parts
    go, aw = lab('go'), lab('aw')
    after_sleep[0] = aw
    def lo_pre():
        if not late_gu: read_gu()
        A(f's_cmp_eq_u32 {sLIDX}, 0\ns_cbranch_scc1 {aw}_lo')
        if late_gu: read_gu()
    def hi_pre():
        A(f's_cmp_eq_u32 {sLIDX}, 0\ns_cbranch_scc1 {aw}_hi')
    g_wait(sk, dl, lo_pre, False, hi_pre)
    A(f'{go}:')
    keepL, A.L = A.L, []
    A(f'{aw}_hi:')
    hi_first()
    A(f's_sleep {hi0}\ns_branch {aw}\n{aw}_lo:\ns_sleep {lo0}\n{aw}:')
    await_flags()
    if wd_behind:
        A(f's_cmp_lt_u32 {sW}, 4\ns_cbranch_scc1 {go}\ns_mov_b32 {t0}, {sXg}')
        issue_g1(64, vXg, t0, 'x', 8192); quick_d()
        A(f's_waitcnt vmcnt(2)\ns_branch L_xa_landed')
    else: A(f's_branch {go}')
    tails.append('\n'.join(A.L)); A.L = keepL
    stamp()
    if diag2: A(f's_mov_b32 s65, {sTO}')
    reduce_x(0, False)
    if diag2: first_only(lambda: A(f's_sub_u32 s65, s65, {sTO}\nv_readlane_b32 s94, {vTS}, 0\ns_mul_i32 s65, s65, 100\ns_add_u32 s65, s65, s94\nv_writelane_b32 {vTS}, s65, 54'))()
    def issue_gp(first):
        issue_g1(64, vG1, sGg, 'g')
        A.vmop(f'buffer_load_dwordx2 v[72:73], {vSt8}, {WS}, {sGSg} offen sc1', 'g')
        if first:
            A(f'v_and_b32 {vTMP}, 0xf0, {vG1}\nv_and_b32 {vTMP2}, 0xc00, {vG1}\nv_lshrrev_b32 {vTMP2}, 2, {vTMP2}\nv_or_b32 {vTMP}, {vTMP}, {vTMP2}')
            issue_g1(80, vTMP, sGCg, 'g', 1024)
    def ffn_gather(first):
        def f():
            if ldelay and not first: A(f's_sleep {ldelay}')
            if dual & 32 and first:
                sets = ((64, 80), (102, 116))
                A(f'v_and_b32 v114, 0xf0, {vG1}\nv_and_b32 {vTMP2}, 0xc00, {vG1}\nv_lshrrev_b32 {vTMP2}, 2, {vTMP2}\nv_or_b32 v114, v114, {vTMP2}')
                def iss(k):
                    a_, c_ = sets[k]
                    issue_g1(a_, vG1, sGg, 'x')
                    A.vmop(f'buffer_load_dwordx2 v[{a_+8}:{a_+9}], {vSt8}, {WS}, {sGSg} offen sc1', 'x')
                    issue_g1(c_, 'v114', sGCg, 'x', 1024)
                def spec(k):
                    a_, c_ = sets[k]
                    A(f'{M16} v[96:99], {SELG}, v[{a_}:{a_+3}], 0\n{M16} v[96:99], {SELG}, v[{a_+4}:{a_+7}], v[96:99]')
                    A(f'{M16} v[88:91], {SELG}, v[{c_}:{c_+3}], 0\n{M16} v[88:91], {SELG}, v[{c_+4}:{c_+7}], v[88:91]')
                    A(f'v_add_f32_dpp v78, v{a_+8}, v{a_+8} quad_perm:[1,0,3,2] {DPP}\nv_add_f32_dpp v79, v{a_+9}, v{a_+9} quad_perm:[1,0,3,2] {DPP}')
                poll2(iss, 5, lambda k: list(range(sets[k][0], sets[k][0] + 10)) + list(range(sets[k][1], sets[k][1] + 8)), spec)
                ln_finish(CSG, 1.0, True, 88)
                return
            if dual & 2 and not first: ln_poll2(sGg, sGSg, SELG)
            else: poll(lambda: issue_gp(first), QREGS1 if first else QREGS, ln_spec(SELG, first))
            ln_finish(CSG, 1.0, first)
        return f
    def hi_after_xa():
        slice_stats(sGSst)
        def f():
            if wd_after: w567('d')
            if rest_at == 'g0': clean_rest()
        if wd_after or rest_at == 'g0': first_only(f)()
    with lowwaves(hi_after_xa):
        matvec(vGst, 'plain', first_only(read_gu) if late_gu else None, sLAY)
        stamp()
        if wd_after or wd_behind: later_only(read_wd)
        else: read_wd()
        variant(ffn_gather(True), ffn_gather(False))
        stamp()
        A('v_cvt_pk_bf16_f32 v96, v96, v97\nv_and_b32 v97, 0xffff0000, v96\nv_lshlrev_b32 v96, 16, v96\nv_max_f32 v96, 0, v96\nv_mul_f32 v96, v96, v97\nv_cvt_pk_bf16_f32 v96, v96, v96')
        A(f'ds_write_b16 {vHW}, v96')
    A('s_waitcnt vmcnt(0) lgkmcnt(0)\ns_barrier')
    sk, dl = proj_out(2, vBR192, 0, oXB - oXA, (lambda: proj_body(2, vBR192, 0, oXB - oXA, read_wd)) if (wd_after or wd_behind) else None)
    def leave():
        no = lab('no')
        A(f's_cmp_eq_u32 {sLIDX}, 0\ns_cbranch_scc1 {no}\ns_cmp_lg_u32 {sHI}, 0\ns_cbranch_scc1 L_fin\ns_cmp_lg_u32 {sG}, {sLO}\ns_cbranch_scc1 L_fin\n{no}:')
    def pre_q():
        leave()
        read_wq()
    leave_[0] = leave
    g_wait(sk, dl, pre_q, False, hi_xb, gd_b, gdh_b, xb0)
    stamp()
    reduce_x(oXB - oXA, True)
    keep = nts[0]; nts[0] -= 11
    def advance():
        A(f's_mov_b32 {sLIDX}, 1\ns_mov_b32 {sLAY}, {LS}')
        for s in (sOg, sGg, sMLg, sGSg, sXg, sOPst, sMLst, sXst, sGSst):
            A(f's_add_u32 {s}, {s}, {LS}')
    with lowwaves(lambda: (slice_stats(sQSst), advance())):
        matvec(vQst, 'plain')
        advance()
        stamp()
        if ldelay: A(f's_sleep {ldelay}')
        if dual & 1: ln_poll2(sQg, sQSg, SELA)
        else: poll(lambda: issue_q(False), QREGS, ln_spec(SELA, False))
        stamp()
        q_finish(False)
    if share:
        A('; ---- scores, row maximum, exp2, row sum (shared by both layers), P V')
        A('s_waitcnt vmcnt(0) lgkmcnt(0)\ns_barrier')
        if touch_att:
            with lowwaves(lambda: (touch_lines([(sOg, 0), (sGg, 0)], 48), touch_small([(sMLg, 0), (sGSg, 0)], 56))): pass
        A('L_scores:')
        scores(False)
        A(f's_cmp_eq_u32 {sLIDX}, 0\ns_cbranch_scc1 L_scored')
    else: scores()
    for i in range(16):
        pv(i)
        if i == 5: lsum()
    stamp()
    if share: A('s_branch L_merge')
    else:
        combine()
        stamp()
        A('s_branch L_layer')
    nts[0] = keep
    A('L_out:')
    A(f'buffer_store_dword v96, {vXO}, {OUT}, 0 offen' + (' sc1' if out_sc1 else ''))
    A(f's_or_b32 {t1}, s2, {sW}\ns_cmp_lg_u32 {t1}, 0\ns_cbranch_scc1 L_fin0')
    A(f's_mov_b64 exec, 1\nv_mov_b32 v97, {sTAG}\ns_mov_b32 {t2}, {EPOCH}\nbuffer_store_dword v97, off, {WS}, {t2} sc1')
    A('L_fin0:')
    full_exec()
    A('L_fin:')
    if wb:
        A(f's_cmp_lg_u32 {sC}, 31\ns_cbranch_scc1 L_nowb\ns_cmp_lg_u32 {sW}, 7\ns_cbranch_scc1 L_nowb\nbuffer_wbl2 sc1' + ('\ns_waitcnt vmcnt(0)' if wb == 1 else '') + '\nL_nowb:')
    if padto:
        A(f'L_pad:\ns_memrealtime s[94:95]\ns_waitcnt lgkmcnt(0)\ns_sub_u32 s94, s94, s98\ns_cmp_lt_u32 s94, {padto}\ns_cbranch_scc1 L_pad')
    if ts:
        stamp(True)
        A(f's_memtime s[94:95]\ns_waitcnt lgkmcnt(0)\ns_sub_u32 s94, s94, s98\nv_writelane_b32 {vTS}, s94, 63')
        A(f's_add_u32 s96, s96, 0x10000000\ns_addc_u32 s97, s97, 0\ns_lshl_b32 {t1}, s2, 11\nv_add_u32 v64, {t1}, {vT4}\nglobal_store_dword v64, {vTS}, s[96:97]')
        if dbgts:
            A(f's_or_b32 {t1}, s2, {sW}\ns_cmp_lg_u32 {t1}, 0\ns_cbranch_scc1 L_end')
            A(f'v_readlane_b32 {t1}, {vTS}, 0\nv_subrev_u32 v64, {t1}, {vTS}\nv_and_b32 v64, 0xffff, v64')
            A(f'v_mov_b32_dpp v65, v64 quad_perm:[1,1,3,3] {DPP}\nv_lshl_or_b32 v64, v65, 16, v64\nv_lshlrev_b32 v65, 1, {vL}')
            A(f's_mov_b32 exec_lo, 0x55555555\ns_mov_b32 exec_hi, 0\nbuffer_store_dword v64, v65, {DBG}, 0 offen sc1')
    A('s_endpgm')
    for t_ in tails: A(t_)
    A('L_end:\ns_endpgm')
    A(f'.section .rodata,"a"\n.p2align 6\n.amdhsa_kernel {NAME}_kernel')
    A('.amdhsa_next_free_vgpr 256\n.amdhsa_next_free_sgpr 102\n.amdhsa_accum_offset 128\n.amdhsa_group_segment_fixed_size 0\n.amdhsa_kernarg_size 96\n.amdhsa_user_sgpr_count 2\n.amdhsa_user_sgpr_kernarg_segment_ptr 1\n.amdhsa_system_sgpr_workgroup_id_x 1\n.end_amdhsa_kernel')
    txt, probs = A.text()
    for p in probs: print('HAZARD', p, file=sys.stderr)
    return txt, nts[0]

if __name__ == '__main__':
    out = sys.argv[1]
    kw = {}
    for a in sys.argv[2:]:
        k, v = a.split('='); kw[k] = eval(v)
    txt, n = build(**kw)
    open(out, 'w').write(txt)
    print('stamps', n, 'lines', txt.count('\n'))
```

```python
import sys, math, struct
sys.path.insert(0, 'gen')
from asmlib import Asm

NAME = "interleave_layers__sliding_block_cached__glu_gated_reglu__decode"

bQP, bQS, bOP, bML, bGP, bGS, bGC, GB = 0x0, 0x8000, 0x8400, 0x10400, 0x10800, 0x18800, 0x18C00, 0x1AC00
oXA, oXB, LS = 8 * GB, 8 * GB + 0x20000, 8 * GB + 0x40000
TQP, TQC, TOP, TML, TF, EPOCH = 0x240000, 0x2C0000, 0x2E0000, 0x360000, 0x364000, 0x36C000
WS_REC = 0x36C100
OOB = 0x7FFF0000
L_RING, L_WQ, L_WO, L_WG, L_WU, L_WD = 0, 65536, 81920, 98304, 106496, 114688
L_QS, L_OS, L_HS, L_XS, L_RM, L_ST = 122880, 124160, 125440, 126208, 127168, 127424
L_FL = L_ST + 16
LDS_BYTES = 127488

def f32(x): return '0x%08x' % struct.unpack('<I', struct.pack('<f', x))[0]
QSCALE = 128 ** -0.5 * math.log2(math.e)

sW, sG, sC, sHI, sLO = 's3', 's4', 's5', 's6', 's7'
WS, KK, VV, WQ, WO, WG, WU, WD, XX, OUT, DBG = [f's[{i}:{i+3}]' for i in range(8, 52, 4)]
sKV, sRING, t0, t1, t2, t3 = 's52', 's53', 's54', 's55', 's56', 's57'
sLAY, sTO, sFAST, sCNT, sGOK, sLIDX = 's58', 's59', 's60', 's61', 's62', 's63'
sQg, sOg, sGg, sQSg, sMLg, sGSg, sXg, sGBASE, sGCg = ['s%d' % i for i in range(66, 75)]
sOPst, sMLst, sXst, sQSst, sGSst = ['s%d' % i for i in range(75, 80)]
g0, g1, g2, g3 = 's90', 's91', 's92', 's93'
vL, vT4, vSt8, vXg, vQst, vGst, vSSt, vG1, vXst, vQW, vBR320, vHW, vBR192, vXR, vXW, vL4 = ['v%d' % i for i in range(16)]
vROW, vROR, vRMW, vRMR, vWQr, vWr, vWOr, vXO = ['v%d' % i for i in range(16, 24)]
CSQ, CSG = 'v[24:25]', 'v[26:27]'
vTS, vML2, vTMP, vTMP2 = 'v28', 'v29', 'v30', 'v31'
SELA, MASK, SELG, ONES = 'v[32:35]', 36, 'v[40:43]', 'v[44:45]'
vMLst = 'v46'
XRES = 'v[112:113]'
sM4 = 's[88:89]'
sTAG = 's100'
DPP = 'row_mask:0xf bank_mask:0xf'
M16 = 'v_mfma_f32_16x16x32_bf16'

HEADER = r'''
;
;
;   - first q and first attention exchange: 16-byte granules {4 x bf16, tag, ..}; tag = (word found at ws+EPOCH) + 1,
;   Stores that are only read inside the group are plain when every member reported the same XCC id, write-through
'''

def build(ts=False, gdelay=12, gdelay_hi=18, pf_code=True, rides=(16, 21), w_at='land31', ldelay=0, bar_after_k0=False, fride=26, ffn_hi=False, touch_o=0, touch_g=0, ffn_sleep=0, clean3_xa=0, tlb=0, diag2=0, ffn_at=0, fdelay=1, fback=4, wo_at=0, csq_o=0, touch1=12, wt_at=29, csq_at=25, xa0=0, xb0=4, cl_at=29, tail_parts='d', lo0=12, hi0=15, hi4=4, wd_after=0, wd_behind=0, rest_at='xa', fearly=10, use_early=0, fullflag=1, flag_first=0, jitter=0, mid_parts='', mid_sleep=8, touch_att=1, p_sc=26, kpol='nt', vpol='nt', wb=0, out_sc1=0, dual=15, dstep=3, pf_few=0, pf_late=0, flate=0, share=1, gd_b=11, gdh_b=15, ffn_by_hi=1, tmajor=1, prio=0, padto=0, padfrom='', warm=16, warm_at='lead', warm_x=1, wd_late=0, xback=0, deep_from=24, depth=5, deep=7, diag=0, noclean=0, burst=4, late47=0, abl='', backoff=0, cl_sc1=1, dbgts=0, wsoff=0):
    A = Asm()
    uid = [0]
    def lab(p):
        uid[0] += 1; return f'L_{p}_{uid[0]}'
    nts = [0]; inloop = [False]
    def stamp(key=False):
        if jitter:
            l_ = lab('jt')
            A(f's_memtime s[94:95]\ns_waitcnt lgkmcnt(0)\ns_mul_i32 s94, s94, 0x9e3779b1\ns_xor_b32 s94, s94, s2\ns_mul_i32 s94, s94, 0x85ebca6b\ns_lshr_b32 s94, s94, {32 - jitter}')
            A(f's_cmp_lg_u32 s94, 0\ns_cbranch_scc1 {l_}\ns_sleep 100\n{l_}:')
        if not ts: return
        if ts == 2 and not key:
            nts[0] += 1; return
        if inloop[0]:
            A(f's_memrealtime s[94:95]\ns_mul_i32 m0, {sLIDX}, 11\ns_add_u32 m0, m0, {nts[0]}\ns_waitcnt lgkmcnt(0)\nv_writelane_b32 {vTS}, s94, m0')
        else:
            A(f's_memrealtime s[94:95]\ns_waitcnt lgkmcnt(0)\nv_writelane_b32 {vTS}, s94, {nts[0]}')
        nts[0] += 1
    def xstamp(i):
        A(f's_memrealtime s[94:95]\ns_waitcnt lgkmcnt(0)\nv_writelane_b32 {vTS}, s94, {i}')
    def set_exec(lo, hi=None):
        hi = lo if hi is None else hi
        A(f's_mov_b32 exec_lo, {lo:#x}\ns_mov_b32 exec_hi, {hi:#x}')
    def full_exec(): A('s_mov_b64 exec, -1')
    tails = []
    def lstore(fmt, tag='st', nxt=None, cmp=True):
        a, b = lab('wt'), lab('sd')
        for f_ in fmt.split('\n'): A((';;need2 ' if cmp else ';;need1 ') + f_)
        if cmp: A(f's_cmp_eq_u32 {sFAST}, 1')
        A(f's_cbranch_scc0 {a}')
        A(fmt); A(f'{b}:')
        tails.append(f'{a}:\n' + '\n'.join(f_ + ' sc1' for f_ in fmt.split('\n')) + f'\ns_branch {b}')
        A.vm.append(tag)
    class lowwaves:
        def __init__(s, other=None): s.other = other
        def __enter__(s):
            s.l = lab('hi'); s.o = lab('up') if s.other else s.l
            A(f's_cmp_ge_u32 {sW}, 4\ns_cbranch_scc1 {s.o}')
        def __exit__(s, *a):
            A(f'{s.l}:')
            if s.other:
                keepL, A.L = A.L, []
                A(f'{s.o}:'); s.other(); A(f's_branch {s.l}')
                tails.append('\n'.join(A.L)); A.L = keepL
    def sel(dst, a, b):
        A(f'v_cndmask_b32 {dst}, {a}, {b}, vcc')

    A(f'; @launch grid=(256,1,1) block=(512,1,1) lds={LDS_BYTES}')
    for l_ in HEADER.strip('\n').split('\n'): A.L.append(l_)
    A('.amdgcn_target "amdgcn-amd-amdhsa--gfx950"')
    A(f'.text\n.globl {NAME}_kernel\n.p2align 8\n.type {NAME}_kernel,@function\n{NAME}_kernel:')
    A('s_cmp_ge_u32 s2, 256\ns_cbranch_scc1 L_end')
    A('s_load_dwordx16 s[64:79], s[0:1], 0\ns_load_dwordx8 s[80:87], s[0:1], 64')
    if padto: A('s_memrealtime s[98:99]')
    if diag: A('s_memrealtime s[96:97]')
    A(f'v_lshlrev_b32 {vT4}, 2, v0')
    def prefetch_code():
        if pf_few: A(f's_cmp_ge_u32 s2, {8 * pf_few}\ns_cbranch_scc1 L_nopf')
        A(f's_getpc_b64 s[94:95]\nL_pc:\ns_sub_u32 s94, s94, L_pc-{NAME}_kernel\ns_subb_u32 s95, s95, 0\ns_lshr_b32 s93, s2, 3\ns_and_b32 s93, s93, 1\ns_lshl_b32 s93, s93, 13\nv_lshlrev_b32 {vTMP}, 2, {vT4}\nv_add_u32 {vTMP}, s93, {vTMP}')
        A(f'v_min_u32 {vTMP}, L_end-{NAME}_kernel-16, {vTMP}')
        A(f'global_load_dwordx4 v[96:99], {vTMP}, s[94:95]')
        if pf_few: A('L_nopf:')
        else: A.vm.append('pf')
    if pf_code and not pf_late: prefetch_code()
    A(f'v_lshrrev_b32 {vTMP}, 6, v0')
    A(f'v_and_b32 {vL}, 63, v0')
    A(f'v_readfirstlane_b32 {sW}, {vTMP}')
    A(f's_and_b32 {sG}, s2, 7\ns_lshr_b32 {sC}, s2, 3\ns_lshr_b32 {sHI}, {sC}, 3\ns_and_b32 {sLO}, {sC}, 7')
    A(f'v_and_b32 v120, 15, {vL}\nv_lshrrev_b32 v121, 4, {vL}')
    A(f'v_lshlrev_b32 {vTMP}, 2, v121\nv_xor_b32 {vTMP}, v120, {vTMP}\nv_lshlrev_b32 {vTMP}, 4, {vTMP}\nv_lshl_add_u32 v116, v121, 8, {vTMP}\nv_lshl_add_u32 v124, v121, 13, {vTMP}')
    A(f'v_and_b32 v122, 3, {vL}\nv_lshrrev_b32 v123, 2, v120')
    A(f's_lshr_b32 {t0}, {sW}, 1\ns_lshl_b32 {t0}, {t0}, 10\ns_and_b32 {t1}, {sW}, 1\ns_lshl_b32 {t1}, {t1}, 6\ns_add_u32 {t0}, {t0}, {t1}\ns_lshl_b32 {t1}, {sLO}, 7\ns_add_u32 {t0}, {t0}, {t1}')
    A(f'v_lshlrev_b32 v117, 4, v122\nv_lshl_add_u32 v117, v121, 2, v117\nv_add_u32 {vXO}, {t0}, v117')
    A(f's_lshl_b32 {t0}, {sHI}, 3\ns_add_u32 {t0}, {t0}, {sG}\ns_lshl_b32 {sKV}, {t0}, 22\ns_lshl_b32 {t0}, {sLO}, 17\ns_add_u32 {sKV}, {sKV}, {t0}\ns_add_u32 {sKV}, {sKV}, {12288*256}')
    A(f's_add_u32 {t0}, {sG}, {sC}\ns_add_u32 {t0}, {t0}, {sW}\ns_and_b32 {t0}, {t0}, 7\ns_lshl_b32 {t0}, {t0}, 12\ns_add_u32 {sKV}, {sKV}, {t0}')
    A(f's_lshl_b32 {sRING}, {sW}, 13')
    A(f's_and_b32 {g3}, {sW}, 3')
    A(f's_lshl_b32 {t0}, {sG}, 2\ns_add_u32 {t0}, {t0}, {sHI}')
    A(f'v_mov_b32 v118, {OOB}')
    A(f's_mul_i32 s101, {sG}, {GB}')
    A(f's_lshl_b32 {t1}, {sLO}, 6\ns_lshl_b32 {t2}, {sW}, 3\ns_add_u32 {t1}, {t1}, {t2}\ns_lshl_b32 {t1}, {t1}, 13\ns_lshl_b32 {t2}, {sG}, 10\ns_add_u32 {t1}, {t1}, {t2}\ns_lshl_b32 {t2}, {sHI}, 8\ns_add_u32 {t1}, {t1}, {t2}')
    A(f's_lshl_b32 {t2}, {sW}, 11\ns_add_u32 m0, {t2}, {L_WQ}')
    if ts:
        A(f'v_mov_b32 {vTS}, 0')
        if diag: A(f's_mov_b32 s92, s96');
        stamp(True)
        if diag: A(f'v_writelane_b32 {vTS}, s96, 38')
        A(f's_memtime s[98:99]')
    A('s_waitcnt lgkmcnt(0)')
    if diag: xstamp(39)
    def srd(d, lo, n):
        A(f's_mov_b32 s{d}, s{lo}\ns_mov_b32 s{d+1}, s{lo+1}\ns_mov_b32 s{d+2}, {n}\ns_mov_b32 s{d+3}, 0x20000')
    srd(20, 70, 4194304)
    A.vmop(f'buffer_load_dwordx4 v124, {WQ}, {t1} offen nt lds', 'wq')
    A(f's_add_u32 {t1}, {t1}, 32768\ns_add_u32 m0, m0, 1024')
    srd(40, 64, 4096)
    A.vmop(f'buffer_load_dwordx4 v124, {WQ}, {t1} offen nt lds', 'wq')
    srd(8, 86, WS_REC)
    if wsoff: A(f's_add_u32 s8, s8, {wsoff}\ns_addc_u32 s9, s9, 0')
    A.vmop(f'buffer_load_dword v68, {vXO}, {XX}, 0 offen', 'x0')
    A(f's_lshr_b32 {t2}, {sW}, 1\ns_lshl_b32 {t2}, {t2}, 10\nv_lshlrev_b32 {vTMP}, 4, {vL}')
    A.vmop(f'buffer_load_dwordx4 v[72:75], {vTMP}, {XX}, {t2} offen', 'x0')
    A(f's_mov_b32 {t2}, {EPOCH}')
    A.vmop(f'buffer_load_dword v69, off, {WS}, {t2} sc1', 'ep')
    srd(12, 66, 0x8000000)
    def piece(p, setm0=False):
        t, q = (p % 16) // 4, p % 4
        if q == 0 or setm0:
            A(f's_add_u32 {g1}, {sKV}, {t*32768}\ns_add_u32 m0, {sRING}, {((p//4)&1)*4096}')
        src = 'v116'
        A.vmop(f'buffer_load_dwordx4 {src}, {KK if p < 16 else VV}, {g1} offen offset:{q*1024} {kpol if p < 16 else vpol} lds', f'p{p}')
    for p in range(burst): piece(p)
    if pf_code and pf_late:
        assert not pf_few
        A('s_mov_b32 s92, s93'); prefetch_code(); A('s_mov_b32 s93, s92')
    srd(16, 68, 0x8000000)
    if ts: A('s_mov_b32 s96, s86\ns_mov_b32 s97, s87')

    srd(24, 72, 4194304); srd(44, 82, 4096); srd(48, 84, 256)
    srd(28, 76, 1835008); srd(32, 78, 1835008); srd(36, 80, 1835008)
    A(f's_mul_i32 {t1}, {sG}, 3\ns_add_u32 {t1}, {t1}, 4\ns_lshl_b32 {t2}, {sG}, 2\ns_cmp_ge_u32 {sG}, 4\ns_cselect_b32 {g2}, {t1}, {t2}\ns_add_u32 {g2}, {g2}, {sHI}\ns_min_u32 {g2}, {g2}, 27')
    if tlb:
        A(f's_lshl_b32 {t1}, {t0}, 17')
        A.vmop(f'buffer_load_dword v96, off, {WO}, {t1} nt', 'tlb')
        A(f's_mul_i32 {t1}, {sLO}, {64*3584}')
        A.vmop(f'buffer_load_dword v96, off, {WG}, {t1} nt', 'tlb')
        A.vmop(f'buffer_load_dword v96, off, {WU}, {t1} nt', 'tlb')
        A(f's_lshl_b32 {t1}, {g2}, 16')
        A.vmop(f'buffer_load_dword v96, off, {WD}, {t1} nt', 'tlb')
        A(f'v_lshlrev_b32 {vTMP}, 19, v120')
        A.vmop(f'buffer_load_dword v96, {vTMP}, {WS}, 0 offen nt', 'tlb')
        A.vmop(f'buffer_load_dword v96, off, {VV}, {sKV} nt', 'tlb')
    A(f's_getreg_b32 {t1}, hwreg(HW_REG_XCC_ID)\ns_and_b32 s64, {t1}, 15')
    A(f's_mov_b32 s88, 0x000f000f\ns_mov_b32 s89, 0x000f000f')
    A(f's_mov_b32 {sGBASE}, s101')
    A(f's_lshl_b32 {t1}, {sHI}, 13\ns_add_u32 {t1}, {t1}, {sGBASE}')
    A(f's_add_u32 {sQg}, {t1}, {bQP + LS}\ns_add_u32 {sOg}, {t1}, {bOP}\ns_add_u32 {sGg}, {t1}, {bGP}')
    A(f's_lshl_b32 {t1}, {g3}, 2\ns_add_u32 {t1}, {t1}, {sHI}\ns_lshl_b32 {t1}, {t1}, 6\ns_add_u32 {t1}, {t1}, {sGBASE}\ns_add_u32 {sQSg}, {t1}, {bQS + LS}')
    A(f's_lshl_b32 {sMLst}, {sLO}, 3\ns_add_u32 {sMLst}, {sMLst}, {t1}\ns_add_u32 {sMLst}, {sMLst}, {bML}')
    A(f's_lshl_b32 {t2}, {g3}, 13\ns_lshl_b32 {t1}, {sLO}, 10\ns_add_u32 {t2}, {t2}, {t1}\ns_lshl_b32 {t1}, {sHI}, 8\ns_add_u32 {t2}, {t2}, {t1}\ns_add_u32 {t2}, {t2}, {sGBASE}\ns_add_u32 {sOPst}, {t2}, {bOP}')
    A(f's_lshl_b32 {t1}, {sHI}, 2\ns_add_u32 {t1}, {t1}, {g3}\ns_lshl_b32 {t1}, {t1}, 6\ns_add_u32 {t1}, {t1}, {sGBASE}\ns_add_u32 {sMLg}, {t1}, {bML}\ns_add_u32 {sGSg}, {t1}, {bGS}')
    A(f's_lshl_b32 {t1}, {sLO}, 14\ns_add_u32 {sXg}, {t1}, {oXA}')
    A(f's_lshl_b32 {t1}, {t0}, 9\ns_add_u32 {sXst}, {sXg}, {t1}')
    A(f's_lshl_b32 {t1}, {sHI}, 11\ns_add_u32 {t1}, {t1}, {sGBASE}\ns_add_u32 {sGCg}, {t1}, {bGC}')
    A(f's_lshl_b32 {t3}, {sHI}, 8\ns_lshl_b32 {t1}, {sLO}, 3\ns_add_u32 {t3}, {t3}, {t1}\ns_add_u32 {t3}, {t3}, {sGBASE}\ns_add_u32 {sQSst}, {t3}, {bQS + LS}\ns_add_u32 {sGSst}, {t3}, {bGS}')
    A(f's_lshl_b32 s101, {t0}, 14\ns_add_u32 s101, s101, {TQP}')
    A(f's_lshl_b32 {t1}, {sLO}, 10\ns_lshl_b32 {t2}, {sHI}, 8\ns_add_u32 {t1}, {t1}, {t2}\ns_lshl_b32 {t2}, {g3}, 6\ns_add_u32 {t3}, {t1}, {t2}')
    A(f's_add_u32 {t1}, {sGBASE}, {t3}\ns_add_u32 {t1}, {t1}, {LS}\ns_mov_b32 {t2}, {OOB}')
    A(f's_cmp_ge_u32 {sW}, 4\ns_cselect_b32 {g0}, 0, 5')
    def st_off(dst, shift):
        A(f'v_lshlrev_b32 {vTMP}, {shift}, v120\nv_add_u32 {vTMP}, {t1}, {vTMP}\nv_mov_b32 {vTMP2}, {t2}\nv_cmp_eq_u32 vcc, 4, v120'); sel(vTMP, vTMP, vTMP2)
        A(f'v_lshl_add_u32 {vTMP}, v121, 4, {vTMP}\nv_cmp_gt_u32 vcc, {g0}, v120'); sel(dst, 'v118', vTMP)
    st_off(vQst, 13)
    A(f's_lshl_b32 {t3}, {t3}, 1\ns_lshl_b32 {t1}, {g3}, 6\ns_sub_u32 {t3}, {t3}, {t1}\ns_lshl_b32 {t1}, {sG}, 16\ns_add_u32 {t1}, {t1}, {t3}\ns_add_u32 {t1}, {t1}, {TQP}\ns_lshl_b32 {t2}, {sG}, 14\ns_add_u32 {t2}, {t2}, {t3}\ns_add_u32 {t2}, {t2}, {TQC}')
    st_off('v109', 14)
    A(f'v_lshlrev_b32 {vTMP}, 6, v122\nv_add_u32 {vTMP2}, 4, {vTMP}\nv_cmp_gt_u32 vcc, 16, {vL}'); sel(vTMP, vTMP, vTMP2)
    A(f'v_and_b32 {vTMP2}, {0x1ec*4}, {vT4}\nv_cmp_eq_u32 vcc, {256*4}, {vTMP2}'); sel(vSSt, 'v118', vTMP)
    A(f'v_lshlrev_b32 v115, 2, {vT4}')
    A(f's_lshl_b32 {t1}, {sG}, 2\ns_add_u32 {t1}, {t1}, {g3}\ns_lshl_b32 {t1}, {t1}, 14\ns_lshl_b32 {t2}, {sLO}, 11\ns_add_u32 {t1}, {t1}, {t2}\ns_lshl_b32 {t2}, {sHI}, 9\ns_add_u32 {t1}, {t1}, {t2}\ns_add_u32 {t1}, {t1}, {TOP}')
    A(f'v_and_b32 {vTMP}, 2, {vL}\nv_lshlrev_b32 {vTMP}, 7, {vTMP}\nv_lshrrev_b32 {vTMP2}, 2, {vL}\nv_lshl_add_u32 {vTMP}, {vTMP2}, 4, {vTMP}\nv_add_u32 {vTMP}, {t1}, {vTMP}\nv_and_b32 {vTMP2}, 1, {vL}\nv_cmp_eq_u32 vcc, 0, {vTMP2}'); sel('v110', 'v118', vTMP)
    A(f's_mov_b32 {sLAY}, 0\ns_mov_b32 {sTO}, 400000\ns_mov_b32 {sFAST}, 0\ns_mov_b32 {sCNT}, 0\ns_mov_b32 {sGOK}, 0\ns_mov_b32 {sLIDX}, 0')
    A(f's_lshl_b32 {t3}, {g3}, 6\ns_lshl_b32 {t1}, {sLO}, 10\ns_add_u32 {t1}, {t1}, {sGg}\ns_add_u32 {t1}, {t1}, {t3}\ns_lshl_b32 {t2}, {sLO}, 8\ns_add_u32 {t2}, {t2}, {sGCg}\ns_add_u32 {t2}, {t2}, {t3}')
    st_off(vGst, 8)
    A(f'v_and_b32 {vTMP}, 7, {vL}\nv_lshlrev_b32 {vSt8}, 3, {vTMP}\nv_lshlrev_b32 {vL4}, 2, {vL}\nv_lshlrev_b32 {vML2}, 3, v121')
    A(f'v_cmp_eq_u32 vcc, 0, {vL}'); sel(vMLst, 'v118', '0')
    A(f's_lshl_b32 {t1}, {g3}, 8\nv_lshlrev_b32 {vTMP}, 4, v120\nv_lshl_add_u32 {vG1}, v121, 10, {vTMP}\nv_add_u32 {vG1}, {t1}, {vG1}')
    A(f's_lshl_b32 {t1}, {sW}, 6\nv_lshlrev_b32 {vXg}, 11, v123\nv_lshl_add_u32 {vXg}, v121, 9, {vXg}\nv_lshl_add_u32 {vXg}, v122, 4, {vXg}\nv_add_u32 {vXg}, {t1}, {vXg}')
    A(f's_lshr_b32 {t1}, {sW}, 1\ns_mul_i32 {t1}, {t1}, 192\ns_and_b32 {t2}, {sW}, 1\ns_lshl_b32 {t2}, {t2}, 6\ns_add_u32 {t1}, {t1}, {t2}\ns_add_u32 {t1}, {t1}, {L_XS}\nv_add_u32 {vXW}, {t1}, v117')
    A(f's_mul_i32 {t1}, {g3}, 320\ns_add_u32 {t1}, {t1}, {L_QS}\nv_lshl_add_u32 {vQW}, v121, 2, {vTMP}\nv_add_u32 {vQW}, {t1}, {vQW}')
    A(f's_mul_i32 {t1}, {g3}, 192\ns_add_u32 {t1}, {t1}, {L_HS}\nv_lshlrev_b32 {vHW}, 3, v120\nv_lshl_add_u32 {vHW}, v121, 1, {vHW}\nv_add_u32 {vHW}, {t1}, {vHW}')
    A(f'v_mul_u32_u24 {vBR320}, 320, v122\nv_lshl_add_u32 {vBR320}, v121, 4, {vBR320}\nv_add_u32 {vBR320}, {L_QS}, {vBR320}')
    A(f'v_mul_u32_u24 {vBR192}, 192, v122\nv_lshl_add_u32 {vBR192}, v121, 4, {vBR192}\nv_add_u32 {vBR192}, {L_HS}, {vBR192}')
    A(f'v_min_u32 {vTMP2}, 4, v120\nv_mul_u32_u24 {vXR}, 192, {vTMP2}\nv_lshl_add_u32 {vXR}, v121, 4, {vXR}\nv_add_u32 {vXR}, {L_XS}, {vXR}')
    A(f's_lshl_b32 {t1}, {g3}, 5\nv_lshlrev_b32 {vTMP2}, 7, v120\nv_lshl_add_u32 {vTMP2}, v121, 3, {vTMP2}\nv_add_u32 {vTMP2}, {t1}, {vTMP2}\nv_cmp_gt_u32 vcc, 4, v120'); sel(vXst, 'v118', vTMP2)
    A(f'v_lshlrev_b32 {vTMP2}, 4, {vL}\nv_add_u32 {vROW}, {sRING}, {vTMP2}')
    A(f's_lshr_b32 {t1}, {g3}, 1\ns_lshl_b32 {t1}, {t1}, 10\ns_and_b32 {t2}, {g3}, 1\ns_lshl_b32 {t2}, {t2}, 3\ns_add_u32 {t1}, {t1}, {t2}\nv_add_u32 {vROR}, {t1}, {vTMP2}')
    A(f's_lshl_b32 {t1}, {sW}, 3\ns_add_u32 {t1}, {t1}, {L_RM}\nv_lshlrev_b32 {vRMW}, 6, v122\nv_add_u32 {vRMW}, {t1}, {vRMW}')
    A(f's_lshl_b32 {t1}, {g3}, 6\ns_add_u32 {t1}, {t1}, {L_RM}\nv_add_u32 {vRMR}, {t1}, {vSt8}')
    A(f'v_lshl_add_u32 v125, v121, 3, v123')
    A(f'v_xor_b32 {vTMP}, {g3}, v123\nv_lshlrev_b32 {vTMP}, 6, {vTMP}\nv_lshl_add_u32 {vTMP}, v122, 4, {vTMP}\nv_lshl_add_u32 {vWQr}, v125, 8, {vTMP}\nv_add_u32 {vWQr}, {L_WQ}, {vWQr}')
    A(f'v_lshrrev_b32 v119, 1, v123\nv_and_b32 v127, 1, v121\nv_lshlrev_b32 {vTMP}, 1, v127')
    A(f'v_xor_b32 {vTMP}, {g3}, {vTMP}\nv_lshlrev_b32 {vTMP}, 5, {vTMP}\nv_lshl_add_u32 {vTMP}, v122, 3, {vTMP}\nv_lshl_add_u32 {vWr}, v125, 7, {vTMP}\nv_add_u32 {vWr}, {L_WG}, {vWr}')
    A(f'v_and_b32 v126, 1, v123\nv_lshlrev_b32 {vTMP}, 1, v126\nv_xor_b32 {vTMP}, {g3}, {vTMP}\nv_lshlrev_b32 {vTMP}, 5, {vTMP}\nv_lshl_add_u32 {vTMP}, v122, 3, {vTMP}')
    A(f'v_lshl_add_u32 {vTMP2}, v121, 2, v119\nv_lshl_add_u32 {vTMP2}, v126, 6, {vTMP2}\nv_lshl_add_u32 {vWOr}, {vTMP2}, 7, {vTMP}\nv_add_u32 {vWOr}, {L_WO}, {vWOr}')
    A(f'v_and_b32 v125, 1, v120\nv_mov_b32 {vTMP}, 0xffff\nv_mov_b32 {vTMP2}, 0xffff0000\nv_cmp_eq_u32 vcc, 1, v125'); sel('v119', vTMP, vTMP2)
    A(f'v_cmp_gt_u32 vcc, 2, v122'); sel('v119', '0', 'v119')
    for i in range(4):
        A(f'v_cmp_eq_u32 vcc, {i}, v123'); sel(f'v{MASK+i}', '0', 'v119'); A(f'v_and_b32 v{32+i}, 0x3f803f80, v{MASK+i}')
    A(f'v_mov_b32 {vTMP}, 0x3f80\nv_mov_b32 {vTMP2}, 0x3f800000\nv_cmp_eq_u32 vcc, 1, v126'); sel('v119', vTMP, vTMP2)
    A(f'v_cmp_gt_u32 vcc, 2, v122'); sel('v119', '0', 'v119')
    A(f'v_lshrrev_b32 {vTMP}, 1, v123\nv_lshl_add_u32 {vTMP}, v125, 1, {vTMP}')
    for i in range(4):
        A(f'v_cmp_eq_u32 vcc, {i}, {vTMP}'); sel(f'v{40+i}', '0', 'v119')
    A('v_mov_b32 v44, 0x3f803f80\nv_mov_b32 v45, 0x3f803f80')
    A(f'v_and_b32 {vTMP2}, 7, {vL}\nv_lshrrev_b32 v119, 3, {vL}')
    A(f's_lshr_b32 {t1}, {sW}, 2\ns_lshl_b32 {t1}, {t1}, 2\nv_xor_b32 {vTMP}, {t1}, {vTMP2}\nv_lshlrev_b32 {vTMP}, 4, {vTMP}\nv_lshl_add_u32 v124, v119, 10, {vTMP}')
    A(f's_and_b32 {t1}, {sW}, 1\ns_lshl_b32 {t1}, {t1}, 2\nv_xor_b32 {vTMP}, {t1}, {vTMP2}\nv_lshlrev_b32 {vTMP}, 4, {vTMP}')
    A(f'v_lshl_add_u32 v127, v119, 10, {vTMP}\nv_mul_u32_u24 v126, 3584, v119\nv_add_u32 v126, v126, {vTMP}')
    A(f's_cmp_ge_u32 {sG}, 4\ns_cselect_b32 {t2}, 3, 4\ns_cmp_lt_u32 {sHI}, {t2}\ns_cselect_b32 {t2}, 0, {OOB}\nv_add_u32 v126, {t2}, v126\nv_add_u32 v127, {t2}, v127')
    A(f'v_lshlrev_b32 {vTMP}, 1, v123\nv_xor_b32 {vTMP}, v121, {vTMP}\nv_lshlrev_b32 {vTMP}, 5, {vTMP}\nv_lshl_add_u32 {vTMP}, v122, 3, {vTMP}\nv_lshl_add_u32 {vTMP}, v123, 8, {vTMP}\nv_add_u32 v122, {sRING}, {vTMP}\nv_xor_b32 v123, 128, v122')
    A(f'v_and_b32 {vTMP}, 3, v120\nv_lshlrev_b32 {vTMP}, 6, {vTMP}\nv_lshl_add_u32 {vTMP}, v121, 4, {vTMP}\nv_lshl_add_u32 {vTMP}, v120, 8, {vTMP}\nv_add_u32 v118, {sRING}, {vTMP}')
    for j in range(1, 4): A(f'v_xor_b32 v{118+j}, {64*j}, v118')
    A(f'v_and_b32 {vTMP}, 124, {vL4}\nv_add_u32 {vTMP}, {L_XS+4*192}, {vTMP}\nds_write_b32 {vTMP}, v44')
    A(f'v_mov_b32 {vTMP}, {L_FL}\nv_mov_b32 {vTMP2}, 0\nds_write_b32 {vTMP}, {vTMP2}')

    def read_k(i):
        for j in range(4): A(f'ds_read_b128 a[{16*i+4*j}:{16*i+4*j+3}], v{118+j} offset:{(i&1)*4096}')
    def read_v(p):
        i = p - 16
        for hf in range(2):
            r = 64 + 4 * i + 2 * hf
            A(f'ds_read_b64_tr_b16 a[{r}:{r+1}], v{122+hf} offset:{((p//4)&1)*4096 + (p%4)*1024}')
    if not late47:
        for p in range(burst, 8): piece(p)
    if diag: xstamp(40)
    A.wait_vm('ep')
    if diag: xstamp(41)
    A(f'v_and_b32 v113, 0xffff0000, v68\nv_lshlrev_b32 v112, 16, v68')
    A(f'v_readfirstlane_b32 {sTAG}, v69\ns_add_u32 {sTAG}, {sTAG}, 1')
    A('v_dot2_f32_bf16 v78, v72, v44, 0\nv_dot2_f32_bf16 v79, v72, v72, 0')
    for k in range(73, 76): A(f'v_dot2_f32_bf16 v78, v{k}, v44, v78\nv_dot2_f32_bf16 v79, v{k}, v{k}, v79')
    for m in ('quad_perm:[1,0,3,2]', 'quad_perm:[2,3,0,1]', 'row_half_mirror', 'row_mirror'):
        A(f'v_add_f32_dpp v78, v78, v78 {m} {DPP}\nv_add_f32_dpp v79, v79, v79 {m} {DPP}')
    for sw in ('v_permlane16_swap_b32', 'v_permlane32_swap_b32'):
        A(f'v_mov_b32 v76, v78\nv_mov_b32 v77, v79\n{sw} v78, v76\n{sw} v79, v77\nv_add_f32 v78, v78, v76\nv_add_f32 v79, v79, v77')
    c2 = QSCALE * QSCALE
    A(f'v_mov_b32 v75, {f32(1e-5/c2)}\nv_mul_f32 v74, v78, v78\nv_fmac_f32 v75, {f32(1/(512*c2))}, v79\nv_fmac_f32 v75, {f32(-1/(512*512*c2))}, v74\nv_max_f32 v75, {f32(1e-5/c2)}, v75\nv_rsq_f32 v74, v75')
    A(f'v_mul_f32 v78, {f32(-1/512)}, v78\nv_add_f32 v72, v112, v78\nv_add_f32 v73, v113, v78\nv_mul_f32 v72, v72, v74\nv_mul_f32 v73, v73, v74\nv_cvt_pk_bf16_f32 v72, v72, v73\nds_write_b32 {vXW}, v72')
    if late47:
        for p in range(burst, 8): piece(p)
    if diag: xstamp(42)
    A.wait_vm('wq')
    if diag: xstamp(43)
    if bar_after_k0:
        A.wait_vm('p3')
        read_k(0)
        A('s_waitcnt lgkmcnt(0)')
        for p in range(8, 12): piece(p)
    A('s_waitcnt lgkmcnt(0)')
    if 'B' not in abl: A('s_barrier')
    stamp()

    def read_wq():
        for tl in range(2):
            for j in range(2):
                for u in range(2):
                    r = 48 + 8 * tl + 4 * j + 2 * u
                    A(f'ds_read_b64_tr_b16 v[{r}:{r+1}], {vWQr} offset:{8*tl+8192*j+1024*u}')
    def read_gu():
        for tl in range(2):
            for j in range(2):
                for u in range(2):
                    r = 48 + 8 * tl + 4 * j + 2 * u
                    A(f'ds_read_b64_tr_b16 v[{r}:{r+1}], {vWr} offset:{8192*tl+4096*j+512*u}')
    def read_wd():
        for j in range(2):
            for u in range(2):
                A(f'ds_read_b64_tr_b16 v[{48+4*j+2*u}:{49+4*j+2*u}], {vWr} offset:{16384+4096*j+512*u}')
    def read_wo():
        for j in range(4):
            for u in range(2):
                A(f'ds_read_b64_tr_b16 v[{48+4*j+2*u}:{49+4*j+2*u}], {vWOr} offset:{2048*j+256*u}')
    def matvec(vst, mode, late_w=None, soff='0'):
        A(f'ds_read_b128 v[80:83], {vXR}\nds_read_b128 v[84:87], {vXR} offset:64')
        if late_w: late_w()
        A('s_waitcnt lgkmcnt(0)' if late_w else 's_waitcnt lgkmcnt(1)')
        A(f'{M16} v[96:99], v[48:51], v[80:83], 0\n{M16} v[104:107], v[56:59], v[80:83], 0')
        if not late_w: A('s_waitcnt lgkmcnt(0)')
        A(f'{M16} v[96:99], v[52:55], v[84:87], v[96:99]\n{M16} v[104:107], v[60:63], v[84:87], v[104:107]')
        if mode == 'plain':
            A(f's_cmp_eq_u32 {sFAST}, 1')
            A('v_cvt_pk_bf16_f32 v96, v96, v97\nv_cvt_pk_bf16_f32 v97, v98, v99\nv_cvt_pk_bf16_f32 v98, v104, v105\nv_cvt_pk_bf16_f32 v99, v106, v107')
            lstore(f'buffer_store_dwordx4 v[96:99], {vst}, {WS}, {soff} offen', cmp=False)
            return
        A(f'v_mov_b32 v102, {sTAG}\nv_mov_b32 v103, s64')
        A(f'v_cvt_pk_bf16_f32 v100, v96, v97\nv_cvt_pk_bf16_f32 v101, v98, v99\nv_cvt_pk_bf16_f32 v104, v104, v105\nv_cvt_pk_bf16_f32 v105, v106, v107')
        A(f'v_mov_b32 v106, {sTAG}\nv_mov_b32 v107, s64')
        if mode == 'q0':
            A.vmop(f'buffer_store_dwordx4 v[100:103], {vst}, {WS}, 0 offen', 'st')
            A.vmop(f'buffer_store_dwordx4 v[104:107], {vst}, {WS}, 0 offen offset:256', 'st')
        else:
            lstore(f'buffer_store_dwordx4 v[100:103], {vst}, {WS}, 0 offen\nbuffer_store_dwordx4 v[104:107], {vst}, {WS}, 0 offen offset:256')
    def slice_stats(sst):
        l = lab('st')
        A(f's_cmp_lg_u32 {sW}, 4\ns_cbranch_scc1 {l}')
        A(f'ds_read_b128 v[80:83], {vXR}\nds_read_b128 v[84:87], {vXR} offset:64\ns_waitcnt lgkmcnt(1)')
        A(f'{M16} v[104:107], v[80:83], v[80:83], 0\ns_waitcnt lgkmcnt(0)\n{M16} v[104:107], v[84:87], v[84:87], v[104:107]')
        def pick():
            A('v_cndmask_b32 v104, v104, v105, s[80:81]\nv_cndmask_b32 v106, v106, v107, s[80:81]\nv_cndmask_b32 v104, v104, v106, s[82:83]')
        A('s_mov_b64 s[80:81], 10\ns_mov_b64 s[82:83], 12')
        A(f's_cmp_eq_u32 {sFAST}, 1')
        pick()
        lstore(f'buffer_store_dword v104, {vSSt}, {WS}, {sst} offen', cmp=False)
        A.vm.pop()
        A(f'{l}:')

    def issue_g1(dst, voff, sbase, tag, step=4096):
        A.vmop(f'buffer_load_dwordx4 v[{dst}:{dst+3}], {voff}, {WS}, {sbase} offen sc1', tag)
        if step >= 4096:
            A(f's_add_u32 {t1}, {sbase}, {step}')
            A.vmop(f'buffer_load_dwordx4 v[{dst+4}:{dst+7}], {voff}, {WS}, {t1} offen sc1', tag)
        else:
            A.vmop(f'buffer_load_dwordx4 v[{dst+4}:{dst+7}], {voff}, {WS}, {sbase} offen offset:{step} sc1', tag)
    def check_empty(regs):
        regs = list(regs)
        A(f'v_max3_u32 {vTMP}, v{regs[0]}, v{regs[1]}, v{regs[2]}'); rest = regs[3:]
        if len(rest) >= 5:
            A(f'v_max3_u32 {vTMP2}, v{rest[0]}, v{rest[1]}, v{rest[2]}'); rest = rest[3:]
            tg = 0
            while len(rest) >= 2:
                d = (vTMP, vTMP2)[tg]; A(f'v_max3_u32 {d}, {d}, v{rest[0]}, v{rest[1]}'); rest = rest[2:]; tg ^= 1
            if rest: A(f'v_max3_u32 {vTMP}, {vTMP}, {vTMP2}, v{rest[0]}')
            else: A(f'v_max_u32 {vTMP}, {vTMP}, {vTMP2}')
        else:
            while len(rest) >= 2:
                A(f'v_max3_u32 {vTMP}, {vTMP}, v{rest[0]}, v{rest[1]}'); rest = rest[2:]
            if rest: A(f'v_max_u32 {vTMP}, {vTMP}, v{rest[0]}')
        A(f'v_cmp_eq_u32 vcc, -1, {vTMP}')
    def poll(issue, regs, spec=None, mark=None):
        r, d = lab('retry'), lab('got')
        A(f'{r}:')
        issue()
        A.wait_vm()
        if mark: A(f'{mark}:')
        if spec: spec()
        check_empty(regs)
        tl = lab('again')
        A(f's_cbranch_vccnz {tl}\n{d}:')
        tails.append(f'{tl}:\n' + (f's_sleep {backoff}\n' if backoff else '') + f's_sub_u32 {sTO}, {sTO}, 1\ns_cbranch_scc0 {r}\ns_mov_b32 {sTO}, 0\ns_branch {d}')
    def poll2(issue, nld, regs, spec):
        d, sb, sa = lab('got'), lab('setb'), lab('seta')
        issue(0)
        if dstep: A(f's_sleep {dstep}')
        issue(1)
        A(f'{sa}:\ns_waitcnt vmcnt({nld})')
        spec(0); check_empty(regs(0))
        A(f's_cbranch_vccnz {sb}\n{d}:')
        keepL, A.L = A.L, []
        A(f'{sb}:'); issue(0)
        A(f's_waitcnt vmcnt({nld})\ns_nop 1')
        spec(1); check_empty(regs(1))
        A(f's_nop 1\ns_cbranch_vccz {d}')
        issue(1)
        A(f's_sub_u32 {sTO}, {sTO}, 1\ns_cbranch_scc0 {sa}\ns_mov_b32 {sTO}, 0\ns_branch {d}')
        tails.append('\n'.join(A.L)); A.L = keepL
        A.vm = []
    def ln_poll2(sdata, sstat, selop):
        def iss(k):
            issue_g1(64 + 16 * k, vG1, sdata, 'x')
            A.vmop(f'buffer_load_dwordx2 v[{72+16*k}:{73+16*k}], {vSt8}, {WS}, {sstat} offen sc1', 'x')
        def spec(k):
            b = 64 + 16 * k
            A(f'{M16} v[96:99], {selop}, v[{b}:{b+3}], 0\n{M16} v[96:99], {selop}, v[{b+4}:{b+7}], v[96:99]')
            A(f'v_add_f32_dpp v78, v{b+8}, v{b+8} quad_perm:[1,0,3,2] {DPP}\nv_add_f32_dpp v79, v{b+9}, v{b+9} quad_perm:[1,0,3,2] {DPP}')
        poll2(iss, 3, lambda k: range(64 + 16 * k, 74 + 16 * k), spec)
    def issue_q(first):
        if not first:
            issue_g1(64, vG1, sQg, 'q')
            A.vmop(f'buffer_load_dwordx2 v[72:73], {vSt8}, {WS}, {sQSg} offen sc1', 'q')
            return
        issue_tagged(f's_mov_b32 {t1}, s101')
    def issue_tagged(base, dst=80, voff=None, kstep=8192, hstep=256):
        if voff is None:
            A(f'v_and_b32 {vTMP2}, 0xf0, {vG1}\nv_lshlrev_b32 {vTMP}, 1, {vG1}\nv_sub_u32 {vTMP}, {vTMP}, {vTMP2}')
        else: A(voff)
        A(base + f'\ns_add_u32 {t2}, {t1}, {kstep}')
        for k in range(2):
            for hh in range(2):
                r = dst[2 * k + hh] if isinstance(dst, tuple) else dst + 8 * k + 4 * hh
                A.vmop(f'buffer_load_dwordx4 v[{r}:{r+3}], {vTMP}, {WS}, {(t1, t2)[k]} offen offset:{hstep*hh} sc1', 'q')
    def issue_o0():
        issue_tagged(f's_lshl_b32 {t1}, {sG}, 2\ns_add_u32 {t1}, {t1}, {sHI}\ns_lshl_b32 {t0}, {t1}, 2\ns_lshl_b32 {t1}, {t1}, 14\ns_add_u32 {t1}, {t1}, {TOP}', o0dst[0])
        A(f's_add_u32 {t0}, {t0}, {sW}\ns_lshl_b32 {t0}, {t0}, 7\ns_add_u32 {t0}, {t0}, {TML}\nv_lshlrev_b32 {vTMP2}, 1, {vML2}')
        m_ = o0ml[0]
        A.vmop(f'buffer_load_dwordx4 v[{m_}:{m_+3}], {vTMP2}, {WS}, {t0} offen sc1', 'q')
        A.vmop(f'buffer_load_dwordx4 v[{m_+4}:{m_+7}], {vTMP2}, {WS}, {t0} offen offset:64 sc1', 'q')
    o0dst = [80]; o0ml = [64]
    def check_words(words, sval):
        w = list(words)
        A(f'v_xor_b32 {vTMP}, {sval}, v{w[0]}')
        for x in w[1:]: A(f'v_xor_b32 {vTMP2}, {sval}, v{x}\nv_or_b32 {vTMP}, {vTMP}, {vTMP2}')
        A(f'v_cmp_ne_u32 vcc, 0, {vTMP}')
    def check_tags(words=(82, 86, 90, 94)): check_words(words, sTAG)
    def tagged_sum(selbase=32, src=80, acc=96, selk=0):
        for n_, (k, hh) in enumerate(((0, 0), (0, 1), (1, 0), (1, 1))):
            r = src[2 * k + hh] if isinstance(src, tuple) else src + 8 * k + 4 * hh
            sb = selbase + selk * k + 2 * hh
            c = '0' if n_ == 0 else f'v[{acc}:{acc+3}]'
            A(f'v_mfma_f32_16x16x16_bf16 v[{acc}:{acc+3}], v[{sb}:{sb+1}], v[{r}:{r+1}], {c}')
    def q0_finish():
        tagged_sum()
        check_words((83, 87, 91, 95), 's64')
        A(f's_cmp_eq_u64 vcc, 0\ns_cselect_b32 {sGOK}, 1, 2')
        A(f'v_cvt_pk_bf16_f32 v96, v96, v97\nds_write_b32 {vQW}, v96')
    def tagged_poll(issue, words=(82, 86, 90, 94), spec=None, back=0):
        rq, gq = lab('rq'), lab('gq')
        A(f'{rq}:')
        issue(); A.wait_vm()
        if spec: spec()
        check_tags(words)
        A(f's_cbranch_vccz {gq}')
        if back: A(f's_sleep {back}')
        A(f's_sub_u32 {sTO}, {sTO}, 1\ns_cbranch_scc0 {rq}\ns_mov_b32 {sTO}, 0\n{gq}:')
    CQ = (48, 52, 56, 60)
    def issue_csq(): issue_tagged(f's_lshl_b32 {t1}, {sG}, 14\ns_add_u32 {t1}, {t1}, {TQC}', CQ)
    def finish_csq():
        ok_ = lab('cq')
        check_tags(tuple(r + 2 for r in CQ))
        A(f's_cbranch_vccz {ok_}')
        tagged_poll(issue_csq, tuple(r + 2 for r in CQ))
        A(f'{ok_}:')
        tagged_sum(32, CQ, 64)
        A(f's_mov_b32 {t2}, {f32(1/512)}\nv_pk_mul_f32 {CSQ}, v[64:65], s[56:57] op_sel_hi:[1,0]')
    QREGS = list(range(64, 74)); QREGS1 = QREGS + list(range(80, 88))
    def ln_spec(selop, first):
        def f():
            A(f'{M16} v[96:99], {selop}, v[64:67], 0\n{M16} v[96:99], {selop}, v[68:71], v[96:99]')
            if first:
                A(f'{M16} v[100:103], {selop}, v[80:83], 0\n{M16} v[100:103], {selop}, v[84:87], v[100:103]')
            A(f'v_add_f32_dpp v78, v72, v72 quad_perm:[1,0,3,2] {DPP}\nv_add_f32_dpp v79, v73, v73 quad_perm:[1,0,3,2] {DPP}')
        return f
    def ln_finish(cs, scale, first, csrc=100):
        for m in ('quad_perm:[2,3,0,1]', 'row_half_mirror'):
            A(f'v_add_f32_dpp v78, v78, v78 {m} {DPP}\nv_add_f32_dpp v79, v79, v79 {m} {DPP}')
            if m.startswith('quad'): A(f'v_mov_b32 v75, {f32(1e-5/(scale*scale))}')
        c2 = scale * scale
        A(f'v_mul_f32 v74, v78, v78\nv_fmac_f32 v75, {f32(1/(512*c2))}, v79')
        if first:
            A(f's_mov_b32 {t2}, {f32(1/512)}\nv_pk_mul_f32 {cs}, v[{csrc}:{csrc+1}], s[56:57] op_sel_hi:[1,0]')
        A(f'v_fmac_f32 v75, {f32(-1/(512*512*c2))}, v74\nv_max_f32 v75, {f32(1e-5/c2)}, v75\nv_rsq_f32 v74, v75')
        A(f'v_pk_fma_f32 v[96:97], v[78:79], {cs}, v[96:97] op_sel_hi:[0,1,1] neg_lo:[1,0,0] neg_hi:[1,0,0]')
        A(f'v_pk_mul_f32 v[96:97], v[96:97], v[74:75] op_sel_hi:[1,0]')
    def q_finish(first):
        ln_finish(CSQ, QSCALE, first)
        A(f'v_cvt_pk_bf16_f32 v96, v96, v97\nds_write_b32 {vQW}, v96')

    A('; ---- first q projection, published with plain stores and this CU\'s XCC id')
    save = list(A.vm)
    with lowwaves():
        read_wq()
        A('s_waitcnt lgkmcnt(0)')
        if 'Q' not in abl: matvec('v109', 'q0')
    stamp()

    def issue_wo():
        A(f's_lshl_b32 {t1}, {sG}, 9\ns_lshl_b32 {t2}, {sHI}, 7\ns_add_u32 {t1}, {t1}, {t2}\ns_lshl_b32 {t2}, {sW}, 4\ns_add_u32 {t1}, {t1}, {t2}\ns_lshl_b32 {t1}, {t1}, 10\ns_lshl_b32 {t2}, {sLO}, 7\ns_add_u32 {t1}, {t1}, {t2}')
        A(f's_lshl_b32 {t2}, {sW}, 11\ns_add_u32 m0, {t2}, {L_WO}')
        A.vmop(f'buffer_load_dwordx4 v124, {WO}, {t1} offen nt lds', 'wo')
        A(f's_add_u32 {t1}, {t1}, 8192\ns_add_u32 m0, m0, 1024')
        A.vmop(f'buffer_load_dwordx4 v124, {WO}, {t1} offen nt lds', 'wo')

    def issue_ffn(dw=0, track=False, parts='gud'):
        vm_ = (lambda x: A.vmop(x, 'ffn')) if track else A
        A(f's_add_u32 {t0}, {sW}, {dw}')
        if 'g' in parts:
            A(f's_lshl_b32 {t1}, {sLO}, 6\ns_lshl_b32 {t2}, {t0}, 3\ns_add_u32 {t1}, {t1}, {t2}\ns_mul_i32 {t1}, {t1}, 3584\ns_lshl_b32 {t2}, {g2}, 7\ns_add_u32 {t1}, {t1}, {t2}')
        A(f's_lshl_b32 {t2}, {t0}, 10\ns_add_u32 m0, {t2}, {L_WG}')
        if 'g' in parts:
            vm_(f'buffer_load_dwordx4 v126, {WG}, {t1} offen nt lds')
            A(f's_add_u32 m0, {t2}, {L_WU}')
            vm_(f'buffer_load_dwordx4 v126, {WU}, {t1} offen nt lds')
        if 'd' not in parts: return
        A(f's_lshl_b32 {t1}, {g2}, 6\ns_lshl_b32 {t3}, {t0}, 3\ns_add_u32 {t1}, {t1}, {t3}\ns_lshl_b32 {t1}, {t1}, 10\ns_lshl_b32 {t3}, {sLO}, 7\ns_add_u32 {t1}, {t1}, {t3}\ns_add_u32 m0, {t2}, {L_WD}')
        vm_(f'buffer_load_dwordx4 v127, {WD}, {t1} offen nt lds')
    wait_of = {}
    d = 6
    for p_ in range(12, 32):
        tgt = depth if p_ < deep_from else deep
        need_d = p_ - tgt
        if p_ in (12, 16, 20): need_d = max(need_d, p_ - 5)
        if need_d > d: wait_of[p_] = list(range(d + 1, need_d + 1)); d = need_d
        else: wait_of[p_] = []
    last_read = d
    def step(p):
        for d_ in wait_of[p]:
            A.wait_vm(f'p{d_}')
            if d_ < 16:
                if d_ % 4 == 3: read_k(d_ // 4); A('s_waitcnt lgkmcnt(0)')
            else:
                A('s_waitcnt lgkmcnt(0)')
                read_v(d_)
            if diag and d_ in (7, 11, 15, 19, 23): xstamp(45 + (d_ - 7) // 4)
        if ffn_at and p == ffn_at and len(tail_parts) < 3: issue_ffn(0, True, ''.join(c_ for c_ in 'gud' if c_ not in tail_parts))
        if p == wo_at: issue_wo()
        piece(p)
    hi_l, join_all, flag_l = lab('shi'), lab('sj'), lab('fl')
    lowcode = [True]
    def hop(ws_, back):
        A('s_mov_b64 exec, 0')
        for w_ in ws_: A(f's_cmp_eq_u32 {sW}, {w_}\ns_cbranch_scc1 L_pad_seg{w_}')
        A(f'{back}:\ns_mov_b64 exec, -1')
    def lead_in():
        if not bar_after_k0:
            A.wait_vm('p3')
            if diag: xstamp(44)
            read_k(0); A('s_waitcnt lgkmcnt(0)')
            for pp in range(8, 12): piece(pp)
        if warm: hop(range(0, 4) if lowcode[0] else range(4, 8), 'L_back_lo' if lowcode[0] else 'L_back_hi')
    def steps(lo_, hi_):
        for pp in range(lo_, hi_):
            if pp == touch_o and lowcode[0]:
                n_ = len(A.vm); o0dst[0] = 48; issue_o0(); o0dst[0] = 80
                A.vm[n_:] = ['touch'] * (len(A.vm) - n_)
            if pp == csq_at and lowcode[0] and 'S' not in abl:
                n_ = len(A.vm); issue_csq(); A.vm[n_:] = ['csq'] * (len(A.vm) - n_)
            step(pp)
    A(f's_cmp_ge_u32 {sW}, 4\ns_cbranch_scc1 {hi_l}')
    lead_in()
    p = 12
    while p < p_sc:
        if p in rides:
            assert p + 5 <= p_sc
            skip, join = lab('noq'), lab('jn')
            saved = list(A.vm)
            A(f's_cmp_lg_u32 {sGOK}, 0\ns_cbranch_scc1 {skip}')
            issue_q(True)
            steps(p, p + 5)
            if 'q' in A.vm: A.wait_vm('q')
            check_tags()
            nq = lab('nq')
            A(f's_cbranch_vccnz {nq}')
            q0_finish()
            A(f'{nq}:\ns_branch {join}\n{skip}:')
            after_q = list(A.vm)
            A.vm = saved
            steps(p, p + 5)
            extra = len(A.vm) - len(after_q)
            assert A.vm[extra:] == after_q, (A.vm, after_q)
            A.vm = after_q if extra <= 0 else A.vm
            A(f'{join}:')
            p += 5
        else:
            steps(p, p + 1); p += 1
    saved = list(A.vm)
    def put_status():
        A(f's_lshl_b32 {t1}, {sW}, 2\ns_add_u32 {t1}, {t1}, {L_ST}\nv_mov_b32 {vTMP}, {t1}\nv_mov_b32 {vTMP2}, {sGOK}\nds_write_b32 {vTMP}, {vTMP2}')
    def get_status():
        A(f'v_mov_b32 {vTMP}, {L_ST}\nds_read_b128 v[72:75], {vTMP}\ns_waitcnt lgkmcnt(0)')
        check_words((72, 73, 74, 75), '1')
        A('s_cmp_eq_u64 vcc, 0')
    put_status()
    A(f's_branch {join_all}\n{hi_l}:')
    A.vm = save; lowcode[0] = False
    lead_in()
    steps(12, p_sc)
    saved = list(A.vm)
    A(f'{join_all}:')
    stamp()
    A('s_waitcnt lgkmcnt(0)\ns_barrier')
    get_status()
    okq = lab('okq')
    A(f's_cbranch_scc1 {okq}')
    if not abl:
        with lowwaves():
            A(f'buffer_store_dwordx4 v[100:103], v109, {WS}, 0 offen sc1\nbuffer_store_dwordx4 v[104:107], v109, {WS}, 0 offen offset:256 sc1')
            dn = lab('qdone')
            A(f's_cmp_lg_u32 {sGOK}, 0\ns_cbranch_scc1 {dn}')
            tagged_poll(lambda: issue_q(True))
            q0_finish()
            A(f'{dn}:')
        A('s_barrier')
        with lowwaves(): put_status()
        A('s_waitcnt lgkmcnt(0)\ns_barrier')
        get_status()
    A(f'{okq}:\ns_cselect_b32 {sFAST}, 1, 0')
    A.vm = saved
    def issue_ffn_any(dw, parts=None):
        if dw & 1: A('v_xor_b32 v126, 64, v126\nv_xor_b32 v127, 64, v127')
        issue_ffn(dw, False, parts or ''.join(c_ for c_ in ('gu' if wd_after else 'gud') if c_ not in tail_parts + mid_parts))
        if dw & 1: A('v_xor_b32 v126, 64, v126\nv_xor_b32 v127, 64, v127')
    def first_only(f):
        def g():
            l, bk = lab('fo'), lab('bk')
            A(f's_cmp_eq_u32 {sLIDX}, 0\ns_cbranch_scc1 {l}\n{bk}:')
            keepL, A.L = A.L, []
            A(f'{l}:'); f(); A(f's_branch {bk}')
            tails.append('\n'.join(A.L)); A.L = keepL
        return g
    def variant(first, later):
        l, bk = lab('v0'), lab('vj')
        A(f's_cmp_eq_u32 {sLIDX}, 0\ns_cbranch_scc1 {l}')
        n0 = nts[0]
        later()
        A(f'{bk}:')
        n1, nts[0] = nts[0], n0
        keepL, A.L = A.L, []
        A(f'{l}:'); first(); A(f's_branch {bk}')
        tails.append('\n'.join(A.L)); A.L = keepL
        assert nts[0] == n1
    def later_only(f):
        l = lab('lo'); A(f's_cmp_eq_u32 {sLIDX}, 0\ns_cbranch_scc1 {l}'); f(); A(f'{l}:')
    def scores(bar=True):
        if bar: A('s_waitcnt lgkmcnt(0)\ns_barrier')
        for j in range(4): A(f'ds_read_b128 v[{64+4*j}:{67+4*j}], {vBR320} offset:{64*j}')
        def sel_t(t, rs):
            for r in rs: A(f'v_mov_b32_dpp v{80+r}, v{80+4*t+r} quad_perm:[0,1,2,3] row_mask:0xf bank_mask:{1<<t:#x}')
        if tmajor:
            for t in range(4):
                for j in range(4):
                    if t == 0: A(f's_waitcnt lgkmcnt({3-j})')
                    c = '0' if j == 0 else f'v[{80+4*t}:{83+4*t}]'
                    A(f'{M16} v[{80+4*t}:{83+4*t}], a[{16*t+4*j}:{16*t+4*j+3}], v[{64+4*j}:{67+4*j}], {c}')
            sel_t(1, range(4)); sel_t(2, range(4)); sel_t(3, range(4))
        else:
            for j in range(4):
                A(f's_waitcnt lgkmcnt({3-j})')
                for t in range(4):
                    c = '0' if j == 0 else f'v[{80+4*t}:{83+4*t}]'
                    A(f'{M16} v[{80+4*t}:{83+4*t}], a[{16*t+4*j}:{16*t+4*j+3}], v[{64+4*j}:{67+4*j}], {c}')
            for t in range(1, 4): sel_t(t, range(4))
        A('v_max3_f32 v84, v80, v81, v82\nv_max_f32 v84, v84, v83')
        A(f'v_max_f32_dpp v84, v84, v84 row_ror:4 {DPP}')
        A(f'v_max_f32_dpp v84, v84, v84 row_ror:8 {DPP}')
        A('v_mov_b32 v85, v84\nv_permlane16_swap_b32 v84, v85\nv_max_f32 v84, v84, v85')
        A('v_mov_b32 v85, v84\nv_permlane32_swap_b32 v84, v85\nv_max_f32 v84, v84, v85')
        A('v_pk_add_f32 v[80:81], v[80:81], v[84:85] op_sel_hi:[1,0] neg_lo:[0,1] neg_hi:[0,1]')
        A('v_pk_add_f32 v[82:83], v[82:83], v[84:85] op_sel_hi:[1,0] neg_lo:[0,1] neg_hi:[0,1]')
        for r in range(4): A(f'v_exp_f32 v{80+r}, v{80+r}')
        A('v_cvt_pk_bf16_f32 v86, v80, v81\nv_cvt_pk_bf16_f32 v87, v82, v83')
        A(f'v_mfma_f32_16x16x16_bf16 v[88:91], {ONES}, v[86:87], 0')
    def pv(i):
        for hf in range(2):
            acc = 96 + 8 * (i & 1) + 4 * hf
            c = '0' if i < 2 else f'v[{acc}:{acc+3}]'
            A(f'v_mfma_f32_4x4x4_16b_bf16 v[{acc}:{acc+3}], v[86:87], a[{64+4*i+2*hf}:{65+4*i+2*hf}], {c} cbsz:4 abid:{4*(i&3)+(i>>2)}')
    def lsum():
        A(f'v_add_f32_dpp v85, v88, v88 row_ror:4 {DPP}')
        A(f'v_add_f32_dpp v85, v85, v85 row_ror:8 {DPP}')
        A(f's_mov_b64 exec, 15\nds_write_b64 {vRMW}, v[84:85]')
        full_exec()
    def combine(tagged=False, other=None):
        for h in range(4):
            A(f'v_add_f32 v{64+2*h}, v{96+h}, v{104+h}\nv_add_f32 v{65+2*h}, v{100+h}, v{108+h}')
            if h & 1: A(f'ds_write_b128 {vROW}, v[{62+2*h}:{65+2*h}] offset:{512*(h-1)}')
        A('s_waitcnt lgkmcnt(0)\ns_barrier')
        with lowwaves(other):
            A(f'ds_read_b64 v[72:73], {vRMR}')
            for k in range(8): A(f'ds_read_b64 v[{80+2*k}:{81+2*k}], {vROR} offset:{8192*k}')
            A('s_waitcnt lgkmcnt(8)')
            A(f'v_max_f32_dpp v74, v72, v72 quad_perm:[1,0,3,2] {DPP}')
            A(f'v_max_f32_dpp v74, v74, v74 quad_perm:[2,3,0,1] {DPP}')
            A(f'v_max_f32_dpp v74, v74, v74 row_half_mirror {DPP}')
            A('v_sub_f32 v72, v72, v74\nv_exp_f32 v72, v72')
            for k in range(8): A(f'v_readlane_b32 s{80+k}, v72, {k}')
            A('v_mul_f32 v75, v73, v72\ns_waitcnt lgkmcnt(0)')
            for k in range(8):
                sp = f's[{80+(k&~1)}:{81+(k&~1)}]'
                o = 'op_sel_hi:[1,0' if (k & 1) == 0 else 'op_sel:[0,1'
                d = 64 + 2 * (k & 1)
                if k < 2: A(f'v_pk_mul_f32 v[{d}:{d+1}], v[{80+2*k}:{81+2*k}], {sp} {o}]')
                else: A(f'v_pk_fma_f32 v[{d}:{d+1}], v[{80+2*k}:{81+2*k}], {sp}, v[{d}:{d+1}] {o},{1 if (k&1)==0 else 0}]')
            A('v_pk_add_f32 v[64:65], v[64:65], v[66:67]\nv_cvt_pk_bf16_f32 v64, v64, v65')
            def lsum8():
                for m in ('quad_perm:[1,0,3,2]', 'quad_perm:[2,3,0,1]', 'row_half_mirror'):
                    A(f'v_add_f32_dpp v75, v75, v75 {m} {DPP}')
            def pub_tagged():
                A(f'v_mov_b32 v66, {sTAG}\nv_mov_b32 v67, {sTAG}\nv_mov_b32_dpp v65, v64 quad_perm:[1,1,3,3] {DPP}')
                lstore(f'buffer_store_dwordx4 v[64:67], v118, {WS}, 0 offen')
                A(f'v_mov_b32 v76, {sTAG}\nv_mov_b32 v77, {sTAG}')
                A(f's_lshl_b32 {t1}, {sG}, 2\ns_add_u32 {t1}, {t1}, {sW}\ns_lshl_b32 {t1}, {t1}, 2\ns_add_u32 {t1}, {t1}, {sHI}\ns_lshl_b32 {t1}, {t1}, 3\ns_add_u32 {t1}, {t1}, {sLO}\ns_lshl_b32 {t1}, {t1}, 4\ns_add_u32 {t1}, {t1}, {TML}')
                lsum8()
                lstore(f'buffer_store_dwordx4 v[74:77], {vMLst}, {WS}, {t1} offen')
            def pub_plain():
                lstore(f'buffer_store_dword v64, {vL4}, {WS}, {sOPst} offen')
                lsum8()
                lstore(f'buffer_store_dwordx2 v[74:75], {vMLst}, {WS}, {sMLst} offen')
            if tagged is None: variant(pub_tagged, pub_plain)
            elif tagged: pub_tagged()
            else: pub_plain()

    A('v_mov_b32 v118, v110\nv_mov_b32 v114, 0\ns_mov_b32 s80, 0\ns_mov_b32 s81, 0\ns_mov_b32 s82, 0\ns_mov_b32 s83, 0\ns_mov_b32 s84, 0\ns_mov_b32 s85, 0')
    A(f's_mul_i32 {t1}, {sC}, 1312\ns_add_u32 {t1}, {t1}, {sGBASE}\ns_add_u32 {t1}, {t1}, {bGP - 7168}\ns_sub_u32 {t2}, {sXst}, 7168')
    A(f'v_add_u32 v119, {t1}, v115\nv_add_u32 v120, {t2}, v115\nv_add_u32 {vTMP}, {oXB - oXA - 512}, v120\nv_cmp_lt_u32 vcc, 31, {vL}'); sel('v120', 'v120', vTMP)
    A(f'v_add_u32 v121, 1024, v119\nv_mov_b32 {vTMP}, {OOB}\nv_cmp_lt_u32 vcc, 17, {vL}'); sel('v121', 'v121', vTMP)
    A(f'v_cmp_gt_u32 vcc, 7168, v115'); sel('v119', 'v119', vTMP); sel('v120', 'v120', vTMP); sel('v121', 'v121', vTMP)
    def clean_urgent():
        A('v_mov_b32 v92, -1\nv_mov_b32 v93, -1\nv_mov_b32 v94, -1\nv_mov_b32 v95, -1')
        A.vmop(f'buffer_store_dwordx4 v[92:95], v119, {WS}, 0 offen sc1', 'cu')
        A.vmop(f'buffer_store_dwordx4 v[92:95], v120, {WS}, 0 offen sc1', 'cu')
        A.vmop(f'buffer_store_dwordx4 v[92:95], v121, {WS}, 0 offen sc1', 'cu')
    if share: A('s_branch L_scores\nL_scored:')
    else: scores(False)
    d0 = max([6] + [d_ for p_ in range(12, p_sc) for d_ in wait_of[p_]])
    assert d0 >= 17
    for i in range(d0 - 15): pv(i)
    lsum()
    stamp()
    pend = [None]; csq_done = [False]
    def landed(d_):
        A.wait_vm(f'p{d_}')
        if pend[0] is not None: A('s_waitcnt lgkmcnt(0)')
        read_v(d_)
        if pend[0] is not None: pv(pend[0])
        pend[0] = d_ - 16
        if d_ >= csq_at and not csq_done[0] and not abl:
            csq_done[0] = True
            keep_vm = list(A.vm)
            with lowwaves(): finish_csq()
            A.vm = keep_vm
    for p in range(p_sc, 32):
        for d_ in wait_of[p]: landed(d_)
        piece(p, p == p_sc)
    for p in range(last_read + 1, 32):
        landed(p)
        if p == cl_at and 'C' not in abl: clean_urgent()
        if p == wt_at and 'W' not in abl:
            assert cl_at <= wt_at
            issue_wo()
            if tail_parts: issue_ffn(0, True, tail_parts)
    A('s_waitcnt lgkmcnt(0)')
    pv(pend[0])
    if padfrom == 'V': A('s_memrealtime s[98:99]\ns_waitcnt lgkmcnt(0)')
    stamp()
    if abl: A('s_branch L_fin')
    def flag_addr():
        A(f's_lshl_b32 {t1}, {sLO}, 10\ns_lshl_b32 {t2}, {sG}, 7\nv_and_b32 v68, 7, {vL}\nv_and_b32 v69, 24, {vL}\nv_lshlrev_b32 v68, 7, v68\nv_lshl_add_u32 v68, v69, 10, v68\nv_add_u32 v68, {t1}, v68')
        A(f'v_and_b32 v69, 31, {vL}\nv_lshlrev_b32 v69, 10, v69\nv_add_u32 v69, {t2}, v69\nv_cmp_lt_u32 vcc, 31, {vL}'); sel('v68', 'v68', 'v69')
        A(f's_mov_b32 {t1}, {TF}')
    def clean_rest():
        l_ = lab('cr')
        A(f's_cmp_lg_u32 {sW}, 7\ns_cbranch_scc1 {l_}')
        A(f'v_mov_b32 v64, -1\nv_mov_b32 v65, -1\nv_mov_b32 v66, -1\nv_mov_b32 v67, -1\nv_lshlrev_b32 v68, 2, {vL4}')
        A(f's_add_u32 {t1}, {sXst}, {LS}\nv_add_u32 v69, {oXB - oXA - 512}, v68\nv_cmp_lt_u32 vcc, 31, {vL}'); sel('v69', 'v68', 'v69')
        A(f'buffer_store_dwordx4 v[64:67], v69, {WS}, {t1} offen sc1')
        A(f's_mul_i32 {t2}, {sC}, 3168\ns_add_u32 {t2}, {t2}, {sGBASE}\ns_add_u32 {t2}, {t2}, {LS}')
        for k_ in range(3): A(f'buffer_store_dwordx4 v[64:67], v68, {WS}, {t2} offen offset:{1024*k_} sc1')
        A(f's_mov_b64 exec, 63\nbuffer_store_dwordx4 v[64:67], v68, {WS}, {t2} offen offset:3072 sc1\ns_mov_b64 exec, -1\n{l_}:')
    def clean_first():
        l_ = lab('c7')
        A(f's_cmp_lg_u32 {sW}, 7\ns_cbranch_scc1 {l_}')
        A(f's_lshl_b32 {t1}, s2, 7\ns_add_u32 {t1}, {t1}, {TF}\nv_mov_b32 v69, {sTAG}')
        if fullflag:
            A(f's_mov_b32 exec_hi, 0\ns_waitcnt vmcnt({2 + len(tail_parts)})\nbuffer_store_dword v69, {vL4}, {WS}, {t1} offen sc1')
        else:
            A(f's_mov_b64 exec, 1\ns_waitcnt vmcnt({2 + len(tail_parts)})\nbuffer_store_dword v69, off, {WS}, {t1} sc1')
        full_exec()
        n4 = lab('n4')
        if not use_early:
            A(f'{l_}:')
            if mid_parts:
                A(f's_sleep {mid_sleep}')
                issue_ffn(-4, False, mid_parts); issue_ffn(0, False, mid_parts)
            A(f's_lshl_b32 {t1}, {sLO}, 3\ns_add_u32 {t1}, {t1}, {sW}\ns_mul_i32 {t1}, {t1}, {8*3584}\ns_lshl_b32 {t2}, {g2}, 7\ns_add_u32 s81, {t1}, {t2}\ns_sub_u32 s80, s81, {32*3584}')
            A(f's_lshl_b32 {t1}, {g2}, 3\ns_add_u32 {t1}, {t1}, {sW}\ns_lshl_b32 {t1}, {t1}, 6\ns_add_u32 {t1}, {t1}, {sLO}\ns_lshl_b32 s83, {t1}, 7\ns_sub_u32 s82, s83, 32768')
            A(f's_lshl_b32 s84, {sW}, 10\ns_sub_u32 s84, s84, 4096')
            flag_addr()
            A(f'v_mov_b32 v114, v68\ns_mov_b32 s85, {TF}\ns_waitcnt vmcnt({2 * len(mid_parts)})')
            return
        A(f'{l_}:\ns_cmp_lg_u32 {sW}, 4\ns_cbranch_scc1 {n4}')
        flag_addr()
        A(f's_sleep {fearly}\nbuffer_load_dword v69, v68, {WS}, {t1} offen sc1\ns_waitcnt vmcnt(0)\nv_cmp_ne_u32 vcc, {sTAG}, v69\ns_cbranch_vccnz {n4}')
        A(f's_mov_b32 {sCNT}, 1\nv_mov_b32 v68, {L_FL}\nv_mov_b32 v69, 1\nds_write_b32 v68, v69\n{n4}:')
    if share:
        inloop[0] = True
        A('L_merge:')
        combine(None, first_only(clean_first))
    else: combine(True, clean_first)
    stamp(True)

    if prio:
        l_ = lab('pr'); A(f's_cmp_ge_u32 {sW}, 4\ns_cbranch_scc1 {l_}\ns_setprio 1\n{l_}:')
    A('L_layer:'); inloop[0] = True
    def proj_body(nk, vb, boff, xoff, late_w=None, tagged=False):
        for j in range(nk): A(f'ds_read_b128 v[{64+4*j}:{67+4*j}], {vb} offset:{boff+64*j}')
        if late_w: late_w()
        for j in range(nk):
            if not late_w: A(f's_waitcnt lgkmcnt({nk-1-j})')
            elif j == 0: A('s_waitcnt lgkmcnt(0)')
            c = '0' if j == 0 else 'v[96:99]'
            A(f'{M16} v[96:99], v[{48+4*j}:{51+4*j}], v[{64+4*j}:{67+4*j}], {c}')
        if tagged:
            A(f'v_mov_b32 v102, {sTAG}\nv_mov_b32 v103, {sTAG}\nv_cvt_pk_bf16_f32 v100, v96, v97\nv_cvt_pk_bf16_f32 v101, v98, v99')
            A(f'buffer_store_dwordx4 v[100:103], v47, {WS}, 0 offen sc1')
            if diag2: xstamp(52)
        else:
            A(f's_add_u32 {t1}, {sXst}, {xoff}')
            A('v_cvt_pk_bf16_f32 v96, v96, v97\nv_cvt_pk_bf16_f32 v97, v98, v99')
            A(f'buffer_store_dwordx2 v[96:97], {vXst}, {WS}, {t1} offen sc1')
    def proj_out(nk, vb, boff, xoff, first=None):
        sk, dl = lab('sk'), lab('dl')
        A(f's_cmp_ge_u32 {sW}, 4\ns_cbranch_scc1 {sk}')
        if first: variant(first, lambda: proj_body(nk, vb, boff, xoff))
        else: proj_body(nk, vb, boff, xoff)
        return sk, dl
    def g_wait(sk, dl, pre, busy_first=False, hi_pre=None, lo_d=None, hi_d=None, extra0=0):
        pre()
        A(f's_sleep {lo_d or gdelay}')
        A(f's_branch {dl}\n{sk}:')
        if hi_pre: hi_pre()
        A(f's_sleep {hi_d or gdelay_hi}')
        A(f'{dl}:')
        if extra0: first_only(lambda: A(f's_sleep {extra0}'))()
    def reduce_x(xoff, final, first=None):
        def normal():
            A(f's_add_u32 {t0}, {sXg}, {xoff}')
            sp = lambda b: A(f'{M16} v[96:99], {SELA}, v[{b}:{b+3}], 0\n{M16} v[96:99], {SELA}, v[{b+4}:{b+7}], v[96:99]')
            if not dual & 16:
                poll(lambda: issue_g1(64, vXg, t0, 'x', 8192), range(64, 72), lambda: sp(64), None if final else 'L_xa_landed')
                return
            d, tl, lp = lab('got'), lab('again'), lab('lp')
            issue_g1(64, vXg, t0, 'x', 8192); A.wait_vm()
            sp(64); check_empty(range(64, 72))
            A(f's_cbranch_vccnz {tl}\n{d}:')
            keepL, A.L = A.L, []
            A(f'{tl}:'); issue_g1(64, vXg, t0, 'x', 8192)
            A(f's_sleep {dstep}\n{lp}:'); issue_g1(72, vXg, t0, 'x', 8192)
            A('s_waitcnt vmcnt(2)'); sp(64); check_empty(range(64, 72))
            A(f's_nop 1\ns_cbranch_vccz {d}'); issue_g1(64, vXg, t0, 'x', 8192)
            A('s_waitcnt vmcnt(2)'); sp(72); check_empty(range(72, 80))
            A(f's_nop 1\ns_cbranch_vccz {d}\ns_sub_u32 {sTO}, {sTO}, 1\ns_cbranch_scc0 {lp}\ns_mov_b32 {sTO}, 0\ns_branch {d}')
            tails.append('\n'.join(A.L)); A.L = keepL
            A.vm = []
        if first: variant(first, normal)
        else: normal()
        stamp()
        A(f'v_add_f32_dpp v96, v96, v96 row_ror:4 {DPP}\nv_add_f32_dpp v97, v97, v97 row_ror:4 {DPP}')
        if final: A(f's_cmp_eq_u32 {sLIDX}, 1')
        A(f'v_add_f32_dpp v96, v96, v96 row_ror:8 {DPP}\nv_add_f32_dpp v97, v97, v97 row_ror:8 {DPP}')
        A(f'v_pk_add_f32 {XRES}, {XRES}, v[96:97]\ns_mov_b64 exec, {sM4}\nv_cvt_pk_bf16_f32 v96, v112, v113')
        if final: A(f's_cbranch_scc1 L_out')
        A(f'ds_write_b32 {vXW}, v96')
        full_exec()
        A('s_waitcnt lgkmcnt(0)\ns_barrier')
    def issue_o():
        issue_g1(64, vG1, sOg, 'o')
        A.vmop(f'buffer_load_dwordx2 v[72:73], {vML2}, {WS}, {sMLg} offen sc1', 'o')
        A.vmop(f'buffer_load_dwordx2 v[74:75], {vML2}, {WS}, {sMLg} offen offset:32 sc1', 'o')
    def wo_weights(ma, la, mb, lb, selreg, mm, _=None):
        A(f'v_max_f32 v76, v{ma}, v{mb}\nv_mov_b32 v77, v76\nv_permlane16_swap_b32 v76, v77\nv_max_f32 v76, v76, v77')
        A('v_mov_b32 v77, v76\nv_permlane32_swap_b32 v76, v77\nv_max_f32 v76, v76, v77')
        A(f'v_sub_f32 v{ma}, v{ma}, v76\nv_sub_f32 v{mb}, v{mb}, v76\nv_exp_f32 v{ma}, v{ma}\nv_exp_f32 v{mb}, v{mb}')
        A(f'v_cvt_pk_bf16_f32 v{ma}, v{ma}, v{ma}\nv_cvt_pk_bf16_f32 v{mb}, v{mb}, v{mb}')
        for i in range(4): A(f'v_and_b32 v{selreg+i}, v{MASK+i}, v{ma}')
        for i in range(4): A(f'v_and_b32 v{selreg+4+i}, v{MASK+i}, v{mb}')
        mm()
        A(f'v_and_b32 v{ma}, 0xffff0000, v{ma}\nv_and_b32 v{mb}, 0xffff0000, v{mb}\nv_mul_f32 v79, v{la}, v{ma}\nv_fmac_f32 v79, v{lb}, v{mb}')
        A('v_mov_b32 v77, v79\nv_permlane16_swap_b32 v79, v77\nv_add_f32 v79, v79, v77')
        A('v_mov_b32 v77, v79\nv_permlane32_swap_b32 v79, v77\nv_add_f32 v79, v79, v77\nv_rcp_f32 v78, v79')
    def wo_later():
        read_wo()
        if ldelay: A(f's_sleep {ldelay}')
        if dual & 4:
            def iss(k):
                b = (64, 100)[k]
                issue_g1(b, vG1, sOg, 'o')
                A.vmop(f'buffer_load_dwordx2 v[{b+8}:{b+9}], {vML2}, {WS}, {sMLg} offen sc1', 'o')
                A.vmop(f'buffer_load_dwordx2 v[{b+10}:{b+11}], {vML2}, {WS}, {sMLg} offen offset:32 sc1', 'o')
            d, sb, sa, j2 = lab('got'), lab('setb'), lab('seta'), lab('j2')
            iss(0)
            if dstep: A(f's_sleep {dstep}')
            iss(1)
            A(f'{sa}:\ns_waitcnt vmcnt(4)')
            check_empty(range(64, 76))
            A(f's_cbranch_vccnz {sb}\n{d}:')
            stamp()
            wo_weights(72, 73, 74, 75, 80, lambda: A(f'{M16} v[96:99], v[80:83], v[64:67], 0\n{M16} v[96:99], v[84:87], v[68:71], v[96:99]'), 76)
            A(f'{j2}:')
            keepL, A.L = A.L, []
            A(f'{sb}:'); iss(0)
            A('s_waitcnt vmcnt(4)')
            check_empty(range(100, 112))
            g2_ = lab('g2')
            A(f's_cbranch_vccz {g2_}')
            iss(1)
            A(f's_sub_u32 {sTO}, {sTO}, 1\ns_cbranch_scc0 {sa}\ns_mov_b32 {sTO}, 0\ns_branch {d}\n{g2_}:')
            nts[0] -= 1 if ts else 0; stamp()
            wo_weights(108, 109, 110, 111, 80, lambda: A(f'{M16} v[96:99], v[80:83], v[100:103], 0\n{M16} v[96:99], v[84:87], v[104:107], v[96:99]'), 76)
            A(f's_branch {j2}')
            tails.append('\n'.join(A.L)); A.L = keepL
            A.vm = []
            return
        poll(issue_o, range(64, 76))
        stamp()
        wo_weights(72, 73, 74, 75, 80, lambda: A(f'{M16} v[96:99], v[80:83], v[64:67], 0\n{M16} v[96:99], v[84:87], v[68:71], v[96:99]'))
    def wo_first():
        if not dual & 8:
            tagged_poll(issue_o0, (82, 86, 90, 94, 66, 70))
            stamp()
            wo_weights(64, 65, 68, 69, 100, lambda: tagged_sum(100, 80, 96, 4))
            return
        sets = ((80, 64), (48, 100))
        def iss(k):
            o0dst[0], o0ml[0] = sets[k]; issue_o0()
        def chk(k):
            a_, m_ = sets[k]; check_tags((a_ + 2, a_ + 6, a_ + 10, a_ + 14, m_ + 2, m_ + 6))
        def fin(k):
            a_, m_ = sets[k]; wo_weights(m_, m_ + 1, m_ + 4, m_ + 5, 116, lambda: tagged_sum(116, a_, 96, 4))
        lp, ga, gb, en = lab('lp'), lab('ga'), lab('gb'), lab('en')
        iss(0); A(f's_sleep {dstep}\n{lp}:'); iss(1)
        A('s_waitcnt vmcnt(6)'); chk(0); A(f's_cbranch_vccz {ga}')
        iss(0); A('s_waitcnt vmcnt(6)'); chk(1); A(f's_cbranch_vccz {gb}')
        A(f's_sub_u32 {sTO}, {sTO}, 1\ns_cbranch_scc0 {lp}\ns_mov_b32 {sTO}, 0\n{gb}:')
        stamp(); fin(1); A(f's_branch {en}\n{ga}:')
        nts[0] -= 1 if ts else 0; stamp(); fin(0); A(f'{en}:')
        A.vm = []
    with lowwaves():
        variant(wo_first, wo_later)
        A('v_pk_mul_f32 v[96:97], v[96:97], v[78:79] op_sel_hi:[1,0]\nv_cvt_pk_bf16_f32 v96, v96, v97')
        A(f'ds_write_b32 {vQW}, v96 offset:{L_OS-L_QS}\ns_waitcnt vmcnt(0)')
    A(f's_waitcnt lgkmcnt(0)\ns_barrier')
    if diag2: first_only(lambda: xstamp(50))()
    sk, dl = proj_out(4, vBR320, L_OS - L_QS, 0, lambda: (proj_body(4, vBR320, L_OS - L_QS, 0, read_wo), xstamp(52) if diag2 else None))
    leave_ = [None]
    def touch_lines(bases, r=80):
        for sb, off in bases:
            A(f's_add_u32 {t0}, {sb}, {off}\ns_add_u32 {t1}, {t0}, 4096')
            A(f'buffer_load_dwordx4 v[{r}:{r+3}], {vG1}, {WS}, {t0} offen sc1\nbuffer_load_dwordx4 v[{r+4}:{r+7}], {vG1}, {WS}, {t1} offen sc1')
    def touch_small(bases, r=88):
        for sb, off in bases:
            A(f's_add_u32 {t0}, {sb}, {off}\nbuffer_load_dwordx2 v[{r}:{r+1}], {vSt8}, {WS}, {t0} offen sc1')
    def watch_flags():
        l_, r_, d_ = lab('w4'), lab('fr'), lab('fd')
        A(f's_cmp_lg_u32 {sW}, 4\ns_cbranch_scc1 {l_}\ns_cmp_eq_u32 {sCNT}, 1\ns_cbranch_scc1 {l_}')
        flag_addr()
        if fdelay: A(f's_sleep {fdelay}')
        e_ = lab('fe')
        A(f'buffer_load_dword v69, v68, {WS}, {t1} offen sc1\ns_waitcnt vmcnt(0)\nv_cmp_ne_u32 vcc, {sTAG}, v69\ns_cbranch_vccz {d_}')
        A(f'{r_}:\ns_sleep {fback}\nbuffer_load_dword v69, v68, {WS}, {t1} offen sc1\ns_waitcnt vmcnt(0)\nv_cmp_ne_u32 vcc, {sTAG}, v69\ns_cbranch_vccz {e_}')
        A(f's_sub_u32 {sTO}, {sTO}, 1\ns_cbranch_scc0 {r_}\ns_mov_b32 {sTO}, 0\n{e_}:')
        if flate: A(f's_sleep {flate}')
        A(f'{d_}:')
        A(f'v_mov_b32 v68, {L_FL}\nv_mov_b32 v69, 1\nds_write_b32 v68, v69')
        if diag2: xstamp(51)
        A(f's_branch {after_sleep[0]}\n{l_}:')
    def await_flags():
        r_, d_ = lab('ar'), lab('ad')
        A(f'v_mov_b32 v68, {L_FL}\n{r_}:\nds_read_b32 v69, v68\ns_waitcnt lgkmcnt(0)\nv_cmp_eq_u32 vcc, 1, v69\ns_cbranch_vccnz {d_}')
        A(f's_sleep 1\ns_sub_u32 {sTO}, {sTO}, 1\ns_cbranch_scc0 {r_}\ns_mov_b32 {sTO}, 0\n{d_}:')
        if touch_g:
            with lowwaves(): touch_lines([(sGg, 0)])
    after_sleep = [None]
    def w567(parts=None, pause=0):
        l_ = lab('f5'); A(f's_cmp_eq_u32 {sW}, 4\ns_cbranch_scc1 {l_}')
        if pause: A(f's_sleep {pause}')
        for dw in (-5, -2, 1):
            k_ = lab('fs')
            if dw == 1: A(f's_cmp_eq_u32 {sW}, 7\ns_cbranch_scc1 {k_}')
            issue_ffn_any(dw, parts)
            A(f'{k_}:')
        A(f'{l_}:')
    def quick_gu():
        for k_ in range(2):
            A(f's_add_u32 m0, s84, {L_WG + 4096 * k_}\ns_nop 0\nbuffer_load_dwordx4 v126, {WG}, s{80+k_} offen nt lds')
            A(f's_add_u32 m0, s84, {L_WU + 4096 * k_}\ns_nop 0\nbuffer_load_dwordx4 v126, {WU}, s{80+k_} offen nt lds')
    def quick_d():
        for k_ in range(2):
            A(f's_add_u32 m0, s84, {L_WD + 4096 * k_}\ns_nop 0\nbuffer_load_dwordx4 v127, {WD}, s{82+k_} offen nt lds')
    def hi_first():
        o_, r_, e_, d_ = lab('fo'), lab('fr'), lab('fe'), lab('fd')
        nod = wd_behind or 'd' in tail_parts
        nw = 4 if nod else 6
        A(f's_cmp_lg_u32 {sW}, 4\ns_cbranch_scc1 {o_}')
        A(f'buffer_load_dword v69, v114, {WS}, s85 offen sc1')
        quick_gu()
        if not nod: quick_d()
        A(f's_waitcnt vmcnt({nw})\nv_cmp_ne_u32 vcc, {sTAG}, v69\ns_cbranch_vccz {d_}')
        A(f'{r_}:\ns_sleep {fback}\nbuffer_load_dword v69, v114, {WS}, s85 offen sc1\ns_waitcnt vmcnt(0)\nv_cmp_ne_u32 vcc, {sTAG}, v69\ns_cbranch_vccz {e_}')
        A(f's_sub_u32 {sTO}, {sTO}, 1\ns_cbranch_scc0 {r_}\ns_mov_b32 {sTO}, 0\n{e_}:')
        if flate: A(f's_sleep {flate}')
        A(f'{d_}:\nv_mov_b32 v68, {L_FL}\nv_mov_b32 v69, 1\nds_write_b32 v68, v69')
        if diag2: xstamp(51)
        A(f's_sleep {hi4}\ns_branch {after_sleep[0]}\n{o_}:\ns_sleep 1')
        quick_gu()
        if not nod: quick_d()
        if diag2:
            l_ = lab('d5'); A(f's_cmp_lg_u32 {sW}, 5\ns_cbranch_scc1 {l_}'); xstamp(53); A('s_waitcnt vmcnt(0)'); xstamp(55); A(f's_branch {after_sleep[0]}\n{l_}:')
        clean_rest()
    def hi_xb():
        leave_[0]()
        if touch_att:
            first_only(lambda: (touch_lines([(sQg, 0)]), touch_small([(sQSg, 0)])))()
            return
        if touch1 & 4: first_only(lambda: (touch_lines([(sGg, LS)]), touch_small([(sGSg, LS)])))()
        if touch1 & 8: first_only(lambda: (touch_lines([(sQg, 0), (sOg, LS)]), touch_small([(sQSg, 0), (sMLg, LS)])))()
    late_gu = 'g' not in tail_parts
    go, aw = lab('go'), lab('aw')
    after_sleep[0] = aw
    def lo_pre():
        if not late_gu: read_gu()
        A(f's_cmp_eq_u32 {sLIDX}, 0\ns_cbranch_scc1 {aw}_lo')
        if late_gu: read_gu()
    def hi_pre():
        A(f's_cmp_eq_u32 {sLIDX}, 0\ns_cbranch_scc1 {aw}_hi')
    g_wait(sk, dl, lo_pre, False, hi_pre)
    A(f'{go}:')
    keepL, A.L = A.L, []
    A(f'{aw}_hi:')
    hi_first()
    A(f's_sleep {hi0}\ns_branch {aw}\n{aw}_lo:\ns_sleep {lo0}\n{aw}:')
    await_flags()
    if wd_behind:
        A(f's_cmp_lt_u32 {sW}, 4\ns_cbranch_scc1 {go}\ns_mov_b32 {t0}, {sXg}')
        issue_g1(64, vXg, t0, 'x', 8192); quick_d()
        A(f's_waitcnt vmcnt(2)\ns_branch L_xa_landed')
    else: A(f's_branch {go}')
    tails.append('\n'.join(A.L)); A.L = keepL
    stamp()
    if diag2: A(f's_mov_b32 s65, {sTO}')
    reduce_x(0, False)
    if padfrom == 'X': first_only(lambda: A('s_memrealtime s[98:99]\ns_waitcnt lgkmcnt(0)'))()
    if diag2: first_only(lambda: A(f's_sub_u32 s65, s65, {sTO}\nv_readlane_b32 s94, {vTS}, 0\ns_mul_i32 s65, s65, 100\ns_add_u32 s65, s65, s94\nv_writelane_b32 {vTS}, s65, 54'))()
    def issue_gp(first):
        issue_g1(64, vG1, sGg, 'g')
        A.vmop(f'buffer_load_dwordx2 v[72:73], {vSt8}, {WS}, {sGSg} offen sc1', 'g')
        if first:
            A(f'v_and_b32 {vTMP}, 0xf0, {vG1}\nv_and_b32 {vTMP2}, 0xc00, {vG1}\nv_lshrrev_b32 {vTMP2}, 2, {vTMP2}\nv_or_b32 {vTMP}, {vTMP}, {vTMP2}')
            issue_g1(80, vTMP, sGCg, 'g', 1024)
    def ffn_gather(first):
        def f():
            if ldelay and not first: A(f's_sleep {ldelay}')
            if dual & 32 and first:
                sets = ((64, 80), (102, 116))
                A(f'v_and_b32 v114, 0xf0, {vG1}\nv_and_b32 {vTMP2}, 0xc00, {vG1}\nv_lshrrev_b32 {vTMP2}, 2, {vTMP2}\nv_or_b32 v114, v114, {vTMP2}')
                def iss(k):
                    a_, c_ = sets[k]
                    issue_g1(a_, vG1, sGg, 'x')
                    A.vmop(f'buffer_load_dwordx2 v[{a_+8}:{a_+9}], {vSt8}, {WS}, {sGSg} offen sc1', 'x')
                    issue_g1(c_, 'v114', sGCg, 'x', 1024)
                def spec(k):
                    a_, c_ = sets[k]
                    A(f'{M16} v[96:99], {SELG}, v[{a_}:{a_+3}], 0\n{M16} v[96:99], {SELG}, v[{a_+4}:{a_+7}], v[96:99]')
                    A(f'{M16} v[88:91], {SELG}, v[{c_}:{c_+3}], 0\n{M16} v[88:91], {SELG}, v[{c_+4}:{c_+7}], v[88:91]')
                    A(f'v_add_f32_dpp v78, v{a_+8}, v{a_+8} quad_perm:[1,0,3,2] {DPP}\nv_add_f32_dpp v79, v{a_+9}, v{a_+9} quad_perm:[1,0,3,2] {DPP}')
                poll2(iss, 5, lambda k: list(range(sets[k][0], sets[k][0] + 10)) + list(range(sets[k][1], sets[k][1] + 8)), spec)
                ln_finish(CSG, 1.0, True, 88)
                return
            if dual & 2 and not first: ln_poll2(sGg, sGSg, SELG)
            else: poll(lambda: issue_gp(first), QREGS1 if first else QREGS, ln_spec(SELG, first))
            ln_finish(CSG, 1.0, first)
        return f
    def hi_after_xa():
        slice_stats(sGSst)
        def f():
            if wd_after: w567('d')
            if rest_at == 'g0': clean_rest()
        if wd_after or rest_at == 'g0': first_only(f)()
    with lowwaves(hi_after_xa):
        matvec(vGst, 'plain', first_only(read_gu) if late_gu else None, sLAY)
        stamp()
        if wd_after or wd_behind: later_only(read_wd)
        else: read_wd()
        variant(ffn_gather(True), ffn_gather(False))
        stamp()
        A('v_cvt_pk_bf16_f32 v96, v96, v97\nv_and_b32 v97, 0xffff0000, v96\nv_lshlrev_b32 v96, 16, v96\nv_max_f32 v96, 0, v96\nv_mul_f32 v96, v96, v97\nv_cvt_pk_bf16_f32 v96, v96, v96')
        A(f'ds_write_b16 {vHW}, v96')
    A('s_waitcnt vmcnt(0) lgkmcnt(0)\ns_barrier')
    sk, dl = proj_out(2, vBR192, 0, oXB - oXA, (lambda: proj_body(2, vBR192, 0, oXB - oXA, read_wd)) if (wd_after or wd_behind) else None)
    def leave():
        no = lab('no')
        A(f's_cmp_eq_u32 {sLIDX}, 0\ns_cbranch_scc1 {no}\ns_cmp_lg_u32 {sHI}, 0\ns_cbranch_scc1 L_fin\ns_cmp_lg_u32 {sG}, {sLO}\ns_cbranch_scc1 L_fin\n{no}:')
    def pre_q():
        leave()
        read_wq()
    leave_[0] = leave
    g_wait(sk, dl, pre_q, False, hi_xb, gd_b, gdh_b, xb0)
    stamp()
    reduce_x(oXB - oXA, True)
    keep = nts[0]; nts[0] -= 11
    def advance():
        A(f's_mov_b32 {sLIDX}, 1\ns_mov_b32 {sLAY}, {LS}')
        for s in (sOg, sGg, sMLg, sGSg, sXg, sOPst, sMLst, sXst, sGSst):
            A(f's_add_u32 {s}, {s}, {LS}')
    if padfrom == 'B': A('s_memrealtime s[98:99]\ns_waitcnt lgkmcnt(0)')
    with lowwaves(lambda: (slice_stats(sQSst), advance())):
        matvec(vQst, 'plain')
        advance()
        stamp()
        if ldelay: A(f's_sleep {ldelay}')
        if dual & 1: ln_poll2(sQg, sQSg, SELA)
        else: poll(lambda: issue_q(False), QREGS, ln_spec(SELA, False))
        stamp()
        q_finish(False)
    if share:
        A('; ---- scores, row maximum, exp2, row sum (shared by both layers), P V')
        A('s_waitcnt vmcnt(0) lgkmcnt(0)\ns_barrier')
        if touch_att:
            with lowwaves(lambda: (touch_lines([(sOg, 0), (sGg, 0)], 48), touch_small([(sMLg, 0), (sGSg, 0)], 56))): pass
        A('L_scores:')
        scores(False)
        A(f's_cmp_eq_u32 {sLIDX}, 0\ns_cbranch_scc1 L_scored')
    else: scores()
    for i in range(16):
        pv(i)
        if i == 5: lsum()
    stamp()
    if share: A('s_branch L_merge')
    else:
        combine()
        stamp()
        A('s_branch L_layer')
    nts[0] = keep
    A('L_out:')
    A(f'buffer_store_dword v96, {vXO}, {OUT}, 0 offen' + (' sc1' if out_sc1 else ''))
    A(f's_or_b32 {t1}, s2, {sW}\ns_cmp_lg_u32 {t1}, 0\ns_cbranch_scc1 L_fin0')
    A(f's_mov_b64 exec, 1\nv_mov_b32 v97, {sTAG}\ns_mov_b32 {t2}, {EPOCH}\nbuffer_store_dword v97, off, {WS}, {t2} sc1')
    A('L_fin0:')
    full_exec()
    A('L_fin:')
    if wb:
        A(f's_cmp_lg_u32 {sC}, 31\ns_cbranch_scc1 L_nowb\ns_cmp_lg_u32 {sW}, 7\ns_cbranch_scc1 L_nowb\nbuffer_wbl2 sc1' + ('\ns_waitcnt vmcnt(0)' if wb == 1 else '') + '\nL_nowb:')
    if padto:
        A(f'L_pad:\ns_memrealtime s[94:95]\ns_waitcnt lgkmcnt(0)\ns_sub_u32 s94, s94, s98\ns_cmp_lt_u32 s94, {padto}\ns_cbranch_scc1 L_pad')
    if ts:
        stamp(True)
        A(f's_memtime s[94:95]\ns_waitcnt lgkmcnt(0)\ns_sub_u32 s94, s94, s98\nv_writelane_b32 {vTS}, s94, 63')
        A(f's_add_u32 s96, s96, 0x10000000\ns_addc_u32 s97, s97, 0\ns_lshl_b32 {t1}, s2, 11\nv_add_u32 v64, {t1}, {vT4}\nglobal_store_dword v64, {vTS}, s[96:97]')
        if dbgts:
            A(f's_or_b32 {t1}, s2, {sW}\ns_cmp_lg_u32 {t1}, 0\ns_cbranch_scc1 L_end')
            A(f'v_readlane_b32 {t1}, {vTS}, 0\nv_subrev_u32 v64, {t1}, {vTS}\nv_and_b32 v64, 0xffff, v64')
            A(f'v_mov_b32_dpp v65, v64 quad_perm:[1,1,3,3] {DPP}\nv_lshl_or_b32 v64, v65, 16, v64\nv_lshlrev_b32 v65, 1, {vL}')
            A(f's_mov_b32 exec_lo, 0x55555555\ns_mov_b32 exec_hi, 0\nbuffer_store_dword v64, v65, {DBG}, 0 offen sc1')
    A('s_endpgm')
    for t_ in tails: A(t_)
    A('L_end:\ns_endpgm')
    A(f'.section .rodata,"a"\n.p2align 6\n.amdhsa_kernel {NAME}_kernel')
    A('.amdhsa_next_free_vgpr 256\n.amdhsa_next_free_sgpr 102\n.amdhsa_accum_offset 128\n.amdhsa_group_segment_fixed_size 0\n.amdhsa_kernarg_size 96\n.amdhsa_user_sgpr_count 2\n.amdhsa_user_sgpr_kernarg_segment_ptr 1\n.amdhsa_system_sgpr_workgroup_id_x 1\n.end_amdhsa_kernel')
    if warm:
        i0 = A.L.index('L_scored:'); i1 = A.L.index('L_end:')
        isins = lambda l: l and not l.startswith((';', '.')) and not l.endswith(':')
        spots, cnt = [], warm
        for i in range(i0 + 1, i1):
            if isins(A.L[i]):
                prev_need = A.L[i - 1].startswith(';;need')
                if cnt >= warm and not prev_need and not A.L[i].startswith(('s_cbranch', 's_branch', 'buffer_load_dwordx4 v12')):
                    spots.append(i); cnt = 0
                cnt += 1
        n = len(spots); per = -(-n // 8)
        for k in reversed(range(n)):
            seg = k // per
            last = (k % per == per - 1) or k == n - 1
            tgt = ('L_back_lo' if seg < 4 else 'L_back_hi') if last else f'L_pad{k+1}'
            new = [f'L_pad{k}:', f's_cbranch_execz {tgt}']
            if k % per == 0: new = [f'L_pad_seg{seg}:'] + new
            A.L[spots[k]:spots[k]] = new
        assert (n - 1) // per == 7, (n, per)
    txt, probs = A.text()
    for p in probs: print('HAZARD', p, file=sys.stderr)
    return txt, nts[0]

if __name__ == '__main__':
    out = sys.argv[1]
    kw = {}
    for a in sys.argv[2:]:
        k, v = a.split('='); kw[k] = eval(v)
    txt, n = build(**kw)
    open(out, 'w').write(txt)
    print('stamps', n, 'lines', txt.count('\n'))
```

```python
import sys, math, struct
sys.path.insert(0, 'gen')
from asmlib import Asm

NAME = "interleave_layers__sliding_block_cached__glu_gated_reglu__decode"

bQP, bQS, bOP, bML, bGP, bGS, bGC, GB = 0x0, 0x8000, 0x8400, 0x10400, 0x10800, 0x18800, 0x18C00, 0x1AC00
oXA, oXB, LS = 8 * GB, 8 * GB + 0x20000, 8 * GB + 0x40000
TQP, TQC, TOP, TML, TF, EPOCH = 0x240000, 0x2C0000, 0x2E0000, 0x360000, 0x364000, 0x36C000
WS_REC = 0x36C100
OOB = 0x7FFF0000
L_RING, L_WQ, L_WO, L_WG, L_WU, L_WD = 0, 65536, 81920, 98304, 106496, 114688
L_QS, L_OS, L_HS, L_XS, L_RM, L_ST = 122880, 124160, 125440, 126208, 127168, 127424
L_FL = L_ST + 16
LDS_BYTES = 127488

def f32(x): return '0x%08x' % struct.unpack('<I', struct.pack('<f', x))[0]
QSCALE = 128 ** -0.5 * math.log2(math.e)

sW, sG, sC, sHI, sLO = 's3', 's4', 's5', 's6', 's7'
WS, KK, VV, WQ, WO, WG, WU, WD, XX, OUT, DBG = [f's[{i}:{i+3}]' for i in range(8, 52, 4)]
sKV, sRING, t0, t1, t2, t3 = 's52', 's53', 's54', 's55', 's56', 's57'
sLAY, sTO, sFAST, sCNT, sGOK, sLIDX = 's58', 's59', 's60', 's61', 's62', 's63'
sQg, sOg, sGg, sQSg, sMLg, sGSg, sXg, sGBASE, sGCg = ['s%d' % i for i in range(66, 75)]
sOPst, sMLst, sXst, sQSst, sGSst = ['s%d' % i for i in range(75, 80)]
g0, g1, g2, g3 = 's90', 's91', 's92', 's93'
vL, vT4, vSt8, vXg, vQst, vGst, vSSt, vG1, vXst, vQW, vBR320, vHW, vBR192, vXR, vXW, vL4 = ['v%d' % i for i in range(16)]
vROW, vROR, vRMW, vRMR, vWQr, vWr, vWOr, vXO = ['v%d' % i for i in range(16, 24)]
CSQ, CSG = 'v[24:25]', 'v[26:27]'
vTS, vML2, vTMP, vTMP2 = 'v28', 'v29', 'v30', 'v31'
SELA, MASK, SELG, ONES = 'v[32:35]', 36, 'v[40:43]', 'v[44:45]'
vMLst = 'v46'
XRES = 'v[112:113]'
sM4 = 's[88:89]'
sTAG = 's100'
DPP = 'row_mask:0xf bank_mask:0xf'
M16 = 'v_mfma_f32_16x16x32_bf16'

HEADER = r'''
;
;
;   - first q and first attention exchange: 16-byte granules {4 x bf16, tag, ..}; tag = (word found at ws+EPOCH) + 1,
;   Stores that are only read inside the group are plain when every member reported the same XCC id, write-through
'''

def build(ts=False, gdelay=12, gdelay_hi=18, pf_code=True, rides=(16, 21), w_at='land31', ldelay=0, bar_after_k0=False, fride=26, ffn_hi=False, touch_o=0, touch_g=0, ffn_sleep=0, clean3_xa=0, tlb=0, diag2=0, ffn_at=0, fdelay=1, fback=4, wo_at=0, csq_o=0, touch1=12, wt_at=29, csq_at=25, xa0=0, xb0=4, cl_at=29, tail_parts='d', lo0=12, hi0=15, hi4=4, wd_after=0, wd_behind=0, rest_at='xa', fearly=10, use_early=0, fullflag=1, flag_first=0, jitter=0, mid_parts='', mid_sleep=8, touch_att=1, p_sc=26, kpol='nt', vpol='nt', wb=0, out_sc1=0, dual=15, dstep=3, pf_few=0, pf_late=0, flate=0, share=1, gd_b=11, gdh_b=15, ffn_by_hi=1, tmajor=1, prio=0, padto=0, padfrom='', warm_x=1, warm_at=0, wd_late=0, xback=0, deep_from=24, depth=5, deep=7, diag=0, noclean=0, burst=4, late47=0, abl='', backoff=0, cl_sc1=1, dbgts=0, wsoff=0):
    A = Asm()
    uid = [0]
    def lab(p):
        uid[0] += 1; return f'L_{p}_{uid[0]}'
    nts = [0]; inloop = [False]
    def stamp(key=False):
        if jitter:
            l_ = lab('jt')
            A(f's_memtime s[94:95]\ns_waitcnt lgkmcnt(0)\ns_mul_i32 s94, s94, 0x9e3779b1\ns_xor_b32 s94, s94, s2\ns_mul_i32 s94, s94, 0x85ebca6b\ns_lshr_b32 s94, s94, {32 - jitter}')
            A(f's_cmp_lg_u32 s94, 0\ns_cbranch_scc1 {l_}\ns_sleep 100\n{l_}:')
        if not ts: return
        if ts == 2 and not key:
            nts[0] += 1; return
        if inloop[0]:
            A(f's_memrealtime s[94:95]\ns_mul_i32 m0, {sLIDX}, 11\ns_add_u32 m0, m0, {nts[0]}\ns_waitcnt lgkmcnt(0)\nv_writelane_b32 {vTS}, s94, m0')
        else:
            A(f's_memrealtime s[94:95]\ns_waitcnt lgkmcnt(0)\nv_writelane_b32 {vTS}, s94, {nts[0]}')
        nts[0] += 1
    def xstamp(i):
        A(f's_memrealtime s[94:95]\ns_waitcnt lgkmcnt(0)\nv_writelane_b32 {vTS}, s94, {i}')
    def set_exec(lo, hi=None):
        hi = lo if hi is None else hi
        A(f's_mov_b32 exec_lo, {lo:#x}\ns_mov_b32 exec_hi, {hi:#x}')
    def full_exec(): A('s_mov_b64 exec, -1')
    tails = []
    def lstore(fmt, tag='st', nxt=None, cmp=True):
        a, b = lab('wt'), lab('sd')
        for f_ in fmt.split('\n'): A((';;need2 ' if cmp else ';;need1 ') + f_)
        if cmp: A(f's_cmp_eq_u32 {sFAST}, 1')
        A(f's_cbranch_scc0 {a}')
        A(fmt); A(f'{b}:')
        tails.append(f'{a}:\n' + '\n'.join(f_ + ' sc1' for f_ in fmt.split('\n')) + f'\ns_branch {b}')
        A.vm.append(tag)
    class lowwaves:
        def __init__(s, other=None): s.other = other
        def __enter__(s):
            s.l = lab('hi'); s.o = lab('up') if s.other else s.l
            A(f's_cmp_ge_u32 {sW}, 4\ns_cbranch_scc1 {s.o}')
        def __exit__(s, *a):
            A(f'{s.l}:')
            if s.other:
                keepL, A.L = A.L, []
                A(f'{s.o}:'); s.other(); A(f's_branch {s.l}')
                tails.append('\n'.join(A.L)); A.L = keepL
    def sel(dst, a, b):
        A(f'v_cndmask_b32 {dst}, {a}, {b}, vcc')

    A(f'; @launch grid=(256,1,1) block=(512,1,1) lds={LDS_BYTES}')
    for l_ in HEADER.strip('\n').split('\n'): A.L.append(l_)
    A('.amdgcn_target "amdgcn-amd-amdhsa--gfx950"')
    A(f'.text\n.globl {NAME}_kernel\n.p2align 8\n.type {NAME}_kernel,@function\n{NAME}_kernel:')
    A('s_cmp_ge_u32 s2, 256\ns_cbranch_scc1 L_end')
    A('s_load_dwordx16 s[64:79], s[0:1], 0\ns_load_dwordx8 s[80:87], s[0:1], 64')
    if padto: A('s_memrealtime s[98:99]')
    if diag: A('s_memrealtime s[96:97]')
    A(f'v_lshlrev_b32 {vT4}, 2, v0')
    def prefetch_code():
        if pf_few: A(f's_cmp_ge_u32 s2, {8 * pf_few}\ns_cbranch_scc1 L_nopf')
        A(f's_getpc_b64 s[94:95]\nL_pc:\ns_sub_u32 s94, s94, L_pc-{NAME}_kernel\ns_subb_u32 s95, s95, 0\ns_lshr_b32 s93, s2, 3\ns_and_b32 s93, s93, 1\ns_lshl_b32 s93, s93, 13\nv_lshlrev_b32 {vTMP}, 2, {vT4}\nv_add_u32 {vTMP}, s93, {vTMP}')
        A(f'v_min_u32 {vTMP}, L_end-{NAME}_kernel-16, {vTMP}')
        A(f'global_load_dwordx4 v[96:99], {vTMP}, s[94:95]')
        if pf_few: A('L_nopf:')
        else: A.vm.append('pf')
    if pf_code and not pf_late: prefetch_code()
    A(f'v_lshrrev_b32 {vTMP}, 6, v0')
    A(f'v_and_b32 {vL}, 63, v0')
    A(f'v_readfirstlane_b32 {sW}, {vTMP}')
    A(f's_and_b32 {sG}, s2, 7\ns_lshr_b32 {sC}, s2, 3\ns_lshr_b32 {sHI}, {sC}, 3\ns_and_b32 {sLO}, {sC}, 7')
    A(f'v_and_b32 v120, 15, {vL}\nv_lshrrev_b32 v121, 4, {vL}')
    A(f'v_lshlrev_b32 {vTMP}, 2, v121\nv_xor_b32 {vTMP}, v120, {vTMP}\nv_lshlrev_b32 {vTMP}, 4, {vTMP}\nv_lshl_add_u32 v116, v121, 8, {vTMP}\nv_lshl_add_u32 v124, v121, 13, {vTMP}')
    A(f'v_and_b32 v122, 3, {vL}\nv_lshrrev_b32 v123, 2, v120')
    A(f's_lshr_b32 {t0}, {sW}, 1\ns_lshl_b32 {t0}, {t0}, 10\ns_and_b32 {t1}, {sW}, 1\ns_lshl_b32 {t1}, {t1}, 6\ns_add_u32 {t0}, {t0}, {t1}\ns_lshl_b32 {t1}, {sLO}, 7\ns_add_u32 {t0}, {t0}, {t1}')
    A(f'v_lshlrev_b32 v117, 4, v122\nv_lshl_add_u32 v117, v121, 2, v117\nv_add_u32 {vXO}, {t0}, v117')
    A(f's_lshl_b32 {t0}, {sHI}, 3\ns_add_u32 {t0}, {t0}, {sG}\ns_lshl_b32 {sKV}, {t0}, 22\ns_lshl_b32 {t0}, {sLO}, 17\ns_add_u32 {sKV}, {sKV}, {t0}\ns_add_u32 {sKV}, {sKV}, {12288*256}')
    A(f's_add_u32 {t0}, {sG}, {sC}\ns_add_u32 {t0}, {t0}, {sW}\ns_and_b32 {t0}, {t0}, 7\ns_lshl_b32 {t0}, {t0}, 12\ns_add_u32 {sKV}, {sKV}, {t0}')
    A(f's_lshl_b32 {sRING}, {sW}, 13')
    A(f's_and_b32 {g3}, {sW}, 3')
    A(f's_lshl_b32 {t0}, {sG}, 2\ns_add_u32 {t0}, {t0}, {sHI}')
    A(f'v_mov_b32 v118, {OOB}')
    A(f's_mul_i32 s101, {sG}, {GB}')
    A(f's_lshl_b32 {t1}, {sLO}, 6\ns_lshl_b32 {t2}, {sW}, 3\ns_add_u32 {t1}, {t1}, {t2}\ns_lshl_b32 {t1}, {t1}, 13\ns_lshl_b32 {t2}, {sG}, 10\ns_add_u32 {t1}, {t1}, {t2}\ns_lshl_b32 {t2}, {sHI}, 8\ns_add_u32 {t1}, {t1}, {t2}')
    A(f's_lshl_b32 {t2}, {sW}, 11\ns_add_u32 m0, {t2}, {L_WQ}')
    if ts:
        A(f'v_mov_b32 {vTS}, 0')
        if diag: A(f's_mov_b32 s92, s96');
        stamp(True)
        if diag: A(f'v_writelane_b32 {vTS}, s96, 38')
        A(f's_memtime s[98:99]')
    A('s_waitcnt lgkmcnt(0)')
    if diag: xstamp(39)
    def srd(d, lo, n):
        A(f's_mov_b32 s{d}, s{lo}\ns_mov_b32 s{d+1}, s{lo+1}\ns_mov_b32 s{d+2}, {n}\ns_mov_b32 s{d+3}, 0x20000')
    srd(20, 70, 4194304)
    A.vmop(f'buffer_load_dwordx4 v124, {WQ}, {t1} offen nt lds', 'wq')
    A(f's_add_u32 {t1}, {t1}, 32768\ns_add_u32 m0, m0, 1024')
    srd(40, 64, 4096)
    A.vmop(f'buffer_load_dwordx4 v124, {WQ}, {t1} offen nt lds', 'wq')
    srd(8, 86, WS_REC)
    if wsoff: A(f's_add_u32 s8, s8, {wsoff}\ns_addc_u32 s9, s9, 0')
    A.vmop(f'buffer_load_dword v68, {vXO}, {XX}, 0 offen', 'x0')
    A(f's_lshr_b32 {t2}, {sW}, 1\ns_lshl_b32 {t2}, {t2}, 10\nv_lshlrev_b32 {vTMP}, 4, {vL}')
    A.vmop(f'buffer_load_dwordx4 v[72:75], {vTMP}, {XX}, {t2} offen', 'x0')
    A(f's_mov_b32 {t2}, {EPOCH}')
    A.vmop(f'buffer_load_dword v69, off, {WS}, {t2} sc1', 'ep')
    srd(12, 66, 0x8000000)
    def piece(p, setm0=False):
        t, q = (p % 16) // 4, p % 4
        if q == 0 or setm0:
            A(f's_add_u32 {g1}, {sKV}, {t*32768}\ns_add_u32 m0, {sRING}, {((p//4)&1)*4096}')
        src = 'v116'
        A.vmop(f'buffer_load_dwordx4 {src}, {KK if p < 16 else VV}, {g1} offen offset:{q*1024} {kpol if p < 16 else vpol} lds', f'p{p}')
    for p in range(burst): piece(p)
    if pf_code and pf_late:
        assert not pf_few
        A('s_mov_b32 s92, s93'); prefetch_code(); A('s_mov_b32 s93, s92')
    srd(16, 68, 0x8000000)
    if ts: A('s_mov_b32 s96, s86\ns_mov_b32 s97, s87')

    srd(24, 72, 4194304); srd(44, 82, 4096); srd(48, 84, 256)
    srd(28, 76, 1835008); srd(32, 78, 1835008); srd(36, 80, 1835008)
    A(f's_mul_i32 {t1}, {sG}, 3\ns_add_u32 {t1}, {t1}, 4\ns_lshl_b32 {t2}, {sG}, 2\ns_cmp_ge_u32 {sG}, 4\ns_cselect_b32 {g2}, {t1}, {t2}\ns_add_u32 {g2}, {g2}, {sHI}\ns_min_u32 {g2}, {g2}, 27')
    if tlb:
        A(f's_lshl_b32 {t1}, {t0}, 17')
        A.vmop(f'buffer_load_dword v96, off, {WO}, {t1} nt', 'tlb')
        A(f's_mul_i32 {t1}, {sLO}, {64*3584}')
        A.vmop(f'buffer_load_dword v96, off, {WG}, {t1} nt', 'tlb')
        A.vmop(f'buffer_load_dword v96, off, {WU}, {t1} nt', 'tlb')
        A(f's_lshl_b32 {t1}, {g2}, 16')
        A.vmop(f'buffer_load_dword v96, off, {WD}, {t1} nt', 'tlb')
        A(f'v_lshlrev_b32 {vTMP}, 19, v120')
        A.vmop(f'buffer_load_dword v96, {vTMP}, {WS}, 0 offen nt', 'tlb')
        A.vmop(f'buffer_load_dword v96, off, {VV}, {sKV} nt', 'tlb')
    A(f's_getreg_b32 {t1}, hwreg(HW_REG_XCC_ID)\ns_and_b32 s64, {t1}, 15')
    A(f's_mov_b32 s88, 0x000f000f\ns_mov_b32 s89, 0x000f000f')
    A(f's_mov_b32 {sGBASE}, s101')
    A(f's_lshl_b32 {t1}, {sHI}, 13\ns_add_u32 {t1}, {t1}, {sGBASE}')
    A(f's_add_u32 {sQg}, {t1}, {bQP + LS}\ns_add_u32 {sOg}, {t1}, {bOP}\ns_add_u32 {sGg}, {t1}, {bGP}')
    A(f's_lshl_b32 {t1}, {g3}, 2\ns_add_u32 {t1}, {t1}, {sHI}\ns_lshl_b32 {t1}, {t1}, 6\ns_add_u32 {t1}, {t1}, {sGBASE}\ns_add_u32 {sQSg}, {t1}, {bQS + LS}')
    A(f's_lshl_b32 {sMLst}, {sLO}, 3\ns_add_u32 {sMLst}, {sMLst}, {t1}\ns_add_u32 {sMLst}, {sMLst}, {bML}')
    A(f's_lshl_b32 {t2}, {g3}, 13\ns_lshl_b32 {t1}, {sLO}, 10\ns_add_u32 {t2}, {t2}, {t1}\ns_lshl_b32 {t1}, {sHI}, 8\ns_add_u32 {t2}, {t2}, {t1}\ns_add_u32 {t2}, {t2}, {sGBASE}\ns_add_u32 {sOPst}, {t2}, {bOP}')
    A(f's_lshl_b32 {t1}, {sHI}, 2\ns_add_u32 {t1}, {t1}, {g3}\ns_lshl_b32 {t1}, {t1}, 6\ns_add_u32 {t1}, {t1}, {sGBASE}\ns_add_u32 {sMLg}, {t1}, {bML}\ns_add_u32 {sGSg}, {t1}, {bGS}')
    A(f's_lshl_b32 {t1}, {sLO}, 14\ns_add_u32 {sXg}, {t1}, {oXA}')
    A(f's_lshl_b32 {t1}, {t0}, 9\ns_add_u32 {sXst}, {sXg}, {t1}')
    A(f's_lshl_b32 {t1}, {sHI}, 11\ns_add_u32 {t1}, {t1}, {sGBASE}\ns_add_u32 {sGCg}, {t1}, {bGC}')
    A(f's_lshl_b32 {t3}, {sHI}, 8\ns_lshl_b32 {t1}, {sLO}, 3\ns_add_u32 {t3}, {t3}, {t1}\ns_add_u32 {t3}, {t3}, {sGBASE}\ns_add_u32 {sQSst}, {t3}, {bQS + LS}\ns_add_u32 {sGSst}, {t3}, {bGS}')
    A(f's_lshl_b32 s101, {t0}, 14\ns_add_u32 s101, s101, {TQP}')
    A(f's_lshl_b32 {t1}, {sLO}, 10\ns_lshl_b32 {t2}, {sHI}, 8\ns_add_u32 {t1}, {t1}, {t2}\ns_lshl_b32 {t2}, {g3}, 6\ns_add_u32 {t3}, {t1}, {t2}')
    A(f's_add_u32 {t1}, {sGBASE}, {t3}\ns_add_u32 {t1}, {t1}, {LS}\ns_mov_b32 {t2}, {OOB}')
    A(f's_cmp_ge_u32 {sW}, 4\ns_cselect_b32 {g0}, 0, 5')
    def st_off(dst, shift):
        A(f'v_lshlrev_b32 {vTMP}, {shift}, v120\nv_add_u32 {vTMP}, {t1}, {vTMP}\nv_mov_b32 {vTMP2}, {t2}\nv_cmp_eq_u32 vcc, 4, v120'); sel(vTMP, vTMP, vTMP2)
        A(f'v_lshl_add_u32 {vTMP}, v121, 4, {vTMP}\nv_cmp_gt_u32 vcc, {g0}, v120'); sel(dst, 'v118', vTMP)
    st_off(vQst, 13)
    A(f's_lshl_b32 {t3}, {t3}, 1\ns_lshl_b32 {t1}, {g3}, 6\ns_sub_u32 {t3}, {t3}, {t1}\ns_lshl_b32 {t1}, {sG}, 16\ns_add_u32 {t1}, {t1}, {t3}\ns_add_u32 {t1}, {t1}, {TQP}\ns_lshl_b32 {t2}, {sG}, 14\ns_add_u32 {t2}, {t2}, {t3}\ns_add_u32 {t2}, {t2}, {TQC}')
    st_off('v109', 14)
    A(f'v_lshlrev_b32 {vTMP}, 6, v122\nv_add_u32 {vTMP2}, 4, {vTMP}\nv_cmp_gt_u32 vcc, 16, {vL}'); sel(vTMP, vTMP, vTMP2)
    A(f'v_and_b32 {vTMP2}, {0x1ec*4}, {vT4}\nv_cmp_eq_u32 vcc, {256*4}, {vTMP2}'); sel(vSSt, 'v118', vTMP)
    A(f'v_lshlrev_b32 v115, 2, {vT4}')
    A(f's_lshl_b32 {t1}, {sG}, 2\ns_add_u32 {t1}, {t1}, {g3}\ns_lshl_b32 {t1}, {t1}, 14\ns_lshl_b32 {t2}, {sLO}, 11\ns_add_u32 {t1}, {t1}, {t2}\ns_lshl_b32 {t2}, {sHI}, 9\ns_add_u32 {t1}, {t1}, {t2}\ns_add_u32 {t1}, {t1}, {TOP}')
    A(f'v_and_b32 {vTMP}, 2, {vL}\nv_lshlrev_b32 {vTMP}, 7, {vTMP}\nv_lshrrev_b32 {vTMP2}, 2, {vL}\nv_lshl_add_u32 {vTMP}, {vTMP2}, 4, {vTMP}\nv_add_u32 {vTMP}, {t1}, {vTMP}\nv_and_b32 {vTMP2}, 1, {vL}\nv_cmp_eq_u32 vcc, 0, {vTMP2}'); sel('v110', 'v118', vTMP)
    A(f's_mov_b32 {sLAY}, 0\ns_mov_b32 {sTO}, 400000\ns_mov_b32 {sFAST}, 0\ns_mov_b32 {sCNT}, 0\ns_mov_b32 {sGOK}, 0\ns_mov_b32 {sLIDX}, 0')
    A(f's_lshl_b32 {t3}, {g3}, 6\ns_lshl_b32 {t1}, {sLO}, 10\ns_add_u32 {t1}, {t1}, {sGg}\ns_add_u32 {t1}, {t1}, {t3}\ns_lshl_b32 {t2}, {sLO}, 8\ns_add_u32 {t2}, {t2}, {sGCg}\ns_add_u32 {t2}, {t2}, {t3}')
    st_off(vGst, 8)
    A(f'v_and_b32 {vTMP}, 7, {vL}\nv_lshlrev_b32 {vSt8}, 3, {vTMP}\nv_lshlrev_b32 {vL4}, 2, {vL}\nv_lshlrev_b32 {vML2}, 3, v121')
    A(f'v_cmp_eq_u32 vcc, 0, {vL}'); sel(vMLst, 'v118', '0')
    A(f's_lshl_b32 {t1}, {g3}, 8\nv_lshlrev_b32 {vTMP}, 4, v120\nv_lshl_add_u32 {vG1}, v121, 10, {vTMP}\nv_add_u32 {vG1}, {t1}, {vG1}')
    A(f's_lshl_b32 {t1}, {sW}, 6\nv_lshlrev_b32 {vXg}, 11, v123\nv_lshl_add_u32 {vXg}, v121, 9, {vXg}\nv_lshl_add_u32 {vXg}, v122, 4, {vXg}\nv_add_u32 {vXg}, {t1}, {vXg}')
    A(f's_lshr_b32 {t1}, {sW}, 1\ns_mul_i32 {t1}, {t1}, 192\ns_and_b32 {t2}, {sW}, 1\ns_lshl_b32 {t2}, {t2}, 6\ns_add_u32 {t1}, {t1}, {t2}\ns_add_u32 {t1}, {t1}, {L_XS}\nv_add_u32 {vXW}, {t1}, v117')
    A(f's_mul_i32 {t1}, {g3}, 320\ns_add_u32 {t1}, {t1}, {L_QS}\nv_lshl_add_u32 {vQW}, v121, 2, {vTMP}\nv_add_u32 {vQW}, {t1}, {vQW}')
    A(f's_mul_i32 {t1}, {g3}, 192\ns_add_u32 {t1}, {t1}, {L_HS}\nv_lshlrev_b32 {vHW}, 3, v120\nv_lshl_add_u32 {vHW}, v121, 1, {vHW}\nv_add_u32 {vHW}, {t1}, {vHW}')
    A(f'v_mul_u32_u24 {vBR320}, 320, v122\nv_lshl_add_u32 {vBR320}, v121, 4, {vBR320}\nv_add_u32 {vBR320}, {L_QS}, {vBR320}')
    A(f'v_mul_u32_u24 {vBR192}, 192, v122\nv_lshl_add_u32 {vBR192}, v121, 4, {vBR192}\nv_add_u32 {vBR192}, {L_HS}, {vBR192}')
    A(f'v_min_u32 {vTMP2}, 4, v120\nv_mul_u32_u24 {vXR}, 192, {vTMP2}\nv_lshl_add_u32 {vXR}, v121, 4, {vXR}\nv_add_u32 {vXR}, {L_XS}, {vXR}')
    A(f's_lshl_b32 {t1}, {g3}, 5\nv_lshlrev_b32 {vTMP2}, 7, v120\nv_lshl_add_u32 {vTMP2}, v121, 3, {vTMP2}\nv_add_u32 {vTMP2}, {t1}, {vTMP2}\nv_cmp_gt_u32 vcc, 4, v120'); sel(vXst, 'v118', vTMP2)
    A(f'v_lshlrev_b32 {vTMP2}, 4, {vL}\nv_add_u32 {vROW}, {sRING}, {vTMP2}')
    A(f's_lshr_b32 {t1}, {g3}, 1\ns_lshl_b32 {t1}, {t1}, 10\ns_and_b32 {t2}, {g3}, 1\ns_lshl_b32 {t2}, {t2}, 3\ns_add_u32 {t1}, {t1}, {t2}\nv_add_u32 {vROR}, {t1}, {vTMP2}')
    A(f's_lshl_b32 {t1}, {sW}, 3\ns_add_u32 {t1}, {t1}, {L_RM}\nv_lshlrev_b32 {vRMW}, 6, v122\nv_add_u32 {vRMW}, {t1}, {vRMW}')
    A(f's_lshl_b32 {t1}, {g3}, 6\ns_add_u32 {t1}, {t1}, {L_RM}\nv_add_u32 {vRMR}, {t1}, {vSt8}')
    A(f'v_lshl_add_u32 v125, v121, 3, v123')
    A(f'v_xor_b32 {vTMP}, {g3}, v123\nv_lshlrev_b32 {vTMP}, 6, {vTMP}\nv_lshl_add_u32 {vTMP}, v122, 4, {vTMP}\nv_lshl_add_u32 {vWQr}, v125, 8, {vTMP}\nv_add_u32 {vWQr}, {L_WQ}, {vWQr}')
    A(f'v_lshrrev_b32 v119, 1, v123\nv_and_b32 v127, 1, v121\nv_lshlrev_b32 {vTMP}, 1, v127')
    A(f'v_xor_b32 {vTMP}, {g3}, {vTMP}\nv_lshlrev_b32 {vTMP}, 5, {vTMP}\nv_lshl_add_u32 {vTMP}, v122, 3, {vTMP}\nv_lshl_add_u32 {vWr}, v125, 7, {vTMP}\nv_add_u32 {vWr}, {L_WG}, {vWr}')
    A(f'v_and_b32 v126, 1, v123\nv_lshlrev_b32 {vTMP}, 1, v126\nv_xor_b32 {vTMP}, {g3}, {vTMP}\nv_lshlrev_b32 {vTMP}, 5, {vTMP}\nv_lshl_add_u32 {vTMP}, v122, 3, {vTMP}')
    A(f'v_lshl_add_u32 {vTMP2}, v121, 2, v119\nv_lshl_add_u32 {vTMP2}, v126, 6, {vTMP2}\nv_lshl_add_u32 {vWOr}, {vTMP2}, 7, {vTMP}\nv_add_u32 {vWOr}, {L_WO}, {vWOr}')
    A(f'v_and_b32 v125, 1, v120\nv_mov_b32 {vTMP}, 0xffff\nv_mov_b32 {vTMP2}, 0xffff0000\nv_cmp_eq_u32 vcc, 1, v125'); sel('v119', vTMP, vTMP2)
    A(f'v_cmp_gt_u32 vcc, 2, v122'); sel('v119', '0', 'v119')
    for i in range(4):
        A(f'v_cmp_eq_u32 vcc, {i}, v123'); sel(f'v{MASK+i}', '0', 'v119'); A(f'v_and_b32 v{32+i}, 0x3f803f80, v{MASK+i}')
    A(f'v_mov_b32 {vTMP}, 0x3f80\nv_mov_b32 {vTMP2}, 0x3f800000\nv_cmp_eq_u32 vcc, 1, v126'); sel('v119', vTMP, vTMP2)
    A(f'v_cmp_gt_u32 vcc, 2, v122'); sel('v119', '0', 'v119')
    A(f'v_lshrrev_b32 {vTMP}, 1, v123\nv_lshl_add_u32 {vTMP}, v125, 1, {vTMP}')
    for i in range(4):
        A(f'v_cmp_eq_u32 vcc, {i}, {vTMP}'); sel(f'v{40+i}', '0', 'v119')
    A('v_mov_b32 v44, 0x3f803f80\nv_mov_b32 v45, 0x3f803f80')
    A(f'v_and_b32 {vTMP2}, 7, {vL}\nv_lshrrev_b32 v119, 3, {vL}')
    A(f's_lshr_b32 {t1}, {sW}, 2\ns_lshl_b32 {t1}, {t1}, 2\nv_xor_b32 {vTMP}, {t1}, {vTMP2}\nv_lshlrev_b32 {vTMP}, 4, {vTMP}\nv_lshl_add_u32 v124, v119, 10, {vTMP}')
    A(f's_and_b32 {t1}, {sW}, 1\ns_lshl_b32 {t1}, {t1}, 2\nv_xor_b32 {vTMP}, {t1}, {vTMP2}\nv_lshlrev_b32 {vTMP}, 4, {vTMP}')
    A(f'v_lshl_add_u32 v127, v119, 10, {vTMP}\nv_mul_u32_u24 v126, 3584, v119\nv_add_u32 v126, v126, {vTMP}')
    A(f's_cmp_ge_u32 {sG}, 4\ns_cselect_b32 {t2}, 3, 4\ns_cmp_lt_u32 {sHI}, {t2}\ns_cselect_b32 {t2}, 0, {OOB}\nv_add_u32 v126, {t2}, v126\nv_add_u32 v127, {t2}, v127')
    A(f'v_lshlrev_b32 {vTMP}, 1, v123\nv_xor_b32 {vTMP}, v121, {vTMP}\nv_lshlrev_b32 {vTMP}, 5, {vTMP}\nv_lshl_add_u32 {vTMP}, v122, 3, {vTMP}\nv_lshl_add_u32 {vTMP}, v123, 8, {vTMP}\nv_add_u32 v122, {sRING}, {vTMP}\nv_xor_b32 v123, 128, v122')
    A(f'v_and_b32 {vTMP}, 3, v120\nv_lshlrev_b32 {vTMP}, 6, {vTMP}\nv_lshl_add_u32 {vTMP}, v121, 4, {vTMP}\nv_lshl_add_u32 {vTMP}, v120, 8, {vTMP}\nv_add_u32 v118, {sRING}, {vTMP}')
    for j in range(1, 4): A(f'v_xor_b32 v{118+j}, {64*j}, v118')
    A(f'v_and_b32 {vTMP}, 124, {vL4}\nv_add_u32 {vTMP}, {L_XS+4*192}, {vTMP}\nds_write_b32 {vTMP}, v44')
    A(f'v_mov_b32 {vTMP}, {L_FL}\nv_mov_b32 {vTMP2}, 0\nds_write_b32 {vTMP}, {vTMP2}')

    def read_k(i):
        for j in range(4): A(f'ds_read_b128 a[{16*i+4*j}:{16*i+4*j+3}], v{118+j} offset:{(i&1)*4096}')
    def read_v(p):
        i = p - 16
        for hf in range(2):
            r = 64 + 4 * i + 2 * hf
            A(f'ds_read_b64_tr_b16 a[{r}:{r+1}], v{122+hf} offset:{((p//4)&1)*4096 + (p%4)*1024}')
    if not late47:
        for p in range(burst, 8): piece(p)
    if diag: xstamp(40)
    A.wait_vm('ep')
    if diag: xstamp(41)
    A(f'v_and_b32 v113, 0xffff0000, v68\nv_lshlrev_b32 v112, 16, v68')
    A(f'v_readfirstlane_b32 {sTAG}, v69\ns_add_u32 {sTAG}, {sTAG}, 1')
    A('v_dot2_f32_bf16 v78, v72, v44, 0\nv_dot2_f32_bf16 v79, v72, v72, 0')
    for k in range(73, 76): A(f'v_dot2_f32_bf16 v78, v{k}, v44, v78\nv_dot2_f32_bf16 v79, v{k}, v{k}, v79')
    for m in ('quad_perm:[1,0,3,2]', 'quad_perm:[2,3,0,1]', 'row_half_mirror', 'row_mirror'):
        A(f'v_add_f32_dpp v78, v78, v78 {m} {DPP}\nv_add_f32_dpp v79, v79, v79 {m} {DPP}')
    for sw in ('v_permlane16_swap_b32', 'v_permlane32_swap_b32'):
        A(f'v_mov_b32 v76, v78\nv_mov_b32 v77, v79\n{sw} v78, v76\n{sw} v79, v77\nv_add_f32 v78, v78, v76\nv_add_f32 v79, v79, v77')
    c2 = QSCALE * QSCALE
    A(f'v_mov_b32 v75, {f32(1e-5/c2)}\nv_mul_f32 v74, v78, v78\nv_fmac_f32 v75, {f32(1/(512*c2))}, v79\nv_fmac_f32 v75, {f32(-1/(512*512*c2))}, v74\nv_max_f32 v75, {f32(1e-5/c2)}, v75\nv_rsq_f32 v74, v75')
    A(f'v_mul_f32 v78, {f32(-1/512)}, v78\nv_add_f32 v72, v112, v78\nv_add_f32 v73, v113, v78\nv_mul_f32 v72, v72, v74\nv_mul_f32 v73, v73, v74\nv_cvt_pk_bf16_f32 v72, v72, v73\nds_write_b32 {vXW}, v72')
    if late47:
        for p in range(burst, 8): piece(p)
    if diag: xstamp(42)
    A.wait_vm('wq')
    if diag: xstamp(43)
    if bar_after_k0:
        A.wait_vm('p3')
        read_k(0)
        A('s_waitcnt lgkmcnt(0)')
        for p in range(8, 12): piece(p)
    A('s_waitcnt lgkmcnt(0)')
    if 'B' not in abl: A('s_barrier')
    stamp()

    def read_wq():
        for tl in range(2):
            for j in range(2):
                for u in range(2):
                    r = 48 + 8 * tl + 4 * j + 2 * u
                    A(f'ds_read_b64_tr_b16 v[{r}:{r+1}], {vWQr} offset:{8*tl+8192*j+1024*u}')
    def read_gu():
        for tl in range(2):
            for j in range(2):
                for u in range(2):
                    r = 48 + 8 * tl + 4 * j + 2 * u
                    A(f'ds_read_b64_tr_b16 v[{r}:{r+1}], {vWr} offset:{8192*tl+4096*j+512*u}')
    def read_wd():
        for j in range(2):
            for u in range(2):
                A(f'ds_read_b64_tr_b16 v[{48+4*j+2*u}:{49+4*j+2*u}], {vWr} offset:{16384+4096*j+512*u}')
    def read_wo():
        for j in range(4):
            for u in range(2):
                A(f'ds_read_b64_tr_b16 v[{48+4*j+2*u}:{49+4*j+2*u}], {vWOr} offset:{2048*j+256*u}')
    def matvec(vst, mode, late_w=None, soff='0'):
        A(f'ds_read_b128 v[80:83], {vXR}\nds_read_b128 v[84:87], {vXR} offset:64')
        if late_w: late_w()
        A('s_waitcnt lgkmcnt(0)' if late_w else 's_waitcnt lgkmcnt(1)')
        A(f'{M16} v[96:99], v[48:51], v[80:83], 0\n{M16} v[104:107], v[56:59], v[80:83], 0')
        if not late_w: A('s_waitcnt lgkmcnt(0)')
        A(f'{M16} v[96:99], v[52:55], v[84:87], v[96:99]\n{M16} v[104:107], v[60:63], v[84:87], v[104:107]')
        if mode == 'plain':
            A(f's_cmp_eq_u32 {sFAST}, 1')
            A('v_cvt_pk_bf16_f32 v96, v96, v97\nv_cvt_pk_bf16_f32 v97, v98, v99\nv_cvt_pk_bf16_f32 v98, v104, v105\nv_cvt_pk_bf16_f32 v99, v106, v107')
            lstore(f'buffer_store_dwordx4 v[96:99], {vst}, {WS}, {soff} offen', cmp=False)
            return
        A(f'v_mov_b32 v102, {sTAG}\nv_mov_b32 v103, s64')
        A(f'v_cvt_pk_bf16_f32 v100, v96, v97\nv_cvt_pk_bf16_f32 v101, v98, v99\nv_cvt_pk_bf16_f32 v104, v104, v105\nv_cvt_pk_bf16_f32 v105, v106, v107')
        A(f'v_mov_b32 v106, {sTAG}\nv_mov_b32 v107, s64')
        if mode == 'q0':
            A.vmop(f'buffer_store_dwordx4 v[100:103], {vst}, {WS}, 0 offen', 'st')
            A.vmop(f'buffer_store_dwordx4 v[104:107], {vst}, {WS}, 0 offen offset:256', 'st')
        else:
            lstore(f'buffer_store_dwordx4 v[100:103], {vst}, {WS}, 0 offen\nbuffer_store_dwordx4 v[104:107], {vst}, {WS}, 0 offen offset:256')
    def slice_stats(sst):
        l = lab('st')
        A(f's_cmp_lg_u32 {sW}, 4\ns_cbranch_scc1 {l}')
        A(f'ds_read_b128 v[80:83], {vXR}\nds_read_b128 v[84:87], {vXR} offset:64\ns_waitcnt lgkmcnt(1)')
        A(f'{M16} v[104:107], v[80:83], v[80:83], 0\ns_waitcnt lgkmcnt(0)\n{M16} v[104:107], v[84:87], v[84:87], v[104:107]')
        def pick():
            A('v_cndmask_b32 v104, v104, v105, s[80:81]\nv_cndmask_b32 v106, v106, v107, s[80:81]\nv_cndmask_b32 v104, v104, v106, s[82:83]')
        A('s_mov_b64 s[80:81], 10\ns_mov_b64 s[82:83], 12')
        A(f's_cmp_eq_u32 {sFAST}, 1')
        pick()
        lstore(f'buffer_store_dword v104, {vSSt}, {WS}, {sst} offen', cmp=False)
        A.vm.pop()
        A(f'{l}:')

    def issue_g1(dst, voff, sbase, tag, step=4096):
        A.vmop(f'buffer_load_dwordx4 v[{dst}:{dst+3}], {voff}, {WS}, {sbase} offen sc1', tag)
        if step >= 4096:
            A(f's_add_u32 {t1}, {sbase}, {step}')
            A.vmop(f'buffer_load_dwordx4 v[{dst+4}:{dst+7}], {voff}, {WS}, {t1} offen sc1', tag)
        else:
            A.vmop(f'buffer_load_dwordx4 v[{dst+4}:{dst+7}], {voff}, {WS}, {sbase} offen offset:{step} sc1', tag)
    def check_empty(regs):
        regs = list(regs)
        A(f'v_max3_u32 {vTMP}, v{regs[0]}, v{regs[1]}, v{regs[2]}'); rest = regs[3:]
        if len(rest) >= 5:
            A(f'v_max3_u32 {vTMP2}, v{rest[0]}, v{rest[1]}, v{rest[2]}'); rest = rest[3:]
            tg = 0
            while len(rest) >= 2:
                d = (vTMP, vTMP2)[tg]; A(f'v_max3_u32 {d}, {d}, v{rest[0]}, v{rest[1]}'); rest = rest[2:]; tg ^= 1
            if rest: A(f'v_max3_u32 {vTMP}, {vTMP}, {vTMP2}, v{rest[0]}')
            else: A(f'v_max_u32 {vTMP}, {vTMP}, {vTMP2}')
        else:
            while len(rest) >= 2:
                A(f'v_max3_u32 {vTMP}, {vTMP}, v{rest[0]}, v{rest[1]}'); rest = rest[2:]
            if rest: A(f'v_max_u32 {vTMP}, {vTMP}, v{rest[0]}')
        A(f'v_cmp_eq_u32 vcc, -1, {vTMP}')
    def poll(issue, regs, spec=None, mark=None):
        r, d = lab('retry'), lab('got')
        A(f'{r}:')
        issue()
        A.wait_vm()
        if mark: A(f'{mark}:')
        if spec: spec()
        check_empty(regs)
        tl = lab('again')
        A(f's_cbranch_vccnz {tl}\n{d}:')
        tails.append(f'{tl}:\n' + (f's_sleep {backoff}\n' if backoff else '') + f's_sub_u32 {sTO}, {sTO}, 1\ns_cbranch_scc0 {r}\ns_mov_b32 {sTO}, 0\ns_branch {d}')
    def poll2(issue, nld, regs, spec):
        d, sb, sa = lab('got'), lab('setb'), lab('seta')
        issue(0)
        if dstep: A(f's_sleep {dstep}')
        issue(1)
        A(f'{sa}:\ns_waitcnt vmcnt({nld})')
        spec(0); check_empty(regs(0))
        A(f's_cbranch_vccnz {sb}\n{d}:')
        keepL, A.L = A.L, []
        A(f'{sb}:'); issue(0)
        A(f's_waitcnt vmcnt({nld})\ns_nop 1')
        spec(1); check_empty(regs(1))
        A(f's_nop 1\ns_cbranch_vccz {d}')
        issue(1)
        A(f's_sub_u32 {sTO}, {sTO}, 1\ns_cbranch_scc0 {sa}\ns_mov_b32 {sTO}, 0\ns_branch {d}')
        tails.append('\n'.join(A.L)); A.L = keepL
        A.vm = []
    def ln_poll2(sdata, sstat, selop):
        def iss(k):
            issue_g1(64 + 16 * k, vG1, sdata, 'x')
            A.vmop(f'buffer_load_dwordx2 v[{72+16*k}:{73+16*k}], {vSt8}, {WS}, {sstat} offen sc1', 'x')
        def spec(k):
            b = 64 + 16 * k
            A(f'{M16} v[96:99], {selop}, v[{b}:{b+3}], 0\n{M16} v[96:99], {selop}, v[{b+4}:{b+7}], v[96:99]')
            A(f'v_add_f32_dpp v78, v{b+8}, v{b+8} quad_perm:[1,0,3,2] {DPP}\nv_add_f32_dpp v79, v{b+9}, v{b+9} quad_perm:[1,0,3,2] {DPP}')
        poll2(iss, 3, lambda k: range(64 + 16 * k, 74 + 16 * k), spec)
    def issue_q(first):
        if not first:
            issue_g1(64, vG1, sQg, 'q')
            A.vmop(f'buffer_load_dwordx2 v[72:73], {vSt8}, {WS}, {sQSg} offen sc1', 'q')
            return
        issue_tagged(f's_mov_b32 {t1}, s101')
    def issue_tagged(base, dst=80, voff=None, kstep=8192, hstep=256):
        if voff is None:
            A(f'v_and_b32 {vTMP2}, 0xf0, {vG1}\nv_lshlrev_b32 {vTMP}, 1, {vG1}\nv_sub_u32 {vTMP}, {vTMP}, {vTMP2}')
        else: A(voff)
        A(base + f'\ns_add_u32 {t2}, {t1}, {kstep}')
        for k in range(2):
            for hh in range(2):
                r = dst[2 * k + hh] if isinstance(dst, tuple) else dst + 8 * k + 4 * hh
                A.vmop(f'buffer_load_dwordx4 v[{r}:{r+3}], {vTMP}, {WS}, {(t1, t2)[k]} offen offset:{hstep*hh} sc1', 'q')
    def issue_o0():
        issue_tagged(f's_lshl_b32 {t1}, {sG}, 2\ns_add_u32 {t1}, {t1}, {sHI}\ns_lshl_b32 {t0}, {t1}, 2\ns_lshl_b32 {t1}, {t1}, 14\ns_add_u32 {t1}, {t1}, {TOP}', o0dst[0])
        A(f's_add_u32 {t0}, {t0}, {sW}\ns_lshl_b32 {t0}, {t0}, 7\ns_add_u32 {t0}, {t0}, {TML}\nv_lshlrev_b32 {vTMP2}, 1, {vML2}')
        m_ = o0ml[0]
        A.vmop(f'buffer_load_dwordx4 v[{m_}:{m_+3}], {vTMP2}, {WS}, {t0} offen sc1', 'q')
        A.vmop(f'buffer_load_dwordx4 v[{m_+4}:{m_+7}], {vTMP2}, {WS}, {t0} offen offset:64 sc1', 'q')
    o0dst = [80]; o0ml = [64]
    def check_words(words, sval):
        w = list(words)
        A(f'v_xor_b32 {vTMP}, {sval}, v{w[0]}')
        for x in w[1:]: A(f'v_xor_b32 {vTMP2}, {sval}, v{x}\nv_or_b32 {vTMP}, {vTMP}, {vTMP2}')
        A(f'v_cmp_ne_u32 vcc, 0, {vTMP}')
    def check_tags(words=(82, 86, 90, 94)): check_words(words, sTAG)
    def tagged_sum(selbase=32, src=80, acc=96, selk=0):
        for n_, (k, hh) in enumerate(((0, 0), (0, 1), (1, 0), (1, 1))):
            r = src[2 * k + hh] if isinstance(src, tuple) else src + 8 * k + 4 * hh
            sb = selbase + selk * k + 2 * hh
            c = '0' if n_ == 0 else f'v[{acc}:{acc+3}]'
            A(f'v_mfma_f32_16x16x16_bf16 v[{acc}:{acc+3}], v[{sb}:{sb+1}], v[{r}:{r+1}], {c}')
    def q0_finish():
        tagged_sum()
        check_words((83, 87, 91, 95), 's64')
        A(f's_cmp_eq_u64 vcc, 0\ns_cselect_b32 {sGOK}, 1, 2')
        A(f'v_cvt_pk_bf16_f32 v96, v96, v97\nds_write_b32 {vQW}, v96')
    def tagged_poll(issue, words=(82, 86, 90, 94), spec=None, back=0):
        rq, gq = lab('rq'), lab('gq')
        A(f'{rq}:')
        issue(); A.wait_vm()
        if spec: spec()
        check_tags(words)
        A(f's_cbranch_vccz {gq}')
        if back: A(f's_sleep {back}')
        A(f's_sub_u32 {sTO}, {sTO}, 1\ns_cbranch_scc0 {rq}\ns_mov_b32 {sTO}, 0\n{gq}:')
    CQ = (48, 52, 56, 60)
    def issue_csq(): issue_tagged(f's_lshl_b32 {t1}, {sG}, 14\ns_add_u32 {t1}, {t1}, {TQC}', CQ)
    def finish_csq():
        ok_ = lab('cq')
        check_tags(tuple(r + 2 for r in CQ))
        A(f's_cbranch_vccz {ok_}')
        tagged_poll(issue_csq, tuple(r + 2 for r in CQ))
        A(f'{ok_}:')
        tagged_sum(32, CQ, 64)
        A(f's_mov_b32 {t2}, {f32(1/512)}\nv_pk_mul_f32 {CSQ}, v[64:65], s[56:57] op_sel_hi:[1,0]')
    QREGS = list(range(64, 74)); QREGS1 = QREGS + list(range(80, 88))
    def ln_spec(selop, first):
        def f():
            A(f'{M16} v[96:99], {selop}, v[64:67], 0\n{M16} v[96:99], {selop}, v[68:71], v[96:99]')
            if first:
                A(f'{M16} v[100:103], {selop}, v[80:83], 0\n{M16} v[100:103], {selop}, v[84:87], v[100:103]')
            A(f'v_add_f32_dpp v78, v72, v72 quad_perm:[1,0,3,2] {DPP}\nv_add_f32_dpp v79, v73, v73 quad_perm:[1,0,3,2] {DPP}')
        return f
    def ln_finish(cs, scale, first, csrc=100):
        for m in ('quad_perm:[2,3,0,1]', 'row_half_mirror'):
            A(f'v_add_f32_dpp v78, v78, v78 {m} {DPP}\nv_add_f32_dpp v79, v79, v79 {m} {DPP}')
            if m.startswith('quad'): A(f'v_mov_b32 v75, {f32(1e-5/(scale*scale))}')
        c2 = scale * scale
        A(f'v_mul_f32 v74, v78, v78\nv_fmac_f32 v75, {f32(1/(512*c2))}, v79')
        if first:
            A(f's_mov_b32 {t2}, {f32(1/512)}\nv_pk_mul_f32 {cs}, v[{csrc}:{csrc+1}], s[56:57] op_sel_hi:[1,0]')
        A(f'v_fmac_f32 v75, {f32(-1/(512*512*c2))}, v74\nv_max_f32 v75, {f32(1e-5/c2)}, v75\nv_rsq_f32 v74, v75')
        A(f'v_pk_fma_f32 v[96:97], v[78:79], {cs}, v[96:97] op_sel_hi:[0,1,1] neg_lo:[1,0,0] neg_hi:[1,0,0]')
        A(f'v_pk_mul_f32 v[96:97], v[96:97], v[74:75] op_sel_hi:[1,0]')
    def q_finish(first):
        ln_finish(CSQ, QSCALE, first)
        A(f'v_cvt_pk_bf16_f32 v96, v96, v97\nds_write_b32 {vQW}, v96')

    A('; ---- first q projection, published with plain stores and this CU\'s XCC id')
    save = list(A.vm)
    with lowwaves():
        read_wq()
        A('s_waitcnt lgkmcnt(0)')
        if 'Q' not in abl: matvec('v109', 'q0')
    stamp()

    def issue_wo():
        A(f's_lshl_b32 {t1}, {sG}, 9\ns_lshl_b32 {t2}, {sHI}, 7\ns_add_u32 {t1}, {t1}, {t2}\ns_lshl_b32 {t2}, {sW}, 4\ns_add_u32 {t1}, {t1}, {t2}\ns_lshl_b32 {t1}, {t1}, 10\ns_lshl_b32 {t2}, {sLO}, 7\ns_add_u32 {t1}, {t1}, {t2}')
        A(f's_lshl_b32 {t2}, {sW}, 11\ns_add_u32 m0, {t2}, {L_WO}')
        A.vmop(f'buffer_load_dwordx4 v124, {WO}, {t1} offen nt lds', 'wo')
        A(f's_add_u32 {t1}, {t1}, 8192\ns_add_u32 m0, m0, 1024')
        A.vmop(f'buffer_load_dwordx4 v124, {WO}, {t1} offen nt lds', 'wo')

    def issue_ffn(dw=0, track=False, parts='gud'):
        vm_ = (lambda x: A.vmop(x, 'ffn')) if track else A
        A(f's_add_u32 {t0}, {sW}, {dw}')
        if 'g' in parts:
            A(f's_lshl_b32 {t1}, {sLO}, 6\ns_lshl_b32 {t2}, {t0}, 3\ns_add_u32 {t1}, {t1}, {t2}\ns_mul_i32 {t1}, {t1}, 3584\ns_lshl_b32 {t2}, {g2}, 7\ns_add_u32 {t1}, {t1}, {t2}')
        A(f's_lshl_b32 {t2}, {t0}, 10\ns_add_u32 m0, {t2}, {L_WG}')
        if 'g' in parts:
            vm_(f'buffer_load_dwordx4 v126, {WG}, {t1} offen nt lds')
            A(f's_add_u32 m0, {t2}, {L_WU}')
            vm_(f'buffer_load_dwordx4 v126, {WU}, {t1} offen nt lds')
        if 'd' not in parts: return
        A(f's_lshl_b32 {t1}, {g2}, 6\ns_lshl_b32 {t3}, {t0}, 3\ns_add_u32 {t1}, {t1}, {t3}\ns_lshl_b32 {t1}, {t1}, 10\ns_lshl_b32 {t3}, {sLO}, 7\ns_add_u32 {t1}, {t1}, {t3}\ns_add_u32 m0, {t2}, {L_WD}')
        vm_(f'buffer_load_dwordx4 v127, {WD}, {t1} offen nt lds')
    wait_of = {}
    d = 6
    for p_ in range(12, 32):
        tgt = depth if p_ < deep_from else deep
        need_d = p_ - tgt
        if p_ in (12, 16, 20): need_d = max(need_d, p_ - 5)
        if need_d > d: wait_of[p_] = list(range(d + 1, need_d + 1)); d = need_d
        else: wait_of[p_] = []
    last_read = d
    def step(p):
        for d_ in wait_of[p]:
            A.wait_vm(f'p{d_}')
            if d_ < 16:
                if d_ % 4 == 3: read_k(d_ // 4); A('s_waitcnt lgkmcnt(0)')
            else:
                A('s_waitcnt lgkmcnt(0)')
                read_v(d_)
            if diag and d_ in (7, 11, 15, 19, 23): xstamp(45 + (d_ - 7) // 4)
        if ffn_at and p == ffn_at and len(tail_parts) < 3: issue_ffn(0, True, ''.join(c_ for c_ in 'gud' if c_ not in tail_parts))
        if p == wo_at: issue_wo()
        piece(p)
    hi_l, join_all, flag_l = lab('shi'), lab('sj'), lab('fl')
    def lead_in():
        if not bar_after_k0:
            A.wait_vm('p3')
            if diag: xstamp(44)
            read_k(0); A('s_waitcnt lgkmcnt(0)')
            for pp in range(8, 12): piece(pp)
    lowcode = [True]
    def steps(lo_, hi_):
        for pp in range(lo_, hi_):
            if pp == touch_o and lowcode[0]:
                n_ = len(A.vm); o0dst[0] = 48; issue_o0(); o0dst[0] = 80
                A.vm[n_:] = ['touch'] * (len(A.vm) - n_)
            if pp == csq_at and lowcode[0] and 'S' not in abl:
                n_ = len(A.vm); issue_csq(); A.vm[n_:] = ['csq'] * (len(A.vm) - n_)
            step(pp)
    A(f's_cmp_ge_u32 {sW}, 4\ns_cbranch_scc1 {hi_l}')
    lead_in()
    p = 12
    while p < p_sc:
        if p in rides:
            assert p + 5 <= p_sc
            skip, join = lab('noq'), lab('jn')
            saved = list(A.vm)
            A(f's_cmp_lg_u32 {sGOK}, 0\ns_cbranch_scc1 {skip}')
            issue_q(True)
            steps(p, p + 5)
            if 'q' in A.vm: A.wait_vm('q')
            check_tags()
            nq = lab('nq')
            A(f's_cbranch_vccnz {nq}')
            q0_finish()
            A(f'{nq}:\ns_branch {join}\n{skip}:')
            after_q = list(A.vm)
            A.vm = saved
            steps(p, p + 5)
            extra = len(A.vm) - len(after_q)
            assert A.vm[extra:] == after_q, (A.vm, after_q)
            A.vm = after_q if extra <= 0 else A.vm
            A(f'{join}:')
            p += 5
        else:
            steps(p, p + 1); p += 1
    saved = list(A.vm)
    def put_status():
        A(f's_lshl_b32 {t1}, {sW}, 2\ns_add_u32 {t1}, {t1}, {L_ST}\nv_mov_b32 {vTMP}, {t1}\nv_mov_b32 {vTMP2}, {sGOK}\nds_write_b32 {vTMP}, {vTMP2}')
    def get_status():
        A(f'v_mov_b32 {vTMP}, {L_ST}\nds_read_b128 v[72:75], {vTMP}\ns_waitcnt lgkmcnt(0)')
        check_words((72, 73, 74, 75), '1')
        A('s_cmp_eq_u64 vcc, 0')
    put_status()
    A(f's_branch {join_all}\n{hi_l}:')
    A.vm = save; lowcode[0] = False
    lead_in()
    steps(12, p_sc)
    saved = list(A.vm)
    A(f'{join_all}:')
    stamp()
    A('s_waitcnt lgkmcnt(0)\ns_barrier')
    get_status()
    okq = lab('okq')
    A(f's_cbranch_scc1 {okq}')
    if not abl:
        with lowwaves():
            A(f'buffer_store_dwordx4 v[100:103], v109, {WS}, 0 offen sc1\nbuffer_store_dwordx4 v[104:107], v109, {WS}, 0 offen offset:256 sc1')
            dn = lab('qdone')
            A(f's_cmp_lg_u32 {sGOK}, 0\ns_cbranch_scc1 {dn}')
            tagged_poll(lambda: issue_q(True))
            q0_finish()
            A(f'{dn}:')
        A('s_barrier')
        with lowwaves(): put_status()
        A('s_waitcnt lgkmcnt(0)\ns_barrier')
        get_status()
    A(f'{okq}:\ns_cselect_b32 {sFAST}, 1, 0')
    A.vm = saved
    def issue_ffn_any(dw, parts=None):
        if dw & 1: A('v_xor_b32 v126, 64, v126\nv_xor_b32 v127, 64, v127')
        issue_ffn(dw, False, parts or ''.join(c_ for c_ in ('gu' if wd_after else 'gud') if c_ not in tail_parts + mid_parts))
        if dw & 1: A('v_xor_b32 v126, 64, v126\nv_xor_b32 v127, 64, v127')
    def first_only(f):
        def g():
            l, bk = lab('fo'), lab('bk')
            A(f's_cmp_eq_u32 {sLIDX}, 0\ns_cbranch_scc1 {l}\n{bk}:')
            keepL, A.L = A.L, []
            A(f'{l}:'); f(); A(f's_branch {bk}')
            tails.append('\n'.join(A.L)); A.L = keepL
        return g
    def variant(first, later):
        l, bk = lab('v0'), lab('vj')
        A(f's_cmp_eq_u32 {sLIDX}, 0\ns_cbranch_scc1 {l}')
        n0 = nts[0]
        later()
        A(f'{bk}:')
        n1, nts[0] = nts[0], n0
        keepL, A.L = A.L, []
        A(f'{l}:'); first(); A(f's_branch {bk}')
        tails.append('\n'.join(A.L)); A.L = keepL
        assert nts[0] == n1
    def later_only(f):
        l = lab('lo'); A(f's_cmp_eq_u32 {sLIDX}, 0\ns_cbranch_scc1 {l}'); f(); A(f'{l}:')
    def scores(bar=True):
        if bar: A('s_waitcnt lgkmcnt(0)\ns_barrier')
        for j in range(4): A(f'ds_read_b128 v[{64+4*j}:{67+4*j}], {vBR320} offset:{64*j}')
        def sel_t(t, rs):
            for r in rs: A(f'v_mov_b32_dpp v{80+r}, v{80+4*t+r} quad_perm:[0,1,2,3] row_mask:0xf bank_mask:{1<<t:#x}')
        if tmajor:
            for t in range(4):
                for j in range(4):
                    if t == 0: A(f's_waitcnt lgkmcnt({3-j})')
                    c = '0' if j == 0 else f'v[{80+4*t}:{83+4*t}]'
                    A(f'{M16} v[{80+4*t}:{83+4*t}], a[{16*t+4*j}:{16*t+4*j+3}], v[{64+4*j}:{67+4*j}], {c}')
            sel_t(1, range(4)); sel_t(2, range(4)); sel_t(3, range(4))
        else:
            for j in range(4):
                A(f's_waitcnt lgkmcnt({3-j})')
                for t in range(4):
                    c = '0' if j == 0 else f'v[{80+4*t}:{83+4*t}]'
                    A(f'{M16} v[{80+4*t}:{83+4*t}], a[{16*t+4*j}:{16*t+4*j+3}], v[{64+4*j}:{67+4*j}], {c}')
            for t in range(1, 4): sel_t(t, range(4))
        A('v_max3_f32 v84, v80, v81, v82\nv_max_f32 v84, v84, v83')
        A(f'v_max_f32_dpp v84, v84, v84 row_ror:4 {DPP}')
        A(f'v_max_f32_dpp v84, v84, v84 row_ror:8 {DPP}')
        A('v_mov_b32 v85, v84\nv_permlane16_swap_b32 v84, v85\nv_max_f32 v84, v84, v85')
        A('v_mov_b32 v85, v84\nv_permlane32_swap_b32 v84, v85\nv_max_f32 v84, v84, v85')
        A('v_pk_add_f32 v[80:81], v[80:81], v[84:85] op_sel_hi:[1,0] neg_lo:[0,1] neg_hi:[0,1]')
        A('v_pk_add_f32 v[82:83], v[82:83], v[84:85] op_sel_hi:[1,0] neg_lo:[0,1] neg_hi:[0,1]')
        for r in range(4): A(f'v_exp_f32 v{80+r}, v{80+r}')
        A('v_cvt_pk_bf16_f32 v86, v80, v81\nv_cvt_pk_bf16_f32 v87, v82, v83')
        A(f'v_mfma_f32_16x16x16_bf16 v[88:91], {ONES}, v[86:87], 0')
    def pv(i):
        for hf in range(2):
            acc = 96 + 8 * (i & 1) + 4 * hf
            c = '0' if i < 2 else f'v[{acc}:{acc+3}]'
            A(f'v_mfma_f32_4x4x4_16b_bf16 v[{acc}:{acc+3}], v[86:87], a[{64+4*i+2*hf}:{65+4*i+2*hf}], {c} cbsz:4 abid:{4*(i&3)+(i>>2)}')
    def lsum():
        A(f'v_add_f32_dpp v85, v88, v88 row_ror:4 {DPP}')
        A(f'v_add_f32_dpp v85, v85, v85 row_ror:8 {DPP}')
        A(f's_mov_b64 exec, 15\nds_write_b64 {vRMW}, v[84:85]')
        full_exec()
    def combine(tagged=False, other=None):
        for h in range(4):
            A(f'v_add_f32 v{64+2*h}, v{96+h}, v{104+h}\nv_add_f32 v{65+2*h}, v{100+h}, v{108+h}')
            if h & 1: A(f'ds_write_b128 {vROW}, v[{62+2*h}:{65+2*h}] offset:{512*(h-1)}')
        A('s_waitcnt lgkmcnt(0)\ns_barrier')
        with lowwaves(other):
            A(f'ds_read_b64 v[72:73], {vRMR}')
            for k in range(8): A(f'ds_read_b64 v[{80+2*k}:{81+2*k}], {vROR} offset:{8192*k}')
            A('s_waitcnt lgkmcnt(8)')
            A(f'v_max_f32_dpp v74, v72, v72 quad_perm:[1,0,3,2] {DPP}')
            A(f'v_max_f32_dpp v74, v74, v74 quad_perm:[2,3,0,1] {DPP}')
            A(f'v_max_f32_dpp v74, v74, v74 row_half_mirror {DPP}')
            A('v_sub_f32 v72, v72, v74\nv_exp_f32 v72, v72')
            for k in range(8): A(f'v_readlane_b32 s{80+k}, v72, {k}')
            A('v_mul_f32 v75, v73, v72\ns_waitcnt lgkmcnt(0)')
            for k in range(8):
                sp = f's[{80+(k&~1)}:{81+(k&~1)}]'
                o = 'op_sel_hi:[1,0' if (k & 1) == 0 else 'op_sel:[0,1'
                d = 64 + 2 * (k & 1)
                if k < 2: A(f'v_pk_mul_f32 v[{d}:{d+1}], v[{80+2*k}:{81+2*k}], {sp} {o}]')
                else: A(f'v_pk_fma_f32 v[{d}:{d+1}], v[{80+2*k}:{81+2*k}], {sp}, v[{d}:{d+1}] {o},{1 if (k&1)==0 else 0}]')
            A('v_pk_add_f32 v[64:65], v[64:65], v[66:67]\nv_cvt_pk_bf16_f32 v64, v64, v65')
            def lsum8():
                for m in ('quad_perm:[1,0,3,2]', 'quad_perm:[2,3,0,1]', 'row_half_mirror'):
                    A(f'v_add_f32_dpp v75, v75, v75 {m} {DPP}')
            def pub_tagged():
                A(f'v_mov_b32 v66, {sTAG}\nv_mov_b32 v67, {sTAG}\nv_mov_b32_dpp v65, v64 quad_perm:[1,1,3,3] {DPP}')
                lstore(f'buffer_store_dwordx4 v[64:67], v118, {WS}, 0 offen')
                A(f'v_mov_b32 v76, {sTAG}\nv_mov_b32 v77, {sTAG}')
                A(f's_lshl_b32 {t1}, {sG}, 2\ns_add_u32 {t1}, {t1}, {sW}\ns_lshl_b32 {t1}, {t1}, 2\ns_add_u32 {t1}, {t1}, {sHI}\ns_lshl_b32 {t1}, {t1}, 3\ns_add_u32 {t1}, {t1}, {sLO}\ns_lshl_b32 {t1}, {t1}, 4\ns_add_u32 {t1}, {t1}, {TML}')
                lsum8()
                lstore(f'buffer_store_dwordx4 v[74:77], {vMLst}, {WS}, {t1} offen')
            def pub_plain():
                lstore(f'buffer_store_dword v64, {vL4}, {WS}, {sOPst} offen')
                lsum8()
                lstore(f'buffer_store_dwordx2 v[74:75], {vMLst}, {WS}, {sMLst} offen')
            if tagged is None: variant(pub_tagged, pub_plain)
            elif tagged: pub_tagged()
            else: pub_plain()

    A('v_mov_b32 v118, v110\nv_mov_b32 v114, 0\ns_mov_b32 s80, 0\ns_mov_b32 s81, 0\ns_mov_b32 s82, 0\ns_mov_b32 s83, 0\ns_mov_b32 s84, 0\ns_mov_b32 s85, 0')
    A(f's_mul_i32 {t1}, {sC}, 1312\ns_add_u32 {t1}, {t1}, {sGBASE}\ns_add_u32 {t1}, {t1}, {bGP - 7168}\ns_sub_u32 {t2}, {sXst}, 7168')
    A(f'v_add_u32 v119, {t1}, v115\nv_add_u32 v120, {t2}, v115\nv_add_u32 {vTMP}, {oXB - oXA - 512}, v120\nv_cmp_lt_u32 vcc, 31, {vL}'); sel('v120', 'v120', vTMP)
    A(f'v_add_u32 v121, 1024, v119\nv_mov_b32 {vTMP}, {OOB}\nv_cmp_lt_u32 vcc, 17, {vL}'); sel('v121', 'v121', vTMP)
    A(f'v_cmp_gt_u32 vcc, 7168, v115'); sel('v119', 'v119', vTMP); sel('v120', 'v120', vTMP); sel('v121', 'v121', vTMP)
    def clean_urgent():
        A('v_mov_b32 v92, -1\nv_mov_b32 v93, -1\nv_mov_b32 v94, -1\nv_mov_b32 v95, -1')
        A.vmop(f'buffer_store_dwordx4 v[92:95], v119, {WS}, 0 offen sc1', 'cu')
        A.vmop(f'buffer_store_dwordx4 v[92:95], v120, {WS}, 0 offen sc1', 'cu')
        A.vmop(f'buffer_store_dwordx4 v[92:95], v121, {WS}, 0 offen sc1', 'cu')
    if share: A('s_branch L_scores\nL_scored:')
    else: scores(False)
    d0 = max([6] + [d_ for p_ in range(12, p_sc) for d_ in wait_of[p_]])
    assert d0 >= 17
    for i in range(d0 - 15): pv(i)
    lsum()
    stamp()
    pend = [None]; csq_done = [False]
    def landed(d_):
        A.wait_vm(f'p{d_}')
        if pend[0] is not None: A('s_waitcnt lgkmcnt(0)')
        read_v(d_)
        if pend[0] is not None: pv(pend[0])
        pend[0] = d_ - 16
        if d_ >= csq_at and not csq_done[0] and not abl:
            csq_done[0] = True
            keep_vm = list(A.vm)
            with lowwaves(): finish_csq()
            A.vm = keep_vm
    for p in range(p_sc, 32):
        for d_ in wait_of[p]: landed(d_)
        piece(p, p == p_sc)
    for p in range(last_read + 1, 32):
        landed(p)
        if p == cl_at and 'C' not in abl: clean_urgent()
        if p == wt_at and 'W' not in abl:
            assert cl_at <= wt_at
            issue_wo()
            if tail_parts: issue_ffn(0, True, tail_parts)
    A('s_waitcnt lgkmcnt(0)')
    pv(pend[0])
    if padfrom == 'V': A('s_memrealtime s[98:99]\ns_waitcnt lgkmcnt(0)')
    stamp()
    if abl: A('s_branch L_fin')
    def flag_addr():
        A(f's_lshl_b32 {t1}, {sLO}, 10\ns_lshl_b32 {t2}, {sG}, 7\nv_and_b32 v68, 7, {vL}\nv_and_b32 v69, 24, {vL}\nv_lshlrev_b32 v68, 7, v68\nv_lshl_add_u32 v68, v69, 10, v68\nv_add_u32 v68, {t1}, v68')
        A(f'v_and_b32 v69, 31, {vL}\nv_lshlrev_b32 v69, 10, v69\nv_add_u32 v69, {t2}, v69\nv_cmp_lt_u32 vcc, 31, {vL}'); sel('v68', 'v68', 'v69')
        A(f's_mov_b32 {t1}, {TF}')
    def clean_rest():
        l_ = lab('cr')
        A(f's_cmp_lg_u32 {sW}, 7\ns_cbranch_scc1 {l_}')
        A(f'v_mov_b32 v64, -1\nv_mov_b32 v65, -1\nv_mov_b32 v66, -1\nv_mov_b32 v67, -1\nv_lshlrev_b32 v68, 2, {vL4}')
        A(f's_add_u32 {t1}, {sXst}, {LS}\nv_add_u32 v69, {oXB - oXA - 512}, v68\nv_cmp_lt_u32 vcc, 31, {vL}'); sel('v69', 'v68', 'v69')
        A(f'buffer_store_dwordx4 v[64:67], v69, {WS}, {t1} offen sc1')
        A(f's_mul_i32 {t2}, {sC}, 3168\ns_add_u32 {t2}, {t2}, {sGBASE}\ns_add_u32 {t2}, {t2}, {LS}')
        for k_ in range(3): A(f'buffer_store_dwordx4 v[64:67], v68, {WS}, {t2} offen offset:{1024*k_} sc1')
        A(f's_mov_b64 exec, 63\nbuffer_store_dwordx4 v[64:67], v68, {WS}, {t2} offen offset:3072 sc1\ns_mov_b64 exec, -1\n{l_}:')
    def clean_first():
        l_ = lab('c7')
        A(f's_cmp_lg_u32 {sW}, 7\ns_cbranch_scc1 {l_}')
        A(f's_lshl_b32 {t1}, s2, 7\ns_add_u32 {t1}, {t1}, {TF}\nv_mov_b32 v69, {sTAG}')
        if fullflag:
            A(f's_mov_b32 exec_hi, 0\ns_waitcnt vmcnt({2 + len(tail_parts)})\nbuffer_store_dword v69, {vL4}, {WS}, {t1} offen sc1')
        else:
            A(f's_mov_b64 exec, 1\ns_waitcnt vmcnt({2 + len(tail_parts)})\nbuffer_store_dword v69, off, {WS}, {t1} sc1')
        full_exec()
        n4 = lab('n4')
        if not use_early:
            A(f'{l_}:')
            if mid_parts:
                A(f's_sleep {mid_sleep}')
                issue_ffn(-4, False, mid_parts); issue_ffn(0, False, mid_parts)
            A(f's_lshl_b32 {t1}, {sLO}, 3\ns_add_u32 {t1}, {t1}, {sW}\ns_mul_i32 {t1}, {t1}, {8*3584}\ns_lshl_b32 {t2}, {g2}, 7\ns_add_u32 s81, {t1}, {t2}\ns_sub_u32 s80, s81, {32*3584}')
            A(f's_lshl_b32 {t1}, {g2}, 3\ns_add_u32 {t1}, {t1}, {sW}\ns_lshl_b32 {t1}, {t1}, 6\ns_add_u32 {t1}, {t1}, {sLO}\ns_lshl_b32 s83, {t1}, 7\ns_sub_u32 s82, s83, 32768')
            A(f's_lshl_b32 s84, {sW}, 10\ns_sub_u32 s84, s84, 4096')
            flag_addr()
            A(f'v_mov_b32 v114, v68\ns_mov_b32 s85, {TF}\ns_waitcnt vmcnt({2 * len(mid_parts)})')
            return
        A(f'{l_}:\ns_cmp_lg_u32 {sW}, 4\ns_cbranch_scc1 {n4}')
        flag_addr()
        A(f's_sleep {fearly}\nbuffer_load_dword v69, v68, {WS}, {t1} offen sc1\ns_waitcnt vmcnt(0)\nv_cmp_ne_u32 vcc, {sTAG}, v69\ns_cbranch_vccnz {n4}')
        A(f's_mov_b32 {sCNT}, 1\nv_mov_b32 v68, {L_FL}\nv_mov_b32 v69, 1\nds_write_b32 v68, v69\n{n4}:')
    if share:
        inloop[0] = True
        A('L_merge:')
        combine(None, first_only(clean_first))
    else: combine(True, clean_first)
    stamp(True)

    if prio:
        l_ = lab('pr'); A(f's_cmp_ge_u32 {sW}, 4\ns_cbranch_scc1 {l_}\ns_setprio 1\n{l_}:')
    A('L_layer:'); inloop[0] = True
    def proj_body(nk, vb, boff, xoff, late_w=None, tagged=False):
        for j in range(nk): A(f'ds_read_b128 v[{64+4*j}:{67+4*j}], {vb} offset:{boff+64*j}')
        if late_w: late_w()
        for j in range(nk):
            if not late_w: A(f's_waitcnt lgkmcnt({nk-1-j})')
            elif j == 0: A('s_waitcnt lgkmcnt(0)')
            c = '0' if j == 0 else 'v[96:99]'
            A(f'{M16} v[96:99], v[{48+4*j}:{51+4*j}], v[{64+4*j}:{67+4*j}], {c}')
        if tagged:
            A(f'v_mov_b32 v102, {sTAG}\nv_mov_b32 v103, {sTAG}\nv_cvt_pk_bf16_f32 v100, v96, v97\nv_cvt_pk_bf16_f32 v101, v98, v99')
            A(f'buffer_store_dwordx4 v[100:103], v47, {WS}, 0 offen sc1')
            if diag2: xstamp(52)
        else:
            A(f's_add_u32 {t1}, {sXst}, {xoff}')
            A('v_cvt_pk_bf16_f32 v96, v96, v97\nv_cvt_pk_bf16_f32 v97, v98, v99')
            A(f'buffer_store_dwordx2 v[96:97], {vXst}, {WS}, {t1} offen sc1')
    def proj_out(nk, vb, boff, xoff, first=None):
        sk, dl = lab('sk'), lab('dl')
        A(f's_cmp_ge_u32 {sW}, 4\ns_cbranch_scc1 {sk}')
        if first: variant(first, lambda: proj_body(nk, vb, boff, xoff))
        else: proj_body(nk, vb, boff, xoff)
        return sk, dl
    def g_wait(sk, dl, pre, busy_first=False, hi_pre=None, lo_d=None, hi_d=None, extra0=0):
        pre()
        A(f's_sleep {lo_d or gdelay}')
        A(f's_branch {dl}\n{sk}:')
        if hi_pre: hi_pre()
        A(f's_sleep {hi_d or gdelay_hi}')
        A(f'{dl}:')
        if extra0: first_only(lambda: A(f's_sleep {extra0}'))()
    def reduce_x(xoff, final, first=None):
        def normal():
            A(f's_add_u32 {t0}, {sXg}, {xoff}')
            sp = lambda b: A(f'{M16} v[96:99], {SELA}, v[{b}:{b+3}], 0\n{M16} v[96:99], {SELA}, v[{b+4}:{b+7}], v[96:99]')
            if not dual & 16:
                poll(lambda: issue_g1(64, vXg, t0, 'x', 8192), range(64, 72), lambda: sp(64), None if final else 'L_xa_landed')
                return
            d, tl, lp = lab('got'), lab('again'), lab('lp')
            issue_g1(64, vXg, t0, 'x', 8192); A.wait_vm()
            sp(64); check_empty(range(64, 72))
            A(f's_cbranch_vccnz {tl}\n{d}:')
            keepL, A.L = A.L, []
            A(f'{tl}:'); issue_g1(64, vXg, t0, 'x', 8192)
            A(f's_sleep {dstep}\n{lp}:'); issue_g1(72, vXg, t0, 'x', 8192)
            A('s_waitcnt vmcnt(2)'); sp(64); check_empty(range(64, 72))
            A(f's_nop 1\ns_cbranch_vccz {d}'); issue_g1(64, vXg, t0, 'x', 8192)
            A('s_waitcnt vmcnt(2)'); sp(72); check_empty(range(72, 80))
            A(f's_nop 1\ns_cbranch_vccz {d}\ns_sub_u32 {sTO}, {sTO}, 1\ns_cbranch_scc0 {lp}\ns_mov_b32 {sTO}, 0\ns_branch {d}')
            tails.append('\n'.join(A.L)); A.L = keepL
            A.vm = []
        if first: variant(first, normal)
        else: normal()
        stamp()
        A(f'v_add_f32_dpp v96, v96, v96 row_ror:4 {DPP}\nv_add_f32_dpp v97, v97, v97 row_ror:4 {DPP}')
        if final: A(f's_cmp_eq_u32 {sLIDX}, 1')
        A(f'v_add_f32_dpp v96, v96, v96 row_ror:8 {DPP}\nv_add_f32_dpp v97, v97, v97 row_ror:8 {DPP}')
        A(f'v_pk_add_f32 {XRES}, {XRES}, v[96:97]\ns_mov_b64 exec, {sM4}\nv_cvt_pk_bf16_f32 v96, v112, v113')
        if final: A(f's_cbranch_scc1 L_out')
        A(f'ds_write_b32 {vXW}, v96')
        full_exec()
        A('s_waitcnt lgkmcnt(0)\ns_barrier')
    def issue_o():
        issue_g1(64, vG1, sOg, 'o')
        A.vmop(f'buffer_load_dwordx2 v[72:73], {vML2}, {WS}, {sMLg} offen sc1', 'o')
        A.vmop(f'buffer_load_dwordx2 v[74:75], {vML2}, {WS}, {sMLg} offen offset:32 sc1', 'o')
    def wo_weights(ma, la, mb, lb, selreg, mm, _=None):
        A(f'v_max_f32 v76, v{ma}, v{mb}\nv_mov_b32 v77, v76\nv_permlane16_swap_b32 v76, v77\nv_max_f32 v76, v76, v77')
        A('v_mov_b32 v77, v76\nv_permlane32_swap_b32 v76, v77\nv_max_f32 v76, v76, v77')
        A(f'v_sub_f32 v{ma}, v{ma}, v76\nv_sub_f32 v{mb}, v{mb}, v76\nv_exp_f32 v{ma}, v{ma}\nv_exp_f32 v{mb}, v{mb}')
        A(f'v_cvt_pk_bf16_f32 v{ma}, v{ma}, v{ma}\nv_cvt_pk_bf16_f32 v{mb}, v{mb}, v{mb}')
        for i in range(4): A(f'v_and_b32 v{selreg+i}, v{MASK+i}, v{ma}')
        for i in range(4): A(f'v_and_b32 v{selreg+4+i}, v{MASK+i}, v{mb}')
        mm()
        A(f'v_and_b32 v{ma}, 0xffff0000, v{ma}\nv_and_b32 v{mb}, 0xffff0000, v{mb}\nv_mul_f32 v79, v{la}, v{ma}\nv_fmac_f32 v79, v{lb}, v{mb}')
        A('v_mov_b32 v77, v79\nv_permlane16_swap_b32 v79, v77\nv_add_f32 v79, v79, v77')
        A('v_mov_b32 v77, v79\nv_permlane32_swap_b32 v79, v77\nv_add_f32 v79, v79, v77\nv_rcp_f32 v78, v79')
    def wo_later():
        read_wo()
        if ldelay: A(f's_sleep {ldelay}')
        if dual & 4:
            def iss(k):
                b = (64, 100)[k]
                issue_g1(b, vG1, sOg, 'o')
                A.vmop(f'buffer_load_dwordx2 v[{b+8}:{b+9}], {vML2}, {WS}, {sMLg} offen sc1', 'o')
                A.vmop(f'buffer_load_dwordx2 v[{b+10}:{b+11}], {vML2}, {WS}, {sMLg} offen offset:32 sc1', 'o')
            d, sb, sa, j2 = lab('got'), lab('setb'), lab('seta'), lab('j2')
            iss(0)
            if dstep: A(f's_sleep {dstep}')
            iss(1)
            A(f'{sa}:\ns_waitcnt vmcnt(4)')
            check_empty(range(64, 76))
            A(f's_cbranch_vccnz {sb}\n{d}:')
            stamp()
            wo_weights(72, 73, 74, 75, 80, lambda: A(f'{M16} v[96:99], v[80:83], v[64:67], 0\n{M16} v[96:99], v[84:87], v[68:71], v[96:99]'), 76)
            A(f'{j2}:')
            keepL, A.L = A.L, []
            A(f'{sb}:'); iss(0)
            A('s_waitcnt vmcnt(4)')
            check_empty(range(100, 112))
            g2_ = lab('g2')
            A(f's_cbranch_vccz {g2_}')
            iss(1)
            A(f's_sub_u32 {sTO}, {sTO}, 1\ns_cbranch_scc0 {sa}\ns_mov_b32 {sTO}, 0\ns_branch {d}\n{g2_}:')
            nts[0] -= 1 if ts else 0; stamp()
            wo_weights(108, 109, 110, 111, 80, lambda: A(f'{M16} v[96:99], v[80:83], v[100:103], 0\n{M16} v[96:99], v[84:87], v[104:107], v[96:99]'), 76)
            A(f's_branch {j2}')
            tails.append('\n'.join(A.L)); A.L = keepL
            A.vm = []
            return
        poll(issue_o, range(64, 76))
        stamp()
        wo_weights(72, 73, 74, 75, 80, lambda: A(f'{M16} v[96:99], v[80:83], v[64:67], 0\n{M16} v[96:99], v[84:87], v[68:71], v[96:99]'))
    def wo_first():
        if not dual & 8:
            tagged_poll(issue_o0, (82, 86, 90, 94, 66, 70))
            stamp()
            wo_weights(64, 65, 68, 69, 100, lambda: tagged_sum(100, 80, 96, 4))
            return
        sets = ((80, 64), (48, 100))
        def iss(k):
            o0dst[0], o0ml[0] = sets[k]; issue_o0()
        def chk(k):
            a_, m_ = sets[k]; check_tags((a_ + 2, a_ + 6, a_ + 10, a_ + 14, m_ + 2, m_ + 6))
        def fin(k):
            a_, m_ = sets[k]; wo_weights(m_, m_ + 1, m_ + 4, m_ + 5, 116, lambda: tagged_sum(116, a_, 96, 4))
        lp, ga, gb, en = lab('lp'), lab('ga'), lab('gb'), lab('en')
        iss(0); A(f's_sleep {dstep}\n{lp}:'); iss(1)
        A('s_waitcnt vmcnt(6)'); chk(0); A(f's_cbranch_vccz {ga}')
        iss(0); A('s_waitcnt vmcnt(6)'); chk(1); A(f's_cbranch_vccz {gb}')
        A(f's_sub_u32 {sTO}, {sTO}, 1\ns_cbranch_scc0 {lp}\ns_mov_b32 {sTO}, 0\n{gb}:')
        stamp(); fin(1); A(f's_branch {en}\n{ga}:')
        nts[0] -= 1 if ts else 0; stamp(); fin(0); A(f'{en}:')
        A.vm = []
    with lowwaves():
        variant(wo_first, wo_later)
        A('v_pk_mul_f32 v[96:97], v[96:97], v[78:79] op_sel_hi:[1,0]\nv_cvt_pk_bf16_f32 v96, v96, v97')
        A(f'ds_write_b32 {vQW}, v96 offset:{L_OS-L_QS}\ns_waitcnt vmcnt(0)')
    A(f's_waitcnt lgkmcnt(0)\ns_barrier')
    if padfrom == 'O': first_only(lambda: A('s_memrealtime s[98:99]\ns_waitcnt lgkmcnt(0)'))()
    if padfrom == 'P': A('s_memrealtime s[98:99]\ns_waitcnt lgkmcnt(0)')
    if diag2: first_only(lambda: xstamp(50))()
    sk, dl = proj_out(4, vBR320, L_OS - L_QS, 0, lambda: (proj_body(4, vBR320, L_OS - L_QS, 0, read_wo), xstamp(52) if diag2 else None))
    leave_ = [None]
    def touch_lines(bases, r=80):
        for sb, off in bases:
            A(f's_add_u32 {t0}, {sb}, {off}\ns_add_u32 {t1}, {t0}, 4096')
            A(f'buffer_load_dwordx4 v[{r}:{r+3}], {vG1}, {WS}, {t0} offen sc1\nbuffer_load_dwordx4 v[{r+4}:{r+7}], {vG1}, {WS}, {t1} offen sc1')
    def touch_small(bases, r=88):
        for sb, off in bases:
            A(f's_add_u32 {t0}, {sb}, {off}\nbuffer_load_dwordx2 v[{r}:{r+1}], {vSt8}, {WS}, {t0} offen sc1')
    def watch_flags():
        l_, r_, d_ = lab('w4'), lab('fr'), lab('fd')
        A(f's_cmp_lg_u32 {sW}, 4\ns_cbranch_scc1 {l_}\ns_cmp_eq_u32 {sCNT}, 1\ns_cbranch_scc1 {l_}')
        flag_addr()
        if fdelay: A(f's_sleep {fdelay}')
        e_ = lab('fe')
        A(f'buffer_load_dword v69, v68, {WS}, {t1} offen sc1\ns_waitcnt vmcnt(0)\nv_cmp_ne_u32 vcc, {sTAG}, v69\ns_cbranch_vccz {d_}')
        A(f'{r_}:\ns_sleep {fback}\nbuffer_load_dword v69, v68, {WS}, {t1} offen sc1\ns_waitcnt vmcnt(0)\nv_cmp_ne_u32 vcc, {sTAG}, v69\ns_cbranch_vccz {e_}')
        A(f's_sub_u32 {sTO}, {sTO}, 1\ns_cbranch_scc0 {r_}\ns_mov_b32 {sTO}, 0\n{e_}:')
        if flate: A(f's_sleep {flate}')
        A(f'{d_}:')
        A(f'v_mov_b32 v68, {L_FL}\nv_mov_b32 v69, 1\nds_write_b32 v68, v69')
        if diag2: xstamp(51)
        A(f's_branch {after_sleep[0]}\n{l_}:')
    def await_flags():
        r_, d_ = lab('ar'), lab('ad')
        A(f'v_mov_b32 v68, {L_FL}\n{r_}:\nds_read_b32 v69, v68\ns_waitcnt lgkmcnt(0)\nv_cmp_eq_u32 vcc, 1, v69\ns_cbranch_vccnz {d_}')
        A(f's_sleep 1\ns_sub_u32 {sTO}, {sTO}, 1\ns_cbranch_scc0 {r_}\ns_mov_b32 {sTO}, 0\n{d_}:')
        if touch_g:
            with lowwaves(): touch_lines([(sGg, 0)])
    after_sleep = [None]
    def w567(parts=None, pause=0):
        l_ = lab('f5'); A(f's_cmp_eq_u32 {sW}, 4\ns_cbranch_scc1 {l_}')
        if pause: A(f's_sleep {pause}')
        for dw in (-5, -2, 1):
            k_ = lab('fs')
            if dw == 1: A(f's_cmp_eq_u32 {sW}, 7\ns_cbranch_scc1 {k_}')
            issue_ffn_any(dw, parts)
            A(f'{k_}:')
        A(f'{l_}:')
    def quick_gu():
        for k_ in range(2):
            A(f's_add_u32 m0, s84, {L_WG + 4096 * k_}\ns_nop 0\nbuffer_load_dwordx4 v126, {WG}, s{80+k_} offen nt lds')
            A(f's_add_u32 m0, s84, {L_WU + 4096 * k_}\ns_nop 0\nbuffer_load_dwordx4 v126, {WU}, s{80+k_} offen nt lds')
    def quick_d():
        for k_ in range(2):
            A(f's_add_u32 m0, s84, {L_WD + 4096 * k_}\ns_nop 0\nbuffer_load_dwordx4 v127, {WD}, s{82+k_} offen nt lds')
    def hi_first():
        o_, r_, e_, d_ = lab('fo'), lab('fr'), lab('fe'), lab('fd')
        nod = wd_behind or 'd' in tail_parts
        nw = 4 if nod else 6
        A(f's_cmp_lg_u32 {sW}, 4\ns_cbranch_scc1 {o_}')
        A(f'buffer_load_dword v69, v114, {WS}, s85 offen sc1')
        quick_gu()
        if not nod: quick_d()
        A(f's_waitcnt vmcnt({nw})\nv_cmp_ne_u32 vcc, {sTAG}, v69\ns_cbranch_vccz {d_}')
        A(f'{r_}:\ns_sleep {fback}\nbuffer_load_dword v69, v114, {WS}, s85 offen sc1\ns_waitcnt vmcnt(0)\nv_cmp_ne_u32 vcc, {sTAG}, v69\ns_cbranch_vccz {e_}')
        A(f's_sub_u32 {sTO}, {sTO}, 1\ns_cbranch_scc0 {r_}\ns_mov_b32 {sTO}, 0\n{e_}:')
        if flate: A(f's_sleep {flate}')
        A(f'{d_}:\nv_mov_b32 v68, {L_FL}\nv_mov_b32 v69, 1\nds_write_b32 v68, v69')
        if diag2: xstamp(51)
        A(f's_sleep {hi4}\ns_branch {after_sleep[0]}\n{o_}:\ns_sleep 1')
        quick_gu()
        if not nod: quick_d()
        if diag2:
            l_ = lab('d5'); A(f's_cmp_lg_u32 {sW}, 5\ns_cbranch_scc1 {l_}'); xstamp(53); A('s_waitcnt vmcnt(0)'); xstamp(55); A(f's_branch {after_sleep[0]}\n{l_}:')
        clean_rest()
    def hi_xb():
        leave_[0]()
        if touch_att:
            first_only(lambda: (touch_lines([(sQg, 0)]), touch_small([(sQSg, 0)])))()
            return
        if touch1 & 4: first_only(lambda: (touch_lines([(sGg, LS)]), touch_small([(sGSg, LS)])))()
        if touch1 & 8: first_only(lambda: (touch_lines([(sQg, 0), (sOg, LS)]), touch_small([(sQSg, 0), (sMLg, LS)])))()
    late_gu = 'g' not in tail_parts
    go, aw = lab('go'), lab('aw')
    after_sleep[0] = aw
    def lo_pre():
        if not late_gu: read_gu()
        A(f's_cmp_eq_u32 {sLIDX}, 0\ns_cbranch_scc1 {aw}_lo')
        if late_gu: read_gu()
    def hi_pre():
        A(f's_cmp_eq_u32 {sLIDX}, 0\ns_cbranch_scc1 {aw}_hi')
    g_wait(sk, dl, lo_pre, False, hi_pre)
    A(f'{go}:')
    keepL, A.L = A.L, []
    A(f'{aw}_hi:')
    hi_first()
    A(f's_sleep {hi0}\ns_branch {aw}\n{aw}_lo:\ns_sleep {lo0}\n{aw}:')
    await_flags()
    if wd_behind:
        A(f's_cmp_lt_u32 {sW}, 4\ns_cbranch_scc1 {go}\ns_mov_b32 {t0}, {sXg}')
        issue_g1(64, vXg, t0, 'x', 8192); quick_d()
        A(f's_waitcnt vmcnt(2)\ns_branch L_xa_landed')
    else: A(f's_branch {go}')
    tails.append('\n'.join(A.L)); A.L = keepL
    stamp()
    if diag2: A(f's_mov_b32 s65, {sTO}')
    reduce_x(0, False)
    if padfrom == 'X': first_only(lambda: A('s_memrealtime s[98:99]\ns_waitcnt lgkmcnt(0)'))()
    if diag2: first_only(lambda: A(f's_sub_u32 s65, s65, {sTO}\nv_readlane_b32 s94, {vTS}, 0\ns_mul_i32 s65, s65, 100\ns_add_u32 s65, s65, s94\nv_writelane_b32 {vTS}, s65, 54'))()
    def issue_gp(first):
        issue_g1(64, vG1, sGg, 'g')
        A.vmop(f'buffer_load_dwordx2 v[72:73], {vSt8}, {WS}, {sGSg} offen sc1', 'g')
        if first:
            A(f'v_and_b32 {vTMP}, 0xf0, {vG1}\nv_and_b32 {vTMP2}, 0xc00, {vG1}\nv_lshrrev_b32 {vTMP2}, 2, {vTMP2}\nv_or_b32 {vTMP}, {vTMP}, {vTMP2}')
            issue_g1(80, vTMP, sGCg, 'g', 1024)
    def ffn_gather(first):
        def f():
            if ldelay and not first: A(f's_sleep {ldelay}')
            if dual & 32 and first:
                sets = ((64, 80), (102, 116))
                A(f'v_and_b32 v114, 0xf0, {vG1}\nv_and_b32 {vTMP2}, 0xc00, {vG1}\nv_lshrrev_b32 {vTMP2}, 2, {vTMP2}\nv_or_b32 v114, v114, {vTMP2}')
                def iss(k):
                    a_, c_ = sets[k]
                    issue_g1(a_, vG1, sGg, 'x')
                    A.vmop(f'buffer_load_dwordx2 v[{a_+8}:{a_+9}], {vSt8}, {WS}, {sGSg} offen sc1', 'x')
                    issue_g1(c_, 'v114', sGCg, 'x', 1024)
                def spec(k):
                    a_, c_ = sets[k]
                    A(f'{M16} v[96:99], {SELG}, v[{a_}:{a_+3}], 0\n{M16} v[96:99], {SELG}, v[{a_+4}:{a_+7}], v[96:99]')
                    A(f'{M16} v[88:91], {SELG}, v[{c_}:{c_+3}], 0\n{M16} v[88:91], {SELG}, v[{c_+4}:{c_+7}], v[88:91]')
                    A(f'v_add_f32_dpp v78, v{a_+8}, v{a_+8} quad_perm:[1,0,3,2] {DPP}\nv_add_f32_dpp v79, v{a_+9}, v{a_+9} quad_perm:[1,0,3,2] {DPP}')
                poll2(iss, 5, lambda k: list(range(sets[k][0], sets[k][0] + 10)) + list(range(sets[k][1], sets[k][1] + 8)), spec)
                ln_finish(CSG, 1.0, True, 88)
                return
            if dual & 2 and not first: ln_poll2(sGg, sGSg, SELG)
            else: poll(lambda: issue_gp(first), QREGS1 if first else QREGS, ln_spec(SELG, first))
            ln_finish(CSG, 1.0, first)
        return f
    def hi_after_xa():
        slice_stats(sGSst)
        def f():
            if wd_after: w567('d')
            if rest_at == 'g0': clean_rest()
        if wd_after or rest_at == 'g0': first_only(f)()
    with lowwaves(hi_after_xa):
        matvec(vGst, 'plain', first_only(read_gu) if late_gu else None, sLAY)
        stamp()
        if wd_after or wd_behind: later_only(read_wd)
        else: read_wd()
        variant(ffn_gather(True), ffn_gather(False))
        stamp()
        A('v_cvt_pk_bf16_f32 v96, v96, v97\nv_and_b32 v97, 0xffff0000, v96\nv_lshlrev_b32 v96, 16, v96\nv_max_f32 v96, 0, v96\nv_mul_f32 v96, v96, v97\nv_cvt_pk_bf16_f32 v96, v96, v96')
        A(f'ds_write_b16 {vHW}, v96')
    A('s_waitcnt vmcnt(0) lgkmcnt(0)\ns_barrier')
    if padfrom == 'G': first_only(lambda: A('s_memrealtime s[98:99]\ns_waitcnt lgkmcnt(0)'))()
    sk, dl = proj_out(2, vBR192, 0, oXB - oXA, (lambda: proj_body(2, vBR192, 0, oXB - oXA, read_wd)) if (wd_after or wd_behind) else None)
    def leave():
        no = lab('no')
        A(f's_cmp_eq_u32 {sLIDX}, 0\ns_cbranch_scc1 {no}\ns_cmp_lg_u32 {sHI}, 0\ns_cbranch_scc1 L_fin\ns_cmp_lg_u32 {sG}, {sLO}\ns_cbranch_scc1 L_fin\n{no}:')
    def pre_q():
        leave()
        read_wq()
    leave_[0] = leave
    g_wait(sk, dl, pre_q, False, hi_xb, gd_b, gdh_b, xb0)
    stamp()
    reduce_x(oXB - oXA, True)
    keep = nts[0]; nts[0] -= 11
    def advance():
        A(f's_mov_b32 {sLIDX}, 1\ns_mov_b32 {sLAY}, {LS}')
        for s in (sOg, sGg, sMLg, sGSg, sXg, sOPst, sMLst, sXst, sGSst):
            A(f's_add_u32 {s}, {s}, {LS}')
    if padfrom == 'B': A('s_memrealtime s[98:99]\ns_waitcnt lgkmcnt(0)')
    with lowwaves(lambda: (slice_stats(sQSst), advance())):
        matvec(vQst, 'plain')
        advance()
        stamp()
        if ldelay: A(f's_sleep {ldelay}')
        if dual & 1: ln_poll2(sQg, sQSg, SELA)
        else: poll(lambda: issue_q(False), QREGS, ln_spec(SELA, False))
        stamp()
        q_finish(False)
    if share:
        A('; ---- scores, row maximum, exp2, row sum (shared by both layers), P V')
        A('s_waitcnt vmcnt(0) lgkmcnt(0)\ns_barrier')
        if touch_att:
            with lowwaves(lambda: (touch_lines([(sOg, 0), (sGg, 0)], 48), touch_small([(sMLg, 0), (sGSg, 0)], 56))): pass
        A('L_scores:')
        scores(False)
        A(f's_cmp_eq_u32 {sLIDX}, 0\ns_cbranch_scc1 L_scored')
    else: scores()
    for i in range(16):
        pv(i)
        if i == 5: lsum()
    stamp()
    if share: A('s_branch L_merge')
    else:
        combine()
        stamp()
        A('s_branch L_layer')
    nts[0] = keep
    A('L_out:')
    A(f'buffer_store_dword v96, {vXO}, {OUT}, 0 offen' + (' sc1' if out_sc1 else ''))
    A(f's_or_b32 {t1}, s2, {sW}\ns_cmp_lg_u32 {t1}, 0\ns_cbranch_scc1 L_fin0')
    A(f's_mov_b64 exec, 1\nv_mov_b32 v97, {sTAG}\ns_mov_b32 {t2}, {EPOCH}\nbuffer_store_dword v97, off, {WS}, {t2} sc1')
    A('L_fin0:')
    full_exec()
    A('L_fin:')
    if wb:
        A(f's_cmp_lg_u32 {sC}, 31\ns_cbranch_scc1 L_nowb\ns_cmp_lg_u32 {sW}, 7\ns_cbranch_scc1 L_nowb\nbuffer_wbl2 sc1' + ('\ns_waitcnt vmcnt(0)' if wb == 1 else '') + '\nL_nowb:')
    if padto:
        A(f'L_pad:\ns_memrealtime s[94:95]\ns_waitcnt lgkmcnt(0)\ns_sub_u32 s94, s94, s98\ns_cmp_lt_u32 s94, {padto}\ns_cbranch_scc1 L_pad')
    if ts:
        stamp(True)
        A(f's_memtime s[94:95]\ns_waitcnt lgkmcnt(0)\ns_sub_u32 s94, s94, s98\nv_writelane_b32 {vTS}, s94, 63')
        A(f's_add_u32 s96, s96, 0x10000000\ns_addc_u32 s97, s97, 0\ns_lshl_b32 {t1}, s2, 11\nv_add_u32 v64, {t1}, {vT4}\nglobal_store_dword v64, {vTS}, s[96:97]')
        if dbgts:
            A(f's_or_b32 {t1}, s2, {sW}\ns_cmp_lg_u32 {t1}, 0\ns_cbranch_scc1 L_end')
            A(f'v_readlane_b32 {t1}, {vTS}, 0\nv_subrev_u32 v64, {t1}, {vTS}\nv_and_b32 v64, 0xffff, v64')
            A(f'v_mov_b32_dpp v65, v64 quad_perm:[1,1,3,3] {DPP}\nv_lshl_or_b32 v64, v65, 16, v64\nv_lshlrev_b32 v65, 1, {vL}')
            A(f's_mov_b32 exec_lo, 0x55555555\ns_mov_b32 exec_hi, 0\nbuffer_store_dword v64, v65, {DBG}, 0 offen sc1')
    A('s_endpgm')
    for t_ in tails: A(t_)
    A('L_end:\ns_endpgm')
    A(f'.section .rodata,"a"\n.p2align 6\n.amdhsa_kernel {NAME}_kernel')
    A('.amdhsa_next_free_vgpr 256\n.amdhsa_next_free_sgpr 102\n.amdhsa_accum_offset 128\n.amdhsa_group_segment_fixed_size 0\n.amdhsa_kernarg_size 96\n.amdhsa_user_sgpr_count 2\n.amdhsa_user_sgpr_kernarg_segment_ptr 1\n.amdhsa_system_sgpr_workgroup_id_x 1\n.end_amdhsa_kernel')
    txt, probs = A.text()
    for p in probs: print('HAZARD', p, file=sys.stderr)
    return txt, nts[0]

if __name__ == '__main__':
    out = sys.argv[1]
    kw = {}
    for a in sys.argv[2:]:
        k, v = a.split('='); kw[k] = eval(v)
    txt, n = build(**kw)
    open(out, 'w').write(txt)
    print('stamps', n, 'lines', txt.count('\n'))
```

```python
import sys, math, struct
sys.path.insert(0, 'gen')
from asmlib import Asm

NAME = "interleave_layers__sliding_block_cached__glu_gated_reglu__decode"

bQP, bQS, bOP, bML, bGP, bGS, bGC, GB = 0x0, 0x8000, 0x8400, 0x10400, 0x10800, 0x18800, 0x18C00, 0x1AC00
oXA, oXB, LS = 8 * GB, 8 * GB + 0x20000, 8 * GB + 0x40000
TQP, TQC, TOP, TML, TF, EPOCH = 0x240000, 0x2C0000, 0x2E0000, 0x360000, 0x364000, 0x36C000
WS_REC = 0x36C100
OOB = 0x7FFF0000
L_RING, L_WQ, L_WO, L_WG, L_WU, L_WD = 0, 65536, 81920, 98304, 106496, 114688
L_QS, L_OS, L_HS, L_XS, L_RM, L_ST = 122880, 124160, 125440, 126208, 127168, 127424
L_FL = L_ST + 16
LDS_BYTES = 127488

def f32(x): return '0x%08x' % struct.unpack('<I', struct.pack('<f', x))[0]
QSCALE = 128 ** -0.5 * math.log2(math.e)

sW, sG, sC, sHI, sLO = 's3', 's4', 's5', 's6', 's7'
WS, KK, VV, WQ, WO, WG, WU, WD, XX, OUT, DBG = [f's[{i}:{i+3}]' for i in range(8, 52, 4)]
sKV, sRING, t0, t1, t2, t3 = 's52', 's53', 's54', 's55', 's56', 's57'
sLAY, sTO, sFAST, sCNT, sGOK, sLIDX = 's58', 's59', 's60', 's61', 's62', 's63'
sQg, sOg, sGg, sQSg, sMLg, sGSg, sXg, sGBASE, sGCg = ['s%d' % i for i in range(66, 75)]
sOPst, sMLst, sXst, sQSst, sGSst = ['s%d' % i for i in range(75, 80)]
g0, g1, g2, g3 = 's90', 's91', 's92', 's93'
vL, vT4, vSt8, vXg, vQst, vGst, vSSt, vG1, vXst, vQW, vBR320, vHW, vBR192, vXR, vXW, vL4 = ['v%d' % i for i in range(16)]
vROW, vROR, vRMW, vRMR, vWQr, vWr, vWOr, vXO = ['v%d' % i for i in range(16, 24)]
CSQ, CSG = 'v[24:25]', 'v[26:27]'
vTS, vML2, vTMP, vTMP2 = 'v28', 'v29', 'v30', 'v31'
SELA, MASK, SELG, ONES = 'v[32:35]', 36, 'v[40:43]', 'v[44:45]'
vMLst = 'v46'
XRES = 'v[112:113]'
sM4 = 's[88:89]'
sTAG = 's100'
DPP = 'row_mask:0xf bank_mask:0xf'
M16 = 'v_mfma_f32_16x16x32_bf16'

HEADER = r'''
;
;
;   - first q and first attention exchange: 16-byte granules {4 x bf16, tag, ..}; tag = (word found at ws+EPOCH) + 1,
;   Stores that are only read inside the group are plain when every member reported the same XCC id, write-through
'''

def build(ts=False, gdelay=12, gdelay_hi=18, pf_code=True, rides=(16, 21), w_at='land31', ldelay=0, bar_after_k0=False, fride=26, ffn_hi=False, touch_o=0, touch_g=0, ffn_sleep=0, clean3_xa=0, tlb=0, diag2=0, ffn_at=0, fdelay=1, fback=4, wo_at=0, csq_o=0, touch1=12, wt_at=29, csq_at=25, xa0=0, xb0=8, cl_at=29, tail_parts='d', lo0=12, hi0=15, hi4=4, wd_after=0, wd_behind=0, rest_at='xa', fearly=10, use_early=0, fullflag=1, flag_first=0, jitter=0, mid_parts='', mid_sleep=8, touch_att=1, p_sc=26, kpol='nt', vpol='nt', wb=0, out_sc1=0, dual=15, dstep=3, pf_few=0, pf_late=0, flate=0, share=1, gd_b=11, gdh_b=15, ffn_by_hi=1, tmajor=1, prio=0, padto=0, padfrom='', mlstep=0, warm_x=1, warm_at=0, wd_late=0, xback=0, deep_from=24, depth=5, deep=7, diag=0, noclean=0, burst=4, late47=0, abl='', backoff=0, cl_sc1=1, dbgts=0, wsoff=0):
    A = Asm()
    uid = [0]
    def lab(p):
        uid[0] += 1; return f'L_{p}_{uid[0]}'
    nts = [0]; inloop = [False]
    def stamp(key=False):
        if jitter:
            l_ = lab('jt')
            A(f's_memtime s[94:95]\ns_waitcnt lgkmcnt(0)\ns_mul_i32 s94, s94, 0x9e3779b1\ns_xor_b32 s94, s94, s2\ns_mul_i32 s94, s94, 0x85ebca6b\ns_lshr_b32 s94, s94, {32 - jitter}')
            A(f's_cmp_lg_u32 s94, 0\ns_cbranch_scc1 {l_}\ns_sleep 100\n{l_}:')
        if not ts: return
        if ts == 2 and not key:
            nts[0] += 1; return
        if inloop[0]:
            A(f's_memrealtime s[94:95]\ns_mul_i32 m0, {sLIDX}, 11\ns_add_u32 m0, m0, {nts[0]}\ns_waitcnt lgkmcnt(0)\nv_writelane_b32 {vTS}, s94, m0')
        else:
            A(f's_memrealtime s[94:95]\ns_waitcnt lgkmcnt(0)\nv_writelane_b32 {vTS}, s94, {nts[0]}')
        nts[0] += 1
    def xstamp(i):
        A(f's_memrealtime s[94:95]\ns_waitcnt lgkmcnt(0)\nv_writelane_b32 {vTS}, s94, {i}')
    def set_exec(lo, hi=None):
        hi = lo if hi is None else hi
        A(f's_mov_b32 exec_lo, {lo:#x}\ns_mov_b32 exec_hi, {hi:#x}')
    def full_exec(): A('s_mov_b64 exec, -1')
    tails = []
    def lstore(fmt, tag='st', nxt=None, cmp=True):
        a, b = lab('wt'), lab('sd')
        for f_ in fmt.split('\n'): A((';;need2 ' if cmp else ';;need1 ') + f_)
        if cmp: A(f's_cmp_eq_u32 {sFAST}, 1')
        A(f's_cbranch_scc0 {a}')
        A(fmt); A(f'{b}:')
        tails.append(f'{a}:\n' + '\n'.join(f_ + ' sc1' for f_ in fmt.split('\n')) + f'\ns_branch {b}')
        A.vm.append(tag)
    class lowwaves:
        def __init__(s, other=None): s.other = other
        def __enter__(s):
            s.l = lab('hi'); s.o = lab('up') if s.other else s.l
            A(f's_cmp_ge_u32 {sW}, 4\ns_cbranch_scc1 {s.o}')
        def __exit__(s, *a):
            A(f'{s.l}:')
            if s.other:
                keepL, A.L = A.L, []
                A(f'{s.o}:'); s.other(); A(f's_branch {s.l}')
                tails.append('\n'.join(A.L)); A.L = keepL
    def sel(dst, a, b):
        A(f'v_cndmask_b32 {dst}, {a}, {b}, vcc')

    A(f'; @launch grid=(256,1,1) block=(512,1,1) lds={LDS_BYTES}')
    for l_ in HEADER.strip('\n').split('\n'): A.L.append(l_)
    A('.amdgcn_target "amdgcn-amd-amdhsa--gfx950"')
    A(f'.text\n.globl {NAME}_kernel\n.p2align 8\n.type {NAME}_kernel,@function\n{NAME}_kernel:')
    A('s_cmp_ge_u32 s2, 256\ns_cbranch_scc1 L_end')
    A('s_load_dwordx16 s[64:79], s[0:1], 0\ns_load_dwordx8 s[80:87], s[0:1], 64')
    if padto: A('s_memrealtime s[98:99]')
    if diag: A('s_memrealtime s[96:97]')
    A(f'v_lshlrev_b32 {vT4}, 2, v0')
    def prefetch_code():
        if pf_few: A(f's_cmp_ge_u32 s2, {8 * pf_few}\ns_cbranch_scc1 L_nopf')
        A(f's_getpc_b64 s[94:95]\nL_pc:\ns_sub_u32 s94, s94, L_pc-{NAME}_kernel\ns_subb_u32 s95, s95, 0\ns_lshr_b32 s93, s2, 3\ns_and_b32 s93, s93, 1\ns_lshl_b32 s93, s93, 13\nv_lshlrev_b32 {vTMP}, 2, {vT4}\nv_add_u32 {vTMP}, s93, {vTMP}')
        A(f'v_min_u32 {vTMP}, L_end-{NAME}_kernel-16, {vTMP}')
        A(f'global_load_dwordx4 v[96:99], {vTMP}, s[94:95]')
        if pf_few: A('L_nopf:')
        else: A.vm.append('pf')
    if pf_code and not pf_late: prefetch_code()
    A(f'v_lshrrev_b32 {vTMP}, 6, v0')
    A(f'v_and_b32 {vL}, 63, v0')
    A(f'v_readfirstlane_b32 {sW}, {vTMP}')
    A(f's_and_b32 {sG}, s2, 7\ns_lshr_b32 {sC}, s2, 3\ns_lshr_b32 {sHI}, {sC}, 3\ns_and_b32 {sLO}, {sC}, 7')
    A(f'v_and_b32 v120, 15, {vL}\nv_lshrrev_b32 v121, 4, {vL}')
    A(f'v_lshlrev_b32 {vTMP}, 2, v121\nv_xor_b32 {vTMP}, v120, {vTMP}\nv_lshlrev_b32 {vTMP}, 4, {vTMP}\nv_lshl_add_u32 v116, v121, 8, {vTMP}\nv_lshl_add_u32 v124, v121, 13, {vTMP}')
    A(f'v_and_b32 v122, 3, {vL}\nv_lshrrev_b32 v123, 2, v120')
    A(f's_lshr_b32 {t0}, {sW}, 1\ns_lshl_b32 {t0}, {t0}, 10\ns_and_b32 {t1}, {sW}, 1\ns_lshl_b32 {t1}, {t1}, 6\ns_add_u32 {t0}, {t0}, {t1}\ns_lshl_b32 {t1}, {sLO}, 7\ns_add_u32 {t0}, {t0}, {t1}')
    A(f'v_lshlrev_b32 v117, 4, v122\nv_lshl_add_u32 v117, v121, 2, v117\nv_add_u32 {vXO}, {t0}, v117')
    A(f's_lshl_b32 {t0}, {sHI}, 3\ns_add_u32 {t0}, {t0}, {sG}\ns_lshl_b32 {sKV}, {t0}, 22\ns_lshl_b32 {t0}, {sLO}, 17\ns_add_u32 {sKV}, {sKV}, {t0}\ns_add_u32 {sKV}, {sKV}, {12288*256}')
    A(f's_add_u32 {t0}, {sG}, {sC}\ns_add_u32 {t0}, {t0}, {sW}\ns_and_b32 {t0}, {t0}, 7\ns_lshl_b32 {t0}, {t0}, 12\ns_add_u32 {sKV}, {sKV}, {t0}')
    A(f's_lshl_b32 {sRING}, {sW}, 13')
    A(f's_and_b32 {g3}, {sW}, 3')
    A(f's_lshl_b32 {t0}, {sG}, 2\ns_add_u32 {t0}, {t0}, {sHI}')
    A(f'v_mov_b32 v118, {OOB}')
    A(f's_mul_i32 s101, {sG}, {GB}')
    A(f's_lshl_b32 {t1}, {sLO}, 6\ns_lshl_b32 {t2}, {sW}, 3\ns_add_u32 {t1}, {t1}, {t2}\ns_lshl_b32 {t1}, {t1}, 13\ns_lshl_b32 {t2}, {sG}, 10\ns_add_u32 {t1}, {t1}, {t2}\ns_lshl_b32 {t2}, {sHI}, 8\ns_add_u32 {t1}, {t1}, {t2}')
    A(f's_lshl_b32 {t2}, {sW}, 11\ns_add_u32 m0, {t2}, {L_WQ}')
    if ts:
        A(f'v_mov_b32 {vTS}, 0')
        if diag: A(f's_mov_b32 s92, s96');
        stamp(True)
        if diag: A(f'v_writelane_b32 {vTS}, s96, 38')
        A(f's_memtime s[98:99]')
    A('s_waitcnt lgkmcnt(0)')
    if diag: xstamp(39)
    def srd(d, lo, n):
        A(f's_mov_b32 s{d}, s{lo}\ns_mov_b32 s{d+1}, s{lo+1}\ns_mov_b32 s{d+2}, {n}\ns_mov_b32 s{d+3}, 0x20000')
    srd(20, 70, 4194304)
    A.vmop(f'buffer_load_dwordx4 v124, {WQ}, {t1} offen nt lds', 'wq')
    A(f's_add_u32 {t1}, {t1}, 32768\ns_add_u32 m0, m0, 1024')
    srd(40, 64, 4096)
    A.vmop(f'buffer_load_dwordx4 v124, {WQ}, {t1} offen nt lds', 'wq')
    srd(8, 86, WS_REC)
    if wsoff: A(f's_add_u32 s8, s8, {wsoff}\ns_addc_u32 s9, s9, 0')
    A.vmop(f'buffer_load_dword v68, {vXO}, {XX}, 0 offen', 'x0')
    A(f's_lshr_b32 {t2}, {sW}, 1\ns_lshl_b32 {t2}, {t2}, 10\nv_lshlrev_b32 {vTMP}, 4, {vL}')
    A.vmop(f'buffer_load_dwordx4 v[72:75], {vTMP}, {XX}, {t2} offen', 'x0')
    A(f's_mov_b32 {t2}, {EPOCH}')
    A.vmop(f'buffer_load_dword v69, off, {WS}, {t2} sc1', 'ep')
    srd(12, 66, 0x8000000)
    def piece(p, setm0=False):
        t, q = (p % 16) // 4, p % 4
        if q == 0 or setm0:
            A(f's_add_u32 {g1}, {sKV}, {t*32768}\ns_add_u32 m0, {sRING}, {((p//4)&1)*4096}')
        src = 'v116'
        A.vmop(f'buffer_load_dwordx4 {src}, {KK if p < 16 else VV}, {g1} offen offset:{q*1024} {kpol if p < 16 else vpol} lds', f'p{p}')
    for p in range(burst): piece(p)
    if pf_code and pf_late:
        assert not pf_few
        A('s_mov_b32 s92, s93'); prefetch_code(); A('s_mov_b32 s93, s92')
    srd(16, 68, 0x8000000)
    if ts: A('s_mov_b32 s96, s86\ns_mov_b32 s97, s87')

    srd(24, 72, 4194304); srd(44, 82, 4096)
    if dbgts: srd(48, 84, 256)
    srd(28, 76, 1835008); srd(32, 78, 1835008); srd(36, 80, 1835008)
    A(f's_mul_i32 {t1}, {sG}, 3\ns_add_u32 {t1}, {t1}, 4\ns_lshl_b32 {t2}, {sG}, 2\ns_cmp_ge_u32 {sG}, 4\ns_cselect_b32 {g2}, {t1}, {t2}\ns_add_u32 {g2}, {g2}, {sHI}\ns_min_u32 {g2}, {g2}, 27')
    if tlb:
        A(f's_lshl_b32 {t1}, {t0}, 17')
        A.vmop(f'buffer_load_dword v96, off, {WO}, {t1} nt', 'tlb')
        A(f's_mul_i32 {t1}, {sLO}, {64*3584}')
        A.vmop(f'buffer_load_dword v96, off, {WG}, {t1} nt', 'tlb')
        A.vmop(f'buffer_load_dword v96, off, {WU}, {t1} nt', 'tlb')
        A(f's_lshl_b32 {t1}, {g2}, 16')
        A.vmop(f'buffer_load_dword v96, off, {WD}, {t1} nt', 'tlb')
        A(f'v_lshlrev_b32 {vTMP}, 19, v120')
        A.vmop(f'buffer_load_dword v96, {vTMP}, {WS}, 0 offen nt', 'tlb')
        A.vmop(f'buffer_load_dword v96, off, {VV}, {sKV} nt', 'tlb')
    A(f's_getreg_b32 {t1}, hwreg(HW_REG_XCC_ID)\ns_and_b32 s64, {t1}, 15')
    A(f's_mov_b32 s88, 0x000f000f\ns_mov_b32 s89, 0x000f000f')
    A(f's_mov_b32 {sGBASE}, s101')
    A(f's_lshl_b32 {t1}, {sHI}, 13\ns_add_u32 {t1}, {t1}, {sGBASE}')
    A(f's_add_u32 {sQg}, {t1}, {bQP + LS}\ns_add_u32 {sOg}, {t1}, {bOP}\ns_add_u32 {sGg}, {t1}, {bGP}')
    A(f's_lshl_b32 {t1}, {g3}, 2\ns_add_u32 {t1}, {t1}, {sHI}\ns_lshl_b32 {t1}, {t1}, 6\ns_add_u32 {t1}, {t1}, {sGBASE}\ns_add_u32 {sQSg}, {t1}, {bQS + LS}')
    A(f's_lshl_b32 {sMLst}, {sLO}, 3\ns_add_u32 {sMLst}, {sMLst}, {t1}\ns_add_u32 {sMLst}, {sMLst}, {bML}')
    A(f's_lshl_b32 {t2}, {g3}, 13\ns_lshl_b32 {t1}, {sLO}, 10\ns_add_u32 {t2}, {t2}, {t1}\ns_lshl_b32 {t1}, {sHI}, 8\ns_add_u32 {t2}, {t2}, {t1}\ns_add_u32 {t2}, {t2}, {sGBASE}\ns_add_u32 {sOPst}, {t2}, {bOP}')
    A(f's_lshl_b32 {t1}, {sHI}, 2\ns_add_u32 {t1}, {t1}, {g3}\ns_lshl_b32 {t1}, {t1}, 6\ns_add_u32 {t1}, {t1}, {sGBASE}\ns_add_u32 {sMLg}, {t1}, {bML}\ns_add_u32 {sGSg}, {t1}, {bGS}')
    A(f's_lshl_b32 {t1}, {sLO}, 14\ns_add_u32 {sXg}, {t1}, {oXA}')
    A(f's_lshl_b32 {t1}, {t0}, 9\ns_add_u32 {sXst}, {sXg}, {t1}')
    A(f's_lshl_b32 {t1}, {sHI}, 11\ns_add_u32 {t1}, {t1}, {sGBASE}\ns_add_u32 {sGCg}, {t1}, {bGC}')
    A(f's_lshl_b32 {t3}, {sHI}, 8\ns_lshl_b32 {t1}, {sLO}, 3\ns_add_u32 {t3}, {t3}, {t1}\ns_add_u32 {t3}, {t3}, {sGBASE}\ns_add_u32 {sQSst}, {t3}, {bQS + LS}\ns_add_u32 {sGSst}, {t3}, {bGS}')
    A(f's_lshl_b32 s101, {t0}, 14\ns_add_u32 s101, s101, {TQP}')
    A(f's_lshl_b32 {t1}, {sLO}, 10\ns_lshl_b32 {t2}, {sHI}, 8\ns_add_u32 {t1}, {t1}, {t2}\ns_lshl_b32 {t2}, {g3}, 6\ns_add_u32 {t3}, {t1}, {t2}')
    A(f's_add_u32 {t1}, {sGBASE}, {t3}\ns_add_u32 {t1}, {t1}, {LS}\ns_mov_b32 {t2}, {OOB}')
    A(f's_cmp_ge_u32 {sW}, 4\ns_cselect_b32 {g0}, 0, 5')
    def st_off(dst, shift):
        A(f'v_lshlrev_b32 {vTMP}, {shift}, v120\nv_add_u32 {vTMP}, {t1}, {vTMP}\nv_mov_b32 {vTMP2}, {t2}\nv_cmp_eq_u32 vcc, 4, v120'); sel(vTMP, vTMP, vTMP2)
        A(f'v_lshl_add_u32 {vTMP}, v121, 4, {vTMP}\nv_cmp_gt_u32 vcc, {g0}, v120'); sel(dst, 'v118', vTMP)
    st_off(vQst, 13)
    A(f's_lshl_b32 {t3}, {t3}, 1\ns_lshl_b32 {t1}, {g3}, 6\ns_sub_u32 {t3}, {t3}, {t1}\ns_lshl_b32 {t1}, {sG}, 16\ns_add_u32 {t1}, {t1}, {t3}\ns_add_u32 {t1}, {t1}, {TQP}\ns_lshl_b32 {t2}, {sG}, 14\ns_add_u32 {t2}, {t2}, {t3}\ns_add_u32 {t2}, {t2}, {TQC}')
    st_off('v109', 14)
    A(f'v_lshlrev_b32 {vTMP}, 6, v122\nv_add_u32 {vTMP2}, 4, {vTMP}\nv_cmp_gt_u32 vcc, 16, {vL}'); sel(vTMP, vTMP, vTMP2)
    A(f'v_and_b32 {vTMP2}, {0x1ec*4}, {vT4}\nv_cmp_eq_u32 vcc, {256*4}, {vTMP2}'); sel(vSSt, 'v118', vTMP)
    A(f'v_lshlrev_b32 v115, 2, {vT4}')
    A(f's_lshl_b32 {t1}, {sG}, 2\ns_add_u32 {t1}, {t1}, {g3}\ns_lshl_b32 {t1}, {t1}, 14\ns_lshl_b32 {t2}, {sLO}, 11\ns_add_u32 {t1}, {t1}, {t2}\ns_lshl_b32 {t2}, {sHI}, 9\ns_add_u32 {t1}, {t1}, {t2}\ns_add_u32 {t1}, {t1}, {TOP}')
    A(f'v_and_b32 {vTMP}, 2, {vL}\nv_lshlrev_b32 {vTMP}, 7, {vTMP}\nv_lshrrev_b32 {vTMP2}, 2, {vL}\nv_lshl_add_u32 {vTMP}, {vTMP2}, 4, {vTMP}\nv_add_u32 {vTMP}, {t1}, {vTMP}\nv_and_b32 {vTMP2}, 1, {vL}\nv_cmp_eq_u32 vcc, 0, {vTMP2}'); sel('v110', 'v118', vTMP)
    A(f's_mov_b32 {sLAY}, 0\ns_mov_b32 {sTO}, 400000\ns_mov_b32 {sFAST}, 0\ns_mov_b32 {sGOK}, 0\ns_mov_b32 {sLIDX}, 0')
    A(f's_lshl_b32 {t3}, {g3}, 6\ns_lshl_b32 {t1}, {sLO}, 10\ns_add_u32 {t1}, {t1}, {sGg}\ns_add_u32 {t1}, {t1}, {t3}\ns_lshl_b32 {t2}, {sLO}, 8\ns_add_u32 {t2}, {t2}, {sGCg}\ns_add_u32 {t2}, {t2}, {t3}')
    st_off(vGst, 8)
    A(f'v_and_b32 {vTMP}, 7, {vL}\nv_lshlrev_b32 {vSt8}, 3, {vTMP}\nv_lshlrev_b32 {vL4}, 2, {vL}\nv_lshlrev_b32 {vML2}, 3, v121')
    A(f'v_cmp_eq_u32 vcc, 0, {vL}'); sel(vMLst, 'v118', '0')
    A(f's_lshl_b32 {t1}, {g3}, 8\nv_lshlrev_b32 {vTMP}, 4, v120\nv_lshl_add_u32 {vG1}, v121, 10, {vTMP}\nv_add_u32 {vG1}, {t1}, {vG1}')
    A(f's_lshl_b32 {t1}, {sW}, 6\nv_lshlrev_b32 {vXg}, 11, v123\nv_lshl_add_u32 {vXg}, v121, 9, {vXg}\nv_lshl_add_u32 {vXg}, v122, 4, {vXg}\nv_add_u32 {vXg}, {t1}, {vXg}')
    A(f's_lshr_b32 {t1}, {sW}, 1\ns_mul_i32 {t1}, {t1}, 192\ns_and_b32 {t2}, {sW}, 1\ns_lshl_b32 {t2}, {t2}, 6\ns_add_u32 {t1}, {t1}, {t2}\ns_add_u32 {t1}, {t1}, {L_XS}\nv_add_u32 {vXW}, {t1}, v117')
    A(f's_mul_i32 {t1}, {g3}, 320\ns_add_u32 {t1}, {t1}, {L_QS}\nv_lshl_add_u32 {vQW}, v121, 2, {vTMP}\nv_add_u32 {vQW}, {t1}, {vQW}')
    A(f's_mul_i32 {t1}, {g3}, 192\ns_add_u32 {t1}, {t1}, {L_HS}\nv_lshlrev_b32 {vHW}, 3, v120\nv_lshl_add_u32 {vHW}, v121, 1, {vHW}\nv_add_u32 {vHW}, {t1}, {vHW}')
    A(f'v_mul_u32_u24 {vBR320}, 320, v122\nv_lshl_add_u32 {vBR320}, v121, 4, {vBR320}\nv_add_u32 {vBR320}, {L_QS}, {vBR320}')
    A(f'v_mul_u32_u24 {vBR192}, 192, v122\nv_lshl_add_u32 {vBR192}, v121, 4, {vBR192}\nv_add_u32 {vBR192}, {L_HS}, {vBR192}')
    A(f'v_min_u32 {vTMP2}, 4, v120\nv_mul_u32_u24 {vXR}, 192, {vTMP2}\nv_lshl_add_u32 {vXR}, v121, 4, {vXR}\nv_add_u32 {vXR}, {L_XS}, {vXR}')
    A(f's_lshl_b32 {t1}, {g3}, 5\nv_lshlrev_b32 {vTMP2}, 7, v120\nv_lshl_add_u32 {vTMP2}, v121, 3, {vTMP2}\nv_add_u32 {vTMP2}, {t1}, {vTMP2}\nv_cmp_gt_u32 vcc, 4, v120'); sel(vXst, 'v118', vTMP2)
    A(f'v_lshlrev_b32 {vTMP2}, 4, {vL}\nv_add_u32 {vROW}, {sRING}, {vTMP2}')
    A(f's_lshr_b32 {t1}, {g3}, 1\ns_lshl_b32 {t1}, {t1}, 10\ns_and_b32 {t2}, {g3}, 1\ns_lshl_b32 {t2}, {t2}, 3\ns_add_u32 {t1}, {t1}, {t2}\nv_add_u32 {vROR}, {t1}, {vTMP2}')
    A(f's_lshl_b32 {t1}, {sW}, 3\ns_add_u32 {t1}, {t1}, {L_RM}\nv_lshlrev_b32 {vRMW}, 6, v122\nv_add_u32 {vRMW}, {t1}, {vRMW}')
    A(f's_lshl_b32 {t1}, {g3}, 6\ns_add_u32 {t1}, {t1}, {L_RM}\nv_add_u32 {vRMR}, {t1}, {vSt8}')
    A(f'v_lshl_add_u32 v125, v121, 3, v123')
    A(f'v_xor_b32 {vTMP}, {g3}, v123\nv_lshlrev_b32 {vTMP}, 6, {vTMP}\nv_lshl_add_u32 {vTMP}, v122, 4, {vTMP}\nv_lshl_add_u32 {vWQr}, v125, 8, {vTMP}\nv_add_u32 {vWQr}, {L_WQ}, {vWQr}')
    A(f'v_lshrrev_b32 v119, 1, v123\nv_and_b32 v127, 1, v121\nv_lshlrev_b32 {vTMP}, 1, v127')
    A(f'v_xor_b32 {vTMP}, {g3}, {vTMP}\nv_lshlrev_b32 {vTMP}, 5, {vTMP}\nv_lshl_add_u32 {vTMP}, v122, 3, {vTMP}\nv_lshl_add_u32 {vWr}, v125, 7, {vTMP}\nv_add_u32 {vWr}, {L_WG}, {vWr}')
    A(f'v_and_b32 v126, 1, v123\nv_lshlrev_b32 {vTMP}, 1, v126\nv_xor_b32 {vTMP}, {g3}, {vTMP}\nv_lshlrev_b32 {vTMP}, 5, {vTMP}\nv_lshl_add_u32 {vTMP}, v122, 3, {vTMP}')
    A(f'v_lshl_add_u32 {vTMP2}, v121, 2, v119\nv_lshl_add_u32 {vTMP2}, v126, 6, {vTMP2}\nv_lshl_add_u32 {vWOr}, {vTMP2}, 7, {vTMP}\nv_add_u32 {vWOr}, {L_WO}, {vWOr}')
    A(f'v_and_b32 v125, 1, v120\nv_mov_b32 {vTMP}, 0xffff\nv_mov_b32 {vTMP2}, 0xffff0000\nv_cmp_eq_u32 vcc, 1, v125'); sel('v119', vTMP, vTMP2)
    A(f'v_cmp_gt_u32 vcc, 2, v122'); sel('v119', '0', 'v119')
    for i in range(4):
        A(f'v_cmp_eq_u32 vcc, {i}, v123'); sel(f'v{MASK+i}', '0', 'v119'); A(f'v_and_b32 v{32+i}, 0x3f803f80, v{MASK+i}')
    A(f'v_mov_b32 {vTMP}, 0x3f80\nv_mov_b32 {vTMP2}, 0x3f800000\nv_cmp_eq_u32 vcc, 1, v126'); sel('v119', vTMP, vTMP2)
    A(f'v_cmp_gt_u32 vcc, 2, v122'); sel('v119', '0', 'v119')
    A(f'v_lshrrev_b32 {vTMP}, 1, v123\nv_lshl_add_u32 {vTMP}, v125, 1, {vTMP}')
    for i in range(4):
        A(f'v_cmp_eq_u32 vcc, {i}, {vTMP}'); sel(f'v{40+i}', '0', 'v119')
    A('v_mov_b32 v44, 0x3f803f80\nv_mov_b32 v45, 0x3f803f80')
    A(f'v_and_b32 {vTMP2}, 7, {vL}\nv_lshrrev_b32 v119, 3, {vL}')
    A(f's_lshr_b32 {t1}, {sW}, 2\ns_lshl_b32 {t1}, {t1}, 2\nv_xor_b32 {vTMP}, {t1}, {vTMP2}\nv_lshlrev_b32 {vTMP}, 4, {vTMP}\nv_lshl_add_u32 v124, v119, 10, {vTMP}')
    A(f's_and_b32 {t1}, {sW}, 1\ns_lshl_b32 {t1}, {t1}, 2\nv_xor_b32 {vTMP}, {t1}, {vTMP2}\nv_lshlrev_b32 {vTMP}, 4, {vTMP}')
    A(f'v_lshl_add_u32 v127, v119, 10, {vTMP}\nv_mul_u32_u24 v126, 3584, v119\nv_add_u32 v126, v126, {vTMP}')
    A(f's_cmp_ge_u32 {sG}, 4\ns_cselect_b32 {t2}, 3, 4\ns_cmp_lt_u32 {sHI}, {t2}\ns_cselect_b32 {t2}, 0, {OOB}\nv_add_u32 v126, {t2}, v126\nv_add_u32 v127, {t2}, v127')
    A(f'v_lshlrev_b32 {vTMP}, 1, v123\nv_xor_b32 {vTMP}, v121, {vTMP}\nv_lshlrev_b32 {vTMP}, 5, {vTMP}\nv_lshl_add_u32 {vTMP}, v122, 3, {vTMP}\nv_lshl_add_u32 {vTMP}, v123, 8, {vTMP}\nv_add_u32 v122, {sRING}, {vTMP}\nv_xor_b32 v123, 128, v122')
    A(f'v_and_b32 {vTMP}, 3, v120\nv_lshlrev_b32 {vTMP}, 6, {vTMP}\nv_lshl_add_u32 {vTMP}, v121, 4, {vTMP}\nv_lshl_add_u32 {vTMP}, v120, 8, {vTMP}\nv_add_u32 v118, {sRING}, {vTMP}')
    for j in range(1, 4): A(f'v_xor_b32 v{118+j}, {64*j}, v118')
    A(f'v_and_b32 {vTMP}, 124, {vL4}\nv_add_u32 {vTMP}, {L_XS+4*192}, {vTMP}\nds_write_b32 {vTMP}, v44')
    A(f'v_mov_b32 {vTMP}, {L_FL}\nv_mov_b32 {vTMP2}, 0\nds_write_b32 {vTMP}, {vTMP2}')
    A(f'v_mov_b32 v76, -1\nv_mov_b32 v77, -1\nds_write_b64 {vRMR}, v[76:77]')

    def read_k(i):
        for j in range(4): A(f'ds_read_b128 a[{16*i+4*j}:{16*i+4*j+3}], v{118+j} offset:{(i&1)*4096}')
    def read_v(p):
        i = p - 16
        for hf in range(2):
            r = 64 + 4 * i + 2 * hf
            A(f'ds_read_b64_tr_b16 a[{r}:{r+1}], v{122+hf} offset:{((p//4)&1)*4096 + (p%4)*1024}')
    if not late47:
        for p in range(burst, 8): piece(p)
    if diag: xstamp(40)
    A.wait_vm('ep')
    if diag: xstamp(41)
    A(f'v_and_b32 v113, 0xffff0000, v68\nv_lshlrev_b32 v112, 16, v68')
    A(f'v_readfirstlane_b32 {sTAG}, v69\ns_add_u32 {sTAG}, {sTAG}, 1')
    A('v_dot2_f32_bf16 v78, v72, v44, 0\nv_dot2_f32_bf16 v79, v72, v72, 0')
    for k in range(73, 76): A(f'v_dot2_f32_bf16 v78, v{k}, v44, v78\nv_dot2_f32_bf16 v79, v{k}, v{k}, v79')
    for m in ('quad_perm:[1,0,3,2]', 'quad_perm:[2,3,0,1]', 'row_half_mirror', 'row_mirror'):
        A(f'v_add_f32_dpp v78, v78, v78 {m} {DPP}\nv_add_f32_dpp v79, v79, v79 {m} {DPP}')
    for sw in ('v_permlane16_swap_b32', 'v_permlane32_swap_b32'):
        A(f'v_mov_b32 v76, v78\nv_mov_b32 v77, v79\n{sw} v78, v76\n{sw} v79, v77\nv_add_f32 v78, v78, v76\nv_add_f32 v79, v79, v77')
    c2 = QSCALE * QSCALE
    A(f'v_mov_b32 v75, {f32(1e-5/c2)}\nv_mul_f32 v74, v78, v78\nv_fmac_f32 v75, {f32(1/(512*c2))}, v79\nv_fmac_f32 v75, {f32(-1/(512*512*c2))}, v74\nv_max_f32 v75, {f32(1e-5/c2)}, v75\nv_rsq_f32 v74, v75')
    A(f'v_mul_f32 v78, {f32(-1/512)}, v78\nv_add_f32 v72, v112, v78\nv_add_f32 v73, v113, v78\nv_mul_f32 v72, v72, v74\nv_mul_f32 v73, v73, v74\nv_cvt_pk_bf16_f32 v72, v72, v73\nds_write_b32 {vXW}, v72')
    if late47:
        for p in range(burst, 8): piece(p)
    if diag: xstamp(42)
    A.wait_vm('wq')
    if diag: xstamp(43)
    if bar_after_k0:
        A.wait_vm('p3')
        read_k(0)
        A('s_waitcnt lgkmcnt(0)')
        for p in range(8, 12): piece(p)
    A('s_waitcnt lgkmcnt(0)')
    if 'B' not in abl: A('s_barrier')
    stamp()

    def read_wq():
        for tl in range(2):
            for j in range(2):
                for u in range(2):
                    r = 48 + 8 * tl + 4 * j + 2 * u
                    A(f'ds_read_b64_tr_b16 v[{r}:{r+1}], {vWQr} offset:{8*tl+8192*j+1024*u}')
    def read_gu():
        for tl in range(2):
            for j in range(2):
                for u in range(2):
                    r = 48 + 8 * tl + 4 * j + 2 * u
                    A(f'ds_read_b64_tr_b16 v[{r}:{r+1}], {vWr} offset:{8192*tl+4096*j+512*u}')
    def read_wd():
        for j in range(2):
            for u in range(2):
                A(f'ds_read_b64_tr_b16 v[{48+4*j+2*u}:{49+4*j+2*u}], {vWr} offset:{16384+4096*j+512*u}')
    def read_wo():
        for j in range(4):
            for u in range(2):
                A(f'ds_read_b64_tr_b16 v[{48+4*j+2*u}:{49+4*j+2*u}], {vWOr} offset:{2048*j+256*u}')
    def matvec(vst, mode, late_w=None, soff='0'):
        A(f'ds_read_b128 v[80:83], {vXR}\nds_read_b128 v[84:87], {vXR} offset:64')
        if late_w: late_w()
        A('s_waitcnt lgkmcnt(0)' if late_w else 's_waitcnt lgkmcnt(1)')
        A(f'{M16} v[96:99], v[48:51], v[80:83], 0\n{M16} v[104:107], v[56:59], v[80:83], 0')
        if not late_w: A('s_waitcnt lgkmcnt(0)')
        A(f'{M16} v[96:99], v[52:55], v[84:87], v[96:99]\n{M16} v[104:107], v[60:63], v[84:87], v[104:107]')
        if mode == 'plain':
            A(f's_cmp_eq_u32 {sFAST}, 1')
            A('v_cvt_pk_bf16_f32 v96, v96, v97\nv_cvt_pk_bf16_f32 v97, v98, v99\nv_cvt_pk_bf16_f32 v98, v104, v105\nv_cvt_pk_bf16_f32 v99, v106, v107')
            lstore(f'buffer_store_dwordx4 v[96:99], {vst}, {WS}, {soff} offen', cmp=False)
            return
        A(f'v_mov_b32 v102, {sTAG}\nv_mov_b32 v103, s64')
        A(f'v_cvt_pk_bf16_f32 v100, v96, v97\nv_cvt_pk_bf16_f32 v101, v98, v99\nv_cvt_pk_bf16_f32 v104, v104, v105\nv_cvt_pk_bf16_f32 v105, v106, v107')
        A(f'v_mov_b32 v106, {sTAG}\nv_mov_b32 v107, s64')
        if mode == 'q0':
            A.vmop(f'buffer_store_dwordx4 v[100:103], {vst}, {WS}, 0 offen', 'st')
            A.vmop(f'buffer_store_dwordx4 v[104:107], {vst}, {WS}, 0 offen offset:256', 'st')
        else:
            lstore(f'buffer_store_dwordx4 v[100:103], {vst}, {WS}, 0 offen\nbuffer_store_dwordx4 v[104:107], {vst}, {WS}, 0 offen offset:256')
    def slice_stats(sst):
        l = lab('st')
        A(f's_cmp_lg_u32 {sW}, 4\ns_cbranch_scc1 {l}')
        A(f'ds_read_b128 v[80:83], {vXR}\nds_read_b128 v[84:87], {vXR} offset:64\ns_waitcnt lgkmcnt(1)')
        A(f'{M16} v[104:107], v[80:83], v[80:83], 0\ns_waitcnt lgkmcnt(0)\n{M16} v[104:107], v[84:87], v[84:87], v[104:107]')
        def pick():
            A('v_cndmask_b32 v104, v104, v105, s[80:81]\nv_cndmask_b32 v106, v106, v107, s[80:81]\nv_cndmask_b32 v104, v104, v106, s[82:83]')
        A('s_mov_b64 s[80:81], 10\ns_mov_b64 s[82:83], 12')
        A(f's_cmp_eq_u32 {sFAST}, 1')
        pick()
        lstore(f'buffer_store_dword v104, {vSSt}, {WS}, {sst} offen', cmp=False)
        A.vm.pop()
        A(f'{l}:')

    def issue_g1(dst, voff, sbase, tag, step=4096):
        A.vmop(f'buffer_load_dwordx4 v[{dst}:{dst+3}], {voff}, {WS}, {sbase} offen sc1', tag)
        if step >= 4096:
            A(f's_add_u32 {t1}, {sbase}, {step}')
            A.vmop(f'buffer_load_dwordx4 v[{dst+4}:{dst+7}], {voff}, {WS}, {t1} offen sc1', tag)
        else:
            A.vmop(f'buffer_load_dwordx4 v[{dst+4}:{dst+7}], {voff}, {WS}, {sbase} offen offset:{step} sc1', tag)
    def check_empty(regs):
        regs = list(regs)
        A(f'v_max3_u32 {vTMP}, v{regs[0]}, v{regs[1]}, v{regs[2]}'); rest = regs[3:]
        if len(rest) >= 5:
            A(f'v_max3_u32 {vTMP2}, v{rest[0]}, v{rest[1]}, v{rest[2]}'); rest = rest[3:]
            tg = 0
            while len(rest) >= 2:
                d = (vTMP, vTMP2)[tg]; A(f'v_max3_u32 {d}, {d}, v{rest[0]}, v{rest[1]}'); rest = rest[2:]; tg ^= 1
            if rest: A(f'v_max3_u32 {vTMP}, {vTMP}, {vTMP2}, v{rest[0]}')
            else: A(f'v_max_u32 {vTMP}, {vTMP}, {vTMP2}')
        else:
            while len(rest) >= 2:
                A(f'v_max3_u32 {vTMP}, {vTMP}, v{rest[0]}, v{rest[1]}'); rest = rest[2:]
            if rest: A(f'v_max_u32 {vTMP}, {vTMP}, v{rest[0]}')
        A(f'v_cmp_eq_u32 vcc, -1, {vTMP}')
    def poll(issue, regs, spec=None, mark=None):
        r, d = lab('retry'), lab('got')
        A(f'{r}:')
        issue()
        A.wait_vm()
        if mark: A(f'{mark}:')
        if spec: spec()
        check_empty(regs)
        tl = lab('again')
        A(f's_cbranch_vccnz {tl}\n{d}:')
        tails.append(f'{tl}:\n' + (f's_sleep {backoff}\n' if backoff else '') + f's_sub_u32 {sTO}, {sTO}, 1\ns_cbranch_scc0 {r}\ns_mov_b32 {sTO}, 0\ns_branch {d}')
    def poll2(issue, nld, regs, spec):
        d, sb, sa = lab('got'), lab('setb'), lab('seta')
        issue(0)
        if dstep: A(f's_sleep {dstep}')
        issue(1)
        A(f'{sa}:\ns_waitcnt vmcnt({nld})')
        spec(0); check_empty(regs(0))
        A(f's_cbranch_vccnz {sb}\n{d}:')
        keepL, A.L = A.L, []
        A(f'{sb}:'); issue(0)
        A(f's_waitcnt vmcnt({nld})\ns_nop 1')
        spec(1); check_empty(regs(1))
        A(f's_nop 1\ns_cbranch_vccz {d}')
        issue(1)
        A(f's_sub_u32 {sTO}, {sTO}, 1\ns_cbranch_scc0 {sa}\ns_mov_b32 {sTO}, 0\ns_branch {d}')
        tails.append('\n'.join(A.L)); A.L = keepL
        A.vm = []
    def ln_poll2(sdata, sstat, selop):
        def iss(k):
            issue_g1(64 + 16 * k, vG1, sdata, 'x')
            A.vmop(f'buffer_load_dwordx2 v[{72+16*k}:{73+16*k}], {vSt8}, {WS}, {sstat} offen sc1', 'x')
        def spec(k):
            b = 64 + 16 * k
            A(f'{M16} v[96:99], {selop}, v[{b}:{b+3}], 0\n{M16} v[96:99], {selop}, v[{b+4}:{b+7}], v[96:99]')
            A(f'v_add_f32_dpp v78, v{b+8}, v{b+8} quad_perm:[1,0,3,2] {DPP}\nv_add_f32_dpp v79, v{b+9}, v{b+9} quad_perm:[1,0,3,2] {DPP}')
        poll2(iss, 3, lambda k: range(64 + 16 * k, 74 + 16 * k), spec)
    def issue_q(first):
        if not first:
            issue_g1(64, vG1, sQg, 'q')
            A.vmop(f'buffer_load_dwordx2 v[72:73], {vSt8}, {WS}, {sQSg} offen sc1', 'q')
            return
        issue_tagged(f's_mov_b32 {t1}, s101')
    def issue_tagged(base, dst=80, voff=None, kstep=8192, hstep=256):
        if voff is None:
            A(f'v_and_b32 {vTMP2}, 0xf0, {vG1}\nv_lshlrev_b32 {vTMP}, 1, {vG1}\nv_sub_u32 {vTMP}, {vTMP}, {vTMP2}')
        else: A(voff)
        A(base + f'\ns_add_u32 {t2}, {t1}, {kstep}')
        for k in range(2):
            for hh in range(2):
                r = dst[2 * k + hh] if isinstance(dst, tuple) else dst + 8 * k + 4 * hh
                A.vmop(f'buffer_load_dwordx4 v[{r}:{r+3}], {vTMP}, {WS}, {(t1, t2)[k]} offen offset:{hstep*hh} sc1', 'q')
    def issue_o0():
        issue_tagged(f's_lshl_b32 {t1}, {sG}, 2\ns_add_u32 {t1}, {t1}, {sHI}\ns_lshl_b32 {t0}, {t1}, 2\ns_lshl_b32 {t1}, {t1}, 14\ns_add_u32 {t1}, {t1}, {TOP}', o0dst[0])
        A(f's_add_u32 {t0}, {t0}, {sW}\ns_lshl_b32 {t0}, {t0}, 7\ns_add_u32 {t0}, {t0}, {TML}\nv_lshlrev_b32 {vTMP2}, 1, {vML2}')
        m_ = o0ml[0]
        A.vmop(f'buffer_load_dwordx4 v[{m_}:{m_+3}], {vTMP2}, {WS}, {t0} offen sc1', 'q')
        A.vmop(f'buffer_load_dwordx4 v[{m_+4}:{m_+7}], {vTMP2}, {WS}, {t0} offen offset:64 sc1', 'q')
    o0dst = [80]; o0ml = [64]
    def check_words(words, sval):
        w = list(words)
        A(f'v_xor_b32 {vTMP}, {sval}, v{w[0]}')
        for x in w[1:]: A(f'v_xor_b32 {vTMP2}, {sval}, v{x}\nv_or_b32 {vTMP}, {vTMP}, {vTMP2}')
        A(f'v_cmp_ne_u32 vcc, 0, {vTMP}')
    def check_tags(words=(82, 86, 90, 94)): check_words(words, sTAG)
    def tagged_sum(selbase=32, src=80, acc=96, selk=0):
        for n_, (k, hh) in enumerate(((0, 0), (0, 1), (1, 0), (1, 1))):
            r = src[2 * k + hh] if isinstance(src, tuple) else src + 8 * k + 4 * hh
            sb = selbase + selk * k + 2 * hh
            c = '0' if n_ == 0 else f'v[{acc}:{acc+3}]'
            A(f'v_mfma_f32_16x16x16_bf16 v[{acc}:{acc+3}], v[{sb}:{sb+1}], v[{r}:{r+1}], {c}')
    def q0_finish():
        tagged_sum()
        check_words((83, 87, 91, 95), 's64')
        A(f's_cmp_eq_u64 vcc, 0\ns_cselect_b32 {sGOK}, 1, 2')
        A(f'v_cvt_pk_bf16_f32 v96, v96, v97\nds_write_b32 {vQW}, v96')
    def tagged_poll(issue, words=(82, 86, 90, 94), spec=None, back=0):
        rq, gq = lab('rq'), lab('gq')
        A(f'{rq}:')
        issue(); A.wait_vm()
        if spec: spec()
        check_tags(words)
        A(f's_cbranch_vccz {gq}')
        if back: A(f's_sleep {back}')
        A(f's_sub_u32 {sTO}, {sTO}, 1\ns_cbranch_scc0 {rq}\ns_mov_b32 {sTO}, 0\n{gq}:')
    CQ = (48, 52, 56, 60)
    def issue_csq(): issue_tagged(f's_lshl_b32 {t1}, {sG}, 14\ns_add_u32 {t1}, {t1}, {TQC}', CQ)
    def finish_csq():
        ok_ = lab('cq')
        check_tags(tuple(r + 2 for r in CQ))
        A(f's_cbranch_vccz {ok_}')
        tagged_poll(issue_csq, tuple(r + 2 for r in CQ))
        A(f'{ok_}:')
        tagged_sum(32, CQ, 64)
        A(f's_mov_b32 {t2}, {f32(1/512)}\nv_pk_mul_f32 {CSQ}, v[64:65], s[56:57] op_sel_hi:[1,0]')
    QREGS = list(range(64, 74)); QREGS1 = QREGS + list(range(80, 88))
    def ln_spec(selop, first):
        def f():
            A(f'{M16} v[96:99], {selop}, v[64:67], 0\n{M16} v[96:99], {selop}, v[68:71], v[96:99]')
            if first:
                A(f'{M16} v[100:103], {selop}, v[80:83], 0\n{M16} v[100:103], {selop}, v[84:87], v[100:103]')
            A(f'v_add_f32_dpp v78, v72, v72 quad_perm:[1,0,3,2] {DPP}\nv_add_f32_dpp v79, v73, v73 quad_perm:[1,0,3,2] {DPP}')
        return f
    def ln_finish(cs, scale, first, csrc=100):
        for m in ('quad_perm:[2,3,0,1]', 'row_half_mirror'):
            A(f'v_add_f32_dpp v78, v78, v78 {m} {DPP}\nv_add_f32_dpp v79, v79, v79 {m} {DPP}')
            if m.startswith('quad'): A(f'v_mov_b32 v75, {f32(1e-5/(scale*scale))}')
        c2 = scale * scale
        A(f'v_mul_f32 v74, v78, v78\nv_fmac_f32 v75, {f32(1/(512*c2))}, v79')
        if first:
            A(f's_mov_b32 {t2}, {f32(1/512)}\nv_pk_mul_f32 {cs}, v[{csrc}:{csrc+1}], s[56:57] op_sel_hi:[1,0]')
        A(f'v_fmac_f32 v75, {f32(-1/(512*512*c2))}, v74\nv_max_f32 v75, {f32(1e-5/c2)}, v75\nv_rsq_f32 v74, v75')
        A(f'v_pk_fma_f32 v[96:97], v[78:79], {cs}, v[96:97] op_sel_hi:[0,1,1] neg_lo:[1,0,0] neg_hi:[1,0,0]')
        A(f'v_pk_mul_f32 v[96:97], v[96:97], v[74:75] op_sel_hi:[1,0]')
    def q_finish(first):
        ln_finish(CSQ, QSCALE, first)
        A(f'v_cvt_pk_bf16_f32 v96, v96, v97\nds_write_b32 {vQW}, v96')

    A('; ---- first q projection, published with plain stores and this CU\'s XCC id')
    save = list(A.vm)
    with lowwaves():
        read_wq()
        A('s_waitcnt lgkmcnt(0)')
        if 'Q' not in abl: matvec('v109', 'q0')
    stamp()

    def issue_wo():
        A(f's_lshl_b32 {t1}, {sG}, 9\ns_lshl_b32 {t2}, {sHI}, 7\ns_add_u32 {t1}, {t1}, {t2}\ns_lshl_b32 {t2}, {sW}, 4\ns_add_u32 {t1}, {t1}, {t2}\ns_lshl_b32 {t1}, {t1}, 10\ns_lshl_b32 {t2}, {sLO}, 7\ns_add_u32 {t1}, {t1}, {t2}')
        A(f's_lshl_b32 {t2}, {sW}, 11\ns_add_u32 m0, {t2}, {L_WO}')
        A.vmop(f'buffer_load_dwordx4 v124, {WO}, {t1} offen nt lds', 'wo')
        A(f's_add_u32 {t1}, {t1}, 8192\ns_add_u32 m0, m0, 1024')
        A.vmop(f'buffer_load_dwordx4 v124, {WO}, {t1} offen nt lds', 'wo')

    def issue_ffn(dw=0, track=False, parts='gud'):
        vm_ = (lambda x: A.vmop(x, 'ffn')) if track else A
        A(f's_add_u32 {t0}, {sW}, {dw}')
        if 'g' in parts:
            A(f's_lshl_b32 {t1}, {sLO}, 6\ns_lshl_b32 {t2}, {t0}, 3\ns_add_u32 {t1}, {t1}, {t2}\ns_mul_i32 {t1}, {t1}, 3584\ns_lshl_b32 {t2}, {g2}, 7\ns_add_u32 {t1}, {t1}, {t2}')
        A(f's_lshl_b32 {t2}, {t0}, 10\ns_add_u32 m0, {t2}, {L_WG}')
        if 'g' in parts:
            vm_(f'buffer_load_dwordx4 v126, {WG}, {t1} offen nt lds')
            A(f's_add_u32 m0, {t2}, {L_WU}')
            vm_(f'buffer_load_dwordx4 v126, {WU}, {t1} offen nt lds')
        if 'd' not in parts: return
        A(f's_lshl_b32 {t1}, {g2}, 6\ns_lshl_b32 {t3}, {t0}, 3\ns_add_u32 {t1}, {t1}, {t3}\ns_lshl_b32 {t1}, {t1}, 10\ns_lshl_b32 {t3}, {sLO}, 7\ns_add_u32 {t1}, {t1}, {t3}\ns_add_u32 m0, {t2}, {L_WD}')
        vm_(f'buffer_load_dwordx4 v127, {WD}, {t1} offen nt lds')
    wait_of = {}
    d = 6
    for p_ in range(12, 32):
        tgt = depth if p_ < deep_from else deep
        need_d = p_ - tgt
        if p_ in (12, 16, 20): need_d = max(need_d, p_ - 5)
        if need_d > d: wait_of[p_] = list(range(d + 1, need_d + 1)); d = need_d
        else: wait_of[p_] = []
    last_read = d
    def step(p):
        for d_ in wait_of[p]:
            A.wait_vm(f'p{d_}')
            if d_ < 16:
                if d_ % 4 == 3: read_k(d_ // 4); A('s_waitcnt lgkmcnt(0)')
            else:
                A('s_waitcnt lgkmcnt(0)')
                read_v(d_)
            if diag and d_ in (7, 11, 15, 19, 23): xstamp(45 + (d_ - 7) // 4)
        if ffn_at and p == ffn_at and len(tail_parts) < 3: issue_ffn(0, True, ''.join(c_ for c_ in 'gud' if c_ not in tail_parts))
        if p == wo_at: issue_wo()
        piece(p)
    hi_l, join_all, flag_l = lab('shi'), lab('sj'), lab('fl')
    def lead_in():
        if not bar_after_k0:
            A.wait_vm('p3')
            if diag: xstamp(44)
            read_k(0); A('s_waitcnt lgkmcnt(0)')
            for pp in range(8, 12): piece(pp)
    lowcode = [True]
    def steps(lo_, hi_):
        for pp in range(lo_, hi_):
            if pp == touch_o and lowcode[0]:
                n_ = len(A.vm); o0dst[0] = 48; issue_o0(); o0dst[0] = 80
                A.vm[n_:] = ['touch'] * (len(A.vm) - n_)
            if pp == csq_at and lowcode[0] and 'S' not in abl:
                n_ = len(A.vm); issue_csq(); A.vm[n_:] = ['csq'] * (len(A.vm) - n_)
            step(pp)
    A(f's_cmp_ge_u32 {sW}, 4\ns_cbranch_scc1 {hi_l}')
    lead_in()
    p = 12
    while p < p_sc:
        if p in rides:
            assert p + 5 <= p_sc
            skip, join = lab('noq'), lab('jn')
            saved = list(A.vm)
            A(f's_cmp_lg_u32 {sGOK}, 0\ns_cbranch_scc1 {skip}')
            issue_q(True)
            steps(p, p + 5)
            if 'q' in A.vm: A.wait_vm('q')
            check_tags()
            nq = lab('nq')
            A(f's_cbranch_vccnz {nq}')
            q0_finish()
            A(f'{nq}:\ns_branch {join}\n{skip}:')
            after_q = list(A.vm)
            A.vm = saved
            steps(p, p + 5)
            extra = len(A.vm) - len(after_q)
            assert A.vm[extra:] == after_q, (A.vm, after_q)
            A.vm = after_q if extra <= 0 else A.vm
            A(f'{join}:')
            p += 5
        else:
            steps(p, p + 1); p += 1
    saved = list(A.vm)
    def put_status():
        A(f's_lshl_b32 {t1}, {sW}, 2\ns_add_u32 {t1}, {t1}, {L_ST}\nv_mov_b32 {vTMP}, {t1}\nv_mov_b32 {vTMP2}, {sGOK}\nds_write_b32 {vTMP}, {vTMP2}')
    def get_status():
        A(f'v_mov_b32 {vTMP}, {L_ST}\nds_read_b128 v[72:75], {vTMP}\ns_waitcnt lgkmcnt(0)')
        check_words((72, 73, 74, 75), '1')
        A('s_cmp_eq_u64 vcc, 0')
    put_status()
    A(f's_branch {join_all}\n{hi_l}:')
    A.vm = save; lowcode[0] = False
    lead_in()
    steps(12, p_sc)
    saved = list(A.vm)
    A(f'{join_all}:')
    stamp()
    A('s_waitcnt lgkmcnt(0)\ns_barrier')
    get_status()
    okq = lab('okq')
    A(f's_cbranch_scc1 {okq}')
    if not abl:
        with lowwaves():
            A(f'buffer_store_dwordx4 v[100:103], v109, {WS}, 0 offen sc1\nbuffer_store_dwordx4 v[104:107], v109, {WS}, 0 offen offset:256 sc1')
            dn = lab('qdone')
            A(f's_cmp_lg_u32 {sGOK}, 0\ns_cbranch_scc1 {dn}')
            tagged_poll(lambda: issue_q(True))
            q0_finish()
            A(f'{dn}:')
        A('s_barrier')
        with lowwaves(): put_status()
        A('s_waitcnt lgkmcnt(0)\ns_barrier')
        get_status()
    A(f'{okq}:\ns_cselect_b32 {sFAST}, 1, 0')
    A.vm = saved
    def issue_ffn_any(dw, parts=None):
        if dw & 1: A('v_xor_b32 v126, 64, v126\nv_xor_b32 v127, 64, v127')
        issue_ffn(dw, False, parts or ''.join(c_ for c_ in ('gu' if wd_after else 'gud') if c_ not in tail_parts + mid_parts))
        if dw & 1: A('v_xor_b32 v126, 64, v126\nv_xor_b32 v127, 64, v127')
    def first_only(f):
        def g():
            l, bk = lab('fo'), lab('bk')
            A(f's_cmp_eq_u32 {sLIDX}, 0\ns_cbranch_scc1 {l}\n{bk}:')
            keepL, A.L = A.L, []
            A(f'{l}:'); f(); A(f's_branch {bk}')
            tails.append('\n'.join(A.L)); A.L = keepL
        return g
    def variant(first, later):
        l, bk = lab('v0'), lab('vj')
        A(f's_cmp_eq_u32 {sLIDX}, 0\ns_cbranch_scc1 {l}')
        n0 = nts[0]
        later()
        A(f'{bk}:')
        n1, nts[0] = nts[0], n0
        keepL, A.L = A.L, []
        A(f'{l}:'); first(); A(f's_branch {bk}')
        tails.append('\n'.join(A.L)); A.L = keepL
        assert nts[0] == n1
    def later_only(f):
        l = lab('lo'); A(f's_cmp_eq_u32 {sLIDX}, 0\ns_cbranch_scc1 {l}'); f(); A(f'{l}:')
    def scores(bar=True):
        if bar: A('s_waitcnt lgkmcnt(0)\ns_barrier')
        for j in range(4): A(f'ds_read_b128 v[{64+4*j}:{67+4*j}], {vBR320} offset:{64*j}')
        def sel_t(t, rs):
            for r in rs: A(f'v_mov_b32_dpp v{80+r}, v{80+4*t+r} quad_perm:[0,1,2,3] row_mask:0xf bank_mask:{1<<t:#x}')
        if tmajor:
            for t in range(4):
                for j in range(4):
                    if t == 0: A(f's_waitcnt lgkmcnt({3-j})')
                    c = '0' if j == 0 else f'v[{80+4*t}:{83+4*t}]'
                    A(f'{M16} v[{80+4*t}:{83+4*t}], a[{16*t+4*j}:{16*t+4*j+3}], v[{64+4*j}:{67+4*j}], {c}')
            sel_t(1, range(4)); sel_t(2, range(4)); sel_t(3, range(4))
        else:
            for j in range(4):
                A(f's_waitcnt lgkmcnt({3-j})')
                for t in range(4):
                    c = '0' if j == 0 else f'v[{80+4*t}:{83+4*t}]'
                    A(f'{M16} v[{80+4*t}:{83+4*t}], a[{16*t+4*j}:{16*t+4*j+3}], v[{64+4*j}:{67+4*j}], {c}')
            for t in range(1, 4): sel_t(t, range(4))
        A('v_max3_f32 v84, v80, v81, v82\nv_max_f32 v84, v84, v83')
        A(f'v_max_f32_dpp v84, v84, v84 row_ror:4 {DPP}')
        A(f'v_max_f32_dpp v84, v84, v84 row_ror:8 {DPP}')
        A('v_mov_b32 v85, v84\nv_permlane16_swap_b32 v84, v85\nv_max_f32 v84, v84, v85')
        A('v_mov_b32 v85, v84\nv_permlane32_swap_b32 v84, v85\nv_max_f32 v84, v84, v85')
        A('v_pk_add_f32 v[80:81], v[80:81], v[84:85] op_sel_hi:[1,0] neg_lo:[0,1] neg_hi:[0,1]')
        A('v_pk_add_f32 v[82:83], v[82:83], v[84:85] op_sel_hi:[1,0] neg_lo:[0,1] neg_hi:[0,1]')
        for r in range(4): A(f'v_exp_f32 v{80+r}, v{80+r}')
        A('v_cvt_pk_bf16_f32 v86, v80, v81\nv_cvt_pk_bf16_f32 v87, v82, v83')
        A(f'v_mfma_f32_16x16x16_bf16 v[88:91], {ONES}, v[86:87], 0')
    def pv(i):
        for hf in range(2):
            acc = 96 + 8 * (i & 1) + 4 * hf
            c = '0' if i < 2 else f'v[{acc}:{acc+3}]'
            A(f'v_mfma_f32_4x4x4_16b_bf16 v[{acc}:{acc+3}], v[86:87], a[{64+4*i+2*hf}:{65+4*i+2*hf}], {c} cbsz:4 abid:{4*(i&3)+(i>>2)}')
    def lsum():
        A(f'v_add_f32_dpp v85, v88, v88 row_ror:4 {DPP}')
        A(f'v_add_f32_dpp v85, v85, v85 row_ror:8 {DPP}')
        A(f's_mov_b64 exec, 15\nds_write_b64 {vRMW}, v[84:85]')
        full_exec()
    def combine(tagged=False, other=None):
        for h in range(4):
            A(f'v_add_f32 v{64+2*h}, v{96+h}, v{104+h}\nv_add_f32 v{65+2*h}, v{100+h}, v{108+h}')
            if h & 1: A(f'ds_write_b128 {vROW}, v[{62+2*h}:{65+2*h}] offset:{512*(h-1)}')
        def ml_tagged():
            A(f'v_mov_b32 v76, {sTAG}\nv_mov_b32 v77, {sTAG}')
            A(f's_lshl_b32 {t1}, {sG}, 2\ns_add_u32 {t1}, {t1}, {sW}\ns_lshl_b32 {t1}, {t1}, 2\ns_add_u32 {t1}, {t1}, {sHI}\ns_lshl_b32 {t1}, {t1}, 3\ns_add_u32 {t1}, {t1}, {sLO}\ns_lshl_b32 {t1}, {t1}, 4\ns_add_u32 {t1}, {t1}, {TML}')
            lstore(f'buffer_store_dwordx4 v[74:77], {vMLst}, {WS}, {t1} offen')
        def ml_plain(): lstore(f'buffer_store_dwordx2 v[74:75], {vMLst}, {WS}, {sMLst} offen')
        with lowwaves():
            r_, d_, t_ = lab('rm'), lab('rd'), lab('rt')
            A(f'{r_}:\nds_read_b64 v[72:73], {vRMR}\ns_waitcnt lgkmcnt(0)\nv_cmp_eq_u32 vcc, -1, v73\ns_cbranch_vccnz {t_}\n{d_}:')
            tails.append(f'{t_}:\ns_sub_u32 {sTO}, {sTO}, 1\ns_cbranch_scc0 {r_}\ns_mov_b32 {sTO}, 0\ns_branch {d_}')
            A(f'v_max_f32_dpp v74, v72, v72 quad_perm:[1,0,3,2] {DPP}')
            A(f'v_max_f32_dpp v74, v74, v74 quad_perm:[2,3,0,1] {DPP}')
            A(f'v_max_f32_dpp v74, v74, v74 row_half_mirror {DPP}')
            A('v_sub_f32 v72, v72, v74\nv_exp_f32 v72, v72\nv_mul_f32 v75, v73, v72')
            k = 0
            for m in ('quad_perm:[1,0,3,2]', 'quad_perm:[2,3,0,1]', 'row_half_mirror'):
                A(f'v_readlane_b32 s{80+k}, v72, {k}\nv_readlane_b32 s{81+k}, v72, {k+1}'); k += 2
                A(f'v_add_f32_dpp v75, v75, v75 {m} {DPP}')
            variant(ml_tagged, ml_plain)
            A('v_readlane_b32 s86, v72, 6\nv_readlane_b32 s87, v72, 7')
        A('s_waitcnt lgkmcnt(0)\ns_barrier')
        with lowwaves(other):
            for k in range(8): A(f'ds_read_b64 v[{80+2*k}:{81+2*k}], {vROR} offset:{8192*k}')
            for k in range(8):
                sp = f's[{80+(k&~1)}:{81+(k&~1)}]'
                o = 'op_sel_hi:[1,0' if (k & 1) == 0 else 'op_sel:[0,1'
                d = 64 + 2 * (k & 1)
                if k % 2 == 0: A(f's_waitcnt lgkmcnt({6-k})')
                if k < 2: A(f'v_pk_mul_f32 v[{d}:{d+1}], v[{80+2*k}:{81+2*k}], {sp} {o}]')
                else: A(f'v_pk_fma_f32 v[{d}:{d+1}], v[{80+2*k}:{81+2*k}], {sp}, v[{d}:{d+1}] {o},{1 if (k&1)==0 else 0}]')
            A('v_pk_add_f32 v[64:65], v[64:65], v[66:67]\nv_cvt_pk_bf16_f32 v64, v64, v65')
            def pub_tagged():
                A(f'v_mov_b32 v66, {sTAG}\nv_mov_b32 v67, {sTAG}\nv_mov_b32_dpp v65, v64 quad_perm:[1,1,3,3] {DPP}')
                lstore(f'buffer_store_dwordx4 v[64:67], v118, {WS}, 0 offen')
                A(f'v_mov_b32 v76, -1\nv_mov_b32 v77, -1\nds_write_b64 {vRMR}, v[76:77]')
            def pub_plain(): lstore(f'buffer_store_dword v64, {vL4}, {WS}, {sOPst} offen')
            variant(pub_tagged, pub_plain)

    A('v_mov_b32 v118, v110\nv_mov_b32 v114, 0\ns_mov_b32 s80, 0\ns_mov_b32 s81, 0\ns_mov_b32 s82, 0\ns_mov_b32 s83, 0\ns_mov_b32 s84, 0\ns_mov_b32 s85, 0')
    A(f's_mul_i32 {t1}, {sC}, 1312\ns_add_u32 {t1}, {t1}, {sGBASE}\ns_add_u32 {t1}, {t1}, {bGP - 7168}\ns_sub_u32 {t2}, {sXst}, 7168')
    A(f'v_add_u32 v119, {t1}, v115\nv_add_u32 v120, {t2}, v115\nv_add_u32 {vTMP}, {oXB - oXA - 512}, v120\nv_cmp_lt_u32 vcc, 31, {vL}'); sel('v120', 'v120', vTMP)
    A(f'v_add_u32 v121, 1024, v119\nv_mov_b32 {vTMP}, {OOB}\nv_cmp_lt_u32 vcc, 17, {vL}'); sel('v121', 'v121', vTMP)
    A(f'v_cmp_gt_u32 vcc, 7168, v115'); sel('v119', 'v119', vTMP); sel('v120', 'v120', vTMP); sel('v121', 'v121', vTMP)
    def clean_urgent():
        A('v_mov_b32 v92, -1\nv_mov_b32 v93, -1\nv_mov_b32 v94, -1\nv_mov_b32 v95, -1')
        A.vmop(f'buffer_store_dwordx4 v[92:95], v119, {WS}, 0 offen sc1', 'cu')
        A.vmop(f'buffer_store_dwordx4 v[92:95], v120, {WS}, 0 offen sc1', 'cu')
        A.vmop(f'buffer_store_dwordx4 v[92:95], v121, {WS}, 0 offen sc1', 'cu')
    if share: A('s_branch L_scores\nL_scored:')
    else: scores(False)
    d0 = max([6] + [d_ for p_ in range(12, p_sc) for d_ in wait_of[p_]])
    assert d0 >= 17
    for i in range(d0 - 15): pv(i)
    lsum()
    stamp()
    pend = [None]; csq_done = [False]
    def landed(d_):
        A.wait_vm(f'p{d_}')
        if pend[0] is not None: A('s_waitcnt lgkmcnt(0)')
        read_v(d_)
        if pend[0] is not None: pv(pend[0])
        pend[0] = d_ - 16
        if d_ >= csq_at and not csq_done[0] and not abl:
            csq_done[0] = True
            keep_vm = list(A.vm)
            with lowwaves(): finish_csq()
            A.vm = keep_vm
    for p in range(p_sc, 32):
        for d_ in wait_of[p]: landed(d_)
        piece(p, p == p_sc)
    for p in range(last_read + 1, 32):
        landed(p)
        if p == cl_at and 'C' not in abl: clean_urgent()
        if p == wt_at and 'W' not in abl:
            assert cl_at <= wt_at
            issue_wo()
            if tail_parts: issue_ffn(0, True, tail_parts)
    A('s_waitcnt lgkmcnt(0)')
    pv(pend[0])
    if padfrom == 'V': A('s_memrealtime s[98:99]\ns_waitcnt lgkmcnt(0)')
    stamp()
    if abl: A('s_branch L_fin')
    def flag_addr():
        A(f's_lshl_b32 {t1}, {sLO}, 10\ns_lshl_b32 {t2}, {sG}, 7\nv_and_b32 v68, 7, {vL}\nv_and_b32 v69, 24, {vL}\nv_lshlrev_b32 v68, 7, v68\nv_lshl_add_u32 v68, v69, 10, v68\nv_add_u32 v68, {t1}, v68')
        A(f'v_and_b32 v69, 31, {vL}\nv_lshlrev_b32 v69, 10, v69\nv_add_u32 v69, {t2}, v69\nv_cmp_lt_u32 vcc, 31, {vL}'); sel('v68', 'v68', 'v69')
        A(f's_mov_b32 {t1}, {TF}')
    def clean_rest():
        l_ = lab('cr')
        A(f's_cmp_lg_u32 {sW}, 7\ns_cbranch_scc1 {l_}')
        A(f'v_mov_b32 v64, -1\nv_mov_b32 v65, -1\nv_mov_b32 v66, -1\nv_mov_b32 v67, -1\nv_lshlrev_b32 v68, 2, {vL4}')
        A(f's_add_u32 {t1}, {sXst}, {LS}\nv_add_u32 v69, {oXB - oXA - 512}, v68\nv_cmp_lt_u32 vcc, 31, {vL}'); sel('v69', 'v68', 'v69')
        A(f'buffer_store_dwordx4 v[64:67], v69, {WS}, {t1} offen sc1')
        A(f's_mul_i32 {t2}, {sC}, 3168\ns_add_u32 {t2}, {t2}, {sGBASE}\ns_add_u32 {t2}, {t2}, {LS}')
        for k_ in range(3): A(f'buffer_store_dwordx4 v[64:67], v68, {WS}, {t2} offen offset:{1024*k_} sc1')
        A(f's_mov_b64 exec, 63\nbuffer_store_dwordx4 v[64:67], v68, {WS}, {t2} offen offset:3072 sc1\ns_mov_b64 exec, -1\n{l_}:')
    def clean_first():
        l_ = lab('c7')
        A(f's_cmp_lg_u32 {sW}, 7\ns_cbranch_scc1 {l_}')
        A(f's_lshl_b32 {t1}, s2, 7\ns_add_u32 {t1}, {t1}, {TF}\nv_mov_b32 v69, {sTAG}')
        if fullflag:
            A(f's_mov_b32 exec_hi, 0\ns_waitcnt vmcnt({2 + len(tail_parts)})\nbuffer_store_dword v69, {vL4}, {WS}, {t1} offen sc1')
        else:
            A(f's_mov_b64 exec, 1\ns_waitcnt vmcnt({2 + len(tail_parts)})\nbuffer_store_dword v69, off, {WS}, {t1} sc1')
        full_exec()
        n4 = lab('n4')
        if not use_early:
            A(f'{l_}:')
            if mid_parts:
                A(f's_sleep {mid_sleep}')
                issue_ffn(-4, False, mid_parts); issue_ffn(0, False, mid_parts)
            A(f's_lshl_b32 {t1}, {sLO}, 3\ns_add_u32 {t1}, {t1}, {sW}\ns_mul_i32 {t1}, {t1}, {8*3584}\ns_lshl_b32 {t2}, {g2}, 7\ns_add_u32 s81, {t1}, {t2}\ns_sub_u32 s80, s81, {32*3584}')
            A(f's_lshl_b32 {t1}, {g2}, 3\ns_add_u32 {t1}, {t1}, {sW}\ns_lshl_b32 {t1}, {t1}, 6\ns_add_u32 {t1}, {t1}, {sLO}\ns_lshl_b32 s83, {t1}, 7\ns_sub_u32 s82, s83, 32768')
            A(f's_lshl_b32 s84, {sW}, 10\ns_sub_u32 s84, s84, 4096')
            flag_addr()
            A(f'v_mov_b32 v114, v68\ns_mov_b32 s85, {TF}\ns_waitcnt vmcnt({2 * len(mid_parts)})')
            return
        A(f'{l_}:\ns_cmp_lg_u32 {sW}, 4\ns_cbranch_scc1 {n4}')
        flag_addr()
        A(f's_sleep {fearly}\nbuffer_load_dword v69, v68, {WS}, {t1} offen sc1\ns_waitcnt vmcnt(0)\nv_cmp_ne_u32 vcc, {sTAG}, v69\ns_cbranch_vccnz {n4}')
        A(f's_mov_b32 {sCNT}, 1\nv_mov_b32 v68, {L_FL}\nv_mov_b32 v69, 1\nds_write_b32 v68, v69\n{n4}:')
    if share:
        inloop[0] = True
        A('L_merge:')
        combine(None, first_only(clean_first))
    else: combine(True, clean_first)
    stamp(True)

    if prio:
        l_ = lab('pr'); A(f's_cmp_ge_u32 {sW}, 4\ns_cbranch_scc1 {l_}\ns_setprio 1\n{l_}:')
    A('L_layer:'); inloop[0] = True
    def proj_body(nk, vb, boff, xoff, late_w=None, tagged=False):
        for j in range(nk): A(f'ds_read_b128 v[{64+4*j}:{67+4*j}], {vb} offset:{boff+64*j}')
        if late_w: late_w()
        for j in range(nk):
            if not late_w: A(f's_waitcnt lgkmcnt({nk-1-j})')
            elif j == 0: A('s_waitcnt lgkmcnt(0)')
            c = '0' if j == 0 else 'v[96:99]'
            A(f'{M16} v[96:99], v[{48+4*j}:{51+4*j}], v[{64+4*j}:{67+4*j}], {c}')
        if tagged:
            A(f'v_mov_b32 v102, {sTAG}\nv_mov_b32 v103, {sTAG}\nv_cvt_pk_bf16_f32 v100, v96, v97\nv_cvt_pk_bf16_f32 v101, v98, v99')
            A(f'buffer_store_dwordx4 v[100:103], v47, {WS}, 0 offen sc1')
            if diag2: xstamp(52)
        else:
            A(f's_add_u32 {t1}, {sXst}, {xoff}')
            A('v_cvt_pk_bf16_f32 v96, v96, v97\nv_cvt_pk_bf16_f32 v97, v98, v99')
            A(f'buffer_store_dwordx2 v[96:97], {vXst}, {WS}, {t1} offen sc1')
    def proj_out(nk, vb, boff, xoff, first=None):
        sk, dl = lab('sk'), lab('dl')
        A(f's_cmp_ge_u32 {sW}, 4\ns_cbranch_scc1 {sk}')
        if first: variant(first, lambda: proj_body(nk, vb, boff, xoff))
        else: proj_body(nk, vb, boff, xoff)
        return sk, dl
    def g_wait(sk, dl, pre, busy_first=False, hi_pre=None, lo_d=None, hi_d=None, extra0=0):
        pre()
        A(f's_sleep {lo_d or gdelay}')
        A(f's_branch {dl}\n{sk}:')
        if hi_pre: hi_pre()
        A(f's_sleep {hi_d or gdelay_hi}')
        A(f'{dl}:')
        if extra0: first_only(lambda: A(f's_sleep {extra0}'))()
    def reduce_x(xoff, final, first=None):
        def normal():
            A(f's_add_u32 {t0}, {sXg}, {xoff}')
            sp = lambda b: A(f'{M16} v[96:99], {SELA}, v[{b}:{b+3}], 0\n{M16} v[96:99], {SELA}, v[{b+4}:{b+7}], v[96:99]')
            if not dual & 16:
                poll(lambda: issue_g1(64, vXg, t0, 'x', 8192), range(64, 72), lambda: sp(64), None if final else 'L_xa_landed')
                return
            d, tl, lp = lab('got'), lab('again'), lab('lp')
            issue_g1(64, vXg, t0, 'x', 8192); A.wait_vm()
            sp(64); check_empty(range(64, 72))
            A(f's_cbranch_vccnz {tl}\n{d}:')
            keepL, A.L = A.L, []
            A(f'{tl}:'); issue_g1(64, vXg, t0, 'x', 8192)
            A(f's_sleep {dstep}\n{lp}:'); issue_g1(72, vXg, t0, 'x', 8192)
            A('s_waitcnt vmcnt(2)'); sp(64); check_empty(range(64, 72))
            A(f's_nop 1\ns_cbranch_vccz {d}'); issue_g1(64, vXg, t0, 'x', 8192)
            A('s_waitcnt vmcnt(2)'); sp(72); check_empty(range(72, 80))
            A(f's_nop 1\ns_cbranch_vccz {d}\ns_sub_u32 {sTO}, {sTO}, 1\ns_cbranch_scc0 {lp}\ns_mov_b32 {sTO}, 0\ns_branch {d}')
            tails.append('\n'.join(A.L)); A.L = keepL
            A.vm = []
        if first: variant(first, normal)
        else: normal()
        stamp()
        A(f'v_add_f32_dpp v96, v96, v96 row_ror:4 {DPP}\nv_add_f32_dpp v97, v97, v97 row_ror:4 {DPP}')
        if final: A(f's_cmp_eq_u32 {sLIDX}, 1')
        A(f'v_add_f32_dpp v96, v96, v96 row_ror:8 {DPP}\nv_add_f32_dpp v97, v97, v97 row_ror:8 {DPP}')
        A(f'v_pk_add_f32 {XRES}, {XRES}, v[96:97]\ns_mov_b64 exec, {sM4}\nv_cvt_pk_bf16_f32 v96, v112, v113')
        if final: A(f's_cbranch_scc1 L_out')
        A(f'ds_write_b32 {vXW}, v96')
        full_exec()
        A('s_waitcnt lgkmcnt(0)\ns_barrier')
    def issue_o():
        issue_g1(64, vG1, sOg, 'o')
        A.vmop(f'buffer_load_dwordx2 v[72:73], {vML2}, {WS}, {sMLg} offen sc1', 'o')
        A.vmop(f'buffer_load_dwordx2 v[74:75], {vML2}, {WS}, {sMLg} offen offset:32 sc1', 'o')
    def wo_weights(ma, la, mb, lb, selreg, mm=None):
        A(f'v_max_f32 v76, v{ma}, v{mb}\nv_mov_b32 v77, v76\nv_permlane16_swap_b32 v76, v77\nv_max_f32 v76, v76, v77')
        A('v_mov_b32 v77, v76\nv_permlane32_swap_b32 v76, v77\nv_max_f32 v76, v76, v77')
        A(f'v_sub_f32 v{ma}, v{ma}, v76\nv_sub_f32 v{mb}, v{mb}, v76\nv_exp_f32 v{ma}, v{ma}\nv_exp_f32 v{mb}, v{mb}')
        A(f'v_cvt_pk_bf16_f32 v{ma}, v{ma}, v{ma}\nv_cvt_pk_bf16_f32 v{mb}, v{mb}, v{mb}')
        for i in range(4): A(f'v_and_b32 v{selreg+i}, v{MASK+i}, v{ma}')
        for i in range(4): A(f'v_and_b32 v{selreg+4+i}, v{MASK+i}, v{mb}')
        if mm: mm()
        A(f'v_and_b32 v{ma}, 0xffff0000, v{ma}\nv_and_b32 v{mb}, 0xffff0000, v{mb}\nv_mul_f32 v79, v{la}, v{ma}\nv_fmac_f32 v79, v{lb}, v{mb}')
        A('v_mov_b32 v77, v79\nv_permlane16_swap_b32 v79, v77\nv_add_f32 v79, v79, v77')
        A('v_mov_b32 v77, v79\nv_permlane32_swap_b32 v79, v77\nv_add_f32 v79, v79, v77\nv_rcp_f32 v78, v79')
    def two_sets(iss, nld, between, spec, chk):
        d, sb, sa = lab('got'), lab('setb'), lab('seta')
        iss(0); between(); iss(1)
        A(f'{sa}:\ns_waitcnt vmcnt({nld})')
        spec(0); chk(0)
        A(f's_cbranch_vccnz {sb}\n{d}:')
        keepL, A.L = A.L, []
        A(f'{sb}:'); iss(0)
        A(f's_waitcnt vmcnt({nld})\ns_nop 3')
        spec(1); chk(1)
        A(f's_nop 3\ns_cbranch_vccz {d}'); iss(1)
        A(f's_sub_u32 {sTO}, {sTO}, 1\ns_cbranch_scc0 {sa}\ns_mov_b32 {sTO}, 0\ns_branch {d}')
        tails.append('\n'.join(A.L)); A.L = keepL
        A.vm = []
    def wo_later():
        read_wo()
        def iml():
            A.vmop(f'buffer_load_dwordx2 v[72:73], {vML2}, {WS}, {sMLg} offen sc1', 'o')
            A.vmop(f'buffer_load_dwordx2 v[74:75], {vML2}, {WS}, {sMLg} offen offset:32 sc1', 'o')
        poll(iml, range(72, 76))
        b_ = (64, 100)
        two_sets(lambda k: issue_g1(b_[k], vG1, sOg, 'o'), 2, lambda: wo_weights(72, 73, 74, 75, 80),
                 lambda k: A(f'{M16} v[96:99], v[80:83], v[{b_[k]}:{b_[k]+3}], 0\n{M16} v[96:99], v[84:87], v[{b_[k]+4}:{b_[k]+7}], v[96:99]'),
                 lambda k: check_empty(range(b_[k], b_[k] + 8)))
        stamp()
    def wo_first():
        sets = ((80, 64), (48, 100))
        def iss(k):
            o0dst[0], o0ml[0] = sets[k]; issue_o0()
        def chk(k):
            a_, m_ = sets[k]; check_tags((a_ + 2, a_ + 6, a_ + 10, a_ + 14, m_ + 2, m_ + 6))
        def fin(k):
            a_, m_ = sets[k]; wo_weights(m_, m_ + 1, m_ + 4, m_ + 5, 116, lambda: tagged_sum(116, a_, 96, 4))
        lp, ga, gb, en = lab('lp'), lab('ga'), lab('gb'), lab('en')
        iss(0); A(f's_sleep {dstep}\n{lp}:'); iss(1)
        A('s_waitcnt vmcnt(6)'); chk(0); A(f's_cbranch_vccz {ga}')
        iss(0); A('s_waitcnt vmcnt(6)'); chk(1); A(f's_cbranch_vccz {gb}')
        A(f's_sub_u32 {sTO}, {sTO}, 1\ns_cbranch_scc0 {lp}\ns_mov_b32 {sTO}, 0\n{gb}:')
        stamp(); fin(1); A(f's_branch {en}\n{ga}:')
        nts[0] -= 1 if ts else 0; stamp(); fin(0); A(f'{en}:')
        A.vm = []
    with lowwaves():
        variant(wo_first, wo_later)
        A('v_pk_mul_f32 v[96:97], v[96:97], v[78:79] op_sel_hi:[1,0]\nv_cvt_pk_bf16_f32 v96, v96, v97')
        A(f'ds_write_b32 {vQW}, v96 offset:{L_OS-L_QS}\ns_waitcnt vmcnt(0)')
    A(f's_waitcnt lgkmcnt(0)\ns_barrier')
    if padfrom == 'O': first_only(lambda: A('s_memrealtime s[98:99]\ns_waitcnt lgkmcnt(0)'))()
    if padfrom == 'P': A('s_memrealtime s[98:99]\ns_waitcnt lgkmcnt(0)')
    if diag2: first_only(lambda: xstamp(50))()
    sk, dl = proj_out(4, vBR320, L_OS - L_QS, 0, lambda: (proj_body(4, vBR320, L_OS - L_QS, 0, read_wo), xstamp(52) if diag2 else None))
    leave_ = [None]
    def touch_lines(bases, r=80):
        for sb, off in bases:
            A(f's_add_u32 {t0}, {sb}, {off}\ns_add_u32 {t1}, {t0}, 4096')
            A(f'buffer_load_dwordx4 v[{r}:{r+3}], {vG1}, {WS}, {t0} offen sc1\nbuffer_load_dwordx4 v[{r+4}:{r+7}], {vG1}, {WS}, {t1} offen sc1')
    def touch_small(bases, r=88):
        for sb, off in bases:
            A(f's_add_u32 {t0}, {sb}, {off}\nbuffer_load_dwordx2 v[{r}:{r+1}], {vSt8}, {WS}, {t0} offen sc1')
    def watch_flags():
        l_, r_, d_ = lab('w4'), lab('fr'), lab('fd')
        A(f's_cmp_lg_u32 {sW}, 4\ns_cbranch_scc1 {l_}\ns_cmp_eq_u32 {sCNT}, 1\ns_cbranch_scc1 {l_}')
        flag_addr()
        if fdelay: A(f's_sleep {fdelay}')
        e_ = lab('fe')
        A(f'buffer_load_dword v69, v68, {WS}, {t1} offen sc1\ns_waitcnt vmcnt(0)\nv_cmp_ne_u32 vcc, {sTAG}, v69\ns_cbranch_vccz {d_}')
        A(f'{r_}:\ns_sleep {fback}\nbuffer_load_dword v69, v68, {WS}, {t1} offen sc1\ns_waitcnt vmcnt(0)\nv_cmp_ne_u32 vcc, {sTAG}, v69\ns_cbranch_vccz {e_}')
        A(f's_sub_u32 {sTO}, {sTO}, 1\ns_cbranch_scc0 {r_}\ns_mov_b32 {sTO}, 0\n{e_}:')
        if flate: A(f's_sleep {flate}')
        A(f'{d_}:')
        A(f'v_mov_b32 v68, {L_FL}\nv_mov_b32 v69, 1\nds_write_b32 v68, v69')
        if diag2: xstamp(51)
        A(f's_branch {after_sleep[0]}\n{l_}:')
    def await_flags():
        r_, d_ = lab('ar'), lab('ad')
        A(f'v_mov_b32 v68, {L_FL}\n{r_}:\nds_read_b32 v69, v68\ns_waitcnt lgkmcnt(0)\nv_cmp_eq_u32 vcc, 1, v69\ns_cbranch_vccnz {d_}')
        A(f's_sleep 1\ns_sub_u32 {sTO}, {sTO}, 1\ns_cbranch_scc0 {r_}\ns_mov_b32 {sTO}, 0\n{d_}:')
        if touch_g:
            with lowwaves(): touch_lines([(sGg, 0)])
    after_sleep = [None]
    def w567(parts=None, pause=0):
        l_ = lab('f5'); A(f's_cmp_eq_u32 {sW}, 4\ns_cbranch_scc1 {l_}')
        if pause: A(f's_sleep {pause}')
        for dw in (-5, -2, 1):
            k_ = lab('fs')
            if dw == 1: A(f's_cmp_eq_u32 {sW}, 7\ns_cbranch_scc1 {k_}')
            issue_ffn_any(dw, parts)
            A(f'{k_}:')
        A(f'{l_}:')
    def quick_gu():
        for k_ in range(2):
            A(f's_add_u32 m0, s84, {L_WG + 4096 * k_}\ns_nop 0\nbuffer_load_dwordx4 v126, {WG}, s{80+k_} offen nt lds')
            A(f's_add_u32 m0, s84, {L_WU + 4096 * k_}\ns_nop 0\nbuffer_load_dwordx4 v126, {WU}, s{80+k_} offen nt lds')
    def quick_d():
        for k_ in range(2):
            A(f's_add_u32 m0, s84, {L_WD + 4096 * k_}\ns_nop 0\nbuffer_load_dwordx4 v127, {WD}, s{82+k_} offen nt lds')
    def hi_first():
        o_, r_, e_, d_ = lab('fo'), lab('fr'), lab('fe'), lab('fd')
        nod = wd_behind or 'd' in tail_parts
        nw = 4 if nod else 6
        A(f's_cmp_lg_u32 {sW}, 4\ns_cbranch_scc1 {o_}')
        A(f'buffer_load_dword v69, v114, {WS}, s85 offen sc1')
        quick_gu()
        if not nod: quick_d()
        A(f's_waitcnt vmcnt({nw})\nv_cmp_ne_u32 vcc, {sTAG}, v69\ns_cbranch_vccz {d_}')
        A(f'{r_}:\ns_sleep {fback}\nbuffer_load_dword v69, v114, {WS}, s85 offen sc1\ns_waitcnt vmcnt(0)\nv_cmp_ne_u32 vcc, {sTAG}, v69\ns_cbranch_vccz {e_}')
        A(f's_sub_u32 {sTO}, {sTO}, 1\ns_cbranch_scc0 {r_}\ns_mov_b32 {sTO}, 0\n{e_}:')
        if flate: A(f's_sleep {flate}')
        A(f'{d_}:\nv_mov_b32 v68, {L_FL}\nv_mov_b32 v69, 1\nds_write_b32 v68, v69')
        if diag2: xstamp(51)
        A(f's_sleep {hi4}\ns_branch {after_sleep[0]}\n{o_}:\ns_sleep 1')
        quick_gu()
        if not nod: quick_d()
        if diag2:
            l_ = lab('d5'); A(f's_cmp_lg_u32 {sW}, 5\ns_cbranch_scc1 {l_}'); xstamp(53); A('s_waitcnt vmcnt(0)'); xstamp(55); A(f's_branch {after_sleep[0]}\n{l_}:')
        clean_rest()
    def hi_xb():
        leave_[0]()
        if touch_att:
            first_only(lambda: (touch_lines([(sQg, 0)]), touch_small([(sQSg, 0)])))()
            return
        if touch1 & 4: first_only(lambda: (touch_lines([(sGg, LS)]), touch_small([(sGSg, LS)])))()
        if touch1 & 8: first_only(lambda: (touch_lines([(sQg, 0), (sOg, LS)]), touch_small([(sQSg, 0), (sMLg, LS)])))()
    late_gu = 'g' not in tail_parts
    go, aw = lab('go'), lab('aw')
    after_sleep[0] = aw
    def lo_pre():
        if not late_gu: read_gu()
        A(f's_cmp_eq_u32 {sLIDX}, 0\ns_cbranch_scc1 {aw}_lo')
        if late_gu: read_gu()
    def hi_pre():
        A(f's_cmp_eq_u32 {sLIDX}, 0\ns_cbranch_scc1 {aw}_hi')
    g_wait(sk, dl, lo_pre, False, hi_pre)
    A(f'{go}:')
    keepL, A.L = A.L, []
    A(f'{aw}_hi:')
    hi_first()
    A(f's_sleep {hi0}\ns_branch {aw}\n{aw}_lo:\ns_sleep {lo0}\n{aw}:')
    await_flags()
    if wd_behind:
        A(f's_cmp_lt_u32 {sW}, 4\ns_cbranch_scc1 {go}\ns_mov_b32 {t0}, {sXg}')
        issue_g1(64, vXg, t0, 'x', 8192); quick_d()
        A(f's_waitcnt vmcnt(2)\ns_branch L_xa_landed')
    else: A(f's_branch {go}')
    tails.append('\n'.join(A.L)); A.L = keepL
    stamp()
    if diag2: A(f's_mov_b32 s65, {sTO}')
    reduce_x(0, False)
    if padfrom == 'X': first_only(lambda: A('s_memrealtime s[98:99]\ns_waitcnt lgkmcnt(0)'))()
    if diag2: first_only(lambda: A(f's_sub_u32 s65, s65, {sTO}\nv_readlane_b32 s94, {vTS}, 0\ns_mul_i32 s65, s65, 100\ns_add_u32 s65, s65, s94\nv_writelane_b32 {vTS}, s65, 54'))()
    def issue_gp(first):
        issue_g1(64, vG1, sGg, 'g')
        A.vmop(f'buffer_load_dwordx2 v[72:73], {vSt8}, {WS}, {sGSg} offen sc1', 'g')
        if first:
            A(f'v_and_b32 {vTMP}, 0xf0, {vG1}\nv_and_b32 {vTMP2}, 0xc00, {vG1}\nv_lshrrev_b32 {vTMP2}, 2, {vTMP2}\nv_or_b32 {vTMP}, {vTMP}, {vTMP2}')
            issue_g1(80, vTMP, sGCg, 'g', 1024)
    def ffn_gather(first):
        def f():
            if ldelay and not first: A(f's_sleep {ldelay}')
            if dual & 32 and first:
                sets = ((64, 80), (102, 116))
                A(f'v_and_b32 v114, 0xf0, {vG1}\nv_and_b32 {vTMP2}, 0xc00, {vG1}\nv_lshrrev_b32 {vTMP2}, 2, {vTMP2}\nv_or_b32 v114, v114, {vTMP2}')
                def iss(k):
                    a_, c_ = sets[k]
                    issue_g1(a_, vG1, sGg, 'x')
                    A.vmop(f'buffer_load_dwordx2 v[{a_+8}:{a_+9}], {vSt8}, {WS}, {sGSg} offen sc1', 'x')
                    issue_g1(c_, 'v114', sGCg, 'x', 1024)
                def spec(k):
                    a_, c_ = sets[k]
                    A(f'{M16} v[96:99], {SELG}, v[{a_}:{a_+3}], 0\n{M16} v[96:99], {SELG}, v[{a_+4}:{a_+7}], v[96:99]')
                    A(f'{M16} v[88:91], {SELG}, v[{c_}:{c_+3}], 0\n{M16} v[88:91], {SELG}, v[{c_+4}:{c_+7}], v[88:91]')
                    A(f'v_add_f32_dpp v78, v{a_+8}, v{a_+8} quad_perm:[1,0,3,2] {DPP}\nv_add_f32_dpp v79, v{a_+9}, v{a_+9} quad_perm:[1,0,3,2] {DPP}')
                poll2(iss, 5, lambda k: list(range(sets[k][0], sets[k][0] + 10)) + list(range(sets[k][1], sets[k][1] + 8)), spec)
                ln_finish(CSG, 1.0, True, 88)
                return
            if dual & 2 and not first: ln_poll2(sGg, sGSg, SELG)
            else: poll(lambda: issue_gp(first), QREGS1 if first else QREGS, ln_spec(SELG, first))
            ln_finish(CSG, 1.0, first)
        return f
    def hi_after_xa():
        slice_stats(sGSst)
        def f():
            if wd_after: w567('d')
            if rest_at == 'g0': clean_rest()
        if wd_after or rest_at == 'g0': first_only(f)()
    with lowwaves(hi_after_xa):
        matvec(vGst, 'plain', first_only(read_gu) if late_gu else None, sLAY)
        stamp()
        if wd_after or wd_behind: later_only(read_wd)
        else: read_wd()
        variant(ffn_gather(True), ffn_gather(False))
        stamp()
        A('v_cvt_pk_bf16_f32 v96, v96, v97\nv_and_b32 v97, 0xffff0000, v96\nv_lshlrev_b32 v96, 16, v96\nv_max_f32 v96, 0, v96\nv_mul_f32 v96, v96, v97\nv_cvt_pk_bf16_f32 v96, v96, v96')
        A(f'ds_write_b16 {vHW}, v96')
    A('s_waitcnt vmcnt(0) lgkmcnt(0)\ns_barrier')
    if padfrom == 'G': first_only(lambda: A('s_memrealtime s[98:99]\ns_waitcnt lgkmcnt(0)'))()
    sk, dl = proj_out(2, vBR192, 0, oXB - oXA, (lambda: proj_body(2, vBR192, 0, oXB - oXA, read_wd)) if (wd_after or wd_behind) else None)
    def leave():
        no = lab('no')
        A(f's_cmp_eq_u32 {sLIDX}, 0\ns_cbranch_scc1 {no}\ns_cmp_lg_u32 {sHI}, 0\ns_cbranch_scc1 L_fin\ns_cmp_lg_u32 {sG}, {sLO}\ns_cbranch_scc1 L_fin\n{no}:')
    def pre_q():
        leave()
        read_wq()
    leave_[0] = leave
    g_wait(sk, dl, pre_q, False, hi_xb, gd_b, gdh_b, xb0)
    stamp()
    reduce_x(oXB - oXA, True)
    keep = nts[0]; nts[0] -= 11
    def advance():
        A(f's_mov_b32 {sLIDX}, 1\ns_mov_b32 {sLAY}, {LS}')
        for s in (sOg, sGg, sMLg, sGSg, sXg, sOPst, sMLst, sXst, sGSst):
            A(f's_add_u32 {s}, {s}, {LS}')
    if padfrom == 'B': A('s_memrealtime s[98:99]\ns_waitcnt lgkmcnt(0)')
    with lowwaves(lambda: (slice_stats(sQSst), advance())):
        matvec(vQst, 'plain')
        advance()
        stamp()
        if ldelay: A(f's_sleep {ldelay}')
        if dual & 1: ln_poll2(sQg, sQSg, SELA)
        else: poll(lambda: issue_q(False), QREGS, ln_spec(SELA, False))
        stamp()
        q_finish(False)
    if share:
        A('; ---- scores, row maximum, exp2, row sum (shared by both layers), P V')
        A('s_waitcnt vmcnt(0) lgkmcnt(0)\ns_barrier')
        if touch_att:
            with lowwaves(lambda: (touch_lines([(sOg, 0), (sGg, 0)], 48), touch_small([(sMLg, 0), (sGSg, 0)], 56))): pass
        A('L_scores:')
        scores(False)
        A(f's_cmp_eq_u32 {sLIDX}, 0\ns_cbranch_scc1 L_scored')
    else: scores()
    for i in range(16):
        pv(i)
        if i == 5: lsum()
    stamp()
    if share: A('s_branch L_merge')
    else:
        combine()
        stamp()
        A('s_branch L_layer')
    nts[0] = keep
    A('L_out:')
    A(f'buffer_store_dword v96, {vXO}, {OUT}, 0 offen' + (' sc1' if out_sc1 else ''))
    A(f's_or_b32 {t1}, s2, {sW}\ns_cmp_lg_u32 {t1}, 0\ns_cbranch_scc1 L_fin0')
    A(f's_mov_b64 exec, 1\nv_mov_b32 v97, {sTAG}\ns_mov_b32 {t2}, {EPOCH}\nbuffer_store_dword v97, off, {WS}, {t2} sc1')
    A('L_fin0:')
    full_exec()
    A('L_fin:')
    if wb:
        A(f's_cmp_lg_u32 {sC}, 31\ns_cbranch_scc1 L_nowb\ns_cmp_lg_u32 {sW}, 7\ns_cbranch_scc1 L_nowb\nbuffer_wbl2 sc1' + ('\ns_waitcnt vmcnt(0)' if wb == 1 else '') + '\nL_nowb:')
    if padto:
        A(f'L_pad:\ns_memrealtime s[94:95]\ns_waitcnt lgkmcnt(0)\ns_sub_u32 s94, s94, s98\ns_cmp_lt_u32 s94, {padto}\ns_cbranch_scc1 L_pad')
    if ts:
        stamp(True)
        A(f's_memtime s[94:95]\ns_waitcnt lgkmcnt(0)\ns_sub_u32 s94, s94, s98\nv_writelane_b32 {vTS}, s94, 63')
        A(f's_add_u32 s96, s96, 0x10000000\ns_addc_u32 s97, s97, 0\ns_lshl_b32 {t1}, s2, 11\nv_add_u32 v64, {t1}, {vT4}\nglobal_store_dword v64, {vTS}, s[96:97]')
        if dbgts:
            A(f's_or_b32 {t1}, s2, {sW}\ns_cmp_lg_u32 {t1}, 0\ns_cbranch_scc1 L_end')
            A(f'v_readlane_b32 {t1}, {vTS}, 0\nv_subrev_u32 v64, {t1}, {vTS}\nv_and_b32 v64, 0xffff, v64')
            A(f'v_mov_b32_dpp v65, v64 quad_perm:[1,1,3,3] {DPP}\nv_lshl_or_b32 v64, v65, 16, v64\nv_lshlrev_b32 v65, 1, {vL}')
            A(f's_mov_b32 exec_lo, 0x55555555\ns_mov_b32 exec_hi, 0\nbuffer_store_dword v64, v65, {DBG}, 0 offen sc1')
    A('s_endpgm')
    for t_ in tails: A(t_)
    A('L_end:\ns_endpgm')
    A(f'.section .rodata,"a"\n.p2align 6\n.amdhsa_kernel {NAME}_kernel')
    A('.amdhsa_next_free_vgpr 256\n.amdhsa_next_free_sgpr 102\n.amdhsa_accum_offset 128\n.amdhsa_group_segment_fixed_size 0\n.amdhsa_kernarg_size 96\n.amdhsa_user_sgpr_count 2\n.amdhsa_user_sgpr_kernarg_segment_ptr 1\n.amdhsa_system_sgpr_workgroup_id_x 1\n.end_amdhsa_kernel')
    txt, probs = A.text()
    for p in probs: print('HAZARD', p, file=sys.stderr)
    return txt, nts[0]

if __name__ == '__main__':
    out = sys.argv[1]
    kw = {}
    for a in sys.argv[2:]:
        k, v = a.split('='); kw[k] = eval(v)
    txt, n = build(**kw)
    open(out, 'w').write(txt)
    print('stamps', n, 'lines', txt.count('\n'))
```

```python
import sys, math, struct
sys.path.insert(0, 'gen')
from asmlib import Asm

NAME = "interleave_layers__sliding_block_cached__glu_gated_reglu__decode"

bQP, bQS, bOP, bML, bGP, bGS, bGC, GB = 0x0, 0x8000, 0x8400, 0x10400, 0x10800, 0x18800, 0x18C00, 0x1AC00
oXA, oXB, LS = 8 * GB, 8 * GB + 0x20000, 8 * GB + 0x40000
TQP, TQC, TOP, TML, TF, EPOCH = 0x240000, 0x2C0000, 0x2E0000, 0x360000, 0x364000, 0x36C000
WS_REC = 0x36C100
OOB = 0x7FFF0000
L_RING, L_WQ, L_WO, L_WG, L_WU, L_WD = 0, 65536, 81920, 98304, 106496, 114688
L_QS, L_OS, L_HS, L_XS, L_RM, L_ST = 122880, 124160, 125440, 126208, 127168, 127424
L_FL = L_ST + 16
L_DUMP = 127488
LDS_BYTES = 129536

def f32(x): return '0x%08x' % struct.unpack('<I', struct.pack('<f', x))[0]
QSCALE = 128 ** -0.5 * math.log2(math.e)

sW, sG, sC, sHI, sLO = 's3', 's4', 's5', 's6', 's7'
WS, KK, VV, WQ, WO, WG, WU, WD, XX, OUT, DBG = [f's[{i}:{i+3}]' for i in range(8, 52, 4)]
sKV, sRING, t0, t1, t2, t3 = 's52', 's53', 's54', 's55', 's56', 's57'
sLAY, sTO, sFAST, sCNT, sGOK, sLIDX = 's58', 's59', 's60', 's61', 's62', 's63'
sQg, sOg, sGg, sQSg, sMLg, sGSg, sXg, sGBASE, sGCg = ['s%d' % i for i in range(66, 75)]
sOPst, sMLst, sXst, sQSst, sGSst = ['s%d' % i for i in range(75, 80)]
g0, g1, g2, g3 = 's90', 's91', 's92', 's93'
vL, vT4, vSt8, vXg, vQst, vGst, vSSt, vG1, vXst, vQW, vBR320, vHW, vBR192, vXR, vXW, vL4 = ['v%d' % i for i in range(16)]
vROW, vROR, vRMW, vRMR, vWQr, vWr, vWOr, vXO = ['v%d' % i for i in range(16, 24)]
CSQ, CSG = 'v[24:25]', 'v[26:27]'
vTS, vML2, vTMP, vTMP2 = 'v28', 'v29', 'v30', 'v31'
SELA, MASK, SELG, ONES = 'v[32:35]', 36, 'v[40:43]', 'v[44:45]'
vMLst = 'v46'
XRES = 'v[112:113]'
sM4 = 's[88:89]'
sTAG = 's100'
DPP = 'row_mask:0xf bank_mask:0xf'
M16 = 'v_mfma_f32_16x16x32_bf16'

HEADER = r'''
;
;
;   - first q and first attention exchange: 16-byte granules {4 x bf16, tag, ..}; tag = (word found at ws+EPOCH) + 1,
;   Stores that are only read inside the group are plain when every member reported the same XCC id, write-through
'''

def build(ts=False, gdelay=12, gdelay_hi=18, pf_code=True, rides=(16, 21), w_at='land31', ldelay=0, bar_after_k0=False, fride=26, ffn_hi=False, touch_o=0, touch_g=0, ffn_sleep=0, clean3_xa=0, tlb=0, diag2=0, ffn_at=0, fdelay=1, fback=4, wo_at=0, csq_o=0, touch1=12, wt_at=29, csq_at=25, xa0=0, xb0=8, cl_at=29, tail_parts='d', lo0=12, hi0=15, hi4=4, wd_after=0, wd_behind=0, rest_at='xa', fearly=10, use_early=0, fullflag=1, flag_first=0, jitter=0, mid_parts='', mid_sleep=8, touch_att=1, p_sc=26, kpol='nt', vpol='nt', wb=0, out_sc1=0, dual=15, dstep=3, pf_few=0, pf_late=0, flate=0, share=1, gd_b=11, gdh_b=15, ffn_by_hi=1, tmajor=1, prio=0, padto=0, padfrom='', mlstep=0, nanchk=1, warm_x=1, warm_at=0, wd_late=0, xback=0, deep_from=24, depth=5, deep=7, diag=0, noclean=0, burst=4, late47=0, abl='', backoff=0, cl_sc1=1, dbgts=0, wsoff=0):
    A = Asm()
    uid = [0]
    def lab(p):
        uid[0] += 1; return f'L_{p}_{uid[0]}'
    nts = [0]; inloop = [False]
    def stamp(key=False):
        if jitter:
            l_ = lab('jt')
            A(f's_memtime s[94:95]\ns_waitcnt lgkmcnt(0)\ns_mul_i32 s94, s94, 0x9e3779b1\ns_xor_b32 s94, s94, s2\ns_mul_i32 s94, s94, 0x85ebca6b\ns_lshr_b32 s94, s94, {32 - jitter}')
            A(f's_cmp_lg_u32 s94, 0\ns_cbranch_scc1 {l_}\ns_sleep 100\n{l_}:')
        if not ts: return
        if ts == 2 and not key:
            nts[0] += 1; return
        if inloop[0]:
            A(f's_memrealtime s[94:95]\ns_mul_i32 m0, {sLIDX}, 11\ns_add_u32 m0, m0, {nts[0]}\ns_waitcnt lgkmcnt(0)\nv_writelane_b32 {vTS}, s94, m0')
        else:
            A(f's_memrealtime s[94:95]\ns_waitcnt lgkmcnt(0)\nv_writelane_b32 {vTS}, s94, {nts[0]}')
        nts[0] += 1
    def xstamp(i):
        A(f's_memrealtime s[94:95]\ns_waitcnt lgkmcnt(0)\nv_writelane_b32 {vTS}, s94, {i}')
    def set_exec(lo, hi=None):
        hi = lo if hi is None else hi
        A(f's_mov_b32 exec_lo, {lo:#x}\ns_mov_b32 exec_hi, {hi:#x}')
    def full_exec(): A('s_mov_b64 exec, -1')
    tails = []
    def lstore(fmt, tag='st', nxt=None, cmp=True):
        a, b = lab('wt'), lab('sd')
        for f_ in fmt.split('\n'): A((';;need2 ' if cmp else ';;need1 ') + f_)
        if cmp: A(f's_cmp_eq_u32 {sFAST}, 1')
        A(f's_cbranch_scc0 {a}')
        A(fmt); A(f'{b}:')
        tails.append(f'{a}:\n' + '\n'.join(f_ + ' sc1' for f_ in fmt.split('\n')) + f'\ns_branch {b}')
        A.vm.append(tag)
    class lowwaves:
        def __init__(s, other=None, mid=None): s.other = other; s.mid = mid
        def __enter__(s):
            s.l = lab('hi'); s.o = lab('up') if s.other else s.l
            A(f's_cmp_ge_u32 {sW}, 4')
            if s.mid: A(s.mid)
            A(f's_cbranch_scc1 {s.o}')
        def __exit__(s, *a):
            A(f'{s.l}:')
            if s.other:
                keepL, A.L = A.L, []
                A(f'{s.o}:'); s.other(); A(f's_branch {s.l}')
                tails.append('\n'.join(A.L)); A.L = keepL
    def sel(dst, a, b):
        A(f'v_cndmask_b32 {dst}, {a}, {b}, vcc')

    A(f'; @launch grid=(256,1,1) block=(512,1,1) lds={LDS_BYTES}')
    for l_ in HEADER.strip('\n').split('\n'): A.L.append(l_)
    A('.amdgcn_target "amdgcn-amd-amdhsa--gfx950"')
    A(f'.text\n.globl {NAME}_kernel\n.p2align 8\n.type {NAME}_kernel,@function\n{NAME}_kernel:')
    A('s_cmp_ge_u32 s2, 256\ns_cbranch_scc1 L_end')
    A('s_load_dwordx16 s[64:79], s[0:1], 0\ns_load_dwordx8 s[80:87], s[0:1], 64')
    if padto: A('s_memrealtime s[98:99]')
    if diag: A('s_memrealtime s[96:97]')
    A(f'v_lshlrev_b32 {vT4}, 2, v0')
    def prefetch_code():
        if pf_few: A(f's_cmp_ge_u32 s2, {8 * pf_few}\ns_cbranch_scc1 L_nopf')
        A(f's_getpc_b64 s[94:95]\nL_pc:\ns_sub_u32 s94, s94, L_pc-{NAME}_kernel\ns_subb_u32 s95, s95, 0\ns_lshr_b32 s93, s2, 3\ns_and_b32 s93, s93, 1\ns_lshl_b32 s93, s93, 13\nv_lshlrev_b32 {vTMP}, 2, {vT4}\nv_add_u32 {vTMP}, s93, {vTMP}')
        A(f'v_min_u32 {vTMP}, L_end-{NAME}_kernel-16, {vTMP}')
        A(f'global_load_dwordx4 v[96:99], {vTMP}, s[94:95]')
        if pf_few: A('L_nopf:')
        else: A.vm.append('pf')
    if pf_code and not pf_late: prefetch_code()
    A(f'v_lshrrev_b32 {vTMP}, 6, v0')
    A(f'v_and_b32 {vL}, 63, v0')
    A(f'v_readfirstlane_b32 {sW}, {vTMP}')
    A(f's_and_b32 {sG}, s2, 7\ns_lshr_b32 {sC}, s2, 3\ns_lshr_b32 {sHI}, {sC}, 3\ns_and_b32 {sLO}, {sC}, 7')
    A(f'v_and_b32 v120, 15, {vL}\nv_lshrrev_b32 v121, 4, {vL}')
    A(f'v_lshlrev_b32 {vTMP}, 2, v121\nv_xor_b32 {vTMP}, v120, {vTMP}\nv_lshlrev_b32 {vTMP}, 4, {vTMP}\nv_lshl_add_u32 v116, v121, 8, {vTMP}\nv_lshl_add_u32 v124, v121, 13, {vTMP}')
    A(f'v_and_b32 v122, 3, {vL}\nv_lshrrev_b32 v123, 2, v120')
    A(f's_lshr_b32 {t0}, {sW}, 1\ns_lshl_b32 {t0}, {t0}, 10\ns_and_b32 {t1}, {sW}, 1\ns_lshl_b32 {t1}, {t1}, 6\ns_add_u32 {t0}, {t0}, {t1}\ns_lshl_b32 {t1}, {sLO}, 7\ns_add_u32 {t0}, {t0}, {t1}')
    A(f'v_lshlrev_b32 v117, 4, v122\nv_lshl_add_u32 v117, v121, 2, v117\nv_add_u32 {vXO}, {t0}, v117')
    A(f's_lshl_b32 {t0}, {sHI}, 3\ns_add_u32 {t0}, {t0}, {sG}\ns_lshl_b32 {sKV}, {t0}, 22\ns_lshl_b32 {t0}, {sLO}, 17\ns_add_u32 {sKV}, {sKV}, {t0}\ns_add_u32 {sKV}, {sKV}, {12288*256}')
    A(f's_add_u32 {t0}, {sG}, {sC}\ns_add_u32 {t0}, {t0}, {sW}\ns_and_b32 {t0}, {t0}, 7\ns_lshl_b32 {t0}, {t0}, 12\ns_add_u32 {sKV}, {sKV}, {t0}')
    A(f's_lshl_b32 {sRING}, {sW}, 13')
    A(f's_and_b32 {g3}, {sW}, 3')
    A(f's_lshl_b32 {t0}, {sG}, 2\ns_add_u32 {t0}, {t0}, {sHI}')
    A(f'v_mov_b32 v118, {OOB}')
    A(f's_mul_i32 s101, {sG}, {GB}')
    A(f's_lshl_b32 {t1}, {sLO}, 6\ns_lshl_b32 {t2}, {sW}, 3\ns_add_u32 {t1}, {t1}, {t2}\ns_lshl_b32 {t1}, {t1}, 13\ns_lshl_b32 {t2}, {sG}, 10\ns_add_u32 {t1}, {t1}, {t2}\ns_lshl_b32 {t2}, {sHI}, 8\ns_add_u32 {t1}, {t1}, {t2}')
    A(f's_lshl_b32 {t2}, {sW}, 11\ns_add_u32 m0, {t2}, {L_WQ}')
    if ts:
        A(f'v_mov_b32 {vTS}, 0')
        if diag: A(f's_mov_b32 s92, s96');
        stamp(True)
        if diag: A(f'v_writelane_b32 {vTS}, s96, 38')
        A(f's_memtime s[98:99]')
    A('s_waitcnt lgkmcnt(0)')
    if diag: xstamp(39)
    def srd(d, lo, n):
        A(f's_mov_b32 s{d}, s{lo}\ns_mov_b32 s{d+1}, s{lo+1}\ns_mov_b32 s{d+2}, {n}\ns_mov_b32 s{d+3}, 0x20000')
    srd(20, 70, 4194304)
    A.vmop(f'buffer_load_dwordx4 v124, {WQ}, {t1} offen nt lds', 'wq')
    A(f's_add_u32 {t1}, {t1}, 32768\ns_add_u32 m0, m0, 1024')
    srd(40, 64, 4096)
    A.vmop(f'buffer_load_dwordx4 v124, {WQ}, {t1} offen nt lds', 'wq')
    srd(8, 86, WS_REC)
    if wsoff: A(f's_add_u32 s8, s8, {wsoff}\ns_addc_u32 s9, s9, 0')
    A.vmop(f'buffer_load_dword v68, {vXO}, {XX}, 0 offen', 'x0')
    A(f's_lshr_b32 {t2}, {sW}, 1\ns_lshl_b32 {t2}, {t2}, 10\nv_lshlrev_b32 {vTMP}, 4, {vL}')
    A.vmop(f'buffer_load_dwordx4 v[72:75], {vTMP}, {XX}, {t2} offen', 'x0')
    A(f's_mov_b32 {t2}, {EPOCH}')
    A.vmop(f'buffer_load_dword v69, off, {WS}, {t2} sc1', 'ep')
    srd(12, 66, 0x8000000)
    def piece(p, setm0=False):
        t, q = (p % 16) // 4, p % 4
        if q == 0 or setm0:
            A(f's_add_u32 {g1}, {sKV}, {t*32768}\ns_add_u32 m0, {sRING}, {((p//4)&1)*4096}')
        src = 'v116'
        A.vmop(f'buffer_load_dwordx4 {src}, {KK if p < 16 else VV}, {g1} offen offset:{q*1024} {kpol if p < 16 else vpol} lds', f'p{p}')
    for p in range(burst): piece(p)
    if pf_code and pf_late:
        assert not pf_few
        A('s_mov_b32 s92, s93'); prefetch_code(); A('s_mov_b32 s93, s92')
    srd(16, 68, 0x8000000)
    if ts: A('s_mov_b32 s96, s86\ns_mov_b32 s97, s87')

    srd(24, 72, 4194304); srd(44, 82, 4096)
    if dbgts: srd(48, 84, 256)
    srd(28, 76, 1835008); srd(32, 78, 1835008); srd(36, 80, 1835008)
    A(f's_mul_i32 {t1}, {sG}, 3\ns_add_u32 {t1}, {t1}, 4\ns_lshl_b32 {t2}, {sG}, 2\ns_cmp_ge_u32 {sG}, 4\ns_cselect_b32 {g2}, {t1}, {t2}\ns_add_u32 {g2}, {g2}, {sHI}\ns_min_u32 {g2}, {g2}, 27')
    if tlb:
        A(f's_lshl_b32 {t1}, {t0}, 17')
        A.vmop(f'buffer_load_dword v96, off, {WO}, {t1} nt', 'tlb')
        A(f's_mul_i32 {t1}, {sLO}, {64*3584}')
        A.vmop(f'buffer_load_dword v96, off, {WG}, {t1} nt', 'tlb')
        A.vmop(f'buffer_load_dword v96, off, {WU}, {t1} nt', 'tlb')
        A(f's_lshl_b32 {t1}, {g2}, 16')
        A.vmop(f'buffer_load_dword v96, off, {WD}, {t1} nt', 'tlb')
        A(f'v_lshlrev_b32 {vTMP}, 19, v120')
        A.vmop(f'buffer_load_dword v96, {vTMP}, {WS}, 0 offen nt', 'tlb')
        A.vmop(f'buffer_load_dword v96, off, {VV}, {sKV} nt', 'tlb')
    A(f's_getreg_b32 {t1}, hwreg(HW_REG_XCC_ID)\ns_and_b32 s64, {t1}, 15')
    A(f's_mov_b32 s88, 0x000f000f\ns_mov_b32 s89, 0x000f000f')
    A(f's_mov_b32 {sGBASE}, s101')
    A(f's_lshl_b32 {t1}, {sHI}, 13\ns_add_u32 {t1}, {t1}, {sGBASE}')
    A(f's_add_u32 {sQg}, {t1}, {bQP + LS}\ns_add_u32 {sOg}, {t1}, {bOP}\ns_add_u32 {sGg}, {t1}, {bGP}')
    A(f's_lshl_b32 {t1}, {g3}, 2\ns_add_u32 {t1}, {t1}, {sHI}\ns_lshl_b32 {t1}, {t1}, 6\ns_add_u32 {t1}, {t1}, {sGBASE}\ns_add_u32 {sQSg}, {t1}, {bQS + LS}')
    A(f's_lshl_b32 {sMLst}, {sLO}, 3\ns_add_u32 {sMLst}, {sMLst}, {t1}\ns_add_u32 {sMLst}, {sMLst}, {bML}')
    A(f's_lshl_b32 {t2}, {g3}, 13\ns_lshl_b32 {t1}, {sLO}, 10\ns_add_u32 {t2}, {t2}, {t1}\ns_lshl_b32 {t1}, {sHI}, 8\ns_add_u32 {t2}, {t2}, {t1}\ns_add_u32 {t2}, {t2}, {sGBASE}\ns_add_u32 {sOPst}, {t2}, {bOP}')
    A(f's_lshl_b32 {t1}, {sHI}, 2\ns_add_u32 {t1}, {t1}, {g3}\ns_lshl_b32 {t1}, {t1}, 6\ns_add_u32 {t1}, {t1}, {sGBASE}\ns_add_u32 {sMLg}, {t1}, {bML}\ns_add_u32 {sGSg}, {t1}, {bGS}')
    A(f's_lshl_b32 {t1}, {sLO}, 14\ns_add_u32 {sXg}, {t1}, {oXA}')
    A(f's_lshl_b32 {t1}, {t0}, 9\ns_add_u32 {sXst}, {sXg}, {t1}')
    A(f's_lshl_b32 {t1}, {sHI}, 11\ns_add_u32 {t1}, {t1}, {sGBASE}\ns_add_u32 {sGCg}, {t1}, {bGC}')
    A(f's_lshl_b32 {t3}, {sHI}, 8\ns_lshl_b32 {t1}, {sLO}, 3\ns_add_u32 {t3}, {t3}, {t1}\ns_add_u32 {t3}, {t3}, {sGBASE}\ns_add_u32 {sQSst}, {t3}, {bQS + LS}\ns_add_u32 {sGSst}, {t3}, {bGS}')
    A(f's_lshl_b32 s101, {t0}, 14\ns_add_u32 s101, s101, {TQP}')
    A(f's_lshl_b32 {t1}, {sLO}, 10\ns_lshl_b32 {t2}, {sHI}, 8\ns_add_u32 {t1}, {t1}, {t2}\ns_lshl_b32 {t2}, {g3}, 6\ns_add_u32 {t3}, {t1}, {t2}')
    A(f's_add_u32 {t1}, {sGBASE}, {t3}\ns_add_u32 {t1}, {t1}, {LS}\ns_mov_b32 {t2}, {OOB}')
    A(f's_cmp_ge_u32 {sW}, 4\ns_cselect_b32 {g0}, 0, 5')
    def st_off(dst, shift):
        A(f'v_lshlrev_b32 {vTMP}, {shift}, v120\nv_add_u32 {vTMP}, {t1}, {vTMP}\nv_mov_b32 {vTMP2}, {t2}\nv_cmp_eq_u32 vcc, 4, v120'); sel(vTMP, vTMP, vTMP2)
        A(f'v_lshl_add_u32 {vTMP}, v121, 4, {vTMP}\nv_cmp_gt_u32 vcc, {g0}, v120'); sel(dst, 'v118', vTMP)
    st_off(vQst, 13)
    A(f's_lshl_b32 {t3}, {t3}, 1\ns_lshl_b32 {t1}, {g3}, 6\ns_sub_u32 {t3}, {t3}, {t1}\ns_lshl_b32 {t1}, {sG}, 16\ns_add_u32 {t1}, {t1}, {t3}\ns_add_u32 {t1}, {t1}, {TQP}\ns_lshl_b32 {t2}, {sG}, 14\ns_add_u32 {t2}, {t2}, {t3}\ns_add_u32 {t2}, {t2}, {TQC}')
    st_off('v109', 14)
    A(f'v_lshlrev_b32 {vTMP}, 6, v122\nv_add_u32 {vTMP2}, 4, {vTMP}\nv_cmp_gt_u32 vcc, 16, {vL}'); sel(vTMP, vTMP, vTMP2)
    A(f'v_and_b32 {vTMP2}, {0x1ec*4}, {vT4}\nv_cmp_eq_u32 vcc, {256*4}, {vTMP2}'); sel(vSSt, 'v118', vTMP)
    A(f'v_lshlrev_b32 v115, 2, {vT4}')
    A(f's_lshl_b32 {t1}, {sG}, 2\ns_add_u32 {t1}, {t1}, {g3}\ns_lshl_b32 {t1}, {t1}, 14\ns_lshl_b32 {t2}, {sLO}, 11\ns_add_u32 {t1}, {t1}, {t2}\ns_lshl_b32 {t2}, {sHI}, 9\ns_add_u32 {t1}, {t1}, {t2}\ns_add_u32 {t1}, {t1}, {TOP}')
    A(f'v_and_b32 {vTMP}, 2, {vL}\nv_lshlrev_b32 {vTMP}, 7, {vTMP}\nv_lshrrev_b32 {vTMP2}, 2, {vL}\nv_lshl_add_u32 {vTMP}, {vTMP2}, 4, {vTMP}\nv_add_u32 {vTMP}, {t1}, {vTMP}\nv_and_b32 {vTMP2}, 1, {vL}\nv_cmp_eq_u32 vcc, 0, {vTMP2}'); sel('v110', 'v118', vTMP)
    A(f's_mov_b32 {sLAY}, 0\ns_mov_b32 {sTO}, 400000\ns_mov_b32 {sFAST}, 0\ns_mov_b32 {sGOK}, 0\ns_mov_b32 {sLIDX}, 0')
    A(f's_lshl_b32 {t3}, {g3}, 6\ns_lshl_b32 {t1}, {sLO}, 10\ns_add_u32 {t1}, {t1}, {sGg}\ns_add_u32 {t1}, {t1}, {t3}\ns_lshl_b32 {t2}, {sLO}, 8\ns_add_u32 {t2}, {t2}, {sGCg}\ns_add_u32 {t2}, {t2}, {t3}')
    st_off(vGst, 8)
    A(f'v_and_b32 {vTMP}, 7, {vL}\nv_lshlrev_b32 {vSt8}, 3, {vTMP}\nv_lshlrev_b32 {vL4}, 2, {vL}\nv_lshlrev_b32 {vML2}, 3, v121')
    A(f'v_cmp_eq_u32 vcc, 0, {vL}'); sel(vMLst, 'v118', '0')
    A(f's_lshl_b32 {t1}, {g3}, 8\nv_lshlrev_b32 {vTMP}, 4, v120\nv_lshl_add_u32 {vG1}, v121, 10, {vTMP}\nv_add_u32 {vG1}, {t1}, {vG1}')
    A(f's_lshl_b32 {t1}, {sW}, 6\nv_lshlrev_b32 {vXg}, 11, v123\nv_lshl_add_u32 {vXg}, v121, 9, {vXg}\nv_lshl_add_u32 {vXg}, v122, 4, {vXg}\nv_add_u32 {vXg}, {t1}, {vXg}')
    A(f's_lshr_b32 {t1}, {sW}, 1\ns_mul_i32 {t1}, {t1}, 192\ns_and_b32 {t2}, {sW}, 1\ns_lshl_b32 {t2}, {t2}, 6\ns_add_u32 {t1}, {t1}, {t2}\ns_add_u32 {t1}, {t1}, {L_XS}\nv_add_u32 {vXW}, {t1}, v117')
    A(f'v_add_u32 {vTMP2}, {L_DUMP}, {vT4}\nv_cmp_eq_u32 vcc, 0, v123'); sel(vXW, vTMP2, vXW)
    A(f's_mul_i32 {t1}, {g3}, 320\ns_add_u32 {t1}, {t1}, {L_QS}\nv_lshl_add_u32 {vQW}, v121, 2, {vTMP}\nv_add_u32 {vQW}, {t1}, {vQW}')
    A(f's_mul_i32 {t1}, {g3}, 192\ns_add_u32 {t1}, {t1}, {L_HS}\nv_lshlrev_b32 {vHW}, 3, v120\nv_lshl_add_u32 {vHW}, v121, 1, {vHW}\nv_add_u32 {vHW}, {t1}, {vHW}')
    A(f'v_mul_u32_u24 {vBR320}, 320, v122\nv_lshl_add_u32 {vBR320}, v121, 4, {vBR320}\nv_add_u32 {vBR320}, {L_QS}, {vBR320}')
    A(f'v_mul_u32_u24 {vBR192}, 192, v122\nv_lshl_add_u32 {vBR192}, v121, 4, {vBR192}\nv_add_u32 {vBR192}, {L_HS}, {vBR192}')
    A(f'v_min_u32 {vTMP2}, 4, v120\nv_mul_u32_u24 {vXR}, 192, {vTMP2}\nv_lshl_add_u32 {vXR}, v121, 4, {vXR}\nv_add_u32 {vXR}, {L_XS}, {vXR}')
    A(f's_lshl_b32 {t1}, {g3}, 5\nv_lshlrev_b32 {vTMP2}, 7, v120\nv_lshl_add_u32 {vTMP2}, v121, 3, {vTMP2}\nv_add_u32 {vTMP2}, {t1}, {vTMP2}\nv_cmp_gt_u32 vcc, 4, v120'); sel(vXst, 'v118', vTMP2)
    A(f'v_lshlrev_b32 {vTMP2}, 4, {vL}\nv_add_u32 {vROW}, {sRING}, {vTMP2}')
    A(f's_lshr_b32 {t1}, {g3}, 1\ns_lshl_b32 {t1}, {t1}, 10\ns_and_b32 {t2}, {g3}, 1\ns_lshl_b32 {t2}, {t2}, 3\ns_add_u32 {t1}, {t1}, {t2}\nv_add_u32 {vROR}, {t1}, {vTMP2}')
    A(f's_lshl_b32 {t1}, {sW}, 3\ns_add_u32 {t1}, {t1}, {L_RM}\nv_lshlrev_b32 {vRMW}, 6, v122\nv_add_u32 {vRMW}, {t1}, {vRMW}')
    A(f's_lshl_b32 {t1}, {g3}, 6\ns_add_u32 {t1}, {t1}, {L_RM}\nv_add_u32 {vRMR}, {t1}, {vSt8}')
    A(f'v_lshl_add_u32 v125, v121, 3, v123')
    A(f'v_xor_b32 {vTMP}, {g3}, v123\nv_lshlrev_b32 {vTMP}, 6, {vTMP}\nv_lshl_add_u32 {vTMP}, v122, 4, {vTMP}\nv_lshl_add_u32 {vWQr}, v125, 8, {vTMP}\nv_add_u32 {vWQr}, {L_WQ}, {vWQr}')
    A(f'v_lshrrev_b32 v119, 1, v123\nv_and_b32 v127, 1, v121\nv_lshlrev_b32 {vTMP}, 1, v127')
    A(f'v_xor_b32 {vTMP}, {g3}, {vTMP}\nv_lshlrev_b32 {vTMP}, 5, {vTMP}\nv_lshl_add_u32 {vTMP}, v122, 3, {vTMP}\nv_lshl_add_u32 {vWr}, v125, 7, {vTMP}\nv_add_u32 {vWr}, {L_WG}, {vWr}')
    A(f'v_and_b32 v126, 1, v123\nv_lshlrev_b32 {vTMP}, 1, v126\nv_xor_b32 {vTMP}, {g3}, {vTMP}\nv_lshlrev_b32 {vTMP}, 5, {vTMP}\nv_lshl_add_u32 {vTMP}, v122, 3, {vTMP}')
    A(f'v_lshl_add_u32 {vTMP2}, v121, 2, v119\nv_lshl_add_u32 {vTMP2}, v126, 6, {vTMP2}\nv_lshl_add_u32 {vWOr}, {vTMP2}, 7, {vTMP}\nv_add_u32 {vWOr}, {L_WO}, {vWOr}')
    A(f'v_and_b32 v125, 1, v120\nv_mov_b32 {vTMP}, 0xffff\nv_mov_b32 {vTMP2}, 0xffff0000\nv_cmp_eq_u32 vcc, 1, v125'); sel('v119', vTMP, vTMP2)
    A(f'v_cmp_gt_u32 vcc, 2, v122'); sel('v119', '0', 'v119')
    for i in range(4):
        A(f'v_cmp_eq_u32 vcc, {i}, v123'); sel(f'v{MASK+i}', '0', 'v119'); A(f'v_and_b32 v{32+i}, 0x3f803f80, v{MASK+i}')
    A(f'v_mov_b32 {vTMP}, 0x3f80\nv_mov_b32 {vTMP2}, 0x3f800000\nv_cmp_eq_u32 vcc, 1, v126'); sel('v119', vTMP, vTMP2)
    A(f'v_cmp_gt_u32 vcc, 2, v122'); sel('v119', '0', 'v119')
    A(f'v_lshrrev_b32 {vTMP}, 1, v123\nv_lshl_add_u32 {vTMP}, v125, 1, {vTMP}')
    for i in range(4):
        A(f'v_cmp_eq_u32 vcc, {i}, {vTMP}'); sel(f'v{40+i}', '0', 'v119')
    A('v_mov_b32 v44, 0x3f803f80\nv_mov_b32 v45, 0x3f803f80')
    A(f'v_and_b32 {vTMP2}, 7, {vL}\nv_lshrrev_b32 v119, 3, {vL}')
    A(f's_lshr_b32 {t1}, {sW}, 2\ns_lshl_b32 {t1}, {t1}, 2\nv_xor_b32 {vTMP}, {t1}, {vTMP2}\nv_lshlrev_b32 {vTMP}, 4, {vTMP}\nv_lshl_add_u32 v124, v119, 10, {vTMP}')
    A(f's_and_b32 {t1}, {sW}, 1\ns_lshl_b32 {t1}, {t1}, 2\nv_xor_b32 {vTMP}, {t1}, {vTMP2}\nv_lshlrev_b32 {vTMP}, 4, {vTMP}')
    A(f'v_lshl_add_u32 v127, v119, 10, {vTMP}\nv_mul_u32_u24 v126, 3584, v119\nv_add_u32 v126, v126, {vTMP}')
    A(f's_cmp_ge_u32 {sG}, 4\ns_cselect_b32 {t2}, 3, 4\ns_cmp_lt_u32 {sHI}, {t2}\ns_cselect_b32 {t2}, 0, {OOB}\nv_add_u32 v126, {t2}, v126\nv_add_u32 v127, {t2}, v127')
    A(f'v_lshlrev_b32 {vTMP}, 1, v123\nv_xor_b32 {vTMP}, v121, {vTMP}\nv_lshlrev_b32 {vTMP}, 5, {vTMP}\nv_lshl_add_u32 {vTMP}, v122, 3, {vTMP}\nv_lshl_add_u32 {vTMP}, v123, 8, {vTMP}\nv_add_u32 v122, {sRING}, {vTMP}\nv_xor_b32 v123, 128, v122')
    A(f'v_and_b32 {vTMP}, 3, v120\nv_lshlrev_b32 {vTMP}, 6, {vTMP}\nv_lshl_add_u32 {vTMP}, v121, 4, {vTMP}\nv_lshl_add_u32 {vTMP}, v120, 8, {vTMP}\nv_add_u32 v118, {sRING}, {vTMP}')
    for j in range(1, 4): A(f'v_xor_b32 v{118+j}, {64*j}, v118')
    A(f'v_and_b32 {vTMP}, 124, {vL4}\nv_add_u32 {vTMP}, {L_XS+4*192}, {vTMP}\nds_write_b32 {vTMP}, v44')
    A(f'v_mov_b32 {vTMP}, {L_FL}\nv_mov_b32 {vTMP2}, 0\nds_write_b32 {vTMP}, {vTMP2}')
    A(f'v_mov_b32 v76, -1\nv_mov_b32 v77, -1\nds_write_b64 {vRMR}, v[76:77]')

    def read_k(i):
        for j in range(4): A(f'ds_read_b128 a[{16*i+4*j}:{16*i+4*j+3}], v{118+j} offset:{(i&1)*4096}')
    def read_v(p):
        i = p - 16
        for hf in range(2):
            r = 64 + 4 * i + 2 * hf
            A(f'ds_read_b64_tr_b16 a[{r}:{r+1}], v{122+hf} offset:{((p//4)&1)*4096 + (p%4)*1024}')
    if not late47:
        for p in range(burst, 8): piece(p)
    if diag: xstamp(40)
    A.wait_vm('ep')
    if diag: xstamp(41)
    A(f'v_and_b32 v113, 0xffff0000, v68\nv_lshlrev_b32 v112, 16, v68')
    A(f'v_readfirstlane_b32 {sTAG}, v69\ns_add_u32 {sTAG}, {sTAG}, 1')
    A('v_dot2_f32_bf16 v78, v72, v44, 0\nv_dot2_f32_bf16 v79, v72, v72, 0')
    for k in range(73, 76): A(f'v_dot2_f32_bf16 v78, v{k}, v44, v78\nv_dot2_f32_bf16 v79, v{k}, v{k}, v79')
    for m in ('quad_perm:[1,0,3,2]', 'quad_perm:[2,3,0,1]', 'row_half_mirror', 'row_mirror'):
        A(f'v_add_f32_dpp v78, v78, v78 {m} {DPP}\nv_add_f32_dpp v79, v79, v79 {m} {DPP}')
    for sw in ('v_permlane16_swap_b32', 'v_permlane32_swap_b32'):
        A(f'v_mov_b32 v76, v78\nv_mov_b32 v77, v79\n{sw} v78, v76\n{sw} v79, v77\nv_add_f32 v78, v78, v76\nv_add_f32 v79, v79, v77')
    c2 = QSCALE * QSCALE
    A(f'v_mov_b32 v75, {f32(1e-5/c2)}\nv_mul_f32 v74, v78, v78\nv_fmac_f32 v75, {f32(1/(512*c2))}, v79\nv_fmac_f32 v75, {f32(-1/(512*512*c2))}, v74\nv_max_f32 v75, {f32(1e-5/c2)}, v75\nv_rsq_f32 v74, v75')
    A(f'v_mul_f32 v78, {f32(-1/512)}, v78\nv_add_f32 v72, v112, v78\nv_add_f32 v73, v113, v78\nv_mul_f32 v72, v72, v74\nv_mul_f32 v73, v73, v74\nv_cvt_pk_bf16_f32 v72, v72, v73\nds_write_b32 {vXW}, v72')
    if late47:
        for p in range(burst, 8): piece(p)
    if diag: xstamp(42)
    A.wait_vm('wq')
    if diag: xstamp(43)
    if bar_after_k0:
        A.wait_vm('p3')
        read_k(0)
        A('s_waitcnt lgkmcnt(0)')
        for p in range(8, 12): piece(p)
    A('s_waitcnt lgkmcnt(0)')
    if 'B' not in abl: A('s_barrier')
    stamp()

    def read_wq():
        for tl in range(2):
            for j in range(2):
                for u in range(2):
                    r = 48 + 8 * tl + 4 * j + 2 * u
                    A(f'ds_read_b64_tr_b16 v[{r}:{r+1}], {vWQr} offset:{8*tl+8192*j+1024*u}')
    def read_gu():
        for tl in range(2):
            for j in range(2):
                for u in range(2):
                    r = 48 + 8 * tl + 4 * j + 2 * u
                    A(f'ds_read_b64_tr_b16 v[{r}:{r+1}], {vWr} offset:{8192*tl+4096*j+512*u}')
    def read_wd():
        for j in range(2):
            for u in range(2):
                A(f'ds_read_b64_tr_b16 v[{48+4*j+2*u}:{49+4*j+2*u}], {vWr} offset:{16384+4096*j+512*u}')
    def read_wo():
        for j in range(4):
            for u in range(2):
                A(f'ds_read_b64_tr_b16 v[{48+4*j+2*u}:{49+4*j+2*u}], {vWOr} offset:{2048*j+256*u}')
    def xs_reads(): A(f'ds_read_b128 v[80:83], {vXR}\nds_read_b128 v[84:87], {vXR} offset:64')
    def matvec(vst, mode, late_w=None, soff='0'):
        if mode == 'q0': xs_reads()
        if late_w: late_w()
        A('s_waitcnt lgkmcnt(0)' if late_w else 's_waitcnt lgkmcnt(1)')
        A(f'{M16} v[96:99], v[48:51], v[80:83], 0\n{M16} v[104:107], v[56:59], v[80:83], 0')
        if not late_w: A('s_waitcnt lgkmcnt(0)')
        A(f'{M16} v[96:99], v[52:55], v[84:87], v[96:99]\n{M16} v[104:107], v[60:63], v[84:87], v[104:107]')
        if mode == 'plain':
            A(f's_cmp_eq_u32 {sFAST}, 1')
            A('v_cvt_pk_bf16_f32 v96, v96, v97\nv_cvt_pk_bf16_f32 v97, v98, v99\nv_cvt_pk_bf16_f32 v98, v104, v105\nv_cvt_pk_bf16_f32 v99, v106, v107')
            lstore(f'buffer_store_dwordx4 v[96:99], {vst}, {WS}, {soff} offen', cmp=False)
            return
        A(f'v_mov_b32 v102, {sTAG}\nv_mov_b32 v103, s64')
        A(f'v_cvt_pk_bf16_f32 v100, v96, v97\nv_cvt_pk_bf16_f32 v101, v98, v99\nv_cvt_pk_bf16_f32 v104, v104, v105\nv_cvt_pk_bf16_f32 v105, v106, v107')
        A(f'v_mov_b32 v106, {sTAG}\nv_mov_b32 v107, s64')
        if mode == 'q0':
            A.vmop(f'buffer_store_dwordx4 v[100:103], {vst}, {WS}, 0 offen', 'st')
            A.vmop(f'buffer_store_dwordx4 v[104:107], {vst}, {WS}, 0 offen offset:256', 'st')
        else:
            lstore(f'buffer_store_dwordx4 v[100:103], {vst}, {WS}, 0 offen\nbuffer_store_dwordx4 v[104:107], {vst}, {WS}, 0 offen offset:256')
    def slice_stats(sst):
        l = lab('st')
        A(f's_cmp_lg_u32 {sW}, 4\ns_cbranch_scc1 {l}')
        A('s_waitcnt lgkmcnt(1)')
        A(f'{M16} v[104:107], v[80:83], v[80:83], 0\ns_waitcnt lgkmcnt(0)\n{M16} v[104:107], v[84:87], v[84:87], v[104:107]')
        def pick():
            A('v_cndmask_b32 v104, v104, v105, s[80:81]\nv_cndmask_b32 v106, v106, v107, s[80:81]\nv_cndmask_b32 v104, v104, v106, s[82:83]')
        A('s_mov_b64 s[80:81], 10\ns_mov_b64 s[82:83], 12')
        A(f's_cmp_eq_u32 {sFAST}, 1')
        pick()
        lstore(f'buffer_store_dword v104, {vSSt}, {WS}, {sst} offen', cmp=False)
        A.vm.pop()
        A(f'{l}:')

    def issue_g1(dst, voff, sbase, tag, step=4096):
        A.vmop(f'buffer_load_dwordx4 v[{dst}:{dst+3}], {voff}, {WS}, {sbase} offen sc1', tag)
        if step >= 4096:
            A(f's_add_u32 {t1}, {sbase}, {step}')
            A.vmop(f'buffer_load_dwordx4 v[{dst+4}:{dst+7}], {voff}, {WS}, {t1} offen sc1', tag)
        else:
            A.vmop(f'buffer_load_dwordx4 v[{dst+4}:{dst+7}], {voff}, {WS}, {sbase} offen offset:{step} sc1', tag)
    def check_empty(regs):
        regs = list(regs)
        A(f'v_max3_u32 {vTMP}, v{regs[0]}, v{regs[1]}, v{regs[2]}'); rest = regs[3:]
        if len(rest) >= 5:
            A(f'v_max3_u32 {vTMP2}, v{rest[0]}, v{rest[1]}, v{rest[2]}'); rest = rest[3:]
            tg = 0
            while len(rest) >= 2:
                d = (vTMP, vTMP2)[tg]; A(f'v_max3_u32 {d}, {d}, v{rest[0]}, v{rest[1]}'); rest = rest[2:]; tg ^= 1
            if rest: A(f'v_max3_u32 {vTMP}, {vTMP}, {vTMP2}, v{rest[0]}')
            else: A(f'v_max_u32 {vTMP}, {vTMP}, {vTMP2}')
        else:
            while len(rest) >= 2:
                A(f'v_max3_u32 {vTMP}, {vTMP}, v{rest[0]}, v{rest[1]}'); rest = rest[2:]
            if rest: A(f'v_max_u32 {vTMP}, {vTMP}, v{rest[0]}')
        A(f'v_cmp_eq_u32 vcc, -1, {vTMP}')
    def poll(issue, regs, spec=None, mark=None):
        r, d = lab('retry'), lab('got')
        A(f'{r}:')
        issue()
        A.wait_vm()
        if mark: A(f'{mark}:')
        if spec: spec()
        check_empty(regs)
        tl = lab('again')
        A(f's_cbranch_vccnz {tl}\n{d}:')
        tails.append(f'{tl}:\n' + (f's_sleep {backoff}\n' if backoff else '') + f's_sub_u32 {sTO}, {sTO}, 1\ns_cbranch_scc0 {r}\ns_mov_b32 {sTO}, 0\ns_branch {d}')
    def poll2(issue, nld, regs, spec):
        d, sb, sa = lab('got'), lab('setb'), lab('seta')
        issue(0)
        if dstep: A(f's_sleep {dstep}')
        issue(1)
        A(f'{sa}:\ns_waitcnt vmcnt({nld})')
        spec(0); check_empty(regs(0))
        A(f's_cbranch_vccnz {sb}\n{d}:')
        keepL, A.L = A.L, []
        A(f'{sb}:'); issue(0)
        A(f's_waitcnt vmcnt({nld})\ns_nop 1')
        spec(1); check_empty(regs(1))
        A(f's_nop 1\ns_cbranch_vccz {d}')
        issue(1)
        A(f's_sub_u32 {sTO}, {sTO}, 1\ns_cbranch_scc0 {sa}\ns_mov_b32 {sTO}, 0\ns_branch {d}')
        tails.append('\n'.join(A.L)); A.L = keepL
        A.vm = []
    def ln_poll_nan(sdata, sstat, selop, cs, scale):
        c2 = scale * scale
        def iss(k):
            issue_g1(64 + 16 * k, vG1, sdata, 'x')
            A.vmop(f'buffer_load_dwordx2 v[{72+16*k}:{73+16*k}], {vSt8}, {WS}, {sstat} offen sc1', 'x')
        def work(k):
            b = 64 + 16 * k
            A(f'{M16} v[96:99], {selop}, v[{b}:{b+3}], 0\n{M16} v[96:99], {selop}, v[{b+4}:{b+7}], v[96:99]')
            A(f'v_add_f32_dpp v78, v{b+8}, v{b+8} quad_perm:[1,0,3,2] {DPP}\nv_add_f32_dpp v79, v{b+9}, v{b+9} quad_perm:[1,0,3,2] {DPP}\nv_mov_b32 v75, {f32(1e-5/c2)}')
            A(f'v_add_f32_dpp v78, v78, v78 quad_perm:[2,3,0,1] {DPP}\nv_add_f32_dpp v79, v79, v79 quad_perm:[2,3,0,1] {DPP}')
            A(f'v_add_f32_dpp v78, v78, v78 row_half_mirror {DPP}\nv_add_f32_dpp v79, v79, v79 row_half_mirror {DPP}')
            A(f'v_mul_f32 v74, v78, v78\nv_fmac_f32 v75, {f32(1/(512*c2))}, v79\nv_fmac_f32 v75, {f32(-1/(512*512*c2))}, v74')
            A(f'v_pk_fma_f32 v[96:97], v[78:79], {cs}, v[96:97] op_sel_hi:[0,1,1] neg_lo:[1,0,0] neg_hi:[1,0,0]')
            A(f'v_max_f32 v76, {f32(1e-5/c2)}, v75\nv_rsq_f32 v74, v76\nv_cmp_u_f32 vcc, v96, v75')
        d, sb, sa = lab('got'), lab('setb'), lab('seta')
        iss(0)
        if dstep: A(f's_sleep {dstep}')
        iss(1)
        A(f'{sa}:\ns_waitcnt vmcnt(3)')
        work(0)
        A(f's_cbranch_vccnz {sb}\n{d}:')
        keepL, A.L = A.L, []
        A(f'{sb}:'); iss(0)
        A('s_waitcnt vmcnt(3)')
        work(1)
        A(f's_cbranch_vccz {d}'); iss(1)
        A(f's_sub_u32 {sTO}, {sTO}, 1\ns_cbranch_scc0 {sa}\ns_mov_b32 {sTO}, 0\ns_branch {d}')
        tails.append('\n'.join(A.L)); A.L = keepL
        A.vm = []
        A('v_pk_mul_f32 v[96:97], v[96:97], v[74:75] op_sel_hi:[1,0]')
    def ln_poll2(sdata, sstat, selop):
        def iss(k):
            issue_g1(64 + 16 * k, vG1, sdata, 'x')
            A.vmop(f'buffer_load_dwordx2 v[{72+16*k}:{73+16*k}], {vSt8}, {WS}, {sstat} offen sc1', 'x')
        def spec(k):
            b = 64 + 16 * k
            A(f'{M16} v[96:99], {selop}, v[{b}:{b+3}], 0\n{M16} v[96:99], {selop}, v[{b+4}:{b+7}], v[96:99]')
            A(f'v_add_f32_dpp v78, v{b+8}, v{b+8} quad_perm:[1,0,3,2] {DPP}\nv_add_f32_dpp v79, v{b+9}, v{b+9} quad_perm:[1,0,3,2] {DPP}')
        poll2(iss, 3, lambda k: range(64 + 16 * k, 74 + 16 * k), spec)
    def issue_q(first):
        if not first:
            issue_g1(64, vG1, sQg, 'q')
            A.vmop(f'buffer_load_dwordx2 v[72:73], {vSt8}, {WS}, {sQSg} offen sc1', 'q')
            return
        issue_tagged(f's_mov_b32 {t1}, s101')
    def issue_tagged(base, dst=80, voff=None, kstep=8192, hstep=256):
        if voff is None:
            A(f'v_and_b32 {vTMP2}, 0xf0, {vG1}\nv_lshlrev_b32 {vTMP}, 1, {vG1}\nv_sub_u32 {vTMP}, {vTMP}, {vTMP2}')
        else: A(voff)
        A(base + f'\ns_add_u32 {t2}, {t1}, {kstep}')
        for k in range(2):
            for hh in range(2):
                r = dst[2 * k + hh] if isinstance(dst, tuple) else dst + 8 * k + 4 * hh
                A.vmop(f'buffer_load_dwordx4 v[{r}:{r+3}], {vTMP}, {WS}, {(t1, t2)[k]} offen offset:{hstep*hh} sc1', 'q')
    def issue_o0():
        issue_tagged(f's_lshl_b32 {t1}, {sG}, 2\ns_add_u32 {t1}, {t1}, {sHI}\ns_lshl_b32 {t0}, {t1}, 2\ns_lshl_b32 {t1}, {t1}, 14\ns_add_u32 {t1}, {t1}, {TOP}', o0dst[0])
        A(f's_add_u32 {t0}, {t0}, {sW}\ns_lshl_b32 {t0}, {t0}, 7\ns_add_u32 {t0}, {t0}, {TML}\nv_lshlrev_b32 {vTMP2}, 1, {vML2}')
        m_ = o0ml[0]
        A.vmop(f'buffer_load_dwordx4 v[{m_}:{m_+3}], {vTMP2}, {WS}, {t0} offen sc1', 'q')
        A.vmop(f'buffer_load_dwordx4 v[{m_+4}:{m_+7}], {vTMP2}, {WS}, {t0} offen offset:64 sc1', 'q')
    o0dst = [80]; o0ml = [64]
    def check_words(words, sval):
        w = list(words)
        A(f'v_xor_b32 {vTMP}, {sval}, v{w[0]}')
        for x in w[1:]: A(f'v_xor_b32 {vTMP2}, {sval}, v{x}\nv_or_b32 {vTMP}, {vTMP}, {vTMP2}')
        A(f'v_cmp_ne_u32 vcc, 0, {vTMP}')
    def check_tags(words=(82, 86, 90, 94)): check_words(words, sTAG)
    def tagged_sum(selbase=32, src=80, acc=96, selk=0):
        for n_, (k, hh) in enumerate(((0, 0), (0, 1), (1, 0), (1, 1))):
            r = src[2 * k + hh] if isinstance(src, tuple) else src + 8 * k + 4 * hh
            sb = selbase + selk * k + 2 * hh
            c = '0' if n_ == 0 else f'v[{acc}:{acc+3}]'
            A(f'v_mfma_f32_16x16x16_bf16 v[{acc}:{acc+3}], v[{sb}:{sb+1}], v[{r}:{r+1}], {c}')
    def q0_finish():
        tagged_sum()
        check_words((83, 87, 91, 95), 's64')
        A(f's_cmp_eq_u64 vcc, 0\ns_cselect_b32 {sGOK}, 1, 2')
        A(f'v_cvt_pk_bf16_f32 v96, v96, v97\nds_write_b32 {vQW}, v96')
    def tagged_poll(issue, words=(82, 86, 90, 94), spec=None, back=0):
        rq, gq = lab('rq'), lab('gq')
        A(f'{rq}:')
        issue(); A.wait_vm()
        if spec: spec()
        check_tags(words)
        A(f's_cbranch_vccz {gq}')
        if back: A(f's_sleep {back}')
        A(f's_sub_u32 {sTO}, {sTO}, 1\ns_cbranch_scc0 {rq}\ns_mov_b32 {sTO}, 0\n{gq}:')
    CQ = (48, 52, 56, 60)
    def issue_csq(): issue_tagged(f's_lshl_b32 {t1}, {sG}, 14\ns_add_u32 {t1}, {t1}, {TQC}', CQ)
    def finish_csq():
        ok_ = lab('cq')
        check_tags(tuple(r + 2 for r in CQ))
        A(f's_cbranch_vccz {ok_}')
        tagged_poll(issue_csq, tuple(r + 2 for r in CQ))
        A(f'{ok_}:')
        tagged_sum(32, CQ, 64)
        A(f's_mov_b32 {t2}, {f32(1/512)}\nv_pk_mul_f32 {CSQ}, v[64:65], s[56:57] op_sel_hi:[1,0]')
    QREGS = list(range(64, 74)); QREGS1 = QREGS + list(range(80, 88))
    def ln_spec(selop, first):
        def f():
            A(f'{M16} v[96:99], {selop}, v[64:67], 0\n{M16} v[96:99], {selop}, v[68:71], v[96:99]')
            if first:
                A(f'{M16} v[100:103], {selop}, v[80:83], 0\n{M16} v[100:103], {selop}, v[84:87], v[100:103]')
            A(f'v_add_f32_dpp v78, v72, v72 quad_perm:[1,0,3,2] {DPP}\nv_add_f32_dpp v79, v73, v73 quad_perm:[1,0,3,2] {DPP}')
        return f
    def ln_finish(cs, scale, first, csrc=100):
        for m in ('quad_perm:[2,3,0,1]', 'row_half_mirror'):
            A(f'v_add_f32_dpp v78, v78, v78 {m} {DPP}\nv_add_f32_dpp v79, v79, v79 {m} {DPP}')
            if m.startswith('quad'): A(f'v_mov_b32 v75, {f32(1e-5/(scale*scale))}')
        c2 = scale * scale
        A(f'v_mul_f32 v74, v78, v78\nv_fmac_f32 v75, {f32(1/(512*c2))}, v79')
        if first:
            A(f's_mov_b32 {t2}, {f32(1/512)}\nv_pk_mul_f32 {cs}, v[{csrc}:{csrc+1}], s[56:57] op_sel_hi:[1,0]')
        A(f'v_fmac_f32 v75, {f32(-1/(512*512*c2))}, v74\nv_max_f32 v75, {f32(1e-5/c2)}, v75\nv_rsq_f32 v74, v75')
        A(f'v_pk_fma_f32 v[96:97], v[78:79], {cs}, v[96:97] op_sel_hi:[0,1,1] neg_lo:[1,0,0] neg_hi:[1,0,0]')
        A(f'v_pk_mul_f32 v[96:97], v[96:97], v[74:75] op_sel_hi:[1,0]')
    def q_finish(first):
        ln_finish(CSQ, QSCALE, first)
        A(f'v_cvt_pk_bf16_f32 v96, v96, v97\nds_write_b32 {vQW}, v96')

    A('; ---- first q projection, published with plain stores and this CU\'s XCC id')
    save = list(A.vm)
    with lowwaves():
        read_wq()
        A('s_waitcnt lgkmcnt(0)')
        if 'Q' not in abl: matvec('v109', 'q0')
    stamp()

    def issue_wo():
        A(f's_lshl_b32 {t1}, {sG}, 9\ns_lshl_b32 {t2}, {sHI}, 7\ns_add_u32 {t1}, {t1}, {t2}\ns_lshl_b32 {t2}, {sW}, 4\ns_add_u32 {t1}, {t1}, {t2}\ns_lshl_b32 {t1}, {t1}, 10\ns_lshl_b32 {t2}, {sLO}, 7\ns_add_u32 {t1}, {t1}, {t2}')
        A(f's_lshl_b32 {t2}, {sW}, 11\ns_add_u32 m0, {t2}, {L_WO}')
        A.vmop(f'buffer_load_dwordx4 v124, {WO}, {t1} offen nt lds', 'wo')
        A(f's_add_u32 {t1}, {t1}, 8192\ns_add_u32 m0, m0, 1024')
        A.vmop(f'buffer_load_dwordx4 v124, {WO}, {t1} offen nt lds', 'wo')

    def issue_ffn(dw=0, track=False, parts='gud'):
        vm_ = (lambda x: A.vmop(x, 'ffn')) if track else A
        A(f's_add_u32 {t0}, {sW}, {dw}')
        if 'g' in parts:
            A(f's_lshl_b32 {t1}, {sLO}, 6\ns_lshl_b32 {t2}, {t0}, 3\ns_add_u32 {t1}, {t1}, {t2}\ns_mul_i32 {t1}, {t1}, 3584\ns_lshl_b32 {t2}, {g2}, 7\ns_add_u32 {t1}, {t1}, {t2}')
        A(f's_lshl_b32 {t2}, {t0}, 10\ns_add_u32 m0, {t2}, {L_WG}')
        if 'g' in parts:
            vm_(f'buffer_load_dwordx4 v126, {WG}, {t1} offen nt lds')
            A(f's_add_u32 m0, {t2}, {L_WU}')
            vm_(f'buffer_load_dwordx4 v126, {WU}, {t1} offen nt lds')
        if 'd' not in parts: return
        A(f's_lshl_b32 {t1}, {g2}, 6\ns_lshl_b32 {t3}, {t0}, 3\ns_add_u32 {t1}, {t1}, {t3}\ns_lshl_b32 {t1}, {t1}, 10\ns_lshl_b32 {t3}, {sLO}, 7\ns_add_u32 {t1}, {t1}, {t3}\ns_add_u32 m0, {t2}, {L_WD}')
        vm_(f'buffer_load_dwordx4 v127, {WD}, {t1} offen nt lds')
    wait_of = {}
    d = 6
    for p_ in range(12, 32):
        tgt = depth if p_ < deep_from else deep
        need_d = p_ - tgt
        if p_ in (12, 16, 20): need_d = max(need_d, p_ - 5)
        if need_d > d: wait_of[p_] = list(range(d + 1, need_d + 1)); d = need_d
        else: wait_of[p_] = []
    last_read = d
    def step(p):
        for d_ in wait_of[p]:
            A.wait_vm(f'p{d_}')
            if d_ < 16:
                if d_ % 4 == 3: read_k(d_ // 4); A('s_waitcnt lgkmcnt(0)')
            else:
                A('s_waitcnt lgkmcnt(0)')
                read_v(d_)
            if diag and d_ in (7, 11, 15, 19, 23): xstamp(45 + (d_ - 7) // 4)
        if ffn_at and p == ffn_at and len(tail_parts) < 3: issue_ffn(0, True, ''.join(c_ for c_ in 'gud' if c_ not in tail_parts))
        if p == wo_at: issue_wo()
        piece(p)
    hi_l, join_all, flag_l = lab('shi'), lab('sj'), lab('fl')
    def lead_in():
        if not bar_after_k0:
            A.wait_vm('p3')
            if diag: xstamp(44)
            read_k(0); A('s_waitcnt lgkmcnt(0)')
            for pp in range(8, 12): piece(pp)
    lowcode = [True]
    def steps(lo_, hi_):
        for pp in range(lo_, hi_):
            if pp == touch_o and lowcode[0]:
                n_ = len(A.vm); o0dst[0] = 48; issue_o0(); o0dst[0] = 80
                A.vm[n_:] = ['touch'] * (len(A.vm) - n_)
            if pp == csq_at and lowcode[0] and 'S' not in abl:
                n_ = len(A.vm); issue_csq(); A.vm[n_:] = ['csq'] * (len(A.vm) - n_)
            step(pp)
    A(f's_cmp_ge_u32 {sW}, 4\ns_cbranch_scc1 {hi_l}')
    lead_in()
    p = 12
    while p < p_sc:
        if p in rides:
            assert p + 5 <= p_sc
            skip, join = lab('noq'), lab('jn')
            saved = list(A.vm)
            A(f's_cmp_lg_u32 {sGOK}, 0\ns_cbranch_scc1 {skip}')
            issue_q(True)
            steps(p, p + 5)
            if 'q' in A.vm: A.wait_vm('q')
            check_tags()
            nq = lab('nq')
            A(f's_cbranch_vccnz {nq}')
            q0_finish()
            A(f'{nq}:\ns_branch {join}\n{skip}:')
            after_q = list(A.vm)
            A.vm = saved
            steps(p, p + 5)
            extra = len(A.vm) - len(after_q)
            assert A.vm[extra:] == after_q, (A.vm, after_q)
            A.vm = after_q if extra <= 0 else A.vm
            A(f'{join}:')
            p += 5
        else:
            steps(p, p + 1); p += 1
    saved = list(A.vm)
    def put_status():
        A(f's_lshl_b32 {t1}, {sW}, 2\ns_add_u32 {t1}, {t1}, {L_ST}\nv_mov_b32 {vTMP}, {t1}\nv_mov_b32 {vTMP2}, {sGOK}\nds_write_b32 {vTMP}, {vTMP2}')
    def get_status():
        A(f'v_mov_b32 {vTMP}, {L_ST}\nds_read_b128 v[72:75], {vTMP}\ns_waitcnt lgkmcnt(0)')
        check_words((72, 73, 74, 75), '1')
        A('s_cmp_eq_u64 vcc, 0')
    put_status()
    A(f's_branch {join_all}\n{hi_l}:')
    A.vm = save; lowcode[0] = False
    lead_in()
    steps(12, p_sc)
    saved = list(A.vm)
    A(f'{join_all}:')
    stamp()
    A('s_waitcnt lgkmcnt(0)\ns_barrier')
    get_status()
    okq = lab('okq')
    A(f's_cbranch_scc1 {okq}')
    if not abl:
        with lowwaves():
            A(f'buffer_store_dwordx4 v[100:103], v109, {WS}, 0 offen sc1\nbuffer_store_dwordx4 v[104:107], v109, {WS}, 0 offen offset:256 sc1')
            dn = lab('qdone')
            A(f's_cmp_lg_u32 {sGOK}, 0\ns_cbranch_scc1 {dn}')
            tagged_poll(lambda: issue_q(True))
            q0_finish()
            A(f'{dn}:')
        A('s_barrier')
        with lowwaves(): put_status()
        A('s_waitcnt lgkmcnt(0)\ns_barrier')
        get_status()
    A(f'{okq}:\ns_cselect_b32 {sFAST}, 1, 0')
    A.vm = saved
    def issue_ffn_any(dw, parts=None):
        if dw & 1: A('v_xor_b32 v126, 64, v126\nv_xor_b32 v127, 64, v127')
        issue_ffn(dw, False, parts or ''.join(c_ for c_ in ('gu' if wd_after else 'gud') if c_ not in tail_parts + mid_parts))
        if dw & 1: A('v_xor_b32 v126, 64, v126\nv_xor_b32 v127, 64, v127')
    def first_only(f):
        def g():
            l, bk = lab('fo'), lab('bk')
            A(f's_cmp_eq_u32 {sLIDX}, 0\ns_cbranch_scc1 {l}\n{bk}:')
            keepL, A.L = A.L, []
            A(f'{l}:'); f(); A(f's_branch {bk}')
            tails.append('\n'.join(A.L)); A.L = keepL
        return g
    def variant(first, later):
        l, bk = lab('v0'), lab('vj')
        A(f's_cmp_eq_u32 {sLIDX}, 0\ns_cbranch_scc1 {l}')
        n0 = nts[0]
        later()
        A(f'{bk}:')
        n1, nts[0] = nts[0], n0
        keepL, A.L = A.L, []
        A(f'{l}:'); first(); A(f's_branch {bk}')
        tails.append('\n'.join(A.L)); A.L = keepL
        assert nts[0] == n1
    def later_only(f):
        l = lab('lo'); A(f's_cmp_eq_u32 {sLIDX}, 0\ns_cbranch_scc1 {l}'); f(); A(f'{l}:')
    def scores(bar=True):
        if bar: A('s_waitcnt lgkmcnt(0)\ns_barrier')
        for j in range(4): A(f'ds_read_b128 v[{64+4*j}:{67+4*j}], {vBR320} offset:{64*j}')
        def sel_t(t, rs):
            for r in rs: A(f'v_mov_b32_dpp v{80+r}, v{80+4*t+r} quad_perm:[0,1,2,3] row_mask:0xf bank_mask:{1<<t:#x}')
        if tmajor:
            for t in range(4):
                for j in range(4):
                    if t == 0: A(f's_waitcnt lgkmcnt({3-j})')
                    c = '0' if j == 0 else f'v[{80+4*t}:{83+4*t}]'
                    A(f'{M16} v[{80+4*t}:{83+4*t}], a[{16*t+4*j}:{16*t+4*j+3}], v[{64+4*j}:{67+4*j}], {c}')
            sel_t(1, range(4)); sel_t(2, range(4)); sel_t(3, range(4))
        else:
            for j in range(4):
                A(f's_waitcnt lgkmcnt({3-j})')
                for t in range(4):
                    c = '0' if j == 0 else f'v[{80+4*t}:{83+4*t}]'
                    A(f'{M16} v[{80+4*t}:{83+4*t}], a[{16*t+4*j}:{16*t+4*j+3}], v[{64+4*j}:{67+4*j}], {c}')
            for t in range(1, 4): sel_t(t, range(4))
        A('v_max3_f32 v84, v80, v81, v82\nv_max_f32 v84, v84, v83')
        A(f'v_max_f32_dpp v84, v84, v84 row_ror:4 {DPP}')
        A(f'v_max_f32_dpp v84, v84, v84 row_ror:8 {DPP}')
        A('v_mov_b32 v85, v84\nv_permlane16_swap_b32 v84, v85\nv_max_f32 v84, v84, v85')
        A('v_mov_b32 v85, v84\nv_permlane32_swap_b32 v84, v85\nv_max_f32 v84, v84, v85')
        A('v_pk_add_f32 v[80:81], v[80:81], v[84:85] op_sel_hi:[1,0] neg_lo:[0,1] neg_hi:[0,1]')
        A('v_pk_add_f32 v[82:83], v[82:83], v[84:85] op_sel_hi:[1,0] neg_lo:[0,1] neg_hi:[0,1]')
        for r in range(4): A(f'v_exp_f32 v{80+r}, v{80+r}')
        A('v_cvt_pk_bf16_f32 v86, v80, v81\nv_cvt_pk_bf16_f32 v87, v82, v83')
        A(f'v_mfma_f32_16x16x16_bf16 v[88:91], {ONES}, v[86:87], 0')
    def pv(i):
        for hf in range(2):
            acc = 96 + 8 * (i & 1) + 4 * hf
            c = '0' if i < 2 else f'v[{acc}:{acc+3}]'
            A(f'v_mfma_f32_4x4x4_16b_bf16 v[{acc}:{acc+3}], v[86:87], a[{64+4*i+2*hf}:{65+4*i+2*hf}], {c} cbsz:4 abid:{4*(i&3)+(i>>2)}')
    def lsum():
        A(f'v_add_f32_dpp v85, v88, v88 row_ror:4 {DPP}')
        A(f'v_add_f32_dpp v85, v85, v85 row_ror:8 {DPP}')
        A(f's_mov_b64 exec, 15\nds_write_b64 {vRMW}, v[84:85]')
        full_exec()
    def combine(tagged=False, other=None):
        for h in range(4):
            A(f'v_add_f32 v{64+2*h}, v{96+h}, v{104+h}\nv_add_f32 v{65+2*h}, v{100+h}, v{108+h}')
            if h & 1: A(f'ds_write_b128 {vROW}, v[{62+2*h}:{65+2*h}] offset:{512*(h-1)}')
        def ml_tagged():
            A(f'v_mov_b32 v76, {sTAG}\nv_mov_b32 v77, {sTAG}')
            A(f's_lshl_b32 {t1}, {sG}, 2\ns_add_u32 {t1}, {t1}, {sW}\ns_lshl_b32 {t1}, {t1}, 2\ns_add_u32 {t1}, {t1}, {sHI}\ns_lshl_b32 {t1}, {t1}, 3\ns_add_u32 {t1}, {t1}, {sLO}\ns_lshl_b32 {t1}, {t1}, 4\ns_add_u32 {t1}, {t1}, {TML}')
            lstore(f'buffer_store_dwordx4 v[74:77], {vMLst}, {WS}, {t1} offen')
        def ml_plain(): lstore(f'buffer_store_dwordx2 v[74:75], {vMLst}, {WS}, {sMLst} offen')
        with lowwaves():
            r_, d_, t_ = lab('rm'), lab('rd'), lab('rt')
            A(f'{r_}:\nds_read_b64 v[72:73], {vRMR}\ns_waitcnt lgkmcnt(0)\nv_cmp_eq_u32 vcc, -1, v73\ns_cbranch_vccnz {t_}\n{d_}:')
            tails.append(f'{t_}:\ns_sub_u32 {sTO}, {sTO}, 1\ns_cbranch_scc0 {r_}\ns_mov_b32 {sTO}, 0\ns_branch {d_}')
            A(f'v_max_f32_dpp v74, v72, v72 quad_perm:[1,0,3,2] {DPP}')
            A(f'v_max_f32_dpp v74, v74, v74 quad_perm:[2,3,0,1] {DPP}')
            A(f'v_max_f32_dpp v74, v74, v74 row_half_mirror {DPP}')
            A('v_sub_f32 v72, v72, v74\nv_exp_f32 v72, v72\nv_mul_f32 v75, v73, v72')
            k = 0
            for m in ('quad_perm:[1,0,3,2]', 'quad_perm:[2,3,0,1]', 'row_half_mirror'):
                A(f'v_readlane_b32 s{80+k}, v72, {k}\nv_readlane_b32 s{81+k}, v72, {k+1}'); k += 2
                A(f'v_add_f32_dpp v75, v75, v75 {m} {DPP}')
            variant(ml_tagged, ml_plain)
            A('v_readlane_b32 s86, v72, 6\nv_readlane_b32 s87, v72, 7')
        with lowwaves(other, 's_waitcnt lgkmcnt(0)\ns_barrier'):
            for k in range(8): A(f'ds_read_b64 v[{80+2*k}:{81+2*k}], {vROR} offset:{8192*k}')
            for k in range(8):
                sp = f's[{80+(k&~1)}:{81+(k&~1)}]'
                o = 'op_sel_hi:[1,0' if (k & 1) == 0 else 'op_sel:[0,1'
                d = 64 + 2 * (k & 1)
                if k % 2 == 0: A(f's_waitcnt lgkmcnt({6-k})')
                if k < 2: A(f'v_pk_mul_f32 v[{d}:{d+1}], v[{80+2*k}:{81+2*k}], {sp} {o}]')
                else: A(f'v_pk_fma_f32 v[{d}:{d+1}], v[{80+2*k}:{81+2*k}], {sp}, v[{d}:{d+1}] {o},{1 if (k&1)==0 else 0}]')
            A('v_pk_add_f32 v[64:65], v[64:65], v[66:67]\nv_cvt_pk_bf16_f32 v64, v64, v65')
            def pub_tagged():
                A(f'v_mov_b32 v66, {sTAG}\nv_mov_b32 v67, {sTAG}\nv_mov_b32_dpp v65, v64 quad_perm:[1,1,3,3] {DPP}')
                lstore(f'buffer_store_dwordx4 v[64:67], v118, {WS}, 0 offen')
                A(f'v_mov_b32 v76, -1\nv_mov_b32 v77, -1\nds_write_b64 {vRMR}, v[76:77]')
            def pub_plain(): lstore(f'buffer_store_dword v64, {vL4}, {WS}, {sOPst} offen')
            variant(pub_tagged, pub_plain)

    A('v_mov_b32 v118, v110\nv_mov_b32 v114, 0\ns_mov_b32 s80, 0\ns_mov_b32 s81, 0\ns_mov_b32 s82, 0\ns_mov_b32 s83, 0\ns_mov_b32 s84, 0\ns_mov_b32 s85, 0')
    A(f's_mul_i32 {t1}, {sC}, 1312\ns_add_u32 {t1}, {t1}, {sGBASE}\ns_add_u32 {t1}, {t1}, {bGP - 7168}\ns_sub_u32 {t2}, {sXst}, 7168')
    A(f'v_add_u32 v119, {t1}, v115\nv_add_u32 v120, {t2}, v115\nv_add_u32 {vTMP}, {oXB - oXA - 512}, v120\nv_cmp_lt_u32 vcc, 31, {vL}'); sel('v120', 'v120', vTMP)
    A(f'v_add_u32 v121, 1024, v119\nv_mov_b32 {vTMP}, {OOB}\nv_cmp_lt_u32 vcc, 17, {vL}'); sel('v121', 'v121', vTMP)
    A(f'v_cmp_gt_u32 vcc, 7168, v115'); sel('v119', 'v119', vTMP); sel('v120', 'v120', vTMP); sel('v121', 'v121', vTMP)
    def clean_urgent():
        A('v_mov_b32 v92, -1\nv_mov_b32 v93, -1\nv_mov_b32 v94, -1\nv_mov_b32 v95, -1')
        A.vmop(f'buffer_store_dwordx4 v[92:95], v119, {WS}, 0 offen sc1', 'cu')
        A.vmop(f'buffer_store_dwordx4 v[92:95], v120, {WS}, 0 offen sc1', 'cu')
        A.vmop(f'buffer_store_dwordx4 v[92:95], v121, {WS}, 0 offen sc1', 'cu')
    if share: A('s_branch L_scores\nL_scored:')
    else: scores(False)
    d0 = max([6] + [d_ for p_ in range(12, p_sc) for d_ in wait_of[p_]])
    assert d0 >= 17
    for i in range(d0 - 15): pv(i)
    lsum()
    stamp()
    pend = [None]; csq_done = [False]
    def landed(d_):
        A.wait_vm(f'p{d_}')
        if pend[0] is not None: A('s_waitcnt lgkmcnt(0)')
        read_v(d_)
        if pend[0] is not None: pv(pend[0])
        pend[0] = d_ - 16
        if d_ >= csq_at and not csq_done[0] and not abl:
            csq_done[0] = True
            keep_vm = list(A.vm)
            with lowwaves(): finish_csq()
            A.vm = keep_vm
    for p in range(p_sc, 32):
        for d_ in wait_of[p]: landed(d_)
        piece(p, p == p_sc)
    for p in range(last_read + 1, 32):
        landed(p)
        if p == cl_at and 'C' not in abl: clean_urgent()
        if p == wt_at and 'W' not in abl:
            assert cl_at <= wt_at
            issue_wo()
            if tail_parts: issue_ffn(0, True, tail_parts)
    A('s_waitcnt lgkmcnt(0)')
    pv(pend[0])
    if padfrom == 'V': A('s_memrealtime s[98:99]\ns_waitcnt lgkmcnt(0)')
    stamp()
    if abl: A('s_branch L_fin')
    def flag_addr():
        A(f's_lshl_b32 {t1}, {sLO}, 10\ns_lshl_b32 {t2}, {sG}, 7\nv_and_b32 v68, 7, {vL}\nv_and_b32 v69, 24, {vL}\nv_lshlrev_b32 v68, 7, v68\nv_lshl_add_u32 v68, v69, 10, v68\nv_add_u32 v68, {t1}, v68')
        A(f'v_and_b32 v69, 31, {vL}\nv_lshlrev_b32 v69, 10, v69\nv_add_u32 v69, {t2}, v69\nv_cmp_lt_u32 vcc, 31, {vL}'); sel('v68', 'v68', 'v69')
        A(f's_mov_b32 {t1}, {TF}')
    def clean_rest():
        l_ = lab('cr')
        A(f's_cmp_lg_u32 {sW}, 7\ns_cbranch_scc1 {l_}')
        A(f'v_mov_b32 v64, -1\nv_mov_b32 v65, -1\nv_mov_b32 v66, -1\nv_mov_b32 v67, -1\nv_lshlrev_b32 v68, 2, {vL4}')
        A(f's_add_u32 {t1}, {sXst}, {LS}\nv_add_u32 v69, {oXB - oXA - 512}, v68\nv_cmp_lt_u32 vcc, 31, {vL}'); sel('v69', 'v68', 'v69')
        A(f'buffer_store_dwordx4 v[64:67], v69, {WS}, {t1} offen sc1')
        A(f's_mul_i32 {t2}, {sC}, 3168\ns_add_u32 {t2}, {t2}, {sGBASE}\ns_add_u32 {t2}, {t2}, {LS}')
        for k_ in range(3): A(f'buffer_store_dwordx4 v[64:67], v68, {WS}, {t2} offen offset:{1024*k_} sc1')
        A(f's_mov_b64 exec, 63\nbuffer_store_dwordx4 v[64:67], v68, {WS}, {t2} offen offset:3072 sc1\ns_mov_b64 exec, -1\n{l_}:')
    def clean_first():
        l_ = lab('c7')
        A(f's_cmp_lg_u32 {sW}, 7\ns_cbranch_scc1 {l_}')
        A(f's_lshl_b32 {t1}, s2, 7\ns_add_u32 {t1}, {t1}, {TF}\nv_mov_b32 v69, {sTAG}')
        if fullflag:
            A(f's_mov_b32 exec_hi, 0\ns_waitcnt vmcnt({2 + len(tail_parts)})\nbuffer_store_dword v69, {vL4}, {WS}, {t1} offen sc1')
        else:
            A(f's_mov_b64 exec, 1\ns_waitcnt vmcnt({2 + len(tail_parts)})\nbuffer_store_dword v69, off, {WS}, {t1} sc1')
        full_exec()
        n4 = lab('n4')
        if not use_early:
            A(f'{l_}:')
            if mid_parts:
                A(f's_sleep {mid_sleep}')
                issue_ffn(-4, False, mid_parts); issue_ffn(0, False, mid_parts)
            A(f's_lshl_b32 {t1}, {sLO}, 3\ns_add_u32 {t1}, {t1}, {sW}\ns_mul_i32 {t1}, {t1}, {8*3584}\ns_lshl_b32 {t2}, {g2}, 7\ns_add_u32 s81, {t1}, {t2}\ns_sub_u32 s80, s81, {32*3584}')
            A(f's_lshl_b32 {t1}, {g2}, 3\ns_add_u32 {t1}, {t1}, {sW}\ns_lshl_b32 {t1}, {t1}, 6\ns_add_u32 {t1}, {t1}, {sLO}\ns_lshl_b32 s83, {t1}, 7\ns_sub_u32 s82, s83, 32768')
            A(f's_lshl_b32 s84, {sW}, 10\ns_sub_u32 s84, s84, 4096')
            flag_addr()
            A(f'v_mov_b32 v114, v68\ns_mov_b32 s85, {TF}\ns_waitcnt vmcnt({2 * len(mid_parts)})')
            return
        A(f'{l_}:\ns_cmp_lg_u32 {sW}, 4\ns_cbranch_scc1 {n4}')
        flag_addr()
        A(f's_sleep {fearly}\nbuffer_load_dword v69, v68, {WS}, {t1} offen sc1\ns_waitcnt vmcnt(0)\nv_cmp_ne_u32 vcc, {sTAG}, v69\ns_cbranch_vccnz {n4}')
        A(f's_mov_b32 {sCNT}, 1\nv_mov_b32 v68, {L_FL}\nv_mov_b32 v69, 1\nds_write_b32 v68, v69\n{n4}:')
    if share:
        inloop[0] = True
        A('L_merge:')
        combine(None, first_only(clean_first))
    else: combine(True, clean_first)
    stamp(True)

    if prio:
        l_ = lab('pr'); A(f's_cmp_ge_u32 {sW}, 4\ns_cbranch_scc1 {l_}\ns_setprio 1\n{l_}:')
    A('L_layer:'); inloop[0] = True
    def proj_body(nk, vb, boff, xoff, late_w=None, tagged=False):
        if late_w: late_w()
        for j in range(nk):
            if not late_w: A(f's_waitcnt lgkmcnt({nk-1-j})')
            elif j == 0: A('s_waitcnt lgkmcnt(0)')
            c = '0' if j == 0 else 'v[96:99]'
            A(f'{M16} v[96:99], v[{48+4*j}:{51+4*j}], v[{64+4*j}:{67+4*j}], {c}')
        if tagged:
            A(f'v_mov_b32 v102, {sTAG}\nv_mov_b32 v103, {sTAG}\nv_cvt_pk_bf16_f32 v100, v96, v97\nv_cvt_pk_bf16_f32 v101, v98, v99')
            A(f'buffer_store_dwordx4 v[100:103], v47, {WS}, 0 offen sc1')
            if diag2: xstamp(52)
        else:
            A(f's_add_u32 {t1}, {sXst}, {xoff}')
            A('v_cvt_pk_bf16_f32 v96, v96, v97\nv_cvt_pk_bf16_f32 v97, v98, v99')
            A(f'buffer_store_dwordx2 v[96:97], {vXst}, {WS}, {t1} offen sc1')
    def proj_out(nk, vb, boff, xoff, first=None):
        sk, dl = lab('sk'), lab('dl')
        for j in range(nk): A(f'ds_read_b128 v[{64+4*j}:{67+4*j}], {vb} offset:{boff+64*j}')
        A(f's_cmp_ge_u32 {sW}, 4\ns_cbranch_scc1 {sk}')
        if first: variant(first, lambda: proj_body(nk, vb, boff, xoff))
        else: proj_body(nk, vb, boff, xoff)
        return sk, dl
    def g_wait(sk, dl, pre, busy_first=False, hi_pre=None, lo_d=None, hi_d=None, extra0=0):
        pre()
        A(f's_sleep {lo_d or gdelay}')
        A(f's_branch {dl}\n{sk}:\ns_waitcnt lgkmcnt(0)')
        if hi_pre: hi_pre()
        A(f's_sleep {hi_d or gdelay_hi}')
        A(f'{dl}:')
        if extra0: first_only(lambda: A(f's_sleep {extra0}'))()
    def reduce_x(xoff, final, first=None):
        def normal():
            A(f's_add_u32 {t0}, {sXg}, {xoff}')
            sp = lambda b: A(f'{M16} v[96:99], {SELA}, v[{b}:{b+3}], 0\n{M16} v[96:99], {SELA}, v[{b+4}:{b+7}], v[96:99]')
            if not dual & 16:
                poll(lambda: issue_g1(64, vXg, t0, 'x', 8192), range(64, 72), lambda: sp(64), None if final else 'L_xa_landed')
                return
            d, tl, lp = lab('got'), lab('again'), lab('lp')
            issue_g1(64, vXg, t0, 'x', 8192); A.wait_vm()
            sp(64); check_empty(range(64, 72))
            A(f's_cbranch_vccnz {tl}\n{d}:')
            keepL, A.L = A.L, []
            A(f'{tl}:'); issue_g1(64, vXg, t0, 'x', 8192)
            A(f's_sleep {dstep}\n{lp}:'); issue_g1(72, vXg, t0, 'x', 8192)
            A('s_waitcnt vmcnt(2)'); sp(64); check_empty(range(64, 72))
            A(f's_nop 1\ns_cbranch_vccz {d}'); issue_g1(64, vXg, t0, 'x', 8192)
            A('s_waitcnt vmcnt(2)'); sp(72); check_empty(range(72, 80))
            A(f's_nop 1\ns_cbranch_vccz {d}\ns_sub_u32 {sTO}, {sTO}, 1\ns_cbranch_scc0 {lp}\ns_mov_b32 {sTO}, 0\ns_branch {d}')
            tails.append('\n'.join(A.L)); A.L = keepL
            A.vm = []
        if first: variant(first, normal)
        else: normal()
        stamp()
        A(f'v_add_f32_dpp v96, v96, v96 row_ror:4 {DPP}\nv_add_f32_dpp v97, v97, v97 row_ror:4 {DPP}')
        if final: A(f's_cmp_eq_u32 {sLIDX}, 1')
        A(f'v_add_f32_dpp v96, v96, v96 row_ror:8 {DPP}\nv_add_f32_dpp v97, v97, v97 row_ror:8 {DPP}')
        A(f'v_pk_add_f32 {XRES}, {XRES}, v[96:97]\nv_cvt_pk_bf16_f32 v96, v112, v113')
        if final: A(f's_cbranch_scc1 L_out')
        A(f'ds_write_b32 {vXW}, v96')
        A('s_waitcnt lgkmcnt(0)\ns_barrier')
        xs_reads()
    def issue_o():
        issue_g1(64, vG1, sOg, 'o')
        A.vmop(f'buffer_load_dwordx2 v[72:73], {vML2}, {WS}, {sMLg} offen sc1', 'o')
        A.vmop(f'buffer_load_dwordx2 v[74:75], {vML2}, {WS}, {sMLg} offen offset:32 sc1', 'o')
    def wo_weights(ma, la, mb, lb, selreg, mm=None):
        A(f'v_max_f32 v76, v{ma}, v{mb}\nv_mov_b32 v77, v76\nv_permlane16_swap_b32 v76, v77\nv_max_f32 v76, v76, v77')
        A('v_mov_b32 v77, v76\nv_permlane32_swap_b32 v76, v77\nv_max_f32 v76, v76, v77')
        A(f'v_sub_f32 v{ma}, v{ma}, v76\nv_sub_f32 v{mb}, v{mb}, v76\nv_exp_f32 v{ma}, v{ma}\nv_exp_f32 v{mb}, v{mb}')
        A(f'v_cvt_pk_bf16_f32 v{ma}, v{ma}, v{ma}\nv_cvt_pk_bf16_f32 v{mb}, v{mb}, v{mb}')
        for i in range(4): A(f'v_and_b32 v{selreg+i}, v{MASK+i}, v{ma}')
        for i in range(4): A(f'v_and_b32 v{selreg+4+i}, v{MASK+i}, v{mb}')
        if mm: mm()
        A(f'v_and_b32 v{ma}, 0xffff0000, v{ma}\nv_and_b32 v{mb}, 0xffff0000, v{mb}\nv_mul_f32 v79, v{la}, v{ma}\nv_fmac_f32 v79, v{lb}, v{mb}')
        A('v_mov_b32 v77, v79\nv_permlane16_swap_b32 v79, v77\nv_add_f32 v79, v79, v77')
        A('v_mov_b32 v77, v79\nv_permlane32_swap_b32 v79, v77\nv_add_f32 v79, v79, v77\nv_rcp_f32 v78, v79')
    def two_sets(iss, nld, between, spec, chk):
        d, sb, sa = lab('got'), lab('setb'), lab('seta')
        iss(0); between(); iss(1)
        A(f'{sa}:\ns_waitcnt vmcnt({nld})')
        spec(0); chk(0)
        A(f's_cbranch_vccnz {sb}\n{d}:')
        keepL, A.L = A.L, []
        A(f'{sb}:'); iss(0)
        A(f's_waitcnt vmcnt({nld})\ns_nop 3')
        spec(1); chk(1)
        A(f's_nop 3\ns_cbranch_vccz {d}'); iss(1)
        A(f's_sub_u32 {sTO}, {sTO}, 1\ns_cbranch_scc0 {sa}\ns_mov_b32 {sTO}, 0\ns_branch {d}')
        tails.append('\n'.join(A.L)); A.L = keepL
        A.vm = []
    def wo_later():
        read_wo()
        def iml():
            A.vmop(f'buffer_load_dwordx2 v[72:73], {vML2}, {WS}, {sMLg} offen sc1', 'o')
            A.vmop(f'buffer_load_dwordx2 v[74:75], {vML2}, {WS}, {sMLg} offen offset:32 sc1', 'o')
        poll(iml, range(72, 76))
        b_ = (64, 100)
        two_sets(lambda k: issue_g1(b_[k], vG1, sOg, 'o'), 2, lambda: wo_weights(72, 73, 74, 75, 80),
                 lambda k: A(f'{M16} v[96:99], v[80:83], v[{b_[k]}:{b_[k]+3}], 0\n{M16} v[96:99], v[84:87], v[{b_[k]+4}:{b_[k]+7}], v[96:99]'),
                 lambda k: check_empty(range(b_[k], b_[k] + 8)))
        stamp()
    def wo_first():
        sets = ((80, 64), (48, 100))
        def iss(k):
            o0dst[0], o0ml[0] = sets[k]; issue_o0()
        def chk(k):
            a_, m_ = sets[k]; check_tags((a_ + 2, a_ + 6, a_ + 10, a_ + 14, m_ + 2, m_ + 6))
        def fin(k):
            a_, m_ = sets[k]; wo_weights(m_, m_ + 1, m_ + 4, m_ + 5, 116, lambda: tagged_sum(116, a_, 96, 4))
        lp, ga, gb, en = lab('lp'), lab('ga'), lab('gb'), lab('en')
        iss(0); A(f's_sleep {dstep}\n{lp}:'); iss(1)
        A('s_waitcnt vmcnt(6)'); chk(0); A(f's_cbranch_vccz {ga}')
        iss(0); A('s_waitcnt vmcnt(6)'); chk(1); A(f's_cbranch_vccz {gb}')
        A(f's_sub_u32 {sTO}, {sTO}, 1\ns_cbranch_scc0 {lp}\ns_mov_b32 {sTO}, 0\n{gb}:')
        stamp(); fin(1); A(f's_branch {en}\n{ga}:')
        nts[0] -= 1 if ts else 0; stamp(); fin(0); A(f'{en}:')
        A.vm = []
    with lowwaves():
        variant(wo_first, wo_later)
        A('v_pk_mul_f32 v[96:97], v[96:97], v[78:79] op_sel_hi:[1,0]\nv_cvt_pk_bf16_f32 v96, v96, v97')
        A(f'ds_write_b32 {vQW}, v96 offset:{L_OS-L_QS}\ns_waitcnt vmcnt(0)')
    A(f's_waitcnt lgkmcnt(0)\ns_barrier')
    if padfrom == 'O': first_only(lambda: A('s_memrealtime s[98:99]\ns_waitcnt lgkmcnt(0)'))()
    if padfrom == 'P': A('s_memrealtime s[98:99]\ns_waitcnt lgkmcnt(0)')
    if diag2: first_only(lambda: xstamp(50))()
    sk, dl = proj_out(4, vBR320, L_OS - L_QS, 0, lambda: (proj_body(4, vBR320, L_OS - L_QS, 0, read_wo), xstamp(52) if diag2 else None))
    leave_ = [None]
    def touch_lines(bases, r=80):
        for sb, off in bases:
            A(f's_add_u32 {t0}, {sb}, {off}\ns_add_u32 {t1}, {t0}, 4096')
            A(f'buffer_load_dwordx4 v[{r}:{r+3}], {vG1}, {WS}, {t0} offen sc1\nbuffer_load_dwordx4 v[{r+4}:{r+7}], {vG1}, {WS}, {t1} offen sc1')
    def touch_small(bases, r=88):
        for sb, off in bases:
            A(f's_add_u32 {t0}, {sb}, {off}\nbuffer_load_dwordx2 v[{r}:{r+1}], {vSt8}, {WS}, {t0} offen sc1')
    def watch_flags():
        l_, r_, d_ = lab('w4'), lab('fr'), lab('fd')
        A(f's_cmp_lg_u32 {sW}, 4\ns_cbranch_scc1 {l_}\ns_cmp_eq_u32 {sCNT}, 1\ns_cbranch_scc1 {l_}')
        flag_addr()
        if fdelay: A(f's_sleep {fdelay}')
        e_ = lab('fe')
        A(f'buffer_load_dword v69, v68, {WS}, {t1} offen sc1\ns_waitcnt vmcnt(0)\nv_cmp_ne_u32 vcc, {sTAG}, v69\ns_cbranch_vccz {d_}')
        A(f'{r_}:\ns_sleep {fback}\nbuffer_load_dword v69, v68, {WS}, {t1} offen sc1\ns_waitcnt vmcnt(0)\nv_cmp_ne_u32 vcc, {sTAG}, v69\ns_cbranch_vccz {e_}')
        A(f's_sub_u32 {sTO}, {sTO}, 1\ns_cbranch_scc0 {r_}\ns_mov_b32 {sTO}, 0\n{e_}:')
        if flate: A(f's_sleep {flate}')
        A(f'{d_}:')
        A(f'v_mov_b32 v68, {L_FL}\nv_mov_b32 v69, 1\nds_write_b32 v68, v69')
        if diag2: xstamp(51)
        A(f's_branch {after_sleep[0]}\n{l_}:')
    def await_flags():
        r_, d_ = lab('ar'), lab('ad')
        A(f'v_mov_b32 v68, {L_FL}\n{r_}:\nds_read_b32 v69, v68\ns_waitcnt lgkmcnt(0)\nv_cmp_eq_u32 vcc, 1, v69\ns_cbranch_vccnz {d_}')
        A(f's_sleep 1\ns_sub_u32 {sTO}, {sTO}, 1\ns_cbranch_scc0 {r_}\ns_mov_b32 {sTO}, 0\n{d_}:')
        if touch_g:
            with lowwaves(): touch_lines([(sGg, 0)])
    after_sleep = [None]
    def w567(parts=None, pause=0):
        l_ = lab('f5'); A(f's_cmp_eq_u32 {sW}, 4\ns_cbranch_scc1 {l_}')
        if pause: A(f's_sleep {pause}')
        for dw in (-5, -2, 1):
            k_ = lab('fs')
            if dw == 1: A(f's_cmp_eq_u32 {sW}, 7\ns_cbranch_scc1 {k_}')
            issue_ffn_any(dw, parts)
            A(f'{k_}:')
        A(f'{l_}:')
    def quick_gu():
        for k_ in range(2):
            A(f's_add_u32 m0, s84, {L_WG + 4096 * k_}\ns_nop 0\nbuffer_load_dwordx4 v126, {WG}, s{80+k_} offen nt lds')
            A(f's_add_u32 m0, s84, {L_WU + 4096 * k_}\ns_nop 0\nbuffer_load_dwordx4 v126, {WU}, s{80+k_} offen nt lds')
    def quick_d():
        for k_ in range(2):
            A(f's_add_u32 m0, s84, {L_WD + 4096 * k_}\ns_nop 0\nbuffer_load_dwordx4 v127, {WD}, s{82+k_} offen nt lds')
    def hi_first():
        o_, r_, e_, d_ = lab('fo'), lab('fr'), lab('fe'), lab('fd')
        nod = wd_behind or 'd' in tail_parts
        nw = 4 if nod else 6
        A(f's_cmp_lg_u32 {sW}, 4\ns_cbranch_scc1 {o_}')
        A(f'buffer_load_dword v69, v114, {WS}, s85 offen sc1')
        quick_gu()
        if not nod: quick_d()
        A(f's_waitcnt vmcnt({nw})\nv_cmp_ne_u32 vcc, {sTAG}, v69\ns_cbranch_vccz {d_}')
        A(f'{r_}:\ns_sleep {fback}\nbuffer_load_dword v69, v114, {WS}, s85 offen sc1\ns_waitcnt vmcnt(0)\nv_cmp_ne_u32 vcc, {sTAG}, v69\ns_cbranch_vccz {e_}')
        A(f's_sub_u32 {sTO}, {sTO}, 1\ns_cbranch_scc0 {r_}\ns_mov_b32 {sTO}, 0\n{e_}:')
        if flate: A(f's_sleep {flate}')
        A(f'{d_}:\nv_mov_b32 v68, {L_FL}\nv_mov_b32 v69, 1\nds_write_b32 v68, v69')
        if diag2: xstamp(51)
        A(f's_sleep {hi4}\ns_branch {after_sleep[0]}\n{o_}:\ns_sleep 1')
        quick_gu()
        if not nod: quick_d()
        if diag2:
            l_ = lab('d5'); A(f's_cmp_lg_u32 {sW}, 5\ns_cbranch_scc1 {l_}'); xstamp(53); A('s_waitcnt vmcnt(0)'); xstamp(55); A(f's_branch {after_sleep[0]}\n{l_}:')
        clean_rest()
    def hi_xb():
        leave_[0]()
        if touch_att:
            first_only(lambda: (touch_lines([(sQg, 0)]), touch_small([(sQSg, 0)])))()
            return
        if touch1 & 4: first_only(lambda: (touch_lines([(sGg, LS)]), touch_small([(sGSg, LS)])))()
        if touch1 & 8: first_only(lambda: (touch_lines([(sQg, 0), (sOg, LS)]), touch_small([(sQSg, 0), (sMLg, LS)])))()
    late_gu = 'g' not in tail_parts
    go, aw = lab('go'), lab('aw')
    after_sleep[0] = aw
    def lo_pre():
        if not late_gu: read_gu()
        A(f's_cmp_eq_u32 {sLIDX}, 0\ns_cbranch_scc1 {aw}_lo')
        if late_gu: read_gu()
    def hi_pre():
        A(f's_cmp_eq_u32 {sLIDX}, 0\ns_cbranch_scc1 {aw}_hi')
    g_wait(sk, dl, lo_pre, False, hi_pre)
    A(f'{go}:')
    keepL, A.L = A.L, []
    A(f'{aw}_hi:')
    hi_first()
    A(f's_sleep {hi0}\ns_branch {aw}\n{aw}_lo:\ns_sleep {lo0}\n{aw}:')
    await_flags()
    if wd_behind:
        A(f's_cmp_lt_u32 {sW}, 4\ns_cbranch_scc1 {go}\ns_mov_b32 {t0}, {sXg}')
        issue_g1(64, vXg, t0, 'x', 8192); quick_d()
        A(f's_waitcnt vmcnt(2)\ns_branch L_xa_landed')
    else: A(f's_branch {go}')
    tails.append('\n'.join(A.L)); A.L = keepL
    stamp()
    if diag2: A(f's_mov_b32 s65, {sTO}')
    reduce_x(0, False)
    if padfrom == 'X': first_only(lambda: A('s_memrealtime s[98:99]\ns_waitcnt lgkmcnt(0)'))()
    if diag2: first_only(lambda: A(f's_sub_u32 s65, s65, {sTO}\nv_readlane_b32 s94, {vTS}, 0\ns_mul_i32 s65, s65, 100\ns_add_u32 s65, s65, s94\nv_writelane_b32 {vTS}, s65, 54'))()
    def issue_gp(first):
        issue_g1(64, vG1, sGg, 'g')
        A.vmop(f'buffer_load_dwordx2 v[72:73], {vSt8}, {WS}, {sGSg} offen sc1', 'g')
        if first:
            A(f'v_and_b32 {vTMP}, 0xf0, {vG1}\nv_and_b32 {vTMP2}, 0xc00, {vG1}\nv_lshrrev_b32 {vTMP2}, 2, {vTMP2}\nv_or_b32 {vTMP}, {vTMP}, {vTMP2}')
            issue_g1(80, vTMP, sGCg, 'g', 1024)
    def ffn_gather(first):
        def f():
            if ldelay and not first: A(f's_sleep {ldelay}')
            if dual & 32 and first:
                sets = ((64, 80), (102, 116))
                A(f'v_and_b32 v114, 0xf0, {vG1}\nv_and_b32 {vTMP2}, 0xc00, {vG1}\nv_lshrrev_b32 {vTMP2}, 2, {vTMP2}\nv_or_b32 v114, v114, {vTMP2}')
                def iss(k):
                    a_, c_ = sets[k]
                    issue_g1(a_, vG1, sGg, 'x')
                    A.vmop(f'buffer_load_dwordx2 v[{a_+8}:{a_+9}], {vSt8}, {WS}, {sGSg} offen sc1', 'x')
                    issue_g1(c_, 'v114', sGCg, 'x', 1024)
                def spec(k):
                    a_, c_ = sets[k]
                    A(f'{M16} v[96:99], {SELG}, v[{a_}:{a_+3}], 0\n{M16} v[96:99], {SELG}, v[{a_+4}:{a_+7}], v[96:99]')
                    A(f'{M16} v[88:91], {SELG}, v[{c_}:{c_+3}], 0\n{M16} v[88:91], {SELG}, v[{c_+4}:{c_+7}], v[88:91]')
                    A(f'v_add_f32_dpp v78, v{a_+8}, v{a_+8} quad_perm:[1,0,3,2] {DPP}\nv_add_f32_dpp v79, v{a_+9}, v{a_+9} quad_perm:[1,0,3,2] {DPP}')
                poll2(iss, 5, lambda k: list(range(sets[k][0], sets[k][0] + 10)) + list(range(sets[k][1], sets[k][1] + 8)), spec)
                ln_finish(CSG, 1.0, True, 88)
                return
            if nanchk and not first:
                ln_poll_nan(sGg, sGSg, SELG, CSG, 1.0); return
            if dual & 2 and not first: ln_poll2(sGg, sGSg, SELG)
            else: poll(lambda: issue_gp(first), QREGS1 if first else QREGS, ln_spec(SELG, first))
            ln_finish(CSG, 1.0, first)
        return f
    def hi_after_xa():
        slice_stats(sGSst)
        def f():
            if wd_after: w567('d')
            if rest_at == 'g0': clean_rest()
        if wd_after or rest_at == 'g0': first_only(f)()
    with lowwaves(hi_after_xa):
        matvec(vGst, 'plain', first_only(read_gu) if late_gu else None, sLAY)
        stamp()
        if wd_after or wd_behind: later_only(read_wd)
        else: read_wd()
        variant(ffn_gather(True), ffn_gather(False))
        stamp()
        A('v_max_f32 v96, 0, v96\nv_mul_f32 v96, v96, v97\nv_cvt_pk_bf16_f32 v96, v96, v96')
        A(f'ds_write_b16 {vHW}, v96')
    A('s_waitcnt vmcnt(0) lgkmcnt(0)\ns_barrier')
    if padfrom == 'G': first_only(lambda: A('s_memrealtime s[98:99]\ns_waitcnt lgkmcnt(0)'))()
    sk, dl = proj_out(2, vBR192, 0, oXB - oXA, (lambda: proj_body(2, vBR192, 0, oXB - oXA, read_wd)) if (wd_after or wd_behind) else None)
    def leave():
        no = lab('no')
        A(f's_cmp_eq_u32 {sLIDX}, 0\ns_cbranch_scc1 {no}\ns_cmp_lg_u32 {sHI}, 0\ns_cbranch_scc1 L_fin\ns_cmp_lg_u32 {sG}, {sLO}\ns_cbranch_scc1 L_fin\n{no}:')
    def pre_q():
        leave()
        read_wq()
    leave_[0] = leave
    g_wait(sk, dl, pre_q, False, hi_xb, gd_b, gdh_b, xb0)
    stamp()
    reduce_x(oXB - oXA, True)
    keep = nts[0]; nts[0] -= 11
    def advance():
        A(f's_mov_b32 {sLIDX}, 1\ns_mov_b32 {sLAY}, {LS}')
        for s in (sOg, sGg, sMLg, sGSg, sXg, sOPst, sMLst, sXst, sGSst):
            A(f's_add_u32 {s}, {s}, {LS}')
    if padfrom == 'B': A('s_memrealtime s[98:99]\ns_waitcnt lgkmcnt(0)')
    with lowwaves(lambda: (slice_stats(sQSst), advance())):
        matvec(vQst, 'plain')
        advance()
        stamp()
        if ldelay: A(f's_sleep {ldelay}')
        if nanchk:
            ln_poll_nan(sQg, sQSg, SELA, CSQ, QSCALE)
            stamp()
            A(f'v_cvt_pk_bf16_f32 v96, v96, v97\nds_write_b32 {vQW}, v96')
        else:
            ln_poll2(sQg, sQSg, SELA)
            stamp()
            q_finish(False)
    if share:
        A('; ---- scores, row maximum, exp2, row sum (shared by both layers), P V')
        with lowwaves(lambda: (touch_lines([(sOg, 0), (sGg, 0)], 48), touch_small([(sMLg, 0), (sGSg, 0)], 56)), 's_waitcnt vmcnt(0) lgkmcnt(0)\ns_barrier'): pass
        A('L_scores:')
        scores(False)
        A(f's_cmp_eq_u32 {sLIDX}, 0\ns_cbranch_scc1 L_scored')
    else: scores()
    for i in range(16):
        pv(i)
        if i == 5: lsum()
    stamp()
    if share: A('s_branch L_merge')
    else:
        combine()
        stamp()
        A('s_branch L_layer')
    nts[0] = keep
    A('L_out:')
    A(f's_mov_b64 exec, {sM4}')
    A(f'buffer_store_dword v96, {vXO}, {OUT}, 0 offen' + (' sc1' if out_sc1 else ''))
    A(f's_or_b32 {t1}, s2, {sW}\ns_cmp_lg_u32 {t1}, 0\ns_cbranch_scc1 L_fin0')
    A(f's_mov_b64 exec, 1\nv_mov_b32 v97, {sTAG}\ns_mov_b32 {t2}, {EPOCH}\nbuffer_store_dword v97, off, {WS}, {t2} sc1')
    A('L_fin0:')
    full_exec()
    A('L_fin:')
    if wb:
        A(f's_cmp_lg_u32 {sC}, 31\ns_cbranch_scc1 L_nowb\ns_cmp_lg_u32 {sW}, 7\ns_cbranch_scc1 L_nowb\nbuffer_wbl2 sc1' + ('\ns_waitcnt vmcnt(0)' if wb == 1 else '') + '\nL_nowb:')
    if padto:
        A(f'L_pad:\ns_memrealtime s[94:95]\ns_waitcnt lgkmcnt(0)\ns_sub_u32 s94, s94, s98\ns_cmp_lt_u32 s94, {padto}\ns_cbranch_scc1 L_pad')
    if ts:
        stamp(True)
        A(f's_memtime s[94:95]\ns_waitcnt lgkmcnt(0)\ns_sub_u32 s94, s94, s98\nv_writelane_b32 {vTS}, s94, 63')
        A(f's_add_u32 s96, s96, 0x10000000\ns_addc_u32 s97, s97, 0\ns_lshl_b32 {t1}, s2, 11\nv_add_u32 v64, {t1}, {vT4}\nglobal_store_dword v64, {vTS}, s[96:97]')
        if dbgts:
            A(f's_or_b32 {t1}, s2, {sW}\ns_cmp_lg_u32 {t1}, 0\ns_cbranch_scc1 L_end')
            A(f'v_readlane_b32 {t1}, {vTS}, 0\nv_subrev_u32 v64, {t1}, {vTS}\nv_and_b32 v64, 0xffff, v64')
            A(f'v_mov_b32_dpp v65, v64 quad_perm:[1,1,3,3] {DPP}\nv_lshl_or_b32 v64, v65, 16, v64\nv_lshlrev_b32 v65, 1, {vL}')
            A(f's_mov_b32 exec_lo, 0x55555555\ns_mov_b32 exec_hi, 0\nbuffer_store_dword v64, v65, {DBG}, 0 offen sc1')
    A('s_endpgm')
    for t_ in tails: A(t_)
    A('L_end:\ns_endpgm')
    A(f'.section .rodata,"a"\n.p2align 6\n.amdhsa_kernel {NAME}_kernel')
    A('.amdhsa_next_free_vgpr 256\n.amdhsa_next_free_sgpr 102\n.amdhsa_accum_offset 128\n.amdhsa_group_segment_fixed_size 0\n.amdhsa_kernarg_size 96\n.amdhsa_user_sgpr_count 2\n.amdhsa_user_sgpr_kernarg_segment_ptr 1\n.amdhsa_system_sgpr_workgroup_id_x 1\n.end_amdhsa_kernel')
    txt, probs = A.text()
    for p in probs: print('HAZARD', p, file=sys.stderr)
    return txt, nts[0]

if __name__ == '__main__':
    out = sys.argv[1]
    kw = {}
    for a in sys.argv[2:]:
        k, v = a.split('='); kw[k] = eval(v)
    txt, n = build(**kw)
    open(out, 'w').write(txt)
    print('stamps', n, 'lines', txt.count('\n'))
```

```python
import sys, math, struct
sys.path.insert(0, 'gen')
from asmlib import Asm

NAME = "interleave_layers__sliding_block_cached__glu_gated_reglu__decode"

bQP, bQS, bOP, bML, bGP, bGS, bGC, GB = 0x0, 0x8000, 0x8400, 0x10400, 0x10800, 0x18800, 0x18C00, 0x1AC00
oXA, oXB, LS = 8 * GB, 8 * GB + 0x20000, 8 * GB + 0x40000
TQP, TQC, TOP, TML, TF, EPOCH = 0x240000, 0x2C0000, 0x2E0000, 0x360000, 0x364000, 0x36C000
WS_REC = 0x36C100
OOB = 0x7FFF0000
L_RING, L_WQ, L_WO, L_WG, L_WU, L_WD = 0, 65536, 81920, 98304, 106496, 114688
L_QS, L_OS, L_HS, L_XS, L_RM, L_ST = 122880, 124160, 125440, 126208, 127168, 127424
L_FL = L_ST + 16
L_DUMP = 127488
LDS_BYTES = 129536

def f32(x): return '0x%08x' % struct.unpack('<I', struct.pack('<f', x))[0]
QSCALE = 128 ** -0.5 * math.log2(math.e)

sW, sG, sC, sHI, sLO = 's3', 's4', 's5', 's6', 's7'
WS, KK, VV, WQ, WO, WG, WU, WD, XX, OUT, DBG = [f's[{i}:{i+3}]' for i in range(8, 52, 4)]
sKV, sRING, t0, t1, t2, t3 = 's52', 's53', 's54', 's55', 's56', 's57'
sLAY, sTO, sFAST, sCNT, sGOK, sLIDX = 's58', 's59', 's60', 's61', 's62', 's63'
sQg, sOg, sGg, sQSg, sMLg, sGSg, sXg, sGBASE, sGCg = ['s%d' % i for i in range(66, 75)]
sOPst, sMLst, sXst, sQSst, sGSst = ['s%d' % i for i in range(75, 80)]
g0, g1, g2, g3 = 's90', 's91', 's92', 's93'
vL, vT4, vSt8, vXg, vQst, vGst, vSSt, vG1, vXst, vQW, vBR320, vHW, vBR192, vXR, vXW, vL4 = ['v%d' % i for i in range(16)]
vROW, vROR, vRMW, vRMR, vWQr, vWr, vWOr, vXO = ['v%d' % i for i in range(16, 24)]
CSQ, CSG = 'v[24:25]', 'v[26:27]'
vTS, vML2, vTMP, vTMP2 = 'v28', 'v29', 'v30', 'v31'
SELA, MASK, SELG, ONES = 'v[32:35]', 36, 'v[40:43]', 'v[44:45]'
vMLst = 'v46'
XRES = 'v[112:113]'
sM4 = 's[88:89]'
sTAG = 's100'
DPP = 'row_mask:0xf bank_mask:0xf'
M16 = 'v_mfma_f32_16x16x32_bf16'

HEADER = r'''
;
;
;   - first q and first attention exchange: 16-byte granules {4 x bf16, tag, ..}; tag = (word found at ws+EPOCH) + 1,
;   Stores that are only read inside the group are plain when every member reported the same XCC id, write-through
'''

def build(ts=False, gdelay=12, gdelay_hi=18, pf_code=True, rides=(16, 21), w_at='land31', ldelay=0, bar_after_k0=False, fride=26, ffn_hi=False, touch_o=0, touch_g=0, ffn_sleep=0, clean3_xa=0, tlb=0, diag2=0, ffn_at=0, fdelay=1, fback=4, wo_at=0, csq_o=0, touch1=12, wt_at=29, csq_at=25, xa0=0, xb0=8, cl_at=29, tail_parts='d', lo0=12, hi0=15, hi4=4, wd_after=0, wd_behind=0, rest_at='xa', fearly=10, use_early=0, fullflag=1, flag_first=0, jitter=0, mid_parts='', mid_sleep=8, touch_att=1, p_sc=26, kpol='nt', vpol='nt', wb=0, out_sc1=0, dual=15, dstep=3, pf_few=0, pf_late=0, flate=0, share=1, gd_b=11, gdh_b=15, ffn_by_hi=1, tmajor=1, prio=0, padto=0, padfrom='', mlstep=0, nanchk=0, warm_x=1, warm_at=0, wd_late=0, xback=0, deep_from=24, depth=5, deep=7, diag=0, noclean=0, burst=4, late47=0, abl='', backoff=0, cl_sc1=1, dbgts=0, wsoff=0):
    A = Asm()
    uid = [0]
    def lab(p):
        uid[0] += 1; return f'L_{p}_{uid[0]}'
    nts = [0]; inloop = [False]
    def stamp(key=False):
        if jitter:
            l_ = lab('jt')
            A(f's_memtime s[94:95]\ns_waitcnt lgkmcnt(0)\ns_mul_i32 s94, s94, 0x9e3779b1\ns_xor_b32 s94, s94, s2\ns_mul_i32 s94, s94, 0x85ebca6b\ns_lshr_b32 s94, s94, {32 - jitter}')
            A(f's_cmp_lg_u32 s94, 0\ns_cbranch_scc1 {l_}\ns_sleep 100\n{l_}:')
        if not ts: return
        if ts == 2 and not key:
            nts[0] += 1; return
        if inloop[0]:
            A(f's_memrealtime s[94:95]\ns_mul_i32 m0, {sLIDX}, 11\ns_add_u32 m0, m0, {nts[0]}\ns_waitcnt lgkmcnt(0)\nv_writelane_b32 {vTS}, s94, m0')
        else:
            A(f's_memrealtime s[94:95]\ns_waitcnt lgkmcnt(0)\nv_writelane_b32 {vTS}, s94, {nts[0]}')
        nts[0] += 1
    def xstamp(i):
        A(f's_memrealtime s[94:95]\ns_waitcnt lgkmcnt(0)\nv_writelane_b32 {vTS}, s94, {i}')
    def set_exec(lo, hi=None):
        hi = lo if hi is None else hi
        A(f's_mov_b32 exec_lo, {lo:#x}\ns_mov_b32 exec_hi, {hi:#x}')
    def full_exec(): A('s_mov_b64 exec, -1')
    tails = []
    def lstore(fmt, tag='st', nxt=None, cmp=True):
        a, b = lab('wt'), lab('sd')
        for f_ in fmt.split('\n'): A((';;need2 ' if cmp else ';;need1 ') + f_)
        if cmp: A(f's_cmp_eq_u32 {sFAST}, 1')
        A(f's_cbranch_scc0 {a}')
        A(fmt); A(f'{b}:')
        tails.append(f'{a}:\n' + '\n'.join(f_ + ' sc1' for f_ in fmt.split('\n')) + f'\ns_branch {b}')
        A.vm.append(tag)
    class lowwaves:
        def __init__(s, other=None, mid=None): s.other = other; s.mid = mid
        def __enter__(s):
            s.l = lab('hi'); s.o = lab('up') if s.other else s.l
            A(f's_cmp_ge_u32 {sW}, 4')
            if s.mid: A(s.mid)
            A(f's_cbranch_scc1 {s.o}')
        def __exit__(s, *a):
            A(f'{s.l}:')
            if s.other:
                keepL, A.L = A.L, []
                A(f'{s.o}:'); s.other(); A(f's_branch {s.l}')
                tails.append('\n'.join(A.L)); A.L = keepL
    def sel(dst, a, b):
        A(f'v_cndmask_b32 {dst}, {a}, {b}, vcc')

    A(f'; @launch grid=(256,1,1) block=(512,1,1) lds={LDS_BYTES}')
    for l_ in HEADER.strip('\n').split('\n'): A.L.append(l_)
    A('.amdgcn_target "amdgcn-amd-amdhsa--gfx950"')
    A(f'.text\n.globl {NAME}_kernel\n.p2align 8\n.type {NAME}_kernel,@function\n{NAME}_kernel:')
    A('s_cmp_ge_u32 s2, 256\ns_cbranch_scc1 L_end')
    A('s_load_dwordx16 s[64:79], s[0:1], 0\ns_load_dwordx8 s[80:87], s[0:1], 64')
    if padto: A('s_memrealtime s[98:99]')
    if diag: A('s_memrealtime s[96:97]')
    A(f'v_lshlrev_b32 {vT4}, 2, v0')
    def prefetch_code():
        if pf_few: A(f's_cmp_ge_u32 s2, {8 * pf_few}\ns_cbranch_scc1 L_nopf')
        A(f's_getpc_b64 s[94:95]\nL_pc:\ns_sub_u32 s94, s94, L_pc-{NAME}_kernel\ns_subb_u32 s95, s95, 0\ns_lshr_b32 s93, s2, 3\ns_and_b32 s93, s93, 1\ns_lshl_b32 s93, s93, 13\nv_lshlrev_b32 {vTMP}, 2, {vT4}\nv_add_u32 {vTMP}, s93, {vTMP}')
        A(f'v_min_u32 {vTMP}, L_end-{NAME}_kernel-16, {vTMP}')
        A(f'global_load_dwordx4 v[96:99], {vTMP}, s[94:95]')
        if pf_few: A('L_nopf:')
        else: A.vm.append('pf')
    if pf_code and not pf_late: prefetch_code()
    A(f'v_lshrrev_b32 {vTMP}, 6, v0')
    A(f'v_and_b32 {vL}, 63, v0')
    A(f'v_readfirstlane_b32 {sW}, {vTMP}')
    A(f's_and_b32 {sG}, s2, 7\ns_lshr_b32 {sC}, s2, 3\ns_lshr_b32 {sHI}, {sC}, 3\ns_and_b32 {sLO}, {sC}, 7')
    A(f'v_and_b32 v120, 15, {vL}\nv_lshrrev_b32 v121, 4, {vL}')
    A(f'v_lshlrev_b32 {vTMP}, 2, v121\nv_xor_b32 {vTMP}, v120, {vTMP}\nv_lshlrev_b32 {vTMP}, 4, {vTMP}\nv_lshl_add_u32 v116, v121, 8, {vTMP}\nv_lshl_add_u32 v124, v121, 13, {vTMP}')
    A(f'v_and_b32 v122, 3, {vL}\nv_lshrrev_b32 v123, 2, v120')
    A(f's_lshr_b32 {t0}, {sW}, 1\ns_lshl_b32 {t0}, {t0}, 10\ns_and_b32 {t1}, {sW}, 1\ns_lshl_b32 {t1}, {t1}, 6\ns_add_u32 {t0}, {t0}, {t1}\ns_lshl_b32 {t1}, {sLO}, 7\ns_add_u32 {t0}, {t0}, {t1}')
    A(f'v_lshlrev_b32 v117, 4, v122\nv_lshl_add_u32 v117, v121, 2, v117\nv_add_u32 {vXO}, {t0}, v117')
    A(f's_lshl_b32 {t0}, {sHI}, 3\ns_add_u32 {t0}, {t0}, {sG}\ns_lshl_b32 {sKV}, {t0}, 22\ns_lshl_b32 {t0}, {sLO}, 17\ns_add_u32 {sKV}, {sKV}, {t0}\ns_add_u32 {sKV}, {sKV}, {12288*256}')
    A(f's_add_u32 {t0}, {sG}, {sC}\ns_add_u32 {t0}, {t0}, {sW}\ns_and_b32 {t0}, {t0}, 7\ns_lshl_b32 {t0}, {t0}, 12\ns_add_u32 {sKV}, {sKV}, {t0}')
    A(f's_lshl_b32 {sRING}, {sW}, 13')
    A(f's_and_b32 {g3}, {sW}, 3')
    A(f's_lshl_b32 {t0}, {sG}, 2\ns_add_u32 {t0}, {t0}, {sHI}')
    A(f'v_mov_b32 v118, {OOB}')
    A(f's_mul_i32 s101, {sG}, {GB}')
    A(f's_lshl_b32 {t1}, {sLO}, 6\ns_lshl_b32 {t2}, {sW}, 3\ns_add_u32 {t1}, {t1}, {t2}\ns_lshl_b32 {t1}, {t1}, 13\ns_lshl_b32 {t2}, {sG}, 10\ns_add_u32 {t1}, {t1}, {t2}\ns_lshl_b32 {t2}, {sHI}, 8\ns_add_u32 {t1}, {t1}, {t2}')
    A(f's_lshl_b32 {t2}, {sW}, 11\ns_add_u32 m0, {t2}, {L_WQ}')
    if ts:
        A(f'v_mov_b32 {vTS}, 0')
        if diag: A(f's_mov_b32 s92, s96');
        stamp(True)
        if diag: A(f'v_writelane_b32 {vTS}, s96, 38')
        A(f's_memtime s[98:99]')
    A('s_waitcnt lgkmcnt(0)')
    if diag: xstamp(39)
    def srd(d, lo, n):
        A(f's_mov_b32 s{d}, s{lo}\ns_mov_b32 s{d+1}, s{lo+1}\ns_mov_b32 s{d+2}, {n}\ns_mov_b32 s{d+3}, 0x20000')
    srd(20, 70, 4194304)
    A.vmop(f'buffer_load_dwordx4 v124, {WQ}, {t1} offen nt lds', 'wq')
    A(f's_add_u32 {t1}, {t1}, 32768\ns_add_u32 m0, m0, 1024')
    srd(40, 64, 4096)
    A.vmop(f'buffer_load_dwordx4 v124, {WQ}, {t1} offen nt lds', 'wq')
    srd(8, 86, WS_REC)
    if wsoff: A(f's_add_u32 s8, s8, {wsoff}\ns_addc_u32 s9, s9, 0')
    A.vmop(f'buffer_load_dword v68, {vXO}, {XX}, 0 offen', 'x0')
    A(f's_lshr_b32 {t2}, {sW}, 1\ns_lshl_b32 {t2}, {t2}, 10\nv_lshlrev_b32 {vTMP}, 4, {vL}')
    A.vmop(f'buffer_load_dwordx4 v[72:75], {vTMP}, {XX}, {t2} offen', 'x0')
    A(f's_mov_b32 {t2}, {EPOCH}')
    A.vmop(f'buffer_load_dword v69, off, {WS}, {t2} sc1', 'ep')
    srd(12, 66, 0x8000000)
    def piece(p, setm0=False):
        t, q = (p % 16) // 4, p % 4
        if q == 0 or setm0:
            A(f's_add_u32 {g1}, {sKV}, {t*32768}\ns_add_u32 m0, {sRING}, {((p//4)&1)*4096}')
        src = 'v116'
        A.vmop(f'buffer_load_dwordx4 {src}, {KK if p < 16 else VV}, {g1} offen offset:{q*1024} {kpol if p < 16 else vpol} lds', f'p{p}')
    for p in range(burst): piece(p)
    if pf_code and pf_late:
        assert not pf_few
        A('s_mov_b32 s92, s93'); prefetch_code(); A('s_mov_b32 s93, s92')
    srd(16, 68, 0x8000000)
    if ts: A('s_mov_b32 s96, s86\ns_mov_b32 s97, s87')

    srd(24, 72, 4194304); srd(44, 82, 4096)
    if dbgts: srd(48, 84, 256)
    srd(28, 76, 1835008); srd(32, 78, 1835008); srd(36, 80, 1835008)
    A(f's_mul_i32 {t1}, {sG}, 3\ns_add_u32 {t1}, {t1}, 4\ns_lshl_b32 {t2}, {sG}, 2\ns_cmp_ge_u32 {sG}, 4\ns_cselect_b32 {g2}, {t1}, {t2}\ns_add_u32 {g2}, {g2}, {sHI}\ns_min_u32 {g2}, {g2}, 27')
    if tlb:
        A(f's_lshl_b32 {t1}, {t0}, 17')
        A.vmop(f'buffer_load_dword v96, off, {WO}, {t1} nt', 'tlb')
        A(f's_mul_i32 {t1}, {sLO}, {64*3584}')
        A.vmop(f'buffer_load_dword v96, off, {WG}, {t1} nt', 'tlb')
        A.vmop(f'buffer_load_dword v96, off, {WU}, {t1} nt', 'tlb')
        A(f's_lshl_b32 {t1}, {g2}, 16')
        A.vmop(f'buffer_load_dword v96, off, {WD}, {t1} nt', 'tlb')
        A(f'v_lshlrev_b32 {vTMP}, 19, v120')
        A.vmop(f'buffer_load_dword v96, {vTMP}, {WS}, 0 offen nt', 'tlb')
        A.vmop(f'buffer_load_dword v96, off, {VV}, {sKV} nt', 'tlb')
    A(f's_getreg_b32 {t1}, hwreg(HW_REG_XCC_ID)\ns_and_b32 s64, {t1}, 15')
    A(f's_mov_b32 s88, 0x000f000f\ns_mov_b32 s89, 0x000f000f')
    A(f's_mov_b32 {sGBASE}, s101')
    A(f's_lshl_b32 {t1}, {sHI}, 13\ns_add_u32 {t1}, {t1}, {sGBASE}')
    A(f's_add_u32 {sQg}, {t1}, {bQP + LS}\ns_add_u32 {sOg}, {t1}, {bOP}\ns_add_u32 {sGg}, {t1}, {bGP}')
    A(f's_lshl_b32 {t1}, {g3}, 2\ns_add_u32 {t1}, {t1}, {sHI}\ns_lshl_b32 {t1}, {t1}, 6\ns_add_u32 {t1}, {t1}, {sGBASE}\ns_add_u32 {sQSg}, {t1}, {bQS + LS}')
    A(f's_lshl_b32 {sMLst}, {sLO}, 3\ns_add_u32 {sMLst}, {sMLst}, {t1}\ns_add_u32 {sMLst}, {sMLst}, {bML}')
    A(f's_lshl_b32 {t2}, {g3}, 13\ns_lshl_b32 {t1}, {sLO}, 10\ns_add_u32 {t2}, {t2}, {t1}\ns_lshl_b32 {t1}, {sHI}, 8\ns_add_u32 {t2}, {t2}, {t1}\ns_add_u32 {t2}, {t2}, {sGBASE}\ns_add_u32 {sOPst}, {t2}, {bOP}')
    A(f's_lshl_b32 {t1}, {sHI}, 2\ns_add_u32 {t1}, {t1}, {g3}\ns_lshl_b32 {t1}, {t1}, 6\ns_add_u32 {t1}, {t1}, {sGBASE}\ns_add_u32 {sMLg}, {t1}, {bML}\ns_add_u32 {sGSg}, {t1}, {bGS}')
    A(f's_lshl_b32 {t1}, {sLO}, 14\ns_add_u32 {sXg}, {t1}, {oXA}')
    A(f's_lshl_b32 {t1}, {t0}, 9\ns_add_u32 {sXst}, {sXg}, {t1}')
    A(f's_lshl_b32 {t1}, {sHI}, 11\ns_add_u32 {t1}, {t1}, {sGBASE}\ns_add_u32 {sGCg}, {t1}, {bGC}')
    A(f's_lshl_b32 {t3}, {sHI}, 8\ns_lshl_b32 {t1}, {sLO}, 3\ns_add_u32 {t3}, {t3}, {t1}\ns_add_u32 {t3}, {t3}, {sGBASE}\ns_add_u32 {sQSst}, {t3}, {bQS + LS}\ns_add_u32 {sGSst}, {t3}, {bGS}')
    A(f's_lshl_b32 s101, {t0}, 14\ns_add_u32 s101, s101, {TQP}')
    A(f's_lshl_b32 {t1}, {sLO}, 10\ns_lshl_b32 {t2}, {sHI}, 8\ns_add_u32 {t1}, {t1}, {t2}\ns_lshl_b32 {t2}, {g3}, 6\ns_add_u32 {t3}, {t1}, {t2}')
    A(f's_add_u32 {t1}, {sGBASE}, {t3}\ns_add_u32 {t1}, {t1}, {LS}\ns_mov_b32 {t2}, {OOB}')
    A(f's_cmp_ge_u32 {sW}, 4\ns_cselect_b32 {g0}, 0, 5')
    def st_off(dst, shift):
        A(f'v_lshlrev_b32 {vTMP}, {shift}, v120\nv_add_u32 {vTMP}, {t1}, {vTMP}\nv_mov_b32 {vTMP2}, {t2}\nv_cmp_eq_u32 vcc, 4, v120'); sel(vTMP, vTMP, vTMP2)
        A(f'v_lshl_add_u32 {vTMP}, v121, 4, {vTMP}\nv_cmp_gt_u32 vcc, {g0}, v120'); sel(dst, 'v118', vTMP)
    st_off(vQst, 13)
    A(f's_lshl_b32 {t3}, {t3}, 1\ns_lshl_b32 {t1}, {g3}, 6\ns_sub_u32 {t3}, {t3}, {t1}\ns_lshl_b32 {t1}, {sG}, 16\ns_add_u32 {t1}, {t1}, {t3}\ns_add_u32 {t1}, {t1}, {TQP}\ns_lshl_b32 {t2}, {sG}, 14\ns_add_u32 {t2}, {t2}, {t3}\ns_add_u32 {t2}, {t2}, {TQC}')
    st_off('v109', 14)
    A(f'v_lshlrev_b32 {vTMP}, 6, v122\nv_add_u32 {vTMP2}, 4, {vTMP}\nv_cmp_gt_u32 vcc, 16, {vL}'); sel(vTMP, vTMP, vTMP2)
    A(f'v_and_b32 {vTMP2}, {0x1ec*4}, {vT4}\nv_cmp_eq_u32 vcc, {256*4}, {vTMP2}'); sel(vSSt, 'v118', vTMP)
    A(f'v_lshlrev_b32 v115, 2, {vT4}')
    A(f's_lshl_b32 {t1}, {sG}, 2\ns_add_u32 {t1}, {t1}, {g3}\ns_lshl_b32 {t1}, {t1}, 14\ns_lshl_b32 {t2}, {sLO}, 11\ns_add_u32 {t1}, {t1}, {t2}\ns_lshl_b32 {t2}, {sHI}, 9\ns_add_u32 {t1}, {t1}, {t2}\ns_add_u32 {t1}, {t1}, {TOP}')
    A(f'v_and_b32 {vTMP}, 2, {vL}\nv_lshlrev_b32 {vTMP}, 7, {vTMP}\nv_lshrrev_b32 {vTMP2}, 2, {vL}\nv_lshl_add_u32 {vTMP}, {vTMP2}, 4, {vTMP}\nv_add_u32 {vTMP}, {t1}, {vTMP}\nv_and_b32 {vTMP2}, 1, {vL}\nv_cmp_eq_u32 vcc, 0, {vTMP2}'); sel('v110', 'v118', vTMP)
    A(f's_mov_b32 {sLAY}, 0\ns_mov_b32 {sTO}, 400000\ns_mov_b32 {sFAST}, 0\ns_mov_b32 {sGOK}, 0\ns_mov_b32 {sLIDX}, 0')
    A(f's_lshl_b32 {t3}, {g3}, 6\ns_lshl_b32 {t1}, {sLO}, 10\ns_add_u32 {t1}, {t1}, {sGg}\ns_add_u32 {t1}, {t1}, {t3}\ns_lshl_b32 {t2}, {sLO}, 8\ns_add_u32 {t2}, {t2}, {sGCg}\ns_add_u32 {t2}, {t2}, {t3}')
    st_off(vGst, 8)
    A(f'v_and_b32 {vTMP}, 7, {vL}\nv_lshlrev_b32 {vSt8}, 3, {vTMP}\nv_lshlrev_b32 {vL4}, 2, {vL}\nv_lshlrev_b32 {vML2}, 3, v121')
    A(f'v_cmp_eq_u32 vcc, 0, {vL}'); sel(vMLst, 'v118', '0')
    A(f's_lshl_b32 {t1}, {g3}, 8\nv_lshlrev_b32 {vTMP}, 4, v120\nv_lshl_add_u32 {vG1}, v121, 10, {vTMP}\nv_add_u32 {vG1}, {t1}, {vG1}')
    A(f's_lshl_b32 {t1}, {sW}, 6\nv_lshlrev_b32 {vXg}, 11, v123\nv_lshl_add_u32 {vXg}, v121, 9, {vXg}\nv_lshl_add_u32 {vXg}, v122, 4, {vXg}\nv_add_u32 {vXg}, {t1}, {vXg}')
    A(f's_lshr_b32 {t1}, {sW}, 1\ns_mul_i32 {t1}, {t1}, 192\ns_and_b32 {t2}, {sW}, 1\ns_lshl_b32 {t2}, {t2}, 6\ns_add_u32 {t1}, {t1}, {t2}\ns_add_u32 {t1}, {t1}, {L_XS}\nv_add_u32 {vXW}, {t1}, v117')
    A(f'v_add_u32 {vTMP2}, {L_DUMP}, {vT4}\nv_cmp_eq_u32 vcc, 0, v123'); sel(vXW, vTMP2, vXW)
    A(f's_mul_i32 {t1}, {g3}, 320\ns_add_u32 {t1}, {t1}, {L_QS}\nv_lshl_add_u32 {vQW}, v121, 2, {vTMP}\nv_add_u32 {vQW}, {t1}, {vQW}')
    A(f's_mul_i32 {t1}, {g3}, 192\ns_add_u32 {t1}, {t1}, {L_HS}\nv_lshlrev_b32 {vHW}, 3, v120\nv_lshl_add_u32 {vHW}, v121, 1, {vHW}\nv_add_u32 {vHW}, {t1}, {vHW}')
    A(f'v_mul_u32_u24 {vBR320}, 320, v122\nv_lshl_add_u32 {vBR320}, v121, 4, {vBR320}\nv_add_u32 {vBR320}, {L_QS}, {vBR320}')
    A(f'v_mul_u32_u24 {vBR192}, 192, v122\nv_lshl_add_u32 {vBR192}, v121, 4, {vBR192}\nv_add_u32 {vBR192}, {L_HS}, {vBR192}')
    A(f'v_min_u32 {vTMP2}, 4, v120\nv_mul_u32_u24 {vXR}, 192, {vTMP2}\nv_lshl_add_u32 {vXR}, v121, 4, {vXR}\nv_add_u32 {vXR}, {L_XS}, {vXR}')
    A(f's_lshl_b32 {t1}, {g3}, 5\nv_lshlrev_b32 {vTMP2}, 7, v120\nv_lshl_add_u32 {vTMP2}, v121, 3, {vTMP2}\nv_add_u32 {vTMP2}, {t1}, {vTMP2}\nv_cmp_gt_u32 vcc, 4, v120'); sel(vXst, 'v118', vTMP2)
    A(f'v_lshlrev_b32 {vTMP2}, 4, {vL}\nv_add_u32 {vROW}, {sRING}, {vTMP2}')
    A(f's_lshr_b32 {t1}, {g3}, 1\ns_lshl_b32 {t1}, {t1}, 10\ns_and_b32 {t2}, {g3}, 1\ns_lshl_b32 {t2}, {t2}, 3\ns_add_u32 {t1}, {t1}, {t2}\nv_add_u32 {vROR}, {t1}, {vTMP2}')
    A(f's_lshl_b32 {t1}, {sW}, 3\ns_add_u32 {t1}, {t1}, {L_RM}\nv_lshlrev_b32 {vRMW}, 6, v122\nv_add_u32 {vRMW}, {t1}, {vRMW}')
    A(f's_lshl_b32 {t1}, {g3}, 6\ns_add_u32 {t1}, {t1}, {L_RM}\nv_add_u32 {vRMR}, {t1}, {vSt8}')
    A(f'v_lshl_add_u32 v125, v121, 3, v123')
    A(f'v_xor_b32 {vTMP}, {g3}, v123\nv_lshlrev_b32 {vTMP}, 6, {vTMP}\nv_lshl_add_u32 {vTMP}, v122, 4, {vTMP}\nv_lshl_add_u32 {vWQr}, v125, 8, {vTMP}\nv_add_u32 {vWQr}, {L_WQ}, {vWQr}')
    A(f'v_lshrrev_b32 v119, 1, v123\nv_and_b32 v127, 1, v121\nv_lshlrev_b32 {vTMP}, 1, v127')
    A(f'v_xor_b32 {vTMP}, {g3}, {vTMP}\nv_lshlrev_b32 {vTMP}, 5, {vTMP}\nv_lshl_add_u32 {vTMP}, v122, 3, {vTMP}\nv_lshl_add_u32 {vWr}, v125, 7, {vTMP}\nv_add_u32 {vWr}, {L_WG}, {vWr}')
    A(f'v_and_b32 v126, 1, v123\nv_lshlrev_b32 {vTMP}, 1, v126\nv_xor_b32 {vTMP}, {g3}, {vTMP}\nv_lshlrev_b32 {vTMP}, 5, {vTMP}\nv_lshl_add_u32 {vTMP}, v122, 3, {vTMP}')
    A(f'v_lshl_add_u32 {vTMP2}, v121, 2, v119\nv_lshl_add_u32 {vTMP2}, v126, 6, {vTMP2}\nv_lshl_add_u32 {vWOr}, {vTMP2}, 7, {vTMP}\nv_add_u32 {vWOr}, {L_WO}, {vWOr}')
    A(f'v_and_b32 v125, 1, v120\nv_mov_b32 {vTMP}, 0xffff\nv_mov_b32 {vTMP2}, 0xffff0000\nv_cmp_eq_u32 vcc, 1, v125'); sel('v119', vTMP, vTMP2)
    A(f'v_cmp_gt_u32 vcc, 2, v122'); sel('v119', '0', 'v119')
    for i in range(4):
        A(f'v_cmp_eq_u32 vcc, {i}, v123'); sel(f'v{MASK+i}', '0', 'v119'); A(f'v_and_b32 v{32+i}, 0x3f803f80, v{MASK+i}')
    A(f'v_mov_b32 {vTMP}, 0x3f80\nv_mov_b32 {vTMP2}, 0x3f800000\nv_cmp_eq_u32 vcc, 1, v126'); sel('v119', vTMP, vTMP2)
    A(f'v_cmp_gt_u32 vcc, 2, v122'); sel('v119', '0', 'v119')
    A(f'v_lshrrev_b32 {vTMP}, 1, v123\nv_lshl_add_u32 {vTMP}, v125, 1, {vTMP}')
    for i in range(4):
        A(f'v_cmp_eq_u32 vcc, {i}, {vTMP}'); sel(f'v{40+i}', '0', 'v119')
    A('v_mov_b32 v44, 0x3f803f80\nv_mov_b32 v45, 0x3f803f80')
    A(f'v_and_b32 {vTMP2}, 7, {vL}\nv_lshrrev_b32 v119, 3, {vL}')
    A(f's_lshr_b32 {t1}, {sW}, 2\ns_lshl_b32 {t1}, {t1}, 2\nv_xor_b32 {vTMP}, {t1}, {vTMP2}\nv_lshlrev_b32 {vTMP}, 4, {vTMP}\nv_lshl_add_u32 v124, v119, 10, {vTMP}')
    A(f's_and_b32 {t1}, {sW}, 1\ns_lshl_b32 {t1}, {t1}, 2\nv_xor_b32 {vTMP}, {t1}, {vTMP2}\nv_lshlrev_b32 {vTMP}, 4, {vTMP}')
    A(f'v_lshl_add_u32 v127, v119, 10, {vTMP}\nv_mul_u32_u24 v126, 3584, v119\nv_add_u32 v126, v126, {vTMP}')
    A(f's_cmp_ge_u32 {sG}, 4\ns_cselect_b32 {t2}, 3, 4\ns_cmp_lt_u32 {sHI}, {t2}\ns_cselect_b32 {t2}, 0, {OOB}\nv_add_u32 v126, {t2}, v126\nv_add_u32 v127, {t2}, v127')
    A(f'v_lshlrev_b32 {vTMP}, 1, v123\nv_xor_b32 {vTMP}, v121, {vTMP}\nv_lshlrev_b32 {vTMP}, 5, {vTMP}\nv_lshl_add_u32 {vTMP}, v122, 3, {vTMP}\nv_lshl_add_u32 {vTMP}, v123, 8, {vTMP}\nv_add_u32 v122, {sRING}, {vTMP}\nv_xor_b32 v123, 128, v122')
    A(f'v_and_b32 {vTMP}, 3, v120\nv_lshlrev_b32 {vTMP}, 6, {vTMP}\nv_lshl_add_u32 {vTMP}, v121, 4, {vTMP}\nv_lshl_add_u32 {vTMP}, v120, 8, {vTMP}\nv_add_u32 v118, {sRING}, {vTMP}')
    for j in range(1, 4): A(f'v_xor_b32 v{118+j}, {64*j}, v118')
    A(f'v_and_b32 {vTMP}, 124, {vL4}\nv_add_u32 {vTMP}, {L_XS+4*192}, {vTMP}\nds_write_b32 {vTMP}, v44')
    A(f'v_mov_b32 {vTMP}, {L_FL}\nv_mov_b32 {vTMP2}, 0\nds_write_b32 {vTMP}, {vTMP2}')
    A(f'v_mov_b32 v76, -1\nv_mov_b32 v77, -1\nds_write_b64 {vRMR}, v[76:77]')

    def read_k(i):
        for j in range(4): A(f'ds_read_b128 a[{16*i+4*j}:{16*i+4*j+3}], v{118+j} offset:{(i&1)*4096}')
    def read_v(p):
        i = p - 16
        for hf in range(2):
            r = 64 + 4 * i + 2 * hf
            A(f'ds_read_b64_tr_b16 a[{r}:{r+1}], v{122+hf} offset:{((p//4)&1)*4096 + (p%4)*1024}')
    if not late47:
        for p in range(burst, 8): piece(p)
    if diag: xstamp(40)
    A.wait_vm('ep')
    if diag: xstamp(41)
    A(f'v_and_b32 v113, 0xffff0000, v68\nv_lshlrev_b32 v112, 16, v68')
    A(f'v_readfirstlane_b32 {sTAG}, v69\ns_add_u32 {sTAG}, {sTAG}, 1')
    A('v_dot2_f32_bf16 v78, v72, v44, 0\nv_dot2_f32_bf16 v79, v72, v72, 0')
    for k in range(73, 76): A(f'v_dot2_f32_bf16 v78, v{k}, v44, v78\nv_dot2_f32_bf16 v79, v{k}, v{k}, v79')
    for m in ('quad_perm:[1,0,3,2]', 'quad_perm:[2,3,0,1]', 'row_half_mirror', 'row_mirror'):
        A(f'v_add_f32_dpp v78, v78, v78 {m} {DPP}\nv_add_f32_dpp v79, v79, v79 {m} {DPP}')
    for sw in ('v_permlane16_swap_b32', 'v_permlane32_swap_b32'):
        A(f'v_mov_b32 v76, v78\nv_mov_b32 v77, v79\n{sw} v78, v76\n{sw} v79, v77\nv_add_f32 v78, v78, v76\nv_add_f32 v79, v79, v77')
    c2 = QSCALE * QSCALE
    A(f'v_mov_b32 v75, {f32(1e-5/c2)}\nv_mul_f32 v74, v78, v78\nv_fmac_f32 v75, {f32(1/(512*c2))}, v79\nv_fmac_f32 v75, {f32(-1/(512*512*c2))}, v74\nv_max_f32 v75, {f32(1e-5/c2)}, v75\nv_rsq_f32 v74, v75')
    A(f'v_mul_f32 v78, {f32(-1/512)}, v78\nv_add_f32 v72, v112, v78\nv_add_f32 v73, v113, v78\nv_mul_f32 v72, v72, v74\nv_mul_f32 v73, v73, v74\nv_cvt_pk_bf16_f32 v72, v72, v73\nds_write_b32 {vXW}, v72')
    if late47:
        for p in range(burst, 8): piece(p)
    if diag: xstamp(42)
    A.wait_vm('wq')
    if diag: xstamp(43)
    if bar_after_k0:
        A.wait_vm('p3')
        read_k(0)
        A('s_waitcnt lgkmcnt(0)')
        for p in range(8, 12): piece(p)
    A('s_waitcnt lgkmcnt(0)')
    if 'B' not in abl: A('s_barrier')
    stamp()

    def read_wq():
        for tl in range(2):
            for j in range(2):
                for u in range(2):
                    r = 48 + 8 * tl + 4 * j + 2 * u
                    A(f'ds_read_b64_tr_b16 v[{r}:{r+1}], {vWQr} offset:{8*tl+8192*j+1024*u}')
    def read_gu():
        for tl in range(2):
            for j in range(2):
                for u in range(2):
                    r = 48 + 8 * tl + 4 * j + 2 * u
                    A(f'ds_read_b64_tr_b16 v[{r}:{r+1}], {vWr} offset:{8192*tl+4096*j+512*u}')
    def read_wd():
        for j in range(2):
            for u in range(2):
                A(f'ds_read_b64_tr_b16 v[{48+4*j+2*u}:{49+4*j+2*u}], {vWr} offset:{16384+4096*j+512*u}')
    def read_wo():
        for j in range(4):
            for u in range(2):
                A(f'ds_read_b64_tr_b16 v[{48+4*j+2*u}:{49+4*j+2*u}], {vWOr} offset:{2048*j+256*u}')
    def xs_reads(): A(f'ds_read_b128 v[80:83], {vXR}\nds_read_b128 v[84:87], {vXR} offset:64')
    def matvec(vst, mode, late_w=None, soff='0'):
        xs_reads()
        if late_w: late_w()
        A('s_waitcnt lgkmcnt(0)' if late_w else 's_waitcnt lgkmcnt(1)')
        A(f'{M16} v[96:99], v[48:51], v[80:83], 0\n{M16} v[104:107], v[56:59], v[80:83], 0')
        if not late_w: A('s_waitcnt lgkmcnt(0)')
        A(f'{M16} v[96:99], v[52:55], v[84:87], v[96:99]\n{M16} v[104:107], v[60:63], v[84:87], v[104:107]')
        if mode == 'plain':
            A(f's_cmp_eq_u32 {sFAST}, 1')
            A('v_cvt_pk_bf16_f32 v96, v96, v97\nv_cvt_pk_bf16_f32 v97, v98, v99\nv_cvt_pk_bf16_f32 v98, v104, v105\nv_cvt_pk_bf16_f32 v99, v106, v107')
            lstore(f'buffer_store_dwordx4 v[96:99], {vst}, {WS}, {soff} offen', cmp=False)
            return
        A(f'v_mov_b32 v102, {sTAG}\nv_mov_b32 v103, s64')
        A(f'v_cvt_pk_bf16_f32 v100, v96, v97\nv_cvt_pk_bf16_f32 v101, v98, v99\nv_cvt_pk_bf16_f32 v104, v104, v105\nv_cvt_pk_bf16_f32 v105, v106, v107')
        A(f'v_mov_b32 v106, {sTAG}\nv_mov_b32 v107, s64')
        if mode == 'q0':
            A.vmop(f'buffer_store_dwordx4 v[100:103], {vst}, {WS}, 0 offen', 'st')
            A.vmop(f'buffer_store_dwordx4 v[104:107], {vst}, {WS}, 0 offen offset:256', 'st')
        else:
            lstore(f'buffer_store_dwordx4 v[100:103], {vst}, {WS}, 0 offen\nbuffer_store_dwordx4 v[104:107], {vst}, {WS}, 0 offen offset:256')
    def slice_stats(sst):
        l = lab('st')
        A(f's_cmp_lg_u32 {sW}, 4\ns_cbranch_scc1 {l}')
        xs_reads()
        A('s_waitcnt lgkmcnt(1)')
        A(f'{M16} v[104:107], v[80:83], v[80:83], 0\ns_waitcnt lgkmcnt(0)\n{M16} v[104:107], v[84:87], v[84:87], v[104:107]')
        def pick():
            A('v_cndmask_b32 v104, v104, v105, s[80:81]\nv_cndmask_b32 v106, v106, v107, s[80:81]\nv_cndmask_b32 v104, v104, v106, s[82:83]')
        A('s_mov_b64 s[80:81], 10\ns_mov_b64 s[82:83], 12')
        A(f's_cmp_eq_u32 {sFAST}, 1')
        pick()
        lstore(f'buffer_store_dword v104, {vSSt}, {WS}, {sst} offen', cmp=False)
        A.vm.pop()
        A(f'{l}:')

    def issue_g1(dst, voff, sbase, tag, step=4096):
        A.vmop(f'buffer_load_dwordx4 v[{dst}:{dst+3}], {voff}, {WS}, {sbase} offen sc1', tag)
        if step >= 4096:
            A(f's_add_u32 {t1}, {sbase}, {step}')
            A.vmop(f'buffer_load_dwordx4 v[{dst+4}:{dst+7}], {voff}, {WS}, {t1} offen sc1', tag)
        else:
            A.vmop(f'buffer_load_dwordx4 v[{dst+4}:{dst+7}], {voff}, {WS}, {sbase} offen offset:{step} sc1', tag)
    def check_empty(regs):
        regs = list(regs)
        A(f'v_max3_u32 {vTMP}, v{regs[0]}, v{regs[1]}, v{regs[2]}'); rest = regs[3:]
        if len(rest) >= 5:
            A(f'v_max3_u32 {vTMP2}, v{rest[0]}, v{rest[1]}, v{rest[2]}'); rest = rest[3:]
            tg = 0
            while len(rest) >= 2:
                d = (vTMP, vTMP2)[tg]; A(f'v_max3_u32 {d}, {d}, v{rest[0]}, v{rest[1]}'); rest = rest[2:]; tg ^= 1
            if rest: A(f'v_max3_u32 {vTMP}, {vTMP}, {vTMP2}, v{rest[0]}')
            else: A(f'v_max_u32 {vTMP}, {vTMP}, {vTMP2}')
        else:
            while len(rest) >= 2:
                A(f'v_max3_u32 {vTMP}, {vTMP}, v{rest[0]}, v{rest[1]}'); rest = rest[2:]
            if rest: A(f'v_max_u32 {vTMP}, {vTMP}, v{rest[0]}')
        A(f'v_cmp_eq_u32 vcc, -1, {vTMP}')
    def poll(issue, regs, spec=None, mark=None):
        r, d = lab('retry'), lab('got')
        A(f'{r}:')
        issue()
        A.wait_vm()
        if mark: A(f'{mark}:')
        if spec: spec()
        check_empty(regs)
        tl = lab('again')
        A(f's_cbranch_vccnz {tl}\n{d}:')
        tails.append(f'{tl}:\n' + (f's_sleep {backoff}\n' if backoff else '') + f's_sub_u32 {sTO}, {sTO}, 1\ns_cbranch_scc0 {r}\ns_mov_b32 {sTO}, 0\ns_branch {d}')
    def poll2(issue, nld, regs, spec):
        d, sb, sa = lab('got'), lab('setb'), lab('seta')
        issue(0)
        if dstep: A(f's_sleep {dstep}')
        issue(1)
        A(f'{sa}:\ns_waitcnt vmcnt({nld})')
        spec(0); check_empty(regs(0))
        A(f's_cbranch_vccnz {sb}\n{d}:')
        keepL, A.L = A.L, []
        A(f'{sb}:'); issue(0)
        A(f's_waitcnt vmcnt({nld})\ns_nop 1')
        spec(1); check_empty(regs(1))
        A(f's_nop 1\ns_cbranch_vccz {d}')
        issue(1)
        A(f's_sub_u32 {sTO}, {sTO}, 1\ns_cbranch_scc0 {sa}\ns_mov_b32 {sTO}, 0\ns_branch {d}')
        tails.append('\n'.join(A.L)); A.L = keepL
        A.vm = []
    def ln_poll_nan(sdata, sstat, selop, cs, scale):
        c2 = scale * scale
        def iss(k):
            issue_g1(64 + 16 * k, vG1, sdata, 'x')
            A.vmop(f'buffer_load_dwordx2 v[{72+16*k}:{73+16*k}], {vSt8}, {WS}, {sstat} offen sc1', 'x')
        def work(k):
            b = 64 + 16 * k
            A(f'{M16} v[96:99], {selop}, v[{b}:{b+3}], 0\n{M16} v[96:99], {selop}, v[{b+4}:{b+7}], v[96:99]')
            A(f'v_add_f32_dpp v78, v{b+8}, v{b+8} quad_perm:[1,0,3,2] {DPP}\nv_add_f32_dpp v79, v{b+9}, v{b+9} quad_perm:[1,0,3,2] {DPP}\nv_mov_b32 v75, {f32(1e-5/c2)}')
            A(f'v_add_f32_dpp v78, v78, v78 quad_perm:[2,3,0,1] {DPP}\nv_add_f32_dpp v79, v79, v79 quad_perm:[2,3,0,1] {DPP}')
            A(f'v_add_f32_dpp v78, v78, v78 row_half_mirror {DPP}\nv_add_f32_dpp v79, v79, v79 row_half_mirror {DPP}')
            A(f'v_mul_f32 v74, v78, v78\nv_fmac_f32 v75, {f32(1/(512*c2))}, v79\nv_fmac_f32 v75, {f32(-1/(512*512*c2))}, v74')
            A(f'v_pk_fma_f32 v[96:97], v[78:79], {cs}, v[96:97] op_sel_hi:[0,1,1] neg_lo:[1,0,0] neg_hi:[1,0,0]')
            A(f'v_max_f32 v76, {f32(1e-5/c2)}, v75\nv_rsq_f32 v74, v76\nv_cmp_u_f32 vcc, v96, v75')
        d, sb, sa = lab('got'), lab('setb'), lab('seta')
        iss(0)
        if dstep: A(f's_sleep {dstep}')
        iss(1)
        A(f'{sa}:\ns_waitcnt vmcnt(3)')
        work(0)
        A(f's_cbranch_vccnz {sb}\n{d}:')
        keepL, A.L = A.L, []
        A(f'{sb}:'); iss(0)
        A('s_waitcnt vmcnt(3)')
        work(1)
        A(f's_cbranch_vccz {d}'); iss(1)
        A(f's_sub_u32 {sTO}, {sTO}, 1\ns_cbranch_scc0 {sa}\ns_mov_b32 {sTO}, 0\ns_branch {d}')
        tails.append('\n'.join(A.L)); A.L = keepL
        A.vm = []
        A('v_pk_mul_f32 v[96:97], v[96:97], v[74:75] op_sel_hi:[1,0]')
    def ln_poll2(sdata, sstat, selop):
        def iss(k):
            issue_g1(64 + 16 * k, vG1, sdata, 'x')
            A.vmop(f'buffer_load_dwordx2 v[{72+16*k}:{73+16*k}], {vSt8}, {WS}, {sstat} offen sc1', 'x')
        def spec(k):
            b = 64 + 16 * k
            A(f'{M16} v[96:99], {selop}, v[{b}:{b+3}], 0\n{M16} v[96:99], {selop}, v[{b+4}:{b+7}], v[96:99]')
            A(f'v_add_f32_dpp v78, v{b+8}, v{b+8} quad_perm:[1,0,3,2] {DPP}\nv_add_f32_dpp v79, v{b+9}, v{b+9} quad_perm:[1,0,3,2] {DPP}')
        poll2(iss, 3, lambda k: range(64 + 16 * k, 74 + 16 * k), spec)
    def issue_q(first):
        if not first:
            issue_g1(64, vG1, sQg, 'q')
            A.vmop(f'buffer_load_dwordx2 v[72:73], {vSt8}, {WS}, {sQSg} offen sc1', 'q')
            return
        issue_tagged(f's_mov_b32 {t1}, s101')
    def issue_tagged(base, dst=80, voff=None, kstep=8192, hstep=256):
        if voff is None:
            A(f'v_and_b32 {vTMP2}, 0xf0, {vG1}\nv_lshlrev_b32 {vTMP}, 1, {vG1}\nv_sub_u32 {vTMP}, {vTMP}, {vTMP2}')
        else: A(voff)
        A(base + f'\ns_add_u32 {t2}, {t1}, {kstep}')
        for k in range(2):
            for hh in range(2):
                r = dst[2 * k + hh] if isinstance(dst, tuple) else dst + 8 * k + 4 * hh
                A.vmop(f'buffer_load_dwordx4 v[{r}:{r+3}], {vTMP}, {WS}, {(t1, t2)[k]} offen offset:{hstep*hh} sc1', 'q')
    def issue_o0():
        issue_tagged(f's_lshl_b32 {t1}, {sG}, 2\ns_add_u32 {t1}, {t1}, {sHI}\ns_lshl_b32 {t0}, {t1}, 2\ns_lshl_b32 {t1}, {t1}, 14\ns_add_u32 {t1}, {t1}, {TOP}', o0dst[0])
        A(f's_add_u32 {t0}, {t0}, {sW}\ns_lshl_b32 {t0}, {t0}, 7\ns_add_u32 {t0}, {t0}, {TML}\nv_lshlrev_b32 {vTMP2}, 1, {vML2}')
        m_ = o0ml[0]
        A.vmop(f'buffer_load_dwordx4 v[{m_}:{m_+3}], {vTMP2}, {WS}, {t0} offen sc1', 'q')
        A.vmop(f'buffer_load_dwordx4 v[{m_+4}:{m_+7}], {vTMP2}, {WS}, {t0} offen offset:64 sc1', 'q')
    o0dst = [80]; o0ml = [64]
    def check_words(words, sval):
        w = list(words)
        A(f'v_xor_b32 {vTMP}, {sval}, v{w[0]}')
        for x in w[1:]: A(f'v_xor_b32 {vTMP2}, {sval}, v{x}\nv_or_b32 {vTMP}, {vTMP}, {vTMP2}')
        A(f'v_cmp_ne_u32 vcc, 0, {vTMP}')
    def check_tags(words=(82, 86, 90, 94)): check_words(words, sTAG)
    def tagged_sum(selbase=32, src=80, acc=96, selk=0):
        for n_, (k, hh) in enumerate(((0, 0), (0, 1), (1, 0), (1, 1))):
            r = src[2 * k + hh] if isinstance(src, tuple) else src + 8 * k + 4 * hh
            sb = selbase + selk * k + 2 * hh
            c = '0' if n_ == 0 else f'v[{acc}:{acc+3}]'
            A(f'v_mfma_f32_16x16x16_bf16 v[{acc}:{acc+3}], v[{sb}:{sb+1}], v[{r}:{r+1}], {c}')
    def q0_finish():
        tagged_sum()
        check_words((83, 87, 91, 95), 's64')
        A(f's_cmp_eq_u64 vcc, 0\ns_cselect_b32 {sGOK}, 1, 2')
        A(f'v_cvt_pk_bf16_f32 v96, v96, v97\nds_write_b32 {vQW}, v96')
    def tagged_poll(issue, words=(82, 86, 90, 94), spec=None, back=0):
        rq, gq = lab('rq'), lab('gq')
        A(f'{rq}:')
        issue(); A.wait_vm()
        if spec: spec()
        check_tags(words)
        A(f's_cbranch_vccz {gq}')
        if back: A(f's_sleep {back}')
        A(f's_sub_u32 {sTO}, {sTO}, 1\ns_cbranch_scc0 {rq}\ns_mov_b32 {sTO}, 0\n{gq}:')
    CQ = (48, 52, 56, 60)
    def issue_csq(): issue_tagged(f's_lshl_b32 {t1}, {sG}, 14\ns_add_u32 {t1}, {t1}, {TQC}', CQ)
    def finish_csq():
        ok_ = lab('cq')
        check_tags(tuple(r + 2 for r in CQ))
        A(f's_cbranch_vccz {ok_}')
        tagged_poll(issue_csq, tuple(r + 2 for r in CQ))
        A(f'{ok_}:')
        tagged_sum(32, CQ, 64)
        A(f's_mov_b32 {t2}, {f32(1/512)}\nv_pk_mul_f32 {CSQ}, v[64:65], s[56:57] op_sel_hi:[1,0]')
    QREGS = list(range(64, 74)); QREGS1 = QREGS + list(range(80, 88))
    def ln_spec(selop, first):
        def f():
            A(f'{M16} v[96:99], {selop}, v[64:67], 0\n{M16} v[96:99], {selop}, v[68:71], v[96:99]')
            if first:
                A(f'{M16} v[100:103], {selop}, v[80:83], 0\n{M16} v[100:103], {selop}, v[84:87], v[100:103]')
            A(f'v_add_f32_dpp v78, v72, v72 quad_perm:[1,0,3,2] {DPP}\nv_add_f32_dpp v79, v73, v73 quad_perm:[1,0,3,2] {DPP}')
        return f
    def ln_finish(cs, scale, first, csrc=100):
        for m in ('quad_perm:[2,3,0,1]', 'row_half_mirror'):
            A(f'v_add_f32_dpp v78, v78, v78 {m} {DPP}\nv_add_f32_dpp v79, v79, v79 {m} {DPP}')
            if m.startswith('quad'): A(f'v_mov_b32 v75, {f32(1e-5/(scale*scale))}')
        c2 = scale * scale
        A(f'v_mul_f32 v74, v78, v78\nv_fmac_f32 v75, {f32(1/(512*c2))}, v79')
        if first:
            A(f's_mov_b32 {t2}, {f32(1/512)}\nv_pk_mul_f32 {cs}, v[{csrc}:{csrc+1}], s[56:57] op_sel_hi:[1,0]')
        A(f'v_fmac_f32 v75, {f32(-1/(512*512*c2))}, v74\nv_max_f32 v75, {f32(1e-5/c2)}, v75\nv_rsq_f32 v74, v75')
        A(f'v_pk_fma_f32 v[96:97], v[78:79], {cs}, v[96:97] op_sel_hi:[0,1,1] neg_lo:[1,0,0] neg_hi:[1,0,0]')
        A(f'v_pk_mul_f32 v[96:97], v[96:97], v[74:75] op_sel_hi:[1,0]')
    def q_finish(first):
        ln_finish(CSQ, QSCALE, first)
        A(f'v_cvt_pk_bf16_f32 v96, v96, v97\nds_write_b32 {vQW}, v96')

    A('; ---- first q projection, published with plain stores and this CU\'s XCC id')
    save = list(A.vm)
    with lowwaves():
        read_wq()
        A('s_waitcnt lgkmcnt(0)')
        if 'Q' not in abl: matvec('v109', 'q0')
    stamp()

    def issue_wo():
        A(f's_lshl_b32 {t1}, {sG}, 9\ns_lshl_b32 {t2}, {sHI}, 7\ns_add_u32 {t1}, {t1}, {t2}\ns_lshl_b32 {t2}, {sW}, 4\ns_add_u32 {t1}, {t1}, {t2}\ns_lshl_b32 {t1}, {t1}, 10\ns_lshl_b32 {t2}, {sLO}, 7\ns_add_u32 {t1}, {t1}, {t2}')
        A(f's_lshl_b32 {t2}, {sW}, 11\ns_add_u32 m0, {t2}, {L_WO}')
        A.vmop(f'buffer_load_dwordx4 v124, {WO}, {t1} offen nt lds', 'wo')
        A(f's_add_u32 {t1}, {t1}, 8192\ns_add_u32 m0, m0, 1024')
        A.vmop(f'buffer_load_dwordx4 v124, {WO}, {t1} offen nt lds', 'wo')

    def issue_ffn(dw=0, track=False, parts='gud'):
        vm_ = (lambda x: A.vmop(x, 'ffn')) if track else A
        A(f's_add_u32 {t0}, {sW}, {dw}')
        if 'g' in parts:
            A(f's_lshl_b32 {t1}, {sLO}, 6\ns_lshl_b32 {t2}, {t0}, 3\ns_add_u32 {t1}, {t1}, {t2}\ns_mul_i32 {t1}, {t1}, 3584\ns_lshl_b32 {t2}, {g2}, 7\ns_add_u32 {t1}, {t1}, {t2}')
        A(f's_lshl_b32 {t2}, {t0}, 10\ns_add_u32 m0, {t2}, {L_WG}')
        if 'g' in parts:
            vm_(f'buffer_load_dwordx4 v126, {WG}, {t1} offen nt lds')
            A(f's_add_u32 m0, {t2}, {L_WU}')
            vm_(f'buffer_load_dwordx4 v126, {WU}, {t1} offen nt lds')
        if 'd' not in parts: return
        A(f's_lshl_b32 {t1}, {g2}, 6\ns_lshl_b32 {t3}, {t0}, 3\ns_add_u32 {t1}, {t1}, {t3}\ns_lshl_b32 {t1}, {t1}, 10\ns_lshl_b32 {t3}, {sLO}, 7\ns_add_u32 {t1}, {t1}, {t3}\ns_add_u32 m0, {t2}, {L_WD}')
        vm_(f'buffer_load_dwordx4 v127, {WD}, {t1} offen nt lds')
    wait_of = {}
    d = 6
    for p_ in range(12, 32):
        tgt = depth if p_ < deep_from else deep
        need_d = p_ - tgt
        if p_ in (12, 16, 20): need_d = max(need_d, p_ - 5)
        if need_d > d: wait_of[p_] = list(range(d + 1, need_d + 1)); d = need_d
        else: wait_of[p_] = []
    last_read = d
    def step(p):
        for d_ in wait_of[p]:
            A.wait_vm(f'p{d_}')
            if d_ < 16:
                if d_ % 4 == 3: read_k(d_ // 4); A('s_waitcnt lgkmcnt(0)')
            else:
                A('s_waitcnt lgkmcnt(0)')
                read_v(d_)
            if diag and d_ in (7, 11, 15, 19, 23): xstamp(45 + (d_ - 7) // 4)
        if ffn_at and p == ffn_at and len(tail_parts) < 3: issue_ffn(0, True, ''.join(c_ for c_ in 'gud' if c_ not in tail_parts))
        if p == wo_at: issue_wo()
        piece(p)
    hi_l, join_all, flag_l = lab('shi'), lab('sj'), lab('fl')
    def lead_in():
        if not bar_after_k0:
            A.wait_vm('p3')
            if diag: xstamp(44)
            read_k(0); A('s_waitcnt lgkmcnt(0)')
            for pp in range(8, 12): piece(pp)
    lowcode = [True]
    def steps(lo_, hi_):
        for pp in range(lo_, hi_):
            if pp == touch_o and lowcode[0]:
                n_ = len(A.vm); o0dst[0] = 48; issue_o0(); o0dst[0] = 80
                A.vm[n_:] = ['touch'] * (len(A.vm) - n_)
            if pp == csq_at and lowcode[0] and 'S' not in abl:
                n_ = len(A.vm); issue_csq(); A.vm[n_:] = ['csq'] * (len(A.vm) - n_)
            step(pp)
    A(f's_cmp_ge_u32 {sW}, 4\ns_cbranch_scc1 {hi_l}')
    lead_in()
    p = 12
    while p < p_sc:
        if p in rides:
            assert p + 5 <= p_sc
            skip, join = lab('noq'), lab('jn')
            saved = list(A.vm)
            A(f's_cmp_lg_u32 {sGOK}, 0\ns_cbranch_scc1 {skip}')
            issue_q(True)
            steps(p, p + 5)
            if 'q' in A.vm: A.wait_vm('q')
            check_tags()
            nq = lab('nq')
            A(f's_cbranch_vccnz {nq}')
            q0_finish()
            A(f'{nq}:\ns_branch {join}\n{skip}:')
            after_q = list(A.vm)
            A.vm = saved
            steps(p, p + 5)
            extra = len(A.vm) - len(after_q)
            assert A.vm[extra:] == after_q, (A.vm, after_q)
            A.vm = after_q if extra <= 0 else A.vm
            A(f'{join}:')
            p += 5
        else:
            steps(p, p + 1); p += 1
    saved = list(A.vm)
    def put_status():
        A(f's_lshl_b32 {t1}, {sW}, 2\ns_add_u32 {t1}, {t1}, {L_ST}\nv_mov_b32 {vTMP}, {t1}\nv_mov_b32 {vTMP2}, {sGOK}\nds_write_b32 {vTMP}, {vTMP2}')
    def get_status():
        A(f'v_mov_b32 {vTMP}, {L_ST}\nds_read_b128 v[72:75], {vTMP}\ns_waitcnt lgkmcnt(0)')
        check_words((72, 73, 74, 75), '1')
        A('s_cmp_eq_u64 vcc, 0')
    put_status()
    A(f's_branch {join_all}\n{hi_l}:')
    A.vm = save; lowcode[0] = False
    lead_in()
    steps(12, p_sc)
    saved = list(A.vm)
    A(f'{join_all}:')
    stamp()
    A('s_waitcnt lgkmcnt(0)\ns_barrier')
    get_status()
    okq = lab('okq')
    A(f's_cbranch_scc1 {okq}')
    if not abl:
        with lowwaves():
            A(f'buffer_store_dwordx4 v[100:103], v109, {WS}, 0 offen sc1\nbuffer_store_dwordx4 v[104:107], v109, {WS}, 0 offen offset:256 sc1')
            dn = lab('qdone')
            A(f's_cmp_lg_u32 {sGOK}, 0\ns_cbranch_scc1 {dn}')
            tagged_poll(lambda: issue_q(True))
            q0_finish()
            A(f'{dn}:')
        A('s_barrier')
        with lowwaves(): put_status()
        A('s_waitcnt lgkmcnt(0)\ns_barrier')
        get_status()
    A(f'{okq}:\ns_cselect_b32 {sFAST}, 1, 0')
    A.vm = saved
    def issue_ffn_any(dw, parts=None):
        if dw & 1: A('v_xor_b32 v126, 64, v126\nv_xor_b32 v127, 64, v127')
        issue_ffn(dw, False, parts or ''.join(c_ for c_ in ('gu' if wd_after else 'gud') if c_ not in tail_parts + mid_parts))
        if dw & 1: A('v_xor_b32 v126, 64, v126\nv_xor_b32 v127, 64, v127')
    def first_only(f):
        def g():
            l, bk = lab('fo'), lab('bk')
            A(f's_cmp_eq_u32 {sLIDX}, 0\ns_cbranch_scc1 {l}\n{bk}:')
            keepL, A.L = A.L, []
            A(f'{l}:'); f(); A(f's_branch {bk}')
            tails.append('\n'.join(A.L)); A.L = keepL
        return g
    def variant(first, later):
        l, bk = lab('v0'), lab('vj')
        A(f's_cmp_eq_u32 {sLIDX}, 0\ns_cbranch_scc1 {l}')
        n0 = nts[0]
        later()
        A(f'{bk}:')
        n1, nts[0] = nts[0], n0
        keepL, A.L = A.L, []
        A(f'{l}:'); first(); A(f's_branch {bk}')
        tails.append('\n'.join(A.L)); A.L = keepL
        assert nts[0] == n1
    def later_only(f):
        l = lab('lo'); A(f's_cmp_eq_u32 {sLIDX}, 0\ns_cbranch_scc1 {l}'); f(); A(f'{l}:')
    def scores(bar=True):
        if bar: A('s_waitcnt lgkmcnt(0)\ns_barrier')
        for j in range(4): A(f'ds_read_b128 v[{64+4*j}:{67+4*j}], {vBR320} offset:{64*j}')
        def sel_t(t, rs):
            for r in rs: A(f'v_mov_b32_dpp v{80+r}, v{80+4*t+r} quad_perm:[0,1,2,3] row_mask:0xf bank_mask:{1<<t:#x}')
        if tmajor:
            for t in range(4):
                for j in range(4):
                    if t == 0: A(f's_waitcnt lgkmcnt({3-j})')
                    c = '0' if j == 0 else f'v[{80+4*t}:{83+4*t}]'
                    A(f'{M16} v[{80+4*t}:{83+4*t}], a[{16*t+4*j}:{16*t+4*j+3}], v[{64+4*j}:{67+4*j}], {c}')
            sel_t(1, range(4)); sel_t(2, range(4)); sel_t(3, range(4))
        else:
            for j in range(4):
                A(f's_waitcnt lgkmcnt({3-j})')
                for t in range(4):
                    c = '0' if j == 0 else f'v[{80+4*t}:{83+4*t}]'
                    A(f'{M16} v[{80+4*t}:{83+4*t}], a[{16*t+4*j}:{16*t+4*j+3}], v[{64+4*j}:{67+4*j}], {c}')
            for t in range(1, 4): sel_t(t, range(4))
        A('v_max3_f32 v84, v80, v81, v82\nv_max_f32 v84, v84, v83')
        A(f'v_max_f32_dpp v84, v84, v84 row_ror:4 {DPP}')
        A(f'v_max_f32_dpp v84, v84, v84 row_ror:8 {DPP}')
        A('v_mov_b32 v85, v84\nv_permlane16_swap_b32 v84, v85\nv_max_f32 v84, v84, v85')
        A('v_mov_b32 v85, v84\nv_permlane32_swap_b32 v84, v85\nv_max_f32 v84, v84, v85')
        A('v_pk_add_f32 v[80:81], v[80:81], v[84:85] op_sel_hi:[1,0] neg_lo:[0,1] neg_hi:[0,1]')
        A('v_pk_add_f32 v[82:83], v[82:83], v[84:85] op_sel_hi:[1,0] neg_lo:[0,1] neg_hi:[0,1]')
        for r in range(4): A(f'v_exp_f32 v{80+r}, v{80+r}')
        A('v_cvt_pk_bf16_f32 v86, v80, v81\nv_cvt_pk_bf16_f32 v87, v82, v83')
        A(f'v_mfma_f32_16x16x16_bf16 v[88:91], {ONES}, v[86:87], 0')
    def pv(i):
        for hf in range(2):
            acc = 96 + 8 * (i & 1) + 4 * hf
            c = '0' if i < 2 else f'v[{acc}:{acc+3}]'
            A(f'v_mfma_f32_4x4x4_16b_bf16 v[{acc}:{acc+3}], v[86:87], a[{64+4*i+2*hf}:{65+4*i+2*hf}], {c} cbsz:4 abid:{4*(i&3)+(i>>2)}')
    def lsum():
        A(f'v_add_f32_dpp v85, v88, v88 row_ror:4 {DPP}')
        A(f'v_add_f32_dpp v85, v85, v85 row_ror:8 {DPP}')
        A(f's_mov_b64 exec, 15\nds_write_b64 {vRMW}, v[84:85]')
        full_exec()
    def combine(tagged=False, other=None):
        for h in range(4):
            A(f'v_add_f32 v{64+2*h}, v{96+h}, v{104+h}\nv_add_f32 v{65+2*h}, v{100+h}, v{108+h}')
            if h & 1: A(f'ds_write_b128 {vROW}, v[{62+2*h}:{65+2*h}] offset:{512*(h-1)}')
        def ml_tagged():
            A(f'v_mov_b32 v76, {sTAG}\nv_mov_b32 v77, {sTAG}')
            A(f's_lshl_b32 {t1}, {sG}, 2\ns_add_u32 {t1}, {t1}, {sW}\ns_lshl_b32 {t1}, {t1}, 2\ns_add_u32 {t1}, {t1}, {sHI}\ns_lshl_b32 {t1}, {t1}, 3\ns_add_u32 {t1}, {t1}, {sLO}\ns_lshl_b32 {t1}, {t1}, 4\ns_add_u32 {t1}, {t1}, {TML}')
            lstore(f'buffer_store_dwordx4 v[74:77], {vMLst}, {WS}, {t1} offen')
        def ml_plain(): lstore(f'buffer_store_dwordx2 v[74:75], {vMLst}, {WS}, {sMLst} offen')
        with lowwaves():
            r_, d_, t_ = lab('rm'), lab('rd'), lab('rt')
            A(f'{r_}:\nds_read_b64 v[72:73], {vRMR}\ns_waitcnt lgkmcnt(0)\nv_cmp_eq_u32 vcc, -1, v73\ns_cbranch_vccnz {t_}\n{d_}:')
            tails.append(f'{t_}:\ns_sub_u32 {sTO}, {sTO}, 1\ns_cbranch_scc0 {r_}\ns_mov_b32 {sTO}, 0\ns_branch {d_}')
            A(f'v_max_f32_dpp v74, v72, v72 quad_perm:[1,0,3,2] {DPP}')
            A(f'v_max_f32_dpp v74, v74, v74 quad_perm:[2,3,0,1] {DPP}')
            A(f'v_max_f32_dpp v74, v74, v74 row_half_mirror {DPP}')
            A('v_sub_f32 v72, v72, v74\nv_exp_f32 v72, v72\nv_mul_f32 v75, v73, v72')
            k = 0
            for m in ('quad_perm:[1,0,3,2]', 'quad_perm:[2,3,0,1]', 'row_half_mirror'):
                A(f'v_readlane_b32 s{80+k}, v72, {k}\nv_readlane_b32 s{81+k}, v72, {k+1}'); k += 2
                A(f'v_add_f32_dpp v75, v75, v75 {m} {DPP}')
            variant(ml_tagged, ml_plain)
            A('v_readlane_b32 s86, v72, 6\nv_readlane_b32 s87, v72, 7')
        with lowwaves(other, 's_waitcnt lgkmcnt(0)\ns_barrier'):
            for k in range(8): A(f'ds_read_b64 v[{80+2*k}:{81+2*k}], {vROR} offset:{8192*k}')
            for k in range(8):
                sp = f's[{80+(k&~1)}:{81+(k&~1)}]'
                o = 'op_sel_hi:[1,0' if (k & 1) == 0 else 'op_sel:[0,1'
                d = 64 + 2 * (k & 1)
                if k % 2 == 0: A(f's_waitcnt lgkmcnt({6-k})')
                if k < 2: A(f'v_pk_mul_f32 v[{d}:{d+1}], v[{80+2*k}:{81+2*k}], {sp} {o}]')
                else: A(f'v_pk_fma_f32 v[{d}:{d+1}], v[{80+2*k}:{81+2*k}], {sp}, v[{d}:{d+1}] {o},{1 if (k&1)==0 else 0}]')
            A('v_pk_add_f32 v[64:65], v[64:65], v[66:67]\nv_cvt_pk_bf16_f32 v64, v64, v65')
            def pub_tagged():
                A(f'v_mov_b32 v66, {sTAG}\nv_mov_b32 v67, {sTAG}\nv_mov_b32_dpp v65, v64 quad_perm:[1,1,3,3] {DPP}')
                lstore(f'buffer_store_dwordx4 v[64:67], v118, {WS}, 0 offen')
                A(f'v_mov_b32 v76, -1\nv_mov_b32 v77, -1\nds_write_b64 {vRMR}, v[76:77]')
            def pub_plain(): lstore(f'buffer_store_dword v64, {vL4}, {WS}, {sOPst} offen')
            variant(pub_tagged, pub_plain)

    A('v_mov_b32 v118, v110\nv_mov_b32 v114, 0\ns_mov_b32 s80, 0\ns_mov_b32 s81, 0\ns_mov_b32 s82, 0\ns_mov_b32 s83, 0\ns_mov_b32 s84, 0\ns_mov_b32 s85, 0')
    A(f's_mul_i32 {t1}, {sC}, 1312\ns_add_u32 {t1}, {t1}, {sGBASE}\ns_add_u32 {t1}, {t1}, {bGP - 7168}\ns_sub_u32 {t2}, {sXst}, 7168')
    A(f'v_add_u32 v119, {t1}, v115\nv_add_u32 v120, {t2}, v115\nv_add_u32 {vTMP}, {oXB - oXA - 512}, v120\nv_cmp_lt_u32 vcc, 31, {vL}'); sel('v120', 'v120', vTMP)
    A(f'v_add_u32 v121, 1024, v119\nv_mov_b32 {vTMP}, {OOB}\nv_cmp_lt_u32 vcc, 17, {vL}'); sel('v121', 'v121', vTMP)
    A(f'v_cmp_gt_u32 vcc, 7168, v115'); sel('v119', 'v119', vTMP); sel('v120', 'v120', vTMP); sel('v121', 'v121', vTMP)
    def clean_urgent():
        A('v_mov_b32 v92, -1\nv_mov_b32 v93, -1\nv_mov_b32 v94, -1\nv_mov_b32 v95, -1')
        A.vmop(f'buffer_store_dwordx4 v[92:95], v119, {WS}, 0 offen sc1', 'cu')
        A.vmop(f'buffer_store_dwordx4 v[92:95], v120, {WS}, 0 offen sc1', 'cu')
        A.vmop(f'buffer_store_dwordx4 v[92:95], v121, {WS}, 0 offen sc1', 'cu')
    if share: A('s_branch L_scores\nL_scored:')
    else: scores(False)
    d0 = max([6] + [d_ for p_ in range(12, p_sc) for d_ in wait_of[p_]])
    assert d0 >= 17
    for i in range(d0 - 15): pv(i)
    lsum()
    stamp()
    pend = [None]; csq_done = [False]
    def landed(d_):
        A.wait_vm(f'p{d_}')
        if pend[0] is not None: A('s_waitcnt lgkmcnt(0)')
        read_v(d_)
        if pend[0] is not None: pv(pend[0])
        pend[0] = d_ - 16
        if d_ >= csq_at and not csq_done[0] and not abl:
            csq_done[0] = True
            keep_vm = list(A.vm)
            with lowwaves(): finish_csq()
            A.vm = keep_vm
    for p in range(p_sc, 32):
        for d_ in wait_of[p]: landed(d_)
        piece(p, p == p_sc)
    for p in range(last_read + 1, 32):
        landed(p)
        if p == cl_at and 'C' not in abl: clean_urgent()
        if p == wt_at and 'W' not in abl:
            assert cl_at <= wt_at
            issue_wo()
            if tail_parts: issue_ffn(0, True, tail_parts)
    A('s_waitcnt lgkmcnt(0)')
    pv(pend[0])
    if padfrom == 'V': A('s_memrealtime s[98:99]\ns_waitcnt lgkmcnt(0)')
    stamp()
    if abl: A('s_branch L_fin')
    def flag_addr():
        A(f's_lshl_b32 {t1}, {sLO}, 10\ns_lshl_b32 {t2}, {sG}, 7\nv_and_b32 v68, 7, {vL}\nv_and_b32 v69, 24, {vL}\nv_lshlrev_b32 v68, 7, v68\nv_lshl_add_u32 v68, v69, 10, v68\nv_add_u32 v68, {t1}, v68')
        A(f'v_and_b32 v69, 31, {vL}\nv_lshlrev_b32 v69, 10, v69\nv_add_u32 v69, {t2}, v69\nv_cmp_lt_u32 vcc, 31, {vL}'); sel('v68', 'v68', 'v69')
        A(f's_mov_b32 {t1}, {TF}')
    def clean_rest():
        l_ = lab('cr')
        A(f's_cmp_lg_u32 {sW}, 7\ns_cbranch_scc1 {l_}')
        A(f'v_mov_b32 v64, -1\nv_mov_b32 v65, -1\nv_mov_b32 v66, -1\nv_mov_b32 v67, -1\nv_lshlrev_b32 v68, 2, {vL4}')
        A(f's_add_u32 {t1}, {sXst}, {LS}\nv_add_u32 v69, {oXB - oXA - 512}, v68\nv_cmp_lt_u32 vcc, 31, {vL}'); sel('v69', 'v68', 'v69')
        A(f'buffer_store_dwordx4 v[64:67], v69, {WS}, {t1} offen sc1')
        A(f's_mul_i32 {t2}, {sC}, 3168\ns_add_u32 {t2}, {t2}, {sGBASE}\ns_add_u32 {t2}, {t2}, {LS}')
        for k_ in range(3): A(f'buffer_store_dwordx4 v[64:67], v68, {WS}, {t2} offen offset:{1024*k_} sc1')
        A(f's_mov_b64 exec, 63\nbuffer_store_dwordx4 v[64:67], v68, {WS}, {t2} offen offset:3072 sc1\ns_mov_b64 exec, -1\n{l_}:')
    def clean_first():
        l_ = lab('c7')
        A(f's_cmp_lg_u32 {sW}, 7\ns_cbranch_scc1 {l_}')
        A(f's_lshl_b32 {t1}, s2, 7\ns_add_u32 {t1}, {t1}, {TF}\nv_mov_b32 v69, {sTAG}')
        if fullflag:
            A(f's_mov_b32 exec_hi, 0\ns_waitcnt vmcnt({2 + len(tail_parts)})\nbuffer_store_dword v69, {vL4}, {WS}, {t1} offen sc1')
        else:
            A(f's_mov_b64 exec, 1\ns_waitcnt vmcnt({2 + len(tail_parts)})\nbuffer_store_dword v69, off, {WS}, {t1} sc1')
        full_exec()
        n4 = lab('n4')
        if not use_early:
            A(f'{l_}:')
            if mid_parts:
                A(f's_sleep {mid_sleep}')
                issue_ffn(-4, False, mid_parts); issue_ffn(0, False, mid_parts)
            A(f's_lshl_b32 {t1}, {sLO}, 3\ns_add_u32 {t1}, {t1}, {sW}\ns_mul_i32 {t1}, {t1}, {8*3584}\ns_lshl_b32 {t2}, {g2}, 7\ns_add_u32 s81, {t1}, {t2}\ns_sub_u32 s80, s81, {32*3584}')
            A(f's_lshl_b32 {t1}, {g2}, 3\ns_add_u32 {t1}, {t1}, {sW}\ns_lshl_b32 {t1}, {t1}, 6\ns_add_u32 {t1}, {t1}, {sLO}\ns_lshl_b32 s83, {t1}, 7\ns_sub_u32 s82, s83, 32768')
            A(f's_lshl_b32 s84, {sW}, 10\ns_sub_u32 s84, s84, 4096')
            flag_addr()
            A(f'v_mov_b32 v114, v68\ns_mov_b32 s85, {TF}\ns_waitcnt vmcnt({2 * len(mid_parts)})')
            return
        A(f'{l_}:\ns_cmp_lg_u32 {sW}, 4\ns_cbranch_scc1 {n4}')
        flag_addr()
        A(f's_sleep {fearly}\nbuffer_load_dword v69, v68, {WS}, {t1} offen sc1\ns_waitcnt vmcnt(0)\nv_cmp_ne_u32 vcc, {sTAG}, v69\ns_cbranch_vccnz {n4}')
        A(f's_mov_b32 {sCNT}, 1\nv_mov_b32 v68, {L_FL}\nv_mov_b32 v69, 1\nds_write_b32 v68, v69\n{n4}:')
    if share:
        inloop[0] = True
        A('L_merge:')
        combine(None, first_only(clean_first))
    else: combine(True, clean_first)
    stamp(True)

    if prio:
        l_ = lab('pr'); A(f's_cmp_ge_u32 {sW}, 4\ns_cbranch_scc1 {l_}\ns_setprio 1\n{l_}:')
    A('L_layer:'); inloop[0] = True
    def proj_body(nk, vb, boff, xoff, late_w=None, tagged=False):
        if late_w: late_w()
        for j in range(nk):
            if not late_w: A(f's_waitcnt lgkmcnt({nk-1-j})')
            elif j == 0: A('s_waitcnt lgkmcnt(0)')
            c = '0' if j == 0 else 'v[96:99]'
            A(f'{M16} v[96:99], v[{48+4*j}:{51+4*j}], v[{64+4*j}:{67+4*j}], {c}')
        if tagged:
            A(f'v_mov_b32 v102, {sTAG}\nv_mov_b32 v103, {sTAG}\nv_cvt_pk_bf16_f32 v100, v96, v97\nv_cvt_pk_bf16_f32 v101, v98, v99')
            A(f'buffer_store_dwordx4 v[100:103], v47, {WS}, 0 offen sc1')
            if diag2: xstamp(52)
        else:
            A(f's_add_u32 {t1}, {sXst}, {xoff}')
            A('v_cvt_pk_bf16_f32 v96, v96, v97\nv_cvt_pk_bf16_f32 v97, v98, v99')
            A(f'buffer_store_dwordx2 v[96:97], {vXst}, {WS}, {t1} offen sc1')
    def proj_out(nk, vb, boff, xoff, first=None, bar='s_waitcnt lgkmcnt(0)\ns_barrier'):
        sk, dl = lab('sk'), lab('dl')
        A(f's_cmp_ge_u32 {sW}, 4\n{bar}\ns_cbranch_scc1 {sk}')
        for j in range(nk): A(f'ds_read_b128 v[{64+4*j}:{67+4*j}], {vb} offset:{boff+64*j}')
        if first: variant(first, lambda: proj_body(nk, vb, boff, xoff))
        else: proj_body(nk, vb, boff, xoff)
        return sk, dl
    def g_wait(sk, dl, pre, busy_first=False, hi_pre=None, lo_d=None, hi_d=None, extra0=0):
        pre()
        A(f's_sleep {lo_d or gdelay}')
        A(f's_branch {dl}\n{sk}:')
        if hi_pre: hi_pre()
        A(f's_sleep {hi_d or gdelay_hi}')
        A(f'{dl}:')
        if extra0: first_only(lambda: A(f's_sleep {extra0}'))()
    def reduce_x(xoff, final, first=None):
        def normal():
            A(f's_add_u32 {t0}, {sXg}, {xoff}')
            sp = lambda b: A(f'{M16} v[96:99], {SELA}, v[{b}:{b+3}], 0\n{M16} v[96:99], {SELA}, v[{b+4}:{b+7}], v[96:99]')
            if not dual & 16:
                poll(lambda: issue_g1(64, vXg, t0, 'x', 8192), range(64, 72), lambda: sp(64), None if final else 'L_xa_landed')
                return
            d, tl, lp = lab('got'), lab('again'), lab('lp')
            issue_g1(64, vXg, t0, 'x', 8192); A.wait_vm()
            sp(64); check_empty(range(64, 72))
            A(f's_cbranch_vccnz {tl}\n{d}:')
            keepL, A.L = A.L, []
            A(f'{tl}:'); issue_g1(64, vXg, t0, 'x', 8192)
            A(f's_sleep {dstep}\n{lp}:'); issue_g1(72, vXg, t0, 'x', 8192)
            A('s_waitcnt vmcnt(2)'); sp(64); check_empty(range(64, 72))
            A(f's_nop 1\ns_cbranch_vccz {d}'); issue_g1(64, vXg, t0, 'x', 8192)
            A('s_waitcnt vmcnt(2)'); sp(72); check_empty(range(72, 80))
            A(f's_nop 1\ns_cbranch_vccz {d}\ns_sub_u32 {sTO}, {sTO}, 1\ns_cbranch_scc0 {lp}\ns_mov_b32 {sTO}, 0\ns_branch {d}')
            tails.append('\n'.join(A.L)); A.L = keepL
            A.vm = []
        if first: variant(first, normal)
        else: normal()
        stamp()
        A(f'v_add_f32_dpp v96, v96, v96 row_ror:4 {DPP}\nv_add_f32_dpp v97, v97, v97 row_ror:4 {DPP}')
        if final: A(f's_cmp_eq_u32 {sLIDX}, 1')
        A(f'v_add_f32_dpp v96, v96, v96 row_ror:8 {DPP}\nv_add_f32_dpp v97, v97, v97 row_ror:8 {DPP}')
        A(f'v_pk_add_f32 {XRES}, {XRES}, v[96:97]\nv_cvt_pk_bf16_f32 v96, v112, v113')
        if final: A(f's_cbranch_scc1 L_out')
        A(f'ds_write_b32 {vXW}, v96')
    def issue_o():
        issue_g1(64, vG1, sOg, 'o')
        A.vmop(f'buffer_load_dwordx2 v[72:73], {vML2}, {WS}, {sMLg} offen sc1', 'o')
        A.vmop(f'buffer_load_dwordx2 v[74:75], {vML2}, {WS}, {sMLg} offen offset:32 sc1', 'o')
    def wo_weights(ma, la, mb, lb, selreg, mm=None):
        A(f'v_max_f32 v76, v{ma}, v{mb}\nv_mov_b32 v77, v76\nv_permlane16_swap_b32 v76, v77\nv_max_f32 v76, v76, v77')
        A('v_mov_b32 v77, v76\nv_permlane32_swap_b32 v76, v77\nv_max_f32 v76, v76, v77')
        A(f'v_sub_f32 v{ma}, v{ma}, v76\nv_sub_f32 v{mb}, v{mb}, v76\nv_exp_f32 v{ma}, v{ma}\nv_exp_f32 v{mb}, v{mb}')
        A(f'v_cvt_pk_bf16_f32 v{ma}, v{ma}, v{ma}\nv_cvt_pk_bf16_f32 v{mb}, v{mb}, v{mb}')
        for i in range(4): A(f'v_and_b32 v{selreg+i}, v{MASK+i}, v{ma}')
        for i in range(4): A(f'v_and_b32 v{selreg+4+i}, v{MASK+i}, v{mb}')
        if mm: mm()
        A(f'v_and_b32 v{ma}, 0xffff0000, v{ma}\nv_and_b32 v{mb}, 0xffff0000, v{mb}\nv_mul_f32 v79, v{la}, v{ma}\nv_fmac_f32 v79, v{lb}, v{mb}')
        A('v_mov_b32 v77, v79\nv_permlane16_swap_b32 v79, v77\nv_add_f32 v79, v79, v77')
        A('v_mov_b32 v77, v79\nv_permlane32_swap_b32 v79, v77\nv_add_f32 v79, v79, v77\nv_rcp_f32 v78, v79')
    def two_sets(iss, nld, between, spec, chk):
        d, sb, sa = lab('got'), lab('setb'), lab('seta')
        iss(0); between(); iss(1)
        A(f'{sa}:\ns_waitcnt vmcnt({nld})')
        spec(0); chk(0)
        A(f's_cbranch_vccnz {sb}\n{d}:')
        keepL, A.L = A.L, []
        A(f'{sb}:'); iss(0)
        A(f's_waitcnt vmcnt({nld})\ns_nop 3')
        spec(1); chk(1)
        A(f's_nop 3\ns_cbranch_vccz {d}'); iss(1)
        A(f's_sub_u32 {sTO}, {sTO}, 1\ns_cbranch_scc0 {sa}\ns_mov_b32 {sTO}, 0\ns_branch {d}')
        tails.append('\n'.join(A.L)); A.L = keepL
        A.vm = []
    def wo_later():
        read_wo()
        def iml():
            A.vmop(f'buffer_load_dwordx2 v[72:73], {vML2}, {WS}, {sMLg} offen sc1', 'o')
            A.vmop(f'buffer_load_dwordx2 v[74:75], {vML2}, {WS}, {sMLg} offen offset:32 sc1', 'o')
        poll(iml, range(72, 76))
        b_ = (64, 100)
        two_sets(lambda k: issue_g1(b_[k], vG1, sOg, 'o'), 2, lambda: wo_weights(72, 73, 74, 75, 80),
                 lambda k: A(f'{M16} v[96:99], v[80:83], v[{b_[k]}:{b_[k]+3}], 0\n{M16} v[96:99], v[84:87], v[{b_[k]+4}:{b_[k]+7}], v[96:99]'),
                 lambda k: check_empty(range(b_[k], b_[k] + 8)))
        stamp()
    def wo_first():
        sets = ((80, 64), (48, 100))
        def iss(k):
            o0dst[0], o0ml[0] = sets[k]; issue_o0()
        def chk(k):
            a_, m_ = sets[k]; check_tags((a_ + 2, a_ + 6, a_ + 10, a_ + 14, m_ + 2, m_ + 6))
        def fin(k):
            a_, m_ = sets[k]; wo_weights(m_, m_ + 1, m_ + 4, m_ + 5, 116, lambda: tagged_sum(116, a_, 96, 4))
        lp, ga, gb, en = lab('lp'), lab('ga'), lab('gb'), lab('en')
        iss(0); A(f's_sleep {dstep}\n{lp}:'); iss(1)
        A('s_waitcnt vmcnt(6)'); chk(0); A(f's_cbranch_vccz {ga}')
        iss(0); A('s_waitcnt vmcnt(6)'); chk(1); A(f's_cbranch_vccz {gb}')
        A(f's_sub_u32 {sTO}, {sTO}, 1\ns_cbranch_scc0 {lp}\ns_mov_b32 {sTO}, 0\n{gb}:')
        stamp(); fin(1); A(f's_branch {en}\n{ga}:')
        nts[0] -= 1 if ts else 0; stamp(); fin(0); A(f'{en}:')
        A.vm = []
    with lowwaves():
        variant(wo_first, wo_later)
        A('v_pk_mul_f32 v[96:97], v[96:97], v[78:79] op_sel_hi:[1,0]\nv_cvt_pk_bf16_f32 v96, v96, v97')
        A(f'ds_write_b32 {vQW}, v96 offset:{L_OS-L_QS}\ns_waitcnt vmcnt(0)')
    if padfrom == 'O': first_only(lambda: A('s_memrealtime s[98:99]\ns_waitcnt lgkmcnt(0)'))()
    if padfrom == 'P': A('s_memrealtime s[98:99]\ns_waitcnt lgkmcnt(0)')
    if diag2: first_only(lambda: xstamp(50))()
    sk, dl = proj_out(4, vBR320, L_OS - L_QS, 0, lambda: (proj_body(4, vBR320, L_OS - L_QS, 0, read_wo), xstamp(52) if diag2 else None))
    leave_ = [None]
    def touch_lines(bases, r=80):
        for sb, off in bases:
            A(f's_add_u32 {t0}, {sb}, {off}\ns_add_u32 {t1}, {t0}, 4096')
            A(f'buffer_load_dwordx4 v[{r}:{r+3}], {vG1}, {WS}, {t0} offen sc1\nbuffer_load_dwordx4 v[{r+4}:{r+7}], {vG1}, {WS}, {t1} offen sc1')
    def touch_small(bases, r=88):
        for sb, off in bases:
            A(f's_add_u32 {t0}, {sb}, {off}\nbuffer_load_dwordx2 v[{r}:{r+1}], {vSt8}, {WS}, {t0} offen sc1')
    def watch_flags():
        l_, r_, d_ = lab('w4'), lab('fr'), lab('fd')
        A(f's_cmp_lg_u32 {sW}, 4\ns_cbranch_scc1 {l_}\ns_cmp_eq_u32 {sCNT}, 1\ns_cbranch_scc1 {l_}')
        flag_addr()
        if fdelay: A(f's_sleep {fdelay}')
        e_ = lab('fe')
        A(f'buffer_load_dword v69, v68, {WS}, {t1} offen sc1\ns_waitcnt vmcnt(0)\nv_cmp_ne_u32 vcc, {sTAG}, v69\ns_cbranch_vccz {d_}')
        A(f'{r_}:\ns_sleep {fback}\nbuffer_load_dword v69, v68, {WS}, {t1} offen sc1\ns_waitcnt vmcnt(0)\nv_cmp_ne_u32 vcc, {sTAG}, v69\ns_cbranch_vccz {e_}')
        A(f's_sub_u32 {sTO}, {sTO}, 1\ns_cbranch_scc0 {r_}\ns_mov_b32 {sTO}, 0\n{e_}:')
        if flate: A(f's_sleep {flate}')
        A(f'{d_}:')
        A(f'v_mov_b32 v68, {L_FL}\nv_mov_b32 v69, 1\nds_write_b32 v68, v69')
        if diag2: xstamp(51)
        A(f's_branch {after_sleep[0]}\n{l_}:')
    def await_flags():
        r_, d_ = lab('ar'), lab('ad')
        A(f'v_mov_b32 v68, {L_FL}\n{r_}:\nds_read_b32 v69, v68\ns_waitcnt lgkmcnt(0)\nv_cmp_eq_u32 vcc, 1, v69\ns_cbranch_vccnz {d_}')
        A(f's_sleep 1\ns_sub_u32 {sTO}, {sTO}, 1\ns_cbranch_scc0 {r_}\ns_mov_b32 {sTO}, 0\n{d_}:')
        if touch_g:
            with lowwaves(): touch_lines([(sGg, 0)])
    after_sleep = [None]
    def w567(parts=None, pause=0):
        l_ = lab('f5'); A(f's_cmp_eq_u32 {sW}, 4\ns_cbranch_scc1 {l_}')
        if pause: A(f's_sleep {pause}')
        for dw in (-5, -2, 1):
            k_ = lab('fs')
            if dw == 1: A(f's_cmp_eq_u32 {sW}, 7\ns_cbranch_scc1 {k_}')
            issue_ffn_any(dw, parts)
            A(f'{k_}:')
        A(f'{l_}:')
    def quick_gu():
        for k_ in range(2):
            A(f's_add_u32 m0, s84, {L_WG + 4096 * k_}\ns_nop 0\nbuffer_load_dwordx4 v126, {WG}, s{80+k_} offen nt lds')
            A(f's_add_u32 m0, s84, {L_WU + 4096 * k_}\ns_nop 0\nbuffer_load_dwordx4 v126, {WU}, s{80+k_} offen nt lds')
    def quick_d():
        for k_ in range(2):
            A(f's_add_u32 m0, s84, {L_WD + 4096 * k_}\ns_nop 0\nbuffer_load_dwordx4 v127, {WD}, s{82+k_} offen nt lds')
    def hi_first():
        o_, r_, e_, d_ = lab('fo'), lab('fr'), lab('fe'), lab('fd')
        nod = wd_behind or 'd' in tail_parts
        nw = 4 if nod else 6
        A(f's_cmp_lg_u32 {sW}, 4\ns_cbranch_scc1 {o_}')
        A(f'buffer_load_dword v69, v114, {WS}, s85 offen sc1')
        quick_gu()
        if not nod: quick_d()
        A(f's_waitcnt vmcnt({nw})\nv_cmp_ne_u32 vcc, {sTAG}, v69\ns_cbranch_vccz {d_}')
        A(f'{r_}:\ns_sleep {fback}\nbuffer_load_dword v69, v114, {WS}, s85 offen sc1\ns_waitcnt vmcnt(0)\nv_cmp_ne_u32 vcc, {sTAG}, v69\ns_cbranch_vccz {e_}')
        A(f's_sub_u32 {sTO}, {sTO}, 1\ns_cbranch_scc0 {r_}\ns_mov_b32 {sTO}, 0\n{e_}:')
        if flate: A(f's_sleep {flate}')
        A(f'{d_}:\nv_mov_b32 v68, {L_FL}\nv_mov_b32 v69, 1\nds_write_b32 v68, v69')
        if diag2: xstamp(51)
        A(f's_sleep {hi4}\ns_branch {after_sleep[0]}\n{o_}:\ns_sleep 1')
        quick_gu()
        if not nod: quick_d()
        if diag2:
            l_ = lab('d5'); A(f's_cmp_lg_u32 {sW}, 5\ns_cbranch_scc1 {l_}'); xstamp(53); A('s_waitcnt vmcnt(0)'); xstamp(55); A(f's_branch {after_sleep[0]}\n{l_}:')
        clean_rest()
    def hi_xb():
        leave_[0]()
        if touch_att:
            first_only(lambda: (touch_lines([(sQg, 0)]), touch_small([(sQSg, 0)])))()
            return
        if touch1 & 4: first_only(lambda: (touch_lines([(sGg, LS)]), touch_small([(sGSg, LS)])))()
        if touch1 & 8: first_only(lambda: (touch_lines([(sQg, 0), (sOg, LS)]), touch_small([(sQSg, 0), (sMLg, LS)])))()
    late_gu = 'g' not in tail_parts
    go, aw = lab('go'), lab('aw')
    after_sleep[0] = aw
    def lo_pre():
        if not late_gu: read_gu()
        A(f's_cmp_eq_u32 {sLIDX}, 0\ns_cbranch_scc1 {aw}_lo')
        if late_gu: read_gu()
    def hi_pre():
        A(f's_cmp_eq_u32 {sLIDX}, 0\ns_cbranch_scc1 {aw}_hi')
    g_wait(sk, dl, lo_pre, False, hi_pre)
    A(f'{go}:')
    keepL, A.L = A.L, []
    A(f'{aw}_hi:')
    hi_first()
    A(f's_sleep {hi0}\ns_branch {aw}\n{aw}_lo:\ns_sleep {lo0}\n{aw}:')
    await_flags()
    if wd_behind:
        A(f's_cmp_lt_u32 {sW}, 4\ns_cbranch_scc1 {go}\ns_mov_b32 {t0}, {sXg}')
        issue_g1(64, vXg, t0, 'x', 8192); quick_d()
        A(f's_waitcnt vmcnt(2)\ns_branch L_xa_landed')
    else: A(f's_branch {go}')
    tails.append('\n'.join(A.L)); A.L = keepL
    stamp()
    if diag2: A(f's_mov_b32 s65, {sTO}')
    reduce_x(0, False)
    if padfrom == 'X': first_only(lambda: A('s_memrealtime s[98:99]\ns_waitcnt lgkmcnt(0)'))()
    if diag2: first_only(lambda: A(f's_sub_u32 s65, s65, {sTO}\nv_readlane_b32 s94, {vTS}, 0\ns_mul_i32 s65, s65, 100\ns_add_u32 s65, s65, s94\nv_writelane_b32 {vTS}, s65, 54'))()
    def issue_gp(first):
        issue_g1(64, vG1, sGg, 'g')
        A.vmop(f'buffer_load_dwordx2 v[72:73], {vSt8}, {WS}, {sGSg} offen sc1', 'g')
        if first:
            A(f'v_and_b32 {vTMP}, 0xf0, {vG1}\nv_and_b32 {vTMP2}, 0xc00, {vG1}\nv_lshrrev_b32 {vTMP2}, 2, {vTMP2}\nv_or_b32 {vTMP}, {vTMP}, {vTMP2}')
            issue_g1(80, vTMP, sGCg, 'g', 1024)
    def ffn_gather(first):
        def f():
            if ldelay and not first: A(f's_sleep {ldelay}')
            if dual & 32 and first:
                sets = ((64, 80), (102, 116))
                A(f'v_and_b32 v114, 0xf0, {vG1}\nv_and_b32 {vTMP2}, 0xc00, {vG1}\nv_lshrrev_b32 {vTMP2}, 2, {vTMP2}\nv_or_b32 v114, v114, {vTMP2}')
                def iss(k):
                    a_, c_ = sets[k]
                    issue_g1(a_, vG1, sGg, 'x')
                    A.vmop(f'buffer_load_dwordx2 v[{a_+8}:{a_+9}], {vSt8}, {WS}, {sGSg} offen sc1', 'x')
                    issue_g1(c_, 'v114', sGCg, 'x', 1024)
                def spec(k):
                    a_, c_ = sets[k]
                    A(f'{M16} v[96:99], {SELG}, v[{a_}:{a_+3}], 0\n{M16} v[96:99], {SELG}, v[{a_+4}:{a_+7}], v[96:99]')
                    A(f'{M16} v[88:91], {SELG}, v[{c_}:{c_+3}], 0\n{M16} v[88:91], {SELG}, v[{c_+4}:{c_+7}], v[88:91]')
                    A(f'v_add_f32_dpp v78, v{a_+8}, v{a_+8} quad_perm:[1,0,3,2] {DPP}\nv_add_f32_dpp v79, v{a_+9}, v{a_+9} quad_perm:[1,0,3,2] {DPP}')
                poll2(iss, 5, lambda k: list(range(sets[k][0], sets[k][0] + 10)) + list(range(sets[k][1], sets[k][1] + 8)), spec)
                ln_finish(CSG, 1.0, True, 88)
                return
            if nanchk and not first:
                ln_poll_nan(sGg, sGSg, SELG, CSG, 1.0); return
            if dual & 2 and not first: ln_poll2(sGg, sGSg, SELG)
            else: poll(lambda: issue_gp(first), QREGS1 if first else QREGS, ln_spec(SELG, first))
            ln_finish(CSG, 1.0, first)
        return f
    def hi_after_xa():
        slice_stats(sGSst)
        def f():
            if wd_after: w567('d')
            if rest_at == 'g0': clean_rest()
        if wd_after or rest_at == 'g0': first_only(f)()
    with lowwaves(hi_after_xa, 's_waitcnt lgkmcnt(0)\ns_barrier'):
        matvec(vGst, 'plain', first_only(read_gu) if late_gu else None, sLAY)
        stamp()
        if wd_after or wd_behind: later_only(read_wd)
        else: read_wd()
        variant(ffn_gather(True), ffn_gather(False))
        stamp()
        A('v_max_f32 v96, 0, v96\nv_mul_f32 v96, v96, v97\nv_cvt_pk_bf16_f32 v96, v96, v96')
        A(f'ds_write_b16 {vHW}, v96')
    if padfrom == 'G': first_only(lambda: A('s_memrealtime s[98:99]\ns_waitcnt lgkmcnt(0)'))()
    sk, dl = proj_out(2, vBR192, 0, oXB - oXA, (lambda: proj_body(2, vBR192, 0, oXB - oXA, read_wd)) if (wd_after or wd_behind) else None, 's_waitcnt vmcnt(0) lgkmcnt(0)\ns_barrier')
    def leave():
        no = lab('no')
        A(f's_cmp_eq_u32 {sLIDX}, 0\ns_cbranch_scc1 {no}\ns_cmp_lg_u32 {sHI}, 0\ns_cbranch_scc1 L_fin\ns_cmp_lg_u32 {sG}, {sLO}\ns_cbranch_scc1 L_fin\n{no}:')
    def pre_q():
        leave()
        read_wq()
    leave_[0] = leave
    g_wait(sk, dl, pre_q, False, hi_xb, gd_b, gdh_b, xb0)
    stamp()
    reduce_x(oXB - oXA, True)
    keep = nts[0]; nts[0] -= 11
    def advance():
        A(f's_mov_b32 {sLIDX}, 1\ns_mov_b32 {sLAY}, {LS}')
        for s in (sOg, sGg, sMLg, sGSg, sXg, sOPst, sMLst, sXst, sGSst):
            A(f's_add_u32 {s}, {s}, {LS}')
    if padfrom == 'B': A('s_memrealtime s[98:99]\ns_waitcnt lgkmcnt(0)')
    with lowwaves(lambda: (slice_stats(sQSst), advance()), 's_waitcnt lgkmcnt(0)\ns_barrier'):
        matvec(vQst, 'plain')
        advance()
        stamp()
        if ldelay: A(f's_sleep {ldelay}')
        if nanchk:
            ln_poll_nan(sQg, sQSg, SELA, CSQ, QSCALE)
            stamp()
            A(f'v_cvt_pk_bf16_f32 v96, v96, v97\nds_write_b32 {vQW}, v96')
        else:
            ln_poll2(sQg, sQSg, SELA)
            stamp()
            q_finish(False)
    if share:
        A('; ---- scores, row maximum, exp2, row sum (shared by both layers), P V')
        with lowwaves(lambda: (touch_lines([(sOg, 0), (sGg, 0)], 48), touch_small([(sMLg, 0), (sGSg, 0)], 56)), 's_waitcnt vmcnt(0) lgkmcnt(0)\ns_barrier'): pass
        A('L_scores:')
        scores(False)
        A(f's_cmp_eq_u32 {sLIDX}, 0\ns_cbranch_scc1 L_scored')
    else: scores()
    for i in range(16):
        pv(i)
        if i == 5: lsum()
    stamp()
    if share: A('s_branch L_merge')
    else:
        combine()
        stamp()
        A('s_branch L_layer')
    nts[0] = keep
    A('L_out:')
    A(f's_mov_b64 exec, {sM4}')
    A(f'buffer_store_dword v96, {vXO}, {OUT}, 0 offen' + (' sc1' if out_sc1 else ''))
    A(f's_or_b32 {t1}, s2, {sW}\ns_cmp_lg_u32 {t1}, 0\ns_cbranch_scc1 L_fin0')
    A(f's_mov_b64 exec, 1\nv_mov_b32 v97, {sTAG}\ns_mov_b32 {t2}, {EPOCH}\nbuffer_store_dword v97, off, {WS}, {t2} sc1')
    A('L_fin0:')
    full_exec()
    A('L_fin:')
    if wb:
        A(f's_cmp_lg_u32 {sC}, 31\ns_cbranch_scc1 L_nowb\ns_cmp_lg_u32 {sW}, 7\ns_cbranch_scc1 L_nowb\nbuffer_wbl2 sc1' + ('\ns_waitcnt vmcnt(0)' if wb == 1 else '') + '\nL_nowb:')
    if padto:
        A(f'L_pad:\ns_memrealtime s[94:95]\ns_waitcnt lgkmcnt(0)\ns_sub_u32 s94, s94, s98\ns_cmp_lt_u32 s94, {padto}\ns_cbranch_scc1 L_pad')
    if ts:
        stamp(True)
        A(f's_memtime s[94:95]\ns_waitcnt lgkmcnt(0)\ns_sub_u32 s94, s94, s98\nv_writelane_b32 {vTS}, s94, 63')
        A(f's_add_u32 s96, s96, 0x10000000\ns_addc_u32 s97, s97, 0\ns_lshl_b32 {t1}, s2, 11\nv_add_u32 v64, {t1}, {vT4}\nglobal_store_dword v64, {vTS}, s[96:97]')
        if dbgts:
            A(f's_or_b32 {t1}, s2, {sW}\ns_cmp_lg_u32 {t1}, 0\ns_cbranch_scc1 L_end')
            A(f'v_readlane_b32 {t1}, {vTS}, 0\nv_subrev_u32 v64, {t1}, {vTS}\nv_and_b32 v64, 0xffff, v64')
            A(f'v_mov_b32_dpp v65, v64 quad_perm:[1,1,3,3] {DPP}\nv_lshl_or_b32 v64, v65, 16, v64\nv_lshlrev_b32 v65, 1, {vL}')
            A(f's_mov_b32 exec_lo, 0x55555555\ns_mov_b32 exec_hi, 0\nbuffer_store_dword v64, v65, {DBG}, 0 offen sc1')
    A('s_endpgm')
    for t_ in tails: A(t_)
    A('L_end:\ns_endpgm')
    A(f'.section .rodata,"a"\n.p2align 6\n.amdhsa_kernel {NAME}_kernel')
    A('.amdhsa_next_free_vgpr 256\n.amdhsa_next_free_sgpr 102\n.amdhsa_accum_offset 128\n.amdhsa_group_segment_fixed_size 0\n.amdhsa_kernarg_size 96\n.amdhsa_user_sgpr_count 2\n.amdhsa_user_sgpr_kernarg_segment_ptr 1\n.amdhsa_system_sgpr_workgroup_id_x 1\n.end_amdhsa_kernel')
    txt, probs = A.text()
    for p in probs: print('HAZARD', p, file=sys.stderr)
    return txt, nts[0]

if __name__ == '__main__':
    out = sys.argv[1]
    kw = {}
    for a in sys.argv[2:]:
        k, v = a.split('='); kw[k] = eval(v)
    txt, n = build(**kw)
    open(out, 'w').write(txt)
    print('stamps', n, 'lines', txt.count('\n'))
```

```python
import sys, math, struct
sys.path.insert(0, 'gen')
from asmlib import Asm

NAME = "interleave_layers__sliding_block_cached__glu_gated_reglu__decode"

bQP, bQS, bOP, bML, bGP, bGS, bGC, GB = 0x0, 0x8000, 0x8400, 0x10400, 0x10800, 0x18800, 0x18C00, 0x1AC00
oXA, oXB, LS = 8 * GB, 8 * GB + 0x20000, 8 * GB + 0x40000
TQP, TQC, TOP, TML, TF, EPOCH = 0x240000, 0x2C0000, 0x2E0000, 0x360000, 0x364000, 0x36C000
WS_REC = 0x36C100
OOB = 0x7FFF0000
L_RING, L_WQ, L_WO, L_WG, L_WU, L_WD = 0, 65536, 81920, 98304, 106496, 114688
L_QS, L_OS, L_HS, L_XS, L_RM, L_ST = 122880, 124160, 125440, 126208, 127168, 127424
L_FL = L_ST + 16
L_DUMP = 127488
LDS_BYTES = 129536

def f32(x): return '0x%08x' % struct.unpack('<I', struct.pack('<f', x))[0]
QSCALE = 128 ** -0.5 * math.log2(math.e)

sW, sG, sC, sHI, sLO = 's3', 's4', 's5', 's6', 's7'
WS, KK, VV, WQ, WO, WG, WU, WD, XX, OUT, DBG = [f's[{i}:{i+3}]' for i in range(8, 52, 4)]
sKV, sRING, t0, t1, t2, t3 = 's52', 's53', 's54', 's55', 's56', 's57'
sLAY, sTO, sFAST, sCNT, sGOK, sLIDX = 's58', 's59', 's60', 's61', 's62', 's63'
sQg, sOg, sGg, sQSg, sMLg, sGSg, sXg, sGBASE, sGCg = ['s%d' % i for i in range(66, 75)]
sOPst, sMLst, sXst, sQSst, sGSst = ['s%d' % i for i in range(75, 80)]
g0, g1, g2, g3 = 's90', 's91', 's92', 's93'
vL, vT4, vSt8, vXg, vQst, vGst, vSSt, vG1, vXst, vQW, vBR320, vHW, vBR192, vXR, vXW, vL4 = ['v%d' % i for i in range(16)]
vROW, vROR, vRMW, vRMR, vWQr, vWr, vWOr, vXO = ['v%d' % i for i in range(16, 24)]
CSQ, CSG = 'v[24:25]', 'v[26:27]'
vTS, vML2, vTMP, vTMP2 = 'v28', 'v29', 'v30', 'v31'
SELA, MASK, SELG, ONES = 'v[32:35]', 36, 'v[40:43]', 'v[44:45]'
vMLst = 'v46'
XRES = 'v[112:113]'
sM4 = 's[88:89]'
sTAG = 's100'
DPP = 'row_mask:0xf bank_mask:0xf'
M16 = 'v_mfma_f32_16x16x32_bf16'

HEADER = r'''
;
;
;   - first q and first attention exchange: 16-byte granules {4 x bf16, tag, ..}; tag = (word found at ws+EPOCH) + 1,
;   Stores that are only read inside the group are plain when every member reported the same XCC id, write-through
'''

def build(ts=False, gdelay=12, gdelay_hi=18, pf_code=True, rides=(16, 21), w_at='land31', ldelay=0, bar_after_k0=False, fride=26, ffn_hi=False, touch_o=0, touch_g=0, ffn_sleep=0, clean3_xa=0, tlb=0, diag2=0, ffn_at=0, fdelay=1, fback=4, wo_at=0, csq_o=0, touch1=12, wt_at=29, csq_at=25, xa0=0, xb0=8, cl_at=29, tail_parts='d', lo0=12, hi0=15, hi4=4, wd_after=0, wd_behind=0, rest_at='xa', fearly=10, use_early=0, fullflag=1, flag_first=0, jitter=0, mid_parts='', mid_sleep=8, touch_att=1, p_sc=26, kpol='nt', vpol='nt', wb=0, out_sc1=0, dual=15, dstep=3, pf_few=0, pf_late=0, flate=0, share=1, gd_b=11, gdh_b=15, ffn_by_hi=1, tmajor=1, prio=0, padto=0, padfrom='', mlstep=0, nanchk=0, tlb_at=0, warm_x=1, warm_at=0, wd_late=0, xback=0, deep_from=24, depth=5, deep=7, diag=0, noclean=0, burst=4, late47=0, abl='', backoff=0, cl_sc1=1, dbgts=0, wsoff=0):
    A = Asm()
    uid = [0]
    def lab(p):
        uid[0] += 1; return f'L_{p}_{uid[0]}'
    nts = [0]; inloop = [False]
    def stamp(key=False):
        if jitter:
            l_ = lab('jt')
            A(f's_memtime s[94:95]\ns_waitcnt lgkmcnt(0)\ns_mul_i32 s94, s94, 0x9e3779b1\ns_xor_b32 s94, s94, s2\ns_mul_i32 s94, s94, 0x85ebca6b\ns_lshr_b32 s94, s94, {32 - jitter}')
            A(f's_cmp_lg_u32 s94, 0\ns_cbranch_scc1 {l_}\ns_sleep 100\n{l_}:')
        if not ts: return
        if ts == 2 and not key:
            nts[0] += 1; return
        if inloop[0]:
            A(f's_memrealtime s[94:95]\ns_mul_i32 m0, {sLIDX}, 11\ns_add_u32 m0, m0, {nts[0]}\ns_waitcnt lgkmcnt(0)\nv_writelane_b32 {vTS}, s94, m0')
        else:
            A(f's_memrealtime s[94:95]\ns_waitcnt lgkmcnt(0)\nv_writelane_b32 {vTS}, s94, {nts[0]}')
        nts[0] += 1
    def xstamp(i):
        A(f's_memrealtime s[94:95]\ns_waitcnt lgkmcnt(0)\nv_writelane_b32 {vTS}, s94, {i}')
    def set_exec(lo, hi=None):
        hi = lo if hi is None else hi
        A(f's_mov_b32 exec_lo, {lo:#x}\ns_mov_b32 exec_hi, {hi:#x}')
    def full_exec(): A('s_mov_b64 exec, -1')
    tails = []
    def lstore(fmt, tag='st', nxt=None, cmp=True):
        a, b = lab('wt'), lab('sd')
        for f_ in fmt.split('\n'): A((';;need2 ' if cmp else ';;need1 ') + f_)
        if cmp: A(f's_cmp_eq_u32 {sFAST}, 1')
        A(f's_cbranch_scc0 {a}')
        A(fmt); A(f'{b}:')
        tails.append(f'{a}:\n' + '\n'.join(f_ + ' sc1' for f_ in fmt.split('\n')) + f'\ns_branch {b}')
        A.vm.append(tag)
    class lowwaves:
        def __init__(s, other=None, mid=None): s.other = other; s.mid = mid
        def __enter__(s):
            s.l = lab('hi'); s.o = lab('up') if s.other else s.l
            A(f's_cmp_ge_u32 {sW}, 4')
            if s.mid: A(s.mid)
            A(f's_cbranch_scc1 {s.o}')
        def __exit__(s, *a):
            A(f'{s.l}:')
            if s.other:
                keepL, A.L = A.L, []
                A(f'{s.o}:'); s.other(); A(f's_branch {s.l}')
                tails.append('\n'.join(A.L)); A.L = keepL
    def sel(dst, a, b):
        A(f'v_cndmask_b32 {dst}, {a}, {b}, vcc')

    A(f'; @launch grid=(256,1,1) block=(512,1,1) lds={LDS_BYTES}')
    for l_ in HEADER.strip('\n').split('\n'): A.L.append(l_)
    A('.amdgcn_target "amdgcn-amd-amdhsa--gfx950"')
    A(f'.text\n.globl {NAME}_kernel\n.p2align 8\n.type {NAME}_kernel,@function\n{NAME}_kernel:')
    A('s_cmp_ge_u32 s2, 256\ns_cbranch_scc1 L_end')
    A('s_load_dwordx16 s[64:79], s[0:1], 0\ns_load_dwordx8 s[80:87], s[0:1], 64')
    if padto: A('s_memrealtime s[98:99]')
    if diag: A('s_memrealtime s[96:97]')
    A(f'v_lshlrev_b32 {vT4}, 2, v0')
    def prefetch_code():
        if pf_few: A(f's_cmp_ge_u32 s2, {8 * pf_few}\ns_cbranch_scc1 L_nopf')
        A(f's_getpc_b64 s[94:95]\nL_pc:\ns_sub_u32 s94, s94, L_pc-{NAME}_kernel\ns_subb_u32 s95, s95, 0\ns_lshr_b32 s93, s2, 3\ns_and_b32 s93, s93, 1\ns_lshl_b32 s93, s93, 13\nv_lshlrev_b32 {vTMP}, 2, {vT4}\nv_add_u32 {vTMP}, s93, {vTMP}')
        A(f'v_min_u32 {vTMP}, L_end-{NAME}_kernel-16, {vTMP}')
        A(f'global_load_dwordx4 v[96:99], {vTMP}, s[94:95]')
        if pf_few: A('L_nopf:')
        else: A.vm.append('pf')
    if pf_code and not pf_late: prefetch_code()
    A(f'v_lshrrev_b32 {vTMP}, 6, v0')
    A(f'v_and_b32 {vL}, 63, v0')
    A(f'v_readfirstlane_b32 {sW}, {vTMP}')
    A(f's_and_b32 {sG}, s2, 7\ns_lshr_b32 {sC}, s2, 3\ns_lshr_b32 {sHI}, {sC}, 3\ns_and_b32 {sLO}, {sC}, 7')
    A(f'v_and_b32 v120, 15, {vL}\nv_lshrrev_b32 v121, 4, {vL}')
    A(f'v_lshlrev_b32 {vTMP}, 2, v121\nv_xor_b32 {vTMP}, v120, {vTMP}\nv_lshlrev_b32 {vTMP}, 4, {vTMP}\nv_lshl_add_u32 v116, v121, 8, {vTMP}\nv_lshl_add_u32 v124, v121, 13, {vTMP}')
    A(f'v_and_b32 v122, 3, {vL}\nv_lshrrev_b32 v123, 2, v120')
    A(f's_lshr_b32 {t0}, {sW}, 1\ns_lshl_b32 {t0}, {t0}, 10\ns_and_b32 {t1}, {sW}, 1\ns_lshl_b32 {t1}, {t1}, 6\ns_add_u32 {t0}, {t0}, {t1}\ns_lshl_b32 {t1}, {sLO}, 7\ns_add_u32 {t0}, {t0}, {t1}')
    A(f'v_lshlrev_b32 v117, 4, v122\nv_lshl_add_u32 v117, v121, 2, v117\nv_add_u32 {vXO}, {t0}, v117')
    A(f's_lshl_b32 {t0}, {sHI}, 3\ns_add_u32 {t0}, {t0}, {sG}\ns_lshl_b32 {sKV}, {t0}, 22\ns_lshl_b32 {t0}, {sLO}, 17\ns_add_u32 {sKV}, {sKV}, {t0}\ns_add_u32 {sKV}, {sKV}, {12288*256}')
    A(f's_add_u32 {t0}, {sG}, {sC}\ns_add_u32 {t0}, {t0}, {sW}\ns_and_b32 {t0}, {t0}, 7\ns_lshl_b32 {t0}, {t0}, 12\ns_add_u32 {sKV}, {sKV}, {t0}')
    A(f's_lshl_b32 {sRING}, {sW}, 13')
    A(f's_and_b32 {g3}, {sW}, 3')
    A(f's_lshl_b32 {t0}, {sG}, 2\ns_add_u32 {t0}, {t0}, {sHI}')
    A(f'v_mov_b32 v118, {OOB}')
    A(f's_mul_i32 s101, {sG}, {GB}')
    A(f's_lshl_b32 {t1}, {sLO}, 6\ns_lshl_b32 {t2}, {sW}, 3\ns_add_u32 {t1}, {t1}, {t2}\ns_lshl_b32 {t1}, {t1}, 13\ns_lshl_b32 {t2}, {sG}, 10\ns_add_u32 {t1}, {t1}, {t2}\ns_lshl_b32 {t2}, {sHI}, 8\ns_add_u32 {t1}, {t1}, {t2}')
    A(f's_lshl_b32 {t2}, {sW}, 11\ns_add_u32 m0, {t2}, {L_WQ}')
    if ts:
        A(f'v_mov_b32 {vTS}, 0')
        if diag: A(f's_mov_b32 s92, s96');
        stamp(True)
        if diag: A(f'v_writelane_b32 {vTS}, s96, 38')
        A(f's_memtime s[98:99]')
    A('s_waitcnt lgkmcnt(0)')
    if diag: xstamp(39)
    def srd(d, lo, n):
        A(f's_mov_b32 s{d}, s{lo}\ns_mov_b32 s{d+1}, s{lo+1}\ns_mov_b32 s{d+2}, {n}\ns_mov_b32 s{d+3}, 0x20000')
    srd(20, 70, 4194304)
    A.vmop(f'buffer_load_dwordx4 v124, {WQ}, {t1} offen nt lds', 'wq')
    A(f's_add_u32 {t1}, {t1}, 32768\ns_add_u32 m0, m0, 1024')
    srd(40, 64, 4096)
    A.vmop(f'buffer_load_dwordx4 v124, {WQ}, {t1} offen nt lds', 'wq')
    srd(8, 86, WS_REC)
    if wsoff: A(f's_add_u32 s8, s8, {wsoff}\ns_addc_u32 s9, s9, 0')
    A.vmop(f'buffer_load_dword v68, {vXO}, {XX}, 0 offen', 'x0')
    A(f's_lshr_b32 {t2}, {sW}, 1\ns_lshl_b32 {t2}, {t2}, 10\nv_lshlrev_b32 {vTMP}, 4, {vL}')
    A.vmop(f'buffer_load_dwordx4 v[72:75], {vTMP}, {XX}, {t2} offen', 'x0')
    A(f's_mov_b32 {t2}, {EPOCH}')
    A.vmop(f'buffer_load_dword v69, off, {WS}, {t2} sc1', 'ep')
    srd(12, 66, 0x8000000)
    def piece(p, setm0=False):
        t, q = (p % 16) // 4, p % 4
        if q == 0 or setm0:
            A(f's_add_u32 {g1}, {sKV}, {t*32768}\ns_add_u32 m0, {sRING}, {((p//4)&1)*4096}')
        src = 'v116'
        A.vmop(f'buffer_load_dwordx4 {src}, {KK if p < 16 else VV}, {g1} offen offset:{q*1024} {kpol if p < 16 else vpol} lds', f'p{p}')
    for p in range(burst): piece(p)
    if pf_code and pf_late:
        assert not pf_few
        A('s_mov_b32 s92, s93'); prefetch_code(); A('s_mov_b32 s93, s92')
    srd(16, 68, 0x8000000)
    if ts: A('s_mov_b32 s96, s86\ns_mov_b32 s97, s87')

    srd(24, 72, 4194304); srd(44, 82, 4096)
    if dbgts: srd(48, 84, 256)
    srd(28, 76, 1835008); srd(32, 78, 1835008); srd(36, 80, 1835008)
    A(f's_mul_i32 {t1}, {sG}, 3\ns_add_u32 {t1}, {t1}, 4\ns_lshl_b32 {t2}, {sG}, 2\ns_cmp_ge_u32 {sG}, 4\ns_cselect_b32 {g2}, {t1}, {t2}\ns_add_u32 {g2}, {g2}, {sHI}\ns_min_u32 {g2}, {g2}, 27')
    if tlb:
        A(f's_lshl_b32 {t1}, {t0}, 17')
        A.vmop(f'buffer_load_dword v96, off, {WO}, {t1} nt', 'tlb')
        A(f's_mul_i32 {t1}, {sLO}, {64*3584}')
        A.vmop(f'buffer_load_dword v96, off, {WG}, {t1} nt', 'tlb')
        A.vmop(f'buffer_load_dword v96, off, {WU}, {t1} nt', 'tlb')
        A(f's_lshl_b32 {t1}, {g2}, 16')
        A.vmop(f'buffer_load_dword v96, off, {WD}, {t1} nt', 'tlb')
        A(f'v_lshlrev_b32 {vTMP}, 19, v120')
        A.vmop(f'buffer_load_dword v96, {vTMP}, {WS}, 0 offen nt', 'tlb')
        A.vmop(f'buffer_load_dword v96, off, {VV}, {sKV} nt', 'tlb')
    A(f's_getreg_b32 {t1}, hwreg(HW_REG_XCC_ID)\ns_and_b32 s64, {t1}, 15')
    A(f's_mov_b32 s88, 0x000f000f\ns_mov_b32 s89, 0x000f000f')
    A(f's_mov_b32 {sGBASE}, s101')
    A(f's_lshl_b32 {t1}, {sHI}, 13\ns_add_u32 {t1}, {t1}, {sGBASE}')
    A(f's_add_u32 {sQg}, {t1}, {bQP + LS}\ns_add_u32 {sOg}, {t1}, {bOP}\ns_add_u32 {sGg}, {t1}, {bGP}')
    A(f's_lshl_b32 {t1}, {g3}, 2\ns_add_u32 {t1}, {t1}, {sHI}\ns_lshl_b32 {t1}, {t1}, 6\ns_add_u32 {t1}, {t1}, {sGBASE}\ns_add_u32 {sQSg}, {t1}, {bQS + LS}')
    A(f's_lshl_b32 {sMLst}, {sLO}, 3\ns_add_u32 {sMLst}, {sMLst}, {t1}\ns_add_u32 {sMLst}, {sMLst}, {bML}')
    A(f's_lshl_b32 {t2}, {g3}, 13\ns_lshl_b32 {t1}, {sLO}, 10\ns_add_u32 {t2}, {t2}, {t1}\ns_lshl_b32 {t1}, {sHI}, 8\ns_add_u32 {t2}, {t2}, {t1}\ns_add_u32 {t2}, {t2}, {sGBASE}\ns_add_u32 {sOPst}, {t2}, {bOP}')
    A(f's_lshl_b32 {t1}, {sHI}, 2\ns_add_u32 {t1}, {t1}, {g3}\ns_lshl_b32 {t1}, {t1}, 6\ns_add_u32 {t1}, {t1}, {sGBASE}\ns_add_u32 {sMLg}, {t1}, {bML}\ns_add_u32 {sGSg}, {t1}, {bGS}')
    A(f's_lshl_b32 {t1}, {sLO}, 14\ns_add_u32 {sXg}, {t1}, {oXA}')
    A(f's_lshl_b32 {t1}, {t0}, 9\ns_add_u32 {sXst}, {sXg}, {t1}')
    A(f's_lshl_b32 {t1}, {sHI}, 11\ns_add_u32 {t1}, {t1}, {sGBASE}\ns_add_u32 {sGCg}, {t1}, {bGC}')
    A(f's_lshl_b32 {t3}, {sHI}, 8\ns_lshl_b32 {t1}, {sLO}, 3\ns_add_u32 {t3}, {t3}, {t1}\ns_add_u32 {t3}, {t3}, {sGBASE}\ns_add_u32 {sQSst}, {t3}, {bQS + LS}\ns_add_u32 {sGSst}, {t3}, {bGS}')
    A(f's_lshl_b32 s101, {t0}, 14\ns_add_u32 s101, s101, {TQP}')
    A(f's_lshl_b32 {t1}, {sLO}, 10\ns_lshl_b32 {t2}, {sHI}, 8\ns_add_u32 {t1}, {t1}, {t2}\ns_lshl_b32 {t2}, {g3}, 6\ns_add_u32 {t3}, {t1}, {t2}')
    A(f's_add_u32 {t1}, {sGBASE}, {t3}\ns_add_u32 {t1}, {t1}, {LS}\ns_mov_b32 {t2}, {OOB}')
    A(f's_cmp_ge_u32 {sW}, 4\ns_cselect_b32 {g0}, 0, 5')
    def st_off(dst, shift):
        A(f'v_lshlrev_b32 {vTMP}, {shift}, v120\nv_add_u32 {vTMP}, {t1}, {vTMP}\nv_mov_b32 {vTMP2}, {t2}\nv_cmp_eq_u32 vcc, 4, v120'); sel(vTMP, vTMP, vTMP2)
        A(f'v_lshl_add_u32 {vTMP}, v121, 4, {vTMP}\nv_cmp_gt_u32 vcc, {g0}, v120'); sel(dst, 'v118', vTMP)
    st_off(vQst, 13)
    A(f's_lshl_b32 {t3}, {t3}, 1\ns_lshl_b32 {t1}, {g3}, 6\ns_sub_u32 {t3}, {t3}, {t1}\ns_lshl_b32 {t1}, {sG}, 16\ns_add_u32 {t1}, {t1}, {t3}\ns_add_u32 {t1}, {t1}, {TQP}\ns_lshl_b32 {t2}, {sG}, 14\ns_add_u32 {t2}, {t2}, {t3}\ns_add_u32 {t2}, {t2}, {TQC}')
    st_off('v109', 14)
    A(f'v_lshlrev_b32 {vTMP}, 6, v122\nv_add_u32 {vTMP2}, 4, {vTMP}\nv_cmp_gt_u32 vcc, 16, {vL}'); sel(vTMP, vTMP, vTMP2)
    A(f'v_and_b32 {vTMP2}, {0x1ec*4}, {vT4}\nv_cmp_eq_u32 vcc, {256*4}, {vTMP2}'); sel(vSSt, 'v118', vTMP)
    A(f'v_lshlrev_b32 v115, 2, {vT4}')
    A(f's_lshl_b32 {t1}, {sG}, 2\ns_add_u32 {t1}, {t1}, {g3}\ns_lshl_b32 {t1}, {t1}, 14\ns_lshl_b32 {t2}, {sLO}, 11\ns_add_u32 {t1}, {t1}, {t2}\ns_lshl_b32 {t2}, {sHI}, 9\ns_add_u32 {t1}, {t1}, {t2}\ns_add_u32 {t1}, {t1}, {TOP}')
    A(f'v_and_b32 {vTMP}, 2, {vL}\nv_lshlrev_b32 {vTMP}, 7, {vTMP}\nv_lshrrev_b32 {vTMP2}, 2, {vL}\nv_lshl_add_u32 {vTMP}, {vTMP2}, 4, {vTMP}\nv_add_u32 {vTMP}, {t1}, {vTMP}\nv_and_b32 {vTMP2}, 1, {vL}\nv_cmp_eq_u32 vcc, 0, {vTMP2}'); sel('v110', 'v118', vTMP)
    A(f's_mov_b32 {sLAY}, 0\ns_mov_b32 {sTO}, 400000\ns_mov_b32 {sFAST}, 0\ns_mov_b32 {sGOK}, 0\ns_mov_b32 {sLIDX}, 0')
    A(f's_lshl_b32 {t3}, {g3}, 6\ns_lshl_b32 {t1}, {sLO}, 10\ns_add_u32 {t1}, {t1}, {sGg}\ns_add_u32 {t1}, {t1}, {t3}\ns_lshl_b32 {t2}, {sLO}, 8\ns_add_u32 {t2}, {t2}, {sGCg}\ns_add_u32 {t2}, {t2}, {t3}')
    st_off(vGst, 8)
    A(f'v_and_b32 {vTMP}, 7, {vL}\nv_lshlrev_b32 {vSt8}, 3, {vTMP}\nv_lshlrev_b32 {vL4}, 2, {vL}\nv_lshlrev_b32 {vML2}, 3, v121')
    A(f'v_cmp_eq_u32 vcc, 0, {vL}'); sel(vMLst, 'v118', '0')
    A(f's_lshl_b32 {t1}, {g3}, 8\nv_lshlrev_b32 {vTMP}, 4, v120\nv_lshl_add_u32 {vG1}, v121, 10, {vTMP}\nv_add_u32 {vG1}, {t1}, {vG1}')
    A(f's_lshl_b32 {t1}, {sW}, 6\nv_lshlrev_b32 {vXg}, 11, v123\nv_lshl_add_u32 {vXg}, v121, 9, {vXg}\nv_lshl_add_u32 {vXg}, v122, 4, {vXg}\nv_add_u32 {vXg}, {t1}, {vXg}')
    A(f's_lshr_b32 {t1}, {sW}, 1\ns_mul_i32 {t1}, {t1}, 192\ns_and_b32 {t2}, {sW}, 1\ns_lshl_b32 {t2}, {t2}, 6\ns_add_u32 {t1}, {t1}, {t2}\ns_add_u32 {t1}, {t1}, {L_XS}\nv_add_u32 {vXW}, {t1}, v117')
    A(f'v_add_u32 {vTMP2}, {L_DUMP}, {vT4}\nv_cmp_eq_u32 vcc, 0, v123'); sel(vXW, vTMP2, vXW)
    A(f's_mul_i32 {t1}, {g3}, 320\ns_add_u32 {t1}, {t1}, {L_QS}\nv_lshl_add_u32 {vQW}, v121, 2, {vTMP}\nv_add_u32 {vQW}, {t1}, {vQW}')
    A(f's_mul_i32 {t1}, {g3}, 192\ns_add_u32 {t1}, {t1}, {L_HS}\nv_lshlrev_b32 {vHW}, 3, v120\nv_lshl_add_u32 {vHW}, v121, 1, {vHW}\nv_add_u32 {vHW}, {t1}, {vHW}')
    A(f'v_mul_u32_u24 {vBR320}, 320, v122\nv_lshl_add_u32 {vBR320}, v121, 4, {vBR320}\nv_add_u32 {vBR320}, {L_QS}, {vBR320}')
    A(f'v_mul_u32_u24 {vBR192}, 192, v122\nv_lshl_add_u32 {vBR192}, v121, 4, {vBR192}\nv_add_u32 {vBR192}, {L_HS}, {vBR192}')
    A(f'v_min_u32 {vTMP2}, 4, v120\nv_mul_u32_u24 {vXR}, 192, {vTMP2}\nv_lshl_add_u32 {vXR}, v121, 4, {vXR}\nv_add_u32 {vXR}, {L_XS}, {vXR}')
    A(f's_lshl_b32 {t1}, {g3}, 5\nv_lshlrev_b32 {vTMP2}, 7, v120\nv_lshl_add_u32 {vTMP2}, v121, 3, {vTMP2}\nv_add_u32 {vTMP2}, {t1}, {vTMP2}\nv_cmp_gt_u32 vcc, 4, v120'); sel(vXst, 'v118', vTMP2)
    A(f'v_lshlrev_b32 {vTMP2}, 4, {vL}\nv_add_u32 {vROW}, {sRING}, {vTMP2}')
    A(f's_lshr_b32 {t1}, {g3}, 1\ns_lshl_b32 {t1}, {t1}, 10\ns_and_b32 {t2}, {g3}, 1\ns_lshl_b32 {t2}, {t2}, 3\ns_add_u32 {t1}, {t1}, {t2}\nv_add_u32 {vROR}, {t1}, {vTMP2}')
    A(f's_lshl_b32 {t1}, {sW}, 3\ns_add_u32 {t1}, {t1}, {L_RM}\nv_lshlrev_b32 {vRMW}, 6, v122\nv_add_u32 {vRMW}, {t1}, {vRMW}')
    A(f's_lshl_b32 {t1}, {g3}, 6\ns_add_u32 {t1}, {t1}, {L_RM}\nv_add_u32 {vRMR}, {t1}, {vSt8}')
    A(f'v_lshl_add_u32 v125, v121, 3, v123')
    A(f'v_xor_b32 {vTMP}, {g3}, v123\nv_lshlrev_b32 {vTMP}, 6, {vTMP}\nv_lshl_add_u32 {vTMP}, v122, 4, {vTMP}\nv_lshl_add_u32 {vWQr}, v125, 8, {vTMP}\nv_add_u32 {vWQr}, {L_WQ}, {vWQr}')
    A(f'v_lshrrev_b32 v119, 1, v123\nv_and_b32 v127, 1, v121\nv_lshlrev_b32 {vTMP}, 1, v127')
    A(f'v_xor_b32 {vTMP}, {g3}, {vTMP}\nv_lshlrev_b32 {vTMP}, 5, {vTMP}\nv_lshl_add_u32 {vTMP}, v122, 3, {vTMP}\nv_lshl_add_u32 {vWr}, v125, 7, {vTMP}\nv_add_u32 {vWr}, {L_WG}, {vWr}')
    A(f'v_and_b32 v126, 1, v123\nv_lshlrev_b32 {vTMP}, 1, v126\nv_xor_b32 {vTMP}, {g3}, {vTMP}\nv_lshlrev_b32 {vTMP}, 5, {vTMP}\nv_lshl_add_u32 {vTMP}, v122, 3, {vTMP}')
    A(f'v_lshl_add_u32 {vTMP2}, v121, 2, v119\nv_lshl_add_u32 {vTMP2}, v126, 6, {vTMP2}\nv_lshl_add_u32 {vWOr}, {vTMP2}, 7, {vTMP}\nv_add_u32 {vWOr}, {L_WO}, {vWOr}')
    A(f'v_and_b32 v125, 1, v120\nv_mov_b32 {vTMP}, 0xffff\nv_mov_b32 {vTMP2}, 0xffff0000\nv_cmp_eq_u32 vcc, 1, v125'); sel('v119', vTMP, vTMP2)
    A(f'v_cmp_gt_u32 vcc, 2, v122'); sel('v119', '0', 'v119')
    for i in range(4):
        A(f'v_cmp_eq_u32 vcc, {i}, v123'); sel(f'v{MASK+i}', '0', 'v119'); A(f'v_and_b32 v{32+i}, 0x3f803f80, v{MASK+i}')
    A(f'v_mov_b32 {vTMP}, 0x3f80\nv_mov_b32 {vTMP2}, 0x3f800000\nv_cmp_eq_u32 vcc, 1, v126'); sel('v119', vTMP, vTMP2)
    A(f'v_cmp_gt_u32 vcc, 2, v122'); sel('v119', '0', 'v119')
    A(f'v_lshrrev_b32 {vTMP}, 1, v123\nv_lshl_add_u32 {vTMP}, v125, 1, {vTMP}')
    for i in range(4):
        A(f'v_cmp_eq_u32 vcc, {i}, {vTMP}'); sel(f'v{40+i}', '0', 'v119')
    A('v_mov_b32 v44, 0x3f803f80\nv_mov_b32 v45, 0x3f803f80')
    A(f'v_and_b32 {vTMP2}, 7, {vL}\nv_lshrrev_b32 v119, 3, {vL}')
    A(f's_lshr_b32 {t1}, {sW}, 2\ns_lshl_b32 {t1}, {t1}, 2\nv_xor_b32 {vTMP}, {t1}, {vTMP2}\nv_lshlrev_b32 {vTMP}, 4, {vTMP}\nv_lshl_add_u32 v124, v119, 10, {vTMP}')
    A(f's_and_b32 {t1}, {sW}, 1\ns_lshl_b32 {t1}, {t1}, 2\nv_xor_b32 {vTMP}, {t1}, {vTMP2}\nv_lshlrev_b32 {vTMP}, 4, {vTMP}')
    A(f'v_lshl_add_u32 v127, v119, 10, {vTMP}\nv_mul_u32_u24 v126, 3584, v119\nv_add_u32 v126, v126, {vTMP}')
    A(f's_cmp_ge_u32 {sG}, 4\ns_cselect_b32 {t2}, 3, 4\ns_cmp_lt_u32 {sHI}, {t2}\ns_cselect_b32 {t2}, 0, {OOB}\nv_add_u32 v126, {t2}, v126\nv_add_u32 v127, {t2}, v127')
    A(f'v_lshlrev_b32 {vTMP}, 1, v123\nv_xor_b32 {vTMP}, v121, {vTMP}\nv_lshlrev_b32 {vTMP}, 5, {vTMP}\nv_lshl_add_u32 {vTMP}, v122, 3, {vTMP}\nv_lshl_add_u32 {vTMP}, v123, 8, {vTMP}\nv_add_u32 v122, {sRING}, {vTMP}\nv_xor_b32 v123, 128, v122')
    A(f'v_and_b32 {vTMP}, 3, v120\nv_lshlrev_b32 {vTMP}, 6, {vTMP}\nv_lshl_add_u32 {vTMP}, v121, 4, {vTMP}\nv_lshl_add_u32 {vTMP}, v120, 8, {vTMP}\nv_add_u32 v118, {sRING}, {vTMP}')
    for j in range(1, 4): A(f'v_xor_b32 v{118+j}, {64*j}, v118')
    A(f'v_and_b32 {vTMP}, 124, {vL4}\nv_add_u32 {vTMP}, {L_XS+4*192}, {vTMP}\nds_write_b32 {vTMP}, v44')
    A(f'v_mov_b32 {vTMP}, {L_FL}\nv_mov_b32 {vTMP2}, 0\nds_write_b32 {vTMP}, {vTMP2}')
    A(f'v_mov_b32 v76, -1\nv_mov_b32 v77, -1\nds_write_b64 {vRMR}, v[76:77]')

    def read_k(i):
        for j in range(4): A(f'ds_read_b128 a[{16*i+4*j}:{16*i+4*j+3}], v{118+j} offset:{(i&1)*4096}')
    def read_v(p):
        i = p - 16
        for hf in range(2):
            r = 64 + 4 * i + 2 * hf
            A(f'ds_read_b64_tr_b16 a[{r}:{r+1}], v{122+hf} offset:{((p//4)&1)*4096 + (p%4)*1024}')
    if not late47:
        for p in range(burst, 8): piece(p)
    if diag: xstamp(40)
    A.wait_vm('ep')
    if diag: xstamp(41)
    A(f'v_and_b32 v113, 0xffff0000, v68\nv_lshlrev_b32 v112, 16, v68')
    A(f'v_readfirstlane_b32 {sTAG}, v69\ns_add_u32 {sTAG}, {sTAG}, 1')
    A('v_dot2_f32_bf16 v78, v72, v44, 0\nv_dot2_f32_bf16 v79, v72, v72, 0')
    for k in range(73, 76): A(f'v_dot2_f32_bf16 v78, v{k}, v44, v78\nv_dot2_f32_bf16 v79, v{k}, v{k}, v79')
    for m in ('quad_perm:[1,0,3,2]', 'quad_perm:[2,3,0,1]', 'row_half_mirror', 'row_mirror'):
        A(f'v_add_f32_dpp v78, v78, v78 {m} {DPP}\nv_add_f32_dpp v79, v79, v79 {m} {DPP}')
    for sw in ('v_permlane16_swap_b32', 'v_permlane32_swap_b32'):
        A(f'v_mov_b32 v76, v78\nv_mov_b32 v77, v79\n{sw} v78, v76\n{sw} v79, v77\nv_add_f32 v78, v78, v76\nv_add_f32 v79, v79, v77')
    c2 = QSCALE * QSCALE
    A(f'v_mov_b32 v75, {f32(1e-5/c2)}\nv_mul_f32 v74, v78, v78\nv_fmac_f32 v75, {f32(1/(512*c2))}, v79\nv_fmac_f32 v75, {f32(-1/(512*512*c2))}, v74\nv_max_f32 v75, {f32(1e-5/c2)}, v75\nv_rsq_f32 v74, v75')
    A(f'v_mul_f32 v78, {f32(-1/512)}, v78\nv_add_f32 v72, v112, v78\nv_add_f32 v73, v113, v78\nv_mul_f32 v72, v72, v74\nv_mul_f32 v73, v73, v74\nv_cvt_pk_bf16_f32 v72, v72, v73\nds_write_b32 {vXW}, v72')
    if late47:
        for p in range(burst, 8): piece(p)
    if diag: xstamp(42)
    A.wait_vm('wq')
    if diag: xstamp(43)
    if bar_after_k0:
        A.wait_vm('p3')
        read_k(0)
        A('s_waitcnt lgkmcnt(0)')
        for p in range(8, 12): piece(p)
    A('s_waitcnt lgkmcnt(0)')
    if 'B' not in abl: A('s_barrier')
    stamp()

    def read_wq():
        for tl in range(2):
            for j in range(2):
                for u in range(2):
                    r = 48 + 8 * tl + 4 * j + 2 * u
                    A(f'ds_read_b64_tr_b16 v[{r}:{r+1}], {vWQr} offset:{8*tl+8192*j+1024*u}')
    def read_gu():
        for tl in range(2):
            for j in range(2):
                for u in range(2):
                    r = 48 + 8 * tl + 4 * j + 2 * u
                    A(f'ds_read_b64_tr_b16 v[{r}:{r+1}], {vWr} offset:{8192*tl+4096*j+512*u}')
    def read_wd():
        for j in range(2):
            for u in range(2):
                A(f'ds_read_b64_tr_b16 v[{48+4*j+2*u}:{49+4*j+2*u}], {vWr} offset:{16384+4096*j+512*u}')
    def read_wo():
        for j in range(4):
            for u in range(2):
                A(f'ds_read_b64_tr_b16 v[{48+4*j+2*u}:{49+4*j+2*u}], {vWOr} offset:{2048*j+256*u}')
    def xs_reads(): A(f'ds_read_b128 v[80:83], {vXR}\nds_read_b128 v[84:87], {vXR} offset:64')
    def matvec(vst, mode, late_w=None, soff='0'):
        xs_reads()
        if late_w: late_w()
        A('s_waitcnt lgkmcnt(0)' if late_w else 's_waitcnt lgkmcnt(1)')
        A(f'{M16} v[96:99], v[48:51], v[80:83], 0\n{M16} v[104:107], v[56:59], v[80:83], 0')
        if not late_w: A('s_waitcnt lgkmcnt(0)')
        A(f'{M16} v[96:99], v[52:55], v[84:87], v[96:99]\n{M16} v[104:107], v[60:63], v[84:87], v[104:107]')
        if mode == 'plain':
            A(f's_cmp_eq_u32 {sFAST}, 1')
            A('v_cvt_pk_bf16_f32 v96, v96, v97\nv_cvt_pk_bf16_f32 v97, v98, v99\nv_cvt_pk_bf16_f32 v98, v104, v105\nv_cvt_pk_bf16_f32 v99, v106, v107')
            lstore(f'buffer_store_dwordx4 v[96:99], {vst}, {WS}, {soff} offen', cmp=False)
            return
        A(f'v_mov_b32 v102, {sTAG}\nv_mov_b32 v103, s64')
        A(f'v_cvt_pk_bf16_f32 v100, v96, v97\nv_cvt_pk_bf16_f32 v101, v98, v99\nv_cvt_pk_bf16_f32 v104, v104, v105\nv_cvt_pk_bf16_f32 v105, v106, v107')
        A(f'v_mov_b32 v106, {sTAG}\nv_mov_b32 v107, s64')
        if mode == 'q0':
            A.vmop(f'buffer_store_dwordx4 v[100:103], {vst}, {WS}, 0 offen', 'st')
            A.vmop(f'buffer_store_dwordx4 v[104:107], {vst}, {WS}, 0 offen offset:256', 'st')
        else:
            lstore(f'buffer_store_dwordx4 v[100:103], {vst}, {WS}, 0 offen\nbuffer_store_dwordx4 v[104:107], {vst}, {WS}, 0 offen offset:256')
    def slice_stats(sst):
        l = lab('st')
        A(f's_cmp_lg_u32 {sW}, 4\ns_cbranch_scc1 {l}')
        xs_reads()
        A('s_waitcnt lgkmcnt(1)')
        A(f'{M16} v[104:107], v[80:83], v[80:83], 0\ns_waitcnt lgkmcnt(0)\n{M16} v[104:107], v[84:87], v[84:87], v[104:107]')
        def pick():
            A('v_cndmask_b32 v104, v104, v105, s[80:81]\nv_cndmask_b32 v106, v106, v107, s[80:81]\nv_cndmask_b32 v104, v104, v106, s[82:83]')
        A('s_mov_b64 s[80:81], 10\ns_mov_b64 s[82:83], 12')
        A(f's_cmp_eq_u32 {sFAST}, 1')
        pick()
        lstore(f'buffer_store_dword v104, {vSSt}, {WS}, {sst} offen', cmp=False)
        A.vm.pop()
        A(f'{l}:')

    def issue_g1(dst, voff, sbase, tag, step=4096):
        A.vmop(f'buffer_load_dwordx4 v[{dst}:{dst+3}], {voff}, {WS}, {sbase} offen sc1', tag)
        if step >= 4096:
            A(f's_add_u32 {t1}, {sbase}, {step}')
            A.vmop(f'buffer_load_dwordx4 v[{dst+4}:{dst+7}], {voff}, {WS}, {t1} offen sc1', tag)
        else:
            A.vmop(f'buffer_load_dwordx4 v[{dst+4}:{dst+7}], {voff}, {WS}, {sbase} offen offset:{step} sc1', tag)
    def check_empty(regs):
        regs = list(regs)
        A(f'v_max3_u32 {vTMP}, v{regs[0]}, v{regs[1]}, v{regs[2]}'); rest = regs[3:]
        if len(rest) >= 5:
            A(f'v_max3_u32 {vTMP2}, v{rest[0]}, v{rest[1]}, v{rest[2]}'); rest = rest[3:]
            tg = 0
            while len(rest) >= 2:
                d = (vTMP, vTMP2)[tg]; A(f'v_max3_u32 {d}, {d}, v{rest[0]}, v{rest[1]}'); rest = rest[2:]; tg ^= 1
            if rest: A(f'v_max3_u32 {vTMP}, {vTMP}, {vTMP2}, v{rest[0]}')
            else: A(f'v_max_u32 {vTMP}, {vTMP}, {vTMP2}')
        else:
            while len(rest) >= 2:
                A(f'v_max3_u32 {vTMP}, {vTMP}, v{rest[0]}, v{rest[1]}'); rest = rest[2:]
            if rest: A(f'v_max_u32 {vTMP}, {vTMP}, v{rest[0]}')
        A(f'v_cmp_eq_u32 vcc, -1, {vTMP}')
    def poll(issue, regs, spec=None, mark=None):
        r, d = lab('retry'), lab('got')
        A(f'{r}:')
        issue()
        A.wait_vm()
        if mark: A(f'{mark}:')
        if spec: spec()
        check_empty(regs)
        tl = lab('again')
        A(f's_cbranch_vccnz {tl}\n{d}:')
        tails.append(f'{tl}:\n' + (f's_sleep {backoff}\n' if backoff else '') + f's_sub_u32 {sTO}, {sTO}, 1\ns_cbranch_scc0 {r}\ns_mov_b32 {sTO}, 0\ns_branch {d}')
    def poll2(issue, nld, regs, spec):
        d, sb, sa = lab('got'), lab('setb'), lab('seta')
        issue(0)
        if dstep: A(f's_sleep {dstep}')
        issue(1)
        A(f'{sa}:\ns_waitcnt vmcnt({nld})')
        spec(0); check_empty(regs(0))
        A(f's_cbranch_vccnz {sb}\n{d}:')
        keepL, A.L = A.L, []
        A(f'{sb}:'); issue(0)
        A(f's_waitcnt vmcnt({nld})\ns_nop 1')
        spec(1); check_empty(regs(1))
        A(f's_nop 1\ns_cbranch_vccz {d}')
        issue(1)
        A(f's_sub_u32 {sTO}, {sTO}, 1\ns_cbranch_scc0 {sa}\ns_mov_b32 {sTO}, 0\ns_branch {d}')
        tails.append('\n'.join(A.L)); A.L = keepL
        A.vm = []
    def ln_poll_nan(sdata, sstat, selop, cs, scale):
        c2 = scale * scale
        def iss(k):
            issue_g1(64 + 16 * k, vG1, sdata, 'x')
            A.vmop(f'buffer_load_dwordx2 v[{72+16*k}:{73+16*k}], {vSt8}, {WS}, {sstat} offen sc1', 'x')
        def work(k):
            b = 64 + 16 * k
            A(f'{M16} v[96:99], {selop}, v[{b}:{b+3}], 0\n{M16} v[96:99], {selop}, v[{b+4}:{b+7}], v[96:99]')
            A(f'v_add_f32_dpp v78, v{b+8}, v{b+8} quad_perm:[1,0,3,2] {DPP}\nv_add_f32_dpp v79, v{b+9}, v{b+9} quad_perm:[1,0,3,2] {DPP}\nv_mov_b32 v75, {f32(1e-5/c2)}')
            A(f'v_add_f32_dpp v78, v78, v78 quad_perm:[2,3,0,1] {DPP}\nv_add_f32_dpp v79, v79, v79 quad_perm:[2,3,0,1] {DPP}')
            A(f'v_add_f32_dpp v78, v78, v78 row_half_mirror {DPP}\nv_add_f32_dpp v79, v79, v79 row_half_mirror {DPP}')
            A(f'v_mul_f32 v74, v78, v78\nv_fmac_f32 v75, {f32(1/(512*c2))}, v79\nv_fmac_f32 v75, {f32(-1/(512*512*c2))}, v74')
            A(f'v_pk_fma_f32 v[96:97], v[78:79], {cs}, v[96:97] op_sel_hi:[0,1,1] neg_lo:[1,0,0] neg_hi:[1,0,0]')
            A(f'v_max_f32 v76, {f32(1e-5/c2)}, v75\nv_rsq_f32 v74, v76\nv_cmp_u_f32 vcc, v96, v75')
        d, sb, sa = lab('got'), lab('setb'), lab('seta')
        iss(0)
        if dstep: A(f's_sleep {dstep}')
        iss(1)
        A(f'{sa}:\ns_waitcnt vmcnt(3)')
        work(0)
        A(f's_cbranch_vccnz {sb}\n{d}:')
        keepL, A.L = A.L, []
        A(f'{sb}:'); iss(0)
        A('s_waitcnt vmcnt(3)')
        work(1)
        A(f's_cbranch_vccz {d}'); iss(1)
        A(f's_sub_u32 {sTO}, {sTO}, 1\ns_cbranch_scc0 {sa}\ns_mov_b32 {sTO}, 0\ns_branch {d}')
        tails.append('\n'.join(A.L)); A.L = keepL
        A.vm = []
        A('v_pk_mul_f32 v[96:97], v[96:97], v[74:75] op_sel_hi:[1,0]')
    def ln_poll2(sdata, sstat, selop, sets):
        def iss(k):
            issue_g1(sets[k], vG1, sdata, 'x')
            A.vmop(f'buffer_load_dwordx2 v[{sets[k]+8}:{sets[k]+9}], {vSt8}, {WS}, {sstat} offen sc1', 'x')
        def spec(k):
            b = sets[k]
            A(f'{M16} v[96:99], {selop}, v[{b}:{b+3}], 0\n{M16} v[96:99], {selop}, v[{b+4}:{b+7}], v[96:99]')
            A(f'v_add_f32_dpp v78, v{b+8}, v{b+8} quad_perm:[1,0,3,2] {DPP}\nv_add_f32_dpp v79, v{b+9}, v{b+9} quad_perm:[1,0,3,2] {DPP}')
        poll2(iss, 3, lambda k: range(sets[k], sets[k] + 10), spec)
    def issue_q(first):
        if not first:
            issue_g1(64, vG1, sQg, 'q')
            A.vmop(f'buffer_load_dwordx2 v[72:73], {vSt8}, {WS}, {sQSg} offen sc1', 'q')
            return
        issue_tagged(f's_mov_b32 {t1}, s101')
    def issue_tagged(base, dst=80, voff=None, kstep=8192, hstep=256):
        if voff is None:
            A(f'v_and_b32 {vTMP2}, 0xf0, {vG1}\nv_lshlrev_b32 {vTMP}, 1, {vG1}\nv_sub_u32 {vTMP}, {vTMP}, {vTMP2}')
        else: A(voff)
        A(base + f'\ns_add_u32 {t2}, {t1}, {kstep}')
        for k in range(2):
            for hh in range(2):
                r = dst[2 * k + hh] if isinstance(dst, tuple) else dst + 8 * k + 4 * hh
                A.vmop(f'buffer_load_dwordx4 v[{r}:{r+3}], {vTMP}, {WS}, {(t1, t2)[k]} offen offset:{hstep*hh} sc1', 'q')
    def issue_o0():
        issue_tagged(f's_lshl_b32 {t1}, {sG}, 2\ns_add_u32 {t1}, {t1}, {sHI}\ns_lshl_b32 {t0}, {t1}, 2\ns_lshl_b32 {t1}, {t1}, 14\ns_add_u32 {t1}, {t1}, {TOP}', o0dst[0])
        A(f's_add_u32 {t0}, {t0}, {sW}\ns_lshl_b32 {t0}, {t0}, 7\ns_add_u32 {t0}, {t0}, {TML}\nv_lshlrev_b32 {vTMP2}, 1, {vML2}')
        m_ = o0ml[0]
        A.vmop(f'buffer_load_dwordx4 v[{m_}:{m_+3}], {vTMP2}, {WS}, {t0} offen sc1', 'q')
        A.vmop(f'buffer_load_dwordx4 v[{m_+4}:{m_+7}], {vTMP2}, {WS}, {t0} offen offset:64 sc1', 'q')
    o0dst = [80]; o0ml = [64]
    def check_words(words, sval):
        w = list(words)
        A(f'v_xor_b32 {vTMP}, {sval}, v{w[0]}')
        for x in w[1:]: A(f'v_xor_b32 {vTMP2}, {sval}, v{x}\nv_or_b32 {vTMP}, {vTMP}, {vTMP2}')
        A(f'v_cmp_ne_u32 vcc, 0, {vTMP}')
    def check_tags(words=(82, 86, 90, 94)): check_words(words, sTAG)
    def tagged_sum(selbase=32, src=80, acc=96, selk=0):
        for n_, (k, hh) in enumerate(((0, 0), (0, 1), (1, 0), (1, 1))):
            r = src[2 * k + hh] if isinstance(src, tuple) else src + 8 * k + 4 * hh
            sb = selbase + selk * k + 2 * hh
            c = '0' if n_ == 0 else f'v[{acc}:{acc+3}]'
            A(f'v_mfma_f32_16x16x16_bf16 v[{acc}:{acc+3}], v[{sb}:{sb+1}], v[{r}:{r+1}], {c}')
    def q0_finish():
        tagged_sum()
        check_words((83, 87, 91, 95), 's64')
        A(f's_cmp_eq_u64 vcc, 0\ns_cselect_b32 {sGOK}, 1, 2')
        A(f'v_cvt_pk_bf16_f32 v96, v96, v97\nds_write_b32 {vQW}, v96')
    def tagged_poll(issue, words=(82, 86, 90, 94), spec=None, back=0):
        rq, gq = lab('rq'), lab('gq')
        A(f'{rq}:')
        issue(); A.wait_vm()
        if spec: spec()
        check_tags(words)
        A(f's_cbranch_vccz {gq}')
        if back: A(f's_sleep {back}')
        A(f's_sub_u32 {sTO}, {sTO}, 1\ns_cbranch_scc0 {rq}\ns_mov_b32 {sTO}, 0\n{gq}:')
    CQ = (48, 52, 56, 60)
    def issue_csq(): issue_tagged(f's_lshl_b32 {t1}, {sG}, 14\ns_add_u32 {t1}, {t1}, {TQC}', CQ)
    def finish_csq():
        ok_ = lab('cq')
        check_tags(tuple(r + 2 for r in CQ))
        A(f's_cbranch_vccz {ok_}')
        tagged_poll(issue_csq, tuple(r + 2 for r in CQ))
        A(f'{ok_}:')
        tagged_sum(32, CQ, 64)
        A(f's_mov_b32 {t2}, {f32(1/512)}\nv_pk_mul_f32 {CSQ}, v[64:65], s[56:57] op_sel_hi:[1,0]')
    QREGS = list(range(64, 74)); QREGS1 = QREGS + list(range(80, 88))
    def ln_spec(selop, first):
        def f():
            A(f'{M16} v[96:99], {selop}, v[64:67], 0\n{M16} v[96:99], {selop}, v[68:71], v[96:99]')
            if first:
                A(f'{M16} v[100:103], {selop}, v[80:83], 0\n{M16} v[100:103], {selop}, v[84:87], v[100:103]')
            A(f'v_add_f32_dpp v78, v72, v72 quad_perm:[1,0,3,2] {DPP}\nv_add_f32_dpp v79, v73, v73 quad_perm:[1,0,3,2] {DPP}')
        return f
    def ln_finish(cs, scale, first, csrc=100):
        for m in ('quad_perm:[2,3,0,1]', 'row_half_mirror'):
            A(f'v_add_f32_dpp v78, v78, v78 {m} {DPP}\nv_add_f32_dpp v79, v79, v79 {m} {DPP}')
            if m.startswith('quad'): A(f'v_mov_b32 v75, {f32(1e-5/(scale*scale))}')
        c2 = scale * scale
        A(f'v_mul_f32 v74, v78, v78\nv_fmac_f32 v75, {f32(1/(512*c2))}, v79')
        if first:
            A(f's_mov_b32 {t2}, {f32(1/512)}\nv_pk_mul_f32 {cs}, v[{csrc}:{csrc+1}], s[56:57] op_sel_hi:[1,0]')
        A(f'v_fmac_f32 v75, {f32(-1/(512*512*c2))}, v74\nv_max_f32 v75, {f32(1e-5/c2)}, v75\nv_rsq_f32 v74, v75')
        A(f'v_pk_fma_f32 v[96:97], v[78:79], {cs}, v[96:97] op_sel_hi:[0,1,1] neg_lo:[1,0,0] neg_hi:[1,0,0]')
        A(f'v_pk_mul_f32 v[96:97], v[96:97], v[74:75] op_sel_hi:[1,0]')
    def q_finish(first):
        ln_finish(CSQ, QSCALE, first)
        A(f'v_cvt_pk_bf16_f32 v96, v96, v97\nds_write_b32 {vQW}, v96')

    A('; ---- first q projection, published with plain stores and this CU\'s XCC id')
    save = list(A.vm)
    with lowwaves():
        read_wq()
        A('s_waitcnt lgkmcnt(0)')
        if 'Q' not in abl: matvec('v109', 'q0')
    stamp()

    def issue_wo():
        A(f's_lshl_b32 {t1}, {sG}, 9\ns_lshl_b32 {t2}, {sHI}, 7\ns_add_u32 {t1}, {t1}, {t2}\ns_lshl_b32 {t2}, {sW}, 4\ns_add_u32 {t1}, {t1}, {t2}\ns_lshl_b32 {t1}, {t1}, 10\ns_lshl_b32 {t2}, {sLO}, 7\ns_add_u32 {t1}, {t1}, {t2}')
        A(f's_lshl_b32 {t2}, {sW}, 11\ns_add_u32 m0, {t2}, {L_WO}')
        A.vmop(f'buffer_load_dwordx4 v124, {WO}, {t1} offen nt lds', 'wo')
        A(f's_add_u32 {t1}, {t1}, 8192\ns_add_u32 m0, m0, 1024')
        A.vmop(f'buffer_load_dwordx4 v124, {WO}, {t1} offen nt lds', 'wo')

    def issue_ffn(dw=0, track=False, parts='gud'):
        vm_ = (lambda x: A.vmop(x, 'ffn')) if track else A
        A(f's_add_u32 {t0}, {sW}, {dw}')
        if 'g' in parts:
            A(f's_lshl_b32 {t1}, {sLO}, 6\ns_lshl_b32 {t2}, {t0}, 3\ns_add_u32 {t1}, {t1}, {t2}\ns_mul_i32 {t1}, {t1}, 3584\ns_lshl_b32 {t2}, {g2}, 7\ns_add_u32 {t1}, {t1}, {t2}')
        A(f's_lshl_b32 {t2}, {t0}, 10\ns_add_u32 m0, {t2}, {L_WG}')
        if 'g' in parts:
            vm_(f'buffer_load_dwordx4 v126, {WG}, {t1} offen nt lds')
        if 'u' in parts:
            A(f's_add_u32 m0, {t2}, {L_WU}')
            vm_(f'buffer_load_dwordx4 v126, {WU}, {t1} offen nt lds')
        if 'd' not in parts: return
        A(f's_lshl_b32 {t1}, {g2}, 6\ns_lshl_b32 {t3}, {t0}, 3\ns_add_u32 {t1}, {t1}, {t3}\ns_lshl_b32 {t1}, {t1}, 10\ns_lshl_b32 {t3}, {sLO}, 7\ns_add_u32 {t1}, {t1}, {t3}\ns_add_u32 m0, {t2}, {L_WD}')
        vm_(f'buffer_load_dwordx4 v127, {WD}, {t1} offen nt lds')
    wait_of = {}
    d = 6
    for p_ in range(12, 32):
        tgt = depth if p_ < deep_from else deep
        need_d = p_ - tgt
        if p_ in (12, 16, 20): need_d = max(need_d, p_ - 5)
        if need_d > d: wait_of[p_] = list(range(d + 1, need_d + 1)); d = need_d
        else: wait_of[p_] = []
    last_read = d
    def step(p):
        for d_ in wait_of[p]:
            A.wait_vm(f'p{d_}')
            if d_ < 16:
                if d_ % 4 == 3: read_k(d_ // 4); A('s_waitcnt lgkmcnt(0)')
            else:
                A('s_waitcnt lgkmcnt(0)')
                read_v(d_)
            if diag and d_ in (7, 11, 15, 19, 23): xstamp(45 + (d_ - 7) // 4)
        if ffn_at and p == ffn_at and len(tail_parts) < 3: issue_ffn(0, True, ''.join(c_ for c_ in 'gud' if c_ not in tail_parts))
        if p == wo_at: issue_wo()
        piece(p)
    hi_l, join_all, flag_l = lab('shi'), lab('sj'), lab('fl')
    def lead_in():
        if not bar_after_k0:
            A.wait_vm('p3')
            if diag: xstamp(44)
            read_k(0); A('s_waitcnt lgkmcnt(0)')
            for pp in range(8, 12): piece(pp)
    lowcode = [True]
    def steps(lo_, hi_):
        for pp in range(lo_, hi_):
            if pp == touch_o and lowcode[0]:
                n_ = len(A.vm); o0dst[0] = 48; issue_o0(); o0dst[0] = 80
                A.vm[n_:] = ['touch'] * (len(A.vm) - n_)
            if pp == tlb_at and not lowcode[0]:
                A(f's_lshl_b32 {t1}, {sG}, 2\ns_add_u32 {t1}, {t1}, {sHI}\ns_lshl_b32 {t1}, {t1}, 17\ns_mul_i32 {t2}, {sLO}, {64*3584}\ns_lshl_b32 {t3}, {g2}, 16')
                A.vmop(f'buffer_load_dword v64, off, {WO}, {t1} nt', 'tlb')
                A.vmop(f'buffer_load_dword v64, off, {WG}, {t2} nt', 'tlb')
                A.vmop(f'buffer_load_dword v64, off, {WU}, {t2} nt', 'tlb')
                A.vmop(f'buffer_load_dword v64, off, {WD}, {t3} nt', 'tlb')
            if pp == csq_at and lowcode[0] and 'S' not in abl:
                n_ = len(A.vm); issue_csq(); A.vm[n_:] = ['csq'] * (len(A.vm) - n_)
            step(pp)
    A(f's_cmp_ge_u32 {sW}, 4\ns_cbranch_scc1 {hi_l}')
    lead_in()
    p = 12
    while p < p_sc:
        if p in rides:
            assert p + 5 <= p_sc
            skip, join = lab('noq'), lab('jn')
            saved = list(A.vm)
            A(f's_cmp_lg_u32 {sGOK}, 0\ns_cbranch_scc1 {skip}')
            issue_q(True)
            steps(p, p + 5)
            if 'q' in A.vm: A.wait_vm('q')
            check_tags()
            nq = lab('nq')
            A(f's_cbranch_vccnz {nq}')
            q0_finish()
            A(f'{nq}:\ns_branch {join}\n{skip}:')
            after_q = list(A.vm)
            A.vm = saved
            steps(p, p + 5)
            extra = len(A.vm) - len(after_q)
            assert A.vm[extra:] == after_q, (A.vm, after_q)
            A.vm = after_q if extra <= 0 else A.vm
            A(f'{join}:')
            p += 5
        else:
            steps(p, p + 1); p += 1
    saved = list(A.vm)
    def put_status():
        A(f's_lshl_b32 {t1}, {sW}, 2\ns_add_u32 {t1}, {t1}, {L_ST}\nv_mov_b32 {vTMP}, {t1}\nv_mov_b32 {vTMP2}, {sGOK}\nds_write_b32 {vTMP}, {vTMP2}')
    def get_status():
        A(f'v_mov_b32 {vTMP}, {L_ST}\nds_read_b128 v[72:75], {vTMP}\ns_waitcnt lgkmcnt(0)')
        check_words((72, 73, 74, 75), '1')
        A('s_cmp_eq_u64 vcc, 0')
    put_status()
    A(f's_branch {join_all}\n{hi_l}:')
    A.vm = save; lowcode[0] = False
    lead_in()
    steps(12, p_sc)
    saved = list(A.vm)
    A(f'{join_all}:')
    stamp()
    A('s_waitcnt lgkmcnt(0)\ns_barrier')
    get_status()
    okq = lab('okq')
    A(f's_cbranch_scc1 {okq}')
    if not abl:
        with lowwaves():
            A(f'buffer_store_dwordx4 v[100:103], v109, {WS}, 0 offen sc1\nbuffer_store_dwordx4 v[104:107], v109, {WS}, 0 offen offset:256 sc1')
            dn = lab('qdone')
            A(f's_cmp_lg_u32 {sGOK}, 0\ns_cbranch_scc1 {dn}')
            tagged_poll(lambda: issue_q(True))
            q0_finish()
            A(f'{dn}:')
        A('s_barrier')
        with lowwaves(): put_status()
        A('s_waitcnt lgkmcnt(0)\ns_barrier')
        get_status()
    A(f'{okq}:\ns_cselect_b32 {sFAST}, 1, 0')
    A.vm = saved
    def issue_ffn_any(dw, parts=None):
        if dw & 1: A('v_xor_b32 v126, 64, v126\nv_xor_b32 v127, 64, v127')
        issue_ffn(dw, False, parts or ''.join(c_ for c_ in ('gu' if wd_after else 'gud') if c_ not in tail_parts + mid_parts))
        if dw & 1: A('v_xor_b32 v126, 64, v126\nv_xor_b32 v127, 64, v127')
    def first_only(f):
        def g():
            l, bk = lab('fo'), lab('bk')
            A(f's_cmp_eq_u32 {sLIDX}, 0\ns_cbranch_scc1 {l}\n{bk}:')
            keepL, A.L = A.L, []
            A(f'{l}:'); f(); A(f's_branch {bk}')
            tails.append('\n'.join(A.L)); A.L = keepL
        return g
    def variant(first, later):
        l, bk = lab('v0'), lab('vj')
        A(f's_cmp_eq_u32 {sLIDX}, 0\ns_cbranch_scc1 {l}')
        n0 = nts[0]
        later()
        A(f'{bk}:')
        n1, nts[0] = nts[0], n0
        keepL, A.L = A.L, []
        A(f'{l}:'); first(); A(f's_branch {bk}')
        tails.append('\n'.join(A.L)); A.L = keepL
        assert nts[0] == n1
    def later_only(f):
        l = lab('lo'); A(f's_cmp_eq_u32 {sLIDX}, 0\ns_cbranch_scc1 {l}'); f(); A(f'{l}:')
    def scores(bar=True):
        if bar: A('s_waitcnt lgkmcnt(0)\ns_barrier')
        for j in range(4): A(f'ds_read_b128 v[{64+4*j}:{67+4*j}], {vBR320} offset:{64*j}')
        def sel_t(t, rs):
            for r in rs: A(f'v_mov_b32_dpp v{80+r}, v{80+4*t+r} quad_perm:[0,1,2,3] row_mask:0xf bank_mask:{1<<t:#x}')
        if tmajor:
            for t in range(4):
                for j in range(4):
                    if t == 0: A(f's_waitcnt lgkmcnt({3-j})')
                    c = '0' if j == 0 else f'v[{80+4*t}:{83+4*t}]'
                    A(f'{M16} v[{80+4*t}:{83+4*t}], a[{16*t+4*j}:{16*t+4*j+3}], v[{64+4*j}:{67+4*j}], {c}')
            sel_t(1, range(4)); sel_t(2, range(4)); sel_t(3, range(4))
        else:
            for j in range(4):
                A(f's_waitcnt lgkmcnt({3-j})')
                for t in range(4):
                    c = '0' if j == 0 else f'v[{80+4*t}:{83+4*t}]'
                    A(f'{M16} v[{80+4*t}:{83+4*t}], a[{16*t+4*j}:{16*t+4*j+3}], v[{64+4*j}:{67+4*j}], {c}')
            for t in range(1, 4): sel_t(t, range(4))
        A('v_max3_f32 v84, v80, v81, v82\nv_max_f32 v84, v84, v83')
        A(f'v_max_f32_dpp v84, v84, v84 row_ror:4 {DPP}')
        A(f'v_max_f32_dpp v84, v84, v84 row_ror:8 {DPP}')
        A('v_mov_b32 v85, v84\nv_permlane16_swap_b32 v84, v85\nv_max_f32 v84, v84, v85')
        A('v_mov_b32 v85, v84\nv_permlane32_swap_b32 v84, v85\nv_max_f32 v84, v84, v85')
        A('v_pk_add_f32 v[80:81], v[80:81], v[84:85] op_sel_hi:[1,0] neg_lo:[0,1] neg_hi:[0,1]')
        A('v_pk_add_f32 v[82:83], v[82:83], v[84:85] op_sel_hi:[1,0] neg_lo:[0,1] neg_hi:[0,1]')
        for r in range(4): A(f'v_exp_f32 v{80+r}, v{80+r}')
        A('v_cvt_pk_bf16_f32 v86, v80, v81\nv_cvt_pk_bf16_f32 v87, v82, v83')
        A(f'v_mfma_f32_16x16x16_bf16 v[88:91], {ONES}, v[86:87], 0')
    def pv(i):
        for hf in range(2):
            acc = 96 + 8 * (i & 1) + 4 * hf
            c = '0' if i < 2 else f'v[{acc}:{acc+3}]'
            A(f'v_mfma_f32_4x4x4_16b_bf16 v[{acc}:{acc+3}], v[86:87], a[{64+4*i+2*hf}:{65+4*i+2*hf}], {c} cbsz:4 abid:{4*(i&3)+(i>>2)}')
    def lsum():
        A(f'v_add_f32_dpp v85, v88, v88 row_ror:4 {DPP}')
        A(f'v_add_f32_dpp v85, v85, v85 row_ror:8 {DPP}')
        A(f's_mov_b64 exec, 15\nds_write_b64 {vRMW}, v[84:85]')
        full_exec()
    def combine(tagged=False, other=None):
        for h in range(4):
            A(f'v_add_f32 v{64+2*h}, v{96+h}, v{104+h}\nv_add_f32 v{65+2*h}, v{100+h}, v{108+h}')
            if h & 1: A(f'ds_write_b128 {vROW}, v[{62+2*h}:{65+2*h}] offset:{512*(h-1)}')
        def ml_tagged():
            A(f'v_mov_b32 v76, {sTAG}\nv_mov_b32 v77, {sTAG}')
            A(f's_lshl_b32 {t1}, {sG}, 2\ns_add_u32 {t1}, {t1}, {sW}\ns_lshl_b32 {t1}, {t1}, 2\ns_add_u32 {t1}, {t1}, {sHI}\ns_lshl_b32 {t1}, {t1}, 3\ns_add_u32 {t1}, {t1}, {sLO}\ns_lshl_b32 {t1}, {t1}, 4\ns_add_u32 {t1}, {t1}, {TML}')
            lstore(f'buffer_store_dwordx4 v[74:77], {vMLst}, {WS}, {t1} offen')
        def ml_plain(): lstore(f'buffer_store_dwordx2 v[74:75], {vMLst}, {WS}, {sMLst} offen')
        with lowwaves():
            r_, d_, t_ = lab('rm'), lab('rd'), lab('rt')
            A(f'{r_}:\nds_read_b64 v[72:73], {vRMR}\ns_waitcnt lgkmcnt(0)\nv_cmp_eq_u32 vcc, -1, v73\ns_cbranch_vccnz {t_}\n{d_}:')
            tails.append(f'{t_}:\ns_sub_u32 {sTO}, {sTO}, 1\ns_cbranch_scc0 {r_}\ns_mov_b32 {sTO}, 0\ns_branch {d_}')
            A(f'v_max_f32_dpp v74, v72, v72 quad_perm:[1,0,3,2] {DPP}')
            A(f'v_max_f32_dpp v74, v74, v74 quad_perm:[2,3,0,1] {DPP}')
            A(f'v_max_f32_dpp v74, v74, v74 row_half_mirror {DPP}')
            A('v_sub_f32 v72, v72, v74\nv_exp_f32 v72, v72\nv_mul_f32 v75, v73, v72')
            k = 0
            for m in ('quad_perm:[1,0,3,2]', 'quad_perm:[2,3,0,1]', 'row_half_mirror'):
                A(f'v_readlane_b32 s{80+k}, v72, {k}\nv_readlane_b32 s{81+k}, v72, {k+1}'); k += 2
                A(f'v_add_f32_dpp v75, v75, v75 {m} {DPP}')
            variant(ml_tagged, ml_plain)
            A('v_readlane_b32 s86, v72, 6\nv_readlane_b32 s87, v72, 7')
        with lowwaves(other, 's_waitcnt lgkmcnt(0)\ns_barrier'):
            for k in range(8): A(f'ds_read_b64 v[{80+2*k}:{81+2*k}], {vROR} offset:{8192*k}')
            for k in range(8):
                sp = f's[{80+(k&~1)}:{81+(k&~1)}]'
                o = 'op_sel_hi:[1,0' if (k & 1) == 0 else 'op_sel:[0,1'
                d = 64 + 2 * (k & 1)
                if k % 2 == 0: A(f's_waitcnt lgkmcnt({6-k})')
                if k < 2: A(f'v_pk_mul_f32 v[{d}:{d+1}], v[{80+2*k}:{81+2*k}], {sp} {o}]')
                else: A(f'v_pk_fma_f32 v[{d}:{d+1}], v[{80+2*k}:{81+2*k}], {sp}, v[{d}:{d+1}] {o},{1 if (k&1)==0 else 0}]')
            A('v_pk_add_f32 v[64:65], v[64:65], v[66:67]\nv_cvt_pk_bf16_f32 v64, v64, v65')
            def pub_tagged():
                A(f'v_mov_b32 v66, {sTAG}\nv_mov_b32 v67, {sTAG}\nv_mov_b32_dpp v65, v64 quad_perm:[1,1,3,3] {DPP}')
                lstore(f'buffer_store_dwordx4 v[64:67], v118, {WS}, 0 offen')
                A(f'v_mov_b32 v76, -1\nv_mov_b32 v77, -1\nds_write_b64 {vRMR}, v[76:77]')
            def pub_plain(): lstore(f'buffer_store_dword v64, {vL4}, {WS}, {sOPst} offen')
            variant(pub_tagged, pub_plain)

    A('v_mov_b32 v118, v110\nv_mov_b32 v114, 0\ns_mov_b32 s80, 0\ns_mov_b32 s81, 0\ns_mov_b32 s82, 0\ns_mov_b32 s83, 0\ns_mov_b32 s84, 0\ns_mov_b32 s85, 0')
    A(f's_mul_i32 {t1}, {sC}, 1312\ns_add_u32 {t1}, {t1}, {sGBASE}\ns_add_u32 {t1}, {t1}, {bGP - 7168}\ns_sub_u32 {t2}, {sXst}, 7168')
    A(f'v_add_u32 v119, {t1}, v115\nv_add_u32 v120, {t2}, v115\nv_add_u32 {vTMP}, {oXB - oXA - 512}, v120\nv_cmp_lt_u32 vcc, 31, {vL}'); sel('v120', 'v120', vTMP)
    A(f'v_add_u32 v121, 1024, v119\nv_mov_b32 {vTMP}, {OOB}\nv_cmp_lt_u32 vcc, 17, {vL}'); sel('v121', 'v121', vTMP)
    A(f'v_cmp_gt_u32 vcc, 7168, v115'); sel('v119', 'v119', vTMP); sel('v120', 'v120', vTMP); sel('v121', 'v121', vTMP)
    def clean_urgent():
        A('v_mov_b32 v92, -1\nv_mov_b32 v93, -1\nv_mov_b32 v94, -1\nv_mov_b32 v95, -1')
        A.vmop(f'buffer_store_dwordx4 v[92:95], v119, {WS}, 0 offen sc1', 'cu')
        A.vmop(f'buffer_store_dwordx4 v[92:95], v120, {WS}, 0 offen sc1', 'cu')
        A.vmop(f'buffer_store_dwordx4 v[92:95], v121, {WS}, 0 offen sc1', 'cu')
    if share: A('s_branch L_scores\nL_scored:')
    else: scores(False)
    d0 = max([6] + [d_ for p_ in range(12, p_sc) for d_ in wait_of[p_]])
    assert d0 >= 17
    for i in range(d0 - 15): pv(i)
    lsum()
    stamp()
    pend = [None]; csq_done = [False]
    def landed(d_):
        A.wait_vm(f'p{d_}')
        if pend[0] is not None: A('s_waitcnt lgkmcnt(0)')
        read_v(d_)
        if pend[0] is not None: pv(pend[0])
        pend[0] = d_ - 16
        if d_ >= csq_at and not csq_done[0] and not abl:
            csq_done[0] = True
            keep_vm = list(A.vm)
            with lowwaves(): finish_csq()
            A.vm = keep_vm
    for p in range(p_sc, 32):
        for d_ in wait_of[p]: landed(d_)
        piece(p, p == p_sc)
    for p in range(last_read + 1, 32):
        landed(p)
        if p == cl_at and 'C' not in abl: clean_urgent()
        if p == wt_at and 'W' not in abl:
            assert cl_at <= wt_at
            issue_wo()
            if tail_parts: issue_ffn(0, True, tail_parts)
    A('s_waitcnt lgkmcnt(0)')
    pv(pend[0])
    if padfrom == 'V': A('s_memrealtime s[98:99]\ns_waitcnt lgkmcnt(0)')
    stamp()
    if abl: A('s_branch L_fin')
    def flag_addr():
        A(f's_lshl_b32 {t1}, {sLO}, 10\ns_lshl_b32 {t2}, {sG}, 7\nv_and_b32 v68, 7, {vL}\nv_and_b32 v69, 24, {vL}\nv_lshlrev_b32 v68, 7, v68\nv_lshl_add_u32 v68, v69, 10, v68\nv_add_u32 v68, {t1}, v68')
        A(f'v_and_b32 v69, 31, {vL}\nv_lshlrev_b32 v69, 10, v69\nv_add_u32 v69, {t2}, v69\nv_cmp_lt_u32 vcc, 31, {vL}'); sel('v68', 'v68', 'v69')
        A(f's_mov_b32 {t1}, {TF}')
    def clean_rest():
        l_ = lab('cr')
        A(f's_cmp_lg_u32 {sW}, 7\ns_cbranch_scc1 {l_}')
        A(f'v_mov_b32 v64, -1\nv_mov_b32 v65, -1\nv_mov_b32 v66, -1\nv_mov_b32 v67, -1\nv_lshlrev_b32 v68, 2, {vL4}')
        A(f's_add_u32 {t1}, {sXst}, {LS}\nv_add_u32 v69, {oXB - oXA - 512}, v68\nv_cmp_lt_u32 vcc, 31, {vL}'); sel('v69', 'v68', 'v69')
        A(f'buffer_store_dwordx4 v[64:67], v69, {WS}, {t1} offen sc1')
        A(f's_mul_i32 {t2}, {sC}, 3168\ns_add_u32 {t2}, {t2}, {sGBASE}\ns_add_u32 {t2}, {t2}, {LS}')
        for k_ in range(3): A(f'buffer_store_dwordx4 v[64:67], v68, {WS}, {t2} offen offset:{1024*k_} sc1')
        A(f's_mov_b64 exec, 63\nbuffer_store_dwordx4 v[64:67], v68, {WS}, {t2} offen offset:3072 sc1\ns_mov_b64 exec, -1\n{l_}:')
    def clean_first():
        l_ = lab('c7')
        A(f's_cmp_lg_u32 {sW}, 7\ns_cbranch_scc1 {l_}')
        A(f's_lshl_b32 {t1}, s2, 7\ns_add_u32 {t1}, {t1}, {TF}\nv_mov_b32 v69, {sTAG}')
        if fullflag:
            A(f's_mov_b32 exec_hi, 0\ns_waitcnt vmcnt({2 + len(tail_parts)})\nbuffer_store_dword v69, {vL4}, {WS}, {t1} offen sc1')
        else:
            A(f's_mov_b64 exec, 1\ns_waitcnt vmcnt({2 + len(tail_parts)})\nbuffer_store_dword v69, off, {WS}, {t1} sc1')
        full_exec()
        n4 = lab('n4')
        if not use_early:
            A(f'{l_}:')
            if mid_parts:
                A(f's_sleep {mid_sleep}')
                issue_ffn(-4, False, mid_parts); issue_ffn(0, False, mid_parts)
            A(f's_lshl_b32 {t1}, {sLO}, 3\ns_add_u32 {t1}, {t1}, {sW}\ns_mul_i32 {t1}, {t1}, {8*3584}\ns_lshl_b32 {t2}, {g2}, 7\ns_add_u32 s81, {t1}, {t2}\ns_sub_u32 s80, s81, {32*3584}')
            A(f's_lshl_b32 {t1}, {g2}, 3\ns_add_u32 {t1}, {t1}, {sW}\ns_lshl_b32 {t1}, {t1}, 6\ns_add_u32 {t1}, {t1}, {sLO}\ns_lshl_b32 s83, {t1}, 7\ns_sub_u32 s82, s83, 32768')
            A(f's_lshl_b32 s84, {sW}, 10\ns_sub_u32 s84, s84, 4096')
            flag_addr()
            A(f'v_mov_b32 v114, v68\ns_mov_b32 s85, {TF}\ns_waitcnt vmcnt({2 * len(mid_parts)})')
            return
        A(f'{l_}:\ns_cmp_lg_u32 {sW}, 4\ns_cbranch_scc1 {n4}')
        flag_addr()
        A(f's_sleep {fearly}\nbuffer_load_dword v69, v68, {WS}, {t1} offen sc1\ns_waitcnt vmcnt(0)\nv_cmp_ne_u32 vcc, {sTAG}, v69\ns_cbranch_vccnz {n4}')
        A(f's_mov_b32 {sCNT}, 1\nv_mov_b32 v68, {L_FL}\nv_mov_b32 v69, 1\nds_write_b32 v68, v69\n{n4}:')
    if share:
        inloop[0] = True
        A('L_merge:')
        combine(None, first_only(clean_first))
    else: combine(True, clean_first)
    stamp(True)

    if prio:
        l_ = lab('pr'); A(f's_cmp_ge_u32 {sW}, 4\ns_cbranch_scc1 {l_}\ns_setprio 1\n{l_}:')
    A('L_layer:'); inloop[0] = True
    def proj_body(nk, vb, boff, xoff, late_w=None, tagged=False):
        if late_w: late_w()
        for j in range(nk):
            if not late_w: A(f's_waitcnt lgkmcnt({nk-1-j})')
            elif j == 0: A('s_waitcnt lgkmcnt(0)')
            c = '0' if j == 0 else 'v[96:99]'
            A(f'{M16} v[96:99], v[{48+4*j}:{51+4*j}], v[{64+4*j}:{67+4*j}], {c}')
        if tagged:
            A(f'v_mov_b32 v102, {sTAG}\nv_mov_b32 v103, {sTAG}\nv_cvt_pk_bf16_f32 v100, v96, v97\nv_cvt_pk_bf16_f32 v101, v98, v99')
            A(f'buffer_store_dwordx4 v[100:103], v47, {WS}, 0 offen sc1')
            if diag2: xstamp(52)
        else:
            A(f's_add_u32 {t1}, {sXst}, {xoff}')
            A('v_cvt_pk_bf16_f32 v96, v96, v97\nv_cvt_pk_bf16_f32 v97, v98, v99')
            A(f'buffer_store_dwordx2 v[96:97], {vXst}, {WS}, {t1} offen sc1')
    def proj_out(nk, vb, boff, xoff, first=None, bar='s_waitcnt lgkmcnt(0)\ns_barrier'):
        sk, dl = lab('sk'), lab('dl')
        A(f's_cmp_ge_u32 {sW}, 4\n{bar}\ns_cbranch_scc1 {sk}')
        for j in range(nk): A(f'ds_read_b128 v[{64+4*j}:{67+4*j}], {vb} offset:{boff+64*j}')
        if first: variant(first, lambda: proj_body(nk, vb, boff, xoff))
        else: proj_body(nk, vb, boff, xoff)
        return sk, dl
    def g_wait(sk, dl, pre, busy_first=False, hi_pre=None, lo_d=None, hi_d=None, extra0=0):
        pre()
        A(f's_sleep {lo_d or gdelay}')
        A(f's_branch {dl}\n{sk}:')
        if hi_pre: hi_pre()
        A(f's_sleep {hi_d or gdelay_hi}')
        A(f'{dl}:')
        if extra0: first_only(lambda: A(f's_sleep {extra0}'))()
    def reduce_x(xoff, final, first=None):
        def normal():
            A(f's_add_u32 {t0}, {sXg}, {xoff}')
            sp = lambda b: A(f'{M16} v[96:99], {SELA}, v[{b}:{b+3}], 0\n{M16} v[96:99], {SELA}, v[{b+4}:{b+7}], v[96:99]')
            if not dual & 16:
                poll(lambda: issue_g1(64, vXg, t0, 'x', 8192), range(64, 72), lambda: sp(64), None if final else 'L_xa_landed')
                return
            d, tl, lp = lab('got'), lab('again'), lab('lp')
            issue_g1(64, vXg, t0, 'x', 8192); A.wait_vm()
            sp(64); check_empty(range(64, 72))
            A(f's_cbranch_vccnz {tl}\n{d}:')
            keepL, A.L = A.L, []
            A(f'{tl}:'); issue_g1(64, vXg, t0, 'x', 8192)
            A(f's_sleep {dstep}\n{lp}:'); issue_g1(72, vXg, t0, 'x', 8192)
            A('s_waitcnt vmcnt(2)'); sp(64); check_empty(range(64, 72))
            A(f's_nop 1\ns_cbranch_vccz {d}'); issue_g1(64, vXg, t0, 'x', 8192)
            A('s_waitcnt vmcnt(2)'); sp(72); check_empty(range(72, 80))
            A(f's_nop 1\ns_cbranch_vccz {d}\ns_sub_u32 {sTO}, {sTO}, 1\ns_cbranch_scc0 {lp}\ns_mov_b32 {sTO}, 0\ns_branch {d}')
            tails.append('\n'.join(A.L)); A.L = keepL
            A.vm = []
        if first: variant(first, normal)
        else: normal()
        stamp()
        A(f'v_add_f32_dpp v96, v96, v96 row_ror:4 {DPP}\nv_add_f32_dpp v97, v97, v97 row_ror:4 {DPP}')
        if final: A(f's_cmp_eq_u32 {sLIDX}, 1')
        A(f'v_add_f32_dpp v96, v96, v96 row_ror:8 {DPP}\nv_add_f32_dpp v97, v97, v97 row_ror:8 {DPP}')
        A(f'v_pk_add_f32 {XRES}, {XRES}, v[96:97]\nv_cvt_pk_bf16_f32 v96, v112, v113')
        if final: A(f's_cbranch_scc1 L_out')
        A(f'ds_write_b32 {vXW}, v96')
    def issue_o():
        issue_g1(64, vG1, sOg, 'o')
        A.vmop(f'buffer_load_dwordx2 v[72:73], {vML2}, {WS}, {sMLg} offen sc1', 'o')
        A.vmop(f'buffer_load_dwordx2 v[74:75], {vML2}, {WS}, {sMLg} offen offset:32 sc1', 'o')
    def wo_weights(ma, la, mb, lb, selreg, mm=None):
        A(f'v_max_f32 v76, v{ma}, v{mb}\nv_mov_b32 v77, v76\nv_permlane16_swap_b32 v76, v77\nv_max_f32 v76, v76, v77')
        A('v_mov_b32 v77, v76\nv_permlane32_swap_b32 v76, v77\nv_max_f32 v76, v76, v77')
        A(f'v_sub_f32 v{ma}, v{ma}, v76\nv_sub_f32 v{mb}, v{mb}, v76\nv_exp_f32 v{ma}, v{ma}\nv_exp_f32 v{mb}, v{mb}')
        A(f'v_cvt_pk_bf16_f32 v{ma}, v{ma}, v{ma}\nv_cvt_pk_bf16_f32 v{mb}, v{mb}, v{mb}')
        for i in range(4): A(f'v_and_b32 v{selreg+i}, v{MASK+i}, v{ma}')
        for i in range(4): A(f'v_and_b32 v{selreg+4+i}, v{MASK+i}, v{mb}')
        if mm: mm()
        A(f'v_and_b32 v{ma}, 0xffff0000, v{ma}\nv_and_b32 v{mb}, 0xffff0000, v{mb}\nv_mul_f32 v79, v{la}, v{ma}\nv_fmac_f32 v79, v{lb}, v{mb}')
        A('v_mov_b32 v77, v79\nv_permlane16_swap_b32 v79, v77\nv_add_f32 v79, v79, v77')
        A('v_mov_b32 v77, v79\nv_permlane32_swap_b32 v79, v77\nv_add_f32 v79, v79, v77\nv_rcp_f32 v78, v79')
    def two_sets(iss, nld, between, spec, chk):
        d, sb, sa = lab('got'), lab('setb'), lab('seta')
        iss(0); between(); iss(1)
        A(f'{sa}:\ns_waitcnt vmcnt({nld})')
        spec(0); chk(0)
        A(f's_cbranch_vccnz {sb}\n{d}:')
        keepL, A.L = A.L, []
        A(f'{sb}:'); iss(0)
        A(f's_waitcnt vmcnt({nld})\ns_nop 3')
        spec(1); chk(1)
        A(f's_nop 3\ns_cbranch_vccz {d}'); iss(1)
        A(f's_sub_u32 {sTO}, {sTO}, 1\ns_cbranch_scc0 {sa}\ns_mov_b32 {sTO}, 0\ns_branch {d}')
        tails.append('\n'.join(A.L)); A.L = keepL
        A.vm = []
    def wo_later():
        A('s_waitcnt vmcnt(2)')
        read_wo()
        def iml():
            A.vmop(f'buffer_load_dwordx2 v[72:73], {vML2}, {WS}, {sMLg} offen sc1', 'o')
            A.vmop(f'buffer_load_dwordx2 v[74:75], {vML2}, {WS}, {sMLg} offen offset:32 sc1', 'o')
        poll(iml, range(72, 76))
        b_ = (100, 116)
        two_sets(lambda k: issue_g1(b_[k], vG1, sOg, 'o'), 2, lambda: wo_weights(72, 73, 74, 75, 80),
                 lambda k: A(f'{M16} v[96:99], v[80:83], v[{b_[k]}:{b_[k]+3}], 0\n{M16} v[96:99], v[84:87], v[{b_[k]+4}:{b_[k]+7}], v[96:99]'),
                 lambda k: check_empty(range(b_[k], b_[k] + 8)))
        stamp()
    def wo_first():
        sets = ((80, 64), (48, 100))
        def iss(k):
            o0dst[0], o0ml[0] = sets[k]; issue_o0()
        def chk(k):
            a_, m_ = sets[k]; check_tags((a_ + 2, a_ + 6, a_ + 10, a_ + 14, m_ + 2, m_ + 6))
        def fin(k):
            a_, m_ = sets[k]; wo_weights(m_, m_ + 1, m_ + 4, m_ + 5, 116, lambda: tagged_sum(116, a_, 96, 4))
        lp, ga, gb, en = lab('lp'), lab('ga'), lab('gb'), lab('en')
        iss(0); A(f's_sleep {dstep}\n{lp}:'); iss(1)
        A('s_waitcnt vmcnt(6)'); chk(0); A(f's_cbranch_vccz {ga}')
        iss(0); A('s_waitcnt vmcnt(6)'); chk(1); A(f's_cbranch_vccz {gb}')
        A(f's_sub_u32 {sTO}, {sTO}, 1\ns_cbranch_scc0 {lp}\ns_mov_b32 {sTO}, 0\n{gb}:')
        stamp(); fin(1); A(f's_branch {en}\n{ga}:')
        nts[0] -= 1 if ts else 0; stamp(); fin(0); A(f'{en}:\ns_waitcnt vmcnt(0)')
        A.vm = []
    with lowwaves():
        variant(wo_first, wo_later)
        A('v_pk_mul_f32 v[96:97], v[96:97], v[78:79] op_sel_hi:[1,0]\nv_cvt_pk_bf16_f32 v96, v96, v97')
        A(f'ds_write_b32 {vQW}, v96 offset:{L_OS-L_QS}')
    if padfrom == 'O': first_only(lambda: A('s_memrealtime s[98:99]\ns_waitcnt lgkmcnt(0)'))()
    if padfrom == 'P': A('s_memrealtime s[98:99]\ns_waitcnt lgkmcnt(0)')
    if diag2: first_only(lambda: xstamp(50))()
    sk, dl = proj_out(4, vBR320, L_OS - L_QS, 0, lambda: (proj_body(4, vBR320, L_OS - L_QS, 0, read_wo), xstamp(52) if diag2 else None))
    leave_ = [None]
    def touch_lines(bases, r=80):
        for sb, off in bases:
            A(f's_add_u32 {t0}, {sb}, {off}\ns_add_u32 {t1}, {t0}, 4096')
            A(f'buffer_load_dwordx4 v[{r}:{r+3}], {vG1}, {WS}, {t0} offen sc1\nbuffer_load_dwordx4 v[{r+4}:{r+7}], {vG1}, {WS}, {t1} offen sc1')
    def touch_small(bases, r=88):
        for sb, off in bases:
            A(f's_add_u32 {t0}, {sb}, {off}\nbuffer_load_dwordx2 v[{r}:{r+1}], {vSt8}, {WS}, {t0} offen sc1')
    def watch_flags():
        l_, r_, d_ = lab('w4'), lab('fr'), lab('fd')
        A(f's_cmp_lg_u32 {sW}, 4\ns_cbranch_scc1 {l_}\ns_cmp_eq_u32 {sCNT}, 1\ns_cbranch_scc1 {l_}')
        flag_addr()
        if fdelay: A(f's_sleep {fdelay}')
        e_ = lab('fe')
        A(f'buffer_load_dword v69, v68, {WS}, {t1} offen sc1\ns_waitcnt vmcnt(0)\nv_cmp_ne_u32 vcc, {sTAG}, v69\ns_cbranch_vccz {d_}')
        A(f'{r_}:\ns_sleep {fback}\nbuffer_load_dword v69, v68, {WS}, {t1} offen sc1\ns_waitcnt vmcnt(0)\nv_cmp_ne_u32 vcc, {sTAG}, v69\ns_cbranch_vccz {e_}')
        A(f's_sub_u32 {sTO}, {sTO}, 1\ns_cbranch_scc0 {r_}\ns_mov_b32 {sTO}, 0\n{e_}:')
        if flate: A(f's_sleep {flate}')
        A(f'{d_}:')
        A(f'v_mov_b32 v68, {L_FL}\nv_mov_b32 v69, 1\nds_write_b32 v68, v69')
        if diag2: xstamp(51)
        A(f's_branch {after_sleep[0]}\n{l_}:')
    def await_flags():
        r_, d_ = lab('ar'), lab('ad')
        A(f'v_mov_b32 v68, {L_FL}\n{r_}:\nds_read_b32 v69, v68\ns_waitcnt lgkmcnt(0)\nv_cmp_eq_u32 vcc, 1, v69\ns_cbranch_vccnz {d_}')
        A(f's_sleep 1\ns_sub_u32 {sTO}, {sTO}, 1\ns_cbranch_scc0 {r_}\ns_mov_b32 {sTO}, 0\n{d_}:')
        if touch_g:
            with lowwaves(): touch_lines([(sGg, 0)])
    after_sleep = [None]
    def w567(parts=None, pause=0):
        l_ = lab('f5'); A(f's_cmp_eq_u32 {sW}, 4\ns_cbranch_scc1 {l_}')
        if pause: A(f's_sleep {pause}')
        for dw in (-5, -2, 1):
            k_ = lab('fs')
            if dw == 1: A(f's_cmp_eq_u32 {sW}, 7\ns_cbranch_scc1 {k_}')
            issue_ffn_any(dw, parts)
            A(f'{k_}:')
        A(f'{l_}:')
    def quick_gu():
        for k_ in range(2):
            if 'g' not in tail_parts: A(f's_add_u32 m0, s84, {L_WG + 4096 * k_}\ns_nop 0\nbuffer_load_dwordx4 v126, {WG}, s{80+k_} offen nt lds')
            A(f's_add_u32 m0, s84, {L_WU + 4096 * k_}\ns_nop 0\nbuffer_load_dwordx4 v126, {WU}, s{80+k_} offen nt lds')
    def quick_d():
        for k_ in range(2):
            A(f's_add_u32 m0, s84, {L_WD + 4096 * k_}\ns_nop 0\nbuffer_load_dwordx4 v127, {WD}, s{82+k_} offen nt lds')
    def hi_first():
        o_, r_, e_, d_ = lab('fo'), lab('fr'), lab('fe'), lab('fd')
        nod = wd_behind or 'd' in tail_parts
        nw = (4 if nod else 6) - (2 if 'g' in tail_parts else 0)
        A(f's_cmp_lg_u32 {sW}, 4\ns_cbranch_scc1 {o_}')
        A(f'buffer_load_dword v69, v114, {WS}, s85 offen sc1')
        quick_gu()
        if not nod: quick_d()
        A(f's_waitcnt vmcnt({nw})\nv_cmp_ne_u32 vcc, {sTAG}, v69\ns_cbranch_vccz {d_}')
        A(f'{r_}:\ns_sleep {fback}\nbuffer_load_dword v69, v114, {WS}, s85 offen sc1\ns_waitcnt vmcnt(0)\nv_cmp_ne_u32 vcc, {sTAG}, v69\ns_cbranch_vccz {e_}')
        A(f's_sub_u32 {sTO}, {sTO}, 1\ns_cbranch_scc0 {r_}\ns_mov_b32 {sTO}, 0\n{e_}:')
        if flate: A(f's_sleep {flate}')
        A(f'{d_}:\nv_mov_b32 v68, {L_FL}\nv_mov_b32 v69, 1\nds_write_b32 v68, v69')
        if diag2: xstamp(51)
        A(f's_sleep {hi4}\ns_branch {after_sleep[0]}\n{o_}:\ns_sleep 1')
        quick_gu()
        if not nod: quick_d()
        if diag2:
            l_ = lab('d5'); A(f's_cmp_lg_u32 {sW}, 5\ns_cbranch_scc1 {l_}'); xstamp(53); A('s_waitcnt vmcnt(0)'); xstamp(55); A(f's_branch {after_sleep[0]}\n{l_}:')
        clean_rest()
    def hi_xb():
        leave_[0]()
        if touch_att:
            first_only(lambda: (touch_lines([(sQg, 0)]), touch_small([(sQSg, 0)])))()
            return
        if touch1 & 4: first_only(lambda: (touch_lines([(sGg, LS)]), touch_small([(sGSg, LS)])))()
        if touch1 & 8: first_only(lambda: (touch_lines([(sQg, 0), (sOg, LS)]), touch_small([(sQSg, 0), (sMLg, LS)])))()
    late_gu = 'u' not in tail_parts
    go, aw = lab('go'), lab('aw')
    after_sleep[0] = aw
    def lo_pre():
        if not late_gu: read_gu()
        A(f's_cmp_eq_u32 {sLIDX}, 0\ns_cbranch_scc1 {aw}_lo')
        if late_gu: read_gu()
    def hi_pre():
        A(f's_cmp_eq_u32 {sLIDX}, 0\ns_cbranch_scc1 {aw}_hi')
    g_wait(sk, dl, lo_pre, False, hi_pre)
    A(f'{go}:')
    keepL, A.L = A.L, []
    A(f'{aw}_hi:')
    hi_first()
    A(f's_sleep {hi0}\ns_branch {aw}\n{aw}_lo:\ns_sleep {lo0}\n{aw}:')
    await_flags()
    if wd_behind:
        A(f's_cmp_lt_u32 {sW}, 4\ns_cbranch_scc1 {go}\ns_mov_b32 {t0}, {sXg}')
        issue_g1(64, vXg, t0, 'x', 8192); quick_d()
        A(f's_waitcnt vmcnt(2)\ns_branch L_xa_landed')
    else: A(f's_branch {go}')
    tails.append('\n'.join(A.L)); A.L = keepL
    stamp()
    if diag2: A(f's_mov_b32 s65, {sTO}')
    reduce_x(0, False)
    if padfrom == 'X': first_only(lambda: A('s_memrealtime s[98:99]\ns_waitcnt lgkmcnt(0)'))()
    if diag2: first_only(lambda: A(f's_sub_u32 s65, s65, {sTO}\nv_readlane_b32 s94, {vTS}, 0\ns_mul_i32 s65, s65, 100\ns_add_u32 s65, s65, s94\nv_writelane_b32 {vTS}, s65, 54'))()
    def issue_gp(first):
        issue_g1(64, vG1, sGg, 'g')
        A.vmop(f'buffer_load_dwordx2 v[72:73], {vSt8}, {WS}, {sGSg} offen sc1', 'g')
        if first:
            A(f'v_and_b32 {vTMP}, 0xf0, {vG1}\nv_and_b32 {vTMP2}, 0xc00, {vG1}\nv_lshrrev_b32 {vTMP2}, 2, {vTMP2}\nv_or_b32 {vTMP}, {vTMP}, {vTMP2}')
            issue_g1(80, vTMP, sGCg, 'g', 1024)
    def ffn_gather(first):
        def f():
            if ldelay and not first: A(f's_sleep {ldelay}')
            if dual & 32 and first:
                sets = ((64, 80), (102, 116))
                A(f'v_and_b32 v114, 0xf0, {vG1}\nv_and_b32 {vTMP2}, 0xc00, {vG1}\nv_lshrrev_b32 {vTMP2}, 2, {vTMP2}\nv_or_b32 v114, v114, {vTMP2}')
                def iss(k):
                    a_, c_ = sets[k]
                    issue_g1(a_, vG1, sGg, 'x')
                    A.vmop(f'buffer_load_dwordx2 v[{a_+8}:{a_+9}], {vSt8}, {WS}, {sGSg} offen sc1', 'x')
                    issue_g1(c_, 'v114', sGCg, 'x', 1024)
                def spec(k):
                    a_, c_ = sets[k]
                    A(f'{M16} v[96:99], {SELG}, v[{a_}:{a_+3}], 0\n{M16} v[96:99], {SELG}, v[{a_+4}:{a_+7}], v[96:99]')
                    A(f'{M16} v[88:91], {SELG}, v[{c_}:{c_+3}], 0\n{M16} v[88:91], {SELG}, v[{c_+4}:{c_+7}], v[88:91]')
                    A(f'v_add_f32_dpp v78, v{a_+8}, v{a_+8} quad_perm:[1,0,3,2] {DPP}\nv_add_f32_dpp v79, v{a_+9}, v{a_+9} quad_perm:[1,0,3,2] {DPP}')
                poll2(iss, 5, lambda k: list(range(sets[k][0], sets[k][0] + 10)) + list(range(sets[k][1], sets[k][1] + 8)), spec)
                ln_finish(CSG, 1.0, True, 88)
                return
            if nanchk and not first:
                ln_poll_nan(sGg, sGSg, SELG, CSG, 1.0); return
            if dual & 2 and not first: ln_poll2(sGg, sGSg, SELG, (80, 100))
            else: poll(lambda: issue_gp(first), QREGS1 if first else QREGS, ln_spec(SELG, first))
            ln_finish(CSG, 1.0, first)
        return f
    def hi_after_xa():
        slice_stats(sGSst)
        def f():
            if wd_after: w567('d')
            if rest_at == 'g0': clean_rest()
        if wd_after or rest_at == 'g0': first_only(f)()
    with lowwaves(hi_after_xa, 's_waitcnt lgkmcnt(0)\ns_barrier'):
        matvec(vGst, 'plain', first_only(read_gu) if late_gu else None, sLAY)
        stamp()
        if wd_after or wd_behind: later_only(read_wd)
        else: read_wd()
        variant(ffn_gather(True), ffn_gather(False))
        stamp()
        A('v_max_f32 v96, 0, v96\nv_mul_f32 v96, v96, v97\nv_cvt_pk_bf16_f32 v96, v96, v96')
        A(f'ds_write_b16 {vHW}, v96')
    if padfrom == 'G': first_only(lambda: A('s_memrealtime s[98:99]\ns_waitcnt lgkmcnt(0)'))()
    sk, dl = proj_out(2, vBR192, 0, oXB - oXA, (lambda: proj_body(2, vBR192, 0, oXB - oXA, read_wd)) if (wd_after or wd_behind) else None)
    def leave():
        no = lab('no')
        A(f's_cmp_eq_u32 {sLIDX}, 0\ns_cbranch_scc1 {no}\ns_cmp_lg_u32 {sHI}, 0\ns_cbranch_scc1 L_fin\ns_cmp_lg_u32 {sG}, {sLO}\ns_cbranch_scc1 L_fin\n{no}:')
    def pre_q():
        leave()
        read_wq()
    leave_[0] = leave
    g_wait(sk, dl, pre_q, False, hi_xb, gd_b, gdh_b, xb0)
    stamp()
    reduce_x(oXB - oXA, True)
    keep = nts[0]; nts[0] -= 11
    def advance():
        A(f's_mov_b32 {sLIDX}, 1\ns_mov_b32 {sLAY}, {LS}')
        for s in (sOg, sGg, sMLg, sGSg, sXg, sOPst, sMLst, sXst, sGSst):
            A(f's_add_u32 {s}, {s}, {LS}')
    if padfrom == 'B': A('s_memrealtime s[98:99]\ns_waitcnt lgkmcnt(0)')
    with lowwaves(lambda: (slice_stats(sQSst), advance()), 's_waitcnt lgkmcnt(0)\ns_barrier'):
        matvec(vQst, 'plain')
        advance()
        stamp()
        if ldelay: A(f's_sleep {ldelay}')
        if nanchk:
            ln_poll_nan(sQg, sQSg, SELA, CSQ, QSCALE)
            stamp()
            A(f'v_cvt_pk_bf16_f32 v96, v96, v97\nds_write_b32 {vQW}, v96')
        else:
            ln_poll2(sQg, sQSg, SELA, (48, 116))
            stamp()
            q_finish(False)
    if share:
        A('; ---- scores, row maximum, exp2, row sum (shared by both layers), P V')
        with lowwaves(lambda: (touch_lines([(sOg, 0), (sGg, 0)], 48), touch_small([(sMLg, 0), (sGSg, 0)], 56)), 's_waitcnt lgkmcnt(0)\ns_barrier'): pass
        A('L_scores:')
        scores(False)
        A(f's_cmp_eq_u32 {sLIDX}, 0\ns_cbranch_scc1 L_scored')
    else: scores()
    for i in range(16):
        pv(i)
        if i == 5: lsum()
    stamp()
    if share: A('s_branch L_merge')
    else:
        combine()
        stamp()
        A('s_branch L_layer')
    nts[0] = keep
    A('L_out:')
    A(f's_mov_b64 exec, {sM4}')
    A(f'buffer_store_dword v96, {vXO}, {OUT}, 0 offen' + (' sc1' if out_sc1 else ''))
    A(f's_or_b32 {t1}, s2, {sW}\ns_cmp_lg_u32 {t1}, 0\ns_cbranch_scc1 L_fin0')
    A(f's_mov_b64 exec, 1\nv_mov_b32 v97, {sTAG}\ns_mov_b32 {t2}, {EPOCH}\nbuffer_store_dword v97, off, {WS}, {t2} sc1')
    A('L_fin0:')
    full_exec()
    A('L_fin:')
    if wb:
        A(f's_cmp_lg_u32 {sC}, 31\ns_cbranch_scc1 L_nowb\ns_cmp_lg_u32 {sW}, 7\ns_cbranch_scc1 L_nowb\nbuffer_wbl2 sc1' + ('\ns_waitcnt vmcnt(0)' if wb == 1 else '') + '\nL_nowb:')
    if padto:
        A(f'L_pad:\ns_memrealtime s[94:95]\ns_waitcnt lgkmcnt(0)\ns_sub_u32 s94, s94, s98\ns_cmp_lt_u32 s94, {padto}\ns_cbranch_scc1 L_pad')
    if ts:
        stamp(True)
        A(f's_memtime s[94:95]\ns_waitcnt lgkmcnt(0)\ns_sub_u32 s94, s94, s98\nv_writelane_b32 {vTS}, s94, 63')
        A(f's_add_u32 s96, s96, 0x10000000\ns_addc_u32 s97, s97, 0\ns_lshl_b32 {t1}, s2, 11\nv_add_u32 v64, {t1}, {vT4}\nglobal_store_dword v64, {vTS}, s[96:97]')
        if dbgts:
            A(f's_or_b32 {t1}, s2, {sW}\ns_cmp_lg_u32 {t1}, 0\ns_cbranch_scc1 L_end')
            A(f'v_readlane_b32 {t1}, {vTS}, 0\nv_subrev_u32 v64, {t1}, {vTS}\nv_and_b32 v64, 0xffff, v64')
            A(f'v_mov_b32_dpp v65, v64 quad_perm:[1,1,3,3] {DPP}\nv_lshl_or_b32 v64, v65, 16, v64\nv_lshlrev_b32 v65, 1, {vL}')
            A(f's_mov_b32 exec_lo, 0x55555555\ns_mov_b32 exec_hi, 0\nbuffer_store_dword v64, v65, {DBG}, 0 offen sc1')
    A('s_endpgm')
    for t_ in tails: A(t_)
    A('L_end:\ns_endpgm')
    A(f'.section .rodata,"a"\n.p2align 6\n.amdhsa_kernel {NAME}_kernel')
    A('.amdhsa_next_free_vgpr 256\n.amdhsa_next_free_sgpr 102\n.amdhsa_accum_offset 128\n.amdhsa_group_segment_fixed_size 0\n.amdhsa_kernarg_size 96\n.amdhsa_user_sgpr_count 2\n.amdhsa_user_sgpr_kernarg_segment_ptr 1\n.amdhsa_system_sgpr_workgroup_id_x 1\n.end_amdhsa_kernel')
    txt, probs = A.text()
    for p in probs: print('HAZARD', p, file=sys.stderr)
    return txt, nts[0]

if __name__ == '__main__':
    out = sys.argv[1]
    kw = {}
    for a in sys.argv[2:]:
        k, v = a.split('='); kw[k] = eval(v)
    txt, n = build(**kw)
    open(out, 'w').write(txt)
    print('stamps', n, 'lines', txt.count('\n'))
```
